```python
import torch

def _softmax(x, axis=-1):
    return torch.softmax(x, dim=axis)
def _gelu(x):
    return torch.nn.functional.gelu(x, approximate="tanh")
def _silu(x):
    return torch.nn.functional.silu(x)
def _sigmoid(x):
    return torch.sigmoid(x)
def _layernorm(x, axis=-1, eps=1e-5):
    m = x.mean(dim=axis, keepdim=True)
    v = x.var(dim=axis, keepdim=True, unbiased=False)
    return (x - m) / torch.sqrt(v + eps)
def _scatter_add(tgt, idx, src, axis=0):
    return tgt.clone().index_add_(axis, idx, src)
def _segment_sum(src, seg, n):
    out = torch.zeros((n,) + src.shape[1:], dtype=src.dtype)
    return out.index_add_(0, seg, src)
def _pad(x, pw):
    flat = tuple(v for pair in reversed(pw) for v in pair)
    return torch.nn.functional.pad(x, flat)

kernel_name = 'sequential_preLN__compressed_kv_cla__moe_arch_mod__prompt'

def setup_inputs():

    _w = (lambda a: (lambda t: t.to(torch.bfloat16) if t.is_floating_point() else t)(torch.as_tensor(a)))
    def _A_setup():
        B, H, Sq, Sk, D, M = 1, 32, 2048, 2048, 128, 640
        Dc = 4 * D
        return {
            "x": _w((lambda *s: torch.randn(*s, dtype=torch.bfloat16) * 0.05)(B, Sq, M)),
            "c_kv": _w((lambda *s: torch.randn(*s, dtype=torch.bfloat16) * 0.4)(B, Sk, Dc)),
            "w_q": _w((lambda *s: torch.randn(*s, dtype=torch.bfloat16) * 3.2)(M, H, D) * (M ** -0.5)),
            "w_uk": _w((lambda *s: torch.randn(*s, dtype=torch.bfloat16) * 3.2)(Dc, H, D) * (Dc ** -0.5)),
            "w_uv": _w((lambda *s: torch.randn(*s, dtype=torch.bfloat16) * 0.4)(Dc, H, D) * (Dc ** -0.5)),
            "w_o": _w((lambda *s: torch.randn(*s, dtype=torch.bfloat16) * 0.4)(H, D, M) * ((H * D) ** -0.5)),
        }
    _A_in = _A_setup()

    def _B_setup():
        B, S, D, F, C = 1, 2048, 640, 1728, 1
        return {
            "x": _w((lambda *s: torch.randn(*s, dtype=torch.bfloat16) * 0.05)(B, S, D)),
            "w_r": _w((lambda *s: torch.randn(*s, dtype=torch.bfloat16) * 0.05)(D)),
            "w_gate": _w((lambda *s: torch.randn(*s, dtype=torch.bfloat16) * 0.05)(D, F)),
            "w_up": _w((lambda *s: torch.randn(*s, dtype=torch.bfloat16) * 0.05)(D, F)),
            "w_down": _w((lambda *s: torch.randn(*s, dtype=torch.bfloat16) * 0.05)(F, D)),
        }
    _B_in = _B_setup()

    return {
        "A_x": _A_in["x"],
        "A_c_kv": _A_in["c_kv"],
        "A_w_q": _A_in["w_q"],
        "A_w_uk": _A_in["w_uk"],
        "A_w_uv": _A_in["w_uv"],
        "A_w_o": _A_in["w_o"],
        "B_x": _B_in["x"],
        "B_w_r": _B_in["w_r"],
        "B_w_gate": _B_in["w_gate"],
        "B_w_up": _B_in["w_up"],
        "B_w_down": _B_in["w_down"],
    }

def reference(A_x, A_c_kv, A_w_q, A_w_uk, A_w_uv, A_w_o, B_x, B_w_r, B_w_gate, B_w_up, B_w_down):
    def _A_ref(x, c_kv, w_q, w_uk, w_uv, w_o):
        B, Sq, M = x.shape[0], x.shape[1], x.shape[2]
        Sk = c_kv.shape[1]
        H, D = w_q.shape[1], w_q.shape[2]
        q = torch.einsum("bqm,mhd->bhqd", x, w_q)
        k = torch.einsum("bkc,chd->bhkd", c_kv, w_uk)
        v = torch.einsum("bkc,chd->bhkd", c_kv, w_uv)
        scores = torch.einsum("bhqd,bhkd->bhqk", q, k) * (D ** -0.5)
        off = Sk - Sq
        qi = torch.arange(Sq)[:, None]
        kj = torch.arange(Sk)[None, :]
        cmask = kj <= (qi + off)
        scores = torch.where(cmask[None, None], scores, -1e9)
        p = _softmax(scores, axis=-1)
        ctx = torch.einsum("bhqk,bhkd->bhqd", p, v)
        return torch.einsum("bhqd,hdm->bqm", ctx, w_o)

    def _B_ref(x, w_r, w_gate, w_up, w_down):
        B, S, D = x.shape
        C = 1
        r = x @ w_r
        idx = torch.argsort(-r, axis=-1)[:, :C]
        idx_e = (lambda x, n, axis: torch.repeat_interleave(x, n, dim=axis))(idx.reshape(B, C, 1), D, axis=2)
        x_sel = (lambda x, i, axis: torch.take_along_dim(x, i, dim=axis))(x, idx_e, axis=1)
        g = _silu(x_sel @ w_gate)
        u = x_sel @ w_up
        y = (g * u) @ w_down
        r_sel = _sigmoid((lambda x, i, axis: torch.take_along_dim(x, i, dim=axis))(r, idx, axis=1))
        y = y * r_sel.reshape(B, C, 1)
        b_off = (torch.arange(B) * S).reshape(B, 1)
        flat_idx = (idx + b_off).reshape(B * C)
        zero = (x * 0.0).reshape(B * S, D)
        upd = _scatter_add(zero, flat_idx, y.reshape(B * C, D), axis=0)
        return x + upd.reshape(B, S, D)

    x = A_x
    h = x + _A_ref(_layernorm(x, axis=-1), A_c_kv, A_w_q, A_w_uk, A_w_uv, A_w_o)
    h2 = h + _B_ref(_layernorm(h, axis=-1), B_w_r, B_w_gate, B_w_up, B_w_down)
    return h2
```

```python
from gx import *

MiB = 1 << 20
WS_KF = 0
WS_VF = 16 * MiB
WS_XNF = 32 * MiB
WS_CTX = 36 * MiB
WS_PART = 52 * MiB
WS_H = 76 * MiB
WS_STAT = 80 * MiB
WS_YACC = 81 * MiB
SZ_KF = 16 * MiB
SZ_XNF = 64 * 40 * 1024
SZ_CTX = 16 * MiB
SZ_PART = 20 * MiB
SZ_H = 2048 * 640 * 2

ARG = dict(x=0, ckv=8, wq=16, wuk=24, wuv=32, wo=40, bx=48, wr=56, wg=64, wu=72, wd=80, out=88, dbg=96, ws=104)

def v(b, n=1): return f'v{b}' if n == 1 else f'v[{b}:{b+n-1}]'
def a(b, n=1): return f'a{b}' if n == 1 else f'a[{b}:{b+n-1}]'
def s(b, n=1): return f's{b}' if n == 1 else f's[{b}:{b+n-1}]'

def header(name):
    return f""".globl {name}
.p2align 8
.type {name},@function
{name}:
"""

def desc(name, vgpr, sgpr, accum):
    return f""".p2align 6
.amdhsa_kernel {name}
  .amdhsa_next_free_vgpr {vgpr}
  .amdhsa_next_free_sgpr {sgpr}
  .amdhsa_accum_offset {accum}
  .amdhsa_group_segment_fixed_size 0
  .amdhsa_kernarg_size 112
  .amdhsa_user_sgpr_count 2
  .amdhsa_user_sgpr_kernarg_segment_ptr 1
  .amdhsa_system_sgpr_workgroup_id_x 1
  .amdhsa_float_denorm_mode_32 3
  .amdhsa_float_denorm_mode_16_64 3
.end_amdhsa_kernel
"""

def srd(p, sreg, ptr, nbytes, off=0):
    if off:
        p(f's_add_u32 s{sreg}, s{ptr}, {off}')
        p(f's_addc_u32 s{sreg+1}, s{ptr+1}, 0')
    else:
        p(f's_mov_b32 s{sreg}, s{ptr}')
        p(f's_mov_b32 s{sreg+1}, s{ptr+1}')
    p(f's_mov_b32 s{sreg+2}, {nbytes}')
    p(f's_mov_b32 s{sreg+3}, 0x00020000')

def interleave(p, mfmas, gaps):
    for i, m in enumerate(mfmas):
        p(m)
        g = gaps[i] if i < len(gaps) else []
        g = [x for x in g]
        for x in g: p(x)
```

```python
import re

def _regs(tok):
    tok = tok.strip()
    neg = tok.lstrip('-')
    if neg.startswith('abs(') or neg.startswith('|'):
        neg = neg.replace('abs(', '').replace(')', '').replace('|', '')
    m = re.fullmatch(r'([vas])\[(\d+):(\d+)\]', neg)
    if m: return [m.group(1) + str(i) for i in range(int(m.group(2)), int(m.group(3)) + 1)]
    m = re.fullmatch(r'([vas])(\d+)', neg)
    if m: return [neg]
    if neg in ('vcc',): return ['vcc']
    if neg in ('vcc_lo', 'vcc_hi'): return ['vcc']
    if neg in ('exec',): return ['exec']
    if neg == 'm0': return ['m0']
    if neg == 'scc': return ['scc']
    return []

TRANS = ('v_exp_f32', 'v_log_f32', 'v_rcp_f32', 'v_rsq_f32', 'v_sqrt_f32', 'v_sin_f32', 'v_cos_f32')

class Ins:
    __slots__ = ('text', 'op', 'args', 'rd', 'wr', 'kind', 'mods', 'tag')
    def __init__(self, text, tag=None):
        self.text = text.strip()
        self.tag = tag
        t = self.text.split(';')[0].strip()
        parts = t.split(None, 1)
        self.op = parts[0]
        rest = parts[1] if len(parts) > 1 else ''
        ops = []; cur = ''; depth = 0
        for ch in rest:
            if ch == '[': depth += 1
            if ch == ']': depth -= 1
            if ch == ',' and depth == 0: ops.append(cur.strip()); cur = ''
            else: cur += ch
        if cur.strip(): ops.append(cur.strip())
        mods = []
        if ops:
            lp = ops[-1].split()
            ops[-1] = lp[0]; mods = lp[1:]
        self.args = ops; self.mods = mods
        self.rd = []; self.wr = []
        op = self.op
        R = lambda i: _regs(ops[i]) if i < len(ops) else []
        if op.startswith('v_mfma'):
            self.kind = 'mfma'; self.wr = R(0); self.rd = R(1) + R(2) + R(3)
        elif op.startswith('ds_read') or op.startswith('ds_bpermute') or op.startswith('ds_swizzle'):
            self.kind = 'dsr'; self.wr = R(0); self.rd = R(1) + (R(2) if op.startswith('ds_bperm') else [])
        elif op.startswith('ds_write') or op.startswith('ds_add') or op.startswith('ds_max'):
            self.kind = 'dsw'; self.rd = R(0) + R(1) + R(2)
        elif op.startswith('buffer_load'):
            if 'lds' in mods:
                self.kind = 'dma'; self.rd = R(0) + R(1) + R(2) + ['m0']
            else:
                self.kind = 'vld'; self.wr = R(0); self.rd = R(1) + R(2) + R(3)
        elif op.startswith('buffer_store'):
            self.kind = 'vst'; self.rd = R(0) + R(1) + R(2) + R(3)
        elif op.startswith('buffer_atomic'):
            self.kind = 'vat'; self.rd = R(0) + R(1) + R(2) + R(3)
            if 'sc0' in mods: self.wr = R(0)[:1] if len(R(0)) <= 2 else R(0)
        elif op.startswith('global_load'):
            self.kind = 'vld'; self.wr = R(0); self.rd = R(1) + R(2)
        elif op.startswith('global_store') or op.startswith('global_atomic'):
            self.kind = 'vst'; self.rd = R(0) + R(1) + R(2)
        elif op in ('buffer_inv', 'buffer_wbl2'):
            self.kind = 'vmisc'
        elif op.startswith('s_load') or op == 's_memtime' or op == 's_memrealtime':
            self.kind = 'smem'; self.wr = R(0); self.rd = R(1)
        elif op == 's_waitcnt': self.kind = 'wait'
        elif op == 's_nop': self.kind = 'nop'
        elif op == 's_barrier': self.kind = 'bar'
        elif op in ('s_endpgm', 's_sleep', 's_setprio'): self.kind = 'misc'
        elif op.startswith('s_cbranch') or op == 's_branch':
            self.kind = 'br'
            if 'scc' in op: self.rd = ['scc']
            if 'vcc' in op: self.rd = ['vcc']
            if 'exec' in op: self.rd = ['exec']
        elif op.startswith('s_cmp') or op.startswith('s_bitcmp'):
            self.kind = 'salu'; self.rd = R(0) + R(1); self.wr = ['scc']
        elif op.startswith('s_'):
            self.kind = 'salu'; self.wr = R(0); self.rd = sum((R(i) for i in range(1, len(ops))), [])
            if op in ('s_addk_i32', 's_mulk_i32'): self.rd += R(0)
            if any(op.startswith(p) for p in ('s_add', 's_sub', 's_and', 's_or', 's_xor', 's_lshl', 's_lshr', 's_ashr', 's_min', 's_max', 's_not', 's_bfe')):
                self.wr = self.wr + ['scc']
            if op.startswith('s_addc') or op.startswith('s_subb') or op.startswith('s_cselect'): self.rd += ['scc']
            if 'saveexec' in op: self.wr += ['exec']; self.rd += ['exec']
        elif op.startswith('v_cmp'):
            self.kind = 'valu'; self.wr = R(0); self.rd = R(1) + R(2) + ['exec']
            if op.startswith('v_cmpx'): self.wr += ['exec']
        elif op.startswith('v_'):
            self.kind = 'valu'
            self.wr = R(0)
            start = 1
            if op.startswith('v_add_co') or op.startswith('v_sub_co') or op.startswith('v_addc_co') or op.startswith('v_subb_co'):
                self.wr += R(1); start = 2
            self.rd = sum((R(i) for i in range(start, len(ops))), [])
            if op.startswith('v_fmac') or op.startswith('v_mac') or op.startswith('v_dot2c') or op.startswith('v_writelane') or op.startswith('v_pk_fmac'):
                self.rd += R(0)
            if op.startswith('v_permlane32_swap') or op.startswith('v_permlane16_swap'):
                self.wr = R(0) + R(1); self.rd = R(0) + R(1)
            if any(m.startswith('row_') or m.startswith('quad_perm') or m.startswith('wave_') for m in mods):
                self.kind = 'valu'; self.rd += R(0)
            if op.startswith('v_cndmask') and len(ops) == 3: self.rd += ['vcc']
        else:
            raise ValueError('unknown op ' + text)
    def is_dpp(self):
        return any(m.startswith('row_') or m.startswith('quad_perm') or m.startswith('wave_') for m in self.mods)

class Prog:
    def __init__(self):
        self.items = []
        self.uid = 0
    def __call__(self, s, tag=None):
        for l in s.split('\n'):
            l = l.strip()
            if not l or l.startswith(';'):
                if l: self.items.append(('raw', '    ' + l))
                continue
            if l.endswith(':'): self.items.append(('label', l[:-1]))
            else: self.items.append(Ins(l, tag))
    def label(self, n): self.items.append(('label', n))
    def nl(self, p='L'):
        self.uid += 1
        return f'{p}_{self.uid}'
    def text(self):
        out = []
        for it in self.items:
            if isinstance(it, Ins): out.append('    ' + it.text)
            elif it[0] == 'label': out.append(it[1] + ':')
            else: out.append(it[1])
        return '\n'.join(out) + '\n'
    def count(self):
        return sum(isinstance(i, Ins) for i in self.items)

def mfma_passes(op):
    if '32x32x16' in op: return 8
    if '16x16x32' in op: return 4
    raise ValueError(op)

def check_linear(seq, name='', verbose=True, entry_pending=None):
    errs = []
    n = len(seq)
    def states_between(i, j):
        s = 0
        for k in range(i + 1, j):
            if seq[k].kind == 'nop': s += int(seq[k].args[0], 0) + 1
            else: s += 1
        return s
    lastw = {}
    for j, c in enumerate(seq):
        rd = set(c.rd); wr = set(c.wr)
        lo = max(0, j - 40)
        for i in range(j - 1, lo - 1, -1):
            p = seq[i]
            pw = set(p.wr)
            need = 0; why = ''
            if p.kind == 'mfma':
                ps = mfma_passes(p.op)
                D = pw
                if c.kind == 'mfma':
                    C = set(_regs(c.args[3])) if len(c.args) > 3 else set()
                    AB = set(_regs(c.args[1]) + _regs(c.args[2]))
                    if AB & D: need = max(need, {4: 8, 8: 12}[ps]); why = 'mfma D->A/B'
                    if C & D:
                        if C == D and mfma_passes(c.op) == ps: pass
                        else: need = max(need, {4: 6, 8: 10}[ps]); why = 'mfma D->C partial'
                    if (wr & D) and not (C & D): need = max(need, {4: 8, 8: 12}[ps]); why = 'mfma WAW'
                elif c.kind in ('valu', 'vst', 'vat', 'dsw', 'dsr', 'vld', 'dma'):
                    if (rd & D) or (wr & D): need = max(need, {4: 8, 8: 12}[ps]); why = 'mfma D->valu/mem'
                Cp = set(_regs(p.args[3])) if len(p.args) > 3 else set()
                if c.kind == 'valu' and (wr & Cp) and not (wr & D): need = max(need, {4: 3, 8: 7}[ps]); why = 'mfma srcC WAR'
            elif p.kind == 'valu':
                vw = {r for r in pw if r[0] in 'va' and r != 'vcc'}
                sw = {r for r in pw if r[0] == 's' or r == 'vcc'}
                if c.kind == 'mfma' and (rd & vw): need = max(need, 2); why = 'valu->mfma'
                if p.op in TRANS and c.kind in ('valu', 'mfma', 'vst', 'dsw') and c.op not in TRANS and (rd & vw): need = max(need, 1); why = 'trans->valu'
                if p.op in TRANS and c.op in TRANS and (rd & vw): need = max(need, 1); why = 'trans->trans(safe)'
                if c.op.startswith('v_permlane') and (rd & vw): need = max(need, 2); why = 'valu->permlane'
                if (c.op.startswith('v_readlane') or c.op.startswith('v_readfirstlane')) and (rd & vw): need = max(need, 1); why = 'valu->readlane'
                if c.kind == 'valu' and c.is_dpp() and (rd & vw): need = max(need, 2); why = 'valu->dpp'
                if c.kind in ('vld', 'vst', 'vat', 'dma') and (rd & sw): need = max(need, 5); why = 'valu sgpr->vmem'
                if c.kind == 'valu' and (rd & sw): need = max(need, 2); why = 'valu sgpr->valu'
                if c.kind == 'salu' and (rd & sw): need = max(need, 1); why = 'valu sgpr->salu (pad)'
                if 'exec' in pw and c.kind == 'mfma': need = max(need, 4); why = 'exec->mfma'
                if 'exec' in pw and c.kind == 'valu' and c.is_dpp(): need = max(need, 5); why = 'exec->dpp'
            elif p.kind == 'salu':
                if 'm0' in pw and c.kind == 'dma': need = max(need, 1); why = 'm0->dma'
            elif p.kind in ('vst', 'vat'):
                data = set(_regs(p.args[0]))
                if len(data) >= 3 and (wr & data) and c.kind in ('valu',): need = max(need, 2); why = 'store data WAR'
                if len(data) >= 3 and (wr & data) and c.kind in ('dsr', 'vld', 'mfma'): need = max(need, 1); why = 'store data WAR'
            if need:
                s = states_between(i, j)
                if s < need: errs.append(f'[{name}] wait-state {why}: need {need} have {s}: #{i} "{p.text}" -> #{j} "{c.text}"')
    vm = []
    lg = []
    smem = []
    pend = {}
    for j, c in enumerate(seq):
        if c.kind == 'wait':
            m = re.search(r'vmcnt\((\d+)\)', c.text)
            if m:
                k = int(m.group(1))
                while len(vm) > k:
                    o = vm.pop(0)
                    for r in seq[o].wr:
                        if pend.get(r) == ('vm', o): del pend[r]
            m = re.search(r'lgkmcnt\((\d+)\)', c.text)
            if m:
                k = int(m.group(1))
                if smem and k > 0: errs.append(f'[{name}] lgkmcnt({k}) with smem outstanding at #{j}')
                while len(lg) > k:
                    o = lg.pop(0)
                    for r in seq[o].wr:
                        if pend.get(r) == ('lg', o): del pend[r]
                if k == 0:
                    for o in smem:
                        for r in seq[o].wr:
                            if pend.get(r) == ('sm', o): del pend[r]
                    smem = []
            continue
        for r in list(c.rd) + list(c.wr):
            if r in pend:
                if c.kind in ('dsr', 'vld') and r in c.wr and r not in c.rd and pend[r][0] == {'dsr': 'lg', 'vld': 'vm'}[c.kind]:
                    continue
                errs.append(f'[{name}] pending {pend[r]} reg {r} touched by #{j} "{c.text}" (producer "{seq[pend[r][1]].text}")')
        if c.kind in ('vld', 'vst', 'vat', 'dma'):
            vm.append(j)
            if len(vm) > 63: errs.append(f'[{name}] vmcnt overflow (>63 outstanding) at #{j}')
            for r in c.wr: pend[r] = ('vm', j)
        elif c.kind in ('dsr', 'dsw'):
            lg.append(j)
            for r in c.wr: pend[r] = ('lg', j)
            if len(lg) > 15: pass
        elif c.kind == 'smem':
            smem.append(j)
            for r in c.wr: pend[r] = ('sm', j)
    if verbose:
        for e in errs[:40]: print(e)
        if len(errs) > 40: print('...', len(errs), 'errors')
    return errs
```

```python
from gx import *

class P2(Prog):
    def __init__(self):
        super().__init__()
        self.vmq = []
    def vm(self, text, label=None, tag=None):
        self(text, tag)
        self.vmq.append(label)
    def ds(self, text, label=None, tag=None):
        self(text, tag)
        if not hasattr(self, 'lgq'): self.lgq = []; self.lg_ret = -1
        self.lgq.append(label)
    def wait_lg(self, labels, extra=''):
        if isinstance(labels, str): labels = [labels]
        idx = max(max(i for i, l in enumerate(self.lgq) if l == lab) for lab in labels)
        if idx <= self.lg_ret:
            if extra: self(f's_waitcnt {extra}')
            return
        n = min(len(self.lgq) - 1 - idx, 15)
        self.lg_ret = len(self.lgq) - 1 - n
        self(f's_waitcnt lgkmcnt({n}) {extra}'.strip())
    def lg_all(self):
        if hasattr(self, 'lgq'): self.lg_ret = len(self.lgq) - 1
    prof = False
    nstamp = 0
    def stamp(self, name=''):
        if not self.prof: return
        i = self.nstamp; self.nstamp += 1
        assert i < 12
        if i == 0:
            self('s_memrealtime s[100:101]')
        self(f's_memtime s[{72 + 2*i}:{73 + 2*i}]')
        self('s_waitcnt lgkmcnt(0)')
    def dump_stamps(self, ws_sreg, off, vtmp=0):
        if not self.prof: return
        self('s_waitcnt vmcnt(0) lgkmcnt(0)')
        self(f's_memtime s[{72 + 2*self.nstamp}:{73 + 2*self.nstamp}]')
        self(f's_memrealtime s[{74 + 2*self.nstamp}:{75 + 2*self.nstamp}]')
        self('s_waitcnt lgkmcnt(0)')
        n = self.nstamp + 2
        self(f's_sub_u32 s{74 + 2*self.nstamp}, s{74 + 2*self.nstamp}, s100')
        self(f's_load_dwordx2 s[68:69], s[0:1], 104')
        self('s_waitcnt lgkmcnt(0)')
        self(f's_add_u32 s64, s68, {off}')
        self(f's_addc_u32 s65, s69, 0')
        self(f's_mov_b32 s66, {1 << 20}')
        self(f's_mov_b32 s67, 0x00020000')
        self(f's_lshl_b32 s68, s2, 2')
        self(f's_add_u32 s68, s68, s44')
        self(f's_lshl_b32 s68, s68, 6')
        self(f'v_mov_b32 v{vtmp+1}, 0')
        for i in range(n):
            self(f'v_mov_b32 v{vtmp}, s{72 + 2*i}')
            self(f'buffer_store_dword v{vtmp}, v{vtmp+1}, s[64:67], s68 offen offset:{4*i}')
        self('s_waitcnt vmcnt(0)')
    def vm_after(self, label):
        idx = max(i for i, l in enumerate(self.vmq) if l == label)
        return len(self.vmq) - 1 - idx
    def wait_vm(self, labels, extra=''):
        if isinstance(labels, str): labels = [labels]
        n = min(self.vm_after(l) for l in labels)
        idx = len(self.vmq) - 1 - n
        if idx <= getattr(self, 'retired', -1):
            if extra: self(f's_waitcnt {extra}')
            return None
        assert n <= 63, n
        self.retired = idx
        self(f's_waitcnt vmcnt({n}) {extra}'.strip())
        return n

def check_lds(seq, name=''):
    errs = []
    vm = []; lg = []
    dmas = []
    reads = []
    bars = []
    byidx_d = {}; byidx_r = {}
    for j, c in enumerate(seq):
        if c.kind == 'wait':
            m = re.search(r'vmcnt\((\d+)\)', c.text)
            if m:
                k = int(m.group(1))
                while len(vm) > k:
                    o = vm.pop(0)
                    if o in byidx_d: byidx_d[o]['ret'] = j
            m = re.search(r'lgkmcnt\((\d+)\)', c.text)
            if m:
                k = int(m.group(1))
                while len(lg) > k:
                    o = lg.pop(0)
                    if o in byidx_r: byidx_r[o]['ret'] = j
        elif c.kind == 'bar': bars.append(j)
        elif c.kind in ('vld', 'vst', 'vat', 'dma'):
            vm.append(j)
            if c.kind == 'dma' and c.tag:
                _, lo, hi, shared = c.tag
                for r in reads:
                    if r['lo'] < hi and lo < r['hi']:
                        if r['ret'] is None: errs.append(f'[{name}] WAR: dma #{j} {c.text} overwrites LDS [{lo},{hi}) with unretired read #{r["idx"]}')
                        elif shared and not any(r['ret'] < b < j for b in bars): errs.append(f'[{name}] WAR: dma #{j} {c.text}: no barrier after read #{r["idx"]} retired')
                reads = [r for r in reads if not (r['lo'] < hi and lo < r['hi'] and r['ret'] is not None)]
                d = dict(idx=j, lo=lo, hi=hi, shared=shared, ret=None)
                dmas = [x for x in dmas if not (x['lo'] >= lo and x['hi'] <= hi)]
                dmas.append(d); byidx_d[j] = d
        elif c.kind in ('dsr', 'dsw'):
            lg.append(j)
            if c.kind == 'dsr' and c.tag:
                _, lo, hi = c.tag
                cov = False
                for d in dmas:
                    if d['lo'] < hi and lo < d['hi']:
                        cov = True
                        if d['ret'] is None: errs.append(f'[{name}] RAW: read #{j} {c.text} [{lo},{hi}) before dma #{d["idx"]} landed')
                        elif d['shared'] and not any(d['ret'] < b < j for b in bars): errs.append(f'[{name}] RAW: read #{j} {c.text}: no barrier after dma #{d["idx"]} wait')
                if not cov: errs.append(f'[{name}] read #{j} {c.text} [{lo},{hi}) not covered by any dma')
                r = dict(idx=j, lo=lo, hi=hi, ret=None)
                reads.append(r); byidx_r[j] = r
    for e in errs[:30]: print(e)
    if len(errs) > 30: print('...', len(errs))
    return errs

def linear(p):
    return [i for i in p.items if isinstance(i, Ins)]

def trace(p, policy, maxn=200000):
    labels = {}
    for i, it in enumerate(p.items):
        if not isinstance(it, Ins) and it[0] == 'label': labels[it[1]] = i
    seq = []; i = 0; seen = {}
    while i < len(p.items) and len(seq) < maxn:
        it = p.items[i]
        if isinstance(it, Ins):
            seq.append(it)
            if it.op == 's_endpgm': break
            if it.kind == 'br':
                tgt = it.args[0]
                key = (i,)
                seen[key] = seen.get(key, 0) + 1
                if it.op == 's_branch' or policy(it, seen[key]):
                    i = labels[tgt]; continue
        i += 1
    return seq
```

```python
from common import *
from gx2 import *
from lnops import *
from sched import *

STORE_FLAGS = 'sc1'
MF = 'v_mfma_f32_16x16x32_bf16'

def w_tile_setup(p, vOffW, vLPW, vT):
    p(f'v_lshrrev_b32 v{vT}, 4, v0')
    p(f'v_bfe_u32 v{vT+1}, v0, 1, 3')
    p(f'v_xor_b32 v{vT+1}, v{vT+1}, v{vT}')
    p(f'v_and_b32 v{vT+2}, 1, v0')
    p(f'v_lshl_add_u32 v{vT+1}, v{vT+1}, 1, v{vT+2}')
    p(f'v_lshlrev_b32 v{vT+1}, 4, v{vT+1}')
    p(f'v_lshl_add_u32 v{vOffW}, v{vT}, 13, v{vT+1}')
    p(f'v_add_u32 v{vOffW+1}, {32768-1024}, v{vOffW}')
    p(f'v_xor_b32 v{vOffW+2}, 128, v{vOffW}')
    p(f'v_add_u32 v{vOffW+3}, {3*(32768-1024)}, v{vOffW+2}')
    p(f'v_add_u32 v{vOffW+2}, {2*(32768-1024)}, v{vOffW+2}')
    p(f'v_bfe_u32 v{vT}, v0, 2, 2')
    p(f'v_lshrrev_b32 v{vT+1}, 4, v0')
    p(f'v_lshl_add_u32 v{vT+2}, v{vT+1}, 3, v{vT}')
    p(f'v_lshlrev_b32 v{vT+2}, 8, v{vT+2}')
    p(f'v_and_b32 v{vT+1}, 1, v{vT+1}')
    p(f'v_lshl_add_u32 v{vT}, v{vT+1}, 2, v{vT}')
    p(f'v_lshl_add_u32 v{vT+2}, v{vT}, 5, v{vT+2}')
    p(f'v_and_b32 v{vT}, 3, v0')
    p(f'v_lshl_add_u32 v{vLPW}, v{vT}, 3, v{vT+2}')

def gen_k1(name='kv_kernel', prof=False):
    p = P2(); p.prof = prof
    S_CKV, S_WUK, S_WUV, S_KF, S_VF, S_X, S_XNF = 16, 20, 24, 28, 32, 36, 40
    sW, sH, sMT = 44, 45, 46
    sAoff, sA2, sWoff, sT0, sT1 = 47, 48, 49, 50, 51
    sLA, sLW = 52, 53
    sK0 = 56
    sScale = 60
    vLane16 = 1
    vOffA = 2
    vOffW = 6
    vLPA = 10; vCA = 11
    vLPW = 13; vCW = 14
    vT = 22
    vLT = 26
    vWF = 32
    accA = 64; accB = 192
    p(f's_cmp_ge_u32 s2, 256')
    p(f's_cbranch_scc1 {name}_done')
    p.stamp('start')
    p(f's_load_dwordx2 s[4:5], s[0:1], {ARG["x"]}')
    p(f's_load_dwordx2 s[6:7], s[0:1], {ARG["ckv"]}')
    p(f's_load_dwordx4 s[8:11], s[0:1], {ARG["wuk"]}')
    p(f's_load_dwordx2 s[12:13], s[0:1], {ARG["ws"]}')
    p('s_and_b32 s14, s2, 7')
    p('s_lshr_b32 s15, s2, 3')
    p(f's_lshr_b32 s{sH}, s15, 3')
    p(f's_lshl_b32 s14, s14, 2')
    p(f's_add_u32 s{sH}, s{sH}, s14')
    p(f's_and_b32 s{sMT}, s15, 7')
    p('v_lshrrev_b32 v2, 6, v0')
    p('v_and_b32 v0, 63, v0')
    p(f'v_readfirstlane_b32 s{sW}, v2')
    p(f'v_lshlrev_b32 v{vLane16}, 4, v0')
    p(f'v_lshrrev_b32 v{vT}, 3, v0')
    p(f'v_lshlrev_b32 v{vT}, 10, v{vT}')
    p(f'v_lshrrev_b32 v{vT+1}, 4, v0')
    p(f'v_and_b32 v{vT+2}, 7, v0')
    p(f'v_xor_b32 v{vT+2}, v{vT+2}, v{vT+1}')
    p(f'v_lshl_add_u32 v{vOffA}, v{vT+2}, 4, v{vT}')
    p(f'v_xor_b32 v{vT+3}, 4, v{vT+2}')
    p(f'v_lshl_add_u32 v{vOffA+1}, v{vT+3}, 4, v{vT}')
    p(f'v_add_u32 v{vOffA+2}, {2*7168}, v{vOffA}')
    p(f'v_add_u32 v{vOffA+3}, {3*7168}, v{vOffA+1}')
    p(f'v_add_u32 v{vOffA+1}, {1*7168}, v{vOffA+1}')
    w_tile_setup(p, vOffW, vLPW, vT)
    p(f'v_and_b32 v{vT}, 15, v0')
    p(f'v_bfe_u32 v{vT+1}, v0, 1, 3')
    p(f'v_lshrrev_b32 v{vT+2}, 4, v0')
    p(f'v_xor_b32 v{vT+1}, v{vT+1}, v{vT+2}')
    p(f'v_lshlrev_b32 v{vT}, 7, v{vT}')
    p(f'v_lshl_add_u32 v{vLPA}, v{vT+1}, 4, v{vT}')
    p('s_waitcnt lgkmcnt(0)')
    srd(p, S_CKV, 6, 2048*512*2)
    srd(p, S_WUK, 8, 512*4096*2)
    p(f's_lshl_b32 s{sLA}, s{sW}, 13')
    p(f's_lshl_b32 s{sLW}, s{sW}, 12')
    p(f's_lshl_b32 s{sT0}, s{sMT}, 8')
    p(f's_lshl_b32 s{sT1}, s{sW}, 6')
    p(f's_add_u32 s{sT0}, s{sT0}, s{sT1}')
    p(f's_lshl_b32 s{sAoff}, s{sT0}, 10')
    p(f's_lshl_b32 s{sK0}, s{sH}, 6')
    p(f's_lshr_b32 s{sT1}, s{sT0}, 5')
    p(f's_add_u32 s{sK0}, s{sK0}, s{sT1}')
    p(f's_lshl_b32 s{sK0}, s{sK0}, 13')
    p(f's_lshl_b32 s{sWoff}, s{sW}, 17')
    p(f's_lshl_b32 s{sT1}, s{sH}, 8')
    p(f's_add_u32 s{sWoff}, s{sWoff}, s{sT1}')

    SL = 16384
    def slotA(st): return (3 * (st % 3)) * SL
    def slotWK(st): return (3 * (st % 3) + 2) * SL
    WVslot = {0: 9, 1: 6, 2: 7, 3: 8, 4: 0, 5: 1, 6: 2, 7: 3}
    def dma_act(st, half):
        base = slotA(st)
        L = [('s', f's_add_u32 m0, s{sLA}, {base + 4096*half}'), ('s', f's_add_u32 s{sA2}, s{sAoff}, {st*128 + 32768*half}')]
        for i in range(4):
            L.append(('m', f'buffer_load_dwordx4 v{vOffA+i}, s[{S_CKV}:{S_CKV+3}], s{sA2} offen offset:{1024*i} lds', f'A{st}', ('W', base, base + 32768, False)))
        return L
    def dma_w(srdreg, chunk, slotbase, label):
        L = [('s', f's_add_u32 m0, s{sLW}, {slotbase}'), ('s', f's_add_u32 s{sT0}, s{sWoff}, {chunk*64*8192}')]
        for i in range(4):
            L.append(('m', f'buffer_load_dwordx4 v{vOffW+i}, s[{srdreg}:{srdreg+3}], s{sT0} offen offset:{1024*i} lds', label, ('W', slotbase, slotbase + SL, True)))
        return L
    def put(it):
        k = it[0]
        if k == 'm': p.vm(it[1], it[2], it[3])
        elif k == 'l': p.vm(it[1], it[2])
        elif k == 'r': p.ds(it[1], it[2], it[3])
        else: p(it[1])
    def emit(L):
        for it in L: put(it)
    def stage_dmas(st): return dma_w(S_WUK, st, slotWK(st), f'WK{st}') + dma_act(st, 0) + dma_act(st, 1)
    emit(stage_dmas(0))
    srd(p, S_X, 4, 2048*640*2)
    srd(p, S_WUV, 10, 512*4096*2)
    srd(p, S_KF, 12, SZ_KF, WS_KF)
    srd(p, S_VF, 12, SZ_KF, WS_VF)
    srd(p, S_XNF, 12, SZ_XNF, WS_XNF)
    p(f's_mov_b32 s{sScale}, 0x3e0293ee')
    for i in range(1, 4): p(f's_add_u32 s{sK0+i}, s{sK0}, {4096*i}')
    emit(stage_dmas(1))
    X = accB; RAW = accB + 40; vXo = accB + 60; vXn = accB + 61; LTa = accB + 62
    LT = 24
    p(f's_lshl_b32 s{sT1}, s2, 3')
    p(f's_lshl_b32 s14, s{sW}, 1')
    p(f's_add_u32 s{sT1}, s{sT1}, s14')
    p(f'v_bfe_u32 v{vT}, v0, 4, 1')
    p(f'v_add_u32 v{vT}, s{sT1}, v{vT}')
    p(f'v_and_b32 v{vT+1}, 15, v0')
    p(f's_movk_i32 s14, 1280')
    p(f'v_mul_lo_u32 v{vXo}, v{vT}, s14')
    p(f'v_lshl_add_u32 v{vXo}, v{vT+1}, 4, v{vXo}')
    for i in range(5):
        p.vm(f'buffer_load_dwordx4 v[{RAW+4*i}:{RAW+4*i+3}], v{vXo}, s[{S_X}:{S_X+3}], 0 offen offset:{256*i}', 'lnload')
    p(f'v_lshrrev_b32 v{vXn}, 4, v{vT}')
    p(f'v_mul_u32_u24 v{vXn}, 20, v{vXn}')
    p(f'v_lshrrev_b32 v{vT+2}, 2, v{vT+1}')
    p(f'v_add_u32 v{vXn}, v{vXn}, v{vT+2}')
    p(f'v_lshlrev_b32 v{vXn}, 10, v{vXn}')
    p(f'v_and_b32 v{vT+2}, 3, v{vT+1}')
    p(f'v_lshlrev_b32 v{vT+2}, 4, v{vT+2}')
    p(f'v_and_b32 v{vT+3}, 15, v{vT}')
    p(f'v_add_u32 v{vT+2}, v{vT+2}, v{vT+3}')
    p(f'v_lshl_add_u32 v{vXn}, v{vT+2}, 4, v{vXn}')
    emit(stage_dmas(2))
    p.stamp('dma issued')
    ln = [('lnwait',)]
    for i in range(5): ln += [('v', x) for x in unpack8(RAW + 4*i, X + 8*i)]
    ln += [('v', x) for x in ln_stream(X, 40, LT, row16_allreduce)]
    for i in range(5):
        ln.append(('s', f's_mov_b32 s14, {4096*i}'))
        ln.append(('l', f'buffer_store_dwordx4 v[{X+4*i}:{X+4*i+3}], v{vXn}, s[{S_XNF}:{S_XNF+3}], s14 offen', 'lnst'))

    def rd_act(ks, tb):
        st, t = divmod(ks, 2)
        r = (ks*4 + tb)*4
        return ('r', f'ds_read_b128 a[{r}:{r+3}], v{vCA+t} offset:{2048*tb}', f'act{ks}', ('R', slotA(st), slotA(st) + 32768))
    def rd_w(buf, db, kin, slotbase, lab):
        r = vWF + 4*buf
        return [('r', f'ds_read_b64_tr_b16 v[{r+2*h}:{r+2*h+1}], v{vCW+db} offset:{8192*kin + 1024*h}', lab, ('R', slotbase, slotbase + SL)) for h in range(2)]
    def upd_act(st):
        return [('s', f's_add_u32 s{sT1}, s{sLA}, {slotA(st)}'), ('v', f'v_add_u32 v{vCA}, s{sT1}, v{vLPA}'), ('v', f'v_xor_b32 v{vCA+1}, 64, v{vCA}')]
    def upd_w(base, dbs=range(8)):
        L = [('v', f'v_add_u32 v{vCW}, {base}, v{vLPW}')]
        for db in dbs:
            if db: L.append(('v', f'v_xor_b32 v{vCW+db}, {db*32}, v{vCW}'))
        return L
    put = make_put(p)
    p.wait_vm(['WK0', 'A0'])
    p('s_barrier')
    p.stamp('B0')
    emit(upd_act(0) + upd_w(slotWK(0)))
    for tb in range(4): put(rd_act(0, tb))
    for db in range(8): emit(rd_w(db, db, 0, slotWK(0), f'w0_{db}'))
    NKS = 16
    mf = []
    for ks in range(NKS):
        for db in range(8):
            for tb in range(4):
                acc = accA + (tb*8 + db)*4
                r = (ks*4 + tb)*4
                c = '0' if ks == 0 else f'v[{acc}:{acc+3}]'
                mf.append(f'{MF} v[{acc}:{acc+3}], v[{vWF+4*db}:{vWF+4*db+3}], a[{r}:{r+3}], {c}')
    R = Region(mf)
    G = lambda ks, db, tb: ks*32 + db*4 + tb
    put(('wlg', ['w0_0', 'w0_1', 'act0']))
    BARG = lambda st: G(2*st + 1, 0, 3)
    for st in range(8):
        ks = 2*st + 1
        labs = [f'WK{st+1}', f'A{st+1}'] if st < 7 else ['WV0', 'WV1', 'WV2', 'WV3']
        R.place(('bar', labs, st in (1, 2, 3)), BARG(st), force=True)
        ua = (upd_act(st + 1) + upd_w(slotWK(st + 1))) if st < 7 else upd_w(WVslot[0]*SL, range(4))
        R.stream(ua, G(ks, 0, 1), G(ks, 2, 0))
    for ks in range(NKS):
        for db in range(0, 8, 2):
            if ks == 0 and db == 0: continue
            labs = [f'w{ks}_{db}', f'w{ks}_{db+1}'] + ([f'act{ks}'] if db == 0 else [])
            R.place(('wlg', labs), G(ks, db, 0) - 1, force=True)
    for ks in range(NKS):
        st, t = divmod(ks, 2)
        nxt = ks + 1
        for db in range(8):
            e = G(ks, db, 3)
            if t == 1: e = max(e, G(ks, 2, 1))
            if nxt < NKS:
                nst, nt = divmod(nxt, 2)
                rr = rd_w(db, db, nt, slotWK(nst), f'w{nxt}_{db}')
            else:
                k2, j = divmod(db, 4)
                rr = rd_w(db, j, k2, WVslot[0]*SL, f'v2_{k2}_{j}')
            lat = G(ks + 1, 0, 0) if t == 0 else None
            g = R.place(rr[0], e, lat); R.place(rr[1], g + 1 if t == 1 or db < 7 else g, lat)
        if nxt < NKS:
            e = G(ks, 0, 0) if t == 0 else G(ks, 2, 1)
            for tb in range(4): R.place(rd_act(nxt, tb), e + 4*tb + 1)
    def spread_dma(R, L, g0, g1):
        nm = sum(1 for x in L if x[0] == 'm')
        step = max(1, (g1 - g0) // max(nm, 1))
        g = g0; prev = None
        cnt = 0
        for it in L:
            e = max(g, g0 + cnt*step - (2 if it[0] == 's' else 0))
            g = R.place(it, e, g1)
            if it[0] == 'm': cnt += 1; g += 1
    for st in range(8):
        g0 = BARG(st) + 1
        g1 = min(BARG(st + 1) - 1 if st < 7 else R.n - 1, R.n - 1)
        s2 = st + 3
        L = []
        if s2 <= 7:
            L = stage_dmas(s2)
            if s2 == 7: L += dma_w(S_WUV, 0, WVslot[0]*SL, 'WV0')
        elif s2 == 8:
            for c_ in (1, 2, 3): L += dma_w(S_WUV, c_, WVslot[c_]*SL, f'WV{c_}')
        elif s2 == 9:
            for c_ in (4, 5, 6): L += dma_w(S_WUV, c_, WVslot[c_]*SL, f'WV{c_}')
        else: L = dma_w(S_WUV, 7, WVslot[7]*SL, 'WV7')
        spread_dma(R, L, g0, g1)
    lnl = [(('wvm', 'lnload') if it[0] == 'lnwait' else it) for it in ln]
    R.stream(lnl, 48)
    R.emit(p, put)
    print('pass1 overflow', R.over, 'est cycles', R.total())
    p.stamp('pass1 end')
    def epi_items(acc_list, srdreg, scale=False):
        L = []
        for (acc, o) in acc_list:
            if scale:
                for k in range(8): L.append(('v', f'v_mul_f32 v{acc+k}, s{sScale}, v{acc+k}'))
            for k in range(4): L.append(('v', f'v_cvt_pk_bf16_f32 v{acc+k}, v{acc+2*k}, v{acc+2*k+1}'))
            L.append(('st', f'buffer_store_dwordx4 v[{acc}:{acc+3}], v{vLane16}, s[{srdreg}:{srdreg+3}], s{sK0 + o//4096} offen offset:{o % 4096} {STORE_FLAGS}'))
        return L
    epiK = epi_items([(accA + (tb*8 + 2*k4)*4, tb*4096 + k4*1024) for tb in range(4) for k4 in range(4)], S_KF, scale=True)
    def run_pass(pas, acc0, epi):
        mf = []
        for ks in range(NKS):
            for j in range(4):
                buf = (ks % 2)*4 + j
                for tb in range(4):
                    acc = acc0 + ((tb >> 1)*8 + j*2 + (tb & 1))*4
                    r = (ks*4 + tb)*4
                    cc = '0' if ks == 0 else f'v[{acc}:{acc+3}]'
                    mf.append(f'{MF} v[{acc}:{acc+3}], a[{r}:{r+3}], v[{vWF+4*buf}:{vWF+4*buf+3}], {cc}')
        R = Region(mf)
        G = lambda ks, j, tb: ks*16 + j*4 + tb
        put(('wlg', [f'v{pas}_0_0', f'v{pas}_0_1']))
        if pas == 2: R.place(('bar', ['WV4', 'WV5', 'WV6', 'WV7']), G(5, 3, 3), force=True)
        for ks in range(NKS):
            for j in (0, 2):
                if ks == 0 and j == 0: continue
                R.place(('wlg', [f'v{pas}_{ks}_{j}', f'v{pas}_{ks}_{j+1}']), G(ks, j, 0) - 1, force=True)
        for ks in range(NKS):
            n2 = ks + 2
            if n2 < NKS:
                c2, t2 = divmod(n2, 2); dbs = [jj + (4 if pas == 3 else 0) for jj in range(4)]; pp = pas; kk = n2
            elif pas == 2:
                kk = n2 - NKS; c2, t2 = 0, kk; dbs = [4, 5, 6, 7]; pp = 3
            else: continue
            if t2 == 0:
                R.stream(upd_w(WVslot[c2]*SL, dbs), G(ks, 0, 0), G(ks, 0, 2))
            for j in range(4):
                buf = (ks % 2)*4 + j
                rr = rd_w(buf, dbs[j], t2, WVslot[c2]*SL, f'v{pp}_{kk}_{j}')
                g = R.place(rr[0], G(ks, j, 3), G(ks + 1, 0, 0)); R.place(rr[1], g + 1 if j < 3 else g, G(ks + 1, 0, 0))
        n = len(epi); span = R.n - 16 - 8
        R.stream(epi, 16, None, pace=lambda k: 16 + (k*span)//n)
        R.emit(p, put)
        print('pass', pas, 'overflow', R.over, 'est cycles', R.total())
    run_pass(2, accB, epiK)
    def vepi(acc0, dbase):
        return epi_items([(acc0 + (b*8 + j*2)*4, b*8192 + (dbase + j)*1024) for b in range(2) for j in range(4)], S_VF)
    run_pass(3, accA, vepi(accB, 0))
    p('s_nop 7')
    for it in vepi(accA, 4): put(it)
    p.dump_stamps(12, 100*MiB, 26)
    p.label(f'{name}_done')
    p('s_endpgm')
    seq = linear(p)
    e1 = check_linear(seq, name); e2 = check_lds(seq, name)
    return p, len(e1) + len(e2)

if __name__ == '__main__':
    p, ne = gen_k1()
    print('instrs', p.count(), 'errors', ne)
```

```python
from common import *
from gx2 import *
from sched import *
from k1b import w_tile_setup, MF

CTX_FLAGS = 'sc1'
LIM = 0x5d800000
NEGBIG = 0xff800000
opt_idx = [0]

def gen_k2(name='attn_kernel', prof=False, opt=()):
    p = P2(); p.prof = prof
    put = make_put(p)
    S_WQ, S_XNF, S_KF, S_VF, S_CTX = 16, 20, 24, 28, 32
    sM = 36
    sW, sH, sI = 44, 45, 46
    sT0, sT1, sT2 = 47, 48, 49
    sLW = 50
    sWoff = 51
    sXL, sXS = 52, 53
    sKb, sVb = 54, 55
    sHbase = 56
    sSlotP, sSlotR = 57, 58
    sTL, sTS = 59, 60
    sCnt = 61
    sDd = 62
    sFlag = 63
    sCtx = 64
    sLim = 65
    sSel = 4
    vLane16 = 1; vRd = 2; vNinf = 3
    vOffW = 4
    vLPW = 8; vT = 9
    vNeg = 16; vCi = 32; vS = 48; vP = 80; vE = 112; vL = 116; vU = 120
    vCW = 120
    vWF = 48
    vO = 128
    aQ = 0; aK = 64; aV = 96; aX = 128
    O = lambda c, db: vO + 32*c + 4*db
    Sr = lambda sc, kb: vS + 8*sc + 4*kb
    Pr = lambda par, c: vP + 16*par + 4*c
    NSLOT = 5

    p(f's_cmp_ge_u32 s2, 256')
    p(f's_cbranch_scc1 {name}_done')
    p.stamp('start')
    p(f's_load_dwordx2 s[4:5], s[0:1], {ARG["wq"]}')
    p(f's_load_dwordx2 s[12:13], s[0:1], {ARG["ws"]}')
    p('s_and_b32 s14, s2, 7')
    p('s_lshr_b32 s15, s2, 3')
    p(f's_lshr_b32 s{sH}, s15, 3')
    p(f's_lshl_b32 s14, s14, 2')
    p(f's_add_u32 s{sH}, s{sH}, s14')
    p(f's_and_b32 s{sI}, s15, 7')
    p('v_lshrrev_b32 v2, 6, v0')
    p('v_and_b32 v0, 63, v0')
    p(f'v_readfirstlane_b32 s{sW}, v2')
    p(f'v_lshlrev_b32 v{vLane16}, 4, v0')
    w_tile_setup(p, vOffW, vLPW, vT)
    p('s_waitcnt lgkmcnt(0)')
    srd(p, S_WQ, 4, 640*4096*2)
    srd(p, S_XNF, 12, SZ_XNF, WS_XNF)
    p(f's_lshl_b32 s{sLW}, s{sW}, 12')
    p(f's_lshl_b32 s{sWoff}, s{sW}, 17')
    p(f's_lshl_b32 s{sT1}, s{sH}, 8')
    p(f's_add_u32 s{sWoff}, s{sWoff}, s{sT1}')
    p(f's_sub_u32 s{sTL}, 15, s{sI}')
    p(f's_mov_b32 s{sTS}, s{sI}')
    p(f's_lshl_b32 s{sT1}, s{sTL}, 3')
    p(f's_lshl_b32 s{sT0}, s{sW}, 1')
    p(f's_add_u32 s{sT1}, s{sT1}, s{sT0}')
    p(f's_mul_i32 s{sXL}, s{sT1}, 20480')
    p(f's_lshl_b32 s{sT1}, s{sTS}, 3')
    p(f's_add_u32 s{sT1}, s{sT1}, s{sT0}')
    p(f's_mul_i32 s{sXS}, s{sT1}, 20480')
    SL = 16384
    def dma_wq(c):
        L = [('s', f's_add_u32 m0, s{sLW}, {c*SL}'), ('s', f's_add_u32 s{sT0}, s{sWoff}, {c*64*8192}')]
        for i in range(4):
            L.append(('m', f'buffer_load_dwordx4 v{vOffW+i}, s[{S_WQ}:{S_WQ+3}], s{sT0} offen offset:{1024*i} lds', f'WQ{c}', ('W', c*SL, (c+1)*SL, True)))
        return L
    def xn_load(ks):
        L = []
        for c in range(4):
            r = aX + ((ks % 8)*4 + c)*4
            off = ks*1024 + (c & 1)*20480
            sb = sXL if c < 2 else sXS
            L.append(('s', f's_add_u32 s{sT1}, s{sb}, {off & ~4095}'))
            L.append(('l', f'buffer_load_dwordx4 a[{r}:{r+3}], v{vLane16}, s[{S_XNF}:{S_XNF+3}], s{sT1} offen offset:{off & 4095}', f'XN{ks}'))
        return L
    def emit(L):
        for it in L: put(it)
    emit(dma_wq(0)); emit(xn_load(0)); emit(dma_wq(1)); emit(xn_load(1))
    srd(p, S_KF, 12, SZ_KF, WS_KF)
    srd(p, S_VF, 12, SZ_KF, WS_VF)
    srd(p, S_CTX, 12, SZ_CTX, WS_CTX)
    p(f's_lshl_b32 s{sHbase}, s{sH}, 19')
    p(f's_add_u32 s{sHbase}, s{sHbase}, s{sLW}')
    p(f's_mov_b32 s{sKb}, 0')
    p(f's_mov_b32 s{sVb}, 0')
    p(f's_mov_b32 s{sSlotP}, 0')
    p(f's_mov_b32 s{sFlag}, 0')
    p(f's_mov_b32 s{sLim}, {hex(LIM)}')
    p(f'v_and_b32 v{vT}, 15, v0')
    p(f'v_lshrrev_b32 v{vT+1}, 4, v0')
    p(f'v_lshlrev_b32 v{vT+1}, 2, v{vT+1}')
    p(f'v_sub_u32 v{vT}, v{vT}, v{vT+1}')
    for r in range(4): p(f'v_cmp_le_i32 s[{sM+2*r}:{sM+2*r+1}], {r}, v{vT}')
    p(f'v_mov_b32 v{vNinf}, {hex(NEGBIG)}')
    emit(xn_load(2)); emit(dma_wq(2)); emit(xn_load(3)); emit(xn_load(4))
    p.stamp('q dma issued')
    def dma_K(label, tagbase=None):
        L = [('s', f's_add_u32 m0, s{sSlotP}, s{sLW}'),
             ('s', f's_lshl_b32 s{sT2}, s{sKb}, 13'),
             ('s', f's_add_u32 s{sT2}, s{sT2}, s{sHbase}')]
        for i in range(4):
            tag = ('W', tagbase, tagbase + SL, True) if tagbase is not None else None
            L.append(('m', f'buffer_load_dwordx4 v{vLane16}, s[{S_KF}:{S_KF+3}], s{sT2} offen offset:{1024*i} lds', label, tag))
        L += [('s', f's_add_u32 s{sKb}, s{sKb}, 2')]
        return L
    def dma_V(label, tagbase=None):
        L = [('s', f's_add_u32 s{sT2}, s{sSlotP}, s{sLW}'),
             ('s', f's_add_u32 m0, s{sT2}, {SL}'),
             ('s', f's_lshl_b32 s{sT2}, s{sVb}, 13'),
             ('s', f's_add_u32 s{sT2}, s{sT2}, s{sHbase}')]
        for i in range(4):
            tag = ('W', tagbase + SL, tagbase + 2*SL, True) if tagbase is not None else None
            L.append(('m', f'buffer_load_dwordx4 v{vLane16}, s[{S_VF}:{S_VF+3}], s{sT2} offen offset:{1024*i} lds', label, tag))
        L += [('s', f's_add_u32 s{sVb}, s{sVb}, 2')]
        return L
    adv_slot = [('s', f's_add_u32 s{sSlotP}, s{sSlotP}, 32768'), ('s', f's_cmp_ge_u32 s{sSlotP}, {NSLOT*32768}'), ('s', f's_cselect_b32 s{sSlotP}, 0, s{sSlotP}')]

    def rd_w(db, kin, base, lab):
        r = vWF + 4*db
        return [('r', f'ds_read_b64_tr_b16 v[{r+2*h}:{r+2*h+1}], v{vCW+db} offset:{8192*kin + 1024*h}', lab, ('R', base, base + SL)) for h in range(2)]
    def upd_w(base):
        return [('v', f'v_add_u32 v{vCW}, {base}, v{vLPW}')] + [('v', f'v_xor_b32 v{vCW+db}, {db*32}, v{vCW}') for db in range(1, 8)]
    p.wait_vm('WQ0')
    p('s_barrier')
    emit(upd_w(0))
    for db in range(8): emit(rd_w(db, 0, 0, f'w0_{db}'))
    p.wait_vm('XN0')
    NKS = 20
    mf = []
    for ks in range(NKS):
        for db in range(8):
            for c in range(4):
                acc = O(c, db)
                x = aX + ((ks % 8)*4 + c)*4
                cc = '0' if ks == 0 else f'v[{acc}:{acc+3}]'
                mf.append(f'{MF} v[{acc}:{acc+3}], v[{vWF+4*db}:{vWF+4*db+3}], a[{x}:{x+3}], {cc}')
    R = Region(mf)
    G = lambda ks, db, c: ks*32 + db*4 + c
    put(('wlg', ['w0_0', 'w0_1']))
    p.stamp('q start')
    BARG = lambda ch: G(2*ch + 1, 0, 3)
    for ch in range(9):
        R.place(('bar', [f'WQ{ch+1}']), BARG(ch), force=True)
        R.stream(upd_w((ch + 1)*SL), G(2*ch + 1, 0, 1), G(2*ch + 1, 2, 0))
    for ks in range(NKS):
        for db in range(0, 8, 2):
            if ks == 0 and db == 0: continue
            R.place(('wlg', [f'w{ks}_{db}', f'w{ks}_{db+1}']), G(ks, db, 0) - 1, force=True)
        if ks: R.place(('wvm', f'XN{ks}'), G(ks, 0, 0) - 2, force=True)
    for ks in range(NKS - 1):
        ch, t = divmod(ks, 2); nxt = ks + 1; nch, nt = divmod(nxt, 2)
        for db in range(8):
            e = G(ks, db, 3)
            if t == 1: e = max(e, G(ks, 2, 1))
            rr = rd_w(db, nt, nch*SL, f'w{nxt}_{db}')
            lat = G(ks + 1, 0, 0) if t == 0 else None
            g = R.place(rr[0], e, lat); R.place(rr[1], g + 1 if t == 1 or db < 7 else g, lat)
    def spread_dma(R, L, g0, g1):
        nm = sum(1 for x in L if x[0] in 'ml')
        step = max(1, (g1 - g0) // max(nm, 1))
        g = g0; cnt = 0
        for it in L:
            e = max(g, g0 + cnt*step - (2 if it[0] == 's' else 0))
            g = R.place(it, e, g1)
            if it[0] in 'ml': cnt += 1; g += 1
    for ch in range(9):
        g0 = BARG(ch) + 1
        g1 = BARG(ch + 1) - 1 if ch < 8 else R.n - 1
        L = []
        if ch + 3 <= 9: L += dma_wq(ch + 3)
        for ks in (2*ch + 5, 2*ch + 6):
            if ks < NKS: L += xn_load(ks)
        if ch == 1: L += dma_K('U-1', 0) + adv_slot
        if ch == 3: L += dma_K('U0', 32768) + dma_V('U0', 32768) + adv_slot
        if ch == 5: L += dma_K('U1', 65536) + dma_V('U1', 65536) + adv_slot
        if ch == 7: L += dma_K('U2', 98304) + dma_V('U2', 98304) + adv_slot
        spread_dma(R, L, g0, g1)
    R.emit(p, put)
    print('qproj overflow', R.over, 'est', R.total())
    p.stamp('q end')
    p('s_nop 7')
    for c in range(4):
        for ks in range(4):
            a0 = O(c, 2*ks)
            for k in range(4): p(f'v_cvt_pk_bf16_f32 v{a0+k}, v{a0+2*k}, v{a0+2*k+1}')
            p('s_nop 0')
            for k in range(4): p(f'v_accvgpr_write_b32 a{aQ + 16*c + 4*ks + k}, v{a0+k}')
    p.wait_vm('U-1')
    p('s_barrier')
    e1 = check_linear(linear(p), name + ':qproj'); e2 = check_lds(linear(p), name + ':qproj')
    nerr = len(e1) + len(e2)

    def rdK(b, f):  return ('r', f'ds_read_b128 a[{aK+4*f}:{aK+4*f+3}], v{vRd} offset:{b*8192 + f*1024}', f'K{f}')
    def rdV(b, f):  return ('r', f'ds_read_b128 a[{aV+4*f}:{aV+4*f+3}], v{vRd} offset:{16384 + b*8192 + f*1024}', f'V{f}')
    def qk_mfmas(cols, sbase, cin):
        L = []
        for i, c in enumerate(cols):
            for kb in range(2):
                S = Sr(sbase + i, kb)
                for ks in range(4):
                    cc = cin(c, kb) if ks == 0 else S
                    L.append(f'{MF} v[{S}:{S+3}], a[{aK+4*(kb*4+ks)}:{aK+4*(kb*4+ks)+3}], a[{aQ+16*c+4*ks}:{aQ+16*c+4*ks+3}], v[{cc}:{cc+3}]')
        return L
    def pv_mfmas(cols, par, first=False):
        L = []
        for c in cols:
            for db in range(8):
                o = O(c, db)
                cc = '0' if first else f'v[{o}:{o+3}]'
                L.append(f'{MF} v[{o}:{o+3}], a[{aV+4*db}:{aV+4*db+3}], v[{Pr(par, c)}:{Pr(par, c)+3}], {cc}')
        return L
    def sm_window(c, sslot, par):
        S = vS + 8*sslot; P = Pr(par, c); W = []
        for k in range(4):
            e0, e1 = vE + (2*k) % 4, vE + (2*k + 1) % 4
            W += [[f'v_exp_f32 v{e0}, v{S+2*k}'], [f'v_exp_f32 v{e1}, v{S+2*k+1}'],
                  [f'v_add_f32 v{vL+c}, v{vL+c}, v{e0}'],
                  [f'v_add_f32 v{vL+c}, v{vL+c}, v{e1}', f'v_cvt_pk_bf16_f32 v{P+k}, v{e0}, v{e1}']]
        return W
    cin_neg = lambda c, kb: vNeg + 4*c
    def cin_mask(tile_cols):
        def f(c, kb):
            if c in tile_cols: return vCi + 8*(c - tile_cols[0]) + 4*kb
            return vNeg + 4*c
        return f
    def mask_ops(tile_cols):
        c0 = tile_cols[0]
        L = [('s', f's_cmp_lt_i32 s{sDd}, 0'),
             ('s', f's_cselect_b64 s[14:15], -1, 0'),
             ('s', f's_cmp_eq_u32 s{sDd}, 0')]
        for r in range(4): L.append(('s', f's_cselect_b64 s[{4+2*r}:{5+2*r}], s[{sM+2*r}:{sM+2*r+1}], s[14:15]'))
        L += [('s', f's_cmp_le_i32 s{sDd}, 0'), ('s', f's_cselect_b64 s[12:13], -1, 0')]
        for cb in range(2):
            for kb in range(2):
                for r in range(4):
                    m = 4 + 2*r if cb == kb else (12 if (cb == 1 and kb == 0) else 14)
                    L.append(('v', f'v_cndmask_b32 v{vCi + 8*cb + 4*kb + r}, v{vNinf}, v{vNeg + 4*(c0 + cb) + r}, s[{m}:{m+1}]'))
        return L
    LC, SC = [0, 1], [2, 3]
    def build_group(mf, windows, reads, dmas=(), extra=(), pre_wait=None, mid_wait=None):
        R = Region(mf)
        n = len(mf)
        for (g0, W) in windows:
            for i, ops in enumerate(W):
                for o in ops: R.place(('v', o), g0 + i, force=True)
        slots = [g for g in range(n) if g % 4 == 2]
        if len(slots) < len(reads): slots = sorted(slots + [g for g in range(n) if g % 4 == 3])
        if n == 16: slots = [g for g in range(16) if g % 4 in (2, 3)]
        for it, g in zip(reads, slots): R.place(it, g, force=True)
        if dmas:
            free = [g for g in range(n) if not R.M[g]]
            pref = [g for g in free if g % 4 == 3] + [g for g in free if g % 4 == 1] + [g for g in free if g % 4 in (0, 2)]
            nm = sum(1 for x in dmas if x[0] == 'm')
            use = sorted(pref[:nm])
            k = 0; pend_s = []
            for it in dmas:
                if it[0] == 's': pend_s.append(it)
                else:
                    g = use[k]; k += 1
                    gg = max(0 if k == 1 else use[k-2] + 1, g - len(pend_s) + 1) if pend_s else g
                    for j, sx in enumerate(pend_s):
                        R.place(sx, min(g, gg + j) if gg + j <= g else g, force=True)
                    pend_s = []
                    R.place(it, g, force=True)
            for sx in pend_s: R.place(sx, min(n - 1, use[-1] + 1), force=True)
        if extra:
            g = 0
            for it in extra:
                best = None
                for gg in range(g, n - 1):
                    if R.fits(gg, it): best = gg; break
                if best is None:
                    best = g
                R.place(it, best, force=True); g = best
        if mid_wait: R.place(mid_wait[1], mid_wait[0], force=True)
        return R
    def emit_group(R, pre):
        if pre:
            put(('wlg', [f'{pre}{f}' for f in range(4)]))
            R.S[3].insert(0, ('wlg', [f'{pre}{f}' for f in range(4, 8)]))
        if 'nosm' in opt:
            for g in range(R.n): R.V[g] = []
        R.emit(p, put)
    stats = {'cyc': 0}
    def interval(kind, lbl, maskL=None, maskS=None):
        dual = kind in ('D', 'T')
        mA, mB, mN = (maskS if dual else maskL) or (False, False, False)
        tile = SC if dual else LC
        p('s_waitcnt vmcnt(16)')
        if 'nobar' not in opt: p('s_barrier')
        p(f's_add_u32 s{sSlotR}, s{sSlotR}, 32768')
        p(f's_cmp_ge_u32 s{sSlotR}, {NSLOT*32768}')
        p(f's_cselect_b32 s{sSlotR}, 0, s{sSlotR}')
        p(f'v_add_u32 v{vRd}, s{sSlotR}, v{vLane16}')
        p.lgq = ['K%d' % f for f in range(8)]; p.lg_ret = -1
        tot = 0
        if dual:
            cols = [0, 1, 2, 3]
            R1 = build_group(qk_mfmas(cols, 0, cin_mask(SC) if mA else cin_neg),
                             [(0, sm_window(3, 3, 0)), (16, sm_window(0, 0, 1))], [rdV(0, f) for f in range(8)], dma_K('x'),
                             mid_wait=None)
            emit_group(R1, 'K')
            ex = ([('s', f's_add_u32 s{sDd}, s{sDd}, 1')] + mask_ops(SC if kind == 'D' else LC)) if mB else []
            if kind == 'T': ex = mask_ops(LC)
            R2 = build_group(pv_mfmas(cols, 0), [(0, sm_window(1, 1, 1)), (16, sm_window(2, 2, 1))], [rdK(0, f) for f in range(8)], extra=ex)
            if kind == 'T':
                emit([('s', f's_sub_u32 s{sDd}, s{sTS}, s{sTL}'), ('s', f's_lshl_b32 s{sDd}, s{sDd}, 2'), ('s', f's_add_u32 s{sDd}, s{sDd}, 4'), ('s', f's_sub_u32 s{sDd}, s{sDd}, s{sW}')])
            emit_group(R2, 'V')
            if kind == 'D':
                R3 = build_group(qk_mfmas(cols, 0, cin_mask(SC) if mB else cin_neg),
                                 [(0, sm_window(3, 3, 1)), (16, sm_window(0, 0, 0))], [rdV(1, f) for f in range(8)], dma_V('x') + adv_slot)
                emit_group(R3, 'K')
                ex = ([('s', f's_add_u32 s{sDd}, s{sDd}, 1')] + mask_ops(SC)) if mN else []
                R4 = build_group(pv_mfmas(cols, 1), [(0, sm_window(1, 1, 0)), (16, sm_window(2, 2, 0))], [rdK(1, f) for f in range(8)], extra=ex)
                emit_group(R4, 'V')
            else:
                R3 = build_group(qk_mfmas(LC, 0, cin_mask(LC)), [(0, sm_window(3, 3, 1))], [rdV(1, f) for f in range(8)], dma_V('x') + adv_slot)
                emit_group(R3, 'K')
                ex = ([('s', f's_add_u32 s{sDd}, s{sDd}, 1')] + mask_ops(LC))
                R4 = build_group(pv_mfmas(cols, 1), [(0, sm_window(0, 0, 0))], [rdK(1, f) for f in range(8)], extra=ex)
                emit_group(R4, 'V')
            tot = R1.total() + R2.total() + R3.total() + R4.total()
        else:
            R1 = build_group(qk_mfmas(LC, 2, cin_mask(LC) if mA else cin_neg), [(0, sm_window(1, 1, 0))], [rdV(0, f) for f in range(8)], dma_K('x'))
            emit_group(R1, 'K')
            ex = ([('s', f's_add_u32 s{sDd}, s{sDd}, 1')] + mask_ops(LC)) if mB else []
            rk = [rdK(0, f) for f in range(8)] if kind != 'E' else []
            R2 = build_group(pv_mfmas(LC, 0), [(0, sm_window(0, 2, 1))], rk, extra=ex)
            emit_group(R2, 'V')
            if kind != 'E':
                R3 = build_group(qk_mfmas(LC, 0, cin_mask(LC) if mB else cin_neg), [(0, sm_window(1, 3, 1))], [rdV(1, f) for f in range(8)], dma_V('x') + adv_slot)
                emit_group(R3, 'K')
                ex = ([('s', f's_add_u32 s{sDd}, s{sDd}, 1')] + mask_ops(LC)) if mN else []
                R4 = build_group(pv_mfmas(LC, 1), [(0, sm_window(0, 0, 0))], [rdK(1, f) for f in range(8)], extra=ex)
                emit_group(R4, 'V')
                tot = R1.total() + R2.total() + R3.total() + R4.total()
            else:
                for f in range(8): put(rdV(1, f))
                emit(dma_V('x') + adv_slot)
                for ops in sm_window(1, 3, 1):
                    for o in ops: p(o)
                    if len(ops) == 1 and ops[0].startswith('v_exp'): p('s_nop 0')
                p('s_waitcnt lgkmcnt(0)')
                p('s_nop 1')
                for m in pv_mfmas(LC, 1): p(m)
        if tot: print(f'  interval {lbl}: est {tot} cycles for', 128 if kind == 'D' else (112 if kind == 'T' else 64), 'mfma')

    def row_reduce(reg, op, tmp):
        for sw in ('v_permlane16_swap_b32', 'v_permlane32_swap_b32'):
            p(f'v_mov_b32 v{tmp}, v{reg}')
            p('s_nop 1')
            p(f'{sw} v{reg}, v{tmp}')
            p('s_nop 1')
            p(f'{op} v{reg}, v{reg}, v{tmp}')
    def epilogue(cols, sTile, flagbit):
        p('s_nop 7')
        for c in cols: row_reduce(vL + c, 'v_add_f32', vU)
        p(f'v_max_f32 v{vU}, v{vL+cols[0]}, v{vL+cols[1]}')
        p(f'v_cmp_nle_f32 vcc, v{vU}, v{vU+1}'.replace(f'v{vU+1}', f'v{vU+1}') if False else f'v_cmp_nge_f32 vcc, s{sLim}, v{vU}')
        p('s_nop 1')
        p(f's_cmp_lg_u64 vcc, 0')
        p(f's_cselect_b32 s{sT0}, {flagbit}, 0')
        p(f's_or_b32 s{sFlag}, s{sFlag}, s{sT0}')
        for c in cols: p(f'v_rcp_f32 v{vL+c}, v{vL+c}')
        store_ctx(cols, sTile)
    def store_ctx(cols, sTile):
        p(f's_lshl_b32 s{sCtx}, s{sTile}, 3')
        p(f's_lshl_b32 s{sT0}, s{sW}, 1')
        p(f's_add_u32 s{sCtx}, s{sCtx}, s{sT0}')
        p(f's_lshl_b32 s{sCtx}, s{sCtx}, 5')
        p(f's_add_u32 s{sCtx}, s{sCtx}, s{sH}')
        p(f's_lshl_b32 s{sCtx}, s{sCtx}, 12')
        p(f's_add_u32 s{sT1}, s{sCtx}, {32*4096}')
        for i, c in enumerate(cols):
            for ks in range(4):
                o = O(c, 2*ks)
                for k in range(8): p(f'v_mul_f32 v{o+k}, v{o+k}, v{vL+c}')
                for k in range(4): p(f'v_cvt_pk_bf16_f32 v{o+k}, v{o+2*k}, v{o+2*k+1}')
                p(f'buffer_store_dwordx4 v[{o}:{o+3}], v{vLane16}, s[{S_CTX}:{S_CTX+3}], s{sCtx if i == 0 else sT1} offen offset:{ks*1024} {CTX_FLAGS}')

    p(f's_mov_b32 s{sSlotR}, 0')
    p(f'v_mov_b32 v{vRd}, v{vLane16}')
    p.lgq = []; p.lg_ret = -1
    for f in range(8): put(rdK(0, f))
    for r in range(16): p(f'v_mov_b32 v{vNeg+r}, 0')
    for c in range(4): p(f'v_mov_b32 v{vL+c}, 0')
    for r in range(128): p(f'v_mov_b32 v{vO+r}, 0')
    p(f's_lshl_b32 s{sDd}, s{sTS}, 2')
    p(f's_add_u32 s{sDd}, s{sDd}, s{sW}')
    p(f's_sub_u32 s{sDd}, 0, s{sDd}')
    emit(mask_ops(SC))
    p('s_waitcnt lgkmcnt(0)')
    p('s_nop 0')
    for m in qk_mfmas([0, 1, 2, 3], 0, cin_mask(SC)): p(m)
    for f in range(8): put(rdK(1, f))
    p('s_nop 7')
    for c in range(4):
        S = vS + 8*c; t = vU + c
        p(f'v_max3_f32 v{t}, v{S}, v{S+1}, v{S+2}')
        p(f'v_max3_f32 v{t}, v{t}, v{S+3}, v{S+4}')
        p(f'v_max3_f32 v{t}, v{t}, v{S+5}, v{S+6}')
        p(f'v_max_f32 v{t}, v{t}, v{S+7}')
    for c in range(4): row_reduce(vU + c, 'v_max_f32', vU + 4)
    for c in range(4):
        S = vS + 8*c
        for r in range(8): p(f'v_sub_f32 v{S+r}, v{S+r}, v{vU+c}')
        for r in range(4): p(f'v_sub_f32 v{vNeg+4*c+r}, 0, v{vU+c}')
    def run_window(W):
        for ops in W:
            for o in ops: p(o)
            if len(ops) == 1 and ops[0].startswith('v_exp'): p('s_nop 0')
    for c in range(3): run_window(sm_window(c, c, 0))
    p.stamp('attn prologue done')
    p(f's_cmp_eq_u32 s{sTS}, 0')
    p(f's_cbranch_scc1 {name}_t0')
    p(f's_lshl_b32 s{sCnt}, s{sTS}, 1')
    p(f's_sub_u32 s{sCnt}, s{sCnt}, 1')
    p.label(f'{name}_dn')
    interval('D', f'dn')
    p(f's_sub_u32 s{sCnt}, s{sCnt}, 1')
    p(f's_cmp_lg_u32 s{sCnt}, 0')
    p(f's_cbranch_scc1 {name}_dn')
    p(f's_sub_u32 s{sDd}, -1, s{sW}')
    interval('D', 'da', maskS=(False, True, True))
    p(f's_branch {name}_db')
    p.label(f'{name}_t0')
    p(f's_sub_u32 s{sDd}, 1, s{sW}')
    emit(mask_ops(SC))
    p('s_nop 1')
    p.label(f'{name}_db')
    interval('D', 'db', maskS=(True, True, True))
    interval('T', 'dc', maskS=(True, False, False))
    epilogue(SC, sTS, 2)
    p.stamp('S done')
    p(f's_sub_u32 s{sCnt}, s{sTL}, s{sTS}')
    p(f's_cmp_eq_u32 s{sCnt}, 1')
    p(f's_cbranch_scc1 {name}_sb')
    p(f's_lshl_b32 s{sCnt}, s{sCnt}, 1')
    p(f's_sub_u32 s{sCnt}, s{sCnt}, 3')
    p.label(f'{name}_sn')
    interval('S', 'sn')
    p(f's_sub_u32 s{sCnt}, s{sCnt}, 1')
    p(f's_cmp_lg_u32 s{sCnt}, 0')
    p(f's_cbranch_scc1 {name}_sn')
    p(f's_sub_u32 s{sDd}, -1, s{sW}')
    interval('S', 'sa', maskL=(False, True, True))
    p.label(f'{name}_sb')
    interval('S', 'sb', maskL=(True, True, True))
    interval('E', 'sc', maskL=(True, False, False))
    epilogue(LC, sTL, 1)
    p.stamp('L done')
    p(f's_cmp_eq_u32 s{sFlag}, 0')
    p(f's_cbranch_scc1 {name}_fin')
    fallback(p, name, locals())
    p.label(f'{name}_fin')
    p.dump_stamps(12, (101 + opt_idx[0])*MiB, 9)
    p.label(f'{name}_done')
    p('s_endpgm')
    def mk_policy(t0, nd, skip_s, ns, fb):
        def pol(ins, n):
            t = ins.args[0]
            if t.endswith('_done'): return False
            if t.endswith('_t0'): return t0
            if t.endswith('_dn'): return (n % nd) != 0
            if t.endswith('_sb'): return skip_s
            if t.endswith('_sn'): return (n % ns) != 0
            if t.endswith('_fin'): return not fb
            if t.endswith('_fbloop'): return n % 3 != 0
            if t.endswith('_fbskipS') or t.endswith('_fbskipL'): return False
            return False
        return pol
    for cfg in ([(False, 3, False, 3, False), (True, 2, False, 2, True), (False, 2, True, 2, False)] if not opt else []):
        seq = trace(p, mk_policy(*cfg))
        nerr += len(check_linear(seq, name + str(cfg)))
    return p, nerr

def fallback(p, name, L):
    g = L
    vS, vP, vE, vL, vU, vNeg, vCi, vO = g['vS'], g['vP'], g['vE'], g['vL'], g['vU'], g['vNeg'], g['vCi'], g['vO']
    aQ, aK, aV, vLane16, vNinf = g['aQ'], g['aK'], g['aV'], g['vLane16'], g['vNinf']
    S_KF, S_VF = g['S_KF'], g['S_VF']
    sFlag, sTL, sTS, sW, sH, sDd, sCnt, sT0, sT1, sT2 = (g[k] for k in ('sFlag', 'sTL', 'sTS', 'sW', 'sH', 'sDd', 'sCnt', 'sT0', 'sT1', 'sT2'))
    O = g['O']; mask_ops = g['mask_ops']; qk_mfmas = g['qk_mfmas']; pv_mfmas = g['pv_mfmas']; row_reduce = g['row_reduce']; store_ctx = g['store_ctx']
    put = g['put']
    p('s_waitcnt vmcnt(0) lgkmcnt(0)')
    for cols, sTile, bit, nm in (([2, 3], sTS, 2, 'S'), ([0, 1], sTL, 1, 'L')):
        p(f's_and_b32 s{sT0}, s{sFlag}, {bit}')
        p(f's_cmp_eq_u32 s{sT0}, 0')
        p(f's_cbranch_scc1 {name}_fbskip{nm}')
        for c in cols:
            p(f'v_mov_b32 v{vL+c}, 0')
            for r in range(32): p(f'v_mov_b32 v{vO+32*c+r}, 0')
            for r in range(4): p(f'v_mov_b32 v{vNeg+4*c+r}, 0')
        for i in range(2): p(f'v_mov_b32 v{vU+4+i}, v{vNinf}')
        p(f's_lshl_b32 s{sDd}, s{sTile}, 2')
        p(f's_add_u32 s{sDd}, s{sDd}, s{sW}')
        p(f's_add_u32 s{sCnt}, s{sDd}, 1')
        p(f's_sub_u32 s{sDd}, 0, s{sDd}')
        p(f's_lshl_b32 s{sT2}, s{sH}, 19')
        p.label(f'{name}_fb{nm}_fbloop')
        for f in range(8):
            p(f's_add_u32 s{sT1}, s{sT2}, {(f // 4)*4096}')
            p(f'buffer_load_dwordx4 a[{aK+4*f}:{aK+4*f+3}], v{vLane16}, s[{S_KF}:{S_KF+3}], s{sT1} offen offset:{(f % 4)*1024}')
            p(f'buffer_load_dwordx4 a[{aV+4*f}:{aV+4*f+3}], v{vLane16}, s[{S_VF}:{S_VF+3}], s{sT1} offen offset:{(f % 4)*1024}')
        for it in mask_ops(cols): put(it)
        p('s_waitcnt vmcnt(0)')
        p('s_nop 1')
        for m in qk_mfmas(cols, 0, lambda c, kb: vCi + 8*(c - cols[0]) + 4*kb): p(m)
        p('s_nop 7')
        for i, c in enumerate(cols):
            S = vS + 8*i; t = vU + i; m = vU + 4 + i
            p(f'v_max3_f32 v{t}, v{S}, v{S+1}, v{S+2}')
            p(f'v_max3_f32 v{t}, v{t}, v{S+3}, v{S+4}')
            p(f'v_max3_f32 v{t}, v{t}, v{S+5}, v{S+6}')
            p(f'v_max_f32 v{t}, v{t}, v{S+7}')
            row_reduce(t, 'v_max_f32', vU + 6)
            p(f'v_max_f32 v{t}, v{t}, v{m}')
            p(f'v_sub_f32 v{vU+6}, v{m}, v{t}')
            p(f'v_exp_f32 v{vU+6}, v{vU+6}')
            p(f'v_mov_b32 v{m}, v{t}')
            p(f'v_mul_f32 v{vL+c}, v{vL+c}, v{vU+6}')
            for r in range(32): p(f'v_mul_f32 v{vO+32*c+r}, v{vO+32*c+r}, v{vU+6}')
            for r in range(8): p(f'v_sub_f32 v{S+r}, v{S+r}, v{t}')
            for r in range(8): p(f'v_exp_f32 v{S+r}, v{S+r}')
            p('s_nop 0')
            for r in range(8): p(f'v_add_f32 v{vL+c}, v{vL+c}, v{S+r}')
            for k in range(4): p(f'v_cvt_pk_bf16_f32 v{vP+4*c+k}, v{S+2*k}, v{S+2*k+1}')
        p('s_nop 1')
        for m in pv_mfmas(cols, 0): p(m)
        p('s_nop 7')
        p(f's_add_u32 s{sT2}, s{sT2}, 8192')
        p(f's_add_u32 s{sDd}, s{sDd}, 1')
        p(f's_sub_u32 s{sCnt}, s{sCnt}, 1')
        p(f's_cmp_lg_u32 s{sCnt}, 0')
        p(f's_cbranch_scc1 {name}_fb{nm}_fbloop')
        for c in cols: row_reduce(vL + c, 'v_add_f32', vU)
        for c in cols: p(f'v_rcp_f32 v{vL+c}, v{vL+c}')
        store_ctx(cols, sTile)
        p.label(f'{name}_fbskip{nm}')

if __name__ == '__main__':
    p, ne = gen_k2()
    print('instrs', p.count(), 'errors', ne)
```

```python
from common import *
from gx2 import *
from sched import *
MF = 'v_mfma_f32_16x16x32_bf16'
PART_FLAGS = ''

def gen_k3(name='oproj_kernel', prof=False):
    p = P2(); p.prof = prof
    put = make_put(p)
    S_WO, S_CTX, S_PART = 16, 20, 24
    sW, sS, sMT, sNT = 44, 45, 46, 47
    sT0, sT1, sT2 = 48, 49, 50
    sWoff, sCoff, sLWw, sLWc, sP0 = 51, 52, 53, 54, 55
    vLane16 = 1
    vOffW = 2
    vLPe, vLPo, vCe, vCo = 7, 8, 9, 10
    vLPc, vCc = 11, 12
    vT = 13
    vWF = 20
    vCF = 40
    acc = 72
    SLOT = 36864
    NSL = 4
    p('s_cmp_ge_u32 s2, 256')
    p(f's_cbranch_scc1 {name}_done')
    p.stamp('start')
    p(f's_load_dwordx2 s[4:5], s[0:1], {ARG["wo"]}')
    p(f's_load_dwordx2 s[12:13], s[0:1], {ARG["ws"]}')
    p('s_and_b32 s14, s2, 7')
    p('s_lshr_b32 s15, s2, 3')
    p(f's_lshr_b32 s{sS}, s14, 1')
    p(f's_and_b32 s14, s14, 1')
    p(f's_lshl_b32 s14, s14, 3')
    p(f's_and_b32 s{sMT}, s15, 7')
    p(f's_add_u32 s{sMT}, s{sMT}, s14')
    p(f's_lshr_b32 s{sNT}, s15, 3')
    p('v_lshrrev_b32 v2, 6, v0')
    p('v_and_b32 v0, 63, v0')
    p(f'v_readfirstlane_b32 s{sW}, v2')
    p(f'v_lshlrev_b32 v{vLane16}, 4, v0')
    p(f's_mul_i32 s{sT0}, s{sW}, 320')
    p(f's_movk_i32 s{sT1}, 3277')
    p(f's_movk_i32 s{sT2}, 1280')
    for i in range(5):
        p(f'v_add_u32 v{vT}, s{sT0}, v0')
        if i: p(f'v_add_u32 v{vT}, {64*i}, v{vT}')
        p(f'v_mul_lo_u32 v{vT+1}, v{vT}, s{sT1}')
        p(f'v_lshrrev_b32 v{vT+1}, 16, v{vT+1}')
        p(f'v_mul_u32_u24 v{vT+2}, 20, v{vT+1}')
        p(f'v_sub_u32 v{vT+2}, v{vT}, v{vT+2}')
        p(f'v_bfe_u32 v{vT+3}, v{vT+1}, 2, 1')
        p(f'v_lshlrev_b32 v{vT+3}, 1, v{vT+3}')
        p(f'v_xor_b32 v{vT+2}, v{vT+2}, v{vT+3}')
        p(f'v_mul_lo_u32 v{vT+1}, v{vT+1}, s{sT2}')
        p(f'v_lshl_add_u32 v{vOffW+i}, v{vT+2}, 4, v{vT+1}')
        if 0 < i < 4: p(f'v_subrev_u32 v{vOffW+i}, {1024*i}, v{vOffW+i}')
    p(f'v_bfe_u32 v{vT}, v0, 2, 2')
    p(f'v_lshrrev_b32 v{vT+1}, 4, v0')
    p(f'v_lshl_add_u32 v{vT+2}, v{vT+1}, 2, v{vT}')
    p(f'v_mul_u32_u24 v{vT+2}, 320, v{vT+2}')
    p(f'v_and_b32 v{vT+3}, 3, v0')
    p(f'v_lshl_add_u32 v{vT+2}, v{vT+3}, 3, v{vT+2}')
    p(f'v_and_b32 v{vT+1}, 1, v{vT+1}')
    p(f'v_lshlrev_b32 v{vT+1}, 5, v{vT+1}')
    p(f'v_add_u32 v{vLPe}, v{vT+2}, v{vT+1}')
    p(f'v_sub_u32 v{vLPo}, v{vT+2}, v{vT+1}')
    p('s_waitcnt lgkmcnt(0)')
    srd(p, S_WO, 4, 4096*640*2)
    srd(p, S_CTX, 12, SZ_CTX, WS_CTX)
    srd(p, S_PART, 12, SZ_PART, WS_PART)
    p(f's_mul_i32 s{sWoff}, s{sS}, {1024*1280}')
    p(f's_mul_i32 s{sT0}, s{sNT}, 320')
    p(f's_add_u32 s{sWoff}, s{sWoff}, s{sT0}')
    p(f's_mul_i32 s{sLWw}, s{sW}, 5120')
    p(f's_lshl_b32 s{sT0}, s{sMT}, 3')
    p(f's_lshl_b32 s{sT1}, s{sW}, 1')
    p(f's_add_u32 s{sT0}, s{sT0}, s{sT1}')
    p(f's_lshl_b32 s{sT0}, s{sT0}, 2')
    p(f's_add_u32 s{sT0}, s{sT0}, s{sS}')
    p(f's_lshl_b32 s{sCoff}, s{sT0}, 15')
    p(f's_lshl_b32 s{sLWc}, s{sW}, 12')
    p(f's_add_u32 s{sLWc}, s{sLWc}, 20480')
    p(f's_lshr_b32 s{sT0}, s{sW}, 1')
    p(f's_and_b32 s{sT1}, s{sW}, 1')
    p(f's_cmp_eq_u32 s{sT0}, 1')
    p(f's_cselect_b64 s[6:7], -1, 0')
    p(f'v_cndmask_b32 v{vT}, v{vLPe}, v{vLPo}, s[6:7]')
    p(f'v_cndmask_b32 v{vT+1}, v{vLPo}, v{vLPe}, s[6:7]')
    p(f's_mul_i32 s{sT2}, s{sT0}, 160')
    p(f'v_add_u32 v{vLPe}, s{sT2}, v{vT}')
    p(f'v_add_u32 v{vLPo}, s{sT2}, v{vT+1}')
    p(f's_lshl_b32 s{sT2}, s{sT1}, 13')
    p(f's_add_u32 s{sT2}, s{sT2}, 20480')
    p(f'v_add_u32 v{vLPc}, s{sT2}, v{vLane16}')
    p(f's_lshl_b32 s{sP0}, s{sS}, 7')
    p(f's_lshl_b32 s{sT2}, s{sMT}, 3')
    p(f's_add_u32 s{sP0}, s{sP0}, s{sT2}')
    p(f's_lshl_b32 s{sT1}, s{sT1}, 2')
    p(f's_add_u32 s{sP0}, s{sP0}, s{sT1}')
    p(f's_mul_i32 s{sP0}, s{sP0}, 40')
    p(f's_mul_i32 s{sT2}, s{sNT}, 10')
    p(f's_add_u32 s{sP0}, s{sP0}, s{sT2}')
    p(f's_mul_i32 s{sT2}, s{sT0}, 5')
    p(f's_add_u32 s{sP0}, s{sP0}, s{sT2}')
    p(f's_lshl_b32 s{sP0}, s{sP0}, 10')
    def dma_chunk(ch):
        base = (ch % NSL)*SLOT
        L = [('s', f's_add_u32 m0, s{sLWw}, {base}'), ('s', f's_add_u32 s{sT0}, s{sWoff}, {ch*64*1280}')]
        tagW = ('W', base, base + 20480, True)
        for i in range(4):
            L.append(('m', f'buffer_load_dwordx4 v{vOffW+i}, s[{S_WO}:{S_WO+3}], s{sT0} offen offset:{1024*i} lds', f'C{ch}', tagW))
        L.append(('s', f's_add_u32 m0, s{sLWw}, {base + 4096}'))
        L.append(('s', 's_nop 0'))
        L.append(('m', f'buffer_load_dwordx4 v{vOffW+4}, s[{S_WO}:{S_WO+3}], s{sT0} offen lds', f'C{ch}', tagW))
        tagC = ('W', base + 20480, base + SLOT, True)
        L.append(('s', f's_add_u32 m0, s{sLWc}, {base}'))
        L.append(('s', f's_add_u32 s{sT1}, s{sCoff}, {ch*2048}'))
        for i in range(2): L.append(('m', f'buffer_load_dwordx4 v{vLane16}, s[{S_CTX}:{S_CTX+3}], s{sT1} offen offset:{1024*i} lds', f'C{ch}', tagC))
        L.append(('s', f's_add_u32 m0, s{sLWc}, {base + 2048}'))
        L.append(('s', f's_add_u32 s{sT1}, s{sCoff}, {ch*2048 + 4*32768}'))
        for i in range(2): L.append(('m', f'buffer_load_dwordx4 v{vLane16}, s[{S_CTX}:{S_CTX+3}], s{sT1} offen offset:{1024*i} lds', f'C{ch}', tagC))
        return L
    def emit(L):
        for it in L: put(it)
    for ch in range(3): emit(dma_chunk(ch))
    p.stamp('dma issued')
    def upd(ch):
        base = (ch % NSL)*SLOT
        return [('v', f'v_add_u32 v{vCe}, {base}, v{vLPe}'), ('v', f'v_add_u32 v{vCo}, {base}, v{vLPo}'), ('v', f'v_add_u32 v{vCc}, {base}, v{vLPc}')]
    def rd_w(mb, ks):
        ch, kin = divmod(ks, 2); base = (ch % NSL)*SLOT
        r = vWF + 4*mb; a = vCe if mb % 2 == 0 else vCo
        return [('r', f'ds_read_b64_tr_b16 v[{r+2*h}:{r+2*h+1}], v{a} offset:{kin*10240 + h*5120 + mb*32}', f'w{ks}_{mb}', ('R', base, base + 20480)) for h in range(2)]
    def rd_c(cb, ks):
        ch, kin = divmod(ks, 2); base = (ch % NSL)*SLOT
        r = vCF + 16*(ks % 2) + 4*cb
        return ('r', f'ds_read_b128 v[{r}:{r+3}], v{vCc} offset:{cb*2048 + kin*1024}', f'c{ks}', ('R', base + 20480, base + SLOT))
    p.wait_vm('C0')
    p('s_barrier')
    emit(upd(0))
    for cb in range(4): put(rd_c(cb, 0))
    for mb in range(5): emit(rd_w(mb, 0))
    NKS = 32
    A = lambda cb, mb: acc + (cb*5 + mb)*4
    mf = []
    for ks in range(NKS):
        for mb in range(5):
            for cb in range(4):
                c = '0' if ks == 0 else f'v[{A(cb, mb)}:{A(cb, mb)+3}]'
                cf = vCF + 16*(ks % 2) + 4*cb
                mf.append(f'{MF} v[{A(cb, mb)}:{A(cb, mb)+3}], v[{vWF+4*mb}:{vWF+4*mb+3}], v[{cf}:{cf+3}], {c}')
    R = Region(mf)
    G = lambda ks, mb, cb: ks*20 + mb*4 + cb
    put(('wlg', ['w0_0', 'c0']))
    p.stamp('start mfma')
    BARG = lambda ch: G(2*ch + 1, 0, 3)
    NCH = 16
    for ch in range(NCH - 1):
        R.place(('bar', [f'C{ch+1}']), BARG(ch), force=True)
        R.stream(upd(ch + 1), G(2*ch + 1, 0, 1), G(2*ch + 1, 1, 0))
    for ks in range(NKS):
        for mb in range(5):
            if ks == 0 and mb == 0: continue
            labs = [f'w{ks}_{mb}'] + ([f'c{ks}'] if mb == 0 else [])
            R.place(('wlg', labs), G(ks, mb, 0) - 1, force=True)
    for ks in range(NKS - 1):
        ch, t = divmod(ks, 2); nxt = ks + 1
        for mb in range(5):
            e = G(ks, mb, 3)
            if t == 1: e = max(e, G(ks, 1, 1))
            rr = rd_w(mb, nxt)
            lat = G(ks + 1, 0, 0) if t == 0 else G(ks + 1, mb, 0) - 3
            g = R.place(rr[0], e, lat); R.place(rr[1], min(g + 1, lat), lat)
        e = G(ks, 0, 0) if t == 0 else G(ks, 1, 1)
        for cb in range(4): R.place(rd_c(cb, nxt), e + 3*cb, G(ks + 1, 0, 0) - 4)
    def spread_dma(R, L, g0, g1):
        nm = sum(1 for x in L if x[0] in 'ml')
        step = max(1, (g1 - g0) // max(nm, 1))
        g = g0; cnt = 0
        for it in L:
            e = max(g, g0 + cnt*step - (2 if it[0] == 's' else 0))
            g = R.place(it, e, g1)
            if it[0] in 'ml': cnt += 1; g += 1
    for ch in range(NCH - 1):
        if ch + 3 < NCH:
            spread_dma(R, dma_chunk(ch + 3), BARG(ch) + 1, BARG(ch + 1) - 1)
    R.emit(p, put)
    print('k3 overflow', R.over, 'est', R.total())
    p.stamp('mfma end')
    p('s_nop 7')
    for cb in range(4):
        for mb in range(5):
            off = (cb*40 + mb)*1024
            p(f's_add_u32 s{sT0}, s{sP0}, {off & ~4095}')
            p.vm(f'buffer_store_dwordx4 v[{A(cb, mb)}:{A(cb, mb)+3}], v{vLane16}, s[{S_PART}:{S_PART+3}], s{sT0} offen offset:{off & 4095} {PART_FLAGS}', 'st')
    p.stamp('stores issued')
    if prof:
        p(f's_mov_b32 s44, s{sW}')
    p.dump_stamps(12, 120*MiB, 13)
    p.label(f'{name}_done')
    p('s_endpgm')
    seq = linear(p)
    e1 = check_linear(seq, name); e2 = check_lds(seq, name)
    return p, len(e1) + len(e2)

if __name__ == '__main__':
    p, ne = gen_k3()
    print('instrs', p.count(), 'errors', ne)
```

```python
from common import *
from gx2 import *
from lnops import rne_keep

def gen_k4(name='ln2_kernel', prof=False):
    p = P2(); p.prof = prof
    S_PART, S_X, S_WR, S_OUT, S_H, S_ST = 16, 20, 24, 28, 32, 36
    sW = 44; sT0, sT1 = 45, 46
    vTok, vOffP, vOffX, vLds = 1, 2, 3, 4
    vT = 5
    PA = 16
    XR = 96
    WR = 106
    H = 116
    HN = 136
    sm, mean, mb_, var, sd, rc, t0, t1 = range(156, 164)
    p('s_cmp_ge_u32 s2, 256')
    p(f's_cbranch_scc1 {name}_done')
    p(f's_load_dwordx2 s[4:5], s[0:1], {ARG["x"]}')
    p(f's_load_dwordx2 s[6:7], s[0:1], {ARG["wr"]}')
    p(f's_load_dwordx2 s[8:9], s[0:1], {ARG["out"]}')
    p(f's_load_dwordx2 s[12:13], s[0:1], {ARG["ws"]}')
    p('v_lshrrev_b32 v2, 6, v0')
    p('v_and_b32 v0, 63, v0')
    p(f'v_readfirstlane_b32 s{sW}, v2')
    p(f'v_and_b32 v{vTok}, 7, v0')
    p(f'v_bfe_u32 v{vT}, v0, 3, 2')
    p(f'v_lshrrev_b32 v{vT+1}, 5, v0')
    p(f's_lshr_b32 s{sT0}, s2, 1')
    p(f's_mul_i32 s{sT0}, s{sT0}, 40960')
    p(f's_and_b32 s{sT1}, s2, 1')
    p(f's_lshl_b32 s{sT1}, s{sT1}, 7')
    p(f's_add_u32 s{sT0}, s{sT0}, s{sT1}')
    p(f's_lshl_b32 s{sT1}, s{sW}, 11')
    p(f's_add_u32 s{sT0}, s{sT0}, s{sT1}')
    p(f'v_lshlrev_b32 v{vOffP}, 10, v{vT+1}')
    p(f'v_lshl_add_u32 v{vOffP}, v{vT}, 8, v{vOffP}')
    p(f'v_lshl_add_u32 v{vOffP}, v{vTok}, 4, v{vOffP}')
    p(f'v_add_u32 v{vOffP}, s{sT0}, v{vOffP}')
    p(f's_lshl_b32 s{sT1}, s{sW}, 5')
    p(f'v_lshlrev_b32 v{vT+2}, 4, v{vT+1}')
    p(f'v_lshl_add_u32 v{vT+2}, v{vT}, 2, v{vT+2}')
    p(f'v_add_u32 v{vT+2}, s{sT1}, v{vT+2}')
    p(f'v_lshlrev_b32 v{vT+2}, 1, v{vT+2}')
    p(f's_lshl_b32 s{sT1}, s2, 3')
    p(f'v_add_u32 v{vT+3}, s{sT1}, v{vTok}')
    p(f's_movk_i32 s{sT1}, 1280')
    p(f'v_mul_lo_u32 v{vOffX}, v{vT+3}, s{sT1}')
    p(f'v_add_u32 v{vOffX}, v{vOffX}, v{vT+2}')
    p('s_waitcnt lgkmcnt(0)')
    srd(p, S_PART, 12, SZ_PART, WS_PART)
    srd(p, S_X, 4, 2048*640*2)
    srd(p, S_WR, 6, 640*2)
    srd(p, S_OUT, 8, 2048*640*2)
    srd(p, S_H, 12, SZ_H, WS_H)
    srd(p, S_ST, 12, 1 << 20, WS_STAT)
    for s_ in range(4):
        for i in range(5):
            off = s_*128*40960 + i*8*1024
            p(f's_mov_b32 s{sT0}, {off}')
            p.vm(f'buffer_load_dwordx4 v[{PA+(s_*5+i)*4}:{PA+(s_*5+i)*4+3}], v{vOffP}, s[{S_PART}:{S_PART+3}], s{sT0} offen', f'P{s_}')
    for i in range(5):
        p.vm(f'buffer_load_dwordx2 v[{XR+2*i}:{XR+2*i+1}], v{vOffX}, s[{S_X}:{S_X+3}], 0 offen offset:{256*i}', 'X')
    for i in range(5):
        p.vm(f'buffer_load_dwordx2 v[{WR+2*i}:{WR+2*i+1}], v{vT+2}, s[{S_WR}:{S_WR+3}], 0 offen offset:{256*i}', 'W')
    Lz = f'{name}_nz'
    p('s_cmp_lg_u32 s2, 0')
    p(f's_cbranch_scc1 {Lz}')
    p(f's_lshl_b32 s{sT1}, s{sW}, 10')
    p(f'v_lshl_add_u32 v{vT+4}, v0, 4, s{sT1}')
    for r in range(4): p(f'v_mov_b32 v{164+r}, 0')
    for i in range(5):
        p(f's_mov_b32 s{sT0}, {(WS_YACC - WS_STAT) + i*4096}')
        p(f'buffer_store_dwordx4 v[164:167], v{vT+4}, s[{S_ST}:{S_ST+3}], s{sT0} offen')
    p('s_waitcnt vmcnt(0)')
    p.label(Lz)
    p(f's_lshl_b32 s{sT1}, s{sW}, 5')
    p(f'v_lshlrev_b32 v{vLds}, 2, v{vTok}')
    p(f'v_add_u32 v{vT+5}, s{sT1}, v{vLds}')
    p('s_waitcnt vmcnt(0)')
    for i in range(5):
        for r in range(4):
            a = PA + i*4 + r
            p(f'v_add_f32 v{a}, v{a}, v{a+20}')
            p(f'v_add_f32 v{a+40}, v{a+40}, v{a+60}')
        for r in range(4):
            a = PA + i*4 + r
            p(f'v_add_f32 v{a}, v{a}, v{a+40}')
        for k in range(2):
            a = PA + i*4 + 2*k
            p(f'v_cvt_pk_bf16_f32 v{t0}, v{a}, v{a+1}')
            p(f'v_lshlrev_b32 v{a}, 16, v{t0}')
            p(f'v_and_b32 v{a+1}, 0xffff0000, v{t0}')
            p(f'v_lshlrev_b32 v{t0}, 16, v{XR+2*i+k}')
            p(f'v_and_b32 v{t1}, 0xffff0000, v{XR+2*i+k}')
            p(f'v_add_f32 v{a}, v{a}, v{t0}')
            p(f'v_add_f32 v{a+1}, v{a+1}, v{t1}')
            p(f'v_cvt_pk_bf16_f32 v{XR+2*i+k}, v{a}, v{a+1}')
            p(f'v_lshlrev_b32 v{H+4*i+2*k}, 16, v{XR+2*i+k}')
            p(f'v_and_b32 v{H+4*i+2*k+1}, 0xffff0000, v{XR+2*i+k}')
    for i in range(5):
        p(f'buffer_store_dwordx2 v[{XR+2*i}:{XR+2*i+1}], v{vOffX}, s[{S_H}:{S_H+3}], 0 offen offset:{256*i}')
    def allreduce(reg, slot):
        p('s_nop 1')
        p(f'v_add_f32_dpp v{reg}, v{reg}, v{reg} row_ror:8 row_mask:0xf bank_mask:0xf')
        for sw in ('v_permlane16_swap_b32', 'v_permlane32_swap_b32'):
            p(f'v_mov_b32 v{t0}, v{reg}')
            p('s_nop 1')
            p(f'{sw} v{reg}, v{t0}')
            p('s_nop 1')
            p(f'v_add_f32 v{reg}, v{reg}, v{t0}')
        p(f'ds_write_b32 v{vT+5}, v{reg} offset:{slot*128}')
        p('s_waitcnt lgkmcnt(0)')
        p('s_barrier')
        p(f'ds_read_b32 v{reg}, v{vLds} offset:{slot*128}')
        p(f'ds_read_b32 v{t0}, v{vLds} offset:{slot*128+32}')
        p(f'ds_read_b32 v{t1}, v{vLds} offset:{slot*128+64}')
        p(f'ds_read_b32 v{rc}, v{vLds} offset:{slot*128+96}')
        p('s_waitcnt lgkmcnt(0)')
        p(f'v_add_f32 v{reg}, v{reg}, v{t0}')
        p(f'v_add_f32 v{t1}, v{t1}, v{rc}')
        p(f'v_add_f32 v{reg}, v{reg}, v{t1}')
    p(f'v_add_f32 v{sm}, v{H}, v{H+1}')
    for k in range(2, 20): p(f'v_add_f32 v{sm}, v{sm}, v{H+k}')
    allreduce(sm, 0)
    p(f'v_mul_f32 v{mean}, 0x3acccccd, v{sm}')
    for x in rne_keep(mb_, mean): p(x)
    p(f'v_sub_f32 v{t0}, v{H}, v{mean}')
    p(f'v_mul_f32 v{var}, v{t0}, v{t0}')
    for k in range(1, 20):
        p(f'v_sub_f32 v{t0}, v{H+k}, v{mean}')
        p(f'v_fmac_f32 v{var}, v{t0}, v{t0}')
    allreduce(var, 1)
    p(f'v_mul_f32 v{var}, 0x3acccccd, v{var}')
    for x in rne_keep(var, var): p(x)
    p(f'v_add_f32 v{var}, 0x3727c5ac, v{var}')
    for x in rne_keep(var, var): p(x)
    p(f'v_sqrt_f32 v{sd}, v{var}')
    p('s_nop 0')
    for x in rne_keep(sd, sd): p(x)
    p(f'v_rcp_f32 v{rc}, v{sd}')
    p('s_nop 0')
    p(f'v_mov_b32 v{sm}, v{rc}')
    p(f'v_mov_b32 v{var}, 0')
    for i in range(5):
        for k in range(2):
            a = H + 4*i + 2*k; n = HN + 4*i + 2*k
            p(f'v_sub_f32 v{t0}, v{a}, v{mb_}')
            p(f'v_sub_f32 v{t1}, v{a+1}, v{mb_}')
            p(f'v_cvt_pk_bf16_f32 v{t0}, v{t0}, v{t1}')
            p(f'v_and_b32 v{t1}, 0xffff0000, v{t0}')
            p(f'v_lshlrev_b32 v{t0}, 16, v{t0}')
            p(f'v_mul_f32 v{t0}, v{t0}, v{sm}')
            p(f'v_mul_f32 v{t1}, v{t1}, v{sm}')
            p(f'v_cvt_pk_bf16_f32 v{t0}, v{t0}, v{t1}')
            p(f'v_lshlrev_b32 v{n}, 16, v{t0}')
            p(f'v_and_b32 v{n+1}, 0xffff0000, v{t0}')
            p(f'v_lshlrev_b32 v{t0}, 16, v{WR+2*i+k}')
            p(f'v_and_b32 v{t1}, 0xffff0000, v{WR+2*i+k}')
            p(f'v_fmac_f32 v{var}, v{n}, v{t0}')
            p(f'v_fmac_f32 v{var}, v{n+1}, v{t1}')
            p(f'v_add_f32 v{t0}, v{a}, v{n}')
            p(f'v_add_f32 v{t1}, v{a+1}, v{n+1}')
            p(f'v_cvt_pk_bf16_f32 v{XR+2*i+k}, v{t0}, v{t1}')
    for i in range(5):
        p(f'buffer_store_dwordx2 v[{XR+2*i}:{XR+2*i+1}], v{vOffX}, s[{S_OUT}:{S_OUT+3}], 0 offen offset:{256*i}')
    allreduce(var, 2)
    for x in rne_keep(var, var): p(x)
    p(f's_cmp_lg_u32 s{sW}, 0')
    p(f's_cbranch_scc1 {name}_done')
    p('v_cmp_gt_u32 vcc, 8, v0')
    p('s_nop 1')
    p('s_and_saveexec_b64 s[40:41], vcc')
    p(f'v_lshlrev_b32 v{vT+3}, 2, v{vT+3}')
    p(f'buffer_store_dword v{var}, v{vT+3}, s[{S_ST}:{S_ST+3}], 0 offen')
    p(f's_mov_b32 s{sT0}, 8192')
    p(f'buffer_store_dword v{mb_}, v{vT+3}, s[{S_ST}:{S_ST+3}], s{sT0} offen')
    p(f's_mov_b32 s{sT0}, 16384')
    p(f'buffer_store_dword v{sd}, v{vT+3}, s[{S_ST}:{S_ST+3}], s{sT0} offen')
    p.label(f'{name}_done')
    p('s_endpgm')
    pol = lambda ins, n: False
    ne = len(check_linear(trace(p, pol), name))
    return p, ne

if __name__ == '__main__':
    p, ne = gen_k4()
    print('instrs', p.count(), 'errors', ne)
```

```python
from common import *
from gx2 import *
from lnops import rne_keep

NWG5 = 54
def gen_k5(name='ffn_kernel', prof=False):
    p = P2(); p.prof = prof
    S_WG, S_WU, S_WD, S_OUT, S_H, S_ST, S_DBG = 16, 20, 24, 28, 32, 36, 40
    sW = 44; sT0, sT1, sIdx, sR, sM, sSd = 45, 46, 47, 48, 49, 50
    vTid = 1
    vT = 2
    GW = 16
    UW = 56
    DW = 96
    RV = 140
    HX = 148
    AG = 160
    AY = 176
    t0, t1, t2, t3 = 184, 185, 186, 187
    p(f's_cmp_ge_u32 s2, {NWG5}')
    p(f's_cbranch_scc1 {name}_done')
    p(f's_load_dwordx4 s[4:7], s[0:1], {ARG["wg"]}')
    p(f's_load_dwordx4 s[8:11], s[0:1], {ARG["wd"]}')
    p(f's_load_dwordx4 s[12:15], s[0:1], {ARG["dbg"]}')
    p(f'v_mov_b32 v{vTid}, v0')
    p('v_lshrrev_b32 v2, 6, v0')
    p('v_and_b32 v0, 63, v0')
    p(f'v_readfirstlane_b32 s{sW}, v2')
    p(f'v_lshrrev_b32 v{vT}, 2, v{vTid}')
    p(f's_movk_i32 s{sT0}, 3456')
    p(f'v_mul_lo_u32 v{vT+1}, v{vT}, s{sT0}')
    p(f'v_and_b32 v{vT+2}, 3, v{vTid}')
    p(f'v_lshl_add_u32 v{vT+1}, v{vT+2}, 4, v{vT+1}')
    p(f's_lshl_b32 s{sT1}, s2, 6')
    p(f'v_add_u32 v{vT+1}, s{sT1}, v{vT+1}')
    p(f'v_mul_u32_u24 v{vT+3}, 820, v{vTid}')
    p(f'v_lshrrev_b32 v{vT+3}, 16, v{vT+3}')
    p(f'v_mul_u32_u24 v{vT+4}, 80, v{vT+3}')
    p(f'v_sub_u32 v{vT+4}, v{vTid}, v{vT+4}')
    p(f's_lshl_b32 s{sT1}, s2, 5')
    p(f'v_add_u32 v{vT+5}, s{sT1}, v{vT+3}')
    p(f's_movk_i32 s{sT0}, 1280')
    p(f'v_mul_lo_u32 v{vT+5}, v{vT+5}, s{sT0}')
    p(f'v_lshl_add_u32 v{vT+5}, v{vT+4}, 4, v{vT+5}')
    p('s_waitcnt lgkmcnt(0)')
    srd(p, S_WG, 4, 640*1728*2)
    srd(p, S_WU, 6, 640*1728*2)
    srd(p, S_WD, 8, 1728*640*2)
    srd(p, S_OUT, 10, 2048*640*2)
    srd(p, S_DBG, 12, 256)
    srd(p, S_H, 14, SZ_H, WS_H)
    srd(p, S_ST, 14, 2 << 20, WS_STAT)
    p(f'v_lshlrev_b32 v{vT+6}, 5, v{vTid}')
    p.vm(f'buffer_load_dwordx4 v[{RV}:{RV+3}], v{vT+6}, s[{S_ST}:{S_ST+3}], 0 offen', 'R')
    p.vm(f'buffer_load_dwordx4 v[{RV+4}:{RV+7}], v{vT+6}, s[{S_ST}:{S_ST+3}], 0 offen offset:16', 'R')
    for k in range(10):
        p(f's_mov_b32 s{sT0}, {k*64*3456}')
        p.vm(f'buffer_load_dwordx4 v[{GW+4*k}:{GW+4*k+3}], v{vT+1}, s[{S_WG}:{S_WG+3}], s{sT0} offen', 'G')
        p.vm(f'buffer_load_dwordx4 v[{UW+4*k}:{UW+4*k+3}], v{vT+1}, s[{S_WU}:{S_WU+3}], s{sT0} offen', 'G')
    for k in range(11):
        p(f's_mov_b32 s{sT0}, {k*3*1280}')
        p.vm(f'buffer_load_dwordx4 v[{DW+4*k}:{DW+4*k+3}], v{vT+5}, s[{S_WD}:{S_WD+3}], s{sT0} offen', 'D')
    p.wait_vm('R')
    p(f'v_lshlrev_b32 v{t1}, 3, v{vTid}')
    p(f'v_mov_b32 v{t0}, v{RV}')
    for k in range(1, 8):
        p(f'v_cmp_gt_f32 vcc, v{RV+k}, v{t0}')
        p(f'v_lshlrev_b32 v{t2}, 3, v{vTid}')
        p(f'v_add_u32 v{t2}, {k}, v{t2}')
        p(f'v_cndmask_b32 v{t0}, v{t0}, v{RV+k}, vcc')
        p(f'v_cndmask_b32 v{t1}, v{t1}, v{t2}, vcc')
    p(f'v_lshlrev_b32 v{t2}, 3, v{vTid}')
    p(f'ds_write_b64 v{t2}, v[{t0}:{t1}]')
    p('s_waitcnt lgkmcnt(0)')
    p('s_barrier')
    p(f'v_lshlrev_b32 v{t2}, 5, v0')
    p(f'ds_read_b128 v[{RV}:{RV+3}], v{t2}')
    p(f'ds_read_b128 v[{RV+4}:{RV+7}], v{t2} offset:16')
    p('s_waitcnt lgkmcnt(0)')
    p(f'v_mov_b32 v{t0}, v{RV}')
    p(f'v_mov_b32 v{t1}, v{RV+1}')
    for k in range(1, 4):
        p(f'v_cmp_gt_f32 vcc, v{RV+2*k}, v{t0}')
        p('s_nop 1')
        p(f'v_cndmask_b32 v{t0}, v{t0}, v{RV+2*k}, vcc')
        p(f'v_cndmask_b32 v{t1}, v{t1}, v{RV+2*k+1}, vcc')
    for x in (1, 2, 4, 8, 16, 32):
        p(f'v_xor_b32 v{t2}, {x}, v0')
        p(f'v_lshlrev_b32 v{t2}, 2, v{t2}')
        p(f'ds_bpermute_b32 v{RV}, v{t2}, v{t0}')
        p(f'ds_bpermute_b32 v{RV+1}, v{t2}, v{t1}')
        p('s_waitcnt lgkmcnt(0)')
        p(f'v_cmp_gt_f32 vcc, v{RV}, v{t0}')
        p(f'v_cmp_eq_f32 s[52:53], v{RV}, v{t0}')
        p(f'v_cmp_lt_u32 s[54:55], v{RV+1}, v{t1}')
        p('s_nop 1')
        p(f's_and_b64 s[52:53], s[52:53], s[54:55]')
        p(f's_or_b64 vcc, vcc, s[52:53]')
        p(f'v_cndmask_b32 v{t0}, v{t0}, v{RV}, vcc')
        p(f'v_cndmask_b32 v{t1}, v{t1}, v{RV+1}, vcc')
    p('s_nop 1')
    p(f'v_readfirstlane_b32 s{sIdx}, v{t1}')
    p(f'v_readfirstlane_b32 s{sR}, v{t0}')
    p('s_nop 4')
    p(f's_min_u32 s{sIdx}, s{sIdx}, 2047')
    p(f's_mul_i32 s{sT0}, s{sIdx}, 1280')
    p(f'v_lshlrev_b32 v{t2}, 1, v{vT}')
    for k in range(10):
        p.vm(f'buffer_load_ushort v{HX+k}, v{t2}, s[{S_H}:{S_H+3}], s{sT0} offen offset:{128*k}', 'HX')
    p(f's_lshl_b32 s{sT1}, s{sIdx}, 2')
    p(f'v_mov_b32 v{t3}, s{sT1}')
    p(f's_mov_b32 s{sT0}, 8192')
    p.vm(f'buffer_load_dword v{t0}, v{t3}, s[{S_ST}:{S_ST+3}], s{sT0} offen', 'HX')
    p(f's_mov_b32 s{sT0}, 16384')
    p.vm(f'buffer_load_dword v{t1}, v{t3}, s[{S_ST}:{S_ST+3}], s{sT0} offen', 'HX')
    p.wait_vm('HX')
    p(f'v_rcp_f32 v{t2}, v{t1}')
    def hn_of(dst, src):
        p(f'v_lshlrev_b32 v{dst}, 16, v{src}')
        p(f'v_sub_f32 v{dst}, v{dst}, v{t0}')
        for x in rne_keep(dst, dst): p(x)
        p(f'v_mul_f32 v{dst}, v{dst}, v{t2}')
        for x in rne_keep(dst, dst): p(x)
    for k in range(10): hn_of(HX + k, HX + k)
    p(f'v_mov_b32 v{vT+7}, v{t0}')
    p(f'v_mov_b32 v{vT+8}, v{t2}')
    for j in range(16): p(f'v_mov_b32 v{AG+j}, 0')
    for k in range(10):
        for (W_, A_) in ((GW, AG), (UW, AG + 8)):
            for q in range(4):
                p(f'v_lshlrev_b32 v{t0}, 16, v{W_+4*k+q}')
                p(f'v_and_b32 v{t1}, 0xffff0000, v{W_+4*k+q}')
                p(f'v_fmac_f32 v{A_+2*q}, v{t0}, v{HX+k}')
                p(f'v_fmac_f32 v{A_+2*q+1}, v{t1}, v{HX+k}')
    for j in range(16):
        r = AG + j
        p('s_nop 1')
        p(f'v_add_f32_dpp v{r}, v{r}, v{r} row_ror:8 row_mask:0xf bank_mask:0xf')
        p('s_nop 1')
        p(f'v_add_f32_dpp v{r}, v{r}, v{r} row_ror:4 row_mask:0xf bank_mask:0xf')
    for sw in ('v_permlane16_swap_b32', 'v_permlane32_swap_b32'):
        for j in range(16):
            r = AG + j
            p(f'v_mov_b32 v{t0}, v{r}')
            p('s_nop 1')
            p(f'{sw} v{r}, v{t0}')
            p('s_nop 1')
            p(f'v_add_f32 v{r}, v{r}, v{t0}')
    p('s_barrier')
    p(f'v_and_b32 v{t0}, 3, v0')
    p(f'v_lshlrev_b32 v{t0}, 6, v{t0}')
    p(f's_lshl_b32 s{sT0}, s{sW}, 8')
    p(f'v_add_u32 v{t0}, s{sT0}, v{t0}')
    for q in range(4): p(f'ds_write_b128 v{t0}, v[{AG+4*q}:{AG+4*q+3}] offset:{4096+16*q}')
    p('s_waitcnt lgkmcnt(0)')
    p('s_barrier')
    p(f'v_and_b32 v{t0}, 31, v0')
    p(f'v_lshrrev_b32 v{t1}, 3, v{t0}')
    p(f'v_and_b32 v{t0}, 7, v{t0}')
    p(f'v_lshlrev_b32 v{t1}, 6, v{t1}')
    p(f'v_lshl_add_u32 v{t0}, v{t0}, 2, v{t1}')
    for w in range(4):
        p(f'ds_read_b32 v{AG+w}, v{t0} offset:{4096+256*w}')
        p(f'ds_read_b32 v{AG+4+w}, v{t0} offset:{4096+256*w+32}')
    p('s_waitcnt lgkmcnt(0)')
    for b in (AG, AG + 4):
        p(f'v_add_f32 v{b}, v{b}, v{b+1}')
        p(f'v_add_f32 v{b+2}, v{b+2}, v{b+3}')
        p(f'v_add_f32 v{b}, v{b}, v{b+2}')
    g_, u_ = AG, AG + 4
    for x in rne_keep(g_, g_): p(x)
    for x in rne_keep(u_, u_): p(x)
    p(f'v_mul_f32 v{t1}, 0xbfb8aa3b, v{g_}')
    p(f'v_exp_f32 v{t1}, v{t1}')
    p('s_nop 0')
    p(f'v_add_f32 v{t1}, 1.0, v{t1}')
    p(f'v_rcp_f32 v{t1}, v{t1}')
    p('s_nop 0')
    p(f'v_mul_f32 v{g_}, v{g_}, v{t1}')
    for x in rne_keep(g_, g_): p(x)
    p(f'v_mul_f32 v{g_}, v{g_}, v{u_}')
    for x in rne_keep(g_, g_): p(x)
    p(f'v_and_b32 v{t0}, 31, v0')
    p(f'v_lshlrev_b32 v{t0}, 2, v{t0}')
    p(f'ds_write_b32 v{t0}, v{g_} offset:8192')
    p('s_waitcnt lgkmcnt(0)')
    p('s_barrier')
    p(f'v_lshlrev_b32 v{t0}, 2, v{vT+3}')
    for k in range(11): p(f'ds_read_b32 v{GW+k}, v{t0} offset:{8192 + 12*k}')
    p.wait_vm('D')
    p('s_waitcnt lgkmcnt(0)')
    p(f'v_cmp_gt_u32 vcc, 2, v{vT+3}')
    p('s_nop 1')
    p(f'v_cndmask_b32 v{GW+10}, 0, v{GW+10}, vcc')
    for j in range(8): p(f'v_mov_b32 v{AY+j}, 0')
    for k in range(11):
        for q in range(4):
            p(f'v_lshlrev_b32 v{t0}, 16, v{DW+4*k+q}')
            p(f'v_and_b32 v{t1}, 0xffff0000, v{DW+4*k+q}')
            p(f'v_fmac_f32 v{AY+2*q}, v{t0}, v{GW+k}')
            p(f'v_fmac_f32 v{AY+2*q+1}, v{t1}, v{GW+k}')
    p(f'v_lshlrev_b32 v{t0}, 5, v{vTid}')
    p(f'ds_write_b128 v{t0}, v[{AY}:{AY+3}] offset:12288')
    p(f'ds_write_b128 v{t0}, v[{AY+4}:{AY+7}] offset:12304')
    p('s_waitcnt lgkmcnt(0)')
    p('s_barrier')
    for i in range(3):
        p(f'v_lshlrev_b32 v{t0}, 2, v{vTid}')
        for rg in range(3): p(f'ds_read_b32 v{AY+3*i+rg}, v{t0} offset:{12288 + rg*2560 + i*1024}') if AY+3*i+rg < AY + 8 or True else None
    p('s_waitcnt lgkmcnt(0)')
    Y = AY
    for i in range(3):
        p(f'v_add_f32 v{AY+3*i}, v{AY+3*i}, v{AY+3*i+1}')
        p(f'v_add_f32 v{AY+3*i}, v{AY+3*i}, v{AY+3*i+2}')
    p(f's_and_b32 s{sT0}, s2, 7')
    p(f's_mul_i32 s{sT0}, s{sT0}, 2560')
    p(f's_add_u32 s{sT0}, s{sT0}, {WS_YACC - WS_STAT}')
    p(f'v_lshlrev_b32 v{t0}, 2, v{vTid}')
    p(f'buffer_atomic_add_f32 v{AY}, v{t0}, s[{S_ST}:{S_ST+3}], s{sT0} offen')
    p(f'buffer_atomic_add_f32 v{AY+3}, v{t0}, s[{S_ST}:{S_ST+3}], s{sT0} offen offset:1024')
    p(f'v_cmp_gt_u32 vcc, 128, v{vTid}')
    p('s_nop 1')
    p('s_and_saveexec_b64 s[56:57], vcc')
    p(f's_cbranch_execz {name}_a3')
    p(f'buffer_atomic_add_f32 v{AY+6}, v{t0}, s[{S_ST}:{S_ST+3}], s{sT0} offen offset:2048')
    p.label(f'{name}_a3')
    p('s_mov_b64 exec, s[56:57]')
    p('s_waitcnt vmcnt(0)')
    p('s_barrier')
    p(f's_cmp_lg_u32 s{sW}, 0')
    p(f's_cbranch_scc1 {name}_wait')
    p(f'v_mov_b32 v{t0}, 0')
    p(f'v_mov_b32 v{t1}, 1')
    p('v_cmp_eq_u32 vcc, 0, v0')
    p('s_nop 1')
    p('s_and_saveexec_b64 s[56:57], vcc')
    p(f'buffer_atomic_add v{t1}, v{t0}, s[{S_DBG}:{S_DBG+3}], 0 offen sc0 sc1')
    p('s_waitcnt vmcnt(0)')
    p(f'ds_write_b32 v{t0}, v{t1} offset:0')
    p('s_waitcnt lgkmcnt(0)')
    p('s_mov_b64 exec, s[56:57]')
    p.label(f'{name}_wait')
    p('s_barrier')
    p(f'v_mov_b32 v{t0}, 0')
    p(f'ds_read_b32 v{t1}, v{t0} offset:0')
    p('s_waitcnt lgkmcnt(0)')
    p('s_nop 0')
    p(f'v_readfirstlane_b32 s{sT0}, v{t1}')
    p('s_nop 4')
    p(f's_cmp_lg_u32 s{sT0}, {NWG5-1}')
    p(f's_cbranch_scc1 {name}_done')
    p(f'v_lshlrev_b32 v{t0}, 2, v{vTid}')
    for i in range(3):
        for c in range(8):
            p(f's_mov_b32 s{sT0}, {WS_YACC - WS_STAT + c*2560 + i*1024}')
            p.vm(f'buffer_load_dword v{GW+8*i+c}, v{t0}, s[{S_ST}:{S_ST+3}], s{sT0} offen sc0 sc1', 'Y')
    p(f's_mul_i32 s{sT1}, s{sIdx}, 1280')
    p(f'v_lshlrev_b32 v{t3}, 1, v{vTid}')
    for i in range(3):
        p.vm(f'buffer_load_ushort v{HX+i}, v{t3}, s[{S_H}:{S_H+3}], s{sT1} offen offset:{512*i}', 'Y')
    p.wait_vm('Y')
    p(f'v_mov_b32 v{t1}, s{sR}')
    p(f'v_mul_f32 v{t1}, 0xbfb8aa3b, v{t1}')
    p(f'v_exp_f32 v{t1}, v{t1}')
    p('s_nop 0')
    p(f'v_add_f32 v{t1}, 1.0, v{t1}')
    p(f'v_rcp_f32 v{t1}, v{t1}')
    p('s_nop 0')
    for x in rne_keep(t1, t1): p(x)
    p(f'v_mov_b32 v{vT+9}, v{t1}')
    p(f'v_mov_b32 v{t0}, v{vT+7}')
    p(f'v_mov_b32 v{t2}, v{vT+8}')
    for i in range(3):
        b = GW + 8*i
        for c in range(1, 8): p(f'v_add_f32 v{b}, v{b}, v{b+c}')
        for x in rne_keep(b, b): p(x)
        p(f'v_mul_f32 v{b}, v{b}, v{vT+9}')
        for x in rne_keep(b, b): p(x)
        p(f'v_lshlrev_b32 v{b+1}, 16, v{HX+i}')
        hn_of(HX + 4 + i, HX + i)
        p(f'v_add_f32 v{b}, v{b}, v{HX+4+i}')
        for x in rne_keep(b, b): p(x)
        p(f'v_add_f32 v{b}, v{b}, v{b+1}')
        p(f'v_cvt_pk_bf16_f32 v{b}, v{b}, v{b}')
    p(f'buffer_store_short v{GW}, v{t3}, s[{S_OUT}:{S_OUT+3}], s{sT1} offen')
    p(f'buffer_store_short v{GW+8}, v{t3}, s[{S_OUT}:{S_OUT+3}], s{sT1} offen offset:512')
    p(f'v_cmp_gt_u32 vcc, 128, v{vTid}')
    p('s_nop 1')
    p('s_and_saveexec_b64 s[56:57], vcc')
    p(f's_cbranch_execz {name}_done')
    p(f'buffer_store_short v{GW+16}, v{t3}, s[{S_OUT}:{S_OUT+3}], s{sT1} offen offset:1024')
    p.label(f'{name}_done')
    p('s_endpgm')
    pol = lambda ins, n: False
    ne = len(check_linear(trace(p, pol), name))
    return p, ne

if __name__ == '__main__':
    p, ne = gen_k5()
    print('instrs', p.count(), 'errors', ne)
```

```python
def rne_keep(dst, src):
    return [f'v_cvt_pk_bf16_f32 v{dst}, v{src}, v{src}', f'v_lshlrev_b32 v{dst}, 16, v{dst}']
def row16_allreduce(r, op='v_add_f32'):
    L = []
    for sh in (8, 4, 2, 1):
        L += ['s_nop 1', f'{op}_dpp v{r}, v{r}, v{r} row_ror:{sh} row_mask:0xf bank_mask:0xf']
    return L
def unpack8(src, dst):
    L = []
    for k in range(4):
        L += [f'v_lshlrev_b32 v{dst + 2*k}, 16, v{src + k}', f'v_and_b32 v{dst + 2*k + 1}, 0xffff0000, v{src + k}']
    return L
def ln_stream(X, n, T, reduce_fn, nonneg=None, scale=None):
    sm, mean, mb, var, sd, rc, t0, t1 = range(T, T + 8)
    L = [f'v_add_f32 v{sm}, v{X}, v{X+1}', f'v_add_f32 v{t0}, v{X+2}, v{X+3}']
    for i in range(4, n, 2):
        L += [f'v_add_f32 v{sm}, v{sm}, v{X+i}', f'v_add_f32 v{t0}, v{t0}, v{X+i+1}']
    L += [f'v_add_f32 v{sm}, v{sm}, v{t0}']
    L += reduce_fn(sm)
    L += [f'v_mul_f32 v{mean}, 0x3acccccd, v{sm}']
    L += rne_keep(mb, mean)
    L += [f'v_sub_f32 v{t0}, v{X}, v{mean}', f'v_sub_f32 v{t1}, v{X+1}, v{mean}', f'v_mul_f32 v{var}, v{t0}, v{t0}', f'v_mul_f32 v{rc}, v{t1}, v{t1}']
    for i in range(2, n, 2):
        L += [f'v_sub_f32 v{t0}, v{X+i}, v{mean}', f'v_sub_f32 v{t1}, v{X+i+1}, v{mean}', f'v_fmac_f32 v{var}, v{t0}, v{t0}', f'v_fmac_f32 v{rc}, v{t1}, v{t1}']
    L += [f'v_add_f32 v{var}, v{var}, v{rc}']
    L += reduce_fn(var)
    L += [f'v_mul_f32 v{var}, 0x3acccccd, v{var}']
    L += rne_keep(var, var)
    L += [f'v_add_f32 v{var}, 0x3727c5ac, v{var}']
    L += rne_keep(var, var)
    L += [f'v_sqrt_f32 v{sd}, v{var}', 's_nop 0']
    L += rne_keep(sd, sd)
    L += [f'v_rcp_f32 v{rc}, v{sd}', 's_nop 0']
    if scale: L += [f'v_mul_f32 v{rc}, {scale}, v{rc}']
    for i in range(0, n, 2):
        L += [f'v_sub_f32 v{t0}, v{X+i}, v{mb}', f'v_sub_f32 v{t1}, v{X+i+1}, v{mb}',
              f'v_cvt_pk_bf16_f32 v{t0}, v{t0}, v{t1}',
              f'v_and_b32 v{t1}, 0xffff0000, v{t0}', f'v_lshlrev_b32 v{t0}, 16, v{t0}',
              f'v_mul_f32 v{t0}, v{t0}, v{rc}', f'v_mul_f32 v{t1}, v{t1}, v{rc}',
              f'v_cvt_pk_bf16_f32 v{X + i // 2}, v{t0}, v{t1}']
    return L
```

```python
from gx2 import *

def cls(it):
    k = it[0]
    if k in ('m', 'l', 'st', 'r'): return 'M'
    if k in ('wlg', 'wvm', 's', 'call', 'w'): return 'S'
    if k == 'bar': return 'B'
    if k == 'v':
        return 'S' if it[1].startswith('s_') else 'V'
    raise ValueError(it)
def cost(it):
    c = cls(it)
    if c == 'V': return 8 if it[1].split()[0] in TRANS else 4
    if c == 'B': return 8
    if it[0] == 'call': return 0
    return 4

class Region:
    def __init__(self, mfmas, period=16):
        self.m = mfmas; self.n = len(mfmas); self.period = period
        self.S = [[] for _ in range(self.n)]
        self.M = [[] for _ in range(self.n)]
        self.V = [[] for _ in range(self.n)]
        self.over = 0
    def time(self, g, extra=None):
        S = list(self.S[g]); M = list(self.M[g]); V = list(self.V[g])
        if extra is not None:
            {'S': S, 'B': S, 'M': M, 'V': V}[cls(extra)].append(extra)
        t = 4 + sum(cost(x) for x in S)
        if M or V: t = max(t, 8)
        t += sum(cost(x) for x in M) + 4*max(0, len(M) - 1) + sum(cost(x) for x in V)
        return t
    def fits(self, g, it):
        if cls(it) == 'M' and self.M[g]: return False
        return self.time(g, it) <= self.period
    def free(self, g): return self.period - self.time(g)
    def place(self, it, earliest=0, latest=None, force=False):
        latest = self.n - 1 if latest is None else min(latest, self.n - 1)
        earliest = max(0, min(earliest, self.n - 1))
        g = earliest
        if not force:
            while g <= latest and not self.fits(g, it): g += 1
            if g > latest:
                g = min(range(earliest, max(latest, earliest) + 1), key=lambda x: self.time(x, it)); self.over += 1
        {'S': self.S, 'B': self.S, 'M': self.M, 'V': self.V}[cls(it)][g].append(it)
        return g
    ORD = {'S': 0, 'B': 0, 'M': 1, 'V': 2}
    def stream(self, items, start=0, end=None, pace=None):
        g = start; prev = None
        for k, it in enumerate(items):
            e = g
            if prev is not None and self.ORD[cls(it)] < self.ORD[cls(prev)]: e = g + 1
            if pace: e = max(e, pace(k))
            g = self.place(it, e, end)
            prev = it
        return g
    def total(self):
        return sum(max(self.period, self.time(g)) for g in range(self.n))
    def emit(self, p, put):
        for i in range(self.n):
            p(self.m[i])
            for it in self.S[i]: put(it)
            for it in self.M[i]: put(it)
            for it in self.V[i]: put(it)

def make_put(p):
    def put(it):
        k = it[0]
        if k == 'm': p.vm(it[1], it[2], it[3])
        elif k == 'l': p.vm(it[1], it[2])
        elif k == 'st': p.vm(it[1], 'st')
        elif k == 'r': p.ds(it[1], it[2], it[3] if len(it) > 3 else None)
        elif k == 'wlg': p.wait_lg(it[1])
        elif k == 'wvm': p.wait_vm(it[1], it[2] if len(it) > 2 else '')
        elif k == 'bar':
            if it[1]: p.wait_vm(it[1], 'lgkmcnt(0)')
            else: p('s_waitcnt lgkmcnt(0)')
            p.lg_all()
            st = len(it) > 2 and it[2]
            if st: p.stamp('prebar')
            p('s_barrier')
            if st: p.stamp('postbar')
        elif k == 'call': it[1]()
        else: p(it[1])
    return put
```

```python
import sys
from k1b import gen_k1
from k2b import gen_k2
from k3 import gen_k3
from k4 import gen_k4
from k5 import gen_k5, NWG5
from common import *
prof = len(sys.argv) > 1 and sys.argv[1] == 'prof'
out = sys.argv[2] if len(sys.argv) > 2 else 'all.s'
ks = []
errs = 0
for (nm, gen, grid, block, lds, vg, sg, acc) in [
    ('kv_kernel', gen_k1, 256, 256, 163840, 512, 102, 256),
    ('attn_kernel', gen_k2, 256, 256, 163840, 512, 102, 256),
    ('oproj_kernel', gen_k3, 256, 256, 147456, 160, 102, 160),
    ('ln2_kernel', gen_k4, 256, 256, 1024, 168, 64, 168),
    ('ffn_kernel', gen_k5, NWG5, 256, 24576, 192, 64, 192)]:
    p, e = gen(name=nm, prof=prof and nm not in ('ln2_kernel', 'ffn_kernel'))
    errs += e
    ks.append((nm, p, grid, block, lds, vg, sg, acc))
print('total errors', errs)
hdr = '''; Kernarg layout (112 bytes, ptrs only): x, c_kv, w_q, w_uk, w_uv, w_o, B_x, w_r, w_gate, w_up, w_down, out, debug, ws
;           -> oproj_kernel (output projection, split-K partials) -> ln2_kernel (residual + LN + router) -> ffn_kernel (top-1 token FFN)
'''
body = '.amdgcn_target "amdgcn-amd-amdhsa--gfx950"\n.text\n'
d = '.section .rodata,"a"\n'
for (name, prog, grid, block, lds, vg, sg, acc) in ks:
    hdr += f'; @launch kernel={name} grid=({grid},1,1) block=({block},1,1) lds={lds}\n'
    body += header(name) + prog.text()
    d += desc(name, vg, sg, acc)
open(out, 'w').write(hdr + body + d)
```

```python
from gx import *

MiB = 1 << 20
WS_KF = 0
WS_VF = 16 * MiB
WS_XNF = 32 * MiB
WS_CTX = 36 * MiB
WS_PART = 52 * MiB
WS_H = 76 * MiB
WS_STAT = 80 * MiB
WS_YACC = 81 * MiB
OFF_KEYS = 20480
OFF_FLAGF = 21504
OFF_RDY = 21760
OFF_FM = 22784
SZ_ZERO = 22784 + 2048
SZ_KF = 16 * MiB
SZ_XNF = 64 * 40 * 1024
SZ_CTX = 16 * MiB
SZ_PART = 20 * MiB
SZ_H = 2048 * 640 * 2

ARG = dict(x=0, ckv=8, wq=16, wuk=24, wuv=32, wo=40, bx=48, wr=56, wg=64, wu=72, wd=80, out=88, dbg=96, ws=104)

def v(b, n=1): return f'v{b}' if n == 1 else f'v[{b}:{b+n-1}]'
def a(b, n=1): return f'a{b}' if n == 1 else f'a[{b}:{b+n-1}]'
def s(b, n=1): return f's{b}' if n == 1 else f's[{b}:{b+n-1}]'

def header(name):
    return f""".globl {name}
.p2align 8
.type {name},@function
{name}:
"""

def desc(name, vgpr, sgpr, accum):
    return f""".p2align 6
.amdhsa_kernel {name}
  .amdhsa_next_free_vgpr {vgpr}
  .amdhsa_next_free_sgpr {sgpr}
  .amdhsa_accum_offset {accum}
  .amdhsa_group_segment_fixed_size 0
  .amdhsa_kernarg_size 112
  .amdhsa_user_sgpr_count 2
  .amdhsa_user_sgpr_kernarg_segment_ptr 1
  .amdhsa_system_sgpr_workgroup_id_x 1
  .amdhsa_float_denorm_mode_32 3
  .amdhsa_float_denorm_mode_16_64 3
.end_amdhsa_kernel
"""

def srd(p, sreg, ptr, nbytes, off=0):
    if off:
        p(f's_add_u32 s{sreg}, s{ptr}, {off}')
        p(f's_addc_u32 s{sreg+1}, s{ptr+1}, 0')
    else:
        p(f's_mov_b32 s{sreg}, s{ptr}')
        p(f's_mov_b32 s{sreg+1}, s{ptr+1}')
    p(f's_mov_b32 s{sreg+2}, {nbytes}')
    p(f's_mov_b32 s{sreg+3}, 0x00020000')

def interleave(p, mfmas, gaps):
    for i, m in enumerate(mfmas):
        p(m)
        g = gaps[i] if i < len(gaps) else []
        g = [x for x in g]
        for x in g: p(x)
```

```python
import re

def _regs(tok):
    tok = tok.strip()
    neg = tok.lstrip('-')
    if neg.startswith('abs(') or neg.startswith('|'):
        neg = neg.replace('abs(', '').replace(')', '').replace('|', '')
    m = re.fullmatch(r'([vas])\[(\d+):(\d+)\]', neg)
    if m: return [m.group(1) + str(i) for i in range(int(m.group(2)), int(m.group(3)) + 1)]
    m = re.fullmatch(r'([vas])(\d+)', neg)
    if m: return [neg]
    if neg in ('vcc',): return ['vcc']
    if neg in ('vcc_lo', 'vcc_hi'): return ['vcc']
    if neg in ('exec',): return ['exec']
    if neg == 'm0': return ['m0']
    if neg == 'scc': return ['scc']
    return []

TRANS = ('v_exp_f32', 'v_log_f32', 'v_rcp_f32', 'v_rsq_f32', 'v_sqrt_f32', 'v_sin_f32', 'v_cos_f32')

class Ins:
    __slots__ = ('text', 'op', 'args', 'rd', 'wr', 'kind', 'mods', 'tag')
    def __init__(self, text, tag=None):
        self.text = text.strip()
        self.tag = tag
        t = self.text.split(';')[0].strip()
        parts = t.split(None, 1)
        self.op = parts[0]
        rest = parts[1] if len(parts) > 1 else ''
        ops = []; cur = ''; depth = 0
        for ch in rest:
            if ch == '[': depth += 1
            if ch == ']': depth -= 1
            if ch == ',' and depth == 0: ops.append(cur.strip()); cur = ''
            else: cur += ch
        if cur.strip(): ops.append(cur.strip())
        mods = []
        if ops:
            lp = ops[-1].split()
            ops[-1] = lp[0]; mods = lp[1:]
        self.args = ops; self.mods = mods
        self.rd = []; self.wr = []
        op = self.op
        R = lambda i: _regs(ops[i]) if i < len(ops) else []
        if op.startswith('v_mfma'):
            self.kind = 'mfma'; self.wr = R(0); self.rd = R(1) + R(2) + R(3)
        elif op.startswith('ds_read') or op.startswith('ds_bpermute') or op.startswith('ds_swizzle'):
            self.kind = 'dsr'; self.wr = R(0); self.rd = R(1) + (R(2) if op.startswith('ds_bperm') else [])
        elif op.startswith('ds_write') or op.startswith('ds_add') or op.startswith('ds_max'):
            self.kind = 'dsw'; self.rd = R(0) + R(1) + R(2)
        elif op.startswith('buffer_load'):
            if 'lds' in mods:
                self.kind = 'dma'; self.rd = R(0) + R(1) + R(2) + ['m0']
            else:
                self.kind = 'vld'; self.wr = R(0); self.rd = R(1) + R(2) + R(3)
        elif op.startswith('buffer_store'):
            self.kind = 'vst'; self.rd = R(0) + R(1) + R(2) + R(3)
        elif op.startswith('buffer_atomic'):
            self.kind = 'vat'; self.rd = R(0) + R(1) + R(2) + R(3)
            if 'sc0' in mods: self.wr = R(0)[:1] if len(R(0)) <= 2 else R(0)
        elif op.startswith('global_load'):
            self.kind = 'vld'; self.wr = R(0); self.rd = R(1) + R(2)
        elif op.startswith('global_store') or op.startswith('global_atomic'):
            self.kind = 'vst'; self.rd = R(0) + R(1) + R(2)
        elif op in ('buffer_inv', 'buffer_wbl2'):
            self.kind = 'vmisc'
        elif op.startswith('s_load') or op == 's_memtime' or op == 's_memrealtime':
            self.kind = 'smem'; self.wr = R(0); self.rd = R(1)
        elif op == 's_waitcnt': self.kind = 'wait'
        elif op == 's_nop': self.kind = 'nop'
        elif op == 's_barrier': self.kind = 'bar'
        elif op in ('s_endpgm', 's_sleep', 's_setprio'): self.kind = 'misc'
        elif op.startswith('s_cbranch') or op == 's_branch':
            self.kind = 'br'
            if 'scc' in op: self.rd = ['scc']
            if 'vcc' in op: self.rd = ['vcc']
            if 'exec' in op: self.rd = ['exec']
        elif op.startswith('s_cmp') or op.startswith('s_bitcmp'):
            self.kind = 'salu'; self.rd = R(0) + R(1); self.wr = ['scc']
        elif op.startswith('s_'):
            self.kind = 'salu'; self.wr = R(0); self.rd = sum((R(i) for i in range(1, len(ops))), [])
            if op in ('s_addk_i32', 's_mulk_i32'): self.rd += R(0)
            if any(op.startswith(p) for p in ('s_add', 's_sub', 's_and', 's_or', 's_xor', 's_lshl', 's_lshr', 's_ashr', 's_min', 's_max', 's_not', 's_bfe')):
                self.wr = self.wr + ['scc']
            if op.startswith('s_addc') or op.startswith('s_subb') or op.startswith('s_cselect'): self.rd += ['scc']
            if 'saveexec' in op: self.wr += ['exec']; self.rd += ['exec']
        elif op.startswith('v_cmp'):
            self.kind = 'valu'; self.wr = R(0); self.rd = R(1) + R(2) + ['exec']
            if op.startswith('v_cmpx'): self.wr += ['exec']
        elif op.startswith('v_'):
            self.kind = 'valu'
            self.wr = R(0)
            start = 1
            if op.startswith('v_add_co') or op.startswith('v_sub_co') or op.startswith('v_addc_co') or op.startswith('v_subb_co'):
                self.wr += R(1); start = 2
            self.rd = sum((R(i) for i in range(start, len(ops))), [])
            if op.startswith('v_fmac') or op.startswith('v_mac') or op.startswith('v_dot2c') or op.startswith('v_writelane') or op.startswith('v_pk_fmac'):
                self.rd += R(0)
            if op.startswith('v_permlane32_swap') or op.startswith('v_permlane16_swap'):
                self.wr = R(0) + R(1); self.rd = R(0) + R(1)
            if any(m.startswith('row_') or m.startswith('quad_perm') or m.startswith('wave_') for m in mods):
                self.kind = 'valu'; self.rd += R(0)
            if op.startswith('v_cndmask') and len(ops) == 3: self.rd += ['vcc']
        else:
            raise ValueError('unknown op ' + text)
    def is_dpp(self):
        return any(m.startswith('row_') or m.startswith('quad_perm') or m.startswith('wave_') for m in self.mods)

class Prog:
    def __init__(self):
        self.items = []
        self.uid = 0
    def __call__(self, s, tag=None):
        for l in s.split('\n'):
            l = l.strip()
            if not l or l.startswith(';'):
                if l: self.items.append(('raw', '    ' + l))
                continue
            if l.endswith(':'): self.items.append(('label', l[:-1]))
            else: self.items.append(Ins(l, tag))
    def label(self, n): self.items.append(('label', n))
    def nl(self, p='L'):
        self.uid += 1
        return f'{p}_{self.uid}'
    def text(self):
        out = []
        for it in self.items:
            if isinstance(it, Ins): out.append('    ' + it.text)
            elif it[0] == 'label': out.append(it[1] + ':')
            else: out.append(it[1])
        return '\n'.join(out) + '\n'
    def count(self):
        return sum(isinstance(i, Ins) for i in self.items)

def mfma_passes(op):
    if '32x32x16' in op: return 8
    if '16x16x32' in op: return 4
    raise ValueError(op)

def check_linear(seq, name='', verbose=True, entry_pending=None):
    errs = []
    n = len(seq)
    def states_between(i, j):
        s = 0
        for k in range(i + 1, j):
            if seq[k].kind == 'nop': s += int(seq[k].args[0], 0) + 1
            else: s += 1
        return s
    lastw = {}
    for j, c in enumerate(seq):
        rd = set(c.rd); wr = set(c.wr)
        lo = max(0, j - 40)
        for i in range(j - 1, lo - 1, -1):
            p = seq[i]
            pw = set(p.wr)
            need = 0; why = ''
            if p.kind == 'mfma':
                ps = mfma_passes(p.op)
                D = pw
                if c.kind == 'mfma':
                    C = set(_regs(c.args[3])) if len(c.args) > 3 else set()
                    AB = set(_regs(c.args[1]) + _regs(c.args[2]))
                    if AB & D: need = max(need, {4: 8, 8: 12}[ps]); why = 'mfma D->A/B'
                    if C & D:
                        if C == D and mfma_passes(c.op) == ps: pass
                        else: need = max(need, {4: 6, 8: 10}[ps]); why = 'mfma D->C partial'
                    if (wr & D) and not (C & D): need = max(need, {4: 8, 8: 12}[ps]); why = 'mfma WAW'
                elif c.kind in ('valu', 'vst', 'vat', 'dsw', 'dsr', 'vld', 'dma'):
                    if (rd & D) or (wr & D): need = max(need, {4: 8, 8: 12}[ps]); why = 'mfma D->valu/mem'
                Cp = set(_regs(p.args[3])) if len(p.args) > 3 else set()
                if c.kind == 'valu' and (wr & Cp) and not (wr & D): need = max(need, {4: 3, 8: 7}[ps]); why = 'mfma srcC WAR'
            elif p.kind == 'valu':
                vw = {r for r in pw if r[0] in 'va' and r != 'vcc'}
                sw = {r for r in pw if r[0] == 's' or r == 'vcc'}
                if c.kind == 'mfma' and (rd & vw): need = max(need, 2); why = 'valu->mfma'
                if p.op in TRANS and c.kind in ('valu', 'mfma', 'vst', 'dsw') and c.op not in TRANS and (rd & vw): need = max(need, 1); why = 'trans->valu'
                if p.op in TRANS and c.op in TRANS and (rd & vw): need = max(need, 1); why = 'trans->trans(safe)'
                if c.op.startswith('v_permlane') and (rd & vw): need = max(need, 2); why = 'valu->permlane'
                if (c.op.startswith('v_readlane') or c.op.startswith('v_readfirstlane')) and (rd & vw): need = max(need, 1); why = 'valu->readlane'
                if c.kind == 'valu' and c.is_dpp() and (rd & vw): need = max(need, 2); why = 'valu->dpp'
                if c.kind in ('vld', 'vst', 'vat', 'dma') and (rd & sw): need = max(need, 5); why = 'valu sgpr->vmem'
                if c.kind == 'valu' and (rd & sw): need = max(need, 2); why = 'valu sgpr->valu'
                if c.kind == 'salu' and (rd & sw): need = max(need, 1); why = 'valu sgpr->salu (pad)'
                if 'exec' in pw and c.kind == 'mfma': need = max(need, 4); why = 'exec->mfma'
                if 'exec' in pw and c.kind == 'valu' and c.is_dpp(): need = max(need, 5); why = 'exec->dpp'
            elif p.kind == 'salu':
                if 'm0' in pw and c.kind == 'dma': need = max(need, 1); why = 'm0->dma'
            elif p.kind in ('vst', 'vat'):
                data = set(_regs(p.args[0]))
                if len(data) >= 3 and (wr & data) and c.kind in ('valu',): need = max(need, 2); why = 'store data WAR'
                if len(data) >= 3 and (wr & data) and c.kind in ('dsr', 'vld', 'mfma'): need = max(need, 1); why = 'store data WAR'
            if need:
                s = states_between(i, j)
                if s < need: errs.append(f'[{name}] wait-state {why}: need {need} have {s}: #{i} "{p.text}" -> #{j} "{c.text}"')
    lastscc = None
    for j, c in enumerate(seq):
        if 'scc' in c.rd:
            if lastscc is None: errs.append(f'[{name}] SCC read without writer #{j} {c.text}')
            else:
                w = seq[lastscc]
                if c.op.startswith('s_addc'):
                    if not w.op.startswith('s_add_u32'): errs.append(f'[{name}] s_addc after {w.text} #{j}')
                elif not (w.op.startswith('s_cmp') or w.op.startswith('s_bitcmp')):
                    errs.append(f'[{name}] SCC reader #{j} "{c.text}" sees writer "{w.text}"')
        if 'scc' in c.wr: lastscc = j
    vm = []
    lg = []
    smem = []
    pend = {}
    for j, c in enumerate(seq):
        if c.kind == 'wait':
            m = re.search(r'vmcnt\((\d+)\)', c.text)
            if m:
                k = int(m.group(1))
                while len(vm) > k:
                    o = vm.pop(0)
                    for r in seq[o].wr:
                        if pend.get(r) == ('vm', o): del pend[r]
            m = re.search(r'lgkmcnt\((\d+)\)', c.text)
            if m:
                k = int(m.group(1))
                if smem and k > 0: errs.append(f'[{name}] lgkmcnt({k}) with smem outstanding at #{j}')
                while len(lg) > k:
                    o = lg.pop(0)
                    for r in seq[o].wr:
                        if pend.get(r) == ('lg', o): del pend[r]
                if k == 0:
                    for o in smem:
                        for r in seq[o].wr:
                            if pend.get(r) == ('sm', o): del pend[r]
                    smem = []
            continue
        for r in list(c.rd) + list(c.wr):
            if r in pend:
                if c.kind in ('dsr', 'vld') and r in c.wr and r not in c.rd and pend[r][0] == {'dsr': 'lg', 'vld': 'vm'}[c.kind]:
                    continue
                errs.append(f'[{name}] pending {pend[r]} reg {r} touched by #{j} "{c.text}" (producer "{seq[pend[r][1]].text}")')
        if c.kind in ('vld', 'vst', 'vat', 'dma'):
            vm.append(j)
            if len(vm) > 63: errs.append(f'[{name}] vmcnt overflow (>63 outstanding) at #{j}')
            for r in c.wr: pend[r] = ('vm', j)
        elif c.kind in ('dsr', 'dsw'):
            lg.append(j)
            for r in c.wr: pend[r] = ('lg', j)
            if len(lg) > 15: pass
        elif c.kind == 'smem':
            smem.append(j)
            for r in c.wr: pend[r] = ('sm', j)
    if verbose:
        for e in errs[:40]: print(e)
        if len(errs) > 40: print('...', len(errs), 'errors')
    return errs
```

```python
from gx import *

class P2(Prog):
    def __init__(self):
        super().__init__()
        self.vmq = []
    def vm(self, text, label=None, tag=None):
        self(text, tag)
        self.vmq.append(label)
    def ds(self, text, label=None, tag=None):
        self(text, tag)
        if not hasattr(self, 'lgq'): self.lgq = []; self.lg_ret = -1
        self.lgq.append(label)
    def wait_lg(self, labels, extra=''):
        if isinstance(labels, str): labels = [labels]
        cand = [i for i, l in enumerate(self.lgq) if l in labels]
        if not cand and getattr(self, 'lenient', False): return
        idx = max(max(i for i, l in enumerate(self.lgq) if l == lab) for lab in labels)
        if idx <= self.lg_ret:
            if extra: self(f's_waitcnt {extra}')
            return
        n = min(len(self.lgq) - 1 - idx, 15)
        self.lg_ret = len(self.lgq) - 1 - n
        self(f's_waitcnt lgkmcnt({n}) {extra}'.strip())
    def lg_all(self):
        if hasattr(self, 'lgq'): self.lg_ret = len(self.lgq) - 1
    prof = False
    nstamp = 0
    def stamp(self, name=''):
        if not self.prof: return
        if getattr(self, 'stampset', None) is not None and name not in self.stampset: return
        i = self.nstamp; self.nstamp += 1
        assert i < 12
        if i == 0:
            self('s_memrealtime s[100:101]')
        self(f's_memtime s[{72 + 2*i}:{73 + 2*i}]')
        self('s_waitcnt lgkmcnt(0)')
    def dump_stamps(self, ws_sreg, off, vtmp=0):
        if not self.prof: return
        self('s_waitcnt vmcnt(0) lgkmcnt(0)')
        self(f's_memtime s[{72 + 2*self.nstamp}:{73 + 2*self.nstamp}]')
        self(f's_memrealtime s[{74 + 2*self.nstamp}:{75 + 2*self.nstamp}]')
        self('s_waitcnt lgkmcnt(0)')
        n = self.nstamp + 2
        self(f's_mov_b32 s70, s{74 + 2*self.nstamp}')
        self(f's_sub_u32 s{74 + 2*self.nstamp}, s{74 + 2*self.nstamp}, s100')
        self(f's_load_dwordx2 s[68:69], s[0:1], 104')
        self('s_waitcnt lgkmcnt(0)')
        self(f's_add_u32 s64, s68, {off}')
        self(f's_addc_u32 s65, s69, 0')
        self(f's_mov_b32 s66, {1 << 20}')
        self(f's_mov_b32 s67, 0x00020000')
        self(f's_lshl_b32 s68, s2, 2')
        self(f's_add_u32 s68, s68, s44')
        self(f's_lshl_b32 s68, s68, 6')
        self(f'v_mov_b32 v{vtmp+1}, 0')
        for i in range(n):
            self(f'v_mov_b32 v{vtmp}, s{72 + 2*i}')
            self(f'buffer_store_dword v{vtmp}, v{vtmp+1}, s[64:67], s68 offen offset:{4*i}')
        self(f'v_mov_b32 v{vtmp}, s70')
        self(f'buffer_store_dword v{vtmp}, v{vtmp+1}, s[64:67], s68 offen offset:56')
        self(f'v_mov_b32 v{vtmp}, s100')
        self(f'buffer_store_dword v{vtmp}, v{vtmp+1}, s[64:67], s68 offen offset:60')
        self('s_waitcnt vmcnt(0)')
    def vm_after(self, label):
        idx = max(i for i, l in enumerate(self.vmq) if l == label)
        return len(self.vmq) - 1 - idx
    def wait_vm(self, labels, extra=''):
        if isinstance(labels, str): labels = [labels]
        n = min(self.vm_after(l) for l in labels)
        idx = len(self.vmq) - 1 - n
        if idx <= getattr(self, 'retired', -1):
            if extra: self(f's_waitcnt {extra}')
            return None
        assert n <= 63, n
        self.retired = idx
        self(f's_waitcnt vmcnt({n}) {extra}'.strip())
        return n

def check_lds(seq, name=''):
    errs = []
    vm = []; lg = []
    dmas = []
    reads = []
    bars = []
    byidx_d = {}; byidx_r = {}
    for j, c in enumerate(seq):
        if c.kind == 'wait':
            m = re.search(r'vmcnt\((\d+)\)', c.text)
            if m:
                k = int(m.group(1))
                while len(vm) > k:
                    o = vm.pop(0)
                    if o in byidx_d: byidx_d[o]['ret'] = j
            m = re.search(r'lgkmcnt\((\d+)\)', c.text)
            if m:
                k = int(m.group(1))
                while len(lg) > k:
                    o = lg.pop(0)
                    if o in byidx_r: byidx_r[o]['ret'] = j
        elif c.kind == 'bar': bars.append(j)
        elif c.kind in ('vld', 'vst', 'vat', 'dma'):
            vm.append(j)
            if c.kind == 'dma' and c.tag:
                _, lo, hi, shared = c.tag
                for r in reads:
                    if r['lo'] < hi and lo < r['hi']:
                        if r['ret'] is None: errs.append(f'[{name}] WAR: dma #{j} {c.text} overwrites LDS [{lo},{hi}) with unretired read #{r["idx"]}')
                        elif shared and not any(r['ret'] < b < j for b in bars): errs.append(f'[{name}] WAR: dma #{j} {c.text}: no barrier after read #{r["idx"]} retired')
                reads = [r for r in reads if not (r['lo'] < hi and lo < r['hi'] and r['ret'] is not None)]
                d = dict(idx=j, lo=lo, hi=hi, shared=shared, ret=None)
                dmas = [x for x in dmas if not (x['lo'] >= lo and x['hi'] <= hi)]
                dmas.append(d); byidx_d[j] = d
        elif c.kind in ('dsr', 'dsw'):
            lg.append(j)
            if c.kind == 'dsr' and c.tag:
                _, lo, hi = c.tag
                cov = False
                for d in dmas:
                    if d['lo'] < hi and lo < d['hi']:
                        cov = True
                        if d['ret'] is None: errs.append(f'[{name}] RAW: read #{j} {c.text} [{lo},{hi}) before dma #{d["idx"]} landed')
                        elif d['shared'] and not any(d['ret'] < b < j for b in bars): errs.append(f'[{name}] RAW: read #{j} {c.text}: no barrier after dma #{d["idx"]} wait')
                if not cov: errs.append(f'[{name}] read #{j} {c.text} [{lo},{hi}) not covered by any dma')
                r = dict(idx=j, lo=lo, hi=hi, ret=None)
                reads.append(r); byidx_r[j] = r
    for e in errs[:30]: print(e)
    if len(errs) > 30: print('...', len(errs))
    return errs

def linear(p):
    return [i for i in p.items if isinstance(i, Ins)]

def trace(p, policy, maxn=200000):
    labels = {}
    for i, it in enumerate(p.items):
        if not isinstance(it, Ins) and it[0] == 'label': labels[it[1]] = i
    seq = []; i = 0; seen = {}
    while i < len(p.items) and len(seq) < maxn:
        it = p.items[i]
        if isinstance(it, Ins):
            seq.append(it)
            if it.op == 's_endpgm': break
            if it.kind == 'br':
                tgt = it.args[0]
                key = (i,)
                seen[key] = seen.get(key, 0) + 1
                if it.op == 's_branch' or policy(it, seen[key]):
                    i = labels[tgt]; continue
        i += 1
    return seq
```

```python
from common import *
from gx2 import *
from lnops import *
from sched import *

STORE_FLAGS = 'sc1'
MF = 'v_mfma_f32_16x16x32_bf16'

def w_tile_setup(p, vOffW, vLPW, vT):
    p(f'v_lshrrev_b32 v{vT}, 4, v0')
    p(f'v_bfe_u32 v{vT+1}, v0, 1, 3')
    p(f'v_xor_b32 v{vT+1}, v{vT+1}, v{vT}')
    p(f'v_and_b32 v{vT+2}, 1, v0')
    p(f'v_lshl_add_u32 v{vT+1}, v{vT+1}, 1, v{vT+2}')
    p(f'v_lshlrev_b32 v{vT+1}, 4, v{vT+1}')
    p(f'v_lshl_add_u32 v{vOffW}, v{vT}, 13, v{vT+1}')
    p(f'v_add_u32 v{vOffW+1}, {32768-1024}, v{vOffW}')
    p(f'v_xor_b32 v{vOffW+2}, 128, v{vOffW}')
    p(f'v_add_u32 v{vOffW+3}, {3*(32768-1024)}, v{vOffW+2}')
    p(f'v_add_u32 v{vOffW+2}, {2*(32768-1024)}, v{vOffW+2}')
    p(f'v_bfe_u32 v{vT}, v0, 2, 2')
    p(f'v_lshrrev_b32 v{vT+1}, 4, v0')
    p(f'v_lshl_add_u32 v{vT+2}, v{vT+1}, 3, v{vT}')
    p(f'v_lshlrev_b32 v{vT+2}, 8, v{vT+2}')
    p(f'v_and_b32 v{vT+1}, 1, v{vT+1}')
    p(f'v_lshl_add_u32 v{vT}, v{vT+1}, 2, v{vT}')
    p(f'v_lshl_add_u32 v{vT+2}, v{vT}, 5, v{vT+2}')
    p(f'v_and_b32 v{vT}, 3, v0')
    p(f'v_lshl_add_u32 v{vLPW}, v{vT}, 3, v{vT+2}')

def gen_k1(name='kv_kernel', prof=False):
    p = P2(); p.prof = prof
    S_CKV, S_WUK, S_WUV, S_KF, S_VF, S_X, S_XNF = 16, 20, 24, 28, 32, 36, 40
    sW, sH, sMT = 44, 45, 46
    sAoff, sA2, sWoff, sT0, sT1 = 47, 48, 49, 50, 51
    sLA, sLW = 52, 53
    sK0 = 56
    sScale = 60
    vLane16 = 1
    vOffA = 2
    vOffW = 6
    vLPA = 10; vCA = 11
    vLPW = 13; vCW = 14
    vT = 22
    vLT = 26
    vWF = 32
    accA = 64; accB = 192
    p(f's_cmp_ge_u32 s2, 256')
    p(f's_cbranch_scc1 {name}_done')
    p.stamp('start')
    p(f's_load_dwordx2 s[4:5], s[0:1], {ARG["x"]}')
    p(f's_load_dwordx2 s[6:7], s[0:1], {ARG["ckv"]}')
    p(f's_load_dwordx4 s[8:11], s[0:1], {ARG["wuk"]}')
    p(f's_load_dwordx2 s[12:13], s[0:1], {ARG["ws"]}')
    p(f's_load_dwordx2 s[68:69], s[0:1], {ARG["wq"]}')
    p('s_and_b32 s14, s2, 7')
    p('s_lshr_b32 s15, s2, 3')
    p(f's_lshr_b32 s{sH}, s15, 3')
    p(f's_lshl_b32 s14, s14, 2')
    p(f's_add_u32 s{sH}, s{sH}, s14')
    p(f's_and_b32 s{sMT}, s15, 7')
    p('v_lshrrev_b32 v2, 6, v0')
    p('v_and_b32 v0, 63, v0')
    p(f'v_readfirstlane_b32 s{sW}, v2')
    p(f'v_lshlrev_b32 v{vLane16}, 4, v0')
    p(f'v_lshrrev_b32 v{vT}, 3, v0')
    p(f'v_lshlrev_b32 v{vT}, 10, v{vT}')
    p(f'v_lshrrev_b32 v{vT+1}, 4, v0')
    p(f'v_and_b32 v{vT+2}, 7, v0')
    p(f'v_xor_b32 v{vT+2}, v{vT+2}, v{vT+1}')
    p(f'v_lshl_add_u32 v{vOffA}, v{vT+2}, 4, v{vT}')
    p(f'v_xor_b32 v{vT+3}, 4, v{vT+2}')
    p(f'v_lshl_add_u32 v{vOffA+1}, v{vT+3}, 4, v{vT}')
    p(f'v_add_u32 v{vOffA+2}, {2*7168}, v{vOffA}')
    p(f'v_add_u32 v{vOffA+3}, {3*7168}, v{vOffA+1}')
    p(f'v_add_u32 v{vOffA+1}, {1*7168}, v{vOffA+1}')
    w_tile_setup(p, vOffW, vLPW, vT)
    p(f'v_and_b32 v{vT}, 15, v0')
    p(f'v_bfe_u32 v{vT+1}, v0, 1, 3')
    p(f'v_lshrrev_b32 v{vT+2}, 4, v0')
    p(f'v_xor_b32 v{vT+1}, v{vT+1}, v{vT+2}')
    p(f'v_lshlrev_b32 v{vT}, 7, v{vT}')
    p(f'v_lshl_add_u32 v{vLPA}, v{vT+1}, 4, v{vT}')
    p('s_waitcnt lgkmcnt(0)')
    srd(p, S_CKV, 6, 2048*512*2)
    srd(p, S_WUK, 8, 512*4096*2)
    p(f's_lshl_b32 s{sLA}, s{sW}, 13')
    p(f's_lshl_b32 s{sLW}, s{sW}, 12')
    p(f's_lshl_b32 s{sT0}, s{sMT}, 8')
    p(f's_lshl_b32 s{sT1}, s{sW}, 6')
    p(f's_add_u32 s{sT0}, s{sT0}, s{sT1}')
    p(f's_lshl_b32 s{sAoff}, s{sT0}, 10')
    p(f's_lshl_b32 s{sK0}, s{sH}, 6')
    p(f's_lshr_b32 s{sT1}, s{sT0}, 5')
    p(f's_add_u32 s{sK0}, s{sK0}, s{sT1}')
    p(f's_lshl_b32 s{sK0}, s{sK0}, 13')
    p(f's_lshl_b32 s{sWoff}, s{sW}, 17')
    p(f's_lshl_b32 s{sT1}, s{sH}, 8')
    p(f's_add_u32 s{sWoff}, s{sWoff}, s{sT1}')

    SL = 16384
    def slotA(st): return (3 * (st % 3)) * SL
    def slotWK(st): return (3 * (st % 3) + 2) * SL
    WVslot = {0: 9, 1: 6, 2: 7, 3: 8, 4: 0, 5: 1, 6: 2, 7: 3}
    def dma_act(st, half):
        base = slotA(st)
        L = [('s', f's_add_u32 m0, s{sLA}, {base + 4096*half}'), ('s', f's_add_u32 s{sA2}, s{sAoff}, {st*128 + 32768*half}')]
        for i in range(4):
            L.append(('m', f'buffer_load_dwordx4 v{vOffA+i}, s[{S_CKV}:{S_CKV+3}], s{sA2} offen offset:{1024*i} lds', f'A{st}', ('W', base, base + 32768, False)))
        return L
    def dma_w(srdreg, chunk, slotbase, label):
        L = [('s', f's_add_u32 m0, s{sLW}, {slotbase}'), ('s', f's_add_u32 s{sT0}, s{sWoff}, {chunk*64*8192}')]
        for i in range(4):
            L.append(('m', f'buffer_load_dwordx4 v{vOffW+i}, s[{srdreg}:{srdreg+3}], s{sT0} offen offset:{1024*i} lds', label, ('W', slotbase, slotbase + SL, True)))
        return L
    def put(it):
        k = it[0]
        if k == 'm': p.vm(it[1], it[2], it[3])
        elif k == 'l': p.vm(it[1], it[2])
        elif k == 'r': p.ds(it[1], it[2], it[3])
        else: p(it[1])
    def emit(L):
        for it in L: put(it)
    def stage_dmas(st): return dma_w(S_WUK, st, slotWK(st), f'WK{st}') + dma_act(st, 0) + dma_act(st, 1)
    emit(stage_dmas(0))
    srd(p, S_X, 4, 2048*640*2)
    srd(p, S_WUV, 10, 512*4096*2)
    srd(p, S_KF, 12, SZ_KF, WS_KF)
    srd(p, S_VF, 12, SZ_KF, WS_VF)
    srd(p, S_XNF, 12, SZ_XNF, WS_XNF)
    p(f's_mov_b32 s{sScale}, 0x3e0293ee')
    for i in range(1, 4): p(f's_add_u32 s{sK0+i}, s{sK0}, {4096*i}')
    emit(stage_dmas(1))
    X = accB; RAW = accB + 40; vXo = accB + 60; vXn = accB + 61; LTa = accB + 62
    LT = 24
    p(f's_lshl_b32 s{sT1}, s2, 3')
    p(f's_lshl_b32 s14, s{sW}, 1')
    p(f's_add_u32 s{sT1}, s{sT1}, s14')
    p(f'v_bfe_u32 v{vT}, v0, 4, 1')
    p(f'v_add_u32 v{vT}, s{sT1}, v{vT}')
    p(f'v_and_b32 v{vT+1}, 15, v0')
    p(f's_movk_i32 s14, 1280')
    p(f'v_mul_lo_u32 v{vXo}, v{vT}, s14')
    p(f'v_lshl_add_u32 v{vXo}, v{vT+1}, 4, v{vXo}')
    for i in range(5):
        p.vm(f'buffer_load_dwordx4 v[{RAW+4*i}:{RAW+4*i+3}], v{vXo}, s[{S_X}:{S_X+3}], 0 offen offset:{256*i}', 'lnload')
    p(f'v_lshrrev_b32 v{vXn}, 4, v{vT}')
    p(f'v_mul_u32_u24 v{vXn}, 20, v{vXn}')
    p(f'v_lshrrev_b32 v{vT+2}, 2, v{vT+1}')
    p(f'v_add_u32 v{vXn}, v{vXn}, v{vT+2}')
    p(f'v_lshlrev_b32 v{vXn}, 10, v{vXn}')
    p(f'v_and_b32 v{vT+2}, 3, v{vT+1}')
    p(f'v_lshlrev_b32 v{vT+2}, 4, v{vT+2}')
    p(f'v_and_b32 v{vT+3}, 15, v{vT}')
    p(f'v_add_u32 v{vT+2}, v{vT+2}, v{vT+3}')
    p(f'v_lshl_add_u32 v{vXn}, v{vT+2}, 4, v{vXn}')
    emit(stage_dmas(2))
    p('s_cmp_lg_u32 s2, 0')
    p(f's_cbranch_scc1 {name}_nz')
    srd(p, 64, 12, SZ_ZERO, WS_YACC)
    for r in range(4): p(f'v_mov_b32 v{vT+r}, 0')
    p(f's_mul_i32 s14, s{sW}, 7168')
    for i in range(7):
        p(f'buffer_store_dwordx4 v[{vT}:{vT+3}], v{vLane16}, s[64:67], s14 offen')
        p(f's_add_u32 s14, s14, 1024')
    p('s_waitcnt vmcnt(0)')
    p.label(f'{name}_nz')
    p.stamp('dma issued')
    ln = [('lnwait',)]
    for i in range(5): ln += [('v', x) for x in unpack8(RAW + 4*i, X + 8*i)]
    ln += [('v', x) for x in ln_stream(X, 40, LT, row16_allreduce)]
    for i in range(5):
        ln.append(('s', f's_mov_b32 s14, {4096*i}'))
        ln.append(('l', f'buffer_store_dwordx4 v[{X+4*i}:{X+4*i+3}], v{vXn}, s[{S_XNF}:{S_XNF+3}], s14 offen', 'lnst'))

    def rd_act(ks, tb):
        st, t = divmod(ks, 2)
        r = (ks*4 + tb)*4
        return ('r', f'ds_read_b128 a[{r}:{r+3}], v{vCA+t} offset:{2048*tb}', f'act{ks}', ('R', slotA(st), slotA(st) + 32768))
    def rd_w(buf, db, kin, slotbase, lab):
        r = vWF + 4*buf
        return [('r', f'ds_read_b64_tr_b16 v[{r+2*h}:{r+2*h+1}], v{vCW+db} offset:{8192*kin + 1024*h}', lab, ('R', slotbase, slotbase + SL)) for h in range(2)]
    def upd_act(st):
        return [('s', f's_add_u32 s{sT1}, s{sLA}, {slotA(st)}'), ('v', f'v_add_u32 v{vCA}, s{sT1}, v{vLPA}'), ('v', f'v_xor_b32 v{vCA+1}, 64, v{vCA}')]
    def upd_w(base, dbs=range(8)):
        L = [('v', f'v_add_u32 v{vCW}, {base}, v{vLPW}')]
        for db in dbs:
            if db: L.append(('v', f'v_xor_b32 v{vCW+db}, {db*32}, v{vCW}'))
        return L
    put = make_put(p)
    p.wait_vm(['WK0', 'A0'])
    p('s_barrier')
    p.stamp('B0')
    emit(upd_act(0) + upd_w(slotWK(0)))
    for tb in range(4): put(rd_act(0, tb))
    for db in range(8): emit(rd_w(db, db, 0, slotWK(0), f'w0_{db}'))
    NKS = 16
    mf = []
    for ks in range(NKS):
        for db in range(8):
            for tb in range(4):
                acc = accA + (tb*8 + db)*4
                r = (ks*4 + tb)*4
                c = '0' if ks == 0 else f'v[{acc}:{acc+3}]'
                mf.append(f'{MF} v[{acc}:{acc+3}], v[{vWF+4*db}:{vWF+4*db+3}], a[{r}:{r+3}], {c}')
    R = Region(mf)
    G = lambda ks, db, tb: ks*32 + db*4 + tb
    put(('wlg', ['w0_0', 'w0_1', 'act0']))
    BARG = lambda st: G(2*st + 1, 0, 3)
    for st in range(8):
        ks = 2*st + 1
        labs = [f'WK{st+1}', f'A{st+1}'] if st < 7 else ['WV0', 'WV1', 'WV2', 'WV3']
        R.place(('bar', labs, st in (1, 2, 3)), BARG(st), force=True)
        ua = (upd_act(st + 1) + upd_w(slotWK(st + 1))) if st < 7 else upd_w(WVslot[0]*SL, range(4))
        R.stream(ua, G(ks, 0, 1), G(ks, 2, 0))
    for ks in range(NKS):
        for db in range(0, 8, 2):
            if ks == 0 and db == 0: continue
            labs = [f'w{ks}_{db}', f'w{ks}_{db+1}'] + ([f'act{ks}'] if db == 0 else [])
            R.place(('wlg', labs), G(ks, db, 0) - 1, force=True)
    for ks in range(NKS):
        st, t = divmod(ks, 2)
        nxt = ks + 1
        for db in range(8):
            e = G(ks, db, 3)
            if t == 1: e = max(e, G(ks, 2, 1))
            if nxt < NKS:
                nst, nt = divmod(nxt, 2)
                rr = rd_w(db, db, nt, slotWK(nst), f'w{nxt}_{db}')
            else:
                k2, j = divmod(db, 4)
                rr = rd_w(db, j, k2, WVslot[0]*SL, f'v2_{k2}_{j}')
            lat = G(ks + 1, 0, 0) if t == 0 else None
            g = R.place(rr[0], e, lat); R.place(rr[1], g + 1 if t == 1 or db < 7 else g, lat)
        if nxt < NKS:
            e = G(ks, 0, 0) if t == 0 else G(ks, 2, 1)
            for tb in range(4): R.place(rd_act(nxt, tb), e + 4*tb + 1)
    def spread_dma(R, L, g0, g1):
        nm = sum(1 for x in L if x[0] == 'm')
        step = max(1, (g1 - g0) // max(nm, 1))
        g = g0; prev = None
        cnt = 0
        for it in L:
            e = max(g, g0 + cnt*step - (2 if it[0] == 's' else 0))
            g = R.place(it, e, g1)
            if it[0] == 'm': cnt += 1; g += 1
    for st in range(8):
        g0 = BARG(st) + 1
        g1 = min(BARG(st + 1) - 1 if st < 7 else R.n - 1, R.n - 1)
        s2 = st + 3
        L = []
        if s2 <= 7:
            L = stage_dmas(s2)
            if s2 == 7: L += dma_w(S_WUV, 0, WVslot[0]*SL, 'WV0')
        elif s2 == 8:
            for c_ in (1, 2, 3): L += dma_w(S_WUV, c_, WVslot[c_]*SL, f'WV{c_}')
        elif s2 == 9:
            for c_ in (4, 5, 6): L += dma_w(S_WUV, c_, WVslot[c_]*SL, f'WV{c_}')
        else: L = dma_w(S_WUV, 7, WVslot[7]*SL, 'WV7')
        spread_dma(R, L, g0, g1)
    lnl = [(('wvm', 'lnload') if it[0] == 'lnwait' else it) for it in ln]
    R.stream(lnl, 48)
    R.emit(p, put)
    print('pass1 overflow', R.over, 'est cycles', R.total())
    p.stamp('pass1 end')
    def epi_items(acc_list, srdreg, scale=False):
        L = []
        for (acc, o) in acc_list:
            if scale:
                for k in range(8): L.append(('v', f'v_mul_f32 v{acc+k}, s{sScale}, v{acc+k}'))
            for k in range(4): L.append(('v', f'v_cvt_pk_bf16_f32 v{acc+k}, v{acc+2*k}, v{acc+2*k+1}'))
            L.append(('st', f'buffer_store_dwordx4 v[{acc}:{acc+3}], v{vLane16}, s[{srdreg}:{srdreg+3}], s{sK0 + o//4096} offen offset:{o % 4096} {STORE_FLAGS}'))
        return L
    epiK = epi_items([(accA + (tb*8 + 2*k4)*4, tb*4096 + k4*1024) for tb in range(4) for k4 in range(4)], S_KF, scale=True)
    def run_pass(pas, acc0, epi):
        mf = []
        for ks in range(NKS):
            for j in range(4):
                buf = (ks % 2)*4 + j
                for tb in range(4):
                    acc = acc0 + ((tb >> 1)*8 + j*2 + (tb & 1))*4
                    r = (ks*4 + tb)*4
                    cc = '0' if ks == 0 else f'v[{acc}:{acc+3}]'
                    mf.append(f'{MF} v[{acc}:{acc+3}], a[{r}:{r+3}], v[{vWF+4*buf}:{vWF+4*buf+3}], {cc}')
        R = Region(mf)
        G = lambda ks, j, tb: ks*16 + j*4 + tb
        put(('wlg', [f'v{pas}_0_0', f'v{pas}_0_1']))
        if pas == 2: R.place(('bar', ['WV4', 'WV5', 'WV6', 'WV7']), G(5, 3, 3), force=True)
        for ks in range(NKS):
            for j in (0, 2):
                if ks == 0 and j == 0: continue
                R.place(('wlg', [f'v{pas}_{ks}_{j}', f'v{pas}_{ks}_{j+1}']), G(ks, j, 0) - 1, force=True)
        for ks in range(NKS):
            n2 = ks + 2
            if n2 < NKS:
                c2, t2 = divmod(n2, 2); dbs = [jj + (4 if pas == 3 else 0) for jj in range(4)]; pp = pas; kk = n2
            elif pas == 2:
                kk = n2 - NKS; c2, t2 = 0, kk; dbs = [4, 5, 6, 7]; pp = 3
            else: continue
            if t2 == 0:
                R.stream(upd_w(WVslot[c2]*SL, dbs), G(ks, 0, 0), G(ks, 0, 2))
            for j in range(4):
                buf = (ks % 2)*4 + j
                rr = rd_w(buf, dbs[j], t2, WVslot[c2]*SL, f'v{pp}_{kk}_{j}')
                g = R.place(rr[0], G(ks, j, 3), G(ks + 1, 0, 0)); R.place(rr[1], g + 1 if j < 3 else g, G(ks + 1, 0, 0))
        n = len(epi); span = R.n - 16 - 8
        R.stream(epi, 16, None, pace=lambda k: 16 + (k*span)//n)
        R.emit(p, put)
        print('pass', pas, 'overflow', R.over, 'est cycles', R.total())
    run_pass(2, accB, epiK)
    def vepi(acc0, dbase):
        return epi_items([(acc0 + (b*8 + j*2)*4, b*8192 + (dbase + j)*1024) for b in range(2) for j in range(4)], S_VF)
    p(f's_lshl_b32 s14, s{sW}, 6')
    p(f'v_add_u32 v{vT}, s14, v0')
    p(f'v_min_u32 v{vT}, 159, v{vT}')
    p(f'v_lshrrev_b32 v{vT+1}, 1, v{vT}')
    p(f's_mul_i32 s14, s{sMT}, 80')
    p(f'v_add_u32 v{vT+1}, s14, v{vT+1}')
    p(f'v_lshlrev_b32 v{vT+1}, 13, v{vT+1}')
    p(f'v_and_b32 v{vT}, 1, v{vT}')
    p(f'v_lshl_add_u32 v{vT+1}, v{vT}, 7, v{vT+1}')
    p(f's_lshl_b32 s14, s{sH}, 8')
    p(f'v_add_u32 v{vT+1}, s14, v{vT+1}')
    p.vm(f'global_load_dword v{vT+2}, v{vT+1}, s[68:69]', 'pf')
    run_pass(3, accA, vepi(accB, 0))
    p('s_nop 7')
    for it in vepi(accA, 4): put(it)
    p.dump_stamps(12, 100*MiB, 26)
    p.label(f'{name}_done')
    p('s_endpgm')
    seq = linear(p)
    e1 = check_linear(seq, name); e2 = check_lds(seq, name)
    return p, len(e1) + len(e2)

if __name__ == '__main__':
    p, ne = gen_k1()
    print('instrs', p.count(), 'errors', ne)
```

```python
from common import *
from gx2 import *
from sched import *
from k1b import w_tile_setup, MF
from lnops import *
WS_FLG = 82*MiB

CTX_FLAGS = 'sc1'
LIM = 0x5d800000
NEGBIG = 0xff800000
opt_idx = [0]
PREFETCH = True

def gen_kf(name='front_kernel', prof=False, opt=()):
    p = P2(); p.prof = prof
    p.lenient = 'nordsA' in opt
    put = make_put(p)
    S_WQ, S_XNF, S_KF, S_VF, S_CTX = 16, 20, 24, 28, 32
    sM = 36
    sW, sH, sI = 44, 45, 46
    sT0, sT1, sT2 = 47, 48, 49
    sLW = 50
    sWoff = 51
    sXL, sXS = 52, 53
    sKb, sVb = 54, 55
    sHbase = 56
    sSlotP, sSlotR = 57, 58
    sTL, sTS = 59, 60
    sCnt = 61
    sDd = 62
    sFlag = 63
    sCtx = 64
    sLim = 65
    sScale = 61
    sSel = 4
    vLane16 = 1; vRd = 2; vNinf = 3
    vOffW = 4
    vLPW = 8; vT = 9
    vNeg = 16; vCi = 32; vS = 48; vP = 80; vE = 112; vL = 116; vU = 120
    vCW = 120
    vWF = 48
    vO = 128
    aQ = 0; aK = 64; aV = 96; aX = 128
    O = lambda c, db: vO + 32*c + 4*db
    Sr = lambda sc, kb: vS + 8*sc + 4*kb
    Pr = lambda par, c: vP + 16*par + 4*c
    NSLOT = 5

    S_CKV, S_X, S_DBG = 4, 8, 88
    S_WUK, S_WUV = 36, 40
    S_FL = 68
    sTag = 3
    sXcc = 67; sSame = 66
    sASum = sFlag
    sAoff = sDd; sWr = sCtx; sAr = sLim; sWp = sKb; sAp = sVb; sKst = sSlotP
    vOffA = 16
    vLPA = 20; vCA = 21
    vWK = 32; vWV = 64; vAct = 128
    SPIN = 1 << 16
    p(f's_cmp_ge_u32 s2, 256')
    p(f's_cbranch_scc1 {name}_done')
    p.stamp('start')
    p(f's_load_dwordx2 s[84:85], s[0:1], {ARG["x"]}')
    p(f's_load_dwordx2 s[86:87], s[0:1], {ARG["ckv"]}')
    p(f's_load_dwordx4 s[88:91], s[0:1], {ARG["wuk"]}')
    p(f's_load_dwordx2 s[92:93], s[0:1], {ARG["wq"]}')
    p(f's_load_dwordx4 s[96:99], s[0:1], {ARG["dbg"]}')
    p('s_and_b32 s14, s2, 7')
    p('s_lshr_b32 s15, s2, 3')
    p(f's_lshr_b32 s{sH}, s15, 3')
    p(f's_lshl_b32 s14, s14, 2')
    p(f's_add_u32 s{sH}, s{sH}, s14')
    p(f's_and_b32 s{sI}, s15, 7')
    p('v_lshrrev_b32 v2, 6, v0')
    p('v_and_b32 v0, 63, v0')
    p(f'v_readfirstlane_b32 s{sW}, v2')
    p(f'v_lshlrev_b32 v{vLane16}, 4, v0')
    p(f's_getreg_b32 s{sXcc}, hwreg(HW_REG_XCC_ID, 0, 4)')
    w_tile_setup(p, vOffW, vLPW, vT)
    p(f'v_lshrrev_b32 v{vT}, 3, v0')
    p(f'v_lshlrev_b32 v{vT}, 10, v{vT}')
    p(f'v_lshrrev_b32 v{vT+1}, 4, v0')
    p(f'v_and_b32 v{vT+2}, 7, v0')
    p(f'v_xor_b32 v{vT+2}, v{vT+2}, v{vT+1}')
    p(f'v_lshl_add_u32 v{vOffA}, v{vT+2}, 4, v{vT}')
    p(f'v_xor_b32 v{vT+3}, 4, v{vT+2}')
    p(f'v_lshl_add_u32 v{vOffA+1}, v{vT+3}, 4, v{vT}')
    p(f'v_add_u32 v{vOffA+2}, {2*7168}, v{vOffA}')
    p(f'v_add_u32 v{vOffA+3}, {3*7168}, v{vOffA+1}')
    p(f'v_add_u32 v{vOffA+1}, {1*7168}, v{vOffA+1}')
    p(f'v_and_b32 v{vT}, 15, v0')
    p(f'v_bfe_u32 v{vT+1}, v0, 1, 3')
    p(f'v_lshrrev_b32 v{vT+2}, 4, v0')
    p(f'v_xor_b32 v{vT+1}, v{vT+1}, v{vT+2}')
    p(f'v_lshlrev_b32 v{vT}, 7, v{vT}')
    p(f'v_lshl_add_u32 v{vLPA}, v{vT+1}, 4, v{vT}')
    p(f's_lshl_b32 s{sLW}, s{sW}, 12')
    p(f's_lshl_b32 s{sWoff}, s{sW}, 17')
    p(f's_lshl_b32 s{sT1}, s{sH}, 8')
    p(f's_add_u32 s{sWoff}, s{sWoff}, s{sT1}')
    p(f's_lshl_b32 s{sT0}, s{sI}, 8')
    p(f's_lshl_b32 s{sT1}, s{sW}, 6')
    p(f's_add_u32 s{sT0}, s{sT0}, s{sT1}')
    p(f's_lshl_b32 s{sAoff}, s{sT0}, 10')
    sK0 = sXL; sLA = sXS
    p(f's_lshl_b32 s{sHbase}, s{sH}, 6')
    p(f's_lshr_b32 s{sT1}, s{sT0}, 5')
    p(f's_add_u32 s{sHbase}, s{sHbase}, s{sT1}')
    p(f's_lshl_b32 s{sHbase}, s{sHbase}, 13')
    p(f's_lshl_b32 s{sLA}, s{sW}, 13')
    p('s_waitcnt lgkmcnt(0)')
    srd(p, S_CKV, 86, 2048*512*2)
    srd(p, S_WUK, 88, 512*4096*2)
    srd(p, S_WUV, 90, 512*4096*2)
    SL = 16384
    ACT0 = 98304
    def emit(L):
        prev = None
        for it in L:
            if it[0] == 'm' and prev is not None and prev[0] == 's' and ' m0,' in prev[1]: put(('s', 's_nop 0'))
            put(it); prev = it
    def dmaW_static(st):
        base = (st % 3)*32768; L = []
        for mi, sr in enumerate((S_WUK, S_WUV)):
            L += [('s', f's_add_u32 s{sT0}, s{sWoff}, {st*64*8192}'), ('s', f's_add_u32 m0, s{sLW}, {base + mi*SL}')]
            for i in range(4): L.append(('m', f'buffer_load_dwordx4 v{vOffW+i}, s[{sr}:{sr+3}], s{sT0} offen offset:{1024*i} lds', f'W{st}', ('W', base + mi*SL, base + (mi+1)*SL, True)))
        return L
    def dmaA_static(st):
        base = ACT0 + (st % 2)*32768; L = []
        for half in range(2):
            L += [('s', f's_add_u32 s{sT1}, s{sAoff}, {st*128 + 32768*half}'), ('s', f's_add_u32 m0, s{sLA}, {base + 4096*half}')]
            for i in range(4): L.append(('m', f'buffer_load_dwordx4 v{vOffA+i}, s[{S_CKV}:{S_CKV+3}], s{sT1} offen offset:{1024*i} lds', f'A{st}', ('W', base, base + 32768, False)))
        return L
    if 'pp' in opt: p.stamp('setup')
    emit(dmaA_static(0)); emit(dmaW_static(0))
    if 'pp' in opt: p.stamp('A0W0 issued')
    srd(p, S_X, 84, 2048*640*2)
    srd(p, S_WQ, 92, 640*4096*2)
    srd(p, S_XNF, 98, SZ_XNF, WS_XNF)
    srd(p, S_KF, 98, SZ_KF, WS_KF)
    srd(p, S_VF, 98, SZ_KF, WS_VF)
    srd(p, S_CTX, 98, SZ_CTX, WS_CTX)
    srd(p, S_FL, 98, 8192, WS_FLG)
    X = 160; RAW = 200; vXo = 220; vXn = 221; LT = 224
    p(f's_lshl_b32 s{sT1}, s2, 3')
    p(f's_and_b32 s14, s{sW}, 1')
    p(f's_lshl_b32 s14, s14, 2')
    p(f's_add_u32 s{sT1}, s{sT1}, s14')
    p(f'v_and_b32 v{vT}, 3, v0')
    p(f'v_add_u32 v{vT}, s{sT1}, v{vT}')
    p(f'v_lshrrev_b32 v{vT+1}, 2, v0')
    p(f'v_mul_u32_u24 v{vXo}, 1280, v{vT}')
    p(f'v_lshl_add_u32 v{vXo}, v{vT+1}, 4, v{vXo}')
    p(f'v_lshrrev_b32 v{vXn}, 4, v{vT}')
    p(f'v_mul_u32_u24 v{vXn}, 20, v{vXn}')
    p(f'v_lshrrev_b32 v{vT+2}, 2, v{vT+1}')
    p(f'v_add_u32 v{vXn}, v{vXn}, v{vT+2}')
    p(f'v_lshlrev_b32 v{vXn}, 10, v{vXn}')
    p(f'v_and_b32 v{vT+2}, 3, v{vT+1}')
    p(f'v_lshlrev_b32 v{vT+2}, 4, v{vT+2}')
    p(f'v_and_b32 v{vT+3}, 15, v{vT}')
    p(f'v_add_u32 v{vT+2}, v{vT+2}, v{vT+3}')
    p(f'v_lshl_add_u32 v{vXn}, v{vT+2}, 4, v{vXn}')
    for i in range(5):
        p(f'buffer_load_dwordx4 v[{RAW+4*i}:{RAW+4*i+3}], v{vXo}, s[{S_X}:{S_X+3}], 0 offen offset:{256*i}')
    S_LNS = 96
    if 'notlb' not in opt:
        p('s_mov_b32 s76, s98'); p('s_mov_b32 s77, s99'); p(f's_mov_b32 s78, {96*MiB}'); p('s_mov_b32 s79, 0x00020000')
        p(f'v_mov_b32 v{vT}, {WS_FLG}')
        p(f's_add_u32 s14, s{sHbase}, {WS_KF}'); p(f'v_writelane_b32 v{vT}, s14, 1')
        p(f's_add_u32 s14, s{sHbase}, {WS_VF}'); p(f'v_writelane_b32 v{vT}, s14, 2')
        p(f's_lshl_b32 s15, s{sH}, 19')
        for k in range(2):
            p(f's_add_u32 s14, s15, {WS_KF + k*524160}'); p(f'v_writelane_b32 v{vT}, s14, {3 + 2*k}')
            p(f's_add_u32 s14, s15, {WS_VF + k*524160}'); p(f'v_writelane_b32 v{vT}, s14, {4 + 2*k}')
        p(f's_mov_b32 s14, {WS_XNF}'); p(f'v_writelane_b32 v{vT}, s14, 7')
        p(f's_mov_b32 s14, {WS_XNF + 2*MiB}'); p(f'v_writelane_b32 v{vT}, s14, 8')
        p(f's_sub_u32 s14, 15, s{sI}'); p('s_lshl_b32 s14, s14, 20'); p(f's_add_u32 s14, s14, {WS_CTX}'); p(f'v_writelane_b32 v{vT}, s14, 9')
        p(f's_lshl_b32 s14, s{sI}, 20'); p(f's_add_u32 s14, s14, {WS_CTX}'); p(f'v_writelane_b32 v{vT}, s14, 10')
        p(f'buffer_load_dword v{vT+2}, v{vT}, s[76:79], 0 offen')
    if 'pp' in opt: p.stamp('x issued')
    srd(p, S_DBG, 96, 256)
    p('v_mov_b32 v26, 0')
    p('s_or_b32 s14, s2, 0')
    p(f's_add_u32 s14, s2, s{sW}')
    p('s_cmp_lg_u32 s14, 0')
    p(f's_cbranch_scc1 {name}_notag')
    p('s_memrealtime s[92:93]')
    p('s_waitcnt lgkmcnt(0)')
    p('s_or_b32 s92, s92, 1')
    p('v_mov_b32 v24, s92')
    p(f'buffer_store_dword v24, v26, s[{S_DBG}:{S_DBG+3}], 0 offen sc1')
    p.label(f'{name}_notag')
    if 'pp' in opt: p.stamp('tag issued')
    emit(dmaA_static(1)); emit(dmaW_static(1))
    (p.stamp('dma issued') if 'pq' not in opt else None)
    p('s_cmp_lg_u32 s2, 0')
    p(f's_cbranch_scc1 {name}_nz')
    p(f's_add_u32 s76, s98, {WS_YACC}')
    p('s_addc_u32 s77, s99, 0')
    p(f's_mov_b32 s78, {SZ_ZERO}')
    p('s_mov_b32 s79, 0x00020000')
    for r in range(4): p(f'v_mov_b32 v{28+r}, 0')
    p(f's_mul_i32 s14, s{sW}, 7168')
    for i in range(7):
        p(f'buffer_store_dwordx4 v[28:31], v{vLane16}, s[76:79], s14 offen')
        p(f's_add_u32 s14, s14, 1024')
    p.label(f'{name}_nz')
    p(f's_add_u32 s96, s98, {WS_XNF}')
    p('s_addc_u32 s97, s99, 0')
    p(f's_mov_b32 s98, {SZ_XNF}')
    p('s_mov_b32 s99, 0x00020000')
    p(f's_cmp_lt_u32 s{sW}, 2')
    p('s_cselect_b32 s98, s98, 0')
    p('s_waitcnt vmcnt(16)')
    p('s_barrier')
    (p.stamp('B0') if 'pq' not in opt else None)
    def rd_act(buf, kin, tb, lab):
        r = vAct + 16*buf + 4*tb
        return ('r', f'ds_read_b128 v[{r}:{r+3}], v{vCA+kin} offset:{2048*tb}', lab)
    def rd_wA(mi, db, kin, lab):
        r = (vWK if mi == 0 else vWV) + 4*db
        return [('r', f'ds_read_b64_tr_b16 v[{r+2*h}:{r+2*h+1}], v{vCW+db} offset:{mi*SL + 8192*kin + 1024*h}', lab) for h in range(2)]
    updA = [('v', f'v_add_u32 v{vCA}, s{sAr}, v{vLPA}'), ('v', f'v_xor_b32 v{vCA+1}, 64, v{vCA}')]
    updWd = [('v', f'v_add_u32 v{vCW}, s{sWr}, v{vLPW}')] + [('v', f'v_xor_b32 v{vCW+db}, {db*32}, v{vCW}') for db in range(1, 8)]
    KA = lambda tb, db: (tb*8 + db)*4
    VA = lambda tb, db: 128 + ((tb >> 1)*16 + db*2 + (tb & 1))*4
    def stageA_mfmas(first):
        L = []
        for kin in range(2):
            for db in range(8):
                for tb in range(4):
                    a = KA(tb, db); f = vAct + 16*kin + 4*tb
                    c = '0' if (first and kin == 0) else f'a[{a}:{a+3}]'
                    L.append(f'{MF} a[{a}:{a+3}], v[{vWK+4*db}:{vWK+4*db+3}], v[{f}:{f+3}], {c}')
                for tb in range(4):
                    a = VA(tb, db); f = vAct + 16*kin + 4*tb
                    c = '0' if (first and kin == 0) else f'a[{a}:{a+3}]'
                    L.append(f'{MF} a[{a}:{a+3}], v[{f}:{f+3}], v[{vWV+4*db}:{vWV+4*db+3}], {c}')
        return L
    GA = lambda kin, db, m: kin*64 + db*8 + m
    def spread(R, L, g0, g1):
        nm = sum(1 for x in L if x[0] in ('m', 'l', 'st'))
        step = max(1, (g1 - g0) // max(nm, 1))
        g = g0; cnt = 0; prev = None
        for it in L:
            e = max(g, g0 + cnt*step - (2 if it[0] == 's' else 0))
            if it[0] == 'm' and prev is not None and prev[0] == 's' and ' m0,' in prev[1]: e = max(e, gprev + 1)
            g = R.place(it, e, g1); gprev = g; prev = it
            if it[0] in ('m', 'l', 'st'): cnt += 1; g += 1
    def stageA(kind, dmaA_items, dmaB_items, barlabs, next_reads=None, mid=None, first=False, bend=None):
        R = Region(stageA_mfmas(first))
        BG = GA(1, 0, 7)
        R.S[BG].append(('bar', barlabs))
        if mid: R.S[BG].extend(mid)
        if next_reads is None:
            R.S[GA(1, 0, 1)].append(('s', f's_add_u32 s{sWr}, s{sWr}, 32768'))
            R.S[GA(1, 0, 2)].append(('s', f's_cmp_ge_u32 s{sWr}, 98304\ns_cselect_b32 s{sWr}, 0, s{sWr}'))
            R.S[GA(1, 0, 3)].append(('s', f's_sub_u32 s{sAr}, s{sASum}, s{sAr}'))
            R.stream(updA + updWd, GA(1, 0, 4), GA(1, 2, 0))
        else:
            R.stream(next_reads[0], GA(1, 0, 4), GA(1, 2, 0))
        for kin in range(2):
            for db in range(8):
                for mi in range(2):
                    if kin == 0 and db == 0 and mi == 0: continue
                    labs = [f'w{kin}_{mi}_{db}'] + ([f'act{kin}'] if (db == 0 and mi == 0) else [])
                    R.place(('wlg', labs), GA(kin, db, 4*mi) - 1, force=True)
        for db in range(8):
            for mi in range(2):
                rr = rd_wA(mi, db, 1, f'w1_{mi}_{db}')
                e = GA(0, db, 4*mi + 3)
                g = R.place(rr[0], e, GA(1, 0, 0)); R.place(rr[1], min(g + 1, GA(1, 0, 0)), GA(1, 0, 0))
        for tb in range(4): R.place(rd_act(1, 1, tb, 'act1'), GA(0, 1, 1) + 5*tb)
        if next_reads is None:
            for db in range(8):
                for mi in range(2):
                    rr = rd_wA(mi, db, 0, f'n0_{mi}_{db}')
                    e = max(GA(1, db, 4*mi + 3), GA(1, 2, 1))
                    g = R.place(rr[0], e); R.place(rr[1], g + 1)
            for tb in range(4): R.place(rd_act(0, 0, tb, 'nact0'), GA(1, 2, 2) + 5*tb)
        else:
            for (it, e) in next_reads[1]: R.place(it, max(e, GA(1, 2, 1)))
        if 'nodmaA' in opt and kind in ('s0', 's1', 'loop'): dmaA_items = [x for x in dmaA_items if x[0] != 'm']; dmaB_items = [x for x in dmaB_items if x[0] != 'm']
        if 'nordsA' in opt and kind in ('s0', 's1', 'loop'):
            for g in range(R.n): R.M[g] = []; R.S[g] = [x for x in R.S[g] if x[0] != 'wlg']
        spread(R, dmaA_items, 1, BG - 2)
        spread(R, dmaB_items, BG + 1, bend if bend else R.n - 2)
        return R
    def dyn_dmaW():
        L = []
        for mi, sr in enumerate((S_WUK, S_WUV)):
            L += [('s', f's_add_u32 m0, s{sWp}, {mi*SL}')]
            for i in range(4): L.append(('m', f'buffer_load_dwordx4 v{vOffW+i}, s[{sr}:{sr+3}], s{sKst} offen offset:{1024*i} lds', 'Wn', None))
        L += [('s', f's_add_u32 s{sKst}, s{sKst}, {64*8192}'), ('s', f's_add_u32 s{sWp}, s{sWp}, 32768'),
              ('s', f's_cmp_ge_u32 s{sWp}, 98304\ns_cselect_b32 s{sWp}, s{sLW}, s{sWp}')]
        return L
    def dyn_dmaA():
        L = []
        for half in range(2):
            L += [('s', f's_add_u32 s{sT1}, s{sAoff}, {32768*half}'), ('s', f's_add_u32 m0, s{sAp}, {4096*half}')]
            for i in range(4): L.append(('m', f'buffer_load_dwordx4 v{vOffA+i}, s[{S_CKV}:{S_CKV+3}], s{sT1} offen offset:{1024*i} lds', 'An', None))
        L += [('s', f's_add_u32 s{sAoff}, s{sAoff}, 128'), ('s', f's_sub_u32 s{sAp}, s{sASum}, s{sAp}')]
        return L
    p(f's_mov_b32 s{sWr}, 0')
    p(f's_add_u32 s{sAr}, s{sLA}, {ACT0}')
    p(f's_add_u32 s{sWp}, s{sLW}, 65536')
    p(f's_add_u32 s{sAp}, s{sLA}, {ACT0}')
    p(f's_lshl_b32 s{sASum}, s{sAp}, 1')
    p(f's_add_u32 s{sASum}, s{sASum}, 32768')
    p(f's_add_u32 s{sKst}, s{sWoff}, {2*64*8192}')
    p(f's_add_u32 s{sAoff}, s{sAoff}, 256')
    emit(updA + updWd)
    p.lgq = []; p.lg_ret = -1
    for tb in range(4): put(rd_act(0, 0, tb, 'act0'))
    for db in range(8):
        for mi in range(2): emit(rd_wA(mi, db, 0, f'w0_{mi}_{db}'))
    def next_order(R):
        L = []
        for g in range(R.n):
            for it in R.M[g]:
                if it[0] == 'r' and (it[2].startswith('n0_') or it[2] == 'nact0'):
                    L.append('act0' if it[2] == 'nact0' else 'w0_' + it[2][3:])
        return L
    order = [None]
    def relabel():
        p.lgq = list(order[0]); p.lg_ret = -1
    def bar_raw(n):
        if 'nobarA' in opt: return ('w', f's_waitcnt vmcnt({n}) lgkmcnt(0)')
        return ('w', f's_waitcnt vmcnt({n}) lgkmcnt(0)\ns_barrier')
    BG = GA(1, 0, 7)
    def fix_bar(R, n, extra=()):
        R.S[BG] = [bar_raw(n), ('call', lambda: p.lg_all())] + list(extra) + [x for x in R.S[BG] if x[0] != 'bar']
    def red64x4(r):
        L = []
        for sh in (8, 4): L += ['s_nop 1', f'v_add_f32_dpp v{r}, v{r}, v{r} row_ror:{sh} row_mask:0xf bank_mask:0xf']
        for sw in ('v_permlane16_swap_b32', 'v_permlane32_swap_b32'):
            L += [f'v_mov_b32 v{LT+6}, v{r}', 's_nop 1', f'{sw} v{r}, v{LT+6}', 's_nop 1', f'v_add_f32 v{r}, v{r}, v{LT+6}']
        return L
    lnops = []
    for i in range(5): lnops += unpack8(RAW + 4*i, X + 8*i)
    lnops += ln_stream(X, 40, LT, red64x4, scale='0x3e0293ee')
    ln = [('v', x) for x in lnops]
    for i in range(5):
        ln.append(('s', f's_mov_b32 s14, {4096*i}'))
        ln.append(('st', f'buffer_store_dwordx4 v[{X+4*i}:{X+4*i+3}], v{vXn}, s[{S_LNS}:{S_LNS+3}], s14 offen sc1'))
    half = len(ln) // 2
    def tag_read():
        p(f's_cmp_lg_u32 s{sW}, 0')
        p(f's_cbranch_scc1 {name}_notag2')
        p('s_mov_b32 s14, 0')
        p.label(f'{name}_tagpoll')
        p(f'v_readfirstlane_b32 s{sTag}, v24')
        p('s_add_u32 s14, s14, 1')
        p('s_nop 2')
        p(f's_cmp_lg_u32 s{sTag}, 0')
        p(f's_cbranch_scc1 {name}_notag2')
        p(f's_cmp_ge_u32 s14, {SPIN}')
        p(f's_cbranch_scc1 {name}_notag2')
        p(f'buffer_load_dword v24, v26, s[{S_DBG}:{S_DBG+3}], 0 offen sc1')
        p('s_waitcnt vmcnt(0)')
        p(f's_branch {name}_tagpoll')
        p.label(f'{name}_notag2')
    def pub_ln():
        p(f's_cmp_lg_u32 s{sCnt}, 0')
        p(f's_cbranch_scc1 {name}_nopub')
        p(f's_cmp_lg_u32 s{sW}, 0')
        p(f's_cbranch_scc1 {name}_nopub')
        p(f's_lshl_b32 s14, s2, 3')
        p(f'v_mov_b32 v24, s{sTag}')
        p(f'v_mov_b32 v25, s{sXcc}')
        p('v_mov_b32 v26, 0')
        p(f'buffer_store_dwordx2 v[24:25], v26, s[{S_FL}:{S_FL+3}], s14 offen sc1')
        p.label(f'{name}_nopub')
    R0 = stageA('s0', dyn_dmaW(), dyn_dmaA(), None, first=True, bend=BG + 34)
    fix_bar(R0, 8)
    R0.place(('l', f'buffer_load_dword v24, v26, s[{S_DBG}:{S_DBG+3}], 0 offen sc1', 'TAG'), BG + 1, force=True)
    R0.period = 20; R0.stream(ln[:half], 4, None, pace=lambda k: 4 + (k*120)//half); R0.period = 16
    p.lgq = ['act0']*4 + [f'w0_{mi}_{db}' for db in range(8) for mi in range(2) for _ in range(2)]; p.lg_ret = -1
    put(('wlg', ['w0_0_0', 'act0']))
    R0.emit(p, put); order[0] = next_order(R0)
    R1_ = stageA('s1', dyn_dmaW(), dyn_dmaA(), None, bend=BG + 34)
    fix_bar(R1_, 8, [('call', tag_read)])
    nv = [x for x in ln[half:] if x[0] == 'v']; tail = ln[half + len(nv):]
    R1_.period = 20; g = R1_.stream(ln[half:], 0, None, pace=lambda k: min((k*118)//(len(ln) - half), 200) if ln[half + k][0] == 'v' else BG + 2); R1_.period = 16
    relabel(); put(('wlg', ['w0_0_0', 'act0']))
    R1_.emit(p, put); order[0] = next_order(R1_)
    print('stage0/1 est', R0.total(), R1_.total())
    p(f's_mov_b32 s{sCnt}, 0')
    LA = f'{name}_stageA'
    p.label(LA)
    Rl = stageA('loop', dyn_dmaW(), dyn_dmaA(), None, bend=BG + 34)
    fix_bar(Rl, 8, [('call', pub_ln)])
    Rl.T[Rl.n - 1] += [('s', f's_add_u32 s{sCnt}, s{sCnt}, 1'), ('s', f's_cmp_lt_u32 s{sCnt}, 4')]
    assert 'nordsA' in opt or next_order(Rl) == order[0], 'stage read order must be periodic'
    relabel()
    put(('wlg', ['w0_0_0', 'act0']))
    Rl.emit(p, put)
    print('stageA loop est', Rl.total(), 'overflow', Rl.over)
    p(f's_cbranch_scc1 {LA}')
    if 'pp' not in opt: (p.stamp('A loop done') if 'pq' not in opt else None)
    def dma_wq(c):
        L = [('s', f's_add_u32 s{sT0}, s{sWoff}, {c*64*8192}'), ('s', f's_add_u32 m0, s{sLW}, {c*SL}')]
        for i in range(4):
            L.append(('m', f'buffer_load_dwordx4 v{vOffW+i}, s[{S_WQ}:{S_WQ+3}], s{sT0} offen offset:{1024*i} lds', f'WQ{c}', None))
        return L
    relabel()
    put(('wlg', ['w0_0_0', 'act0']))
    flagld = [('s', f's_sub_u32 s{sTL}, 15, s{sI}'), ('s', f's_mov_b32 s{sTS}, s{sI}'),
              ('v', f'v_and_b32 v24, 15, v0'), ('v', f'v_bfe_u32 v25, v0, 4, 1'),
              ('v', f'v_mov_b32 v26, s{sTL}'), ('v', f'v_mov_b32 v27, s{sTS}'),
              ('v', f'v_cmp_eq_u32 vcc, 0, v25'), ('v', 's_nop 1'), ('v', f'v_cndmask_b32 v26, v27, v26, vcc'),
              ('v', f'v_lshl_add_u32 v24, v26, 4, v24'),
              ('s', f's_and_b32 s14, s{sH}, 3'), ('s', f's_lshl_b32 s14, s14, 6'), ('s', f's_lshr_b32 s15, s{sH}, 2'), ('s', f's_add_u32 s14, s14, s15'),
              ('v', f'v_and_b32 v25, 7, v0'), ('v', f'v_lshlrev_b32 v25, 3, v25'), ('v', f'v_add_u32 v25, s14, v25'),
              ('v', f'v_cmp_gt_u32 vcc, 32, v0'), ('v', 's_nop 1'), ('v', f'v_cndmask_b32 v24, v25, v24, vcc'),
              ('v', f'v_lshlrev_b32 v24, 3, v24'),
              ('l', f'buffer_load_dwordx2 v[28:29], v24, s[{S_FL}:{S_FL+3}], 0 offen sc1', 'FL')]
    R6 = stageA('s6', dma_wq(4) + dma_wq(5), dma_wq(0) + dma_wq(1), None)
    fix_bar(R6, 8)
    R6.stream(flagld, BG + 24)
    R6.emit(p, put)
    order[0] = next_order(R6)
    XR = [16, 96, 32, 80]
    def xn_load(ks):
        L = []
        for c in range(4):
            r = XR[ks % 4] + 4*c
            off = ks*1024 + (c & 1)*20480
            sb = sXL if c < 2 else sXS
            L.append(('s', f's_add_u32 s{sT1}, s{sb}, {off & ~4095}'))
            L.append(('l', f'buffer_load_dwordx4 v[{r}:{r+3}], v{vLane16}, s[{S_XNF}:{S_XNF+3}], s{sT1} offen offset:{off & 4095} sc1', f'XN{ks}'))
        return L
    def rd_w(db, kin, base, lab):
        r = vWF + 4*db
        return [('r', f'ds_read_b64_tr_b16 v[{r+2*h}:{r+2*h+1}], v{vCW+db} offset:{8192*kin + 1024*h}', lab, None) for h in range(2)]
    def upd_w(base):
        return [('v', f'v_add_u32 v{vCW}, {base}, v{vLPW}')] + [('v', f'v_xor_b32 v{vCW+db}, {db*32}, v{vCW}') for db in range(1, 8)]
    def lncheck():
        p(f's_cmp_lg_u32 s{sW}, 0')
        p(f's_cbranch_scc1 {name}_lnok')
        p('s_mov_b32 s14, 0')
        p.label(f'{name}_lnpoll')
        p(f'v_cmp_ne_u32 vcc, s{sTag}, v28')
        p('s_add_u32 s14, s14, 1')
        p(f's_cbranch_vccz {name}_lnok2')
        p(f's_cmp_ge_u32 s14, {SPIN}')
        p(f's_cbranch_scc1 {name}_lnok2')
        p(f'buffer_load_dwordx2 v[28:29], v24, s[{S_FL}:{S_FL+3}], 0 offen sc1')
        p('s_waitcnt vmcnt(0)')
        p(f's_branch {name}_lnpoll')
        p.label(f'{name}_lnok2')
        p(f'v_cmp_ne_u32 vcc, s{sXcc}, v29')
        p('s_nop 1')
        p('s_lshr_b64 s[14:15], vcc, 32')
        p('s_cmp_eq_u64 s[14:15], 0')
        p(f's_cselect_b32 s{sSame}, 1, 0')
        p.label(f'{name}_lnok')
    relabel()
    put(('wlg', ['w0_0_0', 'act0']))
    xset = [('s', f's_lshl_b32 s{sT1}, s{sTL}, 3'), ('s', f's_lshl_b32 s{sT0}, s{sW}, 1'), ('s', f's_add_u32 s{sT1}, s{sT1}, s{sT0}'),
            ('s', f's_mul_i32 s{sXL}, s{sT1}, 20480'), ('s', f's_lshl_b32 s{sT1}, s{sTS}, 3'), ('s', f's_add_u32 s{sT1}, s{sT1}, s{sT0}'),
            ('s', f's_mul_i32 s{sXS}, s{sT1}, 20480')]
    def last_use(db):
        r = vWF + 4*db
        if r < 64: return GA(1, (r - vWK)//4, 3)
        return GA(1, (r - vWV)//4, 7)
    nr = []
    for db in range(8):
        for it in rd_w(db, 0, 0, f'w0_{db}'): nr.append((it, last_use(db) + 1))
    R7 = stageA('s7', xset + dma_wq(6) + dma_wq(7), dma_wq(2) + dma_wq(3) + dma_wq(8) + dma_wq(9), None, next_reads=(upd_w(0), nr))
    R7.S[BG] = [('call', lambda: (p('s_waitcnt vmcnt(8) lgkmcnt(0)'), p.lg_all(), lncheck(), p('s_barrier')))] + [x for x in R7.S[BG] if x[0] != 'bar']
    R7.stream(xn_load(0) + xn_load(1), BG + 2)
    R7.stream(xn_load(2), GA(1, 4, 0))
    R7.emit(p, put)
    if 'pp' not in opt: p.stamp('phase A done')
    NKS = 20
    mf = []
    for ks in range(NKS):
        for db in range(8):
            for c in range(4):
                acc = O(c, db)
                x = XR[ks % 4] + 4*c
                cc = '0' if ks == 0 else f'v[{acc}:{acc+3}]'
                mf.append(f'{MF} v[{acc}:{acc+3}], v[{vWF+4*db}:{vWF+4*db+3}], v[{x}:{x+3}], {cc}')
    R = Region(mf)
    G = lambda ks, db, c: ks*32 + db*4 + c
    p.wait_vm('XN0')
    put(('wlg', ['w0_0', 'w0_1']))
    R.S[G(3, 0, 3)].append(('bar', ['WQ2', 'WQ3', 'WQ8', 'WQ9', 'WQ4', 'WQ5', 'WQ6', 'WQ7']))
    for ch in range(9):
        R.stream(upd_w((ch + 1)*SL), G(2*ch + 1, 0, 1), G(2*ch + 1, 2, 0))
    for ks in range(NKS):
        for db in range(0, 8, 2):
            if ks == 0 and db == 0: continue
            R.place(('wlg', [f'w{ks}_{db}', f'w{ks}_{db+1}']), G(ks, db, 0) - 1, force=True)
        if ks: R.place(('wvm', f'XN{ks}'), G(ks, 0, 0) - 2, force=True)
    for ks in range(NKS - 1):
        ch, t = divmod(ks, 2); nxt = ks + 1; nch, nt = divmod(nxt, 2)
        for db in range(8):
            e = G(ks, db, 3)
            if t == 1: e = max(e, G(ks, 2, 1))
            rr = rd_w(db, nt, nch*SL, f'w{nxt}_{db}')
            lat = G(ks + 1, 0, 0) if t == 0 else None
            g = R.place(rr[0], e, lat); R.place(rr[1], g + 1 if t == 1 or db < 7 else g, lat)
    for ks in range(0, NKS - 3):
        R.stream(xn_load(ks + 3), G(ks, 0, 1) if ks else 0, G(ks, 7, 3))
    TE = 112
    STF = ''
    for o_ in opt:
        if o_.startswith('stf='): STF = o_[4:]
    sSt = sCtx
    epi = []
    sStB = sHbase
    for kind in range(2):
        for f in range(16):
            if kind == 0:
                tb, k4 = divmod(f, 4); a0 = KA(tb, 2*k4); off = tb*4096 + k4*1024; sr = S_KF
            else:
                b, db = divmod(f, 8); a0 = 128 + (b*16 + db*2)*4; off = b*8192 + db*1024; sr = S_VF
            for k in range(8): epi.append(('v', f'v_accvgpr_read_b32 v{TE+k}, a{a0+k}'))
            for k in range(4): epi.append(('v', f'v_cvt_pk_bf16_f32 v{TE+k}, v{TE+2*k}, v{TE+2*k+1}'))
            epi.append(('s', f's_add_u32 s{sSt}, s{sStB}, {off & ~4095}'))
            epi.append(('st', f'buffer_store_dwordx4 v[{TE}:{TE+3}], v{vLane16}, s[{sr}:{sr+3}], s{sSt} offen offset:{off & 4095} {STF}'))
            if 'nost' in opt: epi.pop()
            epi.append(('s', 's_nop 0'))
    KS_V = int(next((o_[3:] for o_ in opt if o_.startswith('kv=')), '17'))
    g0 = 12; span = G(KS_V, 4, 0) - g0
    gl = R.stream(epi, g0, None, pace=lambda k: g0 + (k*span)//len(epi))
    FK, FV = 4096, 5120
    def publish(off, lab, waitlabel):
        p.wait_vm(waitlabel)
        p('s_barrier')
        p(f's_cmp_lg_u32 s{sW}, 0')
        p(f's_cbranch_scc1 {name}_{lab}pub')
        p(f's_cmp_eq_u32 s{sSame}, 1')
        p(f's_cbranch_scc1 {name}_{lab}rel')
        p('buffer_wbl2 sc1')
        p('s_waitcnt vmcnt(0)')
        p.label(f'{name}_{lab}rel')
        p(f's_lshl_b32 s14, s{sH}, 3')
        p(f's_add_u32 s14, s14, s{sI}')
        p(f's_lshl_b32 s14, s14, 2')
        p(f's_add_u32 s14, s14, {off}')
        p(f'v_mov_b32 v12, s{sTag}')
        p('v_mov_b32 v13, 0')
        p(f'buffer_store_dword v12, v13, s[{S_FL}:{S_FL+3}], s14 offen sc1')
        p.label(f'{name}_{lab}pub')
    def flag_load(off, lab):
        return [('s', f's_lshl_b32 s15, s{sH}, 5'), ('s', f's_add_u32 s15, s15, {off}'),
                ('v', 'v_and_b32 v13, 7, v0'), ('v', 'v_lshlrev_b32 v13, 2, v13'),
                ('l', f'buffer_load_dword v12, v13, s[{S_FL}:{S_FL+3}], s15 offen sc1', lab)]
    def check(lab, waitlabel):
        p.wait_vm(waitlabel, 'lgkmcnt(0)'); p.lg_all()
        p(f's_cmp_lg_u32 s{sW}, 0')
        p(f's_cbranch_scc1 {name}_{lab}ok')
        p('s_mov_b32 s14, 0')
        p.label(f'{name}_{lab}poll')
        p(f'v_cmp_ne_u32 vcc, s{sTag}, v12')
        p('s_add_u32 s14, s14, 1')
        p(f's_cbranch_vccz {name}_{lab}ok2')
        p(f's_cmp_ge_u32 s14, {SPIN}')
        p(f's_cbranch_scc1 {name}_{lab}ok2')
        p(f'buffer_load_dword v12, v13, s[{S_FL}:{S_FL+3}], s15 offen sc1')
        p('s_waitcnt vmcnt(0)')
        p(f's_branch {name}_{lab}poll')
        p.label(f'{name}_{lab}ok2')
        p(f's_cmp_eq_u32 s{sSame}, 1')
        p(f's_cbranch_scc1 {name}_{lab}ok')
        p('buffer_inv sc1')
        p('s_waitcnt vmcnt(0)')
        p.label(f'{name}_{lab}ok')
        p('s_barrier')
    def att_state():
        p(f's_lshl_b32 s{sKb}, s{sH}, 19')
        p(f's_add_u32 s{sKb}, s{sKb}, s{sLW}')
        p(f's_mov_b32 s{sVb}, s{sKb}')
    def unitK(slot, label):
        L = [('s', f's_add_u32 m0, s{sLW}, {slot*32768}')]
        for i in range(4): L.append(('m', f'buffer_load_dwordx4 v{vLane16}, s[{S_KF}:{S_KF+3}], s{sKb} offen offset:{1024*i} lds', label, None))
        return L + [('s', f's_add_u32 s{sKb}, s{sKb}, 16384')]
    def unitV(slot, label):
        L = [('s', f's_add_u32 m0, s{sLW}, {slot*32768 + SL}')]
        for i in range(4): L.append(('m', f'buffer_load_dwordx4 v{vLane16}, s[{S_VF}:{S_VF+3}], s{sVb} offen offset:{1024*i} lds', label, None))
        return L + [('s', f's_add_u32 s{sVb}, s{sVb}, 16384')]
    def dma_K(label, tagbase=None):
        L = [('s', f's_mov_b32 m0, s{sSlotP}')]
        for i in range(4):
            L.append(('m', f'buffer_load_dwordx4 v{vLane16}, s[{S_KF}:{S_KF+3}], s{sKb} offen offset:{1024*i} lds', label, None))
        L += [('s', f's_add_u32 s{sKb}, s{sKb}, 16384')]
        return L
    def dma_V(label, tagbase=None):
        L = [('s', f's_add_u32 m0, s{sSlotP}, {SL}')]
        for i in range(4):
            L.append(('m', f'buffer_load_dwordx4 v{vLane16}, s[{S_VF}:{S_VF+3}], s{sVb} offen offset:{1024*i} lds', label, None))
        L += [('s', f's_add_u32 s{sVb}, s{sVb}, 16384')]
        return L
    adv_slot = [('s', f's_add_u32 s{sSlotP}, s{sSlotP}, 32768'), ('s', f's_cmp_ge_u32 s{sSlotP}, {NSLOT*32768}\ns_cselect_b32 s{sSlotP}, s{sLW}, s{sSlotP}')]
    R.emit(p, put)
    print('fused qproj overflow', R.over, 'est', R.total())
    if 'pp' not in opt: p.stamp('q end')
    p(f's_mov_b32 s{sFlag}, 0')
    p(f's_mov_b32 s{sLim}, {hex(LIM)}')
    att_state()
    publish(FK, 'k', 'st')
    for it in flag_load(FK, 'KFL'): put(it)
    p('s_nop 7')
    for c in range(4):
        for ks in range(4):
            a0 = O(c, 2*ks)
            for k in range(4): p(f'v_cvt_pk_bf16_f32 v{a0+k}, v{a0+2*k}, v{a0+2*k+1}')
            p('s_nop 0')
            for k in range(4): p(f'v_accvgpr_write_b32 a{aQ + 16*c + 4*ks + k}, v{a0+k}')
    p(f'v_mov_b32 v{vT}, 0x3f803f80')
    p('s_nop 0')
    for k in range(4): p(f'v_accvgpr_write_b32 a{128+k}, v{vT}')
    p(f'v_and_b32 v{vT}, 15, v0')
    p(f'v_lshrrev_b32 v{vT+1}, 4, v0')
    p(f'v_lshlrev_b32 v{vT+1}, 2, v{vT+1}')
    p(f'v_sub_u32 v{vT}, v{vT}, v{vT+1}')
    for r in range(4): p(f'v_cmp_le_i32 s[{sM+2*r}:{sM+2*r+1}], {r}, v{vT}')
    p(f'v_mov_b32 v{vNinf}, {hex(NEGBIG)}')
    check('k', 'KFL')
    emit(unitK(0, 'U-1'))
    if 'pq' in opt: p.stamp('kv ok')
    nerr = 0

    def rdK(b, f):  return ('r', f'ds_read_b128 a[{aK+4*f}:{aK+4*f+3}], v{vRd} offset:{b*8192 + f*1024}', f'K{f}')
    def rdV(b, f):  return ('r', f'ds_read_b128 a[{aV+4*f}:{aV+4*f+3}], v{vRd} offset:{16384 + b*8192 + f*1024}', f'V{f}')
    def qk_mfmas(cols, sbase, cin):
        L = []
        for i, c in enumerate(cols):
            for kb in range(2):
                S = Sr(sbase + i, kb)
                for ks in range(4):
                    cc = cin(c, kb) if ks == 0 else S
                    L.append(f'{MF} v[{S}:{S+3}], a[{aK+4*(kb*4+ks)}:{aK+4*(kb*4+ks)+3}], a[{aQ+16*c+4*ks}:{aQ+16*c+4*ks+3}], v[{cc}:{cc+3}]')
        return L
    def pv_mfmas(cols, par, first=False):
        L = []
        for c in cols:
            for db in range(8):
                o = O(c, db)
                cc = '0' if first else f'v[{o}:{o+3}]'
                L.append(f'{MF} v[{o}:{o+3}], a[{aV+4*db}:{aV+4*db+3}], v[{Pr(par, c)}:{Pr(par, c)+3}], {cc}')
        return L
    aOne = 128
    Lm = lambda c: vP + 8 + 4*c
    def sum_mfmas(cols, par):
        return [f'{MF} v[{Lm(c)}:{Lm(c)+3}], a[{aOne}:{aOne+3}], v[{Pr(par, c)}:{Pr(par, c)+3}], v[{Lm(c)}:{Lm(c)+3}]' for c in cols]
    def sm_window_ns(c, sslot, par):
        S = vS + 8*sslot; P = Pr(par, c); W = []
        for k in range(4):
            e0, e1 = vE + (2*k) % 4, vE + (2*k + 1) % 4
            W += [[f'v_exp_f32 v{e0}, v{S+2*k}'], [f'v_exp_f32 v{e1}, v{S+2*k+1}'],
                  [f'v_cvt_pk_bf16_f32 v{P+k}, v{e0}, v{e1}'], []]
        return W
    def sm_window(c, sslot, par):
        S = vS + 8*sslot; P = Pr(par, c); W = []
        for k in range(4):
            e0, e1 = vE + (2*k) % 4, vE + (2*k + 1) % 4
            W += [[f'v_exp_f32 v{e0}, v{S+2*k}'], [f'v_exp_f32 v{e1}, v{S+2*k+1}'],
                  [f'v_add_f32 v{vL+c}, v{vL+c}, v{e0}'],
                  [f'v_add_f32 v{vL+c}, v{vL+c}, v{e1}', f'v_cvt_pk_bf16_f32 v{P+k}, v{e0}, v{e1}']]
        return W
    cin_neg = lambda c, kb: vNeg + 4*c
    def cin_mask(tile_cols):
        def f(c, kb):
            if c in tile_cols: return vCi + 8*(c - tile_cols[0]) + 4*kb
            return vNeg + 4*c
        return f
    def mask_ops(tile_cols):
        c0 = tile_cols[0]
        L = [('s', f's_cmp_lt_i32 s{sDd}, 0\ns_cselect_b64 s[14:15], -1, 0'),
             ('s', f's_cmp_eq_u32 s{sDd}, 0\n' + '\n'.join(f's_cselect_b64 s[{4+2*r}:{5+2*r}], s[{sM+2*r}:{sM+2*r+1}], s[14:15]' for r in range(4))),
             ('s', f's_cmp_le_i32 s{sDd}, 0\ns_cselect_b64 s[12:13], -1, 0')]
        for cb in range(2):
            for kb in range(2):
                for r in range(4):
                    m = 4 + 2*r if cb == kb else (12 if (cb == 1 and kb == 0) else 14)
                    L.append(('v', f'v_cndmask_b32 v{vCi + 8*cb + 4*kb + r}, v{vNinf}, v{vNeg + 4*(c0 + cb) + r}, s[{m}:{m+1}]'))
        return L
    LC, SC = [0, 1], [2, 3]
    def build_group(mf, windows, reads, dmas=(), extra=(), pre_wait=None, mid_wait=None, nwin=None):
        R = Region(mf)
        n = len(mf)
        for (g0, W) in windows:
            for i, ops in enumerate(W):
                for o in ops: R.place(('v', o), g0 + i, force=True)
        slots = [g for g in range(n) if g % 4 == 2]
        if len(slots) < len(reads): slots = sorted(slots + [g for g in range(n) if g % 4 == 3])
        if n == 16 or nwin == 16: slots = [g for g in range(16) if g % 4 in (2, 3)]
        for it, g in zip(reads, slots): R.place(it, g, force=True)
        if dmas:
            free = [g for g in range(n) if not R.M[g]]
            pref = [g for g in free if g >= 16 and nwin == 16] + [g for g in free if g % 4 == 3 and not (g >= 16 and nwin == 16)] + [g for g in free if g % 4 == 1] + [g for g in free if g % 4 in (0, 2)]
            nm = sum(1 for x in dmas if x[0] == 'm')
            use = sorted([g for g in pref if g >= 1][:nm])
            k = 0; pend_s = []
            for it in dmas:
                if it[0] == 's': pend_s.append(it)
                else:
                    g = use[k]; k += 1
                    for j, sx in enumerate(pend_s):
                        gg = max(0, g - len(pend_s) + j)
                        if k > 1: gg = max(gg, use[k-2] + 1) if use[k-2] + 1 <= g - 1 or ' m0,' not in sx[1] else gg
                        if gg == g and ' m0,' in sx[1]: R.place(('s', 's_nop 0'), g, force=True) if False else None
                        R.place(sx, gg, force=True)
                    pend_s = []
                    R.place(it, g, force=True)
            for j, sx in enumerate(pend_s):
                gg = use[-1] + 1 + j
                if gg <= n - 1: R.place(sx, gg, force=True)
                else: R.T[n - 1].append(sx)
        if extra:
            g = 0
            for it in extra:
                best = None
                for gg in range(g, n - 1):
                    if R.fits(gg, it): best = gg; break
                if best is None:
                    best = g
                R.place(it, best, force=True); g = best
        if mid_wait: R.place(mid_wait[1], mid_wait[0], force=True)
        return R
    slot_adv = [('s', f's_add_u32 s{sSlotR}, s{sSlotR}, 32768'), ('s', f's_cmp_ge_u32 s{sSlotR}, {NSLOT*32768}\ns_cselect_b32 s{sSlotR}, 0, s{sSlotR}')]
    def start_items(R):
        pre = []
        if 'nodma' not in opt: pre.append(('w', 's_waitcnt vmcnt(16)'))
        if 'nobar' not in opt: pre.append(('w', 's_barrier'))
        R.S[0] = pre + R.S[0]
    def end_items(R, loop=None):
        n = R.n
        for j, it in enumerate(slot_adv): R.S[4 + 4*j if n > 16 else 1 + 4*j].append(it) if False else None
        g0 = 8
        for j, it in enumerate(slot_adv): R.S[g0 + j].append(it)
        R.V[n - 1].append(('v', f'v_add_u32 v{vRd}, s{sSlotR}, v{vLane16}'))
        if loop:
            R.S[n - 3].append(('s', f's_sub_u32 s{sCnt}, s{sCnt}, 1'))
            R.T[n - 1].append(('s', f's_cmp_lg_u32 s{sCnt}, 0'))
    def emit_group(R, pre):
        if pre and 'nords' not in opt:
            put(('wlg', [f'{pre}{f}' for f in range(4)]))
            R.S[3].insert(0, ('wlg', [f'{pre}{f}' for f in range(4, 8)]))
        if 'nosm' in opt:
            for g in range(R.n): R.V[g] = []
        if 'noexp' in opt:
            for g in range(R.n): R.V[g] = [(x[0], x[1].replace('v_exp_f32', 'v_mov_b32')) for x in R.V[g]]
        if 'nodma' in opt:
            for g in range(R.n): R.M[g] = [x for x in R.M[g] if x[0] != 'm']
        if 'nords' in opt:
            for g in range(R.n):
                R.M[g] = [x for x in R.M[g] if x[0] != 'r']; R.S[g] = [x for x in R.S[g] if x[0] != 'wlg']
            pre = None; R.S[3] = [x for x in R.S[3] if x[0] != 'wlg']
        R.emit(p, put)
    stats = {'cyc': 0}
    def interval(kind, lbl, maskL=None, maskS=None, loop=False):
        dual = kind in ('D', 'T')
        mA, mB, mN = (maskS if dual else maskL) or (False, False, False)
        tile = SC if dual else LC
        p.lgq = ['K%d' % f for f in range(8)]; p.lg_ret = -1
        tot = 0
        if dual:
            cols = [0, 1, 2, 3]
            R1 = build_group(qk_mfmas(cols, 0, cin_mask(SC) if mA else cin_neg),
                             [(0, sm_window(3, 3, 0)), (16, sm_window(0, 0, 1))], [rdV(0, f) for f in range(8)], dma_K('x'),
                             mid_wait=None)
            start_items(R1)
            emit_group(R1, 'K')
            ex = ([('s', f's_add_u32 s{sDd}, s{sDd}, 1')] + mask_ops(SC if kind == 'D' else LC)) if mB else []
            if kind == 'T': ex = mask_ops(LC)
            R2 = build_group(pv_mfmas(cols, 0), [(0, sm_window(1, 1, 1)), (16, sm_window(2, 2, 1))], [rdK(0, f) for f in range(8)], extra=ex)
            if kind == 'T':
                emit([('s', f's_sub_u32 s{sDd}, s{sTS}, s{sTL}'), ('s', f's_lshl_b32 s{sDd}, s{sDd}, 2'), ('s', f's_add_u32 s{sDd}, s{sDd}, 4'), ('s', f's_sub_u32 s{sDd}, s{sDd}, s{sW}')])
            emit_group(R2, 'V')
            if kind == 'D':
                R3 = build_group(qk_mfmas(cols, 0, cin_mask(SC) if mB else cin_neg),
                                 [(0, sm_window(3, 3, 1)), (16, sm_window(0, 0, 0))], [rdV(1, f) for f in range(8)], dma_V('x') + adv_slot)
                emit_group(R3, 'K')
                ex = ([('s', f's_add_u32 s{sDd}, s{sDd}, 1')] + mask_ops(SC)) if mN else []
                R4 = build_group(pv_mfmas(cols, 1), [(0, sm_window(1, 1, 0)), (16, sm_window(2, 2, 0))], [rdK(1, f) for f in range(8)], extra=ex)
                end_items(R4, loop)
                emit_group(R4, 'V')
            else:
                R3 = build_group(qk_mfmas(LC, 0, cin_mask(LC)), [(0, sm_window(3, 3, 1))], [rdV(1, f) for f in range(8)], dma_V('x') + adv_slot)
                emit_group(R3, 'K')
                ex = ([('s', f's_add_u32 s{sDd}, s{sDd}, 1')] + mask_ops(LC))
                ex = [('v', f'v_mov_b32 v{Lm(c)+r}, 0') for c in LC for r in range(4)] + ex
                R4 = build_group(pv_mfmas(cols, 1), [(0, sm_window_ns(0, 0, 0))], [rdK(1, f) for f in range(8)], extra=ex)
                end_items(R4)
                emit_group(R4, 'V')
            tot = R1.total() + R2.total() + R3.total() + R4.total()
        else:
            dK = dma_K('x'); dV = dma_V('x') + adv_slot
            R1 = build_group(qk_mfmas(LC, 2, cin_mask(LC) if mA else cin_neg), [(0, sm_window_ns(1, 1, 0))], [rdV(0, f) for f in range(8)])
            start_items(R1)
            emit_group(R1, 'K')
            ex = ([('s', f's_add_u32 s{sDd}, s{sDd}, 1')] + mask_ops(LC)) if mB else []
            rk = [rdK(0, f) for f in range(8)] if kind != 'E' else []
            R2 = build_group(pv_mfmas(LC, 0) + sum_mfmas(LC, 0), [(0, sm_window_ns(0, 2, 1))], rk, dK, extra=ex, nwin=16)
            emit_group(R2, 'V')
            if kind != 'E':
                R3 = build_group(qk_mfmas(LC, 0, cin_mask(LC) if mB else cin_neg), [(0, sm_window_ns(1, 3, 1))], [rdV(1, f) for f in range(8)])
                emit_group(R3, 'K')
                ex = ([('s', f's_add_u32 s{sDd}, s{sDd}, 1')] + mask_ops(LC)) if mN else []
                R4 = build_group(pv_mfmas(LC, 1) + sum_mfmas(LC, 1), [(0, sm_window_ns(0, 0, 0))], [rdK(1, f) for f in range(8)], dV, extra=ex, nwin=16)
                end_items(R4, loop)
                emit_group(R4, 'V')
                tot = R1.total() + R2.total() + R3.total() + R4.total()
            else:
                for f in range(8): put(rdV(1, f))
                emit(dV)
                for ops in sm_window_ns(1, 3, 1):
                    for o in ops: p(o)
                    if len(ops) == 1 and ops[0].startswith('v_exp'): p('s_nop 0')
                p('s_waitcnt lgkmcnt(0)')
                p('s_nop 1')
                for m in pv_mfmas(LC, 1) + sum_mfmas(LC, 1): p(m)
        if tot: print(f'  interval {lbl}: est {tot} cycles for', 128 if kind == 'D' else (112 if kind == 'T' else 64), 'mfma')

    def emit_prefetch():
        vA, vD = 10, 9
        p(f's_cmp_lt_u32 s{sI}, 4')
        p(f's_cbranch_scc1 {name}_npf')
        p(f's_load_dwordx2 s[66:67], s[0:1], {ARG["wo"]}')
        p(f's_load_dwordx2 s[92:93], s[0:1], {ARG["wg"]}')
        p(f's_load_dwordx2 s[94:95], s[0:1], {ARG["wu"]}')
        p(f's_load_dwordx2 s[96:97], s[0:1], {ARG["wd"]}')
        p('s_waitcnt lgkmcnt(0)')
        p(f's_lshr_b32 s{sT0}, s2, 6')
        p(f's_lshl_b32 s{sT0}, s{sT0}, 2')
        p(f's_add_u32 s{sT0}, s{sT0}, s{sI}')
        p(f's_sub_u32 s{sT0}, s{sT0}, 4')
        p(f's_and_b32 s{sT1}, s2, 7')
        p(f's_lshr_b32 s{sT1}, s{sT1}, 1')
        p(f's_mul_i32 s{sT1}, s{sT1}, 1310720')
        p(f's_mul_i32 s{sT2}, s{sT0}, {640*128}')
        p(f's_add_u32 s{sT1}, s{sT1}, s{sT2}')
        p(f's_mul_i32 s{sT2}, s{sW}, {160*128}')
        p(f's_add_u32 s{sT1}, s{sT1}, s{sT2}')
        for i in range(3):
            p(f'v_add_u32 v{vA}, {64*i}, v0')
            p(f'v_min_u32 v{vA}, 159, v{vA}')
            p(f'v_lshlrev_b32 v{vA}, 7, v{vA}')
            p(f'v_add_u32 v{vA}, s{sT1}, v{vA}')
            p(f'global_load_dword v{vD}, v{vA}, s[66:67]')
        p(f's_and_b32 s{sT1}, s2, 7')
        p(f's_lshl_b32 s{sT1}, s{sT1}, 4')
        p(f's_add_u32 s{sT1}, s{sT1}, s{sT0}')
        p(f's_lshl_b32 s{sT1}, s{sT1}, 2')
        p(f's_add_u32 s{sT1}, s{sT1}, s{sW}')
        p(f's_mul_i32 s{sT1}, s{sT1}, 34')
        p(f'v_min_u32 v{vA}, 33, v0')
        p(f'v_add_u32 v{vA}, s{sT1}, v{vA}')
        p(f'v_min_u32 v{vA}, 17279, v{vA}')
        p(f'v_lshlrev_b32 v{vA}, 7, v{vA}')
        for sp in (92, 94, 96): p(f'global_load_dword v{vD}, v{vA}, s[{sp}:{sp+1}]')
        p.label(f'{name}_npf')
    def row_reduce(reg, op, tmp):
        for sw in ('v_permlane16_swap_b32', 'v_permlane32_swap_b32'):
            p(f'v_mov_b32 v{tmp}, v{reg}')
            p('s_nop 1')
            p(f'{sw} v{reg}, v{tmp}')
            p('s_nop 1')
            p(f'{op} v{reg}, v{reg}, v{tmp}')
    def epilogue(cols, sTile, flagbit):
        p('s_nop 7')
        for c in cols: row_reduce(vL + c, 'v_add_f32', vU)
        if cols == LC:
            for c in cols: p(f'v_add_f32 v{vL+c}, v{vL+c}, v{Lm(c)}')
        p(f'v_max_f32 v{vU}, v{vL+cols[0]}, v{vL+cols[1]}')
        p(f'v_cmp_nle_f32 vcc, v{vU}, v{vU+1}'.replace(f'v{vU+1}', f'v{vU+1}') if False else f'v_cmp_nge_f32 vcc, s{sLim}, v{vU}')
        p('s_nop 1')
        p(f's_cmp_lg_u64 vcc, 0')
        p(f's_cselect_b32 s{sT0}, {flagbit}, 0')
        p(f's_or_b32 s{sFlag}, s{sFlag}, s{sT0}')
        for c in cols: p(f'v_rcp_f32 v{vL+c}, v{vL+c}')
        store_ctx(cols, sTile)
    def store_ctx(cols, sTile):
        p(f's_lshl_b32 s{sCtx}, s{sTile}, 3')
        p(f's_lshl_b32 s{sT0}, s{sW}, 1')
        p(f's_add_u32 s{sCtx}, s{sCtx}, s{sT0}')
        p(f's_lshl_b32 s{sCtx}, s{sCtx}, 5')
        p(f's_add_u32 s{sCtx}, s{sCtx}, s{sH}')
        p(f's_lshl_b32 s{sCtx}, s{sCtx}, 12')
        p(f's_add_u32 s{sT1}, s{sCtx}, {32*4096}')
        for i, c in enumerate(cols):
            for ks in range(4):
                o = O(c, 2*ks)
                for k in range(8): p(f'v_mul_f32 v{o+k}, v{o+k}, v{vL+c}')
                for k in range(4): p(f'v_cvt_pk_bf16_f32 v{o+k}, v{o+2*k}, v{o+2*k+1}')
                p(f'buffer_store_dwordx4 v[{o}:{o+3}], v{vLane16}, s[{S_CTX}:{S_CTX+3}], s{sCtx if i == 0 else sT1} offen offset:{ks*1024} {CTX_FLAGS}')

    p(f's_mov_b32 s{sSlotR}, 0')
    p(f'v_mov_b32 v{vRd}, v{vLane16}')
    for r in range(16): p(f'v_mov_b32 v{vNeg+r}, 0')
    for c in range(4): p(f'v_mov_b32 v{vL+c}, 0')
    for r in range(128): p(f'v_mov_b32 v{vO+r}, 0')
    p(f's_lshl_b32 s{sDd}, s{sTS}, 2')
    p(f's_add_u32 s{sDd}, s{sDd}, s{sW}')
    p(f's_sub_u32 s{sDd}, 0, s{sDd}')
    emit(mask_ops(SC))
    emit(unitK(1, 'U0') + unitV(1, 'U0'))
    p.wait_vm('U-1')
    p('s_barrier')
    p.lgq = []; p.lg_ret = -1
    for f in range(8): put(rdK(0, f))
    p('s_waitcnt lgkmcnt(0)')
    q0 = qk_mfmas([0, 1, 2, 3], 0, cin_mask(SC))
    rest = unitK(2, 'U1') + unitV(2, 'U1') + unitK(3, 'U2') + unitV(3, 'U2')
    Rq = Region(q0)
    spread(Rq, rest, 0, 31)
    Rq.emit(p, put)
    p(f's_add_u32 s{sSlotP}, s{sLW}, {4*32768}')
    for f in range(8): put(rdK(1, f))
    p('s_nop 7')
    for c in range(4):
        S = vS + 8*c; t = vU + c
        p(f'v_max3_f32 v{t}, v{S}, v{S+1}, v{S+2}')
        p(f'v_max3_f32 v{t}, v{t}, v{S+3}, v{S+4}')
        p(f'v_max3_f32 v{t}, v{t}, v{S+5}, v{S+6}')
        p(f'v_max_f32 v{t}, v{t}, v{S+7}')
    for c in range(4): row_reduce(vU + c, 'v_max_f32', vU + 4)
    for c in range(4):
        S = vS + 8*c
        for r in range(8): p(f'v_sub_f32 v{S+r}, v{S+r}, v{vU+c}')
        for r in range(4): p(f'v_sub_f32 v{vNeg+4*c+r}, 0, v{vU+c}')
    def run_window(W):
        for ops in W:
            for o in ops: p(o)
            if len(ops) == 1 and ops[0].startswith('v_exp'): p('s_nop 0')
    for c in range(3): run_window(sm_window(c, c, 0))
    p(f's_mov_b32 s{sSlotR}, 32768')
    p(f'v_add_u32 v{vRd}, s{sSlotR}, v{vLane16}')
    if 'pp' not in opt: p.stamp('attn prologue done')
    p(f's_cmp_eq_u32 s{sTS}, 0')
    p(f's_cbranch_scc1 {name}_t0')
    p(f's_lshl_b32 s{sCnt}, s{sTS}, 1')
    p(f's_sub_u32 s{sCnt}, s{sCnt}, 1')
    p.label(f'{name}_dn')
    interval('D', f'dn', loop=True)
    p(f's_cbranch_scc1 {name}_dn')
    p(f's_sub_u32 s{sDd}, -1, s{sW}')
    interval('D', 'da', maskS=(False, True, True))
    p(f's_branch {name}_db')
    p.label(f'{name}_t0')
    p(f's_sub_u32 s{sDd}, 1, s{sW}')
    emit(mask_ops(SC))
    p('s_nop 1')
    p.label(f'{name}_db')
    interval('D', 'db', maskS=(True, True, True))
    interval('T', 'dc', maskS=(True, False, False))
    epilogue(SC, sTS, 2)
    if 'pp' not in opt: (p.stamp('S done') if 'pq' not in opt else None)
    p(f's_sub_u32 s{sCnt}, s{sTL}, s{sTS}')
    p(f's_cmp_eq_u32 s{sCnt}, 1')
    p(f's_cbranch_scc1 {name}_sb')
    p(f's_lshl_b32 s{sCnt}, s{sCnt}, 1')
    p(f's_sub_u32 s{sCnt}, s{sCnt}, 3')
    p.label(f'{name}_sn')
    interval('S', 'sn', loop=True)
    p(f's_cbranch_scc1 {name}_sn')
    p(f's_sub_u32 s{sDd}, -1, s{sW}')
    interval('S', 'sa', maskL=(False, True, True))
    p.label(f'{name}_sb')
    interval('S', 'sb', maskL=(True, True, True))
    interval('E', 'sc', maskL=(True, False, False))
    epilogue(LC, sTL, 1)
    p.stamp('L done')
    if PREFETCH: emit_prefetch()
    p(f's_cmp_eq_u32 s{sFlag}, 0')
    p(f's_cbranch_scc1 {name}_fin')
    fallback(p, name, locals())
    p.label(f'{name}_fin')
    p.dump_stamps(12, (101 + opt_idx[0])*MiB, 9)
    p.label(f'{name}_done')
    p('s_endpgm')
    def mk_policy(t0, nd, skip_s, ns, fb, wave0):
        def pol(ins, n):
            t = ins.args[0]
            if t.endswith('_done'): return False
            if t.endswith('_stageA'): return n % 3 != 0
            if t in (name + '_noln0', name + '_noln1'): return False
            if t in (name + '_notag', name + '_kvpub'): return not wave0
            if t == name + '_notag2': return True
            if t == name + '_nz': return True
            if t == name + '_nopub': return True
            if t in (name + '_lnok', name + '_kok', name + '_vok', name + '_kpub', name + '_vpub'): return not wave0
            if t in (name + '_lnok2', name + '_kok2', name + '_vok2', name + '_krel', name + '_vrel'): return True
            if t.endswith('_t0'): return t0
            if t.endswith('_dn'): return (n % nd) != 0
            if t.endswith('_sb'): return skip_s
            if t.endswith('_sn'): return (n % ns) != 0
            if t.endswith('_fin'): return not fb
            if t.endswith('_fbloop'): return n % 3 != 0
            return False
        return pol
    for cfg in ([(False, 3, False, 3, False, True), (True, 2, False, 2, True, False), (False, 2, True, 2, False, True)] if (not opt or opt[0] in ('pp', 'pq') or opt[0].startswith('kv=')) else []):
        seq = trace(p, mk_policy(*cfg))
        nerr += len(check_linear(seq, name + str(cfg)))
    return p, nerr

def fallback(p, name, L):
    g = L
    vS, vP, vE, vL, vU, vNeg, vCi, vO = g['vS'], g['vP'], g['vE'], g['vL'], g['vU'], g['vNeg'], g['vCi'], g['vO']
    aQ, aK, aV, vLane16, vNinf = g['aQ'], g['aK'], g['aV'], g['vLane16'], g['vNinf']
    S_KF, S_VF = g['S_KF'], g['S_VF']
    sFlag, sTL, sTS, sW, sH, sDd, sCnt, sT0, sT1, sT2 = (g[k] for k in ('sFlag', 'sTL', 'sTS', 'sW', 'sH', 'sDd', 'sCnt', 'sT0', 'sT1', 'sT2'))
    O = g['O']; mask_ops = g['mask_ops']; qk_mfmas = g['qk_mfmas']; pv_mfmas = g['pv_mfmas']; row_reduce = g['row_reduce']; store_ctx = g['store_ctx']
    put = g['put']
    p('s_waitcnt vmcnt(0) lgkmcnt(0)')
    for cols, sTile, bit, nm in (([2, 3], sTS, 2, 'S'), ([0, 1], sTL, 1, 'L')):
        p(f's_and_b32 s{sT0}, s{sFlag}, {bit}')
        p(f's_cmp_eq_u32 s{sT0}, 0')
        p(f's_cbranch_scc1 {name}_fbskip{nm}')
        for c in cols:
            p(f'v_mov_b32 v{vL+c}, 0')
            for r in range(32): p(f'v_mov_b32 v{vO+32*c+r}, 0')
            for r in range(4): p(f'v_mov_b32 v{vNeg+4*c+r}, 0')
        for i in range(2): p(f'v_mov_b32 v{vU+4+i}, v{vNinf}')
        p(f's_lshl_b32 s{sDd}, s{sTile}, 2')
        p(f's_add_u32 s{sDd}, s{sDd}, s{sW}')
        p(f's_add_u32 s{sCnt}, s{sDd}, 1')
        p(f's_sub_u32 s{sDd}, 0, s{sDd}')
        p(f's_lshl_b32 s{sT2}, s{sH}, 19')
        p.label(f'{name}_fb{nm}_fbloop')
        for f in range(8):
            p(f's_add_u32 s{sT1}, s{sT2}, {(f // 4)*4096}')
            p(f'buffer_load_dwordx4 a[{aK+4*f}:{aK+4*f+3}], v{vLane16}, s[{S_KF}:{S_KF+3}], s{sT1} offen offset:{(f % 4)*1024}')
            p(f'buffer_load_dwordx4 a[{aV+4*f}:{aV+4*f+3}], v{vLane16}, s[{S_VF}:{S_VF+3}], s{sT1} offen offset:{(f % 4)*1024}')
        for it in mask_ops(cols): put(it)
        p('s_waitcnt vmcnt(0)')
        p('s_nop 1')
        for m in qk_mfmas(cols, 0, lambda c, kb: vCi + 8*(c - cols[0]) + 4*kb): p(m)
        p('s_nop 7')
        for i, c in enumerate(cols):
            S = vS + 8*i; t = vU + i; m = vU + 4 + i
            p(f'v_max3_f32 v{t}, v{S}, v{S+1}, v{S+2}')
            p(f'v_max3_f32 v{t}, v{t}, v{S+3}, v{S+4}')
            p(f'v_max3_f32 v{t}, v{t}, v{S+5}, v{S+6}')
            p(f'v_max_f32 v{t}, v{t}, v{S+7}')
            row_reduce(t, 'v_max_f32', vU + 6)
            p(f'v_max_f32 v{t}, v{t}, v{m}')
            p(f'v_sub_f32 v{vU+6}, v{m}, v{t}')
            p(f'v_exp_f32 v{vU+6}, v{vU+6}')
            p(f'v_mov_b32 v{m}, v{t}')
            p(f'v_mul_f32 v{vL+c}, v{vL+c}, v{vU+6}')
            for r in range(32): p(f'v_mul_f32 v{vO+32*c+r}, v{vO+32*c+r}, v{vU+6}')
            for r in range(8): p(f'v_sub_f32 v{S+r}, v{S+r}, v{t}')
            for r in range(8): p(f'v_exp_f32 v{S+r}, v{S+r}')
            p('s_nop 0')
            for r in range(8): p(f'v_add_f32 v{vL+c}, v{vL+c}, v{S+r}')
            for k in range(4): p(f'v_cvt_pk_bf16_f32 v{vP+4*c+k}, v{S+2*k}, v{S+2*k+1}')
        p('s_nop 1')
        for m in pv_mfmas(cols, 0): p(m)
        p('s_nop 7')
        p(f's_add_u32 s{sT2}, s{sT2}, 8192')
        p(f's_add_u32 s{sDd}, s{sDd}, 1')
        p(f's_sub_u32 s{sCnt}, s{sCnt}, 1')
        p(f's_cmp_lg_u32 s{sCnt}, 0')
        p(f's_cbranch_scc1 {name}_fb{nm}_fbloop')
        for c in cols: row_reduce(vL + c, 'v_add_f32', vU)
        for c in cols: p(f'v_rcp_f32 v{vL+c}, v{vL+c}')
        store_ctx(cols, sTile)
        p.label(f'{name}_fbskip{nm}')

if __name__ == '__main__':
    p, ne = gen_kf()
    print('instrs', p.count(), 'errors', ne)
```

```python
from common import *
from gx2 import *
from sched import *
from lnops import rne_keep
MF = 'v_mfma_f32_16x16x32_bf16'
NFFN = 54
WS_PB = WS_PART
PS_OFF = 4*128*8*2560
SZ_PB = PS_OFF + 4*64*8*1024
SPIN = 1 << 16

def poll(p, name, S_DBG, off, target, vt, sA, sB):
    L = p.nl(name + '_poll')
    p(f'v_mov_b32 v{vt}, {off}')
    p(f's_mov_b32 s{sA}, 0')
    p.label(L)
    p(f'buffer_load_dword v{vt+1}, v{vt}, s[{S_DBG}:{S_DBG+3}], 0 offen sc1')
    p('s_waitcnt vmcnt(0)')
    p(f'v_readfirstlane_b32 s{sB}, v{vt+1}')
    p(f's_add_u32 s{sA}, s{sA}, 1')
    p(f's_cmp_ge_u32 s{sB}, {target}')
    p(f's_cbranch_scc1 {L}_ok')
    p(f's_cmp_ge_u32 s{sA}, {SPIN}')
    p(f's_cbranch_scc1 {L}_ok')
    p('s_sleep 1')
    p(f's_branch {L}')
    p.label(L + '_ok')

def gen_kt(name='tail_kernel', prof=False):
    p = P2(); p.prof = prof
    put = make_put(p)
    S_WO, S_CTX, S_PB, S_DBG, S_X, S_OUT, S_H, S_ST = 16, 20, 24, 28, 32, 36, 40, 56
    S_WA, S_WB = 60, 64
    sW, sS, sMT, sNT = 44, 45, 46, 47
    sT0, sT1, sT2 = 48, 49, 50
    sWoff, sCoff, sLWw, sLWc, sP0 = 51, 52, 53, 54, 55
    sIdx, sR = 68, 69
    vLane16 = 1
    vOffW = 2
    vLPe, vLPo, vCe, vCo = 7, 8, 9, 10
    vLPc, vCc = 11, 12
    vT = 13
    vWF = 20; vCF = 40; acc = 72
    SLOT = 36864; NSL = 4
    p('s_cmp_ge_u32 s2, 256')
    p(f's_cbranch_scc1 {name}_done')
    p.stamp('start')
    p(f's_load_dwordx2 s[4:5], s[0:1], {ARG["wo"]}')
    p(f's_load_dwordx4 s[8:11], s[0:1], {ARG["out"]}')
    p(f's_load_dwordx2 s[12:13], s[0:1], {ARG["ws"]}')
    p(f's_load_dwordx2 s[6:7], s[0:1], {ARG["x"]}')
    p('s_and_b32 s14, s2, 7')
    p('s_lshr_b32 s15, s2, 3')
    p(f's_lshr_b32 s{sS}, s14, 1')
    p(f's_and_b32 s14, s14, 1')
    p(f's_lshl_b32 s14, s14, 3')
    p(f's_and_b32 s{sMT}, s15, 7')
    p(f's_add_u32 s{sMT}, s{sMT}, s14')
    p(f's_lshr_b32 s{sNT}, s15, 3')
    p('v_lshrrev_b32 v2, 6, v0')
    p('v_and_b32 v0, 63, v0')
    p(f'v_readfirstlane_b32 s{sW}, v2')
    p(f'v_lshlrev_b32 v{vLane16}, 4, v0')
    p(f's_lshl_b32 s{sT0}, s{sMT}, 3')
    p(f's_lshl_b32 s{sT1}, s{sW}, 1')
    p(f's_add_u32 s{sT0}, s{sT0}, s{sT1}')
    p(f's_lshl_b32 s{sT0}, s{sT0}, 2')
    p(f's_add_u32 s{sT0}, s{sT0}, s{sS}')
    p(f's_lshl_b32 s{sCoff}, s{sT0}, 15')
    p(f's_lshl_b32 s{sLWc}, s{sW}, 12')
    p(f's_add_u32 s{sLWc}, s{sLWc}, 20480')
    p(f's_mul_i32 s{sWoff}, s{sS}, {1024*1280}')
    p(f's_mul_i32 s{sT0}, s{sNT}, 320')
    p(f's_add_u32 s{sWoff}, s{sWoff}, s{sT0}')
    p(f's_mul_i32 s{sLWw}, s{sW}, 5120')
    p(f's_mul_i32 s{sT0}, s{sW}, 320')
    p(f'v_add_u32 v{vT}, s{sT0}, v0')
    for i in range(5):
        if i: p(f'v_add_u32 v{vT}, 64, v{vT}')
        p(f'v_mul_u32_u24 v{vT+1}, 3277, v{vT}')
        p(f'v_lshrrev_b32 v{vT+1}, 16, v{vT+1}')
        p(f'v_mul_u32_u24 v{vT+2}, 20, v{vT+1}')
        p(f'v_sub_u32 v{vT+2}, v{vT}, v{vT+2}')
        p(f'v_bfe_u32 v{vT+3}, v{vT+1}, 2, 1')
        p(f'v_lshlrev_b32 v{vT+3}, 1, v{vT+3}')
        p(f'v_xor_b32 v{vT+2}, v{vT+2}, v{vT+3}')
        p(f'v_mul_u32_u24 v{vT+1}, 1280, v{vT+1}')
        p(f'v_lshl_add_u32 v{vOffW+i}, v{vT+2}, 4, v{vT+1}')
        if 0 < i < 4: p(f'v_subrev_u32 v{vOffW+i}, {1024*i}, v{vOffW+i}')
    p('s_waitcnt lgkmcnt(0)')
    srd(p, S_WO, 4, 4096*640*2)
    srd(p, S_CTX, 12, SZ_CTX, WS_CTX)
    def dma_chunk(ch):
        base = (ch % NSL)*SLOT
        tagC = ('W', base + 20480, base + SLOT, True)
        L = [('s', f's_add_u32 m0, s{sLWc}, {base}'), ('s', f's_add_u32 s{sT1}, s{sCoff}, {ch*2048}')]
        for i in range(2): L.append(('m', f'buffer_load_dwordx4 v{vLane16}, s[{S_CTX}:{S_CTX+3}], s{sT1} offen offset:{1024*i} lds', f'C{ch}', tagC))
        L.append(('s', f's_add_u32 m0, s{sLWc}, {base + 2048}'))
        L.append(('s', f's_add_u32 s{sT1}, s{sCoff}, {ch*2048 + 4*32768}'))
        for i in range(2): L.append(('m', f'buffer_load_dwordx4 v{vLane16}, s[{S_CTX}:{S_CTX+3}], s{sT1} offen offset:{1024*i} lds', f'C{ch}', tagC))
        L += [('s', f's_add_u32 m0, s{sLWw}, {base}'), ('s', f's_add_u32 s{sT0}, s{sWoff}, {ch*64*1280}')]
        tagW = ('W', base, base + 20480, True)
        for i in range(4):
            L.append(('m', f'buffer_load_dwordx4 v{vOffW+i}, s[{S_WO}:{S_WO+3}], s{sT0} offen offset:{1024*i} lds', f'C{ch}', tagW))
        L.append(('s', f's_add_u32 m0, s{sLWw}, {base + 4096}'))
        L.append(('s', 's_nop 0'))
        L.append(('m', f'buffer_load_dwordx4 v{vOffW+4}, s[{S_WO}:{S_WO+3}], s{sT0} offen lds', f'C{ch}', tagW))
        return L
    def emit(L):
        for it in L: put(it)
    emit(dma_chunk(0))
    p(f'v_bfe_u32 v{vT}, v0, 2, 2')
    p(f'v_lshrrev_b32 v{vT+1}, 4, v0')
    p(f'v_lshl_add_u32 v{vT+2}, v{vT+1}, 2, v{vT}')
    p(f'v_mul_u32_u24 v{vT+2}, 320, v{vT+2}')
    p(f'v_and_b32 v{vT+3}, 3, v0')
    p(f'v_lshl_add_u32 v{vT+2}, v{vT+3}, 3, v{vT+2}')
    p(f'v_and_b32 v{vT+1}, 1, v{vT+1}')
    p(f'v_lshlrev_b32 v{vT+1}, 5, v{vT+1}')
    p(f'v_add_u32 v{vLPe}, v{vT+2}, v{vT+1}')
    p(f'v_sub_u32 v{vLPo}, v{vT+2}, v{vT+1}')
    p(f's_lshr_b32 s{sT0}, s{sW}, 1')
    p(f's_and_b32 s{sT1}, s{sW}, 1')
    p(f's_cmp_eq_u32 s{sT0}, 1')
    p(f's_cselect_b64 s[14:15], -1, 0')
    p(f'v_cndmask_b32 v{vT}, v{vLPe}, v{vLPo}, s[14:15]')
    p(f'v_cndmask_b32 v{vT+1}, v{vLPo}, v{vLPe}, s[14:15]')
    p(f's_mul_i32 s{sT2}, s{sT0}, 160')
    p(f'v_add_u32 v{vLPe}, s{sT2}, v{vT}')
    p(f'v_add_u32 v{vLPo}, s{sT2}, v{vT+1}')
    p(f's_lshl_b32 s{sT2}, s{sT1}, 13')
    p(f's_add_u32 s{sT2}, s{sT2}, 20480')
    p(f'v_add_u32 v{vLPc}, s{sT2}, v{vLane16}')
    p(f's_lshl_b32 s{sP0}, s{sS}, 7')
    p(f's_lshl_b32 s{sT2}, s{sMT}, 3')
    p(f's_add_u32 s{sP0}, s{sP0}, s{sT2}')
    p(f's_lshl_b32 s{sT1}, s{sT1}, 2')
    p(f's_add_u32 s{sP0}, s{sP0}, s{sT1}')
    p(f's_lshl_b32 s{sP0}, s{sP0}, 3')
    p(f's_lshl_b32 s{sT2}, s{sNT}, 1')
    p(f's_add_u32 s{sP0}, s{sP0}, s{sT2}')
    p(f's_add_u32 s{sP0}, s{sP0}, s{sT0}')
    sPS = 3
    p(f's_lshl_b32 s{sPS}, s{sS}, 6')
    p(f's_lshl_b32 s14, s{sMT}, 2')
    p(f's_add_u32 s{sPS}, s{sPS}, s14')
    p(f's_lshr_b32 s14, s{sT1}, 1')
    p(f's_add_u32 s{sPS}, s{sPS}, s14')
    p(f's_lshl_b32 s{sPS}, s{sPS}, 3')
    p(f's_add_u32 s{sPS}, s{sPS}, s{sT2}')
    p(f's_add_u32 s{sPS}, s{sPS}, s{sT0}')
    p(f's_lshl_b32 s{sPS}, s{sPS}, 10')
    p(f's_add_u32 s{sPS}, s{sPS}, {{PS_OFF}}'.replace('{PS_OFF}', str(PS_OFF)))
    p(f's_mul_i32 s{sP0}, s{sP0}, 2560')
    emit(dma_chunk(1))
    srd(p, S_PB, 12, SZ_PB, WS_PB)
    srd(p, S_DBG, 10, 256)
    srd(p, S_X, 6, 2048*640*2)
    srd(p, S_OUT, 8, 2048*640*2)
    srd(p, S_H, 12, SZ_H, WS_H)
    srd(p, S_ST, 12, 2 << 20, WS_STAT)
    p(f's_load_dwordx4 s[8:11], s[0:1], {ARG["wg"]}')
    p(f's_load_dwordx2 s[14:15], s[0:1], {ARG["wd"]}')
    p('s_waitcnt lgkmcnt(0)')
    S_WC = 4
    srd(p, S_WA, 8, 640*1728*2)
    srd(p, S_WB, 10, 640*1728*2)
    srd(p, S_WC, 14, 1728*640*2)
    p(f's_cmp_lt_u32 s2, {NFFN}')
    for sr in (S_WA, S_WB, S_WC): p(f's_cselect_b32 s{sr+2}, s{sr+2}, 0')
    vFo = 152
    p(f'v_lshrrev_b32 v{vT}, 2, v0')
    p(f'v_mul_u32_u24 v{vT}, 3456, v{vT}')
    p(f'v_and_b32 v{vT+1}, 3, v0')
    p(f'v_lshl_add_u32 v{vFo}, v{vT+1}, 4, v{vT}')
    def upd(ch):
        base = (ch % NSL)*SLOT
        return [('v', f'v_add_u32 v{vCe}, {base}, v{vLPe}'), ('v', f'v_add_u32 v{vCo}, {base}, v{vLPo}'), ('v', f'v_add_u32 v{vCc}, {base}, v{vLPc}')]
    def rd_w(mb, ks):
        ch, kin = divmod(ks, 2); base = (ch % NSL)*SLOT
        r = vWF + 4*mb; a = vCe if mb % 2 == 0 else vCo
        return [('r', f'ds_read_b64_tr_b16 v[{r+2*h}:{r+2*h+1}], v{a} offset:{kin*10240 + h*5120 + mb*32}', f'w{ks}_{mb}', ('R', base, base + 20480)) for h in range(2)]
    def rd_c(cb, ks):
        ch, kin = divmod(ks, 2); base = (ch % NSL)*SLOT
        r = vCF + 16*(ks % 2) + 4*cb
        return ('r', f'ds_read_b128 v[{r}:{r+3}], v{vCc} offset:{cb*2048 + kin*1024}', f'c{ks}', ('R', base + 20480, base + SLOT))
    emit(upd(0))
    p.wait_vm('C0')
    p('s_barrier')
    p.stamp('chunk0')
    for cb in range(4): put(rd_c(cb, 0))
    for mb in range(5): emit(rd_w(mb, 0))
    NKS = 32
    A = lambda cb, mb: acc + (cb*5 + mb)*4
    mf = []
    for ks in range(NKS):
        for mb in range(5):
            for cb in range(4):
                c = '0' if ks == 0 else f'v[{A(cb, mb)}:{A(cb, mb)+3}]'
                cf = vCF + 16*(ks % 2) + 4*cb
                mf.append(f'{MF} v[{A(cb, mb)}:{A(cb, mb)+3}], v[{vWF+4*mb}:{vWF+4*mb+3}], v[{cf}:{cf+3}], {c}')
    R = Region(mf)
    G = lambda ks, mb, cb: ks*20 + mb*4 + cb
    put(('wlg', ['w0_0', 'c0']))
    BARG = lambda ch: G(2*ch + 1, 0, 3)
    NCH = 16
    for ch in range(NCH - 1):
        R.place(('bar', [f'C{ch+1}']), BARG(ch), force=True)
        R.stream(upd(ch + 1), G(2*ch + 1, 0, 1), G(2*ch + 1, 1, 0))
    for ks in range(NKS):
        for mb in range(5):
            if ks == 0 and mb == 0: continue
            labs = [f'w{ks}_{mb}'] + ([f'c{ks}'] if mb == 0 else [])
            R.place(('wlg', labs), G(ks, mb, 0) - 1, force=True)
    for ks in range(NKS - 1):
        ch, t = divmod(ks, 2); nxt = ks + 1
        for mb in range(5):
            e = G(ks, mb, 3)
            if t == 1: e = max(e, G(ks, 1, 1))
            rr = rd_w(mb, nxt)
            lat = G(ks + 1, 0, 0) if t == 0 else G(ks + 1, mb, 0) - 3
            g = R.place(rr[0], e, lat); R.place(rr[1], min(g + 1, lat), lat)
        e = G(ks, 0, 0) if t == 0 else G(ks, 1, 1)
        for cb in range(4): R.place(rd_c(cb, nxt), e + 3*cb, G(ks + 1, 0, 0) - 4)
    def spread_dma(R, L, g0, g1):
        nm = sum(1 for x in L if x[0] in 'ml')
        step = max(1, (g1 - g0) // max(nm, 1))
        g = g0; cnt = 0
        for it in L:
            e = max(g, g0 + cnt*step - (2 if it[0] == 's' else 0))
            g = R.place(it, e, g1)
            if it[0] in 'ml': cnt += 1; g += 1
    spread_dma(R, dma_chunk(2), 0, BARG(0) - 1)
    for ch in range(NCH - 1):
        if ch + 3 < NCH: spread_dma(R, dma_chunk(ch + 3), BARG(ch) + 1, BARG(ch + 1) - 1)
    R.emit(p, put)
    print('kt gemm overflow', R.over, 'est', R.total())
    p.stamp('gemm end')
    nerr = len(check_linear(linear(p), name + ':gemm')) + len(check_lds(linear(p), name + ':gemm'))
    p('s_nop 7')
    for cb in range(4):
        a0 = A(cb, 0)
        for k in range(10): p(f'v_cvt_pk_bf16_f32 v{a0+k}, v{a0+2*k}, v{a0+2*k+1}')
        p(f's_add_u32 s{sT0}, s{sP0}, {cb*8*2560}')
        p.vm(f'buffer_store_dwordx4 v[{a0}:{a0+3}], v{vLane16}, s[{S_PB}:{S_PB+3}], s{sT0} offen sc1', 'st')
        p.vm(f'buffer_store_dwordx4 v[{a0+4}:{a0+7}], v{vLane16}, s[{S_PB}:{S_PB+3}], s{sT0} offen offset:1024 sc1', 'st')
        if cb % 2 == 1:
            ae = A(cb - 1, 0)
            p(f'v_mov_b32 v{ae+10}, v{a0+8}')
            p(f'v_mov_b32 v{ae+11}, v{a0+9}')
            p(f's_add_u32 s{sT0}, s{sPS}, {(cb // 2)*8*1024}')
            p.vm(f'buffer_store_dwordx4 v[{ae+8}:{ae+11}], v{vLane16}, s[{S_PB}:{S_PB+3}], s{sT0} offen sc1', 'st')
    p('s_waitcnt vmcnt(0)')
    p('s_barrier')
    p(f's_cmp_lg_u32 s{sW}, 0')
    p(f's_cbranch_scc1 {name}_nosig')
    p(f's_lshl_b32 s{sT0}, s{sMT}, 7')
    p(f's_lshl_b32 s{sT1}, s{sS}, 4')
    p(f's_add_u32 s{sT0}, s{sT0}, s{sT1}')
    p(f's_lshl_b32 s{sT1}, s{sNT}, 2')
    p(f's_add_u32 s{sT0}, s{sT0}, s{sT1}')
    p(f's_add_u32 s{sT0}, s{sT0}, {WS_YACC - WS_STAT + OFF_FM}')
    p(f'v_mov_b32 v{vT}, 0')
    p(f'v_mov_b32 v{vT+1}, 1')
    p('v_cmp_eq_u32 vcc, 0, v0')
    p('s_nop 1')
    p('s_and_saveexec_b64 s[14:15], vcc')
    p(f'buffer_store_dword v{vT+1}, v{vT}, s[{S_ST}:{S_ST+3}], s{sT0} offen sc1')
    p('s_mov_b64 exec, s[14:15]')
    p.label(f'{name}_nosig')
    p.stamp('signalled')
    vTok, vOffP, vOffP8, vOffX, vLds, vLdsW, vTokG = 2, 3, 4, 5, 6, 7, 8
    PA = 20
    XR = 60
    WR = 70
    H = 80
    HN = 100
    sm, mean, mb_, var, sd, rc, t0, t1 = range(120, 128)
    sJ = sP0
    p(f's_lshl_b32 s{sJ}, s{sS}, 2')
    p(f's_add_u32 s{sJ}, s{sJ}, s{sNT}')
    p(f'v_and_b32 v{vTok}, 7, v0')
    p(f'v_bfe_u32 v{vT}, v0, 3, 2')
    p(f'v_lshrrev_b32 v{vT+1}, 5, v0')
    p(f's_lshr_b32 s{sT0}, s{sJ}, 1')
    p(f's_lshl_b32 s{sT1}, s{sMT}, 3')
    p(f's_add_u32 s{sT0}, s{sT0}, s{sT1}')
    sQB = 70
    p(f's_mov_b32 s{sQB}, s{sT0}')
    p(f's_lshl_b32 s{sT1}, s{sT0}, 4')
    p(f's_and_b32 s{sT2}, s{sJ}, 1')
    p(f's_lshl_b32 s{sT2}, s{sT2}, 3')
    p(f's_add_u32 s{sT1}, s{sT1}, s{sT2}')
    p(f'v_add_u32 v{vTokG}, s{sT1}, v{vTok}')
    p(f'v_lshl_add_u32 v{vT+2}, v{vT}, 4, v{vTok}')
    p(f'v_add_u32 v{vT+2}, s{sT2}, v{vT+2}')
    p(f's_lshl_b32 s{sT0}, s{sT0}, 3')
    p(f's_lshl_b32 s{sT2}, s{sW}, 1')
    p(f's_add_u32 s{sT0}, s{sT0}, s{sT2}')
    p(f'v_add_u32 v{vT+3}, s{sT0}, v{vT+1}')
    p(f'v_mul_u32_u24 v{vT+3}, 2560, v{vT+3}')
    p(f'v_lshl_add_u32 v{vOffP}, v{vT+2}, 4, v{vT+3}')
    p(f's_lshr_b32 s14, s{sQB}, 1')
    p(f's_lshl_b32 s14, s14, 3')
    p(f's_add_u32 s14, s14, s{sT2}')
    p(f'v_add_u32 v{vOffP8}, s14, v{vT+1}')
    p(f'v_lshlrev_b32 v{vOffP8}, 10, v{vOffP8}')
    p(f'v_lshl_add_u32 v{vOffP8}, v{vT+2}, 4, v{vOffP8}')
    p(f's_and_b32 s14, s{sQB}, 1')
    p(f's_lshl_b32 s14, s14, 3')
    p(f's_add_u32 s14, s14, {PS_OFF}')
    p(f'v_add_u32 v{vOffP8}, s14, v{vOffP8}')
    p(f's_mul_i32 s{sT2}, s{sW}, 320')
    p(f'v_mul_u32_u24 v{vT+4}, 160, v{vT+1}')
    p(f'v_lshl_add_u32 v{vT+4}, v{vT}, 3, v{vT+4}')
    p(f'v_add_u32 v{vT+4}, s{sT2}, v{vT+4}')
    p(f'v_mul_u32_u24 v{vOffX}, 1280, v{vTokG}')
    p(f'v_add_u32 v{vOffX}, v{vOffX}, v{vT+4}')
    p(f's_load_dwordx2 s[14:15], s[0:1], {ARG["wr"]}')
    for i in range(5):
        p(f'buffer_load_dwordx2 v[{XR+2*i}:{XR+2*i+1}], v{vOffX}, s[{S_X}:{S_X+3}], 0 offen offset:{32*i}')
    p('s_waitcnt lgkmcnt(0)')
    srd(p, 8, 14, 640*2)
    for i in range(5):
        p(f'buffer_load_dwordx2 v[{WR+2*i}:{WR+2*i+1}], v{vT+4}, s[8:11], 0 offen offset:{32*i}')
    S_WBF = S_WB; S_WC2 = S_WC
    sFo, sFs = 70 + 1, 69
    p(f's_cmp_eq_u32 s{sW}, 2')
    for k in range(3): p(f's_cselect_b32 s{S_WA+k}, s{S_WBF+k}, s{S_WA+k}')
    p(f's_mul_i32 s{sT0}, s2, {32*1280}')
    p(f's_lshl_b32 s{sT1}, s2, 6')
    p(f's_cmp_eq_u32 s{sW}, 3')
    for k in range(3): p(f's_cselect_b32 s{S_WA+k}, s{S_WC2+k}, s{S_WA+k}')
    p(f's_movk_i32 s{sFs}, 1024')
    p(f's_cselect_b32 s{sFs}, s{sFs}, {16*3456}')
    p(f's_cselect_b64 s[14:15], -1, 0')
    p(f'v_cndmask_b32 v{vFo}, v{vFo}, v{vLane16}, s[14:15]')
    p(f's_cselect_b32 s{sFo}, s{sT0}, s{sT1}')
    p(f's_cmp_eq_u32 s{sW}, 0')
    p(f's_cselect_b32 s{S_WA+2}, 0, s{S_WA+2}')
    ffn_ld = []
    for i in range(40):
        ffn_ld.append([f'buffer_load_dwordx4 a[{4*i}:{4*i+3}], v{vFo}, s[{S_WA}:{S_WA+3}], s{sFo} offen', f's_add_u32 s{sFo}, s{sFo}, s{sFs}'])
    RB = 143360
    STH = 122880; STO = 133120
    p(f's_lshl_b32 s{sT1}, s{sW}, 5')
    p(f'v_lshlrev_b32 v{vLds}, 2, v{vTok}')
    p(f'v_add_u32 v{vLds}, {RB}, v{vLds}')
    p(f'v_add_u32 v{vLdsW}, s{sT1}, v{vLds}')
    p(f's_cmp_lg_u32 s{sW}, 0')
    p(f's_cbranch_scc1 {name}_w1')
    p(f's_lshl_b32 s{sT0}, s{sMT}, 7')
    p(f's_add_u32 s{sT0}, s{sT0}, {WS_YACC - WS_STAT + OFF_FM}')
    Lp = p.nl(name + '_pollM')
    p(f'v_and_b32 v{t0}, 15, v0')
    p(f'v_lshlrev_b32 v{t0}, 2, v{t0}')
    p(f's_mov_b32 s{sT1}, 0')
    p.label(Lp)
    p(f'buffer_load_dword v{t1}, v{t0}, s[{S_ST}:{S_ST+3}], s{sT0} offen sc1')
    p('s_waitcnt vmcnt(0)')
    p(f'v_cmp_eq_u32 vcc, 0, v{t1}')
    p(f's_add_u32 s{sT1}, s{sT1}, 1')
    p(f's_cbranch_vccz {Lp}_ok')
    p(f's_cmp_ge_u32 s{sT1}, {SPIN}')
    p(f's_cbranch_scc1 {Lp}_ok')
    p('s_sleep 2')
    p(f's_branch {Lp}')
    p.label(Lp + '_ok')
    p.label(f'{name}_w1')
    p('s_barrier')
    p.stamp('partials ready')
    for s_ in range(4):
        p(f's_mov_b32 s{sT0}, {s_*128*8*2560}')
        b = PA + 10*s_
        p(f'buffer_load_dwordx4 v[{b}:{b+3}], v{vOffP}, s[{S_PB}:{S_PB+3}], s{sT0} offen sc1')
        p(f'buffer_load_dwordx4 v[{b+4}:{b+7}], v{vOffP}, s[{S_PB}:{S_PB+3}], s{sT0} offen offset:1024 sc1')
        p(f's_mov_b32 s{sT1}, {s_*64*8*1024}')
        p(f'buffer_load_dwordx2 v[{b+8}:{b+9}], v{vOffP8}, s[{S_PB}:{S_PB+3}], s{sT1} offen sc1')
    p('s_waitcnt vmcnt(0)')
    p.stamp('partials loaded')
    _n0 = len(p.items)
    for k2 in range(10):
        for half in range(2):
            d = H + 2*k2 + half
            ext = (lambda r: f'v_lshlrev_b32 v{{}}, 16, v{r}') if half == 0 else (lambda r: f'v_and_b32 v{{}}, 0xffff0000, v{r}')
            p(ext(PA + k2).format(d))
            p(ext(PA + 10 + k2).format(t0))
            p(ext(PA + 20 + k2).format(t1))
            p(f'v_add_f32 v{d}, v{d}, v{t0}')
            p(ext(PA + 30 + k2).format(t0))
            p(f'v_add_f32 v{t1}, v{t1}, v{t0}')
            p(f'v_add_f32 v{d}, v{d}, v{t1}')
        a = H + 2*k2
        p(f'v_cvt_pk_bf16_f32 v{t0}, v{a}, v{a+1}')
        p(f'v_lshlrev_b32 v{a}, 16, v{t0}')
        p(f'v_and_b32 v{a+1}, 0xffff0000, v{t0}')
        p(f'v_lshlrev_b32 v{t0}, 16, v{XR+k2}')
        p(f'v_and_b32 v{t1}, 0xffff0000, v{XR+k2}')
        p(f'v_add_f32 v{a}, v{a}, v{t0}')
        p(f'v_add_f32 v{a+1}, v{a+1}, v{t1}')
        p(f'v_cvt_pk_bf16_f32 v{XR+k2}, v{a}, v{a+1}')
        p(f'v_lshlrev_b32 v{a}, 16, v{XR+k2}')
        p(f'v_and_b32 v{a+1}, 0xffff0000, v{XR+k2}')
    vSt = 9
    p(f'v_mul_u32_u24 v{vSt}, 1280, v{vTok}')
    p(f'v_add_u32 v{vSt}, v{vSt}, v{vT+4}')
    p(f'v_add_u32 v{vSt}, {STH}, v{vSt}')
    for i in range(5): p(f'ds_write_b64 v{vSt}, v[{XR+2*i}:{XR+2*i+1}] offset:{32*i}')
    body = p.items[_n0:]; del p.items[_n0:]
    step = max(1, len(body) // 41); k = 0
    for i, it in enumerate(body):
        p.items.append(it)
        if (i + 1) % step == 0 and k < 40:
            for x in ffn_ld[k]: p(x)
            k += 1
    while k < 40:
        for x in ffn_ld[k]: p(x)
        k += 1
    def allreduce(reg, slot):
        p('s_nop 1')
        p(f'v_add_f32_dpp v{reg}, v{reg}, v{reg} row_ror:8 row_mask:0xf bank_mask:0xf')
        for sw in ('v_permlane16_swap_b32', 'v_permlane32_swap_b32'):
            p(f'v_mov_b32 v{t0}, v{reg}')
            p('s_nop 1')
            p(f'{sw} v{reg}, v{t0}')
            p('s_nop 1')
            p(f'v_add_f32 v{reg}, v{reg}, v{t0}')
        p(f'ds_write_b32 v{vLdsW}, v{reg} offset:{slot*128}')
        p('s_waitcnt lgkmcnt(0)')
        p('s_barrier')
        p(f'ds_read_b32 v{reg}, v{vLds} offset:{slot*128}')
        p(f'ds_read_b32 v{t0}, v{vLds} offset:{slot*128+32}')
        p(f'ds_read_b32 v{t1}, v{vLds} offset:{slot*128+64}')
        p(f'ds_read_b32 v{rc}, v{vLds} offset:{slot*128+96}')
        p('s_waitcnt lgkmcnt(0)')
        p(f'v_add_f32 v{reg}, v{reg}, v{t0}')
        p(f'v_add_f32 v{t1}, v{t1}, v{rc}')
        p(f'v_add_f32 v{reg}, v{reg}, v{t1}')
    p(f'v_add_f32 v{sm}, v{H}, v{H+1}')
    p(f'v_add_f32 v{var}, v{H+2}, v{H+3}')
    for k in range(4, 20, 2):
        p(f'v_add_f32 v{sm}, v{sm}, v{H+k}')
        p(f'v_add_f32 v{var}, v{var}, v{H+k+1}')
    p(f'v_add_f32 v{sm}, v{sm}, v{var}')
    allreduce(sm, 0)
    p(f'v_mul_f32 v{mean}, 0x3acccccd, v{sm}')
    for x in rne_keep(mb_, mean): p(x)
    p(f'v_sub_f32 v{t0}, v{H}, v{mean}')
    p(f'v_mul_f32 v{var}, v{t0}, v{t0}')
    for k in range(1, 20):
        p(f'v_sub_f32 v{t0 + (k & 1)}, v{H+k}, v{mean}')
        p(f'v_fmac_f32 v{var}, v{t0 + (k & 1)}, v{t0 + (k & 1)}')
    allreduce(var, 1)
    p(f'v_mul_f32 v{var}, 0x3acccccd, v{var}')
    for x in rne_keep(var, var): p(x)
    p(f'v_add_f32 v{var}, 0x3727c5ac, v{var}')
    for x in rne_keep(var, var): p(x)
    p(f'v_sqrt_f32 v{sd}, v{var}')
    p('s_nop 0')
    for x in rne_keep(sd, sd): p(x)
    p(f'v_rcp_f32 v{rc}, v{sd}')
    p('s_nop 0')
    p(f'v_mov_b32 v{sm}, v{rc}')
    p(f'v_mov_b32 v{var}, 0')
    for k2 in range(10):
        a = H + 2*k2; n = HN + 2*k2
        p(f'v_sub_f32 v{t0}, v{a}, v{mb_}')
        p(f'v_sub_f32 v{t1}, v{a+1}, v{mb_}')
        p(f'v_cvt_pk_bf16_f32 v{t0}, v{t0}, v{t1}')
        p(f'v_and_b32 v{t1}, 0xffff0000, v{t0}')
        p(f'v_lshlrev_b32 v{t0}, 16, v{t0}')
        p(f'v_mul_f32 v{t0}, v{t0}, v{sm}')
        p(f'v_mul_f32 v{t1}, v{t1}, v{sm}')
        p(f'v_cvt_pk_bf16_f32 v{t0}, v{t0}, v{t1}')
        p(f'v_lshlrev_b32 v{n}, 16, v{t0}')
        p(f'v_and_b32 v{n+1}, 0xffff0000, v{t0}')
        p(f'v_lshlrev_b32 v{t0}, 16, v{WR+k2}')
        p(f'v_and_b32 v{t1}, 0xffff0000, v{WR+k2}')
        p(f'v_fmac_f32 v{var}, v{n}, v{t0}')
        p(f'v_fmac_f32 v{var}, v{n+1}, v{t1}')
        p(f'v_add_f32 v{t0}, v{a}, v{n}')
        p(f'v_add_f32 v{t1}, v{a+1}, v{n+1}')
        p(f'v_cvt_pk_bf16_f32 v{PA+k2}, v{t0}, v{t1}')
    for i in range(5): p(f'ds_write_b64 v{vSt}, v[{PA+2*i}:{PA+2*i+1}] offset:{STO - STH + 32*i}')
    allreduce(var, 2)
    p(f's_lshl_b32 s{sT0}, s{sW}, 10')
    p(f'v_add_u32 v{t0}, s{sT0}, v{vLane16}')
    p(f'v_add_u32 v{t1}, {STH}, v{t0}')
    for mat in range(2):
        for i in range(3): p(f'ds_read_b128 v[{PA+12*mat+4*i}:{PA+12*mat+4*i+3}], v{t1} offset:{mat*(STO - STH) + 4096*i}')
    p(f's_lshr_b32 s{sT1}, s{sQB}, 0')
    p(f's_lshl_b32 s{sT1}, s{sQB}, 4')
    p(f's_and_b32 s{sT2}, s{sJ}, 1')
    p(f's_lshl_b32 s{sT2}, s{sT2}, 3')
    p(f's_add_u32 s{sT1}, s{sT1}, s{sT2}')
    p(f's_mul_i32 s{sT1}, s{sT1}, 1280')
    p('s_waitcnt lgkmcnt(0)')
    for mat, sr in enumerate((S_H, S_OUT)):
        for i in range(2):
            p(f's_add_u32 s{sT2}, s{sT1}, {4096*i}')
            p(f'buffer_store_dwordx4 v[{PA+12*mat+4*i}:{PA+12*mat+4*i+3}], v{t0}, s[{sr}:{sr+3}], s{sT2} offen sc1')
    p(f's_cmp_ge_u32 s{sW}, 2')
    p(f's_cbranch_scc1 {name}_ns3')
    p(f's_add_u32 s{sT2}, s{sT1}, 8192')
    for mat, sr in enumerate((S_H, S_OUT)):
        p(f'buffer_store_dwordx4 v[{PA+12*mat+8}:{PA+12*mat+11}], v{t0}, s[{sr}:{sr+3}], s{sT2} offen sc1')
    p.label(f'{name}_ns3')
    p(f'v_cvt_pk_bf16_f32 v{var}, v{var}, v{var}')
    p(f's_cmp_lg_u32 s{sW}, 0')
    p(f's_cbranch_scc1 {name}_w2')
    p(f'v_and_b32 v{t0}, 0xffff, v{var}')
    p(f'v_or_b32 v{t1}, 0x8000, v{t0}')
    p(f'v_xor_b32 v{rc}, 0xffff, v{t0}')
    p(f'v_cmp_lt_u32 vcc, 0x7fff, v{t0}')
    p('s_nop 1')
    p(f'v_cndmask_b32 v{t1}, v{t1}, v{rc}, vcc')
    p(f'v_sub_u32 v{t0}, 0xffff, v{vTokG}')
    p(f'v_lshl_or_b32 v{t1}, v{t1}, 16, v{t0}')
    for sh in (4, 2, 1):
        p('s_nop 1')
        p(f'v_max_u32_dpp v{t1}, v{t1}, v{t1} row_ror:{sh} row_mask:0xf bank_mask:0xf')
    p(f's_lshl_b32 s{sT0}, s2, 2')
    p(f's_add_u32 s{sT0}, s{sT0}, {WS_YACC - WS_STAT + OFF_KEYS}')
    p(f'v_mov_b32 v{t0}, 0')
    p(f'buffer_store_dword v{t1}, v{t0}, s[{S_ST}:{S_ST+3}], s{sT0} offen sc1')
    p('v_cmp_gt_u32 vcc, 8, v0')
    p('s_nop 1')
    p('s_and_saveexec_b64 s[14:15], vcc')
    p(f'v_lshlrev_b32 v{t0}, 2, v{vTokG}')
    p(f's_mov_b32 s{sT0}, 8192')
    p(f'buffer_store_dword v{mb_}, v{t0}, s[{S_ST}:{S_ST+3}], s{sT0} offen sc1')
    p(f's_mov_b32 s{sT0}, 16384')
    p(f'buffer_store_dword v{sd}, v{t0}, s[{S_ST}:{S_ST+3}], s{sT0} offen sc1')
    p('s_mov_b64 exec, s[14:15]')
    p.label(f'{name}_w2')
    p('s_waitcnt vmcnt(0)')
    p('s_barrier')
    p(f's_cmp_lg_u32 s{sW}, 0')
    p(f's_cbranch_scc1 {name}_w3')
    p(f's_lshl_b32 s{sT0}, s2, 2')
    p(f's_add_u32 s{sT0}, s{sT0}, {WS_YACC - WS_STAT + OFF_RDY}')
    p(f'v_mov_b32 v{t0}, 0')
    p(f'v_mov_b32 v{sm}, 1')
    p('v_cmp_eq_u32 vcc, 0, v0')
    p('s_nop 1')
    p('s_and_saveexec_b64 s[14:15], vcc')
    p(f'buffer_store_dword v{sm}, v{t0}, s[{S_ST}:{S_ST+3}], s{sT0} offen sc1')
    p('s_mov_b64 exec, s[14:15]')
    p.label(f'{name}_w3')
    p.stamp('LN done')
    p(f's_cmp_ge_u32 s2, {NFFN}')
    p(f's_cbranch_scc1 {name}_fin')
    p(f's_cmp_eq_u32 s{sW}, 0')
    p(f's_cbranch_scc1 {name}_noffn')
    p(f's_sub_u32 s{sT2}, s{sW}, 1')
    p(f's_mul_i32 s{sT2}, s{sT2}, 40960')
    p(f'v_add_u32 v{t0}, s{sT2}, v{vLane16}')
    for i in range(40): p(f'ds_write_b128 v{t0}, a[{4*i}:{4*i+3}] offset:{i*1024}')
    p('s_waitcnt lgkmcnt(0)')
    p.label(f'{name}_noffn')
    p(f's_cmp_lg_u32 s{sW}, 0')
    p(f's_cbranch_scc1 {name}_w4')
    Lk = p.nl(name + '_pollK')
    p(f's_mov_b32 s{sT1}, 0')
    p(f's_mov_b32 s{sT0}, {WS_YACC - WS_STAT + OFF_KEYS}')
    p.label(Lk)
    p(f'buffer_load_dwordx4 v[20:23], v{vLane16}, s[{S_ST}:{S_ST+3}], s{sT0} offen sc1')
    p('s_waitcnt vmcnt(0)')
    p(f'v_min_u32 v24, v20, v21')
    p(f'v_min_u32 v25, v22, v23')
    p(f'v_min_u32 v24, v24, v25')
    p(f'v_cmp_eq_u32 vcc, 0, v24')
    p(f's_add_u32 s{sT1}, s{sT1}, 1')
    p(f's_cbranch_vccz {Lk}_ok')
    p(f's_cmp_ge_u32 s{sT1}, {SPIN}')
    p(f's_cbranch_scc1 {Lk}_ok')
    p('s_sleep 2')
    p(f's_branch {Lk}')
    p.label(Lk + '_ok')
    p.stamp('argmax ready')
    p(f'v_max_u32 v20, v20, v21')
    p(f'v_max_u32 v22, v22, v23')
    p(f'v_max_u32 v20, v20, v22')
    for sh in (8, 4, 2, 1):
        p('s_nop 1')
        p(f'v_max_u32_dpp v20, v20, v20 row_ror:{sh} row_mask:0xf bank_mask:0xf')
    for sw in ('v_permlane16_swap_b32', 'v_permlane32_swap_b32'):
        p(f'v_mov_b32 v21, v20')
        p('s_nop 1')
        p(f'{sw} v20, v21')
        p('s_nop 1')
        p(f'v_max_u32 v20, v20, v21')
    p(f'v_mov_b32 v21, {RB}')
    p(f'ds_write_b32 v21, v20 offset:512')
    p('s_waitcnt lgkmcnt(0)')
    p.label(f'{name}_w4')
    p('s_barrier')
    p(f'v_mov_b32 v21, {RB}')
    p(f'ds_read_b32 v20, v21 offset:512')
    p('s_waitcnt lgkmcnt(0)')
    p(f'v_readfirstlane_b32 s{sR}, v20')
    p('s_nop 4')
    p(f's_and_b32 s{sIdx}, s{sR}, 0xffff')
    p(f's_sub_u32 s{sIdx}, 0xffff, s{sIdx}')
    p(f's_min_u32 s{sIdx}, s{sIdx}, 2047')
    p(f's_lshr_b32 s{sR}, s{sR}, 16')
    p(f's_xor_b32 s{sT0}, s{sR}, 0xffff')
    p(f's_and_b32 s{sT1}, s{sR}, 0x7fff')
    p(f's_bitcmp1_b32 s{sR}, 15')
    p(f's_cselect_b32 s{sR}, s{sT1}, s{sT0}')
    p(f's_lshl_b32 s{sR}, s{sR}, 16')
    p(f's_lshr_b32 s{sT0}, s{sIdx}, 7')
    p(f's_bfe_u32 s{sT1}, s{sIdx}, 0x40003')
    p(f's_lshr_b32 s{sT2}, s{sT1}, 2')
    p(f's_lshl_b32 s{sT2}, s{sT2}, 1')
    p(f's_lshr_b32 s14, s{sT0}, 3')
    p(f's_add_u32 s{sT2}, s{sT2}, s14')
    p(f's_and_b32 s{sT1}, s{sT1}, 3')
    p(f's_lshl_b32 s{sT1}, s{sT1}, 3')
    p(f's_and_b32 s{sT0}, s{sT0}, 7')
    p(f's_add_u32 s{sT1}, s{sT1}, s{sT0}')
    p(f's_lshl_b32 s{sT1}, s{sT1}, 3')
    p(f's_add_u32 s{sT1}, s{sT1}, s{sT2}')
    p(f's_lshl_b32 s{sT1}, s{sT1}, 2')
    p(f's_add_u32 s{sT0}, s{sT1}, {WS_YACC - WS_STAT + OFF_RDY}')
    Lr = p.nl(name + '_pollR')
    p(f's_mov_b32 s{sT1}, 0')
    p(f'v_mov_b32 v{t0}, 0')
    p.label(Lr)
    p(f'buffer_load_dword v{t1}, v{t0}, s[{S_ST}:{S_ST+3}], s{sT0} offen sc1')
    p('s_waitcnt vmcnt(0)')
    p(f'v_readfirstlane_b32 s{sT2}, v{t1}')
    p(f's_add_u32 s{sT1}, s{sT1}, 1')
    p(f's_cmp_lg_u32 s{sT2}, 0')
    p(f's_cbranch_scc1 {Lr}_ok')
    p(f's_cmp_ge_u32 s{sT1}, {SPIN}')
    p(f's_cbranch_scc1 {Lr}_ok')
    p(f's_branch {Lr}')
    p.label(Lr + '_ok')
    tid = 2
    p(f's_lshl_b32 s{sT0}, s{sW}, 6')
    p(f'v_add_u32 v{tid}, s{sT0}, v0')
    p(f'v_lshlrev_b32 v3, 4, v{tid}')
    p(f's_mul_i32 s{sT1}, s{sIdx}, 1280')
    p(f'buffer_load_dwordx4 v[20:23], v3, s[{S_H}:{S_H+3}], s{sT1} offen sc1')
    p(f's_lshl_b32 s{sT0}, s{sIdx}, 2')
    p(f'v_mov_b32 v4, s{sT0}')
    p(f's_mov_b32 s{sT0}, 8192')
    p(f'buffer_load_dword v{mb_}, v4, s[{S_ST}:{S_ST+3}], s{sT0} offen sc1')
    p(f's_mov_b32 s{sT0}, 16384')
    p(f'buffer_load_dword v{sd}, v4, s[{S_ST}:{S_ST+3}], s{sT0} offen sc1')
    p('s_waitcnt vmcnt(0)')
    p(f'v_rcp_f32 v{sm}, v{sd}')
    for k in range(4):
        p(f'v_lshlrev_b32 v{t0}, 16, v{20+k}')
        p(f'v_and_b32 v{t1}, 0xffff0000, v{20+k}')
        p(f'v_sub_f32 v{t0}, v{t0}, v{mb_}')
        p(f'v_sub_f32 v{t1}, v{t1}, v{mb_}')
        p(f'v_cvt_pk_bf16_f32 v{t0}, v{t0}, v{t1}')
        p(f'v_and_b32 v{t1}, 0xffff0000, v{t0}')
        p(f'v_lshlrev_b32 v{t0}, 16, v{t0}')
        p(f'v_mul_f32 v{t0}, v{t0}, v{sm}')
        p(f'v_mul_f32 v{t1}, v{t1}, v{sm}')
        p(f'v_cvt_pk_bf16_f32 v{24+k}, v{t0}, v{t1}')
    HNL = STH
    p(f'v_cmp_gt_u32 vcc, 80, v{tid}')
    p('s_nop 1')
    p('s_and_saveexec_b64 s[14:15], vcc')
    p(f's_cbranch_execz {name}_h1')
    p(f'v_add_u32 v4, {HNL}, v3')
    p(f'ds_write_b128 v4, v[24:27]')
    p(f'ds_write_b128 v4, v[20:23] offset:1280')
    p.label(f'{name}_h1')
    p('s_mov_b64 exec, s[14:15]')
    p('s_waitcnt lgkmcnt(0)')
    p('s_barrier')
    p(f'v_lshrrev_b32 v5, 4, v0')
    p(f's_mul_i32 s{sT0}, s{sW}, 320')
    p(f's_add_u32 s{sT0}, s{sT0}, {HNL}')
    p(f'v_lshlrev_b32 v6, 4, v5')
    p(f'v_add_u32 v6, s{sT0}, v6')
    p(f'v_bfe_u32 v7, v0, 2, 2')
    p(f'v_lshl_add_u32 v7, v5, 3, v7')
    p(f'v_lshlrev_b32 v7, 6, v7')
    p(f'v_and_b32 v8, 3, v0')
    p(f'v_lshl_add_u32 v7, v8, 3, v7')
    p(f's_mul_i32 s{sT0}, s{sW}, {5*32*64}')
    p(f'v_add_u32 v7, s{sT0}, v7')
    AF = 28
    BF = 48
    D = 130
    for k in range(5): p(f'ds_read_b128 v[{AF+4*k}:{AF+4*k+3}], v6 offset:{64*k}')
    for k in range(5):
        b = BF + 16*(k % 4)
        for mat in range(2):
            for cb in range(2):
                for h in range(2):
                    r = b + (mat*2 + cb)*4 + 2*h
                    p(f'ds_read_b64_tr_b16 v[{r}:{r+1}], v7 offset:{mat*40960 + k*2048 + h*256 + cb*32}')
        p('s_waitcnt lgkmcnt(0)')
        for t in range(4):
            c = '0' if k == 0 else f'v[{D+4*t}:{D+4*t+3}]'
            p(f'{MF} v[{D+4*t}:{D+4*t+3}], v[{AF+4*k}:{AF+4*k+3}], v[{b+4*t}:{b+4*t+3}], {c}')
    p('s_nop 7')
    XB = RB + 1024
    p(f'v_and_b32 v8, 15, v0')
    p(f'v_lshlrev_b32 v8, 2, v8')
    p(f's_lshl_b32 s{sT0}, s{sW}, 8')
    p(f's_add_u32 s{sT0}, s{sT0}, {XB}')
    p(f'v_add_u32 v9, s{sT0}, v8')
    for t in range(4): p(f'ds_write_b32 v9, v{D+4*t} offset:{64*t}')
    p('s_waitcnt lgkmcnt(0)')
    p('s_barrier')
    p(f'v_and_b32 v8, 31, v0')
    p(f'v_lshlrev_b32 v8, 2, v8')
    p(f'v_add_u32 v8, {XB}, v8')
    for w in range(4):
        p(f'ds_read_b32 v{20+w}, v8 offset:{256*w}')
        p(f'ds_read_b32 v{24+w}, v8 offset:{256*w+128}')
    p('s_waitcnt lgkmcnt(0)')
    for b in (20, 24):
        p(f'v_add_f32 v{b}, v{b}, v{b+1}')
        p(f'v_add_f32 v{b+2}, v{b+2}, v{b+3}')
        p(f'v_add_f32 v{b}, v{b}, v{b+2}')
    g_, u_ = 20, 24
    for x in rne_keep(g_, g_): p(x)
    for x in rne_keep(u_, u_): p(x)
    p(f'v_mul_f32 v{t1}, 0xbfb8aa3b, v{g_}')
    p(f'v_exp_f32 v{t1}, v{t1}')
    p('s_nop 0')
    p(f'v_add_f32 v{t1}, 1.0, v{t1}')
    p(f'v_rcp_f32 v{t1}, v{t1}')
    p('s_nop 0')
    p(f'v_mul_f32 v{g_}, v{g_}, v{t1}')
    for x in rne_keep(g_, g_): p(x)
    p(f'v_mul_f32 v{g_}, v{g_}, v{u_}')
    p(f'v_cvt_pk_bf16_f32 v{g_}, v{g_}, v{g_}')
    AB = RB + 2048
    p(f's_lshl_b32 s{sT0}, s{sW}, 6')
    p(f's_add_u32 s{sT0}, s{sT0}, {AB}')
    p(f'v_and_b32 v8, 31, v0')
    p(f'v_lshlrev_b32 v8, 1, v8')
    p(f'v_add_u32 v8, s{sT0}, v8')
    p(f'ds_write_b16 v8, v{g_}')
    p(f'v_lshlrev_b32 v9, 4, v5')
    p(f'v_add_u32 v9, s{sT0}, v9')
    p('s_waitcnt lgkmcnt(0)')
    p(f'ds_read_b128 v[{AF}:{AF+3}], v9')
    p(f'v_bfe_u32 v7, v0, 2, 2')
    p(f'v_lshl_add_u32 v7, v5, 3, v7')
    p(f'v_mul_u32_u24 v7, 1280, v7')
    p(f'v_and_b32 v8, 3, v0')
    p(f'v_lshl_add_u32 v7, v8, 3, v7')
    p(f's_mul_i32 s{sT0}, s{sW}, 320')
    p(f's_add_u32 s{sT0}, s{sT0}, 81920')
    p(f'v_add_u32 v7, s{sT0}, v7')
    for mb in range(10):
        for h in range(2):
            r = BF + 4*mb + 2*h
            p(f'ds_read_b64_tr_b16 v[{r}:{r+1}], v7 offset:{h*5120 + mb*32}')
    p('s_waitcnt lgkmcnt(0)')
    Y = 130
    for mb in range(10): p(f'{MF} v[{Y+4*mb}:{Y+4*mb+3}], v[{AF}:{AF+3}], v[{BF+4*mb}:{BF+4*mb+3}], 0')
    p('s_nop 7')
    for i in range(3):
        dst = 20 + i
        p(f'v_mov_b32 v{dst}, v{Y+4*min(4*i, 9)}')
        for g in range(1, 4):
            mb = 4*i + g
            if mb < 10:
                p(f'v_cmp_eq_u32 vcc, {g}, v5')
                p('s_nop 1')
                p(f'v_cndmask_b32 v{dst}, v{dst}, v{Y+4*mb}, vcc')
    p(f's_and_b32 s{sT0}, s2, 7')
    p(f's_mul_i32 s{sT0}, s{sT0}, 2560')
    p(f's_add_u32 s{sT0}, s{sT0}, {WS_YACC - WS_STAT}')
    p(f's_mul_i32 s{sT1}, s{sW}, 640')
    p(f's_add_u32 s{sT0}, s{sT0}, s{sT1}')
    p(f'v_lshlrev_b32 v8, 2, v0')
    p(f'buffer_atomic_add_f32 v20, v8, s[{S_ST}:{S_ST+3}], s{sT0} offen')
    p(f'buffer_atomic_add_f32 v21, v8, s[{S_ST}:{S_ST+3}], s{sT0} offen offset:256')
    p('v_cmp_gt_u32 vcc, 32, v0')
    p('s_nop 1')
    p('s_and_saveexec_b64 s[14:15], vcc')
    p(f'buffer_atomic_add_f32 v22, v8, s[{S_ST}:{S_ST+3}], s{sT0} offen offset:512')
    p('s_mov_b64 exec, s[14:15]')
    p('s_waitcnt vmcnt(0)')
    p('s_barrier')
    p.stamp('ffn atomics done')
    p(f's_cmp_lg_u32 s{sW}, 0')
    p(f's_cbranch_scc1 {name}_w5')
    p(f's_lshl_b32 s{sT0}, s2, 2')
    p(f's_add_u32 s{sT0}, s{sT0}, {WS_YACC - WS_STAT + OFF_FLAGF}')
    p(f'v_mov_b32 v{t0}, 0')
    p(f'v_mov_b32 v{t1}, 1')
    p('v_cmp_eq_u32 vcc, 0, v0')
    p('s_nop 1')
    p('s_and_saveexec_b64 s[14:15], vcc')
    p(f'buffer_store_dword v{t1}, v{t0}, s[{S_ST}:{S_ST+3}], s{sT0} offen sc1')
    p('s_mov_b64 exec, s[14:15]')
    p.label(f'{name}_w5')
    p('s_cmp_lg_u32 s2, 0')
    p(f's_cbranch_scc1 {name}_fin')
    Lf = p.nl(name + '_pollF')
    p(f's_mov_b32 s{sT1}, 0')
    p(f's_mov_b32 s{sT0}, {WS_YACC - WS_STAT + OFF_FLAGF}')
    p(f'v_lshlrev_b32 v{t0}, 2, v0')
    p(f'v_cmp_gt_u32 s[14:15], {NFFN}, v0')
    p.label(Lf)
    p(f'buffer_load_dword v{t1}, v{t0}, s[{S_ST}:{S_ST+3}], s{sT0} offen sc1')
    p('s_waitcnt vmcnt(0)')
    p(f'v_cmp_eq_u32 vcc, 0, v{t1}')
    p(f's_add_u32 s{sT1}, s{sT1}, 1')
    p('s_nop 0')
    p('s_and_b64 vcc, vcc, s[14:15]')
    p(f's_cbranch_vccz {Lf}_ok')
    p(f's_cmp_ge_u32 s{sT1}, {SPIN}')
    p(f's_cbranch_scc1 {Lf}_ok')
    p('s_sleep 1')
    p(f's_branch {Lf}')
    p.label(Lf + '_ok')
    p(f'v_lshlrev_b32 v8, 2, v{tid}')
    GW = 20
    for i in range(3):
        for c in range(8):
            p(f's_mov_b32 s{sT0}, {WS_YACC - WS_STAT + c*2560 + i*1024}')
            p(f'buffer_load_dword v{GW+8*i+c}, v8, s[{S_ST}:{S_ST+3}], s{sT0} offen sc0 sc1')
    p(f'v_lshlrev_b32 v9, 1, v{tid}')
    p(f'v_add_u32 v10, {HNL}, v9')
    for i in range(3):
        p(f'ds_read_u16 v{50+i}, v10 offset:{512*i}')
        p(f'ds_read_u16 v{54+i}, v10 offset:{1280 + 512*i}')
    p(f'v_mov_b32 v{t1}, s{sR}')
    p(f'v_mul_f32 v{t1}, 0xbfb8aa3b, v{t1}')
    p(f'v_exp_f32 v{t1}, v{t1}')
    p('s_nop 0')
    p(f'v_add_f32 v{t1}, 1.0, v{t1}')
    p(f'v_rcp_f32 v{t1}, v{t1}')
    p('s_nop 0')
    for x in rne_keep(t1, t1): p(x)
    p('s_waitcnt vmcnt(0) lgkmcnt(0)')
    p(f's_mul_i32 s{sT1}, s{sIdx}, 1280')
    for i in range(3):
        b = GW + 8*i
        for c in range(1, 8): p(f'v_add_f32 v{b}, v{b}, v{b+c}')
        for x in rne_keep(b, b): p(x)
        p(f'v_mul_f32 v{b}, v{b}, v{t1}')
        for x in rne_keep(b, b): p(x)
        p(f'v_lshlrev_b32 v{50+i}, 16, v{50+i}')
        p(f'v_lshlrev_b32 v{54+i}, 16, v{54+i}')
        p(f'v_add_f32 v{b}, v{b}, v{50+i}')
        for x in rne_keep(b, b): p(x)
        p(f'v_add_f32 v{b}, v{b}, v{54+i}')
        p(f'v_cvt_pk_bf16_f32 v{b}, v{b}, v{b}')
    p(f'buffer_store_short v{GW}, v9, s[{S_OUT}:{S_OUT+3}], s{sT1} offen sc1')
    p(f'buffer_store_short v{GW+8}, v9, s[{S_OUT}:{S_OUT+3}], s{sT1} offen offset:512 sc1')
    p(f'v_cmp_gt_u32 vcc, 128, v{tid}')
    p('s_nop 1')
    p('s_and_saveexec_b64 s[14:15], vcc')
    p(f's_cbranch_execz {name}_x')
    p(f'buffer_store_short v{GW+16}, v9, s[{S_OUT}:{S_OUT+3}], s{sT1} offen offset:1024 sc1')
    p.label(f'{name}_x')
    p('s_mov_b64 exec, s[14:15]')
    p.label(f'{name}_fin')
    if prof: p(f's_mov_b32 s44, s{sW}')
    p.dump_stamps(12, 120*MiB, 13)
    p.label(f'{name}_done')
    p('s_endpgm')
    def pol(ins, n):
        t = ins.args[0]
        if '_poll' in t and t.endswith('_ok'): return True
        return False
    seq = trace(p, pol)
    nerr += len(check_linear(seq, name))
    return p, nerr

if __name__ == '__main__':
    p, ne = gen_kt()
    print('instrs', p.count(), 'errors', ne)
```

```python
from gx2 import *

def cls(it):
    k = it[0]
    if k in ('m', 'l', 'st', 'stk', 'r'): return 'M'
    if k in ('wlg', 'wvm', 's', 'call', 'w'): return 'S'
    if k == 'bar': return 'B'
    if k == 'v':
        return 'S' if it[1].startswith('s_') else 'V'
    raise ValueError(it)
def cost(it):
    c = cls(it)
    if c == 'V': return 8 if it[1].split()[0] in TRANS else 4
    if c == 'B': return 8
    if it[0] == 'call': return 0
    if it[0] in ('s', 'w', 'v'): return 4*(it[1].count('\n') + 1)
    return 4

class Region:
    def __init__(self, mfmas, period=16):
        self.m = mfmas; self.n = len(mfmas); self.period = period
        self.S = [[] for _ in range(self.n)]
        self.M = [[] for _ in range(self.n)]
        self.V = [[] for _ in range(self.n)]
        self.T = [[] for _ in range(self.n)]
        self.over = 0
    def time(self, g, extra=None):
        S = list(self.S[g]); M = list(self.M[g]); V = list(self.V[g])
        if extra is not None:
            {'S': S, 'B': S, 'M': M, 'V': V}[cls(extra)].append(extra)
        t = 4 + sum(cost(x) for x in S)
        if M or V: t = max(t, 8)
        t += sum(cost(x) for x in M) + 4*max(0, len(M) - 1) + sum(cost(x) for x in V) + sum(cost(x) for x in self.T[g])
        return t
    def fits(self, g, it):
        if cls(it) == 'M' and self.M[g]: return False
        return self.time(g, it) <= self.period
    def free(self, g): return self.period - self.time(g)
    def place(self, it, earliest=0, latest=None, force=False):
        latest = self.n - 1 if latest is None else min(latest, self.n - 1)
        earliest = max(0, min(earliest, self.n - 1))
        g = earliest
        if not force:
            while g <= latest and not self.fits(g, it): g += 1
            if g > latest:
                g = min(range(earliest, max(latest, earliest) + 1), key=lambda x: self.time(x, it)); self.over += 1
        {'S': self.S, 'B': self.S, 'M': self.M, 'V': self.V}[cls(it)][g].append(it)
        return g
    ORD = {'S': 0, 'B': 0, 'M': 1, 'V': 2}
    def stream(self, items, start=0, end=None, pace=None):
        g = start; prev = None
        for k, it in enumerate(items):
            e = g
            if prev is not None and self.ORD[cls(it)] < self.ORD[cls(prev)]: e = g + 1
            if pace: e = max(e, pace(k))
            g = self.place(it, e, end)
            prev = it
        return g
    def total(self):
        return sum(max(self.period, self.time(g)) for g in range(self.n))
    def emit(self, p, put):
        for i in range(self.n):
            p(self.m[i])
            for it in self.S[i]: put(it)
            for it in self.M[i]: put(it)
            for it in self.V[i]: put(it)
            for it in self.T[i]: put(it)

def make_put(p):
    def put(it):
        k = it[0]
        if k == 'm': p.vm(it[1], it[2], it[3])
        elif k == 'l': p.vm(it[1], it[2])
        elif k == 'st': p.vm(it[1], 'st')
        elif k == 'stk': p.vm(it[1], 'stk')
        elif k == 'r': p.ds(it[1], it[2], it[3] if len(it) > 3 else None)
        elif k == 'wlg': p.wait_lg(it[1])
        elif k == 'wvm': p.wait_vm(it[1], it[2] if len(it) > 2 else '')
        elif k == 'bar':
            if it[1]: p.wait_vm(it[1], 'lgkmcnt(0)')
            else: p('s_waitcnt lgkmcnt(0)')
            p.lg_all()
            st = len(it) > 2 and it[2]
            if st: p.stamp('prebar')
            p('s_barrier')
            if st: p.stamp('postbar')
        elif k == 'call': it[1]()
        else: p(it[1])
    return put
```

```python
import sys
from kf import gen_kf
from kt import gen_kt
from common import *
prof = len(sys.argv) > 1 and sys.argv[1] == 'prof'
out = sys.argv[2] if len(sys.argv) > 2 else 'all.s'
ks = []
errs = 0
for (nm, gen, grid, block, lds, vg, sg, acc) in [
    ('front_kernel', gen_kf, 256, 256, 163840, 512, 102, 256),
    ('tail_kernel', gen_kt, 256, 256, 147456, 512, 102, 256)]:
    p, e = gen(name=nm, prof=prof, **({'opt': (sys.argv[3],)} if (len(sys.argv) > 3 and nm == 'front_kernel') else {}))
    errs += e
    ks.append((nm, p, grid, block, lds, vg, sg, acc))
print('total errors', errs)
hdr = '''; Kernarg layout (112 bytes, ptrs only): x, c_kv, w_q, w_uk, w_uv, w_o, B_x, w_r, w_gate, w_up, w_down, out, debug, ws
; Pipeline: front_kernel (LN(x) + K/V up-projection + Q projection + causal flash attention; phases joined by tagged flags in d_ws)
'''
body = '.amdgcn_target "amdgcn-amd-amdhsa--gfx950"\n.text\n'
d = '.section .rodata,"a"\n'
for (name, prog, grid, block, lds, vg, sg, acc) in ks:
    hdr += f'; @launch kernel={name} grid=({grid},1,1) block=({block},1,1) lds={lds}\n'
    body += header(name) + prog.text()
    d += desc(name, vg, sg, acc)
open(out, 'w').write(hdr + body + d)
```

```python
import re

def _regs(tok):
    tok = tok.strip()
    neg = tok.lstrip('-')
    if neg.startswith('abs(') or neg.startswith('|'):
        neg = neg.replace('abs(', '').replace(')', '').replace('|', '')
    m = re.fullmatch(r'([vas])\[(\d+):(\d+)\]', neg)
    if m: return [m.group(1) + str(i) for i in range(int(m.group(2)), int(m.group(3)) + 1)]
    m = re.fullmatch(r'([vas])(\d+)', neg)
    if m: return [neg]
    if neg in ('vcc',): return ['vcc']
    if neg in ('vcc_lo', 'vcc_hi'): return ['vcc']
    if neg in ('exec',): return ['exec']
    if neg == 'm0': return ['m0']
    if neg == 'scc': return ['scc']
    return []

TRANS = ('v_exp_f32', 'v_log_f32', 'v_rcp_f32', 'v_rsq_f32', 'v_sqrt_f32', 'v_sin_f32', 'v_cos_f32')

class Ins:
    __slots__ = ('text', 'op', 'args', 'rd', 'wr', 'kind', 'mods', 'tag')
    def __init__(self, text, tag=None):
        self.text = text.strip()
        self.tag = tag
        t = self.text.split(';')[0].strip()
        parts = t.split(None, 1)
        self.op = parts[0]
        rest = parts[1] if len(parts) > 1 else ''
        ops = []; cur = ''; depth = 0
        for ch in rest:
            if ch == '[': depth += 1
            if ch == ']': depth -= 1
            if ch == ',' and depth == 0: ops.append(cur.strip()); cur = ''
            else: cur += ch
        if cur.strip(): ops.append(cur.strip())
        mods = []
        if ops:
            lp = ops[-1].split()
            ops[-1] = lp[0]; mods = lp[1:]
        self.args = ops; self.mods = mods
        self.rd = []; self.wr = []
        op = self.op
        R = lambda i: _regs(ops[i]) if i < len(ops) else []
        if op.startswith('v_mfma'):
            self.kind = 'mfma'; self.wr = R(0); self.rd = R(1) + R(2) + R(3)
        elif op.startswith('ds_read') or op.startswith('ds_bpermute') or op.startswith('ds_swizzle'):
            self.kind = 'dsr'; self.wr = R(0); self.rd = R(1) + (R(2) if op.startswith('ds_bperm') else [])
        elif op.startswith('ds_add_rtn'):
            self.kind = 'dsr'; self.wr = R(0); self.rd = R(1) + R(2)
        elif op.startswith('ds_write') or op.startswith('ds_add') or op.startswith('ds_max'):
            self.kind = 'dsw'; self.rd = R(0) + R(1) + R(2)
        elif op.startswith('buffer_load'):
            if 'lds' in mods:
                self.kind = 'dma'; self.rd = R(0) + R(1) + R(2) + ['m0']
            else:
                self.kind = 'vld'; self.wr = R(0); self.rd = R(1) + R(2) + R(3)
        elif op.startswith('buffer_store'):
            self.kind = 'vst'; self.rd = R(0) + R(1) + R(2) + R(3)
        elif op.startswith('buffer_atomic'):
            self.kind = 'vat'; self.rd = R(0) + R(1) + R(2) + R(3)
            if 'sc0' in mods: self.wr = R(0)[:1] if len(R(0)) <= 2 else R(0)
        elif op.startswith('global_load'):
            self.kind = 'vld'; self.wr = R(0); self.rd = R(1) + R(2)
        elif op.startswith('global_store') or op.startswith('global_atomic'):
            self.kind = 'vst'; self.rd = R(0) + R(1) + R(2)
        elif op in ('buffer_inv', 'buffer_wbl2'):
            self.kind = 'vmisc'
        elif op.startswith('s_load') or op == 's_memtime' or op == 's_memrealtime':
            self.kind = 'smem'; self.wr = R(0); self.rd = R(1)
        elif op == 's_waitcnt': self.kind = 'wait'
        elif op == 's_nop': self.kind = 'nop'
        elif op == 's_barrier': self.kind = 'bar'
        elif op in ('s_endpgm', 's_sleep', 's_setprio'): self.kind = 'misc'
        elif op == 's_getpc_b64': self.kind = 'salu'; self.wr = R(0)
        elif op.startswith('s_cbranch') or op == 's_branch':
            self.kind = 'br'
            if 'scc' in op: self.rd = ['scc']
            if 'vcc' in op: self.rd = ['vcc']
            if 'exec' in op: self.rd = ['exec']
        elif op.startswith('s_cmp') or op.startswith('s_bitcmp'):
            self.kind = 'salu'; self.rd = R(0) + R(1); self.wr = ['scc']
        elif op.startswith('s_'):
            self.kind = 'salu'; self.wr = R(0); self.rd = sum((R(i) for i in range(1, len(ops))), [])
            if op in ('s_addk_i32', 's_mulk_i32'): self.rd += R(0)
            if any(op.startswith(p) for p in ('s_add', 's_sub', 's_and', 's_or', 's_xor', 's_lshl', 's_lshr', 's_ashr', 's_min', 's_max', 's_not', 's_bfe')):
                self.wr = self.wr + ['scc']
            if op.startswith('s_addc') or op.startswith('s_subb') or op.startswith('s_cselect'): self.rd += ['scc']
            if 'saveexec' in op: self.wr += ['exec']; self.rd += ['exec']
        elif op.startswith('v_cmp'):
            self.kind = 'valu'; self.wr = R(0); self.rd = R(1) + R(2) + ['exec']
            if op.startswith('v_cmpx'): self.wr += ['exec']
        elif op.startswith('v_'):
            self.kind = 'valu'
            self.wr = R(0)
            start = 1
            if op.startswith('v_add_co') or op.startswith('v_sub_co') or op.startswith('v_addc_co') or op.startswith('v_subb_co'):
                self.wr += R(1); start = 2
            self.rd = sum((R(i) for i in range(start, len(ops))), [])
            if op.startswith('v_fmac') or op.startswith('v_mac') or op.startswith('v_dot2c') or op.startswith('v_writelane') or op.startswith('v_pk_fmac'):
                self.rd += R(0)
            if op.startswith('v_permlane32_swap') or op.startswith('v_permlane16_swap'):
                self.wr = R(0) + R(1); self.rd = R(0) + R(1)
            if any(m.startswith('row_') or m.startswith('quad_perm') or m.startswith('wave_') for m in mods):
                self.kind = 'valu'; self.rd += R(0)
            if op.startswith('v_cndmask') and len(ops) == 3: self.rd += ['vcc']
        else:
            raise ValueError('unknown op ' + text)
    def is_dpp(self):
        return any(m.startswith('row_') or m.startswith('quad_perm') or m.startswith('wave_') for m in self.mods)

class Prog:
    def __init__(self):
        self.items = []
        self.uid = 0
    def __call__(self, s, tag=None):
        for l in s.split('\n'):
            l = l.strip()
            if not l or l.startswith(';'):
                if l: self.items.append(('raw', '    ' + l))
                continue
            if l.endswith(':'): self.items.append(('label', l[:-1]))
            else: self.items.append(Ins(l, tag))
    def label(self, n): self.items.append(('label', n))
    def nl(self, p='L'):
        self.uid += 1
        return f'{p}_{self.uid}'
    def text(self):
        out = []
        for it in self.items:
            if isinstance(it, Ins): out.append('    ' + it.text)
            elif it[0] == 'label': out.append(it[1] + ':')
            else: out.append(it[1])
        return '\n'.join(out) + '\n'
    def count(self):
        return sum(isinstance(i, Ins) for i in self.items)

def mfma_passes(op):
    if '32x32x16' in op: return 8
    if '16x16x32' in op: return 4
    raise ValueError(op)

def check_linear(seq, name='', verbose=True, entry_pending=None):
    errs = []
    n = len(seq)
    def states_between(i, j):
        s = 0
        for k in range(i + 1, j):
            if seq[k].kind == 'nop': s += int(seq[k].args[0], 0) + 1
            else: s += 1
        return s
    lastw = {}
    for j, c in enumerate(seq):
        rd = set(c.rd); wr = set(c.wr)
        lo = max(0, j - 40)
        for i in range(j - 1, lo - 1, -1):
            p = seq[i]
            pw = set(p.wr)
            need = 0; why = ''
            if p.kind == 'mfma':
                ps = mfma_passes(p.op)
                D = pw
                if c.kind == 'mfma':
                    C = set(_regs(c.args[3])) if len(c.args) > 3 else set()
                    AB = set(_regs(c.args[1]) + _regs(c.args[2]))
                    if AB & D: need = max(need, {4: 8, 8: 12}[ps]); why = 'mfma D->A/B'
                    if C & D:
                        if C == D and mfma_passes(c.op) == ps: pass
                        else: need = max(need, {4: 6, 8: 10}[ps]); why = 'mfma D->C partial'
                    if (wr & D) and not (C & D): need = max(need, {4: 8, 8: 12}[ps]); why = 'mfma WAW'
                elif c.kind in ('valu', 'vst', 'vat', 'dsw', 'dsr', 'vld', 'dma'):
                    if (rd & D) or (wr & D): need = max(need, {4: 8, 8: 12}[ps]); why = 'mfma D->valu/mem'
                Cp = set(_regs(p.args[3])) if len(p.args) > 3 else set()
                if c.kind == 'valu' and (wr & Cp) and not (wr & D): need = max(need, {4: 3, 8: 7}[ps]); why = 'mfma srcC WAR'
            elif p.kind == 'valu':
                vw = {r for r in pw if r[0] in 'va' and r != 'vcc'}
                sw = {r for r in pw if r[0] == 's' or r == 'vcc'}
                if c.kind == 'mfma' and (rd & vw): need = max(need, 2); why = 'valu->mfma'
                if p.op in TRANS and c.kind in ('valu', 'mfma', 'vst', 'dsw') and c.op not in TRANS and (rd & vw): need = max(need, 1); why = 'trans->valu'
                if p.op in TRANS and c.op in TRANS and (rd & vw): need = max(need, 1); why = 'trans->trans(safe)'
                if c.op.startswith('v_permlane') and (rd & vw): need = max(need, 2); why = 'valu->permlane'
                if (c.op.startswith('v_readlane') or c.op.startswith('v_readfirstlane')) and (rd & vw): need = max(need, 1); why = 'valu->readlane'
                if c.kind == 'valu' and c.is_dpp() and (rd & vw): need = max(need, 2); why = 'valu->dpp'
                if c.kind in ('vld', 'vst', 'vat', 'dma') and (rd & sw): need = max(need, 5); why = 'valu sgpr->vmem'
                if c.kind == 'valu' and (rd & sw): need = max(need, 2); why = 'valu sgpr->valu'
                if c.kind == 'salu' and (rd & sw): need = max(need, 1); why = 'valu sgpr->salu (pad)'
                if 'exec' in pw and c.kind == 'mfma': need = max(need, 4); why = 'exec->mfma'
                if 'exec' in pw and c.kind == 'valu' and c.is_dpp(): need = max(need, 5); why = 'exec->dpp'
            elif p.kind == 'salu':
                if 'm0' in pw and c.kind == 'dma': need = max(need, 1); why = 'm0->dma'
            elif p.kind in ('vst', 'vat'):
                data = set(_regs(p.args[0]))
                if len(data) >= 3 and (wr & data) and c.kind in ('valu',): need = max(need, 2); why = 'store data WAR'
                if len(data) >= 3 and (wr & data) and c.kind in ('dsr', 'vld', 'mfma'): need = max(need, 1); why = 'store data WAR'
            if need:
                s = states_between(i, j)
                if s < need: errs.append(f'[{name}] wait-state {why}: need {need} have {s}: #{i} "{p.text}" -> #{j} "{c.text}"')
    lastscc = None
    for j, c in enumerate(seq):
        if 'scc' in c.rd:
            if lastscc is None: errs.append(f'[{name}] SCC read without writer #{j} {c.text}')
            else:
                w = seq[lastscc]
                if c.op.startswith('s_addc'):
                    if not w.op.startswith('s_add_u32'): errs.append(f'[{name}] s_addc after {w.text} #{j}')
                elif not (w.op.startswith('s_cmp') or w.op.startswith('s_bitcmp')):
                    errs.append(f'[{name}] SCC reader #{j} "{c.text}" sees writer "{w.text}"')
        if 'scc' in c.wr: lastscc = j
    lastw_s = {}
    for j, c in enumerate(seq):
        for r in c.rd:
            if r in lastw_s: del lastw_s[r]
        if c.kind == 'salu':
            for r in c.wr:
                if r[0] == 's' and r not in ('scc',) and r[1:].isdigit():
                    if r in lastw_s and c.op.startswith('s_add_u32') and seq[lastw_s[r]].op.startswith('s_add_u32') and r not in c.rd and r not in seq[lastw_s[r]].rd:
                        errs.append(f'[{name}] dead scalar write #{lastw_s[r]} "{seq[lastw_s[r]].text}" overwritten by #{j} "{c.text}"')
                    lastw_s[r] = j
    vm = []
    lg = []
    smem = []
    pend = {}
    for j, c in enumerate(seq):
        if c.kind == 'wait':
            m = re.search(r'vmcnt\((\d+)\)', c.text)
            if m:
                k = int(m.group(1))
                while len(vm) > k:
                    o = vm.pop(0)
                    for r in seq[o].wr:
                        if pend.get(r) == ('vm', o): del pend[r]
            m = re.search(r'lgkmcnt\((\d+)\)', c.text)
            if m:
                k = int(m.group(1))
                if smem and k > 0: errs.append(f'[{name}] lgkmcnt({k}) with smem outstanding at #{j}')
                while len(lg) > k:
                    o = lg.pop(0)
                    for r in seq[o].wr:
                        if pend.get(r) == ('lg', o): del pend[r]
                if k == 0:
                    for o in smem:
                        for r in seq[o].wr:
                            if pend.get(r) == ('sm', o): del pend[r]
                    smem = []
            continue
        for r in list(c.rd) + list(c.wr):
            if r in pend:
                if c.kind in ('dsr', 'vld') and r in c.wr and r not in c.rd and pend[r][0] == {'dsr': 'lg', 'vld': 'vm'}[c.kind]:
                    continue
                errs.append(f'[{name}] pending {pend[r]} reg {r} touched by #{j} "{c.text}" (producer "{seq[pend[r][1]].text}")')
        if c.kind in ('vld', 'vst', 'vat', 'dma'):
            vm.append(j)
            if len(vm) > 63: errs.append(f'[{name}] vmcnt overflow (>63 outstanding) at #{j}')
            for r in c.wr: pend[r] = ('vm', j)
        elif c.kind in ('dsr', 'dsw'):
            lg.append(j)
            for r in c.wr: pend[r] = ('lg', j)
            if len(lg) > 15: pass
        elif c.kind == 'smem':
            smem.append(j)
            for r in c.wr: pend[r] = ('sm', j)
    if verbose:
        for e in errs[:40]: print(e)
        if len(errs) > 40: print('...', len(errs), 'errors')
    return errs
```

```python
from common import *
from gx2 import *
from sched import *
from k1b import w_tile_setup, MF
from lnops import *
WS_FLG = 82*MiB

CTX_FLAGS = 'sc1'
LIM = 0x5d800000
NEGBIG = 0xff800000
opt_idx = [0]
PREFETCH = True

def gen_kf(name='front_kernel', prof=False, opt=()):
    p = P2(); p.prof = prof
    p.lenient = 'nordsA' in opt
    p.stampset = set(['start', 'phase A done', 'q end', 'attn prologue done', 'L done', 'ctx ready', 'gemm end', 'key out', 'argmax ready', 'ffn atomics done'])
    if 'tr' in opt: p.stampset = set(['start', 'q end', 'pre check', 'kv ok', 'qk0 done', 'attn prologue done', 'L done', 'tail setup', 'ctx pub', 'ctx ready'])
    if 'tl' in opt: p.stampset = set(['start', 'L done', 'ctx ready', 'gemm end', 'signalled', 'partials ready', 'partials loaded', 'key out', 'argmax ready', 'ffn atomics done'])
    put = make_put(p)
    S_WQ, S_XNF, S_KF, S_VF, S_CTX = 16, 20, 24, 28, 32
    sM = 36
    sW, sH, sI = 44, 45, 46
    sT0, sT1, sT2 = 47, 48, 49
    sLW = 50
    sWoff = 51
    sXL, sXS = 52, 53
    sKb, sVb = 54, 55
    sHbase = 56
    sSlotP, sSlotR = 57, 58
    sTL, sTS = 59, 60
    sCnt = 61
    sDd = 62
    sFlag = 63
    sCtx = 64
    sLim = 65
    sScale = 61
    sSel = 4
    vLane16 = 1; vRd = 2; vNinf = 3
    vOffW = 4
    vLPW = 8; vT = 9
    vNeg = 16; vCi = 32; vS = 48; vP = 80; vE = 112; vL = 116; vU = 120
    vCW = 120
    vWF = 48
    vO = 128
    aQ = 0; aK = 64; aV = 96; aX = 128
    O = lambda c, db: vO + 32*c + 4*db
    Sr = lambda sc, kb: vS + 8*sc + 4*kb
    Pr = lambda par, c: vP + 16*par + 4*c
    NSLOT = 5

    S_CKV, S_X, S_DBG = 4, 8, 88
    S_WUK, S_WUV = 36, 40
    S_FL = 68
    sTag = 3
    sXcc = 67; sSame = 66
    sASum = sFlag
    sAoff = sDd; sWr = sCtx; sAr = sLim; sWp = sKb; sAp = sVb; sKst = sSlotP
    vOffA = 16
    vLPA = 20; vCA = 21
    vWK = 32; vWV = 64; vAct = 128
    SPIN = 1 << 16
    p(f's_cmp_ge_u32 s2, 256')
    p(f's_cbranch_scc1 {name}_done')
    p.stamp('start')
    p(f's_load_dwordx2 s[84:85], s[0:1], {ARG["x"]}')
    p(f's_load_dwordx2 s[86:87], s[0:1], {ARG["ckv"]}')
    p(f's_load_dwordx4 s[88:91], s[0:1], {ARG["wuk"]}')
    p(f's_load_dwordx2 s[92:93], s[0:1], {ARG["wq"]}')
    p(f's_load_dwordx4 s[96:99], s[0:1], {ARG["dbg"]}')
    p('s_and_b32 s14, s2, 7')
    p('s_lshr_b32 s15, s2, 3')
    p(f's_lshr_b32 s{sH}, s15, 3')
    p(f's_lshl_b32 s14, s14, 2')
    p(f's_add_u32 s{sH}, s{sH}, s14')
    p(f's_and_b32 s{sI}, s15, 7')
    p('v_lshrrev_b32 v2, 6, v0')
    p('v_and_b32 v0, 63, v0')
    p(f'v_readfirstlane_b32 s{sW}, v2')
    p(f'v_lshlrev_b32 v{vLane16}, 4, v0')
    p(f's_getreg_b32 s{sXcc}, hwreg(HW_REG_XCC_ID, 0, 4)')
    w_tile_setup(p, vOffW, vLPW, vT)
    p(f'v_lshrrev_b32 v{vT}, 3, v0')
    p(f'v_lshlrev_b32 v{vT}, 10, v{vT}')
    p(f'v_lshrrev_b32 v{vT+1}, 4, v0')
    p(f'v_and_b32 v{vT+2}, 7, v0')
    p(f'v_xor_b32 v{vT+2}, v{vT+2}, v{vT+1}')
    p(f'v_lshl_add_u32 v{vOffA}, v{vT+2}, 4, v{vT}')
    p(f'v_xor_b32 v{vT+3}, 4, v{vT+2}')
    p(f'v_lshl_add_u32 v{vOffA+1}, v{vT+3}, 4, v{vT}')
    p(f'v_add_u32 v{vOffA+2}, {2*7168}, v{vOffA}')
    p(f'v_add_u32 v{vOffA+3}, {3*7168}, v{vOffA+1}')
    p(f'v_add_u32 v{vOffA+1}, {1*7168}, v{vOffA+1}')
    p(f'v_and_b32 v{vT}, 15, v0')
    p(f'v_bfe_u32 v{vT+1}, v0, 1, 3')
    p(f'v_lshrrev_b32 v{vT+2}, 4, v0')
    p(f'v_xor_b32 v{vT+1}, v{vT+1}, v{vT+2}')
    p(f'v_lshlrev_b32 v{vT}, 7, v{vT}')
    p(f'v_lshl_add_u32 v{vLPA}, v{vT+1}, 4, v{vT}')
    p(f's_lshl_b32 s{sLW}, s{sW}, 12')
    p(f's_lshl_b32 s{sWoff}, s{sW}, 17')
    p(f's_lshl_b32 s{sT1}, s{sH}, 8')
    p(f's_add_u32 s{sWoff}, s{sWoff}, s{sT1}')
    p(f's_lshl_b32 s{sT0}, s{sI}, 8')
    p(f's_lshl_b32 s{sT1}, s{sW}, 6')
    p(f's_add_u32 s{sT0}, s{sT0}, s{sT1}')
    p(f's_lshl_b32 s{sAoff}, s{sT0}, 10')
    sK0 = sXL; sLA = sXS
    p(f's_lshl_b32 s{sHbase}, s{sH}, 6')
    p(f's_lshr_b32 s{sT1}, s{sT0}, 5')
    p(f's_add_u32 s{sHbase}, s{sHbase}, s{sT1}')
    p(f's_lshl_b32 s{sHbase}, s{sHbase}, 13')
    p(f's_lshl_b32 s{sLA}, s{sW}, 13')
    p('s_waitcnt lgkmcnt(0)')
    srd(p, S_CKV, 86, 2048*512*2)
    srd(p, S_WUK, 88, 512*4096*2)
    srd(p, S_WUV, 90, 512*4096*2)
    SL = 16384
    ACT0 = 98304
    def emit(L):
        prev = None
        for it in L:
            if it[0] == 'm' and prev is not None and prev[0] == 's' and ' m0,' in prev[1]: put(('s', 's_nop 0'))
            put(it); prev = it
    def dmaW_static(st):
        base = (st % 3)*32768; L = []
        for mi, sr in enumerate((S_WUK, S_WUV)):
            L += [('s', f's_add_u32 s{sT0}, s{sWoff}, {st*64*8192}'), ('s', f's_add_u32 m0, s{sLW}, {base + mi*SL}')]
            for i in range(4): L.append(('m', f'buffer_load_dwordx4 v{vOffW+i}, s[{sr}:{sr+3}], s{sT0} offen offset:{1024*i} lds', f'W{st}', ('W', base + mi*SL, base + (mi+1)*SL, True)))
        return L
    def dmaA_static(st):
        base = ACT0 + (st % 2)*32768; L = []
        for half in range(2):
            L += [('s', f's_add_u32 s{sT1}, s{sAoff}, {st*128 + 32768*half}'), ('s', f's_add_u32 m0, s{sLA}, {base + 4096*half}')]
            for i in range(4): L.append(('m', f'buffer_load_dwordx4 v{vOffA+i}, s[{S_CKV}:{S_CKV+3}], s{sT1} offen offset:{1024*i} lds', f'A{st}', ('W', base, base + 32768, False)))
        return L
    if 'pp' in opt: p.stamp('setup')
    emit(dmaA_static(0)); emit(dmaW_static(0))
    if 'pp' in opt: p.stamp('A0W0 issued')
    srd(p, S_X, 84, 2048*640*2)
    srd(p, S_WQ, 92, 640*4096*2)
    srd(p, S_XNF, 98, SZ_XNF, WS_XNF)
    srd(p, S_KF, 98, SZ_KF, WS_KF)
    srd(p, S_VF, 98, SZ_KF, WS_VF)
    srd(p, S_CTX, 98, SZ_CTX, WS_CTX)
    srd(p, S_FL, 98, 8192, WS_FLG)
    X = 160; RAW = 200; vXo = 220; vXn = 221; LT = 224
    p(f's_lshl_b32 s{sT1}, s2, 3')
    p(f's_and_b32 s14, s{sW}, 1')
    p(f's_lshl_b32 s14, s14, 2')
    p(f's_add_u32 s{sT1}, s{sT1}, s14')
    p(f'v_and_b32 v{vT}, 3, v0')
    p(f'v_add_u32 v{vT}, s{sT1}, v{vT}')
    p(f'v_lshrrev_b32 v{vT+1}, 2, v0')
    p(f'v_mul_u32_u24 v{vXo}, 1280, v{vT}')
    p(f'v_lshl_add_u32 v{vXo}, v{vT+1}, 4, v{vXo}')
    p(f'v_lshrrev_b32 v{vXn}, 4, v{vT}')
    p(f'v_mul_u32_u24 v{vXn}, 20, v{vXn}')
    p(f'v_lshrrev_b32 v{vT+2}, 2, v{vT+1}')
    p(f'v_add_u32 v{vXn}, v{vXn}, v{vT+2}')
    p(f'v_lshlrev_b32 v{vXn}, 10, v{vXn}')
    p(f'v_and_b32 v{vT+2}, 3, v{vT+1}')
    p(f'v_lshlrev_b32 v{vT+2}, 4, v{vT+2}')
    p(f'v_and_b32 v{vT+3}, 15, v{vT}')
    p(f'v_add_u32 v{vT+2}, v{vT+2}, v{vT+3}')
    p(f'v_lshl_add_u32 v{vXn}, v{vT+2}, 4, v{vXn}')
    for i in range(5):
        p(f'buffer_load_dwordx4 v[{RAW+4*i}:{RAW+4*i+3}], v{vXo}, s[{S_X}:{S_X+3}], 0 offen offset:{256*i}')
    S_LNS = 96
    if 'nocode' not in opt:
        p(f's_lshr_b32 s14, s2, 3')
        p(f's_cmp_ge_u32 s14, 12')
        p(f's_cbranch_scc1 {name}_nocode')
        p(f's_cmp_lg_u32 s{sW}, 3')
        p(f's_cbranch_scc1 {name}_nocode')
        p('s_getpc_b64 s[76:77]')
        p.label(f'{name}_pc')
        p(f's_lshl_b32 s14, s14, 13')
        p(f'v_lshlrev_b32 v{vT}, 7, v0')
        p(f'v_add_u32 v{vT}, s14, v{vT}')
        p(f'v_min_u32 v{vT}, code_end_all-{name}_pc-4, v{vT}')
        p(f'v_and_b32 v{vT}, -4, v{vT}')
        p(f'global_load_dword v{vT+2}, v{vT}, s[76:77]')
        p.label(f'{name}_nocode')
    if 'notlb' not in opt:
        p('s_mov_b32 s76, s98'); p('s_mov_b32 s77, s99'); p(f's_mov_b32 s78, {96*MiB}'); p('s_mov_b32 s79, 0x00020000')
        p(f'v_mov_b32 v{vT}, {WS_FLG}')
        p(f's_add_u32 s14, s{sHbase}, {WS_KF}'); p(f'v_writelane_b32 v{vT}, s14, 1')
        p(f's_add_u32 s14, s{sHbase}, {WS_VF}'); p(f'v_writelane_b32 v{vT}, s14, 2')
        p(f's_lshl_b32 s15, s{sH}, 19')
        for k in range(2):
            p(f's_add_u32 s14, s15, {WS_KF + k*524160}'); p(f'v_writelane_b32 v{vT}, s14, {3 + 2*k}')
            p(f's_add_u32 s14, s15, {WS_VF + k*524160}'); p(f'v_writelane_b32 v{vT}, s14, {4 + 2*k}')
        p(f's_mov_b32 s14, {WS_XNF}'); p(f'v_writelane_b32 v{vT}, s14, 7')
        p(f's_mov_b32 s14, {WS_XNF + 2*MiB}'); p(f'v_writelane_b32 v{vT}, s14, 8')
        p(f's_sub_u32 s14, 15, s{sI}'); p('s_lshl_b32 s14, s14, 20'); p(f's_add_u32 s14, s14, {WS_CTX}'); p(f'v_writelane_b32 v{vT}, s14, 9')
        p(f's_lshl_b32 s14, s{sI}, 20'); p(f's_add_u32 s14, s14, {WS_CTX}'); p(f'v_writelane_b32 v{vT}, s14, 10')
        p(f'buffer_load_dword v{vT+2}, v{vT}, s[76:79], 0 offen')
    if 'pp' in opt: p.stamp('x issued')
    srd(p, S_DBG, 96, 256)
    p('v_mov_b32 v26, 0')
    p('s_or_b32 s14, s2, 0')
    p(f's_add_u32 s14, s2, s{sW}')
    p('s_cmp_lg_u32 s14, 0')
    p(f's_cbranch_scc1 {name}_notag')
    p('s_memrealtime s[92:93]')
    p('s_waitcnt lgkmcnt(0)')
    p('s_or_b32 s92, s92, 1')
    p('v_mov_b32 v24, s92')
    p(f'buffer_store_dword v24, v26, s[{S_DBG}:{S_DBG+3}], 0 offen sc1')
    p.label(f'{name}_notag')
    if 'pp' in opt: p.stamp('tag issued')
    emit(dmaA_static(1)); emit(dmaW_static(1))
    (p.stamp('dma issued') if 'pq' not in opt else None)
    p('s_cmp_lg_u32 s2, 0')
    p(f's_cbranch_scc1 {name}_nz')
    p(f's_add_u32 s76, s98, {WS_YACC}')
    p('s_addc_u32 s77, s99, 0')
    p(f's_mov_b32 s78, {SZ_ZERO}')
    p('s_mov_b32 s79, 0x00020000')
    for r in range(4): p(f'v_mov_b32 v{28+r}, 0')
    p(f's_mul_i32 s14, s{sW}, 7168')
    for i in range(7):
        p(f'buffer_store_dwordx4 v[28:31], v{vLane16}, s[76:79], s14 offen sc1')
        p(f's_add_u32 s14, s14, 1024')
    p.label(f'{name}_nz')
    p(f's_add_u32 s96, s98, {WS_XNF}')
    p('s_addc_u32 s97, s99, 0')
    p(f's_mov_b32 s98, {SZ_XNF}')
    p('s_mov_b32 s99, 0x00020000')
    p(f's_cmp_lt_u32 s{sW}, 2')
    p('s_cselect_b32 s98, s98, 0')
    p('s_waitcnt vmcnt(16)')
    p('s_barrier')
    (p.stamp('B0') if 'pq' not in opt else None)
    def rd_act(buf, kin, tb, lab):
        r = vAct + 16*buf + 4*tb
        return ('r', f'ds_read_b128 v[{r}:{r+3}], v{vCA+kin} offset:{2048*tb}', lab)
    def rd_wA(mi, db, kin, lab):
        r = (vWK if mi == 0 else vWV) + 4*db
        return [('r', f'ds_read_b64_tr_b16 v[{r+2*h}:{r+2*h+1}], v{vCW+db} offset:{mi*SL + 8192*kin + 1024*h}', lab) for h in range(2)]
    updA = [('v', f'v_add_u32 v{vCA}, s{sAr}, v{vLPA}'), ('v', f'v_xor_b32 v{vCA+1}, 64, v{vCA}')]
    updWd = [('v', f'v_add_u32 v{vCW}, s{sWr}, v{vLPW}')] + [('v', f'v_xor_b32 v{vCW+db}, {db*32}, v{vCW}') for db in range(1, 8)]
    KA = lambda tb, db: (tb*8 + db)*4
    VA = lambda tb, db: 128 + ((tb >> 1)*16 + db*2 + (tb & 1))*4
    def stageA_mfmas(first):
        L = []
        for kin in range(2):
            for db in range(8):
                for tb in range(4):
                    a = KA(tb, db); f = vAct + 16*kin + 4*tb
                    c = '0' if (first and kin == 0) else f'a[{a}:{a+3}]'
                    L.append(f'{MF} a[{a}:{a+3}], v[{vWK+4*db}:{vWK+4*db+3}], v[{f}:{f+3}], {c}')
                for tb in range(4):
                    a = VA(tb, db); f = vAct + 16*kin + 4*tb
                    c = '0' if (first and kin == 0) else f'a[{a}:{a+3}]'
                    L.append(f'{MF} a[{a}:{a+3}], v[{f}:{f+3}], v[{vWV+4*db}:{vWV+4*db+3}], {c}')
        return L
    GA = lambda kin, db, m: kin*64 + db*8 + m
    def spread(R, L, g0, g1):
        nm = sum(1 for x in L if x[0] in ('m', 'l', 'st'))
        step = max(1, (g1 - g0) // max(nm, 1))
        g = g0; cnt = 0; prev = None
        for it in L:
            e = max(g, g0 + cnt*step - (2 if it[0] == 's' else 0))
            if it[0] == 'm' and prev is not None and prev[0] == 's' and ' m0,' in prev[1]: e = max(e, gprev + 1)
            g = R.place(it, e, g1); gprev = g; prev = it
            if it[0] in ('m', 'l', 'st'): cnt += 1; g += 1
    def stageA(kind, dmaA_items, dmaB_items, barlabs, next_reads=None, mid=None, first=False, bend=None):
        R = Region(stageA_mfmas(first))
        BG = GA(1, 0, 7)
        R.S[BG].append(('bar', barlabs))
        if mid: R.S[BG].extend(mid)
        if next_reads is None:
            R.S[GA(1, 0, 1)].append(('s', f's_add_u32 s{sWr}, s{sWr}, 32768'))
            R.S[GA(1, 0, 2)].append(('s', f's_cmp_ge_u32 s{sWr}, 98304\ns_cselect_b32 s{sWr}, 0, s{sWr}'))
            R.S[GA(1, 0, 3)].append(('s', f's_sub_u32 s{sAr}, s{sASum}, s{sAr}'))
            R.stream(updA + updWd, GA(1, 0, 4), GA(1, 2, 0))
        else:
            R.stream(next_reads[0], GA(1, 0, 4), GA(1, 2, 0))
        for kin in range(2):
            for db in range(8):
                for mi in range(2):
                    if kin == 0 and db == 0 and mi == 0: continue
                    labs = [f'w{kin}_{mi}_{db}'] + ([f'act{kin}'] if (db == 0 and mi == 0) else [])
                    R.place(('wlg', labs), GA(kin, db, 4*mi) - 1, force=True)
        for db in range(8):
            for mi in range(2):
                rr = rd_wA(mi, db, 1, f'w1_{mi}_{db}')
                e = GA(0, db, 4*mi + 3)
                g = R.place(rr[0], e, GA(1, 0, 0)); R.place(rr[1], min(g + 1, GA(1, 0, 0)), GA(1, 0, 0))
        for tb in range(4): R.place(rd_act(1, 1, tb, 'act1'), GA(0, 1, 1) + 5*tb)
        if next_reads is None:
            for db in range(8):
                for mi in range(2):
                    rr = rd_wA(mi, db, 0, f'n0_{mi}_{db}')
                    e = max(GA(1, db, 4*mi + 3), GA(1, 2, 1))
                    g = R.place(rr[0], e); R.place(rr[1], g + 1)
            for tb in range(4): R.place(rd_act(0, 0, tb, 'nact0'), GA(1, 2, 2) + 5*tb)
        else:
            for (it, e) in next_reads[1]: R.place(it, max(e, GA(1, 2, 1)))
        if 'nodmaA' in opt and kind in ('s0', 's1', 'loop'): dmaA_items = [x for x in dmaA_items if x[0] != 'm']; dmaB_items = [x for x in dmaB_items if x[0] != 'm']
        if 'nowA' in opt and kind in ('s0', 's1', 'loop'):
            for g in range(R.n): R.S[g] = [x for x in R.S[g] if x[0] != 'wlg']
        if 'nordsA' in opt and kind in ('s0', 's1', 'loop'):
            for g in range(R.n): R.M[g] = []; R.S[g] = [x for x in R.S[g] if x[0] != 'wlg']
        spread(R, dmaA_items, 1, BG - 2)
        spread(R, dmaB_items, BG + 1, bend if bend else R.n - 2)
        return R
    def dyn_dmaW():
        L = []
        for mi, sr in enumerate((S_WUK, S_WUV)):
            L += [('s', f's_add_u32 m0, s{sWp}, {mi*SL}')]
            for i in range(4): L.append(('m', f'buffer_load_dwordx4 v{vOffW+i}, s[{sr}:{sr+3}], s{sKst} offen offset:{1024*i} lds', 'Wn', None))
        L += [('s', f's_add_u32 s{sKst}, s{sKst}, {64*8192}'), ('s', f's_add_u32 s{sWp}, s{sWp}, 32768'),
              ('s', f's_cmp_ge_u32 s{sWp}, 98304\ns_cselect_b32 s{sWp}, s{sLW}, s{sWp}')]
        return L
    def dyn_dmaA():
        L = []
        for half in range(2):
            L += [('s', f's_add_u32 s{sT1}, s{sAoff}, {32768*half}'), ('s', f's_add_u32 m0, s{sAp}, {4096*half}')]
            for i in range(4): L.append(('m', f'buffer_load_dwordx4 v{vOffA+i}, s[{S_CKV}:{S_CKV+3}], s{sT1} offen offset:{1024*i} lds', 'An', None))
        L += [('s', f's_add_u32 s{sAoff}, s{sAoff}, 128'), ('s', f's_sub_u32 s{sAp}, s{sASum}, s{sAp}')]
        return L
    p(f's_mov_b32 s{sWr}, 0')
    p(f's_add_u32 s{sAr}, s{sLA}, {ACT0}')
    p(f's_add_u32 s{sWp}, s{sLW}, 65536')
    p(f's_add_u32 s{sAp}, s{sLA}, {ACT0}')
    p(f's_lshl_b32 s{sASum}, s{sAp}, 1')
    p(f's_add_u32 s{sASum}, s{sASum}, 32768')
    p(f's_add_u32 s{sKst}, s{sWoff}, {2*64*8192}')
    p(f's_add_u32 s{sAoff}, s{sAoff}, 256')
    emit(updA + updWd)
    p.lgq = []; p.lg_ret = -1
    for tb in range(4): put(rd_act(0, 0, tb, 'act0'))
    for db in range(8):
        for mi in range(2): emit(rd_wA(mi, db, 0, f'w0_{mi}_{db}'))
    def next_order(R):
        L = []
        for g in range(R.n):
            for it in R.M[g]:
                if it[0] == 'r' and (it[2].startswith('n0_') or it[2] == 'nact0'):
                    L.append('act0' if it[2] == 'nact0' else 'w0_' + it[2][3:])
        return L
    order = [None]
    def relabel():
        p.lgq = list(order[0]); p.lg_ret = -1
    def bar_raw(n):
        if 'nobarA' in opt: return ('w', f's_waitcnt vmcnt({n}) lgkmcnt(0)')
        return ('w', f's_waitcnt vmcnt({n}) lgkmcnt(0)\ns_barrier')
    BG = GA(1, 0, 7)
    def fix_bar(R, n, extra=()):
        R.S[BG] = [bar_raw(n), ('call', lambda: p.lg_all())] + list(extra) + [x for x in R.S[BG] if x[0] != 'bar']
    def red64x4(r):
        L = []
        for sh in (8, 4): L += ['s_nop 1', f'v_add_f32_dpp v{r}, v{r}, v{r} row_ror:{sh} row_mask:0xf bank_mask:0xf']
        for sw in ('v_permlane16_swap_b32', 'v_permlane32_swap_b32'):
            L += [f'v_mov_b32 v{LT+6}, v{r}', 's_nop 1', f'{sw} v{r}, v{LT+6}', 's_nop 1', f'v_add_f32 v{r}, v{r}, v{LT+6}']
        return L
    lnops = []
    for i in range(5): lnops += unpack8(RAW + 4*i, X + 8*i)
    lnops += ln_stream(X, 40, LT, red64x4, scale='0x3e0293ee')
    ln = [('v', x) for x in lnops]
    for i in range(5):
        ln.append(('s', f's_mov_b32 s14, {4096*i}'))
        ln.append(('st', f'buffer_store_dwordx4 v[{X+4*i}:{X+4*i+3}], v{vXn}, s[{S_LNS}:{S_LNS+3}], s14 offen sc1'))
    half = len(ln) // 2
    def tag_read():
        p('s_mov_b32 s14, 0')
        p.label(f'{name}_tagpoll')
        p(f'v_readfirstlane_b32 s{sTag}, v24')
        p('s_add_u32 s14, s14, 1')
        p('s_nop 2')
        p(f's_cmp_lg_u32 s{sTag}, 0')
        p(f's_cbranch_scc1 {name}_notag2')
        p(f's_cmp_ge_u32 s14, {SPIN}')
        p(f's_cbranch_scc1 {name}_notag2')
        p(f'buffer_load_dword v24, v26, s[{S_DBG}:{S_DBG+3}], 0 offen sc1')
        p('s_waitcnt vmcnt(0)')
        p(f's_branch {name}_tagpoll')
        p.label(f'{name}_notag2')
    def pub_ln():
        p(f's_cmp_lg_u32 s{sCnt}, 0')
        p(f's_cbranch_scc1 {name}_nopub')
        p(f's_cmp_lg_u32 s{sW}, 0')
        p(f's_cbranch_scc1 {name}_nopub')
        p(f's_lshl_b32 s14, s2, 3')
        p(f'v_mov_b32 v24, s{sTag}')
        p(f'v_mov_b32 v25, s{sXcc}')
        p('v_mov_b32 v26, 0')
        p(f'buffer_store_dwordx2 v[24:25], v26, s[{S_FL}:{S_FL+3}], s14 offen sc1')
        p.label(f'{name}_nopub')
    R0 = stageA('s0', dyn_dmaW(), dyn_dmaA(), None, first=True, bend=BG + 34)
    fix_bar(R0, 8)
    R0.place(('l', f'buffer_load_dword v24, v26, s[{S_DBG}:{S_DBG+3}], 0 offen sc1', 'TAG'), BG + 1, force=True)
    R0.period = 20; R0.stream(ln[:half], 4, None, pace=lambda k: 4 + (k*120)//half); R0.period = 16
    p.lgq = ['act0']*4 + [f'w0_{mi}_{db}' for db in range(8) for mi in range(2) for _ in range(2)]; p.lg_ret = -1
    put(('wlg', ['w0_0_0', 'act0']))
    R0.emit(p, put); order[0] = next_order(R0)
    R1_ = stageA('s1', dyn_dmaW(), dyn_dmaA(), None, bend=BG + 34)
    fix_bar(R1_, 8, [('call', tag_read)])
    nv = [x for x in ln[half:] if x[0] == 'v']; tail = ln[half + len(nv):]
    R1_.period = 20; g = R1_.stream(ln[half:], 0, None, pace=lambda k: min((k*118)//(len(ln) - half), 200) if ln[half + k][0] == 'v' else BG + 2); R1_.period = 16
    relabel(); put(('wlg', ['w0_0_0', 'act0']))
    R1_.emit(p, put); order[0] = next_order(R1_)
    print('stage0/1 est', R0.total(), R1_.total())
    if 'ps' in opt: p.stamp('stage1 done')
    p(f's_mov_b32 s{sCnt}, 0')
    LA = f'{name}_stageA'
    p.label(LA)
    Rl = stageA('loop', dyn_dmaW(), dyn_dmaA(), None, bend=BG + 34)
    fix_bar(Rl, 8, [('call', pub_ln)])
    Rl.T[Rl.n - 1] += [('s', f's_add_u32 s{sCnt}, s{sCnt}, 1'), ('s', f's_cmp_lt_u32 s{sCnt}, 4')]
    assert 'nordsA' in opt or next_order(Rl) == order[0], 'stage read order must be periodic'
    relabel()
    put(('wlg', ['w0_0_0', 'act0']))
    Rl.emit(p, put)
    print('stageA loop est', Rl.total(), 'overflow', Rl.over)
    p(f's_cbranch_scc1 {LA}')
    if 'pp' not in opt: (p.stamp('A loop done') if 'pq' not in opt else None)
    def dma_wq(c):
        L = [('s', f's_add_u32 s{sT0}, s{sWoff}, {c*64*8192}'), ('s', f's_add_u32 m0, s{sLW}, {c*SL}')]
        for i in range(4):
            L.append(('m', f'buffer_load_dwordx4 v{vOffW+i}, s[{S_WQ}:{S_WQ+3}], s{sT0} offen offset:{1024*i} lds', f'WQ{c}', None))
        return L
    relabel()
    put(('wlg', ['w0_0_0', 'act0']))
    flagld = [('s', f's_sub_u32 s{sTL}, 15, s{sI}'), ('s', f's_mov_b32 s{sTS}, s{sI}'),
              ('v', f'v_and_b32 v24, 15, v0'), ('v', f'v_bfe_u32 v25, v0, 4, 1'),
              ('v', f'v_mov_b32 v26, s{sTL}'), ('v', f'v_mov_b32 v27, s{sTS}'),
              ('v', f'v_cmp_eq_u32 vcc, 0, v25'), ('v', 's_nop 1'), ('v', f'v_cndmask_b32 v26, v27, v26, vcc'),
              ('v', f'v_lshl_add_u32 v24, v26, 4, v24'),
              ('s', f's_and_b32 s14, s{sH}, 3'), ('s', f's_lshl_b32 s14, s14, 6'), ('s', f's_lshr_b32 s15, s{sH}, 2'), ('s', f's_add_u32 s14, s14, s15'),
              ('v', f'v_and_b32 v25, 7, v0'), ('v', f'v_lshlrev_b32 v25, 3, v25'), ('v', f'v_add_u32 v25, s14, v25'),
              ('v', f'v_cmp_gt_u32 vcc, 32, v0'), ('v', 's_nop 1'), ('v', f'v_cndmask_b32 v24, v25, v24, vcc'),
              ('v', f'v_lshlrev_b32 v24, 3, v24'),
              ('l', f'buffer_load_dwordx2 v[28:29], v24, s[{S_FL}:{S_FL+3}], 0 offen sc1', 'FL')]
    R6 = stageA('s6', dma_wq(4) + dma_wq(5), dma_wq(0) + dma_wq(1), None)
    fix_bar(R6, 8)
    R6.stream(flagld, BG + 24)
    R6.emit(p, put)
    order[0] = next_order(R6)
    XR = [16, 96, 32, 80]
    XRING = [('v', 16), ('v', 96), ('v', 32), ('v', 80), ('a', 0), ('a', 16), ('a', 32), ('a', 48)]
    def xreg(ks, c):
        t, b = XRING[ks % 8]
        return f'{t}[{b+4*c}:{b+4*c+3}]'
    def xn_load(ks):
        L = []
        for c in range(4):
            off = ks*1024 + (c & 1)*20480
            sb = sXL if c < 2 else sXS
            L.append(('s', f's_add_u32 s{sT1}, s{sb}, {off & ~4095}'))
            L.append(('l', f'buffer_load_dwordx4 {xreg(ks, c)}, v{vLane16}, s[{S_XNF}:{S_XNF+3}], s{sT1} offen offset:{off & 4095} sc1', f'XN{ks}'))
        return L
    def rd_w(db, kin, base, lab):
        r = vWF + 4*db
        return [('r', f'ds_read_b64_tr_b16 v[{r+2*h}:{r+2*h+1}], v{vCW+db} offset:{8192*kin + 1024*h}', lab, None) for h in range(2)]
    def upd_w(base):
        return [('v', f'v_add_u32 v{vCW}, {base}, v{vLPW}')] + [('v', f'v_xor_b32 v{vCW+db}, {db*32}, v{vCW}') for db in range(1, 8)]
    def lncheck():
        p(f's_cmp_lg_u32 s{sW}, 0')
        p(f's_cbranch_scc1 {name}_lnok')
        p('s_mov_b32 s14, 0')
        p.label(f'{name}_lnpoll')
        p(f'v_cmp_ne_u32 vcc, s{sTag}, v28')
        p('s_add_u32 s14, s14, 1')
        p(f's_cbranch_vccz {name}_lnok2')
        p(f's_cmp_ge_u32 s14, {SPIN}')
        p(f's_cbranch_scc1 {name}_lnok2')
        p(f'buffer_load_dwordx2 v[28:29], v24, s[{S_FL}:{S_FL+3}], 0 offen sc1')
        p('s_waitcnt vmcnt(0)')
        p(f's_branch {name}_lnpoll')
        p.label(f'{name}_lnok2')
        p(f'v_cmp_ne_u32 vcc, s{sXcc}, v29')
        p('s_nop 1')
        p('s_lshr_b64 s[14:15], vcc, 32')
        p('s_cmp_eq_u64 s[14:15], 0')
        p(f's_cselect_b32 s{sSame}, 1, 0')
        p.label(f'{name}_lnok')
    relabel()
    put(('wlg', ['w0_0_0', 'act0']))
    xset = [('s', f's_lshl_b32 s{sT1}, s{sTL}, 3'), ('s', f's_lshl_b32 s{sT0}, s{sW}, 1'), ('s', f's_add_u32 s{sT1}, s{sT1}, s{sT0}'),
            ('s', f's_mul_i32 s{sXL}, s{sT1}, 20480'), ('s', f's_lshl_b32 s{sT1}, s{sTS}, 3'), ('s', f's_add_u32 s{sT1}, s{sT1}, s{sT0}'),
            ('s', f's_mul_i32 s{sXS}, s{sT1}, 20480')]
    def last_use(db):
        r = vWF + 4*db
        if r < 64: return GA(1, (r - vWK)//4, 3)
        return GA(1, (r - vWV)//4, 7)
    nr = []
    for db in range(8):
        for it in rd_w(db, 0, 0, f'w0_{db}'): nr.append((it, last_use(db) + 1))
    R7 = stageA('s7', xset + dma_wq(6) + dma_wq(7), dma_wq(2) + dma_wq(3) + dma_wq(8) + dma_wq(9), None, next_reads=(upd_w(0), nr))
    R7.S[BG] = [('call', lambda: (p('s_waitcnt vmcnt(8) lgkmcnt(0)'), p.lg_all(), lncheck(), p('s_barrier')))] + [x for x in R7.S[BG] if x[0] != 'bar']
    R7.stream(xn_load(0) + xn_load(1), BG + 2)
    R7.stream(xn_load(2), GA(1, 4, 0))
    R7.emit(p, put)
    if 'pp' not in opt: p.stamp('phase A done')
    NKS = 20
    mf = []
    for ks in range(NKS):
        for db in range(8):
            for c in range(4):
                acc = O(c, db)
                cc = '0' if ks == 0 else f'v[{acc}:{acc+3}]'
                mf.append(f'{MF} v[{acc}:{acc+3}], v[{vWF+4*db}:{vWF+4*db+3}], {xreg(ks, c)}, {cc}')
    R = Region(mf)
    G = lambda ks, db, c: ks*32 + db*4 + c
    p.wait_vm('XN0')
    put(('wlg', ['w0_0', 'w0_1']))
    R.S[G(3, 0, 3)].append(('bar', ['WQ2', 'WQ3', 'WQ8', 'WQ9', 'WQ4', 'WQ5', 'WQ6', 'WQ7']))
    for ch in range(9):
        R.stream(upd_w((ch + 1)*SL), G(2*ch + 1, 0, 1), G(2*ch + 1, 2, 0))
    for ks in range(NKS):
        for db in range(0, 8, 2):
            if ks == 0 and db == 0: continue
            R.place(('wlg', [f'w{ks}_{db}', f'w{ks}_{db+1}']), G(ks, db, 0) - 1, force=True)
        if ks: R.place(('wvm', f'XN{ks}'), G(ks, 0, 0) - 2, force=True)
    for ks in range(NKS - 1):
        ch, t = divmod(ks, 2); nxt = ks + 1; nch, nt = divmod(nxt, 2)
        for db in range(8):
            e = G(ks, db, 3)
            if t == 1: e = max(e, G(ks, 2, 1))
            rr = rd_w(db, nt, nch*SL, f'w{nxt}_{db}')
            lat = G(ks + 1, 0, 0) if t == 0 else None
            g = R.place(rr[0], e, lat); R.place(rr[1], g + 1 if t == 1 or db < 7 else g, lat)
    TE = 112
    STF = ''
    for o_ in opt:
        if o_.startswith('stf='): STF = o_[4:]
    sSt = sCtx
    epi = []
    sStB = sHbase
    for kind in range(2):
        for f in range(16):
            if kind == 0:
                tb, k4 = divmod(f, 4); a0 = KA(tb, 2*k4); off = tb*4096 + k4*1024; sr = S_KF
            else:
                b, db = divmod(f, 8); a0 = 128 + (b*16 + db*2)*4; off = b*8192 + db*1024; sr = S_VF
            for k in range(8): epi.append(('v', f'v_accvgpr_read_b32 v{TE+k}, a{a0+k}'))
            for k in range(4): epi.append(('v', f'v_cvt_pk_bf16_f32 v{TE+k}, v{TE+2*k}, v{TE+2*k+1}'))
            epi.append(('s', f's_add_u32 s{sSt}, s{sStB}, {off & ~4095}'))
            epi.append(('st', f'buffer_store_dwordx4 v[{TE}:{TE+3}], v{vLane16}, s[{sr}:{sr+3}], s{sSt} offen offset:{off & 4095} {STF}'))
            if 'nost' in opt: epi.pop()
            epi.append(('s', 's_nop 0'))
    KS_V = int(next((o_[3:] for o_ in opt if o_.startswith('kv=')), '17'))
    g0 = 12; span = G(KS_V, 4, 0) - g0
    gl = R.stream(epi, g0, None, pace=lambda k: g0 + (k*span)//len(epi))
    freed = {}
    for g in range(R.n):
        for it in R.V[g]:
            if it[1].startswith('v_accvgpr_read'): freed[int(it[1].split(' a')[-1])] = g
    gprev = 0
    for ks in range(3, NKS):
        t, b = XRING[ks % 8]
        if t == 'a' and ks < 8: e = max(freed[r] for r in range(b, b + 16)) + 1
        elif ks >= 8: e = G(ks - 8, 7, 3) + 1
        else: e = 0
        e = max(e, gprev + 1, G(max(ks - 7, 0), 0, 0))
        lat = G(ks, 0, 0) - 40 if ks > 3 else G(1, 0, 0)
        gprev = R.stream(xn_load(ks), e, max(lat, e + 8))
    FK, FV = 4096, 5120
    def publish(off, lab, waitlabel):
        p.wait_vm(waitlabel)
        p('s_barrier')
        p(f's_cmp_lg_u32 s{sW}, 0')
        p(f's_cbranch_scc1 {name}_{lab}pub')
        p(f's_cmp_eq_u32 s{sSame}, 1')
        p(f's_cbranch_scc1 {name}_{lab}rel')
        p('buffer_wbl2 sc1')
        p('s_waitcnt vmcnt(0)')
        p.label(f'{name}_{lab}rel')
        p(f's_lshl_b32 s14, s{sH}, 3')
        p(f's_add_u32 s14, s14, s{sI}')
        p(f's_lshl_b32 s14, s14, 2')
        p(f's_add_u32 s14, s14, {off}')
        p(f'v_mov_b32 v12, s{sTag}')
        p('v_mov_b32 v13, 0')
        p(f'buffer_store_dword v12, v13, s[{S_FL}:{S_FL+3}], s14 offen sc1')
        p.label(f'{name}_{lab}pub')
    def flag_load(off, lab):
        return [('s', f's_lshl_b32 s15, s{sH}, 5'), ('s', f's_add_u32 s15, s15, {off}'),
                ('v', 'v_and_b32 v13, 7, v0'), ('v', 'v_lshlrev_b32 v13, 2, v13'),
                ('l', f'buffer_load_dword v12, v13, s[{S_FL}:{S_FL+3}], s15 offen sc1', lab)]
    def check(lab, waitlabel):
        p.wait_vm(waitlabel, 'lgkmcnt(0)'); p.lg_all()
        p(f's_cmp_lg_u32 s{sW}, 0')
        p(f's_cbranch_scc1 {name}_{lab}ok')
        p('s_mov_b32 s14, 0')
        p.label(f'{name}_{lab}poll')
        p(f'v_cmp_ne_u32 vcc, s{sTag}, v12')
        p('s_add_u32 s14, s14, 1')
        p(f's_cbranch_vccz {name}_{lab}ok2')
        p(f's_cmp_ge_u32 s14, {SPIN}')
        p(f's_cbranch_scc1 {name}_{lab}ok2')
        p(f'buffer_load_dword v12, v13, s[{S_FL}:{S_FL+3}], s15 offen sc1')
        p('s_waitcnt vmcnt(0)')
        p(f's_branch {name}_{lab}poll')
        p.label(f'{name}_{lab}ok2')
        p(f's_cmp_eq_u32 s{sSame}, 1')
        p(f's_cbranch_scc1 {name}_{lab}ok')
        p('buffer_inv sc1')
        p('s_waitcnt vmcnt(0)')
        p.label(f'{name}_{lab}ok')
        p('s_barrier')
    def att_state():
        p(f's_lshl_b32 s{sKb}, s{sH}, 19')
        p(f's_add_u32 s{sKb}, s{sKb}, s{sLW}')
        p(f's_mov_b32 s{sVb}, s{sKb}')
    def unitK(slot, label):
        L = [('s', f's_add_u32 m0, s{sLW}, {slot*32768}')]
        for i in range(4): L.append(('m', f'buffer_load_dwordx4 v{vLane16}, s[{S_KF}:{S_KF+3}], s{sKb} offen offset:{1024*i} lds', label, None))
        return L + [('s', f's_add_u32 s{sKb}, s{sKb}, 16384')]
    def unitV(slot, label):
        L = [('s', f's_add_u32 m0, s{sLW}, {slot*32768 + SL}')]
        for i in range(4): L.append(('m', f'buffer_load_dwordx4 v{vLane16}, s[{S_VF}:{S_VF+3}], s{sVb} offen offset:{1024*i} lds', label, None))
        return L + [('s', f's_add_u32 s{sVb}, s{sVb}, 16384')]
    def dma_K(label, tagbase=None):
        L = [('s', f's_mov_b32 m0, s{sSlotP}')]
        for i in range(4):
            L.append(('m', f'buffer_load_dwordx4 v{vLane16}, s[{S_KF}:{S_KF+3}], s{sKb} offen offset:{1024*i} lds', label, None))
        L += [('s', f's_add_u32 s{sKb}, s{sKb}, 16384')]
        return L
    def dma_V(label, tagbase=None):
        L = [('s', f's_add_u32 m0, s{sSlotP}, {SL}')]
        for i in range(4):
            L.append(('m', f'buffer_load_dwordx4 v{vLane16}, s[{S_VF}:{S_VF+3}], s{sVb} offen offset:{1024*i} lds', label, None))
        L += [('s', f's_add_u32 s{sVb}, s{sVb}, 16384')]
        return L
    adv_slot = [('s', f's_add_u32 s{sSlotP}, s{sSlotP}, 32768'), ('s', f's_cmp_ge_u32 s{sSlotP}, {NSLOT*32768}\ns_cselect_b32 s{sSlotP}, s{sLW}, s{sSlotP}')]
    R.emit(p, put)
    print('fused qproj overflow', R.over, 'est', R.total())
    if 'pp' not in opt: p.stamp('q end')
    p(f's_mov_b32 s{sFlag}, 0')
    p(f's_mov_b32 s{sLim}, {hex(LIM)}')
    def touch_setup():
        p(f's_load_dwordx2 s[92:93], s[0:1], {ARG["wo"]}')
        p(f's_load_dwordx2 s[94:95], s[0:1], {ARG["wg"]}')
        p(f's_load_dwordx2 s[96:97], s[0:1], {ARG["wu"]}')
        p(f's_load_dwordx2 s[98:99], s[0:1], {ARG["wd"]}')
        p('s_lshl_b32 s14, s2, 2')
        p(f's_add_u32 s14, s14, s{sW}')
        p('s_mul_i32 s14, s14, 40')
        p('v_min_u32 v14, 39, v0')
        p('v_add_u32 v14, s14, v14')
        p('v_lshlrev_b32 v14, 7, v14')
        p('s_lshr_b32 s14, s2, 6')
        p('s_lshl_b32 s14, s14, 2')
        p(f's_and_b32 s15, s{sI}, 3')
        p('s_add_u32 s14, s14, s15')
        p('s_lshl_b32 s14, s14, 3')
        p('s_and_b32 s15, s2, 7')
        p('s_add_u32 s14, s14, s15')
        p('s_lshl_b32 s14, s14, 2')
        p(f's_add_u32 s14, s14, s{sW}')
        p('s_mul_i32 s14, s14, 34')
        p('v_min_u32 v15, 33, v0')
        p('v_add_u32 v15, s14, v15')
        p('v_min_u32 v15, 17279, v15')
        p('v_lshlrev_b32 v15, 7, v15')
        p('s_waitcnt lgkmcnt(0)')
    touch_items = [('l', 'global_load_dword v13, v14, s[92:93]', 'T'), ('l', 'global_load_dword v13, v15, s[94:95]', 'T'),
                   ('l', 'global_load_dword v13, v15, s[96:97]', 'T'), ('l', 'global_load_dword v13, v15, s[98:99]', 'T')]
    att_state()
    touch_setup()
    publish(FK, 'k', 'st')
    for it in flag_load(FK, 'KFL'): put(it)
    p.stamp('pub done')
    p('s_nop 7')
    for c in range(4):
        for ks in range(4):
            a0 = O(c, 2*ks)
            for k in range(4): p(f'v_cvt_pk_bf16_f32 v{a0+k}, v{a0+2*k}, v{a0+2*k+1}')
            for k in range(4): p(f'v_accvgpr_write_b32 a{aQ + 16*c + 4*ks + k}, v{a0+k}')
    p(f'v_mov_b32 v{vT}, 0x3f803f80')
    for k in range(4): p(f'v_accvgpr_write_b32 a{128+k}, v{vT}')
    p(f'v_and_b32 v{vT}, 15, v0')
    p(f'v_lshrrev_b32 v{vT+1}, 4, v0')
    p(f'v_lshlrev_b32 v{vT+1}, 2, v{vT+1}')
    p(f'v_sub_u32 v{vT}, v{vT}, v{vT+1}')
    for r in range(4): p(f'v_cmp_le_i32 s[{sM+2*r}:{sM+2*r+1}], {r}, v{vT}')
    p(f'v_mov_b32 v{vNinf}, {hex(NEGBIG)}')
    for r in range(16): p(f'v_mov_b32 v{vNeg+r}, 0')
    for c in range(4): p(f'v_mov_b32 v{vL+c}, 0')
    for r in range(64): p(f'v_mov_b32 v{vO+r}, 0')
    p.stamp('pre check')
    check('k', 'KFL')
    emit(unitK(0, 'U-1') + unitK(1, 'U0') + unitV(1, 'U0'))
    p.stamp('kv ok')
    nerr = 0

    def rdK(b, f):  return ('r', f'ds_read_b128 a[{aK+4*f}:{aK+4*f+3}], v{vRd} offset:{b*8192 + f*1024}', f'K{f}')
    def rdV(b, f):  return ('r', f'ds_read_b128 a[{aV+4*f}:{aV+4*f+3}], v{vRd} offset:{16384 + b*8192 + f*1024}', f'V{f}')
    def qk_mfmas(cols, sbase, cin):
        L = []
        for i, c in enumerate(cols):
            for kb in range(2):
                S = Sr(sbase + i, kb)
                for ks in range(4):
                    cc = cin(c, kb) if ks == 0 else S
                    L.append(f'{MF} v[{S}:{S+3}], a[{aK+4*(kb*4+ks)}:{aK+4*(kb*4+ks)+3}], a[{aQ+16*c+4*ks}:{aQ+16*c+4*ks+3}], v[{cc}:{cc+3}]')
        return L
    def pv_mfmas(cols, par, first=False):
        L = []
        for c in cols:
            for db in range(8):
                o = O(c, db)
                cc = '0' if first else f'v[{o}:{o+3}]'
                L.append(f'{MF} v[{o}:{o+3}], a[{aV+4*db}:{aV+4*db+3}], v[{Pr(par, c)}:{Pr(par, c)+3}], {cc}')
        return L
    aOne = 128
    Lm = lambda c: vP + 8 + 4*c
    def sum_mfmas(cols, par):
        return [f'{MF} v[{Lm(c)}:{Lm(c)+3}], a[{aOne}:{aOne+3}], v[{Pr(par, c)}:{Pr(par, c)+3}], v[{Lm(c)}:{Lm(c)+3}]' for c in cols]
    def sm_window_ns(c, sslot, par):
        S = vS + 8*sslot; P = Pr(par, c); W = []
        for k in range(4):
            e0, e1 = vE + (2*k) % 4, vE + (2*k + 1) % 4
            W += [[f'v_exp_f32 v{e0}, v{S+2*k}'], [f'v_exp_f32 v{e1}, v{S+2*k+1}'],
                  [f'v_cvt_pk_bf16_f32 v{P+k}, v{e0}, v{e1}'], []]
        return W
    def sm_window(c, sslot, par):
        S = vS + 8*sslot; P = Pr(par, c); W = []
        for k in range(4):
            e0, e1 = vE + (2*k) % 4, vE + (2*k + 1) % 4
            W += [[f'v_exp_f32 v{e0}, v{S+2*k}'], [f'v_exp_f32 v{e1}, v{S+2*k+1}'],
                  [f'v_add_f32 v{vL+c}, v{vL+c}, v{e0}'],
                  [f'v_add_f32 v{vL+c}, v{vL+c}, v{e1}', f'v_cvt_pk_bf16_f32 v{P+k}, v{e0}, v{e1}']]
        return W
    cin_neg = lambda c, kb: vNeg + 4*c
    def cin_mask(tile_cols):
        def f(c, kb):
            if c in tile_cols: return vCi + 8*(c - tile_cols[0]) + 4*kb
            return vNeg + 4*c
        return f
    def mask_ops(tile_cols):
        c0 = tile_cols[0]
        L = [('s', f's_cmp_lt_i32 s{sDd}, 0\ns_cselect_b64 s[14:15], -1, 0'),
             ('s', f's_cmp_eq_u32 s{sDd}, 0\n' + '\n'.join(f's_cselect_b64 s[{4+2*r}:{5+2*r}], s[{sM+2*r}:{sM+2*r+1}], s[14:15]' for r in range(4))),
             ('s', f's_cmp_le_i32 s{sDd}, 0\ns_cselect_b64 s[12:13], -1, 0')]
        for cb in range(2):
            for kb in range(2):
                for r in range(4):
                    m = 4 + 2*r if cb == kb else (12 if (cb == 1 and kb == 0) else 14)
                    L.append(('v', f'v_cndmask_b32 v{vCi + 8*cb + 4*kb + r}, v{vNinf}, v{vNeg + 4*(c0 + cb) + r}, s[{m}:{m+1}]'))
        return L
    LC, SC = [0, 1], [2, 3]
    def build_group(mf, windows, reads, dmas=(), extra=(), pre_wait=None, mid_wait=None, nwin=None):
        R = Region(mf)
        n = len(mf)
        for (g0, W) in windows:
            for i, ops in enumerate(W):
                for o in ops: R.place(('v', o), g0 + i, force=True)
        slots = [g for g in range(n) if g % 4 == 2]
        if len(slots) < len(reads): slots = sorted(slots + [g for g in range(n) if g % 4 == 3])
        if n == 16 or nwin == 16: slots = [g for g in range(16) if g % 4 in (2, 3)]
        for it, g in zip(reads, slots): R.place(it, g, force=True)
        if dmas:
            free = [g for g in range(n) if not R.M[g]]
            pref = [g for g in free if g >= 16 and nwin == 16] + [g for g in free if g % 4 == 3 and not (g >= 16 and nwin == 16)] + [g for g in free if g % 4 == 1] + [g for g in free if g % 4 in (0, 2)]
            nm = sum(1 for x in dmas if x[0] == 'm')
            use = sorted([g for g in pref if g >= 1][:nm])
            k = 0; pend_s = []
            for it in dmas:
                if it[0] == 's': pend_s.append(it)
                else:
                    g = use[k]; k += 1
                    for j, sx in enumerate(pend_s):
                        gg = max(0, g - len(pend_s) + j)
                        if k > 1: gg = max(gg, use[k-2] + 1) if use[k-2] + 1 <= g - 1 or ' m0,' not in sx[1] else gg
                        if gg == g and ' m0,' in sx[1]: R.place(('s', 's_nop 0'), g, force=True) if False else None
                        R.place(sx, gg, force=True)
                    pend_s = []
                    R.place(it, g, force=True)
            for j, sx in enumerate(pend_s):
                gg = use[-1] + 1 + j
                if gg <= n - 1: R.place(sx, gg, force=True)
                else: R.T[n - 1].append(sx)
        if extra:
            g = 0
            for it in extra:
                best = None
                for gg in range(g, n - 1):
                    if R.fits(gg, it): best = gg; break
                if best is None:
                    best = g
                R.place(it, best, force=True); g = best
        if mid_wait: R.place(mid_wait[1], mid_wait[0], force=True)
        return R
    slot_adv = [('s', f's_add_u32 s{sSlotR}, s{sSlotR}, 32768'), ('s', f's_cmp_ge_u32 s{sSlotR}, {NSLOT*32768}\ns_cselect_b32 s{sSlotR}, 0, s{sSlotR}')]
    def start_items(R):
        pre = []
        if 'nodma' not in opt: pre.append(('w', 's_waitcnt vmcnt(16)'))
        if 'nobar' not in opt: pre.append(('w', 's_barrier'))
        R.S[0] = pre + R.S[0]
    def end_items(R, loop=None):
        n = R.n
        for j, it in enumerate(slot_adv): R.S[4 + 4*j if n > 16 else 1 + 4*j].append(it) if False else None
        g0 = 8
        for j, it in enumerate(slot_adv): R.S[g0 + j].append(it)
        R.V[n - 1].append(('v', f'v_add_u32 v{vRd}, s{sSlotR}, v{vLane16}'))
        if loop:
            R.S[n - 3].append(('s', f's_sub_u32 s{sCnt}, s{sCnt}, 1'))
            R.T[n - 1].append(('s', f's_cmp_lg_u32 s{sCnt}, 0'))
    def emit_group(R, pre):
        if pre and 'nords' not in opt:
            put(('wlg', [f'{pre}{f}' for f in range(4)]))
            R.S[3].insert(0, ('wlg', [f'{pre}{f}' for f in range(4, 8)]))
        if 'nosm' in opt:
            for g in range(R.n): R.V[g] = []
        if 'noexp' in opt:
            for g in range(R.n): R.V[g] = [(x[0], x[1].replace('v_exp_f32', 'v_mov_b32')) for x in R.V[g]]
        if 'nodma' in opt:
            for g in range(R.n): R.M[g] = [x for x in R.M[g] if x[0] != 'm']
        if 'nords' in opt:
            for g in range(R.n):
                R.M[g] = [x for x in R.M[g] if x[0] != 'r']; R.S[g] = [x for x in R.S[g] if x[0] != 'wlg']
            pre = None; R.S[3] = [x for x in R.S[3] if x[0] != 'wlg']
        R.emit(p, put)
    stats = {'cyc': 0}
    def interval(kind, lbl, maskL=None, maskS=None, loop=False):
        dual = kind in ('D', 'T')
        mA, mB, mN = (maskS if dual else maskL) or (False, False, False)
        tile = SC if dual else LC
        p.lgq = ['K%d' % f for f in range(8)]; p.lg_ret = -1
        tot = 0
        if dual:
            cols = [0, 1, 2, 3]
            R1 = build_group(qk_mfmas(cols, 0, cin_mask(SC) if mA else cin_neg),
                             [(0, sm_window(3, 3, 0)), (16, sm_window(0, 0, 1))], [rdV(0, f) for f in range(8)], dma_K('x'),
                             mid_wait=None)
            start_items(R1)
            if lbl == 'db':
                g_ = 1
                for it in touch_items:
                    while R1.M[g_]: g_ += 1
                    R1.M[g_].append(it); g_ += 3
            emit_group(R1, 'K')
            ex = ([('s', f's_add_u32 s{sDd}, s{sDd}, 1')] + mask_ops(SC if kind == 'D' else LC)) if mB else []
            if kind == 'T': ex = mask_ops(LC)
            R2 = build_group(pv_mfmas(cols, 0), [(0, sm_window(1, 1, 1)), (16, sm_window(2, 2, 1))], [rdK(0, f) for f in range(8)], extra=ex)
            if kind == 'T':
                emit([('s', f's_sub_u32 s{sDd}, s{sTS}, s{sTL}'), ('s', f's_lshl_b32 s{sDd}, s{sDd}, 2'), ('s', f's_add_u32 s{sDd}, s{sDd}, 4'), ('s', f's_sub_u32 s{sDd}, s{sDd}, s{sW}')])
            emit_group(R2, 'V')
            if kind == 'D':
                R3 = build_group(qk_mfmas(cols, 0, cin_mask(SC) if mB else cin_neg),
                                 [(0, sm_window(3, 3, 1)), (16, sm_window(0, 0, 0))], [rdV(1, f) for f in range(8)], dma_V('x') + adv_slot)
                emit_group(R3, 'K')
                ex = ([('s', f's_add_u32 s{sDd}, s{sDd}, 1')] + mask_ops(SC)) if mN else []
                R4 = build_group(pv_mfmas(cols, 1), [(0, sm_window(1, 1, 0)), (16, sm_window(2, 2, 0))], [rdK(1, f) for f in range(8)], extra=ex)
                end_items(R4, loop)
                emit_group(R4, 'V')
            else:
                R3 = build_group(qk_mfmas(LC, 0, cin_mask(LC)), [(0, sm_window(3, 3, 1))], [rdV(1, f) for f in range(8)], dma_V('x') + adv_slot)
                emit_group(R3, 'K')
                ex = ([('s', f's_add_u32 s{sDd}, s{sDd}, 1')] + mask_ops(LC))
                ex = [('v', f'v_mov_b32 v{Lm(c)+r}, 0') for c in LC for r in range(4)] + ex
                R4 = build_group(pv_mfmas(cols, 1), [(0, sm_window_ns(0, 0, 0))], [rdK(1, f) for f in range(8)], extra=ex)
                end_items(R4)
                emit_group(R4, 'V')
            tot = R1.total() + R2.total() + R3.total() + R4.total()
        else:
            dK = dma_K('x'); dV = dma_V('x') + adv_slot
            R1 = build_group(qk_mfmas(LC, 2, cin_mask(LC) if mA else cin_neg), [(0, sm_window_ns(1, 1, 0))], [rdV(0, f) for f in range(8)])
            start_items(R1)
            emit_group(R1, 'K')
            ex = ([('s', f's_add_u32 s{sDd}, s{sDd}, 1')] + mask_ops(LC)) if mB else []
            rk = [rdK(0, f) for f in range(8)] if kind != 'E' else []
            R2 = build_group(pv_mfmas(LC, 0) + sum_mfmas(LC, 0), [(0, sm_window_ns(0, 2, 1))], rk, dK, extra=ex, nwin=16)
            emit_group(R2, 'V')
            if kind != 'E':
                R3 = build_group(qk_mfmas(LC, 0, cin_mask(LC) if mB else cin_neg), [(0, sm_window_ns(1, 3, 1))], [rdV(1, f) for f in range(8)])
                emit_group(R3, 'K')
                ex = ([('s', f's_add_u32 s{sDd}, s{sDd}, 1')] + mask_ops(LC)) if mN else []
                R4 = build_group(pv_mfmas(LC, 1) + sum_mfmas(LC, 1), [(0, sm_window_ns(0, 0, 0))], [rdK(1, f) for f in range(8)], dV, extra=ex, nwin=16)
                end_items(R4, loop)
                emit_group(R4, 'V')
                tot = R1.total() + R2.total() + R3.total() + R4.total()
            else:
                for f in range(8): put(rdV(1, f))
                emit(dV)
                for ops in sm_window_ns(1, 3, 1):
                    for o in ops: p(o)
                    if len(ops) == 1 and ops[0].startswith('v_exp'): p('s_nop 0')
                p('s_waitcnt lgkmcnt(0)')
                p('s_nop 1')
                for m in pv_mfmas(LC, 1) + sum_mfmas(LC, 1): p(m)
        if tot: print(f'  interval {lbl}: est {tot} cycles for', 128 if kind == 'D' else (112 if kind == 'T' else 64), 'mfma')

    def emit_prefetch():
        vA, vD = 10, 250
        p(f's_cmp_lt_u32 s{sI}, 4')
        p(f's_cbranch_scc1 {name}_npf')
        p(f's_load_dwordx2 s[66:67], s[0:1], {ARG["wo"]}')
        p('s_waitcnt lgkmcnt(0)')
        p(f's_lshr_b32 s{sT0}, s2, 6')
        p(f's_lshl_b32 s{sT0}, s{sT0}, 2')
        p(f's_add_u32 s{sT0}, s{sT0}, s{sI}')
        p(f's_sub_u32 s{sT0}, s{sT0}, 4')
        p(f's_and_b32 s{sT1}, s2, 7')
        p(f's_lshr_b32 s{sT1}, s{sT1}, 1')
        p(f's_mul_i32 s{sT1}, s{sT1}, 1310720')
        p(f's_mul_i32 s{sT2}, s{sT0}, {640*128}')
        p(f's_add_u32 s{sT1}, s{sT1}, s{sT2}')
        p(f's_mul_i32 s{sT2}, s{sW}, {160*128}')
        p(f's_add_u32 s{sT1}, s{sT1}, s{sT2}')
        for i in range(3):
            p(f'v_add_u32 v{vA}, {64*i}, v0')
            p(f'v_min_u32 v{vA}, 159, v{vA}')
            p(f'v_lshlrev_b32 v{vA}, 7, v{vA}')
            p(f'v_add_u32 v{vA}, s{sT1}, v{vA}')
            p(f'global_load_dword v{vD}, v{vA}, s[66:67]')
        p.label(f'{name}_npf')
    def row_reduce(reg, op, tmp):
        for sw in ('v_permlane16_swap_b32', 'v_permlane32_swap_b32'):
            p(f'v_mov_b32 v{tmp}, v{reg}')
            p('s_nop 1')
            p(f'{sw} v{reg}, v{tmp}')
            p('s_nop 1')
            p(f'{op} v{reg}, v{reg}, v{tmp}')
    def epilogue(cols, sTile, flagbit):
        p('s_nop 7')
        for c in cols: row_reduce(vL + c, 'v_add_f32', vU)
        if cols == LC:
            for c in cols: p(f'v_add_f32 v{vL+c}, v{vL+c}, v{Lm(c)}')
        p(f'v_max_f32 v{vU}, v{vL+cols[0]}, v{vL+cols[1]}')
        p(f'v_cmp_nle_f32 vcc, v{vU}, v{vU+1}'.replace(f'v{vU+1}', f'v{vU+1}') if False else f'v_cmp_nge_f32 vcc, s{sLim}, v{vU}')
        p('s_nop 1')
        p(f's_cmp_lg_u64 vcc, 0')
        p(f's_cselect_b32 s{sT0}, {flagbit}, 0')
        p(f's_or_b32 s{sFlag}, s{sFlag}, s{sT0}')
        for c in cols: p(f'v_rcp_f32 v{vL+c}, v{vL+c}')
        store_ctx(cols, sTile)
    def store_ctx(cols, sTile):
        p(f's_lshl_b32 s{sCtx}, s{sTile}, 3')
        p(f's_lshl_b32 s{sT0}, s{sW}, 1')
        p(f's_add_u32 s{sCtx}, s{sCtx}, s{sT0}')
        p(f's_lshl_b32 s{sCtx}, s{sCtx}, 5')
        p(f's_add_u32 s{sCtx}, s{sCtx}, s{sH}')
        p(f's_lshl_b32 s{sCtx}, s{sCtx}, 12')
        p(f's_add_u32 s{sT1}, s{sCtx}, {32*4096}')
        for i, c in enumerate(cols):
            for ks in range(4):
                o = O(c, 2*ks)
                for k in range(8): p(f'v_mul_f32 v{o+k}, v{o+k}, v{vL+c}')
                for k in range(4): p(f'v_cvt_pk_bf16_f32 v{o+k}, v{o+2*k}, v{o+2*k+1}')
                p(f'buffer_store_dwordx4 v[{o}:{o+3}], v{vLane16}, s[{S_CTX}:{S_CTX+3}], s{sCtx if i == 0 else sT1} offen offset:{ks*1024} {CTX_FLAGS}')

    p(f's_mov_b32 s{sSlotR}, 0')
    p(f'v_mov_b32 v{vRd}, v{vLane16}')
    for r in range(64, 128): p(f'v_mov_b32 v{vO+r}, 0')
    p(f's_lshl_b32 s{sDd}, s{sTS}, 2')
    p(f's_add_u32 s{sDd}, s{sDd}, s{sW}')
    p(f's_sub_u32 s{sDd}, 0, s{sDd}')
    emit(mask_ops(SC))
    p.wait_vm('U-1')
    p('s_barrier')
    p.stamp('U-1 ready')
    p.lgq = []; p.lg_ret = -1
    for f in range(8): put(rdK(0, f))
    p('s_waitcnt lgkmcnt(0)')
    q0 = qk_mfmas([0, 1, 2, 3], 0, cin_mask(SC))
    rest = unitK(2, 'U1') + unitV(2, 'U1')
    Rq = Region(q0)
    spread(Rq, rest, 0, 31)
    Rq.emit(p, put)
    p(f's_add_u32 s{sSlotP}, s{sLW}, {4*32768}')
    p.stamp('qk0 done')
    for f in range(8): put(rdK(1, f))
    for step in range(4):
        for c in range(4):
            S = vS + 8*c; t = vU + c
            if step == 0: p(f'v_max3_f32 v{t}, v{S}, v{S+1}, v{S+2}')
            elif step == 1: p(f'v_max3_f32 v{t}, v{t}, v{S+3}, v{S+4}')
            elif step == 2: p(f'v_max3_f32 v{t}, v{t}, v{S+5}, v{S+6}')
            else: p(f'v_max_f32 v{t}, v{t}, v{S+7}')
    for sw in ('v_permlane16_swap_b32', 'v_permlane32_swap_b32'):
        for c in range(4): p(f'v_mov_b32 v{vU+4+c}, v{vU+c}')
        for c in range(4): p(f'{sw} v{vU+c}, v{vU+4+c}')
        p('s_nop 0')
        for c in range(4): p(f'v_max_f32 v{vU+c}, v{vU+c}, v{vU+4+c}')
    for r in range(8):
        for c in range(4): p(f'v_sub_f32 v{vS+8*c+r}, v{vS+8*c+r}, v{vU+c}')
    for c in range(4):
        for r in range(4): p(f'v_sub_f32 v{vNeg+4*c+r}, 0, v{vU+c}')
    def run_window(W):
        for ops in W:
            for o in ops: p(o)
            if len(ops) == 1 and ops[0].startswith('v_exp'): p('s_nop 0')
    u2 = unitK(3, 'U2') + unitV(3, 'U2')
    for r in range(8):
        for c in range(3): p(f'v_exp_f32 v{vS+8*c+r}, v{vS+8*c+r}')
        while u2:
            it = u2.pop(0)
            put(it)
            if it[0] == 'm': break
            if ' m0,' in it[1]: p('s_nop 0')
    for it in u2: put(it)
    p('s_nop 0')
    for r in range(8):
        for c in range(3): p(f'v_add_f32 v{vL+c}, v{vL+c}, v{vS+8*c+r}')
    for k in range(4):
        for c in range(3): p(f'v_cvt_pk_bf16_f32 v{Pr(0, c)+k}, v{vS+8*c+2*k}, v{vS+8*c+2*k+1}')
    p(f's_mov_b32 s{sSlotR}, 32768')
    p(f'v_add_u32 v{vRd}, s{sSlotR}, v{vLane16}')
    if 'pp' not in opt: p.stamp('attn prologue done')
    p(f's_cmp_eq_u32 s{sTS}, 0')
    p(f's_cbranch_scc1 {name}_t0')
    p(f's_lshl_b32 s{sCnt}, s{sTS}, 1')
    p(f's_sub_u32 s{sCnt}, s{sCnt}, 1')
    p.label(f'{name}_dn')
    interval('D', f'dn', loop=True)
    p(f's_cbranch_scc1 {name}_dn')
    p(f's_sub_u32 s{sDd}, -1, s{sW}')
    interval('D', 'da', maskS=(False, True, True))
    p(f's_branch {name}_db')
    p.label(f'{name}_t0')
    p(f's_sub_u32 s{sDd}, 1, s{sW}')
    emit(mask_ops(SC))
    p('s_nop 1')
    p.label(f'{name}_db')
    interval('D', 'db', maskS=(True, True, True))
    interval('T', 'dc', maskS=(True, False, False))
    epilogue(SC, sTS, 2)
    p(f's_cmp_lt_u32 s{sI}, 6')
    p(f's_cbranch_scc1 {name}_nffn')
    p('s_lshr_b32 s14, s2, 6')
    p('s_lshl_b32 s14, s14, 1')
    p(f's_add_u32 s14, s14, s{sI}')
    p('s_sub_u32 s14, s14, 6')
    p('s_lshl_b32 s14, s14, 3')
    p('s_and_b32 s15, s2, 7')
    p(f's_add_u32 s{sT2}, s14, s15')
    p(f's_cmp_ge_u32 s{sT2}, 54')
    p(f's_cbranch_scc1 {name}_nffn')
    p(f's_load_dwordx2 s[4:5], s[0:1], {ARG["wg"]}')
    p(f's_load_dwordx2 s[8:9], s[0:1], {ARG["wu"]}')
    p(f's_load_dwordx2 s[12:13], s[0:1], {ARG["wd"]}')
    p('v_lshrrev_b32 v10, 2, v0')
    p('v_mul_u32_u24 v10, 3456, v10')
    p('v_and_b32 v11, 3, v0')
    p('v_lshl_add_u32 v10, v11, 4, v10')
    p('s_waitcnt lgkmcnt(0)')
    for sr, sz in ((4, 640*1728*2), (8, 640*1728*2), (12, 1728*640*2)):
        p(f's_mov_b32 s{sr+2}, {sz}'); p(f's_mov_b32 s{sr+3}, 0x00020000')
    p(f's_mul_i32 s{sT0}, s{sW}, {160*3456}')
    p(f's_lshl_b32 s{sT1}, s{sT2}, 6')
    p(f's_add_u32 s{sT0}, s{sT0}, s{sT1}')
    for i in range(10):
        for mat, sr in enumerate((4, 8)):
            r = 132 + (mat*10 + i)*4
            p(f'buffer_load_dwordx4 a[{r}:{r+3}], v10, s[{sr}:{sr+3}], s{sT0} offen')
        p(f's_add_u32 s{sT0}, s{sT0}, {16*3456}')
    p(f's_mul_i32 s{sT0}, s{sT2}, {32*1280}')
    p(f's_mul_i32 s{sT1}, s{sW}, 10240')
    p(f's_add_u32 s{sT0}, s{sT0}, s{sT1}')
    for i in range(10):
        r = 132 + (20 + i)*4
        p(f'buffer_load_dwordx4 a[{r}:{r+3}], v{vLane16}, s[12:15], s{sT0} offen offset:{(i % 4)*1024}')
        if i % 4 == 3: p(f's_add_u32 s{sT0}, s{sT0}, 4096')
    p.label(f'{name}_nffn')
    p.lgq = ['K%d' % f for f in range(8)]; p.lg_ret = 7
    if 'pp' not in opt: (p.stamp('S done') if 'pq' not in opt else None)
    p(f's_sub_u32 s{sCnt}, s{sTL}, s{sTS}')
    p(f's_cmp_eq_u32 s{sCnt}, 1')
    p(f's_cbranch_scc1 {name}_sb')
    p(f's_lshl_b32 s{sCnt}, s{sCnt}, 1')
    p(f's_sub_u32 s{sCnt}, s{sCnt}, 3')
    p.label(f'{name}_sn')
    interval('S', 'sn', loop=True)
    p(f's_cbranch_scc1 {name}_sn')
    p(f's_sub_u32 s{sDd}, -1, s{sW}')
    interval('S', 'sa', maskL=(False, True, True))
    p.label(f'{name}_sb')
    interval('S', 'sb', maskL=(True, True, True))
    interval('E', 'sc', maskL=(True, False, False))
    epilogue(LC, sTL, 1)
    p.stamp('L done')
    p(f's_cmp_eq_u32 s{sFlag}, 0')
    p(f's_cbranch_scc1 {name}_fin')
    fallback(p, name, locals())
    p.label(f'{name}_fin')
    def ctx_publish():
        p('s_waitcnt vmcnt(0) lgkmcnt(0)')
        p('s_barrier')
        p(f's_cmp_lg_u32 s{sW}, 0')
        p(f's_cbranch_scc1 {name}_cpub')
        p(f's_lshl_b32 s14, s2, 2')
        p(f's_add_u32 s14, s14, 6144')
        p(f'v_mov_b32 v20, s{sTag}')
        p('v_mov_b32 v21, 0')
        p(f'buffer_store_dword v20, v21, s[{S_FL}:{S_FL+3}], s14 offen sc1')
        p.label(f'{name}_cpub')
        p.stamp('ctx pub')
    import kt
    nerr += kt.gen_kt(name + '_t', p, prof, opt, ctx_publish)
    p.label(f'{name}_done')
    p('s_endpgm')
    def mk_policy(t0, nd, skip_s, ns, fb, wave0):
        def pol(ins, n):
            t = ins.args[0]
            if t.endswith('_done'): return False
            if t.endswith('_stageA'): return n % 3 != 0
            if t in (name + '_noln0', name + '_noln1'): return False
            if t in (name + '_notag', name + '_kvpub'): return not wave0
            if t == name + '_notag2': return True
            if t == name + '_nffn': return not wave0
            if t == name + '_cpub': return not wave0
            if t.startswith(name + '_t'):
                if '_poll' in t and t.endswith('_ok'): return True
                u = t[len(name) + 2:]
                if u in ('_w123', '_w1', '_nosig', '_w4', '_w5', '_cw'): return not wave0
                return False
            if t == name + '_nz': return True
            if t == name + '_nocode': return False
            if t == name + '_nopub': return True
            if t in (name + '_lnok', name + '_kok', name + '_vok', name + '_kpub', name + '_vpub'): return not wave0
            if t in (name + '_lnok2', name + '_kok2', name + '_vok2', name + '_krel', name + '_vrel'): return True
            if t.endswith('_t0'): return t0
            if t.endswith('_dn'): return (n % nd) != 0
            if t.endswith('_sb'): return skip_s
            if t.endswith('_sn'): return (n % ns) != 0
            if t.endswith('_fin'): return not fb
            if t.endswith('_fbloop'): return n % 3 != 0
            return False
        return pol
    for cfg in ([(False, 3, False, 3, False, True), (True, 2, False, 2, True, False), (False, 2, True, 2, False, True)] if (not opt or opt[0] in ('pp', 'pq', 'tl', 'tr') or opt[0].startswith('kv=')) and not any(o_.endswith('A') for o_ in opt) else []):
        seq = trace(p, mk_policy(*cfg))
        nerr += len(check_linear(seq, name + str(cfg)))
    return p, nerr

def fallback(p, name, L):
    g = L
    vS, vP, vE, vL, vU, vNeg, vCi, vO = g['vS'], g['vP'], g['vE'], g['vL'], g['vU'], g['vNeg'], g['vCi'], g['vO']
    aQ, aK, aV, vLane16, vNinf = g['aQ'], g['aK'], g['aV'], g['vLane16'], g['vNinf']
    S_KF, S_VF = g['S_KF'], g['S_VF']
    sFlag, sTL, sTS, sW, sH, sDd, sCnt, sT0, sT1, sT2 = (g[k] for k in ('sFlag', 'sTL', 'sTS', 'sW', 'sH', 'sDd', 'sCnt', 'sT0', 'sT1', 'sT2'))
    O = g['O']; mask_ops = g['mask_ops']; qk_mfmas = g['qk_mfmas']; pv_mfmas = g['pv_mfmas']; row_reduce = g['row_reduce']; store_ctx = g['store_ctx']
    put = g['put']
    p('s_waitcnt vmcnt(0) lgkmcnt(0)')
    for cols, sTile, bit, nm in (([2, 3], sTS, 2, 'S'), ([0, 1], sTL, 1, 'L')):
        p(f's_and_b32 s{sT0}, s{sFlag}, {bit}')
        p(f's_cmp_eq_u32 s{sT0}, 0')
        p(f's_cbranch_scc1 {name}_fbskip{nm}')
        for c in cols:
            p(f'v_mov_b32 v{vL+c}, 0')
            for r in range(32): p(f'v_mov_b32 v{vO+32*c+r}, 0')
            for r in range(4): p(f'v_mov_b32 v{vNeg+4*c+r}, 0')
        for i in range(2): p(f'v_mov_b32 v{vU+4+i}, v{vNinf}')
        p(f's_lshl_b32 s{sDd}, s{sTile}, 2')
        p(f's_add_u32 s{sDd}, s{sDd}, s{sW}')
        p(f's_add_u32 s{sCnt}, s{sDd}, 1')
        p(f's_sub_u32 s{sDd}, 0, s{sDd}')
        p(f's_lshl_b32 s{sT2}, s{sH}, 19')
        p.label(f'{name}_fb{nm}_fbloop')
        for f in range(8):
            p(f's_add_u32 s{sT1}, s{sT2}, {(f // 4)*4096}')
            p(f'buffer_load_dwordx4 a[{aK+4*f}:{aK+4*f+3}], v{vLane16}, s[{S_KF}:{S_KF+3}], s{sT1} offen offset:{(f % 4)*1024}')
            p(f'buffer_load_dwordx4 a[{aV+4*f}:{aV+4*f+3}], v{vLane16}, s[{S_VF}:{S_VF+3}], s{sT1} offen offset:{(f % 4)*1024}')
        for it in mask_ops(cols): put(it)
        p('s_waitcnt vmcnt(0)')
        p('s_nop 1')
        for m in qk_mfmas(cols, 0, lambda c, kb: vCi + 8*(c - cols[0]) + 4*kb): p(m)
        p('s_nop 7')
        for i, c in enumerate(cols):
            S = vS + 8*i; t = vU + i; m = vU + 4 + i
            p(f'v_max3_f32 v{t}, v{S}, v{S+1}, v{S+2}')
            p(f'v_max3_f32 v{t}, v{t}, v{S+3}, v{S+4}')
            p(f'v_max3_f32 v{t}, v{t}, v{S+5}, v{S+6}')
            p(f'v_max_f32 v{t}, v{t}, v{S+7}')
            row_reduce(t, 'v_max_f32', vU + 6)
            p(f'v_max_f32 v{t}, v{t}, v{m}')
            p(f'v_sub_f32 v{vU+6}, v{m}, v{t}')
            p(f'v_exp_f32 v{vU+6}, v{vU+6}')
            p(f'v_mov_b32 v{m}, v{t}')
            p(f'v_mul_f32 v{vL+c}, v{vL+c}, v{vU+6}')
            for r in range(32): p(f'v_mul_f32 v{vO+32*c+r}, v{vO+32*c+r}, v{vU+6}')
            for r in range(8): p(f'v_sub_f32 v{S+r}, v{S+r}, v{t}')
            for r in range(8): p(f'v_exp_f32 v{S+r}, v{S+r}')
            p('s_nop 0')
            for r in range(8): p(f'v_add_f32 v{vL+c}, v{vL+c}, v{S+r}')
            for k in range(4): p(f'v_cvt_pk_bf16_f32 v{vP+4*c+k}, v{S+2*k}, v{S+2*k+1}')
        p('s_nop 1')
        for m in pv_mfmas(cols, 0): p(m)
        p('s_nop 7')
        p(f's_add_u32 s{sT2}, s{sT2}, 8192')
        p(f's_add_u32 s{sDd}, s{sDd}, 1')
        p(f's_sub_u32 s{sCnt}, s{sCnt}, 1')
        p(f's_cmp_lg_u32 s{sCnt}, 0')
        p(f's_cbranch_scc1 {name}_fb{nm}_fbloop')
        for c in cols: row_reduce(vL + c, 'v_add_f32', vU)
        for c in cols: p(f'v_rcp_f32 v{vL+c}, v{vL+c}')
        store_ctx(cols, sTile)
        p.label(f'{name}_fbskip{nm}')

if __name__ == '__main__':
    p, ne = gen_kf()
    print('instrs', p.count(), 'errors', ne)
```

```python
from common import *
from gx2 import *
from sched import *
from lnops import rne_keep
MF = 'v_mfma_f32_16x16x32_bf16'
NFFN = 54
WS_PB = WS_PART
PS_OFF = 4*128*8*2560
SZ_PB = PS_OFF + 4*64*8*1024
SPIN = 1 << 16

def poll(p, name, S_DBG, off, target, vt, sA, sB):
    L = p.nl(name + '_poll')
    p(f'v_mov_b32 v{vt}, {off}')
    p(f's_mov_b32 s{sA}, 0')
    p.label(L)
    p(f'buffer_load_dword v{vt+1}, v{vt}, s[{S_DBG}:{S_DBG+3}], 0 offen sc1')
    p('s_waitcnt vmcnt(0)')
    p(f'v_readfirstlane_b32 s{sB}, v{vt+1}')
    p(f's_add_u32 s{sA}, s{sA}, 1')
    p(f's_cmp_ge_u32 s{sB}, {target}')
    p(f's_cbranch_scc1 {L}_ok')
    p(f's_cmp_ge_u32 s{sA}, {SPIN}')
    p(f's_cbranch_scc1 {L}_ok')
    p('s_sleep 1')
    p(f's_branch {L}')
    p.label(L + '_ok')

FOFS = 82*MiB - WS_STAT
O_CTXF, O_FM, O_KEYS, O_RDY, O_FF = FOFS + 6144, FOFS + 8192, FOFS + 10240, FOFS + 12288, FOFS + 13312

def gen_kt(name, p, prof=False, opt=(), ctx_publish=None):
    put = make_put(p)
    S_WO, S_CTX, S_PB, S_DBG, S_X, S_OUT, S_H, S_ST = 16, 20, 24, 28, 32, 36, 40, 56
    S_WA, S_WB = 60, 64
    sW, sS, sMT, sNT = 44, 45, 46, 47
    sT0, sT1, sT2 = 48, 49, 50
    sWoff, sCoff, sLWw, sLWc, sP0 = 51, 52, 53, 54, 55
    sIdx, sR = 68, 69
    vLane16 = 1
    vOffW = 2
    vLPe, vLPo, vCe, vCo = 7, 8, 9, 10
    vLPc, vCc = 11, 12
    vT = 13
    vWF = 20; vCF = 40; acc = 72
    SLOT = 36864; NSL = 4
    sTag = 3; sFj = 62; sPS = 60; sMaskC = 61
    p.vmq = []; p.retired = -1; p.lgq = []; p.lg_ret = -1
    n_front = len(p.items)
    p(f's_load_dwordx2 s[4:5], s[0:1], {ARG["wo"]}')
    p(f's_load_dwordx4 s[8:11], s[0:1], {ARG["out"]}')
    p(f's_load_dwordx2 s[12:13], s[0:1], {ARG["ws"]}')
    p(f's_load_dwordx2 s[6:7], s[0:1], {ARG["x"]}')
    p('s_and_b32 s14, s2, 7')
    p('s_lshr_b32 s15, s2, 3')
    p(f's_lshr_b32 s{sS}, s14, 1')
    p(f's_and_b32 s14, s14, 1')
    p(f's_lshl_b32 s14, s14, 3')
    p(f's_and_b32 s{sMT}, s15, 7')
    p(f's_add_u32 s{sMT}, s{sMT}, s14')
    p(f's_lshr_b32 s{sNT}, s15, 3')
    p('s_lshr_b32 s14, s2, 3')
    p(f's_and_b32 s{sFj}, s14, 7')
    p(f's_lshr_b32 s14, s14, 3')
    p(f's_lshl_b32 s14, s14, 1')
    p(f's_add_u32 s14, s14, s{sFj}')
    p(f's_sub_u32 s14, s14, 6')
    p(f's_lshl_b32 s14, s14, 3')
    p(f's_and_b32 s15, s2, 7')
    p(f's_add_u32 s14, s14, s15')
    p(f's_cmp_ge_u32 s{sFj}, 6')
    p(f's_cselect_b32 s{sFj}, s14, 255')
    p('s_lshr_b32 s15, s2, 3')
    p(f's_lshl_b32 s{sT0}, s{sMT}, 3')
    p(f's_lshl_b32 s{sT1}, s{sW}, 1')
    p(f's_add_u32 s{sT0}, s{sT0}, s{sT1}')
    p(f's_lshl_b32 s{sT0}, s{sT0}, 2')
    p(f's_add_u32 s{sT0}, s{sT0}, s{sS}')
    p(f's_lshl_b32 s{sCoff}, s{sT0}, 15')
    p(f's_lshl_b32 s{sLWc}, s{sW}, 12')
    p(f's_add_u32 s{sLWc}, s{sLWc}, 20480')
    p(f's_mul_i32 s{sWoff}, s{sS}, {1024*1280}')
    p(f's_mul_i32 s{sT0}, s{sNT}, 320')
    p(f's_add_u32 s{sWoff}, s{sWoff}, s{sT0}')
    p(f's_mul_i32 s{sLWw}, s{sW}, 5120')
    p(f's_mul_i32 s{sT0}, s{sW}, 320')
    p(f'v_add_u32 v{vT}, s{sT0}, v0')
    for i in range(5):
        if i: p(f'v_add_u32 v{vT}, 64, v{vT}')
        p(f'v_mul_u32_u24 v{vT+1}, 3277, v{vT}')
        p(f'v_lshrrev_b32 v{vT+1}, 16, v{vT+1}')
        p(f'v_mul_u32_u24 v{vT+2}, 20, v{vT+1}')
        p(f'v_sub_u32 v{vT+2}, v{vT}, v{vT+2}')
        p(f'v_bfe_u32 v{vT+3}, v{vT+1}, 2, 1')
        p(f'v_lshlrev_b32 v{vT+3}, 1, v{vT+3}')
        p(f'v_xor_b32 v{vT+2}, v{vT+2}, v{vT+3}')
        p(f'v_mul_u32_u24 v{vT+1}, 1280, v{vT+1}')
        p(f'v_lshl_add_u32 v{vOffW+i}, v{vT+2}, 4, v{vT+1}')
        if 0 < i < 4: p(f'v_subrev_u32 v{vOffW+i}, {1024*i}, v{vOffW+i}')
    p('s_waitcnt lgkmcnt(0)')
    srd(p, S_WO, 4, 4096*640*2)
    srd(p, S_CTX, 12, SZ_CTX, WS_CTX)
    def dma_ctx(ch):
        base = (ch % NSL)*SLOT
        tagC = ('W', base + 20480, base + SLOT, True)
        L = [('s', f's_add_u32 s{sT1}, s{sCoff}, {ch*2048}'), ('s', f's_add_u32 m0, s{sLWc}, {base}'), ('s', 's_nop 0')]
        for i in range(2): L.append(('m', f'buffer_load_dwordx4 v{vLane16}, s[{S_CTX}:{S_CTX+3}], s{sT1} offen offset:{1024*i} lds', f'C{ch}', tagC))
        L.append(('s', f's_add_u32 s{sT1}, s{sCoff}, {ch*2048 + 4*32768}'))
        L.append(('s', f's_add_u32 m0, s{sLWc}, {base + 2048}'))
        L.append(('s', 's_nop 0'))
        for i in range(2): L.append(('m', f'buffer_load_dwordx4 v{vLane16}, s[{S_CTX}:{S_CTX+3}], s{sT1} offen offset:{1024*i} lds', f'C{ch}', tagC))
        return L
    def dma_wo(ch):
        base = (ch % NSL)*SLOT
        L = [('s', f's_add_u32 m0, s{sLWw}, {base}'), ('s', f's_add_u32 s{sT0}, s{sWoff}, {ch*64*1280}')]
        tagW = ('W', base, base + 20480, True)
        for i in range(4):
            L.append(('m', f'buffer_load_dwordx4 v{vOffW+i}, s[{S_WO}:{S_WO+3}], s{sT0} offen offset:{1024*i} lds', f'C{ch}', tagW))
        L.append(('s', f's_add_u32 m0, s{sLWw}, {base + 4096}'))
        L.append(('s', 's_nop 0'))
        L.append(('m', f'buffer_load_dwordx4 v{vOffW+4}, s[{S_WO}:{S_WO+3}], s{sT0} offen lds', f'C{ch}', tagW))
        return L
    def dma_chunk(ch): return dma_ctx(ch) + dma_wo(ch)
    def emit(L):
        for it in L: put(it)
    p(f'v_bfe_u32 v{vT}, v0, 2, 2')
    p(f'v_lshrrev_b32 v{vT+1}, 4, v0')
    p(f'v_lshl_add_u32 v{vT+2}, v{vT+1}, 2, v{vT}')
    p(f'v_mul_u32_u24 v{vT+2}, 320, v{vT+2}')
    p(f'v_and_b32 v{vT+3}, 3, v0')
    p(f'v_lshl_add_u32 v{vT+2}, v{vT+3}, 3, v{vT+2}')
    p(f'v_and_b32 v{vT+1}, 1, v{vT+1}')
    p(f'v_lshlrev_b32 v{vT+1}, 5, v{vT+1}')
    p(f'v_add_u32 v{vLPe}, v{vT+2}, v{vT+1}')
    p(f'v_sub_u32 v{vLPo}, v{vT+2}, v{vT+1}')
    p(f's_lshr_b32 s{sT0}, s{sW}, 1')
    p(f's_and_b32 s{sT1}, s{sW}, 1')
    p(f's_cmp_eq_u32 s{sT0}, 1')
    p(f's_cselect_b64 s[14:15], -1, 0')
    p(f'v_cndmask_b32 v{vT}, v{vLPe}, v{vLPo}, s[14:15]')
    p(f'v_cndmask_b32 v{vT+1}, v{vLPo}, v{vLPe}, s[14:15]')
    p(f's_mul_i32 s{sT2}, s{sT0}, 160')
    p(f'v_add_u32 v{vLPe}, s{sT2}, v{vT}')
    p(f'v_add_u32 v{vLPo}, s{sT2}, v{vT+1}')
    p(f's_lshl_b32 s{sT2}, s{sT1}, 13')
    p(f's_add_u32 s{sT2}, s{sT2}, 20480')
    p(f'v_add_u32 v{vLPc}, s{sT2}, v{vLane16}')
    p(f's_lshl_b32 s{sP0}, s{sS}, 7')
    p(f's_lshl_b32 s{sT2}, s{sMT}, 3')
    p(f's_add_u32 s{sP0}, s{sP0}, s{sT2}')
    p(f's_lshl_b32 s{sT1}, s{sT1}, 2')
    p(f's_add_u32 s{sP0}, s{sP0}, s{sT1}')
    p(f's_lshl_b32 s{sP0}, s{sP0}, 3')
    p(f's_lshl_b32 s{sT2}, s{sNT}, 1')
    p(f's_add_u32 s{sP0}, s{sP0}, s{sT2}')
    p(f's_add_u32 s{sP0}, s{sP0}, s{sT0}')
    p(f's_lshl_b32 s{sPS}, s{sS}, 6')
    p(f's_lshl_b32 s14, s{sMT}, 2')
    p(f's_add_u32 s{sPS}, s{sPS}, s14')
    p(f's_lshr_b32 s14, s{sT1}, 1')
    p(f's_add_u32 s{sPS}, s{sPS}, s14')
    p(f's_lshl_b32 s{sPS}, s{sPS}, 3')
    p(f's_add_u32 s{sPS}, s{sPS}, s{sT2}')
    p(f's_add_u32 s{sPS}, s{sPS}, s{sT0}')
    p(f's_lshl_b32 s{sPS}, s{sPS}, 10')
    p(f's_add_u32 s{sPS}, s{sPS}, {{PS_OFF}}'.replace('{PS_OFF}', str(PS_OFF)))
    p(f's_mul_i32 s{sP0}, s{sP0}, 2560')
    srd(p, S_PB, 12, SZ_PB, WS_PB)
    srd(p, S_X, 6, 2048*640*2)
    srd(p, S_OUT, 8, 2048*640*2)
    srd(p, S_H, 12, SZ_H, WS_H)
    srd(p, S_ST, 12, 3 << 20, WS_STAT)
    p.stamp('tail setup')
    ctx_publish()
    p(f's_cmp_eq_u32 s{sW}, 0')
    p(f's_cbranch_scc1 {name}_w0first')
    emit(dma_wo(0) + dma_wo(1) + dma_wo(2))
    p(f's_branch {name}_cw')
    p.label(f'{name}_w0first')
    p(f's_sub_u32 s14, 15, s{sMT}')
    p(f's_min_u32 s14, s14, s{sMT}')
    p(f's_lshl_b32 s14, s14, 3')
    p(f's_lshl_b32 s15, s{sS}, 1')
    p(f's_add_u32 s14, s14, s15')
    p(f'v_and_b32 v{vT}, 3, v0')
    p(f'v_lshlrev_b32 v{vT}, 6, v{vT}')
    p(f'v_bfe_u32 v{vT+1}, v0, 2, 1')
    p(f'v_add3_u32 v{vT}, v{vT}, v{vT+1}, s14')
    p(f'v_lshlrev_b32 v{vT}, 2, v{vT}')
    p(f's_mov_b32 s14, {O_CTXF}')
    p('s_mov_b32 s15, 0')
    Lc = p.nl(name + '_pollC')
    p.label(Lc)
    p(f'buffer_load_dword v{vT+1}, v{vT}, s[{S_ST}:{S_ST+3}], s14 offen sc1')
    p('s_waitcnt vmcnt(0)')
    p(f'v_cmp_ne_u32 vcc, s{sTag}, v{vT+1}')
    p('s_add_u32 s15, s15, 1')
    p(f's_cbranch_vccz {Lc}_ok')
    p(f's_cmp_ge_u32 s15, {SPIN}')
    p(f's_cbranch_scc1 {Lc}_ok')
    p('s_sleep 2')
    p(f's_branch {Lc}')
    p.label(Lc + '_ok')
    emit(dma_wo(0) + dma_wo(1) + dma_wo(2))
    p.label(f'{name}_cw')
    p('s_barrier')
    (p.stamp('ctx ready') if 'ln' not in opt else None)
    emit(dma_ctx(0)); emit(dma_ctx(1)); emit(dma_ctx(2))
    def upd(ch):
        base = (ch % NSL)*SLOT
        return [('v', f'v_add_u32 v{vCe}, {base}, v{vLPe}'), ('v', f'v_add_u32 v{vCo}, {base}, v{vLPo}'), ('v', f'v_add_u32 v{vCc}, {base}, v{vLPc}')]
    def rd_w(mb, ks):
        ch, kin = divmod(ks, 2); base = (ch % NSL)*SLOT
        r = vWF + 4*mb; a = vCe if mb % 2 == 0 else vCo
        return [('r', f'ds_read_b64_tr_b16 v[{r+2*h}:{r+2*h+1}], v{a} offset:{kin*10240 + h*5120 + mb*32}', f'w{ks}_{mb}', ('R', base, base + 20480)) for h in range(2)]
    def rd_c(cb, ks):
        ch, kin = divmod(ks, 2); base = (ch % NSL)*SLOT
        r = vCF + 16*(ks % 2) + 4*cb
        return ('r', f'ds_read_b128 v[{r}:{r+3}], v{vCc} offset:{cb*2048 + kin*1024}', f'c{ks}', ('R', base + 20480, base + SLOT))
    emit(upd(0))
    p.wait_vm('C0')
    p('s_barrier')
    (p.stamp('chunk0') if 'ln' not in opt else None)
    for cb in range(4): put(rd_c(cb, 0))
    for mb in range(5): emit(rd_w(mb, 0))
    NKS = 32
    A = lambda cb, mb: acc + (cb*5 + mb)*4
    mf = []
    for ks in range(NKS):
        for mb in range(5):
            for cb in range(4):
                c = '0' if ks == 0 else f'v[{A(cb, mb)}:{A(cb, mb)+3}]'
                cf = vCF + 16*(ks % 2) + 4*cb
                mf.append(f'{MF} v[{A(cb, mb)}:{A(cb, mb)+3}], v[{vWF+4*mb}:{vWF+4*mb+3}], v[{cf}:{cf+3}], {c}')
    R = Region(mf)
    G = lambda ks, mb, cb: ks*20 + mb*4 + cb
    put(('wlg', ['w0_0', 'c0']))
    BARG = lambda ch: G(2*ch + 1, 0, 3)
    NCH = 16
    for ch in range(NCH - 1):
        R.place(('bar', [f'C{ch+1}']), BARG(ch), force=True)
        R.stream(upd(ch + 1), G(2*ch + 1, 0, 1), G(2*ch + 1, 1, 0))
    for ks in range(NKS):
        for mb in range(5):
            if ks == 0 and mb == 0: continue
            labs = [f'w{ks}_{mb}'] + ([f'c{ks}'] if mb == 0 else [])
            R.place(('wlg', labs), G(ks, mb, 0) - 1, force=True)
    for ks in range(NKS - 1):
        ch, t = divmod(ks, 2); nxt = ks + 1
        for mb in range(5):
            e = G(ks, mb, 3)
            if t == 1: e = max(e, G(ks, 1, 1))
            rr = rd_w(mb, nxt)
            lat = G(ks + 1, 0, 0) if t == 0 else G(ks + 1, mb, 0) - 3
            g = R.place(rr[0], e, lat); R.place(rr[1], min(g + 1, lat), lat)
        e = G(ks, 0, 0) if t == 0 else G(ks, 1, 1)
        for cb in range(4): R.place(rd_c(cb, nxt), e + 3*cb, G(ks + 1, 0, 0) - 4)
    def spread_dma(R, L, g0, g1):
        nm = sum(1 for x in L if x[0] in 'ml')
        step = max(1, (g1 - g0) // max(nm, 1))
        g = g0; cnt = 0
        for it in L:
            e = max(g, g0 + cnt*step - (2 if it[0] == 's' else 0))
            g = R.place(it, e, g1)
            if it[0] in 'ml': cnt += 1; g += 1
    for ch in range(NCH - 1):
        if ch + 3 < NCH: spread_dma(R, dma_chunk(ch + 3), BARG(ch) + 1, BARG(ch + 1) - 1)
    R.emit(p, put)
    print('kt gemm overflow', R.over, 'est', R.total())
    (p.stamp('gemm end') if 'ln' not in opt else None)
    p('s_nop 7')
    for cb in range(4):
        a0 = A(cb, 0)
        for k in range(10): p(f'v_cvt_pk_bf16_f32 v{a0+k}, v{a0+2*k}, v{a0+2*k+1}')
        p(f's_add_u32 s{sT0}, s{sP0}, {cb*8*2560}')
        p.vm(f'buffer_store_dwordx4 v[{a0}:{a0+3}], v{vLane16}, s[{S_PB}:{S_PB+3}], s{sT0} offen sc1', 'st')
        p.vm(f'buffer_store_dwordx4 v[{a0+4}:{a0+7}], v{vLane16}, s[{S_PB}:{S_PB+3}], s{sT0} offen offset:1024 sc1', 'st')
        if cb % 2 == 1:
            ae = A(cb - 1, 0)
            p(f'v_mov_b32 v{ae+10}, v{a0+8}')
            p(f'v_mov_b32 v{ae+11}, v{a0+9}')
            p(f's_add_u32 s{sT0}, s{sPS}, {(cb // 2)*8*1024}')
            p.vm(f'buffer_store_dwordx4 v[{ae+8}:{ae+11}], v{vLane16}, s[{S_PB}:{S_PB+3}], s{sT0} offen sc1', 'st')
    p('s_waitcnt vmcnt(0)')
    p('s_barrier')
    p(f's_cmp_lg_u32 s{sW}, 0')
    p(f's_cbranch_scc1 {name}_nosig')
    p(f's_lshl_b32 s{sT0}, s{sMT}, 7')
    p(f's_lshl_b32 s{sT1}, s{sS}, 4')
    p(f's_add_u32 s{sT0}, s{sT0}, s{sT1}')
    p(f's_lshl_b32 s{sT1}, s{sNT}, 2')
    p(f's_add_u32 s{sT0}, s{sT0}, s{sT1}')
    p(f's_add_u32 s{sT0}, s{sT0}, {O_FM}')
    p(f'v_mov_b32 v{vT}, 0')
    p(f'v_mov_b32 v{vT+1}, s{sTag}')
    p('v_cmp_eq_u32 vcc, 0, v0')
    p('s_nop 1')
    p('s_and_saveexec_b64 s[14:15], vcc')
    p(f'buffer_store_dword v{vT+1}, v{vT}, s[{S_ST}:{S_ST+3}], s{sT0} offen sc1')
    p('s_mov_b64 exec, s[14:15]')
    p.label(f'{name}_nosig')
    (p.stamp('signalled') if 'ln' not in opt else None)
    vTok, vOffP, vOffP8, vOffX, vLds, vLdsW, vTokG = 2, 3, 4, 5, 6, 7, 8
    PA = 20
    XR = 60
    WR = 70
    H = 80
    HN = 100
    sm, mean, mb_, var, sd, rc, t0, t1 = range(120, 128)
    sJ = sP0
    p(f's_lshl_b32 s{sJ}, s{sS}, 2')
    p(f's_add_u32 s{sJ}, s{sJ}, s{sNT}')
    p(f'v_and_b32 v{vTok}, 7, v0')
    p(f'v_bfe_u32 v{vT}, v0, 3, 2')
    p(f'v_lshrrev_b32 v{vT+1}, 5, v0')
    p(f's_lshr_b32 s{sT0}, s{sJ}, 1')
    p(f's_lshl_b32 s{sT1}, s{sMT}, 3')
    p(f's_add_u32 s{sT0}, s{sT0}, s{sT1}')
    sQB = 70
    p(f's_mov_b32 s{sQB}, s{sT0}')
    p(f's_lshl_b32 s{sT1}, s{sT0}, 4')
    p(f's_and_b32 s{sT2}, s{sJ}, 1')
    p(f's_lshl_b32 s{sT2}, s{sT2}, 3')
    p(f's_add_u32 s{sT1}, s{sT1}, s{sT2}')
    p(f'v_add_u32 v{vTokG}, s{sT1}, v{vTok}')
    p(f'v_lshl_add_u32 v{vT+2}, v{vT}, 4, v{vTok}')
    p(f'v_add_u32 v{vT+2}, s{sT2}, v{vT+2}')
    p(f's_lshl_b32 s{sT0}, s{sT0}, 3')
    p(f's_lshl_b32 s{sT2}, s{sW}, 1')
    p(f's_add_u32 s{sT0}, s{sT0}, s{sT2}')
    p(f'v_add_u32 v{vT+3}, s{sT0}, v{vT+1}')
    p(f'v_mul_u32_u24 v{vT+3}, 2560, v{vT+3}')
    p(f'v_lshl_add_u32 v{vOffP}, v{vT+2}, 4, v{vT+3}')
    p(f's_lshr_b32 s14, s{sQB}, 1')
    p(f's_lshl_b32 s14, s14, 3')
    p(f's_add_u32 s14, s14, s{sT2}')
    p(f'v_add_u32 v{vOffP8}, s14, v{vT+1}')
    p(f'v_lshlrev_b32 v{vOffP8}, 10, v{vOffP8}')
    p(f'v_lshl_add_u32 v{vOffP8}, v{vT+2}, 4, v{vOffP8}')
    p(f's_and_b32 s14, s{sQB}, 1')
    p(f's_lshl_b32 s14, s14, 3')
    p(f's_add_u32 s14, s14, {PS_OFF}')
    p(f'v_add_u32 v{vOffP8}, s14, v{vOffP8}')
    p(f's_mul_i32 s{sT2}, s{sW}, 320')
    p(f'v_mul_u32_u24 v{vT+4}, 160, v{vT+1}')
    p(f'v_lshl_add_u32 v{vT+4}, v{vT}, 3, v{vT+4}')
    p(f'v_add_u32 v{vT+4}, s{sT2}, v{vT+4}')
    p(f'v_mul_u32_u24 v{vOffX}, 1280, v{vTokG}')
    p(f'v_add_u32 v{vOffX}, v{vOffX}, v{vT+4}')
    p(f's_load_dwordx2 s[14:15], s[0:1], {ARG["wr"]}')
    for i in range(5):
        p(f'buffer_load_dwordx2 v[{XR+2*i}:{XR+2*i+1}], v{vOffX}, s[{S_X}:{S_X+3}], 0 offen offset:{32*i}')
    p('s_waitcnt lgkmcnt(0)')
    srd(p, 8, 14, 640*2)
    for i in range(5):
        p(f'buffer_load_dwordx2 v[{WR+2*i}:{WR+2*i+1}], v{vT+4}, s[8:11], 0 offen offset:{32*i}')
    RB = 143360
    STH = 122880; STO = 133120
    p(f's_lshl_b32 s{sT1}, s{sW}, 5')
    p(f'v_lshlrev_b32 v{vLds}, 2, v{vTok}')
    p(f'v_add_u32 v{vLds}, {RB}, v{vLds}')
    p(f'v_add_u32 v{vLdsW}, s{sT1}, v{vLds}')
    p(f's_cmp_ge_u32 s{sFj}, {NFFN}')
    p(f's_cbranch_scc1 {name}_nowl')
    p(f's_mul_i32 s{sT2}, s{sW}, 10240')
    p(f'v_add_u32 v{t0}, s{sT2}, v{vLane16}')
    p(f'v_add_u32 v{t1}, 65536, v{t0}')
    for mat, lbase in enumerate((0, 40960, 81920)):
        for i in range(10):
            r = 132 + (mat*10 + i)*4
            if lbase + i*1024 < 65536: p(f'ds_write_b128 v{t0}, a[{r}:{r+3}] offset:{lbase + i*1024}')
            else: p(f'ds_write_b128 v{t1}, a[{r}:{r+3}] offset:{lbase + i*1024 - 65536}')
    p.label(f'{name}_nowl')
    p(f's_cmp_lg_u32 s{sW}, 0')
    p(f's_cbranch_scc1 {name}_w1')
    p(f's_lshl_b32 s{sT0}, s{sMT}, 7')
    p(f's_add_u32 s{sT0}, s{sT0}, {O_FM}')
    Lp = p.nl(name + '_pollM')
    p(f'v_and_b32 v{t0}, 15, v0')
    p(f'v_lshlrev_b32 v{t0}, 2, v{t0}')
    p(f's_mov_b32 s{sT1}, 0')
    p.label(Lp)
    p(f'buffer_load_dword v{t1}, v{t0}, s[{S_ST}:{S_ST+3}], s{sT0} offen sc1')
    p('s_waitcnt vmcnt(0)')
    p(f'v_cmp_ne_u32 vcc, s{sTag}, v{t1}')
    p(f's_add_u32 s{sT1}, s{sT1}, 1')
    p(f's_cbranch_vccz {Lp}_ok')
    p(f's_cmp_ge_u32 s{sT1}, {SPIN}')
    p(f's_cbranch_scc1 {Lp}_ok')
    p('s_sleep 2')
    p(f's_branch {Lp}')
    p.label(Lp + '_ok')
    p.label(f'{name}_w1')
    p('s_barrier')
    (p.stamp('partials ready') if 'ln' not in opt else None)
    for s_ in range(4):
        p(f's_mov_b32 s{sT0}, {s_*128*8*2560}')
        b = PA + 10*s_
        p(f'buffer_load_dwordx4 v[{b}:{b+3}], v{vOffP}, s[{S_PB}:{S_PB+3}], s{sT0} offen sc1')
        p(f'buffer_load_dwordx4 v[{b+4}:{b+7}], v{vOffP}, s[{S_PB}:{S_PB+3}], s{sT0} offen offset:1024 sc1')
        p(f's_mov_b32 s{sT1}, {s_*64*8*1024}')
        p(f'buffer_load_dwordx2 v[{b+8}:{b+9}], v{vOffP8}, s[{S_PB}:{S_PB+3}], s{sT1} offen sc1')
    p('s_waitcnt vmcnt(0)')
    p.stamp('partials loaded')
    p(f'v_mov_b32 v{t0}, {RB}')
    p(f'v_mov_b32 v{t1}, 0')
    p(f'ds_write_b32 v{t0}, v{t1} offset:516')
    U0, U1 = 160, 180
    p(f's_mov_b32 s{sMaskC}, 0xffff0000')
    def ext(dst, src, half): return f'v_lshlrev_b32 v{dst}, 16, v{src}' if half == 0 else f'v_and_b32 v{dst}, s{sMaskC}, v{src}'
    for k in range(20): p(ext(H + k, PA + k//2, k % 2))
    for k in range(20): p(ext(U0 + k, PA + 10 + k//2, k % 2))
    for k in range(20): p(ext(U1 + k, PA + 20 + k//2, k % 2))
    for k in range(20): p(f'v_add_f32 v{H+k}, v{H+k}, v{U0+k}')
    for k in range(20): p(ext(U0 + k, PA + 30 + k//2, k % 2))
    for k in range(20): p(f'v_add_f32 v{U1+k}, v{U1+k}, v{U0+k}')
    for k in range(20): p(f'v_add_f32 v{H+k}, v{H+k}, v{U1+k}')
    for k2 in range(10): p(f'v_cvt_pk_bf16_f32 v{U0+k2}, v{H+2*k2}, v{H+2*k2+1}')
    for k in range(20): p(ext(H + k, U0 + k//2, k % 2))
    for k in range(20): p(ext(U1 + k, XR + k//2, k % 2))
    for k in range(20): p(f'v_add_f32 v{H+k}, v{H+k}, v{U1+k}')
    for k2 in range(10): p(f'v_cvt_pk_bf16_f32 v{XR+k2}, v{H+2*k2}, v{H+2*k2+1}')
    for k in range(20): p(ext(H + k, XR + k//2, k % 2))
    vSt = 9
    p(f'v_mul_u32_u24 v{vSt}, 1280, v{vTok}')
    p(f'v_add_u32 v{vSt}, v{vSt}, v{vT+4}')
    p(f'v_add_u32 v{vSt}, {STH}, v{vSt}')
    for i in range(5): p(f'ds_write_b64 v{vSt}, v[{XR+2*i}:{XR+2*i+1}] offset:{32*i}')
    TT = 128
    def allreduce_n(regs, slot):
        n = len(regs)
        p('s_nop 1')
        for r in regs: p(f'v_add_f32_dpp v{r}, v{r}, v{r} row_ror:8 row_mask:0xf bank_mask:0xf')
        for sw in ('v_permlane16_swap_b32', 'v_permlane32_swap_b32'):
            for i, r in enumerate(regs): p(f'v_mov_b32 v{TT+i}, v{r}')
            p('s_nop 1')
            for i, r in enumerate(regs): p(f'{sw} v{r}, v{TT+i}')
            p('s_nop 1')
            for i, r in enumerate(regs): p(f'v_add_f32 v{r}, v{r}, v{TT+i}')
        for i, r in enumerate(regs): p(f'ds_write_b32 v{vLdsW}, v{r} offset:{(slot + i)*128}')
        p('s_waitcnt lgkmcnt(0)')
        p('s_barrier')
        for i, r in enumerate(regs):
            for w in range(4): p(f'ds_read_b32 v{TT+4*i+w}, v{vLds} offset:{(slot + i)*128 + 32*w}')
        p('s_waitcnt lgkmcnt(0)')
        for i, r in enumerate(regs):
            p(f'v_add_f32 v{TT+4*i}, v{TT+4*i}, v{TT+4*i+1}')
            p(f'v_add_f32 v{TT+4*i+2}, v{TT+4*i+2}, v{TT+4*i+3}')
            p(f'v_add_f32 v{r}, v{TT+4*i}, v{TT+4*i+2}')
    def allreduce(reg, slot): allreduce_n([reg], slot)
    if 'ln' in opt: p.stamp('sums done')
    for k in range(10): p(f'v_add_f32 v{U0+k}, v{H+k}, v{H+10+k}')
    for k in range(5): p(f'v_add_f32 v{U0+k}, v{U0+k}, v{U0+5+k}')
    p(f'v_add_f32 v{U0}, v{U0}, v{U0+1}'); p(f'v_add_f32 v{U0+2}, v{U0+2}, v{U0+3}'); p('s_nop 0')
    p(f'v_add_f32 v{U0}, v{U0}, v{U0+4}'); p('s_nop 0'); p(f'v_add_f32 v{sm}, v{U0}, v{U0+2}'); p('s_nop 0')
    p(f'v_mul_f32 v{mean}, 0x3d4ccccd, v{sm}')
    p('s_nop 0')
    p(f'v_mul_f32 v{sd}, v{sm}, v{mean}')
    for k in range(20): p(f'v_sub_f32 v{U0+k}, v{H+k}, v{mean}')
    for k in range(10): p(f'v_mul_f32 v{U1+k}, v{U0+k}, v{U0+k}')
    for k in range(10): p(f'v_fmac_f32 v{U1+k}, v{U0+10+k}, v{U0+10+k}')
    for k in range(5): p(f'v_add_f32 v{U1+k}, v{U1+k}, v{U1+5+k}')
    p(f'v_add_f32 v{U1}, v{U1}, v{U1+1}'); p(f'v_add_f32 v{U1+2}, v{U1+2}, v{U1+3}'); p('s_nop 0')
    p(f'v_add_f32 v{U1}, v{U1}, v{U1+4}'); p('s_nop 0'); p(f'v_add_f32 v{var}, v{U1}, v{U1+2}')
    if 'ln' in opt: p.stamp('pre ar1')
    allreduce_n([sm, var, sd], 0)
    if 'ln' in opt: p.stamp('ar1')
    p(f'v_mul_f32 v{mean}, 0x3acccccd, v{sm}')
    for x in rne_keep(mb_, mean): p(x)
    p(f'v_fma_f32 v{sd}, -v{sm}, v{mean}, v{sd}')
    p(f'v_max_f32 v{sd}, 0, v{sd}')
    p(f'v_add_f32 v{var}, v{var}, v{sd}')
    p(f'v_mul_f32 v{var}, 0x3acccccd, v{var}')
    for x in rne_keep(var, var): p(x)
    p(f'v_add_f32 v{var}, 0x3727c5ac, v{var}')
    for x in rne_keep(var, var): p(x)
    p(f'v_sqrt_f32 v{sd}, v{var}')
    p('s_nop 0')
    for x in rne_keep(sd, sd): p(x)
    p(f'v_rcp_f32 v{rc}, v{sd}')
    p('s_nop 0')
    p(f'v_mov_b32 v{sm}, v{rc}')
    for k in range(20): p(f'v_sub_f32 v{U0+k}, v{H+k}, v{mb_}')
    for k2 in range(10): p(f'v_cvt_pk_bf16_f32 v{U1+k2}, v{U0+2*k2}, v{U0+2*k2+1}')
    for k in range(20): p(ext(U0 + k, U1 + k//2, k % 2))
    for k in range(20): p(f'v_mul_f32 v{U0+k}, v{U0+k}, v{sm}')
    for k2 in range(10): p(f'v_cvt_pk_bf16_f32 v{U1+k2}, v{U0+2*k2}, v{U0+2*k2+1}')
    for k in range(20): p(ext(HN + k, U1 + k//2, k % 2))
    for k in range(20): p(ext(U0 + k, WR + k//2, k % 2))
    for k in range(10): p(f'v_mul_f32 v{U1+k}, v{HN+k}, v{U0+k}')
    for k in range(10): p(f'v_fmac_f32 v{U1+k}, v{HN+10+k}, v{U0+10+k}')
    for k in range(20): p(f'v_add_f32 v{U0+k}, v{H+k}, v{HN+k}')
    for k in range(5): p(f'v_add_f32 v{U1+k}, v{U1+k}, v{U1+5+k}')
    for k2 in range(10): p(f'v_cvt_pk_bf16_f32 v{PA+k2}, v{U0+2*k2}, v{U0+2*k2+1}')
    p(f'v_add_f32 v{U1}, v{U1}, v{U1+1}'); p(f'v_add_f32 v{U1+2}, v{U1+2}, v{U1+3}'); p('s_nop 0')
    p(f'v_add_f32 v{U1}, v{U1}, v{U1+4}'); p('s_nop 0'); p(f'v_add_f32 v{var}, v{U1}, v{U1+2}')
    for i in range(5): p(f'ds_write_b64 v{vSt}, v[{PA+2*i}:{PA+2*i+1}] offset:{STO - STH + 32*i}')
    if 'ln' in opt: p.stamp('pre ar2')
    allreduce(var, 3)
    if 'ln' in opt: p.stamp('ar2')
    p(f'v_cvt_pk_bf16_f32 v{var}, v{var}, v{var}')
    p(f's_cmp_lg_u32 s{sW}, 0')
    p(f's_cbranch_scc1 {name}_w123')
    p(f'v_and_b32 v{t0}, 0xffff, v{var}')
    p(f'v_or_b32 v{t1}, 0x8000, v{t0}')
    p(f'v_xor_b32 v{rc}, 0xffff, v{t0}')
    p(f'v_cmp_lt_u32 vcc, 0x7fff, v{t0}')
    p('s_nop 1')
    p(f'v_cndmask_b32 v{t1}, v{t1}, v{rc}, vcc')
    p(f'v_sub_u32 v{t0}, 0xffff, v{vTokG}')
    p(f'v_lshl_or_b32 v{t1}, v{t1}, 16, v{t0}')
    for sh in (4, 2, 1):
        p('s_nop 1')
        p(f'v_max_u32_dpp v{t1}, v{t1}, v{t1} row_ror:{sh} row_mask:0xf bank_mask:0xf')
    p(f's_lshl_b32 s{sT0}, s2, 3')
    p(f's_add_u32 s{sT0}, s{sT0}, {O_KEYS}')
    p(f'v_mov_b32 v{t0}, 0')
    p(f'v_mov_b32 v{TT}, v{t1}')
    p(f'v_mov_b32 v{TT+1}, s{sTag}')
    p(f'buffer_store_dwordx2 v[{TT}:{TT+1}], v{t0}, s[{S_ST}:{S_ST+3}], s{sT0} offen sc1')
    p.stamp('key out')
    p(f's_cmp_ge_u32 s{sFj}, {NFFN}')
    p(f's_cbranch_scc1 {name}_fin')
    p(f's_branch {name}_w0poll')
    p.label(f'{name}_w123')
    p(f's_sub_u32 s{sT0}, s{sW}, 1')
    p(f's_lshl_b32 s{sT0}, s{sT0}, 10')
    p(f'v_add_u32 v{t0}, s{sT0}, v{vLane16}')
    p(f'v_add_u32 v{t1}, {STH}, v{t0}')
    for mat in range(2):
        for i in range(4): p(f'ds_read_b128 v[{PA+16*mat+4*i}:{PA+16*mat+4*i+3}], v{t1} offset:{mat*(STO - STH) + 3072*i}')
    p(f's_lshl_b32 s{sT1}, s{sQB}, 4')
    p(f's_and_b32 s{sT2}, s{sJ}, 1')
    p(f's_lshl_b32 s{sT2}, s{sT2}, 3')
    p(f's_add_u32 s{sT1}, s{sT1}, s{sT2}')
    p(f's_mul_i32 s{sT1}, s{sT1}, 1280')
    p('s_waitcnt lgkmcnt(0)')
    for mat, sr in enumerate((S_H, S_OUT)):
        for i in range(3):
            p(f's_add_u32 s{sT2}, s{sT1}, {3072*i}')
            p(f'buffer_store_dwordx4 v[{PA+16*mat+4*i}:{PA+16*mat+4*i+3}], v{t0}, s[{sr}:{sr+3}], s{sT2} offen sc1')
    p(f's_cmp_lg_u32 s{sW}, 1')
    p(f's_cbranch_scc1 {name}_ns3')
    p(f's_add_u32 s{sT2}, s{sT1}, 9216')
    for mat, sr in enumerate((S_H, S_OUT)):
        p(f'buffer_store_dwordx4 v[{PA+16*mat+12}:{PA+16*mat+15}], v{t0}, s[{sr}:{sr+3}], s{sT2} offen sc1')
    p('v_cmp_gt_u32 vcc, 8, v0')
    p('s_nop 1')
    p('s_and_saveexec_b64 s[14:15], vcc')
    p(f'v_lshlrev_b32 v{t1}, 2, v{vTokG}')
    p(f's_mov_b32 s{sT0}, 8192')
    p(f'buffer_store_dword v{mb_}, v{t1}, s[{S_ST}:{S_ST+3}], s{sT0} offen sc1')
    p(f's_mov_b32 s{sT0}, 16384')
    p(f'buffer_store_dword v{sd}, v{t1}, s[{S_ST}:{S_ST+3}], s{sT0} offen sc1')
    p('s_mov_b64 exec, s[14:15]')
    p.label(f'{name}_ns3')
    p('s_waitcnt vmcnt(0) lgkmcnt(0)')
    p(f'v_mov_b32 v{t0}, {RB}')
    p(f'v_mov_b32 v{t1}, 1')
    p('v_cmp_eq_u32 vcc, 0, v0')
    p('s_nop 1')
    p('s_and_saveexec_b64 s[14:15], vcc')
    p(f'ds_add_rtn_u32 v{t1}, v{t0}, v{t1} offset:516')
    p('s_waitcnt lgkmcnt(0)')
    p('s_mov_b64 exec, s[14:15]')
    p(f'v_readfirstlane_b32 s{sT0}, v{t1}')
    p('s_nop 3')
    p(f's_cmp_lg_u32 s{sT0}, 2')
    p(f's_cbranch_scc1 {name}_w3')
    p(f's_lshl_b32 s{sT0}, s2, 2')
    p(f's_add_u32 s{sT0}, s{sT0}, {O_RDY}')
    p(f'v_mov_b32 v{t0}, 0')
    p(f'v_mov_b32 v{t1}, s{sTag}')
    p(f'buffer_store_dword v{t1}, v{t0}, s[{S_ST}:{S_ST+3}], s{sT0} offen sc1')
    p.label(f'{name}_w3')
    p(f's_cmp_ge_u32 s{sFj}, {NFFN}')
    p(f's_cbranch_scc1 {name}_fin')
    p(f's_branch {name}_w4')
    p.label(f'{name}_w0poll')
    Lk = p.nl(name + '_pollK')
    p(f's_mov_b32 s{sT1}, 0')
    p(f's_mov_b32 s{sT0}, {O_KEYS}')
    p(f'v_lshlrev_b32 v28, 5, v0')
    p.label(Lk)
    p(f'buffer_load_dwordx4 v[20:23], v28, s[{S_ST}:{S_ST+3}], s{sT0} offen sc1')
    p(f'buffer_load_dwordx4 v[24:27], v28, s[{S_ST}:{S_ST+3}], s{sT0} offen offset:16 sc1')
    p('s_waitcnt vmcnt(0)')
    p(f'v_xor_b32 v21, s{sTag}, v21')
    p(f'v_xor_b32 v23, s{sTag}, v23')
    p(f'v_xor_b32 v25, s{sTag}, v25')
    p(f'v_xor_b32 v27, s{sTag}, v27')
    p(f'v_or3_b32 v21, v21, v23, v25')
    p(f'v_or_b32 v21, v21, v27')
    p(f'v_cmp_ne_u32 vcc, 0, v21')
    p(f's_add_u32 s{sT1}, s{sT1}, 1')
    p(f's_cbranch_vccz {Lk}_ok')
    p(f's_cmp_ge_u32 s{sT1}, {SPIN}')
    p(f's_cbranch_scc1 {Lk}_ok')
    p('s_sleep 1')
    p(f's_branch {Lk}')
    p.label(Lk + '_ok')
    (p.stamp('argmax ready') if 'ln' not in opt else None)
    p(f'v_max_u32 v20, v20, v22')
    p(f'v_max_u32 v24, v24, v26')
    p('s_nop 0')
    p(f'v_max_u32 v20, v20, v24')
    for sh in (8, 4, 2, 1):
        p('s_nop 1')
        p(f'v_max_u32_dpp v20, v20, v20 row_ror:{sh} row_mask:0xf bank_mask:0xf')
    for sw in ('v_permlane16_swap_b32', 'v_permlane32_swap_b32'):
        p(f'v_mov_b32 v21, v20')
        p('s_nop 1')
        p(f'{sw} v20, v21')
        p('s_nop 1')
        p(f'v_max_u32 v20, v20, v21')
    p(f'v_mov_b32 v21, {RB}')
    p(f'ds_write_b32 v21, v20 offset:512')
    p('s_waitcnt lgkmcnt(0)')
    p.label(f'{name}_w4')
    p('s_barrier')
    p(f'v_mov_b32 v21, {RB}')
    p(f'ds_read_b32 v20, v21 offset:512')
    p('s_waitcnt lgkmcnt(0)')
    p(f'v_readfirstlane_b32 s{sR}, v20')
    p('s_nop 4')
    p(f's_and_b32 s{sIdx}, s{sR}, 0xffff')
    p(f's_sub_u32 s{sIdx}, 0xffff, s{sIdx}')
    p(f's_min_u32 s{sIdx}, s{sIdx}, 2047')
    p(f's_lshr_b32 s{sR}, s{sR}, 16')
    p(f's_xor_b32 s{sT0}, s{sR}, 0xffff')
    p(f's_and_b32 s{sT1}, s{sR}, 0x7fff')
    p(f's_bitcmp1_b32 s{sR}, 15')
    p(f's_cselect_b32 s{sR}, s{sT1}, s{sT0}')
    p(f's_lshl_b32 s{sR}, s{sR}, 16')
    p(f's_lshr_b32 s{sT0}, s{sIdx}, 7')
    p(f's_bfe_u32 s{sT1}, s{sIdx}, 0x40003')
    p(f's_lshr_b32 s{sT2}, s{sT1}, 2')
    p(f's_lshl_b32 s{sT2}, s{sT2}, 1')
    p(f's_lshr_b32 s14, s{sT0}, 3')
    p(f's_add_u32 s{sT2}, s{sT2}, s14')
    p(f's_and_b32 s{sT1}, s{sT1}, 3')
    p(f's_lshl_b32 s{sT1}, s{sT1}, 3')
    p(f's_and_b32 s{sT0}, s{sT0}, 7')
    p(f's_add_u32 s{sT1}, s{sT1}, s{sT0}')
    p(f's_lshl_b32 s{sT1}, s{sT1}, 3')
    p(f's_add_u32 s{sT1}, s{sT1}, s{sT2}')
    p(f's_lshl_b32 s{sT1}, s{sT1}, 2')
    p(f's_add_u32 s{sT0}, s{sT1}, {O_RDY}')
    Lr = p.nl(name + '_pollR')
    p(f's_mov_b32 s{sT1}, 0')
    p(f'v_mov_b32 v{t0}, 0')
    p.label(Lr)
    p(f'buffer_load_dword v{t1}, v{t0}, s[{S_ST}:{S_ST+3}], s{sT0} offen sc1')
    p('s_waitcnt vmcnt(0)')
    p(f'v_readfirstlane_b32 s{sT2}, v{t1}')
    p(f's_add_u32 s{sT1}, s{sT1}, 1')
    p(f's_cmp_eq_u32 s{sT2}, s{sTag}')
    p(f's_cbranch_scc1 {Lr}_ok')
    p(f's_cmp_ge_u32 s{sT1}, {SPIN}')
    p(f's_cbranch_scc1 {Lr}_ok')
    p(f's_branch {Lr}')
    p.label(Lr + '_ok')
    tid = 2
    p(f's_lshl_b32 s{sT0}, s{sW}, 6')
    p(f'v_add_u32 v{tid}, s{sT0}, v0')
    p(f'v_lshlrev_b32 v3, 4, v{tid}')
    p(f's_mul_i32 s{sT1}, s{sIdx}, 1280')
    p(f'buffer_load_dwordx4 v[20:23], v3, s[{S_H}:{S_H+3}], s{sT1} offen sc1')
    p(f's_lshl_b32 s{sT0}, s{sIdx}, 2')
    p(f'v_mov_b32 v4, s{sT0}')
    p(f's_mov_b32 s{sT0}, 8192')
    p(f'buffer_load_dword v{mb_}, v4, s[{S_ST}:{S_ST+3}], s{sT0} offen sc1')
    p(f's_mov_b32 s{sT0}, 16384')
    p(f'buffer_load_dword v{sd}, v4, s[{S_ST}:{S_ST+3}], s{sT0} offen sc1')
    p('s_waitcnt vmcnt(0)')
    p(f'v_rcp_f32 v{sm}, v{sd}')
    for k in range(4):
        p(f'v_lshlrev_b32 v{t0}, 16, v{20+k}')
        p(f'v_and_b32 v{t1}, 0xffff0000, v{20+k}')
        p(f'v_sub_f32 v{t0}, v{t0}, v{mb_}')
        p(f'v_sub_f32 v{t1}, v{t1}, v{mb_}')
        p(f'v_cvt_pk_bf16_f32 v{t0}, v{t0}, v{t1}')
        p(f'v_and_b32 v{t1}, 0xffff0000, v{t0}')
        p(f'v_lshlrev_b32 v{t0}, 16, v{t0}')
        p(f'v_mul_f32 v{t0}, v{t0}, v{sm}')
        p(f'v_mul_f32 v{t1}, v{t1}, v{sm}')
        p(f'v_cvt_pk_bf16_f32 v{24+k}, v{t0}, v{t1}')
    HNL = STH
    p(f'v_cmp_gt_u32 vcc, 80, v{tid}')
    p('s_nop 1')
    p('s_and_saveexec_b64 s[14:15], vcc')
    p(f's_cbranch_execz {name}_h1')
    p(f'v_add_u32 v4, {HNL}, v3')
    p(f'ds_write_b128 v4, v[24:27]')
    p(f'ds_write_b128 v4, v[20:23] offset:1280')
    p.label(f'{name}_h1')
    p('s_mov_b64 exec, s[14:15]')
    p('s_waitcnt lgkmcnt(0)')
    p('s_barrier')
    p(f'v_lshrrev_b32 v5, 4, v0')
    p(f's_mul_i32 s{sT0}, s{sW}, 320')
    p(f's_add_u32 s{sT0}, s{sT0}, {HNL}')
    p(f'v_lshlrev_b32 v6, 4, v5')
    p(f'v_add_u32 v6, s{sT0}, v6')
    p(f'v_bfe_u32 v7, v0, 2, 2')
    p(f'v_lshl_add_u32 v7, v5, 3, v7')
    p(f'v_lshlrev_b32 v7, 6, v7')
    p(f'v_and_b32 v8, 3, v0')
    p(f'v_lshl_add_u32 v7, v8, 3, v7')
    p(f's_mul_i32 s{sT0}, s{sW}, {5*32*64}')
    p(f'v_add_u32 v7, s{sT0}, v7')
    AF = 28
    BF = 48
    D = 130
    for k in range(5): p(f'ds_read_b128 v[{AF+4*k}:{AF+4*k+3}], v6 offset:{64*k}')
    for k in range(5):
        b = BF + 16*(k % 4)
        for mat in range(2):
            for cb in range(2):
                for h in range(2):
                    r = b + (mat*2 + cb)*4 + 2*h
                    p(f'ds_read_b64_tr_b16 v[{r}:{r+1}], v7 offset:{mat*40960 + k*2048 + h*256 + cb*32}')
        p('s_waitcnt lgkmcnt(0)')
        for t in range(4):
            c = '0' if k == 0 else f'v[{D+4*t}:{D+4*t+3}]'
            p(f'{MF} v[{D+4*t}:{D+4*t+3}], v[{AF+4*k}:{AF+4*k+3}], v[{b+4*t}:{b+4*t+3}], {c}')
    p('s_nop 7')
    XB = RB + 1024
    p(f'v_and_b32 v8, 15, v0')
    p(f'v_lshlrev_b32 v8, 2, v8')
    p(f's_lshl_b32 s{sT0}, s{sW}, 8')
    p(f's_add_u32 s{sT0}, s{sT0}, {XB}')
    p(f'v_add_u32 v9, s{sT0}, v8')
    for t in range(4): p(f'ds_write_b32 v9, v{D+4*t} offset:{64*t}')
    p('s_waitcnt lgkmcnt(0)')
    p('s_barrier')
    p(f'v_and_b32 v8, 31, v0')
    p(f'v_lshlrev_b32 v8, 2, v8')
    p(f'v_add_u32 v8, {XB}, v8')
    for w in range(4):
        p(f'ds_read_b32 v{20+w}, v8 offset:{256*w}')
        p(f'ds_read_b32 v{24+w}, v8 offset:{256*w+128}')
    p('s_waitcnt lgkmcnt(0)')
    for b in (20, 24):
        p(f'v_add_f32 v{b}, v{b}, v{b+1}')
        p(f'v_add_f32 v{b+2}, v{b+2}, v{b+3}')
        p(f'v_add_f32 v{b}, v{b}, v{b+2}')
    g_, u_ = 20, 24
    for x in rne_keep(g_, g_): p(x)
    for x in rne_keep(u_, u_): p(x)
    p(f'v_mul_f32 v{t1}, 0xbfb8aa3b, v{g_}')
    p(f'v_exp_f32 v{t1}, v{t1}')
    p('s_nop 0')
    p(f'v_add_f32 v{t1}, 1.0, v{t1}')
    p(f'v_rcp_f32 v{t1}, v{t1}')
    p('s_nop 0')
    p(f'v_mul_f32 v{g_}, v{g_}, v{t1}')
    for x in rne_keep(g_, g_): p(x)
    p(f'v_mul_f32 v{g_}, v{g_}, v{u_}')
    p(f'v_cvt_pk_bf16_f32 v{g_}, v{g_}, v{g_}')
    AB = RB + 2048
    p(f's_lshl_b32 s{sT0}, s{sW}, 6')
    p(f's_add_u32 s{sT0}, s{sT0}, {AB}')
    p(f'v_and_b32 v8, 31, v0')
    p(f'v_lshlrev_b32 v8, 1, v8')
    p(f'v_add_u32 v8, s{sT0}, v8')
    p(f'ds_write_b16 v8, v{g_}')
    p(f'v_lshlrev_b32 v9, 4, v5')
    p(f'v_add_u32 v9, s{sT0}, v9')
    p('s_waitcnt lgkmcnt(0)')
    p(f'ds_read_b128 v[{AF}:{AF+3}], v9')
    p(f'v_bfe_u32 v7, v0, 2, 2')
    p(f'v_lshl_add_u32 v7, v5, 3, v7')
    p(f'v_mul_u32_u24 v7, 1280, v7')
    p(f'v_and_b32 v8, 3, v0')
    p(f'v_lshl_add_u32 v7, v8, 3, v7')
    p(f's_mul_i32 s{sT0}, s{sW}, 320')
    p(f's_add_u32 s{sT0}, s{sT0}, 81920')
    p(f'v_add_u32 v7, s{sT0}, v7')
    for mb in range(10):
        for h in range(2):
            r = BF + 4*mb + 2*h
            p(f'ds_read_b64_tr_b16 v[{r}:{r+1}], v7 offset:{h*5120 + mb*32}')
    p('s_waitcnt lgkmcnt(0)')
    Y = 130
    for mb in range(10): p(f'{MF} v[{Y+4*mb}:{Y+4*mb+3}], v[{AF}:{AF+3}], v[{BF+4*mb}:{BF+4*mb+3}], 0')
    p('s_nop 7')
    for i in range(3):
        dst = 20 + i
        p(f'v_mov_b32 v{dst}, v{Y+4*min(4*i, 9)}')
        for g in range(1, 4):
            mb = 4*i + g
            if mb < 10:
                p(f'v_cmp_eq_u32 vcc, {g}, v5')
                p('s_nop 1')
                p(f'v_cndmask_b32 v{dst}, v{dst}, v{Y+4*mb}, vcc')
    p(f's_and_b32 s{sT0}, s{sFj}, 7')
    p(f's_mul_i32 s{sT0}, s{sT0}, 2560')
    p(f's_add_u32 s{sT0}, s{sT0}, {WS_YACC - WS_STAT}')
    p(f's_mul_i32 s{sT1}, s{sW}, 640')
    p(f's_add_u32 s{sT0}, s{sT0}, s{sT1}')
    p(f'v_lshlrev_b32 v8, 2, v0')
    p(f'buffer_atomic_add_f32 v20, v8, s[{S_ST}:{S_ST+3}], s{sT0} offen')
    p(f'buffer_atomic_add_f32 v21, v8, s[{S_ST}:{S_ST+3}], s{sT0} offen offset:256')
    p('v_cmp_gt_u32 vcc, 32, v0')
    p('s_nop 1')
    p('s_and_saveexec_b64 s[14:15], vcc')
    p(f'buffer_atomic_add_f32 v22, v8, s[{S_ST}:{S_ST+3}], s{sT0} offen offset:512')
    p('s_mov_b64 exec, s[14:15]')
    p('s_waitcnt vmcnt(0)')
    p('s_barrier')
    (p.stamp('ffn atomics done') if 'ln' not in opt else None)
    p(f's_cmp_lg_u32 s{sW}, 0')
    p(f's_cbranch_scc1 {name}_w5')
    p(f's_lshl_b32 s{sT0}, s{sFj}, 2')
    p(f's_add_u32 s{sT0}, s{sT0}, {O_FF}')
    p(f'v_mov_b32 v{t0}, 0')
    p(f'v_mov_b32 v{t1}, s{sTag}')
    p('v_cmp_eq_u32 vcc, 0, v0')
    p('s_nop 1')
    p('s_and_saveexec_b64 s[14:15], vcc')
    p(f'buffer_store_dword v{t1}, v{t0}, s[{S_ST}:{S_ST+3}], s{sT0} offen sc1')
    p('s_mov_b64 exec, s[14:15]')
    p.label(f'{name}_w5')
    p(f's_cmp_lg_u32 s{sFj}, 0')
    p(f's_cbranch_scc1 {name}_fin')
    Lf = p.nl(name + '_pollF')
    p(f's_mov_b32 s{sT1}, 0')
    p(f's_mov_b32 s{sT0}, {O_FF}')
    p(f'v_lshlrev_b32 v{t0}, 2, v0')
    p(f'v_cmp_gt_u32 s[14:15], {NFFN}, v0')
    p.label(Lf)
    p(f'buffer_load_dword v{t1}, v{t0}, s[{S_ST}:{S_ST+3}], s{sT0} offen sc1')
    p('s_waitcnt vmcnt(0)')
    p(f'v_cmp_ne_u32 vcc, s{sTag}, v{t1}')
    p(f's_add_u32 s{sT1}, s{sT1}, 1')
    p('s_nop 0')
    p('s_and_b64 vcc, vcc, s[14:15]')
    p(f's_cbranch_vccz {Lf}_ok')
    p(f's_cmp_ge_u32 s{sT1}, {SPIN}')
    p(f's_cbranch_scc1 {Lf}_ok')
    p('s_sleep 1')
    p(f's_branch {Lf}')
    p.label(Lf + '_ok')
    p(f'v_lshlrev_b32 v8, 2, v{tid}')
    GW = 20
    for i in range(3):
        for c in range(8):
            p(f's_mov_b32 s{sT0}, {WS_YACC - WS_STAT + c*2560 + i*1024}')
            p(f'buffer_load_dword v{GW+8*i+c}, v8, s[{S_ST}:{S_ST+3}], s{sT0} offen sc0 sc1')
    p(f'v_lshlrev_b32 v9, 1, v{tid}')
    p(f'v_add_u32 v10, {HNL}, v9')
    for i in range(3):
        p(f'ds_read_u16 v{50+i}, v10 offset:{512*i}')
        p(f'ds_read_u16 v{54+i}, v10 offset:{1280 + 512*i}')
    p(f'v_mov_b32 v{t1}, s{sR}')
    p(f'v_mul_f32 v{t1}, 0xbfb8aa3b, v{t1}')
    p(f'v_exp_f32 v{t1}, v{t1}')
    p('s_nop 0')
    p(f'v_add_f32 v{t1}, 1.0, v{t1}')
    p(f'v_rcp_f32 v{t1}, v{t1}')
    p('s_nop 0')
    for x in rne_keep(t1, t1): p(x)
    p('s_waitcnt vmcnt(0) lgkmcnt(0)')
    p(f's_mul_i32 s{sT1}, s{sIdx}, 1280')
    for i in range(3):
        b = GW + 8*i
        for c in range(1, 8): p(f'v_add_f32 v{b}, v{b}, v{b+c}')
        for x in rne_keep(b, b): p(x)
        p(f'v_mul_f32 v{b}, v{b}, v{t1}')
        for x in rne_keep(b, b): p(x)
        p(f'v_lshlrev_b32 v{50+i}, 16, v{50+i}')
        p(f'v_lshlrev_b32 v{54+i}, 16, v{54+i}')
        p(f'v_add_f32 v{b}, v{b}, v{50+i}')
        for x in rne_keep(b, b): p(x)
        p(f'v_add_f32 v{b}, v{b}, v{54+i}')
        p(f'v_cvt_pk_bf16_f32 v{b}, v{b}, v{b}')
    p(f'buffer_store_short v{GW}, v9, s[{S_OUT}:{S_OUT+3}], s{sT1} offen sc1')
    p(f'buffer_store_short v{GW+8}, v9, s[{S_OUT}:{S_OUT+3}], s{sT1} offen offset:512 sc1')
    p(f'v_cmp_gt_u32 vcc, 128, v{tid}')
    p('s_nop 1')
    p('s_and_saveexec_b64 s[14:15], vcc')
    p(f's_cbranch_execz {name}_x')
    p(f'buffer_store_short v{GW+16}, v9, s[{S_OUT}:{S_OUT+3}], s{sT1} offen offset:1024 sc1')
    p.label(f'{name}_x')
    p('s_mov_b64 exec, s[14:15]')
    p.label(f'{name}_fin')
    p.dump_stamps(12, 101*MiB, 13)
    p.label(f'{name}_tdone')
    nerr = 0
    return nerr
```

```python
import sys
from kf import gen_kf
from common import *
prof = len(sys.argv) > 1 and sys.argv[1] == 'prof'
out = sys.argv[2] if len(sys.argv) > 2 else 'all.s'
NAME = 'sequential_preLN__compressed_kv_cla__moe_arch_mod__prompt_kernel'
nm = NAME if not prof else 'front_kernel'
p, e = gen_kf(name=nm, prof=prof, **({'opt': tuple(sys.argv[3:])} if len(sys.argv) > 3 else {}))
print('total errors', e)
hdr = """; Kernarg layout (112 bytes, ptrs only): x, c_kv, w_q, w_uk, w_uv, w_o, B_x, w_r, w_gate, w_up, w_down, out, debug, ws
"""
hdr += f'; @launch kernel={nm} grid=(256,1,1) block=(256,1,1) lds=163840\n'
body = '.amdgcn_target "amdgcn-amd-amdhsa--gfx950"\n.text\n' + header(nm) + p.text() + 'code_end_all:\n    s_endpgm\n'
d = '.section .rodata,"a"\n' + desc(nm, 512, 102, 256)
open(out, 'w').write(hdr + body + d)
```

```python
from common import *
from gx2 import *
from sched import *
from k1b import w_tile_setup, MF
from lnops import *
WS_FLG = 82*MiB

CTX_FLAGS = 'sc1'
LIM = 0x5d800000
NEGBIG = 0xff800000
opt_idx = [0]
PREFETCH = True

def gen_kf(name='front_kernel', prof=False, opt=()):
    p = P2(); p.prof = prof
    p.lenient = 'nordsA' in opt
    put = make_put(p)
    S_WQ, S_XNF, S_KF, S_VF, S_CTX = 16, 20, 24, 28, 32
    sM = 36
    sW, sH, sI = 44, 45, 46
    sT0, sT1, sT2 = 47, 48, 49
    sLW = 50
    sWoff = 51
    sXL, sXS = 52, 53
    sKb, sVb = 54, 55
    sHbase = 56
    sSlotP, sSlotR = 57, 58
    sTL, sTS = 59, 60
    sCnt = 61
    sDd = 62
    sFlag = 63
    sCtx = 64
    sLim = 65
    sScale = 61
    sSel = 4
    vLane16 = 1; vRd = 2; vNinf = 3
    vOffW = 4
    vLPW = 8; vT = 9
    vNeg = 16; vCi = 32; vS = 48; vP = 80; vE = 112; vL = 116; vU = 120
    vCW = 120
    vWF = 48
    vO = 128
    aQ = 0; aK = 64; aV = 96; aX = 128
    O = lambda c, db: vO + 32*c + 4*db
    Sr = lambda sc, kb: vS + 8*sc + 4*kb
    Pr = lambda par, c: vP + 16*par + 4*c
    NSLOT = 5

    S_CKV, S_X, S_DBG = 4, 8, 88
    S_WUK, S_WUV = 36, 40
    S_FL = 68
    sTag = 3
    sXcc = 67; sSame = 66
    sASum = sFlag
    sAoff = sDd; sWr = sCtx; sAr = sLim; sWp = sKb; sAp = sVb; sKst = sSlotP
    vOffA = 16
    vLPA = 20; vCA = 21
    vWK = 32; vWV = 64; vAct = 128
    SPIN = 1 << 16
    p(f's_cmp_ge_u32 s2, 256')
    p(f's_cbranch_scc1 {name}_done')
    p.stamp('start')
    p(f's_load_dwordx2 s[84:85], s[0:1], {ARG["x"]}')
    p(f's_load_dwordx2 s[86:87], s[0:1], {ARG["ckv"]}')
    p(f's_load_dwordx4 s[88:91], s[0:1], {ARG["wuk"]}')
    p(f's_load_dwordx2 s[92:93], s[0:1], {ARG["wq"]}')
    p(f's_load_dwordx4 s[96:99], s[0:1], {ARG["dbg"]}')
    p('s_and_b32 s14, s2, 7')
    p('s_lshr_b32 s15, s2, 3')
    p(f's_lshr_b32 s{sH}, s15, 3')
    p(f's_lshl_b32 s14, s14, 2')
    p(f's_add_u32 s{sH}, s{sH}, s14')
    p(f's_and_b32 s{sI}, s15, 7')
    p('v_lshrrev_b32 v2, 6, v0')
    p('v_and_b32 v0, 63, v0')
    p(f'v_readfirstlane_b32 s{sW}, v2')
    p(f'v_lshlrev_b32 v{vLane16}, 4, v0')
    p(f's_getreg_b32 s{sXcc}, hwreg(HW_REG_XCC_ID, 0, 4)')
    w_tile_setup(p, vOffW, vLPW, vT)
    p(f'v_lshrrev_b32 v{vT}, 3, v0')
    p(f'v_lshlrev_b32 v{vT}, 10, v{vT}')
    p(f'v_lshrrev_b32 v{vT+1}, 4, v0')
    p(f'v_and_b32 v{vT+2}, 7, v0')
    p(f'v_xor_b32 v{vT+2}, v{vT+2}, v{vT+1}')
    p(f'v_lshl_add_u32 v{vOffA}, v{vT+2}, 4, v{vT}')
    p(f'v_xor_b32 v{vT+3}, 4, v{vT+2}')
    p(f'v_lshl_add_u32 v{vOffA+1}, v{vT+3}, 4, v{vT}')
    p(f'v_add_u32 v{vOffA+2}, {2*7168}, v{vOffA}')
    p(f'v_add_u32 v{vOffA+3}, {3*7168}, v{vOffA+1}')
    p(f'v_add_u32 v{vOffA+1}, {1*7168}, v{vOffA+1}')
    p(f'v_and_b32 v{vT}, 15, v0')
    p(f'v_bfe_u32 v{vT+1}, v0, 1, 3')
    p(f'v_lshrrev_b32 v{vT+2}, 4, v0')
    p(f'v_xor_b32 v{vT+1}, v{vT+1}, v{vT+2}')
    p(f'v_lshlrev_b32 v{vT}, 7, v{vT}')
    p(f'v_lshl_add_u32 v{vLPA}, v{vT+1}, 4, v{vT}')
    p(f's_lshl_b32 s{sLW}, s{sW}, 12')
    p(f's_lshl_b32 s{sWoff}, s{sW}, 17')
    p(f's_lshl_b32 s{sT1}, s{sH}, 8')
    p(f's_add_u32 s{sWoff}, s{sWoff}, s{sT1}')
    p(f's_lshl_b32 s{sT0}, s{sI}, 8')
    p(f's_lshl_b32 s{sT1}, s{sW}, 6')
    p(f's_add_u32 s{sT0}, s{sT0}, s{sT1}')
    p(f's_lshl_b32 s{sAoff}, s{sT0}, 10')
    sK0 = sXL; sLA = sXS
    p(f's_lshl_b32 s{sHbase}, s{sH}, 6')
    p(f's_lshr_b32 s{sT1}, s{sT0}, 5')
    p(f's_add_u32 s{sHbase}, s{sHbase}, s{sT1}')
    p(f's_lshl_b32 s{sHbase}, s{sHbase}, 13')
    p(f's_lshl_b32 s{sLA}, s{sW}, 13')
    p('s_waitcnt lgkmcnt(0)')
    srd(p, S_CKV, 86, 2048*512*2)
    srd(p, S_WUK, 88, 512*4096*2)
    srd(p, S_WUV, 90, 512*4096*2)
    SL = 16384
    ACT0 = 98304
    def emit(L):
        prev = None
        for it in L:
            if it[0] == 'm' and prev is not None and prev[0] == 's' and ' m0,' in prev[1]: put(('s', 's_nop 0'))
            put(it); prev = it
    def dmaW_static(st):
        base = (st % 3)*32768; L = []
        for mi, sr in enumerate((S_WUK, S_WUV)):
            L += [('s', f's_add_u32 s{sT0}, s{sWoff}, {st*64*8192}'), ('s', f's_add_u32 m0, s{sLW}, {base + mi*SL}')]
            for i in range(4): L.append(('m', f'buffer_load_dwordx4 v{vOffW+i}, s[{sr}:{sr+3}], s{sT0} offen offset:{1024*i} lds', f'W{st}', ('W', base + mi*SL, base + (mi+1)*SL, True)))
        return L
    def dmaA_static(st):
        base = ACT0 + (st % 2)*32768; L = []
        for half in range(2):
            L += [('s', f's_add_u32 s{sT1}, s{sAoff}, {st*128 + 32768*half}'), ('s', f's_add_u32 m0, s{sLA}, {base + 4096*half}')]
            for i in range(4): L.append(('m', f'buffer_load_dwordx4 v{vOffA+i}, s[{S_CKV}:{S_CKV+3}], s{sT1} offen offset:{1024*i} lds', f'A{st}', ('W', base, base + 32768, False)))
        return L
    if 'pp' in opt: p.stamp('setup')
    emit(dmaA_static(0)); emit(dmaW_static(0))
    if 'pp' in opt: p.stamp('A0W0 issued')
    srd(p, S_X, 84, 2048*640*2)
    srd(p, S_WQ, 92, 640*4096*2)
    srd(p, S_XNF, 98, SZ_XNF, WS_XNF)
    srd(p, S_KF, 98, SZ_KF, WS_KF)
    srd(p, S_VF, 98, SZ_KF, WS_VF)
    srd(p, S_CTX, 98, SZ_CTX, WS_CTX)
    srd(p, S_FL, 98, 8192, WS_FLG)
    X = 160; RAW = 200; vXo = 220; vXn = 221; LT = 224
    p(f's_lshl_b32 s{sT1}, s2, 3')
    p(f's_and_b32 s14, s{sW}, 1')
    p(f's_lshl_b32 s14, s14, 2')
    p(f's_add_u32 s{sT1}, s{sT1}, s14')
    p(f'v_and_b32 v{vT}, 3, v0')
    p(f'v_add_u32 v{vT}, s{sT1}, v{vT}')
    p(f'v_lshrrev_b32 v{vT+1}, 2, v0')
    p(f'v_mul_u32_u24 v{vXo}, 1280, v{vT}')
    p(f'v_lshl_add_u32 v{vXo}, v{vT+1}, 4, v{vXo}')
    p(f'v_lshrrev_b32 v{vXn}, 4, v{vT}')
    p(f'v_mul_u32_u24 v{vXn}, 20, v{vXn}')
    p(f'v_lshrrev_b32 v{vT+2}, 2, v{vT+1}')
    p(f'v_add_u32 v{vXn}, v{vXn}, v{vT+2}')
    p(f'v_lshlrev_b32 v{vXn}, 10, v{vXn}')
    p(f'v_and_b32 v{vT+2}, 3, v{vT+1}')
    p(f'v_lshlrev_b32 v{vT+2}, 4, v{vT+2}')
    p(f'v_and_b32 v{vT+3}, 15, v{vT}')
    p(f'v_add_u32 v{vT+2}, v{vT+2}, v{vT+3}')
    p(f'v_lshl_add_u32 v{vXn}, v{vT+2}, 4, v{vXn}')
    for i in range(5):
        p(f'buffer_load_dwordx4 v[{RAW+4*i}:{RAW+4*i+3}], v{vXo}, s[{S_X}:{S_X+3}], 0 offen offset:{256*i}')
    S_LNS = 96
    if 'nocode' not in opt:
        p(f's_lshr_b32 s14, s2, 3')
        p(f's_cmp_ge_u32 s14, 12')
        p(f's_cbranch_scc1 {name}_nocode')
        p(f's_cmp_lg_u32 s{sW}, 3')
        p(f's_cbranch_scc1 {name}_nocode')
        p('s_getpc_b64 s[76:77]')
        p.label(f'{name}_pc')
        p(f's_lshl_b32 s14, s14, 13')
        p(f'v_lshlrev_b32 v{vT}, 7, v0')
        p(f'v_add_u32 v{vT}, s14, v{vT}')
        p(f'v_min_u32 v{vT}, code_end_all-{name}_pc-4, v{vT}')
        p(f'v_and_b32 v{vT}, -4, v{vT}')
        p(f'global_load_dword v{vT+2}, v{vT}, s[76:77]')
        p.label(f'{name}_nocode')
    if 'notlb' not in opt:
        p('s_mov_b32 s76, s98'); p('s_mov_b32 s77, s99'); p(f's_mov_b32 s78, {96*MiB}'); p('s_mov_b32 s79, 0x00020000')
        p(f'v_mov_b32 v{vT}, {WS_FLG}')
        p(f's_add_u32 s14, s{sHbase}, {WS_KF}'); p(f'v_writelane_b32 v{vT}, s14, 1')
        p(f's_add_u32 s14, s{sHbase}, {WS_VF}'); p(f'v_writelane_b32 v{vT}, s14, 2')
        p(f's_lshl_b32 s15, s{sH}, 19')
        for k in range(2):
            p(f's_add_u32 s14, s15, {WS_KF + k*524160}'); p(f'v_writelane_b32 v{vT}, s14, {3 + 2*k}')
            p(f's_add_u32 s14, s15, {WS_VF + k*524160}'); p(f'v_writelane_b32 v{vT}, s14, {4 + 2*k}')
        p(f's_mov_b32 s14, {WS_XNF}'); p(f'v_writelane_b32 v{vT}, s14, 7')
        p(f's_mov_b32 s14, {WS_XNF + 2*MiB}'); p(f'v_writelane_b32 v{vT}, s14, 8')
        p(f's_sub_u32 s14, 15, s{sI}'); p('s_lshl_b32 s14, s14, 20'); p(f's_add_u32 s14, s14, {WS_CTX}'); p(f'v_writelane_b32 v{vT}, s14, 9')
        p(f's_lshl_b32 s14, s{sI}, 20'); p(f's_add_u32 s14, s14, {WS_CTX}'); p(f'v_writelane_b32 v{vT}, s14, 10')
        p(f'buffer_load_dword v{vT+2}, v{vT}, s[76:79], 0 offen')
    if 'pp' in opt: p.stamp('x issued')
    srd(p, S_DBG, 96, 256)
    p('v_mov_b32 v26, 0')
    p('s_or_b32 s14, s2, 0')
    p(f's_add_u32 s14, s2, s{sW}')
    p('s_cmp_lg_u32 s14, 0')
    p(f's_cbranch_scc1 {name}_notag')
    p('s_memrealtime s[92:93]')
    p('s_waitcnt lgkmcnt(0)')
    p('s_or_b32 s92, s92, 1')
    p('v_mov_b32 v24, s92')
    p(f'buffer_store_dword v24, v26, s[{S_DBG}:{S_DBG+3}], 0 offen sc1')
    p.label(f'{name}_notag')
    if 'pp' in opt: p.stamp('tag issued')
    emit(dmaA_static(1)); emit(dmaW_static(1))
    (p.stamp('dma issued') if 'pq' not in opt else None)
    p('s_cmp_lg_u32 s2, 0')
    p(f's_cbranch_scc1 {name}_nz')
    p(f's_add_u32 s76, s98, {WS_YACC}')
    p('s_addc_u32 s77, s99, 0')
    p(f's_mov_b32 s78, {SZ_ZERO}')
    p('s_mov_b32 s79, 0x00020000')
    for r in range(4): p(f'v_mov_b32 v{28+r}, 0')
    p(f's_mul_i32 s14, s{sW}, 7168')
    for i in range(7):
        p(f'buffer_store_dwordx4 v[28:31], v{vLane16}, s[76:79], s14 offen sc1')
        p(f's_add_u32 s14, s14, 1024')
    p.label(f'{name}_nz')
    p(f's_add_u32 s96, s98, {WS_XNF}')
    p('s_addc_u32 s97, s99, 0')
    p(f's_mov_b32 s98, {SZ_XNF}')
    p('s_mov_b32 s99, 0x00020000')
    p(f's_cmp_lt_u32 s{sW}, 2')
    p('s_cselect_b32 s98, s98, 0')
    p('s_waitcnt vmcnt(16)')
    p('s_barrier')
    (p.stamp('B0') if 'pq' not in opt else None)
    def rd_act(buf, kin, tb, lab):
        r = vAct + 16*buf + 4*tb
        return ('r', f'ds_read_b128 v[{r}:{r+3}], v{vCA+kin} offset:{2048*tb}', lab)
    def rd_wA(mi, db, kin, lab):
        r = (vWK if mi == 0 else vWV) + 4*db
        return [('r', f'ds_read_b64_tr_b16 v[{r+2*h}:{r+2*h+1}], v{vCW+db} offset:{mi*SL + 8192*kin + 1024*h}', lab) for h in range(2)]
    updA = [('v', f'v_add_u32 v{vCA}, s{sAr}, v{vLPA}'), ('v', f'v_xor_b32 v{vCA+1}, 64, v{vCA}')]
    updWd = [('v', f'v_add_u32 v{vCW}, s{sWr}, v{vLPW}')] + [('v', f'v_xor_b32 v{vCW+db}, {db*32}, v{vCW}') for db in range(1, 8)]
    KA = lambda tb, db: (tb*8 + db)*4
    VA = lambda tb, db: 128 + ((tb >> 1)*16 + db*2 + (tb & 1))*4
    def stageA_mfmas(first):
        L = []
        for kin in range(2):
            for db in range(8):
                for tb in range(4):
                    a = KA(tb, db); f = vAct + 16*kin + 4*tb
                    c = '0' if (first and kin == 0) else f'a[{a}:{a+3}]'
                    L.append(f'{MF} a[{a}:{a+3}], v[{vWK+4*db}:{vWK+4*db+3}], v[{f}:{f+3}], {c}')
                for tb in range(4):
                    a = VA(tb, db); f = vAct + 16*kin + 4*tb
                    c = '0' if (first and kin == 0) else f'a[{a}:{a+3}]'
                    L.append(f'{MF} a[{a}:{a+3}], v[{f}:{f+3}], v[{vWV+4*db}:{vWV+4*db+3}], {c}')
        return L
    GA = lambda kin, db, m: kin*64 + db*8 + m
    def spread(R, L, g0, g1):
        nm = sum(1 for x in L if x[0] in ('m', 'l', 'st'))
        step = max(1, (g1 - g0) // max(nm, 1))
        g = g0; cnt = 0; prev = None
        for it in L:
            e = max(g, g0 + cnt*step - (2 if it[0] == 's' else 0))
            if it[0] == 'm' and prev is not None and prev[0] == 's' and ' m0,' in prev[1]: e = max(e, gprev + 1)
            g = R.place(it, e, g1); gprev = g; prev = it
            if it[0] in ('m', 'l', 'st'): cnt += 1; g += 1
    def stageA(kind, dmaA_items, dmaB_items, barlabs, next_reads=None, mid=None, first=False, bend=None):
        R = Region(stageA_mfmas(first))
        BG = GA(1, 0, 7)
        R.S[BG].append(('bar', barlabs))
        if mid: R.S[BG].extend(mid)
        if next_reads is None:
            R.S[GA(1, 0, 1)].append(('s', f's_add_u32 s{sWr}, s{sWr}, 32768'))
            R.S[GA(1, 0, 2)].append(('s', f's_cmp_ge_u32 s{sWr}, 98304\ns_cselect_b32 s{sWr}, 0, s{sWr}'))
            R.S[GA(1, 0, 3)].append(('s', f's_sub_u32 s{sAr}, s{sASum}, s{sAr}'))
            R.stream(updA + updWd, GA(1, 0, 4), GA(1, 2, 0))
        else:
            R.stream(next_reads[0], GA(1, 0, 4), GA(1, 2, 0))
        for kin in range(2):
            for db in range(8):
                for mi in range(2):
                    if kin == 0 and db == 0 and mi == 0: continue
                    labs = [f'w{kin}_{mi}_{db}'] + ([f'act{kin}'] if (db == 0 and mi == 0) else [])
                    R.place(('wlg', labs), GA(kin, db, 4*mi) - 1, force=True)
        for db in range(8):
            for mi in range(2):
                rr = rd_wA(mi, db, 1, f'w1_{mi}_{db}')
                e = GA(0, db, 4*mi + 3)
                g = R.place(rr[0], e, GA(1, 0, 0)); R.place(rr[1], min(g + 1, GA(1, 0, 0)), GA(1, 0, 0))
        for tb in range(4): R.place(rd_act(1, 1, tb, 'act1'), GA(0, 1, 1) + 5*tb)
        if next_reads is None:
            for db in range(8):
                for mi in range(2):
                    rr = rd_wA(mi, db, 0, f'n0_{mi}_{db}')
                    e = max(GA(1, db, 4*mi + 3), GA(1, 2, 1))
                    g = R.place(rr[0], e); R.place(rr[1], g + 1)
            for tb in range(4): R.place(rd_act(0, 0, tb, 'nact0'), GA(1, 2, 2) + 5*tb)
        else:
            for (it, e) in next_reads[1]: R.place(it, max(e, GA(1, 2, 1)))
        if 'nodmaA' in opt and kind in ('s0', 's1', 'loop'): dmaA_items = [x for x in dmaA_items if x[0] != 'm']; dmaB_items = [x for x in dmaB_items if x[0] != 'm']
        if 'nowA' in opt and kind in ('s0', 's1', 'loop'):
            for g in range(R.n): R.S[g] = [x for x in R.S[g] if x[0] != 'wlg']
        if 'nordsA' in opt and kind in ('s0', 's1', 'loop'):
            for g in range(R.n): R.M[g] = []; R.S[g] = [x for x in R.S[g] if x[0] != 'wlg']
        spread(R, dmaA_items, 1, BG - 2)
        spread(R, dmaB_items, BG + 1, bend if bend else R.n - 2)
        return R
    def dyn_dmaW():
        L = []
        for mi, sr in enumerate((S_WUK, S_WUV)):
            L += [('s', f's_add_u32 m0, s{sWp}, {mi*SL}')]
            for i in range(4): L.append(('m', f'buffer_load_dwordx4 v{vOffW+i}, s[{sr}:{sr+3}], s{sKst} offen offset:{1024*i} lds', 'Wn', None))
        L += [('s', f's_add_u32 s{sKst}, s{sKst}, {64*8192}'), ('s', f's_add_u32 s{sWp}, s{sWp}, 32768'),
              ('s', f's_cmp_ge_u32 s{sWp}, 98304\ns_cselect_b32 s{sWp}, s{sLW}, s{sWp}')]
        return L
    def dyn_dmaA():
        L = []
        for half in range(2):
            L += [('s', f's_add_u32 s{sT1}, s{sAoff}, {32768*half}'), ('s', f's_add_u32 m0, s{sAp}, {4096*half}')]
            for i in range(4): L.append(('m', f'buffer_load_dwordx4 v{vOffA+i}, s[{S_CKV}:{S_CKV+3}], s{sT1} offen offset:{1024*i} lds', 'An', None))
        L += [('s', f's_add_u32 s{sAoff}, s{sAoff}, 128'), ('s', f's_sub_u32 s{sAp}, s{sASum}, s{sAp}')]
        return L
    p(f's_mov_b32 s{sWr}, 0')
    p(f's_add_u32 s{sAr}, s{sLA}, {ACT0}')
    p(f's_add_u32 s{sWp}, s{sLW}, 65536')
    p(f's_add_u32 s{sAp}, s{sLA}, {ACT0}')
    p(f's_lshl_b32 s{sASum}, s{sAp}, 1')
    p(f's_add_u32 s{sASum}, s{sASum}, 32768')
    p(f's_add_u32 s{sKst}, s{sWoff}, {2*64*8192}')
    p(f's_add_u32 s{sAoff}, s{sAoff}, 256')
    emit(updA + updWd)
    p.lgq = []; p.lg_ret = -1
    for tb in range(4): put(rd_act(0, 0, tb, 'act0'))
    for db in range(8):
        for mi in range(2): emit(rd_wA(mi, db, 0, f'w0_{mi}_{db}'))
    def next_order(R):
        L = []
        for g in range(R.n):
            for it in R.M[g]:
                if it[0] == 'r' and (it[2].startswith('n0_') or it[2] == 'nact0'):
                    L.append('act0' if it[2] == 'nact0' else 'w0_' + it[2][3:])
        return L
    order = [None]
    def relabel():
        p.lgq = list(order[0]); p.lg_ret = -1
    def bar_raw(n):
        if 'nobarA' in opt: return ('w', f's_waitcnt vmcnt({n}) lgkmcnt(0)')
        return ('w', f's_waitcnt vmcnt({n}) lgkmcnt(0)\ns_barrier')
    BG = GA(1, 0, 7)
    def fix_bar(R, n, extra=()):
        R.S[BG] = [bar_raw(n), ('call', lambda: p.lg_all())] + list(extra) + [x for x in R.S[BG] if x[0] != 'bar']
    def red64x4(r):
        L = []
        for sh in (8, 4): L += ['s_nop 1', f'v_add_f32_dpp v{r}, v{r}, v{r} row_ror:{sh} row_mask:0xf bank_mask:0xf']
        for sw in ('v_permlane16_swap_b32', 'v_permlane32_swap_b32'):
            L += [f'v_mov_b32 v{LT+6}, v{r}', 's_nop 1', f'{sw} v{r}, v{LT+6}', 's_nop 1', f'v_add_f32 v{r}, v{r}, v{LT+6}']
        return L
    lnops = []
    for i in range(5): lnops += unpack8(RAW + 4*i, X + 8*i)
    lnops += ln_stream(X, 40, LT, red64x4, scale='0x3e0293ee')
    ln = [('v', x) for x in lnops]
    for i in range(5):
        ln.append(('s', f's_mov_b32 s14, {4096*i}'))
        ln.append(('st', f'buffer_store_dwordx4 v[{X+4*i}:{X+4*i+3}], v{vXn}, s[{S_LNS}:{S_LNS+3}], s14 offen sc1'))
    half = len(ln) // 2
    def tag_read():
        p('s_mov_b32 s14, 0')
        p.label(f'{name}_tagpoll')
        p(f'v_readfirstlane_b32 s{sTag}, v24')
        p('s_add_u32 s14, s14, 1')
        p('s_nop 2')
        p(f's_cmp_lg_u32 s{sTag}, 0')
        p(f's_cbranch_scc1 {name}_notag2')
        p(f's_cmp_ge_u32 s14, {SPIN}')
        p(f's_cbranch_scc1 {name}_notag2')
        p(f'buffer_load_dword v24, v26, s[{S_DBG}:{S_DBG+3}], 0 offen sc1')
        p('s_waitcnt vmcnt(0)')
        p(f's_branch {name}_tagpoll')
        p.label(f'{name}_notag2')
    def pub_ln():
        p(f's_cmp_lg_u32 s{sCnt}, 0')
        p(f's_cbranch_scc1 {name}_nopub')
        p(f's_cmp_lg_u32 s{sW}, 0')
        p(f's_cbranch_scc1 {name}_nopub')
        p(f's_lshl_b32 s14, s2, 3')
        p(f'v_mov_b32 v24, s{sTag}')
        p(f'v_mov_b32 v25, s{sXcc}')
        p('v_mov_b32 v26, 0')
        p(f'buffer_store_dwordx2 v[24:25], v26, s[{S_FL}:{S_FL+3}], s14 offen sc1')
        p.label(f'{name}_nopub')
    R0 = stageA('s0', dyn_dmaW(), dyn_dmaA(), None, first=True, bend=BG + 34)
    fix_bar(R0, 8)
    R0.place(('l', f'buffer_load_dword v24, v26, s[{S_DBG}:{S_DBG+3}], 0 offen sc1', 'TAG'), BG + 1, force=True)
    R0.period = 20; R0.stream(ln[:half], 4, None, pace=lambda k: 4 + (k*120)//half); R0.period = 16
    p.lgq = ['act0']*4 + [f'w0_{mi}_{db}' for db in range(8) for mi in range(2) for _ in range(2)]; p.lg_ret = -1
    put(('wlg', ['w0_0_0', 'act0']))
    R0.emit(p, put); order[0] = next_order(R0)
    R1_ = stageA('s1', dyn_dmaW(), dyn_dmaA(), None, bend=BG + 34)
    fix_bar(R1_, 8, [('call', tag_read)])
    nv = [x for x in ln[half:] if x[0] == 'v']; tail = ln[half + len(nv):]
    R1_.period = 20; g = R1_.stream(ln[half:], 0, None, pace=lambda k: min((k*118)//(len(ln) - half), 200) if ln[half + k][0] == 'v' else BG + 2); R1_.period = 16
    relabel(); put(('wlg', ['w0_0_0', 'act0']))
    R1_.emit(p, put); order[0] = next_order(R1_)
    print('stage0/1 est', R0.total(), R1_.total())
    if 'ps' in opt: p.stamp('stage1 done')
    p(f's_mov_b32 s{sCnt}, 0')
    LA = f'{name}_stageA'
    p.label(LA)
    Rl = stageA('loop', dyn_dmaW(), dyn_dmaA(), None, bend=BG + 34)
    fix_bar(Rl, 8, [('call', pub_ln)])
    Rl.T[Rl.n - 1] += [('s', f's_add_u32 s{sCnt}, s{sCnt}, 1'), ('s', f's_cmp_lt_u32 s{sCnt}, 4')]
    assert 'nordsA' in opt or next_order(Rl) == order[0], 'stage read order must be periodic'
    relabel()
    put(('wlg', ['w0_0_0', 'act0']))
    Rl.emit(p, put)
    print('stageA loop est', Rl.total(), 'overflow', Rl.over)
    p(f's_cbranch_scc1 {LA}')
    if 'pp' not in opt: (p.stamp('A loop done') if 'pq' not in opt else None)
    def dma_wq(c):
        L = [('s', f's_add_u32 s{sT0}, s{sWoff}, {c*64*8192}'), ('s', f's_add_u32 m0, s{sLW}, {c*SL}')]
        for i in range(4):
            L.append(('m', f'buffer_load_dwordx4 v{vOffW+i}, s[{S_WQ}:{S_WQ+3}], s{sT0} offen offset:{1024*i} lds', f'WQ{c}', None))
        return L
    relabel()
    put(('wlg', ['w0_0_0', 'act0']))
    flagld = [('s', f's_sub_u32 s{sTL}, 15, s{sI}'), ('s', f's_mov_b32 s{sTS}, s{sI}'),
              ('v', f'v_and_b32 v24, 15, v0'), ('v', f'v_bfe_u32 v25, v0, 4, 1'),
              ('v', f'v_mov_b32 v26, s{sTL}'), ('v', f'v_mov_b32 v27, s{sTS}'),
              ('v', f'v_cmp_eq_u32 vcc, 0, v25'), ('v', 's_nop 1'), ('v', f'v_cndmask_b32 v26, v27, v26, vcc'),
              ('v', f'v_lshl_add_u32 v24, v26, 4, v24'),
              ('s', f's_and_b32 s14, s{sH}, 3'), ('s', f's_lshl_b32 s14, s14, 6'), ('s', f's_lshr_b32 s15, s{sH}, 2'), ('s', f's_add_u32 s14, s14, s15'),
              ('v', f'v_and_b32 v25, 7, v0'), ('v', f'v_lshlrev_b32 v25, 3, v25'), ('v', f'v_add_u32 v25, s14, v25'),
              ('v', f'v_cmp_gt_u32 vcc, 32, v0'), ('v', 's_nop 1'), ('v', f'v_cndmask_b32 v24, v25, v24, vcc'),
              ('v', f'v_lshlrev_b32 v24, 3, v24'),
              ('l', f'buffer_load_dwordx2 v[28:29], v24, s[{S_FL}:{S_FL+3}], 0 offen sc1', 'FL')]
    R6 = stageA('s6', dma_wq(4) + dma_wq(5), dma_wq(0) + dma_wq(1), None)
    fix_bar(R6, 8)
    R6.stream(flagld, BG + 24)
    R6.emit(p, put)
    order[0] = next_order(R6)
    XR = [16, 96, 32, 80]
    XRING = [('v', 16), ('v', 96), ('v', 32), ('v', 80), ('a', 0), ('a', 16), ('a', 32), ('a', 48)]
    def xreg(ks, c):
        t, b = XRING[ks % 8]
        return f'{t}[{b+4*c}:{b+4*c+3}]'
    def xn_load(ks):
        L = []
        for c in range(4):
            off = ks*1024 + (c & 1)*20480
            sb = sXL if c < 2 else sXS
            L.append(('s', f's_add_u32 s{sT1}, s{sb}, {off & ~4095}'))
            L.append(('l', f'buffer_load_dwordx4 {xreg(ks, c)}, v{vLane16}, s[{S_XNF}:{S_XNF+3}], s{sT1} offen offset:{off & 4095} sc1', f'XN{ks}'))
        return L
    def rd_w(db, kin, base, lab):
        r = vWF + 4*db
        return [('r', f'ds_read_b64_tr_b16 v[{r+2*h}:{r+2*h+1}], v{vCW+db} offset:{8192*kin + 1024*h}', lab, None) for h in range(2)]
    def upd_w(base):
        return [('v', f'v_add_u32 v{vCW}, {base}, v{vLPW}')] + [('v', f'v_xor_b32 v{vCW+db}, {db*32}, v{vCW}') for db in range(1, 8)]
    def lncheck():
        p(f's_cmp_lg_u32 s{sW}, 0')
        p(f's_cbranch_scc1 {name}_lnok')
        p('s_mov_b32 s14, 0')
        p.label(f'{name}_lnpoll')
        p(f'v_cmp_ne_u32 vcc, s{sTag}, v28')
        p('s_add_u32 s14, s14, 1')
        p(f's_cbranch_vccz {name}_lnok2')
        p(f's_cmp_ge_u32 s14, {SPIN}')
        p(f's_cbranch_scc1 {name}_lnok2')
        p(f'buffer_load_dwordx2 v[28:29], v24, s[{S_FL}:{S_FL+3}], 0 offen sc1')
        p('s_waitcnt vmcnt(0)')
        p(f's_branch {name}_lnpoll')
        p.label(f'{name}_lnok2')
        p(f'v_cmp_ne_u32 vcc, s{sXcc}, v29')
        p('s_nop 1')
        p('s_lshr_b64 s[14:15], vcc, 32')
        p('s_cmp_eq_u64 s[14:15], 0')
        p(f's_cselect_b32 s{sSame}, 1, 0')
        p.label(f'{name}_lnok')
    relabel()
    put(('wlg', ['w0_0_0', 'act0']))
    xset = [('s', f's_lshl_b32 s{sT1}, s{sTL}, 3'), ('s', f's_lshl_b32 s{sT0}, s{sW}, 1'), ('s', f's_add_u32 s{sT1}, s{sT1}, s{sT0}'),
            ('s', f's_mul_i32 s{sXL}, s{sT1}, 20480'), ('s', f's_lshl_b32 s{sT1}, s{sTS}, 3'), ('s', f's_add_u32 s{sT1}, s{sT1}, s{sT0}'),
            ('s', f's_mul_i32 s{sXS}, s{sT1}, 20480')]
    def last_use(db):
        r = vWF + 4*db
        if r < 64: return GA(1, (r - vWK)//4, 3)
        return GA(1, (r - vWV)//4, 7)
    nr = []
    for db in range(8):
        for it in rd_w(db, 0, 0, f'w0_{db}'): nr.append((it, last_use(db) + 1))
    R7 = stageA('s7', xset + dma_wq(6) + dma_wq(7), dma_wq(2) + dma_wq(3) + dma_wq(8) + dma_wq(9), None, next_reads=(upd_w(0), nr))
    R7.S[BG] = [('call', lambda: (p('s_waitcnt vmcnt(8) lgkmcnt(0)'), p.lg_all(), lncheck(), p('s_barrier')))] + [x for x in R7.S[BG] if x[0] != 'bar']
    R7.stream(xn_load(0) + xn_load(1), BG + 2)
    R7.stream(xn_load(2), GA(1, 4, 0))
    R7.emit(p, put)
    if 'pp' not in opt: p.stamp('phase A done')
    NKS = 20
    mf = []
    for ks in range(NKS):
        for db in range(8):
            for c in range(4):
                acc = O(c, db)
                cc = '0' if ks == 0 else f'v[{acc}:{acc+3}]'
                mf.append(f'{MF} v[{acc}:{acc+3}], v[{vWF+4*db}:{vWF+4*db+3}], {xreg(ks, c)}, {cc}')
    R = Region(mf)
    G = lambda ks, db, c: ks*32 + db*4 + c
    p.wait_vm('XN0')
    put(('wlg', ['w0_0', 'w0_1']))
    R.S[G(3, 0, 3)].append(('bar', ['WQ2', 'WQ3', 'WQ8', 'WQ9', 'WQ4', 'WQ5', 'WQ6', 'WQ7']))
    for ch in range(9):
        R.stream(upd_w((ch + 1)*SL), G(2*ch + 1, 0, 1), G(2*ch + 1, 2, 0))
    for ks in range(NKS):
        for db in range(0, 8, 2):
            if ks == 0 and db == 0: continue
            R.place(('wlg', [f'w{ks}_{db}', f'w{ks}_{db+1}']), G(ks, db, 0) - 1, force=True)
        if ks: R.place(('wvm', f'XN{ks}'), G(ks, 0, 0) - 2, force=True)
    for ks in range(NKS - 1):
        ch, t = divmod(ks, 2); nxt = ks + 1; nch, nt = divmod(nxt, 2)
        for db in range(8):
            e = G(ks, db, 3)
            if t == 1: e = max(e, G(ks, 2, 1))
            rr = rd_w(db, nt, nch*SL, f'w{nxt}_{db}')
            lat = G(ks + 1, 0, 0) if t == 0 else None
            g = R.place(rr[0], e, lat); R.place(rr[1], g + 1 if t == 1 or db < 7 else g, lat)
    TE = 112
    STF = ''
    for o_ in opt:
        if o_.startswith('stf='): STF = o_[4:]
    sSt = sCtx
    epi = []
    sStB = sHbase
    for kind in range(2):
        for f in range(16):
            if kind == 0:
                tb, k4 = divmod(f, 4); a0 = KA(tb, 2*k4); off = tb*4096 + k4*1024; sr = S_KF
            else:
                b, db = divmod(f, 8); a0 = 128 + (b*16 + db*2)*4; off = b*8192 + db*1024; sr = S_VF
            for k in range(8): epi.append(('v', f'v_accvgpr_read_b32 v{TE+k}, a{a0+k}'))
            for k in range(4): epi.append(('v', f'v_cvt_pk_bf16_f32 v{TE+k}, v{TE+2*k}, v{TE+2*k+1}'))
            epi.append(('s', f's_add_u32 s{sSt}, s{sStB}, {off & ~4095}'))
            epi.append(('st', f'buffer_store_dwordx4 v[{TE}:{TE+3}], v{vLane16}, s[{sr}:{sr+3}], s{sSt} offen offset:{off & 4095} {STF}'))
            if 'nost' in opt: epi.pop()
            epi.append(('s', 's_nop 0'))
    KS_V = int(next((o_[3:] for o_ in opt if o_.startswith('kv=')), '17'))
    g0 = 12; span = G(KS_V, 4, 0) - g0
    gl = R.stream(epi, g0, None, pace=lambda k: g0 + (k*span)//len(epi))
    freed = {}
    for g in range(R.n):
        for it in R.V[g]:
            if it[1].startswith('v_accvgpr_read'): freed[int(it[1].split(' a')[-1])] = g
    gprev = 0
    for ks in range(3, NKS):
        t, b = XRING[ks % 8]
        if t == 'a' and ks < 8: e = max(freed[r] for r in range(b, b + 16)) + 1
        elif ks >= 8: e = G(ks - 8, 7, 3) + 1
        else: e = 0
        e = max(e, gprev + 1, G(max(ks - 7, 0), 0, 0))
        lat = G(ks, 0, 0) - 40 if ks > 3 else G(1, 0, 0)
        gprev = R.stream(xn_load(ks), e, max(lat, e + 8))
    FK, FV = 4096, 5120
    def publish(off, lab, waitlabel):
        p.wait_vm(waitlabel)
        p('s_barrier')
        p(f's_cmp_lg_u32 s{sW}, 0')
        p(f's_cbranch_scc1 {name}_{lab}pub')
        p(f's_cmp_eq_u32 s{sSame}, 1')
        p(f's_cbranch_scc1 {name}_{lab}rel')
        p('buffer_wbl2 sc1')
        p('s_waitcnt vmcnt(0)')
        p.label(f'{name}_{lab}rel')
        p(f's_lshl_b32 s14, s{sH}, 3')
        p(f's_add_u32 s14, s14, s{sI}')
        p(f's_lshl_b32 s14, s14, 2')
        p(f's_add_u32 s14, s14, {off}')
        p(f'v_mov_b32 v12, s{sTag}')
        p('v_mov_b32 v13, 0')
        p(f'buffer_store_dword v12, v13, s[{S_FL}:{S_FL+3}], s14 offen sc1')
        p.label(f'{name}_{lab}pub')
    def flag_load(off, lab):
        return [('s', f's_lshl_b32 s15, s{sH}, 5'), ('s', f's_add_u32 s15, s15, {off}'),
                ('v', 'v_and_b32 v13, 7, v0'), ('v', 'v_lshlrev_b32 v13, 2, v13'),
                ('l', f'buffer_load_dword v12, v13, s[{S_FL}:{S_FL+3}], s15 offen sc1', lab)]
    def check(lab, waitlabel):
        p.wait_vm(waitlabel, 'lgkmcnt(0)'); p.lg_all()
        p(f's_cmp_lg_u32 s{sW}, 0')
        p(f's_cbranch_scc1 {name}_{lab}ok')
        p('s_mov_b32 s14, 0')
        p.label(f'{name}_{lab}poll')
        p(f'v_cmp_ne_u32 vcc, s{sTag}, v12')
        p('s_add_u32 s14, s14, 1')
        p(f's_cbranch_vccz {name}_{lab}ok2')
        p(f's_cmp_ge_u32 s14, {SPIN}')
        p(f's_cbranch_scc1 {name}_{lab}ok2')
        p(f'buffer_load_dword v12, v13, s[{S_FL}:{S_FL+3}], s15 offen sc1')
        p('s_waitcnt vmcnt(0)')
        p(f's_branch {name}_{lab}poll')
        p.label(f'{name}_{lab}ok2')
        p(f's_cmp_eq_u32 s{sSame}, 1')
        p(f's_cbranch_scc1 {name}_{lab}ok')
        p('buffer_inv sc1')
        p('s_waitcnt vmcnt(0)')
        p.label(f'{name}_{lab}ok')
        p('s_barrier')
    def att_state():
        p(f's_lshl_b32 s{sKb}, s{sH}, 19')
        p(f's_add_u32 s{sKb}, s{sKb}, s{sLW}')
        p(f's_mov_b32 s{sVb}, s{sKb}')
    def unitK(slot, label):
        L = [('s', f's_add_u32 m0, s{sLW}, {slot*32768}')]
        for i in range(4): L.append(('m', f'buffer_load_dwordx4 v{vLane16}, s[{S_KF}:{S_KF+3}], s{sKb} offen offset:{1024*i} lds', label, None))
        return L + [('s', f's_add_u32 s{sKb}, s{sKb}, 16384')]
    def unitV(slot, label):
        L = [('s', f's_add_u32 m0, s{sLW}, {slot*32768 + SL}')]
        for i in range(4): L.append(('m', f'buffer_load_dwordx4 v{vLane16}, s[{S_VF}:{S_VF+3}], s{sVb} offen offset:{1024*i} lds', label, None))
        return L + [('s', f's_add_u32 s{sVb}, s{sVb}, 16384')]
    def dma_K(label, tagbase=None):
        L = [('s', f's_mov_b32 m0, s{sSlotP}')]
        for i in range(4):
            L.append(('m', f'buffer_load_dwordx4 v{vLane16}, s[{S_KF}:{S_KF+3}], s{sKb} offen offset:{1024*i} lds', label, None))
        L += [('s', f's_add_u32 s{sKb}, s{sKb}, 16384')]
        return L
    def dma_V(label, tagbase=None):
        L = [('s', f's_add_u32 m0, s{sSlotP}, {SL}')]
        for i in range(4):
            L.append(('m', f'buffer_load_dwordx4 v{vLane16}, s[{S_VF}:{S_VF+3}], s{sVb} offen offset:{1024*i} lds', label, None))
        L += [('s', f's_add_u32 s{sVb}, s{sVb}, 16384')]
        return L
    adv_slot = [('s', f's_add_u32 s{sSlotP}, s{sSlotP}, 32768'), ('s', f's_cmp_ge_u32 s{sSlotP}, {NSLOT*32768}\ns_cselect_b32 s{sSlotP}, s{sLW}, s{sSlotP}')]
    R.emit(p, put)
    print('fused qproj overflow', R.over, 'est', R.total())
    if 'pp' not in opt: p.stamp('q end')
    p(f's_mov_b32 s{sFlag}, 0')
    p(f's_mov_b32 s{sLim}, {hex(LIM)}')
    att_state()
    publish(FK, 'k', 'st')
    for it in flag_load(FK, 'KFL'): put(it)
    p('s_nop 7')
    for c in range(4):
        for ks in range(4):
            a0 = O(c, 2*ks)
            for k in range(4): p(f'v_cvt_pk_bf16_f32 v{a0+k}, v{a0+2*k}, v{a0+2*k+1}')
            for k in range(4): p(f'v_accvgpr_write_b32 a{aQ + 16*c + 4*ks + k}, v{a0+k}')
    p(f'v_mov_b32 v{vT}, 0x3f803f80')
    for k in range(4): p(f'v_accvgpr_write_b32 a{128+k}, v{vT}')
    p(f'v_and_b32 v{vT}, 15, v0')
    p(f'v_lshrrev_b32 v{vT+1}, 4, v0')
    p(f'v_lshlrev_b32 v{vT+1}, 2, v{vT+1}')
    p(f'v_sub_u32 v{vT}, v{vT}, v{vT+1}')
    for r in range(4): p(f'v_cmp_le_i32 s[{sM+2*r}:{sM+2*r+1}], {r}, v{vT}')
    p(f'v_mov_b32 v{vNinf}, {hex(NEGBIG)}')
    for r in range(16): p(f'v_mov_b32 v{vNeg+r}, 0')
    for c in range(4): p(f'v_mov_b32 v{vL+c}, 0')
    for r in range(64): p(f'v_mov_b32 v{vO+r}, 0')
    check('k', 'KFL')
    emit(unitK(0, 'U-1') + unitK(1, 'U0') + unitV(1, 'U0'))
    if 'pq' in opt: p.stamp('kv ok')
    nerr = 0

    def rdK(b, f):  return ('r', f'ds_read_b128 a[{aK+4*f}:{aK+4*f+3}], v{vRd} offset:{b*8192 + f*1024}', f'K{f}')
    def rdV(b, f):  return ('r', f'ds_read_b128 a[{aV+4*f}:{aV+4*f+3}], v{vRd} offset:{16384 + b*8192 + f*1024}', f'V{f}')
    def qk_mfmas(cols, sbase, cin):
        L = []
        for i, c in enumerate(cols):
            for kb in range(2):
                S = Sr(sbase + i, kb)
                for ks in range(4):
                    cc = cin(c, kb) if ks == 0 else S
                    L.append(f'{MF} v[{S}:{S+3}], a[{aK+4*(kb*4+ks)}:{aK+4*(kb*4+ks)+3}], a[{aQ+16*c+4*ks}:{aQ+16*c+4*ks+3}], v[{cc}:{cc+3}]')
        return L
    def pv_mfmas(cols, par, first=False):
        L = []
        for c in cols:
            for db in range(8):
                o = O(c, db)
                cc = '0' if first else f'v[{o}:{o+3}]'
                L.append(f'{MF} v[{o}:{o+3}], a[{aV+4*db}:{aV+4*db+3}], v[{Pr(par, c)}:{Pr(par, c)+3}], {cc}')
        return L
    aOne = 128
    Lm = lambda c: vP + 8 + 4*c
    def sum_mfmas(cols, par):
        return [f'{MF} v[{Lm(c)}:{Lm(c)+3}], a[{aOne}:{aOne+3}], v[{Pr(par, c)}:{Pr(par, c)+3}], v[{Lm(c)}:{Lm(c)+3}]' for c in cols]
    def sm_window_ns(c, sslot, par):
        S = vS + 8*sslot; P = Pr(par, c); W = []
        for k in range(4):
            e0, e1 = vE + (2*k) % 4, vE + (2*k + 1) % 4
            W += [[f'v_exp_f32 v{e0}, v{S+2*k}'], [f'v_exp_f32 v{e1}, v{S+2*k+1}'],
                  [f'v_cvt_pk_bf16_f32 v{P+k}, v{e0}, v{e1}'], []]
        return W
    def sm_window(c, sslot, par):
        S = vS + 8*sslot; P = Pr(par, c); W = []
        for k in range(4):
            e0, e1 = vE + (2*k) % 4, vE + (2*k + 1) % 4
            W += [[f'v_exp_f32 v{e0}, v{S+2*k}'], [f'v_exp_f32 v{e1}, v{S+2*k+1}'],
                  [f'v_add_f32 v{vL+c}, v{vL+c}, v{e0}'],
                  [f'v_add_f32 v{vL+c}, v{vL+c}, v{e1}', f'v_cvt_pk_bf16_f32 v{P+k}, v{e0}, v{e1}']]
        return W
    cin_neg = lambda c, kb: vNeg + 4*c
    def cin_mask(tile_cols):
        def f(c, kb):
            if c in tile_cols: return vCi + 8*(c - tile_cols[0]) + 4*kb
            return vNeg + 4*c
        return f
    def mask_ops(tile_cols):
        c0 = tile_cols[0]
        L = [('s', f's_cmp_lt_i32 s{sDd}, 0\ns_cselect_b64 s[14:15], -1, 0'),
             ('s', f's_cmp_eq_u32 s{sDd}, 0\n' + '\n'.join(f's_cselect_b64 s[{4+2*r}:{5+2*r}], s[{sM+2*r}:{sM+2*r+1}], s[14:15]' for r in range(4))),
             ('s', f's_cmp_le_i32 s{sDd}, 0\ns_cselect_b64 s[12:13], -1, 0')]
        for cb in range(2):
            for kb in range(2):
                for r in range(4):
                    m = 4 + 2*r if cb == kb else (12 if (cb == 1 and kb == 0) else 14)
                    L.append(('v', f'v_cndmask_b32 v{vCi + 8*cb + 4*kb + r}, v{vNinf}, v{vNeg + 4*(c0 + cb) + r}, s[{m}:{m+1}]'))
        return L
    LC, SC = [0, 1], [2, 3]
    def build_group(mf, windows, reads, dmas=(), extra=(), pre_wait=None, mid_wait=None, nwin=None):
        R = Region(mf)
        n = len(mf)
        for (g0, W) in windows:
            for i, ops in enumerate(W):
                for o in ops: R.place(('v', o), g0 + i, force=True)
        slots = [g for g in range(n) if g % 4 == 2]
        if len(slots) < len(reads): slots = sorted(slots + [g for g in range(n) if g % 4 == 3])
        if n == 16 or nwin == 16: slots = [g for g in range(16) if g % 4 in (2, 3)]
        for it, g in zip(reads, slots): R.place(it, g, force=True)
        if dmas:
            free = [g for g in range(n) if not R.M[g]]
            pref = [g for g in free if g >= 16 and nwin == 16] + [g for g in free if g % 4 == 3 and not (g >= 16 and nwin == 16)] + [g for g in free if g % 4 == 1] + [g for g in free if g % 4 in (0, 2)]
            nm = sum(1 for x in dmas if x[0] == 'm')
            use = sorted([g for g in pref if g >= 1][:nm])
            k = 0; pend_s = []
            for it in dmas:
                if it[0] == 's': pend_s.append(it)
                else:
                    g = use[k]; k += 1
                    for j, sx in enumerate(pend_s):
                        gg = max(0, g - len(pend_s) + j)
                        if k > 1: gg = max(gg, use[k-2] + 1) if use[k-2] + 1 <= g - 1 or ' m0,' not in sx[1] else gg
                        if gg == g and ' m0,' in sx[1]: R.place(('s', 's_nop 0'), g, force=True) if False else None
                        R.place(sx, gg, force=True)
                    pend_s = []
                    R.place(it, g, force=True)
            for j, sx in enumerate(pend_s):
                gg = use[-1] + 1 + j
                if gg <= n - 1: R.place(sx, gg, force=True)
                else: R.T[n - 1].append(sx)
        if extra:
            g = 0
            for it in extra:
                best = None
                for gg in range(g, n - 1):
                    if R.fits(gg, it): best = gg; break
                if best is None:
                    best = g
                R.place(it, best, force=True); g = best
        if mid_wait: R.place(mid_wait[1], mid_wait[0], force=True)
        return R
    slot_adv = [('s', f's_add_u32 s{sSlotR}, s{sSlotR}, 32768'), ('s', f's_cmp_ge_u32 s{sSlotR}, {NSLOT*32768}\ns_cselect_b32 s{sSlotR}, 0, s{sSlotR}')]
    def start_items(R):
        pre = []
        if 'nodma' not in opt: pre.append(('w', 's_waitcnt vmcnt(16)'))
        if 'nobar' not in opt: pre.append(('w', 's_barrier'))
        R.S[0] = pre + R.S[0]
    def end_items(R, loop=None):
        n = R.n
        for j, it in enumerate(slot_adv): R.S[4 + 4*j if n > 16 else 1 + 4*j].append(it) if False else None
        g0 = 8
        for j, it in enumerate(slot_adv): R.S[g0 + j].append(it)
        R.V[n - 1].append(('v', f'v_add_u32 v{vRd}, s{sSlotR}, v{vLane16}'))
        if loop:
            R.S[n - 3].append(('s', f's_sub_u32 s{sCnt}, s{sCnt}, 1'))
            R.T[n - 1].append(('s', f's_cmp_lg_u32 s{sCnt}, 0'))
    def emit_group(R, pre):
        if pre and 'nords' not in opt:
            put(('wlg', [f'{pre}{f}' for f in range(4)]))
            R.S[3].insert(0, ('wlg', [f'{pre}{f}' for f in range(4, 8)]))
        if 'nosm' in opt:
            for g in range(R.n): R.V[g] = []
        if 'noexp' in opt:
            for g in range(R.n): R.V[g] = [(x[0], x[1].replace('v_exp_f32', 'v_mov_b32')) for x in R.V[g]]
        if 'nodma' in opt:
            for g in range(R.n): R.M[g] = [x for x in R.M[g] if x[0] != 'm']
        if 'nords' in opt:
            for g in range(R.n):
                R.M[g] = [x for x in R.M[g] if x[0] != 'r']; R.S[g] = [x for x in R.S[g] if x[0] != 'wlg']
            pre = None; R.S[3] = [x for x in R.S[3] if x[0] != 'wlg']
        R.emit(p, put)
    stats = {'cyc': 0}
    def interval(kind, lbl, maskL=None, maskS=None, loop=False):
        dual = kind in ('D', 'T')
        mA, mB, mN = (maskS if dual else maskL) or (False, False, False)
        tile = SC if dual else LC
        p.lgq = ['K%d' % f for f in range(8)]; p.lg_ret = -1
        tot = 0
        if dual:
            cols = [0, 1, 2, 3]
            R1 = build_group(qk_mfmas(cols, 0, cin_mask(SC) if mA else cin_neg),
                             [(0, sm_window(3, 3, 0)), (16, sm_window(0, 0, 1))], [rdV(0, f) for f in range(8)], dma_K('x'),
                             mid_wait=None)
            start_items(R1)
            emit_group(R1, 'K')
            ex = ([('s', f's_add_u32 s{sDd}, s{sDd}, 1')] + mask_ops(SC if kind == 'D' else LC)) if mB else []
            if kind == 'T': ex = mask_ops(LC)
            R2 = build_group(pv_mfmas(cols, 0), [(0, sm_window(1, 1, 1)), (16, sm_window(2, 2, 1))], [rdK(0, f) for f in range(8)], extra=ex)
            if kind == 'T':
                emit([('s', f's_sub_u32 s{sDd}, s{sTS}, s{sTL}'), ('s', f's_lshl_b32 s{sDd}, s{sDd}, 2'), ('s', f's_add_u32 s{sDd}, s{sDd}, 4'), ('s', f's_sub_u32 s{sDd}, s{sDd}, s{sW}')])
            emit_group(R2, 'V')
            if kind == 'D':
                R3 = build_group(qk_mfmas(cols, 0, cin_mask(SC) if mB else cin_neg),
                                 [(0, sm_window(3, 3, 1)), (16, sm_window(0, 0, 0))], [rdV(1, f) for f in range(8)], dma_V('x') + adv_slot)
                emit_group(R3, 'K')
                ex = ([('s', f's_add_u32 s{sDd}, s{sDd}, 1')] + mask_ops(SC)) if mN else []
                R4 = build_group(pv_mfmas(cols, 1), [(0, sm_window(1, 1, 0)), (16, sm_window(2, 2, 0))], [rdK(1, f) for f in range(8)], extra=ex)
                end_items(R4, loop)
                emit_group(R4, 'V')
            else:
                R3 = build_group(qk_mfmas(LC, 0, cin_mask(LC)), [(0, sm_window(3, 3, 1))], [rdV(1, f) for f in range(8)], dma_V('x') + adv_slot)
                emit_group(R3, 'K')
                ex = ([('s', f's_add_u32 s{sDd}, s{sDd}, 1')] + mask_ops(LC))
                ex = [('v', f'v_mov_b32 v{Lm(c)+r}, 0') for c in LC for r in range(4)] + ex
                R4 = build_group(pv_mfmas(cols, 1), [(0, sm_window_ns(0, 0, 0))], [rdK(1, f) for f in range(8)], extra=ex)
                end_items(R4)
                emit_group(R4, 'V')
            tot = R1.total() + R2.total() + R3.total() + R4.total()
        else:
            dK = dma_K('x'); dV = dma_V('x') + adv_slot
            R1 = build_group(qk_mfmas(LC, 2, cin_mask(LC) if mA else cin_neg), [(0, sm_window_ns(1, 1, 0))], [rdV(0, f) for f in range(8)])
            start_items(R1)
            emit_group(R1, 'K')
            ex = ([('s', f's_add_u32 s{sDd}, s{sDd}, 1')] + mask_ops(LC)) if mB else []
            rk = [rdK(0, f) for f in range(8)] if kind != 'E' else []
            R2 = build_group(pv_mfmas(LC, 0) + sum_mfmas(LC, 0), [(0, sm_window_ns(0, 2, 1))], rk, dK, extra=ex, nwin=16)
            emit_group(R2, 'V')
            if kind != 'E':
                R3 = build_group(qk_mfmas(LC, 0, cin_mask(LC) if mB else cin_neg), [(0, sm_window_ns(1, 3, 1))], [rdV(1, f) for f in range(8)])
                emit_group(R3, 'K')
                ex = ([('s', f's_add_u32 s{sDd}, s{sDd}, 1')] + mask_ops(LC)) if mN else []
                R4 = build_group(pv_mfmas(LC, 1) + sum_mfmas(LC, 1), [(0, sm_window_ns(0, 0, 0))], [rdK(1, f) for f in range(8)], dV, extra=ex, nwin=16)
                end_items(R4, loop)
                emit_group(R4, 'V')
                tot = R1.total() + R2.total() + R3.total() + R4.total()
            else:
                for f in range(8): put(rdV(1, f))
                emit(dV)
                for ops in sm_window_ns(1, 3, 1):
                    for o in ops: p(o)
                    if len(ops) == 1 and ops[0].startswith('v_exp'): p('s_nop 0')
                p('s_waitcnt lgkmcnt(0)')
                p('s_nop 1')
                for m in pv_mfmas(LC, 1) + sum_mfmas(LC, 1): p(m)
        if tot: print(f'  interval {lbl}: est {tot} cycles for', 128 if kind == 'D' else (112 if kind == 'T' else 64), 'mfma')

    def emit_prefetch():
        vA, vD = 10, 250
        p(f's_cmp_lt_u32 s{sI}, 4')
        p(f's_cbranch_scc1 {name}_npf')
        p(f's_load_dwordx2 s[66:67], s[0:1], {ARG["wo"]}')
        p('s_waitcnt lgkmcnt(0)')
        p(f's_lshr_b32 s{sT0}, s2, 6')
        p(f's_lshl_b32 s{sT0}, s{sT0}, 2')
        p(f's_add_u32 s{sT0}, s{sT0}, s{sI}')
        p(f's_sub_u32 s{sT0}, s{sT0}, 4')
        p(f's_and_b32 s{sT1}, s2, 7')
        p(f's_lshr_b32 s{sT1}, s{sT1}, 1')
        p(f's_mul_i32 s{sT1}, s{sT1}, 1310720')
        p(f's_mul_i32 s{sT2}, s{sT0}, {640*128}')
        p(f's_add_u32 s{sT1}, s{sT1}, s{sT2}')
        p(f's_mul_i32 s{sT2}, s{sW}, {160*128}')
        p(f's_add_u32 s{sT1}, s{sT1}, s{sT2}')
        for i in range(3):
            p(f'v_add_u32 v{vA}, {64*i}, v0')
            p(f'v_min_u32 v{vA}, 159, v{vA}')
            p(f'v_lshlrev_b32 v{vA}, 7, v{vA}')
            p(f'v_add_u32 v{vA}, s{sT1}, v{vA}')
            p(f'global_load_dword v{vD}, v{vA}, s[66:67]')
        p.label(f'{name}_npf')
    def row_reduce(reg, op, tmp):
        for sw in ('v_permlane16_swap_b32', 'v_permlane32_swap_b32'):
            p(f'v_mov_b32 v{tmp}, v{reg}')
            p('s_nop 1')
            p(f'{sw} v{reg}, v{tmp}')
            p('s_nop 1')
            p(f'{op} v{reg}, v{reg}, v{tmp}')
    def epilogue(cols, sTile, flagbit):
        p('s_nop 7')
        for c in cols: row_reduce(vL + c, 'v_add_f32', vU)
        if cols == LC:
            for c in cols: p(f'v_add_f32 v{vL+c}, v{vL+c}, v{Lm(c)}')
        p(f'v_max_f32 v{vU}, v{vL+cols[0]}, v{vL+cols[1]}')
        p(f'v_cmp_nle_f32 vcc, v{vU}, v{vU+1}'.replace(f'v{vU+1}', f'v{vU+1}') if False else f'v_cmp_nge_f32 vcc, s{sLim}, v{vU}')
        p('s_nop 1')
        p(f's_cmp_lg_u64 vcc, 0')
        p(f's_cselect_b32 s{sT0}, {flagbit}, 0')
        p(f's_or_b32 s{sFlag}, s{sFlag}, s{sT0}')
        for c in cols: p(f'v_rcp_f32 v{vL+c}, v{vL+c}')
        store_ctx(cols, sTile)
    def store_ctx(cols, sTile):
        p(f's_lshl_b32 s{sCtx}, s{sTile}, 3')
        p(f's_lshl_b32 s{sT0}, s{sW}, 1')
        p(f's_add_u32 s{sCtx}, s{sCtx}, s{sT0}')
        p(f's_lshl_b32 s{sCtx}, s{sCtx}, 5')
        p(f's_add_u32 s{sCtx}, s{sCtx}, s{sH}')
        p(f's_lshl_b32 s{sCtx}, s{sCtx}, 12')
        p(f's_add_u32 s{sT1}, s{sCtx}, {32*4096}')
        for i, c in enumerate(cols):
            for ks in range(4):
                o = O(c, 2*ks)
                for k in range(8): p(f'v_mul_f32 v{o+k}, v{o+k}, v{vL+c}')
                for k in range(4): p(f'v_cvt_pk_bf16_f32 v{o+k}, v{o+2*k}, v{o+2*k+1}')
                p(f'buffer_store_dwordx4 v[{o}:{o+3}], v{vLane16}, s[{S_CTX}:{S_CTX+3}], s{sCtx if i == 0 else sT1} offen offset:{ks*1024} {CTX_FLAGS}')

    p(f's_mov_b32 s{sSlotR}, 0')
    p(f'v_mov_b32 v{vRd}, v{vLane16}')
    for r in range(64, 128): p(f'v_mov_b32 v{vO+r}, 0')
    p(f's_lshl_b32 s{sDd}, s{sTS}, 2')
    p(f's_add_u32 s{sDd}, s{sDd}, s{sW}')
    p(f's_sub_u32 s{sDd}, 0, s{sDd}')
    emit(mask_ops(SC))
    p.wait_vm('U-1')
    p('s_barrier')
    p.lgq = []; p.lg_ret = -1
    for f in range(8): put(rdK(0, f))
    p('s_waitcnt lgkmcnt(0)')
    q0 = qk_mfmas([0, 1, 2, 3], 0, cin_mask(SC))
    rest = unitK(2, 'U1') + unitV(2, 'U1') + unitK(3, 'U2') + unitV(3, 'U2')
    Rq = Region(q0)
    spread(Rq, rest, 0, 31)
    Rq.emit(p, put)
    p(f's_add_u32 s{sSlotP}, s{sLW}, {4*32768}')
    for f in range(8): put(rdK(1, f))
    for step in range(4):
        for c in range(4):
            S = vS + 8*c; t = vU + c
            if step == 0: p(f'v_max3_f32 v{t}, v{S}, v{S+1}, v{S+2}')
            elif step == 1: p(f'v_max3_f32 v{t}, v{t}, v{S+3}, v{S+4}')
            elif step == 2: p(f'v_max3_f32 v{t}, v{t}, v{S+5}, v{S+6}')
            else: p(f'v_max_f32 v{t}, v{t}, v{S+7}')
    for sw in ('v_permlane16_swap_b32', 'v_permlane32_swap_b32'):
        for c in range(4): p(f'v_mov_b32 v{vU+4+c}, v{vU+c}')
        for c in range(4): p(f'{sw} v{vU+c}, v{vU+4+c}')
        p('s_nop 0')
        for c in range(4): p(f'v_max_f32 v{vU+c}, v{vU+c}, v{vU+4+c}')
    for r in range(8):
        for c in range(4): p(f'v_sub_f32 v{vS+8*c+r}, v{vS+8*c+r}, v{vU+c}')
    for c in range(4):
        for r in range(4): p(f'v_sub_f32 v{vNeg+4*c+r}, 0, v{vU+c}')
    def run_window(W):
        for ops in W:
            for o in ops: p(o)
            if len(ops) == 1 and ops[0].startswith('v_exp'): p('s_nop 0')
    for r in range(8):
        for c in range(3): p(f'v_exp_f32 v{vS+8*c+r}, v{vS+8*c+r}')
    p('s_nop 0')
    for r in range(8):
        for c in range(3): p(f'v_add_f32 v{vL+c}, v{vL+c}, v{vS+8*c+r}')
    for k in range(4):
        for c in range(3): p(f'v_cvt_pk_bf16_f32 v{Pr(0, c)+k}, v{vS+8*c+2*k}, v{vS+8*c+2*k+1}')
    p(f's_mov_b32 s{sSlotR}, 32768')
    p(f'v_add_u32 v{vRd}, s{sSlotR}, v{vLane16}')
    if 'pp' not in opt: p.stamp('attn prologue done')
    p(f's_cmp_eq_u32 s{sTS}, 0')
    p(f's_cbranch_scc1 {name}_t0')
    p(f's_lshl_b32 s{sCnt}, s{sTS}, 1')
    p(f's_sub_u32 s{sCnt}, s{sCnt}, 1')
    p.label(f'{name}_dn')
    interval('D', f'dn', loop=True)
    p(f's_cbranch_scc1 {name}_dn')
    p(f's_sub_u32 s{sDd}, -1, s{sW}')
    interval('D', 'da', maskS=(False, True, True))
    p(f's_branch {name}_db')
    p.label(f'{name}_t0')
    p(f's_sub_u32 s{sDd}, 1, s{sW}')
    emit(mask_ops(SC))
    p('s_nop 1')
    p.label(f'{name}_db')
    interval('D', 'db', maskS=(True, True, True))
    interval('T', 'dc', maskS=(True, False, False))
    epilogue(SC, sTS, 2)
    p(f's_cmp_lt_u32 s{sI}, 6')
    p(f's_cbranch_scc1 {name}_nffn')
    p('s_lshr_b32 s14, s2, 6')
    p('s_lshl_b32 s14, s14, 1')
    p(f's_add_u32 s14, s14, s{sI}')
    p('s_sub_u32 s14, s14, 6')
    p('s_lshl_b32 s14, s14, 3')
    p('s_and_b32 s15, s2, 7')
    p(f's_add_u32 s{sT2}, s14, s15')
    p(f's_cmp_ge_u32 s{sT2}, 54')
    p(f's_cbranch_scc1 {name}_nffn')
    p(f's_load_dwordx2 s[4:5], s[0:1], {ARG["wg"]}')
    p(f's_load_dwordx2 s[8:9], s[0:1], {ARG["wu"]}')
    p(f's_load_dwordx2 s[12:13], s[0:1], {ARG["wd"]}')
    p('v_lshrrev_b32 v10, 2, v0')
    p('v_mul_u32_u24 v10, 3456, v10')
    p('v_and_b32 v11, 3, v0')
    p('v_lshl_add_u32 v10, v11, 4, v10')
    p('s_waitcnt lgkmcnt(0)')
    for sr, sz in ((4, 640*1728*2), (8, 640*1728*2), (12, 1728*640*2)):
        p(f's_mov_b32 s{sr+2}, {sz}'); p(f's_mov_b32 s{sr+3}, 0x00020000')
    p(f's_mul_i32 s{sT0}, s{sW}, {160*3456}')
    p(f's_lshl_b32 s{sT1}, s{sT2}, 6')
    p(f's_add_u32 s{sT0}, s{sT0}, s{sT1}')
    for i in range(10):
        for mat, sr in enumerate((4, 8)):
            r = 132 + (mat*10 + i)*4
            p(f'buffer_load_dwordx4 a[{r}:{r+3}], v10, s[{sr}:{sr+3}], s{sT0} offen')
        p(f's_add_u32 s{sT0}, s{sT0}, {16*3456}')
    p(f's_mul_i32 s{sT0}, s{sT2}, {32*1280}')
    p(f's_mul_i32 s{sT1}, s{sW}, 10240')
    p(f's_add_u32 s{sT0}, s{sT0}, s{sT1}')
    for i in range(10):
        r = 132 + (20 + i)*4
        p(f'buffer_load_dwordx4 a[{r}:{r+3}], v{vLane16}, s[12:15], s{sT0} offen offset:{(i % 4)*1024}')
        if i % 4 == 3: p(f's_add_u32 s{sT0}, s{sT0}, 4096')
    p.label(f'{name}_nffn')
    p.lgq = ['K%d' % f for f in range(8)]; p.lg_ret = 7
    if 'pp' not in opt: (p.stamp('S done') if 'pq' not in opt else None)
    p(f's_sub_u32 s{sCnt}, s{sTL}, s{sTS}')
    p(f's_cmp_eq_u32 s{sCnt}, 1')
    p(f's_cbranch_scc1 {name}_sb')
    p(f's_lshl_b32 s{sCnt}, s{sCnt}, 1')
    p(f's_sub_u32 s{sCnt}, s{sCnt}, 3')
    p.label(f'{name}_sn')
    interval('S', 'sn', loop=True)
    p(f's_cbranch_scc1 {name}_sn')
    p(f's_sub_u32 s{sDd}, -1, s{sW}')
    interval('S', 'sa', maskL=(False, True, True))
    p.label(f'{name}_sb')
    interval('S', 'sb', maskL=(True, True, True))
    interval('E', 'sc', maskL=(True, False, False))
    epilogue(LC, sTL, 1)
    p.stamp('L done')
    p(f's_cmp_eq_u32 s{sFlag}, 0')
    p(f's_cbranch_scc1 {name}_fin')
    fallback(p, name, locals())
    p.label(f'{name}_fin')
    p('s_waitcnt vmcnt(0) lgkmcnt(0)')
    p('s_barrier')
    p(f's_cmp_lg_u32 s{sW}, 0')
    p(f's_cbranch_scc1 {name}_cpub')
    p(f's_lshl_b32 s14, s2, 2')
    p(f's_add_u32 s14, s14, 6144')
    p(f'v_mov_b32 v12, s{sTag}')
    p('v_mov_b32 v13, 0')
    p(f'buffer_store_dword v12, v13, s[{S_FL}:{S_FL+3}], s14 offen sc1')
    p.label(f'{name}_cpub')
    if PREFETCH: emit_prefetch()
    import kt
    nerr += kt.gen_kt(name + '_t', p, prof, opt)
    p.label(f'{name}_done')
    p('s_endpgm')
    def mk_policy(t0, nd, skip_s, ns, fb, wave0):
        def pol(ins, n):
            t = ins.args[0]
            if t.endswith('_done'): return False
            if t.endswith('_stageA'): return n % 3 != 0
            if t in (name + '_noln0', name + '_noln1'): return False
            if t in (name + '_notag', name + '_kvpub'): return not wave0
            if t == name + '_notag2': return True
            if t == name + '_nffn': return not wave0
            if t == name + '_cpub': return not wave0
            if t.startswith(name + '_t'):
                if '_poll' in t and t.endswith('_ok'): return True
                u = t[len(name) + 2:]
                if u in ('_w123', '_w1', '_nosig', '_w4', '_w5', '_cw'): return not wave0
                return False
            if t == name + '_nz': return True
            if t == name + '_nocode': return False
            if t == name + '_nopub': return True
            if t in (name + '_lnok', name + '_kok', name + '_vok', name + '_kpub', name + '_vpub'): return not wave0
            if t in (name + '_lnok2', name + '_kok2', name + '_vok2', name + '_krel', name + '_vrel'): return True
            if t.endswith('_t0'): return t0
            if t.endswith('_dn'): return (n % nd) != 0
            if t.endswith('_sb'): return skip_s
            if t.endswith('_sn'): return (n % ns) != 0
            if t.endswith('_fin'): return not fb
            if t.endswith('_fbloop'): return n % 3 != 0
            return False
        return pol
    for cfg in ([(False, 3, False, 3, False, True), (True, 2, False, 2, True, False), (False, 2, True, 2, False, True)] if (not opt or opt[0] in ('pp', 'pq') or opt[0].startswith('kv=')) and not any(o_.endswith('A') for o_ in opt) else []):
        seq = trace(p, mk_policy(*cfg))
        nerr += len(check_linear(seq, name + str(cfg)))
    return p, nerr

def fallback(p, name, L):
    g = L
    vS, vP, vE, vL, vU, vNeg, vCi, vO = g['vS'], g['vP'], g['vE'], g['vL'], g['vU'], g['vNeg'], g['vCi'], g['vO']
    aQ, aK, aV, vLane16, vNinf = g['aQ'], g['aK'], g['aV'], g['vLane16'], g['vNinf']
    S_KF, S_VF = g['S_KF'], g['S_VF']
    sFlag, sTL, sTS, sW, sH, sDd, sCnt, sT0, sT1, sT2 = (g[k] for k in ('sFlag', 'sTL', 'sTS', 'sW', 'sH', 'sDd', 'sCnt', 'sT0', 'sT1', 'sT2'))
    O = g['O']; mask_ops = g['mask_ops']; qk_mfmas = g['qk_mfmas']; pv_mfmas = g['pv_mfmas']; row_reduce = g['row_reduce']; store_ctx = g['store_ctx']
    put = g['put']
    p('s_waitcnt vmcnt(0) lgkmcnt(0)')
    for cols, sTile, bit, nm in (([2, 3], sTS, 2, 'S'), ([0, 1], sTL, 1, 'L')):
        p(f's_and_b32 s{sT0}, s{sFlag}, {bit}')
        p(f's_cmp_eq_u32 s{sT0}, 0')
        p(f's_cbranch_scc1 {name}_fbskip{nm}')
        for c in cols:
            p(f'v_mov_b32 v{vL+c}, 0')
            for r in range(32): p(f'v_mov_b32 v{vO+32*c+r}, 0')
            for r in range(4): p(f'v_mov_b32 v{vNeg+4*c+r}, 0')
        for i in range(2): p(f'v_mov_b32 v{vU+4+i}, v{vNinf}')
        p(f's_lshl_b32 s{sDd}, s{sTile}, 2')
        p(f's_add_u32 s{sDd}, s{sDd}, s{sW}')
        p(f's_add_u32 s{sCnt}, s{sDd}, 1')
        p(f's_sub_u32 s{sDd}, 0, s{sDd}')
        p(f's_lshl_b32 s{sT2}, s{sH}, 19')
        p.label(f'{name}_fb{nm}_fbloop')
        for f in range(8):
            p(f's_add_u32 s{sT1}, s{sT2}, {(f // 4)*4096}')
            p(f'buffer_load_dwordx4 a[{aK+4*f}:{aK+4*f+3}], v{vLane16}, s[{S_KF}:{S_KF+3}], s{sT1} offen offset:{(f % 4)*1024}')
            p(f'buffer_load_dwordx4 a[{aV+4*f}:{aV+4*f+3}], v{vLane16}, s[{S_VF}:{S_VF+3}], s{sT1} offen offset:{(f % 4)*1024}')
        for it in mask_ops(cols): put(it)
        p('s_waitcnt vmcnt(0)')
        p('s_nop 1')
        for m in qk_mfmas(cols, 0, lambda c, kb: vCi + 8*(c - cols[0]) + 4*kb): p(m)
        p('s_nop 7')
        for i, c in enumerate(cols):
            S = vS + 8*i; t = vU + i; m = vU + 4 + i
            p(f'v_max3_f32 v{t}, v{S}, v{S+1}, v{S+2}')
            p(f'v_max3_f32 v{t}, v{t}, v{S+3}, v{S+4}')
            p(f'v_max3_f32 v{t}, v{t}, v{S+5}, v{S+6}')
            p(f'v_max_f32 v{t}, v{t}, v{S+7}')
            row_reduce(t, 'v_max_f32', vU + 6)
            p(f'v_max_f32 v{t}, v{t}, v{m}')
            p(f'v_sub_f32 v{vU+6}, v{m}, v{t}')
            p(f'v_exp_f32 v{vU+6}, v{vU+6}')
            p(f'v_mov_b32 v{m}, v{t}')
            p(f'v_mul_f32 v{vL+c}, v{vL+c}, v{vU+6}')
            for r in range(32): p(f'v_mul_f32 v{vO+32*c+r}, v{vO+32*c+r}, v{vU+6}')
            for r in range(8): p(f'v_sub_f32 v{S+r}, v{S+r}, v{t}')
            for r in range(8): p(f'v_exp_f32 v{S+r}, v{S+r}')
            p('s_nop 0')
            for r in range(8): p(f'v_add_f32 v{vL+c}, v{vL+c}, v{S+r}')
            for k in range(4): p(f'v_cvt_pk_bf16_f32 v{vP+4*c+k}, v{S+2*k}, v{S+2*k+1}')
        p('s_nop 1')
        for m in pv_mfmas(cols, 0): p(m)
        p('s_nop 7')
        p(f's_add_u32 s{sT2}, s{sT2}, 8192')
        p(f's_add_u32 s{sDd}, s{sDd}, 1')
        p(f's_sub_u32 s{sCnt}, s{sCnt}, 1')
        p(f's_cmp_lg_u32 s{sCnt}, 0')
        p(f's_cbranch_scc1 {name}_fb{nm}_fbloop')
        for c in cols: row_reduce(vL + c, 'v_add_f32', vU)
        for c in cols: p(f'v_rcp_f32 v{vL+c}, v{vL+c}')
        store_ctx(cols, sTile)
        p.label(f'{name}_fbskip{nm}')

if __name__ == '__main__':
    p, ne = gen_kf()
    print('instrs', p.count(), 'errors', ne)
```

```python
from common import *
from gx2 import *
from sched import *
from lnops import rne_keep
MF = 'v_mfma_f32_16x16x32_bf16'
NFFN = 54
WS_PB = WS_PART
PS_OFF = 4*128*8*2560
SZ_PB = PS_OFF + 4*64*8*1024
SPIN = 1 << 16

def poll(p, name, S_DBG, off, target, vt, sA, sB):
    L = p.nl(name + '_poll')
    p(f'v_mov_b32 v{vt}, {off}')
    p(f's_mov_b32 s{sA}, 0')
    p.label(L)
    p(f'buffer_load_dword v{vt+1}, v{vt}, s[{S_DBG}:{S_DBG+3}], 0 offen sc1')
    p('s_waitcnt vmcnt(0)')
    p(f'v_readfirstlane_b32 s{sB}, v{vt+1}')
    p(f's_add_u32 s{sA}, s{sA}, 1')
    p(f's_cmp_ge_u32 s{sB}, {target}')
    p(f's_cbranch_scc1 {L}_ok')
    p(f's_cmp_ge_u32 s{sA}, {SPIN}')
    p(f's_cbranch_scc1 {L}_ok')
    p('s_sleep 1')
    p(f's_branch {L}')
    p.label(L + '_ok')

FOFS = 82*MiB - WS_STAT
O_CTXF, O_FM, O_KEYS, O_RDY, O_FF = FOFS + 6144, FOFS + 8192, FOFS + 10240, FOFS + 12288, FOFS + 13312

def gen_kt(name, p, prof=False, opt=()):
    put = make_put(p)
    S_WO, S_CTX, S_PB, S_DBG, S_X, S_OUT, S_H, S_ST = 16, 20, 24, 28, 32, 36, 40, 56
    S_WA, S_WB = 60, 64
    sW, sS, sMT, sNT = 44, 45, 46, 47
    sT0, sT1, sT2 = 48, 49, 50
    sWoff, sCoff, sLWw, sLWc, sP0 = 51, 52, 53, 54, 55
    sIdx, sR = 68, 69
    vLane16 = 1
    vOffW = 2
    vLPe, vLPo, vCe, vCo = 7, 8, 9, 10
    vLPc, vCc = 11, 12
    vT = 13
    vWF = 20; vCF = 40; acc = 72
    SLOT = 36864; NSL = 4
    sTag = 3; sFj = 62; sPS = 60; sMaskC = 61
    p.vmq = []; p.retired = -1; p.lgq = []; p.lg_ret = -1
    n_front = len(p.items)
    p(f's_load_dwordx2 s[4:5], s[0:1], {ARG["wo"]}')
    p(f's_load_dwordx4 s[8:11], s[0:1], {ARG["out"]}')
    p(f's_load_dwordx2 s[12:13], s[0:1], {ARG["ws"]}')
    p(f's_load_dwordx2 s[6:7], s[0:1], {ARG["x"]}')
    p('s_and_b32 s14, s2, 7')
    p('s_lshr_b32 s15, s2, 3')
    p(f's_lshr_b32 s{sS}, s14, 1')
    p(f's_and_b32 s14, s14, 1')
    p(f's_lshl_b32 s14, s14, 3')
    p(f's_and_b32 s{sMT}, s15, 7')
    p(f's_add_u32 s{sMT}, s{sMT}, s14')
    p(f's_lshr_b32 s{sNT}, s15, 3')
    p('s_lshr_b32 s14, s2, 3')
    p(f's_and_b32 s{sFj}, s14, 7')
    p(f's_lshr_b32 s14, s14, 3')
    p(f's_lshl_b32 s14, s14, 1')
    p(f's_add_u32 s14, s14, s{sFj}')
    p(f's_sub_u32 s14, s14, 6')
    p(f's_lshl_b32 s14, s14, 3')
    p(f's_and_b32 s15, s2, 7')
    p(f's_add_u32 s14, s14, s15')
    p(f's_cmp_ge_u32 s{sFj}, 6')
    p(f's_cselect_b32 s{sFj}, s14, 255')
    p('s_lshr_b32 s15, s2, 3')
    p(f's_lshl_b32 s{sT0}, s{sMT}, 3')
    p(f's_lshl_b32 s{sT1}, s{sW}, 1')
    p(f's_add_u32 s{sT0}, s{sT0}, s{sT1}')
    p(f's_lshl_b32 s{sT0}, s{sT0}, 2')
    p(f's_add_u32 s{sT0}, s{sT0}, s{sS}')
    p(f's_lshl_b32 s{sCoff}, s{sT0}, 15')
    p(f's_lshl_b32 s{sLWc}, s{sW}, 12')
    p(f's_add_u32 s{sLWc}, s{sLWc}, 20480')
    p(f's_mul_i32 s{sWoff}, s{sS}, {1024*1280}')
    p(f's_mul_i32 s{sT0}, s{sNT}, 320')
    p(f's_add_u32 s{sWoff}, s{sWoff}, s{sT0}')
    p(f's_mul_i32 s{sLWw}, s{sW}, 5120')
    p(f's_mul_i32 s{sT0}, s{sW}, 320')
    p(f'v_add_u32 v{vT}, s{sT0}, v0')
    for i in range(5):
        if i: p(f'v_add_u32 v{vT}, 64, v{vT}')
        p(f'v_mul_u32_u24 v{vT+1}, 3277, v{vT}')
        p(f'v_lshrrev_b32 v{vT+1}, 16, v{vT+1}')
        p(f'v_mul_u32_u24 v{vT+2}, 20, v{vT+1}')
        p(f'v_sub_u32 v{vT+2}, v{vT}, v{vT+2}')
        p(f'v_bfe_u32 v{vT+3}, v{vT+1}, 2, 1')
        p(f'v_lshlrev_b32 v{vT+3}, 1, v{vT+3}')
        p(f'v_xor_b32 v{vT+2}, v{vT+2}, v{vT+3}')
        p(f'v_mul_u32_u24 v{vT+1}, 1280, v{vT+1}')
        p(f'v_lshl_add_u32 v{vOffW+i}, v{vT+2}, 4, v{vT+1}')
        if 0 < i < 4: p(f'v_subrev_u32 v{vOffW+i}, {1024*i}, v{vOffW+i}')
    p('s_waitcnt lgkmcnt(0)')
    srd(p, S_WO, 4, 4096*640*2)
    srd(p, S_CTX, 12, SZ_CTX, WS_CTX)
    def dma_ctx(ch):
        base = (ch % NSL)*SLOT
        tagC = ('W', base + 20480, base + SLOT, True)
        L = [('s', f's_add_u32 s{sT1}, s{sCoff}, {ch*2048}'), ('s', f's_add_u32 m0, s{sLWc}, {base}'), ('s', 's_nop 0')]
        for i in range(2): L.append(('m', f'buffer_load_dwordx4 v{vLane16}, s[{S_CTX}:{S_CTX+3}], s{sT1} offen offset:{1024*i} lds', f'C{ch}', tagC))
        L.append(('s', f's_add_u32 s{sT1}, s{sCoff}, {ch*2048 + 4*32768}'))
        L.append(('s', f's_add_u32 m0, s{sLWc}, {base + 2048}'))
        L.append(('s', 's_nop 0'))
        for i in range(2): L.append(('m', f'buffer_load_dwordx4 v{vLane16}, s[{S_CTX}:{S_CTX+3}], s{sT1} offen offset:{1024*i} lds', f'C{ch}', tagC))
        return L
    def dma_wo(ch):
        base = (ch % NSL)*SLOT
        L = [('s', f's_add_u32 m0, s{sLWw}, {base}'), ('s', f's_add_u32 s{sT0}, s{sWoff}, {ch*64*1280}')]
        tagW = ('W', base, base + 20480, True)
        for i in range(4):
            L.append(('m', f'buffer_load_dwordx4 v{vOffW+i}, s[{S_WO}:{S_WO+3}], s{sT0} offen offset:{1024*i} lds', f'C{ch}', tagW))
        L.append(('s', f's_add_u32 m0, s{sLWw}, {base + 4096}'))
        L.append(('s', 's_nop 0'))
        L.append(('m', f'buffer_load_dwordx4 v{vOffW+4}, s[{S_WO}:{S_WO+3}], s{sT0} offen lds', f'C{ch}', tagW))
        return L
    def dma_chunk(ch): return dma_ctx(ch) + dma_wo(ch)
    def emit(L):
        for it in L: put(it)
    emit(dma_wo(0))
    p(f'v_bfe_u32 v{vT}, v0, 2, 2')
    p(f'v_lshrrev_b32 v{vT+1}, 4, v0')
    p(f'v_lshl_add_u32 v{vT+2}, v{vT+1}, 2, v{vT}')
    p(f'v_mul_u32_u24 v{vT+2}, 320, v{vT+2}')
    p(f'v_and_b32 v{vT+3}, 3, v0')
    p(f'v_lshl_add_u32 v{vT+2}, v{vT+3}, 3, v{vT+2}')
    p(f'v_and_b32 v{vT+1}, 1, v{vT+1}')
    p(f'v_lshlrev_b32 v{vT+1}, 5, v{vT+1}')
    p(f'v_add_u32 v{vLPe}, v{vT+2}, v{vT+1}')
    p(f'v_sub_u32 v{vLPo}, v{vT+2}, v{vT+1}')
    p(f's_lshr_b32 s{sT0}, s{sW}, 1')
    p(f's_and_b32 s{sT1}, s{sW}, 1')
    p(f's_cmp_eq_u32 s{sT0}, 1')
    p(f's_cselect_b64 s[14:15], -1, 0')
    p(f'v_cndmask_b32 v{vT}, v{vLPe}, v{vLPo}, s[14:15]')
    p(f'v_cndmask_b32 v{vT+1}, v{vLPo}, v{vLPe}, s[14:15]')
    p(f's_mul_i32 s{sT2}, s{sT0}, 160')
    p(f'v_add_u32 v{vLPe}, s{sT2}, v{vT}')
    p(f'v_add_u32 v{vLPo}, s{sT2}, v{vT+1}')
    p(f's_lshl_b32 s{sT2}, s{sT1}, 13')
    p(f's_add_u32 s{sT2}, s{sT2}, 20480')
    p(f'v_add_u32 v{vLPc}, s{sT2}, v{vLane16}')
    p(f's_lshl_b32 s{sP0}, s{sS}, 7')
    p(f's_lshl_b32 s{sT2}, s{sMT}, 3')
    p(f's_add_u32 s{sP0}, s{sP0}, s{sT2}')
    p(f's_lshl_b32 s{sT1}, s{sT1}, 2')
    p(f's_add_u32 s{sP0}, s{sP0}, s{sT1}')
    p(f's_lshl_b32 s{sP0}, s{sP0}, 3')
    p(f's_lshl_b32 s{sT2}, s{sNT}, 1')
    p(f's_add_u32 s{sP0}, s{sP0}, s{sT2}')
    p(f's_add_u32 s{sP0}, s{sP0}, s{sT0}')
    p(f's_lshl_b32 s{sPS}, s{sS}, 6')
    p(f's_lshl_b32 s14, s{sMT}, 2')
    p(f's_add_u32 s{sPS}, s{sPS}, s14')
    p(f's_lshr_b32 s14, s{sT1}, 1')
    p(f's_add_u32 s{sPS}, s{sPS}, s14')
    p(f's_lshl_b32 s{sPS}, s{sPS}, 3')
    p(f's_add_u32 s{sPS}, s{sPS}, s{sT2}')
    p(f's_add_u32 s{sPS}, s{sPS}, s{sT0}')
    p(f's_lshl_b32 s{sPS}, s{sPS}, 10')
    p(f's_add_u32 s{sPS}, s{sPS}, {{PS_OFF}}'.replace('{PS_OFF}', str(PS_OFF)))
    p(f's_mul_i32 s{sP0}, s{sP0}, 2560')
    emit(dma_wo(1))
    srd(p, S_PB, 12, SZ_PB, WS_PB)
    srd(p, S_X, 6, 2048*640*2)
    srd(p, S_OUT, 8, 2048*640*2)
    srd(p, S_H, 12, SZ_H, WS_H)
    srd(p, S_ST, 12, 3 << 20, WS_STAT)
    emit(dma_wo(2))
    p(f's_cmp_lg_u32 s{sW}, 0')
    p(f's_cbranch_scc1 {name}_cw')
    p(f's_sub_u32 s14, 15, s{sMT}')
    p(f's_min_u32 s14, s14, s{sMT}')
    p(f's_lshl_b32 s14, s14, 3')
    p(f's_lshl_b32 s15, s{sS}, 1')
    p(f's_add_u32 s14, s14, s15')
    p(f'v_and_b32 v{vT}, 3, v0')
    p(f'v_lshlrev_b32 v{vT}, 6, v{vT}')
    p(f'v_bfe_u32 v{vT+1}, v0, 2, 1')
    p(f'v_add3_u32 v{vT}, v{vT}, v{vT+1}, s14')
    p(f'v_lshlrev_b32 v{vT}, 2, v{vT}')
    p(f's_mov_b32 s14, {O_CTXF}')
    p('s_mov_b32 s15, 0')
    Lc = p.nl(name + '_pollC')
    p.label(Lc)
    p(f'buffer_load_dword v{vT+1}, v{vT}, s[{S_ST}:{S_ST+3}], s14 offen sc1')
    p('s_waitcnt vmcnt(0)')
    p(f'v_cmp_ne_u32 vcc, s{sTag}, v{vT+1}')
    p('s_add_u32 s15, s15, 1')
    p(f's_cbranch_vccz {Lc}_ok')
    p(f's_cmp_ge_u32 s15, {SPIN}')
    p(f's_cbranch_scc1 {Lc}_ok')
    p('s_sleep 2')
    p(f's_branch {Lc}')
    p.label(Lc + '_ok')
    p.label(f'{name}_cw')
    p('s_barrier')
    (p.stamp('ctx ready') if 'ln' not in opt else None)
    emit(dma_ctx(0)); emit(dma_ctx(1)); emit(dma_ctx(2))
    def upd(ch):
        base = (ch % NSL)*SLOT
        return [('v', f'v_add_u32 v{vCe}, {base}, v{vLPe}'), ('v', f'v_add_u32 v{vCo}, {base}, v{vLPo}'), ('v', f'v_add_u32 v{vCc}, {base}, v{vLPc}')]
    def rd_w(mb, ks):
        ch, kin = divmod(ks, 2); base = (ch % NSL)*SLOT
        r = vWF + 4*mb; a = vCe if mb % 2 == 0 else vCo
        return [('r', f'ds_read_b64_tr_b16 v[{r+2*h}:{r+2*h+1}], v{a} offset:{kin*10240 + h*5120 + mb*32}', f'w{ks}_{mb}', ('R', base, base + 20480)) for h in range(2)]
    def rd_c(cb, ks):
        ch, kin = divmod(ks, 2); base = (ch % NSL)*SLOT
        r = vCF + 16*(ks % 2) + 4*cb
        return ('r', f'ds_read_b128 v[{r}:{r+3}], v{vCc} offset:{cb*2048 + kin*1024}', f'c{ks}', ('R', base + 20480, base + SLOT))
    emit(upd(0))
    p.wait_vm('C0')
    p('s_barrier')
    (p.stamp('chunk0') if 'ln' not in opt else None)
    for cb in range(4): put(rd_c(cb, 0))
    for mb in range(5): emit(rd_w(mb, 0))
    NKS = 32
    A = lambda cb, mb: acc + (cb*5 + mb)*4
    mf = []
    for ks in range(NKS):
        for mb in range(5):
            for cb in range(4):
                c = '0' if ks == 0 else f'v[{A(cb, mb)}:{A(cb, mb)+3}]'
                cf = vCF + 16*(ks % 2) + 4*cb
                mf.append(f'{MF} v[{A(cb, mb)}:{A(cb, mb)+3}], v[{vWF+4*mb}:{vWF+4*mb+3}], v[{cf}:{cf+3}], {c}')
    R = Region(mf)
    G = lambda ks, mb, cb: ks*20 + mb*4 + cb
    put(('wlg', ['w0_0', 'c0']))
    BARG = lambda ch: G(2*ch + 1, 0, 3)
    NCH = 16
    for ch in range(NCH - 1):
        R.place(('bar', [f'C{ch+1}']), BARG(ch), force=True)
        R.stream(upd(ch + 1), G(2*ch + 1, 0, 1), G(2*ch + 1, 1, 0))
    for ks in range(NKS):
        for mb in range(5):
            if ks == 0 and mb == 0: continue
            labs = [f'w{ks}_{mb}'] + ([f'c{ks}'] if mb == 0 else [])
            R.place(('wlg', labs), G(ks, mb, 0) - 1, force=True)
    for ks in range(NKS - 1):
        ch, t = divmod(ks, 2); nxt = ks + 1
        for mb in range(5):
            e = G(ks, mb, 3)
            if t == 1: e = max(e, G(ks, 1, 1))
            rr = rd_w(mb, nxt)
            lat = G(ks + 1, 0, 0) if t == 0 else G(ks + 1, mb, 0) - 3
            g = R.place(rr[0], e, lat); R.place(rr[1], min(g + 1, lat), lat)
        e = G(ks, 0, 0) if t == 0 else G(ks, 1, 1)
        for cb in range(4): R.place(rd_c(cb, nxt), e + 3*cb, G(ks + 1, 0, 0) - 4)
    def spread_dma(R, L, g0, g1):
        nm = sum(1 for x in L if x[0] in 'ml')
        step = max(1, (g1 - g0) // max(nm, 1))
        g = g0; cnt = 0
        for it in L:
            e = max(g, g0 + cnt*step - (2 if it[0] == 's' else 0))
            g = R.place(it, e, g1)
            if it[0] in 'ml': cnt += 1; g += 1
    for ch in range(NCH - 1):
        if ch + 3 < NCH: spread_dma(R, dma_chunk(ch + 3), BARG(ch) + 1, BARG(ch + 1) - 1)
    R.emit(p, put)
    print('kt gemm overflow', R.over, 'est', R.total())
    (p.stamp('gemm end') if 'ln' not in opt else None)
    p('s_nop 7')
    for cb in range(4):
        a0 = A(cb, 0)
        for k in range(10): p(f'v_cvt_pk_bf16_f32 v{a0+k}, v{a0+2*k}, v{a0+2*k+1}')
        p(f's_add_u32 s{sT0}, s{sP0}, {cb*8*2560}')
        p.vm(f'buffer_store_dwordx4 v[{a0}:{a0+3}], v{vLane16}, s[{S_PB}:{S_PB+3}], s{sT0} offen sc1', 'st')
        p.vm(f'buffer_store_dwordx4 v[{a0+4}:{a0+7}], v{vLane16}, s[{S_PB}:{S_PB+3}], s{sT0} offen offset:1024 sc1', 'st')
        if cb % 2 == 1:
            ae = A(cb - 1, 0)
            p(f'v_mov_b32 v{ae+10}, v{a0+8}')
            p(f'v_mov_b32 v{ae+11}, v{a0+9}')
            p(f's_add_u32 s{sT0}, s{sPS}, {(cb // 2)*8*1024}')
            p.vm(f'buffer_store_dwordx4 v[{ae+8}:{ae+11}], v{vLane16}, s[{S_PB}:{S_PB+3}], s{sT0} offen sc1', 'st')
    p('s_waitcnt vmcnt(0)')
    p('s_barrier')
    p(f's_cmp_lg_u32 s{sW}, 0')
    p(f's_cbranch_scc1 {name}_nosig')
    p(f's_lshl_b32 s{sT0}, s{sMT}, 7')
    p(f's_lshl_b32 s{sT1}, s{sS}, 4')
    p(f's_add_u32 s{sT0}, s{sT0}, s{sT1}')
    p(f's_lshl_b32 s{sT1}, s{sNT}, 2')
    p(f's_add_u32 s{sT0}, s{sT0}, s{sT1}')
    p(f's_add_u32 s{sT0}, s{sT0}, {O_FM}')
    p(f'v_mov_b32 v{vT}, 0')
    p(f'v_mov_b32 v{vT+1}, s{sTag}')
    p('v_cmp_eq_u32 vcc, 0, v0')
    p('s_nop 1')
    p('s_and_saveexec_b64 s[14:15], vcc')
    p(f'buffer_store_dword v{vT+1}, v{vT}, s[{S_ST}:{S_ST+3}], s{sT0} offen sc1')
    p('s_mov_b64 exec, s[14:15]')
    p.label(f'{name}_nosig')
    (p.stamp('signalled') if 'ln' not in opt else None)
    vTok, vOffP, vOffP8, vOffX, vLds, vLdsW, vTokG = 2, 3, 4, 5, 6, 7, 8
    PA = 20
    XR = 60
    WR = 70
    H = 80
    HN = 100
    sm, mean, mb_, var, sd, rc, t0, t1 = range(120, 128)
    sJ = sP0
    p(f's_lshl_b32 s{sJ}, s{sS}, 2')
    p(f's_add_u32 s{sJ}, s{sJ}, s{sNT}')
    p(f'v_and_b32 v{vTok}, 7, v0')
    p(f'v_bfe_u32 v{vT}, v0, 3, 2')
    p(f'v_lshrrev_b32 v{vT+1}, 5, v0')
    p(f's_lshr_b32 s{sT0}, s{sJ}, 1')
    p(f's_lshl_b32 s{sT1}, s{sMT}, 3')
    p(f's_add_u32 s{sT0}, s{sT0}, s{sT1}')
    sQB = 70
    p(f's_mov_b32 s{sQB}, s{sT0}')
    p(f's_lshl_b32 s{sT1}, s{sT0}, 4')
    p(f's_and_b32 s{sT2}, s{sJ}, 1')
    p(f's_lshl_b32 s{sT2}, s{sT2}, 3')
    p(f's_add_u32 s{sT1}, s{sT1}, s{sT2}')
    p(f'v_add_u32 v{vTokG}, s{sT1}, v{vTok}')
    p(f'v_lshl_add_u32 v{vT+2}, v{vT}, 4, v{vTok}')
    p(f'v_add_u32 v{vT+2}, s{sT2}, v{vT+2}')
    p(f's_lshl_b32 s{sT0}, s{sT0}, 3')
    p(f's_lshl_b32 s{sT2}, s{sW}, 1')
    p(f's_add_u32 s{sT0}, s{sT0}, s{sT2}')
    p(f'v_add_u32 v{vT+3}, s{sT0}, v{vT+1}')
    p(f'v_mul_u32_u24 v{vT+3}, 2560, v{vT+3}')
    p(f'v_lshl_add_u32 v{vOffP}, v{vT+2}, 4, v{vT+3}')
    p(f's_lshr_b32 s14, s{sQB}, 1')
    p(f's_lshl_b32 s14, s14, 3')
    p(f's_add_u32 s14, s14, s{sT2}')
    p(f'v_add_u32 v{vOffP8}, s14, v{vT+1}')
    p(f'v_lshlrev_b32 v{vOffP8}, 10, v{vOffP8}')
    p(f'v_lshl_add_u32 v{vOffP8}, v{vT+2}, 4, v{vOffP8}')
    p(f's_and_b32 s14, s{sQB}, 1')
    p(f's_lshl_b32 s14, s14, 3')
    p(f's_add_u32 s14, s14, {PS_OFF}')
    p(f'v_add_u32 v{vOffP8}, s14, v{vOffP8}')
    p(f's_mul_i32 s{sT2}, s{sW}, 320')
    p(f'v_mul_u32_u24 v{vT+4}, 160, v{vT+1}')
    p(f'v_lshl_add_u32 v{vT+4}, v{vT}, 3, v{vT+4}')
    p(f'v_add_u32 v{vT+4}, s{sT2}, v{vT+4}')
    p(f'v_mul_u32_u24 v{vOffX}, 1280, v{vTokG}')
    p(f'v_add_u32 v{vOffX}, v{vOffX}, v{vT+4}')
    p(f's_load_dwordx2 s[14:15], s[0:1], {ARG["wr"]}')
    for i in range(5):
        p(f'buffer_load_dwordx2 v[{XR+2*i}:{XR+2*i+1}], v{vOffX}, s[{S_X}:{S_X+3}], 0 offen offset:{32*i}')
    p('s_waitcnt lgkmcnt(0)')
    srd(p, 8, 14, 640*2)
    for i in range(5):
        p(f'buffer_load_dwordx2 v[{WR+2*i}:{WR+2*i+1}], v{vT+4}, s[8:11], 0 offen offset:{32*i}')
    RB = 143360
    STH = 122880; STO = 133120
    p(f's_lshl_b32 s{sT1}, s{sW}, 5')
    p(f'v_lshlrev_b32 v{vLds}, 2, v{vTok}')
    p(f'v_add_u32 v{vLds}, {RB}, v{vLds}')
    p(f'v_add_u32 v{vLdsW}, s{sT1}, v{vLds}')
    p(f's_cmp_ge_u32 s{sFj}, {NFFN}')
    p(f's_cbranch_scc1 {name}_nowl')
    p(f's_mul_i32 s{sT2}, s{sW}, 10240')
    p(f'v_add_u32 v{t0}, s{sT2}, v{vLane16}')
    p(f'v_add_u32 v{t1}, 65536, v{t0}')
    for mat, lbase in enumerate((0, 40960, 81920)):
        for i in range(10):
            r = 132 + (mat*10 + i)*4
            if lbase + i*1024 < 65536: p(f'ds_write_b128 v{t0}, a[{r}:{r+3}] offset:{lbase + i*1024}')
            else: p(f'ds_write_b128 v{t1}, a[{r}:{r+3}] offset:{lbase + i*1024 - 65536}')
    p.label(f'{name}_nowl')
    p(f's_cmp_lg_u32 s{sW}, 0')
    p(f's_cbranch_scc1 {name}_w1')
    p(f's_lshl_b32 s{sT0}, s{sMT}, 7')
    p(f's_add_u32 s{sT0}, s{sT0}, {O_FM}')
    Lp = p.nl(name + '_pollM')
    p(f'v_and_b32 v{t0}, 15, v0')
    p(f'v_lshlrev_b32 v{t0}, 2, v{t0}')
    p(f's_mov_b32 s{sT1}, 0')
    p.label(Lp)
    p(f'buffer_load_dword v{t1}, v{t0}, s[{S_ST}:{S_ST+3}], s{sT0} offen sc1')
    p('s_waitcnt vmcnt(0)')
    p(f'v_cmp_ne_u32 vcc, s{sTag}, v{t1}')
    p(f's_add_u32 s{sT1}, s{sT1}, 1')
    p(f's_cbranch_vccz {Lp}_ok')
    p(f's_cmp_ge_u32 s{sT1}, {SPIN}')
    p(f's_cbranch_scc1 {Lp}_ok')
    p('s_sleep 2')
    p(f's_branch {Lp}')
    p.label(Lp + '_ok')
    p.label(f'{name}_w1')
    p('s_barrier')
    (p.stamp('partials ready') if 'ln' not in opt else None)
    for s_ in range(4):
        p(f's_mov_b32 s{sT0}, {s_*128*8*2560}')
        b = PA + 10*s_
        p(f'buffer_load_dwordx4 v[{b}:{b+3}], v{vOffP}, s[{S_PB}:{S_PB+3}], s{sT0} offen sc1')
        p(f'buffer_load_dwordx4 v[{b+4}:{b+7}], v{vOffP}, s[{S_PB}:{S_PB+3}], s{sT0} offen offset:1024 sc1')
        p(f's_mov_b32 s{sT1}, {s_*64*8*1024}')
        p(f'buffer_load_dwordx2 v[{b+8}:{b+9}], v{vOffP8}, s[{S_PB}:{S_PB+3}], s{sT1} offen sc1')
    p('s_waitcnt vmcnt(0)')
    p.stamp('partials loaded')
    p(f'v_mov_b32 v{t0}, {RB}')
    p(f'v_mov_b32 v{t1}, 0')
    p(f'ds_write_b32 v{t0}, v{t1} offset:516')
    U0, U1 = 160, 180
    p(f's_mov_b32 s{sMaskC}, 0xffff0000')
    def ext(dst, src, half): return f'v_lshlrev_b32 v{dst}, 16, v{src}' if half == 0 else f'v_and_b32 v{dst}, s{sMaskC}, v{src}'
    for k in range(20): p(ext(H + k, PA + k//2, k % 2))
    for k in range(20): p(ext(U0 + k, PA + 10 + k//2, k % 2))
    for k in range(20): p(ext(U1 + k, PA + 20 + k//2, k % 2))
    for k in range(20): p(f'v_add_f32 v{H+k}, v{H+k}, v{U0+k}')
    for k in range(20): p(ext(U0 + k, PA + 30 + k//2, k % 2))
    for k in range(20): p(f'v_add_f32 v{U1+k}, v{U1+k}, v{U0+k}')
    for k in range(20): p(f'v_add_f32 v{H+k}, v{H+k}, v{U1+k}')
    for k2 in range(10): p(f'v_cvt_pk_bf16_f32 v{U0+k2}, v{H+2*k2}, v{H+2*k2+1}')
    for k in range(20): p(ext(H + k, U0 + k//2, k % 2))
    for k in range(20): p(ext(U1 + k, XR + k//2, k % 2))
    for k in range(20): p(f'v_add_f32 v{H+k}, v{H+k}, v{U1+k}')
    for k2 in range(10): p(f'v_cvt_pk_bf16_f32 v{XR+k2}, v{H+2*k2}, v{H+2*k2+1}')
    for k in range(20): p(ext(H + k, XR + k//2, k % 2))
    vSt = 9
    p(f'v_mul_u32_u24 v{vSt}, 1280, v{vTok}')
    p(f'v_add_u32 v{vSt}, v{vSt}, v{vT+4}')
    p(f'v_add_u32 v{vSt}, {STH}, v{vSt}')
    for i in range(5): p(f'ds_write_b64 v{vSt}, v[{XR+2*i}:{XR+2*i+1}] offset:{32*i}')
    TT = 128
    def allreduce_n(regs, slot):
        n = len(regs)
        p('s_nop 1')
        for r in regs: p(f'v_add_f32_dpp v{r}, v{r}, v{r} row_ror:8 row_mask:0xf bank_mask:0xf')
        for sw in ('v_permlane16_swap_b32', 'v_permlane32_swap_b32'):
            for i, r in enumerate(regs): p(f'v_mov_b32 v{TT+i}, v{r}')
            p('s_nop 1')
            for i, r in enumerate(regs): p(f'{sw} v{r}, v{TT+i}')
            p('s_nop 1')
            for i, r in enumerate(regs): p(f'v_add_f32 v{r}, v{r}, v{TT+i}')
        for i, r in enumerate(regs): p(f'ds_write_b32 v{vLdsW}, v{r} offset:{(slot + i)*128}')
        p('s_waitcnt lgkmcnt(0)')
        p('s_barrier')
        for i, r in enumerate(regs):
            for w in range(4): p(f'ds_read_b32 v{TT+4*i+w}, v{vLds} offset:{(slot + i)*128 + 32*w}')
        p('s_waitcnt lgkmcnt(0)')
        for i, r in enumerate(regs):
            p(f'v_add_f32 v{TT+4*i}, v{TT+4*i}, v{TT+4*i+1}')
            p(f'v_add_f32 v{TT+4*i+2}, v{TT+4*i+2}, v{TT+4*i+3}')
            p(f'v_add_f32 v{r}, v{TT+4*i}, v{TT+4*i+2}')
    def allreduce(reg, slot): allreduce_n([reg], slot)
    if 'ln' in opt: p.stamp('sums done')
    for k in range(10): p(f'v_add_f32 v{U0+k}, v{H+k}, v{H+10+k}')
    for k in range(5): p(f'v_add_f32 v{U0+k}, v{U0+k}, v{U0+5+k}')
    p(f'v_add_f32 v{U0}, v{U0}, v{U0+1}'); p(f'v_add_f32 v{U0+2}, v{U0+2}, v{U0+3}'); p('s_nop 0')
    p(f'v_add_f32 v{U0}, v{U0}, v{U0+4}'); p('s_nop 0'); p(f'v_add_f32 v{sm}, v{U0}, v{U0+2}'); p('s_nop 0')
    p(f'v_mul_f32 v{mean}, 0x3d4ccccd, v{sm}')
    p('s_nop 0')
    p(f'v_mul_f32 v{sd}, v{sm}, v{mean}')
    for k in range(20): p(f'v_sub_f32 v{U0+k}, v{H+k}, v{mean}')
    for k in range(10): p(f'v_mul_f32 v{U1+k}, v{U0+k}, v{U0+k}')
    for k in range(10): p(f'v_fmac_f32 v{U1+k}, v{U0+10+k}, v{U0+10+k}')
    for k in range(5): p(f'v_add_f32 v{U1+k}, v{U1+k}, v{U1+5+k}')
    p(f'v_add_f32 v{U1}, v{U1}, v{U1+1}'); p(f'v_add_f32 v{U1+2}, v{U1+2}, v{U1+3}'); p('s_nop 0')
    p(f'v_add_f32 v{U1}, v{U1}, v{U1+4}'); p('s_nop 0'); p(f'v_add_f32 v{var}, v{U1}, v{U1+2}')
    if 'ln' in opt: p.stamp('pre ar1')
    allreduce_n([sm, var, sd], 0)
    if 'ln' in opt: p.stamp('ar1')
    p(f'v_mul_f32 v{mean}, 0x3acccccd, v{sm}')
    for x in rne_keep(mb_, mean): p(x)
    p(f'v_fma_f32 v{sd}, -v{sm}, v{mean}, v{sd}')
    p(f'v_max_f32 v{sd}, 0, v{sd}')
    p(f'v_add_f32 v{var}, v{var}, v{sd}')
    p(f'v_mul_f32 v{var}, 0x3acccccd, v{var}')
    for x in rne_keep(var, var): p(x)
    p(f'v_add_f32 v{var}, 0x3727c5ac, v{var}')
    for x in rne_keep(var, var): p(x)
    p(f'v_sqrt_f32 v{sd}, v{var}')
    p('s_nop 0')
    for x in rne_keep(sd, sd): p(x)
    p(f'v_rcp_f32 v{rc}, v{sd}')
    p('s_nop 0')
    p(f'v_mov_b32 v{sm}, v{rc}')
    for k in range(20): p(f'v_sub_f32 v{U0+k}, v{H+k}, v{mb_}')
    for k2 in range(10): p(f'v_cvt_pk_bf16_f32 v{U1+k2}, v{U0+2*k2}, v{U0+2*k2+1}')
    for k in range(20): p(ext(U0 + k, U1 + k//2, k % 2))
    for k in range(20): p(f'v_mul_f32 v{U0+k}, v{U0+k}, v{sm}')
    for k2 in range(10): p(f'v_cvt_pk_bf16_f32 v{U1+k2}, v{U0+2*k2}, v{U0+2*k2+1}')
    for k in range(20): p(ext(HN + k, U1 + k//2, k % 2))
    for k in range(20): p(ext(U0 + k, WR + k//2, k % 2))
    for k in range(10): p(f'v_mul_f32 v{U1+k}, v{HN+k}, v{U0+k}')
    for k in range(10): p(f'v_fmac_f32 v{U1+k}, v{HN+10+k}, v{U0+10+k}')
    for k in range(20): p(f'v_add_f32 v{U0+k}, v{H+k}, v{HN+k}')
    for k in range(5): p(f'v_add_f32 v{U1+k}, v{U1+k}, v{U1+5+k}')
    for k2 in range(10): p(f'v_cvt_pk_bf16_f32 v{PA+k2}, v{U0+2*k2}, v{U0+2*k2+1}')
    p(f'v_add_f32 v{U1}, v{U1}, v{U1+1}'); p(f'v_add_f32 v{U1+2}, v{U1+2}, v{U1+3}'); p('s_nop 0')
    p(f'v_add_f32 v{U1}, v{U1}, v{U1+4}'); p('s_nop 0'); p(f'v_add_f32 v{var}, v{U1}, v{U1+2}')
    for i in range(5): p(f'ds_write_b64 v{vSt}, v[{PA+2*i}:{PA+2*i+1}] offset:{STO - STH + 32*i}')
    if 'ln' in opt: p.stamp('pre ar2')
    allreduce(var, 3)
    if 'ln' in opt: p.stamp('ar2')
    p(f'v_cvt_pk_bf16_f32 v{var}, v{var}, v{var}')
    p(f's_cmp_lg_u32 s{sW}, 0')
    p(f's_cbranch_scc1 {name}_w123')
    p(f'v_and_b32 v{t0}, 0xffff, v{var}')
    p(f'v_or_b32 v{t1}, 0x8000, v{t0}')
    p(f'v_xor_b32 v{rc}, 0xffff, v{t0}')
    p(f'v_cmp_lt_u32 vcc, 0x7fff, v{t0}')
    p('s_nop 1')
    p(f'v_cndmask_b32 v{t1}, v{t1}, v{rc}, vcc')
    p(f'v_sub_u32 v{t0}, 0xffff, v{vTokG}')
    p(f'v_lshl_or_b32 v{t1}, v{t1}, 16, v{t0}')
    for sh in (4, 2, 1):
        p('s_nop 1')
        p(f'v_max_u32_dpp v{t1}, v{t1}, v{t1} row_ror:{sh} row_mask:0xf bank_mask:0xf')
    p(f's_lshl_b32 s{sT0}, s2, 3')
    p(f's_add_u32 s{sT0}, s{sT0}, {O_KEYS}')
    p(f'v_mov_b32 v{t0}, 0')
    p(f'v_mov_b32 v{TT}, v{t1}')
    p(f'v_mov_b32 v{TT+1}, s{sTag}')
    p(f'buffer_store_dwordx2 v[{TT}:{TT+1}], v{t0}, s[{S_ST}:{S_ST+3}], s{sT0} offen sc1')
    p.stamp('key out')
    p(f's_cmp_ge_u32 s{sFj}, {NFFN}')
    p(f's_cbranch_scc1 {name}_fin')
    p(f's_branch {name}_w0poll')
    p.label(f'{name}_w123')
    p(f's_sub_u32 s{sT0}, s{sW}, 1')
    p(f's_lshl_b32 s{sT0}, s{sT0}, 10')
    p(f'v_add_u32 v{t0}, s{sT0}, v{vLane16}')
    p(f'v_add_u32 v{t1}, {STH}, v{t0}')
    for mat in range(2):
        for i in range(4): p(f'ds_read_b128 v[{PA+16*mat+4*i}:{PA+16*mat+4*i+3}], v{t1} offset:{mat*(STO - STH) + 3072*i}')
    p(f's_lshl_b32 s{sT1}, s{sQB}, 4')
    p(f's_and_b32 s{sT2}, s{sJ}, 1')
    p(f's_lshl_b32 s{sT2}, s{sT2}, 3')
    p(f's_add_u32 s{sT1}, s{sT1}, s{sT2}')
    p(f's_mul_i32 s{sT1}, s{sT1}, 1280')
    p('s_waitcnt lgkmcnt(0)')
    for mat, sr in enumerate((S_H, S_OUT)):
        for i in range(3):
            p(f's_add_u32 s{sT2}, s{sT1}, {3072*i}')
            p(f'buffer_store_dwordx4 v[{PA+16*mat+4*i}:{PA+16*mat+4*i+3}], v{t0}, s[{sr}:{sr+3}], s{sT2} offen sc1')
    p(f's_cmp_lg_u32 s{sW}, 1')
    p(f's_cbranch_scc1 {name}_ns3')
    p(f's_add_u32 s{sT2}, s{sT1}, 9216')
    for mat, sr in enumerate((S_H, S_OUT)):
        p(f'buffer_store_dwordx4 v[{PA+16*mat+12}:{PA+16*mat+15}], v{t0}, s[{sr}:{sr+3}], s{sT2} offen sc1')
    p('v_cmp_gt_u32 vcc, 8, v0')
    p('s_nop 1')
    p('s_and_saveexec_b64 s[14:15], vcc')
    p(f'v_lshlrev_b32 v{t1}, 2, v{vTokG}')
    p(f's_mov_b32 s{sT0}, 8192')
    p(f'buffer_store_dword v{mb_}, v{t1}, s[{S_ST}:{S_ST+3}], s{sT0} offen sc1')
    p(f's_mov_b32 s{sT0}, 16384')
    p(f'buffer_store_dword v{sd}, v{t1}, s[{S_ST}:{S_ST+3}], s{sT0} offen sc1')
    p('s_mov_b64 exec, s[14:15]')
    p.label(f'{name}_ns3')
    p('s_waitcnt vmcnt(0) lgkmcnt(0)')
    p(f'v_mov_b32 v{t0}, {RB}')
    p(f'v_mov_b32 v{t1}, 1')
    p('v_cmp_eq_u32 vcc, 0, v0')
    p('s_nop 1')
    p('s_and_saveexec_b64 s[14:15], vcc')
    p(f'ds_add_rtn_u32 v{t1}, v{t0}, v{t1} offset:516')
    p('s_waitcnt lgkmcnt(0)')
    p('s_mov_b64 exec, s[14:15]')
    p(f'v_readfirstlane_b32 s{sT0}, v{t1}')
    p('s_nop 3')
    p(f's_cmp_lg_u32 s{sT0}, 2')
    p(f's_cbranch_scc1 {name}_w3')
    p(f's_lshl_b32 s{sT0}, s2, 2')
    p(f's_add_u32 s{sT0}, s{sT0}, {O_RDY}')
    p(f'v_mov_b32 v{t0}, 0')
    p(f'v_mov_b32 v{t1}, s{sTag}')
    p(f'buffer_store_dword v{t1}, v{t0}, s[{S_ST}:{S_ST+3}], s{sT0} offen sc1')
    p.label(f'{name}_w3')
    p(f's_cmp_ge_u32 s{sFj}, {NFFN}')
    p(f's_cbranch_scc1 {name}_fin')
    p(f's_branch {name}_w4')
    p.label(f'{name}_w0poll')
    Lk = p.nl(name + '_pollK')
    p(f's_mov_b32 s{sT1}, 0')
    p(f's_mov_b32 s{sT0}, {O_KEYS}')
    p(f'v_lshlrev_b32 v28, 5, v0')
    p.label(Lk)
    p(f'buffer_load_dwordx4 v[20:23], v28, s[{S_ST}:{S_ST+3}], s{sT0} offen sc1')
    p(f'buffer_load_dwordx4 v[24:27], v28, s[{S_ST}:{S_ST+3}], s{sT0} offen offset:16 sc1')
    p('s_waitcnt vmcnt(0)')
    p(f'v_xor_b32 v21, s{sTag}, v21')
    p(f'v_xor_b32 v23, s{sTag}, v23')
    p(f'v_xor_b32 v25, s{sTag}, v25')
    p(f'v_xor_b32 v27, s{sTag}, v27')
    p(f'v_or3_b32 v21, v21, v23, v25')
    p(f'v_or_b32 v21, v21, v27')
    p(f'v_cmp_ne_u32 vcc, 0, v21')
    p(f's_add_u32 s{sT1}, s{sT1}, 1')
    p(f's_cbranch_vccz {Lk}_ok')
    p(f's_cmp_ge_u32 s{sT1}, {SPIN}')
    p(f's_cbranch_scc1 {Lk}_ok')
    p('s_sleep 1')
    p(f's_branch {Lk}')
    p.label(Lk + '_ok')
    (p.stamp('argmax ready') if 'ln' not in opt else None)
    p(f'v_max_u32 v20, v20, v22')
    p(f'v_max_u32 v24, v24, v26')
    p('s_nop 0')
    p(f'v_max_u32 v20, v20, v24')
    for sh in (8, 4, 2, 1):
        p('s_nop 1')
        p(f'v_max_u32_dpp v20, v20, v20 row_ror:{sh} row_mask:0xf bank_mask:0xf')
    for sw in ('v_permlane16_swap_b32', 'v_permlane32_swap_b32'):
        p(f'v_mov_b32 v21, v20')
        p('s_nop 1')
        p(f'{sw} v20, v21')
        p('s_nop 1')
        p(f'v_max_u32 v20, v20, v21')
    p(f'v_mov_b32 v21, {RB}')
    p(f'ds_write_b32 v21, v20 offset:512')
    p('s_waitcnt lgkmcnt(0)')
    p.label(f'{name}_w4')
    p('s_barrier')
    p(f'v_mov_b32 v21, {RB}')
    p(f'ds_read_b32 v20, v21 offset:512')
    p('s_waitcnt lgkmcnt(0)')
    p(f'v_readfirstlane_b32 s{sR}, v20')
    p('s_nop 4')
    p(f's_and_b32 s{sIdx}, s{sR}, 0xffff')
    p(f's_sub_u32 s{sIdx}, 0xffff, s{sIdx}')
    p(f's_min_u32 s{sIdx}, s{sIdx}, 2047')
    p(f's_lshr_b32 s{sR}, s{sR}, 16')
    p(f's_xor_b32 s{sT0}, s{sR}, 0xffff')
    p(f's_and_b32 s{sT1}, s{sR}, 0x7fff')
    p(f's_bitcmp1_b32 s{sR}, 15')
    p(f's_cselect_b32 s{sR}, s{sT1}, s{sT0}')
    p(f's_lshl_b32 s{sR}, s{sR}, 16')
    p(f's_lshr_b32 s{sT0}, s{sIdx}, 7')
    p(f's_bfe_u32 s{sT1}, s{sIdx}, 0x40003')
    p(f's_lshr_b32 s{sT2}, s{sT1}, 2')
    p(f's_lshl_b32 s{sT2}, s{sT2}, 1')
    p(f's_lshr_b32 s14, s{sT0}, 3')
    p(f's_add_u32 s{sT2}, s{sT2}, s14')
    p(f's_and_b32 s{sT1}, s{sT1}, 3')
    p(f's_lshl_b32 s{sT1}, s{sT1}, 3')
    p(f's_and_b32 s{sT0}, s{sT0}, 7')
    p(f's_add_u32 s{sT1}, s{sT1}, s{sT0}')
    p(f's_lshl_b32 s{sT1}, s{sT1}, 3')
    p(f's_add_u32 s{sT1}, s{sT1}, s{sT2}')
    p(f's_lshl_b32 s{sT1}, s{sT1}, 2')
    p(f's_add_u32 s{sT0}, s{sT1}, {O_RDY}')
    Lr = p.nl(name + '_pollR')
    p(f's_mov_b32 s{sT1}, 0')
    p(f'v_mov_b32 v{t0}, 0')
    p.label(Lr)
    p(f'buffer_load_dword v{t1}, v{t0}, s[{S_ST}:{S_ST+3}], s{sT0} offen sc1')
    p('s_waitcnt vmcnt(0)')
    p(f'v_readfirstlane_b32 s{sT2}, v{t1}')
    p(f's_add_u32 s{sT1}, s{sT1}, 1')
    p(f's_cmp_eq_u32 s{sT2}, s{sTag}')
    p(f's_cbranch_scc1 {Lr}_ok')
    p(f's_cmp_ge_u32 s{sT1}, {SPIN}')
    p(f's_cbranch_scc1 {Lr}_ok')
    p(f's_branch {Lr}')
    p.label(Lr + '_ok')
    tid = 2
    p(f's_lshl_b32 s{sT0}, s{sW}, 6')
    p(f'v_add_u32 v{tid}, s{sT0}, v0')
    p(f'v_lshlrev_b32 v3, 4, v{tid}')
    p(f's_mul_i32 s{sT1}, s{sIdx}, 1280')
    p(f'buffer_load_dwordx4 v[20:23], v3, s[{S_H}:{S_H+3}], s{sT1} offen sc1')
    p(f's_lshl_b32 s{sT0}, s{sIdx}, 2')
    p(f'v_mov_b32 v4, s{sT0}')
    p(f's_mov_b32 s{sT0}, 8192')
    p(f'buffer_load_dword v{mb_}, v4, s[{S_ST}:{S_ST+3}], s{sT0} offen sc1')
    p(f's_mov_b32 s{sT0}, 16384')
    p(f'buffer_load_dword v{sd}, v4, s[{S_ST}:{S_ST+3}], s{sT0} offen sc1')
    p('s_waitcnt vmcnt(0)')
    p(f'v_rcp_f32 v{sm}, v{sd}')
    for k in range(4):
        p(f'v_lshlrev_b32 v{t0}, 16, v{20+k}')
        p(f'v_and_b32 v{t1}, 0xffff0000, v{20+k}')
        p(f'v_sub_f32 v{t0}, v{t0}, v{mb_}')
        p(f'v_sub_f32 v{t1}, v{t1}, v{mb_}')
        p(f'v_cvt_pk_bf16_f32 v{t0}, v{t0}, v{t1}')
        p(f'v_and_b32 v{t1}, 0xffff0000, v{t0}')
        p(f'v_lshlrev_b32 v{t0}, 16, v{t0}')
        p(f'v_mul_f32 v{t0}, v{t0}, v{sm}')
        p(f'v_mul_f32 v{t1}, v{t1}, v{sm}')
        p(f'v_cvt_pk_bf16_f32 v{24+k}, v{t0}, v{t1}')
    HNL = STH
    p(f'v_cmp_gt_u32 vcc, 80, v{tid}')
    p('s_nop 1')
    p('s_and_saveexec_b64 s[14:15], vcc')
    p(f's_cbranch_execz {name}_h1')
    p(f'v_add_u32 v4, {HNL}, v3')
    p(f'ds_write_b128 v4, v[24:27]')
    p(f'ds_write_b128 v4, v[20:23] offset:1280')
    p.label(f'{name}_h1')
    p('s_mov_b64 exec, s[14:15]')
    p('s_waitcnt lgkmcnt(0)')
    p('s_barrier')
    p(f'v_lshrrev_b32 v5, 4, v0')
    p(f's_mul_i32 s{sT0}, s{sW}, 320')
    p(f's_add_u32 s{sT0}, s{sT0}, {HNL}')
    p(f'v_lshlrev_b32 v6, 4, v5')
    p(f'v_add_u32 v6, s{sT0}, v6')
    p(f'v_bfe_u32 v7, v0, 2, 2')
    p(f'v_lshl_add_u32 v7, v5, 3, v7')
    p(f'v_lshlrev_b32 v7, 6, v7')
    p(f'v_and_b32 v8, 3, v0')
    p(f'v_lshl_add_u32 v7, v8, 3, v7')
    p(f's_mul_i32 s{sT0}, s{sW}, {5*32*64}')
    p(f'v_add_u32 v7, s{sT0}, v7')
    AF = 28
    BF = 48
    D = 130
    for k in range(5): p(f'ds_read_b128 v[{AF+4*k}:{AF+4*k+3}], v6 offset:{64*k}')
    for k in range(5):
        b = BF + 16*(k % 4)
        for mat in range(2):
            for cb in range(2):
                for h in range(2):
                    r = b + (mat*2 + cb)*4 + 2*h
                    p(f'ds_read_b64_tr_b16 v[{r}:{r+1}], v7 offset:{mat*40960 + k*2048 + h*256 + cb*32}')
        p('s_waitcnt lgkmcnt(0)')
        for t in range(4):
            c = '0' if k == 0 else f'v[{D+4*t}:{D+4*t+3}]'
            p(f'{MF} v[{D+4*t}:{D+4*t+3}], v[{AF+4*k}:{AF+4*k+3}], v[{b+4*t}:{b+4*t+3}], {c}')
    p('s_nop 7')
    XB = RB + 1024
    p(f'v_and_b32 v8, 15, v0')
    p(f'v_lshlrev_b32 v8, 2, v8')
    p(f's_lshl_b32 s{sT0}, s{sW}, 8')
    p(f's_add_u32 s{sT0}, s{sT0}, {XB}')
    p(f'v_add_u32 v9, s{sT0}, v8')
    for t in range(4): p(f'ds_write_b32 v9, v{D+4*t} offset:{64*t}')
    p('s_waitcnt lgkmcnt(0)')
    p('s_barrier')
    p(f'v_and_b32 v8, 31, v0')
    p(f'v_lshlrev_b32 v8, 2, v8')
    p(f'v_add_u32 v8, {XB}, v8')
    for w in range(4):
        p(f'ds_read_b32 v{20+w}, v8 offset:{256*w}')
        p(f'ds_read_b32 v{24+w}, v8 offset:{256*w+128}')
    p('s_waitcnt lgkmcnt(0)')
    for b in (20, 24):
        p(f'v_add_f32 v{b}, v{b}, v{b+1}')
        p(f'v_add_f32 v{b+2}, v{b+2}, v{b+3}')
        p(f'v_add_f32 v{b}, v{b}, v{b+2}')
    g_, u_ = 20, 24
    for x in rne_keep(g_, g_): p(x)
    for x in rne_keep(u_, u_): p(x)
    p(f'v_mul_f32 v{t1}, 0xbfb8aa3b, v{g_}')
    p(f'v_exp_f32 v{t1}, v{t1}')
    p('s_nop 0')
    p(f'v_add_f32 v{t1}, 1.0, v{t1}')
    p(f'v_rcp_f32 v{t1}, v{t1}')
    p('s_nop 0')
    p(f'v_mul_f32 v{g_}, v{g_}, v{t1}')
    for x in rne_keep(g_, g_): p(x)
    p(f'v_mul_f32 v{g_}, v{g_}, v{u_}')
    p(f'v_cvt_pk_bf16_f32 v{g_}, v{g_}, v{g_}')
    AB = RB + 2048
    p(f's_lshl_b32 s{sT0}, s{sW}, 6')
    p(f's_add_u32 s{sT0}, s{sT0}, {AB}')
    p(f'v_and_b32 v8, 31, v0')
    p(f'v_lshlrev_b32 v8, 1, v8')
    p(f'v_add_u32 v8, s{sT0}, v8')
    p(f'ds_write_b16 v8, v{g_}')
    p(f'v_lshlrev_b32 v9, 4, v5')
    p(f'v_add_u32 v9, s{sT0}, v9')
    p('s_waitcnt lgkmcnt(0)')
    p(f'ds_read_b128 v[{AF}:{AF+3}], v9')
    p(f'v_bfe_u32 v7, v0, 2, 2')
    p(f'v_lshl_add_u32 v7, v5, 3, v7')
    p(f'v_mul_u32_u24 v7, 1280, v7')
    p(f'v_and_b32 v8, 3, v0')
    p(f'v_lshl_add_u32 v7, v8, 3, v7')
    p(f's_mul_i32 s{sT0}, s{sW}, 320')
    p(f's_add_u32 s{sT0}, s{sT0}, 81920')
    p(f'v_add_u32 v7, s{sT0}, v7')
    for mb in range(10):
        for h in range(2):
            r = BF + 4*mb + 2*h
            p(f'ds_read_b64_tr_b16 v[{r}:{r+1}], v7 offset:{h*5120 + mb*32}')
    p('s_waitcnt lgkmcnt(0)')
    Y = 130
    for mb in range(10): p(f'{MF} v[{Y+4*mb}:{Y+4*mb+3}], v[{AF}:{AF+3}], v[{BF+4*mb}:{BF+4*mb+3}], 0')
    p('s_nop 7')
    for i in range(3):
        dst = 20 + i
        p(f'v_mov_b32 v{dst}, v{Y+4*min(4*i, 9)}')
        for g in range(1, 4):
            mb = 4*i + g
            if mb < 10:
                p(f'v_cmp_eq_u32 vcc, {g}, v5')
                p('s_nop 1')
                p(f'v_cndmask_b32 v{dst}, v{dst}, v{Y+4*mb}, vcc')
    p(f's_and_b32 s{sT0}, s{sFj}, 7')
    p(f's_mul_i32 s{sT0}, s{sT0}, 2560')
    p(f's_add_u32 s{sT0}, s{sT0}, {WS_YACC - WS_STAT}')
    p(f's_mul_i32 s{sT1}, s{sW}, 640')
    p(f's_add_u32 s{sT0}, s{sT0}, s{sT1}')
    p(f'v_lshlrev_b32 v8, 2, v0')
    p(f'buffer_atomic_add_f32 v20, v8, s[{S_ST}:{S_ST+3}], s{sT0} offen')
    p(f'buffer_atomic_add_f32 v21, v8, s[{S_ST}:{S_ST+3}], s{sT0} offen offset:256')
    p('v_cmp_gt_u32 vcc, 32, v0')
    p('s_nop 1')
    p('s_and_saveexec_b64 s[14:15], vcc')
    p(f'buffer_atomic_add_f32 v22, v8, s[{S_ST}:{S_ST+3}], s{sT0} offen offset:512')
    p('s_mov_b64 exec, s[14:15]')
    p('s_waitcnt vmcnt(0)')
    p('s_barrier')
    (p.stamp('ffn atomics done') if 'ln' not in opt else None)
    p(f's_cmp_lg_u32 s{sW}, 0')
    p(f's_cbranch_scc1 {name}_w5')
    p(f's_lshl_b32 s{sT0}, s{sFj}, 2')
    p(f's_add_u32 s{sT0}, s{sT0}, {O_FF}')
    p(f'v_mov_b32 v{t0}, 0')
    p(f'v_mov_b32 v{t1}, s{sTag}')
    p('v_cmp_eq_u32 vcc, 0, v0')
    p('s_nop 1')
    p('s_and_saveexec_b64 s[14:15], vcc')
    p(f'buffer_store_dword v{t1}, v{t0}, s[{S_ST}:{S_ST+3}], s{sT0} offen sc1')
    p('s_mov_b64 exec, s[14:15]')
    p.label(f'{name}_w5')
    p(f's_cmp_lg_u32 s{sFj}, 0')
    p(f's_cbranch_scc1 {name}_fin')
    Lf = p.nl(name + '_pollF')
    p(f's_mov_b32 s{sT1}, 0')
    p(f's_mov_b32 s{sT0}, {O_FF}')
    p(f'v_lshlrev_b32 v{t0}, 2, v0')
    p(f'v_cmp_gt_u32 s[14:15], {NFFN}, v0')
    p.label(Lf)
    p(f'buffer_load_dword v{t1}, v{t0}, s[{S_ST}:{S_ST+3}], s{sT0} offen sc1')
    p('s_waitcnt vmcnt(0)')
    p(f'v_cmp_ne_u32 vcc, s{sTag}, v{t1}')
    p(f's_add_u32 s{sT1}, s{sT1}, 1')
    p('s_nop 0')
    p('s_and_b64 vcc, vcc, s[14:15]')
    p(f's_cbranch_vccz {Lf}_ok')
    p(f's_cmp_ge_u32 s{sT1}, {SPIN}')
    p(f's_cbranch_scc1 {Lf}_ok')
    p('s_sleep 1')
    p(f's_branch {Lf}')
    p.label(Lf + '_ok')
    p(f'v_lshlrev_b32 v8, 2, v{tid}')
    GW = 20
    for i in range(3):
        for c in range(8):
            p(f's_mov_b32 s{sT0}, {WS_YACC - WS_STAT + c*2560 + i*1024}')
            p(f'buffer_load_dword v{GW+8*i+c}, v8, s[{S_ST}:{S_ST+3}], s{sT0} offen sc0 sc1')
    p(f'v_lshlrev_b32 v9, 1, v{tid}')
    p(f'v_add_u32 v10, {HNL}, v9')
    for i in range(3):
        p(f'ds_read_u16 v{50+i}, v10 offset:{512*i}')
        p(f'ds_read_u16 v{54+i}, v10 offset:{1280 + 512*i}')
    p(f'v_mov_b32 v{t1}, s{sR}')
    p(f'v_mul_f32 v{t1}, 0xbfb8aa3b, v{t1}')
    p(f'v_exp_f32 v{t1}, v{t1}')
    p('s_nop 0')
    p(f'v_add_f32 v{t1}, 1.0, v{t1}')
    p(f'v_rcp_f32 v{t1}, v{t1}')
    p('s_nop 0')
    for x in rne_keep(t1, t1): p(x)
    p('s_waitcnt vmcnt(0) lgkmcnt(0)')
    p(f's_mul_i32 s{sT1}, s{sIdx}, 1280')
    for i in range(3):
        b = GW + 8*i
        for c in range(1, 8): p(f'v_add_f32 v{b}, v{b}, v{b+c}')
        for x in rne_keep(b, b): p(x)
        p(f'v_mul_f32 v{b}, v{b}, v{t1}')
        for x in rne_keep(b, b): p(x)
        p(f'v_lshlrev_b32 v{50+i}, 16, v{50+i}')
        p(f'v_lshlrev_b32 v{54+i}, 16, v{54+i}')
        p(f'v_add_f32 v{b}, v{b}, v{50+i}')
        for x in rne_keep(b, b): p(x)
        p(f'v_add_f32 v{b}, v{b}, v{54+i}')
        p(f'v_cvt_pk_bf16_f32 v{b}, v{b}, v{b}')
    p(f'buffer_store_short v{GW}, v9, s[{S_OUT}:{S_OUT+3}], s{sT1} offen sc1')
    p(f'buffer_store_short v{GW+8}, v9, s[{S_OUT}:{S_OUT+3}], s{sT1} offen offset:512 sc1')
    p(f'v_cmp_gt_u32 vcc, 128, v{tid}')
    p('s_nop 1')
    p('s_and_saveexec_b64 s[14:15], vcc')
    p(f's_cbranch_execz {name}_x')
    p(f'buffer_store_short v{GW+16}, v9, s[{S_OUT}:{S_OUT+3}], s{sT1} offen offset:1024 sc1')
    p.label(f'{name}_x')
    p('s_mov_b64 exec, s[14:15]')
    p.label(f'{name}_fin')
    p.dump_stamps(12, 101*MiB, 13)
    p.label(f'{name}_tdone')
    nerr = 0
    return nerr
```

```python
from common import *
from gx2 import *
from sched import *
from k1b import w_tile_setup, MF
from lnops import *
WS_FLG = 82*MiB

CTX_FLAGS = 'sc1'
LIM = 0x5d800000
NEGBIG = 0xff800000
opt_idx = [0]
TW, TF, PE = False, True, True
PREFETCH = True

def gen_kf(name='front_kernel', prof=False, opt=()):
    p = P2(); p.prof = prof
    p.lenient = 'nordsA' in opt
    p.dbgmode = 'dbg' in opt
    p.stampset = set(['start', 'phase A done', 'q end', 'attn prologue done', 'L done', 'ctx ready', 'gemm end', 'key out', 'argmax ready', 'ffn atomics done'])
    if 'tr' in opt: p.stampset = set(['start', 'q end', 'pre check', 'kv ok', 'qk0 done', 'attn prologue done', 'L done', 'tail setup', 'ctx pub', 'ctx ready'])
    if 'tl' in opt: p.stampset = set(['start', 'L done', 'ctx ready', 'gemm end', 'signalled', 'partials ready', 'partials loaded', 'key out', 'argmax ready', 'ffn atomics done'])
    put = make_put(p)
    S_WQ, S_XNF, S_KF, S_VF, S_CTX = 16, 20, 24, 28, 32
    sM = 36
    sW, sH, sI = 44, 45, 46
    sT0, sT1, sT2 = 47, 48, 49
    sLW = 50
    sWoff = 51
    sXL, sXS = 52, 53
    sKb, sVb = 54, 55
    sHbase = 56
    sSlotP, sSlotR = 57, 58
    sTL, sTS = 59, 60
    sCnt = 61
    sDd = 62
    sFlag = 63
    sCtx = 64
    sLim = 65
    sScale = 61
    sSel = 4
    vLane16 = 1; vRd = 2; vNinf = 3
    vOffW = 4
    vLPW = 8; vT = 9
    vNeg = 16; vCi = 32; vS = 48; vP = 80; vE = 112; vL = 116; vU = 120
    vCW = 120
    vWF = 48
    vO = 128
    aQ = 0; aK = 64; aV = 96; aX = 128
    O = lambda c, db: vO + 32*c + 4*db
    Sr = lambda sc, kb: vS + 8*sc + 4*kb
    Pr = lambda par, c: vP + 16*par + 4*c
    NSLOT = 5

    S_CKV, S_X, S_DBG = 4, 8, 88
    S_WUK, S_WUV = 36, 40
    S_FL = 68
    sTag = 3
    sXcc = 67; sSame = 66
    sASum = sFlag
    sAoff = sDd; sWr = sCtx; sAr = sLim; sWp = sKb; sAp = sVb; sKst = sSlotP
    vOffA = 16
    vLPA = 20; vCA = 21
    vWK = 32; vWV = 64; vAct = 128
    SPIN = 1 << 16
    p(f's_cmp_ge_u32 s2, 256')
    p(f's_cbranch_scc1 {name}_done')
    p.stamp('start')
    p(f's_load_dwordx2 s[84:85], s[0:1], {ARG["x"]}')
    p(f's_load_dwordx2 s[86:87], s[0:1], {ARG["ckv"]}')
    p(f's_load_dwordx4 s[88:91], s[0:1], {ARG["wuk"]}')
    p(f's_load_dwordx2 s[92:93], s[0:1], {ARG["wq"]}')
    p(f's_load_dwordx4 s[96:99], s[0:1], {ARG["dbg"]}')
    p('s_and_b32 s14, s2, 7')
    p('s_lshr_b32 s15, s2, 3')
    p(f's_lshr_b32 s{sH}, s15, 3')
    p(f's_lshl_b32 s14, s14, 2')
    p(f's_add_u32 s{sH}, s{sH}, s14')
    p(f's_and_b32 s{sI}, s15, 7')
    p('v_lshrrev_b32 v2, 6, v0')
    p('v_and_b32 v0, 63, v0')
    p(f'v_readfirstlane_b32 s{sW}, v2')
    p(f'v_lshlrev_b32 v{vLane16}, 4, v0')
    p(f's_getreg_b32 s{sXcc}, hwreg(HW_REG_XCC_ID, 0, 4)')
    w_tile_setup(p, vOffW, vLPW, vT)
    p(f'v_lshrrev_b32 v{vT}, 3, v0')
    p(f'v_lshlrev_b32 v{vT}, 10, v{vT}')
    p(f'v_lshrrev_b32 v{vT+1}, 4, v0')
    p(f'v_and_b32 v{vT+2}, 7, v0')
    p(f'v_xor_b32 v{vT+2}, v{vT+2}, v{vT+1}')
    p(f'v_lshl_add_u32 v{vOffA}, v{vT+2}, 4, v{vT}')
    p(f'v_xor_b32 v{vT+3}, 4, v{vT+2}')
    p(f'v_lshl_add_u32 v{vOffA+1}, v{vT+3}, 4, v{vT}')
    p(f'v_add_u32 v{vOffA+2}, {2*7168}, v{vOffA}')
    p(f'v_add_u32 v{vOffA+3}, {3*7168}, v{vOffA+1}')
    p(f'v_add_u32 v{vOffA+1}, {1*7168}, v{vOffA+1}')
    p(f'v_and_b32 v{vT}, 15, v0')
    p(f'v_bfe_u32 v{vT+1}, v0, 1, 3')
    p(f'v_lshrrev_b32 v{vT+2}, 4, v0')
    p(f'v_xor_b32 v{vT+1}, v{vT+1}, v{vT+2}')
    p(f'v_lshlrev_b32 v{vT}, 7, v{vT}')
    p(f'v_lshl_add_u32 v{vLPA}, v{vT+1}, 4, v{vT}')
    p(f's_lshl_b32 s{sLW}, s{sW}, 12')
    p(f's_lshl_b32 s{sWoff}, s{sW}, 17')
    p(f's_lshl_b32 s{sT1}, s{sH}, 8')
    p(f's_add_u32 s{sWoff}, s{sWoff}, s{sT1}')
    p(f's_lshl_b32 s{sT0}, s{sI}, 8')
    p(f's_lshl_b32 s{sT1}, s{sW}, 6')
    p(f's_add_u32 s{sT0}, s{sT0}, s{sT1}')
    p(f's_lshl_b32 s{sAoff}, s{sT0}, 10')
    sK0 = sXL; sLA = sXS
    p(f's_lshl_b32 s{sHbase}, s{sH}, 6')
    p(f's_lshr_b32 s{sT1}, s{sT0}, 5')
    p(f's_add_u32 s{sHbase}, s{sHbase}, s{sT1}')
    p(f's_lshl_b32 s{sHbase}, s{sHbase}, 13')
    p(f's_lshl_b32 s{sLA}, s{sW}, 13')
    p('s_waitcnt lgkmcnt(0)')
    srd(p, S_CKV, 86, 2048*512*2)
    srd(p, S_WUK, 88, 512*4096*2)
    srd(p, S_WUV, 90, 512*4096*2)
    SL = 16384
    ACT0 = 98304
    def emit(L):
        prev = None
        for it in L:
            if it[0] == 'm' and prev is not None and prev[0] == 's' and ' m0,' in prev[1]: put(('s', 's_nop 0'))
            put(it); prev = it
    def dmaW_static(st):
        base = (st % 3)*32768; L = []
        for mi, sr in enumerate((S_WUK, S_WUV)):
            L += [('s', f's_add_u32 s{sT0}, s{sWoff}, {st*64*8192}'), ('s', f's_add_u32 m0, s{sLW}, {base + mi*SL}')]
            for i in range(4): L.append(('m', f'buffer_load_dwordx4 v{vOffW+i}, s[{sr}:{sr+3}], s{sT0} offen offset:{1024*i} lds', f'W{st}', ('W', base + mi*SL, base + (mi+1)*SL, True)))
        return L
    def dmaA_static(st):
        base = ACT0 + (st % 2)*32768; L = []
        for half in range(2):
            L += [('s', f's_add_u32 s{sT1}, s{sAoff}, {st*128 + 32768*half}'), ('s', f's_add_u32 m0, s{sLA}, {base + 4096*half}')]
            for i in range(4): L.append(('m', f'buffer_load_dwordx4 v{vOffA+i}, s[{S_CKV}:{S_CKV+3}], s{sT1} offen offset:{1024*i} lds', f'A{st}', ('W', base, base + 32768, False)))
        return L
    if 'pp' in opt: p.stamp('setup')
    emit(dmaA_static(0)); emit(dmaW_static(0))
    if 'pp' in opt: p.stamp('A0W0 issued')
    srd(p, S_X, 84, 2048*640*2)
    srd(p, S_WQ, 92, 640*4096*2)
    srd(p, S_XNF, 98, SZ_XNF, WS_XNF)
    srd(p, S_KF, 98, SZ_KF, WS_KF)
    srd(p, S_VF, 98, SZ_KF, WS_VF)
    srd(p, S_CTX, 98, SZ_CTX, WS_CTX)
    srd(p, S_FL, 98, 8192, WS_FLG)
    X = 160; RAW = 200; vXo = 220; vXn = 221; LT = 224
    p(f's_lshl_b32 s{sT1}, s2, 3')
    p(f's_and_b32 s14, s{sW}, 1')
    p(f's_lshl_b32 s14, s14, 2')
    p(f's_add_u32 s{sT1}, s{sT1}, s14')
    p(f'v_and_b32 v{vT}, 3, v0')
    p(f'v_add_u32 v{vT}, s{sT1}, v{vT}')
    p(f'v_lshrrev_b32 v{vT+1}, 2, v0')
    p(f'v_mul_u32_u24 v{vXo}, 1280, v{vT}')
    p(f'v_lshl_add_u32 v{vXo}, v{vT+1}, 4, v{vXo}')
    p(f'v_lshrrev_b32 v{vXn}, 4, v{vT}')
    p(f'v_mul_u32_u24 v{vXn}, 20, v{vXn}')
    p(f'v_lshrrev_b32 v{vT+2}, 2, v{vT+1}')
    p(f'v_add_u32 v{vXn}, v{vXn}, v{vT+2}')
    p(f'v_lshlrev_b32 v{vXn}, 10, v{vXn}')
    p(f'v_and_b32 v{vT+2}, 3, v{vT+1}')
    p(f'v_lshlrev_b32 v{vT+2}, 4, v{vT+2}')
    p(f'v_and_b32 v{vT+3}, 15, v{vT}')
    p(f'v_add_u32 v{vT+2}, v{vT+2}, v{vT+3}')
    p(f'v_lshl_add_u32 v{vXn}, v{vT+2}, 4, v{vXn}')
    for i in range(5):
        p(f'buffer_load_dwordx4 v[{RAW+4*i}:{RAW+4*i+3}], v{vXo}, s[{S_X}:{S_X+3}], 0 offen offset:{256*i}')
    S_LNS = 96
    if 'nocode' not in opt:
        p(f's_lshr_b32 s14, s2, 3')
        p(f's_cmp_ge_u32 s14, 12')
        p(f's_cbranch_scc1 {name}_nocode')
        p(f's_cmp_lg_u32 s{sW}, 3')
        p(f's_cbranch_scc1 {name}_nocode')
        p('s_getpc_b64 s[76:77]')
        p.label(f'{name}_pc')
        p(f's_lshl_b32 s14, s14, 13')
        p(f'v_lshlrev_b32 v{vT}, 7, v0')
        p(f'v_add_u32 v{vT}, s14, v{vT}')
        p(f'v_min_u32 v{vT}, code_end_all-{name}_pc-4, v{vT}')
        p(f'v_and_b32 v{vT}, -4, v{vT}')
        p(f'global_load_dword v{vT+2}, v{vT}, s[76:77]')
        p.label(f'{name}_nocode')
    if 'notlb' not in opt:
        p('s_mov_b32 s76, s98'); p('s_mov_b32 s77, s99'); p(f's_mov_b32 s78, {96*MiB}'); p('s_mov_b32 s79, 0x00020000')
        p(f'v_mov_b32 v{vT}, {WS_FLG}')
        p(f's_add_u32 s14, s{sHbase}, {WS_KF}'); p(f'v_writelane_b32 v{vT}, s14, 1')
        p(f's_add_u32 s14, s{sHbase}, {WS_VF}'); p(f'v_writelane_b32 v{vT}, s14, 2')
        p(f's_lshl_b32 s15, s{sH}, 19')
        for k in range(2):
            p(f's_add_u32 s14, s15, {WS_KF + k*524160}'); p(f'v_writelane_b32 v{vT}, s14, {3 + 2*k}')
            p(f's_add_u32 s14, s15, {WS_VF + k*524160}'); p(f'v_writelane_b32 v{vT}, s14, {4 + 2*k}')
        p(f's_mov_b32 s14, {WS_XNF}'); p(f'v_writelane_b32 v{vT}, s14, 7')
        p(f's_mov_b32 s14, {WS_XNF + 2*MiB}'); p(f'v_writelane_b32 v{vT}, s14, 8')
        p(f's_sub_u32 s14, 15, s{sI}'); p('s_lshl_b32 s14, s14, 20'); p(f's_add_u32 s14, s14, {WS_CTX}'); p(f'v_writelane_b32 v{vT}, s14, 9')
        p(f's_lshl_b32 s14, s{sI}, 20'); p(f's_add_u32 s14, s14, {WS_CTX}'); p(f'v_writelane_b32 v{vT}, s14, 10')
        p(f'buffer_load_dword v{vT+2}, v{vT}, s[76:79], 0 offen')
    if 'pp' in opt: p.stamp('x issued')
    srd(p, S_DBG, 96, 256)
    p('v_mov_b32 v26, 0')
    p('s_or_b32 s14, s2, 0')
    p(f's_add_u32 s14, s2, s{sW}')
    p('s_cmp_lg_u32 s14, 0')
    p(f's_cbranch_scc1 {name}_notag')
    p('s_memrealtime s[92:93]')
    p('s_waitcnt lgkmcnt(0)')
    p('s_or_b32 s92, s92, 1')
    p('v_mov_b32 v24, s92')
    p(f'buffer_store_dword v24, v26, s[{S_DBG}:{S_DBG+3}], 0 offen sc1')
    p.label(f'{name}_notag')
    if 'pp' in opt: p.stamp('tag issued')
    emit(dmaA_static(1)); emit(dmaW_static(1))
    (p.stamp('dma issued') if 'pq' not in opt else None)
    p('s_cmp_lg_u32 s2, 0')
    p(f's_cbranch_scc1 {name}_nz')
    p(f's_add_u32 s76, s98, {WS_YACC}')
    p('s_addc_u32 s77, s99, 0')
    p(f's_mov_b32 s78, {SZ_ZERO}')
    p('s_mov_b32 s79, 0x00020000')
    for r in range(4): p(f'v_mov_b32 v{28+r}, 0')
    p(f's_mul_i32 s14, s{sW}, 7168')
    for i in range(7):
        p(f'buffer_store_dwordx4 v[28:31], v{vLane16}, s[76:79], s14 offen sc1')
        p(f's_add_u32 s14, s14, 1024')
    p.label(f'{name}_nz')
    p(f's_add_u32 s96, s98, {WS_XNF}')
    p('s_addc_u32 s97, s99, 0')
    p(f's_mov_b32 s98, {SZ_XNF}')
    p('s_mov_b32 s99, 0x00020000')
    p(f's_cmp_lt_u32 s{sW}, 2')
    p('s_cselect_b32 s98, s98, 0')
    p('s_waitcnt vmcnt(16)')
    p('s_barrier')
    (p.stamp('B0') if 'pq' not in opt else None)
    def rd_act(buf, kin, tb, lab):
        r = vAct + 16*buf + 4*tb
        return ('r', f'ds_read_b128 v[{r}:{r+3}], v{vCA+kin} offset:{2048*tb}', lab)
    def rd_wA(mi, db, kin, lab):
        r = (vWK if mi == 0 else vWV) + 4*db
        return [('r', f'ds_read_b64_tr_b16 v[{r+2*h}:{r+2*h+1}], v{vCW+db} offset:{mi*SL + 8192*kin + 1024*h}', lab) for h in range(2)]
    updA = [('v', f'v_add_u32 v{vCA}, s{sAr}, v{vLPA}'), ('v', f'v_xor_b32 v{vCA+1}, 64, v{vCA}')]
    updWd = [('v', f'v_add_u32 v{vCW}, s{sWr}, v{vLPW}')] + [('v', f'v_xor_b32 v{vCW+db}, {db*32}, v{vCW}') for db in range(1, 8)]
    KA = lambda tb, db: (tb*8 + db)*4
    VA = lambda tb, db: 128 + ((tb >> 1)*16 + db*2 + (tb & 1))*4
    def stageA_mfmas(first):
        L = []
        for kin in range(2):
            for db in range(8):
                for tb in range(4):
                    a = KA(tb, db); f = vAct + 16*kin + 4*tb
                    c = '0' if (first and kin == 0) else f'a[{a}:{a+3}]'
                    L.append(f'{MF} a[{a}:{a+3}], v[{vWK+4*db}:{vWK+4*db+3}], v[{f}:{f+3}], {c}')
                for tb in range(4):
                    a = VA(tb, db); f = vAct + 16*kin + 4*tb
                    c = '0' if (first and kin == 0) else f'a[{a}:{a+3}]'
                    L.append(f'{MF} a[{a}:{a+3}], v[{f}:{f+3}], v[{vWV+4*db}:{vWV+4*db+3}], {c}')
        return L
    GA = lambda kin, db, m: kin*64 + db*8 + m
    def spread(R, L, g0, g1):
        nm = sum(1 for x in L if x[0] in ('m', 'l', 'st'))
        step = max(1, (g1 - g0) // max(nm, 1))
        g = g0; cnt = 0; prev = None
        for it in L:
            e = max(g, g0 + cnt*step - (2 if it[0] == 's' else 0))
            if it[0] == 'm' and prev is not None and prev[0] == 's' and ' m0,' in prev[1]: e = max(e, gprev + 1)
            g = R.place(it, e, g1); gprev = g; prev = it
            if it[0] in ('m', 'l', 'st'): cnt += 1; g += 1
    def stageA(kind, dmaA_items, dmaB_items, barlabs, next_reads=None, mid=None, first=False, bend=None):
        R = Region(stageA_mfmas(first))
        BG = GA(1, 0, 7)
        R.S[BG].append(('bar', barlabs))
        if mid: R.S[BG].extend(mid)
        if next_reads is None:
            R.S[GA(1, 0, 1)].append(('s', f's_add_u32 s{sWr}, s{sWr}, 32768'))
            R.S[GA(1, 0, 2)].append(('s', f's_cmp_ge_u32 s{sWr}, 98304\ns_cselect_b32 s{sWr}, 0, s{sWr}'))
            R.S[GA(1, 0, 3)].append(('s', f's_sub_u32 s{sAr}, s{sASum}, s{sAr}'))
            R.stream(updA + updWd, GA(1, 0, 4), GA(1, 2, 0))
        else:
            R.stream(next_reads[0], GA(1, 0, 4), GA(1, 2, 0))
        for kin in range(2):
            for db in range(8):
                for mi in range(2):
                    if kin == 0 and db == 0 and mi == 0: continue
                    labs = [f'w{kin}_{mi}_{db}'] + ([f'act{kin}'] if (db == 0 and mi == 0) else [])
                    R.place(('wlg', labs), GA(kin, db, 4*mi) - 1, force=True)
        for db in range(8):
            for mi in range(2):
                rr = rd_wA(mi, db, 1, f'w1_{mi}_{db}')
                e = GA(0, db, 4*mi + 3)
                g = R.place(rr[0], e, GA(1, 0, 0)); R.place(rr[1], min(g + 1, GA(1, 0, 0)), GA(1, 0, 0))
        for tb in range(4): R.place(rd_act(1, 1, tb, 'act1'), GA(0, 1, 1) + 5*tb)
        if next_reads is None:
            for db in range(8):
                for mi in range(2):
                    rr = rd_wA(mi, db, 0, f'n0_{mi}_{db}')
                    e = max(GA(1, db, 4*mi + 3), GA(1, 2, 1))
                    g = R.place(rr[0], e); R.place(rr[1], g + 1)
            for tb in range(4): R.place(rd_act(0, 0, tb, 'nact0'), GA(1, 2, 2) + 5*tb)
        else:
            for (it, e) in next_reads[1]: R.place(it, max(e, GA(1, 2, 1)))
        if 'nodmaA' in opt and kind in ('s0', 's1', 'loop'): dmaA_items = [x for x in dmaA_items if x[0] != 'm']; dmaB_items = [x for x in dmaB_items if x[0] != 'm']
        if 'nowA' in opt and kind in ('s0', 's1', 'loop'):
            for g in range(R.n): R.S[g] = [x for x in R.S[g] if x[0] != 'wlg']
        if 'nordsA' in opt and kind in ('s0', 's1', 'loop'):
            for g in range(R.n): R.M[g] = []; R.S[g] = [x for x in R.S[g] if x[0] != 'wlg']
        spread(R, dmaA_items, 1, BG - 2)
        spread(R, dmaB_items, BG + 1, bend if bend else R.n - 2)
        return R
    def dyn_dmaW():
        L = []
        for mi, sr in enumerate((S_WUK, S_WUV)):
            L += [('s', f's_add_u32 m0, s{sWp}, {mi*SL}')]
            for i in range(4): L.append(('m', f'buffer_load_dwordx4 v{vOffW+i}, s[{sr}:{sr+3}], s{sKst} offen offset:{1024*i} lds', 'Wn', None))
        L += [('s', f's_add_u32 s{sKst}, s{sKst}, {64*8192}'), ('s', f's_add_u32 s{sWp}, s{sWp}, 32768'),
              ('s', f's_cmp_ge_u32 s{sWp}, 98304\ns_cselect_b32 s{sWp}, s{sLW}, s{sWp}')]
        return L
    def dyn_dmaA():
        L = []
        for half in range(2):
            L += [('s', f's_add_u32 s{sT1}, s{sAoff}, {32768*half}'), ('s', f's_add_u32 m0, s{sAp}, {4096*half}')]
            for i in range(4): L.append(('m', f'buffer_load_dwordx4 v{vOffA+i}, s[{S_CKV}:{S_CKV+3}], s{sT1} offen offset:{1024*i} lds', 'An', None))
        L += [('s', f's_add_u32 s{sAoff}, s{sAoff}, 128'), ('s', f's_sub_u32 s{sAp}, s{sASum}, s{sAp}')]
        return L
    p(f's_mov_b32 s{sWr}, 0')
    p(f's_add_u32 s{sAr}, s{sLA}, {ACT0}')
    p(f's_add_u32 s{sWp}, s{sLW}, 65536')
    p(f's_add_u32 s{sAp}, s{sLA}, {ACT0}')
    p(f's_lshl_b32 s{sASum}, s{sAp}, 1')
    p(f's_add_u32 s{sASum}, s{sASum}, 32768')
    p(f's_add_u32 s{sKst}, s{sWoff}, {2*64*8192}')
    p(f's_add_u32 s{sAoff}, s{sAoff}, 256')
    emit(updA + updWd)
    p.lgq = []; p.lg_ret = -1
    for tb in range(4): put(rd_act(0, 0, tb, 'act0'))
    for db in range(8):
        for mi in range(2): emit(rd_wA(mi, db, 0, f'w0_{mi}_{db}'))
    def next_order(R):
        L = []
        for g in range(R.n):
            for it in R.M[g]:
                if it[0] == 'r' and (it[2].startswith('n0_') or it[2] == 'nact0'):
                    L.append('act0' if it[2] == 'nact0' else 'w0_' + it[2][3:])
        return L
    order = [None]
    def relabel():
        p.lgq = list(order[0]); p.lg_ret = -1
    def bar_raw(n):
        if 'nobarA' in opt: return ('w', f's_waitcnt vmcnt({n}) lgkmcnt(0)')
        return ('w', f's_waitcnt vmcnt({n}) lgkmcnt(0)\ns_barrier')
    BG = GA(1, 0, 7)
    def fix_bar(R, n, extra=()):
        R.S[BG] = [bar_raw(n), ('call', lambda: p.lg_all())] + list(extra) + [x for x in R.S[BG] if x[0] != 'bar']
    def red64x4(r):
        L = []
        for sh in (8, 4): L += ['s_nop 1', f'v_add_f32_dpp v{r}, v{r}, v{r} row_ror:{sh} row_mask:0xf bank_mask:0xf']
        for sw in ('v_permlane16_swap_b32', 'v_permlane32_swap_b32'):
            L += [f'v_mov_b32 v{LT+6}, v{r}', 's_nop 1', f'{sw} v{r}, v{LT+6}', 's_nop 1', f'v_add_f32 v{r}, v{r}, v{LT+6}']
        return L
    lnops = []
    for i in range(5): lnops += unpack8(RAW + 4*i, X + 8*i)
    lnops += ln_stream(X, 40, LT, red64x4, scale='0x3e0293ee')
    ln = [('v', x) for x in lnops]
    for i in range(5):
        ln.append(('s', f's_mov_b32 s14, {4096*i}'))
        ln.append(('st', f'buffer_store_dwordx4 v[{X+4*i}:{X+4*i+3}], v{vXn}, s[{S_LNS}:{S_LNS+3}], s14 offen sc1'))
    half = len(ln) // 2
    def tag_read():
        p('s_mov_b32 s14, 0')
        p.label(f'{name}_tagpoll')
        p(f'v_readfirstlane_b32 s{sTag}, v24')
        p('s_add_u32 s14, s14, 1')
        p('s_nop 2')
        p(f's_cmp_lg_u32 s{sTag}, 0')
        p(f's_cbranch_scc1 {name}_notag2')
        p(f's_cmp_ge_u32 s14, {SPIN}')
        p(f's_cbranch_scc1 {name}_notag2')
        p(f'buffer_load_dword v24, v26, s[{S_DBG}:{S_DBG+3}], 0 offen sc1')
        p('s_waitcnt vmcnt(0)')
        p(f's_branch {name}_tagpoll')
        p.label(f'{name}_notag2')
    def pub_ln():
        p(f's_cmp_lg_u32 s{sCnt}, 0')
        p(f's_cbranch_scc1 {name}_nopub')
        p(f's_cmp_lg_u32 s{sW}, 0')
        p(f's_cbranch_scc1 {name}_nopub')
        p(f's_lshl_b32 s14, s2, 3')
        p(f'v_mov_b32 v24, s{sTag}')
        p(f'v_mov_b32 v25, s{sXcc}')
        p('v_mov_b32 v26, 0')
        p(f'buffer_store_dwordx2 v[24:25], v26, s[{S_FL}:{S_FL+3}], s14 offen sc1')
        p.label(f'{name}_nopub')
    R0 = stageA('s0', dyn_dmaW(), dyn_dmaA(), None, first=True, bend=BG + 34)
    fix_bar(R0, 8)
    R0.place(('l', f'buffer_load_dword v24, v26, s[{S_DBG}:{S_DBG+3}], 0 offen sc1', 'TAG'), BG + 1, force=True)
    R0.period = 20; R0.stream(ln[:half], 4, None, pace=lambda k: 4 + (k*120)//half); R0.period = 16
    p.lgq = ['act0']*4 + [f'w0_{mi}_{db}' for db in range(8) for mi in range(2) for _ in range(2)]; p.lg_ret = -1
    put(('wlg', ['w0_0_0', 'act0']))
    R0.emit(p, put); order[0] = next_order(R0)
    R1_ = stageA('s1', dyn_dmaW(), dyn_dmaA(), None, bend=BG + 34)
    fix_bar(R1_, 8, [('call', tag_read)])
    nv = [x for x in ln[half:] if x[0] == 'v']; tail = ln[half + len(nv):]
    R1_.period = 20; g = R1_.stream(ln[half:], 0, None, pace=lambda k: min((k*118)//(len(ln) - half), 200) if ln[half + k][0] == 'v' else BG + 2); R1_.period = 16
    relabel(); put(('wlg', ['w0_0_0', 'act0']))
    R1_.emit(p, put); order[0] = next_order(R1_)
    print('stage0/1 est', R0.total(), R1_.total())
    if 'ps' in opt: p.stamp('stage1 done')
    p(f's_mov_b32 s{sCnt}, 0')
    LA = f'{name}_stageA'
    p.label(LA)
    Rl = stageA('loop', dyn_dmaW(), dyn_dmaA(), None, bend=BG + 34)
    fix_bar(Rl, 8, [('call', pub_ln)])
    Rl.T[Rl.n - 1] += [('s', f's_add_u32 s{sCnt}, s{sCnt}, 1'), ('s', f's_cmp_lt_u32 s{sCnt}, 4')]
    assert 'nordsA' in opt or next_order(Rl) == order[0], 'stage read order must be periodic'
    relabel()
    put(('wlg', ['w0_0_0', 'act0']))
    Rl.emit(p, put)
    print('stageA loop est', Rl.total(), 'overflow', Rl.over)
    p(f's_cbranch_scc1 {LA}')
    if 'pp' not in opt: (p.stamp('A loop done') if 'pq' not in opt else None)
    def dma_wq(c):
        L = [('s', f's_add_u32 s{sT0}, s{sWoff}, {c*64*8192}'), ('s', f's_add_u32 m0, s{sLW}, {c*SL}')]
        for i in range(4):
            L.append(('m', f'buffer_load_dwordx4 v{vOffW+i}, s[{S_WQ}:{S_WQ+3}], s{sT0} offen offset:{1024*i} lds', f'WQ{c}', None))
        return L
    relabel()
    put(('wlg', ['w0_0_0', 'act0']))
    flagld = [('s', f's_sub_u32 s{sTL}, 15, s{sI}'), ('s', f's_mov_b32 s{sTS}, s{sI}'),
              ('v', f'v_and_b32 v24, 15, v0'), ('v', f'v_bfe_u32 v25, v0, 4, 1'),
              ('v', f'v_mov_b32 v26, s{sTL}'), ('v', f'v_mov_b32 v27, s{sTS}'),
              ('v', f'v_cmp_eq_u32 vcc, 0, v25'), ('v', 's_nop 1'), ('v', f'v_cndmask_b32 v26, v27, v26, vcc'),
              ('v', f'v_lshl_add_u32 v24, v26, 4, v24'),
              ('s', f's_and_b32 s14, s{sH}, 3'), ('s', f's_lshl_b32 s14, s14, 6'), ('s', f's_lshr_b32 s15, s{sH}, 2'), ('s', f's_add_u32 s14, s14, s15'),
              ('v', f'v_and_b32 v25, 7, v0'), ('v', f'v_lshlrev_b32 v25, 3, v25'), ('v', f'v_add_u32 v25, s14, v25'),
              ('v', f'v_cmp_gt_u32 vcc, 32, v0'), ('v', 's_nop 1'), ('v', f'v_cndmask_b32 v24, v25, v24, vcc'),
              ('v', f'v_lshlrev_b32 v24, 3, v24'),
              ('l', f'buffer_load_dwordx2 v[28:29], v24, s[{S_FL}:{S_FL+3}], 0 offen sc1', 'FL')]
    R6 = stageA('s6', dma_wq(4) + dma_wq(5), dma_wq(0) + dma_wq(1), None)
    fix_bar(R6, 8)
    R6.stream(flagld, BG + 24)
    R6.emit(p, put)
    order[0] = next_order(R6)
    XR = [16, 96, 32, 80]
    XRING = [('v', 16), ('v', 96), ('v', 32), ('v', 80), ('a', 0), ('a', 16), ('a', 32), ('a', 48)]
    def xreg(ks, c):
        t, b = XRING[ks % 8]
        return f'{t}[{b+4*c}:{b+4*c+3}]'
    def xn_load(ks):
        L = []
        for c in range(4):
            off = ks*1024 + (c & 1)*20480
            sb = sXL if c < 2 else sXS
            L.append(('s', f's_add_u32 s{sT1}, s{sb}, {off & ~4095}'))
            L.append(('l', f'buffer_load_dwordx4 {xreg(ks, c)}, v{vLane16}, s[{S_XNF}:{S_XNF+3}], s{sT1} offen offset:{off & 4095} sc1', f'XN{ks}'))
        return L
    def rd_w(db, kin, base, lab):
        r = vWF + 4*db
        return [('r', f'ds_read_b64_tr_b16 v[{r+2*h}:{r+2*h+1}], v{vCW+db} offset:{8192*kin + 1024*h}', lab, None) for h in range(2)]
    def upd_w(base):
        return [('v', f'v_add_u32 v{vCW}, {base}, v{vLPW}')] + [('v', f'v_xor_b32 v{vCW+db}, {db*32}, v{vCW}') for db in range(1, 8)]
    def lncheck():
        p(f's_cmp_lg_u32 s{sW}, 0')
        p(f's_cbranch_scc1 {name}_lnok')
        p('s_mov_b32 s14, 0')
        p.label(f'{name}_lnpoll')
        p(f'v_cmp_ne_u32 vcc, s{sTag}, v28')
        p('s_add_u32 s14, s14, 1')
        p(f's_cbranch_vccz {name}_lnok2')
        p(f's_cmp_ge_u32 s14, {SPIN}')
        p(f's_cbranch_scc1 {name}_lnok2')
        p(f'buffer_load_dwordx2 v[28:29], v24, s[{S_FL}:{S_FL+3}], 0 offen sc1')
        p('s_waitcnt vmcnt(0)')
        p(f's_branch {name}_lnpoll')
        p.label(f'{name}_lnok2')
        p(f'v_cmp_ne_u32 vcc, s{sXcc}, v29')
        p('s_nop 1')
        p('s_lshr_b64 s[14:15], vcc, 32')
        p('s_cmp_eq_u64 s[14:15], 0')
        p(f's_cselect_b32 s{sSame}, 1, 0')
        p.label(f'{name}_lnok')
    relabel()
    put(('wlg', ['w0_0_0', 'act0']))
    xset = [('s', f's_lshl_b32 s{sT1}, s{sTL}, 3'), ('s', f's_lshl_b32 s{sT0}, s{sW}, 1'), ('s', f's_add_u32 s{sT1}, s{sT1}, s{sT0}'),
            ('s', f's_mul_i32 s{sXL}, s{sT1}, 20480'), ('s', f's_lshl_b32 s{sT1}, s{sTS}, 3'), ('s', f's_add_u32 s{sT1}, s{sT1}, s{sT0}'),
            ('s', f's_mul_i32 s{sXS}, s{sT1}, 20480')]
    def last_use(db):
        r = vWF + 4*db
        if r < 64: return GA(1, (r - vWK)//4, 3)
        return GA(1, (r - vWV)//4, 7)
    nr = []
    for db in range(8):
        for it in rd_w(db, 0, 0, f'w0_{db}'): nr.append((it, last_use(db) + 1))
    R7 = stageA('s7', xset + dma_wq(6) + dma_wq(7), dma_wq(2) + dma_wq(3) + dma_wq(8) + dma_wq(9), None, next_reads=(upd_w(0), nr))
    R7.S[BG] = [('call', lambda: (p('s_waitcnt vmcnt(8) lgkmcnt(0)'), p.lg_all(), lncheck(), p('s_barrier')))] + [x for x in R7.S[BG] if x[0] != 'bar']
    R7.stream(xn_load(0) + xn_load(1), BG + 2)
    R7.stream(xn_load(2), GA(1, 4, 0))
    R7.emit(p, put)
    if 'pp' not in opt: p.stamp('phase A done')
    NKS = 20
    mf = []
    for ks in range(NKS):
        for db in range(8):
            for c in range(4):
                acc = O(c, db)
                cc = '0' if ks == 0 else f'v[{acc}:{acc+3}]'
                mf.append(f'{MF} v[{acc}:{acc+3}], v[{vWF+4*db}:{vWF+4*db+3}], {xreg(ks, c)}, {cc}')
    R = Region(mf)
    G = lambda ks, db, c: ks*32 + db*4 + c
    p.wait_vm('XN0')
    put(('wlg', ['w0_0', 'w0_1']))
    R.S[G(3, 0, 3)].append(('bar', ['WQ2', 'WQ3', 'WQ8', 'WQ9', 'WQ4', 'WQ5', 'WQ6', 'WQ7']))
    for ch in range(9):
        R.stream(upd_w((ch + 1)*SL), G(2*ch + 1, 0, 1), G(2*ch + 1, 2, 0))
    for ks in range(NKS):
        for db in range(0, 8, 2):
            if ks == 0 and db == 0: continue
            R.place(('wlg', [f'w{ks}_{db}', f'w{ks}_{db+1}']), G(ks, db, 0) - 1, force=True)
        if ks: R.place(('wvm', f'XN{ks}'), G(ks, 0, 0) - 2, force=True)
    for ks in range(NKS - 1):
        ch, t = divmod(ks, 2); nxt = ks + 1; nch, nt = divmod(nxt, 2)
        for db in range(8):
            e = G(ks, db, 3)
            if t == 1: e = max(e, G(ks, 2, 1))
            rr = rd_w(db, nt, nch*SL, f'w{nxt}_{db}')
            lat = G(ks + 1, 0, 0) if t == 0 else None
            g = R.place(rr[0], e, lat); R.place(rr[1], g + 1 if t == 1 or db < 7 else g, lat)
    TE = 112
    STF = ''
    for o_ in opt:
        if o_.startswith('stf='): STF = o_[4:]
    sSt = sCtx
    epi = []
    sStB = sHbase
    for kind in range(2):
        for f in range(16):
            if kind == 0:
                tb, k4 = divmod(f, 4); a0 = KA(tb, 2*k4); off = tb*4096 + k4*1024; sr = S_KF
            else:
                b, db = divmod(f, 8); a0 = 128 + (b*16 + db*2)*4; off = b*8192 + db*1024; sr = S_VF
            for k in range(8): epi.append(('v', f'v_accvgpr_read_b32 v{TE+k}, a{a0+k}'))
            for k in range(4): epi.append(('v', f'v_cvt_pk_bf16_f32 v{TE+k}, v{TE+2*k}, v{TE+2*k+1}'))
            epi.append(('s', f's_add_u32 s{sSt}, s{sStB}, {off & ~4095}'))
            epi.append(('st', f'buffer_store_dwordx4 v[{TE}:{TE+3}], v{vLane16}, s[{sr}:{sr+3}], s{sSt} offen offset:{off & 4095} {STF}'))
            if 'nost' in opt: epi.pop()
            epi.append(('s', 's_nop 0'))
    KS_V = int(next((o_[3:] for o_ in opt if o_.startswith('kv=')), '17'))
    g0 = 12; span = G(KS_V, 4, 0) - g0
    gl = R.stream(epi, g0, None, pace=lambda k: g0 + (k*span)//len(epi))
    freed = {}
    for g in range(R.n):
        for it in R.V[g]:
            if it[1].startswith('v_accvgpr_read'): freed[int(it[1].split(' a')[-1])] = g
    gprev = 0
    for ks in range(3, NKS):
        t, b = XRING[ks % 8]
        if t == 'a' and ks < 8: e = max(freed[r] for r in range(b, b + 16)) + 1
        elif ks >= 8: e = G(ks - 8, 7, 3) + 1
        else: e = 0
        e = max(e, gprev + 1, G(max(ks - 7, 0), 0, 0))
        lat = G(ks, 0, 0) - 40 if ks > 3 else G(1, 0, 0)
        gprev = R.stream(xn_load(ks), e, max(lat, e + 8))
    FK, FV = 4096, 5120
    def publish(off, lab, waitlabel):
        p.wait_vm(waitlabel)
        p('s_barrier')
        p(f's_cmp_lg_u32 s{sW}, 0')
        p(f's_cbranch_scc1 {name}_{lab}pub')
        p(f's_cmp_eq_u32 s{sSame}, 1')
        p(f's_cbranch_scc1 {name}_{lab}rel')
        p('buffer_wbl2 sc1')
        p('s_waitcnt vmcnt(0)')
        p.label(f'{name}_{lab}rel')
        p(f's_lshl_b32 s14, s{sH}, 3')
        p(f's_add_u32 s14, s14, s{sI}')
        p(f's_lshl_b32 s14, s14, 2')
        p(f's_add_u32 s14, s14, {off}')
        p(f'v_mov_b32 v12, s{sTag}')
        p('v_mov_b32 v13, 0')
        p(f'buffer_store_dword v12, v13, s[{S_FL}:{S_FL+3}], s14 offen sc1')
        p.label(f'{name}_{lab}pub')
    def flag_load(off, lab):
        return [('s', f's_lshl_b32 s15, s{sH}, 5'), ('s', f's_add_u32 s15, s15, {off}'),
                ('v', 'v_and_b32 v13, 7, v0'), ('v', 'v_lshlrev_b32 v13, 2, v13'),
                ('l', f'buffer_load_dword v12, v13, s[{S_FL}:{S_FL+3}], s15 offen sc1', lab)]
    def check(lab, waitlabel):
        p.wait_vm(waitlabel, 'lgkmcnt(0)'); p.lg_all()
        p(f's_cmp_lg_u32 s{sW}, 0')
        p(f's_cbranch_scc1 {name}_{lab}ok')
        p('s_mov_b32 s14, 0')
        p.label(f'{name}_{lab}poll')
        p(f'v_cmp_ne_u32 vcc, s{sTag}, v12')
        p('s_add_u32 s14, s14, 1')
        p(f's_cbranch_vccz {name}_{lab}ok2')
        p(f's_cmp_ge_u32 s14, {SPIN}')
        p(f's_cbranch_scc1 {name}_{lab}ok2')
        p(f'buffer_load_dword v12, v13, s[{S_FL}:{S_FL+3}], s15 offen sc1')
        p('s_waitcnt vmcnt(0)')
        p(f's_branch {name}_{lab}poll')
        p.label(f'{name}_{lab}ok2')
        p(f's_cmp_eq_u32 s{sSame}, 1')
        p(f's_cbranch_scc1 {name}_{lab}ok')
        p('buffer_inv sc1')
        p('s_waitcnt vmcnt(0)')
        p.label(f'{name}_{lab}ok')
        p('s_barrier')
    def att_state():
        p(f's_lshl_b32 s{sKb}, s{sH}, 19')
        p(f's_add_u32 s{sKb}, s{sKb}, s{sLW}')
        p(f's_mov_b32 s{sVb}, s{sKb}')
    def unitK(slot, label):
        L = [('s', f's_add_u32 m0, s{sLW}, {slot*32768}')]
        for i in range(4): L.append(('m', f'buffer_load_dwordx4 v{vLane16}, s[{S_KF}:{S_KF+3}], s{sKb} offen offset:{1024*i} lds', label, None))
        return L + [('s', f's_add_u32 s{sKb}, s{sKb}, 16384')]
    def unitV(slot, label):
        L = [('s', f's_add_u32 m0, s{sLW}, {slot*32768 + SL}')]
        for i in range(4): L.append(('m', f'buffer_load_dwordx4 v{vLane16}, s[{S_VF}:{S_VF+3}], s{sVb} offen offset:{1024*i} lds', label, None))
        return L + [('s', f's_add_u32 s{sVb}, s{sVb}, 16384')]
    def dma_K(label, tagbase=None):
        L = [('s', f's_mov_b32 m0, s{sSlotP}')]
        for i in range(4):
            L.append(('m', f'buffer_load_dwordx4 v{vLane16}, s[{S_KF}:{S_KF+3}], s{sKb} offen offset:{1024*i} lds', label, None))
        L += [('s', f's_add_u32 s{sKb}, s{sKb}, 16384')]
        return L
    def dma_V(label, tagbase=None):
        L = [('s', f's_add_u32 m0, s{sSlotP}, {SL}')]
        for i in range(4):
            L.append(('m', f'buffer_load_dwordx4 v{vLane16}, s[{S_VF}:{S_VF+3}], s{sVb} offen offset:{1024*i} lds', label, None))
        L += [('s', f's_add_u32 s{sVb}, s{sVb}, 16384')]
        return L
    adv_slot = [('s', f's_add_u32 s{sSlotP}, s{sSlotP}, 32768'), ('s', f's_cmp_ge_u32 s{sSlotP}, {NSLOT*32768}\ns_cselect_b32 s{sSlotP}, s{sLW}, s{sSlotP}')]
    R.emit(p, put)
    print('fused qproj overflow', R.over, 'est', R.total())
    if 'pp' not in opt: p.stamp('q end')
    p(f's_mov_b32 s{sFlag}, 0')
    p(f's_mov_b32 s{sLim}, {hex(LIM)}')
    def touch_setup():
        p(f's_load_dwordx2 s[92:93], s[0:1], {ARG["wo"]}')
        p(f's_load_dwordx2 s[94:95], s[0:1], {ARG["wg"]}')
        p(f's_load_dwordx2 s[96:97], s[0:1], {ARG["wu"]}')
        p(f's_load_dwordx2 s[98:99], s[0:1], {ARG["wd"]}')
        p('s_lshl_b32 s14, s2, 2')
        p(f's_add_u32 s14, s14, s{sW}')
        p('s_mul_i32 s14, s14, 40')
        p('v_min_u32 v14, 39, v0')
        p('v_add_u32 v14, s14, v14')
        p('v_lshlrev_b32 v14, 7, v14')
        p('s_lshr_b32 s14, s2, 6')
        p('s_lshl_b32 s14, s14, 2')
        p(f's_and_b32 s15, s{sI}, 3')
        p('s_add_u32 s14, s14, s15')
        p('s_lshl_b32 s14, s14, 3')
        p('s_and_b32 s15, s2, 7')
        p('s_add_u32 s14, s14, s15')
        p('s_lshl_b32 s14, s14, 2')
        p(f's_add_u32 s14, s14, s{sW}')
        p('s_mul_i32 s14, s14, 34')
        p('v_min_u32 v15, 33, v0')
        p('v_add_u32 v15, s14, v15')
        p('v_min_u32 v15, 17279, v15')
        p('v_lshlrev_b32 v15, 7, v15')
        p('s_waitcnt lgkmcnt(0)')
    touch_items = [('l', 'global_load_dword v13, v14, s[92:93]', 'T'), ('l', 'global_load_dword v13, v15, s[94:95]', 'T'),
                   ('l', 'global_load_dword v13, v15, s[96:97]', 'T'), ('l', 'global_load_dword v13, v15, s[98:99]', 'T')]
    att_state()
    touch_setup()
    publish(FK, 'k', 'st')
    for it in flag_load(FK, 'KFL'): put(it)
    p.stamp('pub done')
    p('s_nop 7')
    for c in range(4):
        for ks in range(4):
            a0 = O(c, 2*ks)
            for k in range(4): p(f'v_cvt_pk_bf16_f32 v{a0+k}, v{a0+2*k}, v{a0+2*k+1}')
            for k in range(4): p(f'v_accvgpr_write_b32 a{aQ + 16*c + 4*ks + k}, v{a0+k}')
    p(f'v_mov_b32 v{vT}, 0x3f803f80')
    for k in range(4): p(f'v_accvgpr_write_b32 a{128+k}, v{vT}')
    p(f'v_and_b32 v{vT}, 15, v0')
    p(f'v_lshrrev_b32 v{vT+1}, 4, v0')
    p(f'v_lshlrev_b32 v{vT+1}, 2, v{vT+1}')
    p(f'v_sub_u32 v{vT}, v{vT}, v{vT+1}')
    for r in range(4): p(f'v_cmp_le_i32 s[{sM+2*r}:{sM+2*r+1}], {r}, v{vT}')
    p(f'v_mov_b32 v{vNinf}, {hex(NEGBIG)}')
    for r in range(16): p(f'v_mov_b32 v{vNeg+r}, 0')
    for c in range(4): p(f'v_mov_b32 v{vL+c}, 0')
    for r in range(64): p(f'v_mov_b32 v{vO+r}, 0')
    p.stamp('pre check')
    check('k', 'KFL')
    emit(unitK(0, 'U-1') + unitK(1, 'U0') + unitV(1, 'U0'))
    p.stamp('kv ok')
    nerr = 0

    def rdK(b, f):  return ('r', f'ds_read_b128 a[{aK+4*f}:{aK+4*f+3}], v{vRd} offset:{b*8192 + f*1024}', f'K{f}')
    def rdV(b, f):  return ('r', f'ds_read_b128 a[{aV+4*f}:{aV+4*f+3}], v{vRd} offset:{16384 + b*8192 + f*1024}', f'V{f}')
    def qk_mfmas(cols, sbase, cin):
        L = []
        for i, c in enumerate(cols):
            for kb in range(2):
                S = Sr(sbase + i, kb)
                for ks in range(4):
                    cc = cin(c, kb) if ks == 0 else S
                    L.append(f'{MF} v[{S}:{S+3}], a[{aK+4*(kb*4+ks)}:{aK+4*(kb*4+ks)+3}], a[{aQ+16*c+4*ks}:{aQ+16*c+4*ks+3}], v[{cc}:{cc+3}]')
        return L
    def pv_mfmas(cols, par, first=False):
        L = []
        for c in cols:
            for db in range(8):
                o = O(c, db)
                cc = '0' if first else f'v[{o}:{o+3}]'
                L.append(f'{MF} v[{o}:{o+3}], a[{aV+4*db}:{aV+4*db+3}], v[{Pr(par, c)}:{Pr(par, c)+3}], {cc}')
        return L
    aOne = 128
    Lm = lambda c: vP + 8 + 4*c
    def sum_mfmas(cols, par):
        return [f'{MF} v[{Lm(c)}:{Lm(c)+3}], a[{aOne}:{aOne+3}], v[{Pr(par, c)}:{Pr(par, c)+3}], v[{Lm(c)}:{Lm(c)+3}]' for c in cols]
    def sm_window_ns(c, sslot, par):
        S = vS + 8*sslot; P = Pr(par, c); W = []
        for k in range(4):
            e0, e1 = vE + (2*k) % 4, vE + (2*k + 1) % 4
            W += [[f'v_exp_f32 v{e0}, v{S+2*k}'], [f'v_exp_f32 v{e1}, v{S+2*k+1}'],
                  [f'v_cvt_pk_bf16_f32 v{P+k}, v{e0}, v{e1}'], []]
        return W
    def sm_window(c, sslot, par):
        S = vS + 8*sslot; P = Pr(par, c); W = []
        for k in range(4):
            e0, e1 = vE + (2*k) % 4, vE + (2*k + 1) % 4
            W += [[f'v_exp_f32 v{e0}, v{S+2*k}'], [f'v_exp_f32 v{e1}, v{S+2*k+1}'],
                  [f'v_add_f32 v{vL+c}, v{vL+c}, v{e0}'],
                  [f'v_add_f32 v{vL+c}, v{vL+c}, v{e1}', f'v_cvt_pk_bf16_f32 v{P+k}, v{e0}, v{e1}']]
        return W
    cin_neg = lambda c, kb: vNeg + 4*c
    def cin_mask(tile_cols):
        def f(c, kb):
            if c in tile_cols: return vCi + 8*(c - tile_cols[0]) + 4*kb
            return vNeg + 4*c
        return f
    def mask_ops(tile_cols):
        c0 = tile_cols[0]
        L = [('s', f's_cmp_lt_i32 s{sDd}, 0\ns_cselect_b64 s[14:15], -1, 0'),
             ('s', f's_cmp_eq_u32 s{sDd}, 0\n' + '\n'.join(f's_cselect_b64 s[{4+2*r}:{5+2*r}], s[{sM+2*r}:{sM+2*r+1}], s[14:15]' for r in range(4))),
             ('s', f's_cmp_le_i32 s{sDd}, 0\ns_cselect_b64 s[12:13], -1, 0')]
        for cb in range(2):
            for kb in range(2):
                for r in range(4):
                    m = 4 + 2*r if cb == kb else (12 if (cb == 1 and kb == 0) else 14)
                    L.append(('v', f'v_cndmask_b32 v{vCi + 8*cb + 4*kb + r}, v{vNinf}, v{vNeg + 4*(c0 + cb) + r}, s[{m}:{m+1}]'))
        return L
    LC, SC = [0, 1], [2, 3]
    def build_group(mf, windows, reads, dmas=(), extra=(), pre_wait=None, mid_wait=None, nwin=None):
        R = Region(mf)
        n = len(mf)
        for (g0, W) in windows:
            for i, ops in enumerate(W):
                for o in ops: R.place(('v', o), g0 + i, force=True)
        slots = [g for g in range(n) if g % 4 == 2]
        if len(slots) < len(reads): slots = sorted(slots + [g for g in range(n) if g % 4 == 3])
        if n == 16 or nwin == 16: slots = [g for g in range(16) if g % 4 in (2, 3)]
        for it, g in zip(reads, slots): R.place(it, g, force=True)
        if dmas:
            free = [g for g in range(n) if not R.M[g]]
            pref = [g for g in free if g >= 16 and nwin == 16] + [g for g in free if g % 4 == 3 and not (g >= 16 and nwin == 16)] + [g for g in free if g % 4 == 1] + [g for g in free if g % 4 in (0, 2)]
            nm = sum(1 for x in dmas if x[0] == 'm')
            use = sorted([g for g in pref if g >= 1][:nm])
            if nwin == 16 and nm == 4: use = [5, 9, 13, 16]
            k = 0; pend_s = []
            for it in dmas:
                if it[0] == 's': pend_s.append(it)
                else:
                    g = use[k]; k += 1
                    for j, sx in enumerate(pend_s):
                        gg = max(0, g - len(pend_s) + j)
                        if k > 1: gg = max(gg, use[k-2] + 1) if use[k-2] + 1 <= g - 1 or ' m0,' not in sx[1] else gg
                        if gg == g and ' m0,' in sx[1]: R.place(('s', 's_nop 0'), g, force=True) if False else None
                        R.place(sx, gg, force=True)
                    pend_s = []
                    R.place(it, g, force=True)
            for j, sx in enumerate(pend_s):
                gg = use[-1] + 1 + j
                if gg <= n - 1: R.place(sx, gg, force=True)
                else: R.T[n - 1].append(sx)
        if extra:
            g = 0
            for it in extra:
                best = None
                for gg in range(g, n - 1):
                    if R.fits(gg, it): best = gg; break
                if best is None:
                    best = g
                R.place(it, best, force=True); g = best
        if mid_wait: R.place(mid_wait[1], mid_wait[0], force=True)
        return R
    slot_adv = [('s', f's_add_u32 s{sSlotR}, s{sSlotR}, 32768'), ('s', f's_cmp_ge_u32 s{sSlotR}, {NSLOT*32768}\ns_cselect_b32 s{sSlotR}, 0, s{sSlotR}')]
    def start_items(R, vm=16):
        pre = []
        if vm is None: return
        if 'nodma' not in opt: pre.append(('w', f's_waitcnt vmcnt({vm})'))
        if 'nobar' not in opt: pre.append(('w', 's_barrier'))
        R.S[0] = pre + R.S[0]
    def end_items(R, loop=None):
        n = R.n
        for j, it in enumerate(slot_adv): R.S[4 + 4*j if n > 16 else 1 + 4*j].append(it) if False else None
        g0 = 8
        for j, it in enumerate(slot_adv): R.S[g0 + j].append(it)
        R.V[n - 1].append(('v', f'v_add_u32 v{vRd}, s{sSlotR}, v{vLane16}'))
        if loop:
            R.S[n - 3].append(('s', f's_sub_u32 s{sCnt}, s{sCnt}, 1'))
            R.T[n - 1].append(('s', f's_cmp_lg_u32 s{sCnt}, 0'))
    def emit_group(R, pre):
        if pre and 'nords' not in opt:
            put(('wlg', [f'{pre}{f}' for f in range(4)]))
            R.S[3].insert(0, ('wlg', [f'{pre}{f}' for f in range(4, 8)]))
        if 'nosm' in opt:
            for g in range(R.n): R.V[g] = []
        if 'noexp' in opt:
            for g in range(R.n): R.V[g] = [(x[0], x[1].replace('v_exp_f32', 'v_mov_b32')) for x in R.V[g]]
        if 'nodma' in opt:
            for g in range(R.n): R.M[g] = [x for x in R.M[g] if x[0] != 'm']
        if 'nords' in opt:
            for g in range(R.n):
                R.M[g] = [x for x in R.M[g] if x[0] != 'r']; R.S[g] = [x for x in R.S[g] if x[0] != 'wlg']
            pre = None; R.S[3] = [x for x in R.S[3] if x[0] != 'wlg']
        R.emit(p, put)
    stats = {'cyc': 0}
    def interval(kind, lbl, maskL=None, maskS=None, loop=False, vm=16):
        dual = kind in ('D', 'T')
        mA, mB, mN = (maskS if dual else maskL) or (False, False, False)
        tile = SC if dual else LC
        p.lgq = ['K%d' % f for f in range(8)]; p.lg_ret = -1
        tot = 0
        if dual:
            cols = [0, 1, 2, 3]
            R1 = build_group(qk_mfmas(cols, 0, cin_mask(SC) if mA else cin_neg),
                             [(0, sm_window(3, 3, 0)), (16, sm_window(0, 0, 1))], [rdV(0, f) for f in range(8)], dma_K('x'),
                             mid_wait=None)
            start_items(R1)
            if lbl == 'db':
                g_ = 1
                sel = ([touch_items[0]] if TW else []) + (touch_items[1:] if TF else [])
                for it in sel:
                    while R1.M[g_]: g_ += 1
                    R1.M[g_].append(it); g_ += 3
            emit_group(R1, 'K')
            ex = ([('s', f's_add_u32 s{sDd}, s{sDd}, 1')] + mask_ops(SC if kind == 'D' else LC)) if mB else []
            if kind == 'T': ex = mask_ops(LC)
            R2 = build_group(pv_mfmas(cols, 0), [(0, sm_window(1, 1, 1)), (16, sm_window(2, 2, 1))], [rdK(0, f) for f in range(8)], extra=ex)
            if kind == 'T':
                emit([('s', f's_sub_u32 s{sDd}, s{sTS}, s{sTL}'), ('s', f's_lshl_b32 s{sDd}, s{sDd}, 2'), ('s', f's_add_u32 s{sDd}, s{sDd}, 4'), ('s', f's_sub_u32 s{sDd}, s{sDd}, s{sW}')])
            emit_group(R2, 'V')
            if kind == 'D':
                R3 = build_group(qk_mfmas(cols, 0, cin_mask(SC) if mB else cin_neg),
                                 [(0, sm_window(3, 3, 1)), (16, sm_window(0, 0, 0))], [rdV(1, f) for f in range(8)], dma_V('x') + adv_slot)
                emit_group(R3, 'K')
                ex = ([('s', f's_add_u32 s{sDd}, s{sDd}, 1')] + mask_ops(SC)) if mN else []
                R4 = build_group(pv_mfmas(cols, 1), [(0, sm_window(1, 1, 0)), (16, sm_window(2, 2, 0))], [rdK(1, f) for f in range(8)], extra=ex)
                end_items(R4, loop)
                emit_group(R4, 'V')
            else:
                R3 = build_group(qk_mfmas(LC, 0, cin_mask(LC)), [(0, sm_window(3, 3, 1))], [rdV(1, f) for f in range(8)], dma_V('x') + adv_slot)
                emit_group(R3, 'K')
                ex = ([('s', f's_add_u32 s{sDd}, s{sDd}, 1')] + mask_ops(LC))
                ex = [('v', f'v_mov_b32 v{Lm(c)+r}, 0') for c in LC for r in range(4)] + ex
                R4 = build_group(pv_mfmas(cols, 1), [(0, sm_window_ns(0, 0, 0))], [rdK(1, f) for f in range(8)], extra=ex)
                end_items(R4)
                emit_group(R4, 'V')
            tot = R1.total() + R2.total() + R3.total() + R4.total()
        else:
            dK = dma_K('x'); dv_ = dma_V('x'); dV = dv_[:1] + adv_slot + dv_[1:]
            R1 = build_group(qk_mfmas(LC, 2, cin_mask(LC) if mA else cin_neg), [(0, sm_window_ns(1, 1, 0))], [rdV(0, f) for f in range(8)])
            start_items(R1, vm)
            emit_group(R1, 'K')
            ex = ([('s', f's_add_u32 s{sDd}, s{sDd}, 1')] + mask_ops(LC)) if mB else []
            rk = [rdK(0, f) for f in range(8)] if kind != 'E' else []
            R2 = build_group(pv_mfmas(LC, 0) + sum_mfmas(LC, 0), [(0, sm_window_ns(0, 2, 1))], rk, dK, extra=ex, nwin=16)
            emit_group(R2, 'V')
            if kind != 'E':
                R3 = build_group(qk_mfmas(LC, 0, cin_mask(LC) if mB else cin_neg), [(0, sm_window_ns(1, 3, 1))], [rdV(1, f) for f in range(8)])
                emit_group(R3, 'K')
                ex = ([('s', f's_add_u32 s{sDd}, s{sDd}, 1')] + mask_ops(LC)) if mN else []
                R4 = build_group(pv_mfmas(LC, 1) + sum_mfmas(LC, 1), [(0, sm_window_ns(0, 0, 0))], [rdK(1, f) for f in range(8)], dV, extra=ex, nwin=16)
                end_items(R4, loop)
                emit_group(R4, 'V')
                tot = R1.total() + R2.total() + R3.total() + R4.total()
            else:
                for f in range(8): put(rdV(1, f))
                emit(dV)
                for ops in sm_window_ns(1, 3, 1):
                    for o in ops: p(o)
                    if len(ops) == 1 and ops[0].startswith('v_exp'): p('s_nop 0')
                p('s_waitcnt lgkmcnt(0)')
                p('s_nop 1')
                for m in pv_mfmas(LC, 1) + sum_mfmas(LC, 1): p(m)
        if tot: print(f'  interval {lbl}: est {tot} cycles for', 128 if kind == 'D' else (112 if kind == 'T' else 64), 'mfma')

    def emit_prefetch():
        p('s_lshr_b32 s14, s2, 3')
        p('s_and_b32 s15, s14, 7')
        p('s_cmp_lt_u32 s15, 4')
        p(f's_cbranch_scc1 {name}_npf')
        p(f's_load_dwordx2 s[92:93], s[0:1], {ARG["wo"]}')
        p('s_lshr_b32 s14, s14, 3')
        p('s_lshl_b32 s14, s14, 2')
        p('s_add_u32 s14, s14, s15')
        p('s_sub_u32 s14, s14, 4')
        p(f's_mul_i32 s14, s14, {640*128}')
        p('s_and_b32 s15, s2, 7')
        p('s_lshr_b32 s15, s15, 1')
        p('s_mul_i32 s15, s15, 1310720')
        p('s_add_u32 s14, s14, s15')
        p(f's_mul_i32 s15, s{sW}, {160*128}')
        p('s_add_u32 s14, s14, s15')
        p('s_waitcnt lgkmcnt(0)')
        for i in range(3):
            p(f'v_add_u32 v251, {64*i}, v0')
            p(f'v_min_u32 v251, 159, v251')
            p(f'v_lshlrev_b32 v251, 7, v251')
            p(f'v_add_u32 v251, s14, v251')
            p(f'global_load_dword v250, v251, s[92:93]')
        p.label(f'{name}_npf')
    def row_reduce(reg, op, tmp):
        for sw in ('v_permlane16_swap_b32', 'v_permlane32_swap_b32'):
            p(f'v_mov_b32 v{tmp}, v{reg}')
            p('s_nop 1')
            p(f'{sw} v{reg}, v{tmp}')
            p('s_nop 1')
            p(f'{op} v{reg}, v{reg}, v{tmp}')
    def epilogue(cols, sTile, flagbit):
        p('s_nop 7')
        for c in cols: row_reduce(vL + c, 'v_add_f32', vU)
        if cols == LC:
            for c in cols: p(f'v_add_f32 v{vL+c}, v{vL+c}, v{Lm(c)}')
        p(f'v_max_f32 v{vU}, v{vL+cols[0]}, v{vL+cols[1]}')
        p(f'v_cmp_nle_f32 vcc, v{vU}, v{vU+1}'.replace(f'v{vU+1}', f'v{vU+1}') if False else f'v_cmp_nge_f32 vcc, s{sLim}, v{vU}')
        p('s_nop 1')
        p(f's_cmp_lg_u64 vcc, 0')
        p(f's_cselect_b32 s{sT0}, {flagbit}, 0')
        p(f's_or_b32 s{sFlag}, s{sFlag}, s{sT0}')
        for c in cols: p(f'v_rcp_f32 v{vL+c}, v{vL+c}')
        store_ctx(cols, sTile)
    def store_ctx(cols, sTile):
        p(f's_lshl_b32 s{sCtx}, s{sTile}, 3')
        p(f's_lshl_b32 s{sT0}, s{sW}, 1')
        p(f's_add_u32 s{sCtx}, s{sCtx}, s{sT0}')
        p(f's_lshl_b32 s{sCtx}, s{sCtx}, 5')
        p(f's_add_u32 s{sCtx}, s{sCtx}, s{sH}')
        p(f's_lshl_b32 s{sCtx}, s{sCtx}, 12')
        p(f's_add_u32 s{sT1}, s{sCtx}, {32*4096}')
        for i, c in enumerate(cols):
            for ks in range(4):
                o = O(c, 2*ks)
                for k in range(8): p(f'v_mul_f32 v{o+k}, v{o+k}, v{vL+c}')
                for k in range(4): p(f'v_cvt_pk_bf16_f32 v{o+k}, v{o+2*k}, v{o+2*k+1}')
                p(f'buffer_store_dwordx4 v[{o}:{o+3}], v{vLane16}, s[{S_CTX}:{S_CTX+3}], s{sCtx if i == 0 else sT1} offen offset:{ks*1024} {CTX_FLAGS}')

    p(f's_mov_b32 s{sSlotR}, 0')
    p(f'v_mov_b32 v{vRd}, v{vLane16}')
    for r in range(64, 128): p(f'v_mov_b32 v{vO+r}, 0')
    p(f's_lshl_b32 s{sDd}, s{sTS}, 2')
    p(f's_add_u32 s{sDd}, s{sDd}, s{sW}')
    p(f's_sub_u32 s{sDd}, 0, s{sDd}')
    emit(mask_ops(SC))
    p.wait_vm('U-1')
    p('s_barrier')
    p.stamp('U-1 ready')
    p.lgq = []; p.lg_ret = -1
    for f in range(8): put(rdK(0, f))
    p('s_waitcnt lgkmcnt(0)')
    q0 = qk_mfmas([0, 1, 2, 3], 0, cin_mask(SC))
    rest = unitK(2, 'U1') + unitV(2, 'U1')
    Rq = Region(q0)
    spread(Rq, rest, 0, 31)
    Rq.emit(p, put)
    p(f's_add_u32 s{sSlotP}, s{sLW}, {4*32768}')
    p.stamp('qk0 done')
    for f in range(8): put(rdK(1, f))
    for step in range(4):
        for c in range(4):
            S = vS + 8*c; t = vU + c
            if step == 0: p(f'v_max3_f32 v{t}, v{S}, v{S+1}, v{S+2}')
            elif step == 1: p(f'v_max3_f32 v{t}, v{t}, v{S+3}, v{S+4}')
            elif step == 2: p(f'v_max3_f32 v{t}, v{t}, v{S+5}, v{S+6}')
            else: p(f'v_max_f32 v{t}, v{t}, v{S+7}')
    for sw in ('v_permlane16_swap_b32', 'v_permlane32_swap_b32'):
        for c in range(4): p(f'v_mov_b32 v{vU+4+c}, v{vU+c}')
        for c in range(4): p(f'{sw} v{vU+c}, v{vU+4+c}')
        p('s_nop 0')
        for c in range(4): p(f'v_max_f32 v{vU+c}, v{vU+c}, v{vU+4+c}')
    for r in range(8):
        for c in range(4): p(f'v_sub_f32 v{vS+8*c+r}, v{vS+8*c+r}, v{vU+c}')
    for c in range(4):
        for r in range(4): p(f'v_sub_f32 v{vNeg+4*c+r}, 0, v{vU+c}')
    def run_window(W):
        for ops in W:
            for o in ops: p(o)
            if len(ops) == 1 and ops[0].startswith('v_exp'): p('s_nop 0')
    u2 = unitK(3, 'U2') + unitV(3, 'U2')
    for r in range(8):
        for c in range(3): p(f'v_exp_f32 v{vS+8*c+r}, v{vS+8*c+r}')
        while u2:
            it = u2.pop(0)
            put(it)
            if it[0] == 'm': break
            if ' m0,' in it[1]: p('s_nop 0')
    for it in u2: put(it)
    p('s_nop 0')
    for r in range(8):
        for c in range(3): p(f'v_add_f32 v{vL+c}, v{vL+c}, v{vS+8*c+r}')
    for k in range(4):
        for c in range(3): p(f'v_cvt_pk_bf16_f32 v{Pr(0, c)+k}, v{vS+8*c+2*k}, v{vS+8*c+2*k+1}')
    p(f's_mov_b32 s{sSlotR}, 32768')
    p(f'v_add_u32 v{vRd}, s{sSlotR}, v{vLane16}')
    if 'pp' not in opt: p.stamp('attn prologue done')
    p(f's_cmp_eq_u32 s{sTS}, 0')
    p(f's_cbranch_scc1 {name}_t0')
    p(f's_lshl_b32 s{sCnt}, s{sTS}, 1')
    p(f's_sub_u32 s{sCnt}, s{sCnt}, 1')
    p.label(f'{name}_dn')
    interval('D', f'dn', loop=True)
    p(f's_cbranch_scc1 {name}_dn')
    p(f's_sub_u32 s{sDd}, -1, s{sW}')
    interval('D', 'da', maskS=(False, True, True))
    p(f's_branch {name}_db')
    p.label(f'{name}_t0')
    p(f's_sub_u32 s{sDd}, 1, s{sW}')
    emit(mask_ops(SC))
    p('s_nop 1')
    p.label(f'{name}_db')
    interval('D', 'db', maskS=(True, True, True))
    interval('T', 'dc', maskS=(True, False, False))
    epilogue(SC, sTS, 2)
    p(f's_cmp_lt_u32 s{sI}, 6')
    p(f's_cbranch_scc1 {name}_nffn')
    p('s_lshr_b32 s14, s2, 6')
    p('s_lshl_b32 s14, s14, 1')
    p(f's_add_u32 s14, s14, s{sI}')
    p('s_sub_u32 s14, s14, 6')
    p('s_lshl_b32 s14, s14, 3')
    p('s_and_b32 s15, s2, 7')
    p(f's_add_u32 s{sT2}, s14, s15')
    p(f's_cmp_ge_u32 s{sT2}, 54')
    p(f's_cbranch_scc1 {name}_nffn')
    p(f's_load_dwordx2 s[4:5], s[0:1], {ARG["wg"]}')
    p(f's_load_dwordx2 s[8:9], s[0:1], {ARG["wu"]}')
    p(f's_load_dwordx2 s[12:13], s[0:1], {ARG["wd"]}')
    p('v_lshrrev_b32 v10, 2, v0')
    p('v_mul_u32_u24 v10, 3456, v10')
    p('v_and_b32 v11, 3, v0')
    p('v_lshl_add_u32 v10, v11, 4, v10')
    p('s_waitcnt lgkmcnt(0)')
    for sr, sz in ((4, 640*1728*2), (8, 640*1728*2), (12, 1728*640*2)):
        p(f's_mov_b32 s{sr+2}, {sz}'); p(f's_mov_b32 s{sr+3}, 0x00020000')
    p(f's_mul_i32 s{sT0}, s{sW}, {160*3456}')
    p(f's_lshl_b32 s{sT1}, s{sT2}, 6')
    p(f's_add_u32 s{sT0}, s{sT0}, s{sT1}')
    for i in range(10):
        for mat, sr in enumerate((4, 8)):
            r = 132 + (mat*10 + i)*4
            p(f'buffer_load_dwordx4 a[{r}:{r+3}], v10, s[{sr}:{sr+3}], s{sT0} offen')
        p(f's_add_u32 s{sT0}, s{sT0}, {16*3456}')
    p(f's_mul_i32 s{sT0}, s{sT2}, {32*1280}')
    p(f's_mul_i32 s{sT1}, s{sW}, 10240')
    p(f's_add_u32 s{sT0}, s{sT0}, s{sT1}')
    for i in range(10):
        r = 132 + (20 + i)*4
        p(f'buffer_load_dwordx4 a[{r}:{r+3}], v{vLane16}, s[12:15], s{sT0} offen offset:{(i % 4)*1024}')
        if i % 4 == 3: p(f's_add_u32 s{sT0}, s{sT0}, 4096')
    p.label(f'{name}_nffn')
    p.lgq = ['K%d' % f for f in range(8)]; p.lg_ret = 7
    if 'pp' not in opt: (p.stamp('S done') if 'pq' not in opt else None)
    p(f's_sub_u32 s{sCnt}, s{sTL}, s{sTS}')
    p(f's_cmp_eq_u32 s{sCnt}, 1')
    p(f's_cbranch_scc1 {name}_sb')
    p(f's_sub_u32 s{sCnt}, s{sCnt}, 2')
    interval('S', 'sn1')
    p.label(f'{name}_sn')
    interval('S', 'sn2a', vm=8)
    interval('S', 'sn2b', vm=None, loop=True)
    p(f's_cbranch_scc1 {name}_sn')
    p(f's_sub_u32 s{sDd}, -1, s{sW}')
    interval('S', 'sa', maskL=(False, True, True))
    p.label(f'{name}_sb')
    interval('S', 'sb', maskL=(True, True, True))
    interval('E', 'sc', maskL=(True, False, False))
    epilogue(LC, sTL, 1)
    p.stamp('L done')
    p(f's_cmp_eq_u32 s{sFlag}, 0')
    p(f's_cbranch_scc1 {name}_fin')
    fallback(p, name, locals())
    p.label(f'{name}_fin')
    def ctx_publish():
        p('s_waitcnt vmcnt(0) lgkmcnt(0)')
        p('s_barrier')
        p(f's_cmp_lg_u32 s{sW}, 0')
        p(f's_cbranch_scc1 {name}_cpub')
        p(f's_lshl_b32 s14, s2, 2')
        p(f's_add_u32 s14, s14, 6144')
        p(f'v_mov_b32 v20, s{sTag}')
        p('v_mov_b32 v21, 0')
        p(f'buffer_store_dword v20, v21, s[{S_FL}:{S_FL+3}], s14 offen sc1')
        p.label(f'{name}_cpub')
        p.stamp('ctx pub')
        if PE: emit_prefetch()
    import kt
    nerr += kt.gen_kt(name + '_t', p, prof, opt, ctx_publish)
    p.label(f'{name}_done')
    p('s_endpgm')
    def mk_policy(t0, nd, skip_s, ns, fb, wave0):
        def pol(ins, n):
            t = ins.args[0]
            if t.endswith('_done'): return False
            if t.endswith('_stageA'): return n % 3 != 0
            if t in (name + '_noln0', name + '_noln1'): return False
            if t in (name + '_notag', name + '_kvpub'): return not wave0
            if t == name + '_notag2': return True
            if t == name + '_nffn': return not wave0
            if t == name + '_cpub': return not wave0
            if t.startswith(name + '_t'):
                if '_poll' in t and t.endswith('_ok'): return True
                u = t[len(name) + 2:]
                if u in ('_w123', '_w1', '_nosig', '_w4', '_w5', '_cw'): return not wave0
                return False
            if t == name + '_nz': return True
            if t == name + '_nocode': return False
            if t == name + '_nopub': return True
            if t in (name + '_lnok', name + '_kok', name + '_vok', name + '_kpub', name + '_vpub'): return not wave0
            if t in (name + '_lnok2', name + '_kok2', name + '_vok2', name + '_krel', name + '_vrel'): return True
            if t.endswith('_t0'): return t0
            if t.endswith('_dn'): return (n % nd) != 0
            if t.endswith('_sb'): return skip_s
            if t.endswith('_sn'): return (n % ns) != 0
            if t.endswith('_fin'): return not fb
            if t.endswith('_fbloop'): return n % 3 != 0
            return False
        return pol
    for cfg in ([(False, 3, False, 3, False, True), (True, 2, False, 2, True, False), (False, 2, True, 2, False, True)] if (not opt or opt[0] in ('pp', 'pq', 'tl', 'tr', 'nocode', 'notlb', 'dbg') or opt[0].startswith('kv=')) and not any(o_.endswith('A') for o_ in opt) else []):
        seq = trace(p, mk_policy(*cfg))
        nerr += len(check_linear(seq, name + str(cfg)))
    return p, nerr

def fallback(p, name, L):
    g = L
    vS, vP, vE, vL, vU, vNeg, vCi, vO = g['vS'], g['vP'], g['vE'], g['vL'], g['vU'], g['vNeg'], g['vCi'], g['vO']
    aQ, aK, aV, vLane16, vNinf = g['aQ'], g['aK'], g['aV'], g['vLane16'], g['vNinf']
    S_KF, S_VF = g['S_KF'], g['S_VF']
    sFlag, sTL, sTS, sW, sH, sDd, sCnt, sT0, sT1, sT2 = (g[k] for k in ('sFlag', 'sTL', 'sTS', 'sW', 'sH', 'sDd', 'sCnt', 'sT0', 'sT1', 'sT2'))
    O = g['O']; mask_ops = g['mask_ops']; qk_mfmas = g['qk_mfmas']; pv_mfmas = g['pv_mfmas']; row_reduce = g['row_reduce']; store_ctx = g['store_ctx']
    put = g['put']
    p('s_waitcnt vmcnt(0) lgkmcnt(0)')
    for cols, sTile, bit, nm in (([2, 3], sTS, 2, 'S'), ([0, 1], sTL, 1, 'L')):
        p(f's_and_b32 s{sT0}, s{sFlag}, {bit}')
        p(f's_cmp_eq_u32 s{sT0}, 0')
        p(f's_cbranch_scc1 {name}_fbskip{nm}')
        for c in cols:
            p(f'v_mov_b32 v{vL+c}, 0')
            for r in range(32): p(f'v_mov_b32 v{vO+32*c+r}, 0')
            for r in range(4): p(f'v_mov_b32 v{vNeg+4*c+r}, 0')
        for i in range(2): p(f'v_mov_b32 v{vU+4+i}, v{vNinf}')
        p(f's_lshl_b32 s{sDd}, s{sTile}, 2')
        p(f's_add_u32 s{sDd}, s{sDd}, s{sW}')
        p(f's_add_u32 s{sCnt}, s{sDd}, 1')
        p(f's_sub_u32 s{sDd}, 0, s{sDd}')
        p(f's_lshl_b32 s{sT2}, s{sH}, 19')
        p.label(f'{name}_fb{nm}_fbloop')
        for f in range(8):
            p(f's_add_u32 s{sT1}, s{sT2}, {(f // 4)*4096}')
            p(f'buffer_load_dwordx4 a[{aK+4*f}:{aK+4*f+3}], v{vLane16}, s[{S_KF}:{S_KF+3}], s{sT1} offen offset:{(f % 4)*1024}')
            p(f'buffer_load_dwordx4 a[{aV+4*f}:{aV+4*f+3}], v{vLane16}, s[{S_VF}:{S_VF+3}], s{sT1} offen offset:{(f % 4)*1024}')
        for it in mask_ops(cols): put(it)
        p('s_waitcnt vmcnt(0)')
        p('s_nop 1')
        for m in qk_mfmas(cols, 0, lambda c, kb: vCi + 8*(c - cols[0]) + 4*kb): p(m)
        p('s_nop 7')
        for i, c in enumerate(cols):
            S = vS + 8*i; t = vU + i; m = vU + 4 + i
            p(f'v_max3_f32 v{t}, v{S}, v{S+1}, v{S+2}')
            p(f'v_max3_f32 v{t}, v{t}, v{S+3}, v{S+4}')
            p(f'v_max3_f32 v{t}, v{t}, v{S+5}, v{S+6}')
            p(f'v_max_f32 v{t}, v{t}, v{S+7}')
            row_reduce(t, 'v_max_f32', vU + 6)
            p(f'v_max_f32 v{t}, v{t}, v{m}')
            p(f'v_sub_f32 v{vU+6}, v{m}, v{t}')
            p(f'v_exp_f32 v{vU+6}, v{vU+6}')
            p(f'v_mov_b32 v{m}, v{t}')
            p(f'v_mul_f32 v{vL+c}, v{vL+c}, v{vU+6}')
            for r in range(32): p(f'v_mul_f32 v{vO+32*c+r}, v{vO+32*c+r}, v{vU+6}')
            for r in range(8): p(f'v_sub_f32 v{S+r}, v{S+r}, v{t}')
            for r in range(8): p(f'v_exp_f32 v{S+r}, v{S+r}')
            p('s_nop 0')
            for r in range(8): p(f'v_add_f32 v{vL+c}, v{vL+c}, v{S+r}')
            for k in range(4): p(f'v_cvt_pk_bf16_f32 v{vP+4*c+k}, v{S+2*k}, v{S+2*k+1}')
        p('s_nop 1')
        for m in pv_mfmas(cols, 0): p(m)
        p('s_nop 7')
        p(f's_add_u32 s{sT2}, s{sT2}, 8192')
        p(f's_add_u32 s{sDd}, s{sDd}, 1')
        p(f's_sub_u32 s{sCnt}, s{sCnt}, 1')
        p(f's_cmp_lg_u32 s{sCnt}, 0')
        p(f's_cbranch_scc1 {name}_fb{nm}_fbloop')
        for c in cols: row_reduce(vL + c, 'v_add_f32', vU)
        for c in cols: p(f'v_rcp_f32 v{vL+c}, v{vL+c}')
        store_ctx(cols, sTile)
        p.label(f'{name}_fbskip{nm}')

if __name__ == '__main__':
    p, ne = gen_kf()
    print('instrs', p.count(), 'errors', ne)
```

```python
import sys
import kf, os
from kf import gen_kf
for k_ in ('TW', 'TF', 'PE', 'TA', 'LATE1', 'CODE0'):
    if k_ in os.environ: setattr(kf, k_, os.environ[k_] == '1')
from common import *
if 'FP' in os.environ: kf.FP = os.environ['FP']
prof = len(sys.argv) > 1 and sys.argv[1] == 'prof'
out = sys.argv[2] if len(sys.argv) > 2 else 'all.s'
NAME = 'sequential_preLN__compressed_kv_cla__moe_arch_mod__prompt_kernel'
dbg = 'dbg' in sys.argv[3:]
nm = NAME if (not prof or dbg) else 'front_kernel'
xo = tuple(os.environ.get('XOPT', '').split())
p, e = gen_kf(name=nm, prof=prof, opt=tuple(sys.argv[3:]) + xo)
print('total errors', e)
hdr = """; Kernarg layout (112 bytes, ptrs only): x, c_kv, w_q, w_uk, w_uv, w_o, B_x, w_r, w_gate, w_up, w_down, out, debug, ws
"""
hdr += (f'; @launch kernel={nm} grid=(256,1,1) block=(256,1,1) lds=163840\n' if (prof and not dbg) else '; @launch grid=(256,1,1) block=(256,1,1) lds=163840\n')
body = '.amdgcn_target "amdgcn-amd-amdhsa--gfx950"\n.text\n' + header(nm) + p.text() + 'code_end_all:\n    s_endpgm\n'
d = '.section .rodata,"a"\n' + desc(nm, 512, 102, 256)
open(out, 'w').write(hdr + body + d)
```

```python
from gx import *

class P2(Prog):
    def __init__(self):
        super().__init__()
        self.vmq = []
    def vm(self, text, label=None, tag=None):
        self(text, tag)
        self.vmq.append(label)
    def ds(self, text, label=None, tag=None):
        self(text, tag)
        if not hasattr(self, 'lgq'): self.lgq = []; self.lg_ret = -1
        self.lgq.append(label)
    def wait_lg(self, labels, extra=''):
        if isinstance(labels, str): labels = [labels]
        cand = [i for i, l in enumerate(self.lgq) if l in labels]
        if not cand and getattr(self, 'lenient', False): return
        idx = max(max(i for i, l in enumerate(self.lgq) if l == lab) for lab in labels)
        if idx <= self.lg_ret:
            if extra: self(f's_waitcnt {extra}')
            return
        n = min(len(self.lgq) - 1 - idx, 15)
        self.lg_ret = len(self.lgq) - 1 - n
        self(f's_waitcnt lgkmcnt({n}) {extra}'.strip())
    def lg_all(self):
        if hasattr(self, 'lgq'): self.lg_ret = len(self.lgq) - 1
    prof = False
    nstamp = 0
    def stamp(self, name=''):
        if not self.prof: return
        if getattr(self, 'stampset', None) is not None and name not in self.stampset: return
        i = self.nstamp; self.nstamp += 1
        assert i < 12
        if i == 0:
            self('s_memrealtime s[100:101]')
        self(f's_memtime s[{72 + 2*i}:{73 + 2*i}]')
        self('s_waitcnt lgkmcnt(0)')
        if i == 0 and getattr(self, 'dbgmode', False):
            for k in range(1, 10): self(f's_mov_b32 s{72 + 2*k}, s72')
    def dump_dbg(self, vtmp=13):
        self('s_waitcnt vmcnt(0) lgkmcnt(0)')
        n = self.nstamp
        self(f's_memtime s[{72 + 2*n}:{73 + 2*n}]')
        self(f's_memrealtime s[{74 + 2*n}:{75 + 2*n}]')
        self(f's_load_dwordx2 s[68:69], s[0:1], 96')
        self('s_waitcnt lgkmcnt(0)')
        self('s_mov_b32 s64, s68'); self('s_mov_b32 s65, s69'); self('s_mov_b32 s66, 256'); self('s_mov_b32 s67, 0x00020000')
        self('s_cmp_lg_u32 s44, 0')
        lab = self.nl('dbgskip')
        self(f's_cbranch_scc1 {lab}')
        self(f'v_mov_b32 v{vtmp+1}, 0')
        for i in range(1, n + 1):
            self(f's_sub_u32 s68, s{72 + 2*i}, s72')
            self(f'v_mov_b32 v{vtmp}, s68')
            self(f'buffer_atomic_umax v{vtmp}, v{vtmp+1}, s[64:67], 0 offen offset:{4*i} sc1')
        self(f's_sub_u32 s68, s{74 + 2*n}, s100')
        self(f'v_mov_b32 v{vtmp}, s68')
        self(f'buffer_atomic_umax v{vtmp}, v{vtmp+1}, s[64:67], 0 offen offset:{4*(n+1)} sc1')
        self('s_waitcnt vmcnt(0)')
        self.label(lab)
    def dump_stamps(self, ws_sreg, off, vtmp=0):
        if getattr(self, 'dbgmode', False): return self.dump_dbg()
        if not self.prof: return
        self('s_waitcnt vmcnt(0) lgkmcnt(0)')
        self(f's_memtime s[{72 + 2*self.nstamp}:{73 + 2*self.nstamp}]')
        self(f's_memrealtime s[{74 + 2*self.nstamp}:{75 + 2*self.nstamp}]')
        self('s_waitcnt lgkmcnt(0)')
        n = self.nstamp + 2
        self(f's_mov_b32 s70, s{74 + 2*self.nstamp}')
        self(f's_sub_u32 s{74 + 2*self.nstamp}, s{74 + 2*self.nstamp}, s100')
        self(f's_load_dwordx2 s[68:69], s[0:1], 104')
        self('s_waitcnt lgkmcnt(0)')
        self(f's_add_u32 s64, s68, {off}')
        self(f's_addc_u32 s65, s69, 0')
        self(f's_mov_b32 s66, {1 << 20}')
        self(f's_mov_b32 s67, 0x00020000')
        self(f's_lshl_b32 s68, s2, 2')
        self(f's_add_u32 s68, s68, s44')
        self(f's_lshl_b32 s68, s68, 6')
        self(f'v_mov_b32 v{vtmp+1}, 0')
        for i in range(n):
            self(f'v_mov_b32 v{vtmp}, s{72 + 2*i}')
            self(f'buffer_store_dword v{vtmp}, v{vtmp+1}, s[64:67], s68 offen offset:{4*i}')
        self(f'v_mov_b32 v{vtmp}, s70')
        self(f'buffer_store_dword v{vtmp}, v{vtmp+1}, s[64:67], s68 offen offset:56')
        self(f'v_mov_b32 v{vtmp}, s100')
        self(f'buffer_store_dword v{vtmp}, v{vtmp+1}, s[64:67], s68 offen offset:60')
        self('s_waitcnt vmcnt(0)')
    def vm_after(self, label):
        idx = max(i for i, l in enumerate(self.vmq) if l == label)
        return len(self.vmq) - 1 - idx
    def wait_vm(self, labels, extra=''):
        if isinstance(labels, str): labels = [labels]
        n = min(self.vm_after(l) for l in labels)
        idx = len(self.vmq) - 1 - n
        if idx <= getattr(self, 'retired', -1):
            if extra: self(f's_waitcnt {extra}')
            return None
        assert n <= 63, n
        self.retired = idx
        self(f's_waitcnt vmcnt({n}) {extra}'.strip())
        return n

def check_lds(seq, name=''):
    errs = []
    vm = []; lg = []
    dmas = []
    reads = []
    bars = []
    byidx_d = {}; byidx_r = {}
    for j, c in enumerate(seq):
        if c.kind == 'wait':
            m = re.search(r'vmcnt\((\d+)\)', c.text)
            if m:
                k = int(m.group(1))
                while len(vm) > k:
                    o = vm.pop(0)
                    if o in byidx_d: byidx_d[o]['ret'] = j
            m = re.search(r'lgkmcnt\((\d+)\)', c.text)
            if m:
                k = int(m.group(1))
                while len(lg) > k:
                    o = lg.pop(0)
                    if o in byidx_r: byidx_r[o]['ret'] = j
        elif c.kind == 'bar': bars.append(j)
        elif c.kind in ('vld', 'vst', 'vat', 'dma'):
            vm.append(j)
            if c.kind == 'dma' and c.tag:
                _, lo, hi, shared = c.tag
                for r in reads:
                    if r['lo'] < hi and lo < r['hi']:
                        if r['ret'] is None: errs.append(f'[{name}] WAR: dma #{j} {c.text} overwrites LDS [{lo},{hi}) with unretired read #{r["idx"]}')
                        elif shared and not any(r['ret'] < b < j for b in bars): errs.append(f'[{name}] WAR: dma #{j} {c.text}: no barrier after read #{r["idx"]} retired')
                reads = [r for r in reads if not (r['lo'] < hi and lo < r['hi'] and r['ret'] is not None)]
                d = dict(idx=j, lo=lo, hi=hi, shared=shared, ret=None)
                dmas = [x for x in dmas if not (x['lo'] >= lo and x['hi'] <= hi)]
                dmas.append(d); byidx_d[j] = d
        elif c.kind in ('dsr', 'dsw'):
            lg.append(j)
            if c.kind == 'dsr' and c.tag:
                _, lo, hi = c.tag
                cov = False
                for d in dmas:
                    if d['lo'] < hi and lo < d['hi']:
                        cov = True
                        if d['ret'] is None: errs.append(f'[{name}] RAW: read #{j} {c.text} [{lo},{hi}) before dma #{d["idx"]} landed')
                        elif d['shared'] and not any(d['ret'] < b < j for b in bars): errs.append(f'[{name}] RAW: read #{j} {c.text}: no barrier after dma #{d["idx"]} wait')
                if not cov: errs.append(f'[{name}] read #{j} {c.text} [{lo},{hi}) not covered by any dma')
                r = dict(idx=j, lo=lo, hi=hi, ret=None)
                reads.append(r); byidx_r[j] = r
    for e in errs[:30]: print(e)
    if len(errs) > 30: print('...', len(errs))
    return errs

def linear(p):
    return [i for i in p.items if isinstance(i, Ins)]

def trace(p, policy, maxn=200000):
    labels = {}
    for i, it in enumerate(p.items):
        if not isinstance(it, Ins) and it[0] == 'label': labels[it[1]] = i
    seq = []; i = 0; seen = {}
    while i < len(p.items) and len(seq) < maxn:
        it = p.items[i]
        if isinstance(it, Ins):
            seq.append(it)
            if it.op == 's_endpgm': break
            if it.kind == 'br':
                tgt = it.args[0]
                key = (i,)
                seen[key] = seen.get(key, 0) + 1
                if it.op == 's_branch' or policy(it, seen[key]):
                    i = labels[tgt]; continue
        i += 1
    return seq
```

```python
from common import *
from gx2 import *
from sched import *
from lnops import rne_keep
MF = 'v_mfma_f32_16x16x32_bf16'
NFFN = 54
WS_PB = WS_PART
PS_OFF = 4*128*8*2560
SZ_PB = PS_OFF + 4*64*8*1024
SPIN = 1 << 16

def poll(p, name, S_DBG, off, target, vt, sA, sB):
    L = p.nl(name + '_poll')
    p(f'v_mov_b32 v{vt}, {off}')
    p(f's_mov_b32 s{sA}, 0')
    p.label(L)
    p(f'buffer_load_dword v{vt+1}, v{vt}, s[{S_DBG}:{S_DBG+3}], 0 offen sc1')
    p('s_waitcnt vmcnt(0)')
    p(f'v_readfirstlane_b32 s{sB}, v{vt+1}')
    p(f's_add_u32 s{sA}, s{sA}, 1')
    p(f's_cmp_ge_u32 s{sB}, {target}')
    p(f's_cbranch_scc1 {L}_ok')
    p(f's_cmp_ge_u32 s{sA}, {SPIN}')
    p(f's_cbranch_scc1 {L}_ok')
    p('s_sleep 1')
    p(f's_branch {L}')
    p.label(L + '_ok')

FOFS = 82*MiB - WS_STAT
O_CTXF, O_FM, O_KEYS, O_RDY, O_FF = FOFS + 6144, FOFS + 8192, FOFS + 10240, FOFS + 12288, FOFS + 13312

def gen_kt(name, p, prof=False, opt=(), ctx_publish=None):
    put = make_put(p)
    S_WO, S_CTX, S_PB, S_DBG, S_X, S_OUT, S_H, S_ST = 16, 20, 24, 28, 32, 36, 40, 56
    S_WA, S_WB = 60, 64
    sW, sS, sMT, sNT = 44, 45, 46, 47
    sT0, sT1, sT2 = 48, 49, 50
    sWoff, sCoff, sLWw, sLWc, sP0 = 51, 52, 53, 54, 55
    sIdx, sR = 68, 69
    vLane16 = 1
    vOffW = 2
    vLPe, vLPo, vCe, vCo = 7, 8, 9, 10
    vLPc, vCc = 11, 12
    vT = 13
    vWF = 20; vCF = 40; acc = 72
    SLOT = 36864; NSL = 4
    sTag = 3; sFj = 62; sPS = 60; sMaskC = 61
    p.vmq = []; p.retired = -1; p.lgq = []; p.lg_ret = -1
    n_front = len(p.items)
    if getattr(p, 'dbgmode', False):
        for k in range(p.nstamp, 10): p(f's_mov_b32 s{72 + 2*k}, s72')
    p(f's_load_dwordx2 s[4:5], s[0:1], {ARG["wo"]}')
    p(f's_load_dwordx4 s[8:11], s[0:1], {ARG["out"]}')
    p(f's_load_dwordx2 s[12:13], s[0:1], {ARG["ws"]}')
    p(f's_load_dwordx2 s[6:7], s[0:1], {ARG["x"]}')
    p('s_and_b32 s14, s2, 7')
    p('s_lshr_b32 s15, s2, 3')
    p(f's_lshr_b32 s{sS}, s14, 1')
    p(f's_and_b32 s14, s14, 1')
    p(f's_lshl_b32 s14, s14, 3')
    p(f's_and_b32 s{sMT}, s15, 7')
    p(f's_add_u32 s{sMT}, s{sMT}, s14')
    p(f's_lshr_b32 s{sNT}, s15, 3')
    p('s_lshr_b32 s14, s2, 3')
    p(f's_and_b32 s{sFj}, s14, 7')
    p(f's_lshr_b32 s14, s14, 3')
    p(f's_lshl_b32 s14, s14, 1')
    p(f's_add_u32 s14, s14, s{sFj}')
    p(f's_sub_u32 s14, s14, 6')
    p(f's_lshl_b32 s14, s14, 3')
    p(f's_and_b32 s15, s2, 7')
    p(f's_add_u32 s14, s14, s15')
    p(f's_cmp_ge_u32 s{sFj}, 6')
    p(f's_cselect_b32 s{sFj}, s14, 255')
    p('s_lshr_b32 s15, s2, 3')
    p(f's_lshl_b32 s{sT0}, s{sMT}, 3')
    p(f's_lshl_b32 s{sT1}, s{sW}, 1')
    p(f's_add_u32 s{sT0}, s{sT0}, s{sT1}')
    p(f's_lshl_b32 s{sT0}, s{sT0}, 2')
    p(f's_add_u32 s{sT0}, s{sT0}, s{sS}')
    p(f's_lshl_b32 s{sCoff}, s{sT0}, 15')
    p(f's_lshl_b32 s{sLWc}, s{sW}, 12')
    p(f's_add_u32 s{sLWc}, s{sLWc}, 20480')
    p(f's_mul_i32 s{sWoff}, s{sS}, {1024*1280}')
    p(f's_mul_i32 s{sT0}, s{sNT}, 320')
    p(f's_add_u32 s{sWoff}, s{sWoff}, s{sT0}')
    p(f's_mul_i32 s{sLWw}, s{sW}, 5120')
    p(f's_mul_i32 s{sT0}, s{sW}, 320')
    p(f'v_add_u32 v{vT}, s{sT0}, v0')
    for i in range(5):
        if i: p(f'v_add_u32 v{vT}, 64, v{vT}')
        p(f'v_mul_u32_u24 v{vT+1}, 3277, v{vT}')
        p(f'v_lshrrev_b32 v{vT+1}, 16, v{vT+1}')
        p(f'v_mul_u32_u24 v{vT+2}, 20, v{vT+1}')
        p(f'v_sub_u32 v{vT+2}, v{vT}, v{vT+2}')
        p(f'v_bfe_u32 v{vT+3}, v{vT+1}, 2, 1')
        p(f'v_lshlrev_b32 v{vT+3}, 1, v{vT+3}')
        p(f'v_xor_b32 v{vT+2}, v{vT+2}, v{vT+3}')
        p(f'v_mul_u32_u24 v{vT+1}, 1280, v{vT+1}')
        p(f'v_lshl_add_u32 v{vOffW+i}, v{vT+2}, 4, v{vT+1}')
        if 0 < i < 4: p(f'v_subrev_u32 v{vOffW+i}, {1024*i}, v{vOffW+i}')
    p('s_waitcnt lgkmcnt(0)')
    srd(p, S_WO, 4, 4096*640*2)
    srd(p, S_CTX, 12, SZ_CTX, WS_CTX)
    def dma_ctx(ch):
        base = (ch % NSL)*SLOT
        tagC = ('W', base + 20480, base + SLOT, True)
        L = [('s', f's_add_u32 s{sT1}, s{sCoff}, {ch*2048}'), ('s', f's_add_u32 m0, s{sLWc}, {base}'), ('s', 's_nop 0')]
        for i in range(2): L.append(('m', f'buffer_load_dwordx4 v{vLane16}, s[{S_CTX}:{S_CTX+3}], s{sT1} offen offset:{1024*i} lds', f'C{ch}', tagC))
        L.append(('s', f's_add_u32 s{sT1}, s{sCoff}, {ch*2048 + 4*32768}'))
        L.append(('s', f's_add_u32 m0, s{sLWc}, {base + 2048}'))
        L.append(('s', 's_nop 0'))
        for i in range(2): L.append(('m', f'buffer_load_dwordx4 v{vLane16}, s[{S_CTX}:{S_CTX+3}], s{sT1} offen offset:{1024*i} lds', f'C{ch}', tagC))
        return L
    def dma_wo(ch):
        base = (ch % NSL)*SLOT
        L = [('s', f's_add_u32 m0, s{sLWw}, {base}'), ('s', f's_add_u32 s{sT0}, s{sWoff}, {ch*64*1280}')]
        tagW = ('W', base, base + 20480, True)
        for i in range(4):
            L.append(('m', f'buffer_load_dwordx4 v{vOffW+i}, s[{S_WO}:{S_WO+3}], s{sT0} offen offset:{1024*i} lds', f'C{ch}', tagW))
        L.append(('s', f's_add_u32 m0, s{sLWw}, {base + 4096}'))
        L.append(('s', 's_nop 0'))
        L.append(('m', f'buffer_load_dwordx4 v{vOffW+4}, s[{S_WO}:{S_WO+3}], s{sT0} offen lds', f'C{ch}', tagW))
        return L
    def dma_chunk(ch): return dma_ctx(ch) + dma_wo(ch)
    def emit(L):
        for it in L: put(it)
    p(f'v_bfe_u32 v{vT}, v0, 2, 2')
    p(f'v_lshrrev_b32 v{vT+1}, 4, v0')
    p(f'v_lshl_add_u32 v{vT+2}, v{vT+1}, 2, v{vT}')
    p(f'v_mul_u32_u24 v{vT+2}, 320, v{vT+2}')
    p(f'v_and_b32 v{vT+3}, 3, v0')
    p(f'v_lshl_add_u32 v{vT+2}, v{vT+3}, 3, v{vT+2}')
    p(f'v_and_b32 v{vT+1}, 1, v{vT+1}')
    p(f'v_lshlrev_b32 v{vT+1}, 5, v{vT+1}')
    p(f'v_add_u32 v{vLPe}, v{vT+2}, v{vT+1}')
    p(f'v_sub_u32 v{vLPo}, v{vT+2}, v{vT+1}')
    p(f's_lshr_b32 s{sT0}, s{sW}, 1')
    p(f's_and_b32 s{sT1}, s{sW}, 1')
    p(f's_cmp_eq_u32 s{sT0}, 1')
    p(f's_cselect_b64 s[14:15], -1, 0')
    p(f'v_cndmask_b32 v{vT}, v{vLPe}, v{vLPo}, s[14:15]')
    p(f'v_cndmask_b32 v{vT+1}, v{vLPo}, v{vLPe}, s[14:15]')
    p(f's_mul_i32 s{sT2}, s{sT0}, 160')
    p(f'v_add_u32 v{vLPe}, s{sT2}, v{vT}')
    p(f'v_add_u32 v{vLPo}, s{sT2}, v{vT+1}')
    p(f's_lshl_b32 s{sT2}, s{sT1}, 13')
    p(f's_add_u32 s{sT2}, s{sT2}, 20480')
    p(f'v_add_u32 v{vLPc}, s{sT2}, v{vLane16}')
    p(f's_lshl_b32 s{sP0}, s{sS}, 7')
    p(f's_lshl_b32 s{sT2}, s{sMT}, 3')
    p(f's_add_u32 s{sP0}, s{sP0}, s{sT2}')
    p(f's_lshl_b32 s{sT1}, s{sT1}, 2')
    p(f's_add_u32 s{sP0}, s{sP0}, s{sT1}')
    p(f's_lshl_b32 s{sP0}, s{sP0}, 3')
    p(f's_lshl_b32 s{sT2}, s{sNT}, 1')
    p(f's_add_u32 s{sP0}, s{sP0}, s{sT2}')
    p(f's_add_u32 s{sP0}, s{sP0}, s{sT0}')
    p(f's_lshl_b32 s{sPS}, s{sS}, 6')
    p(f's_lshl_b32 s14, s{sMT}, 2')
    p(f's_add_u32 s{sPS}, s{sPS}, s14')
    p(f's_lshr_b32 s14, s{sT1}, 1')
    p(f's_add_u32 s{sPS}, s{sPS}, s14')
    p(f's_lshl_b32 s{sPS}, s{sPS}, 3')
    p(f's_add_u32 s{sPS}, s{sPS}, s{sT2}')
    p(f's_add_u32 s{sPS}, s{sPS}, s{sT0}')
    p(f's_lshl_b32 s{sPS}, s{sPS}, 10')
    p(f's_add_u32 s{sPS}, s{sPS}, {{PS_OFF}}'.replace('{PS_OFF}', str(PS_OFF)))
    p(f's_mul_i32 s{sP0}, s{sP0}, 2560')
    srd(p, S_PB, 12, SZ_PB, WS_PB)
    srd(p, S_X, 6, 2048*640*2)
    srd(p, S_OUT, 8, 2048*640*2)
    srd(p, S_H, 12, SZ_H, WS_H)
    srd(p, S_ST, 12, 3 << 20, WS_STAT)
    p.stamp('tail setup')
    ctx_publish()
    p(f's_cmp_eq_u32 s{sW}, 0')
    p(f's_cbranch_scc1 {name}_w0first')
    emit(dma_wo(0) + dma_wo(1) + dma_wo(2))
    p(f's_branch {name}_cw')
    p.label(f'{name}_w0first')
    p(f's_sub_u32 s14, 15, s{sMT}')
    p(f's_min_u32 s14, s14, s{sMT}')
    p(f's_lshl_b32 s14, s14, 3')
    p(f's_lshl_b32 s15, s{sS}, 1')
    p(f's_add_u32 s14, s14, s15')
    p(f'v_and_b32 v{vT}, 3, v0')
    p(f'v_lshlrev_b32 v{vT}, 6, v{vT}')
    p(f'v_bfe_u32 v{vT+1}, v0, 2, 1')
    p(f'v_add3_u32 v{vT}, v{vT}, v{vT+1}, s14')
    p(f'v_lshlrev_b32 v{vT}, 2, v{vT}')
    p(f's_mov_b32 s14, {O_CTXF}')
    p('s_mov_b32 s15, 0')
    Lc = p.nl(name + '_pollC')
    p.label(Lc)
    p(f'buffer_load_dword v{vT+1}, v{vT}, s[{S_ST}:{S_ST+3}], s14 offen sc1')
    p('s_waitcnt vmcnt(0)')
    p(f'v_cmp_ne_u32 vcc, s{sTag}, v{vT+1}')
    p('s_add_u32 s15, s15, 1')
    p(f's_cbranch_vccz {Lc}_ok')
    p(f's_cmp_ge_u32 s15, {SPIN}')
    p(f's_cbranch_scc1 {Lc}_ok')
    p('s_sleep 2')
    p(f's_branch {Lc}')
    p.label(Lc + '_ok')
    emit(dma_wo(0) + dma_wo(1) + dma_wo(2))
    p.label(f'{name}_cw')
    p('s_barrier')
    (p.stamp('ctx ready') if 'ln' not in opt else None)
    emit(dma_ctx(0)); emit(dma_ctx(1)); emit(dma_ctx(2))
    def upd(ch):
        base = (ch % NSL)*SLOT
        return [('v', f'v_add_u32 v{vCe}, {base}, v{vLPe}'), ('v', f'v_add_u32 v{vCo}, {base}, v{vLPo}'), ('v', f'v_add_u32 v{vCc}, {base}, v{vLPc}')]
    def rd_w(mb, ks):
        ch, kin = divmod(ks, 2); base = (ch % NSL)*SLOT
        r = vWF + 4*mb; a = vCe if mb % 2 == 0 else vCo
        return [('r', f'ds_read_b64_tr_b16 v[{r+2*h}:{r+2*h+1}], v{a} offset:{kin*10240 + h*5120 + mb*32}', f'w{ks}_{mb}', ('R', base, base + 20480)) for h in range(2)]
    def rd_c(cb, ks):
        ch, kin = divmod(ks, 2); base = (ch % NSL)*SLOT
        r = vCF + 16*(ks % 2) + 4*cb
        return ('r', f'ds_read_b128 v[{r}:{r+3}], v{vCc} offset:{cb*2048 + kin*1024}', f'c{ks}', ('R', base + 20480, base + SLOT))
    emit(upd(0))
    p.wait_vm('C0')
    p('s_barrier')
    (p.stamp('chunk0') if 'ln' not in opt else None)
    for cb in range(4): put(rd_c(cb, 0))
    for mb in range(5): emit(rd_w(mb, 0))
    NKS = 32
    A = lambda cb, mb: acc + (cb*5 + mb)*4
    mf = []
    for ks in range(NKS):
        for mb in range(5):
            for cb in range(4):
                c = '0' if ks == 0 else f'v[{A(cb, mb)}:{A(cb, mb)+3}]'
                cf = vCF + 16*(ks % 2) + 4*cb
                mf.append(f'{MF} v[{A(cb, mb)}:{A(cb, mb)+3}], v[{vWF+4*mb}:{vWF+4*mb+3}], v[{cf}:{cf+3}], {c}')
    R = Region(mf)
    G = lambda ks, mb, cb: ks*20 + mb*4 + cb
    put(('wlg', ['w0_0', 'c0']))
    BARG = lambda ch: G(2*ch + 1, 0, 3)
    NCH = 16
    for ch in range(NCH - 1):
        R.place(('bar', [f'C{ch+1}']), BARG(ch), force=True)
        R.stream(upd(ch + 1), G(2*ch + 1, 0, 1), G(2*ch + 1, 1, 0))
    for ks in range(NKS):
        for mb in range(5):
            if ks == 0 and mb == 0: continue
            labs = [f'w{ks}_{mb}'] + ([f'c{ks}'] if mb == 0 else [])
            R.place(('wlg', labs), G(ks, mb, 0) - 1, force=True)
    for ks in range(NKS - 1):
        ch, t = divmod(ks, 2); nxt = ks + 1
        for mb in range(5):
            e = G(ks, mb, 3)
            if t == 1: e = max(e, G(ks, 1, 1))
            rr = rd_w(mb, nxt)
            lat = G(ks + 1, 0, 0) if t == 0 else G(ks + 1, mb, 0) - 3
            g = R.place(rr[0], e, lat); R.place(rr[1], min(g + 1, lat), lat)
        e = G(ks, 0, 0) if t == 0 else G(ks, 1, 1)
        for cb in range(4): R.place(rd_c(cb, nxt), e + 3*cb, G(ks + 1, 0, 0) - 4)
    def spread_dma(R, L, g0, g1):
        nm = sum(1 for x in L if x[0] in 'ml')
        step = max(1, (g1 - g0) // max(nm, 1))
        g = g0; cnt = 0
        for it in L:
            e = max(g, g0 + cnt*step - (2 if it[0] == 's' else 0))
            g = R.place(it, e, g1)
            if it[0] in 'ml': cnt += 1; g += 1
    for ch in range(NCH - 1):
        if ch + 3 < NCH: spread_dma(R, dma_chunk(ch + 3), BARG(ch) + 1, BARG(ch + 1) - 1)
    R.emit(p, put)
    print('kt gemm overflow', R.over, 'est', R.total())
    (p.stamp('gemm end') if 'ln' not in opt else None)
    p('s_nop 7')
    for cb in range(4):
        a0 = A(cb, 0)
        for k in range(10): p(f'v_cvt_pk_bf16_f32 v{a0+k}, v{a0+2*k}, v{a0+2*k+1}')
        p(f's_add_u32 s{sT0}, s{sP0}, {cb*8*2560}')
        p.vm(f'buffer_store_dwordx4 v[{a0}:{a0+3}], v{vLane16}, s[{S_PB}:{S_PB+3}], s{sT0} offen sc1', 'st')
        p.vm(f'buffer_store_dwordx4 v[{a0+4}:{a0+7}], v{vLane16}, s[{S_PB}:{S_PB+3}], s{sT0} offen offset:1024 sc1', 'st')
        if cb % 2 == 1:
            ae = A(cb - 1, 0)
            p(f'v_mov_b32 v{ae+10}, v{a0+8}')
            p(f'v_mov_b32 v{ae+11}, v{a0+9}')
            p(f's_add_u32 s{sT0}, s{sPS}, {(cb // 2)*8*1024}')
            p.vm(f'buffer_store_dwordx4 v[{ae+8}:{ae+11}], v{vLane16}, s[{S_PB}:{S_PB+3}], s{sT0} offen sc1', 'st')
    p('s_waitcnt vmcnt(0)')
    p('s_barrier')
    p(f's_cmp_lg_u32 s{sW}, 0')
    p(f's_cbranch_scc1 {name}_nosig')
    p(f's_lshl_b32 s{sT0}, s{sMT}, 7')
    p(f's_lshl_b32 s{sT1}, s{sS}, 4')
    p(f's_add_u32 s{sT0}, s{sT0}, s{sT1}')
    p(f's_lshl_b32 s{sT1}, s{sNT}, 2')
    p(f's_add_u32 s{sT0}, s{sT0}, s{sT1}')
    p(f's_add_u32 s{sT0}, s{sT0}, {O_FM}')
    p(f'v_mov_b32 v{vT}, 0')
    p(f'v_mov_b32 v{vT+1}, s{sTag}')
    p('v_cmp_eq_u32 vcc, 0, v0')
    p('s_nop 1')
    p('s_and_saveexec_b64 s[14:15], vcc')
    p(f'buffer_store_dword v{vT+1}, v{vT}, s[{S_ST}:{S_ST+3}], s{sT0} offen sc1')
    p('s_mov_b64 exec, s[14:15]')
    p.label(f'{name}_nosig')
    (p.stamp('signalled') if 'ln' not in opt else None)
    vTok, vOffP, vOffP8, vOffX, vLds, vLdsW, vTokG = 2, 3, 4, 5, 6, 7, 8
    PA = 20
    XR = 60
    WR = 70
    H = 80
    HN = 100
    sm, mean, mb_, var, sd, rc, t0, t1 = range(120, 128)
    sJ = sP0
    p(f's_lshl_b32 s{sJ}, s{sS}, 2')
    p(f's_add_u32 s{sJ}, s{sJ}, s{sNT}')
    p(f'v_and_b32 v{vTok}, 7, v0')
    p(f'v_bfe_u32 v{vT}, v0, 3, 2')
    p(f'v_lshrrev_b32 v{vT+1}, 5, v0')
    p(f's_lshr_b32 s{sT0}, s{sJ}, 1')
    p(f's_lshl_b32 s{sT1}, s{sMT}, 3')
    p(f's_add_u32 s{sT0}, s{sT0}, s{sT1}')
    sQB = 70
    p(f's_mov_b32 s{sQB}, s{sT0}')
    p(f's_lshl_b32 s{sT1}, s{sT0}, 4')
    p(f's_and_b32 s{sT2}, s{sJ}, 1')
    p(f's_lshl_b32 s{sT2}, s{sT2}, 3')
    p(f's_add_u32 s{sT1}, s{sT1}, s{sT2}')
    p(f'v_add_u32 v{vTokG}, s{sT1}, v{vTok}')
    p(f'v_lshl_add_u32 v{vT+2}, v{vT}, 4, v{vTok}')
    p(f'v_add_u32 v{vT+2}, s{sT2}, v{vT+2}')
    p(f's_lshl_b32 s{sT0}, s{sT0}, 3')
    p(f's_lshl_b32 s{sT2}, s{sW}, 1')
    p(f's_add_u32 s{sT0}, s{sT0}, s{sT2}')
    p(f'v_add_u32 v{vT+3}, s{sT0}, v{vT+1}')
    p(f'v_mul_u32_u24 v{vT+3}, 2560, v{vT+3}')
    p(f'v_lshl_add_u32 v{vOffP}, v{vT+2}, 4, v{vT+3}')
    p(f's_lshr_b32 s14, s{sQB}, 1')
    p(f's_lshl_b32 s14, s14, 3')
    p(f's_add_u32 s14, s14, s{sT2}')
    p(f'v_add_u32 v{vOffP8}, s14, v{vT+1}')
    p(f'v_lshlrev_b32 v{vOffP8}, 10, v{vOffP8}')
    p(f'v_lshl_add_u32 v{vOffP8}, v{vT+2}, 4, v{vOffP8}')
    p(f's_and_b32 s14, s{sQB}, 1')
    p(f's_lshl_b32 s14, s14, 3')
    p(f's_add_u32 s14, s14, {PS_OFF}')
    p(f'v_add_u32 v{vOffP8}, s14, v{vOffP8}')
    p(f's_mul_i32 s{sT2}, s{sW}, 320')
    p(f'v_mul_u32_u24 v{vT+4}, 160, v{vT+1}')
    p(f'v_lshl_add_u32 v{vT+4}, v{vT}, 3, v{vT+4}')
    p(f'v_add_u32 v{vT+4}, s{sT2}, v{vT+4}')
    p(f'v_mul_u32_u24 v{vOffX}, 1280, v{vTokG}')
    p(f'v_add_u32 v{vOffX}, v{vOffX}, v{vT+4}')
    p(f's_load_dwordx2 s[14:15], s[0:1], {ARG["wr"]}')
    for i in range(5):
        p(f'buffer_load_dwordx2 v[{XR+2*i}:{XR+2*i+1}], v{vOffX}, s[{S_X}:{S_X+3}], 0 offen offset:{32*i}')
    p('s_waitcnt lgkmcnt(0)')
    srd(p, 8, 14, 640*2)
    for i in range(5):
        p(f'buffer_load_dwordx2 v[{WR+2*i}:{WR+2*i+1}], v{vT+4}, s[8:11], 0 offen offset:{32*i}')
    RB = 143360
    STH = 122880; STO = 133120
    p(f's_lshl_b32 s{sT1}, s{sW}, 5')
    p(f'v_lshlrev_b32 v{vLds}, 2, v{vTok}')
    p(f'v_add_u32 v{vLds}, {RB}, v{vLds}')
    p(f'v_add_u32 v{vLdsW}, s{sT1}, v{vLds}')
    p(f's_cmp_ge_u32 s{sFj}, {NFFN}')
    p(f's_cbranch_scc1 {name}_nowl')
    p(f's_mul_i32 s{sT2}, s{sW}, 10240')
    p(f'v_add_u32 v{t0}, s{sT2}, v{vLane16}')
    p(f'v_add_u32 v{t1}, 65536, v{t0}')
    for mat, lbase in enumerate((0, 40960, 81920)):
        for i in range(10):
            r = 132 + (mat*10 + i)*4
            if lbase + i*1024 < 65536: p(f'ds_write_b128 v{t0}, a[{r}:{r+3}] offset:{lbase + i*1024}')
            else: p(f'ds_write_b128 v{t1}, a[{r}:{r+3}] offset:{lbase + i*1024 - 65536}')
    p.label(f'{name}_nowl')
    p(f's_cmp_lg_u32 s{sW}, 0')
    p(f's_cbranch_scc1 {name}_w1')
    p(f's_lshl_b32 s{sT0}, s{sMT}, 7')
    p(f's_add_u32 s{sT0}, s{sT0}, {O_FM}')
    Lp = p.nl(name + '_pollM')
    p(f'v_and_b32 v{t0}, 15, v0')
    p(f'v_lshlrev_b32 v{t0}, 2, v{t0}')
    p(f's_mov_b32 s{sT1}, 0')
    p.label(Lp)
    p(f'buffer_load_dword v{t1}, v{t0}, s[{S_ST}:{S_ST+3}], s{sT0} offen sc1')
    p('s_waitcnt vmcnt(0)')
    p(f'v_cmp_ne_u32 vcc, s{sTag}, v{t1}')
    p(f's_add_u32 s{sT1}, s{sT1}, 1')
    p(f's_cbranch_vccz {Lp}_ok')
    p(f's_cmp_ge_u32 s{sT1}, {SPIN}')
    p(f's_cbranch_scc1 {Lp}_ok')
    p('s_sleep 2')
    p(f's_branch {Lp}')
    p.label(Lp + '_ok')
    p.label(f'{name}_w1')
    p('s_barrier')
    (p.stamp('partials ready') if 'ln' not in opt else None)
    for s_ in range(4):
        p(f's_mov_b32 s{sT0}, {s_*128*8*2560}')
        b = PA + 10*s_
        p(f'buffer_load_dwordx4 v[{b}:{b+3}], v{vOffP}, s[{S_PB}:{S_PB+3}], s{sT0} offen sc1')
        p(f'buffer_load_dwordx4 v[{b+4}:{b+7}], v{vOffP}, s[{S_PB}:{S_PB+3}], s{sT0} offen offset:1024 sc1')
        p(f's_mov_b32 s{sT1}, {s_*64*8*1024}')
        p(f'buffer_load_dwordx2 v[{b+8}:{b+9}], v{vOffP8}, s[{S_PB}:{S_PB+3}], s{sT1} offen sc1')
    p('s_waitcnt vmcnt(0)')
    p.stamp('partials loaded')
    p(f'v_mov_b32 v{t0}, {RB}')
    p(f'v_mov_b32 v{t1}, 0')
    p(f'ds_write_b32 v{t0}, v{t1} offset:516')
    U0, U1 = 160, 180
    p(f's_mov_b32 s{sMaskC}, 0xffff0000')
    def ext(dst, src, half): return f'v_lshlrev_b32 v{dst}, 16, v{src}' if half == 0 else f'v_and_b32 v{dst}, s{sMaskC}, v{src}'
    for k in range(20): p(ext(H + k, PA + k//2, k % 2))
    for k in range(20): p(ext(U0 + k, PA + 10 + k//2, k % 2))
    for k in range(20): p(ext(U1 + k, PA + 20 + k//2, k % 2))
    for k in range(20): p(f'v_add_f32 v{H+k}, v{H+k}, v{U0+k}')
    for k in range(20): p(ext(U0 + k, PA + 30 + k//2, k % 2))
    for k in range(20): p(f'v_add_f32 v{U1+k}, v{U1+k}, v{U0+k}')
    for k in range(20): p(f'v_add_f32 v{H+k}, v{H+k}, v{U1+k}')
    for k2 in range(10): p(f'v_cvt_pk_bf16_f32 v{U0+k2}, v{H+2*k2}, v{H+2*k2+1}')
    for k in range(20): p(ext(H + k, U0 + k//2, k % 2))
    for k in range(20): p(ext(U1 + k, XR + k//2, k % 2))
    for k in range(20): p(f'v_add_f32 v{H+k}, v{H+k}, v{U1+k}')
    for k2 in range(10): p(f'v_cvt_pk_bf16_f32 v{XR+k2}, v{H+2*k2}, v{H+2*k2+1}')
    for k in range(20): p(ext(H + k, XR + k//2, k % 2))
    vSt = 9
    p(f'v_mul_u32_u24 v{vSt}, 1280, v{vTok}')
    p(f'v_add_u32 v{vSt}, v{vSt}, v{vT+4}')
    p(f'v_add_u32 v{vSt}, {STH}, v{vSt}')
    for i in range(5): p(f'ds_write_b64 v{vSt}, v[{XR+2*i}:{XR+2*i+1}] offset:{32*i}')
    TT = 128
    def allreduce_n(regs, slot):
        n = len(regs)
        p('s_nop 1')
        for r in regs: p(f'v_add_f32_dpp v{r}, v{r}, v{r} row_ror:8 row_mask:0xf bank_mask:0xf')
        for sw in ('v_permlane16_swap_b32', 'v_permlane32_swap_b32'):
            for i, r in enumerate(regs): p(f'v_mov_b32 v{TT+i}, v{r}')
            p('s_nop 1')
            for i, r in enumerate(regs): p(f'{sw} v{r}, v{TT+i}')
            p('s_nop 1')
            for i, r in enumerate(regs): p(f'v_add_f32 v{r}, v{r}, v{TT+i}')
        for i, r in enumerate(regs): p(f'ds_write_b32 v{vLdsW}, v{r} offset:{(slot + i)*128}')
        p('s_waitcnt lgkmcnt(0)')
        p('s_barrier')
        for i, r in enumerate(regs):
            for w in range(4): p(f'ds_read_b32 v{TT+4*i+w}, v{vLds} offset:{(slot + i)*128 + 32*w}')
        p('s_waitcnt lgkmcnt(0)')
        for i, r in enumerate(regs):
            p(f'v_add_f32 v{TT+4*i}, v{TT+4*i}, v{TT+4*i+1}')
            p(f'v_add_f32 v{TT+4*i+2}, v{TT+4*i+2}, v{TT+4*i+3}')
            p(f'v_add_f32 v{r}, v{TT+4*i}, v{TT+4*i+2}')
    def allreduce(reg, slot): allreduce_n([reg], slot)
    if 'ln' in opt: p.stamp('sums done')
    for k in range(10): p(f'v_add_f32 v{U0+k}, v{H+k}, v{H+10+k}')
    for k in range(5): p(f'v_add_f32 v{U0+k}, v{U0+k}, v{U0+5+k}')
    p(f'v_add_f32 v{U0}, v{U0}, v{U0+1}'); p(f'v_add_f32 v{U0+2}, v{U0+2}, v{U0+3}'); p('s_nop 0')
    p(f'v_add_f32 v{U0}, v{U0}, v{U0+4}'); p('s_nop 0'); p(f'v_add_f32 v{sm}, v{U0}, v{U0+2}'); p('s_nop 0')
    p(f'v_mul_f32 v{mean}, 0x3d4ccccd, v{sm}')
    p('s_nop 0')
    p(f'v_mul_f32 v{sd}, v{sm}, v{mean}')
    for k in range(20): p(f'v_sub_f32 v{U0+k}, v{H+k}, v{mean}')
    for k in range(10): p(f'v_mul_f32 v{U1+k}, v{U0+k}, v{U0+k}')
    for k in range(10): p(f'v_fmac_f32 v{U1+k}, v{U0+10+k}, v{U0+10+k}')
    for k in range(5): p(f'v_add_f32 v{U1+k}, v{U1+k}, v{U1+5+k}')
    p(f'v_add_f32 v{U1}, v{U1}, v{U1+1}'); p(f'v_add_f32 v{U1+2}, v{U1+2}, v{U1+3}'); p('s_nop 0')
    p(f'v_add_f32 v{U1}, v{U1}, v{U1+4}'); p('s_nop 0'); p(f'v_add_f32 v{var}, v{U1}, v{U1+2}')
    if 'ln' in opt: p.stamp('pre ar1')
    allreduce_n([sm, var, sd], 0)
    if 'ln' in opt: p.stamp('ar1')
    p(f'v_mul_f32 v{mean}, 0x3acccccd, v{sm}')
    for x in rne_keep(mb_, mean): p(x)
    p(f'v_fma_f32 v{sd}, -v{sm}, v{mean}, v{sd}')
    p(f'v_max_f32 v{sd}, 0, v{sd}')
    p(f'v_add_f32 v{var}, v{var}, v{sd}')
    p(f'v_mul_f32 v{var}, 0x3acccccd, v{var}')
    for x in rne_keep(var, var): p(x)
    p(f'v_add_f32 v{var}, 0x3727c5ac, v{var}')
    for x in rne_keep(var, var): p(x)
    p(f'v_sqrt_f32 v{sd}, v{var}')
    p('s_nop 0')
    for x in rne_keep(sd, sd): p(x)
    p(f'v_rcp_f32 v{rc}, v{sd}')
    p('s_nop 0')
    p(f'v_mov_b32 v{sm}, v{rc}')
    for k in range(20): p(f'v_sub_f32 v{U0+k}, v{H+k}, v{mb_}')
    for k2 in range(10): p(f'v_cvt_pk_bf16_f32 v{U1+k2}, v{U0+2*k2}, v{U0+2*k2+1}')
    for k in range(20): p(ext(U0 + k, U1 + k//2, k % 2))
    for k in range(20): p(f'v_mul_f32 v{U0+k}, v{U0+k}, v{sm}')
    for k2 in range(10): p(f'v_cvt_pk_bf16_f32 v{U1+k2}, v{U0+2*k2}, v{U0+2*k2+1}')
    for k in range(20): p(ext(HN + k, U1 + k//2, k % 2))
    for k in range(20): p(ext(U0 + k, WR + k//2, k % 2))
    for k in range(10): p(f'v_mul_f32 v{U1+k}, v{HN+k}, v{U0+k}')
    for k in range(10): p(f'v_fmac_f32 v{U1+k}, v{HN+10+k}, v{U0+10+k}')
    for k in range(20): p(f'v_add_f32 v{U0+k}, v{H+k}, v{HN+k}')
    for k in range(5): p(f'v_add_f32 v{U1+k}, v{U1+k}, v{U1+5+k}')
    for k2 in range(10): p(f'v_cvt_pk_bf16_f32 v{PA+k2}, v{U0+2*k2}, v{U0+2*k2+1}')
    p(f'v_add_f32 v{U1}, v{U1}, v{U1+1}'); p(f'v_add_f32 v{U1+2}, v{U1+2}, v{U1+3}'); p('s_nop 0')
    p(f'v_add_f32 v{U1}, v{U1}, v{U1+4}'); p('s_nop 0'); p(f'v_add_f32 v{var}, v{U1}, v{U1+2}')
    for i in range(5): p(f'ds_write_b64 v{vSt}, v[{PA+2*i}:{PA+2*i+1}] offset:{STO - STH + 32*i}')
    if 'ln' in opt: p.stamp('pre ar2')
    allreduce(var, 3)
    if 'ln' in opt: p.stamp('ar2')
    p(f'v_cvt_pk_bf16_f32 v{var}, v{var}, v{var}')
    p(f's_cmp_lg_u32 s{sW}, 0')
    p(f's_cbranch_scc1 {name}_w123')
    p(f'v_and_b32 v{t0}, 0xffff, v{var}')
    p(f'v_or_b32 v{t1}, 0x8000, v{t0}')
    p(f'v_xor_b32 v{rc}, 0xffff, v{t0}')
    p(f'v_cmp_lt_u32 vcc, 0x7fff, v{t0}')
    p('s_nop 1')
    p(f'v_cndmask_b32 v{t1}, v{t1}, v{rc}, vcc')
    p(f'v_sub_u32 v{t0}, 0xffff, v{vTokG}')
    p(f'v_lshl_or_b32 v{t1}, v{t1}, 16, v{t0}')
    for sh in (4, 2, 1):
        p('s_nop 1')
        p(f'v_max_u32_dpp v{t1}, v{t1}, v{t1} row_ror:{sh} row_mask:0xf bank_mask:0xf')
    p(f's_lshl_b32 s{sT0}, s2, 3')
    p(f's_add_u32 s{sT0}, s{sT0}, {O_KEYS}')
    p(f'v_mov_b32 v{t0}, 0')
    p(f'v_mov_b32 v{TT}, v{t1}')
    p(f'v_mov_b32 v{TT+1}, s{sTag}')
    p(f'buffer_store_dwordx2 v[{TT}:{TT+1}], v{t0}, s[{S_ST}:{S_ST+3}], s{sT0} offen sc1')
    p.stamp('key out')
    p(f's_cmp_ge_u32 s{sFj}, {NFFN}')
    p(f's_cbranch_scc1 {name}_fin')
    p(f's_branch {name}_w0poll')
    p.label(f'{name}_w123')
    p(f's_sub_u32 s{sT0}, s{sW}, 1')
    p(f's_lshl_b32 s{sT0}, s{sT0}, 10')
    p(f'v_add_u32 v{t0}, s{sT0}, v{vLane16}')
    p(f'v_add_u32 v{t1}, {STH}, v{t0}')
    for mat in range(2):
        for i in range(4): p(f'ds_read_b128 v[{PA+16*mat+4*i}:{PA+16*mat+4*i+3}], v{t1} offset:{mat*(STO - STH) + 3072*i}')
    p(f's_lshl_b32 s{sT1}, s{sQB}, 4')
    p(f's_and_b32 s{sT2}, s{sJ}, 1')
    p(f's_lshl_b32 s{sT2}, s{sT2}, 3')
    p(f's_add_u32 s{sT1}, s{sT1}, s{sT2}')
    p(f's_mul_i32 s{sT1}, s{sT1}, 1280')
    p('s_waitcnt lgkmcnt(0)')
    for mat, sr in enumerate((S_H, S_OUT)):
        for i in range(3):
            p(f's_add_u32 s{sT2}, s{sT1}, {3072*i}')
            p(f'buffer_store_dwordx4 v[{PA+16*mat+4*i}:{PA+16*mat+4*i+3}], v{t0}, s[{sr}:{sr+3}], s{sT2} offen sc1')
    p(f's_cmp_lg_u32 s{sW}, 1')
    p(f's_cbranch_scc1 {name}_ns3')
    p(f's_add_u32 s{sT2}, s{sT1}, 9216')
    for mat, sr in enumerate((S_H, S_OUT)):
        p(f'buffer_store_dwordx4 v[{PA+16*mat+12}:{PA+16*mat+15}], v{t0}, s[{sr}:{sr+3}], s{sT2} offen sc1')
    p('v_cmp_gt_u32 vcc, 8, v0')
    p('s_nop 1')
    p('s_and_saveexec_b64 s[14:15], vcc')
    p(f'v_lshlrev_b32 v{t1}, 2, v{vTokG}')
    p(f's_mov_b32 s{sT0}, 8192')
    p(f'buffer_store_dword v{mb_}, v{t1}, s[{S_ST}:{S_ST+3}], s{sT0} offen sc1')
    p(f's_mov_b32 s{sT0}, 16384')
    p(f'buffer_store_dword v{sd}, v{t1}, s[{S_ST}:{S_ST+3}], s{sT0} offen sc1')
    p('s_mov_b64 exec, s[14:15]')
    p.label(f'{name}_ns3')
    p('s_waitcnt vmcnt(0) lgkmcnt(0)')
    p(f'v_mov_b32 v{t0}, {RB}')
    p(f'v_mov_b32 v{t1}, 1')
    p('v_cmp_eq_u32 vcc, 0, v0')
    p('s_nop 1')
    p('s_and_saveexec_b64 s[14:15], vcc')
    p(f'ds_add_rtn_u32 v{t1}, v{t0}, v{t1} offset:516')
    p('s_waitcnt lgkmcnt(0)')
    p('s_mov_b64 exec, s[14:15]')
    p(f'v_readfirstlane_b32 s{sT0}, v{t1}')
    p('s_nop 3')
    p(f's_cmp_lg_u32 s{sT0}, 2')
    p(f's_cbranch_scc1 {name}_w3')
    p(f's_lshl_b32 s{sT0}, s2, 2')
    p(f's_add_u32 s{sT0}, s{sT0}, {O_RDY}')
    p(f'v_mov_b32 v{t0}, 0')
    p(f'v_mov_b32 v{t1}, s{sTag}')
    p(f'buffer_store_dword v{t1}, v{t0}, s[{S_ST}:{S_ST+3}], s{sT0} offen sc1')
    p.label(f'{name}_w3')
    p(f's_cmp_ge_u32 s{sFj}, {NFFN}')
    p(f's_cbranch_scc1 {name}_fin')
    p(f's_branch {name}_w4')
    p.label(f'{name}_w0poll')
    Lk = p.nl(name + '_pollK')
    p(f's_mov_b32 s{sT1}, 0')
    p(f's_mov_b32 s{sT0}, {O_KEYS}')
    p(f'v_lshlrev_b32 v28, 5, v0')
    p.label(Lk)
    p(f'buffer_load_dwordx4 v[20:23], v28, s[{S_ST}:{S_ST+3}], s{sT0} offen sc1')
    p(f'buffer_load_dwordx4 v[24:27], v28, s[{S_ST}:{S_ST+3}], s{sT0} offen offset:16 sc1')
    p('s_waitcnt vmcnt(0)')
    p(f'v_xor_b32 v21, s{sTag}, v21')
    p(f'v_xor_b32 v23, s{sTag}, v23')
    p(f'v_xor_b32 v25, s{sTag}, v25')
    p(f'v_xor_b32 v27, s{sTag}, v27')
    p(f'v_or3_b32 v21, v21, v23, v25')
    p(f'v_or_b32 v21, v21, v27')
    p(f'v_cmp_ne_u32 vcc, 0, v21')
    p(f's_add_u32 s{sT1}, s{sT1}, 1')
    p(f's_cbranch_vccz {Lk}_ok')
    p(f's_cmp_ge_u32 s{sT1}, {SPIN}')
    p(f's_cbranch_scc1 {Lk}_ok')
    p('s_sleep 1')
    p(f's_branch {Lk}')
    p.label(Lk + '_ok')
    (p.stamp('argmax ready') if 'ln' not in opt else None)
    p(f'v_max_u32 v20, v20, v22')
    p(f'v_max_u32 v24, v24, v26')
    p('s_nop 0')
    p(f'v_max_u32 v20, v20, v24')
    for sh in (8, 4, 2, 1):
        p('s_nop 1')
        p(f'v_max_u32_dpp v20, v20, v20 row_ror:{sh} row_mask:0xf bank_mask:0xf')
    for sw in ('v_permlane16_swap_b32', 'v_permlane32_swap_b32'):
        p(f'v_mov_b32 v21, v20')
        p('s_nop 1')
        p(f'{sw} v20, v21')
        p('s_nop 1')
        p(f'v_max_u32 v20, v20, v21')
    p(f'v_mov_b32 v21, {RB}')
    p(f'ds_write_b32 v21, v20 offset:512')
    p('s_waitcnt lgkmcnt(0)')
    p.label(f'{name}_w4')
    p('s_barrier')
    p(f'v_mov_b32 v21, {RB}')
    p(f'ds_read_b32 v20, v21 offset:512')
    p('s_waitcnt lgkmcnt(0)')
    p(f'v_readfirstlane_b32 s{sR}, v20')
    p('s_nop 4')
    p(f's_and_b32 s{sIdx}, s{sR}, 0xffff')
    p(f's_sub_u32 s{sIdx}, 0xffff, s{sIdx}')
    p(f's_min_u32 s{sIdx}, s{sIdx}, 2047')
    p(f's_lshr_b32 s{sR}, s{sR}, 16')
    p(f's_xor_b32 s{sT0}, s{sR}, 0xffff')
    p(f's_and_b32 s{sT1}, s{sR}, 0x7fff')
    p(f's_bitcmp1_b32 s{sR}, 15')
    p(f's_cselect_b32 s{sR}, s{sT1}, s{sT0}')
    p(f's_lshl_b32 s{sR}, s{sR}, 16')
    p(f's_lshr_b32 s{sT0}, s{sIdx}, 7')
    p(f's_bfe_u32 s{sT1}, s{sIdx}, 0x40003')
    p(f's_lshr_b32 s{sT2}, s{sT1}, 2')
    p(f's_lshl_b32 s{sT2}, s{sT2}, 1')
    p(f's_lshr_b32 s14, s{sT0}, 3')
    p(f's_add_u32 s{sT2}, s{sT2}, s14')
    p(f's_and_b32 s{sT1}, s{sT1}, 3')
    p(f's_lshl_b32 s{sT1}, s{sT1}, 3')
    p(f's_and_b32 s{sT0}, s{sT0}, 7')
    p(f's_add_u32 s{sT1}, s{sT1}, s{sT0}')
    p(f's_lshl_b32 s{sT1}, s{sT1}, 3')
    p(f's_add_u32 s{sT1}, s{sT1}, s{sT2}')
    p(f's_lshl_b32 s{sT1}, s{sT1}, 2')
    p(f's_add_u32 s{sT0}, s{sT1}, {O_RDY}')
    Lr = p.nl(name + '_pollR')
    p(f's_mov_b32 s{sT1}, 0')
    p(f'v_mov_b32 v{t0}, 0')
    p.label(Lr)
    p(f'buffer_load_dword v{t1}, v{t0}, s[{S_ST}:{S_ST+3}], s{sT0} offen sc1')
    p('s_waitcnt vmcnt(0)')
    p(f'v_readfirstlane_b32 s{sT2}, v{t1}')
    p(f's_add_u32 s{sT1}, s{sT1}, 1')
    p(f's_cmp_eq_u32 s{sT2}, s{sTag}')
    p(f's_cbranch_scc1 {Lr}_ok')
    p(f's_cmp_ge_u32 s{sT1}, {SPIN}')
    p(f's_cbranch_scc1 {Lr}_ok')
    p(f's_branch {Lr}')
    p.label(Lr + '_ok')
    tid = 2
    p(f's_lshl_b32 s{sT0}, s{sW}, 6')
    p(f'v_add_u32 v{tid}, s{sT0}, v0')
    p(f'v_lshlrev_b32 v3, 4, v{tid}')
    p(f's_mul_i32 s{sT1}, s{sIdx}, 1280')
    p(f'buffer_load_dwordx4 v[20:23], v3, s[{S_H}:{S_H+3}], s{sT1} offen sc1')
    p(f's_lshl_b32 s{sT0}, s{sIdx}, 2')
    p(f'v_mov_b32 v4, s{sT0}')
    p(f's_mov_b32 s{sT0}, 8192')
    p(f'buffer_load_dword v{mb_}, v4, s[{S_ST}:{S_ST+3}], s{sT0} offen sc1')
    p(f's_mov_b32 s{sT0}, 16384')
    p(f'buffer_load_dword v{sd}, v4, s[{S_ST}:{S_ST+3}], s{sT0} offen sc1')
    p('s_waitcnt vmcnt(0)')
    p(f'v_rcp_f32 v{sm}, v{sd}')
    for k in range(4):
        p(f'v_lshlrev_b32 v{t0}, 16, v{20+k}')
        p(f'v_and_b32 v{t1}, 0xffff0000, v{20+k}')
        p(f'v_sub_f32 v{t0}, v{t0}, v{mb_}')
        p(f'v_sub_f32 v{t1}, v{t1}, v{mb_}')
        p(f'v_cvt_pk_bf16_f32 v{t0}, v{t0}, v{t1}')
        p(f'v_and_b32 v{t1}, 0xffff0000, v{t0}')
        p(f'v_lshlrev_b32 v{t0}, 16, v{t0}')
        p(f'v_mul_f32 v{t0}, v{t0}, v{sm}')
        p(f'v_mul_f32 v{t1}, v{t1}, v{sm}')
        p(f'v_cvt_pk_bf16_f32 v{24+k}, v{t0}, v{t1}')
    HNL = STH
    p(f'v_cmp_gt_u32 vcc, 80, v{tid}')
    p('s_nop 1')
    p('s_and_saveexec_b64 s[14:15], vcc')
    p(f's_cbranch_execz {name}_h1')
    p(f'v_add_u32 v4, {HNL}, v3')
    p(f'ds_write_b128 v4, v[24:27]')
    p(f'ds_write_b128 v4, v[20:23] offset:1280')
    p.label(f'{name}_h1')
    p('s_mov_b64 exec, s[14:15]')
    p('s_waitcnt lgkmcnt(0)')
    p('s_barrier')
    p(f'v_lshrrev_b32 v5, 4, v0')
    p(f's_mul_i32 s{sT0}, s{sW}, 320')
    p(f's_add_u32 s{sT0}, s{sT0}, {HNL}')
    p(f'v_lshlrev_b32 v6, 4, v5')
    p(f'v_add_u32 v6, s{sT0}, v6')
    p(f'v_bfe_u32 v7, v0, 2, 2')
    p(f'v_lshl_add_u32 v7, v5, 3, v7')
    p(f'v_lshlrev_b32 v7, 6, v7')
    p(f'v_and_b32 v8, 3, v0')
    p(f'v_lshl_add_u32 v7, v8, 3, v7')
    p(f's_mul_i32 s{sT0}, s{sW}, {5*32*64}')
    p(f'v_add_u32 v7, s{sT0}, v7')
    AF = 28
    BF = 48
    D = 130
    for k in range(5): p(f'ds_read_b128 v[{AF+4*k}:{AF+4*k+3}], v6 offset:{64*k}')
    for k in range(5):
        b = BF + 16*(k % 4)
        for mat in range(2):
            for cb in range(2):
                for h in range(2):
                    r = b + (mat*2 + cb)*4 + 2*h
                    p(f'ds_read_b64_tr_b16 v[{r}:{r+1}], v7 offset:{mat*40960 + k*2048 + h*256 + cb*32}')
        p('s_waitcnt lgkmcnt(0)')
        for t in range(4):
            c = '0' if k == 0 else f'v[{D+4*t}:{D+4*t+3}]'
            p(f'{MF} v[{D+4*t}:{D+4*t+3}], v[{AF+4*k}:{AF+4*k+3}], v[{b+4*t}:{b+4*t+3}], {c}')
    p('s_nop 7')
    XB = RB + 1024
    p(f'v_and_b32 v8, 15, v0')
    p(f'v_lshlrev_b32 v8, 2, v8')
    p(f's_lshl_b32 s{sT0}, s{sW}, 8')
    p(f's_add_u32 s{sT0}, s{sT0}, {XB}')
    p(f'v_add_u32 v9, s{sT0}, v8')
    for t in range(4): p(f'ds_write_b32 v9, v{D+4*t} offset:{64*t}')
    p('s_waitcnt lgkmcnt(0)')
    p('s_barrier')
    p(f'v_and_b32 v8, 31, v0')
    p(f'v_lshlrev_b32 v8, 2, v8')
    p(f'v_add_u32 v8, {XB}, v8')
    for w in range(4):
        p(f'ds_read_b32 v{20+w}, v8 offset:{256*w}')
        p(f'ds_read_b32 v{24+w}, v8 offset:{256*w+128}')
    p('s_waitcnt lgkmcnt(0)')
    for b in (20, 24):
        p(f'v_add_f32 v{b}, v{b}, v{b+1}')
        p(f'v_add_f32 v{b+2}, v{b+2}, v{b+3}')
        p(f'v_add_f32 v{b}, v{b}, v{b+2}')
    g_, u_ = 20, 24
    for x in rne_keep(g_, g_): p(x)
    for x in rne_keep(u_, u_): p(x)
    p(f'v_mul_f32 v{t1}, 0xbfb8aa3b, v{g_}')
    p(f'v_exp_f32 v{t1}, v{t1}')
    p('s_nop 0')
    p(f'v_add_f32 v{t1}, 1.0, v{t1}')
    p(f'v_rcp_f32 v{t1}, v{t1}')
    p('s_nop 0')
    p(f'v_mul_f32 v{g_}, v{g_}, v{t1}')
    for x in rne_keep(g_, g_): p(x)
    p(f'v_mul_f32 v{g_}, v{g_}, v{u_}')
    p(f'v_cvt_pk_bf16_f32 v{g_}, v{g_}, v{g_}')
    AB = RB + 2048
    p(f's_lshl_b32 s{sT0}, s{sW}, 6')
    p(f's_add_u32 s{sT0}, s{sT0}, {AB}')
    p(f'v_and_b32 v8, 31, v0')
    p(f'v_lshlrev_b32 v8, 1, v8')
    p(f'v_add_u32 v8, s{sT0}, v8')
    p(f'ds_write_b16 v8, v{g_}')
    p(f'v_lshlrev_b32 v9, 4, v5')
    p(f'v_add_u32 v9, s{sT0}, v9')
    p('s_waitcnt lgkmcnt(0)')
    p(f'ds_read_b128 v[{AF}:{AF+3}], v9')
    p(f'v_bfe_u32 v7, v0, 2, 2')
    p(f'v_lshl_add_u32 v7, v5, 3, v7')
    p(f'v_mul_u32_u24 v7, 1280, v7')
    p(f'v_and_b32 v8, 3, v0')
    p(f'v_lshl_add_u32 v7, v8, 3, v7')
    p(f's_mul_i32 s{sT0}, s{sW}, 320')
    p(f's_add_u32 s{sT0}, s{sT0}, 81920')
    p(f'v_add_u32 v7, s{sT0}, v7')
    for mb in range(10):
        for h in range(2):
            r = BF + 4*mb + 2*h
            p(f'ds_read_b64_tr_b16 v[{r}:{r+1}], v7 offset:{h*5120 + mb*32}')
    p('s_waitcnt lgkmcnt(0)')
    Y = 130
    for mb in range(10): p(f'{MF} v[{Y+4*mb}:{Y+4*mb+3}], v[{AF}:{AF+3}], v[{BF+4*mb}:{BF+4*mb+3}], 0')
    p('s_nop 7')
    for i in range(3):
        dst = 20 + i
        p(f'v_mov_b32 v{dst}, v{Y+4*min(4*i, 9)}')
        for g in range(1, 4):
            mb = 4*i + g
            if mb < 10:
                p(f'v_cmp_eq_u32 vcc, {g}, v5')
                p('s_nop 1')
                p(f'v_cndmask_b32 v{dst}, v{dst}, v{Y+4*mb}, vcc')
    p(f's_and_b32 s{sT0}, s{sFj}, 7')
    p(f's_mul_i32 s{sT0}, s{sT0}, 2560')
    p(f's_add_u32 s{sT0}, s{sT0}, {WS_YACC - WS_STAT}')
    p(f's_mul_i32 s{sT1}, s{sW}, 640')
    p(f's_add_u32 s{sT0}, s{sT0}, s{sT1}')
    p(f'v_lshlrev_b32 v8, 2, v0')
    p(f'buffer_atomic_add_f32 v20, v8, s[{S_ST}:{S_ST+3}], s{sT0} offen')
    p(f'buffer_atomic_add_f32 v21, v8, s[{S_ST}:{S_ST+3}], s{sT0} offen offset:256')
    p('v_cmp_gt_u32 vcc, 32, v0')
    p('s_nop 1')
    p('s_and_saveexec_b64 s[14:15], vcc')
    p(f'buffer_atomic_add_f32 v22, v8, s[{S_ST}:{S_ST+3}], s{sT0} offen offset:512')
    p('s_mov_b64 exec, s[14:15]')
    p('s_waitcnt vmcnt(0)')
    p('s_barrier')
    (p.stamp('ffn atomics done') if 'ln' not in opt else None)
    p(f's_cmp_lg_u32 s{sW}, 0')
    p(f's_cbranch_scc1 {name}_w5')
    p(f's_lshl_b32 s{sT0}, s{sFj}, 2')
    p(f's_add_u32 s{sT0}, s{sT0}, {O_FF}')
    p(f'v_mov_b32 v{t0}, 0')
    p(f'v_mov_b32 v{t1}, s{sTag}')
    p('v_cmp_eq_u32 vcc, 0, v0')
    p('s_nop 1')
    p('s_and_saveexec_b64 s[14:15], vcc')
    p(f'buffer_store_dword v{t1}, v{t0}, s[{S_ST}:{S_ST+3}], s{sT0} offen sc1')
    p('s_mov_b64 exec, s[14:15]')
    p.label(f'{name}_w5')
    p(f's_cmp_lg_u32 s{sFj}, 0')
    p(f's_cbranch_scc1 {name}_fin')
    Lf = p.nl(name + '_pollF')
    p(f's_mov_b32 s{sT1}, 0')
    p(f's_mov_b32 s{sT0}, {O_FF}')
    p(f'v_lshlrev_b32 v{t0}, 2, v0')
    p(f'v_cmp_gt_u32 s[14:15], {NFFN}, v0')
    p.label(Lf)
    p(f'buffer_load_dword v{t1}, v{t0}, s[{S_ST}:{S_ST+3}], s{sT0} offen sc1')
    p('s_waitcnt vmcnt(0)')
    p(f'v_cmp_ne_u32 vcc, s{sTag}, v{t1}')
    p(f's_add_u32 s{sT1}, s{sT1}, 1')
    p('s_nop 0')
    p('s_and_b64 vcc, vcc, s[14:15]')
    p(f's_cbranch_vccz {Lf}_ok')
    p(f's_cmp_ge_u32 s{sT1}, {SPIN}')
    p(f's_cbranch_scc1 {Lf}_ok')
    p('s_sleep 1')
    p(f's_branch {Lf}')
    p.label(Lf + '_ok')
    p(f'v_lshlrev_b32 v8, 2, v{tid}')
    GW = 20
    for i in range(3):
        for c in range(8):
            p(f's_mov_b32 s{sT0}, {WS_YACC - WS_STAT + c*2560 + i*1024}')
            p(f'buffer_load_dword v{GW+8*i+c}, v8, s[{S_ST}:{S_ST+3}], s{sT0} offen sc0 sc1')
    p(f'v_lshlrev_b32 v9, 1, v{tid}')
    p(f'v_add_u32 v10, {HNL}, v9')
    for i in range(3):
        p(f'ds_read_u16 v{50+i}, v10 offset:{512*i}')
        p(f'ds_read_u16 v{54+i}, v10 offset:{1280 + 512*i}')
    p(f'v_mov_b32 v{t1}, s{sR}')
    p(f'v_mul_f32 v{t1}, 0xbfb8aa3b, v{t1}')
    p(f'v_exp_f32 v{t1}, v{t1}')
    p('s_nop 0')
    p(f'v_add_f32 v{t1}, 1.0, v{t1}')
    p(f'v_rcp_f32 v{t1}, v{t1}')
    p('s_nop 0')
    for x in rne_keep(t1, t1): p(x)
    p('s_waitcnt vmcnt(0) lgkmcnt(0)')
    p(f's_mul_i32 s{sT1}, s{sIdx}, 1280')
    for i in range(3):
        b = GW + 8*i
        for c in range(1, 8): p(f'v_add_f32 v{b}, v{b}, v{b+c}')
        for x in rne_keep(b, b): p(x)
        p(f'v_mul_f32 v{b}, v{b}, v{t1}')
        for x in rne_keep(b, b): p(x)
        p(f'v_lshlrev_b32 v{50+i}, 16, v{50+i}')
        p(f'v_lshlrev_b32 v{54+i}, 16, v{54+i}')
        p(f'v_add_f32 v{b}, v{b}, v{50+i}')
        for x in rne_keep(b, b): p(x)
        p(f'v_add_f32 v{b}, v{b}, v{54+i}')
        p(f'v_cvt_pk_bf16_f32 v{b}, v{b}, v{b}')
    p(f'buffer_store_short v{GW}, v9, s[{S_OUT}:{S_OUT+3}], s{sT1} offen sc1')
    p(f'buffer_store_short v{GW+8}, v9, s[{S_OUT}:{S_OUT+3}], s{sT1} offen offset:512 sc1')
    p(f'v_cmp_gt_u32 vcc, 128, v{tid}')
    p('s_nop 1')
    p('s_and_saveexec_b64 s[14:15], vcc')
    p(f's_cbranch_execz {name}_x')
    p(f'buffer_store_short v{GW+16}, v9, s[{S_OUT}:{S_OUT+3}], s{sT1} offen offset:1024 sc1')
    p.label(f'{name}_x')
    p('s_mov_b64 exec, s[14:15]')
    p.label(f'{name}_fin')
    p.dump_stamps(12, 101*MiB, 13)
    p.label(f'{name}_tdone')
    nerr = 0
    return nerr
```

```python
from common import *
from gx2 import *
from sched import *
from k1b import w_tile_setup, MF
from lnops import *
WS_FLG = 82*MiB

CTX_FLAGS = 'sc1'
LIM = 0x5d800000
NEGBIG = 0xff800000
opt_idx = [0]
TW, TF, PE = False, True, True
FP = 'S'
PREFETCH = True

def gen_kf(name='front_kernel', prof=False, opt=()):
    p = P2(); p.prof = prof
    p.lenient = 'nordsA' in opt
    p.dbgmode = 'dbg' in opt
    p.stampset = set(['start', 'phase A done', 'q end', 'attn prologue done', 'L done', 'ctx ready', 'gemm end', 'key out', 'argmax ready', 'ffn atomics done'])
    if 'tr' in opt: p.stampset = set(['start', 'q end', 'pre check', 'kv ok', 'qk0 done', 'attn prologue done', 'L done', 'tail setup', 'ctx pub', 'ctx ready'])
    if 'tl' in opt: p.stampset = set(['start', 'L done', 'ctx ready', 'gemm end', 'signalled', 'partials ready', 'partials loaded', 'key out', 'argmax ready', 'ffn atomics done'])
    put = make_put(p)
    S_WQ, S_XNF, S_KF, S_VF, S_CTX = 16, 20, 24, 28, 32
    sM = 36
    sW, sH, sI = 44, 45, 46
    sT0, sT1, sT2 = 47, 48, 49
    sLW = 50
    sWoff = 51
    sXL, sXS = 52, 53
    sKb, sVb = 54, 55
    sHbase = 56
    sSlotP, sSlotR = 57, 58
    sTL, sTS = 59, 60
    sCnt = 61
    sDd = 62
    sFlag = 63
    sCtx = 64
    sLim = 65
    sScale = 61
    sSel = 4
    vLane16 = 1; vRd = 2; vNinf = 3
    vOffW = 4
    vLPW = 8; vT = 9
    vNeg = 16; vCi = 32; vS = 48; vP = 80; vE = 112; vL = 116; vU = 120
    vCW = 120
    vWF = 48
    vO = 128
    aQ = 0; aK = 64; aV = 96; aX = 128
    O = lambda c, db: vO + 32*c + 4*db
    Sr = lambda sc, kb: vS + 8*sc + 4*kb
    Pr = lambda par, c: vP + 16*par + 4*c
    NSLOT = 5

    S_CKV, S_X, S_DBG = 4, 8, 88
    S_WUK, S_WUV = 36, 40
    S_FL = 68
    sTag = 3
    sXcc = 67; sSame = 66
    sASum = sFlag
    sAoff = sDd; sWr = sCtx; sAr = sLim; sWp = sKb; sAp = sVb; sKst = sSlotP
    vOffA = 16
    vLPA = 20; vCA = 21
    vWK = 32; vWV = 64; vAct = 128
    SPIN = 1 << 16
    p(f's_cmp_ge_u32 s2, 256')
    p(f's_cbranch_scc1 {name}_done')
    p.stamp('start')
    p(f's_load_dwordx2 s[84:85], s[0:1], {ARG["x"]}')
    p(f's_load_dwordx2 s[86:87], s[0:1], {ARG["ckv"]}')
    p(f's_load_dwordx4 s[88:91], s[0:1], {ARG["wuk"]}')
    p(f's_load_dwordx2 s[92:93], s[0:1], {ARG["wq"]}')
    p(f's_load_dwordx4 s[96:99], s[0:1], {ARG["dbg"]}')
    p('s_and_b32 s14, s2, 7')
    p('s_lshr_b32 s15, s2, 3')
    p(f's_lshr_b32 s{sH}, s15, 3')
    p(f's_lshl_b32 s14, s14, 2')
    p(f's_add_u32 s{sH}, s{sH}, s14')
    p(f's_and_b32 s{sI}, s15, 7')
    p('v_lshrrev_b32 v2, 6, v0')
    p('v_and_b32 v0, 63, v0')
    p(f'v_readfirstlane_b32 s{sW}, v2')
    p(f'v_lshlrev_b32 v{vLane16}, 4, v0')
    p(f's_getreg_b32 s{sXcc}, hwreg(HW_REG_XCC_ID, 0, 4)')
    w_tile_setup(p, vOffW, vLPW, vT)
    p(f'v_lshrrev_b32 v{vT}, 3, v0')
    p(f'v_lshlrev_b32 v{vT}, 10, v{vT}')
    p(f'v_lshrrev_b32 v{vT+1}, 4, v0')
    p(f'v_and_b32 v{vT+2}, 7, v0')
    p(f'v_xor_b32 v{vT+2}, v{vT+2}, v{vT+1}')
    p(f'v_lshl_add_u32 v{vOffA}, v{vT+2}, 4, v{vT}')
    p(f'v_xor_b32 v{vT+3}, 4, v{vT+2}')
    p(f'v_lshl_add_u32 v{vOffA+1}, v{vT+3}, 4, v{vT}')
    p(f'v_add_u32 v{vOffA+2}, {2*7168}, v{vOffA}')
    p(f'v_add_u32 v{vOffA+3}, {3*7168}, v{vOffA+1}')
    p(f'v_add_u32 v{vOffA+1}, {1*7168}, v{vOffA+1}')
    p(f'v_and_b32 v{vT}, 15, v0')
    p(f'v_bfe_u32 v{vT+1}, v0, 1, 3')
    p(f'v_lshrrev_b32 v{vT+2}, 4, v0')
    p(f'v_xor_b32 v{vT+1}, v{vT+1}, v{vT+2}')
    p(f'v_lshlrev_b32 v{vT}, 7, v{vT}')
    p(f'v_lshl_add_u32 v{vLPA}, v{vT+1}, 4, v{vT}')
    p(f's_lshl_b32 s{sLW}, s{sW}, 12')
    p(f's_lshl_b32 s{sWoff}, s{sW}, 17')
    p(f's_lshl_b32 s{sT1}, s{sH}, 8')
    p(f's_add_u32 s{sWoff}, s{sWoff}, s{sT1}')
    p(f's_lshl_b32 s{sT0}, s{sI}, 8')
    p(f's_lshl_b32 s{sT1}, s{sW}, 6')
    p(f's_add_u32 s{sT0}, s{sT0}, s{sT1}')
    p(f's_lshl_b32 s{sAoff}, s{sT0}, 10')
    sK0 = sXL; sLA = sXS
    p(f's_lshl_b32 s{sHbase}, s{sH}, 6')
    p(f's_lshr_b32 s{sT1}, s{sT0}, 5')
    p(f's_add_u32 s{sHbase}, s{sHbase}, s{sT1}')
    p(f's_lshl_b32 s{sHbase}, s{sHbase}, 13')
    p(f's_lshl_b32 s{sLA}, s{sW}, 13')
    p('s_waitcnt lgkmcnt(0)')
    srd(p, S_CKV, 86, 2048*512*2)
    srd(p, S_WUK, 88, 512*4096*2)
    srd(p, S_WUV, 90, 512*4096*2)
    SL = 16384
    ACT0 = 98304
    def emit(L):
        prev = None
        for it in L:
            if it[0] == 'm' and prev is not None and prev[0] == 's' and ' m0,' in prev[1]: put(('s', 's_nop 0'))
            put(it); prev = it
    def dmaW_static(st):
        base = (st % 3)*32768; L = []
        for mi, sr in enumerate((S_WUK, S_WUV)):
            L += [('s', f's_add_u32 s{sT0}, s{sWoff}, {st*64*8192}'), ('s', f's_add_u32 m0, s{sLW}, {base + mi*SL}')]
            for i in range(4): L.append(('m', f'buffer_load_dwordx4 v{vOffW+i}, s[{sr}:{sr+3}], s{sT0} offen offset:{1024*i} lds', f'W{st}', ('W', base + mi*SL, base + (mi+1)*SL, True)))
        return L
    def dmaA_static(st):
        base = ACT0 + (st % 2)*32768; L = []
        for half in range(2):
            L += [('s', f's_add_u32 s{sT1}, s{sAoff}, {st*128 + 32768*half}'), ('s', f's_add_u32 m0, s{sLA}, {base + 4096*half}')]
            for i in range(4): L.append(('m', f'buffer_load_dwordx4 v{vOffA+i}, s[{S_CKV}:{S_CKV+3}], s{sT1} offen offset:{1024*i} lds', f'A{st}', ('W', base, base + 32768, False)))
        return L
    if 'pp' in opt: p.stamp('setup')
    emit(dmaA_static(0)); emit(dmaW_static(0))
    if 'pp' in opt: p.stamp('A0W0 issued')
    srd(p, S_X, 84, 2048*640*2)
    srd(p, S_WQ, 92, 640*4096*2)
    srd(p, S_XNF, 98, SZ_XNF, WS_XNF)
    srd(p, S_KF, 98, SZ_KF, WS_KF)
    srd(p, S_VF, 98, SZ_KF, WS_VF)
    srd(p, S_CTX, 98, SZ_CTX, WS_CTX)
    srd(p, S_FL, 98, 8192, WS_FLG)
    X = 160; RAW = 200; vXo = 220; vXn = 221; LT = 224
    p(f's_lshl_b32 s{sT1}, s2, 3')
    p(f's_and_b32 s14, s{sW}, 1')
    p(f's_lshl_b32 s14, s14, 2')
    p(f's_add_u32 s{sT1}, s{sT1}, s14')
    p(f'v_and_b32 v{vT}, 3, v0')
    p(f'v_add_u32 v{vT}, s{sT1}, v{vT}')
    p(f'v_lshrrev_b32 v{vT+1}, 2, v0')
    p(f'v_mul_u32_u24 v{vXo}, 1280, v{vT}')
    p(f'v_lshl_add_u32 v{vXo}, v{vT+1}, 4, v{vXo}')
    p(f'v_lshrrev_b32 v{vXn}, 4, v{vT}')
    p(f'v_mul_u32_u24 v{vXn}, 20, v{vXn}')
    p(f'v_lshrrev_b32 v{vT+2}, 2, v{vT+1}')
    p(f'v_add_u32 v{vXn}, v{vXn}, v{vT+2}')
    p(f'v_lshlrev_b32 v{vXn}, 10, v{vXn}')
    p(f'v_and_b32 v{vT+2}, 3, v{vT+1}')
    p(f'v_lshlrev_b32 v{vT+2}, 4, v{vT+2}')
    p(f'v_and_b32 v{vT+3}, 15, v{vT}')
    p(f'v_add_u32 v{vT+2}, v{vT+2}, v{vT+3}')
    p(f'v_lshl_add_u32 v{vXn}, v{vT+2}, 4, v{vXn}')
    for i in range(5):
        p(f'buffer_load_dwordx4 v[{RAW+4*i}:{RAW+4*i+3}], v{vXo}, s[{S_X}:{S_X+3}], 0 offen offset:{256*i}')
    S_LNS = 96
    if 'nocode' not in opt:
        p(f's_lshr_b32 s14, s2, 3')
        p(f's_cmp_ge_u32 s14, 12')
        p(f's_cbranch_scc1 {name}_nocode')
        p(f's_cmp_lg_u32 s{sW}, 3')
        p(f's_cbranch_scc1 {name}_nocode')
        p('s_getpc_b64 s[76:77]')
        p.label(f'{name}_pc')
        p(f's_lshl_b32 s14, s14, 13')
        p(f'v_lshlrev_b32 v{vT}, 7, v0')
        p(f'v_add_u32 v{vT}, s14, v{vT}')
        p(f'v_min_u32 v{vT}, code_end_all-{name}_pc-4, v{vT}')
        p(f'v_and_b32 v{vT}, -4, v{vT}')
        p(f'global_load_dword v{vT+2}, v{vT}, s[76:77]')
        p.label(f'{name}_nocode')
    if 'notlb' not in opt:
        p('s_mov_b32 s76, s98'); p('s_mov_b32 s77, s99'); p(f's_mov_b32 s78, {96*MiB}'); p('s_mov_b32 s79, 0x00020000')
        p(f'v_mov_b32 v{vT}, {WS_FLG}')
        p(f's_add_u32 s14, s{sHbase}, {WS_KF}'); p(f'v_writelane_b32 v{vT}, s14, 1')
        p(f's_add_u32 s14, s{sHbase}, {WS_VF}'); p(f'v_writelane_b32 v{vT}, s14, 2')
        p(f's_lshl_b32 s15, s{sH}, 19')
        for k in range(2):
            p(f's_add_u32 s14, s15, {WS_KF + k*524160}'); p(f'v_writelane_b32 v{vT}, s14, {3 + 2*k}')
            p(f's_add_u32 s14, s15, {WS_VF + k*524160}'); p(f'v_writelane_b32 v{vT}, s14, {4 + 2*k}')
        p(f's_mov_b32 s14, {WS_XNF}'); p(f'v_writelane_b32 v{vT}, s14, 7')
        p(f's_mov_b32 s14, {WS_XNF + 2*MiB}'); p(f'v_writelane_b32 v{vT}, s14, 8')
        p(f's_sub_u32 s14, 15, s{sI}'); p('s_lshl_b32 s14, s14, 20'); p(f's_add_u32 s14, s14, {WS_CTX}'); p(f'v_writelane_b32 v{vT}, s14, 9')
        p(f's_lshl_b32 s14, s{sI}, 20'); p(f's_add_u32 s14, s14, {WS_CTX}'); p(f'v_writelane_b32 v{vT}, s14, 10')
        p(f'buffer_load_dword v{vT+2}, v{vT}, s[76:79], 0 offen')
    if 'pp' in opt: p.stamp('x issued')
    srd(p, S_DBG, 96, 256)
    p('v_mov_b32 v26, 0')
    p('s_or_b32 s14, s2, 0')
    p(f's_add_u32 s14, s2, s{sW}')
    p('s_cmp_lg_u32 s14, 0')
    p(f's_cbranch_scc1 {name}_notag')
    p('s_memrealtime s[92:93]')
    p('s_waitcnt lgkmcnt(0)')
    p('s_or_b32 s92, s92, 1')
    p('v_mov_b32 v24, s92')
    p(f'buffer_store_dword v24, v26, s[{S_DBG}:{S_DBG+3}], 0 offen sc1')
    p.label(f'{name}_notag')
    if 'pp' in opt: p.stamp('tag issued')
    emit(dmaA_static(1)); emit(dmaW_static(1))
    (p.stamp('dma issued') if 'pq' not in opt else None)
    p('s_cmp_lg_u32 s2, 0')
    p(f's_cbranch_scc1 {name}_nz')
    p(f's_add_u32 s76, s98, {WS_YACC}')
    p('s_addc_u32 s77, s99, 0')
    p(f's_mov_b32 s78, {SZ_ZERO}')
    p('s_mov_b32 s79, 0x00020000')
    for r in range(4): p(f'v_mov_b32 v{28+r}, 0')
    p(f's_mul_i32 s14, s{sW}, 7168')
    for i in range(7):
        p(f'buffer_store_dwordx4 v[28:31], v{vLane16}, s[76:79], s14 offen sc1')
        p(f's_add_u32 s14, s14, 1024')
    p.label(f'{name}_nz')
    p(f's_add_u32 s96, s98, {WS_XNF}')
    p('s_addc_u32 s97, s99, 0')
    p(f's_mov_b32 s98, {SZ_XNF}')
    p('s_mov_b32 s99, 0x00020000')
    p(f's_cmp_lt_u32 s{sW}, 2')
    p('s_cselect_b32 s98, s98, 0')
    p('s_waitcnt vmcnt(16)')
    p('s_barrier')
    (p.stamp('B0') if 'pq' not in opt else None)
    def rd_act(buf, kin, tb, lab):
        r = vAct + 16*buf + 4*tb
        return ('r', f'ds_read_b128 v[{r}:{r+3}], v{vCA+kin} offset:{2048*tb}', lab)
    def rd_wA(mi, db, kin, lab):
        r = (vWK if mi == 0 else vWV) + 4*db
        return [('r', f'ds_read_b64_tr_b16 v[{r+2*h}:{r+2*h+1}], v{vCW+db} offset:{mi*SL + 8192*kin + 1024*h}', lab) for h in range(2)]
    updA = [('v', f'v_add_u32 v{vCA}, s{sAr}, v{vLPA}'), ('v', f'v_xor_b32 v{vCA+1}, 64, v{vCA}')]
    updWd = [('v', f'v_add_u32 v{vCW}, s{sWr}, v{vLPW}')] + [('v', f'v_xor_b32 v{vCW+db}, {db*32}, v{vCW}') for db in range(1, 8)]
    KA = lambda tb, db: (tb*8 + db)*4
    VA = lambda tb, db: 128 + ((tb >> 1)*16 + db*2 + (tb & 1))*4
    def stageA_mfmas(first):
        L = []
        for kin in range(2):
            for db in range(8):
                for tb in range(4):
                    a = KA(tb, db); f = vAct + 16*kin + 4*tb
                    c = '0' if (first and kin == 0) else f'a[{a}:{a+3}]'
                    L.append(f'{MF} a[{a}:{a+3}], v[{vWK+4*db}:{vWK+4*db+3}], v[{f}:{f+3}], {c}')
                for tb in range(4):
                    a = VA(tb, db); f = vAct + 16*kin + 4*tb
                    c = '0' if (first and kin == 0) else f'a[{a}:{a+3}]'
                    L.append(f'{MF} a[{a}:{a+3}], v[{f}:{f+3}], v[{vWV+4*db}:{vWV+4*db+3}], {c}')
        return L
    GA = lambda kin, db, m: kin*64 + db*8 + m
    def spread(R, L, g0, g1):
        nm = sum(1 for x in L if x[0] in ('m', 'l', 'st'))
        step = max(1, (g1 - g0) // max(nm, 1))
        g = g0; cnt = 0; prev = None
        for it in L:
            e = max(g, g0 + cnt*step - (2 if it[0] == 's' else 0))
            if it[0] == 'm' and prev is not None and prev[0] == 's' and ' m0,' in prev[1]: e = max(e, gprev + 1)
            g = R.place(it, e, g1); gprev = g; prev = it
            if it[0] in ('m', 'l', 'st'): cnt += 1; g += 1
    def stageA(kind, dmaA_items, dmaB_items, barlabs, next_reads=None, mid=None, first=False, bend=None):
        R = Region(stageA_mfmas(first))
        BG = GA(1, 0, 7)
        R.S[BG].append(('bar', barlabs))
        if mid: R.S[BG].extend(mid)
        if next_reads is None:
            R.S[GA(1, 0, 1)].append(('s', f's_add_u32 s{sWr}, s{sWr}, 32768'))
            R.S[GA(1, 0, 2)].append(('s', f's_cmp_ge_u32 s{sWr}, 98304\ns_cselect_b32 s{sWr}, 0, s{sWr}'))
            R.S[GA(1, 0, 3)].append(('s', f's_sub_u32 s{sAr}, s{sASum}, s{sAr}'))
            R.stream(updA + updWd, GA(1, 0, 4), GA(1, 2, 0))
        else:
            R.stream(next_reads[0], GA(1, 0, 4), GA(1, 2, 0))
        for kin in range(2):
            for db in range(8):
                for mi in range(2):
                    if kin == 0 and db == 0 and mi == 0: continue
                    labs = [f'w{kin}_{mi}_{db}'] + ([f'act{kin}'] if (db == 0 and mi == 0) else [])
                    R.place(('wlg', labs), GA(kin, db, 4*mi) - 1, force=True)
        for db in range(8):
            for mi in range(2):
                rr = rd_wA(mi, db, 1, f'w1_{mi}_{db}')
                e = GA(0, db, 4*mi + 3)
                g = R.place(rr[0], e, GA(1, 0, 0)); R.place(rr[1], min(g + 1, GA(1, 0, 0)), GA(1, 0, 0))
        for tb in range(4): R.place(rd_act(1, 1, tb, 'act1'), GA(0, 1, 1) + 5*tb)
        if next_reads is None:
            for db in range(8):
                for mi in range(2):
                    rr = rd_wA(mi, db, 0, f'n0_{mi}_{db}')
                    e = max(GA(1, db, 4*mi + 3), GA(1, 2, 1))
                    g = R.place(rr[0], e); R.place(rr[1], g + 1)
            for tb in range(4): R.place(rd_act(0, 0, tb, 'nact0'), GA(1, 2, 2) + 5*tb)
        else:
            for (it, e) in next_reads[1]: R.place(it, max(e, GA(1, 2, 1)))
        if 'nodmaA' in opt and kind in ('s0', 's1', 'loop'): dmaA_items = [x for x in dmaA_items if x[0] != 'm']; dmaB_items = [x for x in dmaB_items if x[0] != 'm']
        if 'nowA' in opt and kind in ('s0', 's1', 'loop'):
            for g in range(R.n): R.S[g] = [x for x in R.S[g] if x[0] != 'wlg']
        if 'nordsA' in opt and kind in ('s0', 's1', 'loop'):
            for g in range(R.n): R.M[g] = []; R.S[g] = [x for x in R.S[g] if x[0] != 'wlg']
        spread(R, dmaA_items, 1, BG - 2)
        spread(R, dmaB_items, BG + 1, bend if bend else R.n - 2)
        return R
    def dyn_dmaW():
        L = []
        for mi, sr in enumerate((S_WUK, S_WUV)):
            L += [('s', f's_add_u32 m0, s{sWp}, {mi*SL}')]
            for i in range(4): L.append(('m', f'buffer_load_dwordx4 v{vOffW+i}, s[{sr}:{sr+3}], s{sKst} offen offset:{1024*i} lds', 'Wn', None))
        L += [('s', f's_add_u32 s{sKst}, s{sKst}, {64*8192}'), ('s', f's_add_u32 s{sWp}, s{sWp}, 32768'),
              ('s', f's_cmp_ge_u32 s{sWp}, 98304\ns_cselect_b32 s{sWp}, s{sLW}, s{sWp}')]
        return L
    def dyn_dmaA():
        L = []
        for half in range(2):
            L += [('s', f's_add_u32 s{sT1}, s{sAoff}, {32768*half}'), ('s', f's_add_u32 m0, s{sAp}, {4096*half}')]
            for i in range(4): L.append(('m', f'buffer_load_dwordx4 v{vOffA+i}, s[{S_CKV}:{S_CKV+3}], s{sT1} offen offset:{1024*i} lds', 'An', None))
        L += [('s', f's_add_u32 s{sAoff}, s{sAoff}, 128'), ('s', f's_sub_u32 s{sAp}, s{sASum}, s{sAp}')]
        return L
    p(f's_mov_b32 s{sWr}, 0')
    p(f's_add_u32 s{sAr}, s{sLA}, {ACT0}')
    p(f's_add_u32 s{sWp}, s{sLW}, 65536')
    p(f's_add_u32 s{sAp}, s{sLA}, {ACT0}')
    p(f's_lshl_b32 s{sASum}, s{sAp}, 1')
    p(f's_add_u32 s{sASum}, s{sASum}, 32768')
    p(f's_add_u32 s{sKst}, s{sWoff}, {2*64*8192}')
    p(f's_add_u32 s{sAoff}, s{sAoff}, 256')
    emit(updA + updWd)
    p.lgq = []; p.lg_ret = -1
    for tb in range(4): put(rd_act(0, 0, tb, 'act0'))
    for db in range(8):
        for mi in range(2): emit(rd_wA(mi, db, 0, f'w0_{mi}_{db}'))
    def next_order(R):
        L = []
        for g in range(R.n):
            for it in R.M[g]:
                if it[0] == 'r' and (it[2].startswith('n0_') or it[2] == 'nact0'):
                    L.append('act0' if it[2] == 'nact0' else 'w0_' + it[2][3:])
        return L
    order = [None]
    def relabel():
        p.lgq = list(order[0]); p.lg_ret = -1
    def bar_raw(n):
        if 'nobarA' in opt: return ('w', f's_waitcnt vmcnt({n}) lgkmcnt(0)')
        return ('w', f's_waitcnt vmcnt({n}) lgkmcnt(0)\ns_barrier')
    BG = GA(1, 0, 7)
    def fix_bar(R, n, extra=()):
        R.S[BG] = [bar_raw(n), ('call', lambda: p.lg_all())] + list(extra) + [x for x in R.S[BG] if x[0] != 'bar']
    def red64x4(r):
        L = []
        for sh in (8, 4): L += ['s_nop 1', f'v_add_f32_dpp v{r}, v{r}, v{r} row_ror:{sh} row_mask:0xf bank_mask:0xf']
        for sw in ('v_permlane16_swap_b32', 'v_permlane32_swap_b32'):
            L += [f'v_mov_b32 v{LT+6}, v{r}', 's_nop 1', f'{sw} v{r}, v{LT+6}', 's_nop 1', f'v_add_f32 v{r}, v{r}, v{LT+6}']
        return L
    lnops = []
    for i in range(5): lnops += unpack8(RAW + 4*i, X + 8*i)
    lnops += ln_stream(X, 40, LT, red64x4, scale='0x3e0293ee')
    ln = [('v', x) for x in lnops]
    for i in range(5):
        ln.append(('s', f's_mov_b32 s14, {4096*i}'))
        ln.append(('st', f'buffer_store_dwordx4 v[{X+4*i}:{X+4*i+3}], v{vXn}, s[{S_LNS}:{S_LNS+3}], s14 offen sc1'))
    half = len(ln) // 2
    def tag_read():
        p('s_mov_b32 s14, 0')
        p.label(f'{name}_tagpoll')
        p(f'v_readfirstlane_b32 s{sTag}, v24')
        p('s_add_u32 s14, s14, 1')
        p('s_nop 2')
        p(f's_cmp_lg_u32 s{sTag}, 0')
        p(f's_cbranch_scc1 {name}_notag2')
        p(f's_cmp_ge_u32 s14, {SPIN}')
        p(f's_cbranch_scc1 {name}_notag2')
        p(f'buffer_load_dword v24, v26, s[{S_DBG}:{S_DBG+3}], 0 offen sc1')
        p('s_waitcnt vmcnt(0)')
        p(f's_branch {name}_tagpoll')
        p.label(f'{name}_notag2')
    def pub_ln():
        p(f's_cmp_lg_u32 s{sCnt}, 0')
        p(f's_cbranch_scc1 {name}_nopub')
        p(f's_cmp_lg_u32 s{sW}, 0')
        p(f's_cbranch_scc1 {name}_nopub')
        p(f's_lshl_b32 s14, s2, 3')
        p(f'v_mov_b32 v24, s{sTag}')
        p(f'v_mov_b32 v25, s{sXcc}')
        p('v_mov_b32 v26, 0')
        p(f'buffer_store_dwordx2 v[24:25], v26, s[{S_FL}:{S_FL+3}], s14 offen sc1')
        p.label(f'{name}_nopub')
    R0 = stageA('s0', dyn_dmaW(), dyn_dmaA(), None, first=True, bend=BG + 34)
    fix_bar(R0, 8)
    R0.place(('l', f'buffer_load_dword v24, v26, s[{S_DBG}:{S_DBG+3}], 0 offen sc1', 'TAG'), BG + 1, force=True)
    R0.period = 20; R0.stream(ln[:half], 4, None, pace=lambda k: 4 + (k*120)//half); R0.period = 16
    p.lgq = ['act0']*4 + [f'w0_{mi}_{db}' for db in range(8) for mi in range(2) for _ in range(2)]; p.lg_ret = -1
    put(('wlg', ['w0_0_0', 'act0']))
    R0.emit(p, put); order[0] = next_order(R0)
    R1_ = stageA('s1', dyn_dmaW(), dyn_dmaA(), None, bend=BG + 34)
    fix_bar(R1_, 8, [('call', tag_read)])
    nv = [x for x in ln[half:] if x[0] == 'v']; tail = ln[half + len(nv):]
    R1_.period = 20; g = R1_.stream(ln[half:], 0, None, pace=lambda k: min((k*118)//(len(ln) - half), 200) if ln[half + k][0] == 'v' else BG + 2); R1_.period = 16
    relabel(); put(('wlg', ['w0_0_0', 'act0']))
    R1_.emit(p, put); order[0] = next_order(R1_)
    print('stage0/1 est', R0.total(), R1_.total())
    if 'ps' in opt: p.stamp('stage1 done')
    p(f's_mov_b32 s{sCnt}, 0')
    LA = f'{name}_stageA'
    p.label(LA)
    Rl = stageA('loop', dyn_dmaW(), dyn_dmaA(), None, bend=BG + 34)
    fix_bar(Rl, 8, [('call', pub_ln)])
    Rl.T[Rl.n - 1] += [('s', f's_add_u32 s{sCnt}, s{sCnt}, 1'), ('s', f's_cmp_lt_u32 s{sCnt}, 4')]
    assert 'nordsA' in opt or next_order(Rl) == order[0], 'stage read order must be periodic'
    relabel()
    put(('wlg', ['w0_0_0', 'act0']))
    Rl.emit(p, put)
    print('stageA loop est', Rl.total(), 'overflow', Rl.over)
    p(f's_cbranch_scc1 {LA}')
    if 'pp' not in opt: (p.stamp('A loop done') if 'pq' not in opt else None)
    def dma_wq(c):
        L = [('s', f's_add_u32 s{sT0}, s{sWoff}, {c*64*8192}'), ('s', f's_add_u32 m0, s{sLW}, {c*SL}')]
        for i in range(4):
            L.append(('m', f'buffer_load_dwordx4 v{vOffW+i}, s[{S_WQ}:{S_WQ+3}], s{sT0} offen offset:{1024*i} lds', f'WQ{c}', None))
        return L
    relabel()
    put(('wlg', ['w0_0_0', 'act0']))
    flagld = [('s', f's_sub_u32 s{sTL}, 15, s{sI}'), ('s', f's_mov_b32 s{sTS}, s{sI}'),
              ('v', f'v_and_b32 v24, 15, v0'), ('v', f'v_bfe_u32 v25, v0, 4, 1'),
              ('v', f'v_mov_b32 v26, s{sTL}'), ('v', f'v_mov_b32 v27, s{sTS}'),
              ('v', f'v_cmp_eq_u32 vcc, 0, v25'), ('v', 's_nop 1'), ('v', f'v_cndmask_b32 v26, v27, v26, vcc'),
              ('v', f'v_lshl_add_u32 v24, v26, 4, v24'),
              ('s', f's_and_b32 s14, s{sH}, 3'), ('s', f's_lshl_b32 s14, s14, 6'), ('s', f's_lshr_b32 s15, s{sH}, 2'), ('s', f's_add_u32 s14, s14, s15'),
              ('v', f'v_and_b32 v25, 7, v0'), ('v', f'v_lshlrev_b32 v25, 3, v25'), ('v', f'v_add_u32 v25, s14, v25'),
              ('v', f'v_cmp_gt_u32 vcc, 32, v0'), ('v', 's_nop 1'), ('v', f'v_cndmask_b32 v24, v25, v24, vcc'),
              ('v', f'v_lshlrev_b32 v24, 3, v24'),
              ('l', f'buffer_load_dwordx2 v[28:29], v24, s[{S_FL}:{S_FL+3}], 0 offen sc1', 'FL')]
    R6 = stageA('s6', dma_wq(4) + dma_wq(5), dma_wq(0) + dma_wq(1), None)
    fix_bar(R6, 8)
    R6.stream(flagld, BG + 24)
    R6.emit(p, put)
    order[0] = next_order(R6)
    XR = [16, 96, 32, 80]
    XRING = [('v', 16), ('v', 96), ('v', 32), ('v', 80), ('a', 0), ('a', 16), ('a', 32), ('a', 48)]
    def xreg(ks, c):
        t, b = XRING[ks % 8]
        return f'{t}[{b+4*c}:{b+4*c+3}]'
    def xn_load(ks):
        L = []
        for c in range(4):
            off = ks*1024 + (c & 1)*20480
            sb = sXL if c < 2 else sXS
            L.append(('s', f's_add_u32 s{sT1}, s{sb}, {off & ~4095}'))
            L.append(('l', f'buffer_load_dwordx4 {xreg(ks, c)}, v{vLane16}, s[{S_XNF}:{S_XNF+3}], s{sT1} offen offset:{off & 4095} sc1', f'XN{ks}'))
        return L
    def rd_w(db, kin, base, lab):
        r = vWF + 4*db
        return [('r', f'ds_read_b64_tr_b16 v[{r+2*h}:{r+2*h+1}], v{vCW+db} offset:{8192*kin + 1024*h}', lab, None) for h in range(2)]
    def upd_w(base):
        return [('v', f'v_add_u32 v{vCW}, {base}, v{vLPW}')] + [('v', f'v_xor_b32 v{vCW+db}, {db*32}, v{vCW}') for db in range(1, 8)]
    def lncheck():
        p(f's_cmp_lg_u32 s{sW}, 0')
        p(f's_cbranch_scc1 {name}_lnok')
        p('s_mov_b32 s14, 0')
        p.label(f'{name}_lnpoll')
        p(f'v_cmp_ne_u32 vcc, s{sTag}, v28')
        p('s_add_u32 s14, s14, 1')
        p(f's_cbranch_vccz {name}_lnok2')
        p(f's_cmp_ge_u32 s14, {SPIN}')
        p(f's_cbranch_scc1 {name}_lnok2')
        p(f'buffer_load_dwordx2 v[28:29], v24, s[{S_FL}:{S_FL+3}], 0 offen sc1')
        p('s_waitcnt vmcnt(0)')
        p(f's_branch {name}_lnpoll')
        p.label(f'{name}_lnok2')
        p(f'v_cmp_ne_u32 vcc, s{sXcc}, v29')
        p('s_nop 1')
        p('s_lshr_b64 s[14:15], vcc, 32')
        p('s_cmp_eq_u64 s[14:15], 0')
        p(f's_cselect_b32 s{sSame}, 1, 0')
        p.label(f'{name}_lnok')
    relabel()
    put(('wlg', ['w0_0_0', 'act0']))
    xset = [('s', f's_lshl_b32 s{sT1}, s{sTL}, 3'), ('s', f's_lshl_b32 s{sT0}, s{sW}, 1'), ('s', f's_add_u32 s{sT1}, s{sT1}, s{sT0}'),
            ('s', f's_mul_i32 s{sXL}, s{sT1}, 20480'), ('s', f's_lshl_b32 s{sT1}, s{sTS}, 3'), ('s', f's_add_u32 s{sT1}, s{sT1}, s{sT0}'),
            ('s', f's_mul_i32 s{sXS}, s{sT1}, 20480')]
    def last_use(db):
        r = vWF + 4*db
        if r < 64: return GA(1, (r - vWK)//4, 3)
        return GA(1, (r - vWV)//4, 7)
    nr = []
    for db in range(8):
        for it in rd_w(db, 0, 0, f'w0_{db}'): nr.append((it, last_use(db) + 1))
    R7 = stageA('s7', xset + dma_wq(6) + dma_wq(7), dma_wq(2) + dma_wq(3) + dma_wq(8) + dma_wq(9), None, next_reads=(upd_w(0), nr))
    R7.S[BG] = [('call', lambda: (p('s_waitcnt vmcnt(8) lgkmcnt(0)'), p.lg_all(), lncheck(), p('s_barrier')))] + [x for x in R7.S[BG] if x[0] != 'bar']
    R7.stream(xn_load(0) + xn_load(1), BG + 2)
    R7.stream(xn_load(2), GA(1, 4, 0))
    R7.emit(p, put)
    if 'pp' not in opt: p.stamp('phase A done')
    NKS = 20
    mf = []
    for ks in range(NKS):
        for db in range(8):
            for c in range(4):
                acc = O(c, db)
                cc = '0' if ks == 0 else f'v[{acc}:{acc+3}]'
                mf.append(f'{MF} v[{acc}:{acc+3}], v[{vWF+4*db}:{vWF+4*db+3}], {xreg(ks, c)}, {cc}')
    R = Region(mf)
    G = lambda ks, db, c: ks*32 + db*4 + c
    p.wait_vm('XN0')
    put(('wlg', ['w0_0', 'w0_1']))
    R.S[G(3, 0, 3)].append(('bar', ['WQ2', 'WQ3', 'WQ8', 'WQ9', 'WQ4', 'WQ5', 'WQ6', 'WQ7']))
    for ch in range(9):
        R.stream(upd_w((ch + 1)*SL), G(2*ch + 1, 0, 1), G(2*ch + 1, 2, 0))
    for ks in range(NKS):
        for db in range(0, 8, 2):
            if ks == 0 and db == 0: continue
            R.place(('wlg', [f'w{ks}_{db}', f'w{ks}_{db+1}']), G(ks, db, 0) - 1, force=True)
        if ks: R.place(('wvm', f'XN{ks}'), G(ks, 0, 0) - 2, force=True)
    for ks in range(NKS - 1):
        ch, t = divmod(ks, 2); nxt = ks + 1; nch, nt = divmod(nxt, 2)
        for db in range(8):
            e = G(ks, db, 3)
            if t == 1: e = max(e, G(ks, 2, 1))
            rr = rd_w(db, nt, nch*SL, f'w{nxt}_{db}')
            lat = G(ks + 1, 0, 0) if t == 0 else None
            g = R.place(rr[0], e, lat); R.place(rr[1], g + 1 if t == 1 or db < 7 else g, lat)
    TE = 112
    STF = ''
    for o_ in opt:
        if o_.startswith('stf='): STF = o_[4:]
    sSt = sCtx
    epi = []
    sStB = sHbase
    for kind in range(2):
        for f in range(16):
            if kind == 0:
                tb, k4 = divmod(f, 4); a0 = KA(tb, 2*k4); off = tb*4096 + k4*1024; sr = S_KF
            else:
                b, db = divmod(f, 8); a0 = 128 + (b*16 + db*2)*4; off = b*8192 + db*1024; sr = S_VF
            for k in range(8): epi.append(('v', f'v_accvgpr_read_b32 v{TE+k}, a{a0+k}'))
            for k in range(4): epi.append(('v', f'v_cvt_pk_bf16_f32 v{TE+k}, v{TE+2*k}, v{TE+2*k+1}'))
            epi.append(('s', f's_add_u32 s{sSt}, s{sStB}, {off & ~4095}'))
            epi.append(('st', f'buffer_store_dwordx4 v[{TE}:{TE+3}], v{vLane16}, s[{sr}:{sr+3}], s{sSt} offen offset:{off & 4095} {STF}'))
            if 'nost' in opt: epi.pop()
            epi.append(('s', 's_nop 0'))
    KS_V = int(next((o_[3:] for o_ in opt if o_.startswith('kv=')), '17'))
    g0 = 12; span = G(KS_V, 4, 0) - g0
    gl = R.stream(epi, g0, None, pace=lambda k: g0 + (k*span)//len(epi))
    freed = {}
    for g in range(R.n):
        for it in R.V[g]:
            if it[1].startswith('v_accvgpr_read'): freed[int(it[1].split(' a')[-1])] = g
    gprev = 0
    for ks in range(3, NKS):
        t, b = XRING[ks % 8]
        if t == 'a' and ks < 8: e = max(freed[r] for r in range(b, b + 16)) + 1
        elif ks >= 8: e = G(ks - 8, 7, 3) + 1
        else: e = 0
        e = max(e, gprev + 1, G(max(ks - 7, 0), 0, 0))
        lat = G(ks, 0, 0) - 40 if ks > 3 else G(1, 0, 0)
        gprev = R.stream(xn_load(ks), e, max(lat, e + 8))
    FK, FV = 4096, 5120
    def publish(off, lab, waitlabel):
        p.wait_vm(waitlabel)
        p('s_barrier')
        p(f's_cmp_lg_u32 s{sW}, 0')
        p(f's_cbranch_scc1 {name}_{lab}pub')
        p(f's_cmp_eq_u32 s{sSame}, 1')
        p(f's_cbranch_scc1 {name}_{lab}rel')
        p('buffer_wbl2 sc1')
        p('s_waitcnt vmcnt(0)')
        p.label(f'{name}_{lab}rel')
        p(f's_lshl_b32 s14, s{sH}, 3')
        p(f's_add_u32 s14, s14, s{sI}')
        p(f's_lshl_b32 s14, s14, 2')
        p(f's_add_u32 s14, s14, {off}')
        p(f'v_mov_b32 v12, s{sTag}')
        p('v_mov_b32 v13, 0')
        p(f'buffer_store_dword v12, v13, s[{S_FL}:{S_FL+3}], s14 offen sc1')
        p.label(f'{name}_{lab}pub')
    def flag_load(off, lab):
        return [('s', f's_lshl_b32 s15, s{sH}, 5'), ('s', f's_add_u32 s15, s15, {off}'),
                ('v', 'v_and_b32 v13, 7, v0'), ('v', 'v_lshlrev_b32 v13, 2, v13'),
                ('l', f'buffer_load_dword v12, v13, s[{S_FL}:{S_FL+3}], s15 offen sc1', lab)]
    def check(lab, waitlabel):
        p.wait_vm(waitlabel, 'lgkmcnt(0)'); p.lg_all()
        p(f's_cmp_lg_u32 s{sW}, 0')
        p(f's_cbranch_scc1 {name}_{lab}ok')
        p('s_mov_b32 s14, 0')
        p.label(f'{name}_{lab}poll')
        p(f'v_cmp_ne_u32 vcc, s{sTag}, v12')
        p('s_add_u32 s14, s14, 1')
        p(f's_cbranch_vccz {name}_{lab}ok2')
        p(f's_cmp_ge_u32 s14, {SPIN}')
        p(f's_cbranch_scc1 {name}_{lab}ok2')
        p(f'buffer_load_dword v12, v13, s[{S_FL}:{S_FL+3}], s15 offen sc1')
        p('s_waitcnt vmcnt(0)')
        p(f's_branch {name}_{lab}poll')
        p.label(f'{name}_{lab}ok2')
        p(f's_cmp_eq_u32 s{sSame}, 1')
        p(f's_cbranch_scc1 {name}_{lab}ok')
        p('buffer_inv sc1')
        p('s_waitcnt vmcnt(0)')
        p.label(f'{name}_{lab}ok')
        p('s_barrier')
    def att_state():
        p(f's_lshl_b32 s{sKb}, s{sH}, 19')
        p(f's_add_u32 s{sKb}, s{sKb}, s{sLW}')
        p(f's_mov_b32 s{sVb}, s{sKb}')
    def unitK(slot, label):
        L = [('s', f's_add_u32 m0, s{sLW}, {slot*32768}')]
        for i in range(4): L.append(('m', f'buffer_load_dwordx4 v{vLane16}, s[{S_KF}:{S_KF+3}], s{sKb} offen offset:{1024*i} lds', label, None))
        return L + [('s', f's_add_u32 s{sKb}, s{sKb}, 16384')]
    def unitV(slot, label):
        L = [('s', f's_add_u32 m0, s{sLW}, {slot*32768 + SL}')]
        for i in range(4): L.append(('m', f'buffer_load_dwordx4 v{vLane16}, s[{S_VF}:{S_VF+3}], s{sVb} offen offset:{1024*i} lds', label, None))
        return L + [('s', f's_add_u32 s{sVb}, s{sVb}, 16384')]
    def dma_K(label, tagbase=None):
        L = [('s', f's_mov_b32 m0, s{sSlotP}')]
        for i in range(4):
            L.append(('m', f'buffer_load_dwordx4 v{vLane16}, s[{S_KF}:{S_KF+3}], s{sKb} offen offset:{1024*i} lds', label, None))
        L += [('s', f's_add_u32 s{sKb}, s{sKb}, 16384')]
        return L
    def dma_V(label, tagbase=None):
        L = [('s', f's_add_u32 m0, s{sSlotP}, {SL}')]
        for i in range(4):
            L.append(('m', f'buffer_load_dwordx4 v{vLane16}, s[{S_VF}:{S_VF+3}], s{sVb} offen offset:{1024*i} lds', label, None))
        L += [('s', f's_add_u32 s{sVb}, s{sVb}, 16384')]
        return L
    adv_slot = [('s', f's_add_u32 s{sSlotP}, s{sSlotP}, 32768'), ('s', f's_cmp_ge_u32 s{sSlotP}, {NSLOT*32768}\ns_cselect_b32 s{sSlotP}, s{sLW}, s{sSlotP}')]
    R.emit(p, put)
    print('fused qproj overflow', R.over, 'est', R.total())
    if 'pp' not in opt: p.stamp('q end')
    p(f's_mov_b32 s{sFlag}, 0')
    p(f's_mov_b32 s{sLim}, {hex(LIM)}')
    def touch_setup():
        p(f's_load_dwordx2 s[92:93], s[0:1], {ARG["wo"]}')
        p(f's_load_dwordx2 s[94:95], s[0:1], {ARG["wg"]}')
        p(f's_load_dwordx2 s[96:97], s[0:1], {ARG["wu"]}')
        p(f's_load_dwordx2 s[98:99], s[0:1], {ARG["wd"]}')
        p('s_lshl_b32 s14, s2, 2')
        p(f's_add_u32 s14, s14, s{sW}')
        p('s_mul_i32 s14, s14, 40')
        p('v_min_u32 v14, 39, v0')
        p('v_add_u32 v14, s14, v14')
        p('v_lshlrev_b32 v14, 7, v14')
        p('s_lshr_b32 s14, s2, 6')
        p('s_lshl_b32 s14, s14, 2')
        p(f's_and_b32 s15, s{sI}, 3')
        p('s_add_u32 s14, s14, s15')
        p('s_lshl_b32 s14, s14, 3')
        p('s_and_b32 s15, s2, 7')
        p('s_add_u32 s14, s14, s15')
        p('s_lshl_b32 s14, s14, 2')
        p(f's_add_u32 s14, s14, s{sW}')
        p('s_mul_i32 s14, s14, 34')
        p('v_min_u32 v15, 33, v0')
        p('v_add_u32 v15, s14, v15')
        p('v_min_u32 v15, 17279, v15')
        p('v_lshlrev_b32 v15, 7, v15')
        p('s_waitcnt lgkmcnt(0)')
    touch_items = [('l', 'global_load_dword v13, v14, s[92:93]', 'T'), ('l', 'global_load_dword v13, v15, s[94:95]', 'T'),
                   ('l', 'global_load_dword v13, v15, s[96:97]', 'T'), ('l', 'global_load_dword v13, v15, s[98:99]', 'T')]
    att_state()
    touch_setup()
    publish(FK, 'k', 'st')
    for it in flag_load(FK, 'KFL'): put(it)
    p.stamp('pub done')
    p('s_nop 7')
    for c in range(4):
        for ks in range(4):
            a0 = O(c, 2*ks)
            for k in range(4): p(f'v_cvt_pk_bf16_f32 v{a0+k}, v{a0+2*k}, v{a0+2*k+1}')
            for k in range(4): p(f'v_accvgpr_write_b32 a{aQ + 16*c + 4*ks + k}, v{a0+k}')
    p(f'v_mov_b32 v{vT}, 0x3f803f80')
    for k in range(4): p(f'v_accvgpr_write_b32 a{128+k}, v{vT}')
    p(f'v_and_b32 v{vT}, 15, v0')
    p(f'v_lshrrev_b32 v{vT+1}, 4, v0')
    p(f'v_lshlrev_b32 v{vT+1}, 2, v{vT+1}')
    p(f'v_sub_u32 v{vT}, v{vT}, v{vT+1}')
    for r in range(4): p(f'v_cmp_le_i32 s[{sM+2*r}:{sM+2*r+1}], {r}, v{vT}')
    p(f'v_mov_b32 v{vNinf}, {hex(NEGBIG)}')
    for r in range(16): p(f'v_mov_b32 v{vNeg+r}, 0')
    for c in range(4): p(f'v_mov_b32 v{vL+c}, 0')
    for r in range(64): p(f'v_mov_b32 v{vO+r}, 0')
    p.stamp('pre check')
    check('k', 'KFL')
    emit(unitK(0, 'U-1') + unitK(1, 'U0') + unitV(1, 'U0'))
    p.stamp('kv ok')
    nerr = 0

    def rdK(b, f):  return ('r', f'ds_read_b128 a[{aK+4*f}:{aK+4*f+3}], v{vRd} offset:{b*8192 + f*1024}', f'K{f}')
    def rdV(b, f):  return ('r', f'ds_read_b128 a[{aV+4*f}:{aV+4*f+3}], v{vRd} offset:{16384 + b*8192 + f*1024}', f'V{f}')
    def qk_mfmas(cols, sbase, cin):
        L = []
        for i, c in enumerate(cols):
            for kb in range(2):
                S = Sr(sbase + i, kb)
                for ks in range(4):
                    cc = cin(c, kb) if ks == 0 else S
                    L.append(f'{MF} v[{S}:{S+3}], a[{aK+4*(kb*4+ks)}:{aK+4*(kb*4+ks)+3}], a[{aQ+16*c+4*ks}:{aQ+16*c+4*ks+3}], v[{cc}:{cc+3}]')
        return L
    def pv_mfmas(cols, par, first=False):
        L = []
        for c in cols:
            for db in range(8):
                o = O(c, db)
                cc = '0' if first else f'v[{o}:{o+3}]'
                L.append(f'{MF} v[{o}:{o+3}], a[{aV+4*db}:{aV+4*db+3}], v[{Pr(par, c)}:{Pr(par, c)+3}], {cc}')
        return L
    aOne = 128
    Lm = lambda c: vP + 8 + 4*c
    def sum_mfmas(cols, par):
        return [f'{MF} v[{Lm(c)}:{Lm(c)+3}], a[{aOne}:{aOne+3}], v[{Pr(par, c)}:{Pr(par, c)+3}], v[{Lm(c)}:{Lm(c)+3}]' for c in cols]
    def sm_window_ns(c, sslot, par):
        S = vS + 8*sslot; P = Pr(par, c); W = []
        for k in range(4):
            e0, e1 = vE + (2*k) % 4, vE + (2*k + 1) % 4
            W += [[f'v_exp_f32 v{e0}, v{S+2*k}'], [f'v_exp_f32 v{e1}, v{S+2*k+1}'],
                  [f'v_cvt_pk_bf16_f32 v{P+k}, v{e0}, v{e1}'], []]
        return W
    def sm_window(c, sslot, par):
        S = vS + 8*sslot; P = Pr(par, c); W = []
        for k in range(4):
            e0, e1 = vE + (2*k) % 4, vE + (2*k + 1) % 4
            W += [[f'v_exp_f32 v{e0}, v{S+2*k}'], [f'v_exp_f32 v{e1}, v{S+2*k+1}'],
                  [f'v_add_f32 v{vL+c}, v{vL+c}, v{e0}'],
                  [f'v_add_f32 v{vL+c}, v{vL+c}, v{e1}', f'v_cvt_pk_bf16_f32 v{P+k}, v{e0}, v{e1}']]
        return W
    cin_neg = lambda c, kb: vNeg + 4*c
    def cin_mask(tile_cols):
        def f(c, kb):
            if c in tile_cols: return vCi + 8*(c - tile_cols[0]) + 4*kb
            return vNeg + 4*c
        return f
    def mask_ops(tile_cols):
        c0 = tile_cols[0]
        L = [('s', f's_cmp_lt_i32 s{sDd}, 0\ns_cselect_b64 s[14:15], -1, 0'),
             ('s', f's_cmp_eq_u32 s{sDd}, 0\n' + '\n'.join(f's_cselect_b64 s[{4+2*r}:{5+2*r}], s[{sM+2*r}:{sM+2*r+1}], s[14:15]' for r in range(4))),
             ('s', f's_cmp_le_i32 s{sDd}, 0\ns_cselect_b64 s[12:13], -1, 0')]
        for cb in range(2):
            for kb in range(2):
                for r in range(4):
                    m = 4 + 2*r if cb == kb else (12 if (cb == 1 and kb == 0) else 14)
                    L.append(('v', f'v_cndmask_b32 v{vCi + 8*cb + 4*kb + r}, v{vNinf}, v{vNeg + 4*(c0 + cb) + r}, s[{m}:{m+1}]'))
        return L
    LC, SC = [0, 1], [2, 3]
    def build_group(mf, windows, reads, dmas=(), extra=(), pre_wait=None, mid_wait=None, nwin=None):
        R = Region(mf)
        n = len(mf)
        for (g0, W) in windows:
            for i, ops in enumerate(W):
                for o in ops: R.place(('v', o), g0 + i, force=True)
        slots = [g for g in range(n) if g % 4 == 2]
        if len(slots) < len(reads): slots = sorted(slots + [g for g in range(n) if g % 4 == 3])
        if n == 16 or nwin == 16: slots = [g for g in range(16) if g % 4 in (2, 3)]
        for it, g in zip(reads, slots): R.place(it, g, force=True)
        if dmas:
            free = [g for g in range(n) if not R.M[g]]
            pref = [g for g in free if g >= 16 and nwin == 16] + [g for g in free if g % 4 == 3 and not (g >= 16 and nwin == 16)] + [g for g in free if g % 4 == 1] + [g for g in free if g % 4 in (0, 2)]
            nm = sum(1 for x in dmas if x[0] == 'm')
            use = sorted([g for g in pref if g >= 1][:nm])
            if nwin == 16 and nm == 4: use = [5, 9, 13, 16]
            k = 0; pend_s = []
            for it in dmas:
                if it[0] == 's': pend_s.append(it)
                else:
                    g = use[k]; k += 1
                    for j, sx in enumerate(pend_s):
                        gg = max(0, g - len(pend_s) + j)
                        if k > 1: gg = max(gg, use[k-2] + 1) if use[k-2] + 1 <= g - 1 or ' m0,' not in sx[1] else gg
                        if gg == g and ' m0,' in sx[1]: R.place(('s', 's_nop 0'), g, force=True) if False else None
                        R.place(sx, gg, force=True)
                    pend_s = []
                    R.place(it, g, force=True)
            for j, sx in enumerate(pend_s):
                gg = use[-1] + 1 + j
                if gg <= n - 1: R.place(sx, gg, force=True)
                else: R.T[n - 1].append(sx)
        if extra:
            g = 0
            for it in extra:
                best = None
                for gg in range(g, n - 1):
                    if R.fits(gg, it): best = gg; break
                if best is None:
                    best = g
                R.place(it, best, force=True); g = best
        if mid_wait: R.place(mid_wait[1], mid_wait[0], force=True)
        return R
    slot_adv = [('s', f's_add_u32 s{sSlotR}, s{sSlotR}, 32768'), ('s', f's_cmp_ge_u32 s{sSlotR}, {NSLOT*32768}\ns_cselect_b32 s{sSlotR}, 0, s{sSlotR}')]
    def start_items(R, vm=16):
        pre = []
        if vm is None: return
        if 'nodma' not in opt: pre.append(('w', f's_waitcnt vmcnt({vm})'))
        if 'nobar' not in opt: pre.append(('w', 's_barrier'))
        R.S[0] = pre + R.S[0]
    def end_items(R, loop=None):
        n = R.n
        for j, it in enumerate(slot_adv): R.S[4 + 4*j if n > 16 else 1 + 4*j].append(it) if False else None
        g0 = 8
        for j, it in enumerate(slot_adv): R.S[g0 + j].append(it)
        R.V[n - 1].append(('v', f'v_add_u32 v{vRd}, s{sSlotR}, v{vLane16}'))
        if loop:
            R.S[n - 3].append(('s', f's_sub_u32 s{sCnt}, s{sCnt}, 1'))
            R.T[n - 1].append(('s', f's_cmp_lg_u32 s{sCnt}, 0'))
    def emit_group(R, pre):
        if pre and 'nords' not in opt:
            put(('wlg', [f'{pre}{f}' for f in range(4)]))
            R.S[3].insert(0, ('wlg', [f'{pre}{f}' for f in range(4, 8)]))
        if 'nosm' in opt:
            for g in range(R.n): R.V[g] = []
        if 'noexp' in opt:
            for g in range(R.n): R.V[g] = [(x[0], x[1].replace('v_exp_f32', 'v_mov_b32')) for x in R.V[g]]
        if 'nodma' in opt:
            for g in range(R.n): R.M[g] = [x for x in R.M[g] if x[0] != 'm']
        if 'nords' in opt:
            for g in range(R.n):
                R.M[g] = [x for x in R.M[g] if x[0] != 'r']; R.S[g] = [x for x in R.S[g] if x[0] != 'wlg']
            pre = None; R.S[3] = [x for x in R.S[3] if x[0] != 'wlg']
        R.emit(p, put)
    stats = {'cyc': 0}
    def interval(kind, lbl, maskL=None, maskS=None, loop=False, vm=16):
        dual = kind in ('D', 'T')
        mA, mB, mN = (maskS if dual else maskL) or (False, False, False)
        tile = SC if dual else LC
        p.lgq = ['K%d' % f for f in range(8)]; p.lg_ret = -1
        tot = 0
        if dual:
            cols = [0, 1, 2, 3]
            R1 = build_group(qk_mfmas(cols, 0, cin_mask(SC) if mA else cin_neg),
                             [(0, sm_window(3, 3, 0)), (16, sm_window(0, 0, 1))], [rdV(0, f) for f in range(8)], dma_K('x'),
                             mid_wait=None)
            start_items(R1, vm)
            if lbl == 'db':
                g_ = 1
                sel = ([touch_items[0]] if TW else []) + (touch_items[1:] if TF else [])
                for it in sel:
                    while R1.M[g_]: g_ += 1
                    R1.M[g_].append(it); g_ += 3
            emit_group(R1, 'K')
            ex = ([('s', f's_add_u32 s{sDd}, s{sDd}, 1')] + mask_ops(SC if kind == 'D' else LC)) if mB else []
            if kind == 'T': ex = mask_ops(LC)
            R2 = build_group(pv_mfmas(cols, 0), [(0, sm_window(1, 1, 1)), (16, sm_window(2, 2, 1))], [rdK(0, f) for f in range(8)], extra=ex)
            if kind == 'T':
                emit([('s', f's_sub_u32 s{sDd}, s{sTS}, s{sTL}'), ('s', f's_lshl_b32 s{sDd}, s{sDd}, 2'), ('s', f's_add_u32 s{sDd}, s{sDd}, 4'), ('s', f's_sub_u32 s{sDd}, s{sDd}, s{sW}')])
            emit_group(R2, 'V')
            if kind == 'D':
                R3 = build_group(qk_mfmas(cols, 0, cin_mask(SC) if mB else cin_neg),
                                 [(0, sm_window(3, 3, 1)), (16, sm_window(0, 0, 0))], [rdV(1, f) for f in range(8)], dma_V('x') + adv_slot)
                emit_group(R3, 'K')
                ex = ([('s', f's_add_u32 s{sDd}, s{sDd}, 1')] + mask_ops(SC)) if mN else []
                R4 = build_group(pv_mfmas(cols, 1), [(0, sm_window(1, 1, 0)), (16, sm_window(2, 2, 0))], [rdK(1, f) for f in range(8)], extra=ex)
                end_items(R4, loop)
                emit_group(R4, 'V')
            else:
                R3 = build_group(qk_mfmas(LC, 0, cin_mask(LC)), [(0, sm_window(3, 3, 1))], [rdV(1, f) for f in range(8)], dma_V('x') + adv_slot)
                emit_group(R3, 'K')
                ex = ([('s', f's_add_u32 s{sDd}, s{sDd}, 1')] + mask_ops(LC))
                ex = [('v', f'v_mov_b32 v{Lm(c)+r}, 0') for c in LC for r in range(4)] + ex
                R4 = build_group(pv_mfmas(cols, 1), [(0, sm_window_ns(0, 0, 0))], [rdK(1, f) for f in range(8)], extra=ex)
                end_items(R4)
                emit_group(R4, 'V')
            tot = R1.total() + R2.total() + R3.total() + R4.total()
        else:
            dK = dma_K('x'); dv_ = dma_V('x'); dV = dv_[:1] + adv_slot + dv_[1:]
            R1 = build_group(qk_mfmas(LC, 2, cin_mask(LC) if mA else cin_neg), [(0, sm_window_ns(1, 1, 0))], [rdV(0, f) for f in range(8)])
            start_items(R1, vm)
            emit_group(R1, 'K')
            ex = ([('s', f's_add_u32 s{sDd}, s{sDd}, 1')] + mask_ops(LC)) if mB else []
            rk = [rdK(0, f) for f in range(8)] if kind != 'E' else []
            R2 = build_group(pv_mfmas(LC, 0) + sum_mfmas(LC, 0), [(0, sm_window_ns(0, 2, 1))], rk, dK, extra=ex, nwin=16)
            emit_group(R2, 'V')
            if kind != 'E':
                R3 = build_group(qk_mfmas(LC, 0, cin_mask(LC) if mB else cin_neg), [(0, sm_window_ns(1, 3, 1))], [rdV(1, f) for f in range(8)])
                emit_group(R3, 'K')
                ex = ([('s', f's_add_u32 s{sDd}, s{sDd}, 1')] + mask_ops(LC)) if mN else []
                R4 = build_group(pv_mfmas(LC, 1) + sum_mfmas(LC, 1), [(0, sm_window_ns(0, 0, 0))], [rdK(1, f) for f in range(8)], dV, extra=ex, nwin=16)
                end_items(R4, loop)
                emit_group(R4, 'V')
                tot = R1.total() + R2.total() + R3.total() + R4.total()
            else:
                for f in range(8): put(rdV(1, f))
                emit(dV)
                for ops in sm_window_ns(1, 3, 1):
                    for o in ops: p(o)
                    if len(ops) == 1 and ops[0].startswith('v_exp'): p('s_nop 0')
                p('s_waitcnt lgkmcnt(0)')
                p('s_nop 1')
                for m in pv_mfmas(LC, 1) + sum_mfmas(LC, 1): p(m)
        if tot: print(f'  interval {lbl}: est {tot} cycles for', 128 if kind == 'D' else (112 if kind == 'T' else 64), 'mfma')

    def emit_prefetch():
        p('s_lshr_b32 s14, s2, 3')
        p('s_and_b32 s15, s14, 7')
        p('s_cmp_lt_u32 s15, 4')
        p(f's_cbranch_scc1 {name}_npf')
        p(f's_load_dwordx2 s[92:93], s[0:1], {ARG["wo"]}')
        p('s_lshr_b32 s14, s14, 3')
        p('s_lshl_b32 s14, s14, 2')
        p('s_add_u32 s14, s14, s15')
        p('s_sub_u32 s14, s14, 4')
        p(f's_mul_i32 s14, s14, {640*128}')
        p('s_and_b32 s15, s2, 7')
        p('s_lshr_b32 s15, s15, 1')
        p('s_mul_i32 s15, s15, 1310720')
        p('s_add_u32 s14, s14, s15')
        p(f's_mul_i32 s15, s{sW}, {160*128}')
        p('s_add_u32 s14, s14, s15')
        p('s_waitcnt lgkmcnt(0)')
        for i in range(3):
            p(f'v_add_u32 v251, {64*i}, v0')
            p(f'v_min_u32 v251, 159, v251')
            p(f'v_lshlrev_b32 v251, 7, v251')
            p(f'v_add_u32 v251, s14, v251')
            p(f'global_load_dword v250, v251, s[92:93]')
        p.label(f'{name}_npf')
    def ffn_loads():
        p('s_lshr_b32 s14, s2, 3')
        p('s_and_b32 s92, s14, 7')
        p('s_cmp_lt_u32 s92, 6')
        p(f's_cbranch_scc1 {name}_nffn')
        p('s_lshr_b32 s14, s2, 6')
        p('s_lshl_b32 s14, s14, 1')
        p('s_add_u32 s14, s14, s92')
        p('s_sub_u32 s14, s14, 6')
        p('s_lshl_b32 s14, s14, 3')
        p('s_and_b32 s15, s2, 7')
        p('s_add_u32 s94, s14, s15')
        p('s_cmp_ge_u32 s94, 54')
        p(f's_cbranch_scc1 {name}_nffn')
        p(f's_load_dwordx2 s[4:5], s[0:1], {ARG["wg"]}')
        p(f's_load_dwordx2 s[8:9], s[0:1], {ARG["wu"]}')
        p(f's_load_dwordx2 s[12:13], s[0:1], {ARG["wd"]}')
        p('v_lshrrev_b32 v252, 2, v0')
        p('v_mul_u32_u24 v252, 3456, v252')
        p('v_and_b32 v253, 3, v0')
        p('v_lshl_add_u32 v252, v253, 4, v252')
        p('s_waitcnt lgkmcnt(0)')
        for sr, sz in ((4, 640*1728*2), (8, 640*1728*2), (12, 1728*640*2)):
            p(f's_mov_b32 s{sr+2}, {sz}'); p(f's_mov_b32 s{sr+3}, 0x00020000')
        p(f's_mul_i32 s92, s{sW}, {160*3456}')
        p('s_lshl_b32 s93, s94, 6')
        p('s_add_u32 s92, s92, s93')
        for i in range(10):
            for mat, sr in enumerate((4, 8)):
                r = 132 + (mat*10 + i)*4
                p(f'buffer_load_dwordx4 a[{r}:{r+3}], v252, s[{sr}:{sr+3}], s92 offen')
            p(f's_add_u32 s92, s92, {16*3456}')
        p(f's_mul_i32 s92, s94, {32*1280}')
        p(f's_mul_i32 s93, s{sW}, 10240')
        p('s_add_u32 s92, s92, s93')
        for i in range(10):
            r = 132 + (20 + i)*4
            p(f'buffer_load_dwordx4 a[{r}:{r+3}], v{vLane16}, s[12:15], s92 offen offset:{(i % 4)*1024}')
            if i % 4 == 3: p('s_add_u32 s92, s92, 4096')
        p.label(f'{name}_nffn')
    def row_reduce(reg, op, tmp):
        for sw in ('v_permlane16_swap_b32', 'v_permlane32_swap_b32'):
            p(f'v_mov_b32 v{tmp}, v{reg}')
            p('s_nop 1')
            p(f'{sw} v{reg}, v{tmp}')
            p('s_nop 1')
            p(f'{op} v{reg}, v{reg}, v{tmp}')
    def epilogue(cols, sTile, flagbit):
        p('s_nop 7')
        for c in cols: row_reduce(vL + c, 'v_add_f32', vU)
        if cols == LC:
            for c in cols: p(f'v_add_f32 v{vL+c}, v{vL+c}, v{Lm(c)}')
        p(f'v_max_f32 v{vU}, v{vL+cols[0]}, v{vL+cols[1]}')
        p(f'v_cmp_nle_f32 vcc, v{vU}, v{vU+1}'.replace(f'v{vU+1}', f'v{vU+1}') if False else f'v_cmp_nge_f32 vcc, s{sLim}, v{vU}')
        p('s_nop 1')
        p(f's_cmp_lg_u64 vcc, 0')
        p(f's_cselect_b32 s{sT0}, {flagbit}, 0')
        p(f's_or_b32 s{sFlag}, s{sFlag}, s{sT0}')
        for c in cols: p(f'v_rcp_f32 v{vL+c}, v{vL+c}')
        store_ctx(cols, sTile)
    def store_ctx(cols, sTile):
        p(f's_lshl_b32 s{sCtx}, s{sTile}, 3')
        p(f's_lshl_b32 s{sT0}, s{sW}, 1')
        p(f's_add_u32 s{sCtx}, s{sCtx}, s{sT0}')
        p(f's_lshl_b32 s{sCtx}, s{sCtx}, 5')
        p(f's_add_u32 s{sCtx}, s{sCtx}, s{sH}')
        p(f's_lshl_b32 s{sCtx}, s{sCtx}, 12')
        p(f's_add_u32 s{sT1}, s{sCtx}, {32*4096}')
        for i, c in enumerate(cols):
            for ks in range(4):
                o = O(c, 2*ks)
                for k in range(8): p(f'v_mul_f32 v{o+k}, v{o+k}, v{vL+c}')
                for k in range(4): p(f'v_cvt_pk_bf16_f32 v{o+k}, v{o+2*k}, v{o+2*k+1}')
                p(f'buffer_store_dwordx4 v[{o}:{o+3}], v{vLane16}, s[{S_CTX}:{S_CTX+3}], s{sCtx if i == 0 else sT1} offen offset:{ks*1024} {CTX_FLAGS}')

    p(f's_mov_b32 s{sSlotR}, 0')
    p(f'v_mov_b32 v{vRd}, v{vLane16}')
    for r in range(64, 128): p(f'v_mov_b32 v{vO+r}, 0')
    p(f's_lshl_b32 s{sDd}, s{sTS}, 2')
    p(f's_add_u32 s{sDd}, s{sDd}, s{sW}')
    p(f's_sub_u32 s{sDd}, 0, s{sDd}')
    emit(mask_ops(SC))
    p.wait_vm('U-1')
    p('s_barrier')
    p.stamp('U-1 ready')
    p.lgq = []; p.lg_ret = -1
    for f in range(8): put(rdK(0, f))
    p('s_waitcnt lgkmcnt(0)')
    q0 = qk_mfmas([0, 1, 2, 3], 0, cin_mask(SC))
    rest = unitK(2, 'U1') + unitV(2, 'U1')
    Rq = Region(q0)
    spread(Rq, rest, 0, 31)
    Rq.emit(p, put)
    p(f's_add_u32 s{sSlotP}, s{sLW}, {4*32768}')
    p.stamp('qk0 done')
    for f in range(8): put(rdK(1, f))
    for step in range(4):
        for c in range(4):
            S = vS + 8*c; t = vU + c
            if step == 0: p(f'v_max3_f32 v{t}, v{S}, v{S+1}, v{S+2}')
            elif step == 1: p(f'v_max3_f32 v{t}, v{t}, v{S+3}, v{S+4}')
            elif step == 2: p(f'v_max3_f32 v{t}, v{t}, v{S+5}, v{S+6}')
            else: p(f'v_max_f32 v{t}, v{t}, v{S+7}')
    for sw in ('v_permlane16_swap_b32', 'v_permlane32_swap_b32'):
        for c in range(4): p(f'v_mov_b32 v{vU+4+c}, v{vU+c}')
        for c in range(4): p(f'{sw} v{vU+c}, v{vU+4+c}')
        p('s_nop 0')
        for c in range(4): p(f'v_max_f32 v{vU+c}, v{vU+c}, v{vU+4+c}')
    for r in range(8):
        for c in range(4): p(f'v_sub_f32 v{vS+8*c+r}, v{vS+8*c+r}, v{vU+c}')
    for c in range(4):
        for r in range(4): p(f'v_sub_f32 v{vNeg+4*c+r}, 0, v{vU+c}')
    def run_window(W):
        for ops in W:
            for o in ops: p(o)
            if len(ops) == 1 and ops[0].startswith('v_exp'): p('s_nop 0')
    u2 = unitK(3, 'U2') + unitV(3, 'U2')
    for r in range(8):
        for c in range(3): p(f'v_exp_f32 v{vS+8*c+r}, v{vS+8*c+r}')
        while u2:
            it = u2.pop(0)
            put(it)
            if it[0] == 'm': break
            if ' m0,' in it[1]: p('s_nop 0')
    for it in u2: put(it)
    p('s_nop 0')
    for r in range(8):
        for c in range(3): p(f'v_add_f32 v{vL+c}, v{vL+c}, v{vS+8*c+r}')
    for k in range(4):
        for c in range(3): p(f'v_cvt_pk_bf16_f32 v{Pr(0, c)+k}, v{vS+8*c+2*k}, v{vS+8*c+2*k+1}')
    p(f's_mov_b32 s{sSlotR}, 32768')
    p(f'v_add_u32 v{vRd}, s{sSlotR}, v{vLane16}')
    if 'pp' not in opt: p.stamp('attn prologue done')
    p(f's_cmp_eq_u32 s{sTS}, 0')
    p(f's_cbranch_scc1 {name}_t0')
    p(f's_lshl_b32 s{sCnt}, s{sTS}, 1')
    p(f's_sub_u32 s{sCnt}, s{sCnt}, 1')
    p.label(f'{name}_dn')
    interval('D', f'dn', loop=True)
    p(f's_cbranch_scc1 {name}_dn')
    p(f's_sub_u32 s{sDd}, -1, s{sW}')
    interval('D', 'da', maskS=(False, True, True))
    p(f's_branch {name}_db')
    p.label(f'{name}_t0')
    p(f's_sub_u32 s{sDd}, 1, s{sW}')
    emit(mask_ops(SC))
    p('s_nop 1')
    p.label(f'{name}_db')
    interval('D', 'db', maskS=(True, True, True))
    interval('T', 'dc', maskS=(True, False, False))
    epilogue(SC, sTS, 2)
    if FP == 'S':
        ffn_loads()
        p.lgq = ['K%d' % f for f in range(8)]; p.lg_ret = 7
    if 'pp' not in opt: (p.stamp('S done') if 'pq' not in opt else None)
    p(f's_sub_u32 s{sCnt}, s{sTL}, s{sTS}')
    p(f's_cmp_eq_u32 s{sCnt}, 1')
    p(f's_cbranch_scc1 {name}_sb')
    p(f's_sub_u32 s{sCnt}, s{sCnt}, 2')
    interval('S', 'sn1')
    p.label(f'{name}_sn')
    interval('S', 'sn2a', vm=8)
    interval('S', 'sn2b', vm=None, loop=True)
    p(f's_cbranch_scc1 {name}_sn')
    p(f's_sub_u32 s{sDd}, -1, s{sW}')
    interval('S', 'sa', maskL=(False, True, True))
    p.label(f'{name}_sb')
    interval('S', 'sb', maskL=(True, True, True))
    interval('E', 'sc', maskL=(True, False, False))
    epilogue(LC, sTL, 1)
    p.stamp('L done')
    p(f's_cmp_eq_u32 s{sFlag}, 0')
    p(f's_cbranch_scc1 {name}_fin')
    fallback(p, name, locals())
    p.label(f'{name}_fin')
    def ctx_publish():
        p('s_waitcnt vmcnt(0) lgkmcnt(0)')
        p('s_barrier')
        p(f's_cmp_lg_u32 s{sW}, 0')
        p(f's_cbranch_scc1 {name}_cpub')
        p(f's_lshl_b32 s14, s2, 2')
        p(f's_add_u32 s14, s14, 6144')
        p(f'v_mov_b32 v20, s{sTag}')
        p('v_mov_b32 v21, 0')
        p(f'buffer_store_dword v20, v21, s[{S_FL}:{S_FL+3}], s14 offen sc1')
        p.label(f'{name}_cpub')
        p.stamp('ctx pub')
        if PE: emit_prefetch()
        if FP == 'end': ffn_loads()
    import kt
    nerr += kt.gen_kt(name + '_t', p, prof, opt, ctx_publish)
    p.label(f'{name}_done')
    p('s_endpgm')
    def mk_policy(t0, nd, skip_s, ns, fb, wave0):
        def pol(ins, n):
            t = ins.args[0]
            if t.endswith('_done'): return False
            if t.endswith('_stageA'): return n % 3 != 0
            if t in (name + '_noln0', name + '_noln1'): return False
            if t in (name + '_notag', name + '_kvpub'): return not wave0
            if t == name + '_notag2': return True
            if t == name + '_nffn': return not wave0
            if t == name + '_dcw': return not wave0
            if t == name + '_cpub': return not wave0
            if t.startswith(name + '_t'):
                if '_poll' in t and t.endswith('_ok'): return True
                u = t[len(name) + 2:]
                if u in ('_w123', '_w1', '_nosig', '_w4', '_w5', '_cw'): return not wave0
                return False
            if t == name + '_nz': return True
            if t == name + '_nocode': return False
            if t == name + '_nopub': return True
            if t in (name + '_lnok', name + '_kok', name + '_vok', name + '_kpub', name + '_vpub'): return not wave0
            if t in (name + '_lnok2', name + '_kok2', name + '_vok2', name + '_krel', name + '_vrel'): return True
            if t.endswith('_t0'): return t0
            if t.endswith('_dn'): return (n % nd) != 0
            if t.endswith('_sb'): return skip_s
            if t.endswith('_sn'): return (n % ns) != 0
            if t.endswith('_fin'): return not fb
            if t.endswith('_fbloop'): return n % 3 != 0
            return False
        return pol
    for cfg in ([(False, 3, False, 3, False, True), (True, 2, False, 2, True, False), (False, 2, True, 2, False, True)] if (not opt or opt[0] in ('pp', 'pq', 'tl', 'tr', 'nocode', 'notlb', 'dbg') or opt[0].startswith('kv=')) and not any(o_.endswith('A') for o_ in opt) else []):
        seq = trace(p, mk_policy(*cfg))
        nerr += len(check_linear(seq, name + str(cfg)))
    return p, nerr

def fallback(p, name, L):
    g = L
    vS, vP, vE, vL, vU, vNeg, vCi, vO = g['vS'], g['vP'], g['vE'], g['vL'], g['vU'], g['vNeg'], g['vCi'], g['vO']
    aQ, aK, aV, vLane16, vNinf = g['aQ'], g['aK'], g['aV'], g['vLane16'], g['vNinf']
    S_KF, S_VF = g['S_KF'], g['S_VF']
    sFlag, sTL, sTS, sW, sH, sDd, sCnt, sT0, sT1, sT2 = (g[k] for k in ('sFlag', 'sTL', 'sTS', 'sW', 'sH', 'sDd', 'sCnt', 'sT0', 'sT1', 'sT2'))
    O = g['O']; mask_ops = g['mask_ops']; qk_mfmas = g['qk_mfmas']; pv_mfmas = g['pv_mfmas']; row_reduce = g['row_reduce']; store_ctx = g['store_ctx']
    put = g['put']
    p('s_waitcnt vmcnt(0) lgkmcnt(0)')
    for cols, sTile, bit, nm in (([2, 3], sTS, 2, 'S'), ([0, 1], sTL, 1, 'L')):
        p(f's_and_b32 s{sT0}, s{sFlag}, {bit}')
        p(f's_cmp_eq_u32 s{sT0}, 0')
        p(f's_cbranch_scc1 {name}_fbskip{nm}')
        for c in cols:
            p(f'v_mov_b32 v{vL+c}, 0')
            for r in range(32): p(f'v_mov_b32 v{vO+32*c+r}, 0')
            for r in range(4): p(f'v_mov_b32 v{vNeg+4*c+r}, 0')
        for i in range(2): p(f'v_mov_b32 v{vU+4+i}, v{vNinf}')
        p(f's_lshl_b32 s{sDd}, s{sTile}, 2')
        p(f's_add_u32 s{sDd}, s{sDd}, s{sW}')
        p(f's_add_u32 s{sCnt}, s{sDd}, 1')
        p(f's_sub_u32 s{sDd}, 0, s{sDd}')
        p(f's_lshl_b32 s{sT2}, s{sH}, 19')
        p.label(f'{name}_fb{nm}_fbloop')
        for f in range(8):
            p(f's_add_u32 s{sT1}, s{sT2}, {(f // 4)*4096}')
            p(f'buffer_load_dwordx4 a[{aK+4*f}:{aK+4*f+3}], v{vLane16}, s[{S_KF}:{S_KF+3}], s{sT1} offen offset:{(f % 4)*1024}')
            p(f'buffer_load_dwordx4 a[{aV+4*f}:{aV+4*f+3}], v{vLane16}, s[{S_VF}:{S_VF+3}], s{sT1} offen offset:{(f % 4)*1024}')
        for it in mask_ops(cols): put(it)
        p('s_waitcnt vmcnt(0)')
        p('s_nop 1')
        for m in qk_mfmas(cols, 0, lambda c, kb: vCi + 8*(c - cols[0]) + 4*kb): p(m)
        p('s_nop 7')
        for i, c in enumerate(cols):
            S = vS + 8*i; t = vU + i; m = vU + 4 + i
            p(f'v_max3_f32 v{t}, v{S}, v{S+1}, v{S+2}')
            p(f'v_max3_f32 v{t}, v{t}, v{S+3}, v{S+4}')
            p(f'v_max3_f32 v{t}, v{t}, v{S+5}, v{S+6}')
            p(f'v_max_f32 v{t}, v{t}, v{S+7}')
            row_reduce(t, 'v_max_f32', vU + 6)
            p(f'v_max_f32 v{t}, v{t}, v{m}')
            p(f'v_sub_f32 v{vU+6}, v{m}, v{t}')
            p(f'v_exp_f32 v{vU+6}, v{vU+6}')
            p(f'v_mov_b32 v{m}, v{t}')
            p(f'v_mul_f32 v{vL+c}, v{vL+c}, v{vU+6}')
            for r in range(32): p(f'v_mul_f32 v{vO+32*c+r}, v{vO+32*c+r}, v{vU+6}')
            for r in range(8): p(f'v_sub_f32 v{S+r}, v{S+r}, v{t}')
            for r in range(8): p(f'v_exp_f32 v{S+r}, v{S+r}')
            p('s_nop 0')
            for r in range(8): p(f'v_add_f32 v{vL+c}, v{vL+c}, v{S+r}')
            for k in range(4): p(f'v_cvt_pk_bf16_f32 v{vP+4*c+k}, v{S+2*k}, v{S+2*k+1}')
        p('s_nop 1')
        for m in pv_mfmas(cols, 0): p(m)
        p('s_nop 7')
        p(f's_add_u32 s{sT2}, s{sT2}, 8192')
        p(f's_add_u32 s{sDd}, s{sDd}, 1')
        p(f's_sub_u32 s{sCnt}, s{sCnt}, 1')
        p(f's_cmp_lg_u32 s{sCnt}, 0')
        p(f's_cbranch_scc1 {name}_fb{nm}_fbloop')
        for c in cols: row_reduce(vL + c, 'v_add_f32', vU)
        for c in cols: p(f'v_rcp_f32 v{vL+c}, v{vL+c}')
        store_ctx(cols, sTile)
        p.label(f'{name}_fbskip{nm}')

if __name__ == '__main__':
    p, ne = gen_kf()
    print('instrs', p.count(), 'errors', ne)
```

```python
from common import *
from gx2 import *
from sched import *
from k1b import w_tile_setup, MF
from lnops import *
WS_FLG = 82*MiB

CTX_FLAGS = 'sc1'
LIM = 0x5d800000
NEGBIG = 0xff800000
opt_idx = [0]
TW, TF, PE = False, True, True
FP = 'S'
PREFETCH = True

def gen_kf(name='front_kernel', prof=False, opt=()):
    p = P2(); p.prof = prof
    p.lenient = 'nordsA' in opt
    p.dbgmode = 'dbg' in opt
    p.stampset = set(['start', 'phase A done', 'q end', 'attn prologue done', 'L done', 'ctx ready', 'gemm end', 'key out', 'argmax ready', 'ffn atomics done'])
    if 'tr' in opt: p.stampset = set(['start', 'q end', 'pre check', 'kv ok', 'qk0 done', 'attn prologue done', 'L done', 'tail setup', 'ctx pub', 'ctx ready'])
    if 'tl' in opt: p.stampset = set(['start', 'L done', 'ctx ready', 'gemm end', 'signalled', 'partials ready', 'partials loaded', 'key out', 'argmax ready', 'ffn atomics done'])
    put = make_put(p)
    S_WQ, S_XNF, S_KF, S_VF, S_CTX = 16, 20, 24, 28, 32
    sM = 36
    sW, sH, sI = 44, 45, 46
    sT0, sT1, sT2 = 47, 48, 49
    sLW = 50
    sWoff = 51
    sXL, sXS = 52, 53
    sKb, sVb = 54, 55
    sHbase = 56
    sSlotP, sSlotR = 57, 58
    sTL, sTS = 59, 60
    sCnt = 61
    sDd = 62
    sFlag = 63
    sCtx = 64
    sLim = 65
    sScale = 61
    sSel = 4
    vLane16 = 1; vRd = 2; vNinf = 3
    vOffW = 4
    vLPW = 8; vT = 9
    vNeg = 16; vCi = 32; vS = 48; vP = 80; vE = 112; vL = 116; vU = 120
    vCW = 120
    vWF = 48
    vO = 128
    aQ = 0; aK = 64; aV = 96; aX = 128
    O = lambda c, db: vO + 32*c + 4*db
    Sr = lambda sc, kb: vS + 8*sc + 4*kb
    Pr = lambda par, c: vP + 16*par + 4*c
    NSLOT = 5

    S_CKV, S_X, S_DBG = 4, 8, 88
    S_WUK, S_WUV = 36, 40
    S_FL = 68
    sTag = 3
    sXcc = 67; sSame = 66
    sASum = sFlag
    sAoff = sDd; sWr = sCtx; sAr = sLim; sWp = sKb; sAp = sVb; sKst = sSlotP
    vOffA = 16
    vLPA = 20; vCA = 21
    vWK = 32; vWV = 64; vAct = 128
    SPIN = 1 << 16
    p(f's_cmp_ge_u32 s2, 256')
    p(f's_cbranch_scc1 {name}_done')
    p.stamp('start')
    p(f's_load_dwordx2 s[84:85], s[0:1], {ARG["x"]}')
    p(f's_load_dwordx2 s[86:87], s[0:1], {ARG["ckv"]}')
    p(f's_load_dwordx4 s[88:91], s[0:1], {ARG["wuk"]}')
    p(f's_load_dwordx2 s[92:93], s[0:1], {ARG["wq"]}')
    p(f's_load_dwordx4 s[96:99], s[0:1], {ARG["dbg"]}')
    p('s_and_b32 s14, s2, 7')
    p('s_lshr_b32 s15, s2, 3')
    p(f's_lshr_b32 s{sH}, s15, 3')
    p(f's_lshl_b32 s14, s14, 2')
    p(f's_add_u32 s{sH}, s{sH}, s14')
    p(f's_and_b32 s{sI}, s15, 7')
    p('v_lshrrev_b32 v2, 6, v0')
    p('v_and_b32 v0, 63, v0')
    p(f'v_readfirstlane_b32 s{sW}, v2')
    p(f'v_lshlrev_b32 v{vLane16}, 4, v0')
    p(f's_getreg_b32 s{sXcc}, hwreg(HW_REG_XCC_ID, 0, 4)')
    w_tile_setup(p, vOffW, vLPW, vT)
    p(f'v_lshrrev_b32 v{vT}, 3, v0')
    p(f'v_lshlrev_b32 v{vT}, 10, v{vT}')
    p(f'v_lshrrev_b32 v{vT+1}, 4, v0')
    p(f'v_and_b32 v{vT+2}, 7, v0')
    p(f'v_xor_b32 v{vT+2}, v{vT+2}, v{vT+1}')
    p(f'v_lshl_add_u32 v{vOffA}, v{vT+2}, 4, v{vT}')
    p(f'v_xor_b32 v{vT+3}, 4, v{vT+2}')
    p(f'v_lshl_add_u32 v{vOffA+1}, v{vT+3}, 4, v{vT}')
    p(f'v_add_u32 v{vOffA+2}, {2*7168}, v{vOffA}')
    p(f'v_add_u32 v{vOffA+3}, {3*7168}, v{vOffA+1}')
    p(f'v_add_u32 v{vOffA+1}, {1*7168}, v{vOffA+1}')
    p(f'v_and_b32 v{vT}, 15, v0')
    p(f'v_bfe_u32 v{vT+1}, v0, 1, 3')
    p(f'v_lshrrev_b32 v{vT+2}, 4, v0')
    p(f'v_xor_b32 v{vT+1}, v{vT+1}, v{vT+2}')
    p(f'v_lshlrev_b32 v{vT}, 7, v{vT}')
    p(f'v_lshl_add_u32 v{vLPA}, v{vT+1}, 4, v{vT}')
    p(f's_lshl_b32 s{sLW}, s{sW}, 12')
    p(f's_lshl_b32 s{sWoff}, s{sW}, 17')
    p(f's_lshl_b32 s{sT1}, s{sH}, 8')
    p(f's_add_u32 s{sWoff}, s{sWoff}, s{sT1}')
    p(f's_lshl_b32 s{sT0}, s{sI}, 8')
    p(f's_lshl_b32 s{sT1}, s{sW}, 6')
    p(f's_add_u32 s{sT0}, s{sT0}, s{sT1}')
    p(f's_lshl_b32 s{sAoff}, s{sT0}, 10')
    sK0 = sXL; sLA = sXS
    p(f's_lshl_b32 s{sHbase}, s{sH}, 6')
    p(f's_lshr_b32 s{sT1}, s{sT0}, 5')
    p(f's_add_u32 s{sHbase}, s{sHbase}, s{sT1}')
    p(f's_lshl_b32 s{sHbase}, s{sHbase}, 13')
    p(f's_lshl_b32 s{sLA}, s{sW}, 13')
    p('s_waitcnt lgkmcnt(0)')
    srd(p, S_CKV, 86, 2048*512*2)
    srd(p, S_WUK, 88, 512*4096*2)
    srd(p, S_WUV, 90, 512*4096*2)
    SL = 16384
    ACT0 = 98304
    def emit(L):
        prev = None
        for it in L:
            if it[0] == 'm' and prev is not None and prev[0] == 's' and ' m0,' in prev[1]: put(('s', 's_nop 0'))
            put(it); prev = it
    def dmaW_static(st):
        base = (st % 3)*32768; L = []
        for mi, sr in enumerate((S_WUK, S_WUV)):
            L += [('s', f's_add_u32 s{sT0}, s{sWoff}, {st*64*8192}'), ('s', f's_add_u32 m0, s{sLW}, {base + mi*SL}')]
            for i in range(4): L.append(('m', f'buffer_load_dwordx4 v{vOffW+i}, s[{sr}:{sr+3}], s{sT0} offen offset:{1024*i} lds', f'W{st}', ('W', base + mi*SL, base + (mi+1)*SL, True)))
        return L
    def dmaA_static(st):
        base = ACT0 + (st % 2)*32768; L = []
        for half in range(2):
            L += [('s', f's_add_u32 s{sT1}, s{sAoff}, {st*128 + 32768*half}'), ('s', f's_add_u32 m0, s{sLA}, {base + 4096*half}')]
            for i in range(4): L.append(('m', f'buffer_load_dwordx4 v{vOffA+i}, s[{S_CKV}:{S_CKV+3}], s{sT1} offen offset:{1024*i} lds', f'A{st}', ('W', base, base + 32768, False)))
        return L
    if 'pp' in opt: p.stamp('setup')
    emit(dmaA_static(0)); emit(dmaW_static(0))
    if 'pp' in opt: p.stamp('A0W0 issued')
    srd(p, S_X, 84, 2048*640*2)
    srd(p, S_WQ, 92, 640*4096*2)
    srd(p, S_XNF, 98, SZ_XNF, WS_XNF)
    srd(p, S_KF, 98, SZ_KF, WS_KF)
    srd(p, S_VF, 98, SZ_KF, WS_VF)
    srd(p, S_CTX, 98, SZ_CTX, WS_CTX)
    srd(p, S_FL, 98, 8192, WS_FLG)
    X = 160; RAW = 200; vXo = 220; vXn = 221; LT = 224
    p(f's_lshl_b32 s{sT1}, s2, 3')
    p(f's_and_b32 s14, s{sW}, 1')
    p(f's_lshl_b32 s14, s14, 2')
    p(f's_add_u32 s{sT1}, s{sT1}, s14')
    p(f'v_and_b32 v{vT}, 3, v0')
    p(f'v_add_u32 v{vT}, s{sT1}, v{vT}')
    p(f'v_lshrrev_b32 v{vT+1}, 2, v0')
    p(f'v_mul_u32_u24 v{vXo}, 1280, v{vT}')
    p(f'v_lshl_add_u32 v{vXo}, v{vT+1}, 4, v{vXo}')
    p(f'v_lshrrev_b32 v{vXn}, 4, v{vT}')
    p(f'v_mul_u32_u24 v{vXn}, 20, v{vXn}')
    p(f'v_lshrrev_b32 v{vT+2}, 2, v{vT+1}')
    p(f'v_add_u32 v{vXn}, v{vXn}, v{vT+2}')
    p(f'v_lshlrev_b32 v{vXn}, 10, v{vXn}')
    p(f'v_and_b32 v{vT+2}, 3, v{vT+1}')
    p(f'v_lshlrev_b32 v{vT+2}, 4, v{vT+2}')
    p(f'v_and_b32 v{vT+3}, 15, v{vT}')
    p(f'v_add_u32 v{vT+2}, v{vT+2}, v{vT+3}')
    p(f'v_lshl_add_u32 v{vXn}, v{vT+2}, 4, v{vXn}')
    for i in range(5):
        p(f'buffer_load_dwordx4 v[{RAW+4*i}:{RAW+4*i+3}], v{vXo}, s[{S_X}:{S_X+3}], 0 offen offset:{256*i}')
    S_LNS = 96
    if 'nocode' not in opt:
        p(f's_lshr_b32 s14, s2, 3')
        p(f's_cmp_ge_u32 s14, 12')
        p(f's_cbranch_scc1 {name}_nocode')
        p(f's_cmp_lg_u32 s{sW}, 3')
        p(f's_cbranch_scc1 {name}_nocode')
        p('s_getpc_b64 s[76:77]')
        p.label(f'{name}_pc')
        p(f's_lshl_b32 s14, s14, 13')
        p(f'v_lshlrev_b32 v{vT}, 7, v0')
        p(f'v_add_u32 v{vT}, s14, v{vT}')
        p(f'v_min_u32 v{vT}, code_end_all-{name}_pc-4, v{vT}')
        p(f'v_and_b32 v{vT}, -4, v{vT}')
        p(f'global_load_dword v{vT+2}, v{vT}, s[76:77]')
        p.label(f'{name}_nocode')
    if 'notlb' not in opt:
        p('s_mov_b32 s76, s98'); p('s_mov_b32 s77, s99'); p(f's_mov_b32 s78, {96*MiB}'); p('s_mov_b32 s79, 0x00020000')
        p(f'v_mov_b32 v{vT}, {WS_FLG}')
        p(f's_add_u32 s14, s{sHbase}, {WS_KF}'); p(f'v_writelane_b32 v{vT}, s14, 1')
        p(f's_add_u32 s14, s{sHbase}, {WS_VF}'); p(f'v_writelane_b32 v{vT}, s14, 2')
        p(f's_lshl_b32 s15, s{sH}, 19')
        for k in range(2):
            p(f's_add_u32 s14, s15, {WS_KF + k*524160}'); p(f'v_writelane_b32 v{vT}, s14, {3 + 2*k}')
            p(f's_add_u32 s14, s15, {WS_VF + k*524160}'); p(f'v_writelane_b32 v{vT}, s14, {4 + 2*k}')
        p(f's_mov_b32 s14, {WS_XNF}'); p(f'v_writelane_b32 v{vT}, s14, 7')
        p(f's_mov_b32 s14, {WS_XNF + 2*MiB}'); p(f'v_writelane_b32 v{vT}, s14, 8')
        p(f's_sub_u32 s14, 15, s{sI}'); p('s_lshl_b32 s14, s14, 20'); p(f's_add_u32 s14, s14, {WS_CTX}'); p(f'v_writelane_b32 v{vT}, s14, 9')
        p(f's_lshl_b32 s14, s{sI}, 20'); p(f's_add_u32 s14, s14, {WS_CTX}'); p(f'v_writelane_b32 v{vT}, s14, 10')
        p(f'buffer_load_dword v{vT+2}, v{vT}, s[76:79], 0 offen')
    if 'pp' in opt: p.stamp('x issued')
    srd(p, S_DBG, 96, 256)
    p('v_mov_b32 v26, 0')
    p('s_or_b32 s14, s2, 0')
    p(f's_add_u32 s14, s2, s{sW}')
    p('s_cmp_lg_u32 s14, 0')
    p(f's_cbranch_scc1 {name}_notag')
    p('s_memrealtime s[92:93]')
    p('s_waitcnt lgkmcnt(0)')
    p('s_or_b32 s92, s92, 1')
    p('v_mov_b32 v24, s92')
    p(f'buffer_store_dword v24, v26, s[{S_DBG}:{S_DBG+3}], 0 offen sc1')
    p.label(f'{name}_notag')
    if 'pp' in opt: p.stamp('tag issued')
    emit(dmaA_static(1)); emit(dmaW_static(1))
    (p.stamp('dma issued') if 'pq' not in opt else None)
    p('s_cmp_lg_u32 s2, 0')
    p(f's_cbranch_scc1 {name}_nz')
    p(f's_add_u32 s76, s98, {WS_YACC}')
    p('s_addc_u32 s77, s99, 0')
    p(f's_mov_b32 s78, {SZ_ZERO}')
    p('s_mov_b32 s79, 0x00020000')
    for r in range(4): p(f'v_mov_b32 v{28+r}, 0')
    p(f's_mul_i32 s14, s{sW}, 7168')
    for i in range(7):
        p(f'buffer_store_dwordx4 v[28:31], v{vLane16}, s[76:79], s14 offen sc1')
        p(f's_add_u32 s14, s14, 1024')
    p.label(f'{name}_nz')
    p(f's_add_u32 s96, s98, {WS_XNF}')
    p('s_addc_u32 s97, s99, 0')
    p(f's_mov_b32 s98, {SZ_XNF}')
    p('s_mov_b32 s99, 0x00020000')
    p(f's_cmp_lt_u32 s{sW}, 2')
    p('s_cselect_b32 s98, s98, 0')
    p('s_waitcnt vmcnt(16)')
    p('s_barrier')
    (p.stamp('B0') if 'pq' not in opt else None)
    def rd_act(buf, kin, tb, lab):
        r = vAct + 16*buf + 4*tb
        return ('r', f'ds_read_b128 v[{r}:{r+3}], v{vCA+kin} offset:{2048*tb}', lab)
    def rd_wA(mi, db, kin, lab):
        r = (vWK if mi == 0 else vWV) + 4*db
        return [('r', f'ds_read_b64_tr_b16 v[{r+2*h}:{r+2*h+1}], v{vCW+db} offset:{mi*SL + 8192*kin + 1024*h}', lab) for h in range(2)]
    updA = [('v', f'v_add_u32 v{vCA}, s{sAr}, v{vLPA}'), ('v', f'v_xor_b32 v{vCA+1}, 64, v{vCA}')]
    updWd = [('v', f'v_add_u32 v{vCW}, s{sWr}, v{vLPW}')] + [('v', f'v_xor_b32 v{vCW+db}, {db*32}, v{vCW}') for db in range(1, 8)]
    KA = lambda tb, db: (tb*8 + db)*4
    VA = lambda tb, db: 128 + ((tb >> 1)*16 + db*2 + (tb & 1))*4
    def stageA_mfmas(first):
        L = []
        for kin in range(2):
            for db in range(8):
                for tb in range(4):
                    a = KA(tb, db); f = vAct + 16*kin + 4*tb
                    c = '0' if (first and kin == 0) else f'a[{a}:{a+3}]'
                    L.append(f'{MF} a[{a}:{a+3}], v[{vWK+4*db}:{vWK+4*db+3}], v[{f}:{f+3}], {c}')
                for tb in range(4):
                    a = VA(tb, db); f = vAct + 16*kin + 4*tb
                    c = '0' if (first and kin == 0) else f'a[{a}:{a+3}]'
                    L.append(f'{MF} a[{a}:{a+3}], v[{f}:{f+3}], v[{vWV+4*db}:{vWV+4*db+3}], {c}')
        return L
    GA = lambda kin, db, m: kin*64 + db*8 + m
    def spread(R, L, g0, g1):
        nm = sum(1 for x in L if x[0] in ('m', 'l', 'st'))
        step = max(1, (g1 - g0) // max(nm, 1))
        g = g0; cnt = 0; prev = None
        for it in L:
            e = max(g, g0 + cnt*step - (2 if it[0] == 's' else 0))
            if it[0] == 'm' and prev is not None and prev[0] == 's' and ' m0,' in prev[1]: e = max(e, gprev + 1)
            g = R.place(it, e, g1); gprev = g; prev = it
            if it[0] in ('m', 'l', 'st'): cnt += 1; g += 1
    def stageA(kind, dmaA_items, dmaB_items, barlabs, next_reads=None, mid=None, first=False, bend=None):
        R = Region(stageA_mfmas(first))
        BG = GA(1, 0, 7)
        R.S[BG].append(('bar', barlabs))
        if mid: R.S[BG].extend(mid)
        if next_reads is None:
            R.S[GA(1, 0, 1)].append(('s', f's_add_u32 s{sWr}, s{sWr}, 32768'))
            R.S[GA(1, 0, 2)].append(('s', f's_cmp_ge_u32 s{sWr}, 98304\ns_cselect_b32 s{sWr}, 0, s{sWr}'))
            R.S[GA(1, 0, 3)].append(('s', f's_sub_u32 s{sAr}, s{sASum}, s{sAr}'))
            R.stream(updA + updWd, GA(1, 0, 4), GA(1, 2, 0))
        else:
            R.stream(next_reads[0], GA(1, 0, 4), GA(1, 2, 0))
        for kin in range(2):
            for db in range(8):
                for mi in range(2):
                    if kin == 0 and db == 0 and mi == 0: continue
                    labs = [f'w{kin}_{mi}_{db}'] + ([f'act{kin}'] if (db == 0 and mi == 0) else [])
                    R.place(('wlg', labs), GA(kin, db, 4*mi) - 1, force=True)
        for db in range(8):
            for mi in range(2):
                rr = rd_wA(mi, db, 1, f'w1_{mi}_{db}')
                e = GA(0, db, 4*mi + 3)
                g = R.place(rr[0], e, GA(1, 0, 0)); R.place(rr[1], min(g + 1, GA(1, 0, 0)), GA(1, 0, 0))
        for tb in range(4): R.place(rd_act(1, 1, tb, 'act1'), GA(0, 1, 1) + 5*tb)
        if next_reads is None:
            for db in range(8):
                for mi in range(2):
                    rr = rd_wA(mi, db, 0, f'n0_{mi}_{db}')
                    e = max(GA(1, db, 4*mi + 3), GA(1, 2, 1))
                    g = R.place(rr[0], e); R.place(rr[1], g + 1)
            for tb in range(4): R.place(rd_act(0, 0, tb, 'nact0'), GA(1, 2, 2) + 5*tb)
        else:
            for (it, e) in next_reads[1]: R.place(it, max(e, GA(1, 2, 1)))
        if 'nodmaA' in opt and kind in ('s0', 's1', 'loop'): dmaA_items = [x for x in dmaA_items if x[0] != 'm']; dmaB_items = [x for x in dmaB_items if x[0] != 'm']
        if 'nowA' in opt and kind in ('s0', 's1', 'loop'):
            for g in range(R.n): R.S[g] = [x for x in R.S[g] if x[0] != 'wlg']
        if 'nordsA' in opt and kind in ('s0', 's1', 'loop'):
            for g in range(R.n): R.M[g] = []; R.S[g] = [x for x in R.S[g] if x[0] != 'wlg']
        spread(R, dmaA_items, 1, BG - 2)
        spread(R, dmaB_items, BG + 1, bend if bend else R.n - 2)
        return R
    def dyn_dmaW():
        L = []
        for mi, sr in enumerate((S_WUK, S_WUV)):
            L += [('s', f's_add_u32 m0, s{sWp}, {mi*SL}')]
            for i in range(4): L.append(('m', f'buffer_load_dwordx4 v{vOffW+i}, s[{sr}:{sr+3}], s{sKst} offen offset:{1024*i} lds', 'Wn', None))
        L += [('s', f's_add_u32 s{sKst}, s{sKst}, {64*8192}'), ('s', f's_add_u32 s{sWp}, s{sWp}, 32768'),
              ('s', f's_cmp_ge_u32 s{sWp}, 98304\ns_cselect_b32 s{sWp}, s{sLW}, s{sWp}')]
        return L
    def dyn_dmaA():
        L = []
        for half in range(2):
            L += [('s', f's_add_u32 s{sT1}, s{sAoff}, {32768*half}'), ('s', f's_add_u32 m0, s{sAp}, {4096*half}')]
            for i in range(4): L.append(('m', f'buffer_load_dwordx4 v{vOffA+i}, s[{S_CKV}:{S_CKV+3}], s{sT1} offen offset:{1024*i} lds', 'An', None))
        L += [('s', f's_add_u32 s{sAoff}, s{sAoff}, 128'), ('s', f's_sub_u32 s{sAp}, s{sASum}, s{sAp}')]
        return L
    p(f's_mov_b32 s{sWr}, 0')
    p(f's_add_u32 s{sAr}, s{sLA}, {ACT0}')
    p(f's_add_u32 s{sWp}, s{sLW}, 65536')
    p(f's_add_u32 s{sAp}, s{sLA}, {ACT0}')
    p(f's_lshl_b32 s{sASum}, s{sAp}, 1')
    p(f's_add_u32 s{sASum}, s{sASum}, 32768')
    p(f's_add_u32 s{sKst}, s{sWoff}, {2*64*8192}')
    p(f's_add_u32 s{sAoff}, s{sAoff}, 256')
    emit(updA + updWd)
    p.lgq = []; p.lg_ret = -1
    for tb in range(4): put(rd_act(0, 0, tb, 'act0'))
    for db in range(8):
        for mi in range(2): emit(rd_wA(mi, db, 0, f'w0_{mi}_{db}'))
    def next_order(R):
        L = []
        for g in range(R.n):
            for it in R.M[g]:
                if it[0] == 'r' and (it[2].startswith('n0_') or it[2] == 'nact0'):
                    L.append('act0' if it[2] == 'nact0' else 'w0_' + it[2][3:])
        return L
    order = [None]
    def relabel():
        p.lgq = list(order[0]); p.lg_ret = -1
    def bar_raw(n):
        if 'nobarA' in opt: return ('w', f's_waitcnt vmcnt({n}) lgkmcnt(0)')
        return ('w', f's_waitcnt vmcnt({n}) lgkmcnt(0)\ns_barrier')
    BG = GA(1, 0, 7)
    def fix_bar(R, n, extra=()):
        R.S[BG] = [bar_raw(n), ('call', lambda: p.lg_all())] + list(extra) + [x for x in R.S[BG] if x[0] != 'bar']
    def red64x4(r):
        L = []
        for sh in (8, 4): L += ['s_nop 1', f'v_add_f32_dpp v{r}, v{r}, v{r} row_ror:{sh} row_mask:0xf bank_mask:0xf']
        for sw in ('v_permlane16_swap_b32', 'v_permlane32_swap_b32'):
            L += [f'v_mov_b32 v{LT+6}, v{r}', 's_nop 1', f'{sw} v{r}, v{LT+6}', 's_nop 1', f'v_add_f32 v{r}, v{r}, v{LT+6}']
        return L
    lnops = []
    for i in range(5): lnops += unpack8(RAW + 4*i, X + 8*i)
    lnops += ln_stream(X, 40, LT, red64x4, scale='0x3e0293ee')
    ln = [('v', x) for x in lnops]
    for i in range(5):
        ln.append(('s', f's_mov_b32 s14, {4096*i}'))
        ln.append(('st', f'buffer_store_dwordx4 v[{X+4*i}:{X+4*i+3}], v{vXn}, s[{S_LNS}:{S_LNS+3}], s14 offen sc1'))
    half = len(ln) // 2
    def tag_read():
        p('s_mov_b32 s14, 0')
        p.label(f'{name}_tagpoll')
        p(f'v_readfirstlane_b32 s{sTag}, v24')
        p('s_add_u32 s14, s14, 1')
        p('s_nop 2')
        p(f's_cmp_lg_u32 s{sTag}, 0')
        p(f's_cbranch_scc1 {name}_notag2')
        p(f's_cmp_ge_u32 s14, {SPIN}')
        p(f's_cbranch_scc1 {name}_notag2')
        p(f'buffer_load_dword v24, v26, s[{S_DBG}:{S_DBG+3}], 0 offen sc1')
        p('s_waitcnt vmcnt(0)')
        p(f's_branch {name}_tagpoll')
        p.label(f'{name}_notag2')
    def pub_ln():
        p(f's_cmp_lg_u32 s{sCnt}, 0')
        p(f's_cbranch_scc1 {name}_nopub')
        p(f's_cmp_lg_u32 s{sW}, 0')
        p(f's_cbranch_scc1 {name}_nopub')
        p(f's_lshl_b32 s14, s2, 3')
        p(f'v_mov_b32 v24, s{sTag}')
        p(f'v_mov_b32 v25, s{sXcc}')
        p('v_mov_b32 v26, 0')
        p(f'buffer_store_dwordx2 v[24:25], v26, s[{S_FL}:{S_FL+3}], s14 offen sc1')
        p.label(f'{name}_nopub')
    R0 = stageA('s0', dyn_dmaW(), dyn_dmaA(), None, first=True, bend=BG + 34)
    fix_bar(R0, 8)
    R0.place(('l', f'buffer_load_dword v24, v26, s[{S_DBG}:{S_DBG+3}], 0 offen sc1', 'TAG'), BG + 1, force=True)
    R0.period = 20; R0.stream(ln[:half], 4, None, pace=lambda k: 4 + (k*120)//half); R0.period = 16
    p.lgq = ['act0']*4 + [f'w0_{mi}_{db}' for db in range(8) for mi in range(2) for _ in range(2)]; p.lg_ret = -1
    put(('wlg', ['w0_0_0', 'act0']))
    R0.emit(p, put); order[0] = next_order(R0)
    R1_ = stageA('s1', dyn_dmaW(), dyn_dmaA(), None, bend=BG + 34)
    fix_bar(R1_, 8, [('call', tag_read)])
    nv = [x for x in ln[half:] if x[0] == 'v']; tail = ln[half + len(nv):]
    R1_.period = 20; g = R1_.stream(ln[half:], 0, None, pace=lambda k: min((k*118)//(len(ln) - half), 200) if ln[half + k][0] == 'v' else BG + 2); R1_.period = 16
    relabel(); put(('wlg', ['w0_0_0', 'act0']))
    R1_.emit(p, put); order[0] = next_order(R1_)
    print('stage0/1 est', R0.total(), R1_.total())
    if 'ps' in opt: p.stamp('stage1 done')
    p(f's_mov_b32 s{sCnt}, 0')
    LA = f'{name}_stageA'
    p.label(LA)
    Rl = stageA('loop', dyn_dmaW(), dyn_dmaA(), None, bend=BG + 34)
    fix_bar(Rl, 8, [('call', pub_ln)])
    Rl.T[Rl.n - 1] += [('s', f's_add_u32 s{sCnt}, s{sCnt}, 1'), ('s', f's_cmp_lt_u32 s{sCnt}, 4')]
    assert 'nordsA' in opt or next_order(Rl) == order[0], 'stage read order must be periodic'
    relabel()
    put(('wlg', ['w0_0_0', 'act0']))
    Rl.emit(p, put)
    print('stageA loop est', Rl.total(), 'overflow', Rl.over)
    p(f's_cbranch_scc1 {LA}')
    if 'pp' not in opt: (p.stamp('A loop done') if 'pq' not in opt else None)
    def dma_wq(c):
        L = [('s', f's_add_u32 s{sT0}, s{sWoff}, {c*64*8192}'), ('s', f's_add_u32 m0, s{sLW}, {c*SL}')]
        for i in range(4):
            L.append(('m', f'buffer_load_dwordx4 v{vOffW+i}, s[{S_WQ}:{S_WQ+3}], s{sT0} offen offset:{1024*i} lds', f'WQ{c}', None))
        return L
    relabel()
    put(('wlg', ['w0_0_0', 'act0']))
    flagld = [('s', f's_sub_u32 s{sTL}, 15, s{sI}'), ('s', f's_mov_b32 s{sTS}, s{sI}'),
              ('v', f'v_and_b32 v24, 15, v0'), ('v', f'v_bfe_u32 v25, v0, 4, 1'),
              ('v', f'v_mov_b32 v26, s{sTL}'), ('v', f'v_mov_b32 v27, s{sTS}'),
              ('v', f'v_cmp_eq_u32 vcc, 0, v25'), ('v', 's_nop 1'), ('v', f'v_cndmask_b32 v26, v27, v26, vcc'),
              ('v', f'v_lshl_add_u32 v24, v26, 4, v24'),
              ('s', f's_and_b32 s14, s{sH}, 3'), ('s', f's_lshl_b32 s14, s14, 6'), ('s', f's_lshr_b32 s15, s{sH}, 2'), ('s', f's_add_u32 s14, s14, s15'),
              ('v', f'v_and_b32 v25, 7, v0'), ('v', f'v_lshlrev_b32 v25, 3, v25'), ('v', f'v_add_u32 v25, s14, v25'),
              ('v', f'v_cmp_gt_u32 vcc, 32, v0'), ('v', 's_nop 1'), ('v', f'v_cndmask_b32 v24, v25, v24, vcc'),
              ('v', f'v_lshlrev_b32 v24, 3, v24'),
              ('l', f'buffer_load_dwordx2 v[28:29], v24, s[{S_FL}:{S_FL+3}], 0 offen sc1', 'FL')]
    R6 = stageA('s6', dma_wq(4) + dma_wq(5), dma_wq(0) + dma_wq(1), None)
    fix_bar(R6, 8)
    R6.stream(flagld, BG + 24)
    R6.emit(p, put)
    order[0] = next_order(R6)
    XR = [16, 96, 32, 80]
    XRING = [('v', 16), ('v', 96), ('v', 32), ('v', 80), ('a', 0), ('a', 16), ('a', 32), ('a', 48)]
    def xreg(ks, c):
        t, b = XRING[ks % 8]
        return f'{t}[{b+4*c}:{b+4*c+3}]'
    def xn_load(ks):
        L = []
        for c in range(4):
            off = ks*1024 + (c & 1)*20480
            sb = sXL if c < 2 else sXS
            L.append(('s', f's_add_u32 s{sT1}, s{sb}, {off & ~4095}'))
            L.append(('l', f'buffer_load_dwordx4 {xreg(ks, c)}, v{vLane16}, s[{S_XNF}:{S_XNF+3}], s{sT1} offen offset:{off & 4095} sc1', f'XN{ks}'))
        return L
    def rd_w(db, kin, base, lab):
        r = vWF + 4*db
        return [('r', f'ds_read_b64_tr_b16 v[{r+2*h}:{r+2*h+1}], v{vCW+db} offset:{8192*kin + 1024*h}', lab, None) for h in range(2)]
    def upd_w(base):
        return [('v', f'v_add_u32 v{vCW}, {base}, v{vLPW}')] + [('v', f'v_xor_b32 v{vCW+db}, {db*32}, v{vCW}') for db in range(1, 8)]
    def lncheck():
        p(f's_cmp_lg_u32 s{sW}, 0')
        p(f's_cbranch_scc1 {name}_lnok')
        p('s_mov_b32 s14, 0')
        p.label(f'{name}_lnpoll')
        p(f'v_cmp_ne_u32 vcc, s{sTag}, v28')
        p('s_add_u32 s14, s14, 1')
        p(f's_cbranch_vccz {name}_lnok2')
        p(f's_cmp_ge_u32 s14, {SPIN}')
        p(f's_cbranch_scc1 {name}_lnok2')
        p(f'buffer_load_dwordx2 v[28:29], v24, s[{S_FL}:{S_FL+3}], 0 offen sc1')
        p('s_waitcnt vmcnt(0)')
        p(f's_branch {name}_lnpoll')
        p.label(f'{name}_lnok2')
        p(f'v_cmp_ne_u32 vcc, s{sXcc}, v29')
        p('s_nop 1')
        p('s_lshr_b64 s[14:15], vcc, 32')
        p('s_cmp_eq_u64 s[14:15], 0')
        p(f's_cselect_b32 s{sSame}, 1, 0')
        p.label(f'{name}_lnok')
    relabel()
    put(('wlg', ['w0_0_0', 'act0']))
    xset = [('s', f's_lshl_b32 s{sT1}, s{sTL}, 3'), ('s', f's_lshl_b32 s{sT0}, s{sW}, 1'), ('s', f's_add_u32 s{sT1}, s{sT1}, s{sT0}'),
            ('s', f's_mul_i32 s{sXL}, s{sT1}, 20480'), ('s', f's_lshl_b32 s{sT1}, s{sTS}, 3'), ('s', f's_add_u32 s{sT1}, s{sT1}, s{sT0}'),
            ('s', f's_mul_i32 s{sXS}, s{sT1}, 20480')]
    def last_use(db):
        r = vWF + 4*db
        if r < 64: return GA(1, (r - vWK)//4, 3)
        return GA(1, (r - vWV)//4, 7)
    nr = []
    for db in range(8):
        for it in rd_w(db, 0, 0, f'w0_{db}'): nr.append((it, last_use(db) + 1))
    R7 = stageA('s7', xset + dma_wq(6) + dma_wq(7), dma_wq(2) + dma_wq(3) + dma_wq(8) + dma_wq(9), None, next_reads=(upd_w(0), nr))
    R7.S[BG] = [('call', lambda: (p('s_waitcnt vmcnt(8) lgkmcnt(0)'), p.lg_all(), lncheck(), p('s_barrier')))] + [x for x in R7.S[BG] if x[0] != 'bar']
    R7.stream(xn_load(0) + xn_load(1), BG + 2)
    R7.stream(xn_load(2), GA(1, 4, 0))
    R7.emit(p, put)
    if 'pp' not in opt: p.stamp('phase A done')
    NKS = 20
    mf = []
    for ks in range(NKS):
        for db in range(8):
            for c in range(4):
                acc = O(c, db)
                cc = '0' if ks == 0 else f'v[{acc}:{acc+3}]'
                mf.append(f'{MF} v[{acc}:{acc+3}], v[{vWF+4*db}:{vWF+4*db+3}], {xreg(ks, c)}, {cc}')
    R = Region(mf)
    G = lambda ks, db, c: ks*32 + db*4 + c
    p.wait_vm('XN0')
    put(('wlg', ['w0_0', 'w0_1']))
    R.S[G(3, 0, 3)].append(('bar', ['WQ2', 'WQ3', 'WQ8', 'WQ9', 'WQ4', 'WQ5', 'WQ6', 'WQ7']))
    for ch in range(9):
        R.stream(upd_w((ch + 1)*SL), G(2*ch + 1, 0, 1), G(2*ch + 1, 2, 0))
    for ks in range(NKS):
        for db in range(0, 8, 2):
            if ks == 0 and db == 0: continue
            R.place(('wlg', [f'w{ks}_{db}', f'w{ks}_{db+1}']), G(ks, db, 0) - 1, force=True)
        if ks: R.place(('wvm', f'XN{ks}'), G(ks, 0, 0) - 2, force=True)
    for ks in range(NKS - 1):
        ch, t = divmod(ks, 2); nxt = ks + 1; nch, nt = divmod(nxt, 2)
        for db in range(8):
            e = G(ks, db, 3)
            if t == 1: e = max(e, G(ks, 2, 1))
            rr = rd_w(db, nt, nch*SL, f'w{nxt}_{db}')
            lat = G(ks + 1, 0, 0) if t == 0 else None
            g = R.place(rr[0], e, lat); R.place(rr[1], g + 1 if t == 1 or db < 7 else g, lat)
    TE = 112
    STF = ''
    for o_ in opt:
        if o_.startswith('stf='): STF = o_[4:]
    sSt = sCtx
    epi = []
    sStB = sHbase
    for kind in range(2):
        for f in range(16):
            if kind == 0:
                tb, k4 = divmod(f, 4); a0 = KA(tb, 2*k4); off = tb*4096 + k4*1024; sr = S_KF
            else:
                b, db = divmod(f, 8); a0 = 128 + (b*16 + db*2)*4; off = b*8192 + db*1024; sr = S_VF
            for k in range(8): epi.append(('v', f'v_accvgpr_read_b32 v{TE+k}, a{a0+k}'))
            for k in range(4): epi.append(('v', f'v_cvt_pk_bf16_f32 v{TE+k}, v{TE+2*k}, v{TE+2*k+1}'))
            epi.append(('s', f's_add_u32 s{sSt}, s{sStB}, {off & ~4095}'))
            epi.append(('st', f'buffer_store_dwordx4 v[{TE}:{TE+3}], v{vLane16}, s[{sr}:{sr+3}], s{sSt} offen offset:{off & 4095} {STF}'))
            if 'nost' in opt: epi.pop()
            epi.append(('s', 's_nop 0'))
    KS_V = int(next((o_[3:] for o_ in opt if o_.startswith('kv=')), '17'))
    g0 = 12; span = G(KS_V, 4, 0) - g0
    gl = R.stream(epi, g0, None, pace=lambda k: g0 + (k*span)//len(epi))
    freed = {}
    for g in range(R.n):
        for it in R.V[g]:
            if it[1].startswith('v_accvgpr_read'): freed[int(it[1].split(' a')[-1])] = g
    gprev = 0
    for ks in range(3, NKS):
        t, b = XRING[ks % 8]
        if t == 'a' and ks < 8: e = max(freed[r] for r in range(b, b + 16)) + 1
        elif ks >= 8: e = G(ks - 8, 7, 3) + 1
        else: e = 0
        e = max(e, gprev + 1, G(max(ks - 7, 0), 0, 0))
        lat = G(ks, 0, 0) - 40 if ks > 3 else G(1, 0, 0)
        gprev = R.stream(xn_load(ks), e, max(lat, e + 8))
    FK, FV = 4096, 5120
    def publish(off, lab, waitlabel):
        p.wait_vm(waitlabel)
        p('s_barrier')
        p(f's_cmp_lg_u32 s{sW}, 0')
        p(f's_cbranch_scc1 {name}_{lab}pub')
        p(f's_lshl_b32 s14, s{sH}, 3')
        p(f's_add_u32 s14, s14, s{sI}')
        p(f's_lshl_b32 s14, s14, 2')
        p(f's_add_u32 s14, s14, {off}')
        p(f'v_mov_b32 v12, s{sTag}')
        p('v_mov_b32 v13, 0')
        p(f's_cmp_eq_u32 s{sSame}, 1')
        p(f's_cbranch_scc1 {name}_{lab}rel')
        p('buffer_wbl2 sc1')
        p('s_waitcnt vmcnt(0)')
        p(f'buffer_store_dword v12, v13, s[{S_FL}:{S_FL+3}], s14 offen sc1')
        p(f's_branch {name}_{lab}pub')
        p.label(f'{name}_{lab}rel')
        p(f'buffer_store_dword v12, v13, s[{S_FL}:{S_FL+3}], s14 offen')
        p.label(f'{name}_{lab}pub')
    def flag_load(off, lab):
        return [('s', f's_lshl_b32 s15, s{sH}, 5'), ('s', f's_add_u32 s15, s15, {off}'),
                ('v', 'v_and_b32 v13, 7, v0'), ('v', 'v_lshlrev_b32 v13, 2, v13'),
                ('l', f'buffer_load_dword v12, v13, s[{S_FL}:{S_FL+3}], s15 offen sc1', lab)]
    def check(lab, waitlabel):
        p.wait_vm(waitlabel, 'lgkmcnt(0)'); p.lg_all()
        p(f's_cmp_lg_u32 s{sW}, 0')
        p(f's_cbranch_scc1 {name}_{lab}ok')
        p('s_mov_b32 s14, 0')
        p.label(f'{name}_{lab}poll')
        p(f'v_cmp_ne_u32 vcc, s{sTag}, v12')
        p('s_add_u32 s14, s14, 1')
        p(f's_cbranch_vccz {name}_{lab}ok2')
        p(f's_cmp_ge_u32 s14, {SPIN}')
        p(f's_cbranch_scc1 {name}_{lab}ok2')
        p(f'buffer_load_dword v12, v13, s[{S_FL}:{S_FL+3}], s15 offen sc1')
        p('s_waitcnt vmcnt(0)')
        p(f's_branch {name}_{lab}poll')
        p.label(f'{name}_{lab}ok2')
        p(f's_cmp_eq_u32 s{sSame}, 1')
        p(f's_cbranch_scc1 {name}_{lab}ok')
        p('buffer_inv sc1')
        p('s_waitcnt vmcnt(0)')
        p.label(f'{name}_{lab}ok')
        p('s_barrier')
    def att_state():
        p(f's_lshl_b32 s{sKb}, s{sH}, 19')
        p(f's_add_u32 s{sKb}, s{sKb}, s{sLW}')
        p(f's_mov_b32 s{sVb}, s{sKb}')
    def unitK(slot, label):
        L = [('s', f's_add_u32 m0, s{sLW}, {slot*32768}')]
        for i in range(4): L.append(('m', f'buffer_load_dwordx4 v{vLane16}, s[{S_KF}:{S_KF+3}], s{sKb} offen offset:{1024*i} lds', label, None))
        return L + [('s', f's_add_u32 s{sKb}, s{sKb}, 16384')]
    def unitV(slot, label):
        L = [('s', f's_add_u32 m0, s{sLW}, {slot*32768 + SL}')]
        for i in range(4): L.append(('m', f'buffer_load_dwordx4 v{vLane16}, s[{S_VF}:{S_VF+3}], s{sVb} offen offset:{1024*i} lds', label, None))
        return L + [('s', f's_add_u32 s{sVb}, s{sVb}, 16384')]
    def dma_K(label, tagbase=None):
        L = [('s', f's_mov_b32 m0, s{sSlotP}')]
        for i in range(4):
            L.append(('m', f'buffer_load_dwordx4 v{vLane16}, s[{S_KF}:{S_KF+3}], s{sKb} offen offset:{1024*i} lds', label, None))
        L += [('s', f's_add_u32 s{sKb}, s{sKb}, 16384')]
        return L
    def dma_V(label, tagbase=None):
        L = [('s', f's_add_u32 m0, s{sSlotP}, {SL}')]
        for i in range(4):
            L.append(('m', f'buffer_load_dwordx4 v{vLane16}, s[{S_VF}:{S_VF+3}], s{sVb} offen offset:{1024*i} lds', label, None))
        L += [('s', f's_add_u32 s{sVb}, s{sVb}, 16384')]
        return L
    adv_slot = [('s', f's_add_u32 s{sSlotP}, s{sSlotP}, 32768'), ('s', f's_cmp_ge_u32 s{sSlotP}, {NSLOT*32768}\ns_cselect_b32 s{sSlotP}, s{sLW}, s{sSlotP}')]
    R.emit(p, put)
    print('fused qproj overflow', R.over, 'est', R.total())
    if 'pp' not in opt: p.stamp('q end')
    p(f's_mov_b32 s{sFlag}, 0')
    p(f's_mov_b32 s{sLim}, {hex(LIM)}')
    def touch_setup():
        p(f's_load_dwordx2 s[92:93], s[0:1], {ARG["wo"]}')
        p(f's_load_dwordx2 s[94:95], s[0:1], {ARG["wg"]}')
        p(f's_load_dwordx2 s[96:97], s[0:1], {ARG["wu"]}')
        p(f's_load_dwordx2 s[98:99], s[0:1], {ARG["wd"]}')
        p('s_lshl_b32 s14, s2, 2')
        p(f's_add_u32 s14, s14, s{sW}')
        p('s_mul_i32 s14, s14, 40')
        p('v_min_u32 v14, 39, v0')
        p('v_add_u32 v14, s14, v14')
        p('v_lshlrev_b32 v14, 7, v14')
        p('s_lshr_b32 s14, s2, 6')
        p('s_lshl_b32 s14, s14, 2')
        p(f's_and_b32 s15, s{sI}, 3')
        p('s_add_u32 s14, s14, s15')
        p('s_lshl_b32 s14, s14, 3')
        p('s_and_b32 s15, s2, 7')
        p('s_add_u32 s14, s14, s15')
        p('s_lshl_b32 s14, s14, 2')
        p(f's_add_u32 s14, s14, s{sW}')
        p('s_mul_i32 s14, s14, 34')
        p('v_min_u32 v15, 33, v0')
        p('v_add_u32 v15, s14, v15')
        p('v_min_u32 v15, 17279, v15')
        p('v_lshlrev_b32 v15, 7, v15')
        p('s_waitcnt lgkmcnt(0)')
    touch_items = [('l', 'global_load_dword v13, v14, s[92:93]', 'T'), ('l', 'global_load_dword v13, v15, s[94:95]', 'T'),
                   ('l', 'global_load_dword v13, v15, s[96:97]', 'T'), ('l', 'global_load_dword v13, v15, s[98:99]', 'T')]
    att_state()
    touch_setup()
    publish(FK, 'k', 'st')
    for it in flag_load(FK, 'KFL'): put(it)
    p.stamp('pub done')
    p('s_nop 7')
    for c in range(4):
        for ks in range(4):
            a0 = O(c, 2*ks)
            for k in range(4): p(f'v_cvt_pk_bf16_f32 v{a0+k}, v{a0+2*k}, v{a0+2*k+1}')
            for k in range(4): p(f'v_accvgpr_write_b32 a{aQ + 16*c + 4*ks + k}, v{a0+k}')
    p(f'v_mov_b32 v{vT}, 0x3f803f80')
    for k in range(4): p(f'v_accvgpr_write_b32 a{128+k}, v{vT}')
    p(f'v_and_b32 v{vT}, 15, v0')
    p(f'v_lshrrev_b32 v{vT+1}, 4, v0')
    p(f'v_lshlrev_b32 v{vT+1}, 2, v{vT+1}')
    p(f'v_sub_u32 v{vT}, v{vT}, v{vT+1}')
    for r in range(4): p(f'v_cmp_le_i32 s[{sM+2*r}:{sM+2*r+1}], {r}, v{vT}')
    p(f'v_mov_b32 v{vNinf}, {hex(NEGBIG)}')
    for r in range(16): p(f'v_mov_b32 v{vNeg+r}, 0')
    for c in range(4): p(f'v_mov_b32 v{vL+c}, 0')
    for r in range(64): p(f'v_mov_b32 v{vO+r}, 0')
    p.stamp('pre check')
    check('k', 'KFL')
    emit(unitK(0, 'U-1') + unitK(1, 'U0') + unitV(1, 'U0'))
    p.stamp('kv ok')
    nerr = 0

    def rdK(b, f):  return ('r', f'ds_read_b128 a[{aK+4*f}:{aK+4*f+3}], v{vRd} offset:{b*8192 + f*1024}', f'K{f}')
    def rdV(b, f):  return ('r', f'ds_read_b128 a[{aV+4*f}:{aV+4*f+3}], v{vRd} offset:{16384 + b*8192 + f*1024}', f'V{f}')
    def qk_mfmas(cols, sbase, cin):
        L = []
        for i, c in enumerate(cols):
            for kb in range(2):
                S = Sr(sbase + i, kb)
                for ks in range(4):
                    cc = cin(c, kb) if ks == 0 else S
                    L.append(f'{MF} v[{S}:{S+3}], a[{aK+4*(kb*4+ks)}:{aK+4*(kb*4+ks)+3}], a[{aQ+16*c+4*ks}:{aQ+16*c+4*ks+3}], v[{cc}:{cc+3}]')
        return L
    def pv_mfmas(cols, par, first=False):
        L = []
        for c in cols:
            for db in range(8):
                o = O(c, db)
                cc = '0' if first else f'v[{o}:{o+3}]'
                L.append(f'{MF} v[{o}:{o+3}], a[{aV+4*db}:{aV+4*db+3}], v[{Pr(par, c)}:{Pr(par, c)+3}], {cc}')
        return L
    aOne = 128
    Lm = lambda c: vP + 8 + 4*c
    def sum_mfmas(cols, par):
        return [f'{MF} v[{Lm(c)}:{Lm(c)+3}], a[{aOne}:{aOne+3}], v[{Pr(par, c)}:{Pr(par, c)+3}], v[{Lm(c)}:{Lm(c)+3}]' for c in cols]
    def sm_window_ns(c, sslot, par):
        S = vS + 8*sslot; P = Pr(par, c); W = []
        for k in range(4):
            e0, e1 = vE + (2*k) % 4, vE + (2*k + 1) % 4
            W += [[f'v_exp_f32 v{e0}, v{S+2*k}'], [f'v_exp_f32 v{e1}, v{S+2*k+1}'],
                  [f'v_cvt_pk_bf16_f32 v{P+k}, v{e0}, v{e1}'], []]
        return W
    def sm_window(c, sslot, par):
        S = vS + 8*sslot; P = Pr(par, c); W = []
        for k in range(4):
            e0, e1 = vE + (2*k) % 4, vE + (2*k + 1) % 4
            W += [[f'v_exp_f32 v{e0}, v{S+2*k}'], [f'v_exp_f32 v{e1}, v{S+2*k+1}'],
                  [f'v_add_f32 v{vL+c}, v{vL+c}, v{e0}'],
                  [f'v_add_f32 v{vL+c}, v{vL+c}, v{e1}', f'v_cvt_pk_bf16_f32 v{P+k}, v{e0}, v{e1}']]
        return W
    cin_neg = lambda c, kb: vNeg + 4*c
    def cin_mask(tile_cols):
        def f(c, kb):
            if c in tile_cols: return vCi + 8*(c - tile_cols[0]) + 4*kb
            return vNeg + 4*c
        return f
    def mask_ops(tile_cols):
        c0 = tile_cols[0]
        L = [('s', f's_cmp_lt_i32 s{sDd}, 0\ns_cselect_b64 s[14:15], -1, 0'),
             ('s', f's_cmp_eq_u32 s{sDd}, 0\n' + '\n'.join(f's_cselect_b64 s[{4+2*r}:{5+2*r}], s[{sM+2*r}:{sM+2*r+1}], s[14:15]' for r in range(4))),
             ('s', f's_cmp_le_i32 s{sDd}, 0\ns_cselect_b64 s[12:13], -1, 0')]
        for cb in range(2):
            for kb in range(2):
                for r in range(4):
                    m = 4 + 2*r if cb == kb else (12 if (cb == 1 and kb == 0) else 14)
                    L.append(('v', f'v_cndmask_b32 v{vCi + 8*cb + 4*kb + r}, v{vNinf}, v{vNeg + 4*(c0 + cb) + r}, s[{m}:{m+1}]'))
        return L
    LC, SC = [0, 1], [2, 3]
    def build_group(mf, windows, reads, dmas=(), extra=(), pre_wait=None, mid_wait=None, nwin=None):
        R = Region(mf)
        n = len(mf)
        for (g0, W) in windows:
            for i, ops in enumerate(W):
                for o in ops: R.place(('v', o), g0 + i, force=True)
        slots = [g for g in range(n) if g % 4 == 2]
        if len(slots) < len(reads): slots = sorted(slots + [g for g in range(n) if g % 4 == 3])
        if n == 16 or nwin == 16: slots = [g for g in range(16) if g % 4 in (2, 3)]
        for it, g in zip(reads, slots): R.place(it, g, force=True)
        if dmas:
            free = [g for g in range(n) if not R.M[g]]
            pref = [g for g in free if g >= 16 and nwin == 16] + [g for g in free if g % 4 == 3 and not (g >= 16 and nwin == 16)] + [g for g in free if g % 4 == 1] + [g for g in free if g % 4 in (0, 2)]
            nm = sum(1 for x in dmas if x[0] == 'm')
            use = sorted([g for g in pref if g >= 1][:nm])
            if nwin == 16 and nm == 4: use = [5, 9, 13, 16]
            k = 0; pend_s = []
            for it in dmas:
                if it[0] == 's': pend_s.append(it)
                else:
                    g = use[k]; k += 1
                    for j, sx in enumerate(pend_s):
                        gg = max(0, g - len(pend_s) + j)
                        if k > 1: gg = max(gg, use[k-2] + 1) if use[k-2] + 1 <= g - 1 or ' m0,' not in sx[1] else gg
                        if gg == g and ' m0,' in sx[1]: R.place(('s', 's_nop 0'), g, force=True) if False else None
                        R.place(sx, gg, force=True)
                    pend_s = []
                    R.place(it, g, force=True)
            for j, sx in enumerate(pend_s):
                gg = use[-1] + 1 + j
                if gg <= n - 1: R.place(sx, gg, force=True)
                else: R.T[n - 1].append(sx)
        if extra:
            g = 0
            for it in extra:
                best = None
                for gg in range(g, n - 1):
                    if R.fits(gg, it): best = gg; break
                if best is None:
                    best = g
                R.place(it, best, force=True); g = best
        if mid_wait: R.place(mid_wait[1], mid_wait[0], force=True)
        return R
    slot_adv = [('s', f's_add_u32 s{sSlotR}, s{sSlotR}, 32768'), ('s', f's_cmp_ge_u32 s{sSlotR}, {NSLOT*32768}\ns_cselect_b32 s{sSlotR}, 0, s{sSlotR}')]
    def start_items(R, vm=16):
        pre = []
        if vm is None: return
        if 'nodma' not in opt: pre.append(('w', f's_waitcnt vmcnt({vm})'))
        if 'nobar' not in opt: pre.append(('w', 's_barrier'))
        R.S[0] = pre + R.S[0]
    def end_items(R, loop=None):
        n = R.n
        for j, it in enumerate(slot_adv): R.S[4 + 4*j if n > 16 else 1 + 4*j].append(it) if False else None
        g0 = 8
        for j, it in enumerate(slot_adv): R.S[g0 + j].append(it)
        R.V[n - 1].append(('v', f'v_add_u32 v{vRd}, s{sSlotR}, v{vLane16}'))
        if loop:
            R.S[n - 3].append(('s', f's_sub_u32 s{sCnt}, s{sCnt}, 1'))
            R.T[n - 1].append(('s', f's_cmp_lg_u32 s{sCnt}, 0'))
    def emit_group(R, pre):
        if pre and 'nords' not in opt:
            put(('wlg', [f'{pre}{f}' for f in range(4)]))
            R.S[3].insert(0, ('wlg', [f'{pre}{f}' for f in range(4, 8)]))
        if 'nosm' in opt:
            for g in range(R.n): R.V[g] = []
        if 'noexp' in opt:
            for g in range(R.n): R.V[g] = [(x[0], x[1].replace('v_exp_f32', 'v_mov_b32')) for x in R.V[g]]
        if 'nodma' in opt:
            for g in range(R.n): R.M[g] = [x for x in R.M[g] if x[0] != 'm']
        if 'nords' in opt:
            for g in range(R.n):
                R.M[g] = [x for x in R.M[g] if x[0] != 'r']; R.S[g] = [x for x in R.S[g] if x[0] != 'wlg']
            pre = None; R.S[3] = [x for x in R.S[3] if x[0] != 'wlg']
        R.emit(p, put)
    stats = {'cyc': 0}
    def interval(kind, lbl, maskL=None, maskS=None, loop=False, vm=16):
        dual = kind in ('D', 'T')
        mA, mB, mN = (maskS if dual else maskL) or (False, False, False)
        tile = SC if dual else LC
        p.lgq = ['K%d' % f for f in range(8)]; p.lg_ret = -1
        tot = 0
        if dual:
            cols = [0, 1, 2, 3]
            R1 = build_group(qk_mfmas(cols, 0, cin_mask(SC) if mA else cin_neg),
                             [(0, sm_window(3, 3, 0)), (16, sm_window(0, 0, 1))], [rdV(0, f) for f in range(8)], dma_K('x'),
                             mid_wait=None)
            start_items(R1, vm)
            if lbl == 'db':
                g_ = 1
                sel = ([touch_items[0]] if TW else []) + (touch_items[1:] if TF else [])
                for it in sel:
                    while R1.M[g_]: g_ += 1
                    R1.M[g_].append(it); g_ += 3
            emit_group(R1, 'K')
            ex = ([('s', f's_add_u32 s{sDd}, s{sDd}, 1')] + mask_ops(SC if kind == 'D' else LC)) if mB else []
            if kind == 'T': ex = mask_ops(LC)
            R2 = build_group(pv_mfmas(cols, 0), [(0, sm_window(1, 1, 1)), (16, sm_window(2, 2, 1))], [rdK(0, f) for f in range(8)], extra=ex)
            if kind == 'T':
                emit([('s', f's_sub_u32 s{sDd}, s{sTS}, s{sTL}'), ('s', f's_lshl_b32 s{sDd}, s{sDd}, 2'), ('s', f's_add_u32 s{sDd}, s{sDd}, 4'), ('s', f's_sub_u32 s{sDd}, s{sDd}, s{sW}')])
            emit_group(R2, 'V')
            if kind == 'D':
                R3 = build_group(qk_mfmas(cols, 0, cin_mask(SC) if mB else cin_neg),
                                 [(0, sm_window(3, 3, 1)), (16, sm_window(0, 0, 0))], [rdV(1, f) for f in range(8)], dma_V('x') + adv_slot)
                emit_group(R3, 'K')
                ex = ([('s', f's_add_u32 s{sDd}, s{sDd}, 1')] + mask_ops(SC)) if mN else []
                R4 = build_group(pv_mfmas(cols, 1), [(0, sm_window(1, 1, 0)), (16, sm_window(2, 2, 0))], [rdK(1, f) for f in range(8)], extra=ex)
                end_items(R4, loop)
                emit_group(R4, 'V')
            else:
                R3 = build_group(qk_mfmas(LC, 0, cin_mask(LC)), [(0, sm_window(3, 3, 1))], [rdV(1, f) for f in range(8)], dma_V('x') + adv_slot)
                emit_group(R3, 'K')
                ex = ([('s', f's_add_u32 s{sDd}, s{sDd}, 1')] + mask_ops(LC))
                ex = [('v', f'v_mov_b32 v{Lm(c)+r}, 0') for c in LC for r in range(4)] + ex
                R4 = build_group(pv_mfmas(cols, 1), [(0, sm_window_ns(0, 0, 0))], [rdK(1, f) for f in range(8)], extra=ex)
                end_items(R4)
                emit_group(R4, 'V')
            tot = R1.total() + R2.total() + R3.total() + R4.total()
        else:
            dK = dma_K('x'); dv_ = dma_V('x'); dV = dv_[:1] + adv_slot + dv_[1:]
            R1 = build_group(qk_mfmas(LC, 2, cin_mask(LC) if mA else cin_neg), [(0, sm_window_ns(1, 1, 0))], [rdV(0, f) for f in range(8)])
            start_items(R1, vm)
            emit_group(R1, 'K')
            ex = ([('s', f's_add_u32 s{sDd}, s{sDd}, 1')] + mask_ops(LC)) if mB else []
            rk = [rdK(0, f) for f in range(8)] if kind != 'E' else []
            R2 = build_group(pv_mfmas(LC, 0) + sum_mfmas(LC, 0), [(0, sm_window_ns(0, 2, 1))], rk, dK, extra=ex, nwin=16)
            emit_group(R2, 'V')
            if kind != 'E':
                R3 = build_group(qk_mfmas(LC, 0, cin_mask(LC) if mB else cin_neg), [(0, sm_window_ns(1, 3, 1))], [rdV(1, f) for f in range(8)])
                emit_group(R3, 'K')
                ex = ([('s', f's_add_u32 s{sDd}, s{sDd}, 1')] + mask_ops(LC)) if mN else []
                R4 = build_group(pv_mfmas(LC, 1) + sum_mfmas(LC, 1), [(0, sm_window_ns(0, 0, 0))], [rdK(1, f) for f in range(8)], dV, extra=ex, nwin=16)
                end_items(R4, loop)
                emit_group(R4, 'V')
                tot = R1.total() + R2.total() + R3.total() + R4.total()
            else:
                for f in range(8): put(rdV(1, f))
                emit(dV)
                for ops in sm_window_ns(1, 3, 1):
                    for o in ops: p(o)
                    if len(ops) == 1 and ops[0].startswith('v_exp'): p('s_nop 0')
                p('s_waitcnt lgkmcnt(0)')
                p('s_nop 1')
                for m in pv_mfmas(LC, 1) + sum_mfmas(LC, 1): p(m)
        if tot: print(f'  interval {lbl}: est {tot} cycles for', 128 if kind == 'D' else (112 if kind == 'T' else 64), 'mfma')

    def emit_prefetch():
        p('s_lshr_b32 s14, s2, 3')
        p('s_and_b32 s15, s14, 7')
        p('s_cmp_lt_u32 s15, 4')
        p(f's_cbranch_scc1 {name}_npf')
        p(f's_load_dwordx2 s[92:93], s[0:1], {ARG["wo"]}')
        p('s_lshr_b32 s14, s14, 3')
        p('s_lshl_b32 s14, s14, 2')
        p('s_add_u32 s14, s14, s15')
        p('s_sub_u32 s14, s14, 4')
        p(f's_mul_i32 s14, s14, {640*128}')
        p('s_and_b32 s15, s2, 7')
        p('s_lshr_b32 s15, s15, 1')
        p('s_mul_i32 s15, s15, 1310720')
        p('s_add_u32 s14, s14, s15')
        p(f's_mul_i32 s15, s{sW}, {160*128}')
        p('s_add_u32 s14, s14, s15')
        p('s_waitcnt lgkmcnt(0)')
        for i in range(3):
            p(f'v_add_u32 v251, {64*i}, v0')
            p(f'v_min_u32 v251, 159, v251')
            p(f'v_lshlrev_b32 v251, 7, v251')
            p(f'v_add_u32 v251, s14, v251')
            p(f'global_load_dword v250, v251, s[92:93]')
        p.label(f'{name}_npf')
    FA, FB = (10, 11) if FP == 'db' else (252, 253)
    F2, F3, F4, F5 = (47, 48, 49, 51) if FP in ('db', 'S') else (92, 93, 94, 95)
    def ffn_loads():
        p(f's_mov_b32 s{F5}, 0')
        p('s_lshr_b32 s14, s2, 3')
        p(f's_and_b32 s{F2}, s14, 7')
        p(f's_cmp_lt_u32 s{F2}, 6')
        p(f's_cbranch_scc1 {name}_nffn')
        p('s_lshr_b32 s14, s2, 6')
        p('s_lshl_b32 s14, s14, 1')
        p(f's_add_u32 s14, s14, s{F2}')
        p('s_sub_u32 s14, s14, 6')
        p('s_lshl_b32 s14, s14, 3')
        p('s_and_b32 s15, s2, 7')
        p(f's_add_u32 s{F4}, s14, s15')
        p(f's_cmp_ge_u32 s{F4}, 54')
        p(f's_cbranch_scc1 {name}_nffn')
        p(f's_mov_b32 s{F5}, 1')
        p(f's_load_dwordx2 s[4:5], s[0:1], {ARG["wg"]}')
        p(f's_load_dwordx2 s[8:9], s[0:1], {ARG["wu"]}')
        p(f's_load_dwordx2 s[12:13], s[0:1], {ARG["wd"]}')
        p(f'v_lshrrev_b32 v{FA}, 2, v0')
        p(f'v_mul_u32_u24 v{FA}, 3456, v{FA}')
        p(f'v_and_b32 v{FB}, 3, v0')
        p(f'v_lshl_add_u32 v{FA}, v{FB}, 4, v{FA}')
        p('s_waitcnt lgkmcnt(0)')
        for sr, sz in ((4, 640*1728*2), (8, 640*1728*2), (12, 1728*640*2)):
            p(f's_mov_b32 s{sr+2}, {sz}'); p(f's_mov_b32 s{sr+3}, 0x00020000')
        p(f's_mul_i32 s{F2}, s{sW}, {160*3456}')
        p(f's_lshl_b32 s{F3}, s{F4}, 6')
        p(f's_add_u32 s{F2}, s{F2}, s{F3}')
        for i in range(10):
            for mat, sr in enumerate((4, 8)):
                r = 132 + (mat*10 + i)*4
                p(f'buffer_load_dwordx4 a[{r}:{r+3}], v{FA}, s[{sr}:{sr+3}], s{F2} offen')
            p(f's_add_u32 s{F2}, s{F2}, {16*3456}')
        p(f's_mul_i32 s{F2}, s{F4}, {32*1280}')
        p(f's_mul_i32 s{F3}, s{sW}, 10240')
        p(f's_add_u32 s{F2}, s{F2}, s{F3}')
        for i in range(10):
            r = 132 + (20 + i)*4
            p(f'buffer_load_dwordx4 a[{r}:{r+3}], v{vLane16}, s[12:15], s{F2} offen offset:{(i % 4)*1024}')
            if i % 4 == 3: p(f's_add_u32 s{F2}, s{F2}, 4096')
        p.label(f'{name}_nffn')
    def row_reduce(reg, op, tmp):
        for sw in ('v_permlane16_swap_b32', 'v_permlane32_swap_b32'):
            p(f'v_mov_b32 v{tmp}, v{reg}')
            p('s_nop 1')
            p(f'{sw} v{reg}, v{tmp}')
            p('s_nop 1')
            p(f'{op} v{reg}, v{reg}, v{tmp}')
    def epilogue(cols, sTile, flagbit):
        p('s_nop 7')
        for c in cols: row_reduce(vL + c, 'v_add_f32', vU)
        if cols == LC:
            for c in cols: p(f'v_add_f32 v{vL+c}, v{vL+c}, v{Lm(c)}')
        p(f'v_max_f32 v{vU}, v{vL+cols[0]}, v{vL+cols[1]}')
        p(f'v_cmp_nle_f32 vcc, v{vU}, v{vU+1}'.replace(f'v{vU+1}', f'v{vU+1}') if False else f'v_cmp_nge_f32 vcc, s{sLim}, v{vU}')
        p('s_nop 1')
        p(f's_cmp_lg_u64 vcc, 0')
        p(f's_cselect_b32 s{sT0}, {flagbit}, 0')
        p(f's_or_b32 s{sFlag}, s{sFlag}, s{sT0}')
        for c in cols: p(f'v_rcp_f32 v{vL+c}, v{vL+c}')
        store_ctx(cols, sTile)
    def store_ctx(cols, sTile):
        p(f's_lshl_b32 s{sCtx}, s{sTile}, 3')
        p(f's_lshl_b32 s{sT0}, s{sW}, 1')
        p(f's_add_u32 s{sCtx}, s{sCtx}, s{sT0}')
        p(f's_lshl_b32 s{sCtx}, s{sCtx}, 5')
        p(f's_add_u32 s{sCtx}, s{sCtx}, s{sH}')
        p(f's_lshl_b32 s{sCtx}, s{sCtx}, 12')
        p(f's_add_u32 s{sT1}, s{sCtx}, {32*4096}')
        for i, c in enumerate(cols):
            for ks in range(4):
                o = O(c, 2*ks)
                for k in range(8): p(f'v_mul_f32 v{o+k}, v{o+k}, v{vL+c}')
                for k in range(4): p(f'v_cvt_pk_bf16_f32 v{o+k}, v{o+2*k}, v{o+2*k+1}')
                p(f'buffer_store_dwordx4 v[{o}:{o+3}], v{vLane16}, s[{S_CTX}:{S_CTX+3}], s{sCtx if i == 0 else sT1} offen offset:{ks*1024} {CTX_FLAGS}')

    p(f's_mov_b32 s{sSlotR}, 0')
    p(f'v_mov_b32 v{vRd}, v{vLane16}')
    for r in range(64, 128): p(f'v_mov_b32 v{vO+r}, 0')
    p(f's_lshl_b32 s{sDd}, s{sTS}, 2')
    p(f's_add_u32 s{sDd}, s{sDd}, s{sW}')
    p(f's_sub_u32 s{sDd}, 0, s{sDd}')
    emit(mask_ops(SC))
    p.wait_vm('U-1')
    p('s_barrier')
    p.stamp('U-1 ready')
    p.lgq = []; p.lg_ret = -1
    for f in range(8): put(rdK(0, f))
    p('s_waitcnt lgkmcnt(0)')
    q0 = qk_mfmas([0, 1, 2, 3], 0, cin_mask(SC))
    rest = unitK(2, 'U1') + unitV(2, 'U1')
    Rq = Region(q0)
    spread(Rq, rest, 0, 31)
    Rq.emit(p, put)
    p(f's_add_u32 s{sSlotP}, s{sLW}, {4*32768}')
    p.stamp('qk0 done')
    for f in range(8): put(rdK(1, f))
    for step in range(4):
        for c in range(4):
            S = vS + 8*c; t = vU + c
            if step == 0: p(f'v_max3_f32 v{t}, v{S}, v{S+1}, v{S+2}')
            elif step == 1: p(f'v_max3_f32 v{t}, v{t}, v{S+3}, v{S+4}')
            elif step == 2: p(f'v_max3_f32 v{t}, v{t}, v{S+5}, v{S+6}')
            else: p(f'v_max_f32 v{t}, v{t}, v{S+7}')
    for sw in ('v_permlane16_swap_b32', 'v_permlane32_swap_b32'):
        for c in range(4): p(f'v_mov_b32 v{vU+4+c}, v{vU+c}')
        for c in range(4): p(f'{sw} v{vU+c}, v{vU+4+c}')
        p('s_nop 0')
        for c in range(4): p(f'v_max_f32 v{vU+c}, v{vU+c}, v{vU+4+c}')
    for r in range(8):
        for c in range(4): p(f'v_sub_f32 v{vS+8*c+r}, v{vS+8*c+r}, v{vU+c}')
    for c in range(4):
        for r in range(4): p(f'v_sub_f32 v{vNeg+4*c+r}, 0, v{vU+c}')
    def run_window(W):
        for ops in W:
            for o in ops: p(o)
            if len(ops) == 1 and ops[0].startswith('v_exp'): p('s_nop 0')
    u2 = unitK(3, 'U2') + unitV(3, 'U2')
    for r in range(8):
        for c in range(3): p(f'v_exp_f32 v{vS+8*c+r}, v{vS+8*c+r}')
        while u2:
            it = u2.pop(0)
            put(it)
            if it[0] == 'm': break
            if ' m0,' in it[1]: p('s_nop 0')
    for it in u2: put(it)
    p('s_nop 0')
    for r in range(8):
        for c in range(3): p(f'v_add_f32 v{vL+c}, v{vL+c}, v{vS+8*c+r}')
    for k in range(4):
        for c in range(3): p(f'v_cvt_pk_bf16_f32 v{Pr(0, c)+k}, v{vS+8*c+2*k}, v{vS+8*c+2*k+1}')
    p(f's_mov_b32 s{sSlotR}, 32768')
    p(f'v_add_u32 v{vRd}, s{sSlotR}, v{vLane16}')
    if 'pp' not in opt: p.stamp('attn prologue done')
    p(f's_cmp_eq_u32 s{sTS}, 0')
    p(f's_cbranch_scc1 {name}_t0')
    p(f's_lshl_b32 s{sCnt}, s{sTS}, 1')
    p(f's_sub_u32 s{sCnt}, s{sCnt}, 1')
    p.label(f'{name}_dn')
    interval('D', f'dn', loop=True)
    p(f's_cbranch_scc1 {name}_dn')
    p(f's_sub_u32 s{sDd}, -1, s{sW}')
    interval('D', 'da', maskS=(False, True, True))
    p(f's_branch {name}_db')
    p.label(f'{name}_t0')
    p(f's_sub_u32 s{sDd}, 1, s{sW}')
    emit(mask_ops(SC))
    p('s_nop 1')
    p.label(f'{name}_db')
    if FP == 'db':
        p('s_waitcnt vmcnt(16)')
        p('s_barrier')
        ffn_loads()
        interval('D', 'db', maskS=(True, True, True), vm=None)
        p(f's_cmp_eq_u32 s{F5}, 0')
        p(f's_cbranch_scc1 {name}_dcw')
        p('s_waitcnt vmcnt(46)')
        p(f's_branch {name}_dcw2')
        p.label(f'{name}_dcw')
        p('s_waitcnt vmcnt(16)')
        p.label(f'{name}_dcw2')
        interval('T', 'dc', maskS=(True, False, False), vm=63)
    else:
        interval('D', 'db', maskS=(True, True, True))
        interval('T', 'dc', maskS=(True, False, False))
    epilogue(SC, sTS, 2)
    if FP == 'S':
        ffn_loads()
        p.lgq = ['K%d' % f for f in range(8)]; p.lg_ret = 7
    if 'pp' not in opt: (p.stamp('S done') if 'pq' not in opt else None)
    p(f's_sub_u32 s{sCnt}, s{sTL}, s{sTS}')
    p(f's_cmp_eq_u32 s{sCnt}, 1')
    p(f's_cbranch_scc1 {name}_sb')
    p(f's_sub_u32 s{sCnt}, s{sCnt}, 2')
    interval('S', 'sn1')
    p.label(f'{name}_sn')
    interval('S', 'sn2a', vm=8)
    interval('S', 'sn2b', vm=None, loop=True)
    p(f's_cbranch_scc1 {name}_sn')
    p(f's_sub_u32 s{sDd}, -1, s{sW}')
    interval('S', 'sa', maskL=(False, True, True))
    p.label(f'{name}_sb')
    interval('S', 'sb', maskL=(True, True, True))
    interval('E', 'sc', maskL=(True, False, False))
    epilogue(LC, sTL, 1)
    p.stamp('L done')
    p(f's_cmp_eq_u32 s{sFlag}, 0')
    p(f's_cbranch_scc1 {name}_fin')
    fallback(p, name, locals())
    p.label(f'{name}_fin')
    def ctx_publish():
        p('s_waitcnt vmcnt(0) lgkmcnt(0)')
        p('s_barrier')
        p(f's_cmp_lg_u32 s{sW}, 0')
        p(f's_cbranch_scc1 {name}_cpub')
        p(f's_lshl_b32 s14, s2, 2')
        p(f's_add_u32 s14, s14, 6144')
        p(f'v_mov_b32 v20, s{sTag}')
        p('v_mov_b32 v21, 0')
        p(f'buffer_store_dword v20, v21, s[{S_FL}:{S_FL+3}], s14 offen sc1')
        p.label(f'{name}_cpub')
        p.stamp('ctx pub')
        if PE: emit_prefetch()
        if FP == 'end': ffn_loads()
    import kt
    nerr += kt.gen_kt(name + '_t', p, prof, opt, ctx_publish)
    p.label(f'{name}_done')
    p('s_endpgm')
    def mk_policy(t0, nd, skip_s, ns, fb, wave0):
        def pol(ins, n):
            t = ins.args[0]
            if t.endswith('_done'): return False
            if t.endswith('_stageA'): return n % 3 != 0
            if t in (name + '_noln0', name + '_noln1'): return False
            if t in (name + '_notag', name + '_kvpub'): return not wave0
            if t == name + '_notag2': return True
            if t == name + '_nffn': return not wave0
            if t == name + '_dcw': return not wave0
            if t == name + '_cpub': return not wave0
            if t.startswith(name + '_t'):
                if '_poll' in t and t.endswith('_ok'): return True
                u = t[len(name) + 2:]
                if u in ('_w123', '_w1', '_nosig', '_w4', '_w5', '_cw'): return not wave0
                return False
            if t == name + '_nz': return True
            if t == name + '_nocode': return False
            if t == name + '_nopub': return True
            if t in (name + '_lnok', name + '_kok', name + '_vok', name + '_kpub', name + '_vpub'): return not wave0
            if t in (name + '_lnok2', name + '_kok2', name + '_vok2', name + '_krel', name + '_vrel'): return True
            if t.endswith('_t0'): return t0
            if t.endswith('_dn'): return (n % nd) != 0
            if t.endswith('_sb'): return skip_s
            if t.endswith('_sn'): return (n % ns) != 0
            if t.endswith('_fin'): return not fb
            if t.endswith('_fbloop'): return n % 3 != 0
            return False
        return pol
    for cfg in ([(False, 3, False, 3, False, True), (True, 2, False, 2, True, False), (False, 2, True, 2, False, True)] if (not opt or opt[0] in ('pp', 'pq', 'tl', 'tr', 'nocode', 'notlb', 'dbg') or opt[0].startswith('kv=')) and not any(o_.endswith('A') for o_ in opt) else []):
        seq = trace(p, mk_policy(*cfg))
        nerr += len(check_linear(seq, name + str(cfg)))
    return p, nerr

def fallback(p, name, L):
    g = L
    vS, vP, vE, vL, vU, vNeg, vCi, vO = g['vS'], g['vP'], g['vE'], g['vL'], g['vU'], g['vNeg'], g['vCi'], g['vO']
    aQ, aK, aV, vLane16, vNinf = g['aQ'], g['aK'], g['aV'], g['vLane16'], g['vNinf']
    S_KF, S_VF = g['S_KF'], g['S_VF']
    sFlag, sTL, sTS, sW, sH, sDd, sCnt, sT0, sT1, sT2 = (g[k] for k in ('sFlag', 'sTL', 'sTS', 'sW', 'sH', 'sDd', 'sCnt', 'sT0', 'sT1', 'sT2'))
    O = g['O']; mask_ops = g['mask_ops']; qk_mfmas = g['qk_mfmas']; pv_mfmas = g['pv_mfmas']; row_reduce = g['row_reduce']; store_ctx = g['store_ctx']
    put = g['put']
    p('s_waitcnt vmcnt(0) lgkmcnt(0)')
    for cols, sTile, bit, nm in (([2, 3], sTS, 2, 'S'), ([0, 1], sTL, 1, 'L')):
        p(f's_and_b32 s{sT0}, s{sFlag}, {bit}')
        p(f's_cmp_eq_u32 s{sT0}, 0')
        p(f's_cbranch_scc1 {name}_fbskip{nm}')
        for c in cols:
            p(f'v_mov_b32 v{vL+c}, 0')
            for r in range(32): p(f'v_mov_b32 v{vO+32*c+r}, 0')
            for r in range(4): p(f'v_mov_b32 v{vNeg+4*c+r}, 0')
        for i in range(2): p(f'v_mov_b32 v{vU+4+i}, v{vNinf}')
        p(f's_lshl_b32 s{sDd}, s{sTile}, 2')
        p(f's_add_u32 s{sDd}, s{sDd}, s{sW}')
        p(f's_add_u32 s{sCnt}, s{sDd}, 1')
        p(f's_sub_u32 s{sDd}, 0, s{sDd}')
        p(f's_lshl_b32 s{sT2}, s{sH}, 19')
        p.label(f'{name}_fb{nm}_fbloop')
        for f in range(8):
            p(f's_add_u32 s{sT1}, s{sT2}, {(f // 4)*4096}')
            p(f'buffer_load_dwordx4 a[{aK+4*f}:{aK+4*f+3}], v{vLane16}, s[{S_KF}:{S_KF+3}], s{sT1} offen offset:{(f % 4)*1024}')
            p(f'buffer_load_dwordx4 a[{aV+4*f}:{aV+4*f+3}], v{vLane16}, s[{S_VF}:{S_VF+3}], s{sT1} offen offset:{(f % 4)*1024}')
        for it in mask_ops(cols): put(it)
        p('s_waitcnt vmcnt(0)')
        p('s_nop 1')
        for m in qk_mfmas(cols, 0, lambda c, kb: vCi + 8*(c - cols[0]) + 4*kb): p(m)
        p('s_nop 7')
        for i, c in enumerate(cols):
            S = vS + 8*i; t = vU + i; m = vU + 4 + i
            p(f'v_max3_f32 v{t}, v{S}, v{S+1}, v{S+2}')
            p(f'v_max3_f32 v{t}, v{t}, v{S+3}, v{S+4}')
            p(f'v_max3_f32 v{t}, v{t}, v{S+5}, v{S+6}')
            p(f'v_max_f32 v{t}, v{t}, v{S+7}')
            row_reduce(t, 'v_max_f32', vU + 6)
            p(f'v_max_f32 v{t}, v{t}, v{m}')
            p(f'v_sub_f32 v{vU+6}, v{m}, v{t}')
            p(f'v_exp_f32 v{vU+6}, v{vU+6}')
            p(f'v_mov_b32 v{m}, v{t}')
            p(f'v_mul_f32 v{vL+c}, v{vL+c}, v{vU+6}')
            for r in range(32): p(f'v_mul_f32 v{vO+32*c+r}, v{vO+32*c+r}, v{vU+6}')
            for r in range(8): p(f'v_sub_f32 v{S+r}, v{S+r}, v{t}')
            for r in range(8): p(f'v_exp_f32 v{S+r}, v{S+r}')
            p('s_nop 0')
            for r in range(8): p(f'v_add_f32 v{vL+c}, v{vL+c}, v{S+r}')
            for k in range(4): p(f'v_cvt_pk_bf16_f32 v{vP+4*c+k}, v{S+2*k}, v{S+2*k+1}')
        p('s_nop 1')
        for m in pv_mfmas(cols, 0): p(m)
        p('s_nop 7')
        p(f's_add_u32 s{sT2}, s{sT2}, 8192')
        p(f's_add_u32 s{sDd}, s{sDd}, 1')
        p(f's_sub_u32 s{sCnt}, s{sCnt}, 1')
        p(f's_cmp_lg_u32 s{sCnt}, 0')
        p(f's_cbranch_scc1 {name}_fb{nm}_fbloop')
        for c in cols: row_reduce(vL + c, 'v_add_f32', vU)
        for c in cols: p(f'v_rcp_f32 v{vL+c}, v{vL+c}')
        store_ctx(cols, sTile)
        p.label(f'{name}_fbskip{nm}')

if __name__ == '__main__':
    p, ne = gen_kf()
    print('instrs', p.count(), 'errors', ne)
```

```python
from common import *
from gx2 import *
from sched import *
from k1b import w_tile_setup, MF
from lnops import *
WS_FLG = 82*MiB

CTX_FLAGS = 'sc1'
LIM = 0x5d800000
NEGBIG = 0xff800000
opt_idx = [0]
TW, TF, PE = False, True, True
FP = 'db'
TA = False
PREFETCH = True

def gen_kf(name='front_kernel', prof=False, opt=()):
    p = P2(); p.prof = prof
    p.lenient = 'nordsA' in opt
    p.dbgmode = 'dbg' in opt
    p.stampset = set(['start', 'phase A done', 'q end', 'attn prologue done', 'L done', 'ctx ready', 'gemm end', 'key out', 'argmax ready', 'ffn atomics done'])
    if 'tr' in opt: p.stampset = set(['start', 'q end', 'pre check', 'kv ok', 'qk0 done', 'attn prologue done', 'L done', 'tail setup', 'ctx pub', 'ctx ready'])
    if 'tl' in opt: p.stampset = set(['start', 'L done', 'ctx ready', 'gemm end', 'signalled', 'partials ready', 'partials loaded', 'key out', 'argmax ready', 'ffn atomics done'])
    put = make_put(p)
    S_WQ, S_XNF, S_KF, S_VF, S_CTX = 16, 20, 24, 28, 32
    sM = 36
    sW, sH, sI = 44, 45, 46
    sT0, sT1, sT2 = 47, 48, 49
    sLW = 50
    sWoff = 51
    sXL, sXS = 52, 53
    sKb, sVb = 54, 55
    sHbase = 56
    sSlotP, sSlotR = 57, 58
    sTL, sTS = 59, 60
    sCnt = 61
    sDd = 62
    sFlag = 63
    sCtx = 64
    sLim = 65
    sScale = 61
    sSel = 4
    vLane16 = 1; vRd = 2; vNinf = 3
    vOffW = 4
    vLPW = 8; vT = 9
    vNeg = 16; vCi = 32; vS = 48; vP = 80; vE = 112; vL = 116; vU = 120
    vCW = 120
    vWF = 48
    vO = 128
    aQ = 0; aK = 64; aV = 96; aX = 128
    O = lambda c, db: vO + 32*c + 4*db
    Sr = lambda sc, kb: vS + 8*sc + 4*kb
    Pr = lambda par, c: vP + 16*par + 4*c
    NSLOT = 5

    S_CKV, S_X, S_DBG = 4, 8, 88
    S_WUK, S_WUV = 36, 40
    S_FL = 68
    sTag = 3
    sXcc = 67; sSame = 66
    sASum = sFlag
    sAoff = sDd; sWr = sCtx; sAr = sLim; sWp = sKb; sAp = sVb; sKst = sSlotP
    vOffA = 16
    vLPA = 20; vCA = 21
    vWK = 32; vWV = 64; vAct = 128
    SPIN = 1 << 16
    p(f's_cmp_ge_u32 s2, 256')
    p(f's_cbranch_scc1 {name}_done')
    p.stamp('start')
    p(f's_load_dwordx2 s[84:85], s[0:1], {ARG["x"]}')
    p(f's_load_dwordx2 s[86:87], s[0:1], {ARG["ckv"]}')
    p(f's_load_dwordx4 s[88:91], s[0:1], {ARG["wuk"]}')
    p(f's_load_dwordx2 s[92:93], s[0:1], {ARG["wq"]}')
    p(f's_load_dwordx4 s[96:99], s[0:1], {ARG["dbg"]}')
    p('s_and_b32 s14, s2, 7')
    p('s_lshr_b32 s15, s2, 3')
    p(f's_lshr_b32 s{sH}, s15, 3')
    p(f's_lshl_b32 s14, s14, 2')
    p(f's_add_u32 s{sH}, s{sH}, s14')
    p(f's_and_b32 s{sI}, s15, 7')
    p('v_lshrrev_b32 v2, 6, v0')
    p('v_and_b32 v0, 63, v0')
    p(f'v_readfirstlane_b32 s{sW}, v2')
    p(f'v_lshlrev_b32 v{vLane16}, 4, v0')
    p(f's_getreg_b32 s{sXcc}, hwreg(HW_REG_XCC_ID, 0, 4)')
    w_tile_setup(p, vOffW, vLPW, vT)
    p(f'v_lshrrev_b32 v{vT}, 3, v0')
    p(f'v_lshlrev_b32 v{vT}, 10, v{vT}')
    p(f'v_lshrrev_b32 v{vT+1}, 4, v0')
    p(f'v_and_b32 v{vT+2}, 7, v0')
    p(f'v_xor_b32 v{vT+2}, v{vT+2}, v{vT+1}')
    p(f'v_lshl_add_u32 v{vOffA}, v{vT+2}, 4, v{vT}')
    p(f'v_xor_b32 v{vT+3}, 4, v{vT+2}')
    p(f'v_lshl_add_u32 v{vOffA+1}, v{vT+3}, 4, v{vT}')
    p(f'v_add_u32 v{vOffA+2}, {2*7168}, v{vOffA}')
    p(f'v_add_u32 v{vOffA+3}, {3*7168}, v{vOffA+1}')
    p(f'v_add_u32 v{vOffA+1}, {1*7168}, v{vOffA+1}')
    p(f'v_and_b32 v{vT}, 15, v0')
    p(f'v_bfe_u32 v{vT+1}, v0, 1, 3')
    p(f'v_lshrrev_b32 v{vT+2}, 4, v0')
    p(f'v_xor_b32 v{vT+1}, v{vT+1}, v{vT+2}')
    p(f'v_lshlrev_b32 v{vT}, 7, v{vT}')
    p(f'v_lshl_add_u32 v{vLPA}, v{vT+1}, 4, v{vT}')
    p(f's_lshl_b32 s{sLW}, s{sW}, 12')
    p(f's_lshl_b32 s{sWoff}, s{sW}, 17')
    p(f's_lshl_b32 s{sT1}, s{sH}, 8')
    p(f's_add_u32 s{sWoff}, s{sWoff}, s{sT1}')
    p(f's_lshl_b32 s{sT0}, s{sI}, 8')
    p(f's_lshl_b32 s{sT1}, s{sW}, 6')
    p(f's_add_u32 s{sT0}, s{sT0}, s{sT1}')
    p(f's_lshl_b32 s{sAoff}, s{sT0}, 10')
    sK0 = sXL; sLA = sXS
    p(f's_lshl_b32 s{sHbase}, s{sH}, 6')
    p(f's_lshr_b32 s{sT1}, s{sT0}, 5')
    p(f's_add_u32 s{sHbase}, s{sHbase}, s{sT1}')
    p(f's_lshl_b32 s{sHbase}, s{sHbase}, 13')
    p(f's_lshl_b32 s{sLA}, s{sW}, 13')
    p('s_waitcnt lgkmcnt(0)')
    srd(p, S_CKV, 86, 2048*512*2)
    srd(p, S_WUK, 88, 512*4096*2)
    srd(p, S_WUV, 90, 512*4096*2)
    SL = 16384
    ACT0 = 98304
    def emit(L):
        prev = None
        for it in L:
            if it[0] == 'm' and prev is not None and prev[0] == 's' and ' m0,' in prev[1]: put(('s', 's_nop 0'))
            put(it); prev = it
    def dmaW_static(st):
        base = (st % 3)*32768; L = []
        for mi, sr in enumerate((S_WUK, S_WUV)):
            L += [('s', f's_add_u32 s{sT0}, s{sWoff}, {st*64*8192}'), ('s', f's_add_u32 m0, s{sLW}, {base + mi*SL}')]
            for i in range(4): L.append(('m', f'buffer_load_dwordx4 v{vOffW+i}, s[{sr}:{sr+3}], s{sT0} offen offset:{1024*i} lds', f'W{st}', ('W', base + mi*SL, base + (mi+1)*SL, True)))
        return L
    def dmaA_static(st):
        base = ACT0 + (st % 2)*32768; L = []
        for half in range(2):
            L += [('s', f's_add_u32 s{sT1}, s{sAoff}, {st*128 + 32768*half}'), ('s', f's_add_u32 m0, s{sLA}, {base + 4096*half}')]
            for i in range(4): L.append(('m', f'buffer_load_dwordx4 v{vOffA+i}, s[{S_CKV}:{S_CKV+3}], s{sT1} offen offset:{1024*i} lds', f'A{st}', ('W', base, base + 32768, False)))
        return L
    if 'pp' in opt: p.stamp('setup')
    emit(dmaA_static(0)); emit(dmaW_static(0))
    if 'pp' in opt: p.stamp('A0W0 issued')
    srd(p, S_X, 84, 2048*640*2)
    srd(p, S_WQ, 92, 640*4096*2)
    srd(p, S_XNF, 98, SZ_XNF, WS_XNF)
    srd(p, S_KF, 98, SZ_KF, WS_KF)
    srd(p, S_VF, 98, SZ_KF, WS_VF)
    srd(p, S_CTX, 98, SZ_CTX, WS_CTX)
    srd(p, S_FL, 98, 8192, WS_FLG)
    X = 160; RAW = 200; vXo = 220; vXn = 221; LT = 224
    p(f's_lshl_b32 s{sT1}, s2, 3')
    p(f's_and_b32 s14, s{sW}, 1')
    p(f's_lshl_b32 s14, s14, 2')
    p(f's_add_u32 s{sT1}, s{sT1}, s14')
    p(f'v_and_b32 v{vT}, 3, v0')
    p(f'v_add_u32 v{vT}, s{sT1}, v{vT}')
    p(f'v_lshrrev_b32 v{vT+1}, 2, v0')
    p(f'v_mul_u32_u24 v{vXo}, 1280, v{vT}')
    p(f'v_lshl_add_u32 v{vXo}, v{vT+1}, 4, v{vXo}')
    p(f'v_lshrrev_b32 v{vXn}, 4, v{vT}')
    p(f'v_mul_u32_u24 v{vXn}, 20, v{vXn}')
    p(f'v_lshrrev_b32 v{vT+2}, 2, v{vT+1}')
    p(f'v_add_u32 v{vXn}, v{vXn}, v{vT+2}')
    p(f'v_lshlrev_b32 v{vXn}, 10, v{vXn}')
    p(f'v_and_b32 v{vT+2}, 3, v{vT+1}')
    p(f'v_lshlrev_b32 v{vT+2}, 4, v{vT+2}')
    p(f'v_and_b32 v{vT+3}, 15, v{vT}')
    p(f'v_add_u32 v{vT+2}, v{vT+2}, v{vT+3}')
    p(f'v_lshl_add_u32 v{vXn}, v{vT+2}, 4, v{vXn}')
    for i in range(5):
        p(f'buffer_load_dwordx4 v[{RAW+4*i}:{RAW+4*i+3}], v{vXo}, s[{S_X}:{S_X+3}], 0 offen offset:{256*i}')
    S_LNS = 96
    if 'nocode' not in opt:
        p(f's_lshr_b32 s14, s2, 3')
        p(f's_cmp_ge_u32 s14, 12')
        p(f's_cbranch_scc1 {name}_nocode')
        p(f's_cmp_lg_u32 s{sW}, 3')
        p(f's_cbranch_scc1 {name}_nocode')
        p('s_getpc_b64 s[76:77]')
        p.label(f'{name}_pc')
        p(f's_lshl_b32 s14, s14, 13')
        p(f'v_lshlrev_b32 v{vT}, 7, v0')
        p(f'v_add_u32 v{vT}, s14, v{vT}')
        p(f'v_min_u32 v{vT}, code_end_all-{name}_pc-4, v{vT}')
        p(f'v_and_b32 v{vT}, -4, v{vT}')
        p(f'global_load_dword v{vT+2}, v{vT}, s[76:77]')
        p.label(f'{name}_nocode')
    if 'notlb' not in opt:
        p('s_mov_b32 s76, s98'); p('s_mov_b32 s77, s99'); p(f's_mov_b32 s78, {96*MiB}'); p('s_mov_b32 s79, 0x00020000')
        p(f'v_mov_b32 v{vT}, {WS_FLG}')
        p(f's_add_u32 s14, s{sHbase}, {WS_KF}'); p(f'v_writelane_b32 v{vT}, s14, 1')
        p(f's_add_u32 s14, s{sHbase}, {WS_VF}'); p(f'v_writelane_b32 v{vT}, s14, 2')
        p(f's_lshl_b32 s15, s{sH}, 19')
        for k in range(2):
            p(f's_add_u32 s14, s15, {WS_KF + k*524160}'); p(f'v_writelane_b32 v{vT}, s14, {3 + 2*k}')
            p(f's_add_u32 s14, s15, {WS_VF + k*524160}'); p(f'v_writelane_b32 v{vT}, s14, {4 + 2*k}')
        p(f's_mov_b32 s14, {WS_XNF}'); p(f'v_writelane_b32 v{vT}, s14, 7')
        p(f's_mov_b32 s14, {WS_XNF + 2*MiB}'); p(f'v_writelane_b32 v{vT}, s14, 8')
        p(f's_sub_u32 s14, 15, s{sI}'); p('s_lshl_b32 s14, s14, 20'); p(f's_add_u32 s14, s14, {WS_CTX}'); p(f'v_writelane_b32 v{vT}, s14, 9')
        p(f's_lshl_b32 s14, s{sI}, 20'); p(f's_add_u32 s14, s14, {WS_CTX}'); p(f'v_writelane_b32 v{vT}, s14, 10')
        p(f'buffer_load_dword v{vT+2}, v{vT}, s[76:79], 0 offen')
    if 'pp' in opt: p.stamp('x issued')
    srd(p, S_DBG, 96, 256)
    p('v_mov_b32 v26, 0')
    p('s_or_b32 s14, s2, 0')
    p(f's_add_u32 s14, s2, s{sW}')
    p('s_cmp_lg_u32 s14, 0')
    p(f's_cbranch_scc1 {name}_notag')
    p('s_memrealtime s[92:93]')
    p('s_waitcnt lgkmcnt(0)')
    p('s_or_b32 s92, s92, 1')
    p('v_mov_b32 v24, s92')
    p(f'buffer_store_dword v24, v26, s[{S_DBG}:{S_DBG+3}], 0 offen sc1')
    p.label(f'{name}_notag')
    if 'pp' in opt: p.stamp('tag issued')
    emit(dmaA_static(1)); emit(dmaW_static(1))
    (p.stamp('dma issued') if 'pq' not in opt else None)
    p('s_cmp_lg_u32 s2, 0')
    p(f's_cbranch_scc1 {name}_nz')
    p(f's_add_u32 s76, s98, {WS_YACC}')
    p('s_addc_u32 s77, s99, 0')
    p(f's_mov_b32 s78, {SZ_ZERO}')
    p('s_mov_b32 s79, 0x00020000')
    for r in range(4): p(f'v_mov_b32 v{28+r}, 0')
    p(f's_mul_i32 s14, s{sW}, 7168')
    for i in range(7):
        p(f'buffer_store_dwordx4 v[28:31], v{vLane16}, s[76:79], s14 offen sc1')
        p(f's_add_u32 s14, s14, 1024')
    p.label(f'{name}_nz')
    p(f's_add_u32 s96, s98, {WS_XNF}')
    p('s_addc_u32 s97, s99, 0')
    p(f's_mov_b32 s98, {SZ_XNF}')
    p('s_mov_b32 s99, 0x00020000')
    p(f's_cmp_lt_u32 s{sW}, 2')
    p('s_cselect_b32 s98, s98, 0')
    p('s_waitcnt vmcnt(16)')
    p('s_barrier')
    (p.stamp('B0') if 'pq' not in opt else None)
    def rd_act(buf, kin, tb, lab):
        r = vAct + 16*buf + 4*tb
        return ('r', f'ds_read_b128 v[{r}:{r+3}], v{vCA+kin} offset:{2048*tb}', lab)
    def rd_wA(mi, db, kin, lab):
        r = (vWK if mi == 0 else vWV) + 4*db
        return [('r', f'ds_read_b64_tr_b16 v[{r+2*h}:{r+2*h+1}], v{vCW+db} offset:{mi*SL + 8192*kin + 1024*h}', lab) for h in range(2)]
    updA = [('v', f'v_add_u32 v{vCA}, s{sAr}, v{vLPA}'), ('v', f'v_xor_b32 v{vCA+1}, 64, v{vCA}')]
    updWd = [('v', f'v_add_u32 v{vCW}, s{sWr}, v{vLPW}')] + [('v', f'v_xor_b32 v{vCW+db}, {db*32}, v{vCW}') for db in range(1, 8)]
    KA = lambda tb, db: (tb*8 + db)*4
    VA = lambda tb, db: 128 + ((tb >> 1)*16 + db*2 + (tb & 1))*4
    def stageA_mfmas(first):
        L = []
        for kin in range(2):
            for db in range(8):
                for tb in range(4):
                    a = KA(tb, db); f = vAct + 16*kin + 4*tb
                    c = '0' if (first and kin == 0) else f'a[{a}:{a+3}]'
                    L.append(f'{MF} a[{a}:{a+3}], v[{vWK+4*db}:{vWK+4*db+3}], v[{f}:{f+3}], {c}')
                for tb in range(4):
                    a = VA(tb, db); f = vAct + 16*kin + 4*tb
                    c = '0' if (first and kin == 0) else f'a[{a}:{a+3}]'
                    L.append(f'{MF} a[{a}:{a+3}], v[{f}:{f+3}], v[{vWV+4*db}:{vWV+4*db+3}], {c}')
        return L
    GA = lambda kin, db, m: kin*64 + db*8 + m
    def spread(R, L, g0, g1):
        nm = sum(1 for x in L if x[0] in ('m', 'l', 'st'))
        step = max(1, (g1 - g0) // max(nm, 1))
        g = g0; cnt = 0; prev = None
        for it in L:
            e = max(g, g0 + cnt*step - (2 if it[0] == 's' else 0))
            if it[0] == 'm' and prev is not None and prev[0] == 's' and ' m0,' in prev[1]: e = max(e, gprev + 1)
            g = R.place(it, e, g1); gprev = g; prev = it
            if it[0] in ('m', 'l', 'st'): cnt += 1; g += 1
    def stageA(kind, dmaA_items, dmaB_items, barlabs, next_reads=None, mid=None, first=False, bend=None):
        R = Region(stageA_mfmas(first))
        BG = GA(1, 0, 7)
        R.S[BG].append(('bar', barlabs))
        if mid: R.S[BG].extend(mid)
        if next_reads is None:
            R.S[GA(1, 0, 1)].append(('s', f's_add_u32 s{sWr}, s{sWr}, 32768'))
            R.S[GA(1, 0, 2)].append(('s', f's_cmp_ge_u32 s{sWr}, 98304\ns_cselect_b32 s{sWr}, 0, s{sWr}'))
            R.S[GA(1, 0, 3)].append(('s', f's_sub_u32 s{sAr}, s{sASum}, s{sAr}'))
            R.stream(updA + updWd, GA(1, 0, 4), GA(1, 2, 0))
        else:
            R.stream(next_reads[0], GA(1, 0, 4), GA(1, 2, 0))
        for kin in range(2):
            for db in range(8):
                for mi in range(2):
                    if kin == 0 and db == 0 and mi == 0: continue
                    labs = [f'w{kin}_{mi}_{db}'] + ([f'act{kin}'] if (db == 0 and mi == 0) else [])
                    R.place(('wlg', labs), GA(kin, db, 4*mi) - 1, force=True)
        for db in range(8):
            for mi in range(2):
                rr = rd_wA(mi, db, 1, f'w1_{mi}_{db}')
                e = GA(0, db, 4*mi + 3)
                g = R.place(rr[0], e, GA(1, 0, 0)); R.place(rr[1], min(g + 1, GA(1, 0, 0)), GA(1, 0, 0))
        for tb in range(4): R.place(rd_act(1, 1, tb, 'act1'), GA(0, 1, 1) + 5*tb)
        if next_reads is None:
            for db in range(8):
                for mi in range(2):
                    rr = rd_wA(mi, db, 0, f'n0_{mi}_{db}')
                    e = max(GA(1, db, 4*mi + 3), GA(1, 2, 1))
                    g = R.place(rr[0], e); R.place(rr[1], g + 1)
            for tb in range(4): R.place(rd_act(0, 0, tb, 'nact0'), GA(1, 2, 2) + 5*tb)
        else:
            for (it, e) in next_reads[1]: R.place(it, max(e, GA(1, 2, 1)))
        if 'nodmaA' in opt and kind in ('s0', 's1', 'loop'): dmaA_items = [x for x in dmaA_items if x[0] != 'm']; dmaB_items = [x for x in dmaB_items if x[0] != 'm']
        if 'nowA' in opt and kind in ('s0', 's1', 'loop'):
            for g in range(R.n): R.S[g] = [x for x in R.S[g] if x[0] != 'wlg']
        if 'nordsA' in opt and kind in ('s0', 's1', 'loop'):
            for g in range(R.n): R.M[g] = []; R.S[g] = [x for x in R.S[g] if x[0] != 'wlg']
        spread(R, dmaA_items, 1, BG - 2)
        spread(R, dmaB_items, BG + 1, bend if bend else R.n - 2)
        return R
    def dyn_dmaW():
        L = []
        for mi, sr in enumerate((S_WUK, S_WUV)):
            L += [('s', f's_add_u32 m0, s{sWp}, {mi*SL}')]
            for i in range(4): L.append(('m', f'buffer_load_dwordx4 v{vOffW+i}, s[{sr}:{sr+3}], s{sKst} offen offset:{1024*i} lds', 'Wn', None))
        L += [('s', f's_add_u32 s{sKst}, s{sKst}, {64*8192}'), ('s', f's_add_u32 s{sWp}, s{sWp}, 32768'),
              ('s', f's_cmp_ge_u32 s{sWp}, 98304\ns_cselect_b32 s{sWp}, s{sLW}, s{sWp}')]
        return L
    def dyn_dmaA():
        L = []
        for half in range(2):
            L += [('s', f's_add_u32 s{sT1}, s{sAoff}, {32768*half}'), ('s', f's_add_u32 m0, s{sAp}, {4096*half}')]
            for i in range(4): L.append(('m', f'buffer_load_dwordx4 v{vOffA+i}, s[{S_CKV}:{S_CKV+3}], s{sT1} offen offset:{1024*i} lds', 'An', None))
        L += [('s', f's_add_u32 s{sAoff}, s{sAoff}, 128'), ('s', f's_sub_u32 s{sAp}, s{sASum}, s{sAp}')]
        if TA: L.append(('l', f'buffer_load_dword v31, v30, s[{S_CKV}:{S_CKV+3}], s{sAoff} offen', 'TCH'))
        return L
    p('v_lshlrev_b32 v30, 10, v0')
    p(f's_mov_b32 s{sWr}, 0')
    p(f's_add_u32 s{sAr}, s{sLA}, {ACT0}')
    p(f's_add_u32 s{sWp}, s{sLW}, 65536')
    p(f's_add_u32 s{sAp}, s{sLA}, {ACT0}')
    p(f's_lshl_b32 s{sASum}, s{sAp}, 1')
    p(f's_add_u32 s{sASum}, s{sASum}, 32768')
    p(f's_add_u32 s{sKst}, s{sWoff}, {2*64*8192}')
    p(f's_add_u32 s{sAoff}, s{sAoff}, 256')
    emit(updA + updWd)
    p.lgq = []; p.lg_ret = -1
    for tb in range(4): put(rd_act(0, 0, tb, 'act0'))
    for db in range(8):
        for mi in range(2): emit(rd_wA(mi, db, 0, f'w0_{mi}_{db}'))
    def next_order(R):
        L = []
        for g in range(R.n):
            for it in R.M[g]:
                if it[0] == 'r' and (it[2].startswith('n0_') or it[2] == 'nact0'):
                    L.append('act0' if it[2] == 'nact0' else 'w0_' + it[2][3:])
        return L
    order = [None]
    def relabel():
        p.lgq = list(order[0]); p.lg_ret = -1
    def bar_raw(n):
        if 'nobarA' in opt: return ('w', f's_waitcnt vmcnt({n}) lgkmcnt(0)')
        return ('w', f's_waitcnt vmcnt({n}) lgkmcnt(0)\ns_barrier')
    BG = GA(1, 0, 7)
    def fix_bar(R, n, extra=()):
        R.S[BG] = [bar_raw(n), ('call', lambda: p.lg_all())] + list(extra) + [x for x in R.S[BG] if x[0] != 'bar']
    def red64x4(r):
        L = []
        for sh in (8, 4): L += ['s_nop 1', f'v_add_f32_dpp v{r}, v{r}, v{r} row_ror:{sh} row_mask:0xf bank_mask:0xf']
        for sw in ('v_permlane16_swap_b32', 'v_permlane32_swap_b32'):
            L += [f'v_mov_b32 v{LT+6}, v{r}', 's_nop 1', f'{sw} v{r}, v{LT+6}', 's_nop 1', f'v_add_f32 v{r}, v{r}, v{LT+6}']
        return L
    lnops = []
    for i in range(5): lnops += unpack8(RAW + 4*i, X + 8*i)
    lnops += ln_stream(X, 40, LT, red64x4, scale='0x3e0293ee')
    ln = [('v', x) for x in lnops]
    for i in range(5):
        ln.append(('s', f's_mov_b32 s14, {4096*i}'))
        ln.append(('st', f'buffer_store_dwordx4 v[{X+4*i}:{X+4*i+3}], v{vXn}, s[{S_LNS}:{S_LNS+3}], s14 offen sc1'))
    half = len(ln) // 2
    def tag_read():
        p('s_mov_b32 s14, 0')
        p.label(f'{name}_tagpoll')
        p(f'v_readfirstlane_b32 s{sTag}, v24')
        p('s_add_u32 s14, s14, 1')
        p('s_nop 2')
        p(f's_cmp_lg_u32 s{sTag}, 0')
        p(f's_cbranch_scc1 {name}_notag2')
        p(f's_cmp_ge_u32 s14, {SPIN}')
        p(f's_cbranch_scc1 {name}_notag2')
        p(f'buffer_load_dword v24, v26, s[{S_DBG}:{S_DBG+3}], 0 offen sc1')
        p('s_waitcnt vmcnt(0)')
        p(f's_branch {name}_tagpoll')
        p.label(f'{name}_notag2')
    def pub_ln():
        p(f's_cmp_lg_u32 s{sCnt}, {1 if TA else 0}')
        p(f's_cbranch_scc1 {name}_nopub')
        p(f's_cmp_lg_u32 s{sW}, 0')
        p(f's_cbranch_scc1 {name}_nopub')
        p(f's_lshl_b32 s14, s2, 3')
        p(f'v_mov_b32 v24, s{sTag}')
        p(f'v_mov_b32 v25, s{sXcc}')
        p('v_mov_b32 v26, 0')
        p(f'buffer_store_dwordx2 v[24:25], v26, s[{S_FL}:{S_FL+3}], s14 offen sc1')
        p.label(f'{name}_nopub')
    R0 = stageA('s0', dyn_dmaW(), dyn_dmaA(), None, first=True, bend=BG + 34)
    fix_bar(R0, 8)
    R0.place(('l', f'buffer_load_dword v24, v26, s[{S_DBG}:{S_DBG+3}], 0 offen sc1', 'TAG'), BG + 1, force=True)
    R0.period = 20; R0.stream(ln[:half], 4, None, pace=lambda k: 4 + (k*120)//half); R0.period = 16
    p.lgq = ['act0']*4 + [f'w0_{mi}_{db}' for db in range(8) for mi in range(2) for _ in range(2)]; p.lg_ret = -1
    put(('wlg', ['w0_0_0', 'act0']))
    R0.emit(p, put); order[0] = next_order(R0)
    R1_ = stageA('s1', dyn_dmaW(), dyn_dmaA(), None, bend=BG + 34)
    fix_bar(R1_, 9 if TA else 8, [('call', tag_read)])
    nv = [x for x in ln[half:] if x[0] == 'v']; tail = ln[half + len(nv):]
    R1_.period = 20; g = R1_.stream(ln[half:], 0, None, pace=lambda k: min((k*118)//(len(ln) - half), 200) if ln[half + k][0] == 'v' else BG + 2); R1_.period = 16
    relabel(); put(('wlg', ['w0_0_0', 'act0']))
    R1_.emit(p, put); order[0] = next_order(R1_)
    print('stage0/1 est', R0.total(), R1_.total())
    if 'ps' in opt: p.stamp('stage1 done')
    p(f's_mov_b32 s{sCnt}, 0')
    LA = f'{name}_stageA'
    p.label(LA)
    Rl = stageA('loop', dyn_dmaW(), dyn_dmaA(), None, bend=BG + 34)
    fix_bar(Rl, 9 if TA else 8, [('call', pub_ln)])
    Rl.T[Rl.n - 1] += [('s', f's_add_u32 s{sCnt}, s{sCnt}, 1'), ('s', f's_cmp_lt_u32 s{sCnt}, 4')]
    assert 'nordsA' in opt or next_order(Rl) == order[0], 'stage read order must be periodic'
    relabel()
    put(('wlg', ['w0_0_0', 'act0']))
    Rl.emit(p, put)
    print('stageA loop est', Rl.total(), 'overflow', Rl.over)
    p(f's_cbranch_scc1 {LA}')
    if 'pp' not in opt: (p.stamp('A loop done') if 'pq' not in opt else None)
    def dma_wq(c):
        L = [('s', f's_add_u32 s{sT0}, s{sWoff}, {c*64*8192}'), ('s', f's_add_u32 m0, s{sLW}, {c*SL}')]
        for i in range(4):
            L.append(('m', f'buffer_load_dwordx4 v{vOffW+i}, s[{S_WQ}:{S_WQ+3}], s{sT0} offen offset:{1024*i} lds', f'WQ{c}', None))
        return L
    relabel()
    put(('wlg', ['w0_0_0', 'act0']))
    flagld = [('s', f's_sub_u32 s{sTL}, 15, s{sI}'), ('s', f's_mov_b32 s{sTS}, s{sI}'),
              ('v', f'v_and_b32 v24, 15, v0'), ('v', f'v_bfe_u32 v25, v0, 4, 1'),
              ('v', f'v_mov_b32 v26, s{sTL}'), ('v', f'v_mov_b32 v27, s{sTS}'),
              ('v', f'v_cmp_eq_u32 vcc, 0, v25'), ('v', 's_nop 1'), ('v', f'v_cndmask_b32 v26, v27, v26, vcc'),
              ('v', f'v_lshl_add_u32 v24, v26, 4, v24'),
              ('s', f's_and_b32 s14, s{sH}, 3'), ('s', f's_lshl_b32 s14, s14, 6'), ('s', f's_lshr_b32 s15, s{sH}, 2'), ('s', f's_add_u32 s14, s14, s15'),
              ('v', f'v_and_b32 v25, 7, v0'), ('v', f'v_lshlrev_b32 v25, 3, v25'), ('v', f'v_add_u32 v25, s14, v25'),
              ('v', f'v_cmp_gt_u32 vcc, 32, v0'), ('v', 's_nop 1'), ('v', f'v_cndmask_b32 v24, v25, v24, vcc'),
              ('v', f'v_lshlrev_b32 v24, 3, v24'),
              ('l', f'buffer_load_dwordx2 v[28:29], v24, s[{S_FL}:{S_FL+3}], 0 offen sc1', 'FL')]
    R6 = stageA('s6', dma_wq(4) + dma_wq(5), dma_wq(0) + dma_wq(1), None)
    fix_bar(R6, 9 if TA else 8)
    R6.stream(flagld, BG + 24)
    R6.emit(p, put)
    order[0] = next_order(R6)
    XR = [16, 96, 32, 80]
    XRING = [('v', 16), ('v', 96), ('v', 32), ('v', 80), ('a', 0), ('a', 16), ('a', 32), ('a', 48)]
    def xreg(ks, c):
        t, b = XRING[ks % 8]
        return f'{t}[{b+4*c}:{b+4*c+3}]'
    def xn_load(ks):
        L = []
        for c in range(4):
            off = ks*1024 + (c & 1)*20480
            sb = sXL if c < 2 else sXS
            L.append(('s', f's_add_u32 s{sT1}, s{sb}, {off & ~4095}'))
            L.append(('l', f'buffer_load_dwordx4 {xreg(ks, c)}, v{vLane16}, s[{S_XNF}:{S_XNF+3}], s{sT1} offen offset:{off & 4095} sc1', f'XN{ks}'))
        return L
    def rd_w(db, kin, base, lab):
        r = vWF + 4*db
        return [('r', f'ds_read_b64_tr_b16 v[{r+2*h}:{r+2*h+1}], v{vCW+db} offset:{8192*kin + 1024*h}', lab, None) for h in range(2)]
    def upd_w(base):
        return [('v', f'v_add_u32 v{vCW}, {base}, v{vLPW}')] + [('v', f'v_xor_b32 v{vCW+db}, {db*32}, v{vCW}') for db in range(1, 8)]
    def lncheck():
        p(f's_cmp_lg_u32 s{sW}, 0')
        p(f's_cbranch_scc1 {name}_lnok')
        p('s_mov_b32 s14, 0')
        p.label(f'{name}_lnpoll')
        p(f'v_cmp_ne_u32 vcc, s{sTag}, v28')
        p('s_add_u32 s14, s14, 1')
        p(f's_cbranch_vccz {name}_lnok2')
        p(f's_cmp_ge_u32 s14, {SPIN}')
        p(f's_cbranch_scc1 {name}_lnok2')
        p(f'buffer_load_dwordx2 v[28:29], v24, s[{S_FL}:{S_FL+3}], 0 offen sc1')
        p('s_waitcnt vmcnt(0)')
        p(f's_branch {name}_lnpoll')
        p.label(f'{name}_lnok2')
        p(f'v_cmp_ne_u32 vcc, s{sXcc}, v29')
        p('s_nop 1')
        p('s_lshr_b64 s[14:15], vcc, 32')
        p('s_cmp_eq_u64 s[14:15], 0')
        p(f's_cselect_b32 s{sSame}, 1, 0')
        p.label(f'{name}_lnok')
    relabel()
    put(('wlg', ['w0_0_0', 'act0']))
    xset = [('s', f's_lshl_b32 s{sT1}, s{sTL}, 3'), ('s', f's_lshl_b32 s{sT0}, s{sW}, 1'), ('s', f's_add_u32 s{sT1}, s{sT1}, s{sT0}'),
            ('s', f's_mul_i32 s{sXL}, s{sT1}, 20480'), ('s', f's_lshl_b32 s{sT1}, s{sTS}, 3'), ('s', f's_add_u32 s{sT1}, s{sT1}, s{sT0}'),
            ('s', f's_mul_i32 s{sXS}, s{sT1}, 20480')]
    def last_use(db):
        r = vWF + 4*db
        if r < 64: return GA(1, (r - vWK)//4, 3)
        return GA(1, (r - vWV)//4, 7)
    nr = []
    for db in range(8):
        for it in rd_w(db, 0, 0, f'w0_{db}'): nr.append((it, last_use(db) + 1))
    R7 = stageA('s7', xset + dma_wq(6) + dma_wq(7), dma_wq(2) + dma_wq(3) + dma_wq(8) + dma_wq(9), None, next_reads=(upd_w(0), nr))
    R7.S[BG] = [('call', lambda: (p('s_waitcnt vmcnt(8) lgkmcnt(0)'), p.lg_all(), lncheck(), p('s_barrier')))] + [x for x in R7.S[BG] if x[0] != 'bar']
    R7.stream(xn_load(0) + xn_load(1), BG + 2)
    R7.stream(xn_load(2), GA(1, 4, 0))
    R7.emit(p, put)
    if 'pp' not in opt: p.stamp('phase A done')
    NKS = 20
    mf = []
    for ks in range(NKS):
        for db in range(8):
            for c in range(4):
                acc = O(c, db)
                cc = '0' if ks == 0 else f'v[{acc}:{acc+3}]'
                mf.append(f'{MF} v[{acc}:{acc+3}], v[{vWF+4*db}:{vWF+4*db+3}], {xreg(ks, c)}, {cc}')
    R = Region(mf)
    G = lambda ks, db, c: ks*32 + db*4 + c
    p.wait_vm('XN0')
    put(('wlg', ['w0_0', 'w0_1']))
    R.S[G(3, 0, 3)].append(('bar', ['WQ2', 'WQ3', 'WQ8', 'WQ9', 'WQ4', 'WQ5', 'WQ6', 'WQ7']))
    for ch in range(9):
        R.stream(upd_w((ch + 1)*SL), G(2*ch + 1, 0, 1), G(2*ch + 1, 2, 0))
    for ks in range(NKS):
        for db in range(0, 8, 2):
            if ks == 0 and db == 0: continue
            R.place(('wlg', [f'w{ks}_{db}', f'w{ks}_{db+1}']), G(ks, db, 0) - 1, force=True)
        if ks: R.place(('wvm', f'XN{ks}'), G(ks, 0, 0) - 2, force=True)
    for ks in range(NKS - 1):
        ch, t = divmod(ks, 2); nxt = ks + 1; nch, nt = divmod(nxt, 2)
        for db in range(8):
            e = G(ks, db, 3)
            if t == 1: e = max(e, G(ks, 2, 1))
            rr = rd_w(db, nt, nch*SL, f'w{nxt}_{db}')
            lat = G(ks + 1, 0, 0) if t == 0 else None
            g = R.place(rr[0], e, lat); R.place(rr[1], g + 1 if t == 1 or db < 7 else g, lat)
    TE = 112
    STF = ''
    for o_ in opt:
        if o_.startswith('stf='): STF = o_[4:]
    sSt = sCtx
    epi = []
    sStB = sHbase
    for kind in range(2):
        for f in range(16):
            if kind == 0:
                tb, k4 = divmod(f, 4); a0 = KA(tb, 2*k4); off = tb*4096 + k4*1024; sr = S_KF
            else:
                b, db = divmod(f, 8); a0 = 128 + (b*16 + db*2)*4; off = b*8192 + db*1024; sr = S_VF
            for k in range(8): epi.append(('v', f'v_accvgpr_read_b32 v{TE+k}, a{a0+k}'))
            for k in range(4): epi.append(('v', f'v_cvt_pk_bf16_f32 v{TE+k}, v{TE+2*k}, v{TE+2*k+1}'))
            epi.append(('s', f's_add_u32 s{sSt}, s{sStB}, {off & ~4095}'))
            epi.append(('st', f'buffer_store_dwordx4 v[{TE}:{TE+3}], v{vLane16}, s[{sr}:{sr+3}], s{sSt} offen offset:{off & 4095} {STF}'))
            if 'nost' in opt: epi.pop()
            epi.append(('s', 's_nop 0'))
    KS_V = int(next((o_[3:] for o_ in opt if o_.startswith('kv=')), '17'))
    g0 = 12; span = G(KS_V, 4, 0) - g0
    gl = R.stream(epi, g0, None, pace=lambda k: g0 + (k*span)//len(epi))
    freed = {}
    for g in range(R.n):
        for it in R.V[g]:
            if it[1].startswith('v_accvgpr_read'): freed[int(it[1].split(' a')[-1])] = g
    gprev = 0
    for ks in range(3, NKS):
        t, b = XRING[ks % 8]
        if t == 'a' and ks < 8: e = max(freed[r] for r in range(b, b + 16)) + 1
        elif ks >= 8: e = G(ks - 8, 7, 3) + 1
        else: e = 0
        e = max(e, gprev + 1, G(max(ks - 7, 0), 0, 0))
        lat = G(ks, 0, 0) - 40 if ks > 3 else G(1, 0, 0)
        gprev = R.stream(xn_load(ks), e, max(lat, e + 8))
    FK, FV = 4096, 5120
    def publish(off, lab, waitlabel):
        p.wait_vm(waitlabel)
        p('s_barrier')
        p(f's_cmp_lg_u32 s{sW}, 0')
        p(f's_cbranch_scc1 {name}_{lab}pub')
        p(f's_lshl_b32 s14, s{sH}, 3')
        p(f's_add_u32 s14, s14, s{sI}')
        p(f's_lshl_b32 s14, s14, 2')
        p(f's_add_u32 s14, s14, {off}')
        p(f'v_mov_b32 v12, s{sTag}')
        p('v_mov_b32 v13, 0')
        p(f's_cmp_eq_u32 s{sSame}, 1')
        p(f's_cbranch_scc1 {name}_{lab}rel')
        p('buffer_wbl2 sc1')
        p('s_waitcnt vmcnt(0)')
        p(f'buffer_store_dword v12, v13, s[{S_FL}:{S_FL+3}], s14 offen sc1')
        p(f's_branch {name}_{lab}pub')
        p.label(f'{name}_{lab}rel')
        p(f'buffer_store_dword v12, v13, s[{S_FL}:{S_FL+3}], s14 offen')
        p.label(f'{name}_{lab}pub')
    def flag_load(off, lab):
        return [('s', f's_lshl_b32 s15, s{sH}, 5'), ('s', f's_add_u32 s15, s15, {off}'),
                ('v', 'v_and_b32 v13, 7, v0'), ('v', 'v_lshlrev_b32 v13, 2, v13'),
                ('l', f'buffer_load_dword v12, v13, s[{S_FL}:{S_FL+3}], s15 offen sc1', lab)]
    def check(lab, waitlabel):
        p.wait_vm(waitlabel, 'lgkmcnt(0)'); p.lg_all()
        p(f's_cmp_lg_u32 s{sW}, 0')
        p(f's_cbranch_scc1 {name}_{lab}ok')
        p('s_mov_b32 s14, 0')
        p.label(f'{name}_{lab}poll')
        p(f'v_cmp_ne_u32 vcc, s{sTag}, v12')
        p('s_add_u32 s14, s14, 1')
        p(f's_cbranch_vccz {name}_{lab}ok2')
        p(f's_cmp_ge_u32 s14, {SPIN}')
        p(f's_cbranch_scc1 {name}_{lab}ok2')
        p(f'buffer_load_dword v12, v13, s[{S_FL}:{S_FL+3}], s15 offen sc1')
        p('s_waitcnt vmcnt(0)')
        p(f's_branch {name}_{lab}poll')
        p.label(f'{name}_{lab}ok2')
        p(f's_cmp_eq_u32 s{sSame}, 1')
        p(f's_cbranch_scc1 {name}_{lab}ok')
        p('buffer_inv sc1')
        p('s_waitcnt vmcnt(0)')
        p.label(f'{name}_{lab}ok')
        p('s_barrier')
    def att_state():
        p(f's_lshl_b32 s{sKb}, s{sH}, 19')
        p(f's_add_u32 s{sKb}, s{sKb}, s{sLW}')
        p(f's_mov_b32 s{sVb}, s{sKb}')
    def unitK(slot, label):
        L = [('s', f's_add_u32 m0, s{sLW}, {slot*32768}')]
        for i in range(4): L.append(('m', f'buffer_load_dwordx4 v{vLane16}, s[{S_KF}:{S_KF+3}], s{sKb} offen offset:{1024*i} lds', label, None))
        return L + [('s', f's_add_u32 s{sKb}, s{sKb}, 16384')]
    def unitV(slot, label):
        L = [('s', f's_add_u32 m0, s{sLW}, {slot*32768 + SL}')]
        for i in range(4): L.append(('m', f'buffer_load_dwordx4 v{vLane16}, s[{S_VF}:{S_VF+3}], s{sVb} offen offset:{1024*i} lds', label, None))
        return L + [('s', f's_add_u32 s{sVb}, s{sVb}, 16384')]
    def dma_K(label, tagbase=None):
        L = [('s', f's_mov_b32 m0, s{sSlotP}')]
        for i in range(4):
            L.append(('m', f'buffer_load_dwordx4 v{vLane16}, s[{S_KF}:{S_KF+3}], s{sKb} offen offset:{1024*i} lds', label, None))
        L += [('s', f's_add_u32 s{sKb}, s{sKb}, 16384')]
        return L
    def dma_V(label, tagbase=None):
        L = [('s', f's_add_u32 m0, s{sSlotP}, {SL}')]
        for i in range(4):
            L.append(('m', f'buffer_load_dwordx4 v{vLane16}, s[{S_VF}:{S_VF+3}], s{sVb} offen offset:{1024*i} lds', label, None))
        L += [('s', f's_add_u32 s{sVb}, s{sVb}, 16384')]
        return L
    adv_slot = [('s', f's_add_u32 s{sSlotP}, s{sSlotP}, 32768'), ('s', f's_cmp_ge_u32 s{sSlotP}, {NSLOT*32768}\ns_cselect_b32 s{sSlotP}, s{sLW}, s{sSlotP}')]
    R.emit(p, put)
    print('fused qproj overflow', R.over, 'est', R.total())
    if 'pp' not in opt: p.stamp('q end')
    p(f's_mov_b32 s{sFlag}, 0')
    p(f's_mov_b32 s{sLim}, {hex(LIM)}')
    def touch_setup():
        p(f's_load_dwordx2 s[92:93], s[0:1], {ARG["wo"]}')
        p(f's_load_dwordx2 s[94:95], s[0:1], {ARG["wg"]}')
        p(f's_load_dwordx2 s[96:97], s[0:1], {ARG["wu"]}')
        p(f's_load_dwordx2 s[98:99], s[0:1], {ARG["wd"]}')
        p('s_lshl_b32 s14, s2, 2')
        p(f's_add_u32 s14, s14, s{sW}')
        p('s_mul_i32 s14, s14, 40')
        p('v_min_u32 v14, 39, v0')
        p('v_add_u32 v14, s14, v14')
        p('v_lshlrev_b32 v14, 7, v14')
        p('s_lshr_b32 s14, s2, 6')
        p('s_lshl_b32 s14, s14, 2')
        p(f's_and_b32 s15, s{sI}, 3')
        p('s_add_u32 s14, s14, s15')
        p('s_lshl_b32 s14, s14, 3')
        p('s_and_b32 s15, s2, 7')
        p('s_add_u32 s14, s14, s15')
        p('s_lshl_b32 s14, s14, 2')
        p(f's_add_u32 s14, s14, s{sW}')
        p('s_mul_i32 s14, s14, 34')
        p('v_min_u32 v15, 33, v0')
        p('v_add_u32 v15, s14, v15')
        p('v_min_u32 v15, 17279, v15')
        p('v_lshlrev_b32 v15, 7, v15')
        p('s_waitcnt lgkmcnt(0)')
    touch_items = [('l', 'global_load_dword v13, v14, s[92:93]', 'T'), ('l', 'global_load_dword v13, v15, s[94:95]', 'T'),
                   ('l', 'global_load_dword v13, v15, s[96:97]', 'T'), ('l', 'global_load_dword v13, v15, s[98:99]', 'T')]
    att_state()
    touch_setup()
    publish(FK, 'k', 'st')
    for it in flag_load(FK, 'KFL'): put(it)
    p.stamp('pub done')
    p('s_nop 7')
    for c in range(4):
        for ks in range(4):
            a0 = O(c, 2*ks)
            for k in range(4): p(f'v_cvt_pk_bf16_f32 v{a0+k}, v{a0+2*k}, v{a0+2*k+1}')
            for k in range(4): p(f'v_accvgpr_write_b32 a{aQ + 16*c + 4*ks + k}, v{a0+k}')
    p(f'v_mov_b32 v{vT}, 0x3f803f80')
    for k in range(4): p(f'v_accvgpr_write_b32 a{128+k}, v{vT}')
    p(f'v_and_b32 v{vT}, 15, v0')
    p(f'v_lshrrev_b32 v{vT+1}, 4, v0')
    p(f'v_lshlrev_b32 v{vT+1}, 2, v{vT+1}')
    p(f'v_sub_u32 v{vT}, v{vT}, v{vT+1}')
    for r in range(4): p(f'v_cmp_le_i32 s[{sM+2*r}:{sM+2*r+1}], {r}, v{vT}')
    p(f'v_mov_b32 v{vNinf}, {hex(NEGBIG)}')
    for r in range(16): p(f'v_mov_b32 v{vNeg+r}, 0')
    for c in range(4): p(f'v_mov_b32 v{vL+c}, 0')
    for r in range(64): p(f'v_mov_b32 v{vO+r}, 0')
    p.stamp('pre check')
    check('k', 'KFL')
    emit(unitK(0, 'U-1') + unitK(1, 'U0') + unitV(1, 'U0'))
    p.stamp('kv ok')
    nerr = 0

    def rdK(b, f):  return ('r', f'ds_read_b128 a[{aK+4*f}:{aK+4*f+3}], v{vRd} offset:{b*8192 + f*1024}', f'K{f}')
    def rdV(b, f):  return ('r', f'ds_read_b128 a[{aV+4*f}:{aV+4*f+3}], v{vRd} offset:{16384 + b*8192 + f*1024}', f'V{f}')
    def qk_mfmas(cols, sbase, cin):
        L = []
        for i, c in enumerate(cols):
            for kb in range(2):
                S = Sr(sbase + i, kb)
                for ks in range(4):
                    cc = cin(c, kb) if ks == 0 else S
                    L.append(f'{MF} v[{S}:{S+3}], a[{aK+4*(kb*4+ks)}:{aK+4*(kb*4+ks)+3}], a[{aQ+16*c+4*ks}:{aQ+16*c+4*ks+3}], v[{cc}:{cc+3}]')
        return L
    def pv_mfmas(cols, par, first=False):
        L = []
        for c in cols:
            for db in range(8):
                o = O(c, db)
                cc = '0' if first else f'v[{o}:{o+3}]'
                L.append(f'{MF} v[{o}:{o+3}], a[{aV+4*db}:{aV+4*db+3}], v[{Pr(par, c)}:{Pr(par, c)+3}], {cc}')
        return L
    aOne = 128
    Lm = lambda c: vP + 8 + 4*c
    def sum_mfmas(cols, par):
        return [f'{MF} v[{Lm(c)}:{Lm(c)+3}], a[{aOne}:{aOne+3}], v[{Pr(par, c)}:{Pr(par, c)+3}], v[{Lm(c)}:{Lm(c)+3}]' for c in cols]
    def sm_window_ns(c, sslot, par):
        S = vS + 8*sslot; P = Pr(par, c); W = []
        for k in range(4):
            e0, e1 = vE + (2*k) % 4, vE + (2*k + 1) % 4
            W += [[f'v_exp_f32 v{e0}, v{S+2*k}'], [f'v_exp_f32 v{e1}, v{S+2*k+1}'],
                  [f'v_cvt_pk_bf16_f32 v{P+k}, v{e0}, v{e1}'], []]
        return W
    def sm_window(c, sslot, par):
        S = vS + 8*sslot; P = Pr(par, c); W = []
        for k in range(4):
            e0, e1 = vE + (2*k) % 4, vE + (2*k + 1) % 4
            W += [[f'v_exp_f32 v{e0}, v{S+2*k}'], [f'v_exp_f32 v{e1}, v{S+2*k+1}'],
                  [f'v_add_f32 v{vL+c}, v{vL+c}, v{e0}'],
                  [f'v_add_f32 v{vL+c}, v{vL+c}, v{e1}', f'v_cvt_pk_bf16_f32 v{P+k}, v{e0}, v{e1}']]
        return W
    cin_neg = lambda c, kb: vNeg + 4*c
    def cin_mask(tile_cols):
        def f(c, kb):
            if c in tile_cols: return vCi + 8*(c - tile_cols[0]) + 4*kb
            return vNeg + 4*c
        return f
    def mask_ops(tile_cols):
        c0 = tile_cols[0]
        L = [('s', f's_cmp_lt_i32 s{sDd}, 0\ns_cselect_b64 s[14:15], -1, 0'),
             ('s', f's_cmp_eq_u32 s{sDd}, 0\n' + '\n'.join(f's_cselect_b64 s[{4+2*r}:{5+2*r}], s[{sM+2*r}:{sM+2*r+1}], s[14:15]' for r in range(4))),
             ('s', f's_cmp_le_i32 s{sDd}, 0\ns_cselect_b64 s[12:13], -1, 0')]
        for cb in range(2):
            for kb in range(2):
                for r in range(4):
                    m = 4 + 2*r if cb == kb else (12 if (cb == 1 and kb == 0) else 14)
                    L.append(('v', f'v_cndmask_b32 v{vCi + 8*cb + 4*kb + r}, v{vNinf}, v{vNeg + 4*(c0 + cb) + r}, s[{m}:{m+1}]'))
        return L
    LC, SC = [0, 1], [2, 3]
    def build_group(mf, windows, reads, dmas=(), extra=(), pre_wait=None, mid_wait=None, nwin=None):
        R = Region(mf)
        n = len(mf)
        for (g0, W) in windows:
            for i, ops in enumerate(W):
                for o in ops: R.place(('v', o), g0 + i, force=True)
        slots = [g for g in range(n) if g % 4 == 2]
        if len(slots) < len(reads): slots = sorted(slots + [g for g in range(n) if g % 4 == 3])
        if n == 16 or nwin == 16: slots = [g for g in range(16) if g % 4 in (2, 3)]
        for it, g in zip(reads, slots): R.place(it, g, force=True)
        if dmas:
            free = [g for g in range(n) if not R.M[g]]
            pref = [g for g in free if g >= 16 and nwin == 16] + [g for g in free if g % 4 == 3 and not (g >= 16 and nwin == 16)] + [g for g in free if g % 4 == 1] + [g for g in free if g % 4 in (0, 2)]
            nm = sum(1 for x in dmas if x[0] == 'm')
            use = sorted([g for g in pref if g >= 1][:nm])
            if nwin == 16 and nm == 4: use = [5, 9, 13, 16]
            k = 0; pend_s = []
            for it in dmas:
                if it[0] == 's': pend_s.append(it)
                else:
                    g = use[k]; k += 1
                    for j, sx in enumerate(pend_s):
                        gg = max(0, g - len(pend_s) + j)
                        if k > 1: gg = max(gg, use[k-2] + 1) if use[k-2] + 1 <= g - 1 or ' m0,' not in sx[1] else gg
                        if gg == g and ' m0,' in sx[1]: R.place(('s', 's_nop 0'), g, force=True) if False else None
                        R.place(sx, gg, force=True)
                    pend_s = []
                    R.place(it, g, force=True)
            for j, sx in enumerate(pend_s):
                gg = use[-1] + 1 + j
                if gg <= n - 1: R.place(sx, gg, force=True)
                else: R.T[n - 1].append(sx)
        if extra:
            g = 0
            for it in extra:
                best = None
                for gg in range(g, n - 1):
                    if R.fits(gg, it): best = gg; break
                if best is None:
                    best = g
                R.place(it, best, force=True); g = best
        if mid_wait: R.place(mid_wait[1], mid_wait[0], force=True)
        return R
    slot_adv = [('s', f's_add_u32 s{sSlotR}, s{sSlotR}, 32768'), ('s', f's_cmp_ge_u32 s{sSlotR}, {NSLOT*32768}\ns_cselect_b32 s{sSlotR}, 0, s{sSlotR}')]
    def start_items(R, vm=16):
        pre = []
        if vm is None: return
        if 'nodma' not in opt: pre.append(('w', f's_waitcnt vmcnt({vm})'))
        if 'nobar' not in opt: pre.append(('w', 's_barrier'))
        R.S[0] = pre + R.S[0]
    def end_items(R, loop=None):
        n = R.n
        for j, it in enumerate(slot_adv): R.S[4 + 4*j if n > 16 else 1 + 4*j].append(it) if False else None
        g0 = 8
        for j, it in enumerate(slot_adv): R.S[g0 + j].append(it)
        R.V[n - 1].append(('v', f'v_add_u32 v{vRd}, s{sSlotR}, v{vLane16}'))
        if loop:
            R.S[n - 3].append(('s', f's_sub_u32 s{sCnt}, s{sCnt}, 1'))
            R.T[n - 1].append(('s', f's_cmp_lg_u32 s{sCnt}, 0'))
    def emit_group(R, pre):
        if pre and 'nords' not in opt:
            put(('wlg', [f'{pre}{f}' for f in range(4)]))
            R.S[3].insert(0, ('wlg', [f'{pre}{f}' for f in range(4, 8)]))
        if 'nosm' in opt:
            for g in range(R.n): R.V[g] = []
        if 'noexp' in opt:
            for g in range(R.n): R.V[g] = [(x[0], x[1].replace('v_exp_f32', 'v_mov_b32')) for x in R.V[g]]
        if 'nodma' in opt:
            for g in range(R.n): R.M[g] = [x for x in R.M[g] if x[0] != 'm']
        if 'nords' in opt:
            for g in range(R.n):
                R.M[g] = [x for x in R.M[g] if x[0] != 'r']; R.S[g] = [x for x in R.S[g] if x[0] != 'wlg']
            pre = None; R.S[3] = [x for x in R.S[3] if x[0] != 'wlg']
        R.emit(p, put)
    stats = {'cyc': 0}
    def interval(kind, lbl, maskL=None, maskS=None, loop=False, vm=16):
        dual = kind in ('D', 'T')
        mA, mB, mN = (maskS if dual else maskL) or (False, False, False)
        tile = SC if dual else LC
        p.lgq = ['K%d' % f for f in range(8)]; p.lg_ret = -1
        tot = 0
        if dual:
            cols = [0, 1, 2, 3]
            R1 = build_group(qk_mfmas(cols, 0, cin_mask(SC) if mA else cin_neg),
                             [(0, sm_window(3, 3, 0)), (16, sm_window(0, 0, 1))], [rdV(0, f) for f in range(8)], dma_K('x'),
                             mid_wait=None)
            start_items(R1, vm)
            if lbl == 'db':
                g_ = 1
                sel = ([touch_items[0]] if TW else []) + (touch_items[1:] if TF else [])
                for it in sel:
                    while R1.M[g_]: g_ += 1
                    R1.M[g_].append(it); g_ += 3
            emit_group(R1, 'K')
            ex = ([('s', f's_add_u32 s{sDd}, s{sDd}, 1')] + mask_ops(SC if kind == 'D' else LC)) if mB else []
            if kind == 'T': ex = mask_ops(LC)
            R2 = build_group(pv_mfmas(cols, 0), [(0, sm_window(1, 1, 1)), (16, sm_window(2, 2, 1))], [rdK(0, f) for f in range(8)], extra=ex)
            if kind == 'T':
                emit([('s', f's_sub_u32 s{sDd}, s{sTS}, s{sTL}'), ('s', f's_lshl_b32 s{sDd}, s{sDd}, 2'), ('s', f's_add_u32 s{sDd}, s{sDd}, 4'), ('s', f's_sub_u32 s{sDd}, s{sDd}, s{sW}')])
            emit_group(R2, 'V')
            if kind == 'D':
                R3 = build_group(qk_mfmas(cols, 0, cin_mask(SC) if mB else cin_neg),
                                 [(0, sm_window(3, 3, 1)), (16, sm_window(0, 0, 0))], [rdV(1, f) for f in range(8)], dma_V('x') + adv_slot)
                emit_group(R3, 'K')
                ex = ([('s', f's_add_u32 s{sDd}, s{sDd}, 1')] + mask_ops(SC)) if mN else []
                R4 = build_group(pv_mfmas(cols, 1), [(0, sm_window(1, 1, 0)), (16, sm_window(2, 2, 0))], [rdK(1, f) for f in range(8)], extra=ex)
                end_items(R4, loop)
                emit_group(R4, 'V')
            else:
                R3 = build_group(qk_mfmas(LC, 0, cin_mask(LC)), [(0, sm_window(3, 3, 1))], [rdV(1, f) for f in range(8)], dma_V('x') + adv_slot)
                emit_group(R3, 'K')
                ex = ([('s', f's_add_u32 s{sDd}, s{sDd}, 1')] + mask_ops(LC))
                ex = [('v', f'v_mov_b32 v{Lm(c)+r}, 0') for c in LC for r in range(4)] + ex
                R4 = build_group(pv_mfmas(cols, 1), [(0, sm_window_ns(0, 0, 0))], [rdK(1, f) for f in range(8)], extra=ex)
                end_items(R4)
                emit_group(R4, 'V')
            tot = R1.total() + R2.total() + R3.total() + R4.total()
        else:
            dK = dma_K('x'); dv_ = dma_V('x'); dV = dv_[:1] + adv_slot + dv_[1:]
            R1 = build_group(qk_mfmas(LC, 2, cin_mask(LC) if mA else cin_neg), [(0, sm_window_ns(1, 1, 0))], [rdV(0, f) for f in range(8)])
            start_items(R1, vm)
            emit_group(R1, 'K')
            ex = ([('s', f's_add_u32 s{sDd}, s{sDd}, 1')] + mask_ops(LC)) if mB else []
            rk = [rdK(0, f) for f in range(8)] if kind != 'E' else []
            R2 = build_group(pv_mfmas(LC, 0) + sum_mfmas(LC, 0), [(0, sm_window_ns(0, 2, 1))], rk, dK, extra=ex, nwin=16)
            emit_group(R2, 'V')
            if kind != 'E':
                R3 = build_group(qk_mfmas(LC, 0, cin_mask(LC) if mB else cin_neg), [(0, sm_window_ns(1, 3, 1))], [rdV(1, f) for f in range(8)])
                emit_group(R3, 'K')
                ex = ([('s', f's_add_u32 s{sDd}, s{sDd}, 1')] + mask_ops(LC)) if mN else []
                R4 = build_group(pv_mfmas(LC, 1) + sum_mfmas(LC, 1), [(0, sm_window_ns(0, 0, 0))], [rdK(1, f) for f in range(8)], dV, extra=ex, nwin=16)
                end_items(R4, loop)
                emit_group(R4, 'V')
                tot = R1.total() + R2.total() + R3.total() + R4.total()
            else:
                for f in range(8): put(rdV(1, f))
                emit(dV)
                for ops in sm_window_ns(1, 3, 1):
                    for o in ops: p(o)
                    if len(ops) == 1 and ops[0].startswith('v_exp'): p('s_nop 0')
                p('s_waitcnt lgkmcnt(0)')
                p('s_nop 1')
                for m in pv_mfmas(LC, 1) + sum_mfmas(LC, 1): p(m)
        if tot: print(f'  interval {lbl}: est {tot} cycles for', 128 if kind == 'D' else (112 if kind == 'T' else 64), 'mfma')

    def emit_prefetch():
        p('s_lshr_b32 s14, s2, 3')
        p('s_and_b32 s15, s14, 7')
        p('s_cmp_lt_u32 s15, 4')
        p(f's_cbranch_scc1 {name}_npf')
        p(f's_load_dwordx2 s[92:93], s[0:1], {ARG["wo"]}')
        p('s_lshr_b32 s14, s14, 3')
        p('s_lshl_b32 s14, s14, 2')
        p('s_add_u32 s14, s14, s15')
        p('s_sub_u32 s14, s14, 4')
        p(f's_mul_i32 s14, s14, {640*128}')
        p('s_and_b32 s15, s2, 7')
        p('s_lshr_b32 s15, s15, 1')
        p('s_mul_i32 s15, s15, 1310720')
        p('s_add_u32 s14, s14, s15')
        p(f's_mul_i32 s15, s{sW}, {160*128}')
        p('s_add_u32 s14, s14, s15')
        p('s_waitcnt lgkmcnt(0)')
        for i in range(3):
            p(f'v_add_u32 v251, {64*i}, v0')
            p(f'v_min_u32 v251, 159, v251')
            p(f'v_lshlrev_b32 v251, 7, v251')
            p(f'v_add_u32 v251, s14, v251')
            p(f'global_load_dword v250, v251, s[92:93]')
        p.label(f'{name}_npf')
    FA, FB = (10, 11) if FP == 'db' else (252, 253)
    F2, F3, F4, F5 = (47, 48, 49, 51) if FP in ('db', 'S') else (92, 93, 94, 95)
    def ffn_loads():
        p(f's_mov_b32 s{F5}, 0')
        p('s_lshr_b32 s14, s2, 3')
        p(f's_and_b32 s{F2}, s14, 7')
        p(f's_cmp_lt_u32 s{F2}, 6')
        p(f's_cbranch_scc1 {name}_nffn')
        p('s_lshr_b32 s14, s2, 6')
        p('s_lshl_b32 s14, s14, 1')
        p(f's_add_u32 s14, s14, s{F2}')
        p('s_sub_u32 s14, s14, 6')
        p('s_lshl_b32 s14, s14, 3')
        p('s_and_b32 s15, s2, 7')
        p(f's_add_u32 s{F4}, s14, s15')
        p(f's_cmp_ge_u32 s{F4}, 54')
        p(f's_cbranch_scc1 {name}_nffn')
        p(f's_mov_b32 s{F5}, 1')
        p(f's_load_dwordx2 s[4:5], s[0:1], {ARG["wg"]}')
        p(f's_load_dwordx2 s[8:9], s[0:1], {ARG["wu"]}')
        p(f's_load_dwordx2 s[12:13], s[0:1], {ARG["wd"]}')
        p(f'v_lshrrev_b32 v{FA}, 2, v0')
        p(f'v_mul_u32_u24 v{FA}, 3456, v{FA}')
        p(f'v_and_b32 v{FB}, 3, v0')
        p(f'v_lshl_add_u32 v{FA}, v{FB}, 4, v{FA}')
        p('s_waitcnt lgkmcnt(0)')
        for sr, sz in ((4, 640*1728*2), (8, 640*1728*2), (12, 1728*640*2)):
            p(f's_mov_b32 s{sr+2}, {sz}'); p(f's_mov_b32 s{sr+3}, 0x00020000')
        p(f's_mul_i32 s{F2}, s{sW}, {160*3456}')
        p(f's_lshl_b32 s{F3}, s{F4}, 6')
        p(f's_add_u32 s{F2}, s{F2}, s{F3}')
        for i in range(10):
            for mat, sr in enumerate((4, 8)):
                r = 132 + (mat*10 + i)*4
                p(f'buffer_load_dwordx4 a[{r}:{r+3}], v{FA}, s[{sr}:{sr+3}], s{F2} offen')
            p(f's_add_u32 s{F2}, s{F2}, {16*3456}')
        p(f's_mul_i32 s{F2}, s{F4}, {32*1280}')
        p(f's_mul_i32 s{F3}, s{sW}, 10240')
        p(f's_add_u32 s{F2}, s{F2}, s{F3}')
        for i in range(10):
            r = 132 + (20 + i)*4
            p(f'buffer_load_dwordx4 a[{r}:{r+3}], v{vLane16}, s[12:15], s{F2} offen offset:{(i % 4)*1024}')
            if i % 4 == 3: p(f's_add_u32 s{F2}, s{F2}, 4096')
        p.label(f'{name}_nffn')
    def row_reduce(reg, op, tmp):
        for sw in ('v_permlane16_swap_b32', 'v_permlane32_swap_b32'):
            p(f'v_mov_b32 v{tmp}, v{reg}')
            p('s_nop 1')
            p(f'{sw} v{reg}, v{tmp}')
            p('s_nop 1')
            p(f'{op} v{reg}, v{reg}, v{tmp}')
    def epilogue(cols, sTile, flagbit):
        p('s_nop 7')
        for c in cols: row_reduce(vL + c, 'v_add_f32', vU)
        if cols == LC:
            for c in cols: p(f'v_add_f32 v{vL+c}, v{vL+c}, v{Lm(c)}')
        p(f'v_max_f32 v{vU}, v{vL+cols[0]}, v{vL+cols[1]}')
        p(f'v_cmp_nle_f32 vcc, v{vU}, v{vU+1}'.replace(f'v{vU+1}', f'v{vU+1}') if False else f'v_cmp_nge_f32 vcc, s{sLim}, v{vU}')
        p('s_nop 1')
        p(f's_cmp_lg_u64 vcc, 0')
        p(f's_cselect_b32 s{sT0}, {flagbit}, 0')
        p(f's_or_b32 s{sFlag}, s{sFlag}, s{sT0}')
        for c in cols: p(f'v_rcp_f32 v{vL+c}, v{vL+c}')
        store_ctx(cols, sTile)
    def store_ctx(cols, sTile):
        p(f's_lshl_b32 s{sCtx}, s{sTile}, 3')
        p(f's_lshl_b32 s{sT0}, s{sW}, 1')
        p(f's_add_u32 s{sCtx}, s{sCtx}, s{sT0}')
        p(f's_lshl_b32 s{sCtx}, s{sCtx}, 5')
        p(f's_add_u32 s{sCtx}, s{sCtx}, s{sH}')
        p(f's_lshl_b32 s{sCtx}, s{sCtx}, 12')
        p(f's_add_u32 s{sT1}, s{sCtx}, {32*4096}')
        for i, c in enumerate(cols):
            for ks in range(4):
                o = O(c, 2*ks)
                for k in range(8): p(f'v_mul_f32 v{o+k}, v{o+k}, v{vL+c}')
                for k in range(4): p(f'v_cvt_pk_bf16_f32 v{o+k}, v{o+2*k}, v{o+2*k+1}')
                p(f'buffer_store_dwordx4 v[{o}:{o+3}], v{vLane16}, s[{S_CTX}:{S_CTX+3}], s{sCtx if i == 0 else sT1} offen offset:{ks*1024} {CTX_FLAGS}')

    p(f's_mov_b32 s{sSlotR}, 0')
    p(f'v_mov_b32 v{vRd}, v{vLane16}')
    for r in range(64, 128): p(f'v_mov_b32 v{vO+r}, 0')
    p(f's_lshl_b32 s{sDd}, s{sTS}, 2')
    p(f's_add_u32 s{sDd}, s{sDd}, s{sW}')
    p(f's_sub_u32 s{sDd}, 0, s{sDd}')
    emit(mask_ops(SC))
    p.wait_vm('U-1')
    p('s_barrier')
    p.stamp('U-1 ready')
    p.lgq = []; p.lg_ret = -1
    for f in range(8): put(rdK(0, f))
    p('s_waitcnt lgkmcnt(0)')
    q0 = qk_mfmas([0, 1, 2, 3], 0, cin_mask(SC))
    rest = unitK(2, 'U1') + unitV(2, 'U1')
    Rq = Region(q0)
    spread(Rq, rest, 0, 31)
    Rq.emit(p, put)
    p(f's_add_u32 s{sSlotP}, s{sLW}, {4*32768}')
    p.stamp('qk0 done')
    for f in range(8): put(rdK(1, f))
    for step in range(4):
        for c in range(4):
            S = vS + 8*c; t = vU + c
            if step == 0: p(f'v_max3_f32 v{t}, v{S}, v{S+1}, v{S+2}')
            elif step == 1: p(f'v_max3_f32 v{t}, v{t}, v{S+3}, v{S+4}')
            elif step == 2: p(f'v_max3_f32 v{t}, v{t}, v{S+5}, v{S+6}')
            else: p(f'v_max_f32 v{t}, v{t}, v{S+7}')
    for sw in ('v_permlane16_swap_b32', 'v_permlane32_swap_b32'):
        for c in range(4): p(f'v_mov_b32 v{vU+4+c}, v{vU+c}')
        for c in range(4): p(f'{sw} v{vU+c}, v{vU+4+c}')
        p('s_nop 0')
        for c in range(4): p(f'v_max_f32 v{vU+c}, v{vU+c}, v{vU+4+c}')
    for r in range(8):
        for c in range(4): p(f'v_sub_f32 v{vS+8*c+r}, v{vS+8*c+r}, v{vU+c}')
    for c in range(4):
        for r in range(4): p(f'v_sub_f32 v{vNeg+4*c+r}, 0, v{vU+c}')
    def run_window(W):
        for ops in W:
            for o in ops: p(o)
            if len(ops) == 1 and ops[0].startswith('v_exp'): p('s_nop 0')
    u2 = unitK(3, 'U2') + unitV(3, 'U2')
    for r in range(8):
        for c in range(3): p(f'v_exp_f32 v{vS+8*c+r}, v{vS+8*c+r}')
        while u2:
            it = u2.pop(0)
            put(it)
            if it[0] == 'm': break
            if ' m0,' in it[1]: p('s_nop 0')
    for it in u2: put(it)
    p('s_nop 0')
    for r in range(8):
        for c in range(3): p(f'v_add_f32 v{vL+c}, v{vL+c}, v{vS+8*c+r}')
    for k in range(4):
        for c in range(3): p(f'v_cvt_pk_bf16_f32 v{Pr(0, c)+k}, v{vS+8*c+2*k}, v{vS+8*c+2*k+1}')
    p(f's_mov_b32 s{sSlotR}, 32768')
    p(f'v_add_u32 v{vRd}, s{sSlotR}, v{vLane16}')
    if 'pp' not in opt: p.stamp('attn prologue done')
    p(f's_cmp_eq_u32 s{sTS}, 0')
    p(f's_cbranch_scc1 {name}_t0')
    p(f's_lshl_b32 s{sCnt}, s{sTS}, 1')
    p(f's_sub_u32 s{sCnt}, s{sCnt}, 1')
    p.label(f'{name}_dn')
    interval('D', f'dn', loop=True)
    p(f's_cbranch_scc1 {name}_dn')
    p(f's_sub_u32 s{sDd}, -1, s{sW}')
    interval('D', 'da', maskS=(False, True, True))
    p(f's_branch {name}_db')
    p.label(f'{name}_t0')
    p(f's_sub_u32 s{sDd}, 1, s{sW}')
    emit(mask_ops(SC))
    p('s_nop 1')
    p.label(f'{name}_db')
    if FP == 'db':
        p('s_waitcnt vmcnt(16)')
        p('s_barrier')
        ffn_loads()
        interval('D', 'db', maskS=(True, True, True), vm=None)
        p(f's_cmp_eq_u32 s{F5}, 0')
        p(f's_cbranch_scc1 {name}_dcw')
        p('s_waitcnt vmcnt(46)')
        p(f's_branch {name}_dcw2')
        p.label(f'{name}_dcw')
        p('s_waitcnt vmcnt(16)')
        p.label(f'{name}_dcw2')
        interval('T', 'dc', maskS=(True, False, False), vm=63)
    else:
        interval('D', 'db', maskS=(True, True, True))
        interval('T', 'dc', maskS=(True, False, False))
    epilogue(SC, sTS, 2)
    if FP == 'S':
        ffn_loads()
        p.lgq = ['K%d' % f for f in range(8)]; p.lg_ret = 7
    if 'pp' not in opt: (p.stamp('S done') if 'pq' not in opt else None)
    p(f's_sub_u32 s{sCnt}, s{sTL}, s{sTS}')
    p(f's_cmp_eq_u32 s{sCnt}, 1')
    p(f's_cbranch_scc1 {name}_sb')
    p(f's_sub_u32 s{sCnt}, s{sCnt}, 2')
    interval('S', 'sn1')
    p.label(f'{name}_sn')
    interval('S', 'sn2a', vm=8)
    interval('S', 'sn2b', vm=None, loop=True)
    p(f's_cbranch_scc1 {name}_sn')
    p(f's_sub_u32 s{sDd}, -1, s{sW}')
    interval('S', 'sa', maskL=(False, True, True))
    p.label(f'{name}_sb')
    interval('S', 'sb', maskL=(True, True, True))
    interval('E', 'sc', maskL=(True, False, False))
    epilogue(LC, sTL, 1)
    p.stamp('L done')
    p(f's_cmp_eq_u32 s{sFlag}, 0')
    p(f's_cbranch_scc1 {name}_fin')
    fallback(p, name, locals())
    p.label(f'{name}_fin')
    def ctx_publish():
        p('s_waitcnt vmcnt(0) lgkmcnt(0)')
        p('s_barrier')
        p(f's_cmp_lg_u32 s{sW}, 0')
        p(f's_cbranch_scc1 {name}_cpub')
        p(f's_lshl_b32 s14, s2, 2')
        p(f's_add_u32 s14, s14, 6144')
        p(f'v_mov_b32 v20, s{sTag}')
        p('v_mov_b32 v21, 0')
        p(f'buffer_store_dword v20, v21, s[{S_FL}:{S_FL+3}], s14 offen sc1')
        p.label(f'{name}_cpub')
        p.stamp('ctx pub')
        if PE: emit_prefetch()
        if FP == 'end': ffn_loads()
    import kt
    nerr += kt.gen_kt(name + '_t', p, prof, opt, ctx_publish)
    p.label(f'{name}_done')
    p('s_endpgm')
    def mk_policy(t0, nd, skip_s, ns, fb, wave0):
        def pol(ins, n):
            t = ins.args[0]
            if t.endswith('_done'): return False
            if t.endswith('_stageA'): return n % 3 != 0
            if t in (name + '_noln0', name + '_noln1'): return False
            if t in (name + '_notag', name + '_kvpub'): return not wave0
            if t == name + '_notag2': return True
            if t == name + '_nffn': return not wave0
            if t == name + '_dcw': return not wave0
            if t == name + '_cpub': return not wave0
            if t.startswith(name + '_t'):
                if '_poll' in t and t.endswith('_ok'): return True
                u = t[len(name) + 2:]
                if u in ('_w123', '_w1', '_nosig', '_w4', '_w5', '_cw'): return not wave0
                return False
            if t == name + '_nz': return True
            if t == name + '_nocode': return False
            if t == name + '_nopub': return True
            if t in (name + '_lnok', name + '_kok', name + '_vok', name + '_kpub', name + '_vpub'): return not wave0
            if t in (name + '_lnok2', name + '_kok2', name + '_vok2', name + '_krel', name + '_vrel'): return True
            if t.endswith('_t0'): return t0
            if t.endswith('_dn'): return (n % nd) != 0
            if t.endswith('_sb'): return skip_s
            if t.endswith('_sn'): return (n % ns) != 0
            if t.endswith('_fin'): return not fb
            if t.endswith('_fbloop'): return n % 3 != 0
            return False
        return pol
    for cfg in ([(False, 3, False, 3, False, True), (True, 2, False, 2, True, False), (False, 2, True, 2, False, True)] if (not opt or opt[0] in ('pp', 'pq', 'tl', 'tr', 'nocode', 'notlb', 'dbg') or opt[0].startswith('kv=')) and not any(o_.endswith('A') for o_ in opt) else []):
        seq = trace(p, mk_policy(*cfg))
        nerr += len(check_linear(seq, name + str(cfg)))
    return p, nerr

def fallback(p, name, L):
    g = L
    vS, vP, vE, vL, vU, vNeg, vCi, vO = g['vS'], g['vP'], g['vE'], g['vL'], g['vU'], g['vNeg'], g['vCi'], g['vO']
    aQ, aK, aV, vLane16, vNinf = g['aQ'], g['aK'], g['aV'], g['vLane16'], g['vNinf']
    S_KF, S_VF = g['S_KF'], g['S_VF']
    sFlag, sTL, sTS, sW, sH, sDd, sCnt, sT0, sT1, sT2 = (g[k] for k in ('sFlag', 'sTL', 'sTS', 'sW', 'sH', 'sDd', 'sCnt', 'sT0', 'sT1', 'sT2'))
    O = g['O']; mask_ops = g['mask_ops']; qk_mfmas = g['qk_mfmas']; pv_mfmas = g['pv_mfmas']; row_reduce = g['row_reduce']; store_ctx = g['store_ctx']
    put = g['put']
    p('s_waitcnt vmcnt(0) lgkmcnt(0)')
    for cols, sTile, bit, nm in (([2, 3], sTS, 2, 'S'), ([0, 1], sTL, 1, 'L')):
        p(f's_and_b32 s{sT0}, s{sFlag}, {bit}')
        p(f's_cmp_eq_u32 s{sT0}, 0')
        p(f's_cbranch_scc1 {name}_fbskip{nm}')
        for c in cols:
            p(f'v_mov_b32 v{vL+c}, 0')
            for r in range(32): p(f'v_mov_b32 v{vO+32*c+r}, 0')
            for r in range(4): p(f'v_mov_b32 v{vNeg+4*c+r}, 0')
        for i in range(2): p(f'v_mov_b32 v{vU+4+i}, v{vNinf}')
        p(f's_lshl_b32 s{sDd}, s{sTile}, 2')
        p(f's_add_u32 s{sDd}, s{sDd}, s{sW}')
        p(f's_add_u32 s{sCnt}, s{sDd}, 1')
        p(f's_sub_u32 s{sDd}, 0, s{sDd}')
        p(f's_lshl_b32 s{sT2}, s{sH}, 19')
        p.label(f'{name}_fb{nm}_fbloop')
        for f in range(8):
            p(f's_add_u32 s{sT1}, s{sT2}, {(f // 4)*4096}')
            p(f'buffer_load_dwordx4 a[{aK+4*f}:{aK+4*f+3}], v{vLane16}, s[{S_KF}:{S_KF+3}], s{sT1} offen offset:{(f % 4)*1024}')
            p(f'buffer_load_dwordx4 a[{aV+4*f}:{aV+4*f+3}], v{vLane16}, s[{S_VF}:{S_VF+3}], s{sT1} offen offset:{(f % 4)*1024}')
        for it in mask_ops(cols): put(it)
        p('s_waitcnt vmcnt(0)')
        p('s_nop 1')
        for m in qk_mfmas(cols, 0, lambda c, kb: vCi + 8*(c - cols[0]) + 4*kb): p(m)
        p('s_nop 7')
        for i, c in enumerate(cols):
            S = vS + 8*i; t = vU + i; m = vU + 4 + i
            p(f'v_max3_f32 v{t}, v{S}, v{S+1}, v{S+2}')
            p(f'v_max3_f32 v{t}, v{t}, v{S+3}, v{S+4}')
            p(f'v_max3_f32 v{t}, v{t}, v{S+5}, v{S+6}')
            p(f'v_max_f32 v{t}, v{t}, v{S+7}')
            row_reduce(t, 'v_max_f32', vU + 6)
            p(f'v_max_f32 v{t}, v{t}, v{m}')
            p(f'v_sub_f32 v{vU+6}, v{m}, v{t}')
            p(f'v_exp_f32 v{vU+6}, v{vU+6}')
            p(f'v_mov_b32 v{m}, v{t}')
            p(f'v_mul_f32 v{vL+c}, v{vL+c}, v{vU+6}')
            for r in range(32): p(f'v_mul_f32 v{vO+32*c+r}, v{vO+32*c+r}, v{vU+6}')
            for r in range(8): p(f'v_sub_f32 v{S+r}, v{S+r}, v{t}')
            for r in range(8): p(f'v_exp_f32 v{S+r}, v{S+r}')
            p('s_nop 0')
            for r in range(8): p(f'v_add_f32 v{vL+c}, v{vL+c}, v{S+r}')
            for k in range(4): p(f'v_cvt_pk_bf16_f32 v{vP+4*c+k}, v{S+2*k}, v{S+2*k+1}')
        p('s_nop 1')
        for m in pv_mfmas(cols, 0): p(m)
        p('s_nop 7')
        p(f's_add_u32 s{sT2}, s{sT2}, 8192')
        p(f's_add_u32 s{sDd}, s{sDd}, 1')
        p(f's_sub_u32 s{sCnt}, s{sCnt}, 1')
        p(f's_cmp_lg_u32 s{sCnt}, 0')
        p(f's_cbranch_scc1 {name}_fb{nm}_fbloop')
        for c in cols: row_reduce(vL + c, 'v_add_f32', vU)
        for c in cols: p(f'v_rcp_f32 v{vL+c}, v{vL+c}')
        store_ctx(cols, sTile)
        p.label(f'{name}_fbskip{nm}')

if __name__ == '__main__':
    p, ne = gen_kf()
    print('instrs', p.count(), 'errors', ne)
```

```python
from common import *
from gx2 import *
from sched import *
from lnops import rne_keep
MF = 'v_mfma_f32_16x16x32_bf16'
NFFN = 54
WS_PB = WS_PART
PS_OFF = 4*128*8*2560
SZ_PB = PS_OFF + 4*64*8*1024
SPIN = 1 << 16

def poll(p, name, S_DBG, off, target, vt, sA, sB):
    L = p.nl(name + '_poll')
    p(f'v_mov_b32 v{vt}, {off}')
    p(f's_mov_b32 s{sA}, 0')
    p.label(L)
    p(f'buffer_load_dword v{vt+1}, v{vt}, s[{S_DBG}:{S_DBG+3}], 0 offen sc1')
    p('s_waitcnt vmcnt(0)')
    p(f'v_readfirstlane_b32 s{sB}, v{vt+1}')
    p(f's_add_u32 s{sA}, s{sA}, 1')
    p(f's_cmp_ge_u32 s{sB}, {target}')
    p(f's_cbranch_scc1 {L}_ok')
    p(f's_cmp_ge_u32 s{sA}, {SPIN}')
    p(f's_cbranch_scc1 {L}_ok')
    p('s_sleep 1')
    p(f's_branch {L}')
    p.label(L + '_ok')

FOFS = 82*MiB - WS_STAT
O_CTXF, O_FM, O_KEYS, O_RDY, O_FF = FOFS + 6144, FOFS + 8192, FOFS + 10240, FOFS + 12288, FOFS + 13312

def gen_kt(name, p, prof=False, opt=(), ctx_publish=None):
    put = make_put(p)
    S_WO, S_CTX, S_PB, S_DBG, S_X, S_OUT, S_H, S_ST = 16, 20, 24, 28, 32, 36, 40, 56
    S_WA, S_WB = 60, 64
    sW, sS, sMT, sNT = 44, 45, 46, 47
    sT0, sT1, sT2 = 48, 49, 50
    sWoff, sCoff, sLWw, sLWc, sP0 = 51, 52, 53, 54, 55
    sIdx, sR = 68, 69
    vLane16 = 1
    vOffW = 2
    vLPe, vLPo, vCe, vCo = 7, 8, 9, 10
    vLPc, vCc = 11, 12
    vT = 13
    vWF = 20; vCF = 40; acc = 72
    SLOT = 36864; NSL = 4
    sTag = 3; sFj = 62; sPS = 60; sMaskC = 61
    p.vmq = []; p.retired = -1; p.lgq = []; p.lg_ret = -1
    n_front = len(p.items)
    if getattr(p, 'dbgmode', False):
        for k in range(p.nstamp, 10): p(f's_mov_b32 s{72 + 2*k}, s72')
    p(f's_load_dwordx2 s[4:5], s[0:1], {ARG["wo"]}')
    p(f's_load_dwordx4 s[8:11], s[0:1], {ARG["out"]}')
    p(f's_load_dwordx2 s[12:13], s[0:1], {ARG["ws"]}')
    p(f's_load_dwordx2 s[6:7], s[0:1], {ARG["x"]}')
    p('s_and_b32 s14, s2, 7')
    p('s_lshr_b32 s15, s2, 3')
    p(f's_lshr_b32 s{sS}, s14, 1')
    p(f's_and_b32 s14, s14, 1')
    p(f's_lshl_b32 s14, s14, 3')
    p(f's_and_b32 s{sMT}, s15, 7')
    p(f's_add_u32 s{sMT}, s{sMT}, s14')
    p(f's_lshr_b32 s{sNT}, s15, 3')
    p('s_lshr_b32 s14, s2, 3')
    p(f's_and_b32 s{sFj}, s14, 7')
    p(f's_lshr_b32 s14, s14, 3')
    p(f's_lshl_b32 s14, s14, 1')
    p(f's_add_u32 s14, s14, s{sFj}')
    p(f's_sub_u32 s14, s14, 6')
    p(f's_lshl_b32 s14, s14, 3')
    p(f's_and_b32 s15, s2, 7')
    p(f's_add_u32 s14, s14, s15')
    p(f's_cmp_ge_u32 s{sFj}, 6')
    p(f's_cselect_b32 s{sFj}, s14, 255')
    p('s_lshr_b32 s15, s2, 3')
    p(f's_lshl_b32 s{sT0}, s{sMT}, 3')
    p(f's_lshl_b32 s{sT1}, s{sW}, 1')
    p(f's_add_u32 s{sT0}, s{sT0}, s{sT1}')
    p(f's_lshl_b32 s{sT0}, s{sT0}, 2')
    p(f's_add_u32 s{sT0}, s{sT0}, s{sS}')
    p(f's_lshl_b32 s{sCoff}, s{sT0}, 15')
    p(f's_lshl_b32 s{sLWc}, s{sW}, 12')
    p(f's_add_u32 s{sLWc}, s{sLWc}, 20480')
    p(f's_mul_i32 s{sWoff}, s{sS}, {1024*1280}')
    p(f's_mul_i32 s{sT0}, s{sNT}, 320')
    p(f's_add_u32 s{sWoff}, s{sWoff}, s{sT0}')
    p(f's_mul_i32 s{sLWw}, s{sW}, 5120')
    p(f's_mul_i32 s{sT0}, s{sW}, 320')
    p(f'v_add_u32 v{vT}, s{sT0}, v0')
    for i in range(5):
        if i: p(f'v_add_u32 v{vT}, 64, v{vT}')
        p(f'v_mul_u32_u24 v{vT+1}, 3277, v{vT}')
        p(f'v_lshrrev_b32 v{vT+1}, 16, v{vT+1}')
        p(f'v_mul_u32_u24 v{vT+2}, 20, v{vT+1}')
        p(f'v_sub_u32 v{vT+2}, v{vT}, v{vT+2}')
        p(f'v_bfe_u32 v{vT+3}, v{vT+1}, 2, 1')
        p(f'v_lshlrev_b32 v{vT+3}, 1, v{vT+3}')
        p(f'v_xor_b32 v{vT+2}, v{vT+2}, v{vT+3}')
        p(f'v_mul_u32_u24 v{vT+1}, 1280, v{vT+1}')
        p(f'v_lshl_add_u32 v{vOffW+i}, v{vT+2}, 4, v{vT+1}')
        if 0 < i < 4: p(f'v_subrev_u32 v{vOffW+i}, {1024*i}, v{vOffW+i}')
    p('s_waitcnt lgkmcnt(0)')
    srd(p, S_WO, 4, 4096*640*2)
    srd(p, S_CTX, 12, SZ_CTX, WS_CTX)
    def dma_ctx(ch):
        base = (ch % NSL)*SLOT
        tagC = ('W', base + 20480, base + SLOT, True)
        L = [('s', f's_add_u32 s{sT1}, s{sCoff}, {ch*2048}'), ('s', f's_add_u32 m0, s{sLWc}, {base}'), ('s', 's_nop 0')]
        for i in range(2): L.append(('m', f'buffer_load_dwordx4 v{vLane16}, s[{S_CTX}:{S_CTX+3}], s{sT1} offen offset:{1024*i} lds', f'C{ch}', tagC))
        L.append(('s', f's_add_u32 s{sT1}, s{sCoff}, {ch*2048 + 4*32768}'))
        L.append(('s', f's_add_u32 m0, s{sLWc}, {base + 2048}'))
        L.append(('s', 's_nop 0'))
        for i in range(2): L.append(('m', f'buffer_load_dwordx4 v{vLane16}, s[{S_CTX}:{S_CTX+3}], s{sT1} offen offset:{1024*i} lds', f'C{ch}', tagC))
        return L
    def dma_wo(ch):
        base = (ch % NSL)*SLOT
        L = [('s', f's_add_u32 m0, s{sLWw}, {base}'), ('s', f's_add_u32 s{sT0}, s{sWoff}, {ch*64*1280}')]
        tagW = ('W', base, base + 20480, True)
        for i in range(4):
            L.append(('m', f'buffer_load_dwordx4 v{vOffW+i}, s[{S_WO}:{S_WO+3}], s{sT0} offen offset:{1024*i} lds', f'C{ch}', tagW))
        L.append(('s', f's_add_u32 m0, s{sLWw}, {base + 4096}'))
        L.append(('s', 's_nop 0'))
        L.append(('m', f'buffer_load_dwordx4 v{vOffW+4}, s[{S_WO}:{S_WO+3}], s{sT0} offen lds', f'C{ch}', tagW))
        return L
    def dma_chunk(ch): return dma_ctx(ch) + dma_wo(ch)
    def emit(L):
        for it in L: put(it)
    p(f'v_bfe_u32 v{vT}, v0, 2, 2')
    p(f'v_lshrrev_b32 v{vT+1}, 4, v0')
    p(f'v_lshl_add_u32 v{vT+2}, v{vT+1}, 2, v{vT}')
    p(f'v_mul_u32_u24 v{vT+2}, 320, v{vT+2}')
    p(f'v_and_b32 v{vT+3}, 3, v0')
    p(f'v_lshl_add_u32 v{vT+2}, v{vT+3}, 3, v{vT+2}')
    p(f'v_and_b32 v{vT+1}, 1, v{vT+1}')
    p(f'v_lshlrev_b32 v{vT+1}, 5, v{vT+1}')
    p(f'v_add_u32 v{vLPe}, v{vT+2}, v{vT+1}')
    p(f'v_sub_u32 v{vLPo}, v{vT+2}, v{vT+1}')
    p(f's_lshr_b32 s{sT0}, s{sW}, 1')
    p(f's_and_b32 s{sT1}, s{sW}, 1')
    p(f's_cmp_eq_u32 s{sT0}, 1')
    p(f's_cselect_b64 s[14:15], -1, 0')
    p(f'v_cndmask_b32 v{vT}, v{vLPe}, v{vLPo}, s[14:15]')
    p(f'v_cndmask_b32 v{vT+1}, v{vLPo}, v{vLPe}, s[14:15]')
    p(f's_mul_i32 s{sT2}, s{sT0}, 160')
    p(f'v_add_u32 v{vLPe}, s{sT2}, v{vT}')
    p(f'v_add_u32 v{vLPo}, s{sT2}, v{vT+1}')
    p(f's_lshl_b32 s{sT2}, s{sT1}, 13')
    p(f's_add_u32 s{sT2}, s{sT2}, 20480')
    p(f'v_add_u32 v{vLPc}, s{sT2}, v{vLane16}')
    p(f's_lshl_b32 s{sP0}, s{sS}, 7')
    p(f's_lshl_b32 s{sT2}, s{sMT}, 3')
    p(f's_add_u32 s{sP0}, s{sP0}, s{sT2}')
    p(f's_lshl_b32 s{sT1}, s{sT1}, 2')
    p(f's_add_u32 s{sP0}, s{sP0}, s{sT1}')
    p(f's_lshl_b32 s{sP0}, s{sP0}, 3')
    p(f's_lshl_b32 s{sT2}, s{sNT}, 1')
    p(f's_add_u32 s{sP0}, s{sP0}, s{sT2}')
    p(f's_add_u32 s{sP0}, s{sP0}, s{sT0}')
    p(f's_lshl_b32 s{sPS}, s{sS}, 6')
    p(f's_lshl_b32 s14, s{sMT}, 2')
    p(f's_add_u32 s{sPS}, s{sPS}, s14')
    p(f's_lshr_b32 s14, s{sT1}, 1')
    p(f's_add_u32 s{sPS}, s{sPS}, s14')
    p(f's_lshl_b32 s{sPS}, s{sPS}, 3')
    p(f's_add_u32 s{sPS}, s{sPS}, s{sT2}')
    p(f's_add_u32 s{sPS}, s{sPS}, s{sT0}')
    p(f's_lshl_b32 s{sPS}, s{sPS}, 10')
    p(f's_add_u32 s{sPS}, s{sPS}, {{PS_OFF}}'.replace('{PS_OFF}', str(PS_OFF)))
    p(f's_mul_i32 s{sP0}, s{sP0}, 2560')
    srd(p, S_PB, 12, SZ_PB, WS_PB)
    srd(p, S_X, 6, 2048*640*2)
    srd(p, S_OUT, 8, 2048*640*2)
    srd(p, S_H, 12, SZ_H, WS_H)
    srd(p, S_ST, 12, 3 << 20, WS_STAT)
    p.stamp('tail setup')
    ctx_publish()
    p(f's_cmp_eq_u32 s{sW}, 0')
    p(f's_cbranch_scc1 {name}_w0first')
    emit(dma_wo(0) + dma_wo(1) + dma_wo(2))
    p(f's_branch {name}_cw')
    p.label(f'{name}_w0first')
    p(f's_sub_u32 s14, 15, s{sMT}')
    p(f's_min_u32 s14, s14, s{sMT}')
    p(f's_lshl_b32 s14, s14, 3')
    p(f's_lshl_b32 s15, s{sS}, 1')
    p(f's_add_u32 s14, s14, s15')
    p(f'v_and_b32 v{vT}, 3, v0')
    p(f'v_lshlrev_b32 v{vT}, 6, v{vT}')
    p(f'v_bfe_u32 v{vT+1}, v0, 2, 1')
    p(f'v_add3_u32 v{vT}, v{vT}, v{vT+1}, s14')
    p(f'v_lshlrev_b32 v{vT}, 2, v{vT}')
    p(f's_mov_b32 s14, {O_CTXF}')
    p('s_mov_b32 s15, 0')
    Lc = p.nl(name + '_pollC')
    p.label(Lc)
    p(f'buffer_load_dword v{vT+1}, v{vT}, s[{S_ST}:{S_ST+3}], s14 offen sc1')
    p('s_waitcnt vmcnt(0)')
    p(f'v_cmp_ne_u32 vcc, s{sTag}, v{vT+1}')
    p('s_add_u32 s15, s15, 1')
    p(f's_cbranch_vccz {Lc}_ok')
    p(f's_cmp_ge_u32 s15, {SPIN}')
    p(f's_cbranch_scc1 {Lc}_ok')
    p('s_sleep 2')
    p(f's_branch {Lc}')
    p.label(Lc + '_ok')
    emit(dma_wo(0) + dma_wo(1) + dma_wo(2))
    p.label(f'{name}_cw')
    p('s_barrier')
    (p.stamp('ctx ready') if 'ln' not in opt else None)
    emit(dma_ctx(0)); emit(dma_ctx(1)); emit(dma_ctx(2))
    def upd(ch):
        base = (ch % NSL)*SLOT
        return [('v', f'v_add_u32 v{vCe}, {base}, v{vLPe}'), ('v', f'v_add_u32 v{vCo}, {base}, v{vLPo}'), ('v', f'v_add_u32 v{vCc}, {base}, v{vLPc}')]
    def rd_w(mb, ks):
        ch, kin = divmod(ks, 2); base = (ch % NSL)*SLOT
        r = vWF + 4*mb; a = vCe if mb % 2 == 0 else vCo
        return [('r', f'ds_read_b64_tr_b16 v[{r+2*h}:{r+2*h+1}], v{a} offset:{kin*10240 + h*5120 + mb*32}', f'w{ks}_{mb}', ('R', base, base + 20480)) for h in range(2)]
    def rd_c(cb, ks):
        ch, kin = divmod(ks, 2); base = (ch % NSL)*SLOT
        r = vCF + 16*(ks % 2) + 4*cb
        return ('r', f'ds_read_b128 v[{r}:{r+3}], v{vCc} offset:{cb*2048 + kin*1024}', f'c{ks}', ('R', base + 20480, base + SLOT))
    emit(upd(0))
    p.wait_vm('C0')
    p('s_barrier')
    (p.stamp('chunk0') if 'ln' not in opt else None)
    for cb in range(4): put(rd_c(cb, 0))
    for mb in range(5): emit(rd_w(mb, 0))
    NKS = 32
    A = lambda cb, mb: acc + (cb*5 + mb)*4
    mf = []
    for ks in range(NKS):
        for mb in range(5):
            for cb in range(4):
                c = '0' if ks == 0 else f'v[{A(cb, mb)}:{A(cb, mb)+3}]'
                cf = vCF + 16*(ks % 2) + 4*cb
                mf.append(f'{MF} v[{A(cb, mb)}:{A(cb, mb)+3}], v[{vWF+4*mb}:{vWF+4*mb+3}], v[{cf}:{cf+3}], {c}')
    R = Region(mf)
    G = lambda ks, mb, cb: ks*20 + mb*4 + cb
    put(('wlg', ['w0_0', 'c0']))
    BARG = lambda ch: G(2*ch + 1, 0, 3)
    NCH = 16
    for ch in range(NCH - 1):
        R.place(('bar', [f'C{ch+1}']), BARG(ch), force=True)
        R.stream(upd(ch + 1), G(2*ch + 1, 0, 1), G(2*ch + 1, 1, 0))
    for ks in range(NKS):
        for mb in range(5):
            if ks == 0 and mb == 0: continue
            labs = [f'w{ks}_{mb}'] + ([f'c{ks}'] if mb == 0 else [])
            R.place(('wlg', labs), G(ks, mb, 0) - 1, force=True)
    for ks in range(NKS - 1):
        ch, t = divmod(ks, 2); nxt = ks + 1
        for mb in range(5):
            e = G(ks, mb, 3)
            if t == 1: e = max(e, G(ks, 1, 1))
            rr = rd_w(mb, nxt)
            lat = G(ks + 1, 0, 0) if t == 0 else G(ks + 1, mb, 0) - 3
            g = R.place(rr[0], e, lat); R.place(rr[1], min(g + 1, lat), lat)
        e = G(ks, 0, 0) if t == 0 else G(ks, 1, 1)
        for cb in range(4): R.place(rd_c(cb, nxt), e + 3*cb, G(ks + 1, 0, 0) - 4)
    def spread_dma(R, L, g0, g1):
        nm = sum(1 for x in L if x[0] in 'ml')
        step = max(1, (g1 - g0) // max(nm, 1))
        g = g0; cnt = 0
        for it in L:
            e = max(g, g0 + cnt*step - (2 if it[0] == 's' else 0))
            g = R.place(it, e, g1)
            if it[0] in 'ml': cnt += 1; g += 1
    for ch in range(NCH - 1):
        if ch + 3 < NCH: spread_dma(R, dma_chunk(ch + 3), BARG(ch) + 1, BARG(ch + 1) - 1)
    R.emit(p, put)
    print('kt gemm overflow', R.over, 'est', R.total())
    (p.stamp('gemm end') if 'ln' not in opt else None)
    p('s_nop 7')
    for cb in range(4):
        a0 = A(cb, 0)
        for k in range(10): p(f'v_cvt_pk_bf16_f32 v{a0+k}, v{a0+2*k}, v{a0+2*k+1}')
        p(f's_add_u32 s{sT0}, s{sP0}, {cb*8*2560}')
        p.vm(f'buffer_store_dwordx4 v[{a0}:{a0+3}], v{vLane16}, s[{S_PB}:{S_PB+3}], s{sT0} offen sc1', 'st')
        p.vm(f'buffer_store_dwordx4 v[{a0+4}:{a0+7}], v{vLane16}, s[{S_PB}:{S_PB+3}], s{sT0} offen offset:1024 sc1', 'st')
        if cb % 2 == 1:
            ae = A(cb - 1, 0)
            p(f'v_mov_b32 v{ae+10}, v{a0+8}')
            p(f'v_mov_b32 v{ae+11}, v{a0+9}')
            p(f's_add_u32 s{sT0}, s{sPS}, {(cb // 2)*8*1024}')
            p.vm(f'buffer_store_dwordx4 v[{ae+8}:{ae+11}], v{vLane16}, s[{S_PB}:{S_PB+3}], s{sT0} offen sc1', 'st')
    p('s_waitcnt vmcnt(0)')
    p('s_barrier')
    p(f's_cmp_lg_u32 s{sW}, 0')
    p(f's_cbranch_scc1 {name}_nosig')
    p(f's_lshl_b32 s{sT0}, s{sMT}, 7')
    p(f's_lshl_b32 s{sT1}, s{sS}, 4')
    p(f's_add_u32 s{sT0}, s{sT0}, s{sT1}')
    p(f's_lshl_b32 s{sT1}, s{sNT}, 2')
    p(f's_add_u32 s{sT0}, s{sT0}, s{sT1}')
    p(f's_add_u32 s{sT0}, s{sT0}, {O_FM}')
    p(f'v_mov_b32 v{vT}, 0')
    p(f'v_mov_b32 v{vT+1}, s{sTag}')
    p('v_cmp_eq_u32 vcc, 0, v0')
    p('s_nop 1')
    p('s_and_saveexec_b64 s[14:15], vcc')
    p(f'buffer_store_dword v{vT+1}, v{vT}, s[{S_ST}:{S_ST+3}], s{sT0} offen sc1')
    p('s_mov_b64 exec, s[14:15]')
    p.label(f'{name}_nosig')
    (p.stamp('signalled') if 'ln' not in opt else None)
    vTok, vOffP, vOffP8, vOffX, vLds, vLdsW, vTokG = 2, 3, 4, 5, 6, 7, 8
    PA = 20
    XR = 60
    WR = 70
    H = 80
    HN = 100
    sm, mean, mb_, var, sd, rc, t0, t1 = range(120, 128)
    sJ = sP0
    p(f's_lshl_b32 s{sJ}, s{sS}, 2')
    p(f's_add_u32 s{sJ}, s{sJ}, s{sNT}')
    p(f'v_and_b32 v{vTok}, 7, v0')
    p(f'v_bfe_u32 v{vT}, v0, 3, 2')
    p(f'v_lshrrev_b32 v{vT+1}, 5, v0')
    p(f's_lshr_b32 s{sT0}, s{sJ}, 1')
    p(f's_lshl_b32 s{sT1}, s{sMT}, 3')
    p(f's_add_u32 s{sT0}, s{sT0}, s{sT1}')
    sQB = 70
    p(f's_mov_b32 s{sQB}, s{sT0}')
    p(f's_lshl_b32 s{sT1}, s{sT0}, 4')
    p(f's_and_b32 s{sT2}, s{sJ}, 1')
    p(f's_lshl_b32 s{sT2}, s{sT2}, 3')
    p(f's_add_u32 s{sT1}, s{sT1}, s{sT2}')
    p(f'v_add_u32 v{vTokG}, s{sT1}, v{vTok}')
    p(f'v_lshl_add_u32 v{vT+2}, v{vT}, 4, v{vTok}')
    p(f'v_add_u32 v{vT+2}, s{sT2}, v{vT+2}')
    p(f's_lshl_b32 s{sT0}, s{sT0}, 3')
    p(f's_lshl_b32 s{sT2}, s{sW}, 1')
    p(f's_add_u32 s{sT0}, s{sT0}, s{sT2}')
    p(f'v_add_u32 v{vT+3}, s{sT0}, v{vT+1}')
    p(f'v_mul_u32_u24 v{vT+3}, 2560, v{vT+3}')
    p(f'v_lshl_add_u32 v{vOffP}, v{vT+2}, 4, v{vT+3}')
    p(f's_lshr_b32 s14, s{sQB}, 1')
    p(f's_lshl_b32 s14, s14, 3')
    p(f's_add_u32 s14, s14, s{sT2}')
    p(f'v_add_u32 v{vOffP8}, s14, v{vT+1}')
    p(f'v_lshlrev_b32 v{vOffP8}, 10, v{vOffP8}')
    p(f'v_lshl_add_u32 v{vOffP8}, v{vT+2}, 4, v{vOffP8}')
    p(f's_and_b32 s14, s{sQB}, 1')
    p(f's_lshl_b32 s14, s14, 3')
    p(f's_add_u32 s14, s14, {PS_OFF}')
    p(f'v_add_u32 v{vOffP8}, s14, v{vOffP8}')
    p(f's_mul_i32 s{sT2}, s{sW}, 320')
    p(f'v_mul_u32_u24 v{vT+4}, 160, v{vT+1}')
    p(f'v_lshl_add_u32 v{vT+4}, v{vT}, 3, v{vT+4}')
    p(f'v_add_u32 v{vT+4}, s{sT2}, v{vT+4}')
    p(f'v_mul_u32_u24 v{vOffX}, 1280, v{vTokG}')
    p(f'v_add_u32 v{vOffX}, v{vOffX}, v{vT+4}')
    p(f's_load_dwordx2 s[14:15], s[0:1], {ARG["wr"]}')
    for i in range(5):
        p(f'buffer_load_dwordx2 v[{XR+2*i}:{XR+2*i+1}], v{vOffX}, s[{S_X}:{S_X+3}], 0 offen offset:{32*i}')
    p('s_waitcnt lgkmcnt(0)')
    srd(p, 8, 14, 640*2)
    for i in range(5):
        p(f'buffer_load_dwordx2 v[{WR+2*i}:{WR+2*i+1}], v{vT+4}, s[8:11], 0 offen offset:{32*i}')
    RB = 143360
    STH = 122880; STO = 133120
    p(f's_lshl_b32 s{sT1}, s{sW}, 5')
    p(f'v_lshlrev_b32 v{vLds}, 2, v{vTok}')
    p(f'v_add_u32 v{vLds}, {RB}, v{vLds}')
    p(f'v_add_u32 v{vLdsW}, s{sT1}, v{vLds}')
    p(f's_cmp_ge_u32 s{sFj}, {NFFN}')
    p(f's_cbranch_scc1 {name}_nowl')
    p(f's_mul_i32 s{sT2}, s{sW}, 10240')
    p(f'v_add_u32 v{t0}, s{sT2}, v{vLane16}')
    p(f'v_add_u32 v{t1}, 65536, v{t0}')
    for mat, lbase in enumerate((0, 40960, 81920)):
        for i in range(10):
            r = 132 + (mat*10 + i)*4
            if lbase + i*1024 < 65536: p(f'ds_write_b128 v{t0}, a[{r}:{r+3}] offset:{lbase + i*1024}')
            else: p(f'ds_write_b128 v{t1}, a[{r}:{r+3}] offset:{lbase + i*1024 - 65536}')
    p.label(f'{name}_nowl')
    p(f's_cmp_lg_u32 s{sW}, 0')
    p(f's_cbranch_scc1 {name}_w1')
    p(f's_lshl_b32 s{sT0}, s{sMT}, 7')
    p(f's_add_u32 s{sT0}, s{sT0}, {O_FM}')
    Lp = p.nl(name + '_pollM')
    p(f'v_and_b32 v{t0}, 15, v0')
    p(f'v_lshlrev_b32 v{t0}, 2, v{t0}')
    p(f's_mov_b32 s{sT1}, 0')
    p.label(Lp)
    p(f'buffer_load_dword v{t1}, v{t0}, s[{S_ST}:{S_ST+3}], s{sT0} offen sc1')
    p('s_waitcnt vmcnt(0)')
    p(f'v_cmp_ne_u32 vcc, s{sTag}, v{t1}')
    p(f's_add_u32 s{sT1}, s{sT1}, 1')
    p(f's_cbranch_vccz {Lp}_ok')
    p(f's_cmp_ge_u32 s{sT1}, {SPIN}')
    p(f's_cbranch_scc1 {Lp}_ok')
    p('s_sleep 2')
    p(f's_branch {Lp}')
    p.label(Lp + '_ok')
    p.label(f'{name}_w1')
    p('s_barrier')
    (p.stamp('partials ready') if 'ln' not in opt else None)
    for s_ in range(4):
        p(f's_mov_b32 s{sT0}, {s_*128*8*2560}')
        b = PA + 10*s_
        p(f'buffer_load_dwordx4 v[{b}:{b+3}], v{vOffP}, s[{S_PB}:{S_PB+3}], s{sT0} offen sc1')
        p(f'buffer_load_dwordx4 v[{b+4}:{b+7}], v{vOffP}, s[{S_PB}:{S_PB+3}], s{sT0} offen offset:1024 sc1')
        p(f's_mov_b32 s{sT1}, {s_*64*8*1024}')
        p(f'buffer_load_dwordx2 v[{b+8}:{b+9}], v{vOffP8}, s[{S_PB}:{S_PB+3}], s{sT1} offen sc1')
    p('s_waitcnt vmcnt(0)')
    p.stamp('partials loaded')
    p(f'v_mov_b32 v{t0}, {RB}')
    p(f'v_mov_b32 v{t1}, 0')
    p(f'ds_write_b32 v{t0}, v{t1} offset:516')
    U0, U1 = 160, 180
    p(f's_mov_b32 s{sMaskC}, 0xffff0000')
    def ext(dst, src, half): return f'v_lshlrev_b32 v{dst}, 16, v{src}' if half == 0 else f'v_and_b32 v{dst}, s{sMaskC}, v{src}'
    for k in range(20): p(ext(H + k, PA + k//2, k % 2))
    for k in range(20): p(ext(U0 + k, PA + 10 + k//2, k % 2))
    for k in range(20): p(ext(U1 + k, PA + 20 + k//2, k % 2))
    for k in range(20): p(f'v_add_f32 v{H+k}, v{H+k}, v{U0+k}')
    for k in range(20): p(ext(U0 + k, PA + 30 + k//2, k % 2))
    for k in range(20): p(f'v_add_f32 v{U1+k}, v{U1+k}, v{U0+k}')
    for k in range(20): p(f'v_add_f32 v{H+k}, v{H+k}, v{U1+k}')
    for k2 in range(10): p(f'v_cvt_pk_bf16_f32 v{U0+k2}, v{H+2*k2}, v{H+2*k2+1}')
    for k in range(20): p(ext(H + k, U0 + k//2, k % 2))
    for k in range(20): p(ext(U1 + k, XR + k//2, k % 2))
    for k in range(20): p(f'v_add_f32 v{H+k}, v{H+k}, v{U1+k}')
    for k2 in range(10): p(f'v_cvt_pk_bf16_f32 v{XR+k2}, v{H+2*k2}, v{H+2*k2+1}')
    for k in range(20): p(ext(H + k, XR + k//2, k % 2))
    vSt = 9
    p(f'v_mul_u32_u24 v{vSt}, 1280, v{vTok}')
    p(f'v_add_u32 v{vSt}, v{vSt}, v{vT+4}')
    p(f'v_add_u32 v{vSt}, {STH}, v{vSt}')
    for i in range(5): p(f'ds_write_b64 v{vSt}, v[{XR+2*i}:{XR+2*i+1}] offset:{32*i}')
    TT = 128
    def allreduce_n(regs, slot):
        n = len(regs)
        p('s_nop 1')
        for r in regs: p(f'v_add_f32_dpp v{r}, v{r}, v{r} row_ror:8 row_mask:0xf bank_mask:0xf')
        for sw in ('v_permlane16_swap_b32', 'v_permlane32_swap_b32'):
            for i, r in enumerate(regs): p(f'v_mov_b32 v{TT+i}, v{r}')
            p('s_nop 1')
            for i, r in enumerate(regs): p(f'{sw} v{r}, v{TT+i}')
            p('s_nop 1')
            for i, r in enumerate(regs): p(f'v_add_f32 v{r}, v{r}, v{TT+i}')
        for i, r in enumerate(regs): p(f'ds_write_b32 v{vLdsW}, v{r} offset:{(slot + i)*128}')
        p('s_waitcnt lgkmcnt(0)')
        p('s_barrier')
        for i, r in enumerate(regs):
            for w in range(4): p(f'ds_read_b32 v{TT+4*i+w}, v{vLds} offset:{(slot + i)*128 + 32*w}')
        p('s_waitcnt lgkmcnt(0)')
        for i, r in enumerate(regs):
            p(f'v_add_f32 v{TT+4*i}, v{TT+4*i}, v{TT+4*i+1}')
            p(f'v_add_f32 v{TT+4*i+2}, v{TT+4*i+2}, v{TT+4*i+3}')
            p(f'v_add_f32 v{r}, v{TT+4*i}, v{TT+4*i+2}')
    def allreduce(reg, slot): allreduce_n([reg], slot)
    if 'ln' in opt: p.stamp('sums done')
    for k in range(10): p(f'v_add_f32 v{U0+k}, v{H+k}, v{H+10+k}')
    for k in range(5): p(f'v_add_f32 v{U0+k}, v{U0+k}, v{U0+5+k}')
    p(f'v_add_f32 v{U0}, v{U0}, v{U0+1}'); p(f'v_add_f32 v{U0+2}, v{U0+2}, v{U0+3}'); p('s_nop 0')
    p(f'v_add_f32 v{U0}, v{U0}, v{U0+4}'); p('s_nop 0'); p(f'v_add_f32 v{sm}, v{U0}, v{U0+2}'); p('s_nop 0')
    p(f'v_mul_f32 v{mean}, 0x3d4ccccd, v{sm}')
    p('s_nop 0')
    p(f'v_mul_f32 v{sd}, v{sm}, v{mean}')
    for k in range(20): p(f'v_sub_f32 v{U0+k}, v{H+k}, v{mean}')
    for k in range(10): p(f'v_mul_f32 v{U1+k}, v{U0+k}, v{U0+k}')
    for k in range(10): p(f'v_fmac_f32 v{U1+k}, v{U0+10+k}, v{U0+10+k}')
    for k in range(5): p(f'v_add_f32 v{U1+k}, v{U1+k}, v{U1+5+k}')
    p(f'v_add_f32 v{U1}, v{U1}, v{U1+1}'); p(f'v_add_f32 v{U1+2}, v{U1+2}, v{U1+3}'); p('s_nop 0')
    p(f'v_add_f32 v{U1}, v{U1}, v{U1+4}'); p('s_nop 0'); p(f'v_add_f32 v{var}, v{U1}, v{U1+2}')
    if 'ln' in opt: p.stamp('pre ar1')
    allreduce_n([sm, var, sd], 0)
    if 'ln' in opt: p.stamp('ar1')
    p(f'v_mul_f32 v{mean}, 0x3acccccd, v{sm}')
    for x in rne_keep(mb_, mean): p(x)
    p(f'v_fma_f32 v{sd}, -v{sm}, v{mean}, v{sd}')
    p(f'v_max_f32 v{sd}, 0, v{sd}')
    p(f'v_add_f32 v{var}, v{var}, v{sd}')
    p(f'v_mul_f32 v{var}, 0x3acccccd, v{var}')
    for x in rne_keep(var, var): p(x)
    p(f'v_add_f32 v{var}, 0x3727c5ac, v{var}')
    for x in rne_keep(var, var): p(x)
    p(f'v_sqrt_f32 v{sd}, v{var}')
    p('s_nop 0')
    for x in rne_keep(sd, sd): p(x)
    p(f'v_rcp_f32 v{rc}, v{sd}')
    p('s_nop 0')
    p(f'v_mov_b32 v{sm}, v{rc}')
    for k in range(20): p(f'v_sub_f32 v{U0+k}, v{H+k}, v{mb_}')
    for k2 in range(10): p(f'v_cvt_pk_bf16_f32 v{U1+k2}, v{U0+2*k2}, v{U0+2*k2+1}')
    for k in range(20): p(ext(U0 + k, U1 + k//2, k % 2))
    for k in range(20): p(f'v_mul_f32 v{U0+k}, v{U0+k}, v{sm}')
    for k2 in range(10): p(f'v_cvt_pk_bf16_f32 v{U1+k2}, v{U0+2*k2}, v{U0+2*k2+1}')
    for k in range(20): p(ext(HN + k, U1 + k//2, k % 2))
    for k in range(20): p(ext(U0 + k, WR + k//2, k % 2))
    for k in range(10): p(f'v_mul_f32 v{U1+k}, v{HN+k}, v{U0+k}')
    for k in range(10): p(f'v_fmac_f32 v{U1+k}, v{HN+10+k}, v{U0+10+k}')
    for k in range(20): p(f'v_add_f32 v{U0+k}, v{H+k}, v{HN+k}')
    for k in range(5): p(f'v_add_f32 v{U1+k}, v{U1+k}, v{U1+5+k}')
    for k2 in range(10): p(f'v_cvt_pk_bf16_f32 v{PA+k2}, v{U0+2*k2}, v{U0+2*k2+1}')
    p(f'v_add_f32 v{U1}, v{U1}, v{U1+1}'); p(f'v_add_f32 v{U1+2}, v{U1+2}, v{U1+3}'); p('s_nop 0')
    p(f'v_add_f32 v{U1}, v{U1}, v{U1+4}'); p('s_nop 0'); p(f'v_add_f32 v{var}, v{U1}, v{U1+2}')
    for i in range(5): p(f'ds_write_b64 v{vSt}, v[{PA+2*i}:{PA+2*i+1}] offset:{STO - STH + 32*i}')
    if 'ln' in opt: p.stamp('pre ar2')
    allreduce(var, 3)
    if 'ln' in opt: p.stamp('ar2')
    GB, WB = 128, 208
    def preload():
        p(f'v_lshrrev_b32 v5, 4, v0')
        p(f'v_bfe_u32 v7, v0, 2, 2')
        p(f'v_lshl_add_u32 v7, v5, 3, v7')
        p(f'v_and_b32 v8, 3, v0')
        p(f'v_lshlrev_b32 v8, 3, v8')
        p(f'v_lshl_add_u32 v6, v7, 6, v8')
        p(f's_mul_i32 s{sT0}, s{sW}, {5*32*64}')
        p(f'v_add_u32 v6, s{sT0}, v6')
        p(f'v_mul_u32_u24 v7, 1280, v7')
        p(f'v_add_u32 v7, v7, v8')
        p(f's_mul_i32 s{sT0}, s{sW}, 320')
        p(f's_add_u32 s{sT0}, s{sT0}, 81920')
        p(f'v_add_u32 v7, s{sT0}, v7')
        for k in range(5):
            for mat in range(2):
                for cb in range(2):
                    for h in range(2):
                        r = GB + 16*k + (mat*2 + cb)*4 + 2*h
                        p(f'ds_read_b64_tr_b16 v[{r}:{r+1}], v6 offset:{mat*40960 + k*2048 + h*256 + cb*32}')
        for mb in range(10):
            for h in range(2):
                r = WB + 4*mb + 2*h
                p(f'ds_read_b64_tr_b16 v[{r}:{r+1}], v7 offset:{h*5120 + mb*32}')
    p(f'v_cvt_pk_bf16_f32 v{var}, v{var}, v{var}')
    p(f's_cmp_lg_u32 s{sW}, 0')
    p(f's_cbranch_scc1 {name}_w123')
    p(f'v_and_b32 v{t0}, 0xffff, v{var}')
    p(f'v_or_b32 v{t1}, 0x8000, v{t0}')
    p(f'v_xor_b32 v{rc}, 0xffff, v{t0}')
    p(f'v_cmp_lt_u32 vcc, 0x7fff, v{t0}')
    p('s_nop 1')
    p(f'v_cndmask_b32 v{t1}, v{t1}, v{rc}, vcc')
    p(f'v_sub_u32 v{t0}, 0xffff, v{vTokG}')
    p(f'v_lshl_or_b32 v{t1}, v{t1}, 16, v{t0}')
    for sh in (4, 2, 1):
        p('s_nop 1')
        p(f'v_max_u32_dpp v{t1}, v{t1}, v{t1} row_ror:{sh} row_mask:0xf bank_mask:0xf')
    p(f's_lshl_b32 s{sT0}, s2, 3')
    p(f's_add_u32 s{sT0}, s{sT0}, {O_KEYS}')
    p(f'v_mov_b32 v{t0}, 0')
    p(f'v_mov_b32 v{TT}, v{t1}')
    p(f'v_mov_b32 v{TT+1}, s{sTag}')
    p(f'buffer_store_dwordx2 v[{TT}:{TT+1}], v{t0}, s[{S_ST}:{S_ST+3}], s{sT0} offen sc1')
    p.stamp('key out')
    p(f's_cmp_ge_u32 s{sFj}, {NFFN}')
    p(f's_cbranch_scc1 {name}_fin')
    preload()
    p(f's_branch {name}_w0poll')
    p.label(f'{name}_w123')
    p(f's_sub_u32 s{sT0}, s{sW}, 1')
    p(f's_lshl_b32 s{sT0}, s{sT0}, 10')
    p(f'v_add_u32 v{t0}, s{sT0}, v{vLane16}')
    p(f'v_add_u32 v{t1}, {STH}, v{t0}')
    for mat in range(2):
        for i in range(4): p(f'ds_read_b128 v[{PA+16*mat+4*i}:{PA+16*mat+4*i+3}], v{t1} offset:{mat*(STO - STH) + 3072*i}')
    p(f's_lshl_b32 s{sT1}, s{sQB}, 4')
    p(f's_and_b32 s{sT2}, s{sJ}, 1')
    p(f's_lshl_b32 s{sT2}, s{sT2}, 3')
    p(f's_add_u32 s{sT1}, s{sT1}, s{sT2}')
    p(f's_mul_i32 s{sT1}, s{sT1}, 1280')
    p('s_waitcnt lgkmcnt(0)')
    for mat, sr in enumerate((S_H, S_OUT)):
        for i in range(3):
            p(f's_add_u32 s{sT2}, s{sT1}, {3072*i}')
            p(f'buffer_store_dwordx4 v[{PA+16*mat+4*i}:{PA+16*mat+4*i+3}], v{t0}, s[{sr}:{sr+3}], s{sT2} offen sc1')
    p(f's_cmp_lg_u32 s{sW}, 1')
    p(f's_cbranch_scc1 {name}_ns3')
    p(f's_add_u32 s{sT2}, s{sT1}, 9216')
    for mat, sr in enumerate((S_H, S_OUT)):
        p(f'buffer_store_dwordx4 v[{PA+16*mat+12}:{PA+16*mat+15}], v{t0}, s[{sr}:{sr+3}], s{sT2} offen sc1')
    p('v_cmp_gt_u32 vcc, 8, v0')
    p('s_nop 1')
    p('s_and_saveexec_b64 s[14:15], vcc')
    p(f'v_lshlrev_b32 v{t1}, 2, v{vTokG}')
    p(f's_mov_b32 s{sT0}, 8192')
    p(f'buffer_store_dword v{mb_}, v{t1}, s[{S_ST}:{S_ST+3}], s{sT0} offen sc1')
    p(f's_mov_b32 s{sT0}, 16384')
    p(f'buffer_store_dword v{sd}, v{t1}, s[{S_ST}:{S_ST+3}], s{sT0} offen sc1')
    p('s_mov_b64 exec, s[14:15]')
    p.label(f'{name}_ns3')
    p('s_waitcnt vmcnt(0) lgkmcnt(0)')
    p(f'v_mov_b32 v{t0}, {RB}')
    p(f'v_mov_b32 v{t1}, 1')
    p('v_cmp_eq_u32 vcc, 0, v0')
    p('s_nop 1')
    p('s_and_saveexec_b64 s[14:15], vcc')
    p(f'ds_add_rtn_u32 v{t1}, v{t0}, v{t1} offset:516')
    p('s_waitcnt lgkmcnt(0)')
    p('s_mov_b64 exec, s[14:15]')
    p(f'v_readfirstlane_b32 s{sT0}, v{t1}')
    p('s_nop 3')
    p(f's_cmp_lg_u32 s{sT0}, 2')
    p(f's_cbranch_scc1 {name}_w3')
    p(f's_lshl_b32 s{sT0}, s2, 2')
    p(f's_add_u32 s{sT0}, s{sT0}, {O_RDY}')
    p(f'v_mov_b32 v{t0}, 0')
    p(f'v_mov_b32 v{t1}, s{sTag}')
    p(f'buffer_store_dword v{t1}, v{t0}, s[{S_ST}:{S_ST+3}], s{sT0} offen sc1')
    p.label(f'{name}_w3')
    p(f's_cmp_ge_u32 s{sFj}, {NFFN}')
    p(f's_cbranch_scc1 {name}_fin')
    preload()
    p(f's_branch {name}_w4')
    p.label(f'{name}_w0poll')
    Lk = p.nl(name + '_pollK')
    p(f's_mov_b32 s{sT1}, 0')
    p(f's_mov_b32 s{sT0}, {O_KEYS}')
    p(f'v_lshlrev_b32 v28, 5, v0')
    p.label(Lk)
    p(f'buffer_load_dwordx4 v[20:23], v28, s[{S_ST}:{S_ST+3}], s{sT0} offen sc1')
    p(f'buffer_load_dwordx4 v[24:27], v28, s[{S_ST}:{S_ST+3}], s{sT0} offen offset:16 sc1')
    p('s_waitcnt vmcnt(0)')
    p(f'v_xor_b32 v21, s{sTag}, v21')
    p(f'v_xor_b32 v23, s{sTag}, v23')
    p(f'v_xor_b32 v25, s{sTag}, v25')
    p(f'v_xor_b32 v27, s{sTag}, v27')
    p(f'v_or3_b32 v21, v21, v23, v25')
    p(f'v_or_b32 v21, v21, v27')
    p(f'v_cmp_ne_u32 vcc, 0, v21')
    p(f's_add_u32 s{sT1}, s{sT1}, 1')
    p(f's_cbranch_vccz {Lk}_ok')
    p(f's_cmp_ge_u32 s{sT1}, {SPIN}')
    p(f's_cbranch_scc1 {Lk}_ok')
    p('s_sleep 1')
    p(f's_branch {Lk}')
    p.label(Lk + '_ok')
    (p.stamp('argmax ready') if 'ln' not in opt else None)
    p(f'v_max_u32 v20, v20, v22')
    p(f'v_max_u32 v24, v24, v26')
    p('s_nop 0')
    p(f'v_max_u32 v20, v20, v24')
    for sh in (8, 4, 2, 1):
        p('s_nop 1')
        p(f'v_max_u32_dpp v20, v20, v20 row_ror:{sh} row_mask:0xf bank_mask:0xf')
    for sw in ('v_permlane16_swap_b32', 'v_permlane32_swap_b32'):
        p(f'v_mov_b32 v21, v20')
        p('s_nop 1')
        p(f'{sw} v20, v21')
        p('s_nop 1')
        p(f'v_max_u32 v20, v20, v21')
    p(f'v_mov_b32 v21, {RB}')
    p(f'ds_write_b32 v21, v20 offset:512')
    p('s_waitcnt lgkmcnt(0)')
    p.label(f'{name}_w4')
    p('s_barrier')
    p(f'v_mov_b32 v21, {RB}')
    p(f'ds_read_b32 v20, v21 offset:512')
    p('s_waitcnt lgkmcnt(0)')
    p(f'v_readfirstlane_b32 s{sR}, v20')
    p('s_nop 4')
    p(f's_and_b32 s{sIdx}, s{sR}, 0xffff')
    p(f's_sub_u32 s{sIdx}, 0xffff, s{sIdx}')
    p(f's_min_u32 s{sIdx}, s{sIdx}, 2047')
    p(f's_lshr_b32 s{sR}, s{sR}, 16')
    p(f's_xor_b32 s{sT0}, s{sR}, 0xffff')
    p(f's_and_b32 s{sT1}, s{sR}, 0x7fff')
    p(f's_bitcmp1_b32 s{sR}, 15')
    p(f's_cselect_b32 s{sR}, s{sT1}, s{sT0}')
    p(f's_lshl_b32 s{sR}, s{sR}, 16')
    p(f's_lshr_b32 s{sT0}, s{sIdx}, 7')
    p(f's_bfe_u32 s{sT1}, s{sIdx}, 0x40003')
    p(f's_lshr_b32 s{sT2}, s{sT1}, 2')
    p(f's_lshl_b32 s{sT2}, s{sT2}, 1')
    p(f's_lshr_b32 s14, s{sT0}, 3')
    p(f's_add_u32 s{sT2}, s{sT2}, s14')
    p(f's_and_b32 s{sT1}, s{sT1}, 3')
    p(f's_lshl_b32 s{sT1}, s{sT1}, 3')
    p(f's_and_b32 s{sT0}, s{sT0}, 7')
    p(f's_add_u32 s{sT1}, s{sT1}, s{sT0}')
    p(f's_lshl_b32 s{sT1}, s{sT1}, 3')
    p(f's_add_u32 s{sT1}, s{sT1}, s{sT2}')
    p(f's_lshl_b32 s{sT1}, s{sT1}, 2')
    p(f's_add_u32 s{sT0}, s{sT1}, {O_RDY}')
    Lr = p.nl(name + '_pollR')
    p(f's_mov_b32 s{sT1}, 0')
    p(f'v_mov_b32 v{t0}, 0')
    p.label(Lr)
    p(f'buffer_load_dword v{t1}, v{t0}, s[{S_ST}:{S_ST+3}], s{sT0} offen sc1')
    p('s_waitcnt vmcnt(0)')
    p(f'v_readfirstlane_b32 s{sT2}, v{t1}')
    p(f's_add_u32 s{sT1}, s{sT1}, 1')
    p(f's_cmp_eq_u32 s{sT2}, s{sTag}')
    p(f's_cbranch_scc1 {Lr}_ok')
    p(f's_cmp_ge_u32 s{sT1}, {SPIN}')
    p(f's_cbranch_scc1 {Lr}_ok')
    p(f's_branch {Lr}')
    p.label(Lr + '_ok')
    tid = 2
    p(f's_lshl_b32 s{sT0}, s{sW}, 6')
    p(f'v_add_u32 v{tid}, s{sT0}, v0')
    p(f'v_lshlrev_b32 v3, 4, v{tid}')
    p(f's_mul_i32 s{sT1}, s{sIdx}, 1280')
    p(f'buffer_load_dwordx4 v[20:23], v3, s[{S_H}:{S_H+3}], s{sT1} offen sc1')
    p(f's_lshl_b32 s{sT0}, s{sIdx}, 2')
    p(f'v_mov_b32 v4, s{sT0}')
    p(f's_mov_b32 s{sT0}, 8192')
    p(f'buffer_load_dword v{mb_}, v4, s[{S_ST}:{S_ST+3}], s{sT0} offen sc1')
    p(f's_mov_b32 s{sT0}, 16384')
    p(f'buffer_load_dword v{sd}, v4, s[{S_ST}:{S_ST+3}], s{sT0} offen sc1')
    p('s_waitcnt vmcnt(0)')
    p(f'v_rcp_f32 v{sm}, v{sd}')
    for k in range(4):
        p(f'v_lshlrev_b32 v{t0}, 16, v{20+k}')
        p(f'v_and_b32 v{t1}, 0xffff0000, v{20+k}')
        p(f'v_sub_f32 v{t0}, v{t0}, v{mb_}')
        p(f'v_sub_f32 v{t1}, v{t1}, v{mb_}')
        p(f'v_cvt_pk_bf16_f32 v{t0}, v{t0}, v{t1}')
        p(f'v_and_b32 v{t1}, 0xffff0000, v{t0}')
        p(f'v_lshlrev_b32 v{t0}, 16, v{t0}')
        p(f'v_mul_f32 v{t0}, v{t0}, v{sm}')
        p(f'v_mul_f32 v{t1}, v{t1}, v{sm}')
        p(f'v_cvt_pk_bf16_f32 v{24+k}, v{t0}, v{t1}')
    HNL = STH
    p(f'v_cmp_gt_u32 vcc, 80, v{tid}')
    p('s_nop 1')
    p('s_and_saveexec_b64 s[14:15], vcc')
    p(f's_cbranch_execz {name}_h1')
    p(f'v_add_u32 v4, {HNL}, v3')
    p(f'ds_write_b128 v4, v[24:27]')
    p(f'ds_write_b128 v4, v[20:23] offset:1280')
    p.label(f'{name}_h1')
    p('s_mov_b64 exec, s[14:15]')
    p('s_waitcnt lgkmcnt(0)')
    p('s_barrier')
    p(f's_mul_i32 s{sT0}, s{sW}, 320')
    p(f's_add_u32 s{sT0}, s{sT0}, {HNL}')
    p(f'v_lshlrev_b32 v6, 4, v5')
    p(f'v_add_u32 v6, s{sT0}, v6')
    AF = 28
    D = 48
    for k in range(5): p(f'ds_read_b128 v[{AF+4*k}:{AF+4*k+3}], v6 offset:{64*k}')
    p('s_waitcnt lgkmcnt(0)')
    for k in range(5):
        for t in range(4):
            c = '0' if k == 0 else f'v[{D+4*t}:{D+4*t+3}]'
            p(f'{MF} v[{D+4*t}:{D+4*t+3}], v[{AF+4*k}:{AF+4*k+3}], v[{GB+16*k+4*t}:{GB+16*k+4*t+3}], {c}')
    p('s_nop 7')
    XB = RB + 1024
    p(f'v_and_b32 v8, 15, v0')
    p(f'v_lshlrev_b32 v8, 2, v8')
    p(f's_lshl_b32 s{sT0}, s{sW}, 8')
    p(f's_add_u32 s{sT0}, s{sT0}, {XB}')
    p(f'v_add_u32 v9, s{sT0}, v8')
    for t in range(4): p(f'ds_write_b32 v9, v{D+4*t} offset:{64*t}')
    p('s_waitcnt lgkmcnt(0)')
    p('s_barrier')
    p(f'v_and_b32 v8, 31, v0')
    p(f'v_lshlrev_b32 v8, 2, v8')
    p(f'v_add_u32 v8, {XB}, v8')
    for w in range(4):
        p(f'ds_read_b32 v{20+w}, v8 offset:{256*w}')
        p(f'ds_read_b32 v{24+w}, v8 offset:{256*w+128}')
    p('s_waitcnt lgkmcnt(0)')
    for b in (20, 24):
        p(f'v_add_f32 v{b}, v{b}, v{b+1}')
        p(f'v_add_f32 v{b+2}, v{b+2}, v{b+3}')
        p(f'v_add_f32 v{b}, v{b}, v{b+2}')
    g_, u_ = 20, 24
    for x in rne_keep(g_, g_): p(x)
    for x in rne_keep(u_, u_): p(x)
    p(f'v_mul_f32 v{t1}, 0xbfb8aa3b, v{g_}')
    p(f'v_exp_f32 v{t1}, v{t1}')
    p('s_nop 0')
    p(f'v_add_f32 v{t1}, 1.0, v{t1}')
    p(f'v_rcp_f32 v{t1}, v{t1}')
    p('s_nop 0')
    p(f'v_mul_f32 v{g_}, v{g_}, v{t1}')
    for x in rne_keep(g_, g_): p(x)
    p(f'v_mul_f32 v{g_}, v{g_}, v{u_}')
    p(f'v_cvt_pk_bf16_f32 v{g_}, v{g_}, v{g_}')
    AB = RB + 2048
    p(f's_lshl_b32 s{sT0}, s{sW}, 6')
    p(f's_add_u32 s{sT0}, s{sT0}, {AB}')
    p(f'v_and_b32 v8, 31, v0')
    p(f'v_lshlrev_b32 v8, 1, v8')
    p(f'v_add_u32 v8, s{sT0}, v8')
    p(f'ds_write_b16 v8, v{g_}')
    p(f'v_lshlrev_b32 v9, 4, v5')
    p(f'v_add_u32 v9, s{sT0}, v9')
    p('s_waitcnt lgkmcnt(0)')
    p(f'ds_read_b128 v[{AF}:{AF+3}], v9')
    p('s_waitcnt lgkmcnt(0)')
    Y = 48
    for mb in range(10): p(f'{MF} v[{Y+4*mb}:{Y+4*mb+3}], v[{AF}:{AF+3}], v[{WB+4*mb}:{WB+4*mb+3}], 0')
    p('s_nop 7')
    for i in range(3):
        dst = 20 + i
        p(f'v_mov_b32 v{dst}, v{Y+4*min(4*i, 9)}')
        for g in range(1, 4):
            mb = 4*i + g
            if mb < 10:
                p(f'v_cmp_eq_u32 vcc, {g}, v5')
                p('s_nop 1')
                p(f'v_cndmask_b32 v{dst}, v{dst}, v{Y+4*mb}, vcc')
    p(f's_and_b32 s{sT0}, s{sFj}, 7')
    p(f's_mul_i32 s{sT0}, s{sT0}, 2560')
    p(f's_add_u32 s{sT0}, s{sT0}, {WS_YACC - WS_STAT}')
    p(f's_mul_i32 s{sT1}, s{sW}, 640')
    p(f's_add_u32 s{sT0}, s{sT0}, s{sT1}')
    p(f'v_lshlrev_b32 v8, 2, v0')
    p(f'buffer_atomic_add_f32 v20, v8, s[{S_ST}:{S_ST+3}], s{sT0} offen')
    p(f'buffer_atomic_add_f32 v21, v8, s[{S_ST}:{S_ST+3}], s{sT0} offen offset:256')
    p('v_cmp_gt_u32 vcc, 32, v0')
    p('s_nop 1')
    p('s_and_saveexec_b64 s[14:15], vcc')
    p(f'buffer_atomic_add_f32 v22, v8, s[{S_ST}:{S_ST+3}], s{sT0} offen offset:512')
    p('s_mov_b64 exec, s[14:15]')
    p('s_waitcnt vmcnt(0)')
    p('s_barrier')
    (p.stamp('ffn atomics done') if 'ln' not in opt else None)
    p(f's_cmp_lg_u32 s{sW}, 0')
    p(f's_cbranch_scc1 {name}_w5')
    p(f's_lshl_b32 s{sT0}, s{sFj}, 2')
    p(f's_add_u32 s{sT0}, s{sT0}, {O_FF}')
    p(f'v_mov_b32 v{t0}, 0')
    p(f'v_mov_b32 v{t1}, s{sTag}')
    p('v_cmp_eq_u32 vcc, 0, v0')
    p('s_nop 1')
    p('s_and_saveexec_b64 s[14:15], vcc')
    p(f'buffer_store_dword v{t1}, v{t0}, s[{S_ST}:{S_ST+3}], s{sT0} offen sc1')
    p('s_mov_b64 exec, s[14:15]')
    p.label(f'{name}_w5')
    p(f's_cmp_lg_u32 s{sFj}, 0')
    p(f's_cbranch_scc1 {name}_fin')
    Lf = p.nl(name + '_pollF')
    p(f's_mov_b32 s{sT1}, 0')
    p(f's_mov_b32 s{sT0}, {O_FF}')
    p(f'v_lshlrev_b32 v{t0}, 2, v0')
    p(f'v_cmp_gt_u32 s[14:15], {NFFN}, v0')
    p.label(Lf)
    p(f'buffer_load_dword v{t1}, v{t0}, s[{S_ST}:{S_ST+3}], s{sT0} offen sc1')
    p('s_waitcnt vmcnt(0)')
    p(f'v_cmp_ne_u32 vcc, s{sTag}, v{t1}')
    p(f's_add_u32 s{sT1}, s{sT1}, 1')
    p('s_nop 0')
    p('s_and_b64 vcc, vcc, s[14:15]')
    p(f's_cbranch_vccz {Lf}_ok')
    p(f's_cmp_ge_u32 s{sT1}, {SPIN}')
    p(f's_cbranch_scc1 {Lf}_ok')
    p('s_sleep 1')
    p(f's_branch {Lf}')
    p.label(Lf + '_ok')
    p(f'v_lshlrev_b32 v8, 2, v{tid}')
    GW = 20
    for i in range(3):
        for c in range(8):
            p(f's_mov_b32 s{sT0}, {WS_YACC - WS_STAT + c*2560 + i*1024}')
            p(f'buffer_load_dword v{GW+8*i+c}, v8, s[{S_ST}:{S_ST+3}], s{sT0} offen sc0 sc1')
    p(f'v_lshlrev_b32 v9, 1, v{tid}')
    p(f'v_add_u32 v10, {HNL}, v9')
    for i in range(3):
        p(f'ds_read_u16 v{50+i}, v10 offset:{512*i}')
        p(f'ds_read_u16 v{54+i}, v10 offset:{1280 + 512*i}')
    p(f'v_mov_b32 v{t1}, s{sR}')
    p(f'v_mul_f32 v{t1}, 0xbfb8aa3b, v{t1}')
    p(f'v_exp_f32 v{t1}, v{t1}')
    p('s_nop 0')
    p(f'v_add_f32 v{t1}, 1.0, v{t1}')
    p(f'v_rcp_f32 v{t1}, v{t1}')
    p('s_nop 0')
    for x in rne_keep(t1, t1): p(x)
    p('s_waitcnt vmcnt(0) lgkmcnt(0)')
    p(f's_mul_i32 s{sT1}, s{sIdx}, 1280')
    for i in range(3):
        b = GW + 8*i
        for c in range(1, 8): p(f'v_add_f32 v{b}, v{b}, v{b+c}')
        for x in rne_keep(b, b): p(x)
        p(f'v_mul_f32 v{b}, v{b}, v{t1}')
        for x in rne_keep(b, b): p(x)
        p(f'v_lshlrev_b32 v{50+i}, 16, v{50+i}')
        p(f'v_lshlrev_b32 v{54+i}, 16, v{54+i}')
        p(f'v_add_f32 v{b}, v{b}, v{50+i}')
        for x in rne_keep(b, b): p(x)
        p(f'v_add_f32 v{b}, v{b}, v{54+i}')
        p(f'v_cvt_pk_bf16_f32 v{b}, v{b}, v{b}')
    p(f'buffer_store_short v{GW}, v9, s[{S_OUT}:{S_OUT+3}], s{sT1} offen sc1')
    p(f'buffer_store_short v{GW+8}, v9, s[{S_OUT}:{S_OUT+3}], s{sT1} offen offset:512 sc1')
    p(f'v_cmp_gt_u32 vcc, 128, v{tid}')
    p('s_nop 1')
    p('s_and_saveexec_b64 s[14:15], vcc')
    p(f's_cbranch_execz {name}_x')
    p(f'buffer_store_short v{GW+16}, v9, s[{S_OUT}:{S_OUT+3}], s{sT1} offen offset:1024 sc1')
    p.label(f'{name}_x')
    p('s_mov_b64 exec, s[14:15]')
    p.label(f'{name}_fin')
    p.dump_stamps(12, 101*MiB, 13)
    p.label(f'{name}_tdone')
    nerr = 0
    return nerr
```

```python
from common import *
from gx2 import *
from sched import *
from k1b import w_tile_setup, MF
from lnops import *
WS_FLG = 82*MiB

CTX_FLAGS = 'sc1'
LIM = 0x5d800000
NEGBIG = 0xff800000
opt_idx = [0]
TW, TF, PE = False, True, True
FP = 'db'
TA = False
LATE1 = False
PREFETCH = True

def gen_kf(name='front_kernel', prof=False, opt=()):
    p = P2(); p.prof = prof
    p.lenient = 'nordsA' in opt
    p.dbgmode = 'dbg' in opt
    p.stampset = set(['start', 'phase A done', 'q end', 'attn prologue done', 'L done', 'ctx ready', 'gemm end', 'key out', 'argmax ready', 'ffn atomics done'])
    if 'tr' in opt: p.stampset = set(['start', 'q end', 'pre check', 'kv ok', 'qk0 done', 'attn prologue done', 'L done', 'tail setup', 'ctx pub', 'ctx ready'])
    if 'tl' in opt: p.stampset = set(['start', 'L done', 'ctx ready', 'gemm end', 'signalled', 'partials ready', 'partials loaded', 'key out', 'argmax ready', 'ffn atomics done'])
    put = make_put(p)
    S_WQ, S_XNF, S_KF, S_VF, S_CTX = 16, 20, 24, 28, 32
    sM = 36
    sW, sH, sI = 44, 45, 46
    sT0, sT1, sT2 = 47, 48, 49
    sLW = 50
    sWoff = 51
    sXL, sXS = 52, 53
    sKb, sVb = 54, 55
    sHbase = 56
    sSlotP, sSlotR = 57, 58
    sTL, sTS = 59, 60
    sCnt = 61
    sDd = 62
    sFlag = 63
    sCtx = 64
    sLim = 65
    sScale = 61
    sSel = 4
    vLane16 = 1; vRd = 2; vNinf = 3
    vOffW = 4
    vLPW = 8; vT = 9
    vNeg = 16; vCi = 32; vS = 48; vP = 80; vE = 112; vL = 116; vU = 120
    vCW = 120
    vWF = 48
    vO = 128
    aQ = 0; aK = 64; aV = 96; aX = 128
    O = lambda c, db: vO + 32*c + 4*db
    Sr = lambda sc, kb: vS + 8*sc + 4*kb
    Pr = lambda par, c: vP + 16*par + 4*c
    NSLOT = 5

    S_CKV, S_X, S_DBG = 4, 8, 88
    S_WUK, S_WUV = 36, 40
    S_FL = 68
    sTag = 3
    sXcc = 67; sSame = 66
    sASum = sFlag
    sAoff = sDd; sWr = sCtx; sAr = sLim; sWp = sKb; sAp = sVb; sKst = sSlotP
    vOffA = 16
    vLPA = 20; vCA = 21
    vWK = 32; vWV = 64; vAct = 128
    SPIN = 1 << 16
    p(f's_cmp_ge_u32 s2, 256')
    p(f's_cbranch_scc1 {name}_done')
    p.stamp('start')
    p(f's_load_dwordx2 s[84:85], s[0:1], {ARG["x"]}')
    p(f's_load_dwordx2 s[86:87], s[0:1], {ARG["ckv"]}')
    p(f's_load_dwordx4 s[88:91], s[0:1], {ARG["wuk"]}')
    p(f's_load_dwordx2 s[92:93], s[0:1], {ARG["wq"]}')
    p(f's_load_dwordx4 s[96:99], s[0:1], {ARG["dbg"]}')
    p('s_and_b32 s14, s2, 7')
    p('s_lshr_b32 s15, s2, 3')
    p(f's_lshr_b32 s{sH}, s15, 3')
    p(f's_lshl_b32 s14, s14, 2')
    p(f's_add_u32 s{sH}, s{sH}, s14')
    p(f's_and_b32 s{sI}, s15, 7')
    p('v_lshrrev_b32 v2, 6, v0')
    p('v_and_b32 v0, 63, v0')
    p(f'v_readfirstlane_b32 s{sW}, v2')
    p(f'v_lshlrev_b32 v{vLane16}, 4, v0')
    p(f's_getreg_b32 s{sXcc}, hwreg(HW_REG_XCC_ID, 0, 4)')
    w_tile_setup(p, vOffW, vLPW, vT)
    p(f'v_lshrrev_b32 v{vT}, 3, v0')
    p(f'v_lshlrev_b32 v{vT}, 10, v{vT}')
    p(f'v_lshrrev_b32 v{vT+1}, 4, v0')
    p(f'v_and_b32 v{vT+2}, 7, v0')
    p(f'v_xor_b32 v{vT+2}, v{vT+2}, v{vT+1}')
    p(f'v_lshl_add_u32 v{vOffA}, v{vT+2}, 4, v{vT}')
    p(f'v_xor_b32 v{vT+3}, 4, v{vT+2}')
    p(f'v_lshl_add_u32 v{vOffA+1}, v{vT+3}, 4, v{vT}')
    p(f'v_add_u32 v{vOffA+2}, {2*7168}, v{vOffA}')
    p(f'v_add_u32 v{vOffA+3}, {3*7168}, v{vOffA+1}')
    p(f'v_add_u32 v{vOffA+1}, {1*7168}, v{vOffA+1}')
    p(f'v_and_b32 v{vT}, 15, v0')
    p(f'v_bfe_u32 v{vT+1}, v0, 1, 3')
    p(f'v_lshrrev_b32 v{vT+2}, 4, v0')
    p(f'v_xor_b32 v{vT+1}, v{vT+1}, v{vT+2}')
    p(f'v_lshlrev_b32 v{vT}, 7, v{vT}')
    p(f'v_lshl_add_u32 v{vLPA}, v{vT+1}, 4, v{vT}')
    p(f's_lshl_b32 s{sLW}, s{sW}, 12')
    p(f's_lshl_b32 s{sWoff}, s{sW}, 17')
    p(f's_lshl_b32 s{sT1}, s{sH}, 8')
    p(f's_add_u32 s{sWoff}, s{sWoff}, s{sT1}')
    p(f's_lshl_b32 s{sT0}, s{sI}, 8')
    p(f's_lshl_b32 s{sT1}, s{sW}, 6')
    p(f's_add_u32 s{sT0}, s{sT0}, s{sT1}')
    p(f's_lshl_b32 s{sAoff}, s{sT0}, 10')
    sK0 = sXL; sLA = sXS
    p(f's_lshl_b32 s{sHbase}, s{sH}, 6')
    p(f's_lshr_b32 s{sT1}, s{sT0}, 5')
    p(f's_add_u32 s{sHbase}, s{sHbase}, s{sT1}')
    p(f's_lshl_b32 s{sHbase}, s{sHbase}, 13')
    p(f's_lshl_b32 s{sLA}, s{sW}, 13')
    p('s_waitcnt lgkmcnt(0)')
    srd(p, S_CKV, 86, 2048*512*2)
    srd(p, S_WUK, 88, 512*4096*2)
    srd(p, S_WUV, 90, 512*4096*2)
    SL = 16384
    ACT0 = 98304
    def emit(L):
        prev = None
        for it in L:
            if it[0] == 'm' and prev is not None and prev[0] == 's' and ' m0,' in prev[1]: put(('s', 's_nop 0'))
            put(it); prev = it
    def dmaW_static(st):
        base = (st % 3)*32768; L = []
        for mi, sr in enumerate((S_WUK, S_WUV)):
            L += [('s', f's_add_u32 s{sT0}, s{sWoff}, {st*64*8192}'), ('s', f's_add_u32 m0, s{sLW}, {base + mi*SL}')]
            for i in range(4): L.append(('m', f'buffer_load_dwordx4 v{vOffW+i}, s[{sr}:{sr+3}], s{sT0} offen offset:{1024*i} lds', f'W{st}', ('W', base + mi*SL, base + (mi+1)*SL, True)))
        return L
    def dmaA_static(st, adj=0):
        base = ACT0 + (st % 2)*32768; L = []
        for half in range(2):
            L += [('s', f's_add_u32 s{sT1}, s{sAoff}, {(st*128 + 32768*half + adj) & 0xffffffff}'), ('s', f's_add_u32 m0, s{sLA}, {base + 4096*half}')]
            for i in range(4): L.append(('m', f'buffer_load_dwordx4 v{vOffA+i}, s[{S_CKV}:{S_CKV+3}], s{sT1} offen offset:{1024*i} lds', f'A{st}', ('W', base, base + 32768, False)))
        return L
    if 'pp' in opt: p.stamp('setup')
    emit(dmaA_static(0)); emit(dmaW_static(0))
    if 'pp' in opt: p.stamp('A0W0 issued')
    srd(p, S_X, 84, 2048*640*2)
    srd(p, S_WQ, 92, 640*4096*2)
    srd(p, S_XNF, 98, SZ_XNF, WS_XNF)
    srd(p, S_KF, 98, SZ_KF, WS_KF)
    srd(p, S_VF, 98, SZ_KF, WS_VF)
    srd(p, S_CTX, 98, SZ_CTX, WS_CTX)
    srd(p, S_FL, 98, 8192, WS_FLG)
    X = 160; RAW = 200; vXo = 220; vXn = 221; LT = 224
    p(f's_lshl_b32 s{sT1}, s2, 3')
    p(f's_and_b32 s14, s{sW}, 1')
    p(f's_lshl_b32 s14, s14, 2')
    p(f's_add_u32 s{sT1}, s{sT1}, s14')
    p(f'v_and_b32 v{vT}, 3, v0')
    p(f'v_add_u32 v{vT}, s{sT1}, v{vT}')
    p(f'v_lshrrev_b32 v{vT+1}, 2, v0')
    p(f'v_mul_u32_u24 v{vXo}, 1280, v{vT}')
    p(f'v_lshl_add_u32 v{vXo}, v{vT+1}, 4, v{vXo}')
    p(f'v_lshrrev_b32 v{vXn}, 4, v{vT}')
    p(f'v_mul_u32_u24 v{vXn}, 20, v{vXn}')
    p(f'v_lshrrev_b32 v{vT+2}, 2, v{vT+1}')
    p(f'v_add_u32 v{vXn}, v{vXn}, v{vT+2}')
    p(f'v_lshlrev_b32 v{vXn}, 10, v{vXn}')
    p(f'v_and_b32 v{vT+2}, 3, v{vT+1}')
    p(f'v_lshlrev_b32 v{vT+2}, 4, v{vT+2}')
    p(f'v_and_b32 v{vT+3}, 15, v{vT}')
    p(f'v_add_u32 v{vT+2}, v{vT+2}, v{vT+3}')
    p(f'v_lshl_add_u32 v{vXn}, v{vT+2}, 4, v{vXn}')
    for i in range(5):
        p(f'buffer_load_dwordx4 v[{RAW+4*i}:{RAW+4*i+3}], v{vXo}, s[{S_X}:{S_X+3}], 0 offen offset:{256*i}')
    S_LNS = 96
    if 'nocode' not in opt:
        p(f's_lshr_b32 s14, s2, 3')
        p(f's_cmp_ge_u32 s14, 12')
        p(f's_cbranch_scc1 {name}_nocode')
        p(f's_cmp_lg_u32 s{sW}, 3')
        p(f's_cbranch_scc1 {name}_nocode')
        p('s_getpc_b64 s[76:77]')
        p.label(f'{name}_pc')
        p(f's_lshl_b32 s14, s14, 13')
        p(f'v_lshlrev_b32 v{vT}, 7, v0')
        p(f'v_add_u32 v{vT}, s14, v{vT}')
        p(f'v_min_u32 v{vT}, code_end_all-{name}_pc-4, v{vT}')
        p(f'v_and_b32 v{vT}, -4, v{vT}')
        p(f'global_load_dword v{vT+2}, v{vT}, s[76:77]')
        p.label(f'{name}_nocode')
    if 'notlb' not in opt:
        p('s_mov_b32 s76, s98'); p('s_mov_b32 s77, s99'); p(f's_mov_b32 s78, {96*MiB}'); p('s_mov_b32 s79, 0x00020000')
        p(f'v_mov_b32 v{vT}, {WS_FLG}')
        p(f's_add_u32 s14, s{sHbase}, {WS_KF}'); p(f'v_writelane_b32 v{vT}, s14, 1')
        p(f's_add_u32 s14, s{sHbase}, {WS_VF}'); p(f'v_writelane_b32 v{vT}, s14, 2')
        p(f's_lshl_b32 s15, s{sH}, 19')
        for k in range(2):
            p(f's_add_u32 s14, s15, {WS_KF + k*524160}'); p(f'v_writelane_b32 v{vT}, s14, {3 + 2*k}')
            p(f's_add_u32 s14, s15, {WS_VF + k*524160}'); p(f'v_writelane_b32 v{vT}, s14, {4 + 2*k}')
        p(f's_mov_b32 s14, {WS_XNF}'); p(f'v_writelane_b32 v{vT}, s14, 7')
        p(f's_mov_b32 s14, {WS_XNF + 2*MiB}'); p(f'v_writelane_b32 v{vT}, s14, 8')
        p(f's_sub_u32 s14, 15, s{sI}'); p('s_lshl_b32 s14, s14, 20'); p(f's_add_u32 s14, s14, {WS_CTX}'); p(f'v_writelane_b32 v{vT}, s14, 9')
        p(f's_lshl_b32 s14, s{sI}, 20'); p(f's_add_u32 s14, s14, {WS_CTX}'); p(f'v_writelane_b32 v{vT}, s14, 10')
        p(f'buffer_load_dword v{vT+2}, v{vT}, s[76:79], 0 offen')
    if 'pp' in opt: p.stamp('x issued')
    srd(p, S_DBG, 96, 256)
    p('v_mov_b32 v26, 0')
    p('s_or_b32 s14, s2, 0')
    p(f's_add_u32 s14, s2, s{sW}')
    p('s_cmp_lg_u32 s14, 0')
    p(f's_cbranch_scc1 {name}_notag')
    p('s_memrealtime s[92:93]')
    p('s_waitcnt lgkmcnt(0)')
    p('s_or_b32 s92, s92, 1')
    p('v_mov_b32 v24, s92')
    p(f'buffer_store_dword v24, v26, s[{S_DBG}:{S_DBG+3}], 0 offen sc1')
    p.label(f'{name}_notag')
    if 'pp' in opt: p.stamp('tag issued')
    if not LATE1:
        emit(dmaA_static(1)); emit(dmaW_static(1))
    (p.stamp('dma issued') if 'pq' not in opt else None)
    p('s_cmp_lg_u32 s2, 0')
    p(f's_cbranch_scc1 {name}_nz')
    p(f's_add_u32 s76, s98, {WS_YACC}')
    p('s_addc_u32 s77, s99, 0')
    p(f's_mov_b32 s78, {SZ_ZERO}')
    p('s_mov_b32 s79, 0x00020000')
    for r in range(4): p(f'v_mov_b32 v{28+r}, 0')
    p(f's_mul_i32 s14, s{sW}, 7168')
    for i in range(7):
        p(f'buffer_store_dwordx4 v[28:31], v{vLane16}, s[76:79], s14 offen sc1')
        p(f's_add_u32 s14, s14, 1024')
    p.label(f'{name}_nz')
    p(f's_add_u32 s96, s98, {WS_XNF}')
    p('s_addc_u32 s97, s99, 0')
    p(f's_mov_b32 s98, {SZ_XNF}')
    p('s_mov_b32 s99, 0x00020000')
    p(f's_cmp_lt_u32 s{sW}, 2')
    p('s_cselect_b32 s98, s98, 0')
    p('s_waitcnt vmcnt(0)' if LATE1 else 's_waitcnt vmcnt(16)')
    p('s_barrier')
    (p.stamp('B0') if 'pq' not in opt else None)
    def rd_act(buf, kin, tb, lab):
        r = vAct + 16*buf + 4*tb
        return ('r', f'ds_read_b128 v[{r}:{r+3}], v{vCA+kin} offset:{2048*tb}', lab)
    def rd_wA(mi, db, kin, lab):
        r = (vWK if mi == 0 else vWV) + 4*db
        return [('r', f'ds_read_b64_tr_b16 v[{r+2*h}:{r+2*h+1}], v{vCW+db} offset:{mi*SL + 8192*kin + 1024*h}', lab) for h in range(2)]
    updA = [('v', f'v_add_u32 v{vCA}, s{sAr}, v{vLPA}'), ('v', f'v_xor_b32 v{vCA+1}, 64, v{vCA}')]
    updWd = [('v', f'v_add_u32 v{vCW}, s{sWr}, v{vLPW}')] + [('v', f'v_xor_b32 v{vCW+db}, {db*32}, v{vCW}') for db in range(1, 8)]
    KA = lambda tb, db: (tb*8 + db)*4
    VA = lambda tb, db: 128 + ((tb >> 1)*16 + db*2 + (tb & 1))*4
    def stageA_mfmas(first):
        L = []
        for kin in range(2):
            for db in range(8):
                for tb in range(4):
                    a = KA(tb, db); f = vAct + 16*kin + 4*tb
                    c = '0' if (first and kin == 0) else f'a[{a}:{a+3}]'
                    L.append(f'{MF} a[{a}:{a+3}], v[{vWK+4*db}:{vWK+4*db+3}], v[{f}:{f+3}], {c}')
                for tb in range(4):
                    a = VA(tb, db); f = vAct + 16*kin + 4*tb
                    c = '0' if (first and kin == 0) else f'a[{a}:{a+3}]'
                    L.append(f'{MF} a[{a}:{a+3}], v[{f}:{f+3}], v[{vWV+4*db}:{vWV+4*db+3}], {c}')
        return L
    GA = lambda kin, db, m: kin*64 + db*8 + m
    def spread(R, L, g0, g1):
        nm = sum(1 for x in L if x[0] in ('m', 'l', 'st'))
        step = max(1, (g1 - g0) // max(nm, 1))
        g = g0; cnt = 0; prev = None
        for it in L:
            e = max(g, g0 + cnt*step - (2 if it[0] == 's' else 0))
            if it[0] == 'm' and prev is not None and prev[0] == 's' and ' m0,' in prev[1]: e = max(e, gprev + 1)
            g = R.place(it, e, g1); gprev = g; prev = it
            if it[0] in ('m', 'l', 'st'): cnt += 1; g += 1
    def stageA(kind, dmaA_items, dmaB_items, barlabs, next_reads=None, mid=None, first=False, bend=None):
        R = Region(stageA_mfmas(first))
        BG = GA(1, 0, 7)
        R.S[BG].append(('bar', barlabs))
        if mid: R.S[BG].extend(mid)
        if next_reads is None:
            R.S[GA(1, 0, 1)].append(('s', f's_add_u32 s{sWr}, s{sWr}, 32768'))
            R.S[GA(1, 0, 2)].append(('s', f's_cmp_ge_u32 s{sWr}, 98304\ns_cselect_b32 s{sWr}, 0, s{sWr}'))
            R.S[GA(1, 0, 3)].append(('s', f's_sub_u32 s{sAr}, s{sASum}, s{sAr}'))
            R.stream(updA + updWd, GA(1, 0, 4), GA(1, 2, 0))
        else:
            R.stream(next_reads[0], GA(1, 0, 4), GA(1, 2, 0))
        for kin in range(2):
            for db in range(8):
                for mi in range(2):
                    if kin == 0 and db == 0 and mi == 0: continue
                    labs = [f'w{kin}_{mi}_{db}'] + ([f'act{kin}'] if (db == 0 and mi == 0) else [])
                    R.place(('wlg', labs), GA(kin, db, 4*mi) - 1, force=True)
        for db in range(8):
            for mi in range(2):
                rr = rd_wA(mi, db, 1, f'w1_{mi}_{db}')
                e = GA(0, db, 4*mi + 3)
                g = R.place(rr[0], e, GA(1, 0, 0)); R.place(rr[1], min(g + 1, GA(1, 0, 0)), GA(1, 0, 0))
        for tb in range(4): R.place(rd_act(1, 1, tb, 'act1'), GA(0, 1, 1) + 5*tb)
        if next_reads is None:
            for db in range(8):
                for mi in range(2):
                    rr = rd_wA(mi, db, 0, f'n0_{mi}_{db}')
                    e = max(GA(1, db, 4*mi + 3), GA(1, 2, 1))
                    g = R.place(rr[0], e); R.place(rr[1], g + 1)
            for tb in range(4): R.place(rd_act(0, 0, tb, 'nact0'), GA(1, 2, 2) + 5*tb)
        else:
            for (it, e) in next_reads[1]: R.place(it, max(e, GA(1, 2, 1)))
        if 'nodmaA' in opt and kind in ('s0', 's1', 'loop'): dmaA_items = [x for x in dmaA_items if x[0] != 'm']; dmaB_items = [x for x in dmaB_items if x[0] != 'm']
        if 'nowA' in opt and kind in ('s0', 's1', 'loop'):
            for g in range(R.n): R.S[g] = [x for x in R.S[g] if x[0] != 'wlg']
        if 'nordsA' in opt and kind in ('s0', 's1', 'loop'):
            for g in range(R.n): R.M[g] = []; R.S[g] = [x for x in R.S[g] if x[0] != 'wlg']
        spread(R, dmaA_items, 1, BG - 2)
        spread(R, dmaB_items, BG + 1, bend if bend else R.n - 2)
        return R
    def dyn_dmaW():
        L = []
        for mi, sr in enumerate((S_WUK, S_WUV)):
            L += [('s', f's_add_u32 m0, s{sWp}, {mi*SL}')]
            for i in range(4): L.append(('m', f'buffer_load_dwordx4 v{vOffW+i}, s[{sr}:{sr+3}], s{sKst} offen offset:{1024*i} lds', 'Wn', None))
        L += [('s', f's_add_u32 s{sKst}, s{sKst}, {64*8192}'), ('s', f's_add_u32 s{sWp}, s{sWp}, 32768'),
              ('s', f's_cmp_ge_u32 s{sWp}, 98304\ns_cselect_b32 s{sWp}, s{sLW}, s{sWp}')]
        return L
    def dyn_dmaA():
        L = []
        for half in range(2):
            L += [('s', f's_add_u32 s{sT1}, s{sAoff}, {32768*half}'), ('s', f's_add_u32 m0, s{sAp}, {4096*half}')]
            for i in range(4): L.append(('m', f'buffer_load_dwordx4 v{vOffA+i}, s[{S_CKV}:{S_CKV+3}], s{sT1} offen offset:{1024*i} lds', 'An', None))
        L += [('s', f's_add_u32 s{sAoff}, s{sAoff}, 128'), ('s', f's_sub_u32 s{sAp}, s{sASum}, s{sAp}')]
        if TA: L.append(('l', f'buffer_load_dword v31, v30, s[{S_CKV}:{S_CKV+3}], s{sAoff} offen', 'TCH'))
        return L
    p('v_lshlrev_b32 v30, 10, v0')
    p(f's_mov_b32 s{sWr}, 0')
    p(f's_add_u32 s{sAr}, s{sLA}, {ACT0}')
    p(f's_add_u32 s{sWp}, s{sLW}, 65536')
    p(f's_add_u32 s{sAp}, s{sLA}, {ACT0}')
    p(f's_lshl_b32 s{sASum}, s{sAp}, 1')
    p(f's_add_u32 s{sASum}, s{sASum}, 32768')
    p(f's_add_u32 s{sKst}, s{sWoff}, {2*64*8192}')
    p(f's_add_u32 s{sAoff}, s{sAoff}, 256')
    emit(updA + updWd)
    p.lgq = []; p.lg_ret = -1
    for tb in range(4): put(rd_act(0, 0, tb, 'act0'))
    for db in range(8):
        for mi in range(2): emit(rd_wA(mi, db, 0, f'w0_{mi}_{db}'))
    def next_order(R):
        L = []
        for g in range(R.n):
            for it in R.M[g]:
                if it[0] == 'r' and (it[2].startswith('n0_') or it[2] == 'nact0'):
                    L.append('act0' if it[2] == 'nact0' else 'w0_' + it[2][3:])
        return L
    order = [None]
    def relabel():
        p.lgq = list(order[0]); p.lg_ret = -1
    def bar_raw(n):
        if 'nobarA' in opt: return ('w', f's_waitcnt vmcnt({n}) lgkmcnt(0)')
        return ('w', f's_waitcnt vmcnt({n}) lgkmcnt(0)\ns_barrier')
    BG = GA(1, 0, 7)
    def fix_bar(R, n, extra=()):
        R.S[BG] = [bar_raw(n), ('call', lambda: p.lg_all())] + list(extra) + [x for x in R.S[BG] if x[0] != 'bar']
    def red64x4(r):
        L = []
        for sh in (8, 4): L += ['s_nop 1', f'v_add_f32_dpp v{r}, v{r}, v{r} row_ror:{sh} row_mask:0xf bank_mask:0xf']
        for sw in ('v_permlane16_swap_b32', 'v_permlane32_swap_b32'):
            L += [f'v_mov_b32 v{LT+6}, v{r}', 's_nop 1', f'{sw} v{r}, v{LT+6}', 's_nop 1', f'v_add_f32 v{r}, v{r}, v{LT+6}']
        return L
    lnops = []
    for i in range(5): lnops += unpack8(RAW + 4*i, X + 8*i)
    lnops += ln_stream(X, 40, LT, red64x4, scale='0x3e0293ee')
    ln = [('v', x) for x in lnops]
    for i in range(5):
        ln.append(('s', f's_mov_b32 s14, {4096*i}'))
        ln.append(('st', f'buffer_store_dwordx4 v[{X+4*i}:{X+4*i+3}], v{vXn}, s[{S_LNS}:{S_LNS+3}], s14 offen sc1'))
    half = len(ln) // 2
    def tag_read():
        p('s_mov_b32 s14, 0')
        p.label(f'{name}_tagpoll')
        p(f'v_readfirstlane_b32 s{sTag}, v24')
        p('s_add_u32 s14, s14, 1')
        p('s_nop 2')
        p(f's_cmp_lg_u32 s{sTag}, 0')
        p(f's_cbranch_scc1 {name}_notag2')
        p(f's_cmp_ge_u32 s14, {SPIN}')
        p(f's_cbranch_scc1 {name}_notag2')
        p(f'buffer_load_dword v24, v26, s[{S_DBG}:{S_DBG+3}], 0 offen sc1')
        p('s_waitcnt vmcnt(0)')
        p(f's_branch {name}_tagpoll')
        p.label(f'{name}_notag2')
    def pub_ln():
        p(f's_cmp_lg_u32 s{sCnt}, {1 if TA else 0}')
        p(f's_cbranch_scc1 {name}_nopub')
        p(f's_cmp_lg_u32 s{sW}, 0')
        p(f's_cbranch_scc1 {name}_nopub')
        p(f's_lshl_b32 s14, s2, 3')
        p(f'v_mov_b32 v24, s{sTag}')
        p(f'v_mov_b32 v25, s{sXcc}')
        p('v_mov_b32 v26, 0')
        p(f'buffer_store_dwordx2 v[24:25], v26, s[{S_FL}:{S_FL+3}], s14 offen sc1')
        p.label(f'{name}_nopub')
    R0 = stageA('s0', (dmaA_static(1, -256) + dmaW_static(1) if LATE1 else []) + dyn_dmaW(), dyn_dmaA(), None, first=True, bend=BG + 34)
    fix_bar(R0, 8)
    R0.place(('l', f'buffer_load_dword v24, v26, s[{S_DBG}:{S_DBG+3}], 0 offen sc1', 'TAG'), BG + 1, force=True)
    R0.period = 20; R0.stream(ln[:half], 4, None, pace=lambda k: 4 + (k*120)//half); R0.period = 16
    p.lgq = ['act0']*4 + [f'w0_{mi}_{db}' for db in range(8) for mi in range(2) for _ in range(2)]; p.lg_ret = -1
    put(('wlg', ['w0_0_0', 'act0']))
    R0.emit(p, put); order[0] = next_order(R0)
    R1_ = stageA('s1', dyn_dmaW(), dyn_dmaA(), None, bend=BG + 34)
    fix_bar(R1_, 9 if TA else 8, [('call', tag_read)])
    nv = [x for x in ln[half:] if x[0] == 'v']; tail = ln[half + len(nv):]
    R1_.period = 20; g = R1_.stream(ln[half:], 0, None, pace=lambda k: min((k*118)//(len(ln) - half), 200) if ln[half + k][0] == 'v' else BG + 2); R1_.period = 16
    relabel(); put(('wlg', ['w0_0_0', 'act0']))
    R1_.emit(p, put); order[0] = next_order(R1_)
    print('stage0/1 est', R0.total(), R1_.total())
    if 'ps' in opt: p.stamp('stage1 done')
    p(f's_mov_b32 s{sCnt}, 0')
    LA = f'{name}_stageA'
    p.label(LA)
    Rl = stageA('loop', dyn_dmaW(), dyn_dmaA(), None, bend=BG + 34)
    fix_bar(Rl, 9 if TA else 8, [('call', pub_ln)])
    Rl.T[Rl.n - 1] += [('s', f's_add_u32 s{sCnt}, s{sCnt}, 1'), ('s', f's_cmp_lt_u32 s{sCnt}, 4')]
    assert 'nordsA' in opt or next_order(Rl) == order[0], 'stage read order must be periodic'
    relabel()
    put(('wlg', ['w0_0_0', 'act0']))
    Rl.emit(p, put)
    print('stageA loop est', Rl.total(), 'overflow', Rl.over)
    p(f's_cbranch_scc1 {LA}')
    if 'pp' not in opt: (p.stamp('A loop done') if 'pq' not in opt else None)
    def dma_wq(c):
        L = [('s', f's_add_u32 s{sT0}, s{sWoff}, {c*64*8192}'), ('s', f's_add_u32 m0, s{sLW}, {c*SL}')]
        for i in range(4):
            L.append(('m', f'buffer_load_dwordx4 v{vOffW+i}, s[{S_WQ}:{S_WQ+3}], s{sT0} offen offset:{1024*i} lds', f'WQ{c}', None))
        return L
    relabel()
    put(('wlg', ['w0_0_0', 'act0']))
    flagld = [('s', f's_sub_u32 s{sTL}, 15, s{sI}'), ('s', f's_mov_b32 s{sTS}, s{sI}'),
              ('v', f'v_and_b32 v24, 15, v0'), ('v', f'v_bfe_u32 v25, v0, 4, 1'),
              ('v', f'v_mov_b32 v26, s{sTL}'), ('v', f'v_mov_b32 v27, s{sTS}'),
              ('v', f'v_cmp_eq_u32 vcc, 0, v25'), ('v', 's_nop 1'), ('v', f'v_cndmask_b32 v26, v27, v26, vcc'),
              ('v', f'v_lshl_add_u32 v24, v26, 4, v24'),
              ('s', f's_and_b32 s14, s{sH}, 3'), ('s', f's_lshl_b32 s14, s14, 6'), ('s', f's_lshr_b32 s15, s{sH}, 2'), ('s', f's_add_u32 s14, s14, s15'),
              ('v', f'v_and_b32 v25, 7, v0'), ('v', f'v_lshlrev_b32 v25, 3, v25'), ('v', f'v_add_u32 v25, s14, v25'),
              ('v', f'v_cmp_gt_u32 vcc, 32, v0'), ('v', 's_nop 1'), ('v', f'v_cndmask_b32 v24, v25, v24, vcc'),
              ('v', f'v_lshlrev_b32 v24, 3, v24'),
              ('l', f'buffer_load_dwordx2 v[28:29], v24, s[{S_FL}:{S_FL+3}], 0 offen sc1', 'FL')]
    R6 = stageA('s6', dma_wq(4) + dma_wq(5), dma_wq(0) + dma_wq(1), None)
    fix_bar(R6, 9 if TA else 8)
    R6.stream(flagld, BG + 24)
    R6.emit(p, put)
    order[0] = next_order(R6)
    XR = [16, 96, 32, 80]
    XRING = [('v', 16), ('v', 96), ('v', 32), ('v', 80), ('a', 0), ('a', 16), ('a', 32), ('a', 48)]
    def xreg(ks, c):
        t, b = XRING[ks % 8]
        return f'{t}[{b+4*c}:{b+4*c+3}]'
    def xn_load(ks):
        L = []
        for c in range(4):
            off = ks*1024 + (c & 1)*20480
            sb = sXL if c < 2 else sXS
            L.append(('s', f's_add_u32 s{sT1}, s{sb}, {off & ~4095}'))
            L.append(('l', f'buffer_load_dwordx4 {xreg(ks, c)}, v{vLane16}, s[{S_XNF}:{S_XNF+3}], s{sT1} offen offset:{off & 4095} sc1', f'XN{ks}'))
        return L
    def rd_w(db, kin, base, lab):
        r = vWF + 4*db
        return [('r', f'ds_read_b64_tr_b16 v[{r+2*h}:{r+2*h+1}], v{vCW+db} offset:{8192*kin + 1024*h}', lab, None) for h in range(2)]
    def upd_w(base):
        return [('v', f'v_add_u32 v{vCW}, {base}, v{vLPW}')] + [('v', f'v_xor_b32 v{vCW+db}, {db*32}, v{vCW}') for db in range(1, 8)]
    def lncheck():
        p(f's_cmp_lg_u32 s{sW}, 0')
        p(f's_cbranch_scc1 {name}_lnok')
        p('s_mov_b32 s14, 0')
        p.label(f'{name}_lnpoll')
        p(f'v_cmp_ne_u32 vcc, s{sTag}, v28')
        p('s_add_u32 s14, s14, 1')
        p(f's_cbranch_vccz {name}_lnok2')
        p(f's_cmp_ge_u32 s14, {SPIN}')
        p(f's_cbranch_scc1 {name}_lnok2')
        p(f'buffer_load_dwordx2 v[28:29], v24, s[{S_FL}:{S_FL+3}], 0 offen sc1')
        p('s_waitcnt vmcnt(0)')
        p(f's_branch {name}_lnpoll')
        p.label(f'{name}_lnok2')
        p(f'v_cmp_ne_u32 vcc, s{sXcc}, v29')
        p('s_nop 1')
        p('s_lshr_b64 s[14:15], vcc, 32')
        p('s_cmp_eq_u64 s[14:15], 0')
        p(f's_cselect_b32 s{sSame}, 1, 0')
        p.label(f'{name}_lnok')
    relabel()
    put(('wlg', ['w0_0_0', 'act0']))
    xset = [('s', f's_lshl_b32 s{sT1}, s{sTL}, 3'), ('s', f's_lshl_b32 s{sT0}, s{sW}, 1'), ('s', f's_add_u32 s{sT1}, s{sT1}, s{sT0}'),
            ('s', f's_mul_i32 s{sXL}, s{sT1}, 20480'), ('s', f's_lshl_b32 s{sT1}, s{sTS}, 3'), ('s', f's_add_u32 s{sT1}, s{sT1}, s{sT0}'),
            ('s', f's_mul_i32 s{sXS}, s{sT1}, 20480')]
    def last_use(db):
        r = vWF + 4*db
        if r < 64: return GA(1, (r - vWK)//4, 3)
        return GA(1, (r - vWV)//4, 7)
    nr = []
    for db in range(8):
        for it in rd_w(db, 0, 0, f'w0_{db}'): nr.append((it, last_use(db) + 1))
    R7 = stageA('s7', xset + dma_wq(6) + dma_wq(7), dma_wq(2) + dma_wq(3) + dma_wq(8) + dma_wq(9), None, next_reads=(upd_w(0), nr))
    R7.S[BG] = [('call', lambda: (p('s_waitcnt vmcnt(8) lgkmcnt(0)'), p.lg_all(), lncheck(), p('s_barrier')))] + [x for x in R7.S[BG] if x[0] != 'bar']
    R7.stream(xn_load(0) + xn_load(1), BG + 2)
    R7.stream(xn_load(2), GA(1, 4, 0))
    R7.emit(p, put)
    if 'pp' not in opt: p.stamp('phase A done')
    NKS = 20
    mf = []
    for ks in range(NKS):
        for db in range(8):
            for c in range(4):
                acc = O(c, db)
                cc = '0' if ks == 0 else f'v[{acc}:{acc+3}]'
                mf.append(f'{MF} v[{acc}:{acc+3}], v[{vWF+4*db}:{vWF+4*db+3}], {xreg(ks, c)}, {cc}')
    R = Region(mf)
    G = lambda ks, db, c: ks*32 + db*4 + c
    p.wait_vm('XN0')
    put(('wlg', ['w0_0', 'w0_1']))
    R.S[G(3, 0, 3)].append(('bar', ['WQ2', 'WQ3', 'WQ8', 'WQ9', 'WQ4', 'WQ5', 'WQ6', 'WQ7']))
    for ch in range(9):
        R.stream(upd_w((ch + 1)*SL), G(2*ch + 1, 0, 1), G(2*ch + 1, 2, 0))
    for ks in range(NKS):
        for db in range(0, 8, 2):
            if ks == 0 and db == 0: continue
            R.place(('wlg', [f'w{ks}_{db}', f'w{ks}_{db+1}']), G(ks, db, 0) - 1, force=True)
        if ks: R.place(('wvm', f'XN{ks}'), G(ks, 0, 0) - 2, force=True)
    for ks in range(NKS - 1):
        ch, t = divmod(ks, 2); nxt = ks + 1; nch, nt = divmod(nxt, 2)
        for db in range(8):
            e = G(ks, db, 3)
            if t == 1: e = max(e, G(ks, 2, 1))
            rr = rd_w(db, nt, nch*SL, f'w{nxt}_{db}')
            lat = G(ks + 1, 0, 0) if t == 0 else None
            g = R.place(rr[0], e, lat); R.place(rr[1], g + 1 if t == 1 or db < 7 else g, lat)
    TE = 112
    STF = ''
    for o_ in opt:
        if o_.startswith('stf='): STF = o_[4:]
    sSt = sCtx
    epi = []
    sStB = sHbase
    for kind in range(2):
        for f in range(16):
            if kind == 0:
                tb, k4 = divmod(f, 4); a0 = KA(tb, 2*k4); off = tb*4096 + k4*1024; sr = S_KF
            else:
                b, db = divmod(f, 8); a0 = 128 + (b*16 + db*2)*4; off = b*8192 + db*1024; sr = S_VF
            for k in range(8): epi.append(('v', f'v_accvgpr_read_b32 v{TE+k}, a{a0+k}'))
            for k in range(4): epi.append(('v', f'v_cvt_pk_bf16_f32 v{TE+k}, v{TE+2*k}, v{TE+2*k+1}'))
            epi.append(('s', f's_add_u32 s{sSt}, s{sStB}, {off & ~4095}'))
            epi.append(('st', f'buffer_store_dwordx4 v[{TE}:{TE+3}], v{vLane16}, s[{sr}:{sr+3}], s{sSt} offen offset:{off & 4095} {STF}'))
            if 'nost' in opt: epi.pop()
            epi.append(('s', 's_nop 0'))
    KS_V = int(next((o_[3:] for o_ in opt if o_.startswith('kv=')), '17'))
    g0 = 12; span = G(KS_V, 4, 0) - g0
    gl = R.stream(epi, g0, None, pace=lambda k: g0 + (k*span)//len(epi))
    freed = {}
    for g in range(R.n):
        for it in R.V[g]:
            if it[1].startswith('v_accvgpr_read'): freed[int(it[1].split(' a')[-1])] = g
    gprev = 0
    for ks in range(3, NKS):
        t, b = XRING[ks % 8]
        if t == 'a' and ks < 8: e = max(freed[r] for r in range(b, b + 16)) + 1
        elif ks >= 8: e = G(ks - 8, 7, 3) + 1
        else: e = 0
        e = max(e, gprev + 1, G(max(ks - 7, 0), 0, 0))
        lat = G(ks, 0, 0) - 40 if ks > 3 else G(1, 0, 0)
        gprev = R.stream(xn_load(ks), e, max(lat, e + 8))
    FK, FV = 4096, 5120
    def publish(off, lab, waitlabel):
        p.wait_vm(waitlabel)
        p('s_barrier')
        p(f's_cmp_lg_u32 s{sW}, 0')
        p(f's_cbranch_scc1 {name}_{lab}pub')
        p(f's_lshl_b32 s14, s{sH}, 3')
        p(f's_add_u32 s14, s14, s{sI}')
        p(f's_lshl_b32 s14, s14, 2')
        p(f's_add_u32 s14, s14, {off}')
        p(f'v_mov_b32 v12, s{sTag}')
        p('v_mov_b32 v13, 0')
        p(f's_cmp_eq_u32 s{sSame}, 1')
        p(f's_cbranch_scc1 {name}_{lab}rel')
        p('buffer_wbl2 sc1')
        p('s_waitcnt vmcnt(0)')
        p(f'buffer_store_dword v12, v13, s[{S_FL}:{S_FL+3}], s14 offen sc1')
        p(f's_branch {name}_{lab}pub')
        p.label(f'{name}_{lab}rel')
        p(f'buffer_store_dword v12, v13, s[{S_FL}:{S_FL+3}], s14 offen')
        p.label(f'{name}_{lab}pub')
    def flag_load(off, lab):
        return [('s', f's_lshl_b32 s15, s{sH}, 5'), ('s', f's_add_u32 s15, s15, {off}'),
                ('v', 'v_and_b32 v13, 7, v0'), ('v', 'v_lshlrev_b32 v13, 2, v13'),
                ('l', f'buffer_load_dword v12, v13, s[{S_FL}:{S_FL+3}], s15 offen sc1', lab)]
    def check(lab, waitlabel):
        p.wait_vm(waitlabel, 'lgkmcnt(0)'); p.lg_all()
        p(f's_cmp_lg_u32 s{sW}, 0')
        p(f's_cbranch_scc1 {name}_{lab}ok')
        p('s_mov_b32 s14, 0')
        p.label(f'{name}_{lab}poll')
        p(f'v_cmp_ne_u32 vcc, s{sTag}, v12')
        p('s_add_u32 s14, s14, 1')
        p(f's_cbranch_vccz {name}_{lab}ok2')
        p(f's_cmp_ge_u32 s14, {SPIN}')
        p(f's_cbranch_scc1 {name}_{lab}ok2')
        p(f'buffer_load_dword v12, v13, s[{S_FL}:{S_FL+3}], s15 offen sc1')
        p('s_waitcnt vmcnt(0)')
        p(f's_branch {name}_{lab}poll')
        p.label(f'{name}_{lab}ok2')
        p(f's_cmp_eq_u32 s{sSame}, 1')
        p(f's_cbranch_scc1 {name}_{lab}ok')
        p('buffer_inv sc1')
        p('s_waitcnt vmcnt(0)')
        p.label(f'{name}_{lab}ok')
        p('s_barrier')
    def att_state():
        p(f's_lshl_b32 s{sKb}, s{sH}, 19')
        p(f's_add_u32 s{sKb}, s{sKb}, s{sLW}')
        p(f's_mov_b32 s{sVb}, s{sKb}')
    def unitK(slot, label):
        L = [('s', f's_add_u32 m0, s{sLW}, {slot*32768}')]
        for i in range(4): L.append(('m', f'buffer_load_dwordx4 v{vLane16}, s[{S_KF}:{S_KF+3}], s{sKb} offen offset:{1024*i} lds', label, None))
        return L + [('s', f's_add_u32 s{sKb}, s{sKb}, 16384')]
    def unitV(slot, label):
        L = [('s', f's_add_u32 m0, s{sLW}, {slot*32768 + SL}')]
        for i in range(4): L.append(('m', f'buffer_load_dwordx4 v{vLane16}, s[{S_VF}:{S_VF+3}], s{sVb} offen offset:{1024*i} lds', label, None))
        return L + [('s', f's_add_u32 s{sVb}, s{sVb}, 16384')]
    def dma_K(label, tagbase=None):
        L = [('s', f's_mov_b32 m0, s{sSlotP}')]
        for i in range(4):
            L.append(('m', f'buffer_load_dwordx4 v{vLane16}, s[{S_KF}:{S_KF+3}], s{sKb} offen offset:{1024*i} lds', label, None))
        L += [('s', f's_add_u32 s{sKb}, s{sKb}, 16384')]
        return L
    def dma_V(label, tagbase=None):
        L = [('s', f's_add_u32 m0, s{sSlotP}, {SL}')]
        for i in range(4):
            L.append(('m', f'buffer_load_dwordx4 v{vLane16}, s[{S_VF}:{S_VF+3}], s{sVb} offen offset:{1024*i} lds', label, None))
        L += [('s', f's_add_u32 s{sVb}, s{sVb}, 16384')]
        return L
    adv_slot = [('s', f's_add_u32 s{sSlotP}, s{sSlotP}, 32768'), ('s', f's_cmp_ge_u32 s{sSlotP}, {NSLOT*32768}\ns_cselect_b32 s{sSlotP}, s{sLW}, s{sSlotP}')]
    R.emit(p, put)
    print('fused qproj overflow', R.over, 'est', R.total())
    if 'pp' not in opt: p.stamp('q end')
    p(f's_mov_b32 s{sFlag}, 0')
    p(f's_mov_b32 s{sLim}, {hex(LIM)}')
    def touch_setup():
        p(f's_load_dwordx2 s[92:93], s[0:1], {ARG["wo"]}')
        p(f's_load_dwordx2 s[94:95], s[0:1], {ARG["wg"]}')
        p(f's_load_dwordx2 s[96:97], s[0:1], {ARG["wu"]}')
        p(f's_load_dwordx2 s[98:99], s[0:1], {ARG["wd"]}')
        p('s_lshl_b32 s14, s2, 2')
        p(f's_add_u32 s14, s14, s{sW}')
        p('s_mul_i32 s14, s14, 40')
        p('v_min_u32 v14, 39, v0')
        p('v_add_u32 v14, s14, v14')
        p('v_lshlrev_b32 v14, 7, v14')
        p('s_lshr_b32 s14, s2, 6')
        p('s_lshl_b32 s14, s14, 2')
        p(f's_and_b32 s15, s{sI}, 3')
        p('s_add_u32 s14, s14, s15')
        p('s_lshl_b32 s14, s14, 3')
        p('s_and_b32 s15, s2, 7')
        p('s_add_u32 s14, s14, s15')
        p('s_lshl_b32 s14, s14, 2')
        p(f's_add_u32 s14, s14, s{sW}')
        p('s_mul_i32 s14, s14, 34')
        p('v_min_u32 v15, 33, v0')
        p('v_add_u32 v15, s14, v15')
        p('v_min_u32 v15, 17279, v15')
        p('v_lshlrev_b32 v15, 7, v15')
        p('s_waitcnt lgkmcnt(0)')
    touch_items = [('l', 'global_load_dword v13, v14, s[92:93]', 'T'), ('l', 'global_load_dword v13, v15, s[94:95]', 'T'),
                   ('l', 'global_load_dword v13, v15, s[96:97]', 'T'), ('l', 'global_load_dword v13, v15, s[98:99]', 'T')]
    att_state()
    touch_setup()
    publish(FK, 'k', 'st')
    for it in flag_load(FK, 'KFL'): put(it)
    p.stamp('pub done')
    p('s_nop 7')
    for c in range(4):
        for ks in range(4):
            a0 = O(c, 2*ks)
            for k in range(4): p(f'v_cvt_pk_bf16_f32 v{a0+k}, v{a0+2*k}, v{a0+2*k+1}')
            for k in range(4): p(f'v_accvgpr_write_b32 a{aQ + 16*c + 4*ks + k}, v{a0+k}')
    p(f'v_mov_b32 v{vT}, 0x3f803f80')
    for k in range(4): p(f'v_accvgpr_write_b32 a{128+k}, v{vT}')
    p(f'v_and_b32 v{vT}, 15, v0')
    p(f'v_lshrrev_b32 v{vT+1}, 4, v0')
    p(f'v_lshlrev_b32 v{vT+1}, 2, v{vT+1}')
    p(f'v_sub_u32 v{vT}, v{vT}, v{vT+1}')
    for r in range(4): p(f'v_cmp_le_i32 s[{sM+2*r}:{sM+2*r+1}], {r}, v{vT}')
    p(f'v_mov_b32 v{vNinf}, {hex(NEGBIG)}')
    for r in range(16): p(f'v_mov_b32 v{vNeg+r}, 0')
    for c in range(4): p(f'v_mov_b32 v{vL+c}, 0')
    for r in range(64): p(f'v_mov_b32 v{vO+r}, 0')
    p.stamp('pre check')
    check('k', 'KFL')
    emit(unitK(0, 'U-1') + unitK(1, 'U0') + unitV(1, 'U0'))
    p.stamp('kv ok')
    nerr = 0

    def rdK(b, f):  return ('r', f'ds_read_b128 a[{aK+4*f}:{aK+4*f+3}], v{vRd} offset:{b*8192 + f*1024}', f'K{f}')
    def rdV(b, f):  return ('r', f'ds_read_b128 a[{aV+4*f}:{aV+4*f+3}], v{vRd} offset:{16384 + b*8192 + f*1024}', f'V{f}')
    def qk_mfmas(cols, sbase, cin):
        L = []
        for i, c in enumerate(cols):
            for kb in range(2):
                S = Sr(sbase + i, kb)
                for ks in range(4):
                    cc = cin(c, kb) if ks == 0 else S
                    L.append(f'{MF} v[{S}:{S+3}], a[{aK+4*(kb*4+ks)}:{aK+4*(kb*4+ks)+3}], a[{aQ+16*c+4*ks}:{aQ+16*c+4*ks+3}], v[{cc}:{cc+3}]')
        return L
    def pv_mfmas(cols, par, first=False):
        L = []
        for c in cols:
            for db in range(8):
                o = O(c, db)
                cc = '0' if first else f'v[{o}:{o+3}]'
                L.append(f'{MF} v[{o}:{o+3}], a[{aV+4*db}:{aV+4*db+3}], v[{Pr(par, c)}:{Pr(par, c)+3}], {cc}')
        return L
    aOne = 128
    Lm = lambda c: vP + 8 + 4*c
    def sum_mfmas(cols, par):
        return [f'{MF} v[{Lm(c)}:{Lm(c)+3}], a[{aOne}:{aOne+3}], v[{Pr(par, c)}:{Pr(par, c)+3}], v[{Lm(c)}:{Lm(c)+3}]' for c in cols]
    def sm_window_ns(c, sslot, par):
        S = vS + 8*sslot; P = Pr(par, c); W = []
        for k in range(4):
            e0, e1 = vE + (2*k) % 4, vE + (2*k + 1) % 4
            W += [[f'v_exp_f32 v{e0}, v{S+2*k}'], [f'v_exp_f32 v{e1}, v{S+2*k+1}'],
                  [f'v_cvt_pk_bf16_f32 v{P+k}, v{e0}, v{e1}'], []]
        return W
    def sm_window(c, sslot, par):
        S = vS + 8*sslot; P = Pr(par, c); W = []
        for k in range(4):
            e0, e1 = vE + (2*k) % 4, vE + (2*k + 1) % 4
            W += [[f'v_exp_f32 v{e0}, v{S+2*k}'], [f'v_exp_f32 v{e1}, v{S+2*k+1}'],
                  [f'v_add_f32 v{vL+c}, v{vL+c}, v{e0}'],
                  [f'v_add_f32 v{vL+c}, v{vL+c}, v{e1}', f'v_cvt_pk_bf16_f32 v{P+k}, v{e0}, v{e1}']]
        return W
    cin_neg = lambda c, kb: vNeg + 4*c
    def cin_mask(tile_cols):
        def f(c, kb):
            if c in tile_cols: return vCi + 8*(c - tile_cols[0]) + 4*kb
            return vNeg + 4*c
        return f
    def mask_ops(tile_cols):
        c0 = tile_cols[0]
        L = [('s', f's_cmp_lt_i32 s{sDd}, 0\ns_cselect_b64 s[14:15], -1, 0'),
             ('s', f's_cmp_eq_u32 s{sDd}, 0\n' + '\n'.join(f's_cselect_b64 s[{4+2*r}:{5+2*r}], s[{sM+2*r}:{sM+2*r+1}], s[14:15]' for r in range(4))),
             ('s', f's_cmp_le_i32 s{sDd}, 0\ns_cselect_b64 s[12:13], -1, 0')]
        for cb in range(2):
            for kb in range(2):
                for r in range(4):
                    m = 4 + 2*r if cb == kb else (12 if (cb == 1 and kb == 0) else 14)
                    L.append(('v', f'v_cndmask_b32 v{vCi + 8*cb + 4*kb + r}, v{vNinf}, v{vNeg + 4*(c0 + cb) + r}, s[{m}:{m+1}]'))
        return L
    LC, SC = [0, 1], [2, 3]
    def build_group(mf, windows, reads, dmas=(), extra=(), pre_wait=None, mid_wait=None, nwin=None):
        R = Region(mf)
        n = len(mf)
        for (g0, W) in windows:
            for i, ops in enumerate(W):
                for o in ops: R.place(('v', o), g0 + i, force=True)
        slots = [g for g in range(n) if g % 4 == 2]
        if len(slots) < len(reads): slots = sorted(slots + [g for g in range(n) if g % 4 == 3])
        if n == 16 or nwin == 16: slots = [g for g in range(16) if g % 4 in (2, 3)]
        for it, g in zip(reads, slots): R.place(it, g, force=True)
        if dmas:
            free = [g for g in range(n) if not R.M[g]]
            pref = [g for g in free if g >= 16 and nwin == 16] + [g for g in free if g % 4 == 3 and not (g >= 16 and nwin == 16)] + [g for g in free if g % 4 == 1] + [g for g in free if g % 4 in (0, 2)]
            nm = sum(1 for x in dmas if x[0] == 'm')
            use = sorted([g for g in pref if g >= 1][:nm])
            if nwin == 16 and nm == 4: use = [5, 9, 13, 16]
            k = 0; pend_s = []
            for it in dmas:
                if it[0] == 's': pend_s.append(it)
                else:
                    g = use[k]; k += 1
                    for j, sx in enumerate(pend_s):
                        gg = max(0, g - len(pend_s) + j)
                        if k > 1: gg = max(gg, use[k-2] + 1) if use[k-2] + 1 <= g - 1 or ' m0,' not in sx[1] else gg
                        if gg == g and ' m0,' in sx[1]: R.place(('s', 's_nop 0'), g, force=True) if False else None
                        R.place(sx, gg, force=True)
                    pend_s = []
                    R.place(it, g, force=True)
            for j, sx in enumerate(pend_s):
                gg = use[-1] + 1 + j
                if gg <= n - 1: R.place(sx, gg, force=True)
                else: R.T[n - 1].append(sx)
        if extra:
            g = 0
            for it in extra:
                best = None
                for gg in range(g, n - 1):
                    if R.fits(gg, it): best = gg; break
                if best is None:
                    best = g
                R.place(it, best, force=True); g = best
        if mid_wait: R.place(mid_wait[1], mid_wait[0], force=True)
        return R
    slot_adv = [('s', f's_add_u32 s{sSlotR}, s{sSlotR}, 32768'), ('s', f's_cmp_ge_u32 s{sSlotR}, {NSLOT*32768}\ns_cselect_b32 s{sSlotR}, 0, s{sSlotR}')]
    def start_items(R, vm=16):
        pre = []
        if vm is None: return
        if 'nodma' not in opt: pre.append(('w', f's_waitcnt vmcnt({vm})'))
        if 'nobar' not in opt: pre.append(('w', 's_barrier'))
        R.S[0] = pre + R.S[0]
    def end_items(R, loop=None):
        n = R.n
        for j, it in enumerate(slot_adv): R.S[4 + 4*j if n > 16 else 1 + 4*j].append(it) if False else None
        g0 = 8
        for j, it in enumerate(slot_adv): R.S[g0 + j].append(it)
        R.V[n - 1].append(('v', f'v_add_u32 v{vRd}, s{sSlotR}, v{vLane16}'))
        if loop:
            R.S[n - 3].append(('s', f's_sub_u32 s{sCnt}, s{sCnt}, 1'))
            R.T[n - 1].append(('s', f's_cmp_lg_u32 s{sCnt}, 0'))
    def emit_group(R, pre):
        if pre and 'nords' not in opt:
            put(('wlg', [f'{pre}{f}' for f in range(4)]))
            R.S[3].insert(0, ('wlg', [f'{pre}{f}' for f in range(4, 8)]))
        if 'nosm' in opt:
            for g in range(R.n): R.V[g] = []
        if 'noexp' in opt:
            for g in range(R.n): R.V[g] = [(x[0], x[1].replace('v_exp_f32', 'v_mov_b32')) for x in R.V[g]]
        if 'nodma' in opt:
            for g in range(R.n): R.M[g] = [x for x in R.M[g] if x[0] != 'm']
        if 'nords' in opt:
            for g in range(R.n):
                R.M[g] = [x for x in R.M[g] if x[0] != 'r']; R.S[g] = [x for x in R.S[g] if x[0] != 'wlg']
            pre = None; R.S[3] = [x for x in R.S[3] if x[0] != 'wlg']
        R.emit(p, put)
    stats = {'cyc': 0}
    def interval(kind, lbl, maskL=None, maskS=None, loop=False, vm=16):
        dual = kind in ('D', 'T')
        mA, mB, mN = (maskS if dual else maskL) or (False, False, False)
        tile = SC if dual else LC
        p.lgq = ['K%d' % f for f in range(8)]; p.lg_ret = -1
        tot = 0
        if dual:
            cols = [0, 1, 2, 3]
            R1 = build_group(qk_mfmas(cols, 0, cin_mask(SC) if mA else cin_neg),
                             [(0, sm_window(3, 3, 0)), (16, sm_window(0, 0, 1))], [rdV(0, f) for f in range(8)], dma_K('x'),
                             mid_wait=None)
            start_items(R1, vm)
            if lbl == 'db':
                g_ = 1
                sel = ([touch_items[0]] if TW else []) + (touch_items[1:] if TF else [])
                for it in sel:
                    while R1.M[g_]: g_ += 1
                    R1.M[g_].append(it); g_ += 3
            emit_group(R1, 'K')
            ex = ([('s', f's_add_u32 s{sDd}, s{sDd}, 1')] + mask_ops(SC if kind == 'D' else LC)) if mB else []
            if kind == 'T': ex = mask_ops(LC)
            R2 = build_group(pv_mfmas(cols, 0), [(0, sm_window(1, 1, 1)), (16, sm_window(2, 2, 1))], [rdK(0, f) for f in range(8)], extra=ex)
            if kind == 'T':
                emit([('s', f's_sub_u32 s{sDd}, s{sTS}, s{sTL}'), ('s', f's_lshl_b32 s{sDd}, s{sDd}, 2'), ('s', f's_add_u32 s{sDd}, s{sDd}, 4'), ('s', f's_sub_u32 s{sDd}, s{sDd}, s{sW}')])
            emit_group(R2, 'V')
            if kind == 'D':
                R3 = build_group(qk_mfmas(cols, 0, cin_mask(SC) if mB else cin_neg),
                                 [(0, sm_window(3, 3, 1)), (16, sm_window(0, 0, 0))], [rdV(1, f) for f in range(8)], dma_V('x') + adv_slot)
                emit_group(R3, 'K')
                ex = ([('s', f's_add_u32 s{sDd}, s{sDd}, 1')] + mask_ops(SC)) if mN else []
                R4 = build_group(pv_mfmas(cols, 1), [(0, sm_window(1, 1, 0)), (16, sm_window(2, 2, 0))], [rdK(1, f) for f in range(8)], extra=ex)
                end_items(R4, loop)
                emit_group(R4, 'V')
            else:
                R3 = build_group(qk_mfmas(LC, 0, cin_mask(LC)), [(0, sm_window(3, 3, 1))], [rdV(1, f) for f in range(8)], dma_V('x') + adv_slot)
                emit_group(R3, 'K')
                ex = ([('s', f's_add_u32 s{sDd}, s{sDd}, 1')] + mask_ops(LC))
                ex = [('v', f'v_mov_b32 v{Lm(c)+r}, 0') for c in LC for r in range(4)] + ex
                R4 = build_group(pv_mfmas(cols, 1), [(0, sm_window_ns(0, 0, 0))], [rdK(1, f) for f in range(8)], extra=ex)
                end_items(R4)
                emit_group(R4, 'V')
            tot = R1.total() + R2.total() + R3.total() + R4.total()
        else:
            dK = dma_K('x'); dv_ = dma_V('x'); dV = dv_[:1] + adv_slot + dv_[1:]
            R1 = build_group(qk_mfmas(LC, 2, cin_mask(LC) if mA else cin_neg), [(0, sm_window_ns(1, 1, 0))], [rdV(0, f) for f in range(8)])
            start_items(R1, vm)
            emit_group(R1, 'K')
            ex = ([('s', f's_add_u32 s{sDd}, s{sDd}, 1')] + mask_ops(LC)) if mB else []
            rk = [rdK(0, f) for f in range(8)] if kind != 'E' else []
            R2 = build_group(pv_mfmas(LC, 0) + sum_mfmas(LC, 0), [(0, sm_window_ns(0, 2, 1))], rk, dK, extra=ex, nwin=16)
            emit_group(R2, 'V')
            if kind != 'E':
                R3 = build_group(qk_mfmas(LC, 0, cin_mask(LC) if mB else cin_neg), [(0, sm_window_ns(1, 3, 1))], [rdV(1, f) for f in range(8)])
                emit_group(R3, 'K')
                ex = ([('s', f's_add_u32 s{sDd}, s{sDd}, 1')] + mask_ops(LC)) if mN else []
                R4 = build_group(pv_mfmas(LC, 1) + sum_mfmas(LC, 1), [(0, sm_window_ns(0, 0, 0))], [rdK(1, f) for f in range(8)], dV, extra=ex, nwin=16)
                end_items(R4, loop)
                emit_group(R4, 'V')
                tot = R1.total() + R2.total() + R3.total() + R4.total()
            else:
                for f in range(8): put(rdV(1, f))
                emit(dV)
                for ops in sm_window_ns(1, 3, 1):
                    for o in ops: p(o)
                    if len(ops) == 1 and ops[0].startswith('v_exp'): p('s_nop 0')
                p('s_waitcnt lgkmcnt(0)')
                p('s_nop 1')
                for m in pv_mfmas(LC, 1) + sum_mfmas(LC, 1): p(m)
        if tot: print(f'  interval {lbl}: est {tot} cycles for', 128 if kind == 'D' else (112 if kind == 'T' else 64), 'mfma')

    def emit_prefetch():
        p('s_lshr_b32 s14, s2, 3')
        p('s_and_b32 s15, s14, 7')
        p('s_cmp_lt_u32 s15, 4')
        p(f's_cbranch_scc1 {name}_npf')
        p(f's_load_dwordx2 s[92:93], s[0:1], {ARG["wo"]}')
        p('s_lshr_b32 s14, s14, 3')
        p('s_lshl_b32 s14, s14, 2')
        p('s_add_u32 s14, s14, s15')
        p('s_sub_u32 s14, s14, 4')
        p(f's_mul_i32 s14, s14, {640*128}')
        p('s_and_b32 s15, s2, 7')
        p('s_lshr_b32 s15, s15, 1')
        p('s_mul_i32 s15, s15, 1310720')
        p('s_add_u32 s14, s14, s15')
        p(f's_mul_i32 s15, s{sW}, {160*128}')
        p('s_add_u32 s14, s14, s15')
        p('s_waitcnt lgkmcnt(0)')
        for i in range(3):
            p(f'v_add_u32 v251, {64*i}, v0')
            p(f'v_min_u32 v251, 159, v251')
            p(f'v_lshlrev_b32 v251, 7, v251')
            p(f'v_add_u32 v251, s14, v251')
            p(f'global_load_dword v250, v251, s[92:93]')
        p.label(f'{name}_npf')
    FA, FB = (10, 11) if FP == 'db' else (252, 253)
    F2, F3, F4, F5 = (47, 48, 49, 51) if FP in ('db', 'S') else (92, 93, 94, 95)
    def ffn_loads():
        p(f's_mov_b32 s{F5}, 0')
        p('s_lshr_b32 s14, s2, 3')
        p(f's_and_b32 s{F2}, s14, 7')
        p(f's_cmp_lt_u32 s{F2}, 6')
        p(f's_cbranch_scc1 {name}_nffn')
        p('s_lshr_b32 s14, s2, 6')
        p('s_lshl_b32 s14, s14, 1')
        p(f's_add_u32 s14, s14, s{F2}')
        p('s_sub_u32 s14, s14, 6')
        p('s_lshl_b32 s14, s14, 3')
        p('s_and_b32 s15, s2, 7')
        p(f's_add_u32 s{F4}, s14, s15')
        p(f's_cmp_ge_u32 s{F4}, 54')
        p(f's_cbranch_scc1 {name}_nffn')
        p(f's_mov_b32 s{F5}, 1')
        p(f's_load_dwordx2 s[4:5], s[0:1], {ARG["wg"]}')
        p(f's_load_dwordx2 s[8:9], s[0:1], {ARG["wu"]}')
        p(f's_load_dwordx2 s[12:13], s[0:1], {ARG["wd"]}')
        p(f'v_lshrrev_b32 v{FA}, 2, v0')
        p(f'v_mul_u32_u24 v{FA}, 3456, v{FA}')
        p(f'v_and_b32 v{FB}, 3, v0')
        p(f'v_lshl_add_u32 v{FA}, v{FB}, 4, v{FA}')
        p('s_waitcnt lgkmcnt(0)')
        for sr, sz in ((4, 640*1728*2), (8, 640*1728*2), (12, 1728*640*2)):
            p(f's_mov_b32 s{sr+2}, {sz}'); p(f's_mov_b32 s{sr+3}, 0x00020000')
        p(f's_mul_i32 s{F2}, s{sW}, {160*3456}')
        p(f's_lshl_b32 s{F3}, s{F4}, 6')
        p(f's_add_u32 s{F2}, s{F2}, s{F3}')
        for i in range(10):
            for mat, sr in enumerate((4, 8)):
                r = 132 + (mat*10 + i)*4
                p(f'buffer_load_dwordx4 a[{r}:{r+3}], v{FA}, s[{sr}:{sr+3}], s{F2} offen')
            p(f's_add_u32 s{F2}, s{F2}, {16*3456}')
        p(f's_mul_i32 s{F2}, s{F4}, {32*1280}')
        p(f's_mul_i32 s{F3}, s{sW}, 10240')
        p(f's_add_u32 s{F2}, s{F2}, s{F3}')
        for i in range(10):
            r = 132 + (20 + i)*4
            p(f'buffer_load_dwordx4 a[{r}:{r+3}], v{vLane16}, s[12:15], s{F2} offen offset:{(i % 4)*1024}')
            if i % 4 == 3: p(f's_add_u32 s{F2}, s{F2}, 4096')
        p.label(f'{name}_nffn')
    def row_reduce(reg, op, tmp):
        for sw in ('v_permlane16_swap_b32', 'v_permlane32_swap_b32'):
            p(f'v_mov_b32 v{tmp}, v{reg}')
            p('s_nop 1')
            p(f'{sw} v{reg}, v{tmp}')
            p('s_nop 1')
            p(f'{op} v{reg}, v{reg}, v{tmp}')
    def epilogue(cols, sTile, flagbit):
        p('s_nop 7')
        for c in cols: row_reduce(vL + c, 'v_add_f32', vU)
        if cols == LC:
            for c in cols: p(f'v_add_f32 v{vL+c}, v{vL+c}, v{Lm(c)}')
        p(f'v_max_f32 v{vU}, v{vL+cols[0]}, v{vL+cols[1]}')
        p(f'v_cmp_nle_f32 vcc, v{vU}, v{vU+1}'.replace(f'v{vU+1}', f'v{vU+1}') if False else f'v_cmp_nge_f32 vcc, s{sLim}, v{vU}')
        p('s_nop 1')
        p(f's_cmp_lg_u64 vcc, 0')
        p(f's_cselect_b32 s{sT0}, {flagbit}, 0')
        p(f's_or_b32 s{sFlag}, s{sFlag}, s{sT0}')
        for c in cols: p(f'v_rcp_f32 v{vL+c}, v{vL+c}')
        store_ctx(cols, sTile)
    def store_ctx(cols, sTile):
        p(f's_lshl_b32 s{sCtx}, s{sTile}, 3')
        p(f's_lshl_b32 s{sT0}, s{sW}, 1')
        p(f's_add_u32 s{sCtx}, s{sCtx}, s{sT0}')
        p(f's_lshl_b32 s{sCtx}, s{sCtx}, 5')
        p(f's_add_u32 s{sCtx}, s{sCtx}, s{sH}')
        p(f's_lshl_b32 s{sCtx}, s{sCtx}, 12')
        p(f's_add_u32 s{sT1}, s{sCtx}, {32*4096}')
        for i, c in enumerate(cols):
            for ks in range(4):
                o = O(c, 2*ks)
                for k in range(8): p(f'v_mul_f32 v{o+k}, v{o+k}, v{vL+c}')
                for k in range(4): p(f'v_cvt_pk_bf16_f32 v{o+k}, v{o+2*k}, v{o+2*k+1}')
                p(f'buffer_store_dwordx4 v[{o}:{o+3}], v{vLane16}, s[{S_CTX}:{S_CTX+3}], s{sCtx if i == 0 else sT1} offen offset:{ks*1024} {CTX_FLAGS}')

    p(f's_mov_b32 s{sSlotR}, 0')
    p(f'v_mov_b32 v{vRd}, v{vLane16}')
    for r in range(64, 128): p(f'v_mov_b32 v{vO+r}, 0')
    p(f's_lshl_b32 s{sDd}, s{sTS}, 2')
    p(f's_add_u32 s{sDd}, s{sDd}, s{sW}')
    p(f's_sub_u32 s{sDd}, 0, s{sDd}')
    emit(mask_ops(SC))
    p.wait_vm('U-1')
    p('s_barrier')
    p.stamp('U-1 ready')
    p.lgq = []; p.lg_ret = -1
    for f in range(8): put(rdK(0, f))
    p('s_waitcnt lgkmcnt(0)')
    q0 = qk_mfmas([0, 1, 2, 3], 0, cin_mask(SC))
    rest = unitK(2, 'U1') + unitV(2, 'U1')
    Rq = Region(q0)
    spread(Rq, rest, 0, 31)
    Rq.emit(p, put)
    p(f's_add_u32 s{sSlotP}, s{sLW}, {4*32768}')
    p.stamp('qk0 done')
    for f in range(8): put(rdK(1, f))
    for step in range(4):
        for c in range(4):
            S = vS + 8*c; t = vU + c
            if step == 0: p(f'v_max3_f32 v{t}, v{S}, v{S+1}, v{S+2}')
            elif step == 1: p(f'v_max3_f32 v{t}, v{t}, v{S+3}, v{S+4}')
            elif step == 2: p(f'v_max3_f32 v{t}, v{t}, v{S+5}, v{S+6}')
            else: p(f'v_max_f32 v{t}, v{t}, v{S+7}')
    for sw in ('v_permlane16_swap_b32', 'v_permlane32_swap_b32'):
        for c in range(4): p(f'v_mov_b32 v{vU+4+c}, v{vU+c}')
        for c in range(4): p(f'{sw} v{vU+c}, v{vU+4+c}')
        p('s_nop 0')
        for c in range(4): p(f'v_max_f32 v{vU+c}, v{vU+c}, v{vU+4+c}')
    for r in range(8):
        for c in range(4): p(f'v_sub_f32 v{vS+8*c+r}, v{vS+8*c+r}, v{vU+c}')
    for c in range(4):
        for r in range(4): p(f'v_sub_f32 v{vNeg+4*c+r}, 0, v{vU+c}')
    def run_window(W):
        for ops in W:
            for o in ops: p(o)
            if len(ops) == 1 and ops[0].startswith('v_exp'): p('s_nop 0')
    u2 = unitK(3, 'U2') + unitV(3, 'U2')
    for r in range(8):
        for c in range(3): p(f'v_exp_f32 v{vS+8*c+r}, v{vS+8*c+r}')
        while u2:
            it = u2.pop(0)
            put(it)
            if it[0] == 'm': break
            if ' m0,' in it[1]: p('s_nop 0')
    for it in u2: put(it)
    p('s_nop 0')
    for r in range(8):
        for c in range(3): p(f'v_add_f32 v{vL+c}, v{vL+c}, v{vS+8*c+r}')
    for k in range(4):
        for c in range(3): p(f'v_cvt_pk_bf16_f32 v{Pr(0, c)+k}, v{vS+8*c+2*k}, v{vS+8*c+2*k+1}')
    p(f's_mov_b32 s{sSlotR}, 32768')
    p(f'v_add_u32 v{vRd}, s{sSlotR}, v{vLane16}')
    if 'pp' not in opt: p.stamp('attn prologue done')
    p(f's_cmp_eq_u32 s{sTS}, 0')
    p(f's_cbranch_scc1 {name}_t0')
    p(f's_lshl_b32 s{sCnt}, s{sTS}, 1')
    p(f's_sub_u32 s{sCnt}, s{sCnt}, 1')
    p.label(f'{name}_dn')
    interval('D', f'dn', loop=True)
    p(f's_cbranch_scc1 {name}_dn')
    p(f's_sub_u32 s{sDd}, -1, s{sW}')
    interval('D', 'da', maskS=(False, True, True))
    p(f's_branch {name}_db')
    p.label(f'{name}_t0')
    p(f's_sub_u32 s{sDd}, 1, s{sW}')
    emit(mask_ops(SC))
    p('s_nop 1')
    p.label(f'{name}_db')
    if FP == 'db':
        p('s_waitcnt vmcnt(16)')
        p('s_barrier')
        ffn_loads()
        interval('D', 'db', maskS=(True, True, True), vm=None)
        p(f's_cmp_eq_u32 s{F5}, 0')
        p(f's_cbranch_scc1 {name}_dcw')
        p('s_waitcnt vmcnt(46)')
        p(f's_branch {name}_dcw2')
        p.label(f'{name}_dcw')
        p('s_waitcnt vmcnt(16)')
        p.label(f'{name}_dcw2')
        interval('T', 'dc', maskS=(True, False, False), vm=63)
    else:
        interval('D', 'db', maskS=(True, True, True))
        interval('T', 'dc', maskS=(True, False, False))
    epilogue(SC, sTS, 2)
    if FP == 'S':
        ffn_loads()
        p.lgq = ['K%d' % f for f in range(8)]; p.lg_ret = 7
    if 'pp' not in opt: (p.stamp('S done') if 'pq' not in opt else None)
    p(f's_sub_u32 s{sCnt}, s{sTL}, s{sTS}')
    p(f's_cmp_eq_u32 s{sCnt}, 1')
    p(f's_cbranch_scc1 {name}_sb')
    p(f's_sub_u32 s{sCnt}, s{sCnt}, 2')
    interval('S', 'sn1')
    p.label(f'{name}_sn')
    interval('S', 'sn2a', vm=8)
    interval('S', 'sn2b', vm=None, loop=True)
    p(f's_cbranch_scc1 {name}_sn')
    p(f's_sub_u32 s{sDd}, -1, s{sW}')
    interval('S', 'sa', maskL=(False, True, True))
    p.label(f'{name}_sb')
    interval('S', 'sb', maskL=(True, True, True))
    interval('E', 'sc', maskL=(True, False, False))
    epilogue(LC, sTL, 1)
    p.stamp('L done')
    p(f's_cmp_eq_u32 s{sFlag}, 0')
    p(f's_cbranch_scc1 {name}_fin')
    fallback(p, name, locals())
    p.label(f'{name}_fin')
    def ctx_publish():
        p('s_waitcnt vmcnt(0) lgkmcnt(0)')
        p('s_barrier')
        p(f's_cmp_lg_u32 s{sW}, 0')
        p(f's_cbranch_scc1 {name}_cpub')
        p(f's_lshl_b32 s14, s2, 2')
        p(f's_add_u32 s14, s14, 6144')
        p(f'v_mov_b32 v20, s{sTag}')
        p('v_mov_b32 v21, 0')
        p(f'buffer_store_dword v20, v21, s[{S_FL}:{S_FL+3}], s14 offen sc1')
        p.label(f'{name}_cpub')
        p.stamp('ctx pub')
        if PE: emit_prefetch()
        if FP == 'end': ffn_loads()
    import kt
    nerr += kt.gen_kt(name + '_t', p, prof, opt, ctx_publish)
    p.label(f'{name}_done')
    p('s_endpgm')
    def mk_policy(t0, nd, skip_s, ns, fb, wave0):
        def pol(ins, n):
            t = ins.args[0]
            if t.endswith('_done'): return False
            if t.endswith('_stageA'): return n % 3 != 0
            if t in (name + '_noln0', name + '_noln1'): return False
            if t in (name + '_notag', name + '_kvpub'): return not wave0
            if t == name + '_notag2': return True
            if t == name + '_nffn': return not wave0
            if t == name + '_dcw': return not wave0
            if t == name + '_cpub': return not wave0
            if t.startswith(name + '_t'):
                if '_poll' in t and t.endswith('_ok'): return True
                if '_poll' in t and t.endswith('_top'): return False
                u = t[len(name) + 2:]
                if u in ('_w123', '_w1', '_nosig', '_w4', '_w5', '_cw'): return not wave0
                return False
            if t == name + '_nz': return True
            if t == name + '_nocode': return False
            if t == name + '_nopub': return True
            if t in (name + '_lnok', name + '_kok', name + '_vok', name + '_kpub', name + '_vpub'): return not wave0
            if t in (name + '_lnok2', name + '_kok2', name + '_vok2', name + '_krel', name + '_vrel'): return True
            if t.endswith('_t0'): return t0
            if t.endswith('_dn'): return (n % nd) != 0
            if t.endswith('_sb'): return skip_s
            if t.endswith('_sn'): return (n % ns) != 0
            if t.endswith('_fin'): return not fb
            if t.endswith('_fbloop'): return n % 3 != 0
            return False
        return pol
    for cfg in ([(False, 3, False, 3, False, True), (True, 2, False, 2, True, False), (False, 2, True, 2, False, True)] if (not opt or opt[0] in ('pp', 'pq', 'tl', 'tr', 'nocode', 'notlb', 'dbg') or opt[0].startswith('kv=')) and not any(o_.endswith('A') for o_ in opt) else []):
        seq = trace(p, mk_policy(*cfg))
        nerr += len(check_linear(seq, name + str(cfg)))
    return p, nerr

def fallback(p, name, L):
    g = L
    vS, vP, vE, vL, vU, vNeg, vCi, vO = g['vS'], g['vP'], g['vE'], g['vL'], g['vU'], g['vNeg'], g['vCi'], g['vO']
    aQ, aK, aV, vLane16, vNinf = g['aQ'], g['aK'], g['aV'], g['vLane16'], g['vNinf']
    S_KF, S_VF = g['S_KF'], g['S_VF']
    sFlag, sTL, sTS, sW, sH, sDd, sCnt, sT0, sT1, sT2 = (g[k] for k in ('sFlag', 'sTL', 'sTS', 'sW', 'sH', 'sDd', 'sCnt', 'sT0', 'sT1', 'sT2'))
    O = g['O']; mask_ops = g['mask_ops']; qk_mfmas = g['qk_mfmas']; pv_mfmas = g['pv_mfmas']; row_reduce = g['row_reduce']; store_ctx = g['store_ctx']
    put = g['put']
    p('s_waitcnt vmcnt(0) lgkmcnt(0)')
    for cols, sTile, bit, nm in (([2, 3], sTS, 2, 'S'), ([0, 1], sTL, 1, 'L')):
        p(f's_and_b32 s{sT0}, s{sFlag}, {bit}')
        p(f's_cmp_eq_u32 s{sT0}, 0')
        p(f's_cbranch_scc1 {name}_fbskip{nm}')
        for c in cols:
            p(f'v_mov_b32 v{vL+c}, 0')
            for r in range(32): p(f'v_mov_b32 v{vO+32*c+r}, 0')
            for r in range(4): p(f'v_mov_b32 v{vNeg+4*c+r}, 0')
        for i in range(2): p(f'v_mov_b32 v{vU+4+i}, v{vNinf}')
        p(f's_lshl_b32 s{sDd}, s{sTile}, 2')
        p(f's_add_u32 s{sDd}, s{sDd}, s{sW}')
        p(f's_add_u32 s{sCnt}, s{sDd}, 1')
        p(f's_sub_u32 s{sDd}, 0, s{sDd}')
        p(f's_lshl_b32 s{sT2}, s{sH}, 19')
        p.label(f'{name}_fb{nm}_fbloop')
        for f in range(8):
            p(f's_add_u32 s{sT1}, s{sT2}, {(f // 4)*4096}')
            p(f'buffer_load_dwordx4 a[{aK+4*f}:{aK+4*f+3}], v{vLane16}, s[{S_KF}:{S_KF+3}], s{sT1} offen offset:{(f % 4)*1024}')
            p(f'buffer_load_dwordx4 a[{aV+4*f}:{aV+4*f+3}], v{vLane16}, s[{S_VF}:{S_VF+3}], s{sT1} offen offset:{(f % 4)*1024}')
        for it in mask_ops(cols): put(it)
        p('s_waitcnt vmcnt(0)')
        p('s_nop 1')
        for m in qk_mfmas(cols, 0, lambda c, kb: vCi + 8*(c - cols[0]) + 4*kb): p(m)
        p('s_nop 7')
        for i, c in enumerate(cols):
            S = vS + 8*i; t = vU + i; m = vU + 4 + i
            p(f'v_max3_f32 v{t}, v{S}, v{S+1}, v{S+2}')
            p(f'v_max3_f32 v{t}, v{t}, v{S+3}, v{S+4}')
            p(f'v_max3_f32 v{t}, v{t}, v{S+5}, v{S+6}')
            p(f'v_max_f32 v{t}, v{t}, v{S+7}')
            row_reduce(t, 'v_max_f32', vU + 6)
            p(f'v_max_f32 v{t}, v{t}, v{m}')
            p(f'v_sub_f32 v{vU+6}, v{m}, v{t}')
            p(f'v_exp_f32 v{vU+6}, v{vU+6}')
            p(f'v_mov_b32 v{m}, v{t}')
            p(f'v_mul_f32 v{vL+c}, v{vL+c}, v{vU+6}')
            for r in range(32): p(f'v_mul_f32 v{vO+32*c+r}, v{vO+32*c+r}, v{vU+6}')
            for r in range(8): p(f'v_sub_f32 v{S+r}, v{S+r}, v{t}')
            for r in range(8): p(f'v_exp_f32 v{S+r}, v{S+r}')
            p('s_nop 0')
            for r in range(8): p(f'v_add_f32 v{vL+c}, v{vL+c}, v{S+r}')
            for k in range(4): p(f'v_cvt_pk_bf16_f32 v{vP+4*c+k}, v{S+2*k}, v{S+2*k+1}')
        p('s_nop 1')
        for m in pv_mfmas(cols, 0): p(m)
        p('s_nop 7')
        p(f's_add_u32 s{sT2}, s{sT2}, 8192')
        p(f's_add_u32 s{sDd}, s{sDd}, 1')
        p(f's_sub_u32 s{sCnt}, s{sCnt}, 1')
        p(f's_cmp_lg_u32 s{sCnt}, 0')
        p(f's_cbranch_scc1 {name}_fb{nm}_fbloop')
        for c in cols: row_reduce(vL + c, 'v_add_f32', vU)
        for c in cols: p(f'v_rcp_f32 v{vL+c}, v{vL+c}')
        store_ctx(cols, sTile)
        p.label(f'{name}_fbskip{nm}')

if __name__ == '__main__':
    p, ne = gen_kf()
    print('instrs', p.count(), 'errors', ne)
```

```python
from common import *
from gx2 import *
from sched import *
from k1b import w_tile_setup, MF
from lnops import *
WS_FLG = 82*MiB

CTX_FLAGS = 'sc1'
LIM = 0x5d800000
NEGBIG = 0xff800000
opt_idx = [0]
TW, TF, PE = False, True, True
FP = 'db'
TA = False
LATE1 = False
CODE0 = False
PREFETCH = True

def gen_kf(name='front_kernel', prof=False, opt=()):
    p = P2(); p.prof = prof
    p.lenient = 'nordsA' in opt
    p.dbgmode = 'dbg' in opt
    p.stampset = set(['start', 'phase A done', 'q end', 'attn prologue done', 'L done', 'ctx ready', 'gemm end', 'key out', 'argmax ready', 'ffn atomics done'])
    if 'tr' in opt: p.stampset = set(['start', 'q end', 'pre check', 'kv ok', 'qk0 done', 'attn prologue done', 'L done', 'tail setup', 'ctx pub', 'ctx ready'])
    if 'tl' in opt: p.stampset = set(['start', 'L done', 'ctx ready', 'gemm end', 'signalled', 'partials ready', 'partials loaded', 'key out', 'argmax ready', 'ffn atomics done'])
    put = make_put(p)
    S_WQ, S_XNF, S_KF, S_VF, S_CTX = 16, 20, 24, 28, 32
    sM = 36
    sW, sH, sI = 44, 45, 46
    sT0, sT1, sT2 = 47, 48, 49
    sLW = 50
    sWoff = 51
    sXL, sXS = 52, 53
    sKb, sVb = 54, 55
    sHbase = 56
    sSlotP, sSlotR = 57, 58
    sTL, sTS = 59, 60
    sCnt = 61
    sDd = 62
    sFlag = 63
    sCtx = 64
    sLim = 65
    sScale = 61
    sSel = 4
    vLane16 = 1; vRd = 2; vNinf = 3
    vOffW = 4
    vLPW = 8; vT = 9
    vNeg = 16; vCi = 32; vS = 48; vP = 80; vE = 112; vL = 116; vU = 120
    vCW = 120
    vWF = 48
    vO = 128
    aQ = 0; aK = 64; aV = 96; aX = 128
    O = lambda c, db: vO + 32*c + 4*db
    Sr = lambda sc, kb: vS + 8*sc + 4*kb
    Pr = lambda par, c: vP + 16*par + 4*c
    NSLOT = 5

    S_CKV, S_X, S_DBG = 4, 8, 88
    S_WUK, S_WUV = 36, 40
    S_FL = 68
    sTag = 3
    sXcc = 67; sSame = 66
    sASum = sFlag
    sAoff = sDd; sWr = sCtx; sAr = sLim; sWp = sKb; sAp = sVb; sKst = sSlotP
    vOffA = 16
    vLPA = 20; vCA = 21
    vWK = 32; vWV = 64; vAct = 128
    SPIN = 1 << 16
    p(f's_cmp_ge_u32 s2, 256')
    p(f's_cbranch_scc1 {name}_done')
    p.stamp('start')
    if CODE0 and 'nocode' not in opt:
        p('s_lshr_b32 s14, s2, 3')
        p('s_cmp_ge_u32 s14, 12')
        p(f's_cbranch_scc1 {name}_nocode')
        p('s_getpc_b64 s[76:77]')
        p.label(f'{name}_pc')
        p('s_lshl_b32 s14, s14, 13')
        p('v_lshlrev_b32 v9, 5, v0')
        p('v_add_u32 v9, s14, v9')
        p(f'v_min_u32 v9, code_end_all-{name}_pc-4, v9')
        p('v_and_b32 v9, -4, v9')
        p('global_load_dword v23, v9, s[76:77]')
        p.label(f'{name}_nocode')
    p(f's_load_dwordx2 s[84:85], s[0:1], {ARG["x"]}')
    p(f's_load_dwordx2 s[86:87], s[0:1], {ARG["ckv"]}')
    p(f's_load_dwordx4 s[88:91], s[0:1], {ARG["wuk"]}')
    p(f's_load_dwordx2 s[92:93], s[0:1], {ARG["wq"]}')
    p(f's_load_dwordx4 s[96:99], s[0:1], {ARG["dbg"]}')
    p('s_and_b32 s14, s2, 7')
    p('s_lshr_b32 s15, s2, 3')
    p(f's_lshr_b32 s{sH}, s15, 3')
    p(f's_lshl_b32 s14, s14, 2')
    p(f's_add_u32 s{sH}, s{sH}, s14')
    p(f's_and_b32 s{sI}, s15, 7')
    p('v_lshrrev_b32 v2, 6, v0')
    p('v_and_b32 v0, 63, v0')
    p(f'v_readfirstlane_b32 s{sW}, v2')
    p(f'v_lshlrev_b32 v{vLane16}, 4, v0')
    p(f's_getreg_b32 s{sXcc}, hwreg(HW_REG_XCC_ID, 0, 4)')
    w_tile_setup(p, vOffW, vLPW, vT)
    p(f'v_lshrrev_b32 v{vT}, 3, v0')
    p(f'v_lshlrev_b32 v{vT}, 10, v{vT}')
    p(f'v_lshrrev_b32 v{vT+1}, 4, v0')
    p(f'v_and_b32 v{vT+2}, 7, v0')
    p(f'v_xor_b32 v{vT+2}, v{vT+2}, v{vT+1}')
    p(f'v_lshl_add_u32 v{vOffA}, v{vT+2}, 4, v{vT}')
    p(f'v_xor_b32 v{vT+3}, 4, v{vT+2}')
    p(f'v_lshl_add_u32 v{vOffA+1}, v{vT+3}, 4, v{vT}')
    p(f'v_add_u32 v{vOffA+2}, {2*7168}, v{vOffA}')
    p(f'v_add_u32 v{vOffA+3}, {3*7168}, v{vOffA+1}')
    p(f'v_add_u32 v{vOffA+1}, {1*7168}, v{vOffA+1}')
    p(f'v_and_b32 v{vT}, 15, v0')
    p(f'v_bfe_u32 v{vT+1}, v0, 1, 3')
    p(f'v_lshrrev_b32 v{vT+2}, 4, v0')
    p(f'v_xor_b32 v{vT+1}, v{vT+1}, v{vT+2}')
    p(f'v_lshlrev_b32 v{vT}, 7, v{vT}')
    p(f'v_lshl_add_u32 v{vLPA}, v{vT+1}, 4, v{vT}')
    p(f's_lshl_b32 s{sLW}, s{sW}, 12')
    p(f's_lshl_b32 s{sWoff}, s{sW}, 17')
    p(f's_lshl_b32 s{sT1}, s{sH}, 8')
    p(f's_add_u32 s{sWoff}, s{sWoff}, s{sT1}')
    p(f's_lshl_b32 s{sT0}, s{sI}, 8')
    p(f's_lshl_b32 s{sT1}, s{sW}, 6')
    p(f's_add_u32 s{sT0}, s{sT0}, s{sT1}')
    p(f's_lshl_b32 s{sAoff}, s{sT0}, 10')
    sK0 = sXL; sLA = sXS
    p(f's_lshl_b32 s{sHbase}, s{sH}, 6')
    p(f's_lshr_b32 s{sT1}, s{sT0}, 5')
    p(f's_add_u32 s{sHbase}, s{sHbase}, s{sT1}')
    p(f's_lshl_b32 s{sHbase}, s{sHbase}, 13')
    p(f's_lshl_b32 s{sLA}, s{sW}, 13')
    p('s_waitcnt lgkmcnt(0)')
    srd(p, S_CKV, 86, 2048*512*2)
    srd(p, S_WUK, 88, 512*4096*2)
    srd(p, S_WUV, 90, 512*4096*2)
    SL = 16384
    ACT0 = 98304
    def emit(L):
        prev = None
        for it in L:
            if it[0] == 'm' and prev is not None and prev[0] == 's' and ' m0,' in prev[1]: put(('s', 's_nop 0'))
            put(it); prev = it
    def dmaW_static(st):
        base = (st % 3)*32768; L = []
        for mi, sr in enumerate((S_WUK, S_WUV)):
            L += [('s', f's_add_u32 s{sT0}, s{sWoff}, {st*64*8192}'), ('s', f's_add_u32 m0, s{sLW}, {base + mi*SL}')]
            for i in range(4): L.append(('m', f'buffer_load_dwordx4 v{vOffW+i}, s[{sr}:{sr+3}], s{sT0} offen offset:{1024*i} lds', f'W{st}', ('W', base + mi*SL, base + (mi+1)*SL, True)))
        return L
    def dmaA_static(st, adj=0):
        base = ACT0 + (st % 2)*32768; L = []
        for half in range(2):
            L += [('s', f's_add_u32 s{sT1}, s{sAoff}, {(st*128 + 32768*half + adj) & 0xffffffff}'), ('s', f's_add_u32 m0, s{sLA}, {base + 4096*half}')]
            for i in range(4): L.append(('m', f'buffer_load_dwordx4 v{vOffA+i}, s[{S_CKV}:{S_CKV+3}], s{sT1} offen offset:{1024*i} lds', f'A{st}', ('W', base, base + 32768, False)))
        return L
    if 'pp' in opt: p.stamp('setup')
    emit(dmaA_static(0)); emit(dmaW_static(0))
    if 'pp' in opt: p.stamp('A0W0 issued')
    srd(p, S_X, 84, 2048*640*2)
    srd(p, S_WQ, 92, 640*4096*2)
    srd(p, S_XNF, 98, SZ_XNF, WS_XNF)
    srd(p, S_KF, 98, SZ_KF, WS_KF)
    srd(p, S_VF, 98, SZ_KF, WS_VF)
    srd(p, S_CTX, 98, SZ_CTX, WS_CTX)
    srd(p, S_FL, 98, 8192, WS_FLG)
    X = 160; RAW = 200; vXo = 220; vXn = 221; LT = 224
    p(f's_lshl_b32 s{sT1}, s2, 3')
    p(f's_and_b32 s14, s{sW}, 1')
    p(f's_lshl_b32 s14, s14, 2')
    p(f's_add_u32 s{sT1}, s{sT1}, s14')
    p(f'v_and_b32 v{vT}, 3, v0')
    p(f'v_add_u32 v{vT}, s{sT1}, v{vT}')
    p(f'v_lshrrev_b32 v{vT+1}, 2, v0')
    p(f'v_mul_u32_u24 v{vXo}, 1280, v{vT}')
    p(f'v_lshl_add_u32 v{vXo}, v{vT+1}, 4, v{vXo}')
    p(f'v_lshrrev_b32 v{vXn}, 4, v{vT}')
    p(f'v_mul_u32_u24 v{vXn}, 20, v{vXn}')
    p(f'v_lshrrev_b32 v{vT+2}, 2, v{vT+1}')
    p(f'v_add_u32 v{vXn}, v{vXn}, v{vT+2}')
    p(f'v_lshlrev_b32 v{vXn}, 10, v{vXn}')
    p(f'v_and_b32 v{vT+2}, 3, v{vT+1}')
    p(f'v_lshlrev_b32 v{vT+2}, 4, v{vT+2}')
    p(f'v_and_b32 v{vT+3}, 15, v{vT}')
    p(f'v_add_u32 v{vT+2}, v{vT+2}, v{vT+3}')
    p(f'v_lshl_add_u32 v{vXn}, v{vT+2}, 4, v{vXn}')
    for i in range(5):
        p(f'buffer_load_dwordx4 v[{RAW+4*i}:{RAW+4*i+3}], v{vXo}, s[{S_X}:{S_X+3}], 0 offen offset:{256*i}')
    S_LNS = 96
    if not CODE0:
        if 'nocode' not in opt:
            p(f's_lshr_b32 s14, s2, 3')
            p(f's_cmp_ge_u32 s14, 12')
            p(f's_cbranch_scc1 {name}_nocode')
            p(f's_cmp_lg_u32 s{sW}, 3')
            p(f's_cbranch_scc1 {name}_nocode')
            p('s_getpc_b64 s[76:77]')
            p.label(f'{name}_pc')
            p(f's_lshl_b32 s14, s14, 13')
            p(f'v_lshlrev_b32 v{vT}, 7, v0')
            p(f'v_add_u32 v{vT}, s14, v{vT}')
            p(f'v_min_u32 v{vT}, code_end_all-{name}_pc-4, v{vT}')
            p(f'v_and_b32 v{vT}, -4, v{vT}')
            p(f'global_load_dword v{vT+2}, v{vT}, s[76:77]')
            p.label(f'{name}_nocode')
    if 'notlb' not in opt:
        p('s_mov_b32 s76, s98'); p('s_mov_b32 s77, s99'); p(f's_mov_b32 s78, {96*MiB}'); p('s_mov_b32 s79, 0x00020000')
        p(f'v_mov_b32 v{vT}, {WS_FLG}')
        p(f's_add_u32 s14, s{sHbase}, {WS_KF}'); p(f'v_writelane_b32 v{vT}, s14, 1')
        p(f's_add_u32 s14, s{sHbase}, {WS_VF}'); p(f'v_writelane_b32 v{vT}, s14, 2')
        p(f's_lshl_b32 s15, s{sH}, 19')
        for k in range(2):
            p(f's_add_u32 s14, s15, {WS_KF + k*524160}'); p(f'v_writelane_b32 v{vT}, s14, {3 + 2*k}')
            p(f's_add_u32 s14, s15, {WS_VF + k*524160}'); p(f'v_writelane_b32 v{vT}, s14, {4 + 2*k}')
        p(f's_mov_b32 s14, {WS_XNF}'); p(f'v_writelane_b32 v{vT}, s14, 7')
        p(f's_mov_b32 s14, {WS_XNF + 2*MiB}'); p(f'v_writelane_b32 v{vT}, s14, 8')
        p(f's_sub_u32 s14, 15, s{sI}'); p('s_lshl_b32 s14, s14, 20'); p(f's_add_u32 s14, s14, {WS_CTX}'); p(f'v_writelane_b32 v{vT}, s14, 9')
        p(f's_lshl_b32 s14, s{sI}, 20'); p(f's_add_u32 s14, s14, {WS_CTX}'); p(f'v_writelane_b32 v{vT}, s14, 10')
        p(f'buffer_load_dword v{vT+2}, v{vT}, s[76:79], 0 offen')
    if 'pp' in opt: p.stamp('x issued')
    srd(p, S_DBG, 96, 256)
    p('v_mov_b32 v26, 0')
    p('s_or_b32 s14, s2, 0')
    p(f's_add_u32 s14, s2, s{sW}')
    p('s_cmp_lg_u32 s14, 0')
    p(f's_cbranch_scc1 {name}_notag')
    p('s_memrealtime s[92:93]')
    p('s_waitcnt lgkmcnt(0)')
    p('s_or_b32 s92, s92, 1')
    p('v_mov_b32 v24, s92')
    p(f'buffer_store_dword v24, v26, s[{S_DBG}:{S_DBG+3}], 0 offen sc1')
    p.label(f'{name}_notag')
    if 'pp' in opt: p.stamp('tag issued')
    if not LATE1:
        emit(dmaA_static(1)); emit(dmaW_static(1))
    (p.stamp('dma issued') if 'pq' not in opt else None)
    p('s_cmp_lg_u32 s2, 0')
    p(f's_cbranch_scc1 {name}_nz')
    p(f's_add_u32 s76, s98, {WS_YACC}')
    p('s_addc_u32 s77, s99, 0')
    p(f's_mov_b32 s78, {SZ_ZERO}')
    p('s_mov_b32 s79, 0x00020000')
    for r in range(4): p(f'v_mov_b32 v{28+r}, 0')
    p(f's_mul_i32 s14, s{sW}, 7168')
    for i in range(7):
        p(f'buffer_store_dwordx4 v[28:31], v{vLane16}, s[76:79], s14 offen sc1')
        p(f's_add_u32 s14, s14, 1024')
    p.label(f'{name}_nz')
    p(f's_add_u32 s96, s98, {WS_XNF}')
    p('s_addc_u32 s97, s99, 0')
    p(f's_mov_b32 s98, {SZ_XNF}')
    p('s_mov_b32 s99, 0x00020000')
    p(f's_cmp_lt_u32 s{sW}, 2')
    p('s_cselect_b32 s98, s98, 0')
    p('s_waitcnt vmcnt(0)' if LATE1 else 's_waitcnt vmcnt(16)')
    p('s_barrier')
    (p.stamp('B0') if 'pq' not in opt else None)
    def rd_act(buf, kin, tb, lab):
        r = vAct + 16*buf + 4*tb
        return ('r', f'ds_read_b128 v[{r}:{r+3}], v{vCA+kin} offset:{2048*tb}', lab)
    def rd_wA(mi, db, kin, lab):
        r = (vWK if mi == 0 else vWV) + 4*db
        return [('r', f'ds_read_b64_tr_b16 v[{r+2*h}:{r+2*h+1}], v{vCW+db} offset:{mi*SL + 8192*kin + 1024*h}', lab) for h in range(2)]
    updA = [('v', f'v_add_u32 v{vCA}, s{sAr}, v{vLPA}'), ('v', f'v_xor_b32 v{vCA+1}, 64, v{vCA}')]
    updWd = [('v', f'v_add_u32 v{vCW}, s{sWr}, v{vLPW}')] + [('v', f'v_xor_b32 v{vCW+db}, {db*32}, v{vCW}') for db in range(1, 8)]
    KA = lambda tb, db: (tb*8 + db)*4
    VA = lambda tb, db: 128 + ((tb >> 1)*16 + db*2 + (tb & 1))*4
    def stageA_mfmas(first):
        L = []
        for kin in range(2):
            for db in range(8):
                for tb in range(4):
                    a = KA(tb, db); f = vAct + 16*kin + 4*tb
                    c = '0' if (first and kin == 0) else f'a[{a}:{a+3}]'
                    L.append(f'{MF} a[{a}:{a+3}], v[{vWK+4*db}:{vWK+4*db+3}], v[{f}:{f+3}], {c}')
                for tb in range(4):
                    a = VA(tb, db); f = vAct + 16*kin + 4*tb
                    c = '0' if (first and kin == 0) else f'a[{a}:{a+3}]'
                    L.append(f'{MF} a[{a}:{a+3}], v[{f}:{f+3}], v[{vWV+4*db}:{vWV+4*db+3}], {c}')
        return L
    GA = lambda kin, db, m: kin*64 + db*8 + m
    def spread(R, L, g0, g1):
        nm = sum(1 for x in L if x[0] in ('m', 'l', 'st'))
        step = max(1, (g1 - g0) // max(nm, 1))
        g = g0; cnt = 0; prev = None
        for it in L:
            e = max(g, g0 + cnt*step - (2 if it[0] == 's' else 0))
            if it[0] == 'm' and prev is not None and prev[0] == 's' and ' m0,' in prev[1]: e = max(e, gprev + 1)
            g = R.place(it, e, g1); gprev = g; prev = it
            if it[0] in ('m', 'l', 'st'): cnt += 1; g += 1
    def stageA(kind, dmaA_items, dmaB_items, barlabs, next_reads=None, mid=None, first=False, bend=None):
        R = Region(stageA_mfmas(first))
        BG = GA(1, 0, 7)
        R.S[BG].append(('bar', barlabs))
        if mid: R.S[BG].extend(mid)
        if next_reads is None:
            R.S[GA(1, 0, 1)].append(('s', f's_add_u32 s{sWr}, s{sWr}, 32768'))
            R.S[GA(1, 0, 2)].append(('s', f's_cmp_ge_u32 s{sWr}, 98304\ns_cselect_b32 s{sWr}, 0, s{sWr}'))
            R.S[GA(1, 0, 3)].append(('s', f's_sub_u32 s{sAr}, s{sASum}, s{sAr}'))
            R.stream(updA + updWd, GA(1, 0, 4), GA(1, 2, 0))
        else:
            R.stream(next_reads[0], GA(1, 0, 4), GA(1, 2, 0))
        for kin in range(2):
            for db in range(8):
                for mi in range(2):
                    if kin == 0 and db == 0 and mi == 0: continue
                    labs = [f'w{kin}_{mi}_{db}'] + ([f'act{kin}'] if (db == 0 and mi == 0) else [])
                    R.place(('wlg', labs), GA(kin, db, 4*mi) - 1, force=True)
        for db in range(8):
            for mi in range(2):
                rr = rd_wA(mi, db, 1, f'w1_{mi}_{db}')
                e = GA(0, db, 4*mi + 3)
                g = R.place(rr[0], e, GA(1, 0, 0)); R.place(rr[1], min(g + 1, GA(1, 0, 0)), GA(1, 0, 0))
        for tb in range(4): R.place(rd_act(1, 1, tb, 'act1'), GA(0, 1, 1) + 5*tb)
        if next_reads is None:
            for db in range(8):
                for mi in range(2):
                    rr = rd_wA(mi, db, 0, f'n0_{mi}_{db}')
                    e = max(GA(1, db, 4*mi + 3), GA(1, 2, 1))
                    g = R.place(rr[0], e); R.place(rr[1], g + 1)
            for tb in range(4): R.place(rd_act(0, 0, tb, 'nact0'), GA(1, 2, 2) + 5*tb)
        else:
            for (it, e) in next_reads[1]: R.place(it, max(e, GA(1, 2, 1)))
        if 'nodmaA' in opt and kind in ('s0', 's1', 'loop'): dmaA_items = [x for x in dmaA_items if x[0] != 'm']; dmaB_items = [x for x in dmaB_items if x[0] != 'm']
        if 'nowA' in opt and kind in ('s0', 's1', 'loop'):
            for g in range(R.n): R.S[g] = [x for x in R.S[g] if x[0] != 'wlg']
        if 'nordsA' in opt and kind in ('s0', 's1', 'loop'):
            for g in range(R.n): R.M[g] = []; R.S[g] = [x for x in R.S[g] if x[0] != 'wlg']
        spread(R, dmaA_items, 1, BG - 2)
        spread(R, dmaB_items, BG + 1, bend if bend else R.n - 2)
        return R
    def dyn_dmaW():
        L = []
        for mi, sr in enumerate((S_WUK, S_WUV)):
            L += [('s', f's_add_u32 m0, s{sWp}, {mi*SL}')]
            for i in range(4): L.append(('m', f'buffer_load_dwordx4 v{vOffW+i}, s[{sr}:{sr+3}], s{sKst} offen offset:{1024*i} lds', 'Wn', None))
        L += [('s', f's_add_u32 s{sKst}, s{sKst}, {64*8192}'), ('s', f's_add_u32 s{sWp}, s{sWp}, 32768'),
              ('s', f's_cmp_ge_u32 s{sWp}, 98304\ns_cselect_b32 s{sWp}, s{sLW}, s{sWp}')]
        return L
    def dyn_dmaA():
        L = []
        for half in range(2):
            L += [('s', f's_add_u32 s{sT1}, s{sAoff}, {32768*half}'), ('s', f's_add_u32 m0, s{sAp}, {4096*half}')]
            for i in range(4): L.append(('m', f'buffer_load_dwordx4 v{vOffA+i}, s[{S_CKV}:{S_CKV+3}], s{sT1} offen offset:{1024*i} lds', 'An', None))
        L += [('s', f's_add_u32 s{sAoff}, s{sAoff}, 128'), ('s', f's_sub_u32 s{sAp}, s{sASum}, s{sAp}')]
        if TA: L.append(('l', f'buffer_load_dword v31, v30, s[{S_CKV}:{S_CKV+3}], s{sAoff} offen', 'TCH'))
        return L
    p('v_lshlrev_b32 v30, 10, v0')
    p(f's_mov_b32 s{sWr}, 0')
    p(f's_add_u32 s{sAr}, s{sLA}, {ACT0}')
    p(f's_add_u32 s{sWp}, s{sLW}, 65536')
    p(f's_add_u32 s{sAp}, s{sLA}, {ACT0}')
    p(f's_lshl_b32 s{sASum}, s{sAp}, 1')
    p(f's_add_u32 s{sASum}, s{sASum}, 32768')
    p(f's_add_u32 s{sKst}, s{sWoff}, {2*64*8192}')
    p(f's_add_u32 s{sAoff}, s{sAoff}, 256')
    emit(updA + updWd)
    p.lgq = []; p.lg_ret = -1
    for tb in range(4): put(rd_act(0, 0, tb, 'act0'))
    for db in range(8):
        for mi in range(2): emit(rd_wA(mi, db, 0, f'w0_{mi}_{db}'))
    def next_order(R):
        L = []
        for g in range(R.n):
            for it in R.M[g]:
                if it[0] == 'r' and (it[2].startswith('n0_') or it[2] == 'nact0'):
                    L.append('act0' if it[2] == 'nact0' else 'w0_' + it[2][3:])
        return L
    order = [None]
    def relabel():
        p.lgq = list(order[0]); p.lg_ret = -1
    def bar_raw(n):
        if 'nobarA' in opt: return ('w', f's_waitcnt vmcnt({n}) lgkmcnt(0)')
        return ('w', f's_waitcnt vmcnt({n}) lgkmcnt(0)\ns_barrier')
    BG = GA(1, 0, 7)
    def fix_bar(R, n, extra=()):
        R.S[BG] = [bar_raw(n), ('call', lambda: p.lg_all())] + list(extra) + [x for x in R.S[BG] if x[0] != 'bar']
    def red64x4(r):
        L = []
        for sh in (8, 4): L += ['s_nop 1', f'v_add_f32_dpp v{r}, v{r}, v{r} row_ror:{sh} row_mask:0xf bank_mask:0xf']
        for sw in ('v_permlane16_swap_b32', 'v_permlane32_swap_b32'):
            L += [f'v_mov_b32 v{LT+6}, v{r}', 's_nop 1', f'{sw} v{r}, v{LT+6}', 's_nop 1', f'v_add_f32 v{r}, v{r}, v{LT+6}']
        return L
    lnops = []
    for i in range(5): lnops += unpack8(RAW + 4*i, X + 8*i)
    lnops += ln_stream(X, 40, LT, red64x4, scale='0x3e0293ee')
    ln = [('v', x) for x in lnops]
    for i in range(5):
        ln.append(('s', f's_mov_b32 s14, {4096*i}'))
        ln.append(('st', f'buffer_store_dwordx4 v[{X+4*i}:{X+4*i+3}], v{vXn}, s[{S_LNS}:{S_LNS+3}], s14 offen sc1'))
    half = len(ln) // 2
    def tag_read():
        p('s_mov_b32 s14, 0')
        p.label(f'{name}_tagpoll')
        p(f'v_readfirstlane_b32 s{sTag}, v24')
        p('s_add_u32 s14, s14, 1')
        p('s_nop 2')
        p(f's_cmp_lg_u32 s{sTag}, 0')
        p(f's_cbranch_scc1 {name}_notag2')
        p(f's_cmp_ge_u32 s14, {SPIN}')
        p(f's_cbranch_scc1 {name}_notag2')
        p(f'buffer_load_dword v24, v26, s[{S_DBG}:{S_DBG+3}], 0 offen sc1')
        p('s_waitcnt vmcnt(0)')
        p(f's_branch {name}_tagpoll')
        p.label(f'{name}_notag2')
    def pub_ln():
        p(f's_cmp_lg_u32 s{sCnt}, {1 if TA else 0}')
        p(f's_cbranch_scc1 {name}_nopub')
        p(f's_cmp_lg_u32 s{sW}, 0')
        p(f's_cbranch_scc1 {name}_nopub')
        p(f's_lshl_b32 s14, s2, 3')
        p(f'v_mov_b32 v24, s{sTag}')
        p(f'v_mov_b32 v25, s{sXcc}')
        p('v_mov_b32 v26, 0')
        p(f'buffer_store_dwordx2 v[24:25], v26, s[{S_FL}:{S_FL+3}], s14 offen sc1')
        p.label(f'{name}_nopub')
    R0 = stageA('s0', (dmaA_static(1, -256) + dmaW_static(1) if LATE1 else []) + dyn_dmaW(), dyn_dmaA(), None, first=True, bend=BG + 34)
    fix_bar(R0, 8)
    R0.place(('l', f'buffer_load_dword v24, v26, s[{S_DBG}:{S_DBG+3}], 0 offen sc1', 'TAG'), BG + 1, force=True)
    R0.period = 20; R0.stream(ln[:half], 4, None, pace=lambda k: 4 + (k*120)//half); R0.period = 16
    p.lgq = ['act0']*4 + [f'w0_{mi}_{db}' for db in range(8) for mi in range(2) for _ in range(2)]; p.lg_ret = -1
    put(('wlg', ['w0_0_0', 'act0']))
    R0.emit(p, put); order[0] = next_order(R0)
    R1_ = stageA('s1', dyn_dmaW(), dyn_dmaA(), None, bend=BG + 34)
    fix_bar(R1_, 9 if TA else 8, [('call', tag_read)])
    nv = [x for x in ln[half:] if x[0] == 'v']; tail = ln[half + len(nv):]
    R1_.period = 20; g = R1_.stream(ln[half:], 0, None, pace=lambda k: min((k*118)//(len(ln) - half), 200) if ln[half + k][0] == 'v' else BG + 2); R1_.period = 16
    relabel(); put(('wlg', ['w0_0_0', 'act0']))
    R1_.emit(p, put); order[0] = next_order(R1_)
    print('stage0/1 est', R0.total(), R1_.total())
    if 'ps' in opt: p.stamp('stage1 done')
    p(f's_mov_b32 s{sCnt}, 0')
    LA = f'{name}_stageA'
    p.label(LA)
    Rl = stageA('loop', dyn_dmaW(), dyn_dmaA(), None, bend=BG + 34)
    fix_bar(Rl, 9 if TA else 8, [('call', pub_ln)])
    Rl.T[Rl.n - 1] += [('s', f's_add_u32 s{sCnt}, s{sCnt}, 1'), ('s', f's_cmp_lt_u32 s{sCnt}, 4')]
    assert 'nordsA' in opt or next_order(Rl) == order[0], 'stage read order must be periodic'
    relabel()
    put(('wlg', ['w0_0_0', 'act0']))
    Rl.emit(p, put)
    print('stageA loop est', Rl.total(), 'overflow', Rl.over)
    p(f's_cbranch_scc1 {LA}')
    if 'pp' not in opt: (p.stamp('A loop done') if 'pq' not in opt else None)
    def dma_wq(c):
        L = [('s', f's_add_u32 s{sT0}, s{sWoff}, {c*64*8192}'), ('s', f's_add_u32 m0, s{sLW}, {c*SL}')]
        for i in range(4):
            L.append(('m', f'buffer_load_dwordx4 v{vOffW+i}, s[{S_WQ}:{S_WQ+3}], s{sT0} offen offset:{1024*i} lds', f'WQ{c}', None))
        return L
    relabel()
    put(('wlg', ['w0_0_0', 'act0']))
    flagld = [('s', f's_sub_u32 s{sTL}, 15, s{sI}'), ('s', f's_mov_b32 s{sTS}, s{sI}'),
              ('v', f'v_and_b32 v24, 15, v0'), ('v', f'v_bfe_u32 v25, v0, 4, 1'),
              ('v', f'v_mov_b32 v26, s{sTL}'), ('v', f'v_mov_b32 v27, s{sTS}'),
              ('v', f'v_cmp_eq_u32 vcc, 0, v25'), ('v', 's_nop 1'), ('v', f'v_cndmask_b32 v26, v27, v26, vcc'),
              ('v', f'v_lshl_add_u32 v24, v26, 4, v24'),
              ('s', f's_and_b32 s14, s{sH}, 3'), ('s', f's_lshl_b32 s14, s14, 6'), ('s', f's_lshr_b32 s15, s{sH}, 2'), ('s', f's_add_u32 s14, s14, s15'),
              ('v', f'v_and_b32 v25, 7, v0'), ('v', f'v_lshlrev_b32 v25, 3, v25'), ('v', f'v_add_u32 v25, s14, v25'),
              ('v', f'v_cmp_gt_u32 vcc, 32, v0'), ('v', 's_nop 1'), ('v', f'v_cndmask_b32 v24, v25, v24, vcc'),
              ('v', f'v_lshlrev_b32 v24, 3, v24'),
              ('l', f'buffer_load_dwordx2 v[28:29], v24, s[{S_FL}:{S_FL+3}], 0 offen sc1', 'FL')]
    R6 = stageA('s6', dma_wq(4) + dma_wq(5), dma_wq(0) + dma_wq(1), None)
    fix_bar(R6, 9 if TA else 8)
    R6.stream(flagld, BG + 24)
    R6.emit(p, put)
    order[0] = next_order(R6)
    XR = [16, 96, 32, 80]
    XRING = [('v', 16), ('v', 96), ('v', 32), ('v', 80), ('a', 0), ('a', 16), ('a', 32), ('a', 48)]
    def xreg(ks, c):
        t, b = XRING[ks % 8]
        return f'{t}[{b+4*c}:{b+4*c+3}]'
    def xn_load(ks):
        L = []
        for c in range(4):
            off = ks*1024 + (c & 1)*20480
            sb = sXL if c < 2 else sXS
            L.append(('s', f's_add_u32 s{sT1}, s{sb}, {off & ~4095}'))
            L.append(('l', f'buffer_load_dwordx4 {xreg(ks, c)}, v{vLane16}, s[{S_XNF}:{S_XNF+3}], s{sT1} offen offset:{off & 4095} sc1', f'XN{ks}'))
        return L
    def rd_w(db, kin, base, lab):
        r = vWF + 4*db
        return [('r', f'ds_read_b64_tr_b16 v[{r+2*h}:{r+2*h+1}], v{vCW+db} offset:{8192*kin + 1024*h}', lab, None) for h in range(2)]
    def upd_w(base):
        return [('v', f'v_add_u32 v{vCW}, {base}, v{vLPW}')] + [('v', f'v_xor_b32 v{vCW+db}, {db*32}, v{vCW}') for db in range(1, 8)]
    def lncheck():
        p(f's_cmp_lg_u32 s{sW}, 0')
        p(f's_cbranch_scc1 {name}_lnok')
        p('s_mov_b32 s14, 0')
        p.label(f'{name}_lnpoll')
        p(f'v_cmp_ne_u32 vcc, s{sTag}, v28')
        p('s_add_u32 s14, s14, 1')
        p(f's_cbranch_vccz {name}_lnok2')
        p(f's_cmp_ge_u32 s14, {SPIN}')
        p(f's_cbranch_scc1 {name}_lnok2')
        p(f'buffer_load_dwordx2 v[28:29], v24, s[{S_FL}:{S_FL+3}], 0 offen sc1')
        p('s_waitcnt vmcnt(0)')
        p(f's_branch {name}_lnpoll')
        p.label(f'{name}_lnok2')
        p(f'v_cmp_ne_u32 vcc, s{sXcc}, v29')
        p('s_nop 1')
        p('s_lshr_b64 s[14:15], vcc, 32')
        p('s_cmp_eq_u64 s[14:15], 0')
        p(f's_cselect_b32 s{sSame}, 1, 0')
        p.label(f'{name}_lnok')
    relabel()
    put(('wlg', ['w0_0_0', 'act0']))
    xset = [('s', f's_lshl_b32 s{sT1}, s{sTL}, 3'), ('s', f's_lshl_b32 s{sT0}, s{sW}, 1'), ('s', f's_add_u32 s{sT1}, s{sT1}, s{sT0}'),
            ('s', f's_mul_i32 s{sXL}, s{sT1}, 20480'), ('s', f's_lshl_b32 s{sT1}, s{sTS}, 3'), ('s', f's_add_u32 s{sT1}, s{sT1}, s{sT0}'),
            ('s', f's_mul_i32 s{sXS}, s{sT1}, 20480')]
    def last_use(db):
        r = vWF + 4*db
        if r < 64: return GA(1, (r - vWK)//4, 3)
        return GA(1, (r - vWV)//4, 7)
    nr = []
    for db in range(8):
        for it in rd_w(db, 0, 0, f'w0_{db}'): nr.append((it, last_use(db) + 1))
    R7 = stageA('s7', xset + dma_wq(6) + dma_wq(7), dma_wq(2) + dma_wq(3) + dma_wq(8) + dma_wq(9), None, next_reads=(upd_w(0), nr))
    R7.S[BG] = [('call', lambda: (p('s_waitcnt vmcnt(8) lgkmcnt(0)'), p.lg_all(), lncheck(), p('s_barrier')))] + [x for x in R7.S[BG] if x[0] != 'bar']
    R7.stream(xn_load(0) + xn_load(1), BG + 2)
    R7.stream(xn_load(2), GA(1, 4, 0))
    R7.emit(p, put)
    if 'pp' not in opt: p.stamp('phase A done')
    NKS = 20
    mf = []
    for ks in range(NKS):
        for db in range(8):
            for c in range(4):
                acc = O(c, db)
                cc = '0' if ks == 0 else f'v[{acc}:{acc+3}]'
                mf.append(f'{MF} v[{acc}:{acc+3}], v[{vWF+4*db}:{vWF+4*db+3}], {xreg(ks, c)}, {cc}')
    R = Region(mf)
    G = lambda ks, db, c: ks*32 + db*4 + c
    p.wait_vm('XN0')
    put(('wlg', ['w0_0', 'w0_1']))
    R.S[G(3, 0, 3)].append(('bar', ['WQ2', 'WQ3', 'WQ8', 'WQ9', 'WQ4', 'WQ5', 'WQ6', 'WQ7']))
    for ch in range(9):
        R.stream(upd_w((ch + 1)*SL), G(2*ch + 1, 0, 1), G(2*ch + 1, 2, 0))
    for ks in range(NKS):
        for db in range(0, 8, 2):
            if ks == 0 and db == 0: continue
            R.place(('wlg', [f'w{ks}_{db}', f'w{ks}_{db+1}']), G(ks, db, 0) - 1, force=True)
        if ks: R.place(('wvm', f'XN{ks}'), G(ks, 0, 0) - 2, force=True)
    for ks in range(NKS - 1):
        ch, t = divmod(ks, 2); nxt = ks + 1; nch, nt = divmod(nxt, 2)
        for db in range(8):
            e = G(ks, db, 3)
            if t == 1: e = max(e, G(ks, 2, 1))
            rr = rd_w(db, nt, nch*SL, f'w{nxt}_{db}')
            lat = G(ks + 1, 0, 0) if t == 0 else None
            g = R.place(rr[0], e, lat); R.place(rr[1], g + 1 if t == 1 or db < 7 else g, lat)
    TE = 112
    STF = ''
    for o_ in opt:
        if o_.startswith('stf='): STF = o_[4:]
    sSt = sCtx
    epi = []
    sStB = sHbase
    for kind in range(2):
        for f in range(16):
            if kind == 0:
                tb, k4 = divmod(f, 4); a0 = KA(tb, 2*k4); off = tb*4096 + k4*1024; sr = S_KF
            else:
                b, db = divmod(f, 8); a0 = 128 + (b*16 + db*2)*4; off = b*8192 + db*1024; sr = S_VF
            for k in range(8): epi.append(('v', f'v_accvgpr_read_b32 v{TE+k}, a{a0+k}'))
            for k in range(4): epi.append(('v', f'v_cvt_pk_bf16_f32 v{TE+k}, v{TE+2*k}, v{TE+2*k+1}'))
            epi.append(('s', f's_add_u32 s{sSt}, s{sStB}, {off & ~4095}'))
            epi.append(('st', f'buffer_store_dwordx4 v[{TE}:{TE+3}], v{vLane16}, s[{sr}:{sr+3}], s{sSt} offen offset:{off & 4095} {STF}'))
            if 'nost' in opt: epi.pop()
            epi.append(('s', 's_nop 0'))
    KS_V = int(next((o_[3:] for o_ in opt if o_.startswith('kv=')), '17'))
    g0 = 12; span = G(KS_V, 4, 0) - g0
    gl = R.stream(epi, g0, None, pace=lambda k: g0 + (k*span)//len(epi))
    freed = {}
    for g in range(R.n):
        for it in R.V[g]:
            if it[1].startswith('v_accvgpr_read'): freed[int(it[1].split(' a')[-1])] = g
    gprev = 0
    for ks in range(3, NKS):
        t, b = XRING[ks % 8]
        if t == 'a' and ks < 8: e = max(freed[r] for r in range(b, b + 16)) + 1
        elif ks >= 8: e = G(ks - 8, 7, 3) + 1
        else: e = 0
        e = max(e, gprev + 1, G(max(ks - 7, 0), 0, 0))
        lat = G(ks, 0, 0) - 40 if ks > 3 else G(1, 0, 0)
        gprev = R.stream(xn_load(ks), e, max(lat, e + 8))
    FK, FV = 4096, 5120
    def publish(off, lab, waitlabel):
        p.wait_vm(waitlabel)
        p('s_barrier')
        p(f's_cmp_lg_u32 s{sW}, 0')
        p(f's_cbranch_scc1 {name}_{lab}pub')
        p(f's_lshl_b32 s14, s{sH}, 3')
        p(f's_add_u32 s14, s14, s{sI}')
        p(f's_lshl_b32 s14, s14, 2')
        p(f's_add_u32 s14, s14, {off}')
        p(f'v_mov_b32 v12, s{sTag}')
        p('v_mov_b32 v13, 0')
        p(f's_cmp_eq_u32 s{sSame}, 1')
        p(f's_cbranch_scc1 {name}_{lab}rel')
        p('buffer_wbl2 sc1')
        p('s_waitcnt vmcnt(0)')
        p(f'buffer_store_dword v12, v13, s[{S_FL}:{S_FL+3}], s14 offen sc1')
        p(f's_branch {name}_{lab}pub')
        p.label(f'{name}_{lab}rel')
        p(f'buffer_store_dword v12, v13, s[{S_FL}:{S_FL+3}], s14 offen')
        p.label(f'{name}_{lab}pub')
    def flag_load(off, lab):
        return [('s', f's_lshl_b32 s15, s{sH}, 5'), ('s', f's_add_u32 s15, s15, {off}'),
                ('v', 'v_and_b32 v13, 7, v0'), ('v', 'v_lshlrev_b32 v13, 2, v13'),
                ('l', f'buffer_load_dword v12, v13, s[{S_FL}:{S_FL+3}], s15 offen sc1', lab)]
    def check(lab, waitlabel):
        p.wait_vm(waitlabel, 'lgkmcnt(0)'); p.lg_all()
        p(f's_cmp_lg_u32 s{sW}, 0')
        p(f's_cbranch_scc1 {name}_{lab}ok')
        p('s_mov_b32 s14, 0')
        p.label(f'{name}_{lab}poll')
        p(f'v_cmp_ne_u32 vcc, s{sTag}, v12')
        p('s_add_u32 s14, s14, 1')
        p(f's_cbranch_vccz {name}_{lab}ok2')
        p(f's_cmp_ge_u32 s14, {SPIN}')
        p(f's_cbranch_scc1 {name}_{lab}ok2')
        p(f'buffer_load_dword v12, v13, s[{S_FL}:{S_FL+3}], s15 offen sc1')
        p('s_waitcnt vmcnt(0)')
        p(f's_branch {name}_{lab}poll')
        p.label(f'{name}_{lab}ok2')
        p(f's_cmp_eq_u32 s{sSame}, 1')
        p(f's_cbranch_scc1 {name}_{lab}ok')
        p('buffer_inv sc1')
        p('s_waitcnt vmcnt(0)')
        p.label(f'{name}_{lab}ok')
        p('s_barrier')
    def att_state():
        p(f's_lshl_b32 s{sKb}, s{sH}, 19')
        p(f's_add_u32 s{sKb}, s{sKb}, s{sLW}')
        p(f's_mov_b32 s{sVb}, s{sKb}')
    def unitK(slot, label):
        L = [('s', f's_add_u32 m0, s{sLW}, {slot*32768}')]
        for i in range(4): L.append(('m', f'buffer_load_dwordx4 v{vLane16}, s[{S_KF}:{S_KF+3}], s{sKb} offen offset:{1024*i} lds', label, None))
        return L + [('s', f's_add_u32 s{sKb}, s{sKb}, 16384')]
    def unitV(slot, label):
        L = [('s', f's_add_u32 m0, s{sLW}, {slot*32768 + SL}')]
        for i in range(4): L.append(('m', f'buffer_load_dwordx4 v{vLane16}, s[{S_VF}:{S_VF+3}], s{sVb} offen offset:{1024*i} lds', label, None))
        return L + [('s', f's_add_u32 s{sVb}, s{sVb}, 16384')]
    def dma_K(label, tagbase=None):
        L = [('s', f's_mov_b32 m0, s{sSlotP}')]
        for i in range(4):
            L.append(('m', f'buffer_load_dwordx4 v{vLane16}, s[{S_KF}:{S_KF+3}], s{sKb} offen offset:{1024*i} lds', label, None))
        L += [('s', f's_add_u32 s{sKb}, s{sKb}, 16384')]
        return L
    def dma_V(label, tagbase=None):
        L = [('s', f's_add_u32 m0, s{sSlotP}, {SL}')]
        for i in range(4):
            L.append(('m', f'buffer_load_dwordx4 v{vLane16}, s[{S_VF}:{S_VF+3}], s{sVb} offen offset:{1024*i} lds', label, None))
        L += [('s', f's_add_u32 s{sVb}, s{sVb}, 16384')]
        return L
    adv_slot = [('s', f's_add_u32 s{sSlotP}, s{sSlotP}, 32768'), ('s', f's_cmp_ge_u32 s{sSlotP}, {NSLOT*32768}\ns_cselect_b32 s{sSlotP}, s{sLW}, s{sSlotP}')]
    R.emit(p, put)
    print('fused qproj overflow', R.over, 'est', R.total())
    if 'pp' not in opt: p.stamp('q end')
    p(f's_mov_b32 s{sFlag}, 0')
    p(f's_mov_b32 s{sLim}, {hex(LIM)}')
    def touch_setup():
        p(f's_load_dwordx2 s[92:93], s[0:1], {ARG["wo"]}')
        p(f's_load_dwordx2 s[94:95], s[0:1], {ARG["wg"]}')
        p(f's_load_dwordx2 s[96:97], s[0:1], {ARG["wu"]}')
        p(f's_load_dwordx2 s[98:99], s[0:1], {ARG["wd"]}')
        p('s_lshl_b32 s14, s2, 2')
        p(f's_add_u32 s14, s14, s{sW}')
        p('s_mul_i32 s14, s14, 40')
        p('v_min_u32 v14, 39, v0')
        p('v_add_u32 v14, s14, v14')
        p('v_lshlrev_b32 v14, 7, v14')
        p('s_lshr_b32 s14, s2, 6')
        p('s_lshl_b32 s14, s14, 2')
        p(f's_and_b32 s15, s{sI}, 3')
        p('s_add_u32 s14, s14, s15')
        p('s_lshl_b32 s14, s14, 3')
        p('s_and_b32 s15, s2, 7')
        p('s_add_u32 s14, s14, s15')
        p('s_lshl_b32 s14, s14, 2')
        p(f's_add_u32 s14, s14, s{sW}')
        p('s_mul_i32 s14, s14, 34')
        p('v_min_u32 v15, 33, v0')
        p('v_add_u32 v15, s14, v15')
        p('v_min_u32 v15, 17279, v15')
        p('v_lshlrev_b32 v15, 7, v15')
        p('s_waitcnt lgkmcnt(0)')
    touch_items = [('l', 'global_load_dword v13, v14, s[92:93]', 'T'), ('l', 'global_load_dword v13, v15, s[94:95]', 'T'),
                   ('l', 'global_load_dword v13, v15, s[96:97]', 'T'), ('l', 'global_load_dword v13, v15, s[98:99]', 'T')]
    att_state()
    touch_setup()
    publish(FK, 'k', 'st')
    for it in flag_load(FK, 'KFL'): put(it)
    p.stamp('pub done')
    p('s_nop 7')
    for c in range(4):
        for ks in range(4):
            a0 = O(c, 2*ks)
            for k in range(4): p(f'v_cvt_pk_bf16_f32 v{a0+k}, v{a0+2*k}, v{a0+2*k+1}')
            for k in range(4): p(f'v_accvgpr_write_b32 a{aQ + 16*c + 4*ks + k}, v{a0+k}')
    p(f'v_mov_b32 v{vT}, 0x3f803f80')
    for k in range(4): p(f'v_accvgpr_write_b32 a{128+k}, v{vT}')
    p(f'v_and_b32 v{vT}, 15, v0')
    p(f'v_lshrrev_b32 v{vT+1}, 4, v0')
    p(f'v_lshlrev_b32 v{vT+1}, 2, v{vT+1}')
    p(f'v_sub_u32 v{vT}, v{vT}, v{vT+1}')
    for r in range(4): p(f'v_cmp_le_i32 s[{sM+2*r}:{sM+2*r+1}], {r}, v{vT}')
    p(f'v_mov_b32 v{vNinf}, {hex(NEGBIG)}')
    for r in range(16): p(f'v_mov_b32 v{vNeg+r}, 0')
    for c in range(4): p(f'v_mov_b32 v{vL+c}, 0')
    for r in range(64): p(f'v_mov_b32 v{vO+r}, 0')
    p.stamp('pre check')
    check('k', 'KFL')
    emit(unitK(0, 'U-1') + unitK(1, 'U0') + unitV(1, 'U0'))
    p.stamp('kv ok')
    nerr = 0

    def rdK(b, f):  return ('r', f'ds_read_b128 a[{aK+4*f}:{aK+4*f+3}], v{vRd} offset:{b*8192 + f*1024}', f'K{f}')
    def rdV(b, f):  return ('r', f'ds_read_b128 a[{aV+4*f}:{aV+4*f+3}], v{vRd} offset:{16384 + b*8192 + f*1024}', f'V{f}')
    def qk_mfmas(cols, sbase, cin):
        L = []
        for i, c in enumerate(cols):
            for kb in range(2):
                S = Sr(sbase + i, kb)
                for ks in range(4):
                    cc = cin(c, kb) if ks == 0 else S
                    L.append(f'{MF} v[{S}:{S+3}], a[{aK+4*(kb*4+ks)}:{aK+4*(kb*4+ks)+3}], a[{aQ+16*c+4*ks}:{aQ+16*c+4*ks+3}], v[{cc}:{cc+3}]')
        return L
    def pv_mfmas(cols, par, first=False):
        L = []
        for c in cols:
            for db in range(8):
                o = O(c, db)
                cc = '0' if first else f'v[{o}:{o+3}]'
                L.append(f'{MF} v[{o}:{o+3}], a[{aV+4*db}:{aV+4*db+3}], v[{Pr(par, c)}:{Pr(par, c)+3}], {cc}')
        return L
    aOne = 128
    Lm = lambda c: vP + 8 + 4*c
    def sum_mfmas(cols, par):
        return [f'{MF} v[{Lm(c)}:{Lm(c)+3}], a[{aOne}:{aOne+3}], v[{Pr(par, c)}:{Pr(par, c)+3}], v[{Lm(c)}:{Lm(c)+3}]' for c in cols]
    def sm_window_ns(c, sslot, par):
        S = vS + 8*sslot; P = Pr(par, c); W = []
        for k in range(4):
            e0, e1 = vE + (2*k) % 4, vE + (2*k + 1) % 4
            W += [[f'v_exp_f32 v{e0}, v{S+2*k}'], [f'v_exp_f32 v{e1}, v{S+2*k+1}'],
                  [f'v_cvt_pk_bf16_f32 v{P+k}, v{e0}, v{e1}'], []]
        return W
    def sm_window(c, sslot, par):
        S = vS + 8*sslot; P = Pr(par, c); W = []
        for k in range(4):
            e0, e1 = vE + (2*k) % 4, vE + (2*k + 1) % 4
            W += [[f'v_exp_f32 v{e0}, v{S+2*k}'], [f'v_exp_f32 v{e1}, v{S+2*k+1}'],
                  [f'v_add_f32 v{vL+c}, v{vL+c}, v{e0}'],
                  [f'v_add_f32 v{vL+c}, v{vL+c}, v{e1}', f'v_cvt_pk_bf16_f32 v{P+k}, v{e0}, v{e1}']]
        return W
    cin_neg = lambda c, kb: vNeg + 4*c
    def cin_mask(tile_cols):
        def f(c, kb):
            if c in tile_cols: return vCi + 8*(c - tile_cols[0]) + 4*kb
            return vNeg + 4*c
        return f
    def mask_ops(tile_cols):
        c0 = tile_cols[0]
        L = [('s', f's_cmp_lt_i32 s{sDd}, 0\ns_cselect_b64 s[14:15], -1, 0'),
             ('s', f's_cmp_eq_u32 s{sDd}, 0\n' + '\n'.join(f's_cselect_b64 s[{4+2*r}:{5+2*r}], s[{sM+2*r}:{sM+2*r+1}], s[14:15]' for r in range(4))),
             ('s', f's_cmp_le_i32 s{sDd}, 0\ns_cselect_b64 s[12:13], -1, 0')]
        for cb in range(2):
            for kb in range(2):
                for r in range(4):
                    m = 4 + 2*r if cb == kb else (12 if (cb == 1 and kb == 0) else 14)
                    L.append(('v', f'v_cndmask_b32 v{vCi + 8*cb + 4*kb + r}, v{vNinf}, v{vNeg + 4*(c0 + cb) + r}, s[{m}:{m+1}]'))
        return L
    LC, SC = [0, 1], [2, 3]
    def build_group(mf, windows, reads, dmas=(), extra=(), pre_wait=None, mid_wait=None, nwin=None):
        R = Region(mf)
        n = len(mf)
        for (g0, W) in windows:
            for i, ops in enumerate(W):
                for o in ops: R.place(('v', o), g0 + i, force=True)
        slots = [g for g in range(n) if g % 4 == 2]
        if len(slots) < len(reads): slots = sorted(slots + [g for g in range(n) if g % 4 == 3])
        if n == 16 or nwin == 16: slots = [g for g in range(16) if g % 4 in (2, 3)]
        for it, g in zip(reads, slots): R.place(it, g, force=True)
        if dmas:
            free = [g for g in range(n) if not R.M[g]]
            pref = [g for g in free if g >= 16 and nwin == 16] + [g for g in free if g % 4 == 3 and not (g >= 16 and nwin == 16)] + [g for g in free if g % 4 == 1] + [g for g in free if g % 4 in (0, 2)]
            nm = sum(1 for x in dmas if x[0] == 'm')
            use = sorted([g for g in pref if g >= 1][:nm])
            if nwin == 16 and nm == 4: use = [5, 9, 13, 16]
            k = 0; pend_s = []
            for it in dmas:
                if it[0] == 's': pend_s.append(it)
                else:
                    g = use[k]; k += 1
                    for j, sx in enumerate(pend_s):
                        gg = max(0, g - len(pend_s) + j)
                        if k > 1: gg = max(gg, use[k-2] + 1) if use[k-2] + 1 <= g - 1 or ' m0,' not in sx[1] else gg
                        if gg == g and ' m0,' in sx[1]: R.place(('s', 's_nop 0'), g, force=True) if False else None
                        R.place(sx, gg, force=True)
                    pend_s = []
                    R.place(it, g, force=True)
            for j, sx in enumerate(pend_s):
                gg = use[-1] + 1 + j
                if gg <= n - 1: R.place(sx, gg, force=True)
                else: R.T[n - 1].append(sx)
        if extra:
            g = 0
            for it in extra:
                best = None
                for gg in range(g, n - 1):
                    if R.fits(gg, it): best = gg; break
                if best is None:
                    best = g
                R.place(it, best, force=True); g = best
        if mid_wait: R.place(mid_wait[1], mid_wait[0], force=True)
        return R
    slot_adv = [('s', f's_add_u32 s{sSlotR}, s{sSlotR}, 32768'), ('s', f's_cmp_ge_u32 s{sSlotR}, {NSLOT*32768}\ns_cselect_b32 s{sSlotR}, 0, s{sSlotR}')]
    def start_items(R, vm=16):
        pre = []
        if vm is None: return
        if 'nodma' not in opt: pre.append(('w', f's_waitcnt vmcnt({vm})'))
        if 'nobar' not in opt: pre.append(('w', 's_barrier'))
        R.S[0] = pre + R.S[0]
    def end_items(R, loop=None):
        n = R.n
        for j, it in enumerate(slot_adv): R.S[4 + 4*j if n > 16 else 1 + 4*j].append(it) if False else None
        g0 = 8
        for j, it in enumerate(slot_adv): R.S[g0 + j].append(it)
        R.V[n - 1].append(('v', f'v_add_u32 v{vRd}, s{sSlotR}, v{vLane16}'))
        if loop:
            R.S[n - 3].append(('s', f's_sub_u32 s{sCnt}, s{sCnt}, 1'))
            R.T[n - 1].append(('s', f's_cmp_lg_u32 s{sCnt}, 0'))
    def emit_group(R, pre):
        if pre and 'nords' not in opt:
            put(('wlg', [f'{pre}{f}' for f in range(4)]))
            R.S[3].insert(0, ('wlg', [f'{pre}{f}' for f in range(4, 8)]))
        if 'nosm' in opt:
            for g in range(R.n): R.V[g] = []
        if 'noexp' in opt:
            for g in range(R.n): R.V[g] = [(x[0], x[1].replace('v_exp_f32', 'v_mov_b32')) for x in R.V[g]]
        if 'nodma' in opt:
            for g in range(R.n): R.M[g] = [x for x in R.M[g] if x[0] != 'm']
        if 'nords' in opt:
            for g in range(R.n):
                R.M[g] = [x for x in R.M[g] if x[0] != 'r']; R.S[g] = [x for x in R.S[g] if x[0] != 'wlg']
            pre = None; R.S[3] = [x for x in R.S[3] if x[0] != 'wlg']
        R.emit(p, put)
    stats = {'cyc': 0}
    def interval(kind, lbl, maskL=None, maskS=None, loop=False, vm=16):
        dual = kind in ('D', 'T')
        mA, mB, mN = (maskS if dual else maskL) or (False, False, False)
        tile = SC if dual else LC
        p.lgq = ['K%d' % f for f in range(8)]; p.lg_ret = -1
        tot = 0
        if dual:
            cols = [0, 1, 2, 3]
            R1 = build_group(qk_mfmas(cols, 0, cin_mask(SC) if mA else cin_neg),
                             [(0, sm_window(3, 3, 0)), (16, sm_window(0, 0, 1))], [rdV(0, f) for f in range(8)], dma_K('x'),
                             mid_wait=None)
            start_items(R1, vm)
            if lbl == 'db':
                g_ = 1
                sel = ([touch_items[0]] if TW else []) + (touch_items[1:] if TF else [])
                for it in sel:
                    while R1.M[g_]: g_ += 1
                    R1.M[g_].append(it); g_ += 3
            emit_group(R1, 'K')
            ex = ([('s', f's_add_u32 s{sDd}, s{sDd}, 1')] + mask_ops(SC if kind == 'D' else LC)) if mB else []
            if kind == 'T': ex = mask_ops(LC)
            R2 = build_group(pv_mfmas(cols, 0), [(0, sm_window(1, 1, 1)), (16, sm_window(2, 2, 1))], [rdK(0, f) for f in range(8)], extra=ex)
            if kind == 'T':
                emit([('s', f's_sub_u32 s{sDd}, s{sTS}, s{sTL}'), ('s', f's_lshl_b32 s{sDd}, s{sDd}, 2'), ('s', f's_add_u32 s{sDd}, s{sDd}, 4'), ('s', f's_sub_u32 s{sDd}, s{sDd}, s{sW}')])
            emit_group(R2, 'V')
            if kind == 'D':
                R3 = build_group(qk_mfmas(cols, 0, cin_mask(SC) if mB else cin_neg),
                                 [(0, sm_window(3, 3, 1)), (16, sm_window(0, 0, 0))], [rdV(1, f) for f in range(8)], dma_V('x') + adv_slot)
                emit_group(R3, 'K')
                ex = ([('s', f's_add_u32 s{sDd}, s{sDd}, 1')] + mask_ops(SC)) if mN else []
                R4 = build_group(pv_mfmas(cols, 1), [(0, sm_window(1, 1, 0)), (16, sm_window(2, 2, 0))], [rdK(1, f) for f in range(8)], extra=ex)
                end_items(R4, loop)
                emit_group(R4, 'V')
            else:
                R3 = build_group(qk_mfmas(LC, 0, cin_mask(LC)), [(0, sm_window(3, 3, 1))], [rdV(1, f) for f in range(8)], dma_V('x') + adv_slot)
                emit_group(R3, 'K')
                ex = ([('s', f's_add_u32 s{sDd}, s{sDd}, 1')] + mask_ops(LC))
                ex = [('v', f'v_mov_b32 v{Lm(c)+r}, 0') for c in LC for r in range(4)] + ex
                R4 = build_group(pv_mfmas(cols, 1), [(0, sm_window_ns(0, 0, 0))], [rdK(1, f) for f in range(8)], extra=ex)
                end_items(R4)
                emit_group(R4, 'V')
            tot = R1.total() + R2.total() + R3.total() + R4.total()
        else:
            dK = dma_K('x'); dv_ = dma_V('x'); dV = dv_[:1] + adv_slot + dv_[1:]
            R1 = build_group(qk_mfmas(LC, 2, cin_mask(LC) if mA else cin_neg), [(0, sm_window_ns(1, 1, 0))], [rdV(0, f) for f in range(8)])
            start_items(R1, vm)
            emit_group(R1, 'K')
            ex = ([('s', f's_add_u32 s{sDd}, s{sDd}, 1')] + mask_ops(LC)) if mB else []
            rk = [rdK(0, f) for f in range(8)] if kind != 'E' else []
            R2 = build_group(pv_mfmas(LC, 0) + sum_mfmas(LC, 0), [(0, sm_window_ns(0, 2, 1))], rk, dK, extra=ex, nwin=16)
            emit_group(R2, 'V')
            if kind != 'E':
                R3 = build_group(qk_mfmas(LC, 0, cin_mask(LC) if mB else cin_neg), [(0, sm_window_ns(1, 3, 1))], [rdV(1, f) for f in range(8)])
                emit_group(R3, 'K')
                ex = ([('s', f's_add_u32 s{sDd}, s{sDd}, 1')] + mask_ops(LC)) if mN else []
                R4 = build_group(pv_mfmas(LC, 1) + sum_mfmas(LC, 1), [(0, sm_window_ns(0, 0, 0))], [rdK(1, f) for f in range(8)], dV, extra=ex, nwin=16)
                end_items(R4, loop)
                emit_group(R4, 'V')
                tot = R1.total() + R2.total() + R3.total() + R4.total()
            else:
                for f in range(8): put(rdV(1, f))
                emit(dV)
                for ops in sm_window_ns(1, 3, 1):
                    for o in ops: p(o)
                    if len(ops) == 1 and ops[0].startswith('v_exp'): p('s_nop 0')
                p('s_waitcnt lgkmcnt(0)')
                p('s_nop 1')
                for m in pv_mfmas(LC, 1) + sum_mfmas(LC, 1): p(m)
        if tot: print(f'  interval {lbl}: est {tot} cycles for', 128 if kind == 'D' else (112 if kind == 'T' else 64), 'mfma')

    def emit_prefetch():
        p('s_lshr_b32 s14, s2, 3')
        p('s_and_b32 s15, s14, 7')
        p('s_cmp_lt_u32 s15, 4')
        p(f's_cbranch_scc1 {name}_npf')
        p(f's_load_dwordx2 s[92:93], s[0:1], {ARG["wo"]}')
        p('s_lshr_b32 s14, s14, 3')
        p('s_lshl_b32 s14, s14, 2')
        p('s_add_u32 s14, s14, s15')
        p('s_sub_u32 s14, s14, 4')
        p(f's_mul_i32 s14, s14, {640*128}')
        p('s_and_b32 s15, s2, 7')
        p('s_lshr_b32 s15, s15, 1')
        p('s_mul_i32 s15, s15, 1310720')
        p('s_add_u32 s14, s14, s15')
        p(f's_mul_i32 s15, s{sW}, {160*128}')
        p('s_add_u32 s14, s14, s15')
        p('s_waitcnt lgkmcnt(0)')
        for i in range(3):
            p(f'v_add_u32 v251, {64*i}, v0')
            p(f'v_min_u32 v251, 159, v251')
            p(f'v_lshlrev_b32 v251, 7, v251')
            p(f'v_add_u32 v251, s14, v251')
            p(f'global_load_dword v250, v251, s[92:93]')
        p.label(f'{name}_npf')
    FA, FB = (10, 11) if FP == 'db' else (252, 253)
    F2, F3, F4, F5 = (47, 48, 49, 51) if FP in ('db', 'S') else (92, 93, 94, 95)
    def ffn_loads():
        p(f's_mov_b32 s{F5}, 0')
        p('s_lshr_b32 s14, s2, 3')
        p(f's_and_b32 s{F2}, s14, 7')
        p(f's_cmp_lt_u32 s{F2}, 6')
        p(f's_cbranch_scc1 {name}_nffn')
        p('s_lshr_b32 s14, s2, 6')
        p('s_lshl_b32 s14, s14, 1')
        p(f's_add_u32 s14, s14, s{F2}')
        p('s_sub_u32 s14, s14, 6')
        p('s_lshl_b32 s14, s14, 3')
        p('s_and_b32 s15, s2, 7')
        p(f's_add_u32 s{F4}, s14, s15')
        p(f's_cmp_ge_u32 s{F4}, 54')
        p(f's_cbranch_scc1 {name}_nffn')
        p(f's_mov_b32 s{F5}, 1')
        p(f's_load_dwordx2 s[4:5], s[0:1], {ARG["wg"]}')
        p(f's_load_dwordx2 s[8:9], s[0:1], {ARG["wu"]}')
        p(f's_load_dwordx2 s[12:13], s[0:1], {ARG["wd"]}')
        p(f'v_lshrrev_b32 v{FA}, 2, v0')
        p(f'v_mul_u32_u24 v{FA}, 3456, v{FA}')
        p(f'v_and_b32 v{FB}, 3, v0')
        p(f'v_lshl_add_u32 v{FA}, v{FB}, 4, v{FA}')
        p('s_waitcnt lgkmcnt(0)')
        for sr, sz in ((4, 640*1728*2), (8, 640*1728*2), (12, 1728*640*2)):
            p(f's_mov_b32 s{sr+2}, {sz}'); p(f's_mov_b32 s{sr+3}, 0x00020000')
        p(f's_mul_i32 s{F2}, s{sW}, {160*3456}')
        p(f's_lshl_b32 s{F3}, s{F4}, 6')
        p(f's_add_u32 s{F2}, s{F2}, s{F3}')
        for i in range(10):
            for mat, sr in enumerate((4, 8)):
                r = 132 + (mat*10 + i)*4
                p(f'buffer_load_dwordx4 a[{r}:{r+3}], v{FA}, s[{sr}:{sr+3}], s{F2} offen')
            p(f's_add_u32 s{F2}, s{F2}, {16*3456}')
        p(f's_mul_i32 s{F2}, s{F4}, {32*1280}')
        p(f's_mul_i32 s{F3}, s{sW}, 10240')
        p(f's_add_u32 s{F2}, s{F2}, s{F3}')
        for i in range(10):
            r = 132 + (20 + i)*4
            p(f'buffer_load_dwordx4 a[{r}:{r+3}], v{vLane16}, s[12:15], s{F2} offen offset:{(i % 4)*1024}')
            if i % 4 == 3: p(f's_add_u32 s{F2}, s{F2}, 4096')
        p.label(f'{name}_nffn')
    def row_reduce(reg, op, tmp):
        for sw in ('v_permlane16_swap_b32', 'v_permlane32_swap_b32'):
            p(f'v_mov_b32 v{tmp}, v{reg}')
            p('s_nop 1')
            p(f'{sw} v{reg}, v{tmp}')
            p('s_nop 1')
            p(f'{op} v{reg}, v{reg}, v{tmp}')
    def epilogue(cols, sTile, flagbit):
        p('s_nop 7')
        for c in cols: row_reduce(vL + c, 'v_add_f32', vU)
        if cols == LC:
            for c in cols: p(f'v_add_f32 v{vL+c}, v{vL+c}, v{Lm(c)}')
        p(f'v_max_f32 v{vU}, v{vL+cols[0]}, v{vL+cols[1]}')
        p(f'v_cmp_nle_f32 vcc, v{vU}, v{vU+1}'.replace(f'v{vU+1}', f'v{vU+1}') if False else f'v_cmp_nge_f32 vcc, s{sLim}, v{vU}')
        p('s_nop 1')
        p(f's_cmp_lg_u64 vcc, 0')
        p(f's_cselect_b32 s{sT0}, {flagbit}, 0')
        p(f's_or_b32 s{sFlag}, s{sFlag}, s{sT0}')
        for c in cols: p(f'v_rcp_f32 v{vL+c}, v{vL+c}')
        store_ctx(cols, sTile)
    def store_ctx(cols, sTile):
        p(f's_lshl_b32 s{sCtx}, s{sTile}, 3')
        p(f's_lshl_b32 s{sT0}, s{sW}, 1')
        p(f's_add_u32 s{sCtx}, s{sCtx}, s{sT0}')
        p(f's_lshl_b32 s{sCtx}, s{sCtx}, 5')
        p(f's_add_u32 s{sCtx}, s{sCtx}, s{sH}')
        p(f's_lshl_b32 s{sCtx}, s{sCtx}, 12')
        p(f's_add_u32 s{sT1}, s{sCtx}, {32*4096}')
        for i, c in enumerate(cols):
            for ks in range(4):
                o = O(c, 2*ks)
                for k in range(8): p(f'v_mul_f32 v{o+k}, v{o+k}, v{vL+c}')
                for k in range(4): p(f'v_cvt_pk_bf16_f32 v{o+k}, v{o+2*k}, v{o+2*k+1}')
                p(f'buffer_store_dwordx4 v[{o}:{o+3}], v{vLane16}, s[{S_CTX}:{S_CTX+3}], s{sCtx if i == 0 else sT1} offen offset:{ks*1024} {CTX_FLAGS}')

    p(f's_mov_b32 s{sSlotR}, 0')
    p(f'v_mov_b32 v{vRd}, v{vLane16}')
    for r in range(64, 128): p(f'v_mov_b32 v{vO+r}, 0')
    p(f's_lshl_b32 s{sDd}, s{sTS}, 2')
    p(f's_add_u32 s{sDd}, s{sDd}, s{sW}')
    p(f's_sub_u32 s{sDd}, 0, s{sDd}')
    emit(mask_ops(SC))
    p.wait_vm('U-1')
    p('s_barrier')
    p.stamp('U-1 ready')
    p.lgq = []; p.lg_ret = -1
    for f in range(8): put(rdK(0, f))
    p('s_waitcnt lgkmcnt(0)')
    q0 = qk_mfmas([0, 1, 2, 3], 0, cin_mask(SC))
    rest = unitK(2, 'U1') + unitV(2, 'U1')
    Rq = Region(q0)
    spread(Rq, rest, 0, 31)
    Rq.emit(p, put)
    p(f's_add_u32 s{sSlotP}, s{sLW}, {4*32768}')
    p.stamp('qk0 done')
    for f in range(8): put(rdK(1, f))
    for step in range(4):
        for c in range(4):
            S = vS + 8*c; t = vU + c
            if step == 0: p(f'v_max3_f32 v{t}, v{S}, v{S+1}, v{S+2}')
            elif step == 1: p(f'v_max3_f32 v{t}, v{t}, v{S+3}, v{S+4}')
            elif step == 2: p(f'v_max3_f32 v{t}, v{t}, v{S+5}, v{S+6}')
            else: p(f'v_max_f32 v{t}, v{t}, v{S+7}')
    for sw in ('v_permlane16_swap_b32', 'v_permlane32_swap_b32'):
        for c in range(4): p(f'v_mov_b32 v{vU+4+c}, v{vU+c}')
        for c in range(4): p(f'{sw} v{vU+c}, v{vU+4+c}')
        p('s_nop 0')
        for c in range(4): p(f'v_max_f32 v{vU+c}, v{vU+c}, v{vU+4+c}')
    for r in range(8):
        for c in range(4): p(f'v_sub_f32 v{vS+8*c+r}, v{vS+8*c+r}, v{vU+c}')
    for c in range(4):
        for r in range(4): p(f'v_sub_f32 v{vNeg+4*c+r}, 0, v{vU+c}')
    def run_window(W):
        for ops in W:
            for o in ops: p(o)
            if len(ops) == 1 and ops[0].startswith('v_exp'): p('s_nop 0')
    u2 = unitK(3, 'U2') + unitV(3, 'U2')
    for r in range(8):
        for c in range(3): p(f'v_exp_f32 v{vS+8*c+r}, v{vS+8*c+r}')
        while u2:
            it = u2.pop(0)
            put(it)
            if it[0] == 'm': break
            if ' m0,' in it[1]: p('s_nop 0')
    for it in u2: put(it)
    p('s_nop 0')
    for r in range(8):
        for c in range(3): p(f'v_add_f32 v{vL+c}, v{vL+c}, v{vS+8*c+r}')
    for k in range(4):
        for c in range(3): p(f'v_cvt_pk_bf16_f32 v{Pr(0, c)+k}, v{vS+8*c+2*k}, v{vS+8*c+2*k+1}')
    p(f's_mov_b32 s{sSlotR}, 32768')
    p(f'v_add_u32 v{vRd}, s{sSlotR}, v{vLane16}')
    if 'pp' not in opt: p.stamp('attn prologue done')
    p(f's_cmp_eq_u32 s{sTS}, 0')
    p(f's_cbranch_scc1 {name}_t0')
    p(f's_lshl_b32 s{sCnt}, s{sTS}, 1')
    p(f's_sub_u32 s{sCnt}, s{sCnt}, 1')
    p.label(f'{name}_dn')
    interval('D', f'dn', loop=True)
    p(f's_cbranch_scc1 {name}_dn')
    p(f's_sub_u32 s{sDd}, -1, s{sW}')
    interval('D', 'da', maskS=(False, True, True))
    p(f's_branch {name}_db')
    p.label(f'{name}_t0')
    p(f's_sub_u32 s{sDd}, 1, s{sW}')
    emit(mask_ops(SC))
    p('s_nop 1')
    p.label(f'{name}_db')
    if FP == 'db':
        p('s_waitcnt vmcnt(16)')
        p('s_barrier')
        ffn_loads()
        interval('D', 'db', maskS=(True, True, True), vm=None)
        p(f's_cmp_eq_u32 s{F5}, 0')
        p(f's_cbranch_scc1 {name}_dcw')
        p('s_waitcnt vmcnt(46)')
        p(f's_branch {name}_dcw2')
        p.label(f'{name}_dcw')
        p('s_waitcnt vmcnt(16)')
        p.label(f'{name}_dcw2')
        interval('T', 'dc', maskS=(True, False, False), vm=63)
    else:
        interval('D', 'db', maskS=(True, True, True))
        interval('T', 'dc', maskS=(True, False, False))
    epilogue(SC, sTS, 2)
    if FP == 'S':
        ffn_loads()
        p.lgq = ['K%d' % f for f in range(8)]; p.lg_ret = 7
    if 'pp' not in opt: (p.stamp('S done') if 'pq' not in opt else None)
    p(f's_sub_u32 s{sCnt}, s{sTL}, s{sTS}')
    p(f's_cmp_eq_u32 s{sCnt}, 1')
    p(f's_cbranch_scc1 {name}_sb')
    p(f's_sub_u32 s{sCnt}, s{sCnt}, 2')
    interval('S', 'sn1')
    p.label(f'{name}_sn')
    interval('S', 'sn2a', vm=8)
    interval('S', 'sn2b', vm=None, loop=True)
    p(f's_cbranch_scc1 {name}_sn')
    p(f's_sub_u32 s{sDd}, -1, s{sW}')
    interval('S', 'sa', maskL=(False, True, True))
    p.label(f'{name}_sb')
    interval('S', 'sb', maskL=(True, True, True))
    interval('E', 'sc', maskL=(True, False, False))
    epilogue(LC, sTL, 1)
    p.stamp('L done')
    p(f's_cmp_eq_u32 s{sFlag}, 0')
    p(f's_cbranch_scc1 {name}_fin')
    fallback(p, name, locals())
    p.label(f'{name}_fin')
    def ctx_publish():
        p('s_waitcnt vmcnt(0) lgkmcnt(0)')
        p('s_barrier')
        p(f's_cmp_lg_u32 s{sW}, 0')
        p(f's_cbranch_scc1 {name}_cpub')
        p(f's_lshl_b32 s14, s2, 2')
        p(f's_add_u32 s14, s14, 6144')
        p(f'v_mov_b32 v20, s{sTag}')
        p('v_mov_b32 v21, 0')
        p(f'buffer_store_dword v20, v21, s[{S_FL}:{S_FL+3}], s14 offen sc1')
        p.label(f'{name}_cpub')
        p.stamp('ctx pub')
        if PE: emit_prefetch()
        if FP == 'end': ffn_loads()
    import kt
    nerr += kt.gen_kt(name + '_t', p, prof, opt, ctx_publish)
    p.label(f'{name}_done')
    p('s_endpgm')
    def mk_policy(t0, nd, skip_s, ns, fb, wave0):
        def pol(ins, n):
            t = ins.args[0]
            if t.endswith('_done'): return False
            if t.endswith('_stageA'): return n % 3 != 0
            if t in (name + '_noln0', name + '_noln1'): return False
            if t in (name + '_notag', name + '_kvpub'): return not wave0
            if t == name + '_notag2': return True
            if t == name + '_nffn': return not wave0
            if t == name + '_dcw': return not wave0
            if t == name + '_cpub': return not wave0
            if t.startswith(name + '_t'):
                if '_poll' in t and t.endswith('_ok'): return True
                if '_poll' in t and t.endswith('_top'): return False
                u = t[len(name) + 2:]
                if u in ('_w123', '_w1', '_nosig', '_w4', '_w5', '_cw'): return not wave0
                return False
            if t == name + '_nz': return True
            if t == name + '_nocode': return False
            if t == name + '_nopub': return True
            if t in (name + '_lnok', name + '_kok', name + '_vok', name + '_kpub', name + '_vpub'): return not wave0
            if t in (name + '_lnok2', name + '_kok2', name + '_vok2', name + '_krel', name + '_vrel'): return True
            if t.endswith('_t0'): return t0
            if t.endswith('_dn'): return (n % nd) != 0
            if t.endswith('_sb'): return skip_s
            if t.endswith('_sn'): return (n % ns) != 0
            if t.endswith('_fin'): return not fb
            if t.endswith('_fbloop'): return n % 3 != 0
            return False
        return pol
    for cfg in ([(False, 3, False, 3, False, True), (True, 2, False, 2, True, False), (False, 2, True, 2, False, True)] if (not opt or opt[0] in ('pp', 'pq', 'tl', 'tr', 'nocode', 'notlb', 'dbg') or opt[0].startswith('kv=')) and not any(o_.endswith('A') for o_ in opt) else []):
        seq = trace(p, mk_policy(*cfg))
        nerr += len(check_linear(seq, name + str(cfg)))
    return p, nerr

def fallback(p, name, L):
    g = L
    vS, vP, vE, vL, vU, vNeg, vCi, vO = g['vS'], g['vP'], g['vE'], g['vL'], g['vU'], g['vNeg'], g['vCi'], g['vO']
    aQ, aK, aV, vLane16, vNinf = g['aQ'], g['aK'], g['aV'], g['vLane16'], g['vNinf']
    S_KF, S_VF = g['S_KF'], g['S_VF']
    sFlag, sTL, sTS, sW, sH, sDd, sCnt, sT0, sT1, sT2 = (g[k] for k in ('sFlag', 'sTL', 'sTS', 'sW', 'sH', 'sDd', 'sCnt', 'sT0', 'sT1', 'sT2'))
    O = g['O']; mask_ops = g['mask_ops']; qk_mfmas = g['qk_mfmas']; pv_mfmas = g['pv_mfmas']; row_reduce = g['row_reduce']; store_ctx = g['store_ctx']
    put = g['put']
    p('s_waitcnt vmcnt(0) lgkmcnt(0)')
    for cols, sTile, bit, nm in (([2, 3], sTS, 2, 'S'), ([0, 1], sTL, 1, 'L')):
        p(f's_and_b32 s{sT0}, s{sFlag}, {bit}')
        p(f's_cmp_eq_u32 s{sT0}, 0')
        p(f's_cbranch_scc1 {name}_fbskip{nm}')
        for c in cols:
            p(f'v_mov_b32 v{vL+c}, 0')
            for r in range(32): p(f'v_mov_b32 v{vO+32*c+r}, 0')
            for r in range(4): p(f'v_mov_b32 v{vNeg+4*c+r}, 0')
        for i in range(2): p(f'v_mov_b32 v{vU+4+i}, v{vNinf}')
        p(f's_lshl_b32 s{sDd}, s{sTile}, 2')
        p(f's_add_u32 s{sDd}, s{sDd}, s{sW}')
        p(f's_add_u32 s{sCnt}, s{sDd}, 1')
        p(f's_sub_u32 s{sDd}, 0, s{sDd}')
        p(f's_lshl_b32 s{sT2}, s{sH}, 19')
        p.label(f'{name}_fb{nm}_fbloop')
        for f in range(8):
            p(f's_add_u32 s{sT1}, s{sT2}, {(f // 4)*4096}')
            p(f'buffer_load_dwordx4 a[{aK+4*f}:{aK+4*f+3}], v{vLane16}, s[{S_KF}:{S_KF+3}], s{sT1} offen offset:{(f % 4)*1024}')
            p(f'buffer_load_dwordx4 a[{aV+4*f}:{aV+4*f+3}], v{vLane16}, s[{S_VF}:{S_VF+3}], s{sT1} offen offset:{(f % 4)*1024}')
        for it in mask_ops(cols): put(it)
        p('s_waitcnt vmcnt(0)')
        p('s_nop 1')
        for m in qk_mfmas(cols, 0, lambda c, kb: vCi + 8*(c - cols[0]) + 4*kb): p(m)
        p('s_nop 7')
        for i, c in enumerate(cols):
            S = vS + 8*i; t = vU + i; m = vU + 4 + i
            p(f'v_max3_f32 v{t}, v{S}, v{S+1}, v{S+2}')
            p(f'v_max3_f32 v{t}, v{t}, v{S+3}, v{S+4}')
            p(f'v_max3_f32 v{t}, v{t}, v{S+5}, v{S+6}')
            p(f'v_max_f32 v{t}, v{t}, v{S+7}')
            row_reduce(t, 'v_max_f32', vU + 6)
            p(f'v_max_f32 v{t}, v{t}, v{m}')
            p(f'v_sub_f32 v{vU+6}, v{m}, v{t}')
            p(f'v_exp_f32 v{vU+6}, v{vU+6}')
            p(f'v_mov_b32 v{m}, v{t}')
            p(f'v_mul_f32 v{vL+c}, v{vL+c}, v{vU+6}')
            for r in range(32): p(f'v_mul_f32 v{vO+32*c+r}, v{vO+32*c+r}, v{vU+6}')
            for r in range(8): p(f'v_sub_f32 v{S+r}, v{S+r}, v{t}')
            for r in range(8): p(f'v_exp_f32 v{S+r}, v{S+r}')
            p('s_nop 0')
            for r in range(8): p(f'v_add_f32 v{vL+c}, v{vL+c}, v{S+r}')
            for k in range(4): p(f'v_cvt_pk_bf16_f32 v{vP+4*c+k}, v{S+2*k}, v{S+2*k+1}')
        p('s_nop 1')
        for m in pv_mfmas(cols, 0): p(m)
        p('s_nop 7')
        p(f's_add_u32 s{sT2}, s{sT2}, 8192')
        p(f's_add_u32 s{sDd}, s{sDd}, 1')
        p(f's_sub_u32 s{sCnt}, s{sCnt}, 1')
        p(f's_cmp_lg_u32 s{sCnt}, 0')
        p(f's_cbranch_scc1 {name}_fb{nm}_fbloop')
        for c in cols: row_reduce(vL + c, 'v_add_f32', vU)
        for c in cols: p(f'v_rcp_f32 v{vL+c}, v{vL+c}')
        store_ctx(cols, sTile)
        p.label(f'{name}_fbskip{nm}')

if __name__ == '__main__':
    p, ne = gen_kf()
    print('instrs', p.count(), 'errors', ne)
```

```python
from common import *
from gx2 import *
from sched import *
from k1b import w_tile_setup, MF
from lnops import *
WS_FLG = 82*MiB

CTX_FLAGS = 'sc1'
LIM = 0x5d800000
NEGBIG = 0xff800000
opt_idx = [0]
TW, TF, PE = False, True, True
FP = 'db'
TA = False
LATE1 = False
CODE0 = False
PREFETCH = True

def gen_kf(name='front_kernel', prof=False, opt=()):
    p = P2(); p.prof = prof
    p.lenient = 'nordsA' in opt
    p.dbgmode = 'dbg' in opt
    import os as _os
    p.dbgwg = int(_os.environ.get('DBGWG', '48'))
    p.stampset = set(['start', 'phase A done', 'q end', 'attn prologue done', 'L done', 'ctx ready', 'gemm end', 'key out', 'argmax ready', 'ffn atomics done'])
    if 'tr' in opt: p.stampset = set(['start', 'q end', 'pre check', 'kv ok', 'qk0 done', 'attn prologue done', 'L done', 'tail setup', 'ctx pub', 'ctx ready'])
    if 'tl' in opt: p.stampset = set(['start', 'L done', 'ctx ready', 'gemm end', 'signalled', 'partials ready', 'partials loaded', 'key out', 'argmax ready', 'ffn atomics done'])
    put = make_put(p)
    S_WQ, S_XNF, S_KF, S_VF, S_CTX = 16, 20, 24, 28, 32
    sM = 36
    sW, sH, sI = 44, 45, 46
    sT0, sT1, sT2 = 47, 48, 49
    sLW = 50
    sWoff = 51
    sXL, sXS = 52, 53
    sKb, sVb = 54, 55
    sHbase = 56
    sSlotP, sSlotR = 57, 58
    sTL, sTS = 59, 60
    sCnt = 61
    sDd = 62
    sFlag = 63
    sCtx = 64
    sLim = 65
    sScale = 61
    sSel = 4
    vLane16 = 1; vRd = 2; vNinf = 3
    vOffW = 4
    vLPW = 8; vT = 9
    vNeg = 16; vCi = 32; vS = 48; vP = 80; vE = 112; vL = 116; vU = 120
    vCW = 120
    vWF = 48
    vO = 128
    aQ = 0; aK = 64; aV = 96; aX = 128
    O = lambda c, db: vO + 32*c + 4*db
    Sr = lambda sc, kb: vS + 8*sc + 4*kb
    Pr = lambda par, c: vP + 16*par + 4*c
    NSLOT = 5

    S_CKV, S_X, S_DBG = 4, 8, 88
    S_WUK, S_WUV = 36, 40
    S_FL = 68
    sTag = 3
    sXcc = 67; sSame = 66
    sASum = sFlag
    sAoff = sDd; sWr = sCtx; sAr = sLim; sWp = sKb; sAp = sVb; sKst = sSlotP
    vOffA = 16
    vLPA = 20; vCA = 21
    vWK = 32; vWV = 64; vAct = 128
    SPIN = 1 << 16
    p(f's_cmp_ge_u32 s2, 256')
    p(f's_cbranch_scc1 {name}_done')
    p.stamp('start')
    if CODE0 and 'nocode' not in opt:
        p('s_lshr_b32 s14, s2, 3')
        p('s_cmp_ge_u32 s14, 12')
        p(f's_cbranch_scc1 {name}_nocode')
        p('s_getpc_b64 s[76:77]')
        p.label(f'{name}_pc')
        p('s_lshl_b32 s14, s14, 13')
        p('v_lshlrev_b32 v9, 5, v0')
        p('v_add_u32 v9, s14, v9')
        p(f'v_min_u32 v9, code_end_all-{name}_pc-4, v9')
        p('v_and_b32 v9, -4, v9')
        p('global_load_dword v23, v9, s[76:77]')
        p.label(f'{name}_nocode')
    p(f's_load_dwordx2 s[84:85], s[0:1], {ARG["x"]}')
    p(f's_load_dwordx2 s[86:87], s[0:1], {ARG["ckv"]}')
    p(f's_load_dwordx4 s[88:91], s[0:1], {ARG["wuk"]}')
    p(f's_load_dwordx2 s[92:93], s[0:1], {ARG["wq"]}')
    p(f's_load_dwordx4 s[96:99], s[0:1], {ARG["dbg"]}')
    p('s_and_b32 s14, s2, 7')
    p('s_lshr_b32 s15, s2, 3')
    p(f's_lshr_b32 s{sH}, s15, 3')
    p(f's_lshl_b32 s14, s14, 2')
    p(f's_add_u32 s{sH}, s{sH}, s14')
    p(f's_and_b32 s{sI}, s15, 7')
    p('v_lshrrev_b32 v2, 6, v0')
    p('v_and_b32 v0, 63, v0')
    p(f'v_readfirstlane_b32 s{sW}, v2')
    p(f'v_lshlrev_b32 v{vLane16}, 4, v0')
    p(f's_getreg_b32 s{sXcc}, hwreg(HW_REG_XCC_ID, 0, 4)')
    w_tile_setup(p, vOffW, vLPW, vT)
    p(f'v_lshrrev_b32 v{vT}, 3, v0')
    p(f'v_lshlrev_b32 v{vT}, 10, v{vT}')
    p(f'v_lshrrev_b32 v{vT+1}, 4, v0')
    p(f'v_and_b32 v{vT+2}, 7, v0')
    p(f'v_xor_b32 v{vT+2}, v{vT+2}, v{vT+1}')
    p(f'v_lshl_add_u32 v{vOffA}, v{vT+2}, 4, v{vT}')
    p(f'v_xor_b32 v{vT+3}, 4, v{vT+2}')
    p(f'v_lshl_add_u32 v{vOffA+1}, v{vT+3}, 4, v{vT}')
    p(f'v_add_u32 v{vOffA+2}, {2*7168}, v{vOffA}')
    p(f'v_add_u32 v{vOffA+3}, {3*7168}, v{vOffA+1}')
    p(f'v_add_u32 v{vOffA+1}, {1*7168}, v{vOffA+1}')
    p(f'v_and_b32 v{vT}, 15, v0')
    p(f'v_bfe_u32 v{vT+1}, v0, 1, 3')
    p(f'v_lshrrev_b32 v{vT+2}, 4, v0')
    p(f'v_xor_b32 v{vT+1}, v{vT+1}, v{vT+2}')
    p(f'v_lshlrev_b32 v{vT}, 7, v{vT}')
    p(f'v_lshl_add_u32 v{vLPA}, v{vT+1}, 4, v{vT}')
    p(f's_lshl_b32 s{sLW}, s{sW}, 12')
    p(f's_lshl_b32 s{sWoff}, s{sW}, 17')
    p(f's_lshl_b32 s{sT1}, s{sH}, 8')
    p(f's_add_u32 s{sWoff}, s{sWoff}, s{sT1}')
    p(f's_lshl_b32 s{sT0}, s{sI}, 8')
    p(f's_lshl_b32 s{sT1}, s{sW}, 6')
    p(f's_add_u32 s{sT0}, s{sT0}, s{sT1}')
    p(f's_lshl_b32 s{sAoff}, s{sT0}, 10')
    sK0 = sXL; sLA = sXS
    p(f's_lshl_b32 s{sHbase}, s{sH}, 6')
    p(f's_lshr_b32 s{sT1}, s{sT0}, 5')
    p(f's_add_u32 s{sHbase}, s{sHbase}, s{sT1}')
    p(f's_lshl_b32 s{sHbase}, s{sHbase}, 13')
    p(f's_lshl_b32 s{sLA}, s{sW}, 13')
    p('s_waitcnt lgkmcnt(0)')
    srd(p, S_CKV, 86, 2048*512*2)
    srd(p, S_WUK, 88, 512*4096*2)
    srd(p, S_WUV, 90, 512*4096*2)
    SL = 16384
    ACT0 = 98304
    def emit(L):
        prev = None
        for it in L:
            if it[0] == 'm' and prev is not None and prev[0] == 's' and ' m0,' in prev[1]: put(('s', 's_nop 0'))
            put(it); prev = it
    def dmaW_static(st):
        base = (st % 3)*32768; L = []
        for mi, sr in enumerate((S_WUK, S_WUV)):
            L += [('s', f's_add_u32 s{sT0}, s{sWoff}, {st*64*8192}'), ('s', f's_add_u32 m0, s{sLW}, {base + mi*SL}')]
            for i in range(4): L.append(('m', f'buffer_load_dwordx4 v{vOffW+i}, s[{sr}:{sr+3}], s{sT0} offen offset:{1024*i} lds', f'W{st}', ('W', base + mi*SL, base + (mi+1)*SL, True)))
        return L
    def dmaA_static(st, adj=0):
        base = ACT0 + (st % 2)*32768; L = []
        for half in range(2):
            L += [('s', f's_add_u32 s{sT1}, s{sAoff}, {(st*128 + 32768*half + adj) & 0xffffffff}'), ('s', f's_add_u32 m0, s{sLA}, {base + 4096*half}')]
            for i in range(4): L.append(('m', f'buffer_load_dwordx4 v{vOffA+i}, s[{S_CKV}:{S_CKV+3}], s{sT1} offen offset:{1024*i} lds', f'A{st}', ('W', base, base + 32768, False)))
        return L
    if 'pp' in opt: p.stamp('setup')
    emit(dmaA_static(0)); emit(dmaW_static(0))
    if 'pp' in opt: p.stamp('A0W0 issued')
    srd(p, S_X, 84, 2048*640*2)
    srd(p, S_WQ, 92, 640*4096*2)
    srd(p, S_XNF, 98, SZ_XNF, WS_XNF)
    srd(p, S_KF, 98, SZ_KF, WS_KF)
    srd(p, S_VF, 98, SZ_KF, WS_VF)
    srd(p, S_CTX, 98, SZ_CTX, WS_CTX)
    srd(p, S_FL, 98, 8192, WS_FLG)
    X = 160; RAW = 200; vXo = 220; vXn = 221; LT = 224
    p(f's_lshl_b32 s{sT1}, s2, 3')
    p(f's_and_b32 s14, s{sW}, 1')
    p(f's_lshl_b32 s14, s14, 2')
    p(f's_add_u32 s{sT1}, s{sT1}, s14')
    p(f'v_and_b32 v{vT}, 3, v0')
    p(f'v_add_u32 v{vT}, s{sT1}, v{vT}')
    p(f'v_lshrrev_b32 v{vT+1}, 2, v0')
    p(f'v_mul_u32_u24 v{vXo}, 1280, v{vT}')
    p(f'v_lshl_add_u32 v{vXo}, v{vT+1}, 4, v{vXo}')
    p(f'v_lshrrev_b32 v{vXn}, 4, v{vT}')
    p(f'v_mul_u32_u24 v{vXn}, 20, v{vXn}')
    p(f'v_lshrrev_b32 v{vT+2}, 2, v{vT+1}')
    p(f'v_add_u32 v{vXn}, v{vXn}, v{vT+2}')
    p(f'v_lshlrev_b32 v{vXn}, 10, v{vXn}')
    p(f'v_and_b32 v{vT+2}, 3, v{vT+1}')
    p(f'v_lshlrev_b32 v{vT+2}, 4, v{vT+2}')
    p(f'v_and_b32 v{vT+3}, 15, v{vT}')
    p(f'v_add_u32 v{vT+2}, v{vT+2}, v{vT+3}')
    p(f'v_lshl_add_u32 v{vXn}, v{vT+2}, 4, v{vXn}')
    for i in range(5):
        p(f'buffer_load_dwordx4 v[{RAW+4*i}:{RAW+4*i+3}], v{vXo}, s[{S_X}:{S_X+3}], 0 offen offset:{256*i}')
    S_LNS = 96
    if not CODE0:
        if 'nocode' not in opt:
            p(f's_lshr_b32 s14, s2, 3')
            p(f's_cmp_ge_u32 s14, 12')
            p(f's_cbranch_scc1 {name}_nocode')
            p(f's_cmp_lg_u32 s{sW}, 3')
            p(f's_cbranch_scc1 {name}_nocode')
            p('s_getpc_b64 s[76:77]')
            p.label(f'{name}_pc')
            p(f's_lshl_b32 s14, s14, 13')
            p(f'v_lshlrev_b32 v{vT}, 7, v0')
            p(f'v_add_u32 v{vT}, s14, v{vT}')
            p(f'v_min_u32 v{vT}, code_end_all-{name}_pc-4, v{vT}')
            p(f'v_and_b32 v{vT}, -4, v{vT}')
            p(f'global_load_dword v{vT+2}, v{vT}, s[76:77]')
            p.label(f'{name}_nocode')
    if 'notlb' not in opt:
        p('s_mov_b32 s76, s98'); p('s_mov_b32 s77, s99'); p(f's_mov_b32 s78, {96*MiB}'); p('s_mov_b32 s79, 0x00020000')
        p(f'v_mov_b32 v{vT}, {WS_FLG}')
        p(f's_add_u32 s14, s{sHbase}, {WS_KF}'); p(f'v_writelane_b32 v{vT}, s14, 1')
        p(f's_add_u32 s14, s{sHbase}, {WS_VF}'); p(f'v_writelane_b32 v{vT}, s14, 2')
        p(f's_lshl_b32 s15, s{sH}, 19')
        for k in range(2):
            p(f's_add_u32 s14, s15, {WS_KF + k*524160}'); p(f'v_writelane_b32 v{vT}, s14, {3 + 2*k}')
            p(f's_add_u32 s14, s15, {WS_VF + k*524160}'); p(f'v_writelane_b32 v{vT}, s14, {4 + 2*k}')
        p(f's_mov_b32 s14, {WS_XNF}'); p(f'v_writelane_b32 v{vT}, s14, 7')
        p(f's_mov_b32 s14, {WS_XNF + 2*MiB}'); p(f'v_writelane_b32 v{vT}, s14, 8')
        p(f's_sub_u32 s14, 15, s{sI}'); p('s_lshl_b32 s14, s14, 20'); p(f's_add_u32 s14, s14, {WS_CTX}'); p(f'v_writelane_b32 v{vT}, s14, 9')
        p(f's_lshl_b32 s14, s{sI}, 20'); p(f's_add_u32 s14, s14, {WS_CTX}'); p(f'v_writelane_b32 v{vT}, s14, 10')
        p(f'buffer_load_dword v{vT+2}, v{vT}, s[76:79], 0 offen')
    if 'pp' in opt: p.stamp('x issued')
    srd(p, S_DBG, 96, 256)
    p('v_mov_b32 v26, 0')
    p('s_or_b32 s14, s2, 0')
    p(f's_add_u32 s14, s2, s{sW}')
    p('s_cmp_lg_u32 s14, 0')
    p(f's_cbranch_scc1 {name}_notag')
    p('s_memrealtime s[92:93]')
    p('s_waitcnt lgkmcnt(0)')
    p('s_or_b32 s92, s92, 1')
    p('v_mov_b32 v24, s92')
    p(f'buffer_store_dword v24, v26, s[{S_DBG}:{S_DBG+3}], 0 offen sc1')
    p.label(f'{name}_notag')
    if 'pp' in opt: p.stamp('tag issued')
    if not LATE1:
        emit(dmaA_static(1)); emit(dmaW_static(1))
    (p.stamp('dma issued') if 'pq' not in opt else None)
    p('s_cmp_lg_u32 s2, 0')
    p(f's_cbranch_scc1 {name}_nz')
    p(f's_add_u32 s76, s98, {WS_YACC}')
    p('s_addc_u32 s77, s99, 0')
    p(f's_mov_b32 s78, {SZ_ZERO}')
    p('s_mov_b32 s79, 0x00020000')
    for r in range(4): p(f'v_mov_b32 v{28+r}, 0')
    p(f's_mul_i32 s14, s{sW}, 7168')
    for i in range(7):
        p(f'buffer_store_dwordx4 v[28:31], v{vLane16}, s[76:79], s14 offen sc1')
        p(f's_add_u32 s14, s14, 1024')
    p.label(f'{name}_nz')
    p(f's_add_u32 s96, s98, {WS_XNF}')
    p('s_addc_u32 s97, s99, 0')
    p(f's_mov_b32 s98, {SZ_XNF}')
    p('s_mov_b32 s99, 0x00020000')
    p(f's_cmp_lt_u32 s{sW}, 2')
    p('s_cselect_b32 s98, s98, 0')
    p('s_waitcnt vmcnt(0)' if LATE1 else 's_waitcnt vmcnt(16)')
    p('s_barrier')
    (p.stamp('B0') if 'pq' not in opt else None)
    def rd_act(buf, kin, tb, lab):
        r = vAct + 16*buf + 4*tb
        return ('r', f'ds_read_b128 v[{r}:{r+3}], v{vCA+kin} offset:{2048*tb}', lab)
    def rd_wA(mi, db, kin, lab):
        r = (vWK if mi == 0 else vWV) + 4*db
        return [('r', f'ds_read_b64_tr_b16 v[{r+2*h}:{r+2*h+1}], v{vCW+db} offset:{mi*SL + 8192*kin + 1024*h}', lab) for h in range(2)]
    updA = [('v', f'v_add_u32 v{vCA}, s{sAr}, v{vLPA}'), ('v', f'v_xor_b32 v{vCA+1}, 64, v{vCA}')]
    updWd = [('v', f'v_add_u32 v{vCW}, s{sWr}, v{vLPW}')] + [('v', f'v_xor_b32 v{vCW+db}, {db*32}, v{vCW}') for db in range(1, 8)]
    KA = lambda tb, db: (tb*8 + db)*4
    VA = lambda tb, db: 128 + ((tb >> 1)*16 + db*2 + (tb & 1))*4
    def stageA_mfmas(first):
        L = []
        for kin in range(2):
            for db in range(8):
                for tb in range(4):
                    a = KA(tb, db); f = vAct + 16*kin + 4*tb
                    c = '0' if (first and kin == 0) else f'a[{a}:{a+3}]'
                    L.append(f'{MF} a[{a}:{a+3}], v[{vWK+4*db}:{vWK+4*db+3}], v[{f}:{f+3}], {c}')
                for tb in range(4):
                    a = VA(tb, db); f = vAct + 16*kin + 4*tb
                    c = '0' if (first and kin == 0) else f'a[{a}:{a+3}]'
                    L.append(f'{MF} a[{a}:{a+3}], v[{f}:{f+3}], v[{vWV+4*db}:{vWV+4*db+3}], {c}')
        return L
    GA = lambda kin, db, m: kin*64 + db*8 + m
    def spread(R, L, g0, g1):
        nm = sum(1 for x in L if x[0] in ('m', 'l', 'st'))
        step = max(1, (g1 - g0) // max(nm, 1))
        g = g0; cnt = 0; prev = None
        for it in L:
            e = max(g, g0 + cnt*step - (2 if it[0] == 's' else 0))
            if it[0] == 'm' and prev is not None and prev[0] == 's' and ' m0,' in prev[1]: e = max(e, gprev + 1)
            g = R.place(it, e, g1); gprev = g; prev = it
            if it[0] in ('m', 'l', 'st'): cnt += 1; g += 1
    def stageA(kind, dmaA_items, dmaB_items, barlabs, next_reads=None, mid=None, first=False, bend=None):
        R = Region(stageA_mfmas(first))
        BG = GA(1, 0, 7)
        R.S[BG].append(('bar', barlabs))
        if mid: R.S[BG].extend(mid)
        if next_reads is None:
            R.S[GA(1, 0, 1)].append(('s', f's_add_u32 s{sWr}, s{sWr}, 32768'))
            R.S[GA(1, 0, 2)].append(('s', f's_cmp_ge_u32 s{sWr}, 98304\ns_cselect_b32 s{sWr}, 0, s{sWr}'))
            R.S[GA(1, 0, 3)].append(('s', f's_sub_u32 s{sAr}, s{sASum}, s{sAr}'))
            R.stream(updA + updWd, GA(1, 0, 4), GA(1, 2, 0))
        else:
            R.stream(next_reads[0], GA(1, 0, 4), GA(1, 2, 0))
        for kin in range(2):
            for db in range(8):
                for mi in range(2):
                    if kin == 0 and db == 0 and mi == 0: continue
                    labs = [f'w{kin}_{mi}_{db}'] + ([f'act{kin}'] if (db == 0 and mi == 0) else [])
                    R.place(('wlg', labs), GA(kin, db, 4*mi) - 1, force=True)
        for db in range(8):
            for mi in range(2):
                rr = rd_wA(mi, db, 1, f'w1_{mi}_{db}')
                e = GA(0, db, 4*mi + 3)
                g = R.place(rr[0], e, GA(1, 0, 0)); R.place(rr[1], min(g + 1, GA(1, 0, 0)), GA(1, 0, 0))
        for tb in range(4): R.place(rd_act(1, 1, tb, 'act1'), GA(0, 1, 1) + 5*tb)
        if next_reads is None:
            for db in range(8):
                for mi in range(2):
                    rr = rd_wA(mi, db, 0, f'n0_{mi}_{db}')
                    e = max(GA(1, db, 4*mi + 3), GA(1, 2, 1))
                    g = R.place(rr[0], e); R.place(rr[1], g + 1)
            for tb in range(4): R.place(rd_act(0, 0, tb, 'nact0'), GA(1, 2, 2) + 5*tb)
        else:
            for (it, e) in next_reads[1]: R.place(it, max(e, GA(1, 2, 1)))
        if 'nodmaA' in opt and kind in ('s0', 's1', 'loop'): dmaA_items = [x for x in dmaA_items if x[0] != 'm']; dmaB_items = [x for x in dmaB_items if x[0] != 'm']
        if 'nowA' in opt and kind in ('s0', 's1', 'loop'):
            for g in range(R.n): R.S[g] = [x for x in R.S[g] if x[0] != 'wlg']
        if 'nordsA' in opt and kind in ('s0', 's1', 'loop'):
            for g in range(R.n): R.M[g] = []; R.S[g] = [x for x in R.S[g] if x[0] != 'wlg']
        spread(R, dmaA_items, 1, BG - 2)
        spread(R, dmaB_items, BG + 1, bend if bend else R.n - 2)
        return R
    def dyn_dmaW():
        L = []
        for mi, sr in enumerate((S_WUK, S_WUV)):
            L += [('s', f's_add_u32 m0, s{sWp}, {mi*SL}')]
            for i in range(4): L.append(('m', f'buffer_load_dwordx4 v{vOffW+i}, s[{sr}:{sr+3}], s{sKst} offen offset:{1024*i} lds', 'Wn', None))
        L += [('s', f's_add_u32 s{sKst}, s{sKst}, {64*8192}'), ('s', f's_add_u32 s{sWp}, s{sWp}, 32768'),
              ('s', f's_cmp_ge_u32 s{sWp}, 98304\ns_cselect_b32 s{sWp}, s{sLW}, s{sWp}')]
        return L
    def dyn_dmaA():
        L = []
        for half in range(2):
            L += [('s', f's_add_u32 s{sT1}, s{sAoff}, {32768*half}'), ('s', f's_add_u32 m0, s{sAp}, {4096*half}')]
            for i in range(4): L.append(('m', f'buffer_load_dwordx4 v{vOffA+i}, s[{S_CKV}:{S_CKV+3}], s{sT1} offen offset:{1024*i} lds', 'An', None))
        L += [('s', f's_add_u32 s{sAoff}, s{sAoff}, 128'), ('s', f's_sub_u32 s{sAp}, s{sASum}, s{sAp}')]
        if TA: L.append(('l', f'buffer_load_dword v31, v30, s[{S_CKV}:{S_CKV+3}], s{sAoff} offen', 'TCH'))
        return L
    p('v_lshlrev_b32 v30, 10, v0')
    p(f's_mov_b32 s{sWr}, 0')
    p(f's_add_u32 s{sAr}, s{sLA}, {ACT0}')
    p(f's_add_u32 s{sWp}, s{sLW}, 65536')
    p(f's_add_u32 s{sAp}, s{sLA}, {ACT0}')
    p(f's_lshl_b32 s{sASum}, s{sAp}, 1')
    p(f's_add_u32 s{sASum}, s{sASum}, 32768')
    p(f's_add_u32 s{sKst}, s{sWoff}, {2*64*8192}')
    p(f's_add_u32 s{sAoff}, s{sAoff}, 256')
    emit(updA + updWd)
    p.lgq = []; p.lg_ret = -1
    for tb in range(4): put(rd_act(0, 0, tb, 'act0'))
    for db in range(8):
        for mi in range(2): emit(rd_wA(mi, db, 0, f'w0_{mi}_{db}'))
    def next_order(R):
        L = []
        for g in range(R.n):
            for it in R.M[g]:
                if it[0] == 'r' and (it[2].startswith('n0_') or it[2] == 'nact0'):
                    L.append('act0' if it[2] == 'nact0' else 'w0_' + it[2][3:])
        return L
    order = [None]
    def relabel():
        p.lgq = list(order[0]); p.lg_ret = -1
    def bar_raw(n):
        if 'nobarA' in opt: return ('w', f's_waitcnt vmcnt({n}) lgkmcnt(0)')
        return ('w', f's_waitcnt vmcnt({n}) lgkmcnt(0)\ns_barrier')
    BG = GA(1, 0, 7)
    def fix_bar(R, n, extra=()):
        R.S[BG] = [bar_raw(n), ('call', lambda: p.lg_all())] + list(extra) + [x for x in R.S[BG] if x[0] != 'bar']
    def red64x4(r):
        L = []
        for sh in (8, 4): L += ['s_nop 1', f'v_add_f32_dpp v{r}, v{r}, v{r} row_ror:{sh} row_mask:0xf bank_mask:0xf']
        for sw in ('v_permlane16_swap_b32', 'v_permlane32_swap_b32'):
            L += [f'v_mov_b32 v{LT+6}, v{r}', 's_nop 1', f'{sw} v{r}, v{LT+6}', 's_nop 1', f'v_add_f32 v{r}, v{r}, v{LT+6}']
        return L
    lnops = []
    for i in range(5): lnops += unpack8(RAW + 4*i, X + 8*i)
    lnops += ln_stream(X, 40, LT, red64x4, scale='0x3e0293ee')
    ln = [('v', x) for x in lnops]
    for i in range(5):
        ln.append(('s', f's_mov_b32 s14, {4096*i}'))
        ln.append(('st', f'buffer_store_dwordx4 v[{X+4*i}:{X+4*i+3}], v{vXn}, s[{S_LNS}:{S_LNS+3}], s14 offen sc1'))
    half = len(ln) // 2
    def tag_read():
        p('s_mov_b32 s14, 0')
        p.label(f'{name}_tagpoll')
        p(f'v_readfirstlane_b32 s{sTag}, v24')
        p('s_add_u32 s14, s14, 1')
        p('s_nop 2')
        p(f's_cmp_lg_u32 s{sTag}, 0')
        p(f's_cbranch_scc1 {name}_notag2')
        p(f's_cmp_ge_u32 s14, {SPIN}')
        p(f's_cbranch_scc1 {name}_notag2')
        p(f'buffer_load_dword v24, v26, s[{S_DBG}:{S_DBG+3}], 0 offen sc1')
        p('s_waitcnt vmcnt(0)')
        p(f's_branch {name}_tagpoll')
        p.label(f'{name}_notag2')
    def pub_ln():
        p(f's_cmp_lg_u32 s{sCnt}, {1 if TA else 0}')
        p(f's_cbranch_scc1 {name}_nopub')
        p(f's_cmp_lg_u32 s{sW}, 0')
        p(f's_cbranch_scc1 {name}_nopub')
        p(f's_lshl_b32 s14, s2, 3')
        p(f'v_mov_b32 v24, s{sTag}')
        p(f'v_mov_b32 v25, s{sXcc}')
        p('v_mov_b32 v26, 0')
        p(f'buffer_store_dwordx2 v[24:25], v26, s[{S_FL}:{S_FL+3}], s14 offen sc1')
        p.label(f'{name}_nopub')
    R0 = stageA('s0', (dmaA_static(1, -256) + dmaW_static(1) if LATE1 else []) + dyn_dmaW(), dyn_dmaA(), None, first=True, bend=BG + 34)
    fix_bar(R0, 8)
    R0.place(('l', f'buffer_load_dword v24, v26, s[{S_DBG}:{S_DBG+3}], 0 offen sc1', 'TAG'), BG + 1, force=True)
    R0.period = 20; R0.stream(ln[:half], 4, None, pace=lambda k: 4 + (k*120)//half); R0.period = 16
    p.lgq = ['act0']*4 + [f'w0_{mi}_{db}' for db in range(8) for mi in range(2) for _ in range(2)]; p.lg_ret = -1
    put(('wlg', ['w0_0_0', 'act0']))
    R0.emit(p, put); order[0] = next_order(R0)
    R1_ = stageA('s1', dyn_dmaW(), dyn_dmaA(), None, bend=BG + 34)
    fix_bar(R1_, 9 if TA else 8, [('call', tag_read)])
    nv = [x for x in ln[half:] if x[0] == 'v']; tail = ln[half + len(nv):]
    R1_.period = 20; g = R1_.stream(ln[half:], 0, None, pace=lambda k: min((k*118)//(len(ln) - half), 200) if ln[half + k][0] == 'v' else BG + 2); R1_.period = 16
    relabel(); put(('wlg', ['w0_0_0', 'act0']))
    R1_.emit(p, put); order[0] = next_order(R1_)
    print('stage0/1 est', R0.total(), R1_.total())
    if 'ps' in opt: p.stamp('stage1 done')
    p(f's_mov_b32 s{sCnt}, 0')
    LA = f'{name}_stageA'
    p.label(LA)
    Rl = stageA('loop', dyn_dmaW(), dyn_dmaA(), None, bend=BG + 34)
    fix_bar(Rl, 9 if TA else 8, [('call', pub_ln)])
    Rl.T[Rl.n - 1] += [('s', f's_add_u32 s{sCnt}, s{sCnt}, 1'), ('s', f's_cmp_lt_u32 s{sCnt}, 4')]
    assert 'nordsA' in opt or next_order(Rl) == order[0], 'stage read order must be periodic'
    relabel()
    put(('wlg', ['w0_0_0', 'act0']))
    Rl.emit(p, put)
    print('stageA loop est', Rl.total(), 'overflow', Rl.over)
    p(f's_cbranch_scc1 {LA}')
    if 'pp' not in opt: (p.stamp('A loop done') if 'pq' not in opt else None)
    def dma_wq(c):
        L = [('s', f's_add_u32 s{sT0}, s{sWoff}, {c*64*8192}'), ('s', f's_add_u32 m0, s{sLW}, {c*SL}')]
        for i in range(4):
            L.append(('m', f'buffer_load_dwordx4 v{vOffW+i}, s[{S_WQ}:{S_WQ+3}], s{sT0} offen offset:{1024*i} lds', f'WQ{c}', None))
        return L
    relabel()
    put(('wlg', ['w0_0_0', 'act0']))
    flagld = [('s', f's_sub_u32 s{sTL}, 15, s{sI}'), ('s', f's_mov_b32 s{sTS}, s{sI}'),
              ('v', f'v_and_b32 v24, 15, v0'), ('v', f'v_bfe_u32 v25, v0, 4, 1'),
              ('v', f'v_mov_b32 v26, s{sTL}'), ('v', f'v_mov_b32 v27, s{sTS}'),
              ('v', f'v_cmp_eq_u32 vcc, 0, v25'), ('v', 's_nop 1'), ('v', f'v_cndmask_b32 v26, v27, v26, vcc'),
              ('v', f'v_lshl_add_u32 v24, v26, 4, v24'),
              ('s', f's_and_b32 s14, s{sH}, 3'), ('s', f's_lshl_b32 s14, s14, 6'), ('s', f's_lshr_b32 s15, s{sH}, 2'), ('s', f's_add_u32 s14, s14, s15'),
              ('v', f'v_and_b32 v25, 7, v0'), ('v', f'v_lshlrev_b32 v25, 3, v25'), ('v', f'v_add_u32 v25, s14, v25'),
              ('v', f'v_cmp_gt_u32 vcc, 32, v0'), ('v', 's_nop 1'), ('v', f'v_cndmask_b32 v24, v25, v24, vcc'),
              ('v', f'v_lshlrev_b32 v24, 3, v24'),
              ('l', f'buffer_load_dwordx2 v[28:29], v24, s[{S_FL}:{S_FL+3}], 0 offen sc1', 'FL')]
    R6 = stageA('s6', dma_wq(4) + dma_wq(5), dma_wq(0) + dma_wq(1), None)
    fix_bar(R6, 9 if TA else 8)
    R6.stream(flagld, BG + 24)
    R6.emit(p, put)
    order[0] = next_order(R6)
    XR = [16, 96, 32, 80]
    XRING = [('v', 16), ('v', 96), ('v', 32), ('v', 80), ('a', 0), ('a', 16), ('a', 32), ('a', 48)]
    def xreg(ks, c):
        t, b = XRING[ks % 8]
        return f'{t}[{b+4*c}:{b+4*c+3}]'
    def xn_load(ks):
        L = []
        for c in range(4):
            off = ks*1024 + (c & 1)*20480
            sb = sXL if c < 2 else sXS
            L.append(('s', f's_add_u32 s{sT1}, s{sb}, {off & ~4095}'))
            L.append(('l', f'buffer_load_dwordx4 {xreg(ks, c)}, v{vLane16}, s[{S_XNF}:{S_XNF+3}], s{sT1} offen offset:{off & 4095} sc1', f'XN{ks}'))
        return L
    def rd_w(db, kin, base, lab):
        r = vWF + 4*db
        return [('r', f'ds_read_b64_tr_b16 v[{r+2*h}:{r+2*h+1}], v{vCW+db} offset:{8192*kin + 1024*h}', lab, None) for h in range(2)]
    def upd_w(base):
        return [('v', f'v_add_u32 v{vCW}, {base}, v{vLPW}')] + [('v', f'v_xor_b32 v{vCW+db}, {db*32}, v{vCW}') for db in range(1, 8)]
    def lncheck():
        p(f's_cmp_lg_u32 s{sW}, 0')
        p(f's_cbranch_scc1 {name}_lnok')
        p('s_mov_b32 s14, 0')
        p.label(f'{name}_lnpoll')
        p(f'v_cmp_ne_u32 vcc, s{sTag}, v28')
        p('s_add_u32 s14, s14, 1')
        p(f's_cbranch_vccz {name}_lnok2')
        p(f's_cmp_ge_u32 s14, {SPIN}')
        p(f's_cbranch_scc1 {name}_lnok2')
        p(f'buffer_load_dwordx2 v[28:29], v24, s[{S_FL}:{S_FL+3}], 0 offen sc1')
        p('s_waitcnt vmcnt(0)')
        p(f's_branch {name}_lnpoll')
        p.label(f'{name}_lnok2')
        p(f'v_cmp_ne_u32 vcc, s{sXcc}, v29')
        p('s_nop 1')
        p('s_lshr_b64 s[14:15], vcc, 32')
        p('s_cmp_eq_u64 s[14:15], 0')
        p(f's_cselect_b32 s{sSame}, 1, 0')
        p.label(f'{name}_lnok')
    relabel()
    put(('wlg', ['w0_0_0', 'act0']))
    xset = [('s', f's_lshl_b32 s{sT1}, s{sTL}, 3'), ('s', f's_lshl_b32 s{sT0}, s{sW}, 1'), ('s', f's_add_u32 s{sT1}, s{sT1}, s{sT0}'),
            ('s', f's_mul_i32 s{sXL}, s{sT1}, 20480'), ('s', f's_lshl_b32 s{sT1}, s{sTS}, 3'), ('s', f's_add_u32 s{sT1}, s{sT1}, s{sT0}'),
            ('s', f's_mul_i32 s{sXS}, s{sT1}, 20480')]
    def last_use(db):
        r = vWF + 4*db
        if r < 64: return GA(1, (r - vWK)//4, 3)
        return GA(1, (r - vWV)//4, 7)
    nr = []
    for db in range(8):
        for it in rd_w(db, 0, 0, f'w0_{db}'): nr.append((it, last_use(db) + 1))
    R7 = stageA('s7', xset + dma_wq(6) + dma_wq(7), dma_wq(2) + dma_wq(3) + dma_wq(8) + dma_wq(9), None, next_reads=(upd_w(0), nr))
    R7.S[BG] = [('call', lambda: (p('s_waitcnt vmcnt(8) lgkmcnt(0)'), p.lg_all(), lncheck(), p('s_barrier')))] + [x for x in R7.S[BG] if x[0] != 'bar']
    R7.stream(xn_load(0) + xn_load(1), BG + 2)
    R7.stream(xn_load(2), GA(1, 4, 0))
    R7.emit(p, put)
    if 'pp' not in opt: p.stamp('phase A done')
    NKS = 20
    mf = []
    for ks in range(NKS):
        for db in range(8):
            for c in range(4):
                acc = O(c, db)
                cc = '0' if ks == 0 else f'v[{acc}:{acc+3}]'
                mf.append(f'{MF} v[{acc}:{acc+3}], v[{vWF+4*db}:{vWF+4*db+3}], {xreg(ks, c)}, {cc}')
    R = Region(mf)
    G = lambda ks, db, c: ks*32 + db*4 + c
    p.wait_vm('XN0')
    put(('wlg', ['w0_0', 'w0_1']))
    R.S[G(3, 0, 3)].append(('bar', ['WQ2', 'WQ3', 'WQ8', 'WQ9', 'WQ4', 'WQ5', 'WQ6', 'WQ7']))
    for ch in range(9):
        R.stream(upd_w((ch + 1)*SL), G(2*ch + 1, 0, 1), G(2*ch + 1, 2, 0))
    for ks in range(NKS):
        for db in range(0, 8, 2):
            if ks == 0 and db == 0: continue
            R.place(('wlg', [f'w{ks}_{db}', f'w{ks}_{db+1}']), G(ks, db, 0) - 1, force=True)
        if ks: R.place(('wvm', f'XN{ks}'), G(ks, 0, 0) - 2, force=True)
    for ks in range(NKS - 1):
        ch, t = divmod(ks, 2); nxt = ks + 1; nch, nt = divmod(nxt, 2)
        for db in range(8):
            e = G(ks, db, 3)
            if t == 1: e = max(e, G(ks, 2, 1))
            rr = rd_w(db, nt, nch*SL, f'w{nxt}_{db}')
            lat = G(ks + 1, 0, 0) if t == 0 else None
            g = R.place(rr[0], e, lat); R.place(rr[1], g + 1 if t == 1 or db < 7 else g, lat)
    TE = 112
    STF = ''
    for o_ in opt:
        if o_.startswith('stf='): STF = o_[4:]
    sSt = sCtx
    epi = []
    sStB = sHbase
    for kind in range(2):
        for f in range(16):
            if kind == 0:
                tb, k4 = divmod(f, 4); a0 = KA(tb, 2*k4); off = tb*4096 + k4*1024; sr = S_KF
            else:
                b, db = divmod(f, 8); a0 = 128 + (b*16 + db*2)*4; off = b*8192 + db*1024; sr = S_VF
            for k in range(8): epi.append(('v', f'v_accvgpr_read_b32 v{TE+k}, a{a0+k}'))
            for k in range(4): epi.append(('v', f'v_cvt_pk_bf16_f32 v{TE+k}, v{TE+2*k}, v{TE+2*k+1}'))
            epi.append(('s', f's_add_u32 s{sSt}, s{sStB}, {off & ~4095}'))
            epi.append(('st', f'buffer_store_dwordx4 v[{TE}:{TE+3}], v{vLane16}, s[{sr}:{sr+3}], s{sSt} offen offset:{off & 4095} {STF}'))
            if 'nost' in opt: epi.pop()
            epi.append(('s', 's_nop 0'))
    KS_V = int(next((o_[3:] for o_ in opt if o_.startswith('kv=')), '17'))
    g0 = 12; span = G(KS_V, 4, 0) - g0
    gl = R.stream(epi, g0, None, pace=lambda k: g0 + (k*span)//len(epi))
    freed = {}
    for g in range(R.n):
        for it in R.V[g]:
            if it[1].startswith('v_accvgpr_read'): freed[int(it[1].split(' a')[-1])] = g
    gprev = 0
    for ks in range(3, NKS):
        t, b = XRING[ks % 8]
        if t == 'a' and ks < 8: e = max(freed[r] for r in range(b, b + 16)) + 1
        elif ks >= 8: e = G(ks - 8, 7, 3) + 1
        else: e = 0
        e = max(e, gprev + 1, G(max(ks - 7, 0), 0, 0))
        lat = G(ks, 0, 0) - 40 if ks > 3 else G(1, 0, 0)
        gprev = R.stream(xn_load(ks), e, max(lat, e + 8))
    FK, FV = 4096, 5120
    def publish(off, lab, waitlabel):
        p.wait_vm(waitlabel)
        p('s_barrier')
        p(f's_cmp_lg_u32 s{sW}, 0')
        p(f's_cbranch_scc1 {name}_{lab}pub')
        p(f's_lshl_b32 s14, s{sH}, 3')
        p(f's_add_u32 s14, s14, s{sI}')
        p(f's_lshl_b32 s14, s14, 2')
        p(f's_add_u32 s14, s14, {off}')
        p(f'v_mov_b32 v12, s{sTag}')
        p('v_mov_b32 v13, 0')
        p(f's_cmp_eq_u32 s{sSame}, 1')
        p(f's_cbranch_scc1 {name}_{lab}rel')
        p('buffer_wbl2 sc1')
        p('s_waitcnt vmcnt(0)')
        p(f'buffer_store_dword v12, v13, s[{S_FL}:{S_FL+3}], s14 offen sc1')
        p(f's_branch {name}_{lab}pub')
        p.label(f'{name}_{lab}rel')
        p(f'buffer_store_dword v12, v13, s[{S_FL}:{S_FL+3}], s14 offen')
        p.label(f'{name}_{lab}pub')
    def flag_load(off, lab):
        return [('s', f's_lshl_b32 s15, s{sH}, 5'), ('s', f's_add_u32 s15, s15, {off}'),
                ('v', 'v_and_b32 v13, 7, v0'), ('v', 'v_lshlrev_b32 v13, 2, v13'),
                ('l', f'buffer_load_dword v12, v13, s[{S_FL}:{S_FL+3}], s15 offen sc1', lab)]
    def check(lab, waitlabel):
        p.wait_vm(waitlabel, 'lgkmcnt(0)'); p.lg_all()
        p(f's_cmp_lg_u32 s{sW}, 0')
        p(f's_cbranch_scc1 {name}_{lab}ok')
        p('s_mov_b32 s14, 0')
        p.label(f'{name}_{lab}poll')
        p(f'v_cmp_ne_u32 vcc, s{sTag}, v12')
        p('s_add_u32 s14, s14, 1')
        p(f's_cbranch_vccz {name}_{lab}ok2')
        p(f's_cmp_ge_u32 s14, {SPIN}')
        p(f's_cbranch_scc1 {name}_{lab}ok2')
        p(f'buffer_load_dword v12, v13, s[{S_FL}:{S_FL+3}], s15 offen sc1')
        p('s_waitcnt vmcnt(0)')
        p(f's_branch {name}_{lab}poll')
        p.label(f'{name}_{lab}ok2')
        p(f's_cmp_eq_u32 s{sSame}, 1')
        p(f's_cbranch_scc1 {name}_{lab}ok')
        p('buffer_inv sc1')
        p('s_waitcnt vmcnt(0)')
        p.label(f'{name}_{lab}ok')
        p('s_barrier')
    def att_state():
        p(f's_lshl_b32 s{sKb}, s{sH}, 19')
        p(f's_add_u32 s{sKb}, s{sKb}, s{sLW}')
        p(f's_mov_b32 s{sVb}, s{sKb}')
    def unitK(slot, label):
        L = [('s', f's_add_u32 m0, s{sLW}, {slot*32768}')]
        for i in range(4): L.append(('m', f'buffer_load_dwordx4 v{vLane16}, s[{S_KF}:{S_KF+3}], s{sKb} offen offset:{1024*i} lds', label, None))
        return L + [('s', f's_add_u32 s{sKb}, s{sKb}, 16384')]
    def unitV(slot, label):
        L = [('s', f's_add_u32 m0, s{sLW}, {slot*32768 + SL}')]
        for i in range(4): L.append(('m', f'buffer_load_dwordx4 v{vLane16}, s[{S_VF}:{S_VF+3}], s{sVb} offen offset:{1024*i} lds', label, None))
        return L + [('s', f's_add_u32 s{sVb}, s{sVb}, 16384')]
    def dma_K(label, tagbase=None):
        L = [('s', f's_mov_b32 m0, s{sSlotP}')]
        for i in range(4):
            L.append(('m', f'buffer_load_dwordx4 v{vLane16}, s[{S_KF}:{S_KF+3}], s{sKb} offen offset:{1024*i} lds', label, None))
        L += [('s', f's_add_u32 s{sKb}, s{sKb}, 16384')]
        return L
    def dma_V(label, tagbase=None):
        L = [('s', f's_add_u32 m0, s{sSlotP}, {SL}')]
        for i in range(4):
            L.append(('m', f'buffer_load_dwordx4 v{vLane16}, s[{S_VF}:{S_VF+3}], s{sVb} offen offset:{1024*i} lds', label, None))
        L += [('s', f's_add_u32 s{sVb}, s{sVb}, 16384')]
        return L
    adv_slot = [('s', f's_add_u32 s{sSlotP}, s{sSlotP}, 32768'), ('s', f's_cmp_ge_u32 s{sSlotP}, {NSLOT*32768}\ns_cselect_b32 s{sSlotP}, s{sLW}, s{sSlotP}')]
    R.emit(p, put)
    print('fused qproj overflow', R.over, 'est', R.total())
    if 'pp' not in opt: p.stamp('q end')
    p(f's_mov_b32 s{sFlag}, 0')
    p(f's_mov_b32 s{sLim}, {hex(LIM)}')
    def touch_setup():
        p(f's_load_dwordx2 s[92:93], s[0:1], {ARG["wo"]}')
        p(f's_load_dwordx2 s[94:95], s[0:1], {ARG["wg"]}')
        p(f's_load_dwordx2 s[96:97], s[0:1], {ARG["wu"]}')
        p(f's_load_dwordx2 s[98:99], s[0:1], {ARG["wd"]}')
        p('s_lshl_b32 s14, s2, 2')
        p(f's_add_u32 s14, s14, s{sW}')
        p('s_mul_i32 s14, s14, 40')
        p('v_min_u32 v14, 39, v0')
        p('v_add_u32 v14, s14, v14')
        p('v_lshlrev_b32 v14, 7, v14')
        p('s_lshr_b32 s14, s2, 6')
        p('s_lshl_b32 s14, s14, 2')
        p(f's_and_b32 s15, s{sI}, 3')
        p('s_add_u32 s14, s14, s15')
        p('s_lshl_b32 s14, s14, 3')
        p('s_and_b32 s15, s2, 7')
        p('s_add_u32 s14, s14, s15')
        p('s_lshl_b32 s14, s14, 2')
        p(f's_add_u32 s14, s14, s{sW}')
        p('s_mul_i32 s14, s14, 34')
        p('v_min_u32 v15, 33, v0')
        p('v_add_u32 v15, s14, v15')
        p('v_min_u32 v15, 17279, v15')
        p('v_lshlrev_b32 v15, 7, v15')
        p('s_waitcnt lgkmcnt(0)')
    touch_items = [('l', 'global_load_dword v13, v14, s[92:93]', 'T'), ('l', 'global_load_dword v13, v15, s[94:95]', 'T'),
                   ('l', 'global_load_dword v13, v15, s[96:97]', 'T'), ('l', 'global_load_dword v13, v15, s[98:99]', 'T')]
    att_state()
    if FP == 'pace':
        p(f's_load_dwordx2 s[92:93], s[0:1], {ARG["wg"]}')
        p(f's_load_dwordx2 s[94:95], s[0:1], {ARG["wu"]}')
        p(f's_load_dwordx2 s[96:97], s[0:1], {ARG["wd"]}')
        p('s_lshr_b32 s14, s2, 6')
        p('s_lshl_b32 s14, s14, 1')
        p(f's_add_u32 s14, s14, s{sI}')
        p('s_sub_u32 s14, s14, 6')
        p('s_lshl_b32 s14, s14, 3')
        p('s_and_b32 s15, s2, 7')
        p('s_add_u32 s14, s14, s15')
        p(f's_cmp_ge_u32 s{sI}, 6')
        p('s_cselect_b32 s14, s14, 255')
        p('s_cmp_lt_u32 s14, 54')
        p('s_cselect_b32 s99, 1, 0')
        p('s_mul_i32 s14, s14, s99')
        p('v_lshrrev_b32 v14, 2, v0')
        p(f's_mul_i32 s15, s{sW}, 160')
        p('v_add_u32 v14, s15, v14')
        p('v_mul_u32_u24 v14, 3456, v14')
        p('v_and_b32 v15, 3, v0')
        p('v_lshl_add_u32 v14, v15, 4, v14')
        p('s_lshl_b32 s15, s14, 6')
        p('v_add_u32 v14, s15, v14')
        p('v_mul_lo_u32 v14, v14, s99')
        p(f's_mul_i32 s98, s99, {16*3456}')
        p('s_mul_i32 s14, s14, 40960')
        p(f's_mul_i32 s15, s{sW}, 10240')
        p('s_add_u32 s14, s14, s15')
        p(f'v_add_u32 v15, s14, v{vLane16}')
        p('v_mul_lo_u32 v15, v15, s99')
        p('s_lshl_b32 s99, s99, 12')
        p('s_waitcnt lgkmcnt(0)')
    else:
        touch_setup()
    publish(FK, 'k', 'st')
    for it in flag_load(FK, 'KFL'): put(it)
    p.stamp('pub done')
    p('s_nop 7')
    for c in range(4):
        for ks in range(4):
            a0 = O(c, 2*ks)
            for k in range(4): p(f'v_cvt_pk_bf16_f32 v{a0+k}, v{a0+2*k}, v{a0+2*k+1}')
            for k in range(4): p(f'v_accvgpr_write_b32 a{aQ + 16*c + 4*ks + k}, v{a0+k}')
    p(f'v_mov_b32 v{vT}, 0x3f803f80')
    for k in range(4): p(f'v_accvgpr_write_b32 a{128+k}, v{vT}')
    p(f'v_and_b32 v{vT}, 15, v0')
    p(f'v_lshrrev_b32 v{vT+1}, 4, v0')
    p(f'v_lshlrev_b32 v{vT+1}, 2, v{vT+1}')
    p(f'v_sub_u32 v{vT}, v{vT}, v{vT+1}')
    for r in range(4): p(f'v_cmp_le_i32 s[{sM+2*r}:{sM+2*r+1}], {r}, v{vT}')
    p(f'v_mov_b32 v{vNinf}, {hex(NEGBIG)}')
    for r in range(16): p(f'v_mov_b32 v{vNeg+r}, 0')
    for c in range(4): p(f'v_mov_b32 v{vL+c}, 0')
    for r in range(64): p(f'v_mov_b32 v{vO+r}, 0')
    p.stamp('pre check')
    check('k', 'KFL')
    emit(unitK(0, 'U-1') + unitK(1, 'U0') + unitV(1, 'U0'))
    p.stamp('kv ok')
    nerr = 0

    def rdK(b, f):  return ('r', f'ds_read_b128 a[{aK+4*f}:{aK+4*f+3}], v{vRd} offset:{b*8192 + f*1024}', f'K{f}')
    def rdV(b, f):  return ('r', f'ds_read_b128 a[{aV+4*f}:{aV+4*f+3}], v{vRd} offset:{16384 + b*8192 + f*1024}', f'V{f}')
    def qk_mfmas(cols, sbase, cin):
        L = []
        for i, c in enumerate(cols):
            for kb in range(2):
                S = Sr(sbase + i, kb)
                for ks in range(4):
                    cc = cin(c, kb) if ks == 0 else S
                    L.append(f'{MF} v[{S}:{S+3}], a[{aK+4*(kb*4+ks)}:{aK+4*(kb*4+ks)+3}], a[{aQ+16*c+4*ks}:{aQ+16*c+4*ks+3}], v[{cc}:{cc+3}]')
        return L
    def pv_mfmas(cols, par, first=False):
        L = []
        for c in cols:
            for db in range(8):
                o = O(c, db)
                cc = '0' if first else f'v[{o}:{o+3}]'
                L.append(f'{MF} v[{o}:{o+3}], a[{aV+4*db}:{aV+4*db+3}], v[{Pr(par, c)}:{Pr(par, c)+3}], {cc}')
        return L
    aOne = 128
    Lm = lambda c: vP + 8 + 4*c
    def sum_mfmas(cols, par):
        return [f'{MF} v[{Lm(c)}:{Lm(c)+3}], a[{aOne}:{aOne+3}], v[{Pr(par, c)}:{Pr(par, c)+3}], v[{Lm(c)}:{Lm(c)+3}]' for c in cols]
    def sm_window_ns(c, sslot, par):
        S = vS + 8*sslot; P = Pr(par, c); W = []
        for k in range(4):
            e0, e1 = vE + (2*k) % 4, vE + (2*k + 1) % 4
            W += [[f'v_exp_f32 v{e0}, v{S+2*k}'], [f'v_exp_f32 v{e1}, v{S+2*k+1}'],
                  [f'v_cvt_pk_bf16_f32 v{P+k}, v{e0}, v{e1}'], []]
        return W
    def sm_window(c, sslot, par):
        S = vS + 8*sslot; P = Pr(par, c); W = []
        for k in range(4):
            e0, e1 = vE + (2*k) % 4, vE + (2*k + 1) % 4
            W += [[f'v_exp_f32 v{e0}, v{S+2*k}'], [f'v_exp_f32 v{e1}, v{S+2*k+1}'],
                  [f'v_add_f32 v{vL+c}, v{vL+c}, v{e0}'],
                  [f'v_add_f32 v{vL+c}, v{vL+c}, v{e1}', f'v_cvt_pk_bf16_f32 v{P+k}, v{e0}, v{e1}']]
        return W
    cin_neg = lambda c, kb: vNeg + 4*c
    def cin_mask(tile_cols):
        def f(c, kb):
            if c in tile_cols: return vCi + 8*(c - tile_cols[0]) + 4*kb
            return vNeg + 4*c
        return f
    def mask_ops(tile_cols):
        c0 = tile_cols[0]
        L = [('s', f's_cmp_lt_i32 s{sDd}, 0\ns_cselect_b64 s[14:15], -1, 0'),
             ('s', f's_cmp_eq_u32 s{sDd}, 0\n' + '\n'.join(f's_cselect_b64 s[{4+2*r}:{5+2*r}], s[{sM+2*r}:{sM+2*r+1}], s[14:15]' for r in range(4))),
             ('s', f's_cmp_le_i32 s{sDd}, 0\ns_cselect_b64 s[12:13], -1, 0')]
        for cb in range(2):
            for kb in range(2):
                for r in range(4):
                    m = 4 + 2*r if cb == kb else (12 if (cb == 1 and kb == 0) else 14)
                    L.append(('v', f'v_cndmask_b32 v{vCi + 8*cb + 4*kb + r}, v{vNinf}, v{vNeg + 4*(c0 + cb) + r}, s[{m}:{m+1}]'))
        return L
    LC, SC = [0, 1], [2, 3]
    def build_group(mf, windows, reads, dmas=(), extra=(), pre_wait=None, mid_wait=None, nwin=None):
        R = Region(mf)
        n = len(mf)
        for (g0, W) in windows:
            for i, ops in enumerate(W):
                for o in ops: R.place(('v', o), g0 + i, force=True)
        slots = [g for g in range(n) if g % 4 == 2]
        if len(slots) < len(reads): slots = sorted(slots + [g for g in range(n) if g % 4 == 3])
        if n == 16 or nwin == 16: slots = [g for g in range(16) if g % 4 in (2, 3)]
        for it, g in zip(reads, slots): R.place(it, g, force=True)
        if dmas:
            free = [g for g in range(n) if not R.M[g]]
            pref = [g for g in free if g >= 16 and nwin == 16] + [g for g in free if g % 4 == 3 and not (g >= 16 and nwin == 16)] + [g for g in free if g % 4 == 1] + [g for g in free if g % 4 in (0, 2)]
            nm = sum(1 for x in dmas if x[0] == 'm')
            use = sorted([g for g in pref if g >= 1][:nm])
            if nwin == 16 and nm == 4: use = [5, 9, 13, 16]
            k = 0; pend_s = []
            for it in dmas:
                if it[0] == 's': pend_s.append(it)
                else:
                    g = use[k]; k += 1
                    for j, sx in enumerate(pend_s):
                        gg = max(0, g - len(pend_s) + j)
                        if k > 1: gg = max(gg, use[k-2] + 1) if use[k-2] + 1 <= g - 1 or ' m0,' not in sx[1] else gg
                        if gg == g and ' m0,' in sx[1]: R.place(('s', 's_nop 0'), g, force=True) if False else None
                        R.place(sx, gg, force=True)
                    pend_s = []
                    R.place(it, g, force=True)
            for j, sx in enumerate(pend_s):
                gg = use[-1] + 1 + j
                if gg <= n - 1: R.place(sx, gg, force=True)
                else: R.T[n - 1].append(sx)
        if extra:
            g = 0
            for it in extra:
                best = None
                for gg in range(g, n - 1):
                    if R.fits(gg, it): best = gg; break
                if best is None:
                    best = g
                R.place(it, best, force=True); g = best
        if mid_wait: R.place(mid_wait[1], mid_wait[0], force=True)
        return R
    slot_adv = [('s', f's_add_u32 s{sSlotR}, s{sSlotR}, 32768'), ('s', f's_cmp_ge_u32 s{sSlotR}, {NSLOT*32768}\ns_cselect_b32 s{sSlotR}, 0, s{sSlotR}')]
    def start_items(R, vm=16):
        pre = []
        if vm is None: return
        if 'nodma' not in opt: pre.append(('w', f's_waitcnt vmcnt({vm})'))
        if 'nobar' not in opt: pre.append(('w', 's_barrier'))
        R.S[0] = pre + R.S[0]
    def end_items(R, loop=None):
        n = R.n
        for j, it in enumerate(slot_adv): R.S[4 + 4*j if n > 16 else 1 + 4*j].append(it) if False else None
        g0 = 8
        for j, it in enumerate(slot_adv): R.S[g0 + j].append(it)
        R.V[n - 1].append(('v', f'v_add_u32 v{vRd}, s{sSlotR}, v{vLane16}'))
        if loop:
            R.S[n - 3].append(('s', f's_sub_u32 s{sCnt}, s{sCnt}, 1'))
            R.T[n - 1].append(('s', f's_cmp_lg_u32 s{sCnt}, 0'))
    def emit_group(R, pre):
        if pre and 'nords' not in opt:
            put(('wlg', [f'{pre}{f}' for f in range(4)]))
            R.S[3].insert(0, ('wlg', [f'{pre}{f}' for f in range(4, 8)]))
        if 'nosm' in opt:
            for g in range(R.n): R.V[g] = []
        if 'noexp' in opt:
            for g in range(R.n): R.V[g] = [(x[0], x[1].replace('v_exp_f32', 'v_mov_b32')) for x in R.V[g]]
        if 'nodma' in opt:
            for g in range(R.n): R.M[g] = [x for x in R.M[g] if x[0] != 'm']
        if 'nords' in opt:
            for g in range(R.n):
                R.M[g] = [x for x in R.M[g] if x[0] != 'r']; R.S[g] = [x for x in R.S[g] if x[0] != 'wlg']
            pre = None; R.S[3] = [x for x in R.S[3] if x[0] != 'wlg']
        R.emit(p, put)
    stats = {'cyc': 0}
    def interval(kind, lbl, maskL=None, maskS=None, loop=False, vm=16):
        dual = kind in ('D', 'T')
        mA, mB, mN = (maskS if dual else maskL) or (False, False, False)
        tile = SC if dual else LC
        p.lgq = ['K%d' % f for f in range(8)]; p.lg_ret = -1
        tot = 0
        if dual:
            cols = [0, 1, 2, 3]
            R1 = build_group(qk_mfmas(cols, 0, cin_mask(SC) if mA else cin_neg),
                             [(0, sm_window(3, 3, 0)), (16, sm_window(0, 0, 1))], [rdV(0, f) for f in range(8)], dma_K('x'),
                             mid_wait=None)
            start_items(R1, vm)
            if lbl == 'db':
                g_ = 1
                sel = ([touch_items[0]] if TW else []) + (touch_items[1:] if TF else [])
                for it in sel:
                    while R1.M[g_]: g_ += 1
                    R1.M[g_].append(it); g_ += 3
            add_paced([R1], chunk4(fp_items.get(lbl, []), 0))
            emit_group(R1, 'K')
            ex = ([('s', f's_add_u32 s{sDd}, s{sDd}, 1')] + mask_ops(SC if kind == 'D' else LC)) if mB else []
            if kind == 'T': ex = mask_ops(LC)
            R2 = build_group(pv_mfmas(cols, 0), [(0, sm_window(1, 1, 1)), (16, sm_window(2, 2, 1))], [rdK(0, f) for f in range(8)], extra=ex)
            if kind == 'T':
                emit([('s', f's_sub_u32 s{sDd}, s{sTS}, s{sTL}'), ('s', f's_lshl_b32 s{sDd}, s{sDd}, 2'), ('s', f's_add_u32 s{sDd}, s{sDd}, 4'), ('s', f's_sub_u32 s{sDd}, s{sDd}, s{sW}')])
            add_paced([R2], chunk4(fp_items.get(lbl, []), 1))
            emit_group(R2, 'V')
            if kind == 'D':
                R3 = build_group(qk_mfmas(cols, 0, cin_mask(SC) if mB else cin_neg),
                                 [(0, sm_window(3, 3, 1)), (16, sm_window(0, 0, 0))], [rdV(1, f) for f in range(8)], dma_V('x') + adv_slot)
                add_paced([R3], chunk4(fp_items.get(lbl, []), 2))
                emit_group(R3, 'K')
                ex = ([('s', f's_add_u32 s{sDd}, s{sDd}, 1')] + mask_ops(SC)) if mN else []
                R4 = build_group(pv_mfmas(cols, 1), [(0, sm_window(1, 1, 0)), (16, sm_window(2, 2, 0))], [rdK(1, f) for f in range(8)], extra=ex)
                end_items(R4, loop)
                add_paced([R4], chunk4(fp_items.get(lbl, []), 3))
                emit_group(R4, 'V')
            else:
                R3 = build_group(qk_mfmas(LC, 0, cin_mask(LC)), [(0, sm_window(3, 3, 1))], [rdV(1, f) for f in range(8)], dma_V('x') + adv_slot)
                add_paced([R3], chunk4(fp_items.get(lbl, []), 2))
                emit_group(R3, 'K')
                ex = ([('s', f's_add_u32 s{sDd}, s{sDd}, 1')] + mask_ops(LC))
                ex = [('v', f'v_mov_b32 v{Lm(c)+r}, 0') for c in LC for r in range(4)] + ex
                R4 = build_group(pv_mfmas(cols, 1), [(0, sm_window_ns(0, 0, 0))], [rdK(1, f) for f in range(8)], extra=ex)
                end_items(R4)
                add_paced([R4], chunk4(fp_items.get(lbl, []), 3))
                emit_group(R4, 'V')
            tot = R1.total() + R2.total() + R3.total() + R4.total()
        else:
            dK = dma_K('x'); dv_ = dma_V('x'); dV = dv_[:1] + adv_slot + dv_[1:]
            R1 = build_group(qk_mfmas(LC, 2, cin_mask(LC) if mA else cin_neg), [(0, sm_window_ns(1, 1, 0))], [rdV(0, f) for f in range(8)])
            start_items(R1, vm)
            emit_group(R1, 'K')
            ex = ([('s', f's_add_u32 s{sDd}, s{sDd}, 1')] + mask_ops(LC)) if mB else []
            rk = [rdK(0, f) for f in range(8)] if kind != 'E' else []
            R2 = build_group(pv_mfmas(LC, 0) + sum_mfmas(LC, 0), [(0, sm_window_ns(0, 2, 1))], rk, dK, extra=ex, nwin=16)
            emit_group(R2, 'V')
            if kind != 'E':
                R3 = build_group(qk_mfmas(LC, 0, cin_mask(LC) if mB else cin_neg), [(0, sm_window_ns(1, 3, 1))], [rdV(1, f) for f in range(8)])
                emit_group(R3, 'K')
                ex = ([('s', f's_add_u32 s{sDd}, s{sDd}, 1')] + mask_ops(LC)) if mN else []
                R4 = build_group(pv_mfmas(LC, 1) + sum_mfmas(LC, 1), [(0, sm_window_ns(0, 0, 0))], [rdK(1, f) for f in range(8)], dV, extra=ex, nwin=16)
                end_items(R4, loop)
                emit_group(R4, 'V')
                tot = R1.total() + R2.total() + R3.total() + R4.total()
            else:
                for f in range(8): put(rdV(1, f))
                emit(dV)
                for ops in sm_window_ns(1, 3, 1):
                    for o in ops: p(o)
                    if len(ops) == 1 and ops[0].startswith('v_exp'): p('s_nop 0')
                p('s_waitcnt lgkmcnt(0)')
                p('s_nop 1')
                for m in pv_mfmas(LC, 1) + sum_mfmas(LC, 1): p(m)
        if tot: print(f'  interval {lbl}: est {tot} cycles for', 128 if kind == 'D' else (112 if kind == 'T' else 64), 'mfma')

    def emit_prefetch():
        p('s_lshr_b32 s14, s2, 3')
        p('s_and_b32 s15, s14, 7')
        p('s_cmp_lt_u32 s15, 4')
        p(f's_cbranch_scc1 {name}_npf')
        p(f's_load_dwordx2 s[92:93], s[0:1], {ARG["wo"]}')
        p('s_lshr_b32 s14, s14, 3')
        p('s_lshl_b32 s14, s14, 2')
        p('s_add_u32 s14, s14, s15')
        p('s_sub_u32 s14, s14, 4')
        p(f's_mul_i32 s14, s14, {640*128}')
        p('s_and_b32 s15, s2, 7')
        p('s_lshr_b32 s15, s15, 1')
        p('s_mul_i32 s15, s15, 1310720')
        p('s_add_u32 s14, s14, s15')
        p(f's_mul_i32 s15, s{sW}, {160*128}')
        p('s_add_u32 s14, s14, s15')
        p('s_waitcnt lgkmcnt(0)')
        for i in range(3):
            p(f'v_add_u32 v251, {64*i}, v0')
            p(f'v_min_u32 v251, 159, v251')
            p(f'v_lshlrev_b32 v251, 7, v251')
            p(f'v_add_u32 v251, s14, v251')
            p(f'global_load_dword v250, v251, s[92:93]')
        p.label(f'{name}_npf')
    FA, FB = (10, 11) if FP == 'db' else (252, 253)
    F2, F3, F4, F5 = (47, 48, 49, 51) if FP in ('db', 'S') else (92, 93, 94, 95)
    def ffn_loads():
        p(f's_mov_b32 s{F5}, 0')
        p('s_lshr_b32 s14, s2, 3')
        p(f's_and_b32 s{F2}, s14, 7')
        p(f's_cmp_lt_u32 s{F2}, 6')
        p(f's_cbranch_scc1 {name}_nffn')
        p('s_lshr_b32 s14, s2, 6')
        p('s_lshl_b32 s14, s14, 1')
        p(f's_add_u32 s14, s14, s{F2}')
        p('s_sub_u32 s14, s14, 6')
        p('s_lshl_b32 s14, s14, 3')
        p('s_and_b32 s15, s2, 7')
        p(f's_add_u32 s{F4}, s14, s15')
        p(f's_cmp_ge_u32 s{F4}, 54')
        p(f's_cbranch_scc1 {name}_nffn')
        p(f's_mov_b32 s{F5}, 1')
        p(f's_load_dwordx2 s[4:5], s[0:1], {ARG["wg"]}')
        p(f's_load_dwordx2 s[8:9], s[0:1], {ARG["wu"]}')
        p(f's_load_dwordx2 s[12:13], s[0:1], {ARG["wd"]}')
        p(f'v_lshrrev_b32 v{FA}, 2, v0')
        p(f'v_mul_u32_u24 v{FA}, 3456, v{FA}')
        p(f'v_and_b32 v{FB}, 3, v0')
        p(f'v_lshl_add_u32 v{FA}, v{FB}, 4, v{FA}')
        p('s_waitcnt lgkmcnt(0)')
        for sr, sz in ((4, 640*1728*2), (8, 640*1728*2), (12, 1728*640*2)):
            p(f's_mov_b32 s{sr+2}, {sz}'); p(f's_mov_b32 s{sr+3}, 0x00020000')
        p(f's_mul_i32 s{F2}, s{sW}, {160*3456}')
        p(f's_lshl_b32 s{F3}, s{F4}, 6')
        p(f's_add_u32 s{F2}, s{F2}, s{F3}')
        for i in range(10):
            for mat, sr in enumerate((4, 8)):
                r = 132 + (mat*10 + i)*4
                p(f'buffer_load_dwordx4 a[{r}:{r+3}], v{FA}, s[{sr}:{sr+3}], s{F2} offen')
            p(f's_add_u32 s{F2}, s{F2}, {16*3456}')
        p(f's_mul_i32 s{F2}, s{F4}, {32*1280}')
        p(f's_mul_i32 s{F3}, s{sW}, 10240')
        p(f's_add_u32 s{F2}, s{F2}, s{F3}')
        for i in range(10):
            r = 132 + (20 + i)*4
            p(f'buffer_load_dwordx4 a[{r}:{r+3}], v{vLane16}, s[12:15], s{F2} offen offset:{(i % 4)*1024}')
            if i % 4 == 3: p(f's_add_u32 s{F2}, s{F2}, 4096')
        p.label(f'{name}_nffn')
    def ffn_paced():
        L = []
        for i in range(10):
            for mat, sp in enumerate((92, 94)):
                r = 132 + (mat*10 + i)*4
                L.append(('l', f'global_load_dwordx4 a[{r}:{r+3}], v14, s[{sp}:{sp+1}]', 'F'))
            L.append(('v', 'v_add_u32 v14, s98, v14'))
        for i in range(10):
            r = 132 + (20 + i)*4
            L.append(('l', f'global_load_dwordx4 a[{r}:{r+3}], v15, s[96:97] offset:{(i % 4)*1024}', 'F'))
            if i % 4 == 3: L.append(('v', 'v_add_u32 v15, s99, v15'))
        return L
    fp_items = {'db': [], 'dc': []}
    if FP == 'pace':
        allf = ffn_paced(); nl = 0; cut = 0
        for k, it in enumerate(allf):
            if it[0] == 'l': nl += 1
            if nl == 16 and it[0] == 'v' and cut == 0: cut = k + 1
        fp_items = {'db': allf[:cut], 'dc': allf[cut:]}
    def chunk4(items, k):
        groups = []; cur = []
        for it in items:
            cur.append(it)
            if it[0] == 'v': groups.append(cur); cur = []
        if cur: groups.append(cur)
        out = [[], [], [], []]
        nl = sum(1 for x in items if x[0] == 'l'); acc = 0
        for g in groups:
            q = min(3, int(4*acc/max(nl, 1)))
            out[q] += g; acc += sum(1 for x in g if x[0] == 'l')
        return out[k]
    def add_paced(Rs, items):
        if not items: return
        slots = [(ri, g) for ri, R in enumerate(Rs) for g in range(1, R.n - 1) if not R.M[g]]
        nl = sum(1 for x in items if x[0] == 'l')
        step = len(slots) / (nl + 1.0); k = 0; pos = 0
        last = None
        for it in items:
            if it[0] == 'l':
                k += 1; ri, g = slots[int(k*step)]
                Rs[ri].M[g].append(it); last = (ri, g)
            else:
                ri, g = last
                Rs[ri].V[g].append(it)
    def row_reduce(reg, op, tmp):
        for sw in ('v_permlane16_swap_b32', 'v_permlane32_swap_b32'):
            p(f'v_mov_b32 v{tmp}, v{reg}')
            p('s_nop 1')
            p(f'{sw} v{reg}, v{tmp}')
            p('s_nop 1')
            p(f'{op} v{reg}, v{reg}, v{tmp}')
    def epilogue(cols, sTile, flagbit):
        p('s_nop 7')
        for c in cols: row_reduce(vL + c, 'v_add_f32', vU)
        if cols == LC:
            for c in cols: p(f'v_add_f32 v{vL+c}, v{vL+c}, v{Lm(c)}')
        p(f'v_max_f32 v{vU}, v{vL+cols[0]}, v{vL+cols[1]}')
        p(f'v_cmp_nle_f32 vcc, v{vU}, v{vU+1}'.replace(f'v{vU+1}', f'v{vU+1}') if False else f'v_cmp_nge_f32 vcc, s{sLim}, v{vU}')
        p('s_nop 1')
        p(f's_cmp_lg_u64 vcc, 0')
        p(f's_cselect_b32 s{sT0}, {flagbit}, 0')
        p(f's_or_b32 s{sFlag}, s{sFlag}, s{sT0}')
        for c in cols: p(f'v_rcp_f32 v{vL+c}, v{vL+c}')
        store_ctx(cols, sTile)
    def store_ctx(cols, sTile):
        p(f's_lshl_b32 s{sCtx}, s{sTile}, 3')
        p(f's_lshl_b32 s{sT0}, s{sW}, 1')
        p(f's_add_u32 s{sCtx}, s{sCtx}, s{sT0}')
        p(f's_lshl_b32 s{sCtx}, s{sCtx}, 5')
        p(f's_add_u32 s{sCtx}, s{sCtx}, s{sH}')
        p(f's_lshl_b32 s{sCtx}, s{sCtx}, 12')
        p(f's_add_u32 s{sT1}, s{sCtx}, {32*4096}')
        for i, c in enumerate(cols):
            for ks in range(4):
                o = O(c, 2*ks)
                for k in range(8): p(f'v_mul_f32 v{o+k}, v{o+k}, v{vL+c}')
                for k in range(4): p(f'v_cvt_pk_bf16_f32 v{o+k}, v{o+2*k}, v{o+2*k+1}')
                p(f'buffer_store_dwordx4 v[{o}:{o+3}], v{vLane16}, s[{S_CTX}:{S_CTX+3}], s{sCtx if i == 0 else sT1} offen offset:{ks*1024} {CTX_FLAGS}')

    p(f's_mov_b32 s{sSlotR}, 0')
    p(f'v_mov_b32 v{vRd}, v{vLane16}')
    for r in range(64, 128): p(f'v_mov_b32 v{vO+r}, 0')
    p(f's_lshl_b32 s{sDd}, s{sTS}, 2')
    p(f's_add_u32 s{sDd}, s{sDd}, s{sW}')
    p(f's_sub_u32 s{sDd}, 0, s{sDd}')
    emit(mask_ops(SC))
    p.wait_vm('U-1')
    p('s_barrier')
    p.stamp('U-1 ready')
    p.lgq = []; p.lg_ret = -1
    for f in range(8): put(rdK(0, f))
    p('s_waitcnt lgkmcnt(0)')
    q0 = qk_mfmas([0, 1, 2, 3], 0, cin_mask(SC))
    rest = unitK(2, 'U1') + unitV(2, 'U1')
    Rq = Region(q0)
    spread(Rq, rest, 0, 31)
    Rq.emit(p, put)
    p(f's_add_u32 s{sSlotP}, s{sLW}, {4*32768}')
    p.stamp('qk0 done')
    for f in range(8): put(rdK(1, f))
    for step in range(4):
        for c in range(4):
            S = vS + 8*c; t = vU + c
            if step == 0: p(f'v_max3_f32 v{t}, v{S}, v{S+1}, v{S+2}')
            elif step == 1: p(f'v_max3_f32 v{t}, v{t}, v{S+3}, v{S+4}')
            elif step == 2: p(f'v_max3_f32 v{t}, v{t}, v{S+5}, v{S+6}')
            else: p(f'v_max_f32 v{t}, v{t}, v{S+7}')
    for sw in ('v_permlane16_swap_b32', 'v_permlane32_swap_b32'):
        for c in range(4): p(f'v_mov_b32 v{vU+4+c}, v{vU+c}')
        for c in range(4): p(f'{sw} v{vU+c}, v{vU+4+c}')
        p('s_nop 0')
        for c in range(4): p(f'v_max_f32 v{vU+c}, v{vU+c}, v{vU+4+c}')
    for r in range(8):
        for c in range(4): p(f'v_sub_f32 v{vS+8*c+r}, v{vS+8*c+r}, v{vU+c}')
    for c in range(4):
        for r in range(4): p(f'v_sub_f32 v{vNeg+4*c+r}, 0, v{vU+c}')
    def run_window(W):
        for ops in W:
            for o in ops: p(o)
            if len(ops) == 1 and ops[0].startswith('v_exp'): p('s_nop 0')
    u2 = unitK(3, 'U2') + unitV(3, 'U2')
    for r in range(8):
        for c in range(3): p(f'v_exp_f32 v{vS+8*c+r}, v{vS+8*c+r}')
        while u2:
            it = u2.pop(0)
            put(it)
            if it[0] == 'm': break
            if ' m0,' in it[1]: p('s_nop 0')
    for it in u2: put(it)
    p('s_nop 0')
    for r in range(8):
        for c in range(3): p(f'v_add_f32 v{vL+c}, v{vL+c}, v{vS+8*c+r}')
    for k in range(4):
        for c in range(3): p(f'v_cvt_pk_bf16_f32 v{Pr(0, c)+k}, v{vS+8*c+2*k}, v{vS+8*c+2*k+1}')
    p(f's_mov_b32 s{sSlotR}, 32768')
    p(f'v_add_u32 v{vRd}, s{sSlotR}, v{vLane16}')
    if 'pp' not in opt: p.stamp('attn prologue done')
    p(f's_cmp_eq_u32 s{sTS}, 0')
    p(f's_cbranch_scc1 {name}_t0')
    p(f's_lshl_b32 s{sCnt}, s{sTS}, 1')
    p(f's_sub_u32 s{sCnt}, s{sCnt}, 1')
    p.label(f'{name}_dn')
    interval('D', f'dn', loop=True)
    p(f's_cbranch_scc1 {name}_dn')
    p(f's_sub_u32 s{sDd}, -1, s{sW}')
    interval('D', 'da', maskS=(False, True, True))
    p(f's_branch {name}_db')
    p.label(f'{name}_t0')
    p(f's_sub_u32 s{sDd}, 1, s{sW}')
    emit(mask_ops(SC))
    p('s_nop 1')
    p.label(f'{name}_db')
    if FP == 'db':
        p('s_waitcnt vmcnt(16)')
        p('s_barrier')
        ffn_loads()
        interval('D', 'db', maskS=(True, True, True), vm=None)
        p(f's_cmp_eq_u32 s{F5}, 0')
        p(f's_cbranch_scc1 {name}_dcw')
        p('s_waitcnt vmcnt(46)')
        p(f's_branch {name}_dcw2')
        p.label(f'{name}_dcw')
        p('s_waitcnt vmcnt(16)')
        p.label(f'{name}_dcw2')
        interval('T', 'dc', maskS=(True, False, False), vm=63)
    elif FP == 'pace':
        ndb = sum(1 for x in fp_items['db'] if x[0] == 'l')
        interval('D', 'db', maskS=(True, True, True))
        interval('T', 'dc', maskS=(True, False, False), vm=16 + ndb)
    else:
        interval('D', 'db', maskS=(True, True, True))
        interval('T', 'dc', maskS=(True, False, False))
    epilogue(SC, sTS, 2)
    if FP == 'S':
        ffn_loads()
        p.lgq = ['K%d' % f for f in range(8)]; p.lg_ret = 7
    if 'pp' not in opt: (p.stamp('S done') if 'pq' not in opt else None)
    p(f's_sub_u32 s{sCnt}, s{sTL}, s{sTS}')
    p(f's_cmp_eq_u32 s{sCnt}, 1')
    p(f's_cbranch_scc1 {name}_sb')
    p(f's_sub_u32 s{sCnt}, s{sCnt}, 2')
    interval('S', 'sn1')
    p.label(f'{name}_sn')
    interval('S', 'sn2a', vm=8)
    interval('S', 'sn2b', vm=None, loop=True)
    p(f's_cbranch_scc1 {name}_sn')
    p(f's_sub_u32 s{sDd}, -1, s{sW}')
    interval('S', 'sa', maskL=(False, True, True))
    p.label(f'{name}_sb')
    interval('S', 'sb', maskL=(True, True, True))
    interval('E', 'sc', maskL=(True, False, False))
    epilogue(LC, sTL, 1)
    p.stamp('L done')
    p(f's_cmp_eq_u32 s{sFlag}, 0')
    p(f's_cbranch_scc1 {name}_fin')
    fallback(p, name, locals())
    p.label(f'{name}_fin')
    def ctx_publish():
        p('s_waitcnt vmcnt(0) lgkmcnt(0)')
        p('s_barrier')
        p(f's_cmp_lg_u32 s{sW}, 0')
        p(f's_cbranch_scc1 {name}_cpub')
        p(f's_lshl_b32 s14, s2, 2')
        p(f's_add_u32 s14, s14, 6144')
        p(f'v_mov_b32 v20, s{sTag}')
        p('v_mov_b32 v21, 0')
        p(f'buffer_store_dword v20, v21, s[{S_FL}:{S_FL+3}], s14 offen sc1')
        p.label(f'{name}_cpub')
        p.stamp('ctx pub')
        if PE: emit_prefetch()
        if FP == 'end': ffn_loads()
    import kt
    nerr += kt.gen_kt(name + '_t', p, prof, opt, ctx_publish)
    p.label(f'{name}_done')
    p('s_endpgm')
    def mk_policy(t0, nd, skip_s, ns, fb, wave0):
        def pol(ins, n):
            t = ins.args[0]
            if t.endswith('_done'): return False
            if t.endswith('_stageA'): return n % 3 != 0
            if t in (name + '_noln0', name + '_noln1'): return False
            if t in (name + '_notag', name + '_kvpub'): return not wave0
            if t == name + '_notag2': return True
            if t == name + '_nffn': return not wave0
            if t == name + '_dcw': return not wave0
            if t == name + '_cpub': return not wave0
            if t.startswith(name + '_t'):
                if '_poll' in t and t.endswith('_ok'): return True
                if '_poll' in t and t.endswith('_top'): return False
                u = t[len(name) + 2:]
                if u in ('_w123', '_w1', '_nosig', '_w4', '_w5', '_cw'): return not wave0
                return False
            if t == name + '_nz': return True
            if t == name + '_nocode': return False
            if t == name + '_nopub': return True
            if t in (name + '_lnok', name + '_kok', name + '_vok', name + '_kpub', name + '_vpub'): return not wave0
            if t in (name + '_lnok2', name + '_kok2', name + '_vok2', name + '_krel', name + '_vrel'): return True
            if t.endswith('_t0'): return t0
            if t.endswith('_dn'): return (n % nd) != 0
            if t.endswith('_sb'): return skip_s
            if t.endswith('_sn'): return (n % ns) != 0
            if t.endswith('_fin'): return not fb
            if t.endswith('_fbloop'): return n % 3 != 0
            return False
        return pol
    for cfg in ([(False, 3, False, 3, False, True), (True, 2, False, 2, True, False), (False, 2, True, 2, False, True)] if (not opt or opt[0] in ('pp', 'pq', 'tl', 'tr', 'nocode', 'notlb', 'dbg') or opt[0].startswith('kv=')) and not any(o_.endswith('A') for o_ in opt) else []):
        seq = trace(p, mk_policy(*cfg))
        nerr += len(check_linear(seq, name + str(cfg)))
    return p, nerr

def fallback(p, name, L):
    g = L
    vS, vP, vE, vL, vU, vNeg, vCi, vO = g['vS'], g['vP'], g['vE'], g['vL'], g['vU'], g['vNeg'], g['vCi'], g['vO']
    aQ, aK, aV, vLane16, vNinf = g['aQ'], g['aK'], g['aV'], g['vLane16'], g['vNinf']
    S_KF, S_VF = g['S_KF'], g['S_VF']
    sFlag, sTL, sTS, sW, sH, sDd, sCnt, sT0, sT1, sT2 = (g[k] for k in ('sFlag', 'sTL', 'sTS', 'sW', 'sH', 'sDd', 'sCnt', 'sT0', 'sT1', 'sT2'))
    O = g['O']; mask_ops = g['mask_ops']; qk_mfmas = g['qk_mfmas']; pv_mfmas = g['pv_mfmas']; row_reduce = g['row_reduce']; store_ctx = g['store_ctx']
    put = g['put']
    p('s_waitcnt vmcnt(0) lgkmcnt(0)')
    for cols, sTile, bit, nm in (([2, 3], sTS, 2, 'S'), ([0, 1], sTL, 1, 'L')):
        p(f's_and_b32 s{sT0}, s{sFlag}, {bit}')
        p(f's_cmp_eq_u32 s{sT0}, 0')
        p(f's_cbranch_scc1 {name}_fbskip{nm}')
        for c in cols:
            p(f'v_mov_b32 v{vL+c}, 0')
            for r in range(32): p(f'v_mov_b32 v{vO+32*c+r}, 0')
            for r in range(4): p(f'v_mov_b32 v{vNeg+4*c+r}, 0')
        for i in range(2): p(f'v_mov_b32 v{vU+4+i}, v{vNinf}')
        p(f's_lshl_b32 s{sDd}, s{sTile}, 2')
        p(f's_add_u32 s{sDd}, s{sDd}, s{sW}')
        p(f's_add_u32 s{sCnt}, s{sDd}, 1')
        p(f's_sub_u32 s{sDd}, 0, s{sDd}')
        p(f's_lshl_b32 s{sT2}, s{sH}, 19')
        p.label(f'{name}_fb{nm}_fbloop')
        for f in range(8):
            p(f's_add_u32 s{sT1}, s{sT2}, {(f // 4)*4096}')
            p(f'buffer_load_dwordx4 a[{aK+4*f}:{aK+4*f+3}], v{vLane16}, s[{S_KF}:{S_KF+3}], s{sT1} offen offset:{(f % 4)*1024}')
            p(f'buffer_load_dwordx4 a[{aV+4*f}:{aV+4*f+3}], v{vLane16}, s[{S_VF}:{S_VF+3}], s{sT1} offen offset:{(f % 4)*1024}')
        for it in mask_ops(cols): put(it)
        p('s_waitcnt vmcnt(0)')
        p('s_nop 1')
        for m in qk_mfmas(cols, 0, lambda c, kb: vCi + 8*(c - cols[0]) + 4*kb): p(m)
        p('s_nop 7')
        for i, c in enumerate(cols):
            S = vS + 8*i; t = vU + i; m = vU + 4 + i
            p(f'v_max3_f32 v{t}, v{S}, v{S+1}, v{S+2}')
            p(f'v_max3_f32 v{t}, v{t}, v{S+3}, v{S+4}')
            p(f'v_max3_f32 v{t}, v{t}, v{S+5}, v{S+6}')
            p(f'v_max_f32 v{t}, v{t}, v{S+7}')
            row_reduce(t, 'v_max_f32', vU + 6)
            p(f'v_max_f32 v{t}, v{t}, v{m}')
            p(f'v_sub_f32 v{vU+6}, v{m}, v{t}')
            p(f'v_exp_f32 v{vU+6}, v{vU+6}')
            p(f'v_mov_b32 v{m}, v{t}')
            p(f'v_mul_f32 v{vL+c}, v{vL+c}, v{vU+6}')
            for r in range(32): p(f'v_mul_f32 v{vO+32*c+r}, v{vO+32*c+r}, v{vU+6}')
            for r in range(8): p(f'v_sub_f32 v{S+r}, v{S+r}, v{t}')
            for r in range(8): p(f'v_exp_f32 v{S+r}, v{S+r}')
            p('s_nop 0')
            for r in range(8): p(f'v_add_f32 v{vL+c}, v{vL+c}, v{S+r}')
            for k in range(4): p(f'v_cvt_pk_bf16_f32 v{vP+4*c+k}, v{S+2*k}, v{S+2*k+1}')
        p('s_nop 1')
        for m in pv_mfmas(cols, 0): p(m)
        p('s_nop 7')
        p(f's_add_u32 s{sT2}, s{sT2}, 8192')
        p(f's_add_u32 s{sDd}, s{sDd}, 1')
        p(f's_sub_u32 s{sCnt}, s{sCnt}, 1')
        p(f's_cmp_lg_u32 s{sCnt}, 0')
        p(f's_cbranch_scc1 {name}_fb{nm}_fbloop')
        for c in cols: row_reduce(vL + c, 'v_add_f32', vU)
        for c in cols: p(f'v_rcp_f32 v{vL+c}, v{vL+c}')
        store_ctx(cols, sTile)
        p.label(f'{name}_fbskip{nm}')

if __name__ == '__main__':
    p, ne = gen_kf()
    print('instrs', p.count(), 'errors', ne)
```

```python
from gx import *

class P2(Prog):
    def __init__(self):
        super().__init__()
        self.vmq = []
    def vm(self, text, label=None, tag=None):
        self(text, tag)
        self.vmq.append(label)
    def ds(self, text, label=None, tag=None):
        self(text, tag)
        if not hasattr(self, 'lgq'): self.lgq = []; self.lg_ret = -1
        self.lgq.append(label)
    def wait_lg(self, labels, extra=''):
        if isinstance(labels, str): labels = [labels]
        cand = [i for i, l in enumerate(self.lgq) if l in labels]
        if not cand and getattr(self, 'lenient', False): return
        idx = max(max(i for i, l in enumerate(self.lgq) if l == lab) for lab in labels)
        if idx <= self.lg_ret:
            if extra: self(f's_waitcnt {extra}')
            return
        n = min(len(self.lgq) - 1 - idx, 15)
        self.lg_ret = len(self.lgq) - 1 - n
        self(f's_waitcnt lgkmcnt({n}) {extra}'.strip())
    def lg_all(self):
        if hasattr(self, 'lgq'): self.lg_ret = len(self.lgq) - 1
    prof = False
    nstamp = 0
    def stamp(self, name=''):
        if not self.prof: return
        if getattr(self, 'stampset', None) is not None and name not in self.stampset: return
        i = self.nstamp; self.nstamp += 1
        assert i < 12
        if i == 0:
            self('s_memrealtime s[100:101]')
        self(f'{"s_memrealtime" if getattr(self, "rtmode", False) else "s_memtime"} s[{72 + 2*i}:{73 + 2*i}]')
        self('s_waitcnt lgkmcnt(0)')
        if i == 0 and getattr(self, 'dbgmode', False):
            for k in range(1, 10): self(f's_mov_b32 s{72 + 2*k}, s72')
    def dump_dbg(self, vtmp=13):
        self('s_waitcnt vmcnt(0) lgkmcnt(0)')
        n = self.nstamp
        self(f'{"s_memrealtime" if getattr(self, "rtmode", False) else "s_memtime"} s[{72 + 2*n}:{73 + 2*n}]')
        self(f's_memrealtime s[{74 + 2*n}:{75 + 2*n}]')
        self(f's_load_dwordx2 s[68:69], s[0:1], 96')
        self('s_waitcnt lgkmcnt(0)')
        self('s_mov_b32 s64, s68'); self('s_mov_b32 s65, s69'); self('s_mov_b32 s66, 256'); self('s_mov_b32 s67, 0x00020000')
        lab = self.nl('dbgskip')
        self('s_cmp_lg_u32 s44, 0')
        self(f's_cbranch_scc1 {lab}')
        self(f's_cmp_lg_u32 s2, {getattr(self, "dbgwg", 48)}')
        self(f's_cbranch_scc1 {lab}')
        self(f'v_mov_b32 v{vtmp+1}, 0')
        for i in range(1, n + 1):
            self(f's_sub_u32 s68, s{72 + 2*i}, s72')
            self(f'v_mov_b32 v{vtmp}, s68')
            self(f'buffer_store_dword v{vtmp}, v{vtmp+1}, s[64:67], 0 offen offset:{4*i} sc1')
        self(f's_sub_u32 s68, s{74 + 2*n}, s100')
        self(f'v_mov_b32 v{vtmp}, s68')
        self(f'buffer_store_dword v{vtmp}, v{vtmp+1}, s[64:67], 0 offen offset:{4*(n+1)} sc1')
        self('s_waitcnt vmcnt(0)')
        self.label(lab)
    def dump_stamps(self, ws_sreg, off, vtmp=0):
        if getattr(self, 'dbgmode', False): return self.dump_dbg()
        if not self.prof: return
        self('s_waitcnt vmcnt(0) lgkmcnt(0)')
        self(f's_memtime s[{72 + 2*self.nstamp}:{73 + 2*self.nstamp}]')
        self(f's_memrealtime s[{74 + 2*self.nstamp}:{75 + 2*self.nstamp}]')
        self('s_waitcnt lgkmcnt(0)')
        n = self.nstamp + 2
        self(f's_mov_b32 s70, s{74 + 2*self.nstamp}')
        self(f's_sub_u32 s{74 + 2*self.nstamp}, s{74 + 2*self.nstamp}, s100')
        self(f's_load_dwordx2 s[68:69], s[0:1], 104')
        self('s_waitcnt lgkmcnt(0)')
        self(f's_add_u32 s64, s68, {off}')
        self(f's_addc_u32 s65, s69, 0')
        self(f's_mov_b32 s66, {1 << 20}')
        self(f's_mov_b32 s67, 0x00020000')
        self(f's_lshl_b32 s68, s2, 2')
        self(f's_add_u32 s68, s68, s44')
        self(f's_lshl_b32 s68, s68, 6')
        self(f'v_mov_b32 v{vtmp+1}, 0')
        for i in range(n):
            self(f'v_mov_b32 v{vtmp}, s{72 + 2*i}')
            self(f'buffer_store_dword v{vtmp}, v{vtmp+1}, s[64:67], s68 offen offset:{4*i}')
        self(f'v_mov_b32 v{vtmp}, s70')
        self(f'buffer_store_dword v{vtmp}, v{vtmp+1}, s[64:67], s68 offen offset:56')
        self(f'v_mov_b32 v{vtmp}, s100')
        self(f'buffer_store_dword v{vtmp}, v{vtmp+1}, s[64:67], s68 offen offset:60')
        self('s_waitcnt vmcnt(0)')
    def vm_after(self, label):
        idx = max(i for i, l in enumerate(self.vmq) if l == label)
        return len(self.vmq) - 1 - idx
    def wait_vm(self, labels, extra=''):
        if isinstance(labels, str): labels = [labels]
        n = min(self.vm_after(l) for l in labels)
        idx = len(self.vmq) - 1 - n
        if idx <= getattr(self, 'retired', -1):
            if extra: self(f's_waitcnt {extra}')
            return None
        assert n <= 63, n
        self.retired = idx
        self(f's_waitcnt vmcnt({n}) {extra}'.strip())
        return n

def check_lds(seq, name=''):
    errs = []
    vm = []; lg = []
    dmas = []
    reads = []
    bars = []
    byidx_d = {}; byidx_r = {}
    for j, c in enumerate(seq):
        if c.kind == 'wait':
            m = re.search(r'vmcnt\((\d+)\)', c.text)
            if m:
                k = int(m.group(1))
                while len(vm) > k:
                    o = vm.pop(0)
                    if o in byidx_d: byidx_d[o]['ret'] = j
            m = re.search(r'lgkmcnt\((\d+)\)', c.text)
            if m:
                k = int(m.group(1))
                while len(lg) > k:
                    o = lg.pop(0)
                    if o in byidx_r: byidx_r[o]['ret'] = j
        elif c.kind == 'bar': bars.append(j)
        elif c.kind in ('vld', 'vst', 'vat', 'dma'):
            vm.append(j)
            if c.kind == 'dma' and c.tag:
                _, lo, hi, shared = c.tag
                for r in reads:
                    if r['lo'] < hi and lo < r['hi']:
                        if r['ret'] is None: errs.append(f'[{name}] WAR: dma #{j} {c.text} overwrites LDS [{lo},{hi}) with unretired read #{r["idx"]}')
                        elif shared and not any(r['ret'] < b < j for b in bars): errs.append(f'[{name}] WAR: dma #{j} {c.text}: no barrier after read #{r["idx"]} retired')
                reads = [r for r in reads if not (r['lo'] < hi and lo < r['hi'] and r['ret'] is not None)]
                d = dict(idx=j, lo=lo, hi=hi, shared=shared, ret=None)
                dmas = [x for x in dmas if not (x['lo'] >= lo and x['hi'] <= hi)]
                dmas.append(d); byidx_d[j] = d
        elif c.kind in ('dsr', 'dsw'):
            lg.append(j)
            if c.kind == 'dsr' and c.tag:
                _, lo, hi = c.tag
                cov = False
                for d in dmas:
                    if d['lo'] < hi and lo < d['hi']:
                        cov = True
                        if d['ret'] is None: errs.append(f'[{name}] RAW: read #{j} {c.text} [{lo},{hi}) before dma #{d["idx"]} landed')
                        elif d['shared'] and not any(d['ret'] < b < j for b in bars): errs.append(f'[{name}] RAW: read #{j} {c.text}: no barrier after dma #{d["idx"]} wait')
                if not cov: errs.append(f'[{name}] read #{j} {c.text} [{lo},{hi}) not covered by any dma')
                r = dict(idx=j, lo=lo, hi=hi, ret=None)
                reads.append(r); byidx_r[j] = r
    for e in errs[:30]: print(e)
    if len(errs) > 30: print('...', len(errs))
    return errs

def linear(p):
    return [i for i in p.items if isinstance(i, Ins)]

def trace(p, policy, maxn=200000):
    labels = {}
    for i, it in enumerate(p.items):
        if not isinstance(it, Ins) and it[0] == 'label': labels[it[1]] = i
    seq = []; i = 0; seen = {}
    while i < len(p.items) and len(seq) < maxn:
        it = p.items[i]
        if isinstance(it, Ins):
            seq.append(it)
            if it.op == 's_endpgm': break
            if it.kind == 'br':
                tgt = it.args[0]
                key = (i,)
                seen[key] = seen.get(key, 0) + 1
                if it.op == 's_branch' or policy(it, seen[key]):
                    i = labels[tgt]; continue
        i += 1
    return seq
```

```python
from common import *
from gx2 import *
from sched import *
from k1b import w_tile_setup, MF
from lnops import *
WS_FLG = 82*MiB

CTX_FLAGS = 'sc1'
LIM = 0x5d800000
NEGBIG = 0xff800000
opt_idx = [0]
TW, TF, PE = False, True, True
FP = 'db'
TA = False
LATE1 = False
CODE0 = False
DBL = True
KTD = 0
KVLD = ''
KSTF = None
VSTF = None
PREFETCH = True

def gen_kf(name='front_kernel', prof=False, opt=()):
    p = P2(); p.prof = prof
    p.lenient = 'nordsA' in opt
    p.dbgmode = 'dbg' in opt
    import os as _os
    p.dbgwg = int(_os.environ.get('DBGWG', '48'))
    p.stampset = set(['start', 'phase A done', 'q end', 'attn prologue done', 'L done', 'ctx ready', 'gemm end', 'key out', 'argmax ready', 'ffn atomics done'])
    if 'tr' in opt: p.stampset = set(['start', 'q end', 'pre check', 'kv ok', 'qk0 done', 'attn prologue done', 'L done', 'tail setup', 'ctx pub', 'ctx ready'])
    if 'tl' in opt: p.stampset = set(['start', 'L done', 'ctx ready', 'gemm end', 'signalled', 'partials ready', 'partials loaded', 'key out', 'argmax ready', 'ffn atomics done'])
    put = make_put(p)
    S_WQ, S_XNF, S_KF, S_VF, S_CTX = 16, 20, 24, 28, 32
    sM = 36
    sW, sH, sI = 44, 45, 46
    sT0, sT1, sT2 = 47, 48, 49
    sLW = 50
    sWoff = 51
    sXL, sXS = 52, 53
    sKb, sVb = 54, 55
    sHbase = 56
    sSlotP, sSlotR = 57, 58
    sTL, sTS = 59, 60
    sCnt = 61
    sDd = 62
    sFlag = 63
    sCtx = 64
    sLim = 65
    sScale = 61
    sSel = 4
    vLane16 = 1; vRd = 2; vNinf = 3
    vOffW = 4
    vLPW = 8; vT = 9
    vNeg = 16; vCi = 32; vS = 48; vP = 80; vE = 112; vL = 116; vU = 120
    vCW = 120
    vWF = 48
    vO = 128
    aQ = 0; aK = 64; aV = 96; aX = 128
    O = lambda c, db: vO + 32*c + 4*db
    Sr = lambda sc, kb: vS + 8*sc + 4*kb
    Pr = lambda par, c: vP + 16*par + 4*c
    NSLOT = 5

    S_CKV, S_X, S_DBG = 4, 8, 88
    S_WUK, S_WUV = 36, 40
    S_FL = 68
    sTag = 3
    sXcc = 67; sSame = 66
    sASum = sFlag
    sAoff = sDd; sWr = sCtx; sAr = sLim; sWp = sKb; sAp = sVb; sKst = sSlotP
    vOffA = 16
    vLPA = 20; vCA = 21
    vWK = 32; vWV = 64; vAct = 128
    SPIN = 1 << 16
    p(f's_cmp_ge_u32 s2, 256')
    p(f's_cbranch_scc1 {name}_done')
    p.stamp('start')
    if CODE0 and 'nocode' not in opt:
        p('s_lshr_b32 s14, s2, 3')
        p('s_cmp_ge_u32 s14, 12')
        p(f's_cbranch_scc1 {name}_nocode')
        p('s_getpc_b64 s[76:77]')
        p.label(f'{name}_pc')
        p('s_lshl_b32 s14, s14, 13')
        p('v_lshlrev_b32 v9, 5, v0')
        p('v_add_u32 v9, s14, v9')
        p(f'v_min_u32 v9, code_end_all-{name}_pc-4, v9')
        p('v_and_b32 v9, -4, v9')
        p('global_load_dword v23, v9, s[76:77]')
        p.label(f'{name}_nocode')
    p(f's_load_dwordx2 s[84:85], s[0:1], {ARG["x"]}')
    p(f's_load_dwordx2 s[86:87], s[0:1], {ARG["ckv"]}')
    p(f's_load_dwordx4 s[88:91], s[0:1], {ARG["wuk"]}')
    p(f's_load_dwordx2 s[92:93], s[0:1], {ARG["wq"]}')
    p(f's_load_dwordx4 s[96:99], s[0:1], {ARG["dbg"]}')
    p('s_and_b32 s14, s2, 7')
    p('s_lshr_b32 s15, s2, 3')
    p(f's_lshr_b32 s{sH}, s15, 3')
    p(f's_lshl_b32 s14, s14, 2')
    p(f's_add_u32 s{sH}, s{sH}, s14')
    p(f's_and_b32 s{sI}, s15, 7')
    p('v_lshrrev_b32 v2, 6, v0')
    p('v_and_b32 v0, 63, v0')
    p(f'v_readfirstlane_b32 s{sW}, v2')
    p(f'v_lshlrev_b32 v{vLane16}, 4, v0')
    p(f's_getreg_b32 s{sXcc}, hwreg(HW_REG_XCC_ID, 0, 4)')
    w_tile_setup(p, vOffW, vLPW, vT)
    p(f'v_lshrrev_b32 v{vT}, 3, v0')
    p(f'v_lshlrev_b32 v{vT}, 10, v{vT}')
    p(f'v_lshrrev_b32 v{vT+1}, 4, v0')
    p(f'v_and_b32 v{vT+2}, 7, v0')
    p(f'v_xor_b32 v{vT+2}, v{vT+2}, v{vT+1}')
    p(f'v_lshl_add_u32 v{vOffA}, v{vT+2}, 4, v{vT}')
    p(f'v_xor_b32 v{vT+3}, 4, v{vT+2}')
    p(f'v_lshl_add_u32 v{vOffA+1}, v{vT+3}, 4, v{vT}')
    p(f'v_add_u32 v{vOffA+2}, {2*7168}, v{vOffA}')
    p(f'v_add_u32 v{vOffA+3}, {3*7168}, v{vOffA+1}')
    p(f'v_add_u32 v{vOffA+1}, {1*7168}, v{vOffA+1}')
    p(f'v_and_b32 v{vT}, 15, v0')
    p(f'v_bfe_u32 v{vT+1}, v0, 1, 3')
    p(f'v_lshrrev_b32 v{vT+2}, 4, v0')
    p(f'v_xor_b32 v{vT+1}, v{vT+1}, v{vT+2}')
    p(f'v_lshlrev_b32 v{vT}, 7, v{vT}')
    p(f'v_lshl_add_u32 v{vLPA}, v{vT+1}, 4, v{vT}')
    p(f's_lshl_b32 s{sLW}, s{sW}, 12')
    p(f's_lshl_b32 s{sWoff}, s{sW}, 17')
    p(f's_lshl_b32 s{sT1}, s{sH}, 8')
    p(f's_add_u32 s{sWoff}, s{sWoff}, s{sT1}')
    p(f's_lshl_b32 s{sT0}, s{sI}, 8')
    p(f's_lshl_b32 s{sT1}, s{sW}, 6')
    p(f's_add_u32 s{sT0}, s{sT0}, s{sT1}')
    p(f's_lshl_b32 s{sAoff}, s{sT0}, 10')
    sK0 = sXL; sLA = sXS
    p(f's_lshl_b32 s{sHbase}, s{sH}, 6')
    p(f's_lshr_b32 s{sT1}, s{sT0}, 5')
    p(f's_add_u32 s{sHbase}, s{sHbase}, s{sT1}')
    p(f's_lshl_b32 s{sHbase}, s{sHbase}, 13')
    p(f's_lshl_b32 s{sLA}, s{sW}, 13')
    p('s_waitcnt lgkmcnt(0)')
    srd(p, S_CKV, 86, 2048*512*2)
    srd(p, S_WUK, 88, 512*4096*2)
    srd(p, S_WUV, 90, 512*4096*2)
    SL = 16384
    ACT0 = 98304
    def emit(L):
        prev = None
        for it in L:
            if it[0] == 'm' and prev is not None and prev[0] == 's' and ' m0,' in prev[1]: put(('s', 's_nop 0'))
            put(it); prev = it
    def dmaW_static(st):
        base = (st % 3)*32768; L = []
        for mi, sr in enumerate((S_WUK, S_WUV)):
            L += [('s', f's_add_u32 s{sT0}, s{sWoff}, {st*64*8192}'), ('s', f's_add_u32 m0, s{sLW}, {base + mi*SL}')]
            for i in range(4): L.append(('m', f'buffer_load_dwordx4 v{vOffW+i}, s[{sr}:{sr+3}], s{sT0} offen offset:{1024*i} lds', f'W{st}', ('W', base + mi*SL, base + (mi+1)*SL, True)))
        return L
    def dmaA_static(st, adj=0):
        base = ACT0 + (st % 2)*32768; L = []
        for half in range(2):
            L += [('s', f's_add_u32 s{sT1}, s{sAoff}, {(st*128 + 32768*half + adj) & 0xffffffff}'), ('s', f's_add_u32 m0, s{sLA}, {base + 4096*half}')]
            for i in range(4): L.append(('m', f'buffer_load_dwordx4 v{vOffA+i}, s[{S_CKV}:{S_CKV+3}], s{sT1} offen offset:{1024*i} lds', f'A{st}', ('W', base, base + 32768, False)))
        return L
    if 'pp' in opt: p.stamp('setup')
    emit(dmaA_static(0)); emit(dmaW_static(0))
    if 'pp' in opt: p.stamp('A0W0 issued')
    srd(p, S_X, 84, 2048*640*2)
    srd(p, S_WQ, 92, 640*4096*2)
    srd(p, S_XNF, 98, SZ_XNF, WS_XNF)
    srd(p, S_KF, 98, SZ_KF, WS_KF)
    srd(p, S_VF, 98, SZ_KF, WS_VF)
    srd(p, S_CTX, 98, SZ_CTX, WS_CTX)
    srd(p, S_FL, 98, 8192, WS_FLG)
    X = 160; RAW = 200; vXo = 220; vXn = 221; LT = 224
    p(f's_lshl_b32 s{sT1}, s2, 3')
    p(f's_and_b32 s14, s{sW}, 1')
    p(f's_lshl_b32 s14, s14, 2')
    p(f's_add_u32 s{sT1}, s{sT1}, s14')
    p(f'v_and_b32 v{vT}, 3, v0')
    p(f'v_add_u32 v{vT}, s{sT1}, v{vT}')
    p(f'v_lshrrev_b32 v{vT+1}, 2, v0')
    p(f'v_mul_u32_u24 v{vXo}, 1280, v{vT}')
    p(f'v_lshl_add_u32 v{vXo}, v{vT+1}, 4, v{vXo}')
    p(f'v_lshrrev_b32 v{vXn}, 4, v{vT}')
    p(f'v_mul_u32_u24 v{vXn}, 20, v{vXn}')
    p(f'v_lshrrev_b32 v{vT+2}, 2, v{vT+1}')
    p(f'v_add_u32 v{vXn}, v{vXn}, v{vT+2}')
    p(f'v_lshlrev_b32 v{vXn}, 10, v{vXn}')
    p(f'v_and_b32 v{vT+2}, 3, v{vT+1}')
    p(f'v_lshlrev_b32 v{vT+2}, 4, v{vT+2}')
    p(f'v_and_b32 v{vT+3}, 15, v{vT}')
    p(f'v_add_u32 v{vT+2}, v{vT+2}, v{vT+3}')
    p(f'v_lshl_add_u32 v{vXn}, v{vT+2}, 4, v{vXn}')
    for i in range(5):
        p(f'buffer_load_dwordx4 v[{RAW+4*i}:{RAW+4*i+3}], v{vXo}, s[{S_X}:{S_X+3}], 0 offen offset:{256*i}')
    S_LNS = 96
    if not CODE0:
        if 'nocode' not in opt:
            p(f's_lshr_b32 s14, s2, 3')
            p(f's_cmp_ge_u32 s14, 12')
            p(f's_cbranch_scc1 {name}_nocode')
            p(f's_cmp_lg_u32 s{sW}, 3')
            p(f's_cbranch_scc1 {name}_nocode')
            p('s_getpc_b64 s[76:77]')
            p.label(f'{name}_pc')
            p(f's_lshl_b32 s14, s14, 13')
            p(f'v_lshlrev_b32 v{vT}, 7, v0')
            p(f'v_add_u32 v{vT}, s14, v{vT}')
            p(f'v_min_u32 v{vT}, code_end_all-{name}_pc-4, v{vT}')
            p(f'v_and_b32 v{vT}, -4, v{vT}')
            p(f'global_load_dword v{vT+2}, v{vT}, s[76:77]')
            p.label(f'{name}_nocode')
    if 'notlb' not in opt:
        p('s_mov_b32 s76, s98'); p('s_mov_b32 s77, s99'); p(f's_mov_b32 s78, {96*MiB}'); p('s_mov_b32 s79, 0x00020000')
        p(f'v_mov_b32 v{vT}, {WS_FLG}')
        p(f's_add_u32 s14, s{sHbase}, {WS_KF}'); p(f'v_writelane_b32 v{vT}, s14, 1')
        p(f's_add_u32 s14, s{sHbase}, {WS_VF}'); p(f'v_writelane_b32 v{vT}, s14, 2')
        p(f's_lshl_b32 s15, s{sH}, 19')
        for k in range(2):
            p(f's_add_u32 s14, s15, {WS_KF + k*524160}'); p(f'v_writelane_b32 v{vT}, s14, {3 + 2*k}')
            p(f's_add_u32 s14, s15, {WS_VF + k*524160}'); p(f'v_writelane_b32 v{vT}, s14, {4 + 2*k}')
        p(f's_mov_b32 s14, {WS_XNF}'); p(f'v_writelane_b32 v{vT}, s14, 7')
        p(f's_mov_b32 s14, {WS_XNF + 2*MiB}'); p(f'v_writelane_b32 v{vT}, s14, 8')
        p(f's_sub_u32 s14, 15, s{sI}'); p('s_lshl_b32 s14, s14, 20'); p(f's_add_u32 s14, s14, {WS_CTX}'); p(f'v_writelane_b32 v{vT}, s14, 9')
        p(f's_lshl_b32 s14, s{sI}, 20'); p(f's_add_u32 s14, s14, {WS_CTX}'); p(f'v_writelane_b32 v{vT}, s14, 10')
        p(f'buffer_load_dword v{vT+2}, v{vT}, s[76:79], 0 offen')
    if 'pp' in opt: p.stamp('x issued')
    srd(p, S_DBG, 96, 256)
    p('v_mov_b32 v26, 0')
    p('s_or_b32 s14, s2, 0')
    p(f's_add_u32 s14, s2, s{sW}')
    p('s_cmp_lg_u32 s14, 0')
    p(f's_cbranch_scc1 {name}_notag')
    p('s_memrealtime s[92:93]')
    p('s_waitcnt lgkmcnt(0)')
    p('s_or_b32 s92, s92, 1')
    p('v_mov_b32 v24, s92')
    p(f'buffer_store_dword v24, v26, s[{S_DBG}:{S_DBG+3}], 0 offen sc1')
    p.label(f'{name}_notag')
    if 'pp' in opt: p.stamp('tag issued')
    if not LATE1:
        emit(dmaA_static(1)); emit(dmaW_static(1))
    (p.stamp('dma issued') if 'pq' not in opt else None)
    p('s_cmp_lg_u32 s2, 0')
    p(f's_cbranch_scc1 {name}_nz')
    p(f's_add_u32 s76, s98, {WS_YACC}')
    p('s_addc_u32 s77, s99, 0')
    p(f's_mov_b32 s78, {SZ_ZERO}')
    p('s_mov_b32 s79, 0x00020000')
    for r in range(4): p(f'v_mov_b32 v{28+r}, 0')
    p(f's_mul_i32 s14, s{sW}, 7168')
    for i in range(7):
        p(f'buffer_store_dwordx4 v[28:31], v{vLane16}, s[76:79], s14 offen sc1')
        p(f's_add_u32 s14, s14, 1024')
    p.label(f'{name}_nz')
    p(f's_add_u32 s96, s98, {WS_XNF}')
    p('s_addc_u32 s97, s99, 0')
    p(f's_mov_b32 s98, {SZ_XNF}')
    p('s_mov_b32 s99, 0x00020000')
    p(f's_cmp_lt_u32 s{sW}, 2')
    p('s_cselect_b32 s98, s98, 0')
    p('s_waitcnt vmcnt(0)' if LATE1 else 's_waitcnt vmcnt(16)')
    p('s_barrier')
    (p.stamp('B0') if 'pq' not in opt else None)
    def rd_act(buf, kin, tb, lab):
        r = vAct + 16*buf + 4*tb
        return ('r', f'ds_read_b128 v[{r}:{r+3}], v{vCA+kin} offset:{2048*tb}', lab)
    def rd_wA(mi, db, kin, lab):
        r = (vWK if mi == 0 else vWV) + 4*db
        return [('r', f'ds_read_b64_tr_b16 v[{r+2*h}:{r+2*h+1}], v{vCW+db} offset:{mi*SL + 8192*kin + 1024*h}', lab) for h in range(2)]
    updA = [('v', f'v_add_u32 v{vCA}, s{sAr}, v{vLPA}'), ('v', f'v_xor_b32 v{vCA+1}, 64, v{vCA}')]
    updWd = [('v', f'v_add_u32 v{vCW}, s{sWr}, v{vLPW}')] + [('v', f'v_xor_b32 v{vCW+db}, {db*32}, v{vCW}') for db in range(1, 8)]
    KA = lambda tb, db: (tb*8 + db)*4
    VA = lambda tb, db: 128 + ((tb >> 1)*16 + db*2 + (tb & 1))*4
    def stageA_mfmas(first):
        L = []
        for kin in range(2):
            for db in range(8):
                for tb in range(4):
                    a = KA(tb, db); f = vAct + 16*kin + 4*tb
                    c = '0' if (first and kin == 0) else f'a[{a}:{a+3}]'
                    L.append(f'{MF} a[{a}:{a+3}], v[{vWK+4*db}:{vWK+4*db+3}], v[{f}:{f+3}], {c}')
                for tb in range(4):
                    a = VA(tb, db); f = vAct + 16*kin + 4*tb
                    c = '0' if (first and kin == 0) else f'a[{a}:{a+3}]'
                    L.append(f'{MF} a[{a}:{a+3}], v[{f}:{f+3}], v[{vWV+4*db}:{vWV+4*db+3}], {c}')
        return L
    GA = lambda kin, db, m: kin*64 + db*8 + m
    def spread(R, L, g0, g1):
        nm = sum(1 for x in L if x[0] in ('m', 'l', 'st'))
        step = max(1, (g1 - g0) // max(nm, 1))
        g = g0; cnt = 0; prev = None
        for it in L:
            e = max(g, g0 + cnt*step - (2 if it[0] == 's' else 0))
            if it[0] == 'm' and prev is not None and prev[0] == 's' and ' m0,' in prev[1]: e = max(e, gprev + 1)
            g = R.place(it, e, g1); gprev = g; prev = it
            if it[0] in ('m', 'l', 'st'): cnt += 1; g += 1
    def stageA(kind, dmaA_items, dmaB_items, barlabs, next_reads=None, mid=None, first=False, bend=None):
        R = Region(stageA_mfmas(first))
        BG = GA(1, 0, 7)
        R.S[BG].append(('bar', barlabs))
        if mid: R.S[BG].extend(mid)
        if next_reads is None:
            R.S[GA(1, 0, 1)].append(('s', f's_add_u32 s{sWr}, s{sWr}, 32768'))
            R.S[GA(1, 0, 2)].append(('s', f's_cmp_ge_u32 s{sWr}, 98304\ns_cselect_b32 s{sWr}, 0, s{sWr}'))
            R.S[GA(1, 0, 3)].append(('s', f's_sub_u32 s{sAr}, s{sASum}, s{sAr}'))
            R.stream(updA + updWd, GA(1, 0, 4), GA(1, 2, 0))
        else:
            R.stream(next_reads[0], GA(1, 0, 4), GA(1, 2, 0))
        for kin in range(2):
            for db in range(8):
                for mi in range(2):
                    if kin == 0 and db == 0 and mi == 0: continue
                    labs = [f'w{kin}_{mi}_{db}'] + ([f'act{kin}'] if (db == 0 and mi == 0) else [])
                    R.place(('wlg', labs), GA(kin, db, 4*mi) - 1, force=True)
        for db in range(8):
            for mi in range(2):
                rr = rd_wA(mi, db, 1, f'w1_{mi}_{db}')
                e = GA(0, db, 4*mi + 3)
                g = R.place(rr[0], e, GA(1, 0, 0)); R.place(rr[1], min(g + 1, GA(1, 0, 0)), GA(1, 0, 0))
        for tb in range(4): R.place(rd_act(1, 1, tb, 'act1'), GA(0, 1, 1) + 5*tb)
        if next_reads is None:
            for db in range(8):
                for mi in range(2):
                    rr = rd_wA(mi, db, 0, f'n0_{mi}_{db}')
                    e = max(GA(1, db, 4*mi + 3), GA(1, 2, 1))
                    g = R.place(rr[0], e); R.place(rr[1], g + 1)
            for tb in range(4): R.place(rd_act(0, 0, tb, 'nact0'), GA(1, 2, 2) + 5*tb)
        else:
            for (it, e) in next_reads[1]: R.place(it, max(e, GA(1, 2, 1)))
        if 'nodmaA' in opt and kind in ('s0', 's1', 'loop'): dmaA_items = [x for x in dmaA_items if x[0] != 'm']; dmaB_items = [x for x in dmaB_items if x[0] != 'm']
        if 'nowA' in opt and kind in ('s0', 's1', 'loop'):
            for g in range(R.n): R.S[g] = [x for x in R.S[g] if x[0] != 'wlg']
        if 'nordsA' in opt and kind in ('s0', 's1', 'loop'):
            for g in range(R.n): R.M[g] = []; R.S[g] = [x for x in R.S[g] if x[0] != 'wlg']
        spread(R, dmaA_items, 1, BG - 2)
        spread(R, dmaB_items, BG + 1, bend if bend else R.n - 2)
        return R
    def dyn_dmaW():
        L = []
        for mi, sr in enumerate((S_WUK, S_WUV)):
            L += [('s', f's_add_u32 m0, s{sWp}, {mi*SL}')]
            for i in range(4): L.append(('m', f'buffer_load_dwordx4 v{vOffW+i}, s[{sr}:{sr+3}], s{sKst} offen offset:{1024*i} lds', 'Wn', None))
        L += [('s', f's_add_u32 s{sKst}, s{sKst}, {64*8192}'), ('s', f's_add_u32 s{sWp}, s{sWp}, 32768'),
              ('s', f's_cmp_ge_u32 s{sWp}, 98304\ns_cselect_b32 s{sWp}, s{sLW}, s{sWp}')]
        return L
    def dyn_dmaA():
        L = []
        for half in range(2):
            L += [('s', f's_add_u32 s{sT1}, s{sAoff}, {32768*half}'), ('s', f's_add_u32 m0, s{sAp}, {4096*half}')]
            for i in range(4): L.append(('m', f'buffer_load_dwordx4 v{vOffA+i}, s[{S_CKV}:{S_CKV+3}], s{sT1} offen offset:{1024*i} lds', 'An', None))
        L += [('s', f's_add_u32 s{sAoff}, s{sAoff}, 128'), ('s', f's_sub_u32 s{sAp}, s{sASum}, s{sAp}')]
        if TA: L.append(('l', f'buffer_load_dword v31, v30, s[{S_CKV}:{S_CKV+3}], s{sAoff} offen', 'TCH'))
        return L
    p('v_lshlrev_b32 v30, 10, v0')
    p(f's_mov_b32 s{sWr}, 0')
    p(f's_add_u32 s{sAr}, s{sLA}, {ACT0}')
    p(f's_add_u32 s{sWp}, s{sLW}, 65536')
    p(f's_add_u32 s{sAp}, s{sLA}, {ACT0}')
    p(f's_lshl_b32 s{sASum}, s{sAp}, 1')
    p(f's_add_u32 s{sASum}, s{sASum}, 32768')
    p(f's_add_u32 s{sKst}, s{sWoff}, {2*64*8192}')
    p(f's_add_u32 s{sAoff}, s{sAoff}, 256')
    emit(updA + updWd)
    p.lgq = []; p.lg_ret = -1
    for tb in range(4): put(rd_act(0, 0, tb, 'act0'))
    for db in range(8):
        for mi in range(2): emit(rd_wA(mi, db, 0, f'w0_{mi}_{db}'))
    def next_order(R):
        L = []
        for g in range(R.n):
            for it in R.M[g]:
                if it[0] == 'r' and (it[2].startswith('n0_') or it[2] == 'nact0'):
                    L.append('act0' if it[2] == 'nact0' else 'w0_' + it[2][3:])
        return L
    order = [None]
    def relabel():
        p.lgq = list(order[0]); p.lg_ret = -1
    def bar_raw(n):
        if 'nobarA' in opt: return ('w', f's_waitcnt vmcnt({n}) lgkmcnt(0)')
        return ('w', f's_waitcnt vmcnt({n}) lgkmcnt(0)\ns_barrier')
    BG = GA(1, 0, 7)
    def fix_bar(R, n, extra=()):
        R.S[BG] = [bar_raw(n), ('call', lambda: p.lg_all())] + list(extra) + [x for x in R.S[BG] if x[0] != 'bar']
    def red64x4(r):
        L = []
        for sh in (8, 4): L += ['s_nop 1', f'v_add_f32_dpp v{r}, v{r}, v{r} row_ror:{sh} row_mask:0xf bank_mask:0xf']
        for sw in ('v_permlane16_swap_b32', 'v_permlane32_swap_b32'):
            L += [f'v_mov_b32 v{LT+6}, v{r}', 's_nop 1', f'{sw} v{r}, v{LT+6}', 's_nop 1', f'v_add_f32 v{r}, v{r}, v{LT+6}']
        return L
    lnops = []
    for i in range(5): lnops += unpack8(RAW + 4*i, X + 8*i)
    lnops += ln_stream(X, 40, LT, red64x4, scale='0x3e0293ee')
    ln = [('v', x) for x in lnops]
    for i in range(5):
        ln.append(('s', f's_mov_b32 s14, {4096*i}'))
        ln.append(('st', f'buffer_store_dwordx4 v[{X+4*i}:{X+4*i+3}], v{vXn}, s[{S_LNS}:{S_LNS+3}], s14 offen sc1'))
    half = len(ln) // 2
    def tag_read():
        p('s_mov_b32 s14, 0')
        p.label(f'{name}_tagpoll')
        p(f'v_readfirstlane_b32 s{sTag}, v24')
        p('s_add_u32 s14, s14, 1')
        p('s_nop 2')
        p(f's_cmp_lg_u32 s{sTag}, 0')
        p(f's_cbranch_scc1 {name}_notag2')
        p(f's_cmp_ge_u32 s14, {SPIN}')
        p(f's_cbranch_scc1 {name}_notag2')
        p(f'buffer_load_dword v24, v26, s[{S_DBG}:{S_DBG+3}], 0 offen sc1')
        p('s_waitcnt vmcnt(0)')
        p(f's_branch {name}_tagpoll')
        p.label(f'{name}_notag2')
    def pub_ln():
        p(f's_cmp_lg_u32 s{sCnt}, {1 if TA else 0}')
        p(f's_cbranch_scc1 {name}_nopub')
        p(f's_cmp_lg_u32 s{sW}, 0')
        p(f's_cbranch_scc1 {name}_nopub')
        p(f's_lshl_b32 s14, s2, 3')
        p(f'v_mov_b32 v24, s{sTag}')
        p(f'v_mov_b32 v25, s{sXcc}')
        p('v_mov_b32 v26, 0')
        p(f'buffer_store_dwordx2 v[24:25], v26, s[{S_FL}:{S_FL+3}], s14 offen sc1')
        p.label(f'{name}_nopub')
    R0 = stageA('s0', (dmaA_static(1, -256) + dmaW_static(1) if LATE1 else []) + dyn_dmaW(), dyn_dmaA(), None, first=True, bend=BG + 34)
    fix_bar(R0, 8)
    R0.place(('l', f'buffer_load_dword v24, v26, s[{S_DBG}:{S_DBG+3}], 0 offen sc1', 'TAG'), BG + 1, force=True)
    R0.period = 20; R0.stream(ln[:half], 4, None, pace=lambda k: 4 + (k*120)//half); R0.period = 16
    p.lgq = ['act0']*4 + [f'w0_{mi}_{db}' for db in range(8) for mi in range(2) for _ in range(2)]; p.lg_ret = -1
    put(('wlg', ['w0_0_0', 'act0']))
    R0.emit(p, put); order[0] = next_order(R0)
    R1_ = stageA('s1', dyn_dmaW(), dyn_dmaA(), None, bend=BG + 34)
    fix_bar(R1_, 9 if TA else 8, [('call', tag_read)])
    nv = [x for x in ln[half:] if x[0] == 'v']; tail = ln[half + len(nv):]
    R1_.period = 20; g = R1_.stream(ln[half:], 0, None, pace=lambda k: min((k*118)//(len(ln) - half), 200) if ln[half + k][0] == 'v' else BG + 2); R1_.period = 16
    relabel(); put(('wlg', ['w0_0_0', 'act0']))
    R1_.emit(p, put); order[0] = next_order(R1_)
    print('stage0/1 est', R0.total(), R1_.total())
    if 'ps' in opt: p.stamp('stage1 done')
    p(f's_mov_b32 s{sCnt}, 0')
    LA = f'{name}_stageA'
    p.label(LA)
    Rl = stageA('loop', dyn_dmaW(), dyn_dmaA(), None, bend=BG + 34)
    fix_bar(Rl, 9 if TA else 8, [('call', pub_ln)])
    Rl.T[Rl.n - 1] += [('s', f's_add_u32 s{sCnt}, s{sCnt}, 1'), ('s', f's_cmp_lt_u32 s{sCnt}, 4')]
    assert 'nordsA' in opt or next_order(Rl) == order[0], 'stage read order must be periodic'
    relabel()
    put(('wlg', ['w0_0_0', 'act0']))
    Rl.emit(p, put)
    print('stageA loop est', Rl.total(), 'overflow', Rl.over)
    p(f's_cbranch_scc1 {LA}')
    if 'pp' not in opt: (p.stamp('A loop done') if 'pq' not in opt else None)
    def dma_wq(c):
        L = [('s', f's_add_u32 s{sT0}, s{sWoff}, {c*64*8192}'), ('s', f's_add_u32 m0, s{sLW}, {c*SL}')]
        for i in range(4):
            L.append(('m', f'buffer_load_dwordx4 v{vOffW+i}, s[{S_WQ}:{S_WQ+3}], s{sT0} offen offset:{1024*i} lds', f'WQ{c}', None))
        return L
    relabel()
    put(('wlg', ['w0_0_0', 'act0']))
    flagld = [('s', f's_sub_u32 s{sTL}, 15, s{sI}'), ('s', f's_mov_b32 s{sTS}, s{sI}'),
              ('v', f'v_and_b32 v24, 15, v0'), ('v', f'v_bfe_u32 v25, v0, 4, 1'),
              ('v', f'v_mov_b32 v26, s{sTL}'), ('v', f'v_mov_b32 v27, s{sTS}'),
              ('v', f'v_cmp_eq_u32 vcc, 0, v25'), ('v', 's_nop 1'), ('v', f'v_cndmask_b32 v26, v27, v26, vcc'),
              ('v', f'v_lshl_add_u32 v24, v26, 4, v24'),
              ('s', f's_and_b32 s14, s{sH}, 3'), ('s', f's_lshl_b32 s14, s14, 6'), ('s', f's_lshr_b32 s15, s{sH}, 2'), ('s', f's_add_u32 s14, s14, s15'),
              ('v', f'v_and_b32 v25, 7, v0'), ('v', f'v_lshlrev_b32 v25, 3, v25'), ('v', f'v_add_u32 v25, s14, v25'),
              ('v', f'v_cmp_gt_u32 vcc, 32, v0'), ('v', 's_nop 1'), ('v', f'v_cndmask_b32 v24, v25, v24, vcc'),
              ('v', f'v_lshlrev_b32 v24, 3, v24'),
              ('l', f'buffer_load_dwordx2 v[28:29], v24, s[{S_FL}:{S_FL+3}], 0 offen sc1', 'FL')]
    R6 = stageA('s6', dma_wq(4) + dma_wq(5), dma_wq(0) + dma_wq(1), None)
    fix_bar(R6, 9 if TA else 8)
    R6.stream(flagld, BG + 24)
    R6.emit(p, put)
    order[0] = next_order(R6)
    XR = [16, 96, 32, 80]
    XRING = [('v', 16), ('v', 96), ('v', 32), ('v', 80), ('a', 0), ('a', 16), ('a', 32), ('a', 48)]
    def xreg(ks, c):
        t, b = XRING[ks % 8]
        return f'{t}[{b+4*c}:{b+4*c+3}]'
    def xn_load(ks):
        L = []
        for c in range(4):
            off = ks*1024 + (c & 1)*20480
            sb = sXL if c < 2 else sXS
            L.append(('s', f's_add_u32 s{sT1}, s{sb}, {off & ~4095}'))
            L.append(('l', f'buffer_load_dwordx4 {xreg(ks, c)}, v{vLane16}, s[{S_XNF}:{S_XNF+3}], s{sT1} offen offset:{off & 4095} sc1', f'XN{ks}'))
        return L
    def rd_w(db, kin, base, lab):
        r = vWF + 4*db
        return [('r', f'ds_read_b64_tr_b16 v[{r+2*h}:{r+2*h+1}], v{vCW+db} offset:{8192*kin + 1024*h}', lab, None) for h in range(2)]
    def upd_w(base):
        return [('v', f'v_add_u32 v{vCW}, {base}, v{vLPW}')] + [('v', f'v_xor_b32 v{vCW+db}, {db*32}, v{vCW}') for db in range(1, 8)]
    def lncheck():
        p(f's_cmp_lg_u32 s{sW}, 0')
        p(f's_cbranch_scc1 {name}_lnok')
        p('s_mov_b32 s14, 0')
        p.label(f'{name}_lnpoll')
        p(f'v_cmp_ne_u32 vcc, s{sTag}, v28')
        p('s_add_u32 s14, s14, 1')
        p(f's_cbranch_vccz {name}_lnok2')
        p(f's_cmp_ge_u32 s14, {SPIN}')
        p(f's_cbranch_scc1 {name}_lnok2')
        p(f'buffer_load_dwordx2 v[28:29], v24, s[{S_FL}:{S_FL+3}], 0 offen sc1')
        p('s_waitcnt vmcnt(0)')
        p(f's_branch {name}_lnpoll')
        p.label(f'{name}_lnok2')
        p(f'v_cmp_ne_u32 vcc, s{sXcc}, v29')
        p('s_nop 1')
        p('s_lshr_b64 s[14:15], vcc, 32')
        p('s_cmp_eq_u64 s[14:15], 0')
        p(f's_cselect_b32 s{sSame}, 1, 0')
        p.label(f'{name}_lnok')
    relabel()
    put(('wlg', ['w0_0_0', 'act0']))
    xset = [('s', f's_lshl_b32 s{sT1}, s{sTL}, 3'), ('s', f's_lshl_b32 s{sT0}, s{sW}, 1'), ('s', f's_add_u32 s{sT1}, s{sT1}, s{sT0}'),
            ('s', f's_mul_i32 s{sXL}, s{sT1}, 20480'), ('s', f's_lshl_b32 s{sT1}, s{sTS}, 3'), ('s', f's_add_u32 s{sT1}, s{sT1}, s{sT0}'),
            ('s', f's_mul_i32 s{sXS}, s{sT1}, 20480')]
    def last_use(db):
        r = vWF + 4*db
        if r < 64: return GA(1, (r - vWK)//4, 3)
        return GA(1, (r - vWV)//4, 7)
    nr = []
    for db in range(8):
        for it in rd_w(db, 0, 0, f'w0_{db}'): nr.append((it, last_use(db) + 1))
    R7 = stageA('s7', xset + dma_wq(6) + dma_wq(7), dma_wq(2) + dma_wq(3) + dma_wq(8) + dma_wq(9), None, next_reads=(upd_w(0), nr))
    R7.S[BG] = [('call', lambda: (p('s_waitcnt vmcnt(8) lgkmcnt(0)'), p.lg_all(), lncheck(), p('s_barrier')))] + [x for x in R7.S[BG] if x[0] != 'bar']
    R7.stream(xn_load(0) + xn_load(1), BG + 2)
    R7.stream(xn_load(2), GA(1, 4, 0))
    R7.emit(p, put)
    if 'pp' not in opt: p.stamp('phase A done')
    NKS = 20
    mf = []
    for ks in range(NKS):
        for db in range(8):
            for c in range(4):
                acc = O(c, db)
                cc = '0' if ks == 0 else f'v[{acc}:{acc+3}]'
                mf.append(f'{MF} v[{acc}:{acc+3}], v[{vWF+4*db}:{vWF+4*db+3}], {xreg(ks, c)}, {cc}')
    R = Region(mf)
    G = lambda ks, db, c: ks*32 + db*4 + c
    p.wait_vm('XN0')
    put(('wlg', ['w0_0', 'w0_1']))
    R.S[G(3, 0, 3)].append(('bar', ['WQ2', 'WQ3', 'WQ8', 'WQ9', 'WQ4', 'WQ5', 'WQ6', 'WQ7']))
    for ch in range(9):
        R.stream(upd_w((ch + 1)*SL), G(2*ch + 1, 0, 1), G(2*ch + 1, 2, 0))
    for ks in range(NKS):
        for db in range(0, 8, 2):
            if ks == 0 and db == 0: continue
            R.place(('wlg', [f'w{ks}_{db}', f'w{ks}_{db+1}']), G(ks, db, 0) - 1, force=True)
        if ks: R.place(('wvm', f'XN{ks}'), G(ks, 0, 0) - 2, force=True)
    for ks in range(NKS - 1):
        ch, t = divmod(ks, 2); nxt = ks + 1; nch, nt = divmod(nxt, 2)
        for db in range(8):
            e = G(ks, db, 3)
            if t == 1: e = max(e, G(ks, 2, 1))
            rr = rd_w(db, nt, nch*SL, f'w{nxt}_{db}')
            lat = G(ks + 1, 0, 0) if t == 0 else None
            g = R.place(rr[0], e, lat); R.place(rr[1], g + 1 if t == 1 or db < 7 else g, lat)
    TE = 112
    STF = ''
    for o_ in opt:
        if o_.startswith('stf='): STF = o_[4:]
    sSt = sCtx
    epi = []
    sStB = sHbase
    for kind in range(2):
        for f in range(16):
            if kind == 0:
                tb, k4 = divmod(f, 4); a0 = KA(tb, 2*k4); off = tb*4096 + k4*1024; sr = S_KF
            else:
                b, db = divmod(f, 8); a0 = 128 + (b*16 + db*2)*4; off = b*8192 + db*1024; sr = S_VF
            for k in range(8): epi.append(('v', f'v_accvgpr_read_b32 v{TE+k}, a{a0+k}'))
            for k in range(4): epi.append(('v', f'v_cvt_pk_bf16_f32 v{TE+k}, v{TE+2*k}, v{TE+2*k+1}'))
            epi.append(('s', f's_add_u32 s{sSt}, s{sStB}, {off & ~4095}'))
            epi.append(('st', f'buffer_store_dwordx4 v[{TE}:{TE+3}], v{vLane16}, s[{sr}:{sr+3}], s{sSt} offen offset:{off & 4095} {(KSTF if (kind == 0 and KSTF is not None) else (VSTF if (kind == 1 and VSTF is not None) else STF))}'))
            if 'nost' in opt: epi.pop()
            epi.append(('s', 's_nop 0'))
    KS_V = int(next((o_[3:] for o_ in opt if o_.startswith('kv=')), '17'))
    g0 = 12; span = G(KS_V, 4, 0) - g0
    gl = R.stream(epi, g0, None, pace=lambda k: g0 + (k*span)//len(epi))
    freed = {}
    for g in range(R.n):
        for it in R.V[g]:
            if it[1].startswith('v_accvgpr_read'): freed[int(it[1].split(' a')[-1])] = g
    gprev = 0
    for ks in range(3, NKS):
        t, b = XRING[ks % 8]
        if t == 'a' and ks < 8: e = max(freed[r] for r in range(b, b + 16)) + 1
        elif ks >= 8: e = G(ks - 8, 7, 3) + 1
        else: e = 0
        e = max(e, gprev + 1, G(max(ks - 7, 0), 0, 0))
        lat = G(ks, 0, 0) - 40 if ks > 3 else G(1, 0, 0)
        gprev = R.stream(xn_load(ks), e, max(lat, e + 8))
    FK, FV = 4096, 5120
    def publish(off, lab, waitlabel):
        p.wait_vm(waitlabel)
        p('s_barrier')
        p(f's_cmp_lg_u32 s{sW}, 0')
        p(f's_cbranch_scc1 {name}_{lab}pub')
        p(f's_lshl_b32 s14, s{sH}, 3')
        p(f's_add_u32 s14, s14, s{sI}')
        p(f's_lshl_b32 s14, s14, 2')
        p(f's_add_u32 s14, s14, {off}')
        p(f'v_mov_b32 v12, s{sTag}')
        p('v_mov_b32 v13, 0')
        p(f's_cmp_eq_u32 s{sSame}, 1')
        p(f's_cbranch_scc1 {name}_{lab}rel')
        p('buffer_wbl2 sc1')
        p('s_waitcnt vmcnt(0)')
        p(f'buffer_store_dword v12, v13, s[{S_FL}:{S_FL+3}], s14 offen sc1')
        p(f's_branch {name}_{lab}pub')
        p.label(f'{name}_{lab}rel')
        p(f'buffer_store_dword v12, v13, s[{S_FL}:{S_FL+3}], s14 offen')
        p.label(f'{name}_{lab}pub')
    def flag_load(off, lab):
        return [('s', f's_lshl_b32 s15, s{sH}, 5'), ('s', f's_add_u32 s15, s15, {off}'),
                ('v', 'v_and_b32 v13, 7, v0'), ('v', 'v_lshlrev_b32 v13, 2, v13'),
                ('l', f'buffer_load_dword v12, v13, s[{S_FL}:{S_FL+3}], s15 offen sc1', lab)]
    def check(lab, waitlabel):
        p.wait_vm(waitlabel, 'lgkmcnt(0)'); p.lg_all()
        p(f's_cmp_lg_u32 s{sW}, 0')
        p(f's_cbranch_scc1 {name}_{lab}ok')
        p('s_mov_b32 s14, 0')
        p.label(f'{name}_{lab}poll')
        p(f'v_cmp_ne_u32 vcc, s{sTag}, v12')
        p('s_add_u32 s14, s14, 1')
        p(f's_cbranch_vccz {name}_{lab}ok2')
        p(f's_cmp_ge_u32 s14, {SPIN}')
        p(f's_cbranch_scc1 {name}_{lab}ok2')
        p(f'buffer_load_dword v12, v13, s[{S_FL}:{S_FL+3}], s15 offen sc1')
        p('s_waitcnt vmcnt(0)')
        p(f's_branch {name}_{lab}poll')
        p.label(f'{name}_{lab}ok2')
        p(f's_cmp_eq_u32 s{sSame}, 1')
        p(f's_cbranch_scc1 {name}_{lab}ok')
        p('buffer_inv sc1')
        p('s_waitcnt vmcnt(0)')
        p.label(f'{name}_{lab}ok')
        p('s_barrier')
    def att_state():
        p(f's_lshl_b32 s{sKb}, s{sH}, 19')
        p(f's_add_u32 s{sKb}, s{sKb}, s{sLW}')
        p(f's_mov_b32 s{sVb}, s{sKb}')
    def unitK(slot, label):
        L = [('s', f's_add_u32 m0, s{sLW}, {slot*32768}')]
        for i in range(4): L.append(('m', f'buffer_load_dwordx4 v{vLane16}, s[{S_KF}:{S_KF+3}], s{sKb} offen offset:{1024*i}{KVLD} lds', label, None))
        return L + [('s', f's_add_u32 s{sKb}, s{sKb}, 16384')]
    def unitV(slot, label):
        L = [('s', f's_add_u32 m0, s{sLW}, {slot*32768 + SL}')]
        for i in range(4): L.append(('m', f'buffer_load_dwordx4 v{vLane16}, s[{S_VF}:{S_VF+3}], s{sVb} offen offset:{1024*i}{KVLD} lds', label, None))
        return L + [('s', f's_add_u32 s{sVb}, s{sVb}, 16384')]
    def dma_K(label, tagbase=None):
        L = [('s', f's_mov_b32 m0, s{sSlotP}')]
        for i in range(4):
            L.append(('m', f'buffer_load_dwordx4 v{vLane16}, s[{S_KF}:{S_KF+3}], s{sKb} offen offset:{1024*i}{KVLD} lds', label, None))
        L += [('s', f's_add_u32 s{sKb}, s{sKb}, 16384')]
        return L
    def dma_V(label, tagbase=None):
        L = [('s', f's_add_u32 m0, s{sSlotP}, {SL}')]
        for i in range(4):
            L.append(('m', f'buffer_load_dwordx4 v{vLane16}, s[{S_VF}:{S_VF+3}], s{sVb} offen offset:{1024*i}{KVLD} lds', label, None))
        L += [('s', f's_add_u32 s{sVb}, s{sVb}, 16384')]
        return L
    adv_slot = [('s', f's_add_u32 s{sSlotP}, s{sSlotP}, 32768'), ('s', f's_cmp_ge_u32 s{sSlotP}, {NSLOT*32768}\ns_cselect_b32 s{sSlotP}, s{sLW}, s{sSlotP}')]
    R.emit(p, put)
    print('fused qproj overflow', R.over, 'est', R.total())
    if 'pp' not in opt: p.stamp('q end')
    p(f's_mov_b32 s{sFlag}, 0')
    p(f's_mov_b32 s{sLim}, {hex(LIM)}')
    def touch_setup():
        p(f's_load_dwordx2 s[92:93], s[0:1], {ARG["wo"]}')
        p(f's_load_dwordx2 s[94:95], s[0:1], {ARG["wg"]}')
        p(f's_load_dwordx2 s[96:97], s[0:1], {ARG["wu"]}')
        p(f's_load_dwordx2 s[98:99], s[0:1], {ARG["wd"]}')
        p('s_lshl_b32 s14, s2, 2')
        p(f's_add_u32 s14, s14, s{sW}')
        p('s_mul_i32 s14, s14, 40')
        p('v_min_u32 v14, 39, v0')
        p('v_add_u32 v14, s14, v14')
        p('v_lshlrev_b32 v14, 7, v14')
        p('s_lshr_b32 s14, s2, 6')
        p('s_lshl_b32 s14, s14, 2')
        p(f's_and_b32 s15, s{sI}, 3')
        p('s_add_u32 s14, s14, s15')
        p('s_lshl_b32 s14, s14, 3')
        p('s_and_b32 s15, s2, 7')
        p('s_add_u32 s14, s14, s15')
        p('s_lshl_b32 s14, s14, 2')
        p(f's_add_u32 s14, s14, s{sW}')
        p('s_mul_i32 s14, s14, 34')
        p('v_min_u32 v15, 33, v0')
        p('v_add_u32 v15, s14, v15')
        p('v_min_u32 v15, 17279, v15')
        p('v_lshlrev_b32 v15, 7, v15')
        p('s_waitcnt lgkmcnt(0)')
    touch_items = [('l', 'global_load_dword v13, v14, s[92:93]', 'T'), ('l', 'global_load_dword v13, v15, s[94:95]', 'T'),
                   ('l', 'global_load_dword v13, v15, s[96:97]', 'T'), ('l', 'global_load_dword v13, v15, s[98:99]', 'T')]
    att_state()
    if FP == 'pace':
        p(f's_load_dwordx2 s[92:93], s[0:1], {ARG["wg"]}')
        p(f's_load_dwordx2 s[94:95], s[0:1], {ARG["wu"]}')
        p(f's_load_dwordx2 s[96:97], s[0:1], {ARG["wd"]}')
        p('s_lshr_b32 s14, s2, 6')
        p('s_lshl_b32 s14, s14, 1')
        p(f's_add_u32 s14, s14, s{sI}')
        p('s_sub_u32 s14, s14, 6')
        p('s_lshl_b32 s14, s14, 3')
        p('s_and_b32 s15, s2, 7')
        p('s_add_u32 s14, s14, s15')
        p(f's_cmp_ge_u32 s{sI}, 6')
        p('s_cselect_b32 s14, s14, 255')
        p('s_cmp_lt_u32 s14, 54')
        p('s_cselect_b32 s99, 1, 0')
        p('s_mul_i32 s14, s14, s99')
        p('v_lshrrev_b32 v14, 2, v0')
        p(f's_mul_i32 s15, s{sW}, 160')
        p('v_add_u32 v14, s15, v14')
        p('v_mul_u32_u24 v14, 3456, v14')
        p('v_and_b32 v15, 3, v0')
        p('v_lshl_add_u32 v14, v15, 4, v14')
        p('s_lshl_b32 s15, s14, 6')
        p('v_add_u32 v14, s15, v14')
        p('v_mul_lo_u32 v14, v14, s99')
        p(f's_mul_i32 s98, s99, {16*3456}')
        p('s_mul_i32 s14, s14, 40960')
        p(f's_mul_i32 s15, s{sW}, 10240')
        p('s_add_u32 s14, s14, s15')
        p(f'v_add_u32 v15, s14, v{vLane16}')
        p('v_mul_lo_u32 v15, v15, s99')
        p('s_lshl_b32 s99, s99, 12')
        p('s_waitcnt lgkmcnt(0)')
    else:
        touch_setup()
    publish(FK, 'k', 'st')
    for it in flag_load(FK, 'KFL'): put(it)
    p.stamp('pub done')
    p('s_nop 7')
    for c in range(4):
        for ks in range(4):
            a0 = O(c, 2*ks)
            for k in range(4): p(f'v_cvt_pk_bf16_f32 v{a0+k}, v{a0+2*k}, v{a0+2*k+1}')
            for k in range(4): p(f'v_accvgpr_write_b32 a{aQ + 16*c + 4*ks + k}, v{a0+k}')
    p(f'v_mov_b32 v{vT}, 0x3f803f80')
    for k in range(4): p(f'v_accvgpr_write_b32 a{128+k}, v{vT}')
    p(f'v_and_b32 v{vT}, 15, v0')
    p(f'v_lshrrev_b32 v{vT+1}, 4, v0')
    p(f'v_lshlrev_b32 v{vT+1}, 2, v{vT+1}')
    p(f'v_sub_u32 v{vT}, v{vT}, v{vT+1}')
    for r in range(4): p(f'v_cmp_le_i32 s[{sM+2*r}:{sM+2*r+1}], {r}, v{vT}')
    p(f'v_mov_b32 v{vNinf}, {hex(NEGBIG)}')
    for r in range(16): p(f'v_mov_b32 v{vNeg+r}, 0')
    for c in range(4): p(f'v_mov_b32 v{vL+c}, 0')
    for r in range(64): p(f'v_mov_b32 v{vO+r}, 0')
    p.stamp('pre check')
    check('k', 'KFL')
    emit(unitK(0, 'U-1') + unitK(1, 'U0') + unitV(1, 'U0'))
    p.stamp('kv ok')
    nerr = 0

    def rdK(b, f):  return ('r', f'ds_read_b128 a[{aK+4*f}:{aK+4*f+3}], v{vRd} offset:{b*8192 + f*1024}', f'K{f}')
    def rdV(b, f):  return ('r', f'ds_read_b128 a[{aV+4*f}:{aV+4*f+3}], v{vRd} offset:{16384 + b*8192 + f*1024}', f'V{f}')
    def qk_mfmas(cols, sbase, cin):
        L = []
        for i, c in enumerate(cols):
            for kb in range(2):
                S = Sr(sbase + i, kb)
                for ks in range(4):
                    cc = cin(c, kb) if ks == 0 else S
                    L.append(f'{MF} v[{S}:{S+3}], a[{aK+4*(kb*4+ks)}:{aK+4*(kb*4+ks)+3}], a[{aQ+16*c+4*ks}:{aQ+16*c+4*ks+3}], v[{cc}:{cc+3}]')
        return L
    def pv_mfmas(cols, par, first=False):
        L = []
        for c in cols:
            for db in range(8):
                o = O(c, db)
                cc = '0' if first else f'v[{o}:{o+3}]'
                L.append(f'{MF} v[{o}:{o+3}], a[{aV+4*db}:{aV+4*db+3}], v[{Pr(par, c)}:{Pr(par, c)+3}], {cc}')
        return L
    aOne = 128
    Lm = lambda c: vP + 8 + 4*c
    def sum_mfmas(cols, par):
        return [f'{MF} v[{Lm(c)}:{Lm(c)+3}], a[{aOne}:{aOne+3}], v[{Pr(par, c)}:{Pr(par, c)+3}], v[{Lm(c)}:{Lm(c)+3}]' for c in cols]
    def sm_window_ns(c, sslot, par):
        S = vS + 8*sslot; P = Pr(par, c); W = []
        for k in range(4):
            e0, e1 = vE + (2*k) % 4, vE + (2*k + 1) % 4
            W += [[f'v_exp_f32 v{e0}, v{S+2*k}'], [f'v_exp_f32 v{e1}, v{S+2*k+1}'],
                  [f'v_cvt_pk_bf16_f32 v{P+k}, v{e0}, v{e1}'], []]
        return W
    def sm_window(c, sslot, par):
        S = vS + 8*sslot; P = Pr(par, c); W = []
        for k in range(4):
            e0, e1 = vE + (2*k) % 4, vE + (2*k + 1) % 4
            W += [[f'v_exp_f32 v{e0}, v{S+2*k}'], [f'v_exp_f32 v{e1}, v{S+2*k+1}'],
                  [f'v_add_f32 v{vL+c}, v{vL+c}, v{e0}'],
                  [f'v_add_f32 v{vL+c}, v{vL+c}, v{e1}', f'v_cvt_pk_bf16_f32 v{P+k}, v{e0}, v{e1}']]
        return W
    cin_neg = lambda c, kb: vNeg + 4*c
    def cin_mask(tile_cols):
        def f(c, kb):
            if c in tile_cols: return vCi + 8*(c - tile_cols[0]) + 4*kb
            return vNeg + 4*c
        return f
    def mask_ops(tile_cols):
        c0 = tile_cols[0]
        L = [('s', f's_cmp_lt_i32 s{sDd}, 0\ns_cselect_b64 s[14:15], -1, 0'),
             ('s', f's_cmp_eq_u32 s{sDd}, 0\n' + '\n'.join(f's_cselect_b64 s[{4+2*r}:{5+2*r}], s[{sM+2*r}:{sM+2*r+1}], s[14:15]' for r in range(4))),
             ('s', f's_cmp_le_i32 s{sDd}, 0\ns_cselect_b64 s[12:13], -1, 0')]
        for cb in range(2):
            for kb in range(2):
                for r in range(4):
                    m = 4 + 2*r if cb == kb else (12 if (cb == 1 and kb == 0) else 14)
                    L.append(('v', f'v_cndmask_b32 v{vCi + 8*cb + 4*kb + r}, v{vNinf}, v{vNeg + 4*(c0 + cb) + r}, s[{m}:{m+1}]'))
        return L
    LC, SC = [0, 1], [2, 3]
    def build_group(mf, windows, reads, dmas=(), extra=(), pre_wait=None, mid_wait=None, nwin=None):
        R = Region(mf)
        n = len(mf)
        for (g0, W) in windows:
            for i, ops in enumerate(W):
                for o in ops: R.place(('v', o), g0 + i, force=True)
        slots = [g for g in range(n) if g % 4 == 2]
        if len(slots) < len(reads): slots = sorted(slots + [g for g in range(n) if g % 4 == 3])
        if n == 16 or nwin == 16: slots = [g for g in range(16) if g % 4 in (2, 3)]
        for it, g in zip(reads, slots): R.place(it, g, force=True)
        if dmas:
            free = [g for g in range(n) if not R.M[g]]
            pref = [g for g in free if g >= 16 and nwin == 16] + [g for g in free if g % 4 == 3 and not (g >= 16 and nwin == 16)] + [g for g in free if g % 4 == 1] + [g for g in free if g % 4 in (0, 2)]
            nm = sum(1 for x in dmas if x[0] in ('m', 'l'))
            use = sorted([g for g in pref if g >= 1][:nm])
            if nwin == 16 and nm == 4: use = [5, 9, 13, 16]
            if nwin == 16 and nm == 5: use = [1, 5, 9, 13, 16]
            k = 0; pend_s = []
            for it in dmas:
                if it[0] == 's': pend_s.append(it)
                else:
                    g = use[k]; k += 1
                    for j, sx in enumerate(pend_s):
                        gg = max(0, g - len(pend_s) + j)
                        if k > 1: gg = max(gg, use[k-2] + 1) if use[k-2] + 1 <= g - 1 or ' m0,' not in sx[1] else gg
                        if gg == g and ' m0,' in sx[1]: R.place(('s', 's_nop 0'), g, force=True) if False else None
                        R.place(sx, gg, force=True)
                    pend_s = []
                    R.place(it, g, force=True)
            for j, sx in enumerate(pend_s):
                gg = use[-1] + 1 + j
                if gg <= n - 1: R.place(sx, gg, force=True)
                else: R.T[n - 1].append(sx)
        if extra:
            g = 0
            for it in extra:
                best = None
                for gg in range(g, n - 1):
                    if R.fits(gg, it): best = gg; break
                if best is None:
                    best = g
                R.place(it, best, force=True); g = best
        if mid_wait: R.place(mid_wait[1], mid_wait[0], force=True)
        return R
    slot_adv = [('s', f's_add_u32 s{sSlotR}, s{sSlotR}, 32768'), ('s', f's_cmp_ge_u32 s{sSlotR}, {NSLOT*32768}\ns_cselect_b32 s{sSlotR}, 0, s{sSlotR}')]
    def start_items(R, vm=16):
        pre = []
        if vm is None: return
        if 'nodma' not in opt: pre.append(('w', f's_waitcnt vmcnt({vm})'))
        if 'nobar' not in opt: pre.append(('w', 's_barrier'))
        R.S[0] = pre + R.S[0]
    def end_items(R, loop=None):
        n = R.n
        for j, it in enumerate(slot_adv): R.S[4 + 4*j if n > 16 else 1 + 4*j].append(it) if False else None
        g0 = 8
        for j, it in enumerate(slot_adv): R.S[g0 + j].append(it)
        R.V[n - 1].append(('v', f'v_add_u32 v{vRd}, s{sSlotR}, v{vLane16}'))
        if loop:
            R.S[n - 3].append(('s', f's_sub_u32 s{sCnt}, s{sCnt}, 1'))
            R.T[n - 1].append(('s', f's_cmp_lg_u32 s{sCnt}, 0'))
    def emit_group(R, pre):
        if pre and 'nords' not in opt:
            put(('wlg', [f'{pre}{f}' for f in range(4)]))
            R.S[3].insert(0, ('wlg', [f'{pre}{f}' for f in range(4, 8)]))
        if 'nosm' in opt:
            for g in range(R.n): R.V[g] = []
        if 'noexp' in opt:
            for g in range(R.n): R.V[g] = [(x[0], x[1].replace('v_exp_f32', 'v_mov_b32')) for x in R.V[g]]
        if 'nodma' in opt:
            for g in range(R.n): R.M[g] = [x for x in R.M[g] if x[0] != 'm']
        if 'nords' in opt:
            for g in range(R.n):
                R.M[g] = [x for x in R.M[g] if x[0] != 'r']; R.S[g] = [x for x in R.S[g] if x[0] != 'wlg']
            pre = None; R.S[3] = [x for x in R.S[3] if x[0] != 'wlg']
        R.emit(p, put)
    stats = {'cyc': 0}
    def interval(kind, lbl, maskL=None, maskS=None, loop=False, vm=16):
        dual = kind in ('D', 'T')
        mA, mB, mN = (maskS if dual else maskL) or (False, False, False)
        tile = SC if dual else LC
        p.lgq = ['K%d' % f for f in range(8)]; p.lg_ret = -1
        tot = 0
        if dual:
            cols = [0, 1, 2, 3]
            R1 = build_group(qk_mfmas(cols, 0, cin_mask(SC) if mA else cin_neg),
                             [(0, sm_window(3, 3, 0)), (16, sm_window(0, 0, 1))], [rdV(0, f) for f in range(8)], dma_K('x'),
                             mid_wait=None)
            start_items(R1, vm)
            if lbl == 'db':
                g_ = 1
                sel = ([touch_items[0]] if TW else []) + (touch_items[1:] if TF else [])
                for it in sel:
                    while R1.M[g_]: g_ += 1
                    R1.M[g_].append(it); g_ += 3
            add_paced([R1], chunk4(fp_items.get(lbl, []), 0))
            emit_group(R1, 'K')
            ex = ([('s', f's_add_u32 s{sDd}, s{sDd}, 1')] + mask_ops(SC if kind == 'D' else LC)) if mB else []
            if kind == 'T': ex = mask_ops(LC)
            R2 = build_group(pv_mfmas(cols, 0), [(0, sm_window(1, 1, 1)), (16, sm_window(2, 2, 1))], [rdK(0, f) for f in range(8)], extra=ex)
            if kind == 'T':
                emit([('s', f's_sub_u32 s{sDd}, s{sTS}, s{sTL}'), ('s', f's_lshl_b32 s{sDd}, s{sDd}, 2'), ('s', f's_add_u32 s{sDd}, s{sDd}, 4'), ('s', f's_sub_u32 s{sDd}, s{sDd}, s{sW}')])
            add_paced([R2], chunk4(fp_items.get(lbl, []), 1))
            emit_group(R2, 'V')
            if kind == 'D':
                R3 = build_group(qk_mfmas(cols, 0, cin_mask(SC) if mB else cin_neg),
                                 [(0, sm_window(3, 3, 1)), (16, sm_window(0, 0, 0))], [rdV(1, f) for f in range(8)], dma_V('x') + adv_slot)
                add_paced([R3], chunk4(fp_items.get(lbl, []), 2))
                emit_group(R3, 'K')
                ex = ([('s', f's_add_u32 s{sDd}, s{sDd}, 1')] + mask_ops(SC)) if mN else []
                R4 = build_group(pv_mfmas(cols, 1), [(0, sm_window(1, 1, 0)), (16, sm_window(2, 2, 0))], [rdK(1, f) for f in range(8)], extra=ex)
                end_items(R4, loop)
                add_paced([R4], chunk4(fp_items.get(lbl, []), 3))
                emit_group(R4, 'V')
            else:
                R3 = build_group(qk_mfmas(LC, 0, cin_mask(LC)), [(0, sm_window(3, 3, 1))], [rdV(1, f) for f in range(8)], dma_V('x') + adv_slot)
                add_paced([R3], chunk4(fp_items.get(lbl, []), 2))
                emit_group(R3, 'K')
                ex = ([('s', f's_add_u32 s{sDd}, s{sDd}, 1')] + mask_ops(LC))
                ex = [('v', f'v_mov_b32 v{Lm(c)+r}, 0') for c in LC for r in range(4)] + ex
                R4 = build_group(pv_mfmas(cols, 1), [(0, sm_window_ns(0, 0, 0))], [rdK(1, f) for f in range(8)], extra=ex)
                end_items(R4)
                add_paced([R4], chunk4(fp_items.get(lbl, []), 3))
                emit_group(R4, 'V')
            tot = R1.total() + R2.total() + R3.total() + R4.total()
        else:
            dK = dma_K('x'); dv_ = dma_V('x'); dV = dv_[:1] + adv_slot + dv_[1:]
            if KTD and lbl == 'sn':
                dK = dK[:-1] + [('l', f'buffer_load_dword v13, v12, s[{S_KF}:{S_KF+3}], s{sKb} offen', 'T')] + dK[-1:]
                dV = dV[:-1] + [('l', f'buffer_load_dword v13, v12, s[{S_VF}:{S_VF+3}], s{sVb} offen', 'T')] + dV[-1:]
            R1 = build_group(qk_mfmas(LC, 2, cin_mask(LC) if mA else cin_neg), [(0, sm_window_ns(1, 1, 0))], [rdV(0, f) for f in range(8)])
            start_items(R1, vm)
            emit_group(R1, 'K')
            ex = ([('s', f's_add_u32 s{sDd}, s{sDd}, 1')] + mask_ops(LC)) if mB else []
            rk = [rdK(0, f) for f in range(8)] if kind != 'E' else []
            R2 = build_group(pv_mfmas(LC, 0) + sum_mfmas(LC, 0), [(0, sm_window_ns(0, 2, 1))], rk, dK, extra=ex, nwin=16)
            emit_group(R2, 'V')
            if kind != 'E':
                R3 = build_group(qk_mfmas(LC, 0, cin_mask(LC) if mB else cin_neg), [(0, sm_window_ns(1, 3, 1))], [rdV(1, f) for f in range(8)])
                emit_group(R3, 'K')
                ex = ([('s', f's_add_u32 s{sDd}, s{sDd}, 1')] + mask_ops(LC)) if mN else []
                R4 = build_group(pv_mfmas(LC, 1) + sum_mfmas(LC, 1), [(0, sm_window_ns(0, 0, 0))], [rdK(1, f) for f in range(8)], dV, extra=ex, nwin=16)
                end_items(R4, loop)
                emit_group(R4, 'V')
                tot = R1.total() + R2.total() + R3.total() + R4.total()
            else:
                for f in range(8): put(rdV(1, f))
                emit(dV)
                for ops in sm_window_ns(1, 3, 1):
                    for o in ops: p(o)
                    if len(ops) == 1 and ops[0].startswith('v_exp'): p('s_nop 0')
                p('s_waitcnt lgkmcnt(0)')
                p('s_nop 1')
                for m in pv_mfmas(LC, 1) + sum_mfmas(LC, 1): p(m)
        if tot: print(f'  interval {lbl}: est {tot} cycles for', 128 if kind == 'D' else (112 if kind == 'T' else 64), 'mfma')

    def emit_prefetch():
        p('s_lshr_b32 s14, s2, 3')
        p('s_and_b32 s15, s14, 7')
        p('s_cmp_lt_u32 s15, 4')
        p(f's_cbranch_scc1 {name}_npf')
        p(f's_load_dwordx2 s[92:93], s[0:1], {ARG["wo"]}')
        p('s_lshr_b32 s14, s14, 3')
        p('s_lshl_b32 s14, s14, 2')
        p('s_add_u32 s14, s14, s15')
        p('s_sub_u32 s14, s14, 4')
        p(f's_mul_i32 s14, s14, {640*128}')
        p('s_and_b32 s15, s2, 7')
        p('s_lshr_b32 s15, s15, 1')
        p('s_mul_i32 s15, s15, 1310720')
        p('s_add_u32 s14, s14, s15')
        p(f's_mul_i32 s15, s{sW}, {160*128}')
        p('s_add_u32 s14, s14, s15')
        p('s_waitcnt lgkmcnt(0)')
        for i in range(3):
            p(f'v_add_u32 v251, {64*i}, v0')
            p(f'v_min_u32 v251, 159, v251')
            p(f'v_lshlrev_b32 v251, 7, v251')
            p(f'v_add_u32 v251, s14, v251')
            p(f'global_load_dword v250, v251, s[92:93]')
        p.label(f'{name}_npf')
    FA, FB = (10, 11) if FP == 'db' else (252, 253)
    F2, F3, F4, F5 = (47, 48, 49, 51) if FP in ('db', 'S') else (92, 93, 94, 95)
    def ffn_loads():
        p(f's_mov_b32 s{F5}, 0')
        p('s_lshr_b32 s14, s2, 3')
        p(f's_and_b32 s{F2}, s14, 7')
        p(f's_cmp_lt_u32 s{F2}, 6')
        p(f's_cbranch_scc1 {name}_nffn')
        p('s_lshr_b32 s14, s2, 6')
        p('s_lshl_b32 s14, s14, 1')
        p(f's_add_u32 s14, s14, s{F2}')
        p('s_sub_u32 s14, s14, 6')
        p('s_lshl_b32 s14, s14, 3')
        p('s_and_b32 s15, s2, 7')
        p(f's_add_u32 s{F4}, s14, s15')
        p(f's_cmp_ge_u32 s{F4}, 54')
        p(f's_cbranch_scc1 {name}_nffn')
        p(f's_mov_b32 s{F5}, 1')
        p(f's_load_dwordx2 s[4:5], s[0:1], {ARG["wg"]}')
        p(f's_load_dwordx2 s[8:9], s[0:1], {ARG["wu"]}')
        p(f's_load_dwordx2 s[12:13], s[0:1], {ARG["wd"]}')
        p(f'v_lshrrev_b32 v{FA}, 2, v0')
        p(f'v_mul_u32_u24 v{FA}, 3456, v{FA}')
        p(f'v_and_b32 v{FB}, 3, v0')
        p(f'v_lshl_add_u32 v{FA}, v{FB}, 4, v{FA}')
        p('s_waitcnt lgkmcnt(0)')
        for sr, sz in ((4, 640*1728*2), (8, 640*1728*2), (12, 1728*640*2)):
            p(f's_mov_b32 s{sr+2}, {sz}'); p(f's_mov_b32 s{sr+3}, 0x00020000')
        p(f's_mul_i32 s{F2}, s{sW}, {160*3456}')
        p(f's_lshl_b32 s{F3}, s{F4}, 6')
        p(f's_add_u32 s{F2}, s{F2}, s{F3}')
        for i in range(10):
            for mat, sr in enumerate((4, 8)):
                r = 132 + (mat*10 + i)*4
                p(f'buffer_load_dwordx4 a[{r}:{r+3}], v{FA}, s[{sr}:{sr+3}], s{F2} offen')
            p(f's_add_u32 s{F2}, s{F2}, {16*3456}')
        p(f's_mul_i32 s{F2}, s{F4}, {32*1280}')
        p(f's_mul_i32 s{F3}, s{sW}, 10240')
        p(f's_add_u32 s{F2}, s{F2}, s{F3}')
        for i in range(10):
            r = 132 + (20 + i)*4
            p(f'buffer_load_dwordx4 a[{r}:{r+3}], v{vLane16}, s[12:15], s{F2} offen offset:{(i % 4)*1024}')
            if i % 4 == 3: p(f's_add_u32 s{F2}, s{F2}, 4096')
        p.label(f'{name}_nffn')
    def ffn_paced():
        L = []
        for i in range(10):
            for mat, sp in enumerate((92, 94)):
                r = 132 + (mat*10 + i)*4
                L.append(('l', f'global_load_dwordx4 a[{r}:{r+3}], v14, s[{sp}:{sp+1}]', 'F'))
            L.append(('v', 'v_add_u32 v14, s98, v14'))
        for i in range(10):
            r = 132 + (20 + i)*4
            L.append(('l', f'global_load_dwordx4 a[{r}:{r+3}], v15, s[96:97] offset:{(i % 4)*1024}', 'F'))
            if i % 4 == 3: L.append(('v', 'v_add_u32 v15, s99, v15'))
        return L
    fp_items = {'db': [], 'dc': []}
    if FP == 'pace':
        allf = ffn_paced(); nl = 0; cut = 0
        for k, it in enumerate(allf):
            if it[0] == 'l': nl += 1
            if nl == 16 and it[0] == 'v' and cut == 0: cut = k + 1
        fp_items = {'db': allf[:cut], 'dc': allf[cut:]}
    def chunk4(items, k):
        groups = []; cur = []
        for it in items:
            cur.append(it)
            if it[0] == 'v': groups.append(cur); cur = []
        if cur: groups.append(cur)
        out = [[], [], [], []]
        nl = sum(1 for x in items if x[0] == 'l'); acc = 0
        for g in groups:
            q = min(3, int(4*acc/max(nl, 1)))
            out[q] += g; acc += sum(1 for x in g if x[0] == 'l')
        return out[k]
    def add_paced(Rs, items):
        if not items: return
        slots = [(ri, g) for ri, R in enumerate(Rs) for g in range(1, R.n - 1) if not R.M[g]]
        nl = sum(1 for x in items if x[0] == 'l')
        step = len(slots) / (nl + 1.0); k = 0; pos = 0
        last = None
        for it in items:
            if it[0] == 'l':
                k += 1; ri, g = slots[int(k*step)]
                Rs[ri].M[g].append(it); last = (ri, g)
            else:
                ri, g = last
                Rs[ri].V[g].append(it)
    def row_reduce(reg, op, tmp):
        for sw in ('v_permlane16_swap_b32', 'v_permlane32_swap_b32'):
            p(f'v_mov_b32 v{tmp}, v{reg}')
            p('s_nop 1')
            p(f'{sw} v{reg}, v{tmp}')
            p('s_nop 1')
            p(f'{op} v{reg}, v{reg}, v{tmp}')
    def epilogue(cols, sTile, flagbit):
        p('s_nop 7')
        for c in cols: row_reduce(vL + c, 'v_add_f32', vU)
        if cols == LC:
            for c in cols: p(f'v_add_f32 v{vL+c}, v{vL+c}, v{Lm(c)}')
        p(f'v_max_f32 v{vU}, v{vL+cols[0]}, v{vL+cols[1]}')
        p(f'v_cmp_nle_f32 vcc, v{vU}, v{vU+1}'.replace(f'v{vU+1}', f'v{vU+1}') if False else f'v_cmp_nge_f32 vcc, s{sLim}, v{vU}')
        p('s_nop 1')
        p(f's_cmp_lg_u64 vcc, 0')
        p(f's_cselect_b32 s{sT0}, {flagbit}, 0')
        p(f's_or_b32 s{sFlag}, s{sFlag}, s{sT0}')
        for c in cols: p(f'v_rcp_f32 v{vL+c}, v{vL+c}')
        store_ctx(cols, sTile)
    def store_ctx(cols, sTile):
        p(f's_lshl_b32 s{sCtx}, s{sTile}, 3')
        p(f's_lshl_b32 s{sT0}, s{sW}, 1')
        p(f's_add_u32 s{sCtx}, s{sCtx}, s{sT0}')
        p(f's_lshl_b32 s{sCtx}, s{sCtx}, 5')
        p(f's_add_u32 s{sCtx}, s{sCtx}, s{sH}')
        p(f's_lshl_b32 s{sCtx}, s{sCtx}, 12')
        p(f's_add_u32 s{sT1}, s{sCtx}, {32*4096}')
        for i, c in enumerate(cols):
            for ks in range(4):
                o = O(c, 2*ks)
                for k in range(8): p(f'v_mul_f32 v{o+k}, v{o+k}, v{vL+c}')
                for k in range(4): p(f'v_cvt_pk_bf16_f32 v{o+k}, v{o+2*k}, v{o+2*k+1}')
                p(f'buffer_store_dwordx4 v[{o}:{o+3}], v{vLane16}, s[{S_CTX}:{S_CTX+3}], s{sCtx if i == 0 else sT1} offen offset:{ks*1024} {CTX_FLAGS}')

    p(f's_mov_b32 s{sSlotR}, 0')
    p(f'v_mov_b32 v{vRd}, v{vLane16}')
    for r in range(64, 128): p(f'v_mov_b32 v{vO+r}, 0')
    p(f's_lshl_b32 s{sDd}, s{sTS}, 2')
    p(f's_add_u32 s{sDd}, s{sDd}, s{sW}')
    p(f's_sub_u32 s{sDd}, 0, s{sDd}')
    emit(mask_ops(SC))
    p.wait_vm('U-1')
    p('s_barrier')
    p.stamp('U-1 ready')
    p.lgq = []; p.lg_ret = -1
    for f in range(8): put(rdK(0, f))
    p('s_waitcnt lgkmcnt(0)')
    q0 = qk_mfmas([0, 1, 2, 3], 0, cin_mask(SC))
    rest = unitK(2, 'U1') + unitV(2, 'U1')
    Rq = Region(q0)
    spread(Rq, rest, 0, 31)
    Rq.emit(p, put)
    p(f's_add_u32 s{sSlotP}, s{sLW}, {4*32768}')
    p.stamp('qk0 done')
    for f in range(8): put(rdK(1, f))
    for step in range(4):
        for c in range(4):
            S = vS + 8*c; t = vU + c
            if step == 0: p(f'v_max3_f32 v{t}, v{S}, v{S+1}, v{S+2}')
            elif step == 1: p(f'v_max3_f32 v{t}, v{t}, v{S+3}, v{S+4}')
            elif step == 2: p(f'v_max3_f32 v{t}, v{t}, v{S+5}, v{S+6}')
            else: p(f'v_max_f32 v{t}, v{t}, v{S+7}')
    for sw in ('v_permlane16_swap_b32', 'v_permlane32_swap_b32'):
        for c in range(4): p(f'v_mov_b32 v{vU+4+c}, v{vU+c}')
        for c in range(4): p(f'{sw} v{vU+c}, v{vU+4+c}')
        p('s_nop 0')
        for c in range(4): p(f'v_max_f32 v{vU+c}, v{vU+c}, v{vU+4+c}')
    for r in range(8):
        for c in range(4): p(f'v_sub_f32 v{vS+8*c+r}, v{vS+8*c+r}, v{vU+c}')
    for c in range(4):
        for r in range(4): p(f'v_sub_f32 v{vNeg+4*c+r}, 0, v{vU+c}')
    def run_window(W):
        for ops in W:
            for o in ops: p(o)
            if len(ops) == 1 and ops[0].startswith('v_exp'): p('s_nop 0')
    u2 = unitK(3, 'U2') + unitV(3, 'U2')
    for r in range(8):
        for c in range(3): p(f'v_exp_f32 v{vS+8*c+r}, v{vS+8*c+r}')
        while u2:
            it = u2.pop(0)
            put(it)
            if it[0] == 'm': break
            if ' m0,' in it[1]: p('s_nop 0')
    for it in u2: put(it)
    p('s_nop 0')
    for r in range(8):
        for c in range(3): p(f'v_add_f32 v{vL+c}, v{vL+c}, v{vS+8*c+r}')
    for k in range(4):
        for c in range(3): p(f'v_cvt_pk_bf16_f32 v{Pr(0, c)+k}, v{vS+8*c+2*k}, v{vS+8*c+2*k+1}')
    p(f's_mov_b32 s{sSlotR}, 32768')
    p(f'v_add_u32 v{vRd}, s{sSlotR}, v{vLane16}')
    if 'pp' not in opt: p.stamp('attn prologue done')
    p(f's_cmp_eq_u32 s{sTS}, 0')
    p(f's_cbranch_scc1 {name}_t0')
    p(f's_lshl_b32 s{sCnt}, s{sTS}, 1')
    p(f's_sub_u32 s{sCnt}, s{sCnt}, 1')
    p.label(f'{name}_dn')
    interval('D', f'dn', loop=True)
    p(f's_cbranch_scc1 {name}_dn')
    p(f's_sub_u32 s{sDd}, -1, s{sW}')
    interval('D', 'da', maskS=(False, True, True))
    p(f's_branch {name}_db')
    p.label(f'{name}_t0')
    p(f's_sub_u32 s{sDd}, 1, s{sW}')
    emit(mask_ops(SC))
    p('s_nop 1')
    p.label(f'{name}_db')
    if FP == 'db':
        p('s_waitcnt vmcnt(16)')
        p('s_barrier')
        ffn_loads()
        interval('D', 'db', maskS=(True, True, True), vm=None)
        p(f's_cmp_eq_u32 s{F5}, 0')
        p(f's_cbranch_scc1 {name}_dcw')
        p('s_waitcnt vmcnt(46)')
        p(f's_branch {name}_dcw2')
        p.label(f'{name}_dcw')
        p('s_waitcnt vmcnt(16)')
        p.label(f'{name}_dcw2')
        interval('T', 'dc', maskS=(True, False, False), vm=63)
    elif FP == 'pace':
        ndb = sum(1 for x in fp_items['db'] if x[0] == 'l')
        interval('D', 'db', maskS=(True, True, True))
        interval('T', 'dc', maskS=(True, False, False), vm=16 + ndb)
    else:
        interval('D', 'db', maskS=(True, True, True))
        interval('T', 'dc', maskS=(True, False, False))
    epilogue(SC, sTS, 2)
    if FP == 'S':
        ffn_loads()
        p.lgq = ['K%d' % f for f in range(8)]; p.lg_ret = 7
    if 'pp' not in opt: (p.stamp('S done') if 'pq' not in opt else None)
    if KTD:
        p('v_and_b32 v12, 31, v0')
        p('v_lshlrev_b32 v12, 7, v12')
        p(f'v_add_u32 v12, {KTD*16384}, v12')
    p(f's_sub_u32 s{sCnt}, s{sTL}, s{sTS}')
    p(f's_cmp_eq_u32 s{sCnt}, 1')
    p(f's_cbranch_scc1 {name}_sb')
    if DBL:
        p(f's_sub_u32 s{sCnt}, s{sCnt}, 2')
        interval('S', 'sn1')
        p.label(f'{name}_sn')
        interval('S', 'sn2a', vm=8)
        interval('S', 'sn2b', vm=None, loop=True)
    else:
        p(f's_lshl_b32 s{sCnt}, s{sCnt}, 1')
        p(f's_sub_u32 s{sCnt}, s{sCnt}, 3')
        p.label(f'{name}_sn')
        interval('S', 'sn', loop=True, vm=16 + (4 if KTD else 0))
    p(f's_cbranch_scc1 {name}_sn')
    p(f's_sub_u32 s{sDd}, -1, s{sW}')
    interval('S', 'sa', maskL=(False, True, True))
    p.label(f'{name}_sb')
    interval('S', 'sb', maskL=(True, True, True))
    interval('E', 'sc', maskL=(True, False, False))
    epilogue(LC, sTL, 1)
    p.stamp('L done')
    p(f's_cmp_eq_u32 s{sFlag}, 0')
    p(f's_cbranch_scc1 {name}_fin')
    fallback(p, name, locals())
    p.label(f'{name}_fin')
    def ctx_publish():
        p('s_waitcnt vmcnt(0) lgkmcnt(0)')
        p('s_barrier')
        p(f's_cmp_lg_u32 s{sW}, 0')
        p(f's_cbranch_scc1 {name}_cpub')
        p(f's_lshl_b32 s14, s2, 2')
        p(f's_add_u32 s14, s14, 6144')
        p(f'v_mov_b32 v20, s{sTag}')
        p('v_mov_b32 v21, 0')
        p(f'buffer_store_dword v20, v21, s[{S_FL}:{S_FL+3}], s14 offen sc1')
        p.label(f'{name}_cpub')
        p.stamp('ctx pub')
        if PE: emit_prefetch()
        if FP == 'end': ffn_loads()
    import kt
    nerr += kt.gen_kt(name + '_t', p, prof, opt, ctx_publish)
    p.label(f'{name}_done')
    p('s_endpgm')
    def mk_policy(t0, nd, skip_s, ns, fb, wave0):
        def pol(ins, n):
            t = ins.args[0]
            if t.endswith('_done'): return False
            if t.endswith('_stageA'): return n % 3 != 0
            if t in (name + '_noln0', name + '_noln1'): return False
            if t in (name + '_notag', name + '_kvpub'): return not wave0
            if t == name + '_notag2': return True
            if t == name + '_nffn': return not wave0
            if t == name + '_dcw': return not wave0
            if t == name + '_cpub': return not wave0
            if t.startswith(name + '_t'):
                if '_poll' in t and t.endswith('_ok'): return True
                if '_poll' in t and t.endswith('_top'): return False
                u = t[len(name) + 2:]
                if u in ('_w123', '_w1', '_nosig', '_w4', '_w5', '_cw'): return not wave0
                return False
            if t == name + '_nz': return True
            if t == name + '_nocode': return False
            if t == name + '_nopub': return True
            if t in (name + '_lnok', name + '_kok', name + '_vok', name + '_kpub', name + '_vpub'): return not wave0
            if t in (name + '_lnok2', name + '_kok2', name + '_vok2', name + '_krel', name + '_vrel'): return True
            if t.endswith('_t0'): return t0
            if t.endswith('_dn'): return (n % nd) != 0
            if t.endswith('_sb'): return skip_s
            if t.endswith('_sn'): return (n % ns) != 0
            if t.endswith('_fin'): return not fb
            if t.endswith('_fbloop'): return n % 3 != 0
            return False
        return pol
    for cfg in ([(False, 3, False, 3, False, True), (True, 2, False, 2, True, False), (False, 2, True, 2, False, True)] if (not opt or opt[0] in ('pp', 'pq', 'tl', 'tr', 'nocode', 'notlb', 'dbg') or opt[0].startswith('kv=')) and not any(o_.endswith('A') for o_ in opt) else []):
        seq = trace(p, mk_policy(*cfg))
        nerr += len(check_linear(seq, name + str(cfg)))
    return p, nerr

def fallback(p, name, L):
    g = L
    vS, vP, vE, vL, vU, vNeg, vCi, vO = g['vS'], g['vP'], g['vE'], g['vL'], g['vU'], g['vNeg'], g['vCi'], g['vO']
    aQ, aK, aV, vLane16, vNinf = g['aQ'], g['aK'], g['aV'], g['vLane16'], g['vNinf']
    S_KF, S_VF = g['S_KF'], g['S_VF']
    sFlag, sTL, sTS, sW, sH, sDd, sCnt, sT0, sT1, sT2 = (g[k] for k in ('sFlag', 'sTL', 'sTS', 'sW', 'sH', 'sDd', 'sCnt', 'sT0', 'sT1', 'sT2'))
    O = g['O']; mask_ops = g['mask_ops']; qk_mfmas = g['qk_mfmas']; pv_mfmas = g['pv_mfmas']; row_reduce = g['row_reduce']; store_ctx = g['store_ctx']
    put = g['put']
    p('s_waitcnt vmcnt(0) lgkmcnt(0)')
    for cols, sTile, bit, nm in (([2, 3], sTS, 2, 'S'), ([0, 1], sTL, 1, 'L')):
        p(f's_and_b32 s{sT0}, s{sFlag}, {bit}')
        p(f's_cmp_eq_u32 s{sT0}, 0')
        p(f's_cbranch_scc1 {name}_fbskip{nm}')
        for c in cols:
            p(f'v_mov_b32 v{vL+c}, 0')
            for r in range(32): p(f'v_mov_b32 v{vO+32*c+r}, 0')
            for r in range(4): p(f'v_mov_b32 v{vNeg+4*c+r}, 0')
        for i in range(2): p(f'v_mov_b32 v{vU+4+i}, v{vNinf}')
        p(f's_lshl_b32 s{sDd}, s{sTile}, 2')
        p(f's_add_u32 s{sDd}, s{sDd}, s{sW}')
        p(f's_add_u32 s{sCnt}, s{sDd}, 1')
        p(f's_sub_u32 s{sDd}, 0, s{sDd}')
        p(f's_lshl_b32 s{sT2}, s{sH}, 19')
        p.label(f'{name}_fb{nm}_fbloop')
        for f in range(8):
            p(f's_add_u32 s{sT1}, s{sT2}, {(f // 4)*4096}')
            p(f'buffer_load_dwordx4 a[{aK+4*f}:{aK+4*f+3}], v{vLane16}, s[{S_KF}:{S_KF+3}], s{sT1} offen offset:{(f % 4)*1024}')
            p(f'buffer_load_dwordx4 a[{aV+4*f}:{aV+4*f+3}], v{vLane16}, s[{S_VF}:{S_VF+3}], s{sT1} offen offset:{(f % 4)*1024}')
        for it in mask_ops(cols): put(it)
        p('s_waitcnt vmcnt(0)')
        p('s_nop 1')
        for m in qk_mfmas(cols, 0, lambda c, kb: vCi + 8*(c - cols[0]) + 4*kb): p(m)
        p('s_nop 7')
        for i, c in enumerate(cols):
            S = vS + 8*i; t = vU + i; m = vU + 4 + i
            p(f'v_max3_f32 v{t}, v{S}, v{S+1}, v{S+2}')
            p(f'v_max3_f32 v{t}, v{t}, v{S+3}, v{S+4}')
            p(f'v_max3_f32 v{t}, v{t}, v{S+5}, v{S+6}')
            p(f'v_max_f32 v{t}, v{t}, v{S+7}')
            row_reduce(t, 'v_max_f32', vU + 6)
            p(f'v_max_f32 v{t}, v{t}, v{m}')
            p(f'v_sub_f32 v{vU+6}, v{m}, v{t}')
            p(f'v_exp_f32 v{vU+6}, v{vU+6}')
            p(f'v_mov_b32 v{m}, v{t}')
            p(f'v_mul_f32 v{vL+c}, v{vL+c}, v{vU+6}')
            for r in range(32): p(f'v_mul_f32 v{vO+32*c+r}, v{vO+32*c+r}, v{vU+6}')
            for r in range(8): p(f'v_sub_f32 v{S+r}, v{S+r}, v{t}')
            for r in range(8): p(f'v_exp_f32 v{S+r}, v{S+r}')
            p('s_nop 0')
            for r in range(8): p(f'v_add_f32 v{vL+c}, v{vL+c}, v{S+r}')
            for k in range(4): p(f'v_cvt_pk_bf16_f32 v{vP+4*c+k}, v{S+2*k}, v{S+2*k+1}')
        p('s_nop 1')
        for m in pv_mfmas(cols, 0): p(m)
        p('s_nop 7')
        p(f's_add_u32 s{sT2}, s{sT2}, 8192')
        p(f's_add_u32 s{sDd}, s{sDd}, 1')
        p(f's_sub_u32 s{sCnt}, s{sCnt}, 1')
        p(f's_cmp_lg_u32 s{sCnt}, 0')
        p(f's_cbranch_scc1 {name}_fb{nm}_fbloop')
        for c in cols: row_reduce(vL + c, 'v_add_f32', vU)
        for c in cols: p(f'v_rcp_f32 v{vL+c}, v{vL+c}')
        store_ctx(cols, sTile)
        p.label(f'{name}_fbskip{nm}')

if __name__ == '__main__':
    p, ne = gen_kf()
    print('instrs', p.count(), 'errors', ne)
```

```python
import sys
import kf, os
from kf import gen_kf
for k_ in ('TW', 'TF', 'PE', 'TA', 'LATE1', 'CODE0', 'DBL', 'MSUM', 'LN3', 'WQL', 'TAIL2'):
    if k_ in os.environ: setattr(kf, k_, os.environ[k_] == '1')
from common import *
if 'KTD' in os.environ: kf.KTD = int(os.environ['KTD'])
for k_ in ('KVLD', 'KSTF', 'VSTF'):
    if k_ in os.environ: setattr(kf, k_, os.environ[k_])
if 'WARM' in os.environ: kf.WARM = int(os.environ['WARM'])
if 'FP' in os.environ: kf.FP = os.environ['FP']
prof = len(sys.argv) > 1 and sys.argv[1] == 'prof'
out = sys.argv[2] if len(sys.argv) > 2 else 'all.s'
NAME = 'sequential_preLN__compressed_kv_cla__moe_arch_mod__prompt_kernel'
dbg = 'dbg' in sys.argv[3:]
nm = NAME if (not prof or dbg) else 'front_kernel'
xo = tuple(os.environ.get('XOPT', '').split())
p, e = gen_kf(name=nm, prof=prof, opt=tuple(sys.argv[3:]) + xo)
print('total errors', e)
hdr = """; Kernarg layout (112 bytes, ptrs only): x, c_kv, w_q, w_uk, w_uv, w_o, B_x, w_r, w_gate, w_up, w_down, out, debug, ws
"""
hdr += (f'; @launch kernel={nm} grid=(256,1,1) block=(256,1,1) lds=163840\n' if (prof and not dbg) else '; @launch grid=(256,1,1) block=(256,1,1) lds=163840\n')
body = '.amdgcn_target "amdgcn-amd-amdhsa--gfx950"\n.text\n' + header(nm) + p.text() + 'code_end_all:\n    s_endpgm\n'
d = '.section .rodata,"a"\n' + desc(nm, 512, 102, 256)
open(out, 'w').write(hdr + body + d)
```

```python
from common import *
from gx2 import *
from sched import *
from k1b import w_tile_setup, MF
from lnops import *
WS_FLG = 82*MiB

CTX_FLAGS = 'sc1'
LIM = 0x5d800000
NEGBIG = 0xff800000
opt_idx = [0]
TW, TF, PE = False, False, True
FP = 'pace'
TA = False
LATE1 = True
CODE0 = False
DBL = True
WARM = 0
KTD = 0
KVLD = ''
KSTF = None
VSTF = 'sc1'
PREFETCH = True

def gen_kf(name='front_kernel', prof=False, opt=()):
    p = P2(); p.prof = prof
    p.lenient = 'nordsA' in opt
    p.dbgmode = 'dbg' in opt
    import os as _os
    p.dbgwg = int(_os.environ.get('DBGWG', '48'))
    p.stampset = set(['start', 'phase A done', 'q end', 'attn prologue done', 'L done', 'ctx ready', 'gemm end', 'key out', 'argmax ready', 'ffn atomics done'])
    if 'tr' in opt: p.stampset = set(['start', 'q end', 'pre check', 'kv ok', 'qk0 done', 'attn prologue done', 'L done', 'tail setup', 'ctx pub', 'ctx ready'])
    if 'tl' in opt: p.stampset = set(['start', 'L done', 'ctx ready', 'gemm end', 'signalled', 'partials ready', 'partials loaded', 'key out', 'argmax ready', 'ffn atomics done'])
    put = make_put(p)
    S_WQ, S_XNF, S_KF, S_VF, S_CTX = 16, 20, 24, 28, 32
    sM = 36
    sW, sH, sI = 44, 45, 46
    sT0, sT1, sT2 = 47, 48, 49
    sLW = 50
    sWoff = 51
    sXL, sXS = 52, 53
    sKb, sVb = 54, 55
    sHbase = 56
    sSlotP, sSlotR = 57, 58
    sTL, sTS = 59, 60
    sCnt = 61
    sDd = 62
    sFlag = 63
    sCtx = 64
    sLim = 65
    sScale = 61
    sSel = 4
    vLane16 = 1; vRd = 2; vNinf = 3
    vOffW = 4
    vLPW = 8; vT = 9
    vNeg = 16; vCi = 32; vS = 48; vP = 80; vE = 112; vL = 116; vU = 120
    vCW = 120
    vWF = 48
    vO = 128
    aQ = 0; aK = 64; aV = 96; aX = 128
    O = lambda c, db: vO + 32*c + 4*db
    Sr = lambda sc, kb: vS + 8*sc + 4*kb
    Pr = lambda par, c: vP + 16*par + 4*c
    NSLOT = 5

    S_CKV, S_X, S_DBG = 4, 8, 88
    S_WUK, S_WUV = 36, 40
    S_FL = 68
    sTag = 3
    sXcc = 67; sSame = 66
    sASum = sFlag
    sAoff = sDd; sWr = sCtx; sAr = sLim; sWp = sKb; sAp = sVb; sKst = sSlotP
    vOffA = 16
    vLPA = 20; vCA = 21
    vWK = 32; vWV = 64; vAct = 128
    SPIN = 1 << 16
    p(f's_cmp_ge_u32 s2, 256')
    p(f's_cbranch_scc1 {name}_done')
    p.stamp('start')
    if CODE0 and 'nocode' not in opt:
        p('s_lshr_b32 s14, s2, 3')
        p('s_cmp_ge_u32 s14, 12')
        p(f's_cbranch_scc1 {name}_nocode')
        p('s_getpc_b64 s[76:77]')
        p.label(f'{name}_pc')
        p('s_lshl_b32 s14, s14, 13')
        p('v_lshlrev_b32 v9, 5, v0')
        p('v_add_u32 v9, s14, v9')
        p(f'v_min_u32 v9, code_end_all-{name}_pc-4, v9')
        p('v_and_b32 v9, -4, v9')
        p('global_load_dword v23, v9, s[76:77]')
        p.label(f'{name}_nocode')
    p(f's_load_dwordx2 s[84:85], s[0:1], {ARG["x"]}')
    p(f's_load_dwordx2 s[86:87], s[0:1], {ARG["ckv"]}')
    p(f's_load_dwordx4 s[88:91], s[0:1], {ARG["wuk"]}')
    p(f's_load_dwordx2 s[92:93], s[0:1], {ARG["wq"]}')
    p(f's_load_dwordx4 s[96:99], s[0:1], {ARG["dbg"]}')
    p('s_and_b32 s14, s2, 7')
    p('s_lshr_b32 s15, s2, 3')
    p(f's_lshr_b32 s{sH}, s15, 3')
    p(f's_lshl_b32 s14, s14, 2')
    p(f's_add_u32 s{sH}, s{sH}, s14')
    p(f's_and_b32 s{sI}, s15, 7')
    p('v_lshrrev_b32 v2, 6, v0')
    p('v_and_b32 v0, 63, v0')
    p(f'v_readfirstlane_b32 s{sW}, v2')
    p(f'v_lshlrev_b32 v{vLane16}, 4, v0')
    p(f's_getreg_b32 s{sXcc}, hwreg(HW_REG_XCC_ID, 0, 4)')
    w_tile_setup(p, vOffW, vLPW, vT)
    p(f'v_lshrrev_b32 v{vT}, 3, v0')
    p(f'v_lshlrev_b32 v{vT}, 10, v{vT}')
    p(f'v_lshrrev_b32 v{vT+1}, 4, v0')
    p(f'v_and_b32 v{vT+2}, 7, v0')
    p(f'v_xor_b32 v{vT+2}, v{vT+2}, v{vT+1}')
    p(f'v_lshl_add_u32 v{vOffA}, v{vT+2}, 4, v{vT}')
    p(f'v_xor_b32 v{vT+3}, 4, v{vT+2}')
    p(f'v_lshl_add_u32 v{vOffA+1}, v{vT+3}, 4, v{vT}')
    p(f'v_add_u32 v{vOffA+2}, {2*7168}, v{vOffA}')
    p(f'v_add_u32 v{vOffA+3}, {3*7168}, v{vOffA+1}')
    p(f'v_add_u32 v{vOffA+1}, {1*7168}, v{vOffA+1}')
    p(f'v_and_b32 v{vT}, 15, v0')
    p(f'v_bfe_u32 v{vT+1}, v0, 1, 3')
    p(f'v_lshrrev_b32 v{vT+2}, 4, v0')
    p(f'v_xor_b32 v{vT+1}, v{vT+1}, v{vT+2}')
    p(f'v_lshlrev_b32 v{vT}, 7, v{vT}')
    p(f'v_lshl_add_u32 v{vLPA}, v{vT+1}, 4, v{vT}')
    p(f's_lshl_b32 s{sLW}, s{sW}, 12')
    p(f's_lshl_b32 s{sWoff}, s{sW}, 17')
    p(f's_lshl_b32 s{sT1}, s{sH}, 8')
    p(f's_add_u32 s{sWoff}, s{sWoff}, s{sT1}')
    p(f's_lshl_b32 s{sT0}, s{sI}, 8')
    p(f's_lshl_b32 s{sT1}, s{sW}, 6')
    p(f's_add_u32 s{sT0}, s{sT0}, s{sT1}')
    p(f's_lshl_b32 s{sAoff}, s{sT0}, 10')
    sK0 = sXL; sLA = sXS
    p(f's_lshl_b32 s{sHbase}, s{sH}, 6')
    p(f's_lshr_b32 s{sT1}, s{sT0}, 5')
    p(f's_add_u32 s{sHbase}, s{sHbase}, s{sT1}')
    p(f's_lshl_b32 s{sHbase}, s{sHbase}, 13')
    p(f's_lshl_b32 s{sLA}, s{sW}, 13')
    p('s_waitcnt lgkmcnt(0)')
    srd(p, S_CKV, 86, 2048*512*2)
    srd(p, S_WUK, 88, 512*4096*2)
    srd(p, S_WUV, 90, 512*4096*2)
    SL = 16384
    ACT0 = 98304
    def emit(L):
        prev = None
        for it in L:
            if it[0] == 'm' and prev is not None and prev[0] == 's' and ' m0,' in prev[1]: put(('s', 's_nop 0'))
            put(it); prev = it
    def dmaW_static(st):
        base = (st % 3)*32768; L = []
        for mi, sr in enumerate((S_WUK, S_WUV)):
            L += [('s', f's_add_u32 s{sT0}, s{sWoff}, {st*64*8192}'), ('s', f's_add_u32 m0, s{sLW}, {base + mi*SL}')]
            for i in range(4): L.append(('m', f'buffer_load_dwordx4 v{vOffW+i}, s[{sr}:{sr+3}], s{sT0} offen offset:{1024*i} lds', f'W{st}', ('W', base + mi*SL, base + (mi+1)*SL, True)))
        return L
    def dmaA_static(st, adj=0):
        base = ACT0 + (st % 2)*32768; L = []
        for half in range(2):
            L += [('s', f's_add_u32 s{sT1}, s{sAoff}, {(st*128 + 32768*half + adj) & 0xffffffff}'), ('s', f's_add_u32 m0, s{sLA}, {base + 4096*half}')]
            for i in range(4): L.append(('m', f'buffer_load_dwordx4 v{vOffA+i}, s[{S_CKV}:{S_CKV+3}], s{sT1} offen offset:{1024*i} lds', f'A{st}', ('W', base, base + 32768, False)))
        return L
    if 'pp' in opt: p.stamp('setup')
    emit(dmaA_static(0)); emit(dmaW_static(0))
    if 'pp' in opt: p.stamp('A0W0 issued')
    srd(p, S_X, 84, 2048*640*2)
    srd(p, S_WQ, 92, 640*4096*2)
    srd(p, S_XNF, 98, SZ_XNF, WS_XNF)
    srd(p, S_KF, 98, SZ_KF, WS_KF)
    srd(p, S_VF, 98, SZ_KF, WS_VF)
    srd(p, S_CTX, 98, SZ_CTX, WS_CTX)
    srd(p, S_FL, 98, 8192, WS_FLG)
    X = 160; RAW = 200; vXo = 220; vXn = 221; LT = 224
    p(f's_lshl_b32 s{sT1}, s2, 3')
    p(f's_and_b32 s14, s{sW}, 1')
    p(f's_lshl_b32 s14, s14, 2')
    p(f's_add_u32 s{sT1}, s{sT1}, s14')
    p(f'v_and_b32 v{vT}, 3, v0')
    p(f'v_add_u32 v{vT}, s{sT1}, v{vT}')
    p(f'v_lshrrev_b32 v{vT+1}, 2, v0')
    p(f'v_mul_u32_u24 v{vXo}, 1280, v{vT}')
    p(f'v_lshl_add_u32 v{vXo}, v{vT+1}, 4, v{vXo}')
    p(f'v_lshrrev_b32 v{vXn}, 4, v{vT}')
    p(f'v_mul_u32_u24 v{vXn}, 20, v{vXn}')
    p(f'v_lshrrev_b32 v{vT+2}, 2, v{vT+1}')
    p(f'v_add_u32 v{vXn}, v{vXn}, v{vT+2}')
    p(f'v_lshlrev_b32 v{vXn}, 10, v{vXn}')
    p(f'v_and_b32 v{vT+2}, 3, v{vT+1}')
    p(f'v_lshlrev_b32 v{vT+2}, 4, v{vT+2}')
    p(f'v_and_b32 v{vT+3}, 15, v{vT}')
    p(f'v_add_u32 v{vT+2}, v{vT+2}, v{vT+3}')
    p(f'v_lshl_add_u32 v{vXn}, v{vT+2}, 4, v{vXn}')
    for i in range(5):
        p(f'buffer_load_dwordx4 v[{RAW+4*i}:{RAW+4*i+3}], v{vXo}, s[{S_X}:{S_X+3}], 0 offen offset:{256*i}')
    S_LNS = 96
    if WARM:
        p('s_lshr_b32 s14, s2, 3')
        p('s_lshl_b32 s14, s14, 2')
        p(f's_add_u32 s14, s14, s{sW}')
        p('s_lshl_b32 s15, s14, 14')
        p(f'v_lshlrev_b32 v{vT}, 7, v0')
        p(f'buffer_load_dword v23, v{vT}, s[{S_CKV}:{S_CKV+3}], s15 offen')
        p('s_add_u32 s15, s15, 8192')
        p(f'buffer_load_dword v23, v{vT}, s[{S_CKV}:{S_CKV+3}], s15 offen')
        if WARM > 1:
            p(f's_lshl_b32 s14, s{sI}, 2')
            p(f's_add_u32 s14, s14, s{sW}')
            p('s_lshl_b32 s14, s14, 17')
            p(f's_lshl_b32 s15, s{sH}, 8')
            p('s_add_u32 s14, s14, s15')
            p(f'v_bfe_u32 v{vT}, v0, 1, 4')
            p(f'v_lshlrev_b32 v{vT}, 13, v{vT}')
            p(f'v_and_b32 v{vT+1}, 1, v0')
            p(f'v_lshl_add_u32 v{vT}, v{vT+1}, 7, v{vT}')
            p(f'buffer_load_dword v23, v{vT}, s[{S_WUK}:{S_WUK+3}], s14 offen')
            p(f'buffer_load_dword v23, v{vT}, s[{S_WUV}:{S_WUV+3}], s14 offen')
    if not CODE0:
        if 'nocode' not in opt:
            p(f's_lshr_b32 s14, s2, 3')
            p(f's_cmp_ge_u32 s14, 12')
            p(f's_cbranch_scc1 {name}_nocode')
            p(f's_cmp_lg_u32 s{sW}, 3')
            p(f's_cbranch_scc1 {name}_nocode')
            p('s_getpc_b64 s[76:77]')
            p.label(f'{name}_pc')
            p(f's_lshl_b32 s14, s14, 13')
            p(f'v_lshlrev_b32 v{vT}, 7, v0')
            p(f'v_add_u32 v{vT}, s14, v{vT}')
            p(f'v_min_u32 v{vT}, code_end_all-{name}_pc-4, v{vT}')
            p(f'v_and_b32 v{vT}, -4, v{vT}')
            p(f'global_load_dword v{vT+2}, v{vT}, s[76:77]')
            p.label(f'{name}_nocode')
    if 'tlb' in opt:
        p('s_mov_b32 s76, s98'); p('s_mov_b32 s77, s99'); p(f's_mov_b32 s78, {96*MiB}'); p('s_mov_b32 s79, 0x00020000')
        p(f'v_mov_b32 v{vT}, {WS_FLG}')
        p(f's_add_u32 s14, s{sHbase}, {WS_KF}'); p(f'v_writelane_b32 v{vT}, s14, 1')
        p(f's_add_u32 s14, s{sHbase}, {WS_VF}'); p(f'v_writelane_b32 v{vT}, s14, 2')
        p(f's_lshl_b32 s15, s{sH}, 19')
        for k in range(2):
            p(f's_add_u32 s14, s15, {WS_KF + k*524160}'); p(f'v_writelane_b32 v{vT}, s14, {3 + 2*k}')
            p(f's_add_u32 s14, s15, {WS_VF + k*524160}'); p(f'v_writelane_b32 v{vT}, s14, {4 + 2*k}')
        p(f's_mov_b32 s14, {WS_XNF}'); p(f'v_writelane_b32 v{vT}, s14, 7')
        p(f's_mov_b32 s14, {WS_XNF + 2*MiB}'); p(f'v_writelane_b32 v{vT}, s14, 8')
        p(f's_sub_u32 s14, 15, s{sI}'); p('s_lshl_b32 s14, s14, 20'); p(f's_add_u32 s14, s14, {WS_CTX}'); p(f'v_writelane_b32 v{vT}, s14, 9')
        p(f's_lshl_b32 s14, s{sI}, 20'); p(f's_add_u32 s14, s14, {WS_CTX}'); p(f'v_writelane_b32 v{vT}, s14, 10')
        p(f'buffer_load_dword v{vT+2}, v{vT}, s[76:79], 0 offen')
    if 'pp' in opt: p.stamp('x issued')
    srd(p, S_DBG, 96, 256)
    p('v_mov_b32 v26, 0')
    p('s_or_b32 s14, s2, 0')
    p(f's_add_u32 s14, s2, s{sW}')
    p('s_cmp_lg_u32 s14, 0')
    p(f's_cbranch_scc1 {name}_notag')
    p('s_memrealtime s[92:93]')
    p('s_waitcnt lgkmcnt(0)')
    p('s_or_b32 s92, s92, 1')
    p('v_mov_b32 v24, s92')
    p(f'buffer_store_dword v24, v26, s[{S_DBG}:{S_DBG+3}], 0 offen sc1')
    p.label(f'{name}_notag')
    if 'pp' in opt: p.stamp('tag issued')
    if not LATE1:
        emit(dmaA_static(1)); emit(dmaW_static(1))
    (p.stamp('dma issued') if 'pq' not in opt else None)
    p('s_cmp_lg_u32 s2, 0')
    p(f's_cbranch_scc1 {name}_nz')
    p(f's_add_u32 s76, s98, {WS_YACC}')
    p('s_addc_u32 s77, s99, 0')
    p(f's_mov_b32 s78, {SZ_ZERO}')
    p('s_mov_b32 s79, 0x00020000')
    for r in range(4): p(f'v_mov_b32 v{28+r}, 0')
    p(f's_mul_i32 s14, s{sW}, 7168')
    for i in range(7):
        p(f'buffer_store_dwordx4 v[28:31], v{vLane16}, s[76:79], s14 offen sc1')
        p(f's_add_u32 s14, s14, 1024')
    p.label(f'{name}_nz')
    p(f's_add_u32 s96, s98, {WS_XNF}')
    p('s_addc_u32 s97, s99, 0')
    p(f's_mov_b32 s98, {SZ_XNF}')
    p('s_mov_b32 s99, 0x00020000')
    p(f's_cmp_lt_u32 s{sW}, 2')
    p('s_cselect_b32 s98, s98, 0')
    p('s_waitcnt vmcnt(0)' if LATE1 else 's_waitcnt vmcnt(16)')
    p('s_barrier')
    (p.stamp('B0') if 'pq' not in opt else None)
    def rd_act(buf, kin, tb, lab):
        r = vAct + 16*buf + 4*tb
        return ('r', f'ds_read_b128 v[{r}:{r+3}], v{vCA+kin} offset:{2048*tb}', lab)
    def rd_wA(mi, db, kin, lab):
        r = (vWK if mi == 0 else vWV) + 4*db
        return [('r', f'ds_read_b64_tr_b16 v[{r+2*h}:{r+2*h+1}], v{vCW+db} offset:{mi*SL + 8192*kin + 1024*h}', lab) for h in range(2)]
    updA = [('v', f'v_add_u32 v{vCA}, s{sAr}, v{vLPA}'), ('v', f'v_xor_b32 v{vCA+1}, 64, v{vCA}')]
    updWd = [('v', f'v_add_u32 v{vCW}, s{sWr}, v{vLPW}')] + [('v', f'v_xor_b32 v{vCW+db}, {db*32}, v{vCW}') for db in range(1, 8)]
    KA = lambda tb, db: (tb*8 + db)*4
    VA = lambda tb, db: 128 + ((tb >> 1)*16 + db*2 + (tb & 1))*4
    def stageA_mfmas(first):
        L = []
        for kin in range(2):
            for db in range(8):
                for tb in range(4):
                    a = KA(tb, db); f = vAct + 16*kin + 4*tb
                    c = '0' if (first and kin == 0) else f'a[{a}:{a+3}]'
                    L.append(f'{MF} a[{a}:{a+3}], v[{vWK+4*db}:{vWK+4*db+3}], v[{f}:{f+3}], {c}')
                for tb in range(4):
                    a = VA(tb, db); f = vAct + 16*kin + 4*tb
                    c = '0' if (first and kin == 0) else f'a[{a}:{a+3}]'
                    L.append(f'{MF} a[{a}:{a+3}], v[{f}:{f+3}], v[{vWV+4*db}:{vWV+4*db+3}], {c}')
        return L
    GA = lambda kin, db, m: kin*64 + db*8 + m
    def spread(R, L, g0, g1):
        nm = sum(1 for x in L if x[0] in ('m', 'l', 'st'))
        step = max(1, (g1 - g0) // max(nm, 1))
        g = g0; cnt = 0; prev = None
        for it in L:
            e = max(g, g0 + cnt*step - (2 if it[0] == 's' else 0))
            if it[0] == 'm' and prev is not None and prev[0] == 's' and ' m0,' in prev[1]: e = max(e, gprev + 1)
            g = R.place(it, e, g1); gprev = g; prev = it
            if it[0] in ('m', 'l', 'st'): cnt += 1; g += 1
    def stageA(kind, dmaA_items, dmaB_items, barlabs, next_reads=None, mid=None, first=False, bend=None):
        R = Region(stageA_mfmas(first))
        BG = GA(1, 0, 7)
        R.S[BG].append(('bar', barlabs))
        if mid: R.S[BG].extend(mid)
        if next_reads is None:
            R.S[GA(1, 0, 1)].append(('s', f's_add_u32 s{sWr}, s{sWr}, 32768'))
            R.S[GA(1, 0, 2)].append(('s', f's_cmp_ge_u32 s{sWr}, 98304\ns_cselect_b32 s{sWr}, 0, s{sWr}'))
            R.S[GA(1, 0, 3)].append(('s', f's_sub_u32 s{sAr}, s{sASum}, s{sAr}'))
            R.stream(updA + updWd, GA(1, 0, 4), GA(1, 2, 0))
        else:
            R.stream(next_reads[0], GA(1, 0, 4), GA(1, 2, 0))
        for kin in range(2):
            for db in range(8):
                for mi in range(2):
                    if kin == 0 and db == 0 and mi == 0: continue
                    labs = [f'w{kin}_{mi}_{db}'] + ([f'act{kin}'] if (db == 0 and mi == 0) else [])
                    R.place(('wlg', labs), GA(kin, db, 4*mi) - 1, force=True)
        for db in range(8):
            for mi in range(2):
                rr = rd_wA(mi, db, 1, f'w1_{mi}_{db}')
                e = GA(0, db, 4*mi + 3)
                g = R.place(rr[0], e, GA(1, 0, 0)); R.place(rr[1], min(g + 1, GA(1, 0, 0)), GA(1, 0, 0))
        for tb in range(4): R.place(rd_act(1, 1, tb, 'act1'), GA(0, 1, 1) + 5*tb)
        if next_reads is None:
            for db in range(8):
                for mi in range(2):
                    rr = rd_wA(mi, db, 0, f'n0_{mi}_{db}')
                    e = max(GA(1, db, 4*mi + 3), GA(1, 2, 1))
                    g = R.place(rr[0], e); R.place(rr[1], g + 1)
            for tb in range(4): R.place(rd_act(0, 0, tb, 'nact0'), GA(1, 2, 2) + 5*tb)
        else:
            for (it, e) in next_reads[1]: R.place(it, max(e, GA(1, 2, 1)))
        if 'nodmaA' in opt and kind in ('s0', 's1', 'loop'): dmaA_items = [x for x in dmaA_items if x[0] != 'm']; dmaB_items = [x for x in dmaB_items if x[0] != 'm']
        if 'nowA' in opt and kind in ('s0', 's1', 'loop'):
            for g in range(R.n): R.S[g] = [x for x in R.S[g] if x[0] != 'wlg']
        if 'nordsA' in opt and kind in ('s0', 's1', 'loop'):
            for g in range(R.n): R.M[g] = []; R.S[g] = [x for x in R.S[g] if x[0] != 'wlg']
        spread(R, dmaA_items, 1, BG - 2)
        spread(R, dmaB_items, BG + 1, bend if bend else R.n - 2)
        return R
    def dyn_dmaW():
        L = []
        for mi, sr in enumerate((S_WUK, S_WUV)):
            L += [('s', f's_add_u32 m0, s{sWp}, {mi*SL}')]
            for i in range(4): L.append(('m', f'buffer_load_dwordx4 v{vOffW+i}, s[{sr}:{sr+3}], s{sKst} offen offset:{1024*i} lds', 'Wn', None))
        L += [('s', f's_add_u32 s{sKst}, s{sKst}, {64*8192}'), ('s', f's_add_u32 s{sWp}, s{sWp}, 32768'),
              ('s', f's_cmp_ge_u32 s{sWp}, 98304\ns_cselect_b32 s{sWp}, s{sLW}, s{sWp}')]
        return L
    def dyn_dmaA():
        L = []
        for half in range(2):
            L += [('s', f's_add_u32 s{sT1}, s{sAoff}, {32768*half}'), ('s', f's_add_u32 m0, s{sAp}, {4096*half}')]
            for i in range(4): L.append(('m', f'buffer_load_dwordx4 v{vOffA+i}, s[{S_CKV}:{S_CKV+3}], s{sT1} offen offset:{1024*i} lds', 'An', None))
        L += [('s', f's_add_u32 s{sAoff}, s{sAoff}, 128'), ('s', f's_sub_u32 s{sAp}, s{sASum}, s{sAp}')]
        if TA: L.append(('l', f'buffer_load_dword v31, v30, s[{S_CKV}:{S_CKV+3}], s{sAoff} offen', 'TCH'))
        return L
    p('v_lshlrev_b32 v30, 10, v0')
    p(f's_mov_b32 s{sWr}, 0')
    p(f's_add_u32 s{sAr}, s{sLA}, {ACT0}')
    p(f's_add_u32 s{sWp}, s{sLW}, 65536')
    p(f's_add_u32 s{sAp}, s{sLA}, {ACT0}')
    p(f's_lshl_b32 s{sASum}, s{sAp}, 1')
    p(f's_add_u32 s{sASum}, s{sASum}, 32768')
    p(f's_add_u32 s{sKst}, s{sWoff}, {2*64*8192}')
    p(f's_add_u32 s{sAoff}, s{sAoff}, 256')
    emit(updA + updWd)
    p.lgq = []; p.lg_ret = -1
    for tb in range(4): put(rd_act(0, 0, tb, 'act0'))
    for db in range(8):
        for mi in range(2): emit(rd_wA(mi, db, 0, f'w0_{mi}_{db}'))
    def next_order(R):
        L = []
        for g in range(R.n):
            for it in R.M[g]:
                if it[0] == 'r' and (it[2].startswith('n0_') or it[2] == 'nact0'):
                    L.append('act0' if it[2] == 'nact0' else 'w0_' + it[2][3:])
        return L
    order = [None]
    def relabel():
        p.lgq = list(order[0]); p.lg_ret = -1
    def bar_raw(n):
        if 'nobarA' in opt: return ('w', f's_waitcnt vmcnt({n}) lgkmcnt(0)')
        return ('w', f's_waitcnt vmcnt({n}) lgkmcnt(0)\ns_barrier')
    BG = GA(1, 0, 7)
    def fix_bar(R, n, extra=()):
        R.S[BG] = [bar_raw(n), ('call', lambda: p.lg_all())] + list(extra) + [x for x in R.S[BG] if x[0] != 'bar']
    def red64x4(r):
        L = []
        for sh in (8, 4): L += ['s_nop 1', f'v_add_f32_dpp v{r}, v{r}, v{r} row_ror:{sh} row_mask:0xf bank_mask:0xf']
        for sw in ('v_permlane16_swap_b32', 'v_permlane32_swap_b32'):
            L += [f'v_mov_b32 v{LT+6}, v{r}', 's_nop 1', f'{sw} v{r}, v{LT+6}', 's_nop 1', f'v_add_f32 v{r}, v{r}, v{LT+6}']
        return L
    lnops = []
    for i in range(5): lnops += unpack8(RAW + 4*i, X + 8*i)
    lnops += ln_stream(X, 40, LT, red64x4, scale='0x3e0293ee')
    ln = [('v', x) for x in lnops]
    for i in range(5):
        ln.append(('s', f's_mov_b32 s14, {4096*i}'))
        ln.append(('st', f'buffer_store_dwordx4 v[{X+4*i}:{X+4*i+3}], v{vXn}, s[{S_LNS}:{S_LNS+3}], s14 offen sc1'))
    half = len(ln) // 2
    def tag_read():
        p('s_mov_b32 s14, 0')
        p.label(f'{name}_tagpoll')
        p(f'v_readfirstlane_b32 s{sTag}, v24')
        p('s_add_u32 s14, s14, 1')
        p('s_nop 2')
        p(f's_cmp_lg_u32 s{sTag}, 0')
        p(f's_cbranch_scc1 {name}_notag2')
        p(f's_cmp_ge_u32 s14, {SPIN}')
        p(f's_cbranch_scc1 {name}_notag2')
        p(f'buffer_load_dword v24, v26, s[{S_DBG}:{S_DBG+3}], 0 offen sc1')
        p('s_waitcnt vmcnt(0)')
        p(f's_branch {name}_tagpoll')
        p.label(f'{name}_notag2')
    def pub_ln():
        p(f's_cmp_lg_u32 s{sCnt}, {1 if TA else 0}')
        p(f's_cbranch_scc1 {name}_nopub')
        p(f's_cmp_lg_u32 s{sW}, 0')
        p(f's_cbranch_scc1 {name}_nopub')
        p(f's_lshl_b32 s14, s2, 3')
        p(f'v_mov_b32 v24, s{sTag}')
        p(f'v_mov_b32 v25, s{sXcc}')
        p('v_mov_b32 v26, 0')
        p(f'buffer_store_dwordx2 v[24:25], v26, s[{S_FL}:{S_FL+3}], s14 offen sc1')
        p.label(f'{name}_nopub')
    R0 = stageA('s0', (dmaA_static(1, -256) + dmaW_static(1) if LATE1 else []) + dyn_dmaW(), dyn_dmaA(), None, first=True, bend=BG + 34)
    fix_bar(R0, 8)
    R0.place(('l', f'buffer_load_dword v24, v26, s[{S_DBG}:{S_DBG+3}], 0 offen sc1', 'TAG'), BG + 1, force=True)
    R0.period = 20; R0.stream(ln[:half], 4, None, pace=lambda k: 4 + (k*120)//half); R0.period = 16
    p.lgq = ['act0']*4 + [f'w0_{mi}_{db}' for db in range(8) for mi in range(2) for _ in range(2)]; p.lg_ret = -1
    put(('wlg', ['w0_0_0', 'act0']))
    R0.emit(p, put); order[0] = next_order(R0)
    R1_ = stageA('s1', dyn_dmaW(), dyn_dmaA(), None, bend=BG + 34)
    fix_bar(R1_, 9 if TA else 8, [('call', tag_read)])
    nv = [x for x in ln[half:] if x[0] == 'v']; tail = ln[half + len(nv):]
    R1_.period = 20; g = R1_.stream(ln[half:], 0, None, pace=lambda k: min((k*118)//(len(ln) - half), 200) if ln[half + k][0] == 'v' else BG + 2); R1_.period = 16
    relabel(); put(('wlg', ['w0_0_0', 'act0']))
    R1_.emit(p, put); order[0] = next_order(R1_)
    print('stage0/1 est', R0.total(), R1_.total())
    if 'ps' in opt: p.stamp('stage1 done')
    p(f's_mov_b32 s{sCnt}, 0')
    LA = f'{name}_stageA'
    p.label(LA)
    Rl = stageA('loop', dyn_dmaW(), dyn_dmaA(), None, bend=BG + 34)
    fix_bar(Rl, 9 if TA else 8, [('call', pub_ln)])
    Rl.T[Rl.n - 1] += [('s', f's_add_u32 s{sCnt}, s{sCnt}, 1'), ('s', f's_cmp_lt_u32 s{sCnt}, 4')]
    assert 'nordsA' in opt or next_order(Rl) == order[0], 'stage read order must be periodic'
    relabel()
    put(('wlg', ['w0_0_0', 'act0']))
    Rl.emit(p, put)
    print('stageA loop est', Rl.total(), 'overflow', Rl.over)
    p(f's_cbranch_scc1 {LA}')
    if 'pp' not in opt: (p.stamp('A loop done') if 'pq' not in opt else None)
    def dma_wq(c):
        L = [('s', f's_add_u32 s{sT0}, s{sWoff}, {c*64*8192}'), ('s', f's_add_u32 m0, s{sLW}, {c*SL}')]
        for i in range(4):
            L.append(('m', f'buffer_load_dwordx4 v{vOffW+i}, s[{S_WQ}:{S_WQ+3}], s{sT0} offen offset:{1024*i} lds', f'WQ{c}', None))
        return L
    relabel()
    put(('wlg', ['w0_0_0', 'act0']))
    flagld = [('s', f's_sub_u32 s{sTL}, 15, s{sI}'), ('s', f's_mov_b32 s{sTS}, s{sI}'),
              ('v', f'v_and_b32 v24, 15, v0'), ('v', f'v_bfe_u32 v25, v0, 4, 1'),
              ('v', f'v_mov_b32 v26, s{sTL}'), ('v', f'v_mov_b32 v27, s{sTS}'),
              ('v', f'v_cmp_eq_u32 vcc, 0, v25'), ('v', 's_nop 1'), ('v', f'v_cndmask_b32 v26, v27, v26, vcc'),
              ('v', f'v_lshl_add_u32 v24, v26, 4, v24'),
              ('s', f's_and_b32 s14, s{sH}, 3'), ('s', f's_lshl_b32 s14, s14, 6'), ('s', f's_lshr_b32 s15, s{sH}, 2'), ('s', f's_add_u32 s14, s14, s15'),
              ('v', f'v_and_b32 v25, 7, v0'), ('v', f'v_lshlrev_b32 v25, 3, v25'), ('v', f'v_add_u32 v25, s14, v25'),
              ('v', f'v_cmp_gt_u32 vcc, 32, v0'), ('v', 's_nop 1'), ('v', f'v_cndmask_b32 v24, v25, v24, vcc'),
              ('v', f'v_lshlrev_b32 v24, 3, v24'),
              ('l', f'buffer_load_dwordx2 v[28:29], v24, s[{S_FL}:{S_FL+3}], 0 offen sc1', 'FL')]
    R6 = stageA('s6', dma_wq(4) + dma_wq(5), dma_wq(0) + dma_wq(1), None)
    fix_bar(R6, 9 if TA else 8)
    R6.stream(flagld, BG + 24)
    R6.emit(p, put)
    order[0] = next_order(R6)
    XR = [16, 96, 32, 80]
    XRING = [('v', 16), ('v', 96), ('v', 32), ('v', 80), ('a', 0), ('a', 16), ('a', 32), ('a', 48)]
    def xreg(ks, c):
        t, b = XRING[ks % 8]
        return f'{t}[{b+4*c}:{b+4*c+3}]'
    def xn_load(ks):
        L = []
        for c in range(4):
            off = ks*1024 + (c & 1)*20480
            sb = sXL if c < 2 else sXS
            L.append(('s', f's_add_u32 s{sT1}, s{sb}, {off & ~4095}'))
            L.append(('l', f'buffer_load_dwordx4 {xreg(ks, c)}, v{vLane16}, s[{S_XNF}:{S_XNF+3}], s{sT1} offen offset:{off & 4095} sc1', f'XN{ks}'))
        return L
    def rd_w(db, kin, base, lab):
        r = vWF + 4*db
        return [('r', f'ds_read_b64_tr_b16 v[{r+2*h}:{r+2*h+1}], v{vCW+db} offset:{8192*kin + 1024*h}', lab, None) for h in range(2)]
    def upd_w(base):
        return [('v', f'v_add_u32 v{vCW}, {base}, v{vLPW}')] + [('v', f'v_xor_b32 v{vCW+db}, {db*32}, v{vCW}') for db in range(1, 8)]
    def lncheck():
        p(f's_cmp_lg_u32 s{sW}, 0')
        p(f's_cbranch_scc1 {name}_lnok')
        p('s_mov_b32 s14, 0')
        p.label(f'{name}_lnpoll')
        p(f'v_cmp_ne_u32 vcc, s{sTag}, v28')
        p('s_add_u32 s14, s14, 1')
        p(f's_cbranch_vccz {name}_lnok2')
        p(f's_cmp_ge_u32 s14, {SPIN}')
        p(f's_cbranch_scc1 {name}_lnok2')
        p(f'buffer_load_dwordx2 v[28:29], v24, s[{S_FL}:{S_FL+3}], 0 offen sc1')
        p('s_waitcnt vmcnt(0)')
        p(f's_branch {name}_lnpoll')
        p.label(f'{name}_lnok2')
        p(f'v_cmp_ne_u32 vcc, s{sXcc}, v29')
        p('s_nop 1')
        p('s_lshr_b64 s[14:15], vcc, 32')
        p('s_cmp_eq_u64 s[14:15], 0')
        p(f's_cselect_b32 s{sSame}, 1, 0')
        p.label(f'{name}_lnok')
    relabel()
    put(('wlg', ['w0_0_0', 'act0']))
    xset = [('s', f's_lshl_b32 s{sT1}, s{sTL}, 3'), ('s', f's_lshl_b32 s{sT0}, s{sW}, 1'), ('s', f's_add_u32 s{sT1}, s{sT1}, s{sT0}'),
            ('s', f's_mul_i32 s{sXL}, s{sT1}, 20480'), ('s', f's_lshl_b32 s{sT1}, s{sTS}, 3'), ('s', f's_add_u32 s{sT1}, s{sT1}, s{sT0}'),
            ('s', f's_mul_i32 s{sXS}, s{sT1}, 20480')]
    def last_use(db):
        r = vWF + 4*db
        if r < 64: return GA(1, (r - vWK)//4, 3)
        return GA(1, (r - vWV)//4, 7)
    nr = []
    for db in range(8):
        for it in rd_w(db, 0, 0, f'w0_{db}'): nr.append((it, last_use(db) + 1))
    R7 = stageA('s7', xset + dma_wq(6) + dma_wq(7), dma_wq(2) + dma_wq(3) + dma_wq(8) + dma_wq(9), None, next_reads=(upd_w(0), nr))
    R7.S[BG] = [('call', lambda: (p('s_waitcnt vmcnt(8) lgkmcnt(0)'), p.lg_all(), lncheck(), p('s_barrier')))] + [x for x in R7.S[BG] if x[0] != 'bar']
    R7.stream(xn_load(0) + xn_load(1), BG + 2)
    R7.stream(xn_load(2), GA(1, 4, 0))
    R7.emit(p, put)
    if 'pp' not in opt: p.stamp('phase A done')
    NKS = 20
    mf = []
    for ks in range(NKS):
        for db in range(8):
            for c in range(4):
                acc = O(c, db)
                cc = '0' if ks == 0 else f'v[{acc}:{acc+3}]'
                mf.append(f'{MF} v[{acc}:{acc+3}], v[{vWF+4*db}:{vWF+4*db+3}], {xreg(ks, c)}, {cc}')
    R = Region(mf)
    G = lambda ks, db, c: ks*32 + db*4 + c
    p.wait_vm('XN0')
    put(('wlg', ['w0_0', 'w0_1']))
    R.S[G(3, 0, 3)].append(('bar', ['WQ2', 'WQ3', 'WQ8', 'WQ9', 'WQ4', 'WQ5', 'WQ6', 'WQ7']))
    for ch in range(9):
        R.stream(upd_w((ch + 1)*SL), G(2*ch + 1, 0, 1), G(2*ch + 1, 2, 0))
    for ks in range(NKS):
        for db in range(0, 8, 2):
            if ks == 0 and db == 0: continue
            R.place(('wlg', [f'w{ks}_{db}', f'w{ks}_{db+1}']), G(ks, db, 0) - 1, force=True)
        if ks: R.place(('wvm', f'XN{ks}'), G(ks, 0, 0) - 2, force=True)
    for ks in range(NKS - 1):
        ch, t = divmod(ks, 2); nxt = ks + 1; nch, nt = divmod(nxt, 2)
        for db in range(8):
            e = G(ks, db, 3)
            if t == 1: e = max(e, G(ks, 2, 1))
            rr = rd_w(db, nt, nch*SL, f'w{nxt}_{db}')
            lat = G(ks + 1, 0, 0) if t == 0 else None
            g = R.place(rr[0], e, lat); R.place(rr[1], g + 1 if t == 1 or db < 7 else g, lat)
    TE = 112
    STF = ''
    for o_ in opt:
        if o_.startswith('stf='): STF = o_[4:]
    sSt = sCtx
    epi = []
    sStB = sHbase
    for kind in range(2):
        for f in range(16):
            if kind == 0:
                tb, k4 = divmod(f, 4); a0 = KA(tb, 2*k4); off = tb*4096 + k4*1024; sr = S_KF
            else:
                b, db = divmod(f, 8); a0 = 128 + (b*16 + db*2)*4; off = b*8192 + db*1024; sr = S_VF
            for k in range(8): epi.append(('v', f'v_accvgpr_read_b32 v{TE+k}, a{a0+k}'))
            for k in range(4): epi.append(('v', f'v_cvt_pk_bf16_f32 v{TE+k}, v{TE+2*k}, v{TE+2*k+1}'))
            epi.append(('s', f's_add_u32 s{sSt}, s{sStB}, {off & ~4095}'))
            epi.append(('st', f'buffer_store_dwordx4 v[{TE}:{TE+3}], v{vLane16}, s[{sr}:{sr+3}], s{sSt} offen offset:{off & 4095} {(KSTF if (kind == 0 and KSTF is not None) else (VSTF if (kind == 1 and VSTF is not None) else STF))}'))
            if 'nost' in opt: epi.pop()
            epi.append(('s', 's_nop 0'))
    KS_V = int(next((o_[3:] for o_ in opt if o_.startswith('kv=')), '19'))
    g0 = 12; span = G(KS_V, 4, 0) - g0
    gl = R.stream(epi, g0, None, pace=lambda k: g0 + (k*span)//len(epi))
    freed = {}
    for g in range(R.n):
        for it in R.V[g]:
            if it[1].startswith('v_accvgpr_read'): freed[int(it[1].split(' a')[-1])] = g
    gprev = 0
    for ks in range(3, NKS):
        t, b = XRING[ks % 8]
        if t == 'a' and ks < 8: e = max(freed[r] for r in range(b, b + 16)) + 1
        elif ks >= 8: e = G(ks - 8, 7, 3) + 1
        else: e = 0
        e = max(e, gprev + 1, G(max(ks - 7, 0), 0, 0))
        lat = G(ks, 0, 0) - 40 if ks > 3 else G(1, 0, 0)
        gprev = R.stream(xn_load(ks), e, max(lat, e + 8))
    FK, FV = 4096, 5120
    def publish(off, lab, waitlabel):
        p.wait_vm(waitlabel)
        p('s_barrier')
        p(f's_cmp_lg_u32 s{sW}, 0')
        p(f's_cbranch_scc1 {name}_{lab}pub')
        p(f's_lshl_b32 s14, s{sH}, 3')
        p(f's_add_u32 s14, s14, s{sI}')
        p(f's_lshl_b32 s14, s14, 2')
        p(f's_add_u32 s14, s14, {off}')
        p(f'v_mov_b32 v12, s{sTag}')
        p('v_mov_b32 v13, 0')
        p(f's_cmp_eq_u32 s{sSame}, 1')
        p(f's_cbranch_scc1 {name}_{lab}rel')
        p('buffer_wbl2 sc1')
        p('s_waitcnt vmcnt(0)')
        p(f'buffer_store_dword v12, v13, s[{S_FL}:{S_FL+3}], s14 offen sc1')
        p(f's_branch {name}_{lab}pub')
        p.label(f'{name}_{lab}rel')
        p(f'buffer_store_dword v12, v13, s[{S_FL}:{S_FL+3}], s14 offen')
        p.label(f'{name}_{lab}pub')
    def flag_load(off, lab):
        return [('s', f's_lshl_b32 s15, s{sH}, 5'), ('s', f's_add_u32 s15, s15, {off}'),
                ('v', 'v_and_b32 v13, 7, v0'), ('v', 'v_lshlrev_b32 v13, 2, v13'),
                ('l', f'buffer_load_dword v12, v13, s[{S_FL}:{S_FL+3}], s15 offen sc1', lab)]
    def check(lab, waitlabel):
        p.wait_vm(waitlabel, 'lgkmcnt(0)'); p.lg_all()
        p(f's_cmp_lg_u32 s{sW}, 0')
        p(f's_cbranch_scc1 {name}_{lab}ok')
        p('s_mov_b32 s14, 0')
        p.label(f'{name}_{lab}poll')
        p(f'v_cmp_ne_u32 vcc, s{sTag}, v12')
        p('s_add_u32 s14, s14, 1')
        p(f's_cbranch_vccz {name}_{lab}ok2')
        p(f's_cmp_ge_u32 s14, {SPIN}')
        p(f's_cbranch_scc1 {name}_{lab}ok2')
        p(f'buffer_load_dword v12, v13, s[{S_FL}:{S_FL+3}], s15 offen sc1')
        p('s_waitcnt vmcnt(0)')
        p(f's_branch {name}_{lab}poll')
        p.label(f'{name}_{lab}ok2')
        p(f's_cmp_eq_u32 s{sSame}, 1')
        p(f's_cbranch_scc1 {name}_{lab}ok')
        p('buffer_inv sc1')
        p('s_waitcnt vmcnt(0)')
        p.label(f'{name}_{lab}ok')
        p('s_barrier')
    def att_state():
        p(f's_lshl_b32 s{sKb}, s{sH}, 19')
        p(f's_add_u32 s{sKb}, s{sKb}, s{sLW}')
        p(f's_mov_b32 s{sVb}, s{sKb}')
    def unitK(slot, label):
        L = [('s', f's_add_u32 m0, s{sLW}, {slot*32768}')]
        for i in range(4): L.append(('m', f'buffer_load_dwordx4 v{vLane16}, s[{S_KF}:{S_KF+3}], s{sKb} offen offset:{1024*i}{KVLD} lds', label, None))
        return L + [('s', f's_add_u32 s{sKb}, s{sKb}, 16384')]
    def unitV(slot, label):
        L = [('s', f's_add_u32 m0, s{sLW}, {slot*32768 + SL}')]
        for i in range(4): L.append(('m', f'buffer_load_dwordx4 v{vLane16}, s[{S_VF}:{S_VF+3}], s{sVb} offen offset:{1024*i}{KVLD} lds', label, None))
        return L + [('s', f's_add_u32 s{sVb}, s{sVb}, 16384')]
    def dma_K(label, tagbase=None):
        L = [('s', f's_mov_b32 m0, s{sSlotP}')]
        for i in range(4):
            L.append(('m', f'buffer_load_dwordx4 v{vLane16}, s[{S_KF}:{S_KF+3}], s{sKb} offen offset:{1024*i}{KVLD} lds', label, None))
        L += [('s', f's_add_u32 s{sKb}, s{sKb}, 16384')]
        return L
    def dma_V(label, tagbase=None):
        L = [('s', f's_add_u32 m0, s{sSlotP}, {SL}')]
        for i in range(4):
            L.append(('m', f'buffer_load_dwordx4 v{vLane16}, s[{S_VF}:{S_VF+3}], s{sVb} offen offset:{1024*i}{KVLD} lds', label, None))
        L += [('s', f's_add_u32 s{sVb}, s{sVb}, 16384')]
        return L
    adv_slot = [('s', f's_add_u32 s{sSlotP}, s{sSlotP}, 32768'), ('s', f's_cmp_ge_u32 s{sSlotP}, {NSLOT*32768}\ns_cselect_b32 s{sSlotP}, s{sLW}, s{sSlotP}')]
    R.emit(p, put)
    print('fused qproj overflow', R.over, 'est', R.total())
    if 'pp' not in opt: p.stamp('q end')
    p(f's_mov_b32 s{sFlag}, 0')
    p(f's_mov_b32 s{sLim}, {hex(LIM)}')
    def touch_setup():
        p(f's_load_dwordx2 s[92:93], s[0:1], {ARG["wo"]}')
        p(f's_load_dwordx2 s[94:95], s[0:1], {ARG["wg"]}')
        p(f's_load_dwordx2 s[96:97], s[0:1], {ARG["wu"]}')
        p(f's_load_dwordx2 s[98:99], s[0:1], {ARG["wd"]}')
        p('s_lshl_b32 s14, s2, 2')
        p(f's_add_u32 s14, s14, s{sW}')
        p('s_mul_i32 s14, s14, 40')
        p('v_min_u32 v14, 39, v0')
        p('v_add_u32 v14, s14, v14')
        p('v_lshlrev_b32 v14, 7, v14')
        p('s_lshr_b32 s14, s2, 6')
        p('s_lshl_b32 s14, s14, 2')
        p(f's_and_b32 s15, s{sI}, 3')
        p('s_add_u32 s14, s14, s15')
        p('s_lshl_b32 s14, s14, 3')
        p('s_and_b32 s15, s2, 7')
        p('s_add_u32 s14, s14, s15')
        p('s_lshl_b32 s14, s14, 2')
        p(f's_add_u32 s14, s14, s{sW}')
        p('s_mul_i32 s14, s14, 34')
        p('v_min_u32 v15, 33, v0')
        p('v_add_u32 v15, s14, v15')
        p('v_min_u32 v15, 17279, v15')
        p('v_lshlrev_b32 v15, 7, v15')
        p('s_waitcnt lgkmcnt(0)')
    touch_items = [('l', 'global_load_dword v13, v14, s[92:93]', 'T'), ('l', 'global_load_dword v13, v15, s[94:95]', 'T'),
                   ('l', 'global_load_dword v13, v15, s[96:97]', 'T'), ('l', 'global_load_dword v13, v15, s[98:99]', 'T')]
    att_state()
    if FP == 'pace':
        p(f's_load_dwordx2 s[92:93], s[0:1], {ARG["wg"]}')
        p(f's_load_dwordx2 s[94:95], s[0:1], {ARG["wu"]}')
        p(f's_load_dwordx2 s[96:97], s[0:1], {ARG["wd"]}')
        p('s_lshr_b32 s14, s2, 6')
        p('s_lshl_b32 s14, s14, 1')
        p(f's_add_u32 s14, s14, s{sI}')
        p('s_sub_u32 s14, s14, 6')
        p('s_lshl_b32 s14, s14, 3')
        p('s_and_b32 s15, s2, 7')
        p('s_add_u32 s14, s14, s15')
        p(f's_cmp_ge_u32 s{sI}, 6')
        p('s_cselect_b32 s14, s14, 255')
        p('s_cmp_lt_u32 s14, 54')
        p('s_cselect_b32 s99, 1, 0')
        p('s_mul_i32 s14, s14, s99')
        p('v_lshrrev_b32 v14, 2, v0')
        p(f's_mul_i32 s15, s{sW}, 160')
        p('v_add_u32 v14, s15, v14')
        p('v_mul_u32_u24 v14, 3456, v14')
        p('v_and_b32 v15, 3, v0')
        p('v_lshl_add_u32 v14, v15, 4, v14')
        p('s_lshl_b32 s15, s14, 6')
        p('v_add_u32 v14, s15, v14')
        p('v_mul_lo_u32 v14, v14, s99')
        p(f's_mul_i32 s98, s99, {16*3456}')
        p('s_mul_i32 s14, s14, 40960')
        p(f's_mul_i32 s15, s{sW}, 10240')
        p('s_add_u32 s14, s14, s15')
        p(f'v_add_u32 v15, s14, v{vLane16}')
        p('v_mul_lo_u32 v15, v15, s99')
        p('s_lshl_b32 s99, s99, 12')
        p('s_waitcnt lgkmcnt(0)')
    else:
        touch_setup()
    publish(FK, 'k', 'st')
    for it in flag_load(FK, 'KFL'): put(it)
    p.stamp('pub done')
    p('s_nop 7')
    for c in range(4):
        for ks in range(4):
            a0 = O(c, 2*ks)
            for k in range(4): p(f'v_cvt_pk_bf16_f32 v{a0+k}, v{a0+2*k}, v{a0+2*k+1}')
            for k in range(4): p(f'v_accvgpr_write_b32 a{aQ + 16*c + 4*ks + k}, v{a0+k}')
    p(f'v_mov_b32 v{vT}, 0x3f803f80')
    for k in range(4): p(f'v_accvgpr_write_b32 a{128+k}, v{vT}')
    p(f'v_and_b32 v{vT}, 15, v0')
    p(f'v_lshrrev_b32 v{vT+1}, 4, v0')
    p(f'v_lshlrev_b32 v{vT+1}, 2, v{vT+1}')
    p(f'v_sub_u32 v{vT}, v{vT}, v{vT+1}')
    for r in range(4): p(f'v_cmp_le_i32 s[{sM+2*r}:{sM+2*r+1}], {r}, v{vT}')
    p(f'v_mov_b32 v{vNinf}, {hex(NEGBIG)}')
    for r in range(16): p(f'v_mov_b32 v{vNeg+r}, 0')
    for c in range(4): p(f'v_mov_b32 v{vL+c}, 0')
    for r in range(64): p(f'v_mov_b32 v{vO+r}, 0')
    p.stamp('pre check')
    check('k', 'KFL')
    emit(unitK(0, 'U-1') + unitK(1, 'U0') + unitV(1, 'U0'))
    p.stamp('kv ok')
    nerr = 0

    def rdK(b, f):  return ('r', f'ds_read_b128 a[{aK+4*f}:{aK+4*f+3}], v{vRd} offset:{b*8192 + f*1024}', f'K{f}')
    def rdV(b, f):  return ('r', f'ds_read_b128 a[{aV+4*f}:{aV+4*f+3}], v{vRd} offset:{16384 + b*8192 + f*1024}', f'V{f}')
    def qk_mfmas(cols, sbase, cin):
        L = []
        for i, c in enumerate(cols):
            for kb in range(2):
                S = Sr(sbase + i, kb)
                for ks in range(4):
                    cc = cin(c, kb) if ks == 0 else S
                    L.append(f'{MF} v[{S}:{S+3}], a[{aK+4*(kb*4+ks)}:{aK+4*(kb*4+ks)+3}], a[{aQ+16*c+4*ks}:{aQ+16*c+4*ks+3}], v[{cc}:{cc+3}]')
        return L
    def pv_mfmas(cols, par, first=False):
        L = []
        for c in cols:
            for db in range(8):
                o = O(c, db)
                cc = '0' if first else f'v[{o}:{o+3}]'
                L.append(f'{MF} v[{o}:{o+3}], a[{aV+4*db}:{aV+4*db+3}], v[{Pr(par, c)}:{Pr(par, c)+3}], {cc}')
        return L
    aOne = 128
    Lm = lambda c: vP + 8 + 4*c
    def sum_mfmas(cols, par):
        return [f'{MF} v[{Lm(c)}:{Lm(c)+3}], a[{aOne}:{aOne+3}], v[{Pr(par, c)}:{Pr(par, c)+3}], v[{Lm(c)}:{Lm(c)+3}]' for c in cols]
    def sm_window_ns(c, sslot, par):
        S = vS + 8*sslot; P = Pr(par, c); W = []
        for k in range(4):
            e0, e1 = vE + (2*k) % 4, vE + (2*k + 1) % 4
            W += [[f'v_exp_f32 v{e0}, v{S+2*k}'], [f'v_exp_f32 v{e1}, v{S+2*k+1}'],
                  [f'v_cvt_pk_bf16_f32 v{P+k}, v{e0}, v{e1}'], []]
        return W
    def sm_window(c, sslot, par):
        S = vS + 8*sslot; P = Pr(par, c); W = []
        for k in range(4):
            e0, e1 = vE + (2*k) % 4, vE + (2*k + 1) % 4
            W += [[f'v_exp_f32 v{e0}, v{S+2*k}'], [f'v_exp_f32 v{e1}, v{S+2*k+1}'],
                  [f'v_add_f32 v{vL+c}, v{vL+c}, v{e0}'],
                  [f'v_add_f32 v{vL+c}, v{vL+c}, v{e1}', f'v_cvt_pk_bf16_f32 v{P+k}, v{e0}, v{e1}']]
        return W
    cin_neg = lambda c, kb: vNeg + 4*c
    def cin_mask(tile_cols):
        def f(c, kb):
            if c in tile_cols: return vCi + 8*(c - tile_cols[0]) + 4*kb
            return vNeg + 4*c
        return f
    def mask_ops(tile_cols):
        c0 = tile_cols[0]
        L = [('s', f's_cmp_lt_i32 s{sDd}, 0\ns_cselect_b64 s[14:15], -1, 0'),
             ('s', f's_cmp_eq_u32 s{sDd}, 0\n' + '\n'.join(f's_cselect_b64 s[{4+2*r}:{5+2*r}], s[{sM+2*r}:{sM+2*r+1}], s[14:15]' for r in range(4))),
             ('s', f's_cmp_le_i32 s{sDd}, 0\ns_cselect_b64 s[12:13], -1, 0')]
        for cb in range(2):
            for kb in range(2):
                for r in range(4):
                    m = 4 + 2*r if cb == kb else (12 if (cb == 1 and kb == 0) else 14)
                    L.append(('v', f'v_cndmask_b32 v{vCi + 8*cb + 4*kb + r}, v{vNinf}, v{vNeg + 4*(c0 + cb) + r}, s[{m}:{m+1}]'))
        return L
    LC, SC = [0, 1], [2, 3]
    def build_group(mf, windows, reads, dmas=(), extra=(), pre_wait=None, mid_wait=None, nwin=None):
        R = Region(mf)
        n = len(mf)
        for (g0, W) in windows:
            for i, ops in enumerate(W):
                for o in ops: R.place(('v', o), g0 + i, force=True)
        slots = [g for g in range(n) if g % 4 == 2]
        if len(slots) < len(reads): slots = sorted(slots + [g for g in range(n) if g % 4 == 3])
        if n == 16 or nwin == 16: slots = [g for g in range(16) if g % 4 in (2, 3)]
        for it, g in zip(reads, slots): R.place(it, g, force=True)
        if dmas:
            free = [g for g in range(n) if not R.M[g]]
            pref = [g for g in free if g >= 16 and nwin == 16] + [g for g in free if g % 4 == 3 and not (g >= 16 and nwin == 16)] + [g for g in free if g % 4 == 1] + [g for g in free if g % 4 in (0, 2)]
            nm = sum(1 for x in dmas if x[0] in ('m', 'l'))
            use = sorted([g for g in pref if g >= 1][:nm])
            if nwin == 16 and nm == 4: use = [5, 9, 13, 16]
            if nwin == 16 and nm == 5: use = [1, 5, 9, 13, 16]
            k = 0; pend_s = []
            for it in dmas:
                if it[0] == 's': pend_s.append(it)
                else:
                    g = use[k]; k += 1
                    for j, sx in enumerate(pend_s):
                        gg = max(0, g - len(pend_s) + j)
                        if k > 1: gg = max(gg, use[k-2] + 1) if use[k-2] + 1 <= g - 1 or ' m0,' not in sx[1] else gg
                        if gg == g and ' m0,' in sx[1]: R.place(('s', 's_nop 0'), g, force=True) if False else None
                        R.place(sx, gg, force=True)
                    pend_s = []
                    R.place(it, g, force=True)
            for j, sx in enumerate(pend_s):
                gg = use[-1] + 1 + j
                if gg <= n - 1: R.place(sx, gg, force=True)
                else: R.T[n - 1].append(sx)
        if extra:
            g = 0
            for it in extra:
                best = None
                for gg in range(g, n - 1):
                    if R.fits(gg, it): best = gg; break
                if best is None:
                    best = g
                R.place(it, best, force=True); g = best
        if mid_wait: R.place(mid_wait[1], mid_wait[0], force=True)
        return R
    slot_adv = [('s', f's_add_u32 s{sSlotR}, s{sSlotR}, 32768'), ('s', f's_cmp_ge_u32 s{sSlotR}, {NSLOT*32768}\ns_cselect_b32 s{sSlotR}, 0, s{sSlotR}')]
    def start_items(R, vm=16):
        pre = []
        if vm is None: return
        if 'nodma' not in opt: pre.append(('w', f's_waitcnt vmcnt({vm})'))
        if 'nobar' not in opt: pre.append(('w', 's_barrier'))
        R.S[0] = pre + R.S[0]
    def end_items(R, loop=None):
        n = R.n
        for j, it in enumerate(slot_adv): R.S[4 + 4*j if n > 16 else 1 + 4*j].append(it) if False else None
        g0 = 8
        for j, it in enumerate(slot_adv): R.S[g0 + j].append(it)
        R.V[n - 1].append(('v', f'v_add_u32 v{vRd}, s{sSlotR}, v{vLane16}'))
        if loop:
            R.S[n - 3].append(('s', f's_sub_u32 s{sCnt}, s{sCnt}, 1'))
            R.T[n - 1].append(('s', f's_cmp_lg_u32 s{sCnt}, 0'))
    def emit_group(R, pre):
        if pre and 'nords' not in opt:
            put(('wlg', [f'{pre}{f}' for f in range(4)]))
            R.S[3].insert(0, ('wlg', [f'{pre}{f}' for f in range(4, 8)]))
        if 'nosm' in opt:
            for g in range(R.n): R.V[g] = []
        if 'noexp' in opt:
            for g in range(R.n): R.V[g] = [(x[0], x[1].replace('v_exp_f32', 'v_mov_b32')) for x in R.V[g]]
        if 'nodma' in opt:
            for g in range(R.n): R.M[g] = [x for x in R.M[g] if x[0] != 'm']
        if 'nords' in opt:
            for g in range(R.n):
                R.M[g] = [x for x in R.M[g] if x[0] != 'r']; R.S[g] = [x for x in R.S[g] if x[0] != 'wlg']
            pre = None; R.S[3] = [x for x in R.S[3] if x[0] != 'wlg']
        R.emit(p, put)
    stats = {'cyc': 0}
    def interval(kind, lbl, maskL=None, maskS=None, loop=False, vm=16):
        dual = kind in ('D', 'T')
        mA, mB, mN = (maskS if dual else maskL) or (False, False, False)
        tile = SC if dual else LC
        p.lgq = ['K%d' % f for f in range(8)]; p.lg_ret = -1
        tot = 0
        if dual:
            cols = [0, 1, 2, 3]
            R1 = build_group(qk_mfmas(cols, 0, cin_mask(SC) if mA else cin_neg),
                             [(0, sm_window(3, 3, 0)), (16, sm_window(0, 0, 1))], [rdV(0, f) for f in range(8)], dma_K('x'),
                             mid_wait=None)
            start_items(R1, vm)
            if lbl == 'db':
                g_ = 1
                sel = ([touch_items[0]] if TW else []) + (touch_items[1:] if TF else [])
                for it in sel:
                    while R1.M[g_]: g_ += 1
                    R1.M[g_].append(it); g_ += 3
            add_paced([R1], chunk4(fp_items.get(lbl, []), 0))
            emit_group(R1, 'K')
            ex = ([('s', f's_add_u32 s{sDd}, s{sDd}, 1')] + mask_ops(SC if kind == 'D' else LC)) if mB else []
            if kind == 'T': ex = mask_ops(LC)
            R2 = build_group(pv_mfmas(cols, 0), [(0, sm_window(1, 1, 1)), (16, sm_window(2, 2, 1))], [rdK(0, f) for f in range(8)], extra=ex)
            if kind == 'T':
                emit([('s', f's_sub_u32 s{sDd}, s{sTS}, s{sTL}'), ('s', f's_lshl_b32 s{sDd}, s{sDd}, 2'), ('s', f's_add_u32 s{sDd}, s{sDd}, 4'), ('s', f's_sub_u32 s{sDd}, s{sDd}, s{sW}')])
            add_paced([R2], chunk4(fp_items.get(lbl, []), 1))
            emit_group(R2, 'V')
            if kind == 'D':
                R3 = build_group(qk_mfmas(cols, 0, cin_mask(SC) if mB else cin_neg),
                                 [(0, sm_window(3, 3, 1)), (16, sm_window(0, 0, 0))], [rdV(1, f) for f in range(8)], dma_V('x') + adv_slot)
                add_paced([R3], chunk4(fp_items.get(lbl, []), 2))
                emit_group(R3, 'K')
                ex = ([('s', f's_add_u32 s{sDd}, s{sDd}, 1')] + mask_ops(SC)) if mN else []
                R4 = build_group(pv_mfmas(cols, 1), [(0, sm_window(1, 1, 0)), (16, sm_window(2, 2, 0))], [rdK(1, f) for f in range(8)], extra=ex)
                end_items(R4, loop)
                add_paced([R4], chunk4(fp_items.get(lbl, []), 3))
                emit_group(R4, 'V')
            else:
                R3 = build_group(qk_mfmas(LC, 0, cin_mask(LC)), [(0, sm_window(3, 3, 1))], [rdV(1, f) for f in range(8)], dma_V('x') + adv_slot)
                add_paced([R3], chunk4(fp_items.get(lbl, []), 2))
                emit_group(R3, 'K')
                ex = ([('s', f's_add_u32 s{sDd}, s{sDd}, 1')] + mask_ops(LC))
                ex = [('v', f'v_mov_b32 v{Lm(c)+r}, 0') for c in LC for r in range(4)] + ex
                R4 = build_group(pv_mfmas(cols, 1), [(0, sm_window_ns(0, 0, 0))], [rdK(1, f) for f in range(8)], extra=ex)
                end_items(R4)
                add_paced([R4], chunk4(fp_items.get(lbl, []), 3))
                emit_group(R4, 'V')
            tot = R1.total() + R2.total() + R3.total() + R4.total()
        else:
            dK = dma_K('x'); dv_ = dma_V('x'); dV = dv_[:1] + adv_slot + dv_[1:]
            if KTD and lbl == 'sn':
                dK = dK[:-1] + [('l', f'buffer_load_dword v13, v12, s[{S_KF}:{S_KF+3}], s{sKb} offen', 'T')] + dK[-1:]
                dV = dV[:-1] + [('l', f'buffer_load_dword v13, v12, s[{S_VF}:{S_VF+3}], s{sVb} offen', 'T')] + dV[-1:]
            R1 = build_group(qk_mfmas(LC, 2, cin_mask(LC) if mA else cin_neg), [(0, sm_window_ns(1, 1, 0))], [rdV(0, f) for f in range(8)])
            start_items(R1, vm)
            emit_group(R1, 'K')
            ex = ([('s', f's_add_u32 s{sDd}, s{sDd}, 1')] + mask_ops(LC)) if mB else []
            rk = [rdK(0, f) for f in range(8)] if kind != 'E' else []
            R2 = build_group(pv_mfmas(LC, 0) + sum_mfmas(LC, 0), [(0, sm_window_ns(0, 2, 1))], rk, dK, extra=ex, nwin=16)
            emit_group(R2, 'V')
            if kind != 'E':
                R3 = build_group(qk_mfmas(LC, 0, cin_mask(LC) if mB else cin_neg), [(0, sm_window_ns(1, 3, 1))], [rdV(1, f) for f in range(8)])
                emit_group(R3, 'K')
                ex = ([('s', f's_add_u32 s{sDd}, s{sDd}, 1')] + mask_ops(LC)) if mN else []
                R4 = build_group(pv_mfmas(LC, 1) + sum_mfmas(LC, 1), [(0, sm_window_ns(0, 0, 0))], [rdK(1, f) for f in range(8)], dV, extra=ex, nwin=16)
                end_items(R4, loop)
                emit_group(R4, 'V')
                tot = R1.total() + R2.total() + R3.total() + R4.total()
            else:
                for f in range(8): put(rdV(1, f))
                emit(dV)
                for ops in sm_window_ns(1, 3, 1):
                    for o in ops: p(o)
                    if len(ops) == 1 and ops[0].startswith('v_exp'): p('s_nop 0')
                p('s_waitcnt lgkmcnt(0)')
                p('s_nop 1')
                for m in pv_mfmas(LC, 1) + sum_mfmas(LC, 1): p(m)
        if tot: print(f'  interval {lbl}: est {tot} cycles for', 128 if kind == 'D' else (112 if kind == 'T' else 64), 'mfma')

    def emit_prefetch():
        p('s_lshr_b32 s14, s2, 3')
        p('s_and_b32 s15, s14, 7')
        p('s_cmp_lt_u32 s15, 4')
        p(f's_cbranch_scc1 {name}_npf')
        p(f's_load_dwordx2 s[92:93], s[0:1], {ARG["wo"]}')
        p('s_lshr_b32 s14, s14, 3')
        p('s_lshl_b32 s14, s14, 2')
        p('s_add_u32 s14, s14, s15')
        p('s_sub_u32 s14, s14, 4')
        p(f's_mul_i32 s14, s14, {640*128}')
        p('s_and_b32 s15, s2, 7')
        p('s_lshr_b32 s15, s15, 1')
        p('s_mul_i32 s15, s15, 1310720')
        p('s_add_u32 s14, s14, s15')
        p(f's_mul_i32 s15, s{sW}, {160*128}')
        p('s_add_u32 s14, s14, s15')
        p('s_waitcnt lgkmcnt(0)')
        for i in range(3):
            p(f'v_add_u32 v251, {64*i}, v0')
            p(f'v_min_u32 v251, 159, v251')
            p(f'v_lshlrev_b32 v251, 7, v251')
            p(f'v_add_u32 v251, s14, v251')
            p(f'global_load_dword v250, v251, s[92:93]')
        p.label(f'{name}_npf')
    FA, FB = (10, 11) if FP == 'db' else (252, 253)
    F2, F3, F4, F5 = (47, 48, 49, 51) if FP in ('db', 'S') else (92, 93, 94, 95)
    def ffn_loads():
        p(f's_mov_b32 s{F5}, 0')
        p('s_lshr_b32 s14, s2, 3')
        p(f's_and_b32 s{F2}, s14, 7')
        p(f's_cmp_lt_u32 s{F2}, 6')
        p(f's_cbranch_scc1 {name}_nffn')
        p('s_lshr_b32 s14, s2, 6')
        p('s_lshl_b32 s14, s14, 1')
        p(f's_add_u32 s14, s14, s{F2}')
        p('s_sub_u32 s14, s14, 6')
        p('s_lshl_b32 s14, s14, 3')
        p('s_and_b32 s15, s2, 7')
        p(f's_add_u32 s{F4}, s14, s15')
        p(f's_cmp_ge_u32 s{F4}, 54')
        p(f's_cbranch_scc1 {name}_nffn')
        p(f's_mov_b32 s{F5}, 1')
        p(f's_load_dwordx2 s[4:5], s[0:1], {ARG["wg"]}')
        p(f's_load_dwordx2 s[8:9], s[0:1], {ARG["wu"]}')
        p(f's_load_dwordx2 s[12:13], s[0:1], {ARG["wd"]}')
        p(f'v_lshrrev_b32 v{FA}, 2, v0')
        p(f'v_mul_u32_u24 v{FA}, 3456, v{FA}')
        p(f'v_and_b32 v{FB}, 3, v0')
        p(f'v_lshl_add_u32 v{FA}, v{FB}, 4, v{FA}')
        p('s_waitcnt lgkmcnt(0)')
        for sr, sz in ((4, 640*1728*2), (8, 640*1728*2), (12, 1728*640*2)):
            p(f's_mov_b32 s{sr+2}, {sz}'); p(f's_mov_b32 s{sr+3}, 0x00020000')
        p(f's_mul_i32 s{F2}, s{sW}, {160*3456}')
        p(f's_lshl_b32 s{F3}, s{F4}, 6')
        p(f's_add_u32 s{F2}, s{F2}, s{F3}')
        for i in range(10):
            for mat, sr in enumerate((4, 8)):
                r = 132 + (mat*10 + i)*4
                p(f'buffer_load_dwordx4 a[{r}:{r+3}], v{FA}, s[{sr}:{sr+3}], s{F2} offen')
            p(f's_add_u32 s{F2}, s{F2}, {16*3456}')
        p(f's_mul_i32 s{F2}, s{F4}, {32*1280}')
        p(f's_mul_i32 s{F3}, s{sW}, 10240')
        p(f's_add_u32 s{F2}, s{F2}, s{F3}')
        for i in range(10):
            r = 132 + (20 + i)*4
            p(f'buffer_load_dwordx4 a[{r}:{r+3}], v{vLane16}, s[12:15], s{F2} offen offset:{(i % 4)*1024}')
            if i % 4 == 3: p(f's_add_u32 s{F2}, s{F2}, 4096')
        p.label(f'{name}_nffn')
    def ffn_paced():
        L = []
        for i in range(10):
            for mat, sp in enumerate((92, 94)):
                r = 132 + (mat*10 + i)*4
                L.append(('l', f'global_load_dwordx4 a[{r}:{r+3}], v14, s[{sp}:{sp+1}]', 'F'))
            L.append(('v', 'v_add_u32 v14, s98, v14'))
        for i in range(10):
            r = 132 + (20 + i)*4
            L.append(('l', f'global_load_dwordx4 a[{r}:{r+3}], v15, s[96:97] offset:{(i % 4)*1024}', 'F'))
            if i % 4 == 3: L.append(('v', 'v_add_u32 v15, s99, v15'))
        return L
    fp_items = {'db': [], 'dc': []}
    if FP == 'pace':
        allf = ffn_paced(); nl = 0; cut = 0
        for k, it in enumerate(allf):
            if it[0] == 'l': nl += 1
            if nl == 16 and it[0] == 'v' and cut == 0: cut = k + 1
        fp_items = {'db': allf[:cut], 'dc': allf[cut:]}
    def chunk4(items, k):
        groups = []; cur = []
        for it in items:
            cur.append(it)
            if it[0] == 'v': groups.append(cur); cur = []
        if cur: groups.append(cur)
        out = [[], [], [], []]
        nl = sum(1 for x in items if x[0] == 'l'); acc = 0
        for g in groups:
            q = min(3, int(4*acc/max(nl, 1)))
            out[q] += g; acc += sum(1 for x in g if x[0] == 'l')
        return out[k]
    def add_paced(Rs, items):
        if not items: return
        slots = [(ri, g) for ri, R in enumerate(Rs) for g in range(1, R.n - 1) if not R.M[g]]
        nl = sum(1 for x in items if x[0] == 'l')
        step = len(slots) / (nl + 1.0); k = 0; pos = 0
        last = None
        for it in items:
            if it[0] == 'l':
                k += 1; ri, g = slots[int(k*step)]
                Rs[ri].M[g].append(it); last = (ri, g)
            else:
                ri, g = last
                Rs[ri].V[g].append(it)
    def row_reduce(reg, op, tmp):
        for sw in ('v_permlane16_swap_b32', 'v_permlane32_swap_b32'):
            p(f'v_mov_b32 v{tmp}, v{reg}')
            p('s_nop 1')
            p(f'{sw} v{reg}, v{tmp}')
            p('s_nop 1')
            p(f'{op} v{reg}, v{reg}, v{tmp}')
    def epilogue(cols, sTile, flagbit):
        p('s_nop 7')
        for c in cols: row_reduce(vL + c, 'v_add_f32', vU)
        if cols == LC:
            for c in cols: p(f'v_add_f32 v{vL+c}, v{vL+c}, v{Lm(c)}')
        p(f'v_max_f32 v{vU}, v{vL+cols[0]}, v{vL+cols[1]}')
        p(f'v_cmp_nle_f32 vcc, v{vU}, v{vU+1}'.replace(f'v{vU+1}', f'v{vU+1}') if False else f'v_cmp_nge_f32 vcc, s{sLim}, v{vU}')
        p('s_nop 1')
        p(f's_cmp_lg_u64 vcc, 0')
        p(f's_cselect_b32 s{sT0}, {flagbit}, 0')
        p(f's_or_b32 s{sFlag}, s{sFlag}, s{sT0}')
        for c in cols: p(f'v_rcp_f32 v{vL+c}, v{vL+c}')
        store_ctx(cols, sTile)
    def store_ctx(cols, sTile):
        p(f's_lshl_b32 s{sCtx}, s{sTile}, 3')
        p(f's_lshl_b32 s{sT0}, s{sW}, 1')
        p(f's_add_u32 s{sCtx}, s{sCtx}, s{sT0}')
        p(f's_lshl_b32 s{sCtx}, s{sCtx}, 5')
        p(f's_add_u32 s{sCtx}, s{sCtx}, s{sH}')
        p(f's_lshl_b32 s{sCtx}, s{sCtx}, 12')
        p(f's_add_u32 s{sT1}, s{sCtx}, {32*4096}')
        for i, c in enumerate(cols):
            for ks in range(4):
                o = O(c, 2*ks)
                for k in range(8): p(f'v_mul_f32 v{o+k}, v{o+k}, v{vL+c}')
                for k in range(4): p(f'v_cvt_pk_bf16_f32 v{o+k}, v{o+2*k}, v{o+2*k+1}')
                p(f'buffer_store_dwordx4 v[{o}:{o+3}], v{vLane16}, s[{S_CTX}:{S_CTX+3}], s{sCtx if i == 0 else sT1} offen offset:{ks*1024} {CTX_FLAGS}')

    p(f's_mov_b32 s{sSlotR}, 0')
    p(f'v_mov_b32 v{vRd}, v{vLane16}')
    for r in range(64, 128): p(f'v_mov_b32 v{vO+r}, 0')
    p(f's_lshl_b32 s{sDd}, s{sTS}, 2')
    p(f's_add_u32 s{sDd}, s{sDd}, s{sW}')
    p(f's_sub_u32 s{sDd}, 0, s{sDd}')
    emit(mask_ops(SC))
    p.wait_vm('U-1')
    p('s_barrier')
    p.stamp('U-1 ready')
    p.lgq = []; p.lg_ret = -1
    for f in range(8): put(rdK(0, f))
    p('s_waitcnt lgkmcnt(0)')
    q0 = qk_mfmas([0, 1, 2, 3], 0, cin_mask(SC))
    rest = unitK(2, 'U1') + unitV(2, 'U1')
    Rq = Region(q0)
    spread(Rq, rest, 0, 31)
    Rq.emit(p, put)
    p(f's_add_u32 s{sSlotP}, s{sLW}, {4*32768}')
    p.stamp('qk0 done')
    for f in range(8): put(rdK(1, f))
    for step in range(4):
        for c in range(4):
            S = vS + 8*c; t = vU + c
            if step == 0: p(f'v_max3_f32 v{t}, v{S}, v{S+1}, v{S+2}')
            elif step == 1: p(f'v_max3_f32 v{t}, v{t}, v{S+3}, v{S+4}')
            elif step == 2: p(f'v_max3_f32 v{t}, v{t}, v{S+5}, v{S+6}')
            else: p(f'v_max_f32 v{t}, v{t}, v{S+7}')
    for sw in ('v_permlane16_swap_b32', 'v_permlane32_swap_b32'):
        for c in range(4): p(f'v_mov_b32 v{vU+4+c}, v{vU+c}')
        for c in range(4): p(f'{sw} v{vU+c}, v{vU+4+c}')
        p('s_nop 0')
        for c in range(4): p(f'v_max_f32 v{vU+c}, v{vU+c}, v{vU+4+c}')
    for r in range(8):
        for c in range(4): p(f'v_sub_f32 v{vS+8*c+r}, v{vS+8*c+r}, v{vU+c}')
    for c in range(4):
        for r in range(4): p(f'v_sub_f32 v{vNeg+4*c+r}, 0, v{vU+c}')
    def run_window(W):
        for ops in W:
            for o in ops: p(o)
            if len(ops) == 1 and ops[0].startswith('v_exp'): p('s_nop 0')
    u2 = unitK(3, 'U2') + unitV(3, 'U2')
    for r in range(8):
        for c in range(3): p(f'v_exp_f32 v{vS+8*c+r}, v{vS+8*c+r}')
        while u2:
            it = u2.pop(0)
            put(it)
            if it[0] == 'm': break
            if ' m0,' in it[1]: p('s_nop 0')
    for it in u2: put(it)
    p('s_nop 0')
    for r in range(8):
        for c in range(3): p(f'v_add_f32 v{vL+c}, v{vL+c}, v{vS+8*c+r}')
    for k in range(4):
        for c in range(3): p(f'v_cvt_pk_bf16_f32 v{Pr(0, c)+k}, v{vS+8*c+2*k}, v{vS+8*c+2*k+1}')
    p(f's_mov_b32 s{sSlotR}, 32768')
    p(f'v_add_u32 v{vRd}, s{sSlotR}, v{vLane16}')
    if 'pp' not in opt: p.stamp('attn prologue done')
    p(f's_cmp_eq_u32 s{sTS}, 0')
    p(f's_cbranch_scc1 {name}_t0')
    p(f's_lshl_b32 s{sCnt}, s{sTS}, 1')
    p(f's_sub_u32 s{sCnt}, s{sCnt}, 1')
    p.label(f'{name}_dn')
    interval('D', f'dn', loop=True)
    p(f's_cbranch_scc1 {name}_dn')
    p(f's_sub_u32 s{sDd}, -1, s{sW}')
    interval('D', 'da', maskS=(False, True, True))
    p(f's_branch {name}_db')
    p.label(f'{name}_t0')
    p(f's_sub_u32 s{sDd}, 1, s{sW}')
    emit(mask_ops(SC))
    p('s_nop 1')
    p.label(f'{name}_db')
    if FP == 'db':
        p('s_waitcnt vmcnt(16)')
        p('s_barrier')
        ffn_loads()
        interval('D', 'db', maskS=(True, True, True), vm=None)
        p(f's_cmp_eq_u32 s{F5}, 0')
        p(f's_cbranch_scc1 {name}_dcw')
        p('s_waitcnt vmcnt(46)')
        p(f's_branch {name}_dcw2')
        p.label(f'{name}_dcw')
        p('s_waitcnt vmcnt(16)')
        p.label(f'{name}_dcw2')
        interval('T', 'dc', maskS=(True, False, False), vm=63)
    elif FP == 'pace':
        ndb = sum(1 for x in fp_items['db'] if x[0] == 'l')
        interval('D', 'db', maskS=(True, True, True))
        interval('T', 'dc', maskS=(True, False, False), vm=16 + ndb)
    else:
        interval('D', 'db', maskS=(True, True, True))
        interval('T', 'dc', maskS=(True, False, False))
    epilogue(SC, sTS, 2)
    if FP == 'S':
        ffn_loads()
        p.lgq = ['K%d' % f for f in range(8)]; p.lg_ret = 7
    if 'pp' not in opt: (p.stamp('S done') if 'pq' not in opt else None)
    if KTD:
        p('v_and_b32 v12, 31, v0')
        p('v_lshlrev_b32 v12, 7, v12')
        p(f'v_add_u32 v12, {KTD*16384}, v12')
    p(f's_sub_u32 s{sCnt}, s{sTL}, s{sTS}')
    p(f's_cmp_eq_u32 s{sCnt}, 1')
    p(f's_cbranch_scc1 {name}_sb')
    if DBL:
        p(f's_sub_u32 s{sCnt}, s{sCnt}, 2')
        interval('S', 'sn1')
        p.label(f'{name}_sn')
        interval('S', 'sn2a', vm=8)
        interval('S', 'sn2b', vm=None, loop=True)
    else:
        p(f's_lshl_b32 s{sCnt}, s{sCnt}, 1')
        p(f's_sub_u32 s{sCnt}, s{sCnt}, 3')
        p.label(f'{name}_sn')
        interval('S', 'sn', loop=True, vm=16 + (4 if KTD else 0))
    p(f's_cbranch_scc1 {name}_sn')
    p(f's_sub_u32 s{sDd}, -1, s{sW}')
    interval('S', 'sa', maskL=(False, True, True))
    p.label(f'{name}_sb')
    interval('S', 'sb', maskL=(True, True, True))
    interval('E', 'sc', maskL=(True, False, False))
    epilogue(LC, sTL, 1)
    p.stamp('L done')
    p(f's_cmp_eq_u32 s{sFlag}, 0')
    p(f's_cbranch_scc1 {name}_fin')
    fallback(p, name, locals())
    p.label(f'{name}_fin')
    def ctx_publish():
        p('s_waitcnt vmcnt(0) lgkmcnt(0)')
        p('s_barrier')
        p(f's_cmp_lg_u32 s{sW}, 0')
        p(f's_cbranch_scc1 {name}_cpub')
        p(f's_lshl_b32 s14, s2, 2')
        p(f's_add_u32 s14, s14, 6144')
        p(f'v_mov_b32 v20, s{sTag}')
        p('v_mov_b32 v21, 0')
        p(f'buffer_store_dword v20, v21, s[{S_FL}:{S_FL+3}], s14 offen sc1')
        p.label(f'{name}_cpub')
        p.stamp('ctx pub')
        if PE: emit_prefetch()
        if FP == 'end': ffn_loads()
    import kt
    nerr += kt.gen_kt(name + '_t', p, prof, opt, ctx_publish)
    p.label(f'{name}_done')
    p('s_endpgm')
    def mk_policy(t0, nd, skip_s, ns, fb, wave0):
        def pol(ins, n):
            t = ins.args[0]
            if t.endswith('_done'): return False
            if t.endswith('_stageA'): return n % 3 != 0
            if t in (name + '_noln0', name + '_noln1'): return False
            if t in (name + '_notag', name + '_kvpub'): return not wave0
            if t == name + '_notag2': return True
            if t == name + '_nffn': return not wave0
            if t == name + '_dcw': return not wave0
            if t == name + '_cpub': return not wave0
            if t.startswith(name + '_t'):
                if '_poll' in t and t.endswith('_ok'): return True
                if '_poll' in t and t.endswith('_top'): return False
                u = t[len(name) + 2:]
                if u in ('_w123', '_w1', '_nosig', '_w4', '_w5', '_cw'): return not wave0
                return False
            if t == name + '_nz': return True
            if t == name + '_nocode': return False
            if t == name + '_nopub': return True
            if t in (name + '_lnok', name + '_kok', name + '_vok', name + '_kpub', name + '_vpub'): return not wave0
            if t in (name + '_lnok2', name + '_kok2', name + '_vok2', name + '_krel', name + '_vrel'): return True
            if t.endswith('_t0'): return t0
            if t.endswith('_dn'): return (n % nd) != 0
            if t.endswith('_sb'): return skip_s
            if t.endswith('_sn'): return (n % ns) != 0
            if t.endswith('_fin'): return not fb
            if t.endswith('_fbloop'): return n % 3 != 0
            return False
        return pol
    for cfg in ([(False, 3, False, 3, False, True), (True, 2, False, 2, True, False), (False, 2, True, 2, False, True)] if (not opt or opt[0] in ('pp', 'pq', 'tl', 'tr', 'nocode', 'notlb', 'dbg') or opt[0].startswith('kv=')) and not any(o_.endswith('A') for o_ in opt) else []):
        seq = trace(p, mk_policy(*cfg))
        nerr += len(check_linear(seq, name + str(cfg)))
    return p, nerr

def fallback(p, name, L):
    g = L
    vS, vP, vE, vL, vU, vNeg, vCi, vO = g['vS'], g['vP'], g['vE'], g['vL'], g['vU'], g['vNeg'], g['vCi'], g['vO']
    aQ, aK, aV, vLane16, vNinf = g['aQ'], g['aK'], g['aV'], g['vLane16'], g['vNinf']
    S_KF, S_VF = g['S_KF'], g['S_VF']
    sFlag, sTL, sTS, sW, sH, sDd, sCnt, sT0, sT1, sT2 = (g[k] for k in ('sFlag', 'sTL', 'sTS', 'sW', 'sH', 'sDd', 'sCnt', 'sT0', 'sT1', 'sT2'))
    O = g['O']; mask_ops = g['mask_ops']; qk_mfmas = g['qk_mfmas']; pv_mfmas = g['pv_mfmas']; row_reduce = g['row_reduce']; store_ctx = g['store_ctx']
    put = g['put']
    p('s_waitcnt vmcnt(0) lgkmcnt(0)')
    for cols, sTile, bit, nm in (([2, 3], sTS, 2, 'S'), ([0, 1], sTL, 1, 'L')):
        p(f's_and_b32 s{sT0}, s{sFlag}, {bit}')
        p(f's_cmp_eq_u32 s{sT0}, 0')
        p(f's_cbranch_scc1 {name}_fbskip{nm}')
        for c in cols:
            p(f'v_mov_b32 v{vL+c}, 0')
            for r in range(32): p(f'v_mov_b32 v{vO+32*c+r}, 0')
            for r in range(4): p(f'v_mov_b32 v{vNeg+4*c+r}, 0')
        for i in range(2): p(f'v_mov_b32 v{vU+4+i}, v{vNinf}')
        p(f's_lshl_b32 s{sDd}, s{sTile}, 2')
        p(f's_add_u32 s{sDd}, s{sDd}, s{sW}')
        p(f's_add_u32 s{sCnt}, s{sDd}, 1')
        p(f's_sub_u32 s{sDd}, 0, s{sDd}')
        p(f's_lshl_b32 s{sT2}, s{sH}, 19')
        p.label(f'{name}_fb{nm}_fbloop')
        for f in range(8):
            p(f's_add_u32 s{sT1}, s{sT2}, {(f // 4)*4096}')
            p(f'buffer_load_dwordx4 a[{aK+4*f}:{aK+4*f+3}], v{vLane16}, s[{S_KF}:{S_KF+3}], s{sT1} offen offset:{(f % 4)*1024}')
            p(f'buffer_load_dwordx4 a[{aV+4*f}:{aV+4*f+3}], v{vLane16}, s[{S_VF}:{S_VF+3}], s{sT1} offen offset:{(f % 4)*1024}')
        for it in mask_ops(cols): put(it)
        p('s_waitcnt vmcnt(0)')
        p('s_nop 1')
        for m in qk_mfmas(cols, 0, lambda c, kb: vCi + 8*(c - cols[0]) + 4*kb): p(m)
        p('s_nop 7')
        for i, c in enumerate(cols):
            S = vS + 8*i; t = vU + i; m = vU + 4 + i
            p(f'v_max3_f32 v{t}, v{S}, v{S+1}, v{S+2}')
            p(f'v_max3_f32 v{t}, v{t}, v{S+3}, v{S+4}')
            p(f'v_max3_f32 v{t}, v{t}, v{S+5}, v{S+6}')
            p(f'v_max_f32 v{t}, v{t}, v{S+7}')
            row_reduce(t, 'v_max_f32', vU + 6)
            p(f'v_max_f32 v{t}, v{t}, v{m}')
            p(f'v_sub_f32 v{vU+6}, v{m}, v{t}')
            p(f'v_exp_f32 v{vU+6}, v{vU+6}')
            p(f'v_mov_b32 v{m}, v{t}')
            p(f'v_mul_f32 v{vL+c}, v{vL+c}, v{vU+6}')
            for r in range(32): p(f'v_mul_f32 v{vO+32*c+r}, v{vO+32*c+r}, v{vU+6}')
            for r in range(8): p(f'v_sub_f32 v{S+r}, v{S+r}, v{t}')
            for r in range(8): p(f'v_exp_f32 v{S+r}, v{S+r}')
            p('s_nop 0')
            for r in range(8): p(f'v_add_f32 v{vL+c}, v{vL+c}, v{S+r}')
            for k in range(4): p(f'v_cvt_pk_bf16_f32 v{vP+4*c+k}, v{S+2*k}, v{S+2*k+1}')
        p('s_nop 1')
        for m in pv_mfmas(cols, 0): p(m)
        p('s_nop 7')
        p(f's_add_u32 s{sT2}, s{sT2}, 8192')
        p(f's_add_u32 s{sDd}, s{sDd}, 1')
        p(f's_sub_u32 s{sCnt}, s{sCnt}, 1')
        p(f's_cmp_lg_u32 s{sCnt}, 0')
        p(f's_cbranch_scc1 {name}_fb{nm}_fbloop')
        for c in cols: row_reduce(vL + c, 'v_add_f32', vU)
        for c in cols: p(f'v_rcp_f32 v{vL+c}, v{vL+c}')
        store_ctx(cols, sTile)
        p.label(f'{name}_fbskip{nm}')

if __name__ == '__main__':
    p, ne = gen_kf()
    print('instrs', p.count(), 'errors', ne)
```

```python
from common import *
from gx2 import *
from sched import *
from lnops import rne_keep
MF = 'v_mfma_f32_16x16x32_bf16'
NFFN = 54
WS_PB = WS_PART
PS_OFF = 4*128*8*2560
SZ_PB = PS_OFF + 4*64*8*1024
SPIN = 1 << 16

def poll(p, name, S_DBG, off, target, vt, sA, sB):
    L = p.nl(name + '_poll')
    p(f'v_mov_b32 v{vt}, {off}')
    p(f's_mov_b32 s{sA}, 0')
    p.label(L)
    p(f'buffer_load_dword v{vt+1}, v{vt}, s[{S_DBG}:{S_DBG+3}], 0 offen sc1')
    p('s_waitcnt vmcnt(0)')
    p(f'v_readfirstlane_b32 s{sB}, v{vt+1}')
    p(f's_add_u32 s{sA}, s{sA}, 1')
    p(f's_cmp_ge_u32 s{sB}, {target}')
    p(f's_cbranch_scc1 {L}_ok')
    p(f's_cmp_ge_u32 s{sA}, {SPIN}')
    p(f's_cbranch_scc1 {L}_ok')
    p('s_sleep 1')
    p(f's_branch {L}')
    p.label(L + '_ok')

FOFS = 82*MiB - WS_STAT
O_CTXF, O_FM, O_KEYS, O_RDY, O_FF = FOFS + 6144, FOFS + 8192, FOFS + 10240, FOFS + 12288, FOFS + 13312

def gen_kt(name, p, prof=False, opt=(), ctx_publish=None):
    put = make_put(p)
    S_WO, S_CTX, S_PB, S_DBG, S_X, S_OUT, S_H, S_ST = 16, 20, 24, 28, 32, 36, 40, 56
    S_WA, S_WB = 60, 64
    sW, sS, sMT, sNT = 44, 45, 46, 47
    sT0, sT1, sT2 = 48, 49, 50
    sWoff, sCoff, sLWw, sLWc, sP0 = 51, 52, 53, 54, 55
    sIdx, sR = 68, 69
    vLane16 = 1
    vOffW = 2
    vLPe, vLPo, vCe, vCo = 7, 8, 9, 10
    vLPc, vCc = 11, 12
    vT = 13
    vWF = 20; vCF = 40; acc = 72
    NSL = 4; NSC = 5
    WB_ = lambda ch: (ch % NSL)*20480
    CB_ = lambda ch: 81920 + (ch % NSC)*16384
    sTag = 3; sFj = 62; sPS = 60; sMaskC = 61
    p.vmq = []; p.retired = -1; p.lgq = []; p.lg_ret = -1
    n_front = len(p.items)
    if getattr(p, 'dbgmode', False):
        for k in range(p.nstamp, 10): p(f's_mov_b32 s{72 + 2*k}, s72')
    p(f's_load_dwordx2 s[4:5], s[0:1], {ARG["wo"]}')
    p(f's_load_dwordx4 s[8:11], s[0:1], {ARG["out"]}')
    p(f's_load_dwordx2 s[12:13], s[0:1], {ARG["ws"]}')
    p(f's_load_dwordx2 s[6:7], s[0:1], {ARG["x"]}')
    p('s_and_b32 s14, s2, 7')
    p('s_lshr_b32 s15, s2, 3')
    p(f's_lshr_b32 s{sS}, s14, 1')
    p(f's_and_b32 s14, s14, 1')
    p(f's_lshl_b32 s14, s14, 3')
    p(f's_and_b32 s{sMT}, s15, 7')
    p(f's_add_u32 s{sMT}, s{sMT}, s14')
    p(f's_lshr_b32 s{sNT}, s15, 3')
    p('s_lshr_b32 s14, s2, 3')
    p(f's_and_b32 s{sFj}, s14, 7')
    p(f's_lshr_b32 s14, s14, 3')
    p(f's_lshl_b32 s14, s14, 1')
    p(f's_add_u32 s14, s14, s{sFj}')
    p(f's_sub_u32 s14, s14, 6')
    p(f's_lshl_b32 s14, s14, 3')
    p(f's_and_b32 s15, s2, 7')
    p(f's_add_u32 s14, s14, s15')
    p(f's_cmp_ge_u32 s{sFj}, 6')
    p(f's_cselect_b32 s{sFj}, s14, 255')
    p('s_lshr_b32 s15, s2, 3')
    p(f's_lshl_b32 s{sT0}, s{sMT}, 3')
    p(f's_lshl_b32 s{sT1}, s{sW}, 1')
    p(f's_add_u32 s{sT0}, s{sT0}, s{sT1}')
    p(f's_lshl_b32 s{sT0}, s{sT0}, 2')
    p(f's_add_u32 s{sT0}, s{sT0}, s{sS}')
    p(f's_lshl_b32 s{sCoff}, s{sT0}, 15')
    p(f's_lshl_b32 s{sLWc}, s{sW}, 12')
    p(f's_mul_i32 s{sWoff}, s{sS}, {1024*1280}')
    p(f's_mul_i32 s{sT0}, s{sNT}, 320')
    p(f's_add_u32 s{sWoff}, s{sWoff}, s{sT0}')
    p(f's_mul_i32 s{sLWw}, s{sW}, 5120')
    p(f's_mul_i32 s{sT0}, s{sW}, 320')
    p(f'v_add_u32 v{vT}, s{sT0}, v0')
    for i in range(5):
        if i: p(f'v_add_u32 v{vT}, 64, v{vT}')
        p(f'v_mul_u32_u24 v{vT+1}, 3277, v{vT}')
        p(f'v_lshrrev_b32 v{vT+1}, 16, v{vT+1}')
        p(f'v_mul_u32_u24 v{vT+2}, 20, v{vT+1}')
        p(f'v_sub_u32 v{vT+2}, v{vT}, v{vT+2}')
        p(f'v_bfe_u32 v{vT+3}, v{vT+1}, 2, 1')
        p(f'v_lshlrev_b32 v{vT+3}, 1, v{vT+3}')
        p(f'v_xor_b32 v{vT+2}, v{vT+2}, v{vT+3}')
        p(f'v_mul_u32_u24 v{vT+1}, 1280, v{vT+1}')
        p(f'v_lshl_add_u32 v{vOffW+i}, v{vT+2}, 4, v{vT+1}')
        if 0 < i < 4: p(f'v_subrev_u32 v{vOffW+i}, {1024*i}, v{vOffW+i}')
    p('s_waitcnt lgkmcnt(0)')
    srd(p, S_WO, 4, 4096*640*2)
    srd(p, S_CTX, 12, SZ_CTX, WS_CTX)
    def dma_ctx(ch):
        base = CB_(ch)
        tagC = ('W', base, base + 16384, True)
        L = [('s', f's_add_u32 s{sT1}, s{sCoff}, {ch*2048}'), ('s', f's_add_u32 m0, s{sLWc}, {base}'), ('s', 's_nop 0')]
        for i in range(2): L.append(('m', f'buffer_load_dwordx4 v{vLane16}, s[{S_CTX}:{S_CTX+3}], s{sT1} offen offset:{1024*i} lds', f'X{ch}', tagC))
        L.append(('s', f's_add_u32 s{sT1}, s{sCoff}, {ch*2048 + 4*32768}'))
        L.append(('s', f's_add_u32 m0, s{sLWc}, {base + 2048}'))
        L.append(('s', 's_nop 0'))
        for i in range(2): L.append(('m', f'buffer_load_dwordx4 v{vLane16}, s[{S_CTX}:{S_CTX+3}], s{sT1} offen offset:{1024*i} lds', f'X{ch}', tagC))
        return L
    def dma_wo(ch):
        base = WB_(ch)
        L = [('s', f's_add_u32 m0, s{sLWw}, {base}'), ('s', f's_add_u32 s{sT0}, s{sWoff}, {ch*64*1280}')]
        tagW = ('W', base, base + 20480, True)
        for i in range(4):
            L.append(('m', f'buffer_load_dwordx4 v{vOffW+i}, s[{S_WO}:{S_WO+3}], s{sT0} offen offset:{1024*i} lds', f'C{ch}', tagW))
        L.append(('s', f's_add_u32 m0, s{sLWw}, {base + 4096}'))
        L.append(('s', 's_nop 0'))
        L.append(('m', f'buffer_load_dwordx4 v{vOffW+4}, s[{S_WO}:{S_WO+3}], s{sT0} offen lds', f'C{ch}', tagW))
        return L
    def dma_chunk(ch): return dma_ctx(ch) + dma_wo(ch)
    def emit(L):
        for it in L: put(it)
    p(f'v_bfe_u32 v{vT}, v0, 2, 2')
    p(f'v_lshrrev_b32 v{vT+1}, 4, v0')
    p(f'v_lshl_add_u32 v{vT+2}, v{vT+1}, 2, v{vT}')
    p(f'v_mul_u32_u24 v{vT+2}, 320, v{vT+2}')
    p(f'v_and_b32 v{vT+3}, 3, v0')
    p(f'v_lshl_add_u32 v{vT+2}, v{vT+3}, 3, v{vT+2}')
    p(f'v_and_b32 v{vT+1}, 1, v{vT+1}')
    p(f'v_lshlrev_b32 v{vT+1}, 5, v{vT+1}')
    p(f'v_add_u32 v{vLPe}, v{vT+2}, v{vT+1}')
    p(f'v_sub_u32 v{vLPo}, v{vT+2}, v{vT+1}')
    p(f's_lshr_b32 s{sT0}, s{sW}, 1')
    p(f's_and_b32 s{sT1}, s{sW}, 1')
    p(f's_cmp_eq_u32 s{sT0}, 1')
    p(f's_cselect_b64 s[14:15], -1, 0')
    p(f'v_cndmask_b32 v{vT}, v{vLPe}, v{vLPo}, s[14:15]')
    p(f'v_cndmask_b32 v{vT+1}, v{vLPo}, v{vLPe}, s[14:15]')
    p(f's_mul_i32 s{sT2}, s{sT0}, 160')
    p(f'v_add_u32 v{vLPe}, s{sT2}, v{vT}')
    p(f'v_add_u32 v{vLPo}, s{sT2}, v{vT+1}')
    p(f's_lshl_b32 s{sT2}, s{sT1}, 13')
    p(f'v_add_u32 v{vLPc}, s{sT2}, v{vLane16}')
    p(f's_lshl_b32 s{sP0}, s{sS}, 7')
    p(f's_lshl_b32 s{sT2}, s{sMT}, 3')
    p(f's_add_u32 s{sP0}, s{sP0}, s{sT2}')
    p(f's_lshl_b32 s{sT1}, s{sT1}, 2')
    p(f's_add_u32 s{sP0}, s{sP0}, s{sT1}')
    p(f's_lshl_b32 s{sP0}, s{sP0}, 3')
    p(f's_lshl_b32 s{sT2}, s{sNT}, 1')
    p(f's_add_u32 s{sP0}, s{sP0}, s{sT2}')
    p(f's_add_u32 s{sP0}, s{sP0}, s{sT0}')
    p(f's_lshl_b32 s{sPS}, s{sS}, 6')
    p(f's_lshl_b32 s14, s{sMT}, 2')
    p(f's_add_u32 s{sPS}, s{sPS}, s14')
    p(f's_lshr_b32 s14, s{sT1}, 1')
    p(f's_add_u32 s{sPS}, s{sPS}, s14')
    p(f's_lshl_b32 s{sPS}, s{sPS}, 3')
    p(f's_add_u32 s{sPS}, s{sPS}, s{sT2}')
    p(f's_add_u32 s{sPS}, s{sPS}, s{sT0}')
    p(f's_lshl_b32 s{sPS}, s{sPS}, 10')
    p(f's_add_u32 s{sPS}, s{sPS}, {{PS_OFF}}'.replace('{PS_OFF}', str(PS_OFF)))
    p(f's_mul_i32 s{sP0}, s{sP0}, 2560')
    srd(p, S_PB, 12, SZ_PB, WS_PB)
    srd(p, S_X, 6, 2048*640*2)
    srd(p, S_OUT, 8, 2048*640*2)
    srd(p, S_H, 12, SZ_H, WS_H)
    srd(p, S_ST, 12, 3 << 20, WS_STAT)
    p.stamp('tail setup')
    ctx_publish()
    p(f's_cmp_eq_u32 s{sW}, 0')
    p(f's_cbranch_scc1 {name}_w0first')
    emit(dma_wo(0) + dma_wo(1) + dma_wo(2))
    p(f's_branch {name}_cw')
    p.label(f'{name}_w0first')
    p(f's_sub_u32 s14, 15, s{sMT}')
    p(f's_min_u32 s14, s14, s{sMT}')
    p(f's_lshl_b32 s14, s14, 3')
    p(f's_lshl_b32 s15, s{sS}, 1')
    p(f's_add_u32 s14, s14, s15')
    p(f'v_and_b32 v{vT}, 3, v0')
    p(f'v_lshlrev_b32 v{vT}, 6, v{vT}')
    p(f'v_bfe_u32 v{vT+1}, v0, 2, 1')
    p(f'v_add3_u32 v{vT}, v{vT}, v{vT+1}, s14')
    p(f'v_lshlrev_b32 v{vT}, 2, v{vT}')
    p(f's_mov_b32 s14, {O_CTXF}')
    p('s_mov_b32 s15, 0')
    Lc = p.nl(name + '_pollC')
    p.label(Lc)
    p(f'buffer_load_dword v{vT+1}, v{vT}, s[{S_ST}:{S_ST+3}], s14 offen sc1')
    p('s_waitcnt vmcnt(0)')
    p(f'v_cmp_ne_u32 vcc, s{sTag}, v{vT+1}')
    p('s_add_u32 s15, s15, 1')
    p(f's_cbranch_vccz {Lc}_ok')
    p(f's_cmp_ge_u32 s15, {SPIN}')
    p(f's_cbranch_scc1 {Lc}_ok')
    p('s_sleep 2')
    p(f's_branch {Lc}')
    p.label(Lc + '_ok')
    emit(dma_wo(0) + dma_wo(1) + dma_wo(2))
    p.label(f'{name}_cw')
    p('s_barrier')
    (p.stamp('ctx ready') if 'ln' not in opt else None)
    emit(dma_ctx(0)); emit(dma_ctx(1)); emit(dma_ctx(2)); emit(dma_ctx(3))
    def upd(ch):
        return [('v', f'v_add_u32 v{vCe}, {WB_(ch)}, v{vLPe}'), ('v', f'v_add_u32 v{vCo}, {WB_(ch)}, v{vLPo}'), ('v', f'v_add_u32 v{vCc}, {CB_(ch)}, v{vLPc}')]
    def rd_w(mb, ks):
        ch, kin = divmod(ks, 2); base = WB_(ch)
        r = vWF + 4*mb; a = vCe if mb % 2 == 0 else vCo
        return [('r', f'ds_read_b64_tr_b16 v[{r+2*h}:{r+2*h+1}], v{a} offset:{kin*10240 + h*5120 + mb*32}', f'w{ks}_{mb}', ('R', base, base + 20480)) for h in range(2)]
    def rd_c(cb, ks):
        ch, kin = divmod(ks, 2); base = CB_(ch)
        r = vCF + 16*(ks % 2) + 4*cb
        return ('r', f'ds_read_b128 v[{r}:{r+3}], v{vCc} offset:{cb*2048 + kin*1024}', f'c{ks}', ('R', base, base + 16384))
    emit(upd(0))
    p.wait_vm('X0')
    p('s_barrier')
    (p.stamp('chunk0') if 'ln' not in opt else None)
    for cb in range(4): put(rd_c(cb, 0))
    for mb in range(5): emit(rd_w(mb, 0))
    NKS = 32
    A = lambda cb, mb: acc + (cb*5 + mb)*4
    mf = []
    for ks in range(NKS):
        for mb in range(5):
            for cb in range(4):
                c = '0' if ks == 0 else f'v[{A(cb, mb)}:{A(cb, mb)+3}]'
                cf = vCF + 16*(ks % 2) + 4*cb
                mf.append(f'{MF} v[{A(cb, mb)}:{A(cb, mb)+3}], v[{vWF+4*mb}:{vWF+4*mb+3}], v[{cf}:{cf+3}], {c}')
    R = Region(mf)
    G = lambda ks, mb, cb: ks*20 + mb*4 + cb
    put(('wlg', ['w0_0', 'c0']))
    BARG = lambda ch: G(2*ch + 1, 0, 3)
    NCH = 16
    for ch in range(NCH - 1):
        R.place(('bar', [f'C{ch+1}', f'X{ch+1}']), BARG(ch), force=True)
        R.stream(upd(ch + 1), G(2*ch + 1, 0, 1), G(2*ch + 1, 1, 0))
    for ks in range(NKS):
        for mb in range(5):
            if ks == 0 and mb == 0: continue
            labs = [f'w{ks}_{mb}'] + ([f'c{ks}'] if mb == 0 else [])
            R.place(('wlg', labs), G(ks, mb, 0) - 1, force=True)
    for ks in range(NKS - 1):
        ch, t = divmod(ks, 2); nxt = ks + 1
        for mb in range(5):
            e = G(ks, mb, 3)
            if t == 1: e = max(e, G(ks, 1, 1))
            rr = rd_w(mb, nxt)
            lat = G(ks + 1, 0, 0) if t == 0 else G(ks + 1, mb, 0) - 3
            g = R.place(rr[0], e, lat); R.place(rr[1], min(g + 1, lat), lat)
        e = G(ks, 0, 0) if t == 0 else G(ks, 1, 1)
        for cb in range(4): R.place(rd_c(cb, nxt), e + 3*cb, G(ks + 1, 0, 0) - 4)
    def spread_dma(R, L, g0, g1):
        nm = sum(1 for x in L if x[0] in 'ml')
        step = max(1, (g1 - g0) // max(nm, 1))
        g = g0; cnt = 0
        for it in L:
            e = max(g, g0 + cnt*step - (2 if it[0] == 's' else 0))
            g = R.place(it, e, g1)
            if it[0] in 'ml': cnt += 1; g += 1
    for ch in range(NCH - 1):
        L_ = (dma_ctx(ch + 4) if ch + 4 < NCH else []) + (dma_wo(ch + 3) if ch + 3 < NCH else [])
        if L_: spread_dma(R, L_, BARG(ch) + 1, BARG(ch + 1) - 1)
    R.emit(p, put)
    print('kt gemm overflow', R.over, 'est', R.total())
    (p.stamp('gemm end') if 'ln' not in opt else None)
    p('s_nop 7')
    for cb in range(4):
        a0 = A(cb, 0)
        for k in range(10): p(f'v_cvt_pk_bf16_f32 v{a0+k}, v{a0+2*k}, v{a0+2*k+1}')
        p(f's_add_u32 s{sT0}, s{sP0}, {cb*8*2560}')
        p.vm(f'buffer_store_dwordx4 v[{a0}:{a0+3}], v{vLane16}, s[{S_PB}:{S_PB+3}], s{sT0} offen sc1', 'st')
        p.vm(f'buffer_store_dwordx4 v[{a0+4}:{a0+7}], v{vLane16}, s[{S_PB}:{S_PB+3}], s{sT0} offen offset:1024 sc1', 'st')
        if cb % 2 == 1:
            ae = A(cb - 1, 0)
            p(f'v_mov_b32 v{ae+10}, v{a0+8}')
            p(f'v_mov_b32 v{ae+11}, v{a0+9}')
            p(f's_add_u32 s{sT0}, s{sPS}, {(cb // 2)*8*1024}')
            p.vm(f'buffer_store_dwordx4 v[{ae+8}:{ae+11}], v{vLane16}, s[{S_PB}:{S_PB+3}], s{sT0} offen sc1', 'st')
    p('s_waitcnt vmcnt(0)')
    p('s_barrier')
    p(f's_cmp_lg_u32 s{sW}, 0')
    p(f's_cbranch_scc1 {name}_nosig')
    p(f's_lshl_b32 s{sT0}, s{sMT}, 7')
    p(f's_lshl_b32 s{sT1}, s{sS}, 4')
    p(f's_add_u32 s{sT0}, s{sT0}, s{sT1}')
    p(f's_lshl_b32 s{sT1}, s{sNT}, 2')
    p(f's_add_u32 s{sT0}, s{sT0}, s{sT1}')
    p(f's_add_u32 s{sT0}, s{sT0}, {O_FM}')
    p(f'v_mov_b32 v{vT}, 0')
    p(f'v_mov_b32 v{vT+1}, s{sTag}')
    p('v_cmp_eq_u32 vcc, 0, v0')
    p('s_nop 1')
    p('s_and_saveexec_b64 s[14:15], vcc')
    p(f'buffer_store_dword v{vT+1}, v{vT}, s[{S_ST}:{S_ST+3}], s{sT0} offen sc1')
    p('s_mov_b64 exec, s[14:15]')
    p.label(f'{name}_nosig')
    (p.stamp('signalled') if 'ln' not in opt else None)
    vTok, vOffP, vOffP8, vOffX, vLds, vLdsW, vTokG = 2, 3, 4, 5, 6, 7, 8
    PA = 20
    XR = 60
    WR = 70
    H = 80
    HN = 100
    sm, mean, mb_, var, sd, rc, t0, t1 = range(120, 128)
    sJ = sP0
    p(f's_lshl_b32 s{sJ}, s{sS}, 2')
    p(f's_add_u32 s{sJ}, s{sJ}, s{sNT}')
    p(f'v_and_b32 v{vTok}, 7, v0')
    p(f'v_bfe_u32 v{vT}, v0, 3, 2')
    p(f'v_lshrrev_b32 v{vT+1}, 5, v0')
    p(f's_lshr_b32 s{sT0}, s{sJ}, 1')
    p(f's_lshl_b32 s{sT1}, s{sMT}, 3')
    p(f's_add_u32 s{sT0}, s{sT0}, s{sT1}')
    sQB = 70
    p(f's_mov_b32 s{sQB}, s{sT0}')
    p(f's_lshl_b32 s{sT1}, s{sT0}, 4')
    p(f's_and_b32 s{sT2}, s{sJ}, 1')
    p(f's_lshl_b32 s{sT2}, s{sT2}, 3')
    p(f's_add_u32 s{sT1}, s{sT1}, s{sT2}')
    p(f'v_add_u32 v{vTokG}, s{sT1}, v{vTok}')
    p(f'v_lshl_add_u32 v{vT+2}, v{vT}, 4, v{vTok}')
    p(f'v_add_u32 v{vT+2}, s{sT2}, v{vT+2}')
    p(f's_lshl_b32 s{sT0}, s{sT0}, 3')
    p(f's_lshl_b32 s{sT2}, s{sW}, 1')
    p(f's_add_u32 s{sT0}, s{sT0}, s{sT2}')
    p(f'v_add_u32 v{vT+3}, s{sT0}, v{vT+1}')
    p(f'v_mul_u32_u24 v{vT+3}, 2560, v{vT+3}')
    p(f'v_lshl_add_u32 v{vOffP}, v{vT+2}, 4, v{vT+3}')
    p(f's_lshr_b32 s14, s{sQB}, 1')
    p(f's_lshl_b32 s14, s14, 3')
    p(f's_add_u32 s14, s14, s{sT2}')
    p(f'v_add_u32 v{vOffP8}, s14, v{vT+1}')
    p(f'v_lshlrev_b32 v{vOffP8}, 10, v{vOffP8}')
    p(f'v_lshl_add_u32 v{vOffP8}, v{vT+2}, 4, v{vOffP8}')
    p(f's_and_b32 s14, s{sQB}, 1')
    p(f's_lshl_b32 s14, s14, 3')
    p(f's_add_u32 s14, s14, {PS_OFF}')
    p(f'v_add_u32 v{vOffP8}, s14, v{vOffP8}')
    p(f's_mul_i32 s{sT2}, s{sW}, 320')
    p(f'v_mul_u32_u24 v{vT+4}, 160, v{vT+1}')
    p(f'v_lshl_add_u32 v{vT+4}, v{vT}, 3, v{vT+4}')
    p(f'v_add_u32 v{vT+4}, s{sT2}, v{vT+4}')
    p(f'v_mul_u32_u24 v{vOffX}, 1280, v{vTokG}')
    p(f'v_add_u32 v{vOffX}, v{vOffX}, v{vT+4}')
    p(f's_load_dwordx2 s[14:15], s[0:1], {ARG["wr"]}')
    for i in range(5):
        p(f'buffer_load_dwordx2 v[{XR+2*i}:{XR+2*i+1}], v{vOffX}, s[{S_X}:{S_X+3}], 0 offen offset:{32*i}')
    p('s_waitcnt lgkmcnt(0)')
    srd(p, 8, 14, 640*2)
    for i in range(5):
        p(f'buffer_load_dwordx2 v[{WR+2*i}:{WR+2*i+1}], v{vT+4}, s[8:11], 0 offen offset:{32*i}')
    RB = 143360
    STH = 122880; STO = 133120
    p(f's_lshl_b32 s{sT1}, s{sW}, 5')
    p(f'v_lshlrev_b32 v{vLds}, 2, v{vTok}')
    p(f'v_add_u32 v{vLds}, {RB}, v{vLds}')
    p(f'v_add_u32 v{vLdsW}, s{sT1}, v{vLds}')
    p(f's_cmp_ge_u32 s{sFj}, {NFFN}')
    p(f's_cbranch_scc1 {name}_nowl')
    p(f's_mul_i32 s{sT2}, s{sW}, 10240')
    p(f'v_add_u32 v{t0}, s{sT2}, v{vLane16}')
    p(f'v_add_u32 v{t1}, 65536, v{t0}')
    for mat, lbase in enumerate((0, 40960, 81920)):
        for i in range(10):
            r = 132 + (mat*10 + i)*4
            if lbase + i*1024 < 65536: p(f'ds_write_b128 v{t0}, a[{r}:{r+3}] offset:{lbase + i*1024}')
            else: p(f'ds_write_b128 v{t1}, a[{r}:{r+3}] offset:{lbase + i*1024 - 65536}')
    p.label(f'{name}_nowl')
    p(f's_cmp_lg_u32 s{sW}, 0')
    p(f's_cbranch_scc1 {name}_w1')
    p(f's_lshl_b32 s{sT0}, s{sMT}, 7')
    p(f's_add_u32 s{sT0}, s{sT0}, {O_FM}')
    Lp = p.nl(name + '_pollM')
    p(f'v_and_b32 v{t0}, 15, v0')
    p(f'v_lshlrev_b32 v{t0}, 2, v{t0}')
    p(f's_mov_b32 s{sT1}, 0')
    p.label(Lp)
    p(f'buffer_load_dword v{t1}, v{t0}, s[{S_ST}:{S_ST+3}], s{sT0} offen sc1')
    p('s_waitcnt vmcnt(0)')
    p(f'v_cmp_ne_u32 vcc, s{sTag}, v{t1}')
    p(f's_add_u32 s{sT1}, s{sT1}, 1')
    p(f's_cbranch_vccz {Lp}_ok')
    p(f's_cmp_ge_u32 s{sT1}, {SPIN}')
    p(f's_cbranch_scc1 {Lp}_ok')
    p('s_sleep 2')
    p(f's_branch {Lp}')
    p.label(Lp + '_ok')
    p.label(f'{name}_w1')
    p('s_barrier')
    (p.stamp('partials ready') if 'ln' not in opt else None)
    for s_ in range(4):
        p(f's_mov_b32 s{sT0}, {s_*128*8*2560}')
        b = PA + 10*s_
        p(f'buffer_load_dwordx4 v[{b}:{b+3}], v{vOffP}, s[{S_PB}:{S_PB+3}], s{sT0} offen sc1')
        p(f'buffer_load_dwordx4 v[{b+4}:{b+7}], v{vOffP}, s[{S_PB}:{S_PB+3}], s{sT0} offen offset:1024 sc1')
        p(f's_mov_b32 s{sT1}, {s_*64*8*1024}')
        p(f'buffer_load_dwordx2 v[{b+8}:{b+9}], v{vOffP8}, s[{S_PB}:{S_PB+3}], s{sT1} offen sc1')
    p('s_waitcnt vmcnt(0)')
    p.stamp('partials loaded')
    p(f'v_mov_b32 v{t0}, {RB}')
    p(f'v_mov_b32 v{t1}, 0')
    p(f'ds_write_b32 v{t0}, v{t1} offset:516')
    U0, U1 = 160, 180
    p(f's_mov_b32 s{sMaskC}, 0xffff0000')
    def ext(dst, src, half): return f'v_lshlrev_b32 v{dst}, 16, v{src}' if half == 0 else f'v_and_b32 v{dst}, s{sMaskC}, v{src}'
    for k in range(20): p(ext(H + k, PA + k//2, k % 2))
    for k in range(20): p(ext(U0 + k, PA + 10 + k//2, k % 2))
    for k in range(20): p(ext(U1 + k, PA + 20 + k//2, k % 2))
    for k in range(20): p(f'v_add_f32 v{H+k}, v{H+k}, v{U0+k}')
    for k in range(20): p(ext(U0 + k, PA + 30 + k//2, k % 2))
    for k in range(20): p(f'v_add_f32 v{U1+k}, v{U1+k}, v{U0+k}')
    for k in range(20): p(f'v_add_f32 v{H+k}, v{H+k}, v{U1+k}')
    for k2 in range(10): p(f'v_cvt_pk_bf16_f32 v{U0+k2}, v{H+2*k2}, v{H+2*k2+1}')
    for k in range(20): p(ext(H + k, U0 + k//2, k % 2))
    for k in range(20): p(ext(U1 + k, XR + k//2, k % 2))
    for k in range(20): p(f'v_add_f32 v{H+k}, v{H+k}, v{U1+k}')
    for k2 in range(10): p(f'v_cvt_pk_bf16_f32 v{XR+k2}, v{H+2*k2}, v{H+2*k2+1}')
    for k in range(20): p(ext(H + k, XR + k//2, k % 2))
    vSt = 9
    p(f'v_mul_u32_u24 v{vSt}, 1280, v{vTok}')
    p(f'v_add_u32 v{vSt}, v{vSt}, v{vT+4}')
    p(f'v_add_u32 v{vSt}, {STH}, v{vSt}')
    for i in range(5): p(f'ds_write_b64 v{vSt}, v[{XR+2*i}:{XR+2*i+1}] offset:{32*i}')
    TT = 128
    def allreduce_n(regs, slot):
        n = len(regs)
        p('s_nop 1')
        for r in regs: p(f'v_add_f32_dpp v{r}, v{r}, v{r} row_ror:8 row_mask:0xf bank_mask:0xf')
        for sw in ('v_permlane16_swap_b32', 'v_permlane32_swap_b32'):
            for i, r in enumerate(regs): p(f'v_mov_b32 v{TT+i}, v{r}')
            p('s_nop 1')
            for i, r in enumerate(regs): p(f'{sw} v{r}, v{TT+i}')
            p('s_nop 1')
            for i, r in enumerate(regs): p(f'v_add_f32 v{r}, v{r}, v{TT+i}')
        for i, r in enumerate(regs): p(f'ds_write_b32 v{vLdsW}, v{r} offset:{(slot + i)*128}')
        p('s_waitcnt lgkmcnt(0)')
        p('s_barrier')
        for i, r in enumerate(regs):
            for w in range(4): p(f'ds_read_b32 v{TT+4*i+w}, v{vLds} offset:{(slot + i)*128 + 32*w}')
        p('s_waitcnt lgkmcnt(0)')
        for i, r in enumerate(regs):
            p(f'v_add_f32 v{TT+4*i}, v{TT+4*i}, v{TT+4*i+1}')
            p(f'v_add_f32 v{TT+4*i+2}, v{TT+4*i+2}, v{TT+4*i+3}')
            p(f'v_add_f32 v{r}, v{TT+4*i}, v{TT+4*i+2}')
    def allreduce(reg, slot): allreduce_n([reg], slot)
    if 'ln' in opt: p.stamp('sums done')
    for k in range(10): p(f'v_add_f32 v{U0+k}, v{H+k}, v{H+10+k}')
    for k in range(5): p(f'v_add_f32 v{U0+k}, v{U0+k}, v{U0+5+k}')
    p(f'v_add_f32 v{U0}, v{U0}, v{U0+1}'); p(f'v_add_f32 v{U0+2}, v{U0+2}, v{U0+3}'); p('s_nop 0')
    p(f'v_add_f32 v{U0}, v{U0}, v{U0+4}'); p('s_nop 0'); p(f'v_add_f32 v{sm}, v{U0}, v{U0+2}'); p('s_nop 0')
    p(f'v_mul_f32 v{mean}, 0x3d4ccccd, v{sm}')
    p('s_nop 0')
    p(f'v_mul_f32 v{sd}, v{sm}, v{mean}')
    for k in range(20): p(f'v_sub_f32 v{U0+k}, v{H+k}, v{mean}')
    for k in range(10): p(f'v_mul_f32 v{U1+k}, v{U0+k}, v{U0+k}')
    for k in range(10): p(f'v_fmac_f32 v{U1+k}, v{U0+10+k}, v{U0+10+k}')
    for k in range(5): p(f'v_add_f32 v{U1+k}, v{U1+k}, v{U1+5+k}')
    p(f'v_add_f32 v{U1}, v{U1}, v{U1+1}'); p(f'v_add_f32 v{U1+2}, v{U1+2}, v{U1+3}'); p('s_nop 0')
    p(f'v_add_f32 v{U1}, v{U1}, v{U1+4}'); p('s_nop 0'); p(f'v_add_f32 v{var}, v{U1}, v{U1+2}')
    if 'ln' in opt: p.stamp('pre ar1')
    allreduce_n([sm, var, sd], 0)
    if 'ln' in opt: p.stamp('ar1')
    p(f'v_mul_f32 v{mean}, 0x3acccccd, v{sm}')
    for x in rne_keep(mb_, mean): p(x)
    p(f'v_fma_f32 v{sd}, -v{sm}, v{mean}, v{sd}')
    p(f'v_max_f32 v{sd}, 0, v{sd}')
    p(f'v_add_f32 v{var}, v{var}, v{sd}')
    p(f'v_mul_f32 v{var}, 0x3acccccd, v{var}')
    for x in rne_keep(var, var): p(x)
    p(f'v_add_f32 v{var}, 0x3727c5ac, v{var}')
    for x in rne_keep(var, var): p(x)
    p(f'v_sqrt_f32 v{sd}, v{var}')
    p('s_nop 0')
    for x in rne_keep(sd, sd): p(x)
    p(f'v_rcp_f32 v{rc}, v{sd}')
    p('s_nop 0')
    p(f'v_mov_b32 v{sm}, v{rc}')
    for k in range(20): p(f'v_sub_f32 v{U0+k}, v{H+k}, v{mb_}')
    for k2 in range(10): p(f'v_cvt_pk_bf16_f32 v{U1+k2}, v{U0+2*k2}, v{U0+2*k2+1}')
    for k in range(20): p(ext(U0 + k, U1 + k//2, k % 2))
    for k in range(20): p(f'v_mul_f32 v{U0+k}, v{U0+k}, v{sm}')
    for k2 in range(10): p(f'v_cvt_pk_bf16_f32 v{U1+k2}, v{U0+2*k2}, v{U0+2*k2+1}')
    for k in range(20): p(ext(HN + k, U1 + k//2, k % 2))
    for k in range(20): p(ext(U0 + k, WR + k//2, k % 2))
    for k in range(10): p(f'v_mul_f32 v{U1+k}, v{HN+k}, v{U0+k}')
    for k in range(10): p(f'v_fmac_f32 v{U1+k}, v{HN+10+k}, v{U0+10+k}')
    for k in range(20): p(f'v_add_f32 v{U0+k}, v{H+k}, v{HN+k}')
    for k in range(5): p(f'v_add_f32 v{U1+k}, v{U1+k}, v{U1+5+k}')
    for k2 in range(10): p(f'v_cvt_pk_bf16_f32 v{PA+k2}, v{U0+2*k2}, v{U0+2*k2+1}')
    p(f'v_add_f32 v{U1}, v{U1}, v{U1+1}'); p(f'v_add_f32 v{U1+2}, v{U1+2}, v{U1+3}'); p('s_nop 0')
    p(f'v_add_f32 v{U1}, v{U1}, v{U1+4}'); p('s_nop 0'); p(f'v_add_f32 v{var}, v{U1}, v{U1+2}')
    for i in range(5): p(f'ds_write_b64 v{vSt}, v[{PA+2*i}:{PA+2*i+1}] offset:{STO - STH + 32*i}')
    if 'ln' in opt: p.stamp('pre ar2')
    allreduce(var, 3)
    if 'ln' in opt: p.stamp('ar2')
    GB, WB = 128, 208
    def preload():
        p(f'v_lshrrev_b32 v5, 4, v0')
        p(f'v_bfe_u32 v7, v0, 2, 2')
        p(f'v_lshl_add_u32 v7, v5, 3, v7')
        p(f'v_and_b32 v8, 3, v0')
        p(f'v_lshlrev_b32 v8, 3, v8')
        p(f'v_lshl_add_u32 v6, v7, 6, v8')
        p(f's_mul_i32 s{sT0}, s{sW}, {5*32*64}')
        p(f'v_add_u32 v6, s{sT0}, v6')
        p(f'v_mul_u32_u24 v7, 1280, v7')
        p(f'v_add_u32 v7, v7, v8')
        p(f's_mul_i32 s{sT0}, s{sW}, 320')
        p(f's_add_u32 s{sT0}, s{sT0}, 81920')
        p(f'v_add_u32 v7, s{sT0}, v7')
        for k in range(5):
            for mat in range(2):
                for cb in range(2):
                    for h in range(2):
                        r = GB + 16*k + (mat*2 + cb)*4 + 2*h
                        p(f'ds_read_b64_tr_b16 v[{r}:{r+1}], v6 offset:{mat*40960 + k*2048 + h*256 + cb*32}')
        for mb in range(10):
            for h in range(2):
                r = WB + 4*mb + 2*h
                p(f'ds_read_b64_tr_b16 v[{r}:{r+1}], v7 offset:{h*5120 + mb*32}')
    p(f'v_cvt_pk_bf16_f32 v{var}, v{var}, v{var}')
    p(f's_cmp_lg_u32 s{sW}, 0')
    p(f's_cbranch_scc1 {name}_w123')
    p(f'v_and_b32 v{t0}, 0xffff, v{var}')
    p(f'v_or_b32 v{t1}, 0x8000, v{t0}')
    p(f'v_xor_b32 v{rc}, 0xffff, v{t0}')
    p(f'v_cmp_lt_u32 vcc, 0x7fff, v{t0}')
    p('s_nop 1')
    p(f'v_cndmask_b32 v{t1}, v{t1}, v{rc}, vcc')
    p(f'v_sub_u32 v{t0}, 0xffff, v{vTokG}')
    p(f'v_lshl_or_b32 v{t1}, v{t1}, 16, v{t0}')
    for sh in (4, 2, 1):
        p('s_nop 1')
        p(f'v_max_u32_dpp v{t1}, v{t1}, v{t1} row_ror:{sh} row_mask:0xf bank_mask:0xf')
    p(f's_lshl_b32 s{sT0}, s2, 3')
    p(f's_add_u32 s{sT0}, s{sT0}, {O_KEYS}')
    p(f'v_mov_b32 v{t0}, 0')
    p(f'v_mov_b32 v{TT}, v{t1}')
    p(f'v_mov_b32 v{TT+1}, s{sTag}')
    p(f'buffer_store_dwordx2 v[{TT}:{TT+1}], v{t0}, s[{S_ST}:{S_ST+3}], s{sT0} offen sc1')
    p.stamp('key out')
    p(f's_cmp_ge_u32 s{sFj}, {NFFN}')
    p(f's_cbranch_scc1 {name}_fin')
    preload()
    p(f's_branch {name}_w0poll')
    p.label(f'{name}_w123')
    p(f's_sub_u32 s{sT0}, s{sW}, 1')
    p(f's_lshl_b32 s{sT0}, s{sT0}, 10')
    p(f'v_add_u32 v{t0}, s{sT0}, v{vLane16}')
    p(f'v_add_u32 v{t1}, {STH}, v{t0}')
    for mat in range(2):
        for i in range(4): p(f'ds_read_b128 v[{PA+16*mat+4*i}:{PA+16*mat+4*i+3}], v{t1} offset:{mat*(STO - STH) + 3072*i}')
    p(f's_lshl_b32 s{sT1}, s{sQB}, 4')
    p(f's_and_b32 s{sT2}, s{sJ}, 1')
    p(f's_lshl_b32 s{sT2}, s{sT2}, 3')
    p(f's_add_u32 s{sT1}, s{sT1}, s{sT2}')
    p(f's_mul_i32 s{sT1}, s{sT1}, 1280')
    p('s_waitcnt lgkmcnt(0)')
    for mat, sr in enumerate((S_H, S_OUT)):
        for i in range(3):
            p(f's_add_u32 s{sT2}, s{sT1}, {3072*i}')
            p(f'buffer_store_dwordx4 v[{PA+16*mat+4*i}:{PA+16*mat+4*i+3}], v{t0}, s[{sr}:{sr+3}], s{sT2} offen sc1')
    p(f's_cmp_lg_u32 s{sW}, 1')
    p(f's_cbranch_scc1 {name}_ns3')
    p(f's_add_u32 s{sT2}, s{sT1}, 9216')
    for mat, sr in enumerate((S_H, S_OUT)):
        p(f'buffer_store_dwordx4 v[{PA+16*mat+12}:{PA+16*mat+15}], v{t0}, s[{sr}:{sr+3}], s{sT2} offen sc1')
    p('v_cmp_gt_u32 vcc, 8, v0')
    p('s_nop 1')
    p('s_and_saveexec_b64 s[14:15], vcc')
    p(f'v_lshlrev_b32 v{t1}, 2, v{vTokG}')
    p(f's_mov_b32 s{sT0}, 8192')
    p(f'buffer_store_dword v{mb_}, v{t1}, s[{S_ST}:{S_ST+3}], s{sT0} offen sc1')
    p(f's_mov_b32 s{sT0}, 16384')
    p(f'buffer_store_dword v{sd}, v{t1}, s[{S_ST}:{S_ST+3}], s{sT0} offen sc1')
    p('s_mov_b64 exec, s[14:15]')
    p.label(f'{name}_ns3')
    p('s_waitcnt vmcnt(0) lgkmcnt(0)')
    p(f'v_mov_b32 v{t0}, {RB}')
    p(f'v_mov_b32 v{t1}, 1')
    p('v_cmp_eq_u32 vcc, 0, v0')
    p('s_nop 1')
    p('s_and_saveexec_b64 s[14:15], vcc')
    p(f'ds_add_rtn_u32 v{t1}, v{t0}, v{t1} offset:516')
    p('s_waitcnt lgkmcnt(0)')
    p('s_mov_b64 exec, s[14:15]')
    p(f'v_readfirstlane_b32 s{sT0}, v{t1}')
    p('s_nop 3')
    p(f's_cmp_lg_u32 s{sT0}, 2')
    p(f's_cbranch_scc1 {name}_w3')
    p(f's_lshl_b32 s{sT0}, s2, 2')
    p(f's_add_u32 s{sT0}, s{sT0}, {O_RDY}')
    p(f'v_mov_b32 v{t0}, 0')
    p(f'v_mov_b32 v{t1}, s{sTag}')
    p(f'buffer_store_dword v{t1}, v{t0}, s[{S_ST}:{S_ST+3}], s{sT0} offen sc1')
    p.label(f'{name}_w3')
    p(f's_cmp_ge_u32 s{sFj}, {NFFN}')
    p(f's_cbranch_scc1 {name}_fin')
    preload()
    p(f's_branch {name}_w4')
    p.label(f'{name}_w0poll')
    Lk = p.nl(name + '_pollK')
    p(f's_mov_b32 s{sT1}, 0')
    p(f's_mov_b32 s{sT0}, {O_KEYS}')
    p(f'v_lshlrev_b32 v28, 5, v0')
    p.label(Lk)
    p(f'buffer_load_dwordx4 v[20:23], v28, s[{S_ST}:{S_ST+3}], s{sT0} offen sc1')
    p(f'buffer_load_dwordx4 v[24:27], v28, s[{S_ST}:{S_ST+3}], s{sT0} offen offset:16 sc1')
    p('s_waitcnt vmcnt(0)')
    p(f'v_xor_b32 v21, s{sTag}, v21')
    p(f'v_xor_b32 v23, s{sTag}, v23')
    p(f'v_xor_b32 v25, s{sTag}, v25')
    p(f'v_xor_b32 v27, s{sTag}, v27')
    p(f'v_or3_b32 v21, v21, v23, v25')
    p(f'v_or_b32 v21, v21, v27')
    p(f'v_cmp_ne_u32 vcc, 0, v21')
    p(f's_add_u32 s{sT1}, s{sT1}, 1')
    p(f's_cbranch_vccz {Lk}_ok')
    p(f's_cmp_ge_u32 s{sT1}, {SPIN}')
    p(f's_cbranch_scc1 {Lk}_ok')
    p('s_sleep 1')
    p(f's_branch {Lk}')
    p.label(Lk + '_ok')
    (p.stamp('argmax ready') if 'ln' not in opt else None)
    p(f'v_max_u32 v20, v20, v22')
    p(f'v_max_u32 v24, v24, v26')
    p('s_nop 0')
    p(f'v_max_u32 v20, v20, v24')
    for sh in (8, 4, 2, 1):
        p('s_nop 1')
        p(f'v_max_u32_dpp v20, v20, v20 row_ror:{sh} row_mask:0xf bank_mask:0xf')
    for sw in ('v_permlane16_swap_b32', 'v_permlane32_swap_b32'):
        p(f'v_mov_b32 v21, v20')
        p('s_nop 1')
        p(f'{sw} v20, v21')
        p('s_nop 1')
        p(f'v_max_u32 v20, v20, v21')
    p(f'v_mov_b32 v21, {RB}')
    p(f'ds_write_b32 v21, v20 offset:512')
    p('s_waitcnt lgkmcnt(0)')
    p.label(f'{name}_w4')
    p('s_barrier')
    p(f'v_mov_b32 v21, {RB}')
    p(f'ds_read_b32 v20, v21 offset:512')
    p('s_waitcnt lgkmcnt(0)')
    p(f'v_readfirstlane_b32 s{sR}, v20')
    p('s_nop 4')
    p(f's_and_b32 s{sIdx}, s{sR}, 0xffff')
    p(f's_sub_u32 s{sIdx}, 0xffff, s{sIdx}')
    p(f's_min_u32 s{sIdx}, s{sIdx}, 2047')
    p(f's_lshr_b32 s{sR}, s{sR}, 16')
    p(f's_xor_b32 s{sT0}, s{sR}, 0xffff')
    p(f's_and_b32 s{sT1}, s{sR}, 0x7fff')
    p(f's_bitcmp1_b32 s{sR}, 15')
    p(f's_cselect_b32 s{sR}, s{sT1}, s{sT0}')
    p(f's_lshl_b32 s{sR}, s{sR}, 16')
    p(f's_lshr_b32 s{sT0}, s{sIdx}, 7')
    p(f's_bfe_u32 s{sT1}, s{sIdx}, 0x40003')
    p(f's_lshr_b32 s{sT2}, s{sT1}, 2')
    p(f's_lshl_b32 s{sT2}, s{sT2}, 1')
    p(f's_lshr_b32 s14, s{sT0}, 3')
    p(f's_add_u32 s{sT2}, s{sT2}, s14')
    p(f's_and_b32 s{sT1}, s{sT1}, 3')
    p(f's_lshl_b32 s{sT1}, s{sT1}, 3')
    p(f's_and_b32 s{sT0}, s{sT0}, 7')
    p(f's_add_u32 s{sT1}, s{sT1}, s{sT0}')
    p(f's_lshl_b32 s{sT1}, s{sT1}, 3')
    p(f's_add_u32 s{sT1}, s{sT1}, s{sT2}')
    p(f's_lshl_b32 s{sT1}, s{sT1}, 2')
    p(f's_add_u32 s{sT0}, s{sT1}, {O_RDY}')
    Lr = p.nl(name + '_pollR')
    p(f's_mov_b32 s{sT1}, 0')
    p(f'v_mov_b32 v{t0}, 0')
    p.label(Lr)
    p(f'buffer_load_dword v{t1}, v{t0}, s[{S_ST}:{S_ST+3}], s{sT0} offen sc1')
    p('s_waitcnt vmcnt(0)')
    p(f'v_readfirstlane_b32 s{sT2}, v{t1}')
    p(f's_add_u32 s{sT1}, s{sT1}, 1')
    p(f's_cmp_eq_u32 s{sT2}, s{sTag}')
    p(f's_cbranch_scc1 {Lr}_ok')
    p(f's_cmp_ge_u32 s{sT1}, {SPIN}')
    p(f's_cbranch_scc1 {Lr}_ok')
    p(f's_branch {Lr}')
    p.label(Lr + '_ok')
    tid = 2
    p(f's_lshl_b32 s{sT0}, s{sW}, 6')
    p(f'v_add_u32 v{tid}, s{sT0}, v0')
    p(f'v_lshlrev_b32 v3, 4, v{tid}')
    p(f's_mul_i32 s{sT1}, s{sIdx}, 1280')
    p(f'buffer_load_dwordx4 v[20:23], v3, s[{S_H}:{S_H+3}], s{sT1} offen sc1')
    p(f's_lshl_b32 s{sT0}, s{sIdx}, 2')
    p(f'v_mov_b32 v4, s{sT0}')
    p(f's_mov_b32 s{sT0}, 8192')
    p(f'buffer_load_dword v{mb_}, v4, s[{S_ST}:{S_ST+3}], s{sT0} offen sc1')
    p(f's_mov_b32 s{sT0}, 16384')
    p(f'buffer_load_dword v{sd}, v4, s[{S_ST}:{S_ST+3}], s{sT0} offen sc1')
    p('s_waitcnt vmcnt(0)')
    p(f'v_rcp_f32 v{sm}, v{sd}')
    for k in range(4):
        p(f'v_lshlrev_b32 v{t0}, 16, v{20+k}')
        p(f'v_and_b32 v{t1}, 0xffff0000, v{20+k}')
        p(f'v_sub_f32 v{t0}, v{t0}, v{mb_}')
        p(f'v_sub_f32 v{t1}, v{t1}, v{mb_}')
        p(f'v_cvt_pk_bf16_f32 v{t0}, v{t0}, v{t1}')
        p(f'v_and_b32 v{t1}, 0xffff0000, v{t0}')
        p(f'v_lshlrev_b32 v{t0}, 16, v{t0}')
        p(f'v_mul_f32 v{t0}, v{t0}, v{sm}')
        p(f'v_mul_f32 v{t1}, v{t1}, v{sm}')
        p(f'v_cvt_pk_bf16_f32 v{24+k}, v{t0}, v{t1}')
    HNL = STH
    p(f'v_cmp_gt_u32 vcc, 80, v{tid}')
    p('s_nop 1')
    p('s_and_saveexec_b64 s[14:15], vcc')
    p(f's_cbranch_execz {name}_h1')
    p(f'v_add_u32 v4, {HNL}, v3')
    p(f'ds_write_b128 v4, v[24:27]')
    p(f'ds_write_b128 v4, v[20:23] offset:1280')
    p.label(f'{name}_h1')
    p('s_mov_b64 exec, s[14:15]')
    p('s_waitcnt lgkmcnt(0)')
    p('s_barrier')
    p(f's_mul_i32 s{sT0}, s{sW}, 320')
    p(f's_add_u32 s{sT0}, s{sT0}, {HNL}')
    p(f'v_lshlrev_b32 v6, 4, v5')
    p(f'v_add_u32 v6, s{sT0}, v6')
    AF = 28
    D = 48
    for k in range(5): p(f'ds_read_b128 v[{AF+4*k}:{AF+4*k+3}], v6 offset:{64*k}')
    p('s_waitcnt lgkmcnt(0)')
    for k in range(5):
        for t in range(4):
            c = '0' if k == 0 else f'v[{D+4*t}:{D+4*t+3}]'
            p(f'{MF} v[{D+4*t}:{D+4*t+3}], v[{AF+4*k}:{AF+4*k+3}], v[{GB+16*k+4*t}:{GB+16*k+4*t+3}], {c}')
    p('s_nop 7')
    XB = RB + 1024
    p(f'v_and_b32 v8, 15, v0')
    p(f'v_lshlrev_b32 v8, 2, v8')
    p(f's_lshl_b32 s{sT0}, s{sW}, 8')
    p(f's_add_u32 s{sT0}, s{sT0}, {XB}')
    p(f'v_add_u32 v9, s{sT0}, v8')
    for t in range(4): p(f'ds_write_b32 v9, v{D+4*t} offset:{64*t}')
    p('s_waitcnt lgkmcnt(0)')
    p('s_barrier')
    p(f'v_and_b32 v8, 31, v0')
    p(f'v_lshlrev_b32 v8, 2, v8')
    p(f'v_add_u32 v8, {XB}, v8')
    for w in range(4):
        p(f'ds_read_b32 v{20+w}, v8 offset:{256*w}')
        p(f'ds_read_b32 v{24+w}, v8 offset:{256*w+128}')
    p('s_waitcnt lgkmcnt(0)')
    for b in (20, 24):
        p(f'v_add_f32 v{b}, v{b}, v{b+1}')
        p(f'v_add_f32 v{b+2}, v{b+2}, v{b+3}')
        p(f'v_add_f32 v{b}, v{b}, v{b+2}')
    g_, u_ = 20, 24
    for x in rne_keep(g_, g_): p(x)
    for x in rne_keep(u_, u_): p(x)
    p(f'v_mul_f32 v{t1}, 0xbfb8aa3b, v{g_}')
    p(f'v_exp_f32 v{t1}, v{t1}')
    p('s_nop 0')
    p(f'v_add_f32 v{t1}, 1.0, v{t1}')
    p(f'v_rcp_f32 v{t1}, v{t1}')
    p('s_nop 0')
    p(f'v_mul_f32 v{g_}, v{g_}, v{t1}')
    for x in rne_keep(g_, g_): p(x)
    p(f'v_mul_f32 v{g_}, v{g_}, v{u_}')
    p(f'v_cvt_pk_bf16_f32 v{g_}, v{g_}, v{g_}')
    AB = RB + 2048
    p(f's_lshl_b32 s{sT0}, s{sW}, 6')
    p(f's_add_u32 s{sT0}, s{sT0}, {AB}')
    p(f'v_and_b32 v8, 31, v0')
    p(f'v_lshlrev_b32 v8, 1, v8')
    p(f'v_add_u32 v8, s{sT0}, v8')
    p(f'ds_write_b16 v8, v{g_}')
    p(f'v_lshlrev_b32 v9, 4, v5')
    p(f'v_add_u32 v9, s{sT0}, v9')
    p('s_waitcnt lgkmcnt(0)')
    p(f'ds_read_b128 v[{AF}:{AF+3}], v9')
    p('s_waitcnt lgkmcnt(0)')
    Y = 48
    for mb in range(10): p(f'{MF} v[{Y+4*mb}:{Y+4*mb+3}], v[{AF}:{AF+3}], v[{WB+4*mb}:{WB+4*mb+3}], 0')
    p('s_nop 7')
    for i in range(3):
        dst = 20 + i
        p(f'v_mov_b32 v{dst}, v{Y+4*min(4*i, 9)}')
        for g in range(1, 4):
            mb = 4*i + g
            if mb < 10:
                p(f'v_cmp_eq_u32 vcc, {g}, v5')
                p('s_nop 1')
                p(f'v_cndmask_b32 v{dst}, v{dst}, v{Y+4*mb}, vcc')
    p(f's_and_b32 s{sT0}, s{sFj}, 7')
    p(f's_mul_i32 s{sT0}, s{sT0}, 2560')
    p(f's_add_u32 s{sT0}, s{sT0}, {WS_YACC - WS_STAT}')
    p(f's_mul_i32 s{sT1}, s{sW}, 640')
    p(f's_add_u32 s{sT0}, s{sT0}, s{sT1}')
    p(f'v_lshlrev_b32 v8, 2, v0')
    p(f'buffer_atomic_add_f32 v20, v8, s[{S_ST}:{S_ST+3}], s{sT0} offen')
    p(f'buffer_atomic_add_f32 v21, v8, s[{S_ST}:{S_ST+3}], s{sT0} offen offset:256')
    p('v_cmp_gt_u32 vcc, 32, v0')
    p('s_nop 1')
    p('s_and_saveexec_b64 s[14:15], vcc')
    p(f'buffer_atomic_add_f32 v22, v8, s[{S_ST}:{S_ST+3}], s{sT0} offen offset:512')
    p('s_mov_b64 exec, s[14:15]')
    p('s_waitcnt vmcnt(0)')
    p('s_barrier')
    (p.stamp('ffn atomics done') if 'ln' not in opt else None)
    p(f's_cmp_lg_u32 s{sW}, 0')
    p(f's_cbranch_scc1 {name}_w5')
    p(f's_lshl_b32 s{sT0}, s{sFj}, 2')
    p(f's_add_u32 s{sT0}, s{sT0}, {O_FF}')
    p(f'v_mov_b32 v{t0}, 0')
    p(f'v_mov_b32 v{t1}, s{sTag}')
    p('v_cmp_eq_u32 vcc, 0, v0')
    p('s_nop 1')
    p('s_and_saveexec_b64 s[14:15], vcc')
    p(f'buffer_store_dword v{t1}, v{t0}, s[{S_ST}:{S_ST+3}], s{sT0} offen sc1')
    p('s_mov_b64 exec, s[14:15]')
    p.label(f'{name}_w5')
    p(f's_cmp_lg_u32 s{sFj}, 0')
    p(f's_cbranch_scc1 {name}_fin')
    Lf = p.nl(name + '_pollF')
    p(f's_mov_b32 s{sT1}, 0')
    p(f's_mov_b32 s{sT0}, {O_FF}')
    p(f'v_lshlrev_b32 v{t0}, 2, v0')
    p(f'v_cmp_gt_u32 s[14:15], {NFFN}, v0')
    p.label(Lf)
    p(f'buffer_load_dword v{t1}, v{t0}, s[{S_ST}:{S_ST+3}], s{sT0} offen sc1')
    p('s_waitcnt vmcnt(0)')
    p(f'v_cmp_ne_u32 vcc, s{sTag}, v{t1}')
    p(f's_add_u32 s{sT1}, s{sT1}, 1')
    p('s_nop 0')
    p('s_and_b64 vcc, vcc, s[14:15]')
    p(f's_cbranch_vccz {Lf}_ok')
    p(f's_cmp_ge_u32 s{sT1}, {SPIN}')
    p(f's_cbranch_scc1 {Lf}_ok')
    p('s_sleep 1')
    p(f's_branch {Lf}')
    p.label(Lf + '_ok')
    p(f'v_lshlrev_b32 v8, 2, v{tid}')
    GW = 20
    for i in range(3):
        for c in range(8):
            p(f's_mov_b32 s{sT0}, {WS_YACC - WS_STAT + c*2560 + i*1024}')
            p(f'buffer_load_dword v{GW+8*i+c}, v8, s[{S_ST}:{S_ST+3}], s{sT0} offen sc0 sc1')
    p(f'v_lshlrev_b32 v9, 1, v{tid}')
    p(f'v_add_u32 v10, {HNL}, v9')
    for i in range(3):
        p(f'ds_read_u16 v{50+i}, v10 offset:{512*i}')
        p(f'ds_read_u16 v{54+i}, v10 offset:{1280 + 512*i}')
    p(f'v_mov_b32 v{t1}, s{sR}')
    p(f'v_mul_f32 v{t1}, 0xbfb8aa3b, v{t1}')
    p(f'v_exp_f32 v{t1}, v{t1}')
    p('s_nop 0')
    p(f'v_add_f32 v{t1}, 1.0, v{t1}')
    p(f'v_rcp_f32 v{t1}, v{t1}')
    p('s_nop 0')
    for x in rne_keep(t1, t1): p(x)
    p('s_waitcnt vmcnt(0) lgkmcnt(0)')
    p(f's_mul_i32 s{sT1}, s{sIdx}, 1280')
    for i in range(3):
        b = GW + 8*i
        for c in range(1, 8): p(f'v_add_f32 v{b}, v{b}, v{b+c}')
        for x in rne_keep(b, b): p(x)
        p(f'v_mul_f32 v{b}, v{b}, v{t1}')
        for x in rne_keep(b, b): p(x)
        p(f'v_lshlrev_b32 v{50+i}, 16, v{50+i}')
        p(f'v_lshlrev_b32 v{54+i}, 16, v{54+i}')
        p(f'v_add_f32 v{b}, v{b}, v{50+i}')
        for x in rne_keep(b, b): p(x)
        p(f'v_add_f32 v{b}, v{b}, v{54+i}')
        p(f'v_cvt_pk_bf16_f32 v{b}, v{b}, v{b}')
    p(f'buffer_store_short v{GW}, v9, s[{S_OUT}:{S_OUT+3}], s{sT1} offen sc1')
    p(f'buffer_store_short v{GW+8}, v9, s[{S_OUT}:{S_OUT+3}], s{sT1} offen offset:512 sc1')
    p(f'v_cmp_gt_u32 vcc, 128, v{tid}')
    p('s_nop 1')
    p('s_and_saveexec_b64 s[14:15], vcc')
    p(f's_cbranch_execz {name}_x')
    p(f'buffer_store_short v{GW+16}, v9, s[{S_OUT}:{S_OUT+3}], s{sT1} offen offset:1024 sc1')
    p.label(f'{name}_x')
    p('s_mov_b64 exec, s[14:15]')
    p.label(f'{name}_fin')
    p.dump_stamps(12, 101*MiB, 13)
    p.label(f'{name}_tdone')
    nerr = 0
    return nerr
```

```python
from common import *
from gx2 import *
from sched import *
from k1b import w_tile_setup, MF
from lnops import *
WS_FLG = 82*MiB

CTX_FLAGS = 'sc1'
LIM = 0x5d800000
NEGBIG = 0xff800000
opt_idx = [0]
TW, TF, PE = False, False, True
FP = 'pace'
TA = False
LATE1 = True
CODE0 = False
DBL = True
MSUM = True
WARM = 0
KTD = 0
KVLD = ''
KSTF = None
VSTF = 'sc1'
PREFETCH = True

def gen_kf(name='front_kernel', prof=False, opt=()):
    p = P2(); p.prof = prof
    p.lenient = 'nordsA' in opt
    p.dbgmode = 'dbg' in opt
    p.rtmode = 'rt' in opt
    import os as _os
    p.dbgwg = int(_os.environ.get('DBGWG', '48'))
    p.stampset = set(['start', 'phase A done', 'q end', 'attn prologue done', 'L done', 'ctx ready', 'gemm end', 'key out', 'argmax ready', 'ffn atomics done'])
    if 'tr' in opt: p.stampset = set(['start', 'q end', 'pre check', 'kv ok', 'qk0 done', 'attn prologue done', 'L done', 'tail setup', 'ctx pub', 'ctx ready'])
    if 'tl' in opt: p.stampset = set(['start', 'L done', 'ctx ready', 'gemm end', 'signalled', 'partials ready', 'partials loaded', 'key out', 'argmax ready', 'ffn atomics done'])
    put = make_put(p)
    S_WQ, S_XNF, S_KF, S_VF, S_CTX = 16, 20, 24, 28, 32
    sM = 36
    sW, sH, sI = 44, 45, 46
    sT0, sT1, sT2 = 47, 48, 49
    sLW = 50
    sWoff = 51
    sXL, sXS = 52, 53
    sKb, sVb = 54, 55
    sHbase = 56
    sSlotP, sSlotR = 57, 58
    sTL, sTS = 59, 60
    sCnt = 61
    sDd = 62
    sFlag = 63
    sCtx = 64
    sLim = 65
    sScale = 61
    sSel = 4
    vLane16 = 1; vRd = 2; vNinf = 3
    vOffW = 4
    vLPW = 8; vT = 9
    vNeg = 16; vCi = 32; vS = 48; vP = 80; vE = 112; vL = 116; vU = 120
    vCW = 120
    vWF = 48
    vO = 128
    aQ = 0; aK = 64; aV = 96; aX = 128
    O = lambda c, db: vO + 32*c + 4*db
    Sr = lambda sc, kb: vS + 8*sc + 4*kb
    Pr = lambda par, c: vP + 16*par + 4*c
    NSLOT = 5

    S_CKV, S_X, S_DBG = 4, 8, 88
    S_WUK, S_WUV = 36, 40
    S_FL = 68
    sTag = 3
    sXcc = 67; sSame = 66
    sASum = sFlag
    sAoff = sDd; sWr = sCtx; sAr = sLim; sWp = sKb; sAp = sVb; sKst = sSlotP
    vOffA = 16
    vLPA = 20; vCA = 21
    vWK = 32; vWV = 64; vAct = 128
    SPIN = 1 << 16
    p(f's_cmp_ge_u32 s2, 256')
    p(f's_cbranch_scc1 {name}_done')
    p.stamp('start')
    if CODE0 and 'nocode' not in opt:
        p('s_lshr_b32 s14, s2, 3')
        p('s_cmp_ge_u32 s14, 12')
        p(f's_cbranch_scc1 {name}_nocode')
        p('s_getpc_b64 s[76:77]')
        p.label(f'{name}_pc')
        p('s_lshl_b32 s14, s14, 13')
        p('v_lshlrev_b32 v9, 5, v0')
        p('v_add_u32 v9, s14, v9')
        p(f'v_min_u32 v9, code_end_all-{name}_pc-4, v9')
        p('v_and_b32 v9, -4, v9')
        p('global_load_dword v23, v9, s[76:77]')
        p.label(f'{name}_nocode')
    p(f's_load_dwordx2 s[84:85], s[0:1], {ARG["x"]}')
    p(f's_load_dwordx2 s[86:87], s[0:1], {ARG["ckv"]}')
    p(f's_load_dwordx4 s[88:91], s[0:1], {ARG["wuk"]}')
    p(f's_load_dwordx2 s[92:93], s[0:1], {ARG["wq"]}')
    p(f's_load_dwordx4 s[96:99], s[0:1], {ARG["dbg"]}')
    p('s_and_b32 s14, s2, 7')
    p('s_lshr_b32 s15, s2, 3')
    p(f's_lshr_b32 s{sH}, s15, 3')
    p(f's_lshl_b32 s14, s14, 2')
    p(f's_add_u32 s{sH}, s{sH}, s14')
    p(f's_and_b32 s{sI}, s15, 7')
    p('v_lshrrev_b32 v2, 6, v0')
    p('v_and_b32 v0, 63, v0')
    p(f'v_readfirstlane_b32 s{sW}, v2')
    p(f'v_lshlrev_b32 v{vLane16}, 4, v0')
    p(f's_getreg_b32 s{sXcc}, hwreg(HW_REG_XCC_ID, 0, 4)')
    w_tile_setup(p, vOffW, vLPW, vT)
    p(f'v_lshrrev_b32 v{vT}, 3, v0')
    p(f'v_lshlrev_b32 v{vT}, 10, v{vT}')
    p(f'v_lshrrev_b32 v{vT+1}, 4, v0')
    p(f'v_and_b32 v{vT+2}, 7, v0')
    p(f'v_xor_b32 v{vT+2}, v{vT+2}, v{vT+1}')
    p(f'v_lshl_add_u32 v{vOffA}, v{vT+2}, 4, v{vT}')
    p(f'v_xor_b32 v{vT+3}, 4, v{vT+2}')
    p(f'v_lshl_add_u32 v{vOffA+1}, v{vT+3}, 4, v{vT}')
    p(f'v_add_u32 v{vOffA+2}, {2*7168}, v{vOffA}')
    p(f'v_add_u32 v{vOffA+3}, {3*7168}, v{vOffA+1}')
    p(f'v_add_u32 v{vOffA+1}, {1*7168}, v{vOffA+1}')
    p(f'v_and_b32 v{vT}, 15, v0')
    p(f'v_bfe_u32 v{vT+1}, v0, 1, 3')
    p(f'v_lshrrev_b32 v{vT+2}, 4, v0')
    p(f'v_xor_b32 v{vT+1}, v{vT+1}, v{vT+2}')
    p(f'v_lshlrev_b32 v{vT}, 7, v{vT}')
    p(f'v_lshl_add_u32 v{vLPA}, v{vT+1}, 4, v{vT}')
    p(f's_lshl_b32 s{sLW}, s{sW}, 12')
    p(f's_lshl_b32 s{sWoff}, s{sW}, 17')
    p(f's_lshl_b32 s{sT1}, s{sH}, 8')
    p(f's_add_u32 s{sWoff}, s{sWoff}, s{sT1}')
    p(f's_lshl_b32 s{sT0}, s{sI}, 8')
    p(f's_lshl_b32 s{sT1}, s{sW}, 6')
    p(f's_add_u32 s{sT0}, s{sT0}, s{sT1}')
    p(f's_lshl_b32 s{sAoff}, s{sT0}, 10')
    sK0 = sXL; sLA = sXS
    p(f's_lshl_b32 s{sHbase}, s{sH}, 6')
    p(f's_lshr_b32 s{sT1}, s{sT0}, 5')
    p(f's_add_u32 s{sHbase}, s{sHbase}, s{sT1}')
    p(f's_lshl_b32 s{sHbase}, s{sHbase}, 13')
    p(f's_lshl_b32 s{sLA}, s{sW}, 13')
    p('s_waitcnt lgkmcnt(0)')
    srd(p, S_CKV, 86, 2048*512*2)
    srd(p, S_WUK, 88, 512*4096*2)
    srd(p, S_WUV, 90, 512*4096*2)
    SL = 16384
    ACT0 = 98304
    def emit(L):
        prev = None
        for it in L:
            if it[0] == 'm' and prev is not None and prev[0] == 's' and ' m0,' in prev[1]: put(('s', 's_nop 0'))
            put(it); prev = it
    def dmaW_static(st):
        base = (st % 3)*32768; L = []
        for mi, sr in enumerate((S_WUK, S_WUV)):
            L += [('s', f's_add_u32 s{sT0}, s{sWoff}, {st*64*8192}'), ('s', f's_add_u32 m0, s{sLW}, {base + mi*SL}')]
            for i in range(4): L.append(('m', f'buffer_load_dwordx4 v{vOffW+i}, s[{sr}:{sr+3}], s{sT0} offen offset:{1024*i} lds', f'W{st}', ('W', base + mi*SL, base + (mi+1)*SL, True)))
        return L
    def dmaA_static(st, adj=0):
        base = ACT0 + (st % 2)*32768; L = []
        for half in range(2):
            L += [('s', f's_add_u32 s{sT1}, s{sAoff}, {(st*128 + 32768*half + adj) & 0xffffffff}'), ('s', f's_add_u32 m0, s{sLA}, {base + 4096*half}')]
            for i in range(4): L.append(('m', f'buffer_load_dwordx4 v{vOffA+i}, s[{S_CKV}:{S_CKV+3}], s{sT1} offen offset:{1024*i} lds', f'A{st}', ('W', base, base + 32768, False)))
        return L
    if 'pp' in opt: p.stamp('setup')
    emit(dmaA_static(0)); emit(dmaW_static(0))
    if 'pp' in opt: p.stamp('A0W0 issued')
    srd(p, S_X, 84, 2048*640*2)
    srd(p, S_WQ, 92, 640*4096*2)
    srd(p, S_XNF, 98, SZ_XNF, WS_XNF)
    srd(p, S_KF, 98, SZ_KF, WS_KF)
    srd(p, S_VF, 98, SZ_KF, WS_VF)
    srd(p, S_CTX, 98, SZ_CTX, WS_CTX)
    srd(p, S_FL, 98, 8192, WS_FLG)
    X = 160; RAW = 200; vXo = 220; vXn = 221; LT = 224
    p(f's_lshl_b32 s{sT1}, s2, 3')
    p(f's_and_b32 s14, s{sW}, 1')
    p(f's_lshl_b32 s14, s14, 2')
    p(f's_add_u32 s{sT1}, s{sT1}, s14')
    p(f'v_and_b32 v{vT}, 3, v0')
    p(f'v_add_u32 v{vT}, s{sT1}, v{vT}')
    p(f'v_lshrrev_b32 v{vT+1}, 2, v0')
    p(f'v_mul_u32_u24 v{vXo}, 1280, v{vT}')
    p(f'v_lshl_add_u32 v{vXo}, v{vT+1}, 4, v{vXo}')
    p(f'v_lshrrev_b32 v{vXn}, 4, v{vT}')
    p(f'v_mul_u32_u24 v{vXn}, 20, v{vXn}')
    p(f'v_lshrrev_b32 v{vT+2}, 2, v{vT+1}')
    p(f'v_add_u32 v{vXn}, v{vXn}, v{vT+2}')
    p(f'v_lshlrev_b32 v{vXn}, 10, v{vXn}')
    p(f'v_and_b32 v{vT+2}, 3, v{vT+1}')
    p(f'v_lshlrev_b32 v{vT+2}, 4, v{vT+2}')
    p(f'v_and_b32 v{vT+3}, 15, v{vT}')
    p(f'v_add_u32 v{vT+2}, v{vT+2}, v{vT+3}')
    p(f'v_lshl_add_u32 v{vXn}, v{vT+2}, 4, v{vXn}')
    for i in range(5):
        p(f'buffer_load_dwordx4 v[{RAW+4*i}:{RAW+4*i+3}], v{vXo}, s[{S_X}:{S_X+3}], 0 offen offset:{256*i}')
    S_LNS = 96
    if WARM:
        p('s_lshr_b32 s14, s2, 3')
        p('s_lshl_b32 s14, s14, 2')
        p(f's_add_u32 s14, s14, s{sW}')
        p('s_lshl_b32 s15, s14, 14')
        p(f'v_lshlrev_b32 v{vT}, 7, v0')
        p(f'buffer_load_dword v23, v{vT}, s[{S_CKV}:{S_CKV+3}], s15 offen')
        p('s_add_u32 s15, s15, 8192')
        p(f'buffer_load_dword v23, v{vT}, s[{S_CKV}:{S_CKV+3}], s15 offen')
        if WARM > 1:
            p(f's_lshl_b32 s14, s{sI}, 2')
            p(f's_add_u32 s14, s14, s{sW}')
            p('s_lshl_b32 s14, s14, 17')
            p(f's_lshl_b32 s15, s{sH}, 8')
            p('s_add_u32 s14, s14, s15')
            p(f'v_bfe_u32 v{vT}, v0, 1, 4')
            p(f'v_lshlrev_b32 v{vT}, 13, v{vT}')
            p(f'v_and_b32 v{vT+1}, 1, v0')
            p(f'v_lshl_add_u32 v{vT}, v{vT+1}, 7, v{vT}')
            p(f'buffer_load_dword v23, v{vT}, s[{S_WUK}:{S_WUK+3}], s14 offen')
            p(f'buffer_load_dword v23, v{vT}, s[{S_WUV}:{S_WUV+3}], s14 offen')
    if not CODE0:
        if 'nocode' not in opt:
            p(f's_lshr_b32 s14, s2, 3')
            p(f's_cmp_ge_u32 s14, 12')
            p(f's_cbranch_scc1 {name}_nocode')
            p(f's_cmp_lg_u32 s{sW}, 3')
            p(f's_cbranch_scc1 {name}_nocode')
            p('s_getpc_b64 s[76:77]')
            p.label(f'{name}_pc')
            p(f's_lshl_b32 s14, s14, 13')
            p(f'v_lshlrev_b32 v{vT}, 7, v0')
            p(f'v_add_u32 v{vT}, s14, v{vT}')
            p(f'v_min_u32 v{vT}, code_end_all-{name}_pc-4, v{vT}')
            p(f'v_and_b32 v{vT}, -4, v{vT}')
            p(f'global_load_dword v{vT+2}, v{vT}, s[76:77]')
            p.label(f'{name}_nocode')
    if 'tlb' in opt:
        p('s_mov_b32 s76, s98'); p('s_mov_b32 s77, s99'); p(f's_mov_b32 s78, {96*MiB}'); p('s_mov_b32 s79, 0x00020000')
        p(f'v_mov_b32 v{vT}, {WS_FLG}')
        p(f's_add_u32 s14, s{sHbase}, {WS_KF}'); p(f'v_writelane_b32 v{vT}, s14, 1')
        p(f's_add_u32 s14, s{sHbase}, {WS_VF}'); p(f'v_writelane_b32 v{vT}, s14, 2')
        p(f's_lshl_b32 s15, s{sH}, 19')
        for k in range(2):
            p(f's_add_u32 s14, s15, {WS_KF + k*524160}'); p(f'v_writelane_b32 v{vT}, s14, {3 + 2*k}')
            p(f's_add_u32 s14, s15, {WS_VF + k*524160}'); p(f'v_writelane_b32 v{vT}, s14, {4 + 2*k}')
        p(f's_mov_b32 s14, {WS_XNF}'); p(f'v_writelane_b32 v{vT}, s14, 7')
        p(f's_mov_b32 s14, {WS_XNF + 2*MiB}'); p(f'v_writelane_b32 v{vT}, s14, 8')
        p(f's_sub_u32 s14, 15, s{sI}'); p('s_lshl_b32 s14, s14, 20'); p(f's_add_u32 s14, s14, {WS_CTX}'); p(f'v_writelane_b32 v{vT}, s14, 9')
        p(f's_lshl_b32 s14, s{sI}, 20'); p(f's_add_u32 s14, s14, {WS_CTX}'); p(f'v_writelane_b32 v{vT}, s14, 10')
        p(f'buffer_load_dword v{vT+2}, v{vT}, s[76:79], 0 offen')
    if 'pp' in opt: p.stamp('x issued')
    srd(p, S_DBG, 96, 256)
    p('v_mov_b32 v26, 0')
    p('s_or_b32 s14, s2, 0')
    p(f's_add_u32 s14, s2, s{sW}')
    p('s_cmp_lg_u32 s14, 0')
    p(f's_cbranch_scc1 {name}_notag')
    p('s_memrealtime s[92:93]')
    p('s_waitcnt lgkmcnt(0)')
    p('s_or_b32 s92, s92, 1')
    p('v_mov_b32 v24, s92')
    p(f'buffer_store_dword v24, v26, s[{S_DBG}:{S_DBG+3}], 0 offen sc1')
    p.label(f'{name}_notag')
    if 'pp' in opt: p.stamp('tag issued')
    if not LATE1:
        emit(dmaA_static(1)); emit(dmaW_static(1))
    (p.stamp('dma issued') if 'pq' not in opt else None)
    p('s_cmp_lg_u32 s2, 0')
    p(f's_cbranch_scc1 {name}_nz')
    p(f's_add_u32 s76, s98, {WS_YACC}')
    p('s_addc_u32 s77, s99, 0')
    p(f's_mov_b32 s78, {SZ_ZERO}')
    p('s_mov_b32 s79, 0x00020000')
    for r in range(4): p(f'v_mov_b32 v{28+r}, 0')
    p(f's_mul_i32 s14, s{sW}, 7168')
    for i in range(7):
        p(f'buffer_store_dwordx4 v[28:31], v{vLane16}, s[76:79], s14 offen sc1')
        p(f's_add_u32 s14, s14, 1024')
    p.label(f'{name}_nz')
    p(f's_add_u32 s96, s98, {WS_XNF}')
    p('s_addc_u32 s97, s99, 0')
    p(f's_mov_b32 s98, {SZ_XNF}')
    p('s_mov_b32 s99, 0x00020000')
    p(f's_cmp_lt_u32 s{sW}, 2')
    p('s_cselect_b32 s98, s98, 0')
    p('s_waitcnt vmcnt(0)' if LATE1 else 's_waitcnt vmcnt(16)')
    p('s_barrier')
    (p.stamp('B0') if 'pq' not in opt else None)
    def rd_act(buf, kin, tb, lab):
        r = vAct + 16*buf + 4*tb
        return ('r', f'ds_read_b128 v[{r}:{r+3}], v{vCA+kin} offset:{2048*tb}', lab)
    def rd_wA(mi, db, kin, lab):
        r = (vWK if mi == 0 else vWV) + 4*db
        return [('r', f'ds_read_b64_tr_b16 v[{r+2*h}:{r+2*h+1}], v{vCW+db} offset:{mi*SL + 8192*kin + 1024*h}', lab) for h in range(2)]
    updA = [('v', f'v_add_u32 v{vCA}, s{sAr}, v{vLPA}'), ('v', f'v_xor_b32 v{vCA+1}, 64, v{vCA}')]
    updWd = [('v', f'v_add_u32 v{vCW}, s{sWr}, v{vLPW}')] + [('v', f'v_xor_b32 v{vCW+db}, {db*32}, v{vCW}') for db in range(1, 8)]
    KA = lambda tb, db: (tb*8 + db)*4
    VA = lambda tb, db: 128 + ((tb >> 1)*16 + db*2 + (tb & 1))*4
    def stageA_mfmas(first):
        L = []
        for kin in range(2):
            for db in range(8):
                for tb in range(4):
                    a = KA(tb, db); f = vAct + 16*kin + 4*tb
                    c = '0' if (first and kin == 0) else f'a[{a}:{a+3}]'
                    L.append(f'{MF} a[{a}:{a+3}], v[{vWK+4*db}:{vWK+4*db+3}], v[{f}:{f+3}], {c}')
                for tb in range(4):
                    a = VA(tb, db); f = vAct + 16*kin + 4*tb
                    c = '0' if (first and kin == 0) else f'a[{a}:{a+3}]'
                    L.append(f'{MF} a[{a}:{a+3}], v[{f}:{f+3}], v[{vWV+4*db}:{vWV+4*db+3}], {c}')
        return L
    GA = lambda kin, db, m: kin*64 + db*8 + m
    def spread(R, L, g0, g1):
        nm = sum(1 for x in L if x[0] in ('m', 'l', 'st'))
        step = max(1, (g1 - g0) // max(nm, 1))
        g = g0; cnt = 0; prev = None
        for it in L:
            e = max(g, g0 + cnt*step - (2 if it[0] == 's' else 0))
            if it[0] == 'm' and prev is not None and prev[0] == 's' and ' m0,' in prev[1]: e = max(e, gprev + 1)
            g = R.place(it, e, g1); gprev = g; prev = it
            if it[0] in ('m', 'l', 'st'): cnt += 1; g += 1
    def stageA(kind, dmaA_items, dmaB_items, barlabs, next_reads=None, mid=None, first=False, bend=None):
        R = Region(stageA_mfmas(first))
        BG = GA(1, 0, 7)
        R.S[BG].append(('bar', barlabs))
        if mid: R.S[BG].extend(mid)
        if next_reads is None:
            R.S[GA(1, 0, 1)].append(('s', f's_add_u32 s{sWr}, s{sWr}, 32768'))
            R.S[GA(1, 0, 2)].append(('s', f's_cmp_ge_u32 s{sWr}, 98304\ns_cselect_b32 s{sWr}, 0, s{sWr}'))
            R.S[GA(1, 0, 3)].append(('s', f's_sub_u32 s{sAr}, s{sASum}, s{sAr}'))
            R.stream(updA + updWd, GA(1, 0, 4), GA(1, 2, 0))
        else:
            R.stream(next_reads[0], GA(1, 0, 4), GA(1, 2, 0))
        for kin in range(2):
            for db in range(8):
                for mi in range(2):
                    if kin == 0 and db == 0 and mi == 0: continue
                    labs = [f'w{kin}_{mi}_{db}'] + ([f'act{kin}'] if (db == 0 and mi == 0) else [])
                    R.place(('wlg', labs), GA(kin, db, 4*mi) - 1, force=True)
        for db in range(8):
            for mi in range(2):
                rr = rd_wA(mi, db, 1, f'w1_{mi}_{db}')
                e = GA(0, db, 4*mi + 3)
                g = R.place(rr[0], e, GA(1, 0, 0)); R.place(rr[1], min(g + 1, GA(1, 0, 0)), GA(1, 0, 0))
        for tb in range(4): R.place(rd_act(1, 1, tb, 'act1'), GA(0, 1, 1) + 5*tb)
        if next_reads is None:
            for db in range(8):
                for mi in range(2):
                    rr = rd_wA(mi, db, 0, f'n0_{mi}_{db}')
                    e = max(GA(1, db, 4*mi + 3), GA(1, 2, 1))
                    g = R.place(rr[0], e); R.place(rr[1], g + 1)
            for tb in range(4): R.place(rd_act(0, 0, tb, 'nact0'), GA(1, 2, 2) + 5*tb)
        else:
            for (it, e) in next_reads[1]: R.place(it, max(e, GA(1, 2, 1)))
        if 'nodmaA' in opt and kind in ('s0', 's1', 'loop'): dmaA_items = [x for x in dmaA_items if x[0] != 'm']; dmaB_items = [x for x in dmaB_items if x[0] != 'm']
        if 'nowA' in opt and kind in ('s0', 's1', 'loop'):
            for g in range(R.n): R.S[g] = [x for x in R.S[g] if x[0] != 'wlg']
        if 'nordsA' in opt and kind in ('s0', 's1', 'loop'):
            for g in range(R.n): R.M[g] = []; R.S[g] = [x for x in R.S[g] if x[0] != 'wlg']
        spread(R, dmaA_items, 1, BG - 2)
        spread(R, dmaB_items, BG + 1, bend if bend else R.n - 2)
        return R
    def dyn_dmaW():
        L = []
        for mi, sr in enumerate((S_WUK, S_WUV)):
            L += [('s', f's_add_u32 m0, s{sWp}, {mi*SL}')]
            for i in range(4): L.append(('m', f'buffer_load_dwordx4 v{vOffW+i}, s[{sr}:{sr+3}], s{sKst} offen offset:{1024*i} lds', 'Wn', None))
        L += [('s', f's_add_u32 s{sKst}, s{sKst}, {64*8192}'), ('s', f's_add_u32 s{sWp}, s{sWp}, 32768'),
              ('s', f's_cmp_ge_u32 s{sWp}, 98304\ns_cselect_b32 s{sWp}, s{sLW}, s{sWp}')]
        return L
    def dyn_dmaA():
        L = []
        for half in range(2):
            L += [('s', f's_add_u32 s{sT1}, s{sAoff}, {32768*half}'), ('s', f's_add_u32 m0, s{sAp}, {4096*half}')]
            for i in range(4): L.append(('m', f'buffer_load_dwordx4 v{vOffA+i}, s[{S_CKV}:{S_CKV+3}], s{sT1} offen offset:{1024*i} lds', 'An', None))
        L += [('s', f's_add_u32 s{sAoff}, s{sAoff}, 128'), ('s', f's_sub_u32 s{sAp}, s{sASum}, s{sAp}')]
        if TA: L.append(('l', f'buffer_load_dword v31, v30, s[{S_CKV}:{S_CKV+3}], s{sAoff} offen', 'TCH'))
        return L
    p('v_lshlrev_b32 v30, 10, v0')
    p(f's_mov_b32 s{sWr}, 0')
    p(f's_add_u32 s{sAr}, s{sLA}, {ACT0}')
    p(f's_add_u32 s{sWp}, s{sLW}, 65536')
    p(f's_add_u32 s{sAp}, s{sLA}, {ACT0}')
    p(f's_lshl_b32 s{sASum}, s{sAp}, 1')
    p(f's_add_u32 s{sASum}, s{sASum}, 32768')
    p(f's_add_u32 s{sKst}, s{sWoff}, {2*64*8192}')
    p(f's_add_u32 s{sAoff}, s{sAoff}, 256')
    emit(updA + updWd)
    p.lgq = []; p.lg_ret = -1
    for tb in range(4): put(rd_act(0, 0, tb, 'act0'))
    for db in range(8):
        for mi in range(2): emit(rd_wA(mi, db, 0, f'w0_{mi}_{db}'))
    def next_order(R):
        L = []
        for g in range(R.n):
            for it in R.M[g]:
                if it[0] == 'r' and (it[2].startswith('n0_') or it[2] == 'nact0'):
                    L.append('act0' if it[2] == 'nact0' else 'w0_' + it[2][3:])
        return L
    order = [None]
    def relabel():
        p.lgq = list(order[0]); p.lg_ret = -1
    def bar_raw(n):
        if 'nobarA' in opt: return ('w', f's_waitcnt vmcnt({n}) lgkmcnt(0)')
        return ('w', f's_waitcnt vmcnt({n}) lgkmcnt(0)\ns_barrier')
    BG = GA(1, 0, 7)
    def fix_bar(R, n, extra=()):
        R.S[BG] = [bar_raw(n), ('call', lambda: p.lg_all())] + list(extra) + [x for x in R.S[BG] if x[0] != 'bar']
    def red64x4(r):
        L = []
        for sh in (8, 4): L += ['s_nop 1', f'v_add_f32_dpp v{r}, v{r}, v{r} row_ror:{sh} row_mask:0xf bank_mask:0xf']
        for sw in ('v_permlane16_swap_b32', 'v_permlane32_swap_b32'):
            L += [f'v_mov_b32 v{LT+6}, v{r}', 's_nop 1', f'{sw} v{r}, v{LT+6}', 's_nop 1', f'v_add_f32 v{r}, v{r}, v{LT+6}']
        return L
    lnops = []
    for i in range(5): lnops += unpack8(RAW + 4*i, X + 8*i)
    lnops += ln_stream(X, 40, LT, red64x4, scale='0x3e0293ee')
    ln = [('v', x) for x in lnops]
    for i in range(5):
        ln.append(('s', f's_mov_b32 s14, {4096*i}'))
        ln.append(('st', f'buffer_store_dwordx4 v[{X+4*i}:{X+4*i+3}], v{vXn}, s[{S_LNS}:{S_LNS+3}], s14 offen sc1'))
    half = len(ln) // 2
    def tag_read():
        p('s_mov_b32 s14, 0')
        p.label(f'{name}_tagpoll')
        p(f'v_readfirstlane_b32 s{sTag}, v24')
        p('s_add_u32 s14, s14, 1')
        p('s_nop 2')
        p(f's_cmp_lg_u32 s{sTag}, 0')
        p(f's_cbranch_scc1 {name}_notag2')
        p(f's_cmp_ge_u32 s14, {SPIN}')
        p(f's_cbranch_scc1 {name}_notag2')
        p(f'buffer_load_dword v24, v26, s[{S_DBG}:{S_DBG+3}], 0 offen sc1')
        p('s_waitcnt vmcnt(0)')
        p(f's_branch {name}_tagpoll')
        p.label(f'{name}_notag2')
    def pub_ln():
        p(f's_cmp_lg_u32 s{sCnt}, {1 if TA else 0}')
        p(f's_cbranch_scc1 {name}_nopub')
        p(f's_cmp_lg_u32 s{sW}, 0')
        p(f's_cbranch_scc1 {name}_nopub')
        p(f's_lshl_b32 s14, s2, 3')
        p(f'v_mov_b32 v24, s{sTag}')
        p(f'v_mov_b32 v25, s{sXcc}')
        p('v_mov_b32 v26, 0')
        p(f'buffer_store_dwordx2 v[24:25], v26, s[{S_FL}:{S_FL+3}], s14 offen sc1')
        p.label(f'{name}_nopub')
    R0 = stageA('s0', (dmaA_static(1, -256) + dmaW_static(1) if LATE1 else []) + dyn_dmaW(), dyn_dmaA(), None, first=True, bend=BG + 34)
    fix_bar(R0, 8)
    R0.place(('l', f'buffer_load_dword v24, v26, s[{S_DBG}:{S_DBG+3}], 0 offen sc1', 'TAG'), BG + 1, force=True)
    R0.period = 20; R0.stream(ln[:half], 4, None, pace=lambda k: 4 + (k*120)//half); R0.period = 16
    p.lgq = ['act0']*4 + [f'w0_{mi}_{db}' for db in range(8) for mi in range(2) for _ in range(2)]; p.lg_ret = -1
    put(('wlg', ['w0_0_0', 'act0']))
    R0.emit(p, put); order[0] = next_order(R0)
    R1_ = stageA('s1', dyn_dmaW(), dyn_dmaA(), None, bend=BG + 34)
    fix_bar(R1_, 9 if TA else 8, [('call', tag_read)])
    nv = [x for x in ln[half:] if x[0] == 'v']; tail = ln[half + len(nv):]
    R1_.period = 20; g = R1_.stream(ln[half:], 0, None, pace=lambda k: min((k*118)//(len(ln) - half), 200) if ln[half + k][0] == 'v' else BG + 2); R1_.period = 16
    relabel(); put(('wlg', ['w0_0_0', 'act0']))
    R1_.emit(p, put); order[0] = next_order(R1_)
    print('stage0/1 est', R0.total(), R1_.total())
    if 'ps' in opt: p.stamp('stage1 done')
    p(f's_mov_b32 s{sCnt}, 0')
    LA = f'{name}_stageA'
    p.label(LA)
    Rl = stageA('loop', dyn_dmaW(), dyn_dmaA(), None, bend=BG + 34)
    fix_bar(Rl, 9 if TA else 8, [('call', pub_ln)])
    Rl.T[Rl.n - 1] += [('s', f's_add_u32 s{sCnt}, s{sCnt}, 1'), ('s', f's_cmp_lt_u32 s{sCnt}, 4')]
    assert 'nordsA' in opt or next_order(Rl) == order[0], 'stage read order must be periodic'
    relabel()
    put(('wlg', ['w0_0_0', 'act0']))
    Rl.emit(p, put)
    print('stageA loop est', Rl.total(), 'overflow', Rl.over)
    p(f's_cbranch_scc1 {LA}')
    if 'pp' not in opt: (p.stamp('A loop done') if 'pq' not in opt else None)
    def dma_wq(c):
        L = [('s', f's_add_u32 s{sT0}, s{sWoff}, {c*64*8192}'), ('s', f's_add_u32 m0, s{sLW}, {c*SL}')]
        for i in range(4):
            L.append(('m', f'buffer_load_dwordx4 v{vOffW+i}, s[{S_WQ}:{S_WQ+3}], s{sT0} offen offset:{1024*i} lds', f'WQ{c}', None))
        return L
    relabel()
    put(('wlg', ['w0_0_0', 'act0']))
    flagld = [('s', f's_sub_u32 s{sTL}, 15, s{sI}'), ('s', f's_mov_b32 s{sTS}, s{sI}'),
              ('v', f'v_and_b32 v24, 15, v0'), ('v', f'v_bfe_u32 v25, v0, 4, 1'),
              ('v', f'v_mov_b32 v26, s{sTL}'), ('v', f'v_mov_b32 v27, s{sTS}'),
              ('v', f'v_cmp_eq_u32 vcc, 0, v25'), ('v', 's_nop 1'), ('v', f'v_cndmask_b32 v26, v27, v26, vcc'),
              ('v', f'v_lshl_add_u32 v24, v26, 4, v24'),
              ('s', f's_and_b32 s14, s{sH}, 3'), ('s', f's_lshl_b32 s14, s14, 6'), ('s', f's_lshr_b32 s15, s{sH}, 2'), ('s', f's_add_u32 s14, s14, s15'),
              ('v', f'v_and_b32 v25, 7, v0'), ('v', f'v_lshlrev_b32 v25, 3, v25'), ('v', f'v_add_u32 v25, s14, v25'),
              ('v', f'v_cmp_gt_u32 vcc, 32, v0'), ('v', 's_nop 1'), ('v', f'v_cndmask_b32 v24, v25, v24, vcc'),
              ('v', f'v_lshlrev_b32 v24, 3, v24'),
              ('l', f'buffer_load_dwordx2 v[28:29], v24, s[{S_FL}:{S_FL+3}], 0 offen sc1', 'FL')]
    R6 = stageA('s6', dma_wq(4) + dma_wq(5), dma_wq(0) + dma_wq(1), None)
    fix_bar(R6, 9 if TA else 8)
    R6.stream(flagld, BG + 24)
    R6.emit(p, put)
    order[0] = next_order(R6)
    XR = [16, 96, 32, 80]
    XRING = [('v', 16), ('v', 96), ('v', 32), ('v', 80), ('a', 0), ('a', 16), ('a', 32), ('a', 48)]
    def xreg(ks, c):
        t, b = XRING[ks % 8]
        return f'{t}[{b+4*c}:{b+4*c+3}]'
    def xn_load(ks):
        L = []
        for c in range(4):
            off = ks*1024 + (c & 1)*20480
            sb = sXL if c < 2 else sXS
            L.append(('s', f's_add_u32 s{sT1}, s{sb}, {off & ~4095}'))
            L.append(('l', f'buffer_load_dwordx4 {xreg(ks, c)}, v{vLane16}, s[{S_XNF}:{S_XNF+3}], s{sT1} offen offset:{off & 4095} sc1', f'XN{ks}'))
        return L
    def rd_w(db, kin, base, lab):
        r = vWF + 4*db
        return [('r', f'ds_read_b64_tr_b16 v[{r+2*h}:{r+2*h+1}], v{vCW+db} offset:{8192*kin + 1024*h}', lab, None) for h in range(2)]
    def upd_w(base):
        return [('v', f'v_add_u32 v{vCW}, {base}, v{vLPW}')] + [('v', f'v_xor_b32 v{vCW+db}, {db*32}, v{vCW}') for db in range(1, 8)]
    def lncheck():
        p(f's_cmp_lg_u32 s{sW}, 0')
        p(f's_cbranch_scc1 {name}_lnok')
        p('s_mov_b32 s14, 0')
        p.label(f'{name}_lnpoll')
        p(f'v_cmp_ne_u32 vcc, s{sTag}, v28')
        p('s_add_u32 s14, s14, 1')
        p(f's_cbranch_vccz {name}_lnok2')
        p(f's_cmp_ge_u32 s14, {SPIN}')
        p(f's_cbranch_scc1 {name}_lnok2')
        p(f'buffer_load_dwordx2 v[28:29], v24, s[{S_FL}:{S_FL+3}], 0 offen sc1')
        p('s_waitcnt vmcnt(0)')
        p(f's_branch {name}_lnpoll')
        p.label(f'{name}_lnok2')
        p(f'v_cmp_ne_u32 vcc, s{sXcc}, v29')
        p('s_nop 1')
        p('s_lshr_b64 s[14:15], vcc, 32')
        p('s_cmp_eq_u64 s[14:15], 0')
        p(f's_cselect_b32 s{sSame}, 1, 0')
        p.label(f'{name}_lnok')
    relabel()
    put(('wlg', ['w0_0_0', 'act0']))
    xset = [('s', f's_lshl_b32 s{sT1}, s{sTL}, 3'), ('s', f's_lshl_b32 s{sT0}, s{sW}, 1'), ('s', f's_add_u32 s{sT1}, s{sT1}, s{sT0}'),
            ('s', f's_mul_i32 s{sXL}, s{sT1}, 20480'), ('s', f's_lshl_b32 s{sT1}, s{sTS}, 3'), ('s', f's_add_u32 s{sT1}, s{sT1}, s{sT0}'),
            ('s', f's_mul_i32 s{sXS}, s{sT1}, 20480')]
    def last_use(db):
        r = vWF + 4*db
        if r < 64: return GA(1, (r - vWK)//4, 3)
        return GA(1, (r - vWV)//4, 7)
    nr = []
    for db in range(8):
        for it in rd_w(db, 0, 0, f'w0_{db}'): nr.append((it, last_use(db) + 1))
    R7 = stageA('s7', xset + dma_wq(6) + dma_wq(7), dma_wq(2) + dma_wq(3) + dma_wq(8) + dma_wq(9), None, next_reads=(upd_w(0), nr))
    R7.S[BG] = [('call', lambda: (p('s_waitcnt vmcnt(8) lgkmcnt(0)'), p.lg_all(), lncheck(), p('s_barrier')))] + [x for x in R7.S[BG] if x[0] != 'bar']
    R7.stream(xn_load(0) + xn_load(1), BG + 2)
    R7.stream(xn_load(2), GA(1, 4, 0))
    R7.emit(p, put)
    if 'pp' not in opt: p.stamp('phase A done')
    NKS = 20
    mf = []
    for ks in range(NKS):
        for db in range(8):
            for c in range(4):
                acc = O(c, db)
                cc = '0' if ks == 0 else f'v[{acc}:{acc+3}]'
                mf.append(f'{MF} v[{acc}:{acc+3}], v[{vWF+4*db}:{vWF+4*db+3}], {xreg(ks, c)}, {cc}')
    R = Region(mf)
    G = lambda ks, db, c: ks*32 + db*4 + c
    p.wait_vm('XN0')
    put(('wlg', ['w0_0', 'w0_1']))
    R.S[G(3, 0, 3)].append(('bar', ['WQ2', 'WQ3', 'WQ8', 'WQ9', 'WQ4', 'WQ5', 'WQ6', 'WQ7']))
    for ch in range(9):
        R.stream(upd_w((ch + 1)*SL), G(2*ch + 1, 0, 1), G(2*ch + 1, 2, 0))
    for ks in range(NKS):
        for db in range(0, 8, 2):
            if ks == 0 and db == 0: continue
            R.place(('wlg', [f'w{ks}_{db}', f'w{ks}_{db+1}']), G(ks, db, 0) - 1, force=True)
        if ks: R.place(('wvm', f'XN{ks}'), G(ks, 0, 0) - 2, force=True)
    for ks in range(NKS - 1):
        ch, t = divmod(ks, 2); nxt = ks + 1; nch, nt = divmod(nxt, 2)
        for db in range(8):
            e = G(ks, db, 3)
            if t == 1: e = max(e, G(ks, 2, 1))
            rr = rd_w(db, nt, nch*SL, f'w{nxt}_{db}')
            lat = G(ks + 1, 0, 0) if t == 0 else None
            g = R.place(rr[0], e, lat); R.place(rr[1], g + 1 if t == 1 or db < 7 else g, lat)
    TE = 112
    STF = ''
    for o_ in opt:
        if o_.startswith('stf='): STF = o_[4:]
    sSt = sCtx
    epi = []
    sStB = sHbase
    for kind in range(2):
        for f in range(16):
            if kind == 0:
                tb, k4 = divmod(f, 4); a0 = KA(tb, 2*k4); off = tb*4096 + k4*1024; sr = S_KF
            else:
                b, db = divmod(f, 8); a0 = 128 + (b*16 + db*2)*4; off = b*8192 + db*1024; sr = S_VF
            for k in range(8): epi.append(('v', f'v_accvgpr_read_b32 v{TE+k}, a{a0+k}'))
            for k in range(4): epi.append(('v', f'v_cvt_pk_bf16_f32 v{TE+k}, v{TE+2*k}, v{TE+2*k+1}'))
            epi.append(('s', f's_add_u32 s{sSt}, s{sStB}, {off & ~4095}'))
            epi.append(('st', f'buffer_store_dwordx4 v[{TE}:{TE+3}], v{vLane16}, s[{sr}:{sr+3}], s{sSt} offen offset:{off & 4095} {(KSTF if (kind == 0 and KSTF is not None) else (VSTF if (kind == 1 and VSTF is not None) else STF))}'))
            if 'nost' in opt: epi.pop()
            epi.append(('s', 's_nop 0'))
    KS_V = int(next((o_[3:] for o_ in opt if o_.startswith('kv=')), '19'))
    g0 = 12; span = G(KS_V, 4, 0) - g0
    gl = R.stream(epi, g0, None, pace=lambda k: g0 + (k*span)//len(epi))
    freed = {}
    for g in range(R.n):
        for it in R.V[g]:
            if it[1].startswith('v_accvgpr_read'): freed[int(it[1].split(' a')[-1])] = g
    gprev = 0
    for ks in range(3, NKS):
        t, b = XRING[ks % 8]
        if t == 'a' and ks < 8: e = max(freed[r] for r in range(b, b + 16)) + 1
        elif ks >= 8: e = G(ks - 8, 7, 3) + 1
        else: e = 0
        e = max(e, gprev + 1, G(max(ks - 7, 0), 0, 0))
        lat = G(ks, 0, 0) - 40 if ks > 3 else G(1, 0, 0)
        gprev = R.stream(xn_load(ks), e, max(lat, e + 8))
    FK, FV = 4096, 5120
    def publish(off, lab, waitlabel):
        p.wait_vm(waitlabel)
        p('s_barrier')
        p(f's_cmp_lg_u32 s{sW}, 0')
        p(f's_cbranch_scc1 {name}_{lab}pub')
        p(f's_lshl_b32 s14, s{sH}, 3')
        p(f's_add_u32 s14, s14, s{sI}')
        p(f's_lshl_b32 s14, s14, 2')
        p(f's_add_u32 s14, s14, {off}')
        p(f'v_mov_b32 v12, s{sTag}')
        p('v_mov_b32 v13, 0')
        p(f's_cmp_eq_u32 s{sSame}, 1')
        p(f's_cbranch_scc1 {name}_{lab}rel')
        p('buffer_wbl2 sc1')
        p('s_waitcnt vmcnt(0)')
        p(f'buffer_store_dword v12, v13, s[{S_FL}:{S_FL+3}], s14 offen sc1')
        p(f's_branch {name}_{lab}pub')
        p.label(f'{name}_{lab}rel')
        p(f'buffer_store_dword v12, v13, s[{S_FL}:{S_FL+3}], s14 offen')
        p.label(f'{name}_{lab}pub')
    def flag_load(off, lab):
        return [('s', f's_lshl_b32 s15, s{sH}, 5'), ('s', f's_add_u32 s15, s15, {off}'),
                ('v', 'v_and_b32 v13, 7, v0'), ('v', 'v_lshlrev_b32 v13, 2, v13'),
                ('l', f'buffer_load_dword v12, v13, s[{S_FL}:{S_FL+3}], s15 offen sc1', lab)]
    def check(lab, waitlabel):
        p.wait_vm(waitlabel, 'lgkmcnt(0)'); p.lg_all()
        p(f's_cmp_lg_u32 s{sW}, 0')
        p(f's_cbranch_scc1 {name}_{lab}ok')
        p('s_mov_b32 s14, 0')
        p.label(f'{name}_{lab}poll')
        p(f'v_cmp_ne_u32 vcc, s{sTag}, v12')
        p('s_add_u32 s14, s14, 1')
        p(f's_cbranch_vccz {name}_{lab}ok2')
        p(f's_cmp_ge_u32 s14, {SPIN}')
        p(f's_cbranch_scc1 {name}_{lab}ok2')
        p(f'buffer_load_dword v12, v13, s[{S_FL}:{S_FL+3}], s15 offen sc1')
        p('s_waitcnt vmcnt(0)')
        p(f's_branch {name}_{lab}poll')
        p.label(f'{name}_{lab}ok2')
        p(f's_cmp_eq_u32 s{sSame}, 1')
        p(f's_cbranch_scc1 {name}_{lab}ok')
        p('buffer_inv sc1')
        p('s_waitcnt vmcnt(0)')
        p.label(f'{name}_{lab}ok')
        p('s_barrier')
    def att_state():
        p(f's_lshl_b32 s{sKb}, s{sH}, 19')
        p(f's_add_u32 s{sKb}, s{sKb}, s{sLW}')
        p(f's_mov_b32 s{sVb}, s{sKb}')
    def unitK(slot, label):
        L = [('s', f's_add_u32 m0, s{sLW}, {slot*32768}')]
        for i in range(4): L.append(('m', f'buffer_load_dwordx4 v{vLane16}, s[{S_KF}:{S_KF+3}], s{sKb} offen offset:{1024*i}{KVLD} lds', label, None))
        return L + [('s', f's_add_u32 s{sKb}, s{sKb}, 16384')]
    def unitV(slot, label):
        L = [('s', f's_add_u32 m0, s{sLW}, {slot*32768 + SL}')]
        for i in range(4): L.append(('m', f'buffer_load_dwordx4 v{vLane16}, s[{S_VF}:{S_VF+3}], s{sVb} offen offset:{1024*i}{KVLD} lds', label, None))
        return L + [('s', f's_add_u32 s{sVb}, s{sVb}, 16384')]
    def dma_K(label, tagbase=None):
        L = [('s', f's_mov_b32 m0, s{sSlotP}')]
        for i in range(4):
            L.append(('m', f'buffer_load_dwordx4 v{vLane16}, s[{S_KF}:{S_KF+3}], s{sKb} offen offset:{1024*i}{KVLD} lds', label, None))
        L += [('s', f's_add_u32 s{sKb}, s{sKb}, 16384')]
        return L
    def dma_V(label, tagbase=None):
        L = [('s', f's_add_u32 m0, s{sSlotP}, {SL}')]
        for i in range(4):
            L.append(('m', f'buffer_load_dwordx4 v{vLane16}, s[{S_VF}:{S_VF+3}], s{sVb} offen offset:{1024*i}{KVLD} lds', label, None))
        L += [('s', f's_add_u32 s{sVb}, s{sVb}, 16384')]
        return L
    adv_slot = [('s', f's_add_u32 s{sSlotP}, s{sSlotP}, 32768'), ('s', f's_cmp_ge_u32 s{sSlotP}, {NSLOT*32768}\ns_cselect_b32 s{sSlotP}, s{sLW}, s{sSlotP}')]
    R.emit(p, put)
    print('fused qproj overflow', R.over, 'est', R.total())
    if 'pp' not in opt: p.stamp('q end')
    p(f's_mov_b32 s{sFlag}, 0')
    p(f's_mov_b32 s{sLim}, {hex(LIM)}')
    def touch_setup():
        p(f's_load_dwordx2 s[92:93], s[0:1], {ARG["wo"]}')
        p(f's_load_dwordx2 s[94:95], s[0:1], {ARG["wg"]}')
        p(f's_load_dwordx2 s[96:97], s[0:1], {ARG["wu"]}')
        p(f's_load_dwordx2 s[98:99], s[0:1], {ARG["wd"]}')
        p('s_lshl_b32 s14, s2, 2')
        p(f's_add_u32 s14, s14, s{sW}')
        p('s_mul_i32 s14, s14, 40')
        p('v_min_u32 v14, 39, v0')
        p('v_add_u32 v14, s14, v14')
        p('v_lshlrev_b32 v14, 7, v14')
        p('s_lshr_b32 s14, s2, 6')
        p('s_lshl_b32 s14, s14, 2')
        p(f's_and_b32 s15, s{sI}, 3')
        p('s_add_u32 s14, s14, s15')
        p('s_lshl_b32 s14, s14, 3')
        p('s_and_b32 s15, s2, 7')
        p('s_add_u32 s14, s14, s15')
        p('s_lshl_b32 s14, s14, 2')
        p(f's_add_u32 s14, s14, s{sW}')
        p('s_mul_i32 s14, s14, 34')
        p('v_min_u32 v15, 33, v0')
        p('v_add_u32 v15, s14, v15')
        p('v_min_u32 v15, 17279, v15')
        p('v_lshlrev_b32 v15, 7, v15')
        p('s_waitcnt lgkmcnt(0)')
    touch_items = [('l', 'global_load_dword v13, v14, s[92:93]', 'T'), ('l', 'global_load_dword v13, v15, s[94:95]', 'T'),
                   ('l', 'global_load_dword v13, v15, s[96:97]', 'T'), ('l', 'global_load_dword v13, v15, s[98:99]', 'T')]
    att_state()
    if FP == 'pace':
        p(f's_load_dwordx2 s[92:93], s[0:1], {ARG["wg"]}')
        p(f's_load_dwordx2 s[94:95], s[0:1], {ARG["wu"]}')
        p(f's_load_dwordx2 s[96:97], s[0:1], {ARG["wd"]}')
        p('s_lshr_b32 s14, s2, 6')
        p('s_lshl_b32 s14, s14, 1')
        p(f's_add_u32 s14, s14, s{sI}')
        p('s_sub_u32 s14, s14, 6')
        p('s_lshl_b32 s14, s14, 3')
        p('s_and_b32 s15, s2, 7')
        p('s_add_u32 s14, s14, s15')
        p(f's_cmp_ge_u32 s{sI}, 6')
        p('s_cselect_b32 s14, s14, 255')
        p('s_cmp_lt_u32 s14, 54')
        p('s_cselect_b32 s99, 1, 0')
        p('s_mul_i32 s14, s14, s99')
        p('v_lshrrev_b32 v14, 2, v0')
        p(f's_mul_i32 s15, s{sW}, 160')
        p('v_add_u32 v14, s15, v14')
        p('v_mul_u32_u24 v14, 3456, v14')
        p('v_and_b32 v15, 3, v0')
        p('v_lshl_add_u32 v14, v15, 4, v14')
        p('s_lshl_b32 s15, s14, 6')
        p('v_add_u32 v14, s15, v14')
        p('v_mul_lo_u32 v14, v14, s99')
        p(f's_mul_i32 s98, s99, {16*3456}')
        p('s_mul_i32 s14, s14, 40960')
        p(f's_mul_i32 s15, s{sW}, 10240')
        p('s_add_u32 s14, s14, s15')
        p(f'v_add_u32 v15, s14, v{vLane16}')
        p('v_mul_lo_u32 v15, v15, s99')
        p('s_lshl_b32 s99, s99, 12')
        p('s_waitcnt lgkmcnt(0)')
    else:
        touch_setup()
    publish(FK, 'k', 'st')
    for it in flag_load(FK, 'KFL'): put(it)
    p.stamp('pub done')
    p('s_nop 7')
    for c in range(4):
        for ks in range(4):
            a0 = O(c, 2*ks)
            for k in range(4): p(f'v_cvt_pk_bf16_f32 v{a0+k}, v{a0+2*k}, v{a0+2*k+1}')
            for k in range(4): p(f'v_accvgpr_write_b32 a{aQ + 16*c + 4*ks + k}, v{a0+k}')
    p(f'v_mov_b32 v{vT}, 0x3f803f80')
    for k in range(4): p(f'v_accvgpr_write_b32 a{128+k}, v{vT}')
    p(f'v_and_b32 v{vT}, 15, v0')
    p(f'v_lshrrev_b32 v{vT+1}, 4, v0')
    p(f'v_lshlrev_b32 v{vT+1}, 2, v{vT+1}')
    p(f'v_sub_u32 v{vT}, v{vT}, v{vT+1}')
    for r in range(4): p(f'v_cmp_le_i32 s[{sM+2*r}:{sM+2*r+1}], {r}, v{vT}')
    p(f'v_mov_b32 v{vNinf}, {hex(NEGBIG)}')
    for r in range(16): p(f'v_mov_b32 v{vNeg+r}, 0')
    for c in range(4): p(f'v_mov_b32 v{vL+c}, 0')
    for r in range(64): p(f'v_mov_b32 v{vO+r}, 0')
    p.stamp('pre check')
    check('k', 'KFL')
    emit(unitK(0, 'U-1') + unitK(1, 'U0') + unitV(1, 'U0'))
    p.stamp('kv ok')
    nerr = 0

    def rdK(b, f):  return ('r', f'ds_read_b128 a[{aK+4*f}:{aK+4*f+3}], v{vRd} offset:{b*8192 + f*1024}', f'K{f}')
    def rdV(b, f):  return ('r', f'ds_read_b128 a[{aV+4*f}:{aV+4*f+3}], v{vRd} offset:{16384 + b*8192 + f*1024}', f'V{f}')
    def qk_mfmas(cols, sbase, cin):
        L = []
        for i, c in enumerate(cols):
            for kb in range(2):
                S = Sr(sbase + i, kb)
                for ks in range(4):
                    cc = cin(c, kb) if ks == 0 else S
                    L.append(f'{MF} v[{S}:{S+3}], a[{aK+4*(kb*4+ks)}:{aK+4*(kb*4+ks)+3}], a[{aQ+16*c+4*ks}:{aQ+16*c+4*ks+3}], v[{cc}:{cc+3}]')
        return L
    def pv_mfmas(cols, par, first=False):
        L = []
        for c in cols:
            for db in range(8):
                o = O(c, db)
                cc = '0' if first else f'v[{o}:{o+3}]'
                L.append(f'{MF} v[{o}:{o+3}], a[{aV+4*db}:{aV+4*db+3}], v[{Pr(par, c)}:{Pr(par, c)+3}], {cc}')
        return L
    aOne = 128
    Lm = lambda c: vP + 8 + 4*c
    def sum_mfmas(cols, par):
        if not MSUM: return []
        return [f'{MF} v[{Lm(c)}:{Lm(c)+3}], a[{aOne}:{aOne+3}], v[{Pr(par, c)}:{Pr(par, c)+3}], v[{Lm(c)}:{Lm(c)+3}]' for c in cols]
    def sm_window_ns(c, sslot, par):
        if not MSUM: return sm_window(c, sslot, par)
        return sm_window_ns_(c, sslot, par)
    def sm_window_ns_(c, sslot, par):
        S = vS + 8*sslot; P = Pr(par, c); W = []
        for k in range(4):
            e0, e1 = vE + (2*k) % 4, vE + (2*k + 1) % 4
            W += [[f'v_exp_f32 v{e0}, v{S+2*k}'], [f'v_exp_f32 v{e1}, v{S+2*k+1}'],
                  [f'v_cvt_pk_bf16_f32 v{P+k}, v{e0}, v{e1}'], []]
        return W
    def sm_window(c, sslot, par):
        S = vS + 8*sslot; P = Pr(par, c); W = []
        for k in range(4):
            e0, e1 = vE + (2*k) % 4, vE + (2*k + 1) % 4
            W += [[f'v_exp_f32 v{e0}, v{S+2*k}'], [f'v_exp_f32 v{e1}, v{S+2*k+1}'],
                  [f'v_add_f32 v{vL+c}, v{vL+c}, v{e0}'],
                  [f'v_add_f32 v{vL+c}, v{vL+c}, v{e1}', f'v_cvt_pk_bf16_f32 v{P+k}, v{e0}, v{e1}']]
        return W
    cin_neg = lambda c, kb: vNeg + 4*c
    def cin_mask(tile_cols):
        def f(c, kb):
            if c in tile_cols: return vCi + 8*(c - tile_cols[0]) + 4*kb
            return vNeg + 4*c
        return f
    def mask_ops(tile_cols):
        c0 = tile_cols[0]
        L = [('s', f's_cmp_lt_i32 s{sDd}, 0\ns_cselect_b64 s[14:15], -1, 0'),
             ('s', f's_cmp_eq_u32 s{sDd}, 0\n' + '\n'.join(f's_cselect_b64 s[{4+2*r}:{5+2*r}], s[{sM+2*r}:{sM+2*r+1}], s[14:15]' for r in range(4))),
             ('s', f's_cmp_le_i32 s{sDd}, 0\ns_cselect_b64 s[12:13], -1, 0')]
        for cb in range(2):
            for kb in range(2):
                for r in range(4):
                    m = 4 + 2*r if cb == kb else (12 if (cb == 1 and kb == 0) else 14)
                    L.append(('v', f'v_cndmask_b32 v{vCi + 8*cb + 4*kb + r}, v{vNinf}, v{vNeg + 4*(c0 + cb) + r}, s[{m}:{m+1}]'))
        return L
    LC, SC = [0, 1], [2, 3]
    def build_group(mf, windows, reads, dmas=(), extra=(), pre_wait=None, mid_wait=None, nwin=None):
        R = Region(mf)
        n = len(mf)
        for (g0, W) in windows:
            for i, ops in enumerate(W):
                for o in ops: R.place(('v', o), g0 + i, force=True)
        slots = [g for g in range(n) if g % 4 == 2]
        if len(slots) < len(reads): slots = sorted(slots + [g for g in range(n) if g % 4 == 3])
        if n == 16 or nwin == 16: slots = [g for g in range(16) if g % 4 in (2, 3)]
        for it, g in zip(reads, slots): R.place(it, g, force=True)
        if dmas:
            free = [g for g in range(n) if not R.M[g]]
            pref = [g for g in free if g >= 16 and nwin == 16] + [g for g in free if g % 4 == 3 and not (g >= 16 and nwin == 16)] + [g for g in free if g % 4 == 1] + [g for g in free if g % 4 in (0, 2)]
            nm = sum(1 for x in dmas if x[0] in ('m', 'l'))
            use = sorted([g for g in pref if g >= 1][:nm])
            if nwin == 16 and nm == 4: use = [5, 9, 13, 16]
            if nwin == 16 and nm == 5: use = [1, 5, 9, 13, 16]
            k = 0; pend_s = []
            for it in dmas:
                if it[0] == 's': pend_s.append(it)
                else:
                    g = use[k]; k += 1
                    for j, sx in enumerate(pend_s):
                        gg = max(0, g - len(pend_s) + j)
                        if k > 1: gg = max(gg, use[k-2] + 1) if use[k-2] + 1 <= g - 1 or ' m0,' not in sx[1] else gg
                        if gg == g and ' m0,' in sx[1]: R.place(('s', 's_nop 0'), g, force=True) if False else None
                        R.place(sx, gg, force=True)
                    pend_s = []
                    R.place(it, g, force=True)
            for j, sx in enumerate(pend_s):
                gg = use[-1] + 1 + j
                if gg <= n - 1: R.place(sx, gg, force=True)
                else: R.T[n - 1].append(sx)
        if extra:
            g = 0
            for it in extra:
                best = None
                for gg in range(g, n - 1):
                    if R.fits(gg, it): best = gg; break
                if best is None:
                    best = g
                R.place(it, best, force=True); g = best
        if mid_wait: R.place(mid_wait[1], mid_wait[0], force=True)
        return R
    slot_adv = [('s', f's_add_u32 s{sSlotR}, s{sSlotR}, 32768'), ('s', f's_cmp_ge_u32 s{sSlotR}, {NSLOT*32768}\ns_cselect_b32 s{sSlotR}, 0, s{sSlotR}')]
    def start_items(R, vm=16):
        pre = []
        if vm is None: return
        if 'nodma' not in opt: pre.append(('w', f's_waitcnt vmcnt({vm})'))
        if 'nobar' not in opt: pre.append(('w', 's_barrier'))
        R.S[0] = pre + R.S[0]
    def end_items(R, loop=None):
        n = R.n
        for j, it in enumerate(slot_adv): R.S[4 + 4*j if n > 16 else 1 + 4*j].append(it) if False else None
        g0 = 8
        for j, it in enumerate(slot_adv): R.S[g0 + j].append(it)
        R.V[n - 1].append(('v', f'v_add_u32 v{vRd}, s{sSlotR}, v{vLane16}'))
        if loop:
            R.S[n - 3].append(('s', f's_sub_u32 s{sCnt}, s{sCnt}, 1'))
            R.T[n - 1].append(('s', f's_cmp_lg_u32 s{sCnt}, 0'))
    def emit_group(R, pre):
        if pre and 'nords' not in opt:
            put(('wlg', [f'{pre}{f}' for f in range(4)]))
            R.S[3].insert(0, ('wlg', [f'{pre}{f}' for f in range(4, 8)]))
        if 'nosm' in opt:
            for g in range(R.n): R.V[g] = []
        if 'noexp' in opt:
            for g in range(R.n): R.V[g] = [(x[0], x[1].replace('v_exp_f32', 'v_mov_b32')) for x in R.V[g]]
        if 'nodma' in opt:
            for g in range(R.n): R.M[g] = [x for x in R.M[g] if x[0] != 'm']
        if 'nords' in opt:
            for g in range(R.n):
                R.M[g] = [x for x in R.M[g] if x[0] != 'r']; R.S[g] = [x for x in R.S[g] if x[0] != 'wlg']
            pre = None; R.S[3] = [x for x in R.S[3] if x[0] != 'wlg']
        R.emit(p, put)
    stats = {'cyc': 0}
    def interval(kind, lbl, maskL=None, maskS=None, loop=False, vm=16):
        dual = kind in ('D', 'T')
        mA, mB, mN = (maskS if dual else maskL) or (False, False, False)
        tile = SC if dual else LC
        p.lgq = ['K%d' % f for f in range(8)]; p.lg_ret = -1
        tot = 0
        if dual:
            cols = [0, 1, 2, 3]
            R1 = build_group(qk_mfmas(cols, 0, cin_mask(SC) if mA else cin_neg),
                             [(0, sm_window(3, 3, 0)), (16, sm_window(0, 0, 1))], [rdV(0, f) for f in range(8)], dma_K('x'),
                             mid_wait=None)
            start_items(R1, vm)
            if lbl == 'db':
                g_ = 1
                sel = ([touch_items[0]] if TW else []) + (touch_items[1:] if TF else [])
                for it in sel:
                    while R1.M[g_]: g_ += 1
                    R1.M[g_].append(it); g_ += 3
            add_paced([R1], chunk4(fp_items.get(lbl, []), 0))
            emit_group(R1, 'K')
            ex = ([('s', f's_add_u32 s{sDd}, s{sDd}, 1')] + mask_ops(SC if kind == 'D' else LC)) if mB else []
            if kind == 'T': ex = mask_ops(LC)
            R2 = build_group(pv_mfmas(cols, 0), [(0, sm_window(1, 1, 1)), (16, sm_window(2, 2, 1))], [rdK(0, f) for f in range(8)], extra=ex)
            if kind == 'T':
                emit([('s', f's_sub_u32 s{sDd}, s{sTS}, s{sTL}'), ('s', f's_lshl_b32 s{sDd}, s{sDd}, 2'), ('s', f's_add_u32 s{sDd}, s{sDd}, 4'), ('s', f's_sub_u32 s{sDd}, s{sDd}, s{sW}')])
            add_paced([R2], chunk4(fp_items.get(lbl, []), 1))
            emit_group(R2, 'V')
            if kind == 'D':
                R3 = build_group(qk_mfmas(cols, 0, cin_mask(SC) if mB else cin_neg),
                                 [(0, sm_window(3, 3, 1)), (16, sm_window(0, 0, 0))], [rdV(1, f) for f in range(8)], dma_V('x') + adv_slot)
                add_paced([R3], chunk4(fp_items.get(lbl, []), 2))
                emit_group(R3, 'K')
                ex = ([('s', f's_add_u32 s{sDd}, s{sDd}, 1')] + mask_ops(SC)) if mN else []
                R4 = build_group(pv_mfmas(cols, 1), [(0, sm_window(1, 1, 0)), (16, sm_window(2, 2, 0))], [rdK(1, f) for f in range(8)], extra=ex)
                end_items(R4, loop)
                add_paced([R4], chunk4(fp_items.get(lbl, []), 3))
                emit_group(R4, 'V')
            else:
                R3 = build_group(qk_mfmas(LC, 0, cin_mask(LC)), [(0, sm_window(3, 3, 1))], [rdV(1, f) for f in range(8)], dma_V('x') + adv_slot)
                add_paced([R3], chunk4(fp_items.get(lbl, []), 2))
                emit_group(R3, 'K')
                ex = ([('s', f's_add_u32 s{sDd}, s{sDd}, 1')] + mask_ops(LC))
                ex = [('v', f'v_mov_b32 v{Lm(c)+r}, 0') for c in LC for r in range(4)] + ex
                R4 = build_group(pv_mfmas(cols, 1), [(0, sm_window_ns(0, 0, 0))], [rdK(1, f) for f in range(8)], extra=ex)
                end_items(R4)
                add_paced([R4], chunk4(fp_items.get(lbl, []), 3))
                emit_group(R4, 'V')
            tot = R1.total() + R2.total() + R3.total() + R4.total()
        else:
            dK = dma_K('x'); dv_ = dma_V('x'); dV = dv_[:1] + adv_slot + dv_[1:]
            if KTD and lbl == 'sn':
                dK = dK[:-1] + [('l', f'buffer_load_dword v13, v12, s[{S_KF}:{S_KF+3}], s{sKb} offen', 'T')] + dK[-1:]
                dV = dV[:-1] + [('l', f'buffer_load_dword v13, v12, s[{S_VF}:{S_VF+3}], s{sVb} offen', 'T')] + dV[-1:]
            R1 = build_group(qk_mfmas(LC, 2, cin_mask(LC) if mA else cin_neg), [(0, sm_window_ns(1, 1, 0))], [rdV(0, f) for f in range(8)])
            start_items(R1, vm)
            emit_group(R1, 'K')
            ex = ([('s', f's_add_u32 s{sDd}, s{sDd}, 1')] + mask_ops(LC)) if mB else []
            rk = [rdK(0, f) for f in range(8)] if kind != 'E' else []
            R2 = build_group(pv_mfmas(LC, 0) + sum_mfmas(LC, 0), [(0, sm_window_ns(0, 2, 1))], rk, dK, extra=ex, nwin=16)
            emit_group(R2, 'V')
            if kind != 'E':
                R3 = build_group(qk_mfmas(LC, 0, cin_mask(LC) if mB else cin_neg), [(0, sm_window_ns(1, 3, 1))], [rdV(1, f) for f in range(8)])
                emit_group(R3, 'K')
                ex = ([('s', f's_add_u32 s{sDd}, s{sDd}, 1')] + mask_ops(LC)) if mN else []
                R4 = build_group(pv_mfmas(LC, 1) + sum_mfmas(LC, 1), [(0, sm_window_ns(0, 0, 0))], [rdK(1, f) for f in range(8)], dV, extra=ex, nwin=16)
                end_items(R4, loop)
                emit_group(R4, 'V')
                tot = R1.total() + R2.total() + R3.total() + R4.total()
            else:
                for f in range(8): put(rdV(1, f))
                emit(dV)
                for ops in sm_window_ns(1, 3, 1):
                    for o in ops: p(o)
                    if len(ops) == 1 and ops[0].startswith('v_exp'): p('s_nop 0')
                p('s_waitcnt lgkmcnt(0)')
                p('s_nop 1')
                for m in pv_mfmas(LC, 1) + sum_mfmas(LC, 1): p(m)
        if tot: print(f'  interval {lbl}: est {tot} cycles for', 128 if kind == 'D' else (112 if kind == 'T' else 64), 'mfma')

    def emit_prefetch():
        p('s_lshr_b32 s14, s2, 3')
        p('s_and_b32 s15, s14, 7')
        p('s_cmp_lt_u32 s15, 4')
        p(f's_cbranch_scc1 {name}_npf')
        p(f's_load_dwordx2 s[92:93], s[0:1], {ARG["wo"]}')
        p('s_lshr_b32 s14, s14, 3')
        p('s_lshl_b32 s14, s14, 2')
        p('s_add_u32 s14, s14, s15')
        p('s_sub_u32 s14, s14, 4')
        p(f's_mul_i32 s14, s14, {640*128}')
        p('s_and_b32 s15, s2, 7')
        p('s_lshr_b32 s15, s15, 1')
        p('s_mul_i32 s15, s15, 1310720')
        p('s_add_u32 s14, s14, s15')
        p(f's_mul_i32 s15, s{sW}, {160*128}')
        p('s_add_u32 s14, s14, s15')
        p('s_waitcnt lgkmcnt(0)')
        for i in range(3):
            p(f'v_add_u32 v251, {64*i}, v0')
            p(f'v_min_u32 v251, 159, v251')
            p(f'v_lshlrev_b32 v251, 7, v251')
            p(f'v_add_u32 v251, s14, v251')
            p(f'global_load_dword v250, v251, s[92:93]')
        p.label(f'{name}_npf')
    FA, FB = (10, 11) if FP == 'db' else (252, 253)
    F2, F3, F4, F5 = (47, 48, 49, 51) if FP in ('db', 'S') else (92, 93, 94, 95)
    def ffn_loads():
        p(f's_mov_b32 s{F5}, 0')
        p('s_lshr_b32 s14, s2, 3')
        p(f's_and_b32 s{F2}, s14, 7')
        p(f's_cmp_lt_u32 s{F2}, 6')
        p(f's_cbranch_scc1 {name}_nffn')
        p('s_lshr_b32 s14, s2, 6')
        p('s_lshl_b32 s14, s14, 1')
        p(f's_add_u32 s14, s14, s{F2}')
        p('s_sub_u32 s14, s14, 6')
        p('s_lshl_b32 s14, s14, 3')
        p('s_and_b32 s15, s2, 7')
        p(f's_add_u32 s{F4}, s14, s15')
        p(f's_cmp_ge_u32 s{F4}, 54')
        p(f's_cbranch_scc1 {name}_nffn')
        p(f's_mov_b32 s{F5}, 1')
        p(f's_load_dwordx2 s[4:5], s[0:1], {ARG["wg"]}')
        p(f's_load_dwordx2 s[8:9], s[0:1], {ARG["wu"]}')
        p(f's_load_dwordx2 s[12:13], s[0:1], {ARG["wd"]}')
        p(f'v_lshrrev_b32 v{FA}, 2, v0')
        p(f'v_mul_u32_u24 v{FA}, 3456, v{FA}')
        p(f'v_and_b32 v{FB}, 3, v0')
        p(f'v_lshl_add_u32 v{FA}, v{FB}, 4, v{FA}')
        p('s_waitcnt lgkmcnt(0)')
        for sr, sz in ((4, 640*1728*2), (8, 640*1728*2), (12, 1728*640*2)):
            p(f's_mov_b32 s{sr+2}, {sz}'); p(f's_mov_b32 s{sr+3}, 0x00020000')
        p(f's_mul_i32 s{F2}, s{sW}, {160*3456}')
        p(f's_lshl_b32 s{F3}, s{F4}, 6')
        p(f's_add_u32 s{F2}, s{F2}, s{F3}')
        for i in range(10):
            for mat, sr in enumerate((4, 8)):
                r = 132 + (mat*10 + i)*4
                p(f'buffer_load_dwordx4 a[{r}:{r+3}], v{FA}, s[{sr}:{sr+3}], s{F2} offen')
            p(f's_add_u32 s{F2}, s{F2}, {16*3456}')
        p(f's_mul_i32 s{F2}, s{F4}, {32*1280}')
        p(f's_mul_i32 s{F3}, s{sW}, 10240')
        p(f's_add_u32 s{F2}, s{F2}, s{F3}')
        for i in range(10):
            r = 132 + (20 + i)*4
            p(f'buffer_load_dwordx4 a[{r}:{r+3}], v{vLane16}, s[12:15], s{F2} offen offset:{(i % 4)*1024}')
            if i % 4 == 3: p(f's_add_u32 s{F2}, s{F2}, 4096')
        p.label(f'{name}_nffn')
    def ffn_paced():
        L = []
        for i in range(10):
            for mat, sp in enumerate((92, 94)):
                r = 132 + (mat*10 + i)*4
                L.append(('l', f'global_load_dwordx4 a[{r}:{r+3}], v14, s[{sp}:{sp+1}]', 'F'))
            L.append(('v', 'v_add_u32 v14, s98, v14'))
        for i in range(10):
            r = 132 + (20 + i)*4
            L.append(('l', f'global_load_dwordx4 a[{r}:{r+3}], v15, s[96:97] offset:{(i % 4)*1024}', 'F'))
            if i % 4 == 3: L.append(('v', 'v_add_u32 v15, s99, v15'))
        return L
    fp_items = {'db': [], 'dc': []}
    if FP == 'pace':
        allf = ffn_paced(); nl = 0; cut = 0
        for k, it in enumerate(allf):
            if it[0] == 'l': nl += 1
            if nl == 16 and it[0] == 'v' and cut == 0: cut = k + 1
        fp_items = {'db': allf[:cut], 'dc': allf[cut:]}
    def chunk4(items, k):
        groups = []; cur = []
        for it in items:
            cur.append(it)
            if it[0] == 'v': groups.append(cur); cur = []
        if cur: groups.append(cur)
        out = [[], [], [], []]
        nl = sum(1 for x in items if x[0] == 'l'); acc = 0
        for g in groups:
            q = min(3, int(4*acc/max(nl, 1)))
            out[q] += g; acc += sum(1 for x in g if x[0] == 'l')
        return out[k]
    def add_paced(Rs, items):
        if not items: return
        slots = [(ri, g) for ri, R in enumerate(Rs) for g in range(1, R.n - 1) if not R.M[g]]
        nl = sum(1 for x in items if x[0] == 'l')
        step = len(slots) / (nl + 1.0); k = 0; pos = 0
        last = None
        for it in items:
            if it[0] == 'l':
                k += 1; ri, g = slots[int(k*step)]
                Rs[ri].M[g].append(it); last = (ri, g)
            else:
                ri, g = last
                Rs[ri].V[g].append(it)
    def row_reduce(reg, op, tmp):
        for sw in ('v_permlane16_swap_b32', 'v_permlane32_swap_b32'):
            p(f'v_mov_b32 v{tmp}, v{reg}')
            p('s_nop 1')
            p(f'{sw} v{reg}, v{tmp}')
            p('s_nop 1')
            p(f'{op} v{reg}, v{reg}, v{tmp}')
    def epilogue(cols, sTile, flagbit):
        p('s_nop 7')
        for c in cols: row_reduce(vL + c, 'v_add_f32', vU)
        if cols == LC:
            for c in cols: p(f'v_add_f32 v{vL+c}, v{vL+c}, v{Lm(c)}')
        p(f'v_max_f32 v{vU}, v{vL+cols[0]}, v{vL+cols[1]}')
        p(f'v_cmp_nle_f32 vcc, v{vU}, v{vU+1}'.replace(f'v{vU+1}', f'v{vU+1}') if False else f'v_cmp_nge_f32 vcc, s{sLim}, v{vU}')
        p('s_nop 1')
        p(f's_cmp_lg_u64 vcc, 0')
        p(f's_cselect_b32 s{sT0}, {flagbit}, 0')
        p(f's_or_b32 s{sFlag}, s{sFlag}, s{sT0}')
        for c in cols: p(f'v_rcp_f32 v{vL+c}, v{vL+c}')
        store_ctx(cols, sTile)
    def store_ctx(cols, sTile):
        p(f's_lshl_b32 s{sCtx}, s{sTile}, 3')
        p(f's_lshl_b32 s{sT0}, s{sW}, 1')
        p(f's_add_u32 s{sCtx}, s{sCtx}, s{sT0}')
        p(f's_lshl_b32 s{sCtx}, s{sCtx}, 5')
        p(f's_add_u32 s{sCtx}, s{sCtx}, s{sH}')
        p(f's_lshl_b32 s{sCtx}, s{sCtx}, 12')
        p(f's_add_u32 s{sT1}, s{sCtx}, {32*4096}')
        for i, c in enumerate(cols):
            for ks in range(4):
                o = O(c, 2*ks)
                for k in range(8): p(f'v_mul_f32 v{o+k}, v{o+k}, v{vL+c}')
                for k in range(4): p(f'v_cvt_pk_bf16_f32 v{o+k}, v{o+2*k}, v{o+2*k+1}')
                p(f'buffer_store_dwordx4 v[{o}:{o+3}], v{vLane16}, s[{S_CTX}:{S_CTX+3}], s{sCtx if i == 0 else sT1} offen offset:{ks*1024} {CTX_FLAGS}')

    p(f's_mov_b32 s{sSlotR}, 0')
    p(f'v_mov_b32 v{vRd}, v{vLane16}')
    for r in range(64, 128): p(f'v_mov_b32 v{vO+r}, 0')
    p(f's_lshl_b32 s{sDd}, s{sTS}, 2')
    p(f's_add_u32 s{sDd}, s{sDd}, s{sW}')
    p(f's_sub_u32 s{sDd}, 0, s{sDd}')
    emit(mask_ops(SC))
    p.wait_vm('U-1')
    p('s_barrier')
    p.stamp('U-1 ready')
    p.lgq = []; p.lg_ret = -1
    for f in range(8): put(rdK(0, f))
    p('s_waitcnt lgkmcnt(0)')
    q0 = qk_mfmas([0, 1, 2, 3], 0, cin_mask(SC))
    rest = unitK(2, 'U1') + unitV(2, 'U1')
    Rq = Region(q0)
    spread(Rq, rest, 0, 31)
    Rq.emit(p, put)
    p(f's_add_u32 s{sSlotP}, s{sLW}, {4*32768}')
    p.stamp('qk0 done')
    for f in range(8): put(rdK(1, f))
    for step in range(4):
        for c in range(4):
            S = vS + 8*c; t = vU + c
            if step == 0: p(f'v_max3_f32 v{t}, v{S}, v{S+1}, v{S+2}')
            elif step == 1: p(f'v_max3_f32 v{t}, v{t}, v{S+3}, v{S+4}')
            elif step == 2: p(f'v_max3_f32 v{t}, v{t}, v{S+5}, v{S+6}')
            else: p(f'v_max_f32 v{t}, v{t}, v{S+7}')
    for sw in ('v_permlane16_swap_b32', 'v_permlane32_swap_b32'):
        for c in range(4): p(f'v_mov_b32 v{vU+4+c}, v{vU+c}')
        for c in range(4): p(f'{sw} v{vU+c}, v{vU+4+c}')
        p('s_nop 0')
        for c in range(4): p(f'v_max_f32 v{vU+c}, v{vU+c}, v{vU+4+c}')
    for r in range(8):
        for c in range(4): p(f'v_sub_f32 v{vS+8*c+r}, v{vS+8*c+r}, v{vU+c}')
    for c in range(4):
        for r in range(4): p(f'v_sub_f32 v{vNeg+4*c+r}, 0, v{vU+c}')
    def run_window(W):
        for ops in W:
            for o in ops: p(o)
            if len(ops) == 1 and ops[0].startswith('v_exp'): p('s_nop 0')
    u2 = unitK(3, 'U2') + unitV(3, 'U2')
    for r in range(8):
        for c in range(3): p(f'v_exp_f32 v{vS+8*c+r}, v{vS+8*c+r}')
        while u2:
            it = u2.pop(0)
            put(it)
            if it[0] == 'm': break
            if ' m0,' in it[1]: p('s_nop 0')
    for it in u2: put(it)
    p('s_nop 0')
    for r in range(8):
        for c in range(3): p(f'v_add_f32 v{vL+c}, v{vL+c}, v{vS+8*c+r}')
    for k in range(4):
        for c in range(3): p(f'v_cvt_pk_bf16_f32 v{Pr(0, c)+k}, v{vS+8*c+2*k}, v{vS+8*c+2*k+1}')
    p(f's_mov_b32 s{sSlotR}, 32768')
    p(f'v_add_u32 v{vRd}, s{sSlotR}, v{vLane16}')
    if 'pp' not in opt: p.stamp('attn prologue done')
    p(f's_cmp_eq_u32 s{sTS}, 0')
    p(f's_cbranch_scc1 {name}_t0')
    p(f's_lshl_b32 s{sCnt}, s{sTS}, 1')
    p(f's_sub_u32 s{sCnt}, s{sCnt}, 1')
    p.label(f'{name}_dn')
    interval('D', f'dn', loop=True)
    p(f's_cbranch_scc1 {name}_dn')
    p(f's_sub_u32 s{sDd}, -1, s{sW}')
    interval('D', 'da', maskS=(False, True, True))
    p(f's_branch {name}_db')
    p.label(f'{name}_t0')
    p(f's_sub_u32 s{sDd}, 1, s{sW}')
    emit(mask_ops(SC))
    p('s_nop 1')
    p.label(f'{name}_db')
    if FP == 'db':
        p('s_waitcnt vmcnt(16)')
        p('s_barrier')
        ffn_loads()
        interval('D', 'db', maskS=(True, True, True), vm=None)
        p(f's_cmp_eq_u32 s{F5}, 0')
        p(f's_cbranch_scc1 {name}_dcw')
        p('s_waitcnt vmcnt(46)')
        p(f's_branch {name}_dcw2')
        p.label(f'{name}_dcw')
        p('s_waitcnt vmcnt(16)')
        p.label(f'{name}_dcw2')
        interval('T', 'dc', maskS=(True, False, False), vm=63)
    elif FP == 'pace':
        ndb = sum(1 for x in fp_items['db'] if x[0] == 'l')
        interval('D', 'db', maskS=(True, True, True))
        interval('T', 'dc', maskS=(True, False, False), vm=16 + ndb)
    else:
        interval('D', 'db', maskS=(True, True, True))
        interval('T', 'dc', maskS=(True, False, False))
    epilogue(SC, sTS, 2)
    if FP == 'S':
        ffn_loads()
        p.lgq = ['K%d' % f for f in range(8)]; p.lg_ret = 7
    if 'pp' not in opt: (p.stamp('S done') if 'pq' not in opt else None)
    if KTD:
        p('v_and_b32 v12, 31, v0')
        p('v_lshlrev_b32 v12, 7, v12')
        p(f'v_add_u32 v12, {KTD*16384}, v12')
    p(f's_sub_u32 s{sCnt}, s{sTL}, s{sTS}')
    p(f's_cmp_eq_u32 s{sCnt}, 1')
    p(f's_cbranch_scc1 {name}_sb')
    if DBL:
        p(f's_sub_u32 s{sCnt}, s{sCnt}, 2')
        interval('S', 'sn1')
        p.label(f'{name}_sn')
        interval('S', 'sn2a', vm=8)
        interval('S', 'sn2b', vm=None, loop=True)
    else:
        p(f's_lshl_b32 s{sCnt}, s{sCnt}, 1')
        p(f's_sub_u32 s{sCnt}, s{sCnt}, 3')
        p.label(f'{name}_sn')
        interval('S', 'sn', loop=True, vm=16 + (4 if KTD else 0))
    p(f's_cbranch_scc1 {name}_sn')
    p(f's_sub_u32 s{sDd}, -1, s{sW}')
    interval('S', 'sa', maskL=(False, True, True))
    p.label(f'{name}_sb')
    interval('S', 'sb', maskL=(True, True, True))
    interval('E', 'sc', maskL=(True, False, False))
    epilogue(LC, sTL, 1)
    p.stamp('L done')
    p(f's_cmp_eq_u32 s{sFlag}, 0')
    p(f's_cbranch_scc1 {name}_fin')
    fallback(p, name, locals())
    p.label(f'{name}_fin')
    def ctx_publish():
        p('s_waitcnt vmcnt(0) lgkmcnt(0)')
        p('s_barrier')
        p(f's_cmp_lg_u32 s{sW}, 0')
        p(f's_cbranch_scc1 {name}_cpub')
        p(f's_lshl_b32 s14, s2, 2')
        p(f's_add_u32 s14, s14, 6144')
        p(f'v_mov_b32 v20, s{sTag}')
        p('v_mov_b32 v21, 0')
        p(f'buffer_store_dword v20, v21, s[{S_FL}:{S_FL+3}], s14 offen sc1')
        p.label(f'{name}_cpub')
        p.stamp('ctx pub')
        if PE: emit_prefetch()
        if FP == 'end': ffn_loads()
    import kt
    nerr += kt.gen_kt(name + '_t', p, prof, opt, ctx_publish)
    p.label(f'{name}_done')
    p('s_endpgm')
    def mk_policy(t0, nd, skip_s, ns, fb, wave0):
        def pol(ins, n):
            t = ins.args[0]
            if t.endswith('_done'): return False
            if t.endswith('_stageA'): return n % 3 != 0
            if t in (name + '_noln0', name + '_noln1'): return False
            if t in (name + '_notag', name + '_kvpub'): return not wave0
            if t == name + '_notag2': return True
            if t == name + '_nffn': return not wave0
            if t == name + '_dcw': return not wave0
            if t == name + '_cpub': return not wave0
            if t.startswith(name + '_t'):
                if '_poll' in t and t.endswith('_ok'): return True
                if '_poll' in t and t.endswith('_top'): return False
                u = t[len(name) + 2:]
                if u in ('_w123', '_w1', '_nosig', '_w4', '_w5', '_cw'): return not wave0
                return False
            if t == name + '_nz': return True
            if t == name + '_nocode': return False
            if t == name + '_nopub': return True
            if t in (name + '_lnok', name + '_kok', name + '_vok', name + '_kpub', name + '_vpub'): return not wave0
            if t in (name + '_lnok2', name + '_kok2', name + '_vok2', name + '_krel', name + '_vrel'): return True
            if t.endswith('_t0'): return t0
            if t.endswith('_dn'): return (n % nd) != 0
            if t.endswith('_sb'): return skip_s
            if t.endswith('_sn'): return (n % ns) != 0
            if t.endswith('_fin'): return not fb
            if t.endswith('_fbloop'): return n % 3 != 0
            return False
        return pol
    for cfg in ([(False, 3, False, 3, False, True), (True, 2, False, 2, True, False), (False, 2, True, 2, False, True)] if (not opt or opt[0] in ('pp', 'pq', 'tl', 'tr', 'nocode', 'notlb', 'dbg') or opt[0].startswith('kv=')) and not any(o_.endswith('A') for o_ in opt) else []):
        seq = trace(p, mk_policy(*cfg))
        nerr += len(check_linear(seq, name + str(cfg)))
    return p, nerr

def fallback(p, name, L):
    g = L
    vS, vP, vE, vL, vU, vNeg, vCi, vO = g['vS'], g['vP'], g['vE'], g['vL'], g['vU'], g['vNeg'], g['vCi'], g['vO']
    aQ, aK, aV, vLane16, vNinf = g['aQ'], g['aK'], g['aV'], g['vLane16'], g['vNinf']
    S_KF, S_VF = g['S_KF'], g['S_VF']
    sFlag, sTL, sTS, sW, sH, sDd, sCnt, sT0, sT1, sT2 = (g[k] for k in ('sFlag', 'sTL', 'sTS', 'sW', 'sH', 'sDd', 'sCnt', 'sT0', 'sT1', 'sT2'))
    O = g['O']; mask_ops = g['mask_ops']; qk_mfmas = g['qk_mfmas']; pv_mfmas = g['pv_mfmas']; row_reduce = g['row_reduce']; store_ctx = g['store_ctx']
    put = g['put']
    p('s_waitcnt vmcnt(0) lgkmcnt(0)')
    for cols, sTile, bit, nm in (([2, 3], sTS, 2, 'S'), ([0, 1], sTL, 1, 'L')):
        p(f's_and_b32 s{sT0}, s{sFlag}, {bit}')
        p(f's_cmp_eq_u32 s{sT0}, 0')
        p(f's_cbranch_scc1 {name}_fbskip{nm}')
        for c in cols:
            p(f'v_mov_b32 v{vL+c}, 0')
            for r in range(32): p(f'v_mov_b32 v{vO+32*c+r}, 0')
            for r in range(4): p(f'v_mov_b32 v{vNeg+4*c+r}, 0')
        for i in range(2): p(f'v_mov_b32 v{vU+4+i}, v{vNinf}')
        p(f's_lshl_b32 s{sDd}, s{sTile}, 2')
        p(f's_add_u32 s{sDd}, s{sDd}, s{sW}')
        p(f's_add_u32 s{sCnt}, s{sDd}, 1')
        p(f's_sub_u32 s{sDd}, 0, s{sDd}')
        p(f's_lshl_b32 s{sT2}, s{sH}, 19')
        p.label(f'{name}_fb{nm}_fbloop')
        for f in range(8):
            p(f's_add_u32 s{sT1}, s{sT2}, {(f // 4)*4096}')
            p(f'buffer_load_dwordx4 a[{aK+4*f}:{aK+4*f+3}], v{vLane16}, s[{S_KF}:{S_KF+3}], s{sT1} offen offset:{(f % 4)*1024}')
            p(f'buffer_load_dwordx4 a[{aV+4*f}:{aV+4*f+3}], v{vLane16}, s[{S_VF}:{S_VF+3}], s{sT1} offen offset:{(f % 4)*1024}')
        for it in mask_ops(cols): put(it)
        p('s_waitcnt vmcnt(0)')
        p('s_nop 1')
        for m in qk_mfmas(cols, 0, lambda c, kb: vCi + 8*(c - cols[0]) + 4*kb): p(m)
        p('s_nop 7')
        for i, c in enumerate(cols):
            S = vS + 8*i; t = vU + i; m = vU + 4 + i
            p(f'v_max3_f32 v{t}, v{S}, v{S+1}, v{S+2}')
            p(f'v_max3_f32 v{t}, v{t}, v{S+3}, v{S+4}')
            p(f'v_max3_f32 v{t}, v{t}, v{S+5}, v{S+6}')
            p(f'v_max_f32 v{t}, v{t}, v{S+7}')
            row_reduce(t, 'v_max_f32', vU + 6)
            p(f'v_max_f32 v{t}, v{t}, v{m}')
            p(f'v_sub_f32 v{vU+6}, v{m}, v{t}')
            p(f'v_exp_f32 v{vU+6}, v{vU+6}')
            p(f'v_mov_b32 v{m}, v{t}')
            p(f'v_mul_f32 v{vL+c}, v{vL+c}, v{vU+6}')
            for r in range(32): p(f'v_mul_f32 v{vO+32*c+r}, v{vO+32*c+r}, v{vU+6}')
            for r in range(8): p(f'v_sub_f32 v{S+r}, v{S+r}, v{t}')
            for r in range(8): p(f'v_exp_f32 v{S+r}, v{S+r}')
            p('s_nop 0')
            for r in range(8): p(f'v_add_f32 v{vL+c}, v{vL+c}, v{S+r}')
            for k in range(4): p(f'v_cvt_pk_bf16_f32 v{vP+4*c+k}, v{S+2*k}, v{S+2*k+1}')
        p('s_nop 1')
        for m in pv_mfmas(cols, 0): p(m)
        p('s_nop 7')
        p(f's_add_u32 s{sT2}, s{sT2}, 8192')
        p(f's_add_u32 s{sDd}, s{sDd}, 1')
        p(f's_sub_u32 s{sCnt}, s{sCnt}, 1')
        p(f's_cmp_lg_u32 s{sCnt}, 0')
        p(f's_cbranch_scc1 {name}_fb{nm}_fbloop')
        for c in cols: row_reduce(vL + c, 'v_add_f32', vU)
        for c in cols: p(f'v_rcp_f32 v{vL+c}, v{vL+c}')
        store_ctx(cols, sTile)
        p.label(f'{name}_fbskip{nm}')

if __name__ == '__main__':
    p, ne = gen_kf()
    print('instrs', p.count(), 'errors', ne)
```

```python
from common import *
from gx2 import *
from sched import *
from k1b import w_tile_setup, MF
from lnops import *
WS_FLG = 82*MiB

CTX_FLAGS = 'sc1'
LIM = 0x5d800000
NEGBIG = 0xff800000
opt_idx = [0]
TW, TF, PE = False, False, True
FP = 'pace'
TA = False
LATE1 = True
CODE0 = False
DBL = True
MSUM = True
WARM = 0
KTD = 0
KVLD = ''
KSTF = None
VSTF = 'sc1'
PREFETCH = True

def gen_kf(name='front_kernel', prof=False, opt=()):
    p = P2(); p.prof = prof
    p.lenient = 'nordsA' in opt
    p.dbgmode = 'dbg' in opt
    p.rtmode = 'rt' in opt
    import os as _os
    p.dbgwg = int(_os.environ.get('DBGWG', '48'))
    p.stampset = set(['start', 'phase A done', 'q end', 'attn prologue done', 'L done', 'ctx ready', 'gemm end', 'key out', 'argmax ready', 'ffn atomics done'])
    if 'pa' in opt: p.stampset = set(['start', 'setup', 'A0W0 issued', 'dma issued', 'B0', 'stage0 done', 'stage1 done', 'A loop done', 'phase A done', 'q end'])
    if 'tr' in opt: p.stampset = set(['start', 'q end', 'pre check', 'kv ok', 'qk0 done', 'attn prologue done', 'L done', 'tail setup', 'ctx pub', 'ctx ready'])
    if 'tl' in opt: p.stampset = set(['start', 'L done', 'ctx ready', 'gemm end', 'signalled', 'partials ready', 'partials loaded', 'key out', 'argmax ready', 'ffn atomics done'])
    put = make_put(p)
    S_WQ, S_XNF, S_KF, S_VF, S_CTX = 16, 20, 24, 28, 32
    sM = 36
    sW, sH, sI = 44, 45, 46
    sT0, sT1, sT2 = 47, 48, 49
    sLW = 50
    sWoff = 51
    sXL, sXS = 52, 53
    sKb, sVb = 54, 55
    sHbase = 56
    sSlotP, sSlotR = 57, 58
    sTL, sTS = 59, 60
    sCnt = 61
    sDd = 62
    sFlag = 63
    sCtx = 64
    sLim = 65
    sScale = 61
    sSel = 4
    vLane16 = 1; vRd = 2; vNinf = 3
    vOffW = 4
    vLPW = 8; vT = 9
    vNeg = 16; vCi = 32; vS = 48; vP = 80; vE = 112; vL = 116; vU = 120
    vCW = 120
    vWF = 48
    vO = 128
    aQ = 0; aK = 64; aV = 96; aX = 128
    O = lambda c, db: vO + 32*c + 4*db
    Sr = lambda sc, kb: vS + 8*sc + 4*kb
    Pr = lambda par, c: vP + 16*par + 4*c
    NSLOT = 5

    S_CKV, S_X, S_DBG = 4, 8, 88
    S_WUK, S_WUV = 36, 40
    S_FL = 68
    sTag = 3
    sXcc = 67; sSame = 66
    sASum = sFlag
    sAoff = sDd; sWr = sCtx; sAr = sLim; sWp = sKb; sAp = sVb; sKst = sSlotP
    vOffA = 16
    vLPA = 20; vCA = 21
    vWK = 32; vWV = 64; vAct = 128
    SPIN = 1 << 16
    p(f's_cmp_ge_u32 s2, 256')
    p(f's_cbranch_scc1 {name}_done')
    p.stamp('start')
    if CODE0 and 'nocode' not in opt:
        p('s_lshr_b32 s14, s2, 3')
        p('s_cmp_ge_u32 s14, 12')
        p(f's_cbranch_scc1 {name}_nocode')
        p('s_getpc_b64 s[76:77]')
        p.label(f'{name}_pc')
        p('s_lshl_b32 s14, s14, 13')
        p('v_lshlrev_b32 v9, 5, v0')
        p('v_add_u32 v9, s14, v9')
        p(f'v_min_u32 v9, code_end_all-{name}_pc-4, v9')
        p('v_and_b32 v9, -4, v9')
        p('global_load_dword v23, v9, s[76:77]')
        p.label(f'{name}_nocode')
    p(f's_load_dwordx2 s[84:85], s[0:1], {ARG["x"]}')
    p(f's_load_dwordx2 s[86:87], s[0:1], {ARG["ckv"]}')
    p(f's_load_dwordx4 s[88:91], s[0:1], {ARG["wuk"]}')
    p(f's_load_dwordx2 s[92:93], s[0:1], {ARG["wq"]}')
    p(f's_load_dwordx4 s[96:99], s[0:1], {ARG["dbg"]}')
    p('s_and_b32 s14, s2, 7')
    p('s_lshr_b32 s15, s2, 3')
    p(f's_lshr_b32 s{sH}, s15, 3')
    p(f's_lshl_b32 s14, s14, 2')
    p(f's_add_u32 s{sH}, s{sH}, s14')
    p(f's_and_b32 s{sI}, s15, 7')
    p('v_lshrrev_b32 v2, 6, v0')
    p('v_and_b32 v0, 63, v0')
    p(f'v_readfirstlane_b32 s{sW}, v2')
    p(f'v_lshlrev_b32 v{vLane16}, 4, v0')
    p(f's_getreg_b32 s{sXcc}, hwreg(HW_REG_XCC_ID, 0, 4)')
    w_tile_setup(p, vOffW, vLPW, vT)
    p(f'v_lshrrev_b32 v{vT}, 3, v0')
    p(f'v_lshlrev_b32 v{vT}, 10, v{vT}')
    p(f'v_lshrrev_b32 v{vT+1}, 4, v0')
    p(f'v_and_b32 v{vT+2}, 7, v0')
    p(f'v_xor_b32 v{vT+2}, v{vT+2}, v{vT+1}')
    p(f'v_lshl_add_u32 v{vOffA}, v{vT+2}, 4, v{vT}')
    p(f'v_xor_b32 v{vT+3}, 4, v{vT+2}')
    p(f'v_lshl_add_u32 v{vOffA+1}, v{vT+3}, 4, v{vT}')
    p(f'v_add_u32 v{vOffA+2}, {2*7168}, v{vOffA}')
    p(f'v_add_u32 v{vOffA+3}, {3*7168}, v{vOffA+1}')
    p(f'v_add_u32 v{vOffA+1}, {1*7168}, v{vOffA+1}')
    p(f'v_and_b32 v{vT}, 15, v0')
    p(f'v_bfe_u32 v{vT+1}, v0, 1, 3')
    p(f'v_lshrrev_b32 v{vT+2}, 4, v0')
    p(f'v_xor_b32 v{vT+1}, v{vT+1}, v{vT+2}')
    p(f'v_lshlrev_b32 v{vT}, 7, v{vT}')
    p(f'v_lshl_add_u32 v{vLPA}, v{vT+1}, 4, v{vT}')
    p(f's_lshl_b32 s{sLW}, s{sW}, 12')
    p(f's_lshl_b32 s{sWoff}, s{sW}, 17')
    p(f's_lshl_b32 s{sT1}, s{sH}, 8')
    p(f's_add_u32 s{sWoff}, s{sWoff}, s{sT1}')
    p(f's_lshl_b32 s{sT0}, s{sI}, 8')
    p(f's_lshl_b32 s{sT1}, s{sW}, 6')
    p(f's_add_u32 s{sT0}, s{sT0}, s{sT1}')
    p(f's_lshl_b32 s{sAoff}, s{sT0}, 10')
    sK0 = sXL; sLA = sXS
    p(f's_lshl_b32 s{sHbase}, s{sH}, 6')
    p(f's_lshr_b32 s{sT1}, s{sT0}, 5')
    p(f's_add_u32 s{sHbase}, s{sHbase}, s{sT1}')
    p(f's_lshl_b32 s{sHbase}, s{sHbase}, 13')
    p(f's_lshl_b32 s{sLA}, s{sW}, 13')
    p('s_waitcnt lgkmcnt(0)')
    srd(p, S_CKV, 86, 2048*512*2)
    srd(p, S_WUK, 88, 512*4096*2)
    srd(p, S_WUV, 90, 512*4096*2)
    SL = 16384
    ACT0 = 98304
    def emit(L):
        prev = None
        for it in L:
            if it[0] == 'm' and prev is not None and prev[0] == 's' and ' m0,' in prev[1]: put(('s', 's_nop 0'))
            put(it); prev = it
    def dmaW_static(st):
        base = (st % 3)*32768; L = []
        for mi, sr in enumerate((S_WUK, S_WUV)):
            L += [('s', f's_add_u32 s{sT0}, s{sWoff}, {st*64*8192}'), ('s', f's_add_u32 m0, s{sLW}, {base + mi*SL}')]
            for i in range(4): L.append(('m', f'buffer_load_dwordx4 v{vOffW+i}, s[{sr}:{sr+3}], s{sT0} offen offset:{1024*i} lds', f'W{st}', ('W', base + mi*SL, base + (mi+1)*SL, True)))
        return L
    def dmaA_static(st, adj=0):
        base = ACT0 + (st % 2)*32768; L = []
        for half in range(2):
            L += [('s', f's_add_u32 s{sT1}, s{sAoff}, {(st*128 + 32768*half + adj) & 0xffffffff}'), ('s', f's_add_u32 m0, s{sLA}, {base + 4096*half}')]
            for i in range(4): L.append(('m', f'buffer_load_dwordx4 v{vOffA+i}, s[{S_CKV}:{S_CKV+3}], s{sT1} offen offset:{1024*i} lds', f'A{st}', ('W', base, base + 32768, False)))
        return L
    if 'pp' in opt or 'pa' in opt: p.stamp('setup')
    emit(dmaA_static(0)); emit(dmaW_static(0))
    if 'pp' in opt or 'pa' in opt: p.stamp('A0W0 issued')
    srd(p, S_X, 84, 2048*640*2)
    srd(p, S_WQ, 92, 640*4096*2)
    srd(p, S_XNF, 98, SZ_XNF, WS_XNF)
    srd(p, S_KF, 98, SZ_KF, WS_KF)
    srd(p, S_VF, 98, SZ_KF, WS_VF)
    srd(p, S_CTX, 98, SZ_CTX, WS_CTX)
    srd(p, S_FL, 98, 8192, WS_FLG)
    X = 160; RAW = 200; vXo = 220; vXn = 221; LT = 224
    p(f's_lshl_b32 s{sT1}, s2, 3')
    p(f's_and_b32 s14, s{sW}, 1')
    p(f's_lshl_b32 s14, s14, 2')
    p(f's_add_u32 s{sT1}, s{sT1}, s14')
    p(f'v_and_b32 v{vT}, 3, v0')
    p(f'v_add_u32 v{vT}, s{sT1}, v{vT}')
    p(f'v_lshrrev_b32 v{vT+1}, 2, v0')
    p(f'v_mul_u32_u24 v{vXo}, 1280, v{vT}')
    p(f'v_lshl_add_u32 v{vXo}, v{vT+1}, 4, v{vXo}')
    p(f'v_lshrrev_b32 v{vXn}, 4, v{vT}')
    p(f'v_mul_u32_u24 v{vXn}, 20, v{vXn}')
    p(f'v_lshrrev_b32 v{vT+2}, 2, v{vT+1}')
    p(f'v_add_u32 v{vXn}, v{vXn}, v{vT+2}')
    p(f'v_lshlrev_b32 v{vXn}, 10, v{vXn}')
    p(f'v_and_b32 v{vT+2}, 3, v{vT+1}')
    p(f'v_lshlrev_b32 v{vT+2}, 4, v{vT+2}')
    p(f'v_and_b32 v{vT+3}, 15, v{vT}')
    p(f'v_add_u32 v{vT+2}, v{vT+2}, v{vT+3}')
    p(f'v_lshl_add_u32 v{vXn}, v{vT+2}, 4, v{vXn}')
    for i in range(5):
        p(f'buffer_load_dwordx4 v[{RAW+4*i}:{RAW+4*i+3}], v{vXo}, s[{S_X}:{S_X+3}], 0 offen offset:{256*i}')
    S_LNS = 96
    if WARM:
        p('s_lshr_b32 s14, s2, 3')
        p('s_lshl_b32 s14, s14, 2')
        p(f's_add_u32 s14, s14, s{sW}')
        p('s_lshl_b32 s15, s14, 14')
        p(f'v_lshlrev_b32 v{vT}, 7, v0')
        p(f'buffer_load_dword v23, v{vT}, s[{S_CKV}:{S_CKV+3}], s15 offen')
        p('s_add_u32 s15, s15, 8192')
        p(f'buffer_load_dword v23, v{vT}, s[{S_CKV}:{S_CKV+3}], s15 offen')
        if WARM > 1:
            p(f's_lshl_b32 s14, s{sI}, 2')
            p(f's_add_u32 s14, s14, s{sW}')
            p('s_lshl_b32 s14, s14, 17')
            p(f's_lshl_b32 s15, s{sH}, 8')
            p('s_add_u32 s14, s14, s15')
            p(f'v_bfe_u32 v{vT}, v0, 1, 4')
            p(f'v_lshlrev_b32 v{vT}, 13, v{vT}')
            p(f'v_and_b32 v{vT+1}, 1, v0')
            p(f'v_lshl_add_u32 v{vT}, v{vT+1}, 7, v{vT}')
            p(f'buffer_load_dword v23, v{vT}, s[{S_WUK}:{S_WUK+3}], s14 offen')
            p(f'buffer_load_dword v23, v{vT}, s[{S_WUV}:{S_WUV+3}], s14 offen')
    if not CODE0:
        if 'nocode' not in opt:
            p(f's_lshr_b32 s14, s2, 3')
            p(f's_cmp_ge_u32 s14, 12')
            p(f's_cbranch_scc1 {name}_nocode')
            p(f's_cmp_lg_u32 s{sW}, 3')
            p(f's_cbranch_scc1 {name}_nocode')
            p('s_getpc_b64 s[76:77]')
            p.label(f'{name}_pc')
            p(f's_lshl_b32 s14, s14, 13')
            p(f'v_lshlrev_b32 v{vT}, 7, v0')
            p(f'v_add_u32 v{vT}, s14, v{vT}')
            p(f'v_min_u32 v{vT}, code_end_all-{name}_pc-4, v{vT}')
            p(f'v_and_b32 v{vT}, -4, v{vT}')
            p(f'global_load_dword v{vT+2}, v{vT}, s[76:77]')
            p.label(f'{name}_nocode')
    if 'tlb' in opt:
        p('s_mov_b32 s76, s98'); p('s_mov_b32 s77, s99'); p(f's_mov_b32 s78, {96*MiB}'); p('s_mov_b32 s79, 0x00020000')
        p(f'v_mov_b32 v{vT}, {WS_FLG}')
        p(f's_add_u32 s14, s{sHbase}, {WS_KF}'); p(f'v_writelane_b32 v{vT}, s14, 1')
        p(f's_add_u32 s14, s{sHbase}, {WS_VF}'); p(f'v_writelane_b32 v{vT}, s14, 2')
        p(f's_lshl_b32 s15, s{sH}, 19')
        for k in range(2):
            p(f's_add_u32 s14, s15, {WS_KF + k*524160}'); p(f'v_writelane_b32 v{vT}, s14, {3 + 2*k}')
            p(f's_add_u32 s14, s15, {WS_VF + k*524160}'); p(f'v_writelane_b32 v{vT}, s14, {4 + 2*k}')
        p(f's_mov_b32 s14, {WS_XNF}'); p(f'v_writelane_b32 v{vT}, s14, 7')
        p(f's_mov_b32 s14, {WS_XNF + 2*MiB}'); p(f'v_writelane_b32 v{vT}, s14, 8')
        p(f's_sub_u32 s14, 15, s{sI}'); p('s_lshl_b32 s14, s14, 20'); p(f's_add_u32 s14, s14, {WS_CTX}'); p(f'v_writelane_b32 v{vT}, s14, 9')
        p(f's_lshl_b32 s14, s{sI}, 20'); p(f's_add_u32 s14, s14, {WS_CTX}'); p(f'v_writelane_b32 v{vT}, s14, 10')
        p(f'buffer_load_dword v{vT+2}, v{vT}, s[76:79], 0 offen')
    if 'pp' in opt: p.stamp('x issued')
    srd(p, S_DBG, 96, 256)
    p('v_mov_b32 v26, 0')
    p('s_or_b32 s14, s2, 0')
    p(f's_add_u32 s14, s2, s{sW}')
    p('s_cmp_lg_u32 s14, 0')
    p(f's_cbranch_scc1 {name}_notag')
    p('s_memrealtime s[92:93]')
    p('s_waitcnt lgkmcnt(0)')
    p('s_or_b32 s92, s92, 1')
    p('v_mov_b32 v24, s92')
    p(f'buffer_store_dword v24, v26, s[{S_DBG}:{S_DBG+3}], 0 offen sc1')
    p.label(f'{name}_notag')
    if 'pp' in opt: p.stamp('tag issued')
    if not LATE1:
        emit(dmaA_static(1)); emit(dmaW_static(1))
    (p.stamp('dma issued') if 'pq' not in opt else None)
    p('s_cmp_lg_u32 s2, 0')
    p(f's_cbranch_scc1 {name}_nz')
    p(f's_add_u32 s76, s98, {WS_YACC}')
    p('s_addc_u32 s77, s99, 0')
    p(f's_mov_b32 s78, {SZ_ZERO}')
    p('s_mov_b32 s79, 0x00020000')
    for r in range(4): p(f'v_mov_b32 v{28+r}, 0')
    p(f's_mul_i32 s14, s{sW}, 7168')
    for i in range(7):
        p(f'buffer_store_dwordx4 v[28:31], v{vLane16}, s[76:79], s14 offen sc1')
        p(f's_add_u32 s14, s14, 1024')
    p.label(f'{name}_nz')
    p(f's_add_u32 s96, s98, {WS_XNF}')
    p('s_addc_u32 s97, s99, 0')
    p(f's_mov_b32 s98, {SZ_XNF}')
    p('s_mov_b32 s99, 0x00020000')
    p(f's_cmp_lt_u32 s{sW}, 2')
    p('s_cselect_b32 s98, s98, 0')
    p('s_waitcnt vmcnt(0)' if LATE1 else 's_waitcnt vmcnt(16)')
    p('s_barrier')
    (p.stamp('B0') if 'pq' not in opt else None)
    def rd_act(buf, kin, tb, lab):
        r = vAct + 16*buf + 4*tb
        return ('r', f'ds_read_b128 v[{r}:{r+3}], v{vCA+kin} offset:{2048*tb}', lab)
    def rd_wA(mi, db, kin, lab):
        r = (vWK if mi == 0 else vWV) + 4*db
        return [('r', f'ds_read_b64_tr_b16 v[{r+2*h}:{r+2*h+1}], v{vCW+db} offset:{mi*SL + 8192*kin + 1024*h}', lab) for h in range(2)]
    updA = [('v', f'v_add_u32 v{vCA}, s{sAr}, v{vLPA}'), ('v', f'v_xor_b32 v{vCA+1}, 64, v{vCA}')]
    updWd = [('v', f'v_add_u32 v{vCW}, s{sWr}, v{vLPW}')] + [('v', f'v_xor_b32 v{vCW+db}, {db*32}, v{vCW}') for db in range(1, 8)]
    KA = lambda tb, db: (tb*8 + db)*4
    VA = lambda tb, db: 128 + ((tb >> 1)*16 + db*2 + (tb & 1))*4
    def stageA_mfmas(first):
        L = []
        for kin in range(2):
            for db in range(8):
                for tb in range(4):
                    a = KA(tb, db); f = vAct + 16*kin + 4*tb
                    c = '0' if (first and kin == 0) else f'a[{a}:{a+3}]'
                    L.append(f'{MF} a[{a}:{a+3}], v[{vWK+4*db}:{vWK+4*db+3}], v[{f}:{f+3}], {c}')
                for tb in range(4):
                    a = VA(tb, db); f = vAct + 16*kin + 4*tb
                    c = '0' if (first and kin == 0) else f'a[{a}:{a+3}]'
                    L.append(f'{MF} a[{a}:{a+3}], v[{f}:{f+3}], v[{vWV+4*db}:{vWV+4*db+3}], {c}')
        return L
    GA = lambda kin, db, m: kin*64 + db*8 + m
    def spread(R, L, g0, g1):
        nm = sum(1 for x in L if x[0] in ('m', 'l', 'st'))
        step = max(1, (g1 - g0) // max(nm, 1))
        g = g0; cnt = 0; prev = None
        for it in L:
            e = max(g, g0 + cnt*step - (2 if it[0] == 's' else 0))
            if it[0] == 'm' and prev is not None and prev[0] == 's' and ' m0,' in prev[1]: e = max(e, gprev + 1)
            g = R.place(it, e, g1); gprev = g; prev = it
            if it[0] in ('m', 'l', 'st'): cnt += 1; g += 1
    def stageA(kind, dmaA_items, dmaB_items, barlabs, next_reads=None, mid=None, first=False, bend=None):
        R = Region(stageA_mfmas(first))
        BG = GA(1, 0, 7)
        R.S[BG].append(('bar', barlabs))
        if mid: R.S[BG].extend(mid)
        if next_reads is None:
            R.S[GA(1, 0, 1)].append(('s', f's_add_u32 s{sWr}, s{sWr}, 32768'))
            R.S[GA(1, 0, 2)].append(('s', f's_cmp_ge_u32 s{sWr}, 98304\ns_cselect_b32 s{sWr}, 0, s{sWr}'))
            R.S[GA(1, 0, 3)].append(('s', f's_sub_u32 s{sAr}, s{sASum}, s{sAr}'))
            R.stream(updA + updWd, GA(1, 0, 4), GA(1, 2, 0))
        else:
            R.stream(next_reads[0], GA(1, 0, 4), GA(1, 2, 0))
        for kin in range(2):
            for db in range(8):
                for mi in range(2):
                    if kin == 0 and db == 0 and mi == 0: continue
                    labs = [f'w{kin}_{mi}_{db}'] + ([f'act{kin}'] if (db == 0 and mi == 0) else [])
                    R.place(('wlg', labs), GA(kin, db, 4*mi) - 1, force=True)
        for db in range(8):
            for mi in range(2):
                rr = rd_wA(mi, db, 1, f'w1_{mi}_{db}')
                e = GA(0, db, 4*mi + 3)
                g = R.place(rr[0], e, GA(1, 0, 0)); R.place(rr[1], min(g + 1, GA(1, 0, 0)), GA(1, 0, 0))
        for tb in range(4): R.place(rd_act(1, 1, tb, 'act1'), GA(0, 1, 1) + 5*tb)
        if next_reads is None:
            for db in range(8):
                for mi in range(2):
                    rr = rd_wA(mi, db, 0, f'n0_{mi}_{db}')
                    e = max(GA(1, db, 4*mi + 3), GA(1, 2, 1))
                    g = R.place(rr[0], e); R.place(rr[1], g + 1)
            for tb in range(4): R.place(rd_act(0, 0, tb, 'nact0'), GA(1, 2, 2) + 5*tb)
        else:
            for (it, e) in next_reads[1]: R.place(it, max(e, GA(1, 2, 1)))
        if 'nodmaA' in opt and kind in ('s0', 's1', 'loop'): dmaA_items = [x for x in dmaA_items if x[0] != 'm']; dmaB_items = [x for x in dmaB_items if x[0] != 'm']
        if 'nowA' in opt and kind in ('s0', 's1', 'loop'):
            for g in range(R.n): R.S[g] = [x for x in R.S[g] if x[0] != 'wlg']
        if 'nordsA' in opt and kind in ('s0', 's1', 'loop'):
            for g in range(R.n): R.M[g] = []; R.S[g] = [x for x in R.S[g] if x[0] != 'wlg']
        spread(R, dmaA_items, 1, BG - 2)
        spread(R, dmaB_items, BG + 1, bend if bend else R.n - 2)
        return R
    def dyn_dmaW():
        L = []
        for mi, sr in enumerate((S_WUK, S_WUV)):
            L += [('s', f's_add_u32 m0, s{sWp}, {mi*SL}')]
            for i in range(4): L.append(('m', f'buffer_load_dwordx4 v{vOffW+i}, s[{sr}:{sr+3}], s{sKst} offen offset:{1024*i} lds', 'Wn', None))
        L += [('s', f's_add_u32 s{sKst}, s{sKst}, {64*8192}'), ('s', f's_add_u32 s{sWp}, s{sWp}, 32768'),
              ('s', f's_cmp_ge_u32 s{sWp}, 98304\ns_cselect_b32 s{sWp}, s{sLW}, s{sWp}')]
        return L
    def dyn_dmaA():
        L = []
        for half in range(2):
            L += [('s', f's_add_u32 s{sT1}, s{sAoff}, {32768*half}'), ('s', f's_add_u32 m0, s{sAp}, {4096*half}')]
            for i in range(4): L.append(('m', f'buffer_load_dwordx4 v{vOffA+i}, s[{S_CKV}:{S_CKV+3}], s{sT1} offen offset:{1024*i} lds', 'An', None))
        L += [('s', f's_add_u32 s{sAoff}, s{sAoff}, 128'), ('s', f's_sub_u32 s{sAp}, s{sASum}, s{sAp}')]
        if TA: L.append(('l', f'buffer_load_dword v31, v30, s[{S_CKV}:{S_CKV+3}], s{sAoff} offen', 'TCH'))
        return L
    p('v_lshlrev_b32 v30, 10, v0')
    p(f's_mov_b32 s{sWr}, 0')
    p(f's_add_u32 s{sAr}, s{sLA}, {ACT0}')
    p(f's_add_u32 s{sWp}, s{sLW}, 65536')
    p(f's_add_u32 s{sAp}, s{sLA}, {ACT0}')
    p(f's_lshl_b32 s{sASum}, s{sAp}, 1')
    p(f's_add_u32 s{sASum}, s{sASum}, 32768')
    p(f's_add_u32 s{sKst}, s{sWoff}, {2*64*8192}')
    p(f's_add_u32 s{sAoff}, s{sAoff}, 256')
    emit(updA + updWd)
    p.lgq = []; p.lg_ret = -1
    for tb in range(4): put(rd_act(0, 0, tb, 'act0'))
    for db in range(8):
        for mi in range(2): emit(rd_wA(mi, db, 0, f'w0_{mi}_{db}'))
    def next_order(R):
        L = []
        for g in range(R.n):
            for it in R.M[g]:
                if it[0] == 'r' and (it[2].startswith('n0_') or it[2] == 'nact0'):
                    L.append('act0' if it[2] == 'nact0' else 'w0_' + it[2][3:])
        return L
    order = [None]
    def relabel():
        p.lgq = list(order[0]); p.lg_ret = -1
    def bar_raw(n):
        if 'nobarA' in opt: return ('w', f's_waitcnt vmcnt({n}) lgkmcnt(0)')
        return ('w', f's_waitcnt vmcnt({n}) lgkmcnt(0)\ns_barrier')
    BG = GA(1, 0, 7)
    def fix_bar(R, n, extra=()):
        R.S[BG] = [bar_raw(n), ('call', lambda: p.lg_all())] + list(extra) + [x for x in R.S[BG] if x[0] != 'bar']
    def red64x4(r):
        L = []
        for sh in (8, 4): L += ['s_nop 1', f'v_add_f32_dpp v{r}, v{r}, v{r} row_ror:{sh} row_mask:0xf bank_mask:0xf']
        for sw in ('v_permlane16_swap_b32', 'v_permlane32_swap_b32'):
            L += [f'v_mov_b32 v{LT+6}, v{r}', 's_nop 1', f'{sw} v{r}, v{LT+6}', 's_nop 1', f'v_add_f32 v{r}, v{r}, v{LT+6}']
        return L
    lnops = []
    for i in range(5): lnops += unpack8(RAW + 4*i, X + 8*i)
    lnops += ln_stream(X, 40, LT, red64x4, scale='0x3e0293ee')
    ln = [('v', x) for x in lnops]
    for i in range(5):
        ln.append(('s', f's_mov_b32 s14, {4096*i}'))
        ln.append(('st', f'buffer_store_dwordx4 v[{X+4*i}:{X+4*i+3}], v{vXn}, s[{S_LNS}:{S_LNS+3}], s14 offen sc1'))
    half = len(ln) // 2
    def tag_read():
        p('s_mov_b32 s14, 0')
        p.label(f'{name}_tagpoll')
        p(f'v_readfirstlane_b32 s{sTag}, v24')
        p('s_add_u32 s14, s14, 1')
        p('s_nop 2')
        p(f's_cmp_lg_u32 s{sTag}, 0')
        p(f's_cbranch_scc1 {name}_notag2')
        p(f's_cmp_ge_u32 s14, {SPIN}')
        p(f's_cbranch_scc1 {name}_notag2')
        p(f'buffer_load_dword v24, v26, s[{S_DBG}:{S_DBG+3}], 0 offen sc1')
        p('s_waitcnt vmcnt(0)')
        p(f's_branch {name}_tagpoll')
        p.label(f'{name}_notag2')
    def pub_ln():
        p(f's_cmp_lg_u32 s{sCnt}, {1 if TA else 0}')
        p(f's_cbranch_scc1 {name}_nopub')
        p(f's_cmp_lg_u32 s{sW}, 0')
        p(f's_cbranch_scc1 {name}_nopub')
        p(f's_lshl_b32 s14, s2, 3')
        p(f'v_mov_b32 v24, s{sTag}')
        p(f'v_mov_b32 v25, s{sXcc}')
        p('v_mov_b32 v26, 0')
        p(f'buffer_store_dwordx2 v[24:25], v26, s[{S_FL}:{S_FL+3}], s14 offen sc1')
        p.label(f'{name}_nopub')
    R0 = stageA('s0', (dmaA_static(1, -256) + dmaW_static(1) if LATE1 else []) + dyn_dmaW(), dyn_dmaA(), None, first=True, bend=BG + 34)
    fix_bar(R0, 8)
    R0.place(('l', f'buffer_load_dword v24, v26, s[{S_DBG}:{S_DBG+3}], 0 offen sc1', 'TAG'), BG + 1, force=True)
    R0.period = 20; R0.stream(ln[:half], 4, None, pace=lambda k: 4 + (k*120)//half); R0.period = 16
    p.lgq = ['act0']*4 + [f'w0_{mi}_{db}' for db in range(8) for mi in range(2) for _ in range(2)]; p.lg_ret = -1
    put(('wlg', ['w0_0_0', 'act0']))
    R0.emit(p, put); order[0] = next_order(R0)
    p.stamp('stage0 done')
    R1_ = stageA('s1', dyn_dmaW(), dyn_dmaA(), None, bend=BG + 34)
    fix_bar(R1_, 9 if TA else 8, [('call', tag_read)])
    nv = [x for x in ln[half:] if x[0] == 'v']; tail = ln[half + len(nv):]
    R1_.period = 20; g = R1_.stream(ln[half:], 0, None, pace=lambda k: min((k*118)//(len(ln) - half), 200) if ln[half + k][0] == 'v' else BG + 2); R1_.period = 16
    relabel(); put(('wlg', ['w0_0_0', 'act0']))
    R1_.emit(p, put); order[0] = next_order(R1_)
    print('stage0/1 est', R0.total(), R1_.total())
    p.stamp('stage1 done')
    p(f's_mov_b32 s{sCnt}, 0')
    LA = f'{name}_stageA'
    p.label(LA)
    Rl = stageA('loop', dyn_dmaW(), dyn_dmaA(), None, bend=BG + 34)
    fix_bar(Rl, 9 if TA else 8, [('call', pub_ln)])
    Rl.T[Rl.n - 1] += [('s', f's_add_u32 s{sCnt}, s{sCnt}, 1'), ('s', f's_cmp_lt_u32 s{sCnt}, 4')]
    assert 'nordsA' in opt or next_order(Rl) == order[0], 'stage read order must be periodic'
    relabel()
    put(('wlg', ['w0_0_0', 'act0']))
    Rl.emit(p, put)
    print('stageA loop est', Rl.total(), 'overflow', Rl.over)
    p(f's_cbranch_scc1 {LA}')
    if 'pp' not in opt: (p.stamp('A loop done') if 'pq' not in opt else None)
    def dma_wq(c):
        L = [('s', f's_add_u32 s{sT0}, s{sWoff}, {c*64*8192}'), ('s', f's_add_u32 m0, s{sLW}, {c*SL}')]
        for i in range(4):
            L.append(('m', f'buffer_load_dwordx4 v{vOffW+i}, s[{S_WQ}:{S_WQ+3}], s{sT0} offen offset:{1024*i} lds', f'WQ{c}', None))
        return L
    relabel()
    put(('wlg', ['w0_0_0', 'act0']))
    flagld = [('s', f's_sub_u32 s{sTL}, 15, s{sI}'), ('s', f's_mov_b32 s{sTS}, s{sI}'),
              ('v', f'v_and_b32 v24, 15, v0'), ('v', f'v_bfe_u32 v25, v0, 4, 1'),
              ('v', f'v_mov_b32 v26, s{sTL}'), ('v', f'v_mov_b32 v27, s{sTS}'),
              ('v', f'v_cmp_eq_u32 vcc, 0, v25'), ('v', 's_nop 1'), ('v', f'v_cndmask_b32 v26, v27, v26, vcc'),
              ('v', f'v_lshl_add_u32 v24, v26, 4, v24'),
              ('s', f's_and_b32 s14, s{sH}, 3'), ('s', f's_lshl_b32 s14, s14, 6'), ('s', f's_lshr_b32 s15, s{sH}, 2'), ('s', f's_add_u32 s14, s14, s15'),
              ('v', f'v_and_b32 v25, 7, v0'), ('v', f'v_lshlrev_b32 v25, 3, v25'), ('v', f'v_add_u32 v25, s14, v25'),
              ('v', f'v_cmp_gt_u32 vcc, 32, v0'), ('v', 's_nop 1'), ('v', f'v_cndmask_b32 v24, v25, v24, vcc'),
              ('v', f'v_lshlrev_b32 v24, 3, v24'),
              ('l', f'buffer_load_dwordx2 v[28:29], v24, s[{S_FL}:{S_FL+3}], 0 offen sc1', 'FL')]
    R6 = stageA('s6', dma_wq(4) + dma_wq(5), dma_wq(0) + dma_wq(1), None)
    fix_bar(R6, 9 if TA else 8)
    R6.stream(flagld, BG + 24)
    R6.emit(p, put)
    order[0] = next_order(R6)
    XR = [16, 96, 32, 80]
    XRING = [('v', 16), ('v', 96), ('v', 32), ('v', 80), ('a', 0), ('a', 16), ('a', 32), ('a', 48)]
    def xreg(ks, c):
        t, b = XRING[ks % 8]
        return f'{t}[{b+4*c}:{b+4*c+3}]'
    def xn_load(ks):
        L = []
        for c in range(4):
            off = ks*1024 + (c & 1)*20480
            sb = sXL if c < 2 else sXS
            L.append(('s', f's_add_u32 s{sT1}, s{sb}, {off & ~4095}'))
            L.append(('l', f'buffer_load_dwordx4 {xreg(ks, c)}, v{vLane16}, s[{S_XNF}:{S_XNF+3}], s{sT1} offen offset:{off & 4095} sc1', f'XN{ks}'))
        return L
    def rd_w(db, kin, base, lab):
        r = vWF + 4*db
        return [('r', f'ds_read_b64_tr_b16 v[{r+2*h}:{r+2*h+1}], v{vCW+db} offset:{8192*kin + 1024*h}', lab, None) for h in range(2)]
    def upd_w(base):
        return [('v', f'v_add_u32 v{vCW}, {base}, v{vLPW}')] + [('v', f'v_xor_b32 v{vCW+db}, {db*32}, v{vCW}') for db in range(1, 8)]
    def lncheck():
        p(f's_cmp_lg_u32 s{sW}, 0')
        p(f's_cbranch_scc1 {name}_lnok')
        p('s_mov_b32 s14, 0')
        p.label(f'{name}_lnpoll')
        p(f'v_cmp_ne_u32 vcc, s{sTag}, v28')
        p('s_add_u32 s14, s14, 1')
        p(f's_cbranch_vccz {name}_lnok2')
        p(f's_cmp_ge_u32 s14, {SPIN}')
        p(f's_cbranch_scc1 {name}_lnok2')
        p(f'buffer_load_dwordx2 v[28:29], v24, s[{S_FL}:{S_FL+3}], 0 offen sc1')
        p('s_waitcnt vmcnt(0)')
        p(f's_branch {name}_lnpoll')
        p.label(f'{name}_lnok2')
        p(f'v_cmp_ne_u32 vcc, s{sXcc}, v29')
        p('s_nop 1')
        p('s_lshr_b64 s[14:15], vcc, 32')
        p('s_cmp_eq_u64 s[14:15], 0')
        p(f's_cselect_b32 s{sSame}, 1, 0')
        p.label(f'{name}_lnok')
    relabel()
    put(('wlg', ['w0_0_0', 'act0']))
    xset = [('s', f's_lshl_b32 s{sT1}, s{sTL}, 3'), ('s', f's_lshl_b32 s{sT0}, s{sW}, 1'), ('s', f's_add_u32 s{sT1}, s{sT1}, s{sT0}'),
            ('s', f's_mul_i32 s{sXL}, s{sT1}, 20480'), ('s', f's_lshl_b32 s{sT1}, s{sTS}, 3'), ('s', f's_add_u32 s{sT1}, s{sT1}, s{sT0}'),
            ('s', f's_mul_i32 s{sXS}, s{sT1}, 20480')]
    def last_use(db):
        r = vWF + 4*db
        if r < 64: return GA(1, (r - vWK)//4, 3)
        return GA(1, (r - vWV)//4, 7)
    nr = []
    for db in range(8):
        for it in rd_w(db, 0, 0, f'w0_{db}'): nr.append((it, last_use(db) + 1))
    R7 = stageA('s7', xset + dma_wq(6) + dma_wq(7), dma_wq(2) + dma_wq(3) + dma_wq(8) + dma_wq(9), None, next_reads=(upd_w(0), nr))
    R7.S[BG] = [('call', lambda: (p('s_waitcnt vmcnt(8) lgkmcnt(0)'), p.lg_all(), lncheck(), p('s_barrier')))] + [x for x in R7.S[BG] if x[0] != 'bar']
    R7.stream(xn_load(0) + xn_load(1), BG + 2)
    R7.stream(xn_load(2), GA(1, 4, 0))
    R7.emit(p, put)
    if 'pp' not in opt: p.stamp('phase A done')
    NKS = 20
    mf = []
    for ks in range(NKS):
        for db in range(8):
            for c in range(4):
                acc = O(c, db)
                cc = '0' if ks == 0 else f'v[{acc}:{acc+3}]'
                mf.append(f'{MF} v[{acc}:{acc+3}], v[{vWF+4*db}:{vWF+4*db+3}], {xreg(ks, c)}, {cc}')
    R = Region(mf)
    G = lambda ks, db, c: ks*32 + db*4 + c
    p.wait_vm('XN0')
    put(('wlg', ['w0_0', 'w0_1']))
    R.S[G(3, 0, 3)].append(('bar', ['WQ2', 'WQ3', 'WQ8', 'WQ9', 'WQ4', 'WQ5', 'WQ6', 'WQ7']))
    for ch in range(9):
        R.stream(upd_w((ch + 1)*SL), G(2*ch + 1, 0, 1), G(2*ch + 1, 2, 0))
    for ks in range(NKS):
        for db in range(0, 8, 2):
            if ks == 0 and db == 0: continue
            R.place(('wlg', [f'w{ks}_{db}', f'w{ks}_{db+1}']), G(ks, db, 0) - 1, force=True)
        if ks: R.place(('wvm', f'XN{ks}'), G(ks, 0, 0) - 2, force=True)
    for ks in range(NKS - 1):
        ch, t = divmod(ks, 2); nxt = ks + 1; nch, nt = divmod(nxt, 2)
        for db in range(8):
            e = G(ks, db, 3)
            if t == 1: e = max(e, G(ks, 2, 1))
            rr = rd_w(db, nt, nch*SL, f'w{nxt}_{db}')
            lat = G(ks + 1, 0, 0) if t == 0 else None
            g = R.place(rr[0], e, lat); R.place(rr[1], g + 1 if t == 1 or db < 7 else g, lat)
    TE = 112
    STF = ''
    for o_ in opt:
        if o_.startswith('stf='): STF = o_[4:]
    sSt = sCtx
    epi = []
    sStB = sHbase
    for kind in range(2):
        for f in range(16):
            if kind == 0:
                tb, k4 = divmod(f, 4); a0 = KA(tb, 2*k4); off = tb*4096 + k4*1024; sr = S_KF
            else:
                b, db = divmod(f, 8); a0 = 128 + (b*16 + db*2)*4; off = b*8192 + db*1024; sr = S_VF
            for k in range(8): epi.append(('v', f'v_accvgpr_read_b32 v{TE+k}, a{a0+k}'))
            for k in range(4): epi.append(('v', f'v_cvt_pk_bf16_f32 v{TE+k}, v{TE+2*k}, v{TE+2*k+1}'))
            epi.append(('s', f's_add_u32 s{sSt}, s{sStB}, {off & ~4095}'))
            epi.append(('st', f'buffer_store_dwordx4 v[{TE}:{TE+3}], v{vLane16}, s[{sr}:{sr+3}], s{sSt} offen offset:{off & 4095} {(KSTF if (kind == 0 and KSTF is not None) else (VSTF if (kind == 1 and VSTF is not None) else STF))}'))
            if 'nost' in opt: epi.pop()
            epi.append(('s', 's_nop 0'))
    KS_V = int(next((o_[3:] for o_ in opt if o_.startswith('kv=')), '19'))
    g0 = 12; span = G(KS_V, 4, 0) - g0
    gl = R.stream(epi, g0, None, pace=lambda k: g0 + (k*span)//len(epi))
    freed = {}
    for g in range(R.n):
        for it in R.V[g]:
            if it[1].startswith('v_accvgpr_read'): freed[int(it[1].split(' a')[-1])] = g
    gprev = 0
    for ks in range(3, NKS):
        t, b = XRING[ks % 8]
        if t == 'a' and ks < 8: e = max(freed[r] for r in range(b, b + 16)) + 1
        elif ks >= 8: e = G(ks - 8, 7, 3) + 1
        else: e = 0
        e = max(e, gprev + 1, G(max(ks - 7, 0), 0, 0))
        lat = G(ks, 0, 0) - 40 if ks > 3 else G(1, 0, 0)
        gprev = R.stream(xn_load(ks), e, max(lat, e + 8))
    FK, FV = 4096, 5120
    def publish(off, lab, waitlabel):
        p.wait_vm(waitlabel)
        p('s_barrier')
        p(f's_cmp_lg_u32 s{sW}, 0')
        p(f's_cbranch_scc1 {name}_{lab}pub')
        p(f's_lshl_b32 s14, s{sH}, 3')
        p(f's_add_u32 s14, s14, s{sI}')
        p(f's_lshl_b32 s14, s14, 2')
        p(f's_add_u32 s14, s14, {off}')
        p(f'v_mov_b32 v12, s{sTag}')
        p('v_mov_b32 v13, 0')
        p(f's_cmp_eq_u32 s{sSame}, 1')
        p(f's_cbranch_scc1 {name}_{lab}rel')
        p('buffer_wbl2 sc1')
        p('s_waitcnt vmcnt(0)')
        p(f'buffer_store_dword v12, v13, s[{S_FL}:{S_FL+3}], s14 offen sc1')
        p(f's_branch {name}_{lab}pub')
        p.label(f'{name}_{lab}rel')
        p(f'buffer_store_dword v12, v13, s[{S_FL}:{S_FL+3}], s14 offen')
        p.label(f'{name}_{lab}pub')
    def flag_load(off, lab):
        return [('s', f's_lshl_b32 s15, s{sH}, 5'), ('s', f's_add_u32 s15, s15, {off}'),
                ('v', 'v_and_b32 v13, 7, v0'), ('v', 'v_lshlrev_b32 v13, 2, v13'),
                ('l', f'buffer_load_dword v12, v13, s[{S_FL}:{S_FL+3}], s15 offen sc1', lab)]
    def check(lab, waitlabel):
        p.wait_vm(waitlabel, 'lgkmcnt(0)'); p.lg_all()
        p(f's_cmp_lg_u32 s{sW}, 0')
        p(f's_cbranch_scc1 {name}_{lab}ok')
        p('s_mov_b32 s14, 0')
        p.label(f'{name}_{lab}poll')
        p(f'v_cmp_ne_u32 vcc, s{sTag}, v12')
        p('s_add_u32 s14, s14, 1')
        p(f's_cbranch_vccz {name}_{lab}ok2')
        p(f's_cmp_ge_u32 s14, {SPIN}')
        p(f's_cbranch_scc1 {name}_{lab}ok2')
        p(f'buffer_load_dword v12, v13, s[{S_FL}:{S_FL+3}], s15 offen sc1')
        p('s_waitcnt vmcnt(0)')
        p(f's_branch {name}_{lab}poll')
        p.label(f'{name}_{lab}ok2')
        p(f's_cmp_eq_u32 s{sSame}, 1')
        p(f's_cbranch_scc1 {name}_{lab}ok')
        p('buffer_inv sc1')
        p('s_waitcnt vmcnt(0)')
        p.label(f'{name}_{lab}ok')
        p('s_barrier')
    def att_state():
        p(f's_lshl_b32 s{sKb}, s{sH}, 19')
        p(f's_add_u32 s{sKb}, s{sKb}, s{sLW}')
        p(f's_mov_b32 s{sVb}, s{sKb}')
    def unitK(slot, label):
        L = [('s', f's_add_u32 m0, s{sLW}, {slot*32768}')]
        for i in range(4): L.append(('m', f'buffer_load_dwordx4 v{vLane16}, s[{S_KF}:{S_KF+3}], s{sKb} offen offset:{1024*i}{KVLD} lds', label, None))
        return L + [('s', f's_add_u32 s{sKb}, s{sKb}, 16384')]
    def unitV(slot, label):
        L = [('s', f's_add_u32 m0, s{sLW}, {slot*32768 + SL}')]
        for i in range(4): L.append(('m', f'buffer_load_dwordx4 v{vLane16}, s[{S_VF}:{S_VF+3}], s{sVb} offen offset:{1024*i}{KVLD} lds', label, None))
        return L + [('s', f's_add_u32 s{sVb}, s{sVb}, 16384')]
    def dma_K(label, tagbase=None):
        L = [('s', f's_mov_b32 m0, s{sSlotP}')]
        for i in range(4):
            L.append(('m', f'buffer_load_dwordx4 v{vLane16}, s[{S_KF}:{S_KF+3}], s{sKb} offen offset:{1024*i}{KVLD} lds', label, None))
        L += [('s', f's_add_u32 s{sKb}, s{sKb}, 16384')]
        return L
    def dma_V(label, tagbase=None):
        L = [('s', f's_add_u32 m0, s{sSlotP}, {SL}')]
        for i in range(4):
            L.append(('m', f'buffer_load_dwordx4 v{vLane16}, s[{S_VF}:{S_VF+3}], s{sVb} offen offset:{1024*i}{KVLD} lds', label, None))
        L += [('s', f's_add_u32 s{sVb}, s{sVb}, 16384')]
        return L
    adv_slot = [('s', f's_add_u32 s{sSlotP}, s{sSlotP}, 32768'), ('s', f's_cmp_ge_u32 s{sSlotP}, {NSLOT*32768}\ns_cselect_b32 s{sSlotP}, s{sLW}, s{sSlotP}')]
    R.emit(p, put)
    print('fused qproj overflow', R.over, 'est', R.total())
    if 'pp' not in opt: p.stamp('q end')
    p(f's_mov_b32 s{sFlag}, 0')
    p(f's_mov_b32 s{sLim}, {hex(LIM)}')
    def touch_setup():
        p(f's_load_dwordx2 s[92:93], s[0:1], {ARG["wo"]}')
        p(f's_load_dwordx2 s[94:95], s[0:1], {ARG["wg"]}')
        p(f's_load_dwordx2 s[96:97], s[0:1], {ARG["wu"]}')
        p(f's_load_dwordx2 s[98:99], s[0:1], {ARG["wd"]}')
        p('s_lshl_b32 s14, s2, 2')
        p(f's_add_u32 s14, s14, s{sW}')
        p('s_mul_i32 s14, s14, 40')
        p('v_min_u32 v14, 39, v0')
        p('v_add_u32 v14, s14, v14')
        p('v_lshlrev_b32 v14, 7, v14')
        p('s_lshr_b32 s14, s2, 6')
        p('s_lshl_b32 s14, s14, 2')
        p(f's_and_b32 s15, s{sI}, 3')
        p('s_add_u32 s14, s14, s15')
        p('s_lshl_b32 s14, s14, 3')
        p('s_and_b32 s15, s2, 7')
        p('s_add_u32 s14, s14, s15')
        p('s_lshl_b32 s14, s14, 2')
        p(f's_add_u32 s14, s14, s{sW}')
        p('s_mul_i32 s14, s14, 34')
        p('v_min_u32 v15, 33, v0')
        p('v_add_u32 v15, s14, v15')
        p('v_min_u32 v15, 17279, v15')
        p('v_lshlrev_b32 v15, 7, v15')
        p('s_waitcnt lgkmcnt(0)')
    touch_items = [('l', 'global_load_dword v13, v14, s[92:93]', 'T'), ('l', 'global_load_dword v13, v15, s[94:95]', 'T'),
                   ('l', 'global_load_dword v13, v15, s[96:97]', 'T'), ('l', 'global_load_dword v13, v15, s[98:99]', 'T')]
    att_state()
    if FP == 'pace':
        p(f's_load_dwordx2 s[92:93], s[0:1], {ARG["wg"]}')
        p(f's_load_dwordx2 s[94:95], s[0:1], {ARG["wu"]}')
        p(f's_load_dwordx2 s[96:97], s[0:1], {ARG["wd"]}')
        p('s_lshr_b32 s14, s2, 6')
        p('s_lshl_b32 s14, s14, 1')
        p(f's_add_u32 s14, s14, s{sI}')
        p('s_sub_u32 s14, s14, 6')
        p('s_lshl_b32 s14, s14, 3')
        p('s_and_b32 s15, s2, 7')
        p('s_add_u32 s14, s14, s15')
        p(f's_cmp_ge_u32 s{sI}, 6')
        p('s_cselect_b32 s14, s14, 255')
        p('s_cmp_lt_u32 s14, 54')
        p('s_cselect_b32 s99, 1, 0')
        p('s_mul_i32 s14, s14, s99')
        p('v_lshrrev_b32 v14, 2, v0')
        p(f's_mul_i32 s15, s{sW}, 160')
        p('v_add_u32 v14, s15, v14')
        p('v_mul_u32_u24 v14, 3456, v14')
        p('v_and_b32 v15, 3, v0')
        p('v_lshl_add_u32 v14, v15, 4, v14')
        p('s_lshl_b32 s15, s14, 6')
        p('v_add_u32 v14, s15, v14')
        p('v_mul_lo_u32 v14, v14, s99')
        p(f's_mul_i32 s98, s99, {16*3456}')
        p('s_mul_i32 s14, s14, 40960')
        p(f's_mul_i32 s15, s{sW}, 10240')
        p('s_add_u32 s14, s14, s15')
        p(f'v_add_u32 v15, s14, v{vLane16}')
        p('v_mul_lo_u32 v15, v15, s99')
        p('s_lshl_b32 s99, s99, 12')
        p('s_waitcnt lgkmcnt(0)')
    else:
        touch_setup()
    publish(FK, 'k', 'st')
    for it in flag_load(FK, 'KFL'): put(it)
    p.stamp('pub done')
    p('s_nop 7')
    for c in range(4):
        for ks in range(4):
            a0 = O(c, 2*ks)
            for k in range(4): p(f'v_cvt_pk_bf16_f32 v{a0+k}, v{a0+2*k}, v{a0+2*k+1}')
            for k in range(4): p(f'v_accvgpr_write_b32 a{aQ + 16*c + 4*ks + k}, v{a0+k}')
    p(f'v_mov_b32 v{vT}, 0x3f803f80')
    for k in range(4): p(f'v_accvgpr_write_b32 a{128+k}, v{vT}')
    p(f'v_and_b32 v{vT}, 15, v0')
    p(f'v_lshrrev_b32 v{vT+1}, 4, v0')
    p(f'v_lshlrev_b32 v{vT+1}, 2, v{vT+1}')
    p(f'v_sub_u32 v{vT}, v{vT}, v{vT+1}')
    for r in range(4): p(f'v_cmp_le_i32 s[{sM+2*r}:{sM+2*r+1}], {r}, v{vT}')
    p(f'v_mov_b32 v{vNinf}, {hex(NEGBIG)}')
    for r in range(16): p(f'v_mov_b32 v{vNeg+r}, 0')
    for c in range(4): p(f'v_mov_b32 v{vL+c}, 0')
    for r in range(64): p(f'v_mov_b32 v{vO+r}, 0')
    p.stamp('pre check')
    check('k', 'KFL')
    emit(unitK(0, 'U-1') + unitK(1, 'U0') + unitV(1, 'U0'))
    p.stamp('kv ok')
    nerr = 0

    def rdK(b, f):  return ('r', f'ds_read_b128 a[{aK+4*f}:{aK+4*f+3}], v{vRd} offset:{b*8192 + f*1024}', f'K{f}')
    def rdV(b, f):  return ('r', f'ds_read_b128 a[{aV+4*f}:{aV+4*f+3}], v{vRd} offset:{16384 + b*8192 + f*1024}', f'V{f}')
    def qk_mfmas(cols, sbase, cin):
        L = []
        for i, c in enumerate(cols):
            for kb in range(2):
                S = Sr(sbase + i, kb)
                for ks in range(4):
                    cc = cin(c, kb) if ks == 0 else S
                    L.append(f'{MF} v[{S}:{S+3}], a[{aK+4*(kb*4+ks)}:{aK+4*(kb*4+ks)+3}], a[{aQ+16*c+4*ks}:{aQ+16*c+4*ks+3}], v[{cc}:{cc+3}]')
        return L
    def pv_mfmas(cols, par, first=False):
        L = []
        for c in cols:
            for db in range(8):
                o = O(c, db)
                cc = '0' if first else f'v[{o}:{o+3}]'
                L.append(f'{MF} v[{o}:{o+3}], a[{aV+4*db}:{aV+4*db+3}], v[{Pr(par, c)}:{Pr(par, c)+3}], {cc}')
        return L
    aOne = 128
    Lm = lambda c: vP + 8 + 4*c
    def sum_mfmas(cols, par):
        if not MSUM: return []
        return [f'{MF} v[{Lm(c)}:{Lm(c)+3}], a[{aOne}:{aOne+3}], v[{Pr(par, c)}:{Pr(par, c)+3}], v[{Lm(c)}:{Lm(c)+3}]' for c in cols]
    def sm_window_ns(c, sslot, par):
        if not MSUM: return sm_window(c, sslot, par)
        return sm_window_ns_(c, sslot, par)
    def sm_window_ns_(c, sslot, par):
        S = vS + 8*sslot; P = Pr(par, c); W = []
        for k in range(4):
            e0, e1 = vE + (2*k) % 4, vE + (2*k + 1) % 4
            W += [[f'v_exp_f32 v{e0}, v{S+2*k}'], [f'v_exp_f32 v{e1}, v{S+2*k+1}'],
                  [f'v_cvt_pk_bf16_f32 v{P+k}, v{e0}, v{e1}'], []]
        return W
    def sm_window(c, sslot, par):
        S = vS + 8*sslot; P = Pr(par, c); W = []
        for k in range(4):
            e0, e1 = vE + (2*k) % 4, vE + (2*k + 1) % 4
            W += [[f'v_exp_f32 v{e0}, v{S+2*k}'], [f'v_exp_f32 v{e1}, v{S+2*k+1}'],
                  [f'v_add_f32 v{vL+c}, v{vL+c}, v{e0}'],
                  [f'v_add_f32 v{vL+c}, v{vL+c}, v{e1}', f'v_cvt_pk_bf16_f32 v{P+k}, v{e0}, v{e1}']]
        return W
    cin_neg = lambda c, kb: vNeg + 4*c
    def cin_mask(tile_cols):
        def f(c, kb):
            if c in tile_cols: return vCi + 8*(c - tile_cols[0]) + 4*kb
            return vNeg + 4*c
        return f
    def mask_ops(tile_cols):
        c0 = tile_cols[0]
        L = [('s', f's_cmp_lt_i32 s{sDd}, 0\ns_cselect_b64 s[14:15], -1, 0'),
             ('s', f's_cmp_eq_u32 s{sDd}, 0\n' + '\n'.join(f's_cselect_b64 s[{4+2*r}:{5+2*r}], s[{sM+2*r}:{sM+2*r+1}], s[14:15]' for r in range(4))),
             ('s', f's_cmp_le_i32 s{sDd}, 0\ns_cselect_b64 s[12:13], -1, 0')]
        for cb in range(2):
            for kb in range(2):
                for r in range(4):
                    m = 4 + 2*r if cb == kb else (12 if (cb == 1 and kb == 0) else 14)
                    L.append(('v', f'v_cndmask_b32 v{vCi + 8*cb + 4*kb + r}, v{vNinf}, v{vNeg + 4*(c0 + cb) + r}, s[{m}:{m+1}]'))
        return L
    LC, SC = [0, 1], [2, 3]
    def build_group(mf, windows, reads, dmas=(), extra=(), pre_wait=None, mid_wait=None, nwin=None):
        R = Region(mf)
        n = len(mf)
        for (g0, W) in windows:
            for i, ops in enumerate(W):
                for o in ops: R.place(('v', o), g0 + i, force=True)
        slots = [g for g in range(n) if g % 4 == 2]
        if len(slots) < len(reads): slots = sorted(slots + [g for g in range(n) if g % 4 == 3])
        if n == 16 or nwin == 16: slots = [g for g in range(16) if g % 4 in (2, 3)]
        for it, g in zip(reads, slots): R.place(it, g, force=True)
        if dmas:
            free = [g for g in range(n) if not R.M[g]]
            pref = [g for g in free if g >= 16 and nwin == 16] + [g for g in free if g % 4 == 3 and not (g >= 16 and nwin == 16)] + [g for g in free if g % 4 == 1] + [g for g in free if g % 4 in (0, 2)]
            nm = sum(1 for x in dmas if x[0] in ('m', 'l'))
            use = sorted([g for g in pref if g >= 1][:nm])
            if nwin == 16 and nm == 4: use = [5, 9, 13, 16]
            if nwin == 16 and nm == 5: use = [1, 5, 9, 13, 16]
            k = 0; pend_s = []
            for it in dmas:
                if it[0] == 's': pend_s.append(it)
                else:
                    g = use[k]; k += 1
                    for j, sx in enumerate(pend_s):
                        gg = max(0, g - len(pend_s) + j)
                        if k > 1: gg = max(gg, use[k-2] + 1) if use[k-2] + 1 <= g - 1 or ' m0,' not in sx[1] else gg
                        if gg == g and ' m0,' in sx[1]: R.place(('s', 's_nop 0'), g, force=True) if False else None
                        R.place(sx, gg, force=True)
                    pend_s = []
                    R.place(it, g, force=True)
            for j, sx in enumerate(pend_s):
                gg = use[-1] + 1 + j
                if gg <= n - 1: R.place(sx, gg, force=True)
                else: R.T[n - 1].append(sx)
        if extra:
            g = 0
            for it in extra:
                best = None
                for gg in range(g, n - 1):
                    if R.fits(gg, it): best = gg; break
                if best is None:
                    best = g
                R.place(it, best, force=True); g = best
        if mid_wait: R.place(mid_wait[1], mid_wait[0], force=True)
        return R
    slot_adv = [('s', f's_add_u32 s{sSlotR}, s{sSlotR}, 32768'), ('s', f's_cmp_ge_u32 s{sSlotR}, {NSLOT*32768}\ns_cselect_b32 s{sSlotR}, 0, s{sSlotR}')]
    def start_items(R, vm=16):
        pre = []
        if vm is None: return
        if 'nodma' not in opt: pre.append(('w', f's_waitcnt vmcnt({vm})'))
        if 'nobar' not in opt: pre.append(('w', 's_barrier'))
        R.S[0] = pre + R.S[0]
    def end_items(R, loop=None):
        n = R.n
        for j, it in enumerate(slot_adv): R.S[4 + 4*j if n > 16 else 1 + 4*j].append(it) if False else None
        g0 = 8
        for j, it in enumerate(slot_adv): R.S[g0 + j].append(it)
        R.V[n - 1].append(('v', f'v_add_u32 v{vRd}, s{sSlotR}, v{vLane16}'))
        if loop:
            R.S[n - 3].append(('s', f's_sub_u32 s{sCnt}, s{sCnt}, 1'))
            R.T[n - 1].append(('s', f's_cmp_lg_u32 s{sCnt}, 0'))
    def emit_group(R, pre):
        if pre and 'nords' not in opt:
            put(('wlg', [f'{pre}{f}' for f in range(4)]))
            R.S[3].insert(0, ('wlg', [f'{pre}{f}' for f in range(4, 8)]))
        if 'nosm' in opt:
            for g in range(R.n): R.V[g] = []
        if 'noexp' in opt:
            for g in range(R.n): R.V[g] = [(x[0], x[1].replace('v_exp_f32', 'v_mov_b32')) for x in R.V[g]]
        if 'nodma' in opt:
            for g in range(R.n): R.M[g] = [x for x in R.M[g] if x[0] != 'm']
        if 'nords' in opt:
            for g in range(R.n):
                R.M[g] = [x for x in R.M[g] if x[0] != 'r']; R.S[g] = [x for x in R.S[g] if x[0] != 'wlg']
            pre = None; R.S[3] = [x for x in R.S[3] if x[0] != 'wlg']
        R.emit(p, put)
    stats = {'cyc': 0}
    def interval(kind, lbl, maskL=None, maskS=None, loop=False, vm=16):
        dual = kind in ('D', 'T')
        mA, mB, mN = (maskS if dual else maskL) or (False, False, False)
        tile = SC if dual else LC
        p.lgq = ['K%d' % f for f in range(8)]; p.lg_ret = -1
        tot = 0
        if dual:
            cols = [0, 1, 2, 3]
            R1 = build_group(qk_mfmas(cols, 0, cin_mask(SC) if mA else cin_neg),
                             [(0, sm_window(3, 3, 0)), (16, sm_window(0, 0, 1))], [rdV(0, f) for f in range(8)], dma_K('x'),
                             mid_wait=None)
            start_items(R1, vm)
            if lbl == 'db':
                g_ = 1
                sel = ([touch_items[0]] if TW else []) + (touch_items[1:] if TF else [])
                for it in sel:
                    while R1.M[g_]: g_ += 1
                    R1.M[g_].append(it); g_ += 3
            add_paced([R1], chunk4(fp_items.get(lbl, []), 0))
            emit_group(R1, 'K')
            ex = ([('s', f's_add_u32 s{sDd}, s{sDd}, 1')] + mask_ops(SC if kind == 'D' else LC)) if mB else []
            if kind == 'T': ex = mask_ops(LC)
            R2 = build_group(pv_mfmas(cols, 0), [(0, sm_window(1, 1, 1)), (16, sm_window(2, 2, 1))], [rdK(0, f) for f in range(8)], extra=ex)
            if kind == 'T':
                emit([('s', f's_sub_u32 s{sDd}, s{sTS}, s{sTL}'), ('s', f's_lshl_b32 s{sDd}, s{sDd}, 2'), ('s', f's_add_u32 s{sDd}, s{sDd}, 4'), ('s', f's_sub_u32 s{sDd}, s{sDd}, s{sW}')])
            add_paced([R2], chunk4(fp_items.get(lbl, []), 1))
            emit_group(R2, 'V')
            if kind == 'D':
                R3 = build_group(qk_mfmas(cols, 0, cin_mask(SC) if mB else cin_neg),
                                 [(0, sm_window(3, 3, 1)), (16, sm_window(0, 0, 0))], [rdV(1, f) for f in range(8)], dma_V('x') + adv_slot)
                add_paced([R3], chunk4(fp_items.get(lbl, []), 2))
                emit_group(R3, 'K')
                ex = ([('s', f's_add_u32 s{sDd}, s{sDd}, 1')] + mask_ops(SC)) if mN else []
                R4 = build_group(pv_mfmas(cols, 1), [(0, sm_window(1, 1, 0)), (16, sm_window(2, 2, 0))], [rdK(1, f) for f in range(8)], extra=ex)
                end_items(R4, loop)
                add_paced([R4], chunk4(fp_items.get(lbl, []), 3))
                emit_group(R4, 'V')
            else:
                R3 = build_group(qk_mfmas(LC, 0, cin_mask(LC)), [(0, sm_window(3, 3, 1))], [rdV(1, f) for f in range(8)], dma_V('x') + adv_slot)
                add_paced([R3], chunk4(fp_items.get(lbl, []), 2))
                emit_group(R3, 'K')
                ex = ([('s', f's_add_u32 s{sDd}, s{sDd}, 1')] + mask_ops(LC))
                ex = [('v', f'v_mov_b32 v{Lm(c)+r}, 0') for c in LC for r in range(4)] + ex
                R4 = build_group(pv_mfmas(cols, 1), [(0, sm_window_ns(0, 0, 0))], [rdK(1, f) for f in range(8)], extra=ex)
                end_items(R4)
                add_paced([R4], chunk4(fp_items.get(lbl, []), 3))
                emit_group(R4, 'V')
            tot = R1.total() + R2.total() + R3.total() + R4.total()
        else:
            dK = dma_K('x'); dv_ = dma_V('x'); dV = dv_[:1] + adv_slot + dv_[1:]
            if KTD and lbl == 'sn':
                dK = dK[:-1] + [('l', f'buffer_load_dword v13, v12, s[{S_KF}:{S_KF+3}], s{sKb} offen', 'T')] + dK[-1:]
                dV = dV[:-1] + [('l', f'buffer_load_dword v13, v12, s[{S_VF}:{S_VF+3}], s{sVb} offen', 'T')] + dV[-1:]
            R1 = build_group(qk_mfmas(LC, 2, cin_mask(LC) if mA else cin_neg), [(0, sm_window_ns(1, 1, 0))], [rdV(0, f) for f in range(8)])
            start_items(R1, vm)
            emit_group(R1, 'K')
            ex = ([('s', f's_add_u32 s{sDd}, s{sDd}, 1')] + mask_ops(LC)) if mB else []
            rk = [rdK(0, f) for f in range(8)] if kind != 'E' else []
            R2 = build_group(pv_mfmas(LC, 0) + sum_mfmas(LC, 0), [(0, sm_window_ns(0, 2, 1))], rk, dK, extra=ex, nwin=16)
            emit_group(R2, 'V')
            if kind != 'E':
                R3 = build_group(qk_mfmas(LC, 0, cin_mask(LC) if mB else cin_neg), [(0, sm_window_ns(1, 3, 1))], [rdV(1, f) for f in range(8)])
                emit_group(R3, 'K')
                ex = ([('s', f's_add_u32 s{sDd}, s{sDd}, 1')] + mask_ops(LC)) if mN else []
                R4 = build_group(pv_mfmas(LC, 1) + sum_mfmas(LC, 1), [(0, sm_window_ns(0, 0, 0))], [rdK(1, f) for f in range(8)], dV, extra=ex, nwin=16)
                end_items(R4, loop)
                emit_group(R4, 'V')
                tot = R1.total() + R2.total() + R3.total() + R4.total()
            else:
                for f in range(8): put(rdV(1, f))
                emit(dV)
                for ops in sm_window_ns(1, 3, 1):
                    for o in ops: p(o)
                    if len(ops) == 1 and ops[0].startswith('v_exp'): p('s_nop 0')
                p('s_waitcnt lgkmcnt(0)')
                p('s_nop 1')
                for m in pv_mfmas(LC, 1) + sum_mfmas(LC, 1): p(m)
        if tot: print(f'  interval {lbl}: est {tot} cycles for', 128 if kind == 'D' else (112 if kind == 'T' else 64), 'mfma')

    def emit_prefetch():
        p('s_lshr_b32 s14, s2, 3')
        p('s_and_b32 s15, s14, 7')
        p('s_cmp_lt_u32 s15, 4')
        p(f's_cbranch_scc1 {name}_npf')
        p(f's_load_dwordx2 s[92:93], s[0:1], {ARG["wo"]}')
        p('s_lshr_b32 s14, s14, 3')
        p('s_lshl_b32 s14, s14, 2')
        p('s_add_u32 s14, s14, s15')
        p('s_sub_u32 s14, s14, 4')
        p(f's_mul_i32 s14, s14, {640*128}')
        p('s_and_b32 s15, s2, 7')
        p('s_lshr_b32 s15, s15, 1')
        p('s_mul_i32 s15, s15, 1310720')
        p('s_add_u32 s14, s14, s15')
        p(f's_mul_i32 s15, s{sW}, {160*128}')
        p('s_add_u32 s14, s14, s15')
        p('s_waitcnt lgkmcnt(0)')
        for i in range(3):
            p(f'v_add_u32 v251, {64*i}, v0')
            p(f'v_min_u32 v251, 159, v251')
            p(f'v_lshlrev_b32 v251, 7, v251')
            p(f'v_add_u32 v251, s14, v251')
            p(f'global_load_dword v250, v251, s[92:93]')
        p.label(f'{name}_npf')
    FA, FB = (10, 11) if FP == 'db' else (252, 253)
    F2, F3, F4, F5 = (47, 48, 49, 51) if FP in ('db', 'S') else (92, 93, 94, 95)
    def ffn_loads():
        p(f's_mov_b32 s{F5}, 0')
        p('s_lshr_b32 s14, s2, 3')
        p(f's_and_b32 s{F2}, s14, 7')
        p(f's_cmp_lt_u32 s{F2}, 6')
        p(f's_cbranch_scc1 {name}_nffn')
        p('s_lshr_b32 s14, s2, 6')
        p('s_lshl_b32 s14, s14, 1')
        p(f's_add_u32 s14, s14, s{F2}')
        p('s_sub_u32 s14, s14, 6')
        p('s_lshl_b32 s14, s14, 3')
        p('s_and_b32 s15, s2, 7')
        p(f's_add_u32 s{F4}, s14, s15')
        p(f's_cmp_ge_u32 s{F4}, 54')
        p(f's_cbranch_scc1 {name}_nffn')
        p(f's_mov_b32 s{F5}, 1')
        p(f's_load_dwordx2 s[4:5], s[0:1], {ARG["wg"]}')
        p(f's_load_dwordx2 s[8:9], s[0:1], {ARG["wu"]}')
        p(f's_load_dwordx2 s[12:13], s[0:1], {ARG["wd"]}')
        p(f'v_lshrrev_b32 v{FA}, 2, v0')
        p(f'v_mul_u32_u24 v{FA}, 3456, v{FA}')
        p(f'v_and_b32 v{FB}, 3, v0')
        p(f'v_lshl_add_u32 v{FA}, v{FB}, 4, v{FA}')
        p('s_waitcnt lgkmcnt(0)')
        for sr, sz in ((4, 640*1728*2), (8, 640*1728*2), (12, 1728*640*2)):
            p(f's_mov_b32 s{sr+2}, {sz}'); p(f's_mov_b32 s{sr+3}, 0x00020000')
        p(f's_mul_i32 s{F2}, s{sW}, {160*3456}')
        p(f's_lshl_b32 s{F3}, s{F4}, 6')
        p(f's_add_u32 s{F2}, s{F2}, s{F3}')
        for i in range(10):
            for mat, sr in enumerate((4, 8)):
                r = 132 + (mat*10 + i)*4
                p(f'buffer_load_dwordx4 a[{r}:{r+3}], v{FA}, s[{sr}:{sr+3}], s{F2} offen')
            p(f's_add_u32 s{F2}, s{F2}, {16*3456}')
        p(f's_mul_i32 s{F2}, s{F4}, {32*1280}')
        p(f's_mul_i32 s{F3}, s{sW}, 10240')
        p(f's_add_u32 s{F2}, s{F2}, s{F3}')
        for i in range(10):
            r = 132 + (20 + i)*4
            p(f'buffer_load_dwordx4 a[{r}:{r+3}], v{vLane16}, s[12:15], s{F2} offen offset:{(i % 4)*1024}')
            if i % 4 == 3: p(f's_add_u32 s{F2}, s{F2}, 4096')
        p.label(f'{name}_nffn')
    def ffn_paced():
        L = []
        for i in range(10):
            for mat, sp in enumerate((92, 94)):
                r = 132 + (mat*10 + i)*4
                L.append(('l', f'global_load_dwordx4 a[{r}:{r+3}], v14, s[{sp}:{sp+1}]', 'F'))
            L.append(('v', 'v_add_u32 v14, s98, v14'))
        for i in range(10):
            r = 132 + (20 + i)*4
            L.append(('l', f'global_load_dwordx4 a[{r}:{r+3}], v15, s[96:97] offset:{(i % 4)*1024}', 'F'))
            if i % 4 == 3: L.append(('v', 'v_add_u32 v15, s99, v15'))
        return L
    fp_items = {'db': [], 'dc': []}
    if FP == 'pace':
        allf = ffn_paced(); nl = 0; cut = 0
        for k, it in enumerate(allf):
            if it[0] == 'l': nl += 1
            if nl == 16 and it[0] == 'v' and cut == 0: cut = k + 1
        fp_items = {'db': allf[:cut], 'dc': allf[cut:]}
    def chunk4(items, k):
        groups = []; cur = []
        for it in items:
            cur.append(it)
            if it[0] == 'v': groups.append(cur); cur = []
        if cur: groups.append(cur)
        out = [[], [], [], []]
        nl = sum(1 for x in items if x[0] == 'l'); acc = 0
        for g in groups:
            q = min(3, int(4*acc/max(nl, 1)))
            out[q] += g; acc += sum(1 for x in g if x[0] == 'l')
        return out[k]
    def add_paced(Rs, items):
        if not items: return
        slots = [(ri, g) for ri, R in enumerate(Rs) for g in range(1, R.n - 1) if not R.M[g]]
        nl = sum(1 for x in items if x[0] == 'l')
        step = len(slots) / (nl + 1.0); k = 0; pos = 0
        last = None
        for it in items:
            if it[0] == 'l':
                k += 1; ri, g = slots[int(k*step)]
                Rs[ri].M[g].append(it); last = (ri, g)
            else:
                ri, g = last
                Rs[ri].V[g].append(it)
    def row_reduce(reg, op, tmp):
        for sw in ('v_permlane16_swap_b32', 'v_permlane32_swap_b32'):
            p(f'v_mov_b32 v{tmp}, v{reg}')
            p('s_nop 1')
            p(f'{sw} v{reg}, v{tmp}')
            p('s_nop 1')
            p(f'{op} v{reg}, v{reg}, v{tmp}')
    def epilogue(cols, sTile, flagbit):
        p('s_nop 7')
        for c in cols: row_reduce(vL + c, 'v_add_f32', vU)
        if cols == LC:
            for c in cols: p(f'v_add_f32 v{vL+c}, v{vL+c}, v{Lm(c)}')
        p(f'v_max_f32 v{vU}, v{vL+cols[0]}, v{vL+cols[1]}')
        p(f'v_cmp_nle_f32 vcc, v{vU}, v{vU+1}'.replace(f'v{vU+1}', f'v{vU+1}') if False else f'v_cmp_nge_f32 vcc, s{sLim}, v{vU}')
        p('s_nop 1')
        p(f's_cmp_lg_u64 vcc, 0')
        p(f's_cselect_b32 s{sT0}, {flagbit}, 0')
        p(f's_or_b32 s{sFlag}, s{sFlag}, s{sT0}')
        for c in cols: p(f'v_rcp_f32 v{vL+c}, v{vL+c}')
        store_ctx(cols, sTile)
    def store_ctx(cols, sTile):
        p(f's_lshl_b32 s{sCtx}, s{sTile}, 3')
        p(f's_lshl_b32 s{sT0}, s{sW}, 1')
        p(f's_add_u32 s{sCtx}, s{sCtx}, s{sT0}')
        p(f's_lshl_b32 s{sCtx}, s{sCtx}, 5')
        p(f's_add_u32 s{sCtx}, s{sCtx}, s{sH}')
        p(f's_lshl_b32 s{sCtx}, s{sCtx}, 12')
        p(f's_add_u32 s{sT1}, s{sCtx}, {32*4096}')
        for i, c in enumerate(cols):
            for ks in range(4):
                o = O(c, 2*ks)
                for k in range(8): p(f'v_mul_f32 v{o+k}, v{o+k}, v{vL+c}')
                for k in range(4): p(f'v_cvt_pk_bf16_f32 v{o+k}, v{o+2*k}, v{o+2*k+1}')
                p(f'buffer_store_dwordx4 v[{o}:{o+3}], v{vLane16}, s[{S_CTX}:{S_CTX+3}], s{sCtx if i == 0 else sT1} offen offset:{ks*1024} {CTX_FLAGS}')

    p(f's_mov_b32 s{sSlotR}, 0')
    p(f'v_mov_b32 v{vRd}, v{vLane16}')
    for r in range(64, 128): p(f'v_mov_b32 v{vO+r}, 0')
    p(f's_lshl_b32 s{sDd}, s{sTS}, 2')
    p(f's_add_u32 s{sDd}, s{sDd}, s{sW}')
    p(f's_sub_u32 s{sDd}, 0, s{sDd}')
    emit(mask_ops(SC))
    p.wait_vm('U-1')
    p('s_barrier')
    p.stamp('U-1 ready')
    p.lgq = []; p.lg_ret = -1
    for f in range(8): put(rdK(0, f))
    p('s_waitcnt lgkmcnt(0)')
    q0 = qk_mfmas([0, 1, 2, 3], 0, cin_mask(SC))
    rest = unitK(2, 'U1') + unitV(2, 'U1')
    Rq = Region(q0)
    spread(Rq, rest, 0, 31)
    Rq.emit(p, put)
    p(f's_add_u32 s{sSlotP}, s{sLW}, {4*32768}')
    p.stamp('qk0 done')
    for f in range(8): put(rdK(1, f))
    for step in range(4):
        for c in range(4):
            S = vS + 8*c; t = vU + c
            if step == 0: p(f'v_max3_f32 v{t}, v{S}, v{S+1}, v{S+2}')
            elif step == 1: p(f'v_max3_f32 v{t}, v{t}, v{S+3}, v{S+4}')
            elif step == 2: p(f'v_max3_f32 v{t}, v{t}, v{S+5}, v{S+6}')
            else: p(f'v_max_f32 v{t}, v{t}, v{S+7}')
    for sw in ('v_permlane16_swap_b32', 'v_permlane32_swap_b32'):
        for c in range(4): p(f'v_mov_b32 v{vU+4+c}, v{vU+c}')
        for c in range(4): p(f'{sw} v{vU+c}, v{vU+4+c}')
        p('s_nop 0')
        for c in range(4): p(f'v_max_f32 v{vU+c}, v{vU+c}, v{vU+4+c}')
    for r in range(8):
        for c in range(4): p(f'v_sub_f32 v{vS+8*c+r}, v{vS+8*c+r}, v{vU+c}')
    for c in range(4):
        for r in range(4): p(f'v_sub_f32 v{vNeg+4*c+r}, 0, v{vU+c}')
    def run_window(W):
        for ops in W:
            for o in ops: p(o)
            if len(ops) == 1 and ops[0].startswith('v_exp'): p('s_nop 0')
    u2 = unitK(3, 'U2') + unitV(3, 'U2')
    for r in range(8):
        for c in range(3): p(f'v_exp_f32 v{vS+8*c+r}, v{vS+8*c+r}')
        while u2:
            it = u2.pop(0)
            put(it)
            if it[0] == 'm': break
            if ' m0,' in it[1]: p('s_nop 0')
    for it in u2: put(it)
    p('s_nop 0')
    for r in range(8):
        for c in range(3): p(f'v_add_f32 v{vL+c}, v{vL+c}, v{vS+8*c+r}')
    for k in range(4):
        for c in range(3): p(f'v_cvt_pk_bf16_f32 v{Pr(0, c)+k}, v{vS+8*c+2*k}, v{vS+8*c+2*k+1}')
    p(f's_mov_b32 s{sSlotR}, 32768')
    p(f'v_add_u32 v{vRd}, s{sSlotR}, v{vLane16}')
    if 'pp' not in opt: p.stamp('attn prologue done')
    p(f's_cmp_eq_u32 s{sTS}, 0')
    p(f's_cbranch_scc1 {name}_t0')
    p(f's_lshl_b32 s{sCnt}, s{sTS}, 1')
    p(f's_sub_u32 s{sCnt}, s{sCnt}, 1')
    p.label(f'{name}_dn')
    interval('D', f'dn', loop=True)
    p(f's_cbranch_scc1 {name}_dn')
    p(f's_sub_u32 s{sDd}, -1, s{sW}')
    interval('D', 'da', maskS=(False, True, True))
    p(f's_branch {name}_db')
    p.label(f'{name}_t0')
    p(f's_sub_u32 s{sDd}, 1, s{sW}')
    emit(mask_ops(SC))
    p('s_nop 1')
    p.label(f'{name}_db')
    if FP == 'db':
        p('s_waitcnt vmcnt(16)')
        p('s_barrier')
        ffn_loads()
        interval('D', 'db', maskS=(True, True, True), vm=None)
        p(f's_cmp_eq_u32 s{F5}, 0')
        p(f's_cbranch_scc1 {name}_dcw')
        p('s_waitcnt vmcnt(46)')
        p(f's_branch {name}_dcw2')
        p.label(f'{name}_dcw')
        p('s_waitcnt vmcnt(16)')
        p.label(f'{name}_dcw2')
        interval('T', 'dc', maskS=(True, False, False), vm=63)
    elif FP == 'pace':
        ndb = sum(1 for x in fp_items['db'] if x[0] == 'l')
        interval('D', 'db', maskS=(True, True, True))
        interval('T', 'dc', maskS=(True, False, False), vm=16 + ndb)
    else:
        interval('D', 'db', maskS=(True, True, True))
        interval('T', 'dc', maskS=(True, False, False))
    epilogue(SC, sTS, 2)
    if FP == 'S':
        ffn_loads()
        p.lgq = ['K%d' % f for f in range(8)]; p.lg_ret = 7
    if 'pp' not in opt: (p.stamp('S done') if 'pq' not in opt else None)
    if KTD:
        p('v_and_b32 v12, 31, v0')
        p('v_lshlrev_b32 v12, 7, v12')
        p(f'v_add_u32 v12, {KTD*16384}, v12')
    p(f's_sub_u32 s{sCnt}, s{sTL}, s{sTS}')
    p(f's_cmp_eq_u32 s{sCnt}, 1')
    p(f's_cbranch_scc1 {name}_sb')
    if DBL:
        p(f's_sub_u32 s{sCnt}, s{sCnt}, 2')
        interval('S', 'sn1')
        p.label(f'{name}_sn')
        interval('S', 'sn2a', vm=8)
        interval('S', 'sn2b', vm=None, loop=True)
    else:
        p(f's_lshl_b32 s{sCnt}, s{sCnt}, 1')
        p(f's_sub_u32 s{sCnt}, s{sCnt}, 3')
        p.label(f'{name}_sn')
        interval('S', 'sn', loop=True, vm=16 + (4 if KTD else 0))
    p(f's_cbranch_scc1 {name}_sn')
    p(f's_sub_u32 s{sDd}, -1, s{sW}')
    interval('S', 'sa', maskL=(False, True, True))
    p.label(f'{name}_sb')
    interval('S', 'sb', maskL=(True, True, True))
    interval('E', 'sc', maskL=(True, False, False))
    epilogue(LC, sTL, 1)
    p.stamp('L done')
    p(f's_cmp_eq_u32 s{sFlag}, 0')
    p(f's_cbranch_scc1 {name}_fin')
    fallback(p, name, locals())
    p.label(f'{name}_fin')
    def ctx_publish():
        p('s_waitcnt vmcnt(0) lgkmcnt(0)')
        p('s_barrier')
        p(f's_cmp_lg_u32 s{sW}, 0')
        p(f's_cbranch_scc1 {name}_cpub')
        p(f's_lshl_b32 s14, s2, 2')
        p(f's_add_u32 s14, s14, 6144')
        p(f'v_mov_b32 v20, s{sTag}')
        p('v_mov_b32 v21, 0')
        p(f'buffer_store_dword v20, v21, s[{S_FL}:{S_FL+3}], s14 offen sc1')
        p.label(f'{name}_cpub')
        p.stamp('ctx pub')
        if PE: emit_prefetch()
        if FP == 'end': ffn_loads()
    import kt
    nerr += kt.gen_kt(name + '_t', p, prof, opt, ctx_publish)
    p.label(f'{name}_done')
    p('s_endpgm')
    def mk_policy(t0, nd, skip_s, ns, fb, wave0):
        def pol(ins, n):
            t = ins.args[0]
            if t.endswith('_done'): return False
            if t.endswith('_stageA'): return n % 3 != 0
            if t in (name + '_noln0', name + '_noln1'): return False
            if t in (name + '_notag', name + '_kvpub'): return not wave0
            if t == name + '_notag2': return True
            if t == name + '_nffn': return not wave0
            if t == name + '_dcw': return not wave0
            if t == name + '_cpub': return not wave0
            if t.startswith(name + '_t'):
                if '_poll' in t and t.endswith('_ok'): return True
                if '_poll' in t and t.endswith('_top'): return False
                u = t[len(name) + 2:]
                if u in ('_w123', '_w1', '_nosig', '_w4', '_w5', '_cw'): return not wave0
                return False
            if t == name + '_nz': return True
            if t == name + '_nocode': return False
            if t == name + '_nopub': return True
            if t in (name + '_lnok', name + '_kok', name + '_vok', name + '_kpub', name + '_vpub'): return not wave0
            if t in (name + '_lnok2', name + '_kok2', name + '_vok2', name + '_krel', name + '_vrel'): return True
            if t.endswith('_t0'): return t0
            if t.endswith('_dn'): return (n % nd) != 0
            if t.endswith('_sb'): return skip_s
            if t.endswith('_sn'): return (n % ns) != 0
            if t.endswith('_fin'): return not fb
            if t.endswith('_fbloop'): return n % 3 != 0
            return False
        return pol
    for cfg in ([(False, 3, False, 3, False, True), (True, 2, False, 2, True, False), (False, 2, True, 2, False, True)] if (not opt or opt[0] in ('pp', 'pq', 'tl', 'tr', 'nocode', 'notlb', 'dbg', 'pa') or opt[0].startswith('kv=')) and not any(o_.endswith('A') for o_ in opt) else []):
        seq = trace(p, mk_policy(*cfg))
        nerr += len(check_linear(seq, name + str(cfg)))
    return p, nerr

def fallback(p, name, L):
    g = L
    vS, vP, vE, vL, vU, vNeg, vCi, vO = g['vS'], g['vP'], g['vE'], g['vL'], g['vU'], g['vNeg'], g['vCi'], g['vO']
    aQ, aK, aV, vLane16, vNinf = g['aQ'], g['aK'], g['aV'], g['vLane16'], g['vNinf']
    S_KF, S_VF = g['S_KF'], g['S_VF']
    sFlag, sTL, sTS, sW, sH, sDd, sCnt, sT0, sT1, sT2 = (g[k] for k in ('sFlag', 'sTL', 'sTS', 'sW', 'sH', 'sDd', 'sCnt', 'sT0', 'sT1', 'sT2'))
    O = g['O']; mask_ops = g['mask_ops']; qk_mfmas = g['qk_mfmas']; pv_mfmas = g['pv_mfmas']; row_reduce = g['row_reduce']; store_ctx = g['store_ctx']
    put = g['put']
    p('s_waitcnt vmcnt(0) lgkmcnt(0)')
    for cols, sTile, bit, nm in (([2, 3], sTS, 2, 'S'), ([0, 1], sTL, 1, 'L')):
        p(f's_and_b32 s{sT0}, s{sFlag}, {bit}')
        p(f's_cmp_eq_u32 s{sT0}, 0')
        p(f's_cbranch_scc1 {name}_fbskip{nm}')
        for c in cols:
            p(f'v_mov_b32 v{vL+c}, 0')
            for r in range(32): p(f'v_mov_b32 v{vO+32*c+r}, 0')
            for r in range(4): p(f'v_mov_b32 v{vNeg+4*c+r}, 0')
        for i in range(2): p(f'v_mov_b32 v{vU+4+i}, v{vNinf}')
        p(f's_lshl_b32 s{sDd}, s{sTile}, 2')
        p(f's_add_u32 s{sDd}, s{sDd}, s{sW}')
        p(f's_add_u32 s{sCnt}, s{sDd}, 1')
        p(f's_sub_u32 s{sDd}, 0, s{sDd}')
        p(f's_lshl_b32 s{sT2}, s{sH}, 19')
        p.label(f'{name}_fb{nm}_fbloop')
        for f in range(8):
            p(f's_add_u32 s{sT1}, s{sT2}, {(f // 4)*4096}')
            p(f'buffer_load_dwordx4 a[{aK+4*f}:{aK+4*f+3}], v{vLane16}, s[{S_KF}:{S_KF+3}], s{sT1} offen offset:{(f % 4)*1024}')
            p(f'buffer_load_dwordx4 a[{aV+4*f}:{aV+4*f+3}], v{vLane16}, s[{S_VF}:{S_VF+3}], s{sT1} offen offset:{(f % 4)*1024}')
        for it in mask_ops(cols): put(it)
        p('s_waitcnt vmcnt(0)')
        p('s_nop 1')
        for m in qk_mfmas(cols, 0, lambda c, kb: vCi + 8*(c - cols[0]) + 4*kb): p(m)
        p('s_nop 7')
        for i, c in enumerate(cols):
            S = vS + 8*i; t = vU + i; m = vU + 4 + i
            p(f'v_max3_f32 v{t}, v{S}, v{S+1}, v{S+2}')
            p(f'v_max3_f32 v{t}, v{t}, v{S+3}, v{S+4}')
            p(f'v_max3_f32 v{t}, v{t}, v{S+5}, v{S+6}')
            p(f'v_max_f32 v{t}, v{t}, v{S+7}')
            row_reduce(t, 'v_max_f32', vU + 6)
            p(f'v_max_f32 v{t}, v{t}, v{m}')
            p(f'v_sub_f32 v{vU+6}, v{m}, v{t}')
            p(f'v_exp_f32 v{vU+6}, v{vU+6}')
            p(f'v_mov_b32 v{m}, v{t}')
            p(f'v_mul_f32 v{vL+c}, v{vL+c}, v{vU+6}')
            for r in range(32): p(f'v_mul_f32 v{vO+32*c+r}, v{vO+32*c+r}, v{vU+6}')
            for r in range(8): p(f'v_sub_f32 v{S+r}, v{S+r}, v{t}')
            for r in range(8): p(f'v_exp_f32 v{S+r}, v{S+r}')
            p('s_nop 0')
            for r in range(8): p(f'v_add_f32 v{vL+c}, v{vL+c}, v{S+r}')
            for k in range(4): p(f'v_cvt_pk_bf16_f32 v{vP+4*c+k}, v{S+2*k}, v{S+2*k+1}')
        p('s_nop 1')
        for m in pv_mfmas(cols, 0): p(m)
        p('s_nop 7')
        p(f's_add_u32 s{sT2}, s{sT2}, 8192')
        p(f's_add_u32 s{sDd}, s{sDd}, 1')
        p(f's_sub_u32 s{sCnt}, s{sCnt}, 1')
        p(f's_cmp_lg_u32 s{sCnt}, 0')
        p(f's_cbranch_scc1 {name}_fb{nm}_fbloop')
        for c in cols: row_reduce(vL + c, 'v_add_f32', vU)
        for c in cols: p(f'v_rcp_f32 v{vL+c}, v{vL+c}')
        store_ctx(cols, sTile)
        p.label(f'{name}_fbskip{nm}')

if __name__ == '__main__':
    p, ne = gen_kf()
    print('instrs', p.count(), 'errors', ne)
```

```python
from common import *
from gx2 import *
from sched import *
from k1b import w_tile_setup, MF
from lnops import *
WS_FLG = 82*MiB

CTX_FLAGS = 'sc1'
LIM = 0x5d800000
NEGBIG = 0xff800000
opt_idx = [0]
TW, TF, PE = False, False, True
FP = 'pace'
TA = False
LATE1 = True
CODE0 = False
DBL = True
LN3 = False
WQL = False
MSUM = True
WARM = 0
KTD = 0
KVLD = ''
KSTF = None
VSTF = 'sc1'
PREFETCH = True

def gen_kf(name='front_kernel', prof=False, opt=()):
    p = P2(); p.prof = prof
    p.lenient = 'nordsA' in opt
    p.dbgmode = 'dbg' in opt
    p.rtmode = 'rt' in opt
    import os as _os
    p.dbgwg = int(_os.environ.get('DBGWG', '48'))
    p.stampset = set(['start', 'phase A done', 'q end', 'attn prologue done', 'L done', 'ctx ready', 'gemm end', 'key out', 'argmax ready', 'ffn atomics done'])
    if 'pa' in opt: p.stampset = set(['start', 'setup', 'A0W0 issued', 'dma issued', 'B0', 'stage0 done', 'stage1 done', 'A loop done', 'phase A done', 'q end'])
    if 'tr' in opt: p.stampset = set(['start', 'q end', 'pre check', 'kv ok', 'qk0 done', 'attn prologue done', 'L done', 'tail setup', 'ctx pub', 'ctx ready'])
    if 'tl' in opt: p.stampset = set(['start', 'L done', 'ctx ready', 'gemm end', 'signalled', 'partials ready', 'partials loaded', 'key out', 'argmax ready', 'ffn atomics done'])
    put = make_put(p)
    S_WQ, S_XNF, S_KF, S_VF, S_CTX = 16, 20, 24, 28, 32
    sM = 36
    sW, sH, sI = 44, 45, 46
    sT0, sT1, sT2 = 47, 48, 49
    sLW = 50
    sWoff = 51
    sXL, sXS = 52, 53
    sKb, sVb = 54, 55
    sHbase = 56
    sSlotP, sSlotR = 57, 58
    sTL, sTS = 59, 60
    sCnt = 61
    sDd = 62
    sFlag = 63
    sCtx = 64
    sLim = 65
    sScale = 61
    sSel = 4
    vLane16 = 1; vRd = 2; vNinf = 3
    vOffW = 4
    vLPW = 8; vT = 9
    vNeg = 16; vCi = 32; vS = 48; vP = 80; vE = 112; vL = 116; vU = 120
    vCW = 120
    vWF = 48
    vO = 128
    aQ = 0; aK = 64; aV = 96; aX = 128
    O = lambda c, db: vO + 32*c + 4*db
    Sr = lambda sc, kb: vS + 8*sc + 4*kb
    Pr = lambda par, c: vP + 16*par + 4*c
    NSLOT = 5

    S_CKV, S_X, S_DBG = 4, 8, 88
    S_WUK, S_WUV = 36, 40
    S_FL = 68
    sTag = 3
    sXcc = 67; sSame = 66
    sASum = sFlag
    sAoff = sDd; sWr = sCtx; sAr = sLim; sWp = sKb; sAp = sVb; sKst = sSlotP
    vOffA = 16
    vLPA = 20; vCA = 21
    vWK = 32; vWV = 64; vAct = 128
    SPIN = 1 << 16
    p(f's_cmp_ge_u32 s2, 256')
    p(f's_cbranch_scc1 {name}_done')
    p.stamp('start')
    if CODE0 and 'nocode' not in opt:
        p('s_lshr_b32 s14, s2, 3')
        p('s_cmp_ge_u32 s14, 12')
        p(f's_cbranch_scc1 {name}_nocode')
        p('s_getpc_b64 s[76:77]')
        p.label(f'{name}_pc')
        p('s_lshl_b32 s14, s14, 13')
        p('v_lshlrev_b32 v9, 5, v0')
        p('v_add_u32 v9, s14, v9')
        p(f'v_min_u32 v9, code_end_all-{name}_pc-4, v9')
        p('v_and_b32 v9, -4, v9')
        p('global_load_dword v23, v9, s[76:77]')
        p.label(f'{name}_nocode')
    p(f's_load_dwordx2 s[84:85], s[0:1], {ARG["x"]}')
    p(f's_load_dwordx2 s[86:87], s[0:1], {ARG["ckv"]}')
    p(f's_load_dwordx4 s[88:91], s[0:1], {ARG["wuk"]}')
    p(f's_load_dwordx2 s[92:93], s[0:1], {ARG["wq"]}')
    p(f's_load_dwordx4 s[96:99], s[0:1], {ARG["dbg"]}')
    p('s_and_b32 s14, s2, 7')
    p('s_lshr_b32 s15, s2, 3')
    p(f's_lshr_b32 s{sH}, s15, 3')
    p(f's_lshl_b32 s14, s14, 2')
    p(f's_add_u32 s{sH}, s{sH}, s14')
    p(f's_and_b32 s{sI}, s15, 7')
    p('v_lshrrev_b32 v2, 6, v0')
    p('v_and_b32 v0, 63, v0')
    p(f'v_readfirstlane_b32 s{sW}, v2')
    p(f'v_lshlrev_b32 v{vLane16}, 4, v0')
    p(f's_getreg_b32 s{sXcc}, hwreg(HW_REG_XCC_ID, 0, 4)')
    w_tile_setup(p, vOffW, vLPW, vT)
    p(f'v_lshrrev_b32 v{vT}, 3, v0')
    p(f'v_lshlrev_b32 v{vT}, 10, v{vT}')
    p(f'v_lshrrev_b32 v{vT+1}, 4, v0')
    p(f'v_and_b32 v{vT+2}, 7, v0')
    p(f'v_xor_b32 v{vT+2}, v{vT+2}, v{vT+1}')
    p(f'v_lshl_add_u32 v{vOffA}, v{vT+2}, 4, v{vT}')
    p(f'v_xor_b32 v{vT+3}, 4, v{vT+2}')
    p(f'v_lshl_add_u32 v{vOffA+1}, v{vT+3}, 4, v{vT}')
    p(f'v_add_u32 v{vOffA+2}, {2*7168}, v{vOffA}')
    p(f'v_add_u32 v{vOffA+3}, {3*7168}, v{vOffA+1}')
    p(f'v_add_u32 v{vOffA+1}, {1*7168}, v{vOffA+1}')
    p(f'v_and_b32 v{vT}, 15, v0')
    p(f'v_bfe_u32 v{vT+1}, v0, 1, 3')
    p(f'v_lshrrev_b32 v{vT+2}, 4, v0')
    p(f'v_xor_b32 v{vT+1}, v{vT+1}, v{vT+2}')
    p(f'v_lshlrev_b32 v{vT}, 7, v{vT}')
    p(f'v_lshl_add_u32 v{vLPA}, v{vT+1}, 4, v{vT}')
    p(f's_lshl_b32 s{sLW}, s{sW}, 12')
    p(f's_lshl_b32 s{sWoff}, s{sW}, 17')
    p(f's_lshl_b32 s{sT1}, s{sH}, 8')
    p(f's_add_u32 s{sWoff}, s{sWoff}, s{sT1}')
    p(f's_lshl_b32 s{sT0}, s{sI}, 8')
    p(f's_lshl_b32 s{sT1}, s{sW}, 6')
    p(f's_add_u32 s{sT0}, s{sT0}, s{sT1}')
    p(f's_lshl_b32 s{sAoff}, s{sT0}, 10')
    sK0 = sXL; sLA = sXS
    p(f's_lshl_b32 s{sHbase}, s{sH}, 6')
    p(f's_lshr_b32 s{sT1}, s{sT0}, 5')
    p(f's_add_u32 s{sHbase}, s{sHbase}, s{sT1}')
    p(f's_lshl_b32 s{sHbase}, s{sHbase}, 13')
    p(f's_lshl_b32 s{sLA}, s{sW}, 13')
    p('s_waitcnt lgkmcnt(0)')
    srd(p, S_CKV, 86, 2048*512*2)
    srd(p, S_WUK, 88, 512*4096*2)
    srd(p, S_WUV, 90, 512*4096*2)
    SL = 16384
    ACT0 = 98304
    def emit(L):
        prev = None
        for it in L:
            if it[0] == 'm' and prev is not None and prev[0] == 's' and ' m0,' in prev[1]: put(('s', 's_nop 0'))
            put(it); prev = it
    def dmaW_static(st):
        base = (st % 3)*32768; L = []
        for mi, sr in enumerate((S_WUK, S_WUV)):
            L += [('s', f's_add_u32 s{sT0}, s{sWoff}, {st*64*8192}'), ('s', f's_add_u32 m0, s{sLW}, {base + mi*SL}')]
            for i in range(4): L.append(('m', f'buffer_load_dwordx4 v{vOffW+i}, s[{sr}:{sr+3}], s{sT0} offen offset:{1024*i} lds', f'W{st}', ('W', base + mi*SL, base + (mi+1)*SL, True)))
        return L
    def dmaA_static(st, adj=0):
        base = ACT0 + (st % 2)*32768; L = []
        for half in range(2):
            L += [('s', f's_add_u32 s{sT1}, s{sAoff}, {(st*128 + 32768*half + adj) & 0xffffffff}'), ('s', f's_add_u32 m0, s{sLA}, {base + 4096*half}')]
            for i in range(4): L.append(('m', f'buffer_load_dwordx4 v{vOffA+i}, s[{S_CKV}:{S_CKV+3}], s{sT1} offen offset:{1024*i} lds', f'A{st}', ('W', base, base + 32768, False)))
        return L
    if 'pp' in opt or 'pa' in opt: p.stamp('setup')
    emit(dmaA_static(0)); emit(dmaW_static(0))
    if 'pp' in opt or 'pa' in opt: p.stamp('A0W0 issued')
    srd(p, S_X, 84, 2048*640*2)
    srd(p, S_WQ, 92, 640*4096*2)
    srd(p, S_XNF, 98, SZ_XNF, WS_XNF)
    srd(p, S_KF, 98, SZ_KF, WS_KF)
    srd(p, S_VF, 98, SZ_KF, WS_VF)
    srd(p, S_CTX, 98, SZ_CTX, WS_CTX)
    srd(p, S_FL, 98, 8192, WS_FLG)
    X = 160; RAW = 200; vXo = 220; vXn = 221; LT = 224
    p(f's_lshl_b32 s{sT1}, s2, 3')
    p(f's_and_b32 s14, s{sW}, 1')
    p(f's_lshl_b32 s14, s14, 2')
    p(f's_add_u32 s{sT1}, s{sT1}, s14')
    p(f'v_and_b32 v{vT}, 3, v0')
    p(f'v_add_u32 v{vT}, s{sT1}, v{vT}')
    p(f'v_lshrrev_b32 v{vT+1}, 2, v0')
    p(f'v_mul_u32_u24 v{vXo}, 1280, v{vT}')
    p(f'v_lshl_add_u32 v{vXo}, v{vT+1}, 4, v{vXo}')
    p(f'v_lshrrev_b32 v{vXn}, 4, v{vT}')
    p(f'v_mul_u32_u24 v{vXn}, 20, v{vXn}')
    p(f'v_lshrrev_b32 v{vT+2}, 2, v{vT+1}')
    p(f'v_add_u32 v{vXn}, v{vXn}, v{vT+2}')
    p(f'v_lshlrev_b32 v{vXn}, 10, v{vXn}')
    p(f'v_and_b32 v{vT+2}, 3, v{vT+1}')
    p(f'v_lshlrev_b32 v{vT+2}, 4, v{vT+2}')
    p(f'v_and_b32 v{vT+3}, 15, v{vT}')
    p(f'v_add_u32 v{vT+2}, v{vT+2}, v{vT+3}')
    p(f'v_lshl_add_u32 v{vXn}, v{vT+2}, 4, v{vXn}')
    for i in range(5):
        p(f'buffer_load_dwordx4 v[{RAW+4*i}:{RAW+4*i+3}], v{vXo}, s[{S_X}:{S_X+3}], 0 offen offset:{256*i}')
    S_LNS = 96
    if WARM:
        p('s_lshr_b32 s14, s2, 3')
        p('s_lshl_b32 s14, s14, 2')
        p(f's_add_u32 s14, s14, s{sW}')
        p('s_lshl_b32 s15, s14, 14')
        p(f'v_lshlrev_b32 v{vT}, 7, v0')
        p(f'buffer_load_dword v23, v{vT}, s[{S_CKV}:{S_CKV+3}], s15 offen')
        p('s_add_u32 s15, s15, 8192')
        p(f'buffer_load_dword v23, v{vT}, s[{S_CKV}:{S_CKV+3}], s15 offen')
        if WARM > 1:
            p(f's_lshl_b32 s14, s{sI}, 2')
            p(f's_add_u32 s14, s14, s{sW}')
            p('s_lshl_b32 s14, s14, 17')
            p(f's_lshl_b32 s15, s{sH}, 8')
            p('s_add_u32 s14, s14, s15')
            p(f'v_bfe_u32 v{vT}, v0, 1, 4')
            p(f'v_lshlrev_b32 v{vT}, 13, v{vT}')
            p(f'v_and_b32 v{vT+1}, 1, v0')
            p(f'v_lshl_add_u32 v{vT}, v{vT+1}, 7, v{vT}')
            p(f'buffer_load_dword v23, v{vT}, s[{S_WUK}:{S_WUK+3}], s14 offen')
            p(f'buffer_load_dword v23, v{vT}, s[{S_WUV}:{S_WUV+3}], s14 offen')
    if not CODE0:
        if 'nocode' not in opt:
            p(f's_lshr_b32 s14, s2, 3')
            p(f's_cmp_ge_u32 s14, 12')
            p(f's_cbranch_scc1 {name}_nocode')
            p(f's_cmp_lg_u32 s{sW}, 3')
            p(f's_cbranch_scc1 {name}_nocode')
            p('s_getpc_b64 s[76:77]')
            p.label(f'{name}_pc')
            p(f's_lshl_b32 s14, s14, 13')
            p(f'v_lshlrev_b32 v{vT}, 7, v0')
            p(f'v_add_u32 v{vT}, s14, v{vT}')
            p(f'v_min_u32 v{vT}, code_end_all-{name}_pc-4, v{vT}')
            p(f'v_and_b32 v{vT}, -4, v{vT}')
            p(f'global_load_dword v{vT+2}, v{vT}, s[76:77]')
            p.label(f'{name}_nocode')
    if 'tlb' in opt:
        p('s_mov_b32 s76, s98'); p('s_mov_b32 s77, s99'); p(f's_mov_b32 s78, {96*MiB}'); p('s_mov_b32 s79, 0x00020000')
        p(f'v_mov_b32 v{vT}, {WS_FLG}')
        p(f's_add_u32 s14, s{sHbase}, {WS_KF}'); p(f'v_writelane_b32 v{vT}, s14, 1')
        p(f's_add_u32 s14, s{sHbase}, {WS_VF}'); p(f'v_writelane_b32 v{vT}, s14, 2')
        p(f's_lshl_b32 s15, s{sH}, 19')
        for k in range(2):
            p(f's_add_u32 s14, s15, {WS_KF + k*524160}'); p(f'v_writelane_b32 v{vT}, s14, {3 + 2*k}')
            p(f's_add_u32 s14, s15, {WS_VF + k*524160}'); p(f'v_writelane_b32 v{vT}, s14, {4 + 2*k}')
        p(f's_mov_b32 s14, {WS_XNF}'); p(f'v_writelane_b32 v{vT}, s14, 7')
        p(f's_mov_b32 s14, {WS_XNF + 2*MiB}'); p(f'v_writelane_b32 v{vT}, s14, 8')
        p(f's_sub_u32 s14, 15, s{sI}'); p('s_lshl_b32 s14, s14, 20'); p(f's_add_u32 s14, s14, {WS_CTX}'); p(f'v_writelane_b32 v{vT}, s14, 9')
        p(f's_lshl_b32 s14, s{sI}, 20'); p(f's_add_u32 s14, s14, {WS_CTX}'); p(f'v_writelane_b32 v{vT}, s14, 10')
        p(f'buffer_load_dword v{vT+2}, v{vT}, s[76:79], 0 offen')
    if 'pp' in opt: p.stamp('x issued')
    srd(p, S_DBG, 96, 256)
    p('v_mov_b32 v26, 0')
    p('s_or_b32 s14, s2, 0')
    p(f's_add_u32 s14, s2, s{sW}')
    p('s_cmp_lg_u32 s14, 0')
    p(f's_cbranch_scc1 {name}_notag')
    p('s_memrealtime s[92:93]')
    p('s_waitcnt lgkmcnt(0)')
    p('s_or_b32 s92, s92, 1')
    p('v_mov_b32 v24, s92')
    p(f'buffer_store_dword v24, v26, s[{S_DBG}:{S_DBG+3}], 0 offen sc1')
    p.label(f'{name}_notag')
    if 'pp' in opt: p.stamp('tag issued')
    if not LATE1:
        emit(dmaA_static(1)); emit(dmaW_static(1))
    (p.stamp('dma issued') if 'pq' not in opt else None)
    p('s_cmp_lg_u32 s2, 0')
    p(f's_cbranch_scc1 {name}_nz')
    p(f's_add_u32 s76, s98, {WS_YACC}')
    p('s_addc_u32 s77, s99, 0')
    p(f's_mov_b32 s78, {SZ_ZERO}')
    p('s_mov_b32 s79, 0x00020000')
    for r in range(4): p(f'v_mov_b32 v{28+r}, 0')
    p(f's_mul_i32 s14, s{sW}, 7168')
    for i in range(7):
        p(f'buffer_store_dwordx4 v[28:31], v{vLane16}, s[76:79], s14 offen sc1')
        p(f's_add_u32 s14, s14, 1024')
    p.label(f'{name}_nz')
    p(f's_add_u32 s96, s98, {WS_XNF}')
    p('s_addc_u32 s97, s99, 0')
    p(f's_mov_b32 s98, {SZ_XNF}')
    p('s_mov_b32 s99, 0x00020000')
    p(f's_cmp_lt_u32 s{sW}, 2')
    p('s_cselect_b32 s98, s98, 0')
    p('s_waitcnt vmcnt(0)' if LATE1 else 's_waitcnt vmcnt(16)')
    p('s_barrier')
    (p.stamp('B0') if 'pq' not in opt else None)
    def rd_act(buf, kin, tb, lab):
        r = vAct + 16*buf + 4*tb
        return ('r', f'ds_read_b128 v[{r}:{r+3}], v{vCA+kin} offset:{2048*tb}', lab)
    def rd_wA(mi, db, kin, lab):
        r = (vWK if mi == 0 else vWV) + 4*db
        return [('r', f'ds_read_b64_tr_b16 v[{r+2*h}:{r+2*h+1}], v{vCW+db} offset:{mi*SL + 8192*kin + 1024*h}', lab) for h in range(2)]
    updA = [('v', f'v_add_u32 v{vCA}, s{sAr}, v{vLPA}'), ('v', f'v_xor_b32 v{vCA+1}, 64, v{vCA}')]
    updWd = [('v', f'v_add_u32 v{vCW}, s{sWr}, v{vLPW}')] + [('v', f'v_xor_b32 v{vCW+db}, {db*32}, v{vCW}') for db in range(1, 8)]
    KA = lambda tb, db: (tb*8 + db)*4
    VA = lambda tb, db: 128 + ((tb >> 1)*16 + db*2 + (tb & 1))*4
    def stageA_mfmas(first):
        L = []
        for kin in range(2):
            for db in range(8):
                for tb in range(4):
                    a = KA(tb, db); f = vAct + 16*kin + 4*tb
                    c = '0' if (first and kin == 0) else f'a[{a}:{a+3}]'
                    L.append(f'{MF} a[{a}:{a+3}], v[{vWK+4*db}:{vWK+4*db+3}], v[{f}:{f+3}], {c}')
                for tb in range(4):
                    a = VA(tb, db); f = vAct + 16*kin + 4*tb
                    c = '0' if (first and kin == 0) else f'a[{a}:{a+3}]'
                    L.append(f'{MF} a[{a}:{a+3}], v[{f}:{f+3}], v[{vWV+4*db}:{vWV+4*db+3}], {c}')
        return L
    GA = lambda kin, db, m: kin*64 + db*8 + m
    def spread(R, L, g0, g1):
        nm = sum(1 for x in L if x[0] in ('m', 'l', 'st'))
        step = max(1, (g1 - g0) // max(nm, 1))
        g = g0; cnt = 0; prev = None
        for it in L:
            e = max(g, g0 + cnt*step - (2 if it[0] == 's' else 0))
            if it[0] == 'm' and prev is not None and prev[0] == 's' and ' m0,' in prev[1]: e = max(e, gprev + 1)
            g = R.place(it, e, g1); gprev = g; prev = it
            if it[0] in ('m', 'l', 'st'): cnt += 1; g += 1
    def stageA(kind, dmaA_items, dmaB_items, barlabs, next_reads=None, mid=None, first=False, bend=None):
        R = Region(stageA_mfmas(first))
        BG = GA(1, 0, 7)
        R.S[BG].append(('bar', barlabs))
        if mid: R.S[BG].extend(mid)
        if next_reads is None:
            R.S[GA(1, 0, 1)].append(('s', f's_add_u32 s{sWr}, s{sWr}, 32768'))
            R.S[GA(1, 0, 2)].append(('s', f's_cmp_ge_u32 s{sWr}, 98304\ns_cselect_b32 s{sWr}, 0, s{sWr}'))
            R.S[GA(1, 0, 3)].append(('s', f's_sub_u32 s{sAr}, s{sASum}, s{sAr}'))
            R.stream(updA + updWd, GA(1, 0, 4), GA(1, 2, 0))
        else:
            R.stream(next_reads[0], GA(1, 0, 4), GA(1, 2, 0))
        for kin in range(2):
            for db in range(8):
                for mi in range(2):
                    if kin == 0 and db == 0 and mi == 0: continue
                    labs = [f'w{kin}_{mi}_{db}'] + ([f'act{kin}'] if (db == 0 and mi == 0) else [])
                    R.place(('wlg', labs), GA(kin, db, 4*mi) - 1, force=True)
        for db in range(8):
            for mi in range(2):
                rr = rd_wA(mi, db, 1, f'w1_{mi}_{db}')
                e = GA(0, db, 4*mi + 3)
                g = R.place(rr[0], e, GA(1, 0, 0)); R.place(rr[1], min(g + 1, GA(1, 0, 0)), GA(1, 0, 0))
        for tb in range(4): R.place(rd_act(1, 1, tb, 'act1'), GA(0, 1, 1) + 5*tb)
        if next_reads is None:
            for db in range(8):
                for mi in range(2):
                    rr = rd_wA(mi, db, 0, f'n0_{mi}_{db}')
                    e = max(GA(1, db, 4*mi + 3), GA(1, 2, 1))
                    g = R.place(rr[0], e); R.place(rr[1], g + 1)
            for tb in range(4): R.place(rd_act(0, 0, tb, 'nact0'), GA(1, 2, 2) + 5*tb)
        else:
            for (it, e) in next_reads[1]: R.place(it, max(e, GA(1, 2, 1)))
        if 'nodmaA' in opt and kind in ('s0', 's1', 'loop'): dmaA_items = [x for x in dmaA_items if x[0] != 'm']; dmaB_items = [x for x in dmaB_items if x[0] != 'm']
        if 'nowA' in opt and kind in ('s0', 's1', 'loop'):
            for g in range(R.n): R.S[g] = [x for x in R.S[g] if x[0] != 'wlg']
        if 'nordsA' in opt and kind in ('s0', 's1', 'loop'):
            for g in range(R.n): R.M[g] = []; R.S[g] = [x for x in R.S[g] if x[0] != 'wlg']
        spread(R, dmaA_items, 1, BG - 2)
        spread(R, dmaB_items, BG + 1, bend if bend else R.n - 2)
        return R
    def dyn_dmaW():
        L = []
        for mi, sr in enumerate((S_WUK, S_WUV)):
            L += [('s', f's_add_u32 m0, s{sWp}, {mi*SL}')]
            for i in range(4): L.append(('m', f'buffer_load_dwordx4 v{vOffW+i}, s[{sr}:{sr+3}], s{sKst} offen offset:{1024*i} lds', 'Wn', None))
        L += [('s', f's_add_u32 s{sKst}, s{sKst}, {64*8192}'), ('s', f's_add_u32 s{sWp}, s{sWp}, 32768'),
              ('s', f's_cmp_ge_u32 s{sWp}, 98304\ns_cselect_b32 s{sWp}, s{sLW}, s{sWp}')]
        return L
    def dyn_dmaA():
        L = []
        for half in range(2):
            L += [('s', f's_add_u32 s{sT1}, s{sAoff}, {32768*half}'), ('s', f's_add_u32 m0, s{sAp}, {4096*half}')]
            for i in range(4): L.append(('m', f'buffer_load_dwordx4 v{vOffA+i}, s[{S_CKV}:{S_CKV+3}], s{sT1} offen offset:{1024*i} lds', 'An', None))
        L += [('s', f's_add_u32 s{sAoff}, s{sAoff}, 128'), ('s', f's_sub_u32 s{sAp}, s{sASum}, s{sAp}')]
        if TA: L.append(('l', f'buffer_load_dword v31, v30, s[{S_CKV}:{S_CKV+3}], s{sAoff} offen', 'TCH'))
        return L
    p('v_lshlrev_b32 v30, 10, v0')
    p(f's_mov_b32 s{sWr}, 0')
    p(f's_add_u32 s{sAr}, s{sLA}, {ACT0}')
    p(f's_add_u32 s{sWp}, s{sLW}, 65536')
    p(f's_add_u32 s{sAp}, s{sLA}, {ACT0}')
    p(f's_lshl_b32 s{sASum}, s{sAp}, 1')
    p(f's_add_u32 s{sASum}, s{sASum}, 32768')
    p(f's_add_u32 s{sKst}, s{sWoff}, {2*64*8192}')
    p(f's_add_u32 s{sAoff}, s{sAoff}, 256')
    emit(updA + updWd)
    p.lgq = []; p.lg_ret = -1
    for tb in range(4): put(rd_act(0, 0, tb, 'act0'))
    for db in range(8):
        for mi in range(2): emit(rd_wA(mi, db, 0, f'w0_{mi}_{db}'))
    def next_order(R):
        L = []
        for g in range(R.n):
            for it in R.M[g]:
                if it[0] == 'r' and (it[2].startswith('n0_') or it[2] == 'nact0'):
                    L.append('act0' if it[2] == 'nact0' else 'w0_' + it[2][3:])
        return L
    order = [None]
    def relabel():
        p.lgq = list(order[0]); p.lg_ret = -1
    def bar_raw(n):
        if 'nobarA' in opt: return ('w', f's_waitcnt vmcnt({n}) lgkmcnt(0)')
        return ('w', f's_waitcnt vmcnt({n}) lgkmcnt(0)\ns_barrier')
    BG = GA(1, 0, 7)
    def fix_bar(R, n, extra=()):
        R.S[BG] = [bar_raw(n), ('call', lambda: p.lg_all())] + list(extra) + [x for x in R.S[BG] if x[0] != 'bar']
    def red64x4(r):
        L = []
        for sh in (8, 4): L += ['s_nop 1', f'v_add_f32_dpp v{r}, v{r}, v{r} row_ror:{sh} row_mask:0xf bank_mask:0xf']
        for sw in ('v_permlane16_swap_b32', 'v_permlane32_swap_b32'):
            L += [f'v_mov_b32 v{LT+6}, v{r}', 's_nop 1', f'{sw} v{r}, v{LT+6}', 's_nop 1', f'v_add_f32 v{r}, v{r}, v{LT+6}']
        return L
    lnops = []
    for i in range(5): lnops += unpack8(RAW + 4*i, X + 8*i)
    lnops += ln_stream(X, 40, LT, red64x4, scale='0x3e0293ee')
    ln = [('v', x) for x in lnops]
    for i in range(5):
        ln.append(('s', f's_mov_b32 s14, {4096*i}'))
        ln.append(('st', f'buffer_store_dwordx4 v[{X+4*i}:{X+4*i+3}], v{vXn}, s[{S_LNS}:{S_LNS+3}], s14 offen sc1'))
    third = len(ln) // 3 if LN3 else len(ln) // 2
    half = third
    def tag_read():
        p('s_mov_b32 s14, 0')
        p.label(f'{name}_tagpoll')
        p(f'v_readfirstlane_b32 s{sTag}, v24')
        p('s_add_u32 s14, s14, 1')
        p('s_nop 2')
        p(f's_cmp_lg_u32 s{sTag}, 0')
        p(f's_cbranch_scc1 {name}_notag2')
        p(f's_cmp_ge_u32 s14, {SPIN}')
        p(f's_cbranch_scc1 {name}_notag2')
        p(f'buffer_load_dword v24, v26, s[{S_DBG}:{S_DBG+3}], 0 offen sc1')
        p('s_waitcnt vmcnt(0)')
        p(f's_branch {name}_tagpoll')
        p.label(f'{name}_notag2')
    def pub_ln():
        p(f's_cmp_lg_u32 s{sCnt}, {1 if TA else 0}')
        p(f's_cbranch_scc1 {name}_nopub')
        p(f's_cmp_lg_u32 s{sW}, 0')
        p(f's_cbranch_scc1 {name}_nopub')
        p(f's_lshl_b32 s14, s2, 3')
        p(f'v_mov_b32 v24, s{sTag}')
        p(f'v_mov_b32 v25, s{sXcc}')
        p('v_mov_b32 v26, 0')
        p(f'buffer_store_dwordx2 v[24:25], v26, s[{S_FL}:{S_FL+3}], s14 offen sc1')
        p.label(f'{name}_nopub')
    R0 = stageA('s0', (dmaA_static(1, -256) + dmaW_static(1) if LATE1 else []) + dyn_dmaW(), dyn_dmaA(), None, first=True, bend=BG + 34)
    fix_bar(R0, 8)
    R0.place(('l', f'buffer_load_dword v24, v26, s[{S_DBG}:{S_DBG+3}], 0 offen sc1', 'TAG'), BG + 1, force=True)
    R0.period = 16 if LN3 else 20; R0.stream(ln[:half], 4, None, pace=lambda k: 4 + (k*120)//half); R0.period = 16
    p.lgq = ['act0']*4 + [f'w0_{mi}_{db}' for db in range(8) for mi in range(2) for _ in range(2)]; p.lg_ret = -1
    put(('wlg', ['w0_0_0', 'act0']))
    R0.emit(p, put); order[0] = next_order(R0)
    p.stamp('stage0 done')
    R1_ = stageA('s1', dyn_dmaW(), dyn_dmaA(), None, bend=BG + 34)
    fix_bar(R1_, 9 if TA else 8, [('call', tag_read)])
    if LN3:
        mid = ln[half:2*half]
        R1_.stream(mid, 0, None, pace=lambda k: (k*122)//len(mid))
        relabel(); put(('wlg', ['w0_0_0', 'act0']))
        R1_.emit(p, put); order[0] = next_order(R1_)
        R2_ = stageA('s2', dyn_dmaW(), dyn_dmaA(), None, bend=BG + 34)
        fix_bar(R2_, 8)
        rest = ln[2*half:]
        R2_.stream(rest, 0, None, pace=lambda k: min((k*118)//len(rest), 200) if rest[k][0] == 'v' else BG + 2)
        relabel(); put(('wlg', ['w0_0_0', 'act0']))
        R2_.emit(p, put); order[0] = next_order(R2_)
        print('stage2 est', R2_.total())
    else:
        R1_.period = 20; g = R1_.stream(ln[half:], 0, None, pace=lambda k: min((k*118)//(len(ln) - half), 200) if ln[half + k][0] == 'v' else BG + 2); R1_.period = 16
        relabel(); put(('wlg', ['w0_0_0', 'act0']))
        R1_.emit(p, put); order[0] = next_order(R1_)
    print('stage0/1 est', R0.total(), R1_.total())
    p.stamp('stage1 done')
    p(f's_mov_b32 s{sCnt}, 0')
    LA = f'{name}_stageA'
    p.label(LA)
    Rl = stageA('loop', dyn_dmaW(), dyn_dmaA(), None, bend=BG + 34)
    fix_bar(Rl, 9 if TA else 8, [('call', pub_ln)])
    Rl.T[Rl.n - 1] += [('s', f's_add_u32 s{sCnt}, s{sCnt}, 1'), ('s', f's_cmp_lt_u32 s{sCnt}, {3 if LN3 else 4}')]
    assert 'nordsA' in opt or next_order(Rl) == order[0], 'stage read order must be periodic'
    relabel()
    put(('wlg', ['w0_0_0', 'act0']))
    Rl.emit(p, put)
    print('stageA loop est', Rl.total(), 'overflow', Rl.over)
    p(f's_cbranch_scc1 {LA}')
    if 'pp' not in opt: (p.stamp('A loop done') if 'pq' not in opt else None)
    def dma_wq(c):
        L = [('s', f's_add_u32 s{sT0}, s{sWoff}, {c*64*8192}'), ('s', f's_add_u32 m0, s{sLW}, {c*SL}')]
        for i in range(4):
            L.append(('m', f'buffer_load_dwordx4 v{vOffW+i}, s[{S_WQ}:{S_WQ+3}], s{sT0} offen offset:{1024*i} lds', f'WQ{c}', None))
        return L
    relabel()
    put(('wlg', ['w0_0_0', 'act0']))
    flagld = [('s', f's_sub_u32 s{sTL}, 15, s{sI}'), ('s', f's_mov_b32 s{sTS}, s{sI}'),
              ('v', f'v_and_b32 v24, 15, v0'), ('v', f'v_bfe_u32 v25, v0, 4, 1'),
              ('v', f'v_mov_b32 v26, s{sTL}'), ('v', f'v_mov_b32 v27, s{sTS}'),
              ('v', f'v_cmp_eq_u32 vcc, 0, v25'), ('v', 's_nop 1'), ('v', f'v_cndmask_b32 v26, v27, v26, vcc'),
              ('v', f'v_lshl_add_u32 v24, v26, 4, v24'),
              ('s', f's_and_b32 s14, s{sH}, 3'), ('s', f's_lshl_b32 s14, s14, 6'), ('s', f's_lshr_b32 s15, s{sH}, 2'), ('s', f's_add_u32 s14, s14, s15'),
              ('v', f'v_and_b32 v25, 7, v0'), ('v', f'v_lshlrev_b32 v25, 3, v25'), ('v', f'v_add_u32 v25, s14, v25'),
              ('v', f'v_cmp_gt_u32 vcc, 32, v0'), ('v', 's_nop 1'), ('v', f'v_cndmask_b32 v24, v25, v24, vcc'),
              ('v', f'v_lshlrev_b32 v24, 3, v24'),
              ('l', f'buffer_load_dwordx2 v[28:29], v24, s[{S_FL}:{S_FL+3}], 0 offen sc1', 'FL')]
    R6 = stageA('s6', dma_wq(4) + dma_wq(5), dma_wq(0) + dma_wq(1), None)
    fix_bar(R6, 9 if TA else 8)
    R6.stream(flagld, BG + 24)
    R6.emit(p, put)
    order[0] = next_order(R6)
    XR = [16, 96, 32, 80]
    XRING = [('v', 16), ('v', 96), ('v', 32), ('v', 80), ('a', 0), ('a', 16), ('a', 32), ('a', 48)]
    def xreg(ks, c):
        t, b = XRING[ks % 8]
        return f'{t}[{b+4*c}:{b+4*c+3}]'
    def xn_load(ks):
        L = []
        for c in range(4):
            off = ks*1024 + (c & 1)*20480
            sb = sXL if c < 2 else sXS
            L.append(('s', f's_add_u32 s{sT1}, s{sb}, {off & ~4095}'))
            L.append(('l', f'buffer_load_dwordx4 {xreg(ks, c)}, v{vLane16}, s[{S_XNF}:{S_XNF+3}], s{sT1} offen offset:{off & 4095} sc1', f'XN{ks}'))
        return L
    def rd_w(db, kin, base, lab):
        r = vWF + 4*db
        return [('r', f'ds_read_b64_tr_b16 v[{r+2*h}:{r+2*h+1}], v{vCW+db} offset:{8192*kin + 1024*h}', lab, None) for h in range(2)]
    def upd_w(base):
        return [('v', f'v_add_u32 v{vCW}, {base}, v{vLPW}')] + [('v', f'v_xor_b32 v{vCW+db}, {db*32}, v{vCW}') for db in range(1, 8)]
    def lncheck():
        p(f's_cmp_lg_u32 s{sW}, 0')
        p(f's_cbranch_scc1 {name}_lnok')
        p('s_mov_b32 s14, 0')
        p.label(f'{name}_lnpoll')
        p(f'v_cmp_ne_u32 vcc, s{sTag}, v28')
        p('s_add_u32 s14, s14, 1')
        p(f's_cbranch_vccz {name}_lnok2')
        p(f's_cmp_ge_u32 s14, {SPIN}')
        p(f's_cbranch_scc1 {name}_lnok2')
        p(f'buffer_load_dwordx2 v[28:29], v24, s[{S_FL}:{S_FL+3}], 0 offen sc1')
        p('s_waitcnt vmcnt(0)')
        p(f's_branch {name}_lnpoll')
        p.label(f'{name}_lnok2')
        p(f'v_cmp_ne_u32 vcc, s{sXcc}, v29')
        p('s_nop 1')
        p('s_lshr_b64 s[14:15], vcc, 32')
        p('s_cmp_eq_u64 s[14:15], 0')
        p(f's_cselect_b32 s{sSame}, 1, 0')
        p.label(f'{name}_lnok')
    relabel()
    put(('wlg', ['w0_0_0', 'act0']))
    xset = [('s', f's_lshl_b32 s{sT1}, s{sTL}, 3'), ('s', f's_lshl_b32 s{sT0}, s{sW}, 1'), ('s', f's_add_u32 s{sT1}, s{sT1}, s{sT0}'),
            ('s', f's_mul_i32 s{sXL}, s{sT1}, 20480'), ('s', f's_lshl_b32 s{sT1}, s{sTS}, 3'), ('s', f's_add_u32 s{sT1}, s{sT1}, s{sT0}'),
            ('s', f's_mul_i32 s{sXS}, s{sT1}, 20480')]
    def last_use(db):
        r = vWF + 4*db
        if r < 64: return GA(1, (r - vWK)//4, 3)
        return GA(1, (r - vWV)//4, 7)
    nr = []
    for db in range(8):
        for it in rd_w(db, 0, 0, f'w0_{db}'): nr.append((it, last_use(db) + 1))
    R7 = stageA('s7', xset + ([] if WQL else dma_wq(6) + dma_wq(7)), dma_wq(2) + dma_wq(3) + ([] if WQL else dma_wq(8) + dma_wq(9)), None, next_reads=(upd_w(0), nr))
    R7.S[BG] = [('call', lambda: (p('s_waitcnt vmcnt(0) lgkmcnt(0)' if WQL else 's_waitcnt vmcnt(8) lgkmcnt(0)'), p.lg_all(), lncheck(), p('s_barrier')))] + [x for x in R7.S[BG] if x[0] != 'bar']
    R7.stream(xn_load(0) + xn_load(1), BG + 2)
    R7.stream(xn_load(2), GA(1, 4, 0))
    R7.emit(p, put)
    if 'pp' not in opt: p.stamp('phase A done')
    NKS = 20
    mf = []
    for ks in range(NKS):
        for db in range(8):
            for c in range(4):
                acc = O(c, db)
                cc = '0' if ks == 0 else f'v[{acc}:{acc+3}]'
                mf.append(f'{MF} v[{acc}:{acc+3}], v[{vWF+4*db}:{vWF+4*db+3}], {xreg(ks, c)}, {cc}')
    R = Region(mf)
    G = lambda ks, db, c: ks*32 + db*4 + c
    p.wait_vm('XN0')
    put(('wlg', ['w0_0', 'w0_1']))
    if WQL:
        R.S[G(3, 0, 3)].append(('bar', ['WQ2', 'WQ3', 'WQ4', 'WQ5']))
        R.S[G(10, 0, 3)].append(('bar', ['WQ6', 'WQ7', 'WQ8', 'WQ9']))
    else:
        R.S[G(3, 0, 3)].append(('bar', ['WQ2', 'WQ3', 'WQ8', 'WQ9', 'WQ4', 'WQ5', 'WQ6', 'WQ7']))
    for ch in range(9):
        R.stream(upd_w((ch + 1)*SL), G(2*ch + 1, 0, 1), G(2*ch + 1, 2, 0))
    for ks in range(NKS):
        for db in range(0, 8, 2):
            if ks == 0 and db == 0: continue
            R.place(('wlg', [f'w{ks}_{db}', f'w{ks}_{db+1}']), G(ks, db, 0) - 1, force=True)
        if ks: R.place(('wvm', f'XN{ks}'), G(ks, 0, 0) - 2, force=True)
    for ks in range(NKS - 1):
        ch, t = divmod(ks, 2); nxt = ks + 1; nch, nt = divmod(nxt, 2)
        for db in range(8):
            e = G(ks, db, 3)
            if t == 1: e = max(e, G(ks, 2, 1))
            rr = rd_w(db, nt, nch*SL, f'w{nxt}_{db}')
            lat = G(ks + 1, 0, 0) if t == 0 else None
            g = R.place(rr[0], e, lat); R.place(rr[1], g + 1 if t == 1 or db < 7 else g, lat)
    if WQL: spread(R, dma_wq(6) + dma_wq(7) + dma_wq(8) + dma_wq(9), G(1, 0, 0), G(6, 0, 0))
    TE = 112
    STF = ''
    for o_ in opt:
        if o_.startswith('stf='): STF = o_[4:]
    sSt = sCtx
    epi = []
    sStB = sHbase
    for kind in range(2):
        for f in range(16):
            if kind == 0:
                tb, k4 = divmod(f, 4); a0 = KA(tb, 2*k4); off = tb*4096 + k4*1024; sr = S_KF
            else:
                b, db = divmod(f, 8); a0 = 128 + (b*16 + db*2)*4; off = b*8192 + db*1024; sr = S_VF
            for k in range(8): epi.append(('v', f'v_accvgpr_read_b32 v{TE+k}, a{a0+k}'))
            for k in range(4): epi.append(('v', f'v_cvt_pk_bf16_f32 v{TE+k}, v{TE+2*k}, v{TE+2*k+1}'))
            epi.append(('s', f's_add_u32 s{sSt}, s{sStB}, {off & ~4095}'))
            epi.append(('st', f'buffer_store_dwordx4 v[{TE}:{TE+3}], v{vLane16}, s[{sr}:{sr+3}], s{sSt} offen offset:{off & 4095} {(KSTF if (kind == 0 and KSTF is not None) else (VSTF if (kind == 1 and VSTF is not None) else STF))}'))
            if 'nost' in opt: epi.pop()
            epi.append(('s', 's_nop 0'))
    KS_V = int(next((o_[3:] for o_ in opt if o_.startswith('kv=')), '19'))
    g0 = 12; span = G(KS_V, 4, 0) - g0
    gl = R.stream(epi, g0, None, pace=lambda k: g0 + (k*span)//len(epi))
    freed = {}
    for g in range(R.n):
        for it in R.V[g]:
            if it[1].startswith('v_accvgpr_read'): freed[int(it[1].split(' a')[-1])] = g
    gprev = 0
    for ks in range(3, NKS):
        t, b = XRING[ks % 8]
        if t == 'a' and ks < 8: e = max(freed[r] for r in range(b, b + 16)) + 1
        elif ks >= 8: e = G(ks - 8, 7, 3) + 1
        else: e = 0
        e = max(e, gprev + 1, G(max(ks - 7, 0), 0, 0))
        lat = G(ks, 0, 0) - 40 if ks > 3 else G(1, 0, 0)
        gprev = R.stream(xn_load(ks), e, max(lat, e + 8))
    FK, FV = 4096, 5120
    def publish(off, lab, waitlabel):
        p.wait_vm(waitlabel)
        p('s_barrier')
        p(f's_cmp_lg_u32 s{sW}, 0')
        p(f's_cbranch_scc1 {name}_{lab}pub')
        p(f's_lshl_b32 s14, s{sH}, 3')
        p(f's_add_u32 s14, s14, s{sI}')
        p(f's_lshl_b32 s14, s14, 2')
        p(f's_add_u32 s14, s14, {off}')
        p(f'v_mov_b32 v12, s{sTag}')
        p('v_mov_b32 v13, 0')
        p(f's_cmp_eq_u32 s{sSame}, 1')
        p(f's_cbranch_scc1 {name}_{lab}rel')
        p('buffer_wbl2 sc1')
        p('s_waitcnt vmcnt(0)')
        p(f'buffer_store_dword v12, v13, s[{S_FL}:{S_FL+3}], s14 offen sc1')
        p(f's_branch {name}_{lab}pub')
        p.label(f'{name}_{lab}rel')
        p(f'buffer_store_dword v12, v13, s[{S_FL}:{S_FL+3}], s14 offen')
        p.label(f'{name}_{lab}pub')
    def flag_load(off, lab):
        return [('s', f's_lshl_b32 s15, s{sH}, 5'), ('s', f's_add_u32 s15, s15, {off}'),
                ('v', 'v_and_b32 v13, 7, v0'), ('v', 'v_lshlrev_b32 v13, 2, v13'),
                ('l', f'buffer_load_dword v12, v13, s[{S_FL}:{S_FL+3}], s15 offen sc1', lab)]
    def check(lab, waitlabel):
        p.wait_vm(waitlabel, 'lgkmcnt(0)'); p.lg_all()
        p(f's_cmp_lg_u32 s{sW}, 0')
        p(f's_cbranch_scc1 {name}_{lab}ok')
        p('s_mov_b32 s14, 0')
        p.label(f'{name}_{lab}poll')
        p(f'v_cmp_ne_u32 vcc, s{sTag}, v12')
        p('s_add_u32 s14, s14, 1')
        p(f's_cbranch_vccz {name}_{lab}ok2')
        p(f's_cmp_ge_u32 s14, {SPIN}')
        p(f's_cbranch_scc1 {name}_{lab}ok2')
        p(f'buffer_load_dword v12, v13, s[{S_FL}:{S_FL+3}], s15 offen sc1')
        p('s_waitcnt vmcnt(0)')
        p(f's_branch {name}_{lab}poll')
        p.label(f'{name}_{lab}ok2')
        p(f's_cmp_eq_u32 s{sSame}, 1')
        p(f's_cbranch_scc1 {name}_{lab}ok')
        p('buffer_inv sc1')
        p('s_waitcnt vmcnt(0)')
        p.label(f'{name}_{lab}ok')
        p('s_barrier')
    def att_state():
        p(f's_lshl_b32 s{sKb}, s{sH}, 19')
        p(f's_add_u32 s{sKb}, s{sKb}, s{sLW}')
        p(f's_mov_b32 s{sVb}, s{sKb}')
    def unitK(slot, label):
        L = [('s', f's_add_u32 m0, s{sLW}, {slot*32768}')]
        for i in range(4): L.append(('m', f'buffer_load_dwordx4 v{vLane16}, s[{S_KF}:{S_KF+3}], s{sKb} offen offset:{1024*i}{KVLD} lds', label, None))
        return L + [('s', f's_add_u32 s{sKb}, s{sKb}, 16384')]
    def unitV(slot, label):
        L = [('s', f's_add_u32 m0, s{sLW}, {slot*32768 + SL}')]
        for i in range(4): L.append(('m', f'buffer_load_dwordx4 v{vLane16}, s[{S_VF}:{S_VF+3}], s{sVb} offen offset:{1024*i}{KVLD} lds', label, None))
        return L + [('s', f's_add_u32 s{sVb}, s{sVb}, 16384')]
    def dma_K(label, tagbase=None):
        L = [('s', f's_mov_b32 m0, s{sSlotP}')]
        for i in range(4):
            L.append(('m', f'buffer_load_dwordx4 v{vLane16}, s[{S_KF}:{S_KF+3}], s{sKb} offen offset:{1024*i}{KVLD} lds', label, None))
        L += [('s', f's_add_u32 s{sKb}, s{sKb}, 16384')]
        return L
    def dma_V(label, tagbase=None):
        L = [('s', f's_add_u32 m0, s{sSlotP}, {SL}')]
        for i in range(4):
            L.append(('m', f'buffer_load_dwordx4 v{vLane16}, s[{S_VF}:{S_VF+3}], s{sVb} offen offset:{1024*i}{KVLD} lds', label, None))
        L += [('s', f's_add_u32 s{sVb}, s{sVb}, 16384')]
        return L
    adv_slot = [('s', f's_add_u32 s{sSlotP}, s{sSlotP}, 32768'), ('s', f's_cmp_ge_u32 s{sSlotP}, {NSLOT*32768}\ns_cselect_b32 s{sSlotP}, s{sLW}, s{sSlotP}')]
    R.emit(p, put)
    print('fused qproj overflow', R.over, 'est', R.total())
    if 'pp' not in opt: p.stamp('q end')
    p(f's_mov_b32 s{sFlag}, 0')
    p(f's_mov_b32 s{sLim}, {hex(LIM)}')
    def touch_setup():
        p(f's_load_dwordx2 s[92:93], s[0:1], {ARG["wo"]}')
        p(f's_load_dwordx2 s[94:95], s[0:1], {ARG["wg"]}')
        p(f's_load_dwordx2 s[96:97], s[0:1], {ARG["wu"]}')
        p(f's_load_dwordx2 s[98:99], s[0:1], {ARG["wd"]}')
        p('s_lshl_b32 s14, s2, 2')
        p(f's_add_u32 s14, s14, s{sW}')
        p('s_mul_i32 s14, s14, 40')
        p('v_min_u32 v14, 39, v0')
        p('v_add_u32 v14, s14, v14')
        p('v_lshlrev_b32 v14, 7, v14')
        p('s_lshr_b32 s14, s2, 6')
        p('s_lshl_b32 s14, s14, 2')
        p(f's_and_b32 s15, s{sI}, 3')
        p('s_add_u32 s14, s14, s15')
        p('s_lshl_b32 s14, s14, 3')
        p('s_and_b32 s15, s2, 7')
        p('s_add_u32 s14, s14, s15')
        p('s_lshl_b32 s14, s14, 2')
        p(f's_add_u32 s14, s14, s{sW}')
        p('s_mul_i32 s14, s14, 34')
        p('v_min_u32 v15, 33, v0')
        p('v_add_u32 v15, s14, v15')
        p('v_min_u32 v15, 17279, v15')
        p('v_lshlrev_b32 v15, 7, v15')
        p('s_waitcnt lgkmcnt(0)')
    touch_items = [('l', 'global_load_dword v13, v14, s[92:93]', 'T'), ('l', 'global_load_dword v13, v15, s[94:95]', 'T'),
                   ('l', 'global_load_dword v13, v15, s[96:97]', 'T'), ('l', 'global_load_dword v13, v15, s[98:99]', 'T')]
    att_state()
    if FP == 'pace':
        p(f's_load_dwordx2 s[92:93], s[0:1], {ARG["wg"]}')
        p(f's_load_dwordx2 s[94:95], s[0:1], {ARG["wu"]}')
        p(f's_load_dwordx2 s[96:97], s[0:1], {ARG["wd"]}')
        p('s_lshr_b32 s14, s2, 6')
        p('s_lshl_b32 s14, s14, 1')
        p(f's_add_u32 s14, s14, s{sI}')
        p('s_sub_u32 s14, s14, 6')
        p('s_lshl_b32 s14, s14, 3')
        p('s_and_b32 s15, s2, 7')
        p('s_add_u32 s14, s14, s15')
        p(f's_cmp_ge_u32 s{sI}, 6')
        p('s_cselect_b32 s14, s14, 255')
        p('s_cmp_lt_u32 s14, 54')
        p('s_cselect_b32 s99, 1, 0')
        p('s_mul_i32 s14, s14, s99')
        p('v_lshrrev_b32 v14, 2, v0')
        p(f's_mul_i32 s15, s{sW}, 160')
        p('v_add_u32 v14, s15, v14')
        p('v_mul_u32_u24 v14, 3456, v14')
        p('v_and_b32 v15, 3, v0')
        p('v_lshl_add_u32 v14, v15, 4, v14')
        p('s_lshl_b32 s15, s14, 6')
        p('v_add_u32 v14, s15, v14')
        p('v_mul_lo_u32 v14, v14, s99')
        p(f's_mul_i32 s98, s99, {16*3456}')
        p('s_mul_i32 s14, s14, 40960')
        p(f's_mul_i32 s15, s{sW}, 10240')
        p('s_add_u32 s14, s14, s15')
        p(f'v_add_u32 v15, s14, v{vLane16}')
        p('v_mul_lo_u32 v15, v15, s99')
        p('s_lshl_b32 s99, s99, 12')
        p('s_waitcnt lgkmcnt(0)')
    else:
        touch_setup()
    publish(FK, 'k', 'st')
    for it in flag_load(FK, 'KFL'): put(it)
    p.stamp('pub done')
    p('s_nop 7')
    for c in range(4):
        for ks in range(4):
            a0 = O(c, 2*ks)
            for k in range(4): p(f'v_cvt_pk_bf16_f32 v{a0+k}, v{a0+2*k}, v{a0+2*k+1}')
            for k in range(4): p(f'v_accvgpr_write_b32 a{aQ + 16*c + 4*ks + k}, v{a0+k}')
    p(f'v_mov_b32 v{vT}, 0x3f803f80')
    for k in range(4): p(f'v_accvgpr_write_b32 a{128+k}, v{vT}')
    p(f'v_and_b32 v{vT}, 15, v0')
    p(f'v_lshrrev_b32 v{vT+1}, 4, v0')
    p(f'v_lshlrev_b32 v{vT+1}, 2, v{vT+1}')
    p(f'v_sub_u32 v{vT}, v{vT}, v{vT+1}')
    for r in range(4): p(f'v_cmp_le_i32 s[{sM+2*r}:{sM+2*r+1}], {r}, v{vT}')
    p(f'v_mov_b32 v{vNinf}, {hex(NEGBIG)}')
    for r in range(16): p(f'v_mov_b32 v{vNeg+r}, 0')
    for c in range(4): p(f'v_mov_b32 v{vL+c}, 0')
    for r in range(64): p(f'v_mov_b32 v{vO+r}, 0')
    p.stamp('pre check')
    check('k', 'KFL')
    emit(unitK(0, 'U-1') + unitK(1, 'U0') + unitV(1, 'U0'))
    p.stamp('kv ok')
    nerr = 0

    def rdK(b, f):  return ('r', f'ds_read_b128 a[{aK+4*f}:{aK+4*f+3}], v{vRd} offset:{b*8192 + f*1024}', f'K{f}')
    def rdV(b, f):  return ('r', f'ds_read_b128 a[{aV+4*f}:{aV+4*f+3}], v{vRd} offset:{16384 + b*8192 + f*1024}', f'V{f}')
    def qk_mfmas(cols, sbase, cin):
        L = []
        for i, c in enumerate(cols):
            for kb in range(2):
                S = Sr(sbase + i, kb)
                for ks in range(4):
                    cc = cin(c, kb) if ks == 0 else S
                    L.append(f'{MF} v[{S}:{S+3}], a[{aK+4*(kb*4+ks)}:{aK+4*(kb*4+ks)+3}], a[{aQ+16*c+4*ks}:{aQ+16*c+4*ks+3}], v[{cc}:{cc+3}]')
        return L
    def pv_mfmas(cols, par, first=False):
        L = []
        for c in cols:
            for db in range(8):
                o = O(c, db)
                cc = '0' if first else f'v[{o}:{o+3}]'
                L.append(f'{MF} v[{o}:{o+3}], a[{aV+4*db}:{aV+4*db+3}], v[{Pr(par, c)}:{Pr(par, c)+3}], {cc}')
        return L
    aOne = 128
    Lm = lambda c: vP + 8 + 4*c
    def sum_mfmas(cols, par):
        if not MSUM: return []
        return [f'{MF} v[{Lm(c)}:{Lm(c)+3}], a[{aOne}:{aOne+3}], v[{Pr(par, c)}:{Pr(par, c)+3}], v[{Lm(c)}:{Lm(c)+3}]' for c in cols]
    def sm_window_ns(c, sslot, par):
        if not MSUM: return sm_window(c, sslot, par)
        return sm_window_ns_(c, sslot, par)
    def sm_window_ns_(c, sslot, par):
        S = vS + 8*sslot; P = Pr(par, c); W = []
        for k in range(4):
            e0, e1 = vE + (2*k) % 4, vE + (2*k + 1) % 4
            W += [[f'v_exp_f32 v{e0}, v{S+2*k}'], [f'v_exp_f32 v{e1}, v{S+2*k+1}'],
                  [f'v_cvt_pk_bf16_f32 v{P+k}, v{e0}, v{e1}'], []]
        return W
    def sm_window(c, sslot, par):
        S = vS + 8*sslot; P = Pr(par, c); W = []
        for k in range(4):
            e0, e1 = vE + (2*k) % 4, vE + (2*k + 1) % 4
            W += [[f'v_exp_f32 v{e0}, v{S+2*k}'], [f'v_exp_f32 v{e1}, v{S+2*k+1}'],
                  [f'v_add_f32 v{vL+c}, v{vL+c}, v{e0}'],
                  [f'v_add_f32 v{vL+c}, v{vL+c}, v{e1}', f'v_cvt_pk_bf16_f32 v{P+k}, v{e0}, v{e1}']]
        return W
    cin_neg = lambda c, kb: vNeg + 4*c
    def cin_mask(tile_cols):
        def f(c, kb):
            if c in tile_cols: return vCi + 8*(c - tile_cols[0]) + 4*kb
            return vNeg + 4*c
        return f
    def mask_ops(tile_cols):
        c0 = tile_cols[0]
        L = [('s', f's_cmp_lt_i32 s{sDd}, 0\ns_cselect_b64 s[14:15], -1, 0'),
             ('s', f's_cmp_eq_u32 s{sDd}, 0\n' + '\n'.join(f's_cselect_b64 s[{4+2*r}:{5+2*r}], s[{sM+2*r}:{sM+2*r+1}], s[14:15]' for r in range(4))),
             ('s', f's_cmp_le_i32 s{sDd}, 0\ns_cselect_b64 s[12:13], -1, 0')]
        for cb in range(2):
            for kb in range(2):
                for r in range(4):
                    m = 4 + 2*r if cb == kb else (12 if (cb == 1 and kb == 0) else 14)
                    L.append(('v', f'v_cndmask_b32 v{vCi + 8*cb + 4*kb + r}, v{vNinf}, v{vNeg + 4*(c0 + cb) + r}, s[{m}:{m+1}]'))
        return L
    LC, SC = [0, 1], [2, 3]
    def build_group(mf, windows, reads, dmas=(), extra=(), pre_wait=None, mid_wait=None, nwin=None):
        R = Region(mf)
        n = len(mf)
        for (g0, W) in windows:
            for i, ops in enumerate(W):
                for o in ops: R.place(('v', o), g0 + i, force=True)
        slots = [g for g in range(n) if g % 4 == 2]
        if len(slots) < len(reads): slots = sorted(slots + [g for g in range(n) if g % 4 == 3])
        if n == 16 or nwin == 16: slots = [g for g in range(16) if g % 4 in (2, 3)]
        for it, g in zip(reads, slots): R.place(it, g, force=True)
        if dmas:
            free = [g for g in range(n) if not R.M[g]]
            pref = [g for g in free if g >= 16 and nwin == 16] + [g for g in free if g % 4 == 3 and not (g >= 16 and nwin == 16)] + [g for g in free if g % 4 == 1] + [g for g in free if g % 4 in (0, 2)]
            nm = sum(1 for x in dmas if x[0] in ('m', 'l'))
            use = sorted([g for g in pref if g >= 1][:nm])
            if nwin == 16 and nm == 4: use = [5, 9, 13, 16]
            if nwin == 16 and nm == 5: use = [1, 5, 9, 13, 16]
            k = 0; pend_s = []
            for it in dmas:
                if it[0] == 's': pend_s.append(it)
                else:
                    g = use[k]; k += 1
                    for j, sx in enumerate(pend_s):
                        gg = max(0, g - len(pend_s) + j)
                        if k > 1: gg = max(gg, use[k-2] + 1) if use[k-2] + 1 <= g - 1 or ' m0,' not in sx[1] else gg
                        if gg == g and ' m0,' in sx[1]: R.place(('s', 's_nop 0'), g, force=True) if False else None
                        R.place(sx, gg, force=True)
                    pend_s = []
                    R.place(it, g, force=True)
            for j, sx in enumerate(pend_s):
                gg = use[-1] + 1 + j
                if gg <= n - 1: R.place(sx, gg, force=True)
                else: R.T[n - 1].append(sx)
        if extra:
            g = 0
            for it in extra:
                best = None
                for gg in range(g, n - 1):
                    if R.fits(gg, it): best = gg; break
                if best is None:
                    best = g
                R.place(it, best, force=True); g = best
        if mid_wait: R.place(mid_wait[1], mid_wait[0], force=True)
        return R
    slot_adv = [('s', f's_add_u32 s{sSlotR}, s{sSlotR}, 32768'), ('s', f's_cmp_ge_u32 s{sSlotR}, {NSLOT*32768}\ns_cselect_b32 s{sSlotR}, 0, s{sSlotR}')]
    def start_items(R, vm=16):
        pre = []
        if vm is None: return
        if 'nodma' not in opt: pre.append(('w', f's_waitcnt vmcnt({vm})'))
        if 'nobar' not in opt: pre.append(('w', 's_barrier'))
        R.S[0] = pre + R.S[0]
    def end_items(R, loop=None):
        n = R.n
        for j, it in enumerate(slot_adv): R.S[4 + 4*j if n > 16 else 1 + 4*j].append(it) if False else None
        g0 = 8
        for j, it in enumerate(slot_adv): R.S[g0 + j].append(it)
        R.V[n - 1].append(('v', f'v_add_u32 v{vRd}, s{sSlotR}, v{vLane16}'))
        if loop:
            R.S[n - 3].append(('s', f's_sub_u32 s{sCnt}, s{sCnt}, 1'))
            R.T[n - 1].append(('s', f's_cmp_lg_u32 s{sCnt}, 0'))
    def emit_group(R, pre):
        if pre and 'nords' not in opt:
            put(('wlg', [f'{pre}{f}' for f in range(4)]))
            R.S[3].insert(0, ('wlg', [f'{pre}{f}' for f in range(4, 8)]))
        if 'nosm' in opt:
            for g in range(R.n): R.V[g] = []
        if 'noexp' in opt:
            for g in range(R.n): R.V[g] = [(x[0], x[1].replace('v_exp_f32', 'v_mov_b32')) for x in R.V[g]]
        if 'nodma' in opt:
            for g in range(R.n): R.M[g] = [x for x in R.M[g] if x[0] != 'm']
        if 'nords' in opt:
            for g in range(R.n):
                R.M[g] = [x for x in R.M[g] if x[0] != 'r']; R.S[g] = [x for x in R.S[g] if x[0] != 'wlg']
            pre = None; R.S[3] = [x for x in R.S[3] if x[0] != 'wlg']
        R.emit(p, put)
    stats = {'cyc': 0}
    def interval(kind, lbl, maskL=None, maskS=None, loop=False, vm=16):
        dual = kind in ('D', 'T')
        mA, mB, mN = (maskS if dual else maskL) or (False, False, False)
        tile = SC if dual else LC
        p.lgq = ['K%d' % f for f in range(8)]; p.lg_ret = -1
        tot = 0
        if dual:
            cols = [0, 1, 2, 3]
            R1 = build_group(qk_mfmas(cols, 0, cin_mask(SC) if mA else cin_neg),
                             [(0, sm_window(3, 3, 0)), (16, sm_window(0, 0, 1))], [rdV(0, f) for f in range(8)], dma_K('x'),
                             mid_wait=None)
            start_items(R1, vm)
            if lbl == 'db':
                g_ = 1
                sel = ([touch_items[0]] if TW else []) + (touch_items[1:] if TF else [])
                for it in sel:
                    while R1.M[g_]: g_ += 1
                    R1.M[g_].append(it); g_ += 3
            add_paced([R1], chunk4(fp_items.get(lbl, []), 0))
            emit_group(R1, 'K')
            ex = ([('s', f's_add_u32 s{sDd}, s{sDd}, 1')] + mask_ops(SC if kind == 'D' else LC)) if mB else []
            if kind == 'T': ex = mask_ops(LC)
            R2 = build_group(pv_mfmas(cols, 0), [(0, sm_window(1, 1, 1)), (16, sm_window(2, 2, 1))], [rdK(0, f) for f in range(8)], extra=ex)
            if kind == 'T':
                emit([('s', f's_sub_u32 s{sDd}, s{sTS}, s{sTL}'), ('s', f's_lshl_b32 s{sDd}, s{sDd}, 2'), ('s', f's_add_u32 s{sDd}, s{sDd}, 4'), ('s', f's_sub_u32 s{sDd}, s{sDd}, s{sW}')])
            add_paced([R2], chunk4(fp_items.get(lbl, []), 1))
            emit_group(R2, 'V')
            if kind == 'D':
                R3 = build_group(qk_mfmas(cols, 0, cin_mask(SC) if mB else cin_neg),
                                 [(0, sm_window(3, 3, 1)), (16, sm_window(0, 0, 0))], [rdV(1, f) for f in range(8)], dma_V('x') + adv_slot)
                add_paced([R3], chunk4(fp_items.get(lbl, []), 2))
                emit_group(R3, 'K')
                ex = ([('s', f's_add_u32 s{sDd}, s{sDd}, 1')] + mask_ops(SC)) if mN else []
                R4 = build_group(pv_mfmas(cols, 1), [(0, sm_window(1, 1, 0)), (16, sm_window(2, 2, 0))], [rdK(1, f) for f in range(8)], extra=ex)
                end_items(R4, loop)
                add_paced([R4], chunk4(fp_items.get(lbl, []), 3))
                emit_group(R4, 'V')
            else:
                R3 = build_group(qk_mfmas(LC, 0, cin_mask(LC)), [(0, sm_window(3, 3, 1))], [rdV(1, f) for f in range(8)], dma_V('x') + adv_slot)
                add_paced([R3], chunk4(fp_items.get(lbl, []), 2))
                emit_group(R3, 'K')
                ex = ([('s', f's_add_u32 s{sDd}, s{sDd}, 1')] + mask_ops(LC))
                ex = [('v', f'v_mov_b32 v{Lm(c)+r}, 0') for c in LC for r in range(4)] + ex
                R4 = build_group(pv_mfmas(cols, 1), [(0, sm_window_ns(0, 0, 0))], [rdK(1, f) for f in range(8)], extra=ex)
                end_items(R4)
                add_paced([R4], chunk4(fp_items.get(lbl, []), 3))
                emit_group(R4, 'V')
            tot = R1.total() + R2.total() + R3.total() + R4.total()
        else:
            dK = dma_K('x'); dv_ = dma_V('x'); dV = dv_[:1] + adv_slot + dv_[1:]
            if KTD and lbl == 'sn':
                dK = dK[:-1] + [('l', f'buffer_load_dword v13, v12, s[{S_KF}:{S_KF+3}], s{sKb} offen', 'T')] + dK[-1:]
                dV = dV[:-1] + [('l', f'buffer_load_dword v13, v12, s[{S_VF}:{S_VF+3}], s{sVb} offen', 'T')] + dV[-1:]
            R1 = build_group(qk_mfmas(LC, 2, cin_mask(LC) if mA else cin_neg), [(0, sm_window_ns(1, 1, 0))], [rdV(0, f) for f in range(8)])
            start_items(R1, vm)
            emit_group(R1, 'K')
            ex = ([('s', f's_add_u32 s{sDd}, s{sDd}, 1')] + mask_ops(LC)) if mB else []
            rk = [rdK(0, f) for f in range(8)] if kind != 'E' else []
            R2 = build_group(pv_mfmas(LC, 0) + sum_mfmas(LC, 0), [(0, sm_window_ns(0, 2, 1))], rk, dK, extra=ex, nwin=16)
            emit_group(R2, 'V')
            if kind != 'E':
                R3 = build_group(qk_mfmas(LC, 0, cin_mask(LC) if mB else cin_neg), [(0, sm_window_ns(1, 3, 1))], [rdV(1, f) for f in range(8)])
                emit_group(R3, 'K')
                ex = ([('s', f's_add_u32 s{sDd}, s{sDd}, 1')] + mask_ops(LC)) if mN else []
                R4 = build_group(pv_mfmas(LC, 1) + sum_mfmas(LC, 1), [(0, sm_window_ns(0, 0, 0))], [rdK(1, f) for f in range(8)], dV, extra=ex, nwin=16)
                end_items(R4, loop)
                emit_group(R4, 'V')
                tot = R1.total() + R2.total() + R3.total() + R4.total()
            else:
                for f in range(8): put(rdV(1, f))
                emit(dV)
                for ops in sm_window_ns(1, 3, 1):
                    for o in ops: p(o)
                    if len(ops) == 1 and ops[0].startswith('v_exp'): p('s_nop 0')
                p('s_waitcnt lgkmcnt(0)')
                p('s_nop 1')
                for m in pv_mfmas(LC, 1) + sum_mfmas(LC, 1): p(m)
        if tot: print(f'  interval {lbl}: est {tot} cycles for', 128 if kind == 'D' else (112 if kind == 'T' else 64), 'mfma')

    def emit_prefetch():
        p('s_lshr_b32 s14, s2, 3')
        p('s_and_b32 s15, s14, 7')
        p('s_cmp_lt_u32 s15, 4')
        p(f's_cbranch_scc1 {name}_npf')
        p(f's_load_dwordx2 s[92:93], s[0:1], {ARG["wo"]}')
        p('s_lshr_b32 s14, s14, 3')
        p('s_lshl_b32 s14, s14, 2')
        p('s_add_u32 s14, s14, s15')
        p('s_sub_u32 s14, s14, 4')
        p(f's_mul_i32 s14, s14, {640*128}')
        p('s_and_b32 s15, s2, 7')
        p('s_lshr_b32 s15, s15, 1')
        p('s_mul_i32 s15, s15, 1310720')
        p('s_add_u32 s14, s14, s15')
        p(f's_mul_i32 s15, s{sW}, {160*128}')
        p('s_add_u32 s14, s14, s15')
        p('s_waitcnt lgkmcnt(0)')
        for i in range(3):
            p(f'v_add_u32 v251, {64*i}, v0')
            p(f'v_min_u32 v251, 159, v251')
            p(f'v_lshlrev_b32 v251, 7, v251')
            p(f'v_add_u32 v251, s14, v251')
            p(f'global_load_dword v250, v251, s[92:93]')
        p.label(f'{name}_npf')
    FA, FB = (10, 11) if FP == 'db' else (252, 253)
    F2, F3, F4, F5 = (47, 48, 49, 51) if FP in ('db', 'S') else (92, 93, 94, 95)
    def ffn_loads():
        p(f's_mov_b32 s{F5}, 0')
        p('s_lshr_b32 s14, s2, 3')
        p(f's_and_b32 s{F2}, s14, 7')
        p(f's_cmp_lt_u32 s{F2}, 6')
        p(f's_cbranch_scc1 {name}_nffn')
        p('s_lshr_b32 s14, s2, 6')
        p('s_lshl_b32 s14, s14, 1')
        p(f's_add_u32 s14, s14, s{F2}')
        p('s_sub_u32 s14, s14, 6')
        p('s_lshl_b32 s14, s14, 3')
        p('s_and_b32 s15, s2, 7')
        p(f's_add_u32 s{F4}, s14, s15')
        p(f's_cmp_ge_u32 s{F4}, 54')
        p(f's_cbranch_scc1 {name}_nffn')
        p(f's_mov_b32 s{F5}, 1')
        p(f's_load_dwordx2 s[4:5], s[0:1], {ARG["wg"]}')
        p(f's_load_dwordx2 s[8:9], s[0:1], {ARG["wu"]}')
        p(f's_load_dwordx2 s[12:13], s[0:1], {ARG["wd"]}')
        p(f'v_lshrrev_b32 v{FA}, 2, v0')
        p(f'v_mul_u32_u24 v{FA}, 3456, v{FA}')
        p(f'v_and_b32 v{FB}, 3, v0')
        p(f'v_lshl_add_u32 v{FA}, v{FB}, 4, v{FA}')
        p('s_waitcnt lgkmcnt(0)')
        for sr, sz in ((4, 640*1728*2), (8, 640*1728*2), (12, 1728*640*2)):
            p(f's_mov_b32 s{sr+2}, {sz}'); p(f's_mov_b32 s{sr+3}, 0x00020000')
        p(f's_mul_i32 s{F2}, s{sW}, {160*3456}')
        p(f's_lshl_b32 s{F3}, s{F4}, 6')
        p(f's_add_u32 s{F2}, s{F2}, s{F3}')
        for i in range(10):
            for mat, sr in enumerate((4, 8)):
                r = 132 + (mat*10 + i)*4
                p(f'buffer_load_dwordx4 a[{r}:{r+3}], v{FA}, s[{sr}:{sr+3}], s{F2} offen')
            p(f's_add_u32 s{F2}, s{F2}, {16*3456}')
        p(f's_mul_i32 s{F2}, s{F4}, {32*1280}')
        p(f's_mul_i32 s{F3}, s{sW}, 10240')
        p(f's_add_u32 s{F2}, s{F2}, s{F3}')
        for i in range(10):
            r = 132 + (20 + i)*4
            p(f'buffer_load_dwordx4 a[{r}:{r+3}], v{vLane16}, s[12:15], s{F2} offen offset:{(i % 4)*1024}')
            if i % 4 == 3: p(f's_add_u32 s{F2}, s{F2}, 4096')
        p.label(f'{name}_nffn')
    def ffn_paced():
        L = []
        for i in range(10):
            for mat, sp in enumerate((92, 94)):
                r = 132 + (mat*10 + i)*4
                L.append(('l', f'global_load_dwordx4 a[{r}:{r+3}], v14, s[{sp}:{sp+1}]', 'F'))
            L.append(('v', 'v_add_u32 v14, s98, v14'))
        for i in range(10):
            r = 132 + (20 + i)*4
            L.append(('l', f'global_load_dwordx4 a[{r}:{r+3}], v15, s[96:97] offset:{(i % 4)*1024}', 'F'))
            if i % 4 == 3: L.append(('v', 'v_add_u32 v15, s99, v15'))
        return L
    fp_items = {'db': [], 'dc': []}
    if FP == 'pace':
        allf = ffn_paced(); nl = 0; cut = 0
        for k, it in enumerate(allf):
            if it[0] == 'l': nl += 1
            if nl == 16 and it[0] == 'v' and cut == 0: cut = k + 1
        fp_items = {'db': allf[:cut], 'dc': allf[cut:]}
    def chunk4(items, k):
        groups = []; cur = []
        for it in items:
            cur.append(it)
            if it[0] == 'v': groups.append(cur); cur = []
        if cur: groups.append(cur)
        out = [[], [], [], []]
        nl = sum(1 for x in items if x[0] == 'l'); acc = 0
        for g in groups:
            q = min(3, int(4*acc/max(nl, 1)))
            out[q] += g; acc += sum(1 for x in g if x[0] == 'l')
        return out[k]
    def add_paced(Rs, items):
        if not items: return
        slots = [(ri, g) for ri, R in enumerate(Rs) for g in range(1, R.n - 1) if not R.M[g]]
        nl = sum(1 for x in items if x[0] == 'l')
        step = len(slots) / (nl + 1.0); k = 0; pos = 0
        last = None
        for it in items:
            if it[0] == 'l':
                k += 1; ri, g = slots[int(k*step)]
                Rs[ri].M[g].append(it); last = (ri, g)
            else:
                ri, g = last
                Rs[ri].V[g].append(it)
    def row_reduce(reg, op, tmp):
        for sw in ('v_permlane16_swap_b32', 'v_permlane32_swap_b32'):
            p(f'v_mov_b32 v{tmp}, v{reg}')
            p('s_nop 1')
            p(f'{sw} v{reg}, v{tmp}')
            p('s_nop 1')
            p(f'{op} v{reg}, v{reg}, v{tmp}')
    def epilogue(cols, sTile, flagbit):
        p('s_nop 7')
        for c in cols: row_reduce(vL + c, 'v_add_f32', vU)
        if cols == LC:
            for c in cols: p(f'v_add_f32 v{vL+c}, v{vL+c}, v{Lm(c)}')
        p(f'v_max_f32 v{vU}, v{vL+cols[0]}, v{vL+cols[1]}')
        p(f'v_cmp_nle_f32 vcc, v{vU}, v{vU+1}'.replace(f'v{vU+1}', f'v{vU+1}') if False else f'v_cmp_nge_f32 vcc, s{sLim}, v{vU}')
        p('s_nop 1')
        p(f's_cmp_lg_u64 vcc, 0')
        p(f's_cselect_b32 s{sT0}, {flagbit}, 0')
        p(f's_or_b32 s{sFlag}, s{sFlag}, s{sT0}')
        for c in cols: p(f'v_rcp_f32 v{vL+c}, v{vL+c}')
        store_ctx(cols, sTile)
    def store_ctx(cols, sTile):
        p(f's_lshl_b32 s{sCtx}, s{sTile}, 3')
        p(f's_lshl_b32 s{sT0}, s{sW}, 1')
        p(f's_add_u32 s{sCtx}, s{sCtx}, s{sT0}')
        p(f's_lshl_b32 s{sCtx}, s{sCtx}, 5')
        p(f's_add_u32 s{sCtx}, s{sCtx}, s{sH}')
        p(f's_lshl_b32 s{sCtx}, s{sCtx}, 12')
        p(f's_add_u32 s{sT1}, s{sCtx}, {32*4096}')
        for i, c in enumerate(cols):
            for ks in range(4):
                o = O(c, 2*ks)
                for k in range(8): p(f'v_mul_f32 v{o+k}, v{o+k}, v{vL+c}')
                for k in range(4): p(f'v_cvt_pk_bf16_f32 v{o+k}, v{o+2*k}, v{o+2*k+1}')
                p(f'buffer_store_dwordx4 v[{o}:{o+3}], v{vLane16}, s[{S_CTX}:{S_CTX+3}], s{sCtx if i == 0 else sT1} offen offset:{ks*1024} {CTX_FLAGS}')

    p(f's_mov_b32 s{sSlotR}, 0')
    p(f'v_mov_b32 v{vRd}, v{vLane16}')
    for r in range(64, 128): p(f'v_mov_b32 v{vO+r}, 0')
    p(f's_lshl_b32 s{sDd}, s{sTS}, 2')
    p(f's_add_u32 s{sDd}, s{sDd}, s{sW}')
    p(f's_sub_u32 s{sDd}, 0, s{sDd}')
    emit(mask_ops(SC))
    p.wait_vm('U-1')
    p('s_barrier')
    p.stamp('U-1 ready')
    p.lgq = []; p.lg_ret = -1
    for f in range(8): put(rdK(0, f))
    p('s_waitcnt lgkmcnt(0)')
    q0 = qk_mfmas([0, 1, 2, 3], 0, cin_mask(SC))
    rest = unitK(2, 'U1') + unitV(2, 'U1')
    Rq = Region(q0)
    spread(Rq, rest, 0, 31)
    Rq.emit(p, put)
    p(f's_add_u32 s{sSlotP}, s{sLW}, {4*32768}')
    p.stamp('qk0 done')
    for f in range(8): put(rdK(1, f))
    for step in range(4):
        for c in range(4):
            S = vS + 8*c; t = vU + c
            if step == 0: p(f'v_max3_f32 v{t}, v{S}, v{S+1}, v{S+2}')
            elif step == 1: p(f'v_max3_f32 v{t}, v{t}, v{S+3}, v{S+4}')
            elif step == 2: p(f'v_max3_f32 v{t}, v{t}, v{S+5}, v{S+6}')
            else: p(f'v_max_f32 v{t}, v{t}, v{S+7}')
    for sw in ('v_permlane16_swap_b32', 'v_permlane32_swap_b32'):
        for c in range(4): p(f'v_mov_b32 v{vU+4+c}, v{vU+c}')
        for c in range(4): p(f'{sw} v{vU+c}, v{vU+4+c}')
        p('s_nop 0')
        for c in range(4): p(f'v_max_f32 v{vU+c}, v{vU+c}, v{vU+4+c}')
    for r in range(8):
        for c in range(4): p(f'v_sub_f32 v{vS+8*c+r}, v{vS+8*c+r}, v{vU+c}')
    for c in range(4):
        for r in range(4): p(f'v_sub_f32 v{vNeg+4*c+r}, 0, v{vU+c}')
    def run_window(W):
        for ops in W:
            for o in ops: p(o)
            if len(ops) == 1 and ops[0].startswith('v_exp'): p('s_nop 0')
    u2 = unitK(3, 'U2') + unitV(3, 'U2')
    for r in range(8):
        for c in range(3): p(f'v_exp_f32 v{vS+8*c+r}, v{vS+8*c+r}')
        while u2:
            it = u2.pop(0)
            put(it)
            if it[0] == 'm': break
            if ' m0,' in it[1]: p('s_nop 0')
    for it in u2: put(it)
    p('s_nop 0')
    for r in range(8):
        for c in range(3): p(f'v_add_f32 v{vL+c}, v{vL+c}, v{vS+8*c+r}')
    for k in range(4):
        for c in range(3): p(f'v_cvt_pk_bf16_f32 v{Pr(0, c)+k}, v{vS+8*c+2*k}, v{vS+8*c+2*k+1}')
    p(f's_mov_b32 s{sSlotR}, 32768')
    p(f'v_add_u32 v{vRd}, s{sSlotR}, v{vLane16}')
    if 'pp' not in opt: p.stamp('attn prologue done')
    p(f's_cmp_eq_u32 s{sTS}, 0')
    p(f's_cbranch_scc1 {name}_t0')
    p(f's_lshl_b32 s{sCnt}, s{sTS}, 1')
    p(f's_sub_u32 s{sCnt}, s{sCnt}, 1')
    p.label(f'{name}_dn')
    interval('D', f'dn', loop=True)
    p(f's_cbranch_scc1 {name}_dn')
    p(f's_sub_u32 s{sDd}, -1, s{sW}')
    interval('D', 'da', maskS=(False, True, True))
    p(f's_branch {name}_db')
    p.label(f'{name}_t0')
    p(f's_sub_u32 s{sDd}, 1, s{sW}')
    emit(mask_ops(SC))
    p('s_nop 1')
    p.label(f'{name}_db')
    if FP == 'db':
        p('s_waitcnt vmcnt(16)')
        p('s_barrier')
        ffn_loads()
        interval('D', 'db', maskS=(True, True, True), vm=None)
        p(f's_cmp_eq_u32 s{F5}, 0')
        p(f's_cbranch_scc1 {name}_dcw')
        p('s_waitcnt vmcnt(46)')
        p(f's_branch {name}_dcw2')
        p.label(f'{name}_dcw')
        p('s_waitcnt vmcnt(16)')
        p.label(f'{name}_dcw2')
        interval('T', 'dc', maskS=(True, False, False), vm=63)
    elif FP == 'pace':
        ndb = sum(1 for x in fp_items['db'] if x[0] == 'l')
        interval('D', 'db', maskS=(True, True, True))
        interval('T', 'dc', maskS=(True, False, False), vm=16 + ndb)
    else:
        interval('D', 'db', maskS=(True, True, True))
        interval('T', 'dc', maskS=(True, False, False))
    epilogue(SC, sTS, 2)
    if FP == 'S':
        ffn_loads()
        p.lgq = ['K%d' % f for f in range(8)]; p.lg_ret = 7
    if 'pp' not in opt: (p.stamp('S done') if 'pq' not in opt else None)
    if KTD:
        p('v_and_b32 v12, 31, v0')
        p('v_lshlrev_b32 v12, 7, v12')
        p(f'v_add_u32 v12, {KTD*16384}, v12')
    p(f's_sub_u32 s{sCnt}, s{sTL}, s{sTS}')
    p(f's_cmp_eq_u32 s{sCnt}, 1')
    p(f's_cbranch_scc1 {name}_sb')
    if DBL:
        p(f's_sub_u32 s{sCnt}, s{sCnt}, 2')
        interval('S', 'sn1')
        p.label(f'{name}_sn')
        interval('S', 'sn2a', vm=8)
        interval('S', 'sn2b', vm=None, loop=True)
    else:
        p(f's_lshl_b32 s{sCnt}, s{sCnt}, 1')
        p(f's_sub_u32 s{sCnt}, s{sCnt}, 3')
        p.label(f'{name}_sn')
        interval('S', 'sn', loop=True, vm=16 + (4 if KTD else 0))
    p(f's_cbranch_scc1 {name}_sn')
    p(f's_sub_u32 s{sDd}, -1, s{sW}')
    interval('S', 'sa', maskL=(False, True, True))
    p.label(f'{name}_sb')
    interval('S', 'sb', maskL=(True, True, True))
    interval('E', 'sc', maskL=(True, False, False))
    epilogue(LC, sTL, 1)
    p.stamp('L done')
    p(f's_cmp_eq_u32 s{sFlag}, 0')
    p(f's_cbranch_scc1 {name}_fin')
    fallback(p, name, locals())
    p.label(f'{name}_fin')
    def ctx_publish():
        p('s_waitcnt vmcnt(0) lgkmcnt(0)')
        p('s_barrier')
        p(f's_cmp_lg_u32 s{sW}, 0')
        p(f's_cbranch_scc1 {name}_cpub')
        p(f's_lshl_b32 s14, s2, 2')
        p(f's_add_u32 s14, s14, 6144')
        p(f'v_mov_b32 v20, s{sTag}')
        p('v_mov_b32 v21, 0')
        p(f'buffer_store_dword v20, v21, s[{S_FL}:{S_FL+3}], s14 offen sc1')
        p.label(f'{name}_cpub')
        p.stamp('ctx pub')
        if PE: emit_prefetch()
        if FP == 'end': ffn_loads()
    import kt
    nerr += kt.gen_kt(name + '_t', p, prof, opt, ctx_publish)
    p.label(f'{name}_done')
    p('s_endpgm')
    def mk_policy(t0, nd, skip_s, ns, fb, wave0):
        def pol(ins, n):
            t = ins.args[0]
            if t.endswith('_done'): return False
            if t.endswith('_stageA'): return n % 3 != 0
            if t in (name + '_noln0', name + '_noln1'): return False
            if t in (name + '_notag', name + '_kvpub'): return not wave0
            if t == name + '_notag2': return True
            if t == name + '_nffn': return not wave0
            if t == name + '_dcw': return not wave0
            if t == name + '_cpub': return not wave0
            if t.startswith(name + '_t'):
                if '_poll' in t and t.endswith('_ok'): return True
                if '_poll' in t and t.endswith('_top'): return False
                u = t[len(name) + 2:]
                if u in ('_w123', '_w1', '_nosig', '_w4', '_w5', '_cw'): return not wave0
                return False
            if t == name + '_nz': return True
            if t == name + '_nocode': return False
            if t == name + '_nopub': return True
            if t in (name + '_lnok', name + '_kok', name + '_vok', name + '_kpub', name + '_vpub'): return not wave0
            if t in (name + '_lnok2', name + '_kok2', name + '_vok2', name + '_krel', name + '_vrel'): return True
            if t.endswith('_t0'): return t0
            if t.endswith('_dn'): return (n % nd) != 0
            if t.endswith('_sb'): return skip_s
            if t.endswith('_sn'): return (n % ns) != 0
            if t.endswith('_fin'): return not fb
            if t.endswith('_fbloop'): return n % 3 != 0
            return False
        return pol
    for cfg in ([(False, 3, False, 3, False, True), (True, 2, False, 2, True, False), (False, 2, True, 2, False, True)] if (not opt or opt[0] in ('pp', 'pq', 'tl', 'tr', 'nocode', 'notlb', 'dbg', 'pa') or opt[0].startswith('kv=')) and not any(o_.endswith('A') for o_ in opt) else []):
        seq = trace(p, mk_policy(*cfg))
        nerr += len(check_linear(seq, name + str(cfg)))
    return p, nerr

def fallback(p, name, L):
    g = L
    vS, vP, vE, vL, vU, vNeg, vCi, vO = g['vS'], g['vP'], g['vE'], g['vL'], g['vU'], g['vNeg'], g['vCi'], g['vO']
    aQ, aK, aV, vLane16, vNinf = g['aQ'], g['aK'], g['aV'], g['vLane16'], g['vNinf']
    S_KF, S_VF = g['S_KF'], g['S_VF']
    sFlag, sTL, sTS, sW, sH, sDd, sCnt, sT0, sT1, sT2 = (g[k] for k in ('sFlag', 'sTL', 'sTS', 'sW', 'sH', 'sDd', 'sCnt', 'sT0', 'sT1', 'sT2'))
    O = g['O']; mask_ops = g['mask_ops']; qk_mfmas = g['qk_mfmas']; pv_mfmas = g['pv_mfmas']; row_reduce = g['row_reduce']; store_ctx = g['store_ctx']
    put = g['put']
    p('s_waitcnt vmcnt(0) lgkmcnt(0)')
    for cols, sTile, bit, nm in (([2, 3], sTS, 2, 'S'), ([0, 1], sTL, 1, 'L')):
        p(f's_and_b32 s{sT0}, s{sFlag}, {bit}')
        p(f's_cmp_eq_u32 s{sT0}, 0')
        p(f's_cbranch_scc1 {name}_fbskip{nm}')
        for c in cols:
            p(f'v_mov_b32 v{vL+c}, 0')
            for r in range(32): p(f'v_mov_b32 v{vO+32*c+r}, 0')
            for r in range(4): p(f'v_mov_b32 v{vNeg+4*c+r}, 0')
        for i in range(2): p(f'v_mov_b32 v{vU+4+i}, v{vNinf}')
        p(f's_lshl_b32 s{sDd}, s{sTile}, 2')
        p(f's_add_u32 s{sDd}, s{sDd}, s{sW}')
        p(f's_add_u32 s{sCnt}, s{sDd}, 1')
        p(f's_sub_u32 s{sDd}, 0, s{sDd}')
        p(f's_lshl_b32 s{sT2}, s{sH}, 19')
        p.label(f'{name}_fb{nm}_fbloop')
        for f in range(8):
            p(f's_add_u32 s{sT1}, s{sT2}, {(f // 4)*4096}')
            p(f'buffer_load_dwordx4 a[{aK+4*f}:{aK+4*f+3}], v{vLane16}, s[{S_KF}:{S_KF+3}], s{sT1} offen offset:{(f % 4)*1024}')
            p(f'buffer_load_dwordx4 a[{aV+4*f}:{aV+4*f+3}], v{vLane16}, s[{S_VF}:{S_VF+3}], s{sT1} offen offset:{(f % 4)*1024}')
        for it in mask_ops(cols): put(it)
        p('s_waitcnt vmcnt(0)')
        p('s_nop 1')
        for m in qk_mfmas(cols, 0, lambda c, kb: vCi + 8*(c - cols[0]) + 4*kb): p(m)
        p('s_nop 7')
        for i, c in enumerate(cols):
            S = vS + 8*i; t = vU + i; m = vU + 4 + i
            p(f'v_max3_f32 v{t}, v{S}, v{S+1}, v{S+2}')
            p(f'v_max3_f32 v{t}, v{t}, v{S+3}, v{S+4}')
            p(f'v_max3_f32 v{t}, v{t}, v{S+5}, v{S+6}')
            p(f'v_max_f32 v{t}, v{t}, v{S+7}')
            row_reduce(t, 'v_max_f32', vU + 6)
            p(f'v_max_f32 v{t}, v{t}, v{m}')
            p(f'v_sub_f32 v{vU+6}, v{m}, v{t}')
            p(f'v_exp_f32 v{vU+6}, v{vU+6}')
            p(f'v_mov_b32 v{m}, v{t}')
            p(f'v_mul_f32 v{vL+c}, v{vL+c}, v{vU+6}')
            for r in range(32): p(f'v_mul_f32 v{vO+32*c+r}, v{vO+32*c+r}, v{vU+6}')
            for r in range(8): p(f'v_sub_f32 v{S+r}, v{S+r}, v{t}')
            for r in range(8): p(f'v_exp_f32 v{S+r}, v{S+r}')
            p('s_nop 0')
            for r in range(8): p(f'v_add_f32 v{vL+c}, v{vL+c}, v{S+r}')
            for k in range(4): p(f'v_cvt_pk_bf16_f32 v{vP+4*c+k}, v{S+2*k}, v{S+2*k+1}')
        p('s_nop 1')
        for m in pv_mfmas(cols, 0): p(m)
        p('s_nop 7')
        p(f's_add_u32 s{sT2}, s{sT2}, 8192')
        p(f's_add_u32 s{sDd}, s{sDd}, 1')
        p(f's_sub_u32 s{sCnt}, s{sCnt}, 1')
        p(f's_cmp_lg_u32 s{sCnt}, 0')
        p(f's_cbranch_scc1 {name}_fb{nm}_fbloop')
        for c in cols: row_reduce(vL + c, 'v_add_f32', vU)
        for c in cols: p(f'v_rcp_f32 v{vL+c}, v{vL+c}')
        store_ctx(cols, sTile)
        p.label(f'{name}_fbskip{nm}')

if __name__ == '__main__':
    p, ne = gen_kf()
    print('instrs', p.count(), 'errors', ne)
```

```python
from common import *
from gx2 import *
from sched import *
from k1b import w_tile_setup, MF
from lnops import *
WS_FLG = 82*MiB

CTX_FLAGS = 'sc1'
LIM = 0x5d800000
NEGBIG = 0xff800000
opt_idx = [0]
TW, TF, PE = False, False, True
FP = 'pace'
TA = False
LATE1 = True
CODE0 = False
DBL = True
TAIL2 = False
MSUM = True
WARM = 0
KTD = 0
KVLD = ''
KSTF = None
VSTF = 'sc1'
PREFETCH = True

def gen_kf(name='front_kernel', prof=False, opt=()):
    p = P2(); p.prof = prof
    p.lenient = 'nordsA' in opt
    p.dbgmode = 'dbg' in opt
    p.rtmode = 'rt' in opt
    import os as _os
    p.dbgwg = int(_os.environ.get('DBGWG', '48'))
    p.stampset = set(['start', 'phase A done', 'q end', 'attn prologue done', 'L done', 'ctx ready', 'gemm end', 'key out', 'argmax ready', 'ffn atomics done'])
    if 'pa' in opt: p.stampset = set(['start', 'setup', 'A0W0 issued', 'dma issued', 'B0', 'stage0 done', 'stage1 done', 'A loop done', 'phase A done', 'q end'])
    if 'tr' in opt: p.stampset = set(['start', 'q end', 'pre check', 'kv ok', 'qk0 done', 'attn prologue done', 'L done', 'tail setup', 'ctx pub', 'ctx ready'])
    if 'tl' in opt: p.stampset = set(['start', 'L done', 'ctx ready', 'gemm end', 'signalled', 'partials ready', 'partials loaded', 'key out', 'argmax ready', 'ffn atomics done'])
    put = make_put(p)
    S_WQ, S_XNF, S_KF, S_VF, S_CTX = 16, 20, 24, 28, 32
    sM = 36
    sW, sH, sI = 44, 45, 46
    sT0, sT1, sT2 = 47, 48, 49
    sLW = 50
    sWoff = 51
    sXL, sXS = 52, 53
    sKb, sVb = 54, 55
    sHbase = 56
    sSlotP, sSlotR = 57, 58
    sTL, sTS = 59, 60
    sCnt = 61
    sDd = 62
    sFlag = 63
    sCtx = 64
    sLim = 65
    sScale = 61
    sSel = 4
    vLane16 = 1; vRd = 2; vNinf = 3
    vOffW = 4
    vLPW = 8; vT = 9
    vNeg = 16; vCi = 32; vS = 48; vP = 80; vE = 112; vL = 116; vU = 120
    vCW = 120
    vWF = 48
    vO = 128
    aQ = 0; aK = 64; aV = 96; aX = 128
    O = lambda c, db: vO + 32*c + 4*db
    Sr = lambda sc, kb: vS + 8*sc + 4*kb
    Pr = lambda par, c: vP + 16*par + 4*c
    NSLOT = 5

    S_CKV, S_X, S_DBG = 4, 8, 88
    S_WUK, S_WUV = 36, 40
    S_FL = 68
    sTag = 3
    sXcc = 67; sSame = 66
    sASum = sFlag
    sAoff = sDd; sWr = sCtx; sAr = sLim; sWp = sKb; sAp = sVb; sKst = sSlotP
    vOffA = 16
    vLPA = 20; vCA = 21
    vWK = 32; vWV = 64; vAct = 128
    SPIN = 1 << 16
    p(f's_cmp_ge_u32 s2, 256')
    p(f's_cbranch_scc1 {name}_done')
    p.stamp('start')
    if CODE0 and 'nocode' not in opt:
        p('s_lshr_b32 s14, s2, 3')
        p('s_cmp_ge_u32 s14, 12')
        p(f's_cbranch_scc1 {name}_nocode')
        p('s_getpc_b64 s[76:77]')
        p.label(f'{name}_pc')
        p('s_lshl_b32 s14, s14, 13')
        p('v_lshlrev_b32 v9, 5, v0')
        p('v_add_u32 v9, s14, v9')
        p(f'v_min_u32 v9, code_end_all-{name}_pc-4, v9')
        p('v_and_b32 v9, -4, v9')
        p('global_load_dword v23, v9, s[76:77]')
        p.label(f'{name}_nocode')
    p(f's_load_dwordx2 s[84:85], s[0:1], {ARG["x"]}')
    p(f's_load_dwordx2 s[86:87], s[0:1], {ARG["ckv"]}')
    p(f's_load_dwordx4 s[88:91], s[0:1], {ARG["wuk"]}')
    p(f's_load_dwordx2 s[92:93], s[0:1], {ARG["wq"]}')
    p(f's_load_dwordx4 s[96:99], s[0:1], {ARG["dbg"]}')
    p('s_and_b32 s14, s2, 7')
    p('s_lshr_b32 s15, s2, 3')
    p(f's_lshr_b32 s{sH}, s15, 3')
    p(f's_lshl_b32 s14, s14, 2')
    p(f's_add_u32 s{sH}, s{sH}, s14')
    p(f's_and_b32 s{sI}, s15, 7')
    p('v_lshrrev_b32 v2, 6, v0')
    p('v_and_b32 v0, 63, v0')
    p(f'v_readfirstlane_b32 s{sW}, v2')
    p(f'v_lshlrev_b32 v{vLane16}, 4, v0')
    p(f's_getreg_b32 s{sXcc}, hwreg(HW_REG_XCC_ID, 0, 4)')
    w_tile_setup(p, vOffW, vLPW, vT)
    p(f'v_lshrrev_b32 v{vT}, 3, v0')
    p(f'v_lshlrev_b32 v{vT}, 10, v{vT}')
    p(f'v_lshrrev_b32 v{vT+1}, 4, v0')
    p(f'v_and_b32 v{vT+2}, 7, v0')
    p(f'v_xor_b32 v{vT+2}, v{vT+2}, v{vT+1}')
    p(f'v_lshl_add_u32 v{vOffA}, v{vT+2}, 4, v{vT}')
    p(f'v_xor_b32 v{vT+3}, 4, v{vT+2}')
    p(f'v_lshl_add_u32 v{vOffA+1}, v{vT+3}, 4, v{vT}')
    p(f'v_add_u32 v{vOffA+2}, {2*7168}, v{vOffA}')
    p(f'v_add_u32 v{vOffA+3}, {3*7168}, v{vOffA+1}')
    p(f'v_add_u32 v{vOffA+1}, {1*7168}, v{vOffA+1}')
    p(f'v_and_b32 v{vT}, 15, v0')
    p(f'v_bfe_u32 v{vT+1}, v0, 1, 3')
    p(f'v_lshrrev_b32 v{vT+2}, 4, v0')
    p(f'v_xor_b32 v{vT+1}, v{vT+1}, v{vT+2}')
    p(f'v_lshlrev_b32 v{vT}, 7, v{vT}')
    p(f'v_lshl_add_u32 v{vLPA}, v{vT+1}, 4, v{vT}')
    p(f's_lshl_b32 s{sLW}, s{sW}, 12')
    p(f's_lshl_b32 s{sWoff}, s{sW}, 17')
    p(f's_lshl_b32 s{sT1}, s{sH}, 8')
    p(f's_add_u32 s{sWoff}, s{sWoff}, s{sT1}')
    p(f's_lshl_b32 s{sT0}, s{sI}, 8')
    p(f's_lshl_b32 s{sT1}, s{sW}, 6')
    p(f's_add_u32 s{sT0}, s{sT0}, s{sT1}')
    p(f's_lshl_b32 s{sAoff}, s{sT0}, 10')
    sK0 = sXL; sLA = sXS
    p(f's_lshl_b32 s{sHbase}, s{sH}, 6')
    p(f's_lshr_b32 s{sT1}, s{sT0}, 5')
    p(f's_add_u32 s{sHbase}, s{sHbase}, s{sT1}')
    p(f's_lshl_b32 s{sHbase}, s{sHbase}, 13')
    p(f's_lshl_b32 s{sLA}, s{sW}, 13')
    p('s_waitcnt lgkmcnt(0)')
    srd(p, S_CKV, 86, 2048*512*2)
    srd(p, S_WUK, 88, 512*4096*2)
    srd(p, S_WUV, 90, 512*4096*2)
    SL = 16384
    ACT0 = 98304
    def emit(L):
        prev = None
        for it in L:
            if it[0] == 'm' and prev is not None and prev[0] == 's' and ' m0,' in prev[1]: put(('s', 's_nop 0'))
            put(it); prev = it
    def dmaW_static(st):
        base = (st % 3)*32768; L = []
        for mi, sr in enumerate((S_WUK, S_WUV)):
            L += [('s', f's_add_u32 s{sT0}, s{sWoff}, {st*64*8192}'), ('s', f's_add_u32 m0, s{sLW}, {base + mi*SL}')]
            for i in range(4): L.append(('m', f'buffer_load_dwordx4 v{vOffW+i}, s[{sr}:{sr+3}], s{sT0} offen offset:{1024*i} lds', f'W{st}', ('W', base + mi*SL, base + (mi+1)*SL, True)))
        return L
    def dmaA_static(st, adj=0):
        base = ACT0 + (st % 2)*32768; L = []
        for half in range(2):
            L += [('s', f's_add_u32 s{sT1}, s{sAoff}, {(st*128 + 32768*half + adj) & 0xffffffff}'), ('s', f's_add_u32 m0, s{sLA}, {base + 4096*half}')]
            for i in range(4): L.append(('m', f'buffer_load_dwordx4 v{vOffA+i}, s[{S_CKV}:{S_CKV+3}], s{sT1} offen offset:{1024*i} lds', f'A{st}', ('W', base, base + 32768, False)))
        return L
    if 'pp' in opt or 'pa' in opt: p.stamp('setup')
    emit(dmaA_static(0)); emit(dmaW_static(0))
    if 'pp' in opt or 'pa' in opt: p.stamp('A0W0 issued')
    srd(p, S_X, 84, 2048*640*2)
    srd(p, S_WQ, 92, 640*4096*2)
    srd(p, S_XNF, 98, SZ_XNF, WS_XNF)
    srd(p, S_KF, 98, SZ_KF, WS_KF)
    srd(p, S_VF, 98, SZ_KF, WS_VF)
    srd(p, S_CTX, 98, SZ_CTX, WS_CTX)
    srd(p, S_FL, 98, 8192, WS_FLG)
    X = 160; RAW = 200; vXo = 220; vXn = 221; LT = 224
    p(f's_lshl_b32 s{sT1}, s2, 3')
    p(f's_and_b32 s14, s{sW}, 1')
    p(f's_lshl_b32 s14, s14, 2')
    p(f's_add_u32 s{sT1}, s{sT1}, s14')
    p(f'v_and_b32 v{vT}, 3, v0')
    p(f'v_add_u32 v{vT}, s{sT1}, v{vT}')
    p(f'v_lshrrev_b32 v{vT+1}, 2, v0')
    p(f'v_mul_u32_u24 v{vXo}, 1280, v{vT}')
    p(f'v_lshl_add_u32 v{vXo}, v{vT+1}, 4, v{vXo}')
    p(f'v_lshrrev_b32 v{vXn}, 4, v{vT}')
    p(f'v_mul_u32_u24 v{vXn}, 20, v{vXn}')
    p(f'v_lshrrev_b32 v{vT+2}, 2, v{vT+1}')
    p(f'v_add_u32 v{vXn}, v{vXn}, v{vT+2}')
    p(f'v_lshlrev_b32 v{vXn}, 10, v{vXn}')
    p(f'v_and_b32 v{vT+2}, 3, v{vT+1}')
    p(f'v_lshlrev_b32 v{vT+2}, 4, v{vT+2}')
    p(f'v_and_b32 v{vT+3}, 15, v{vT}')
    p(f'v_add_u32 v{vT+2}, v{vT+2}, v{vT+3}')
    p(f'v_lshl_add_u32 v{vXn}, v{vT+2}, 4, v{vXn}')
    for i in range(5):
        p(f'buffer_load_dwordx4 v[{RAW+4*i}:{RAW+4*i+3}], v{vXo}, s[{S_X}:{S_X+3}], 0 offen offset:{256*i}')
    S_LNS = 96
    if WARM:
        p('s_lshr_b32 s14, s2, 3')
        p('s_lshl_b32 s14, s14, 2')
        p(f's_add_u32 s14, s14, s{sW}')
        p('s_lshl_b32 s15, s14, 14')
        p(f'v_lshlrev_b32 v{vT}, 7, v0')
        p(f'buffer_load_dword v23, v{vT}, s[{S_CKV}:{S_CKV+3}], s15 offen')
        p('s_add_u32 s15, s15, 8192')
        p(f'buffer_load_dword v23, v{vT}, s[{S_CKV}:{S_CKV+3}], s15 offen')
        if WARM > 1:
            p(f's_lshl_b32 s14, s{sI}, 2')
            p(f's_add_u32 s14, s14, s{sW}')
            p('s_lshl_b32 s14, s14, 17')
            p(f's_lshl_b32 s15, s{sH}, 8')
            p('s_add_u32 s14, s14, s15')
            p(f'v_bfe_u32 v{vT}, v0, 1, 4')
            p(f'v_lshlrev_b32 v{vT}, 13, v{vT}')
            p(f'v_and_b32 v{vT+1}, 1, v0')
            p(f'v_lshl_add_u32 v{vT}, v{vT+1}, 7, v{vT}')
            p(f'buffer_load_dword v23, v{vT}, s[{S_WUK}:{S_WUK+3}], s14 offen')
            p(f'buffer_load_dword v23, v{vT}, s[{S_WUV}:{S_WUV+3}], s14 offen')
    if not CODE0:
        if 'nocode' not in opt:
            p(f's_lshr_b32 s14, s2, 3')
            p(f's_cmp_ge_u32 s14, 12')
            p(f's_cbranch_scc1 {name}_nocode')
            p(f's_cmp_lg_u32 s{sW}, 3')
            p(f's_cbranch_scc1 {name}_nocode')
            p('s_getpc_b64 s[76:77]')
            p.label(f'{name}_pc')
            p(f's_lshl_b32 s14, s14, 13')
            p(f'v_lshlrev_b32 v{vT}, 7, v0')
            p(f'v_add_u32 v{vT}, s14, v{vT}')
            p(f'v_min_u32 v{vT}, code_end_all-{name}_pc-4, v{vT}')
            p(f'v_and_b32 v{vT}, -4, v{vT}')
            p(f'global_load_dword v{vT+2}, v{vT}, s[76:77]')
            p.label(f'{name}_nocode')
    if 'tlb' in opt:
        p('s_mov_b32 s76, s98'); p('s_mov_b32 s77, s99'); p(f's_mov_b32 s78, {96*MiB}'); p('s_mov_b32 s79, 0x00020000')
        p(f'v_mov_b32 v{vT}, {WS_FLG}')
        p(f's_add_u32 s14, s{sHbase}, {WS_KF}'); p(f'v_writelane_b32 v{vT}, s14, 1')
        p(f's_add_u32 s14, s{sHbase}, {WS_VF}'); p(f'v_writelane_b32 v{vT}, s14, 2')
        p(f's_lshl_b32 s15, s{sH}, 19')
        for k in range(2):
            p(f's_add_u32 s14, s15, {WS_KF + k*524160}'); p(f'v_writelane_b32 v{vT}, s14, {3 + 2*k}')
            p(f's_add_u32 s14, s15, {WS_VF + k*524160}'); p(f'v_writelane_b32 v{vT}, s14, {4 + 2*k}')
        p(f's_mov_b32 s14, {WS_XNF}'); p(f'v_writelane_b32 v{vT}, s14, 7')
        p(f's_mov_b32 s14, {WS_XNF + 2*MiB}'); p(f'v_writelane_b32 v{vT}, s14, 8')
        p(f's_sub_u32 s14, 15, s{sI}'); p('s_lshl_b32 s14, s14, 20'); p(f's_add_u32 s14, s14, {WS_CTX}'); p(f'v_writelane_b32 v{vT}, s14, 9')
        p(f's_lshl_b32 s14, s{sI}, 20'); p(f's_add_u32 s14, s14, {WS_CTX}'); p(f'v_writelane_b32 v{vT}, s14, 10')
        p(f'buffer_load_dword v{vT+2}, v{vT}, s[76:79], 0 offen')
    if 'pp' in opt: p.stamp('x issued')
    srd(p, S_DBG, 96, 256)
    p('v_mov_b32 v26, 0')
    p('s_or_b32 s14, s2, 0')
    p(f's_add_u32 s14, s2, s{sW}')
    p('s_cmp_lg_u32 s14, 0')
    p(f's_cbranch_scc1 {name}_notag')
    p('s_memrealtime s[92:93]')
    p('s_waitcnt lgkmcnt(0)')
    p('s_or_b32 s92, s92, 1')
    p('v_mov_b32 v24, s92')
    p(f'buffer_store_dword v24, v26, s[{S_DBG}:{S_DBG+3}], 0 offen sc1')
    p.label(f'{name}_notag')
    if 'pp' in opt: p.stamp('tag issued')
    if not LATE1:
        emit(dmaA_static(1)); emit(dmaW_static(1))
    (p.stamp('dma issued') if 'pq' not in opt else None)
    p('s_cmp_lg_u32 s2, 0')
    p(f's_cbranch_scc1 {name}_nz')
    p(f's_add_u32 s76, s98, {WS_YACC}')
    p('s_addc_u32 s77, s99, 0')
    p(f's_mov_b32 s78, {SZ_ZERO}')
    p('s_mov_b32 s79, 0x00020000')
    for r in range(4): p(f'v_mov_b32 v{28+r}, 0')
    p(f's_mul_i32 s14, s{sW}, 7168')
    for i in range(7):
        p(f'buffer_store_dwordx4 v[28:31], v{vLane16}, s[76:79], s14 offen sc1')
        p(f's_add_u32 s14, s14, 1024')
    p.label(f'{name}_nz')
    p(f's_add_u32 s96, s98, {WS_XNF}')
    p('s_addc_u32 s97, s99, 0')
    p(f's_mov_b32 s98, {SZ_XNF}')
    p('s_mov_b32 s99, 0x00020000')
    p(f's_cmp_lt_u32 s{sW}, 2')
    p('s_cselect_b32 s98, s98, 0')
    p('s_waitcnt vmcnt(0)' if LATE1 else 's_waitcnt vmcnt(16)')
    p('s_barrier')
    (p.stamp('B0') if 'pq' not in opt else None)
    def rd_act(buf, kin, tb, lab):
        r = vAct + 16*buf + 4*tb
        return ('r', f'ds_read_b128 v[{r}:{r+3}], v{vCA+kin} offset:{2048*tb}', lab)
    def rd_wA(mi, db, kin, lab):
        r = (vWK if mi == 0 else vWV) + 4*db
        return [('r', f'ds_read_b64_tr_b16 v[{r+2*h}:{r+2*h+1}], v{vCW+db} offset:{mi*SL + 8192*kin + 1024*h}', lab) for h in range(2)]
    updA = [('v', f'v_add_u32 v{vCA}, s{sAr}, v{vLPA}'), ('v', f'v_xor_b32 v{vCA+1}, 64, v{vCA}')]
    updWd = [('v', f'v_add_u32 v{vCW}, s{sWr}, v{vLPW}')] + [('v', f'v_xor_b32 v{vCW+db}, {db*32}, v{vCW}') for db in range(1, 8)]
    KA = lambda tb, db: (tb*8 + db)*4
    VA = lambda tb, db: 128 + ((tb >> 1)*16 + db*2 + (tb & 1))*4
    def stageA_mfmas(first):
        L = []
        for kin in range(2):
            for db in range(8):
                for tb in range(4):
                    a = KA(tb, db); f = vAct + 16*kin + 4*tb
                    c = '0' if (first and kin == 0) else f'a[{a}:{a+3}]'
                    L.append(f'{MF} a[{a}:{a+3}], v[{vWK+4*db}:{vWK+4*db+3}], v[{f}:{f+3}], {c}')
                for tb in range(4):
                    a = VA(tb, db); f = vAct + 16*kin + 4*tb
                    c = '0' if (first and kin == 0) else f'a[{a}:{a+3}]'
                    L.append(f'{MF} a[{a}:{a+3}], v[{f}:{f+3}], v[{vWV+4*db}:{vWV+4*db+3}], {c}')
        return L
    GA = lambda kin, db, m: kin*64 + db*8 + m
    def spread(R, L, g0, g1):
        nm = sum(1 for x in L if x[0] in ('m', 'l', 'st'))
        step = max(1, (g1 - g0) // max(nm, 1))
        g = g0; cnt = 0; prev = None
        for it in L:
            e = max(g, g0 + cnt*step - (2 if it[0] == 's' else 0))
            if it[0] == 'm' and prev is not None and prev[0] == 's' and ' m0,' in prev[1]: e = max(e, gprev + 1)
            g = R.place(it, e, g1); gprev = g; prev = it
            if it[0] in ('m', 'l', 'st'): cnt += 1; g += 1
    def stageA(kind, dmaA_items, dmaB_items, barlabs, next_reads=None, mid=None, first=False, bend=None):
        R = Region(stageA_mfmas(first))
        BG = GA(1, 0, 7)
        R.S[BG].append(('bar', barlabs))
        if mid: R.S[BG].extend(mid)
        if next_reads is None:
            R.S[GA(1, 0, 1)].append(('s', f's_add_u32 s{sWr}, s{sWr}, 32768'))
            R.S[GA(1, 0, 2)].append(('s', f's_cmp_ge_u32 s{sWr}, 98304\ns_cselect_b32 s{sWr}, 0, s{sWr}'))
            R.S[GA(1, 0, 3)].append(('s', f's_sub_u32 s{sAr}, s{sASum}, s{sAr}'))
            R.stream(updA + updWd, GA(1, 0, 4), GA(1, 2, 0))
        else:
            R.stream(next_reads[0], GA(1, 0, 4), GA(1, 2, 0))
        for kin in range(2):
            for db in range(8):
                for mi in range(2):
                    if kin == 0 and db == 0 and mi == 0: continue
                    labs = [f'w{kin}_{mi}_{db}'] + ([f'act{kin}'] if (db == 0 and mi == 0) else [])
                    R.place(('wlg', labs), GA(kin, db, 4*mi) - 1, force=True)
        for db in range(8):
            for mi in range(2):
                rr = rd_wA(mi, db, 1, f'w1_{mi}_{db}')
                e = GA(0, db, 4*mi + 3)
                g = R.place(rr[0], e, GA(1, 0, 0)); R.place(rr[1], min(g + 1, GA(1, 0, 0)), GA(1, 0, 0))
        for tb in range(4): R.place(rd_act(1, 1, tb, 'act1'), GA(0, 1, 1) + 5*tb)
        if next_reads is None:
            for db in range(8):
                for mi in range(2):
                    rr = rd_wA(mi, db, 0, f'n0_{mi}_{db}')
                    e = max(GA(1, db, 4*mi + 3), GA(1, 2, 1))
                    g = R.place(rr[0], e); R.place(rr[1], g + 1)
            for tb in range(4): R.place(rd_act(0, 0, tb, 'nact0'), GA(1, 2, 2) + 5*tb)
        else:
            for (it, e) in next_reads[1]: R.place(it, max(e, GA(1, 2, 1)))
        if 'nodmaA' in opt and kind in ('s0', 's1', 'loop'): dmaA_items = [x for x in dmaA_items if x[0] != 'm']; dmaB_items = [x for x in dmaB_items if x[0] != 'm']
        if 'nowA' in opt and kind in ('s0', 's1', 'loop'):
            for g in range(R.n): R.S[g] = [x for x in R.S[g] if x[0] != 'wlg']
        if 'nordsA' in opt and kind in ('s0', 's1', 'loop'):
            for g in range(R.n): R.M[g] = []; R.S[g] = [x for x in R.S[g] if x[0] != 'wlg']
        spread(R, dmaA_items, 1, BG - 2)
        spread(R, dmaB_items, BG + 1, bend if bend else R.n - 2)
        return R
    def dyn_dmaW():
        L = []
        for mi, sr in enumerate((S_WUK, S_WUV)):
            L += [('s', f's_add_u32 m0, s{sWp}, {mi*SL}')]
            for i in range(4): L.append(('m', f'buffer_load_dwordx4 v{vOffW+i}, s[{sr}:{sr+3}], s{sKst} offen offset:{1024*i} lds', 'Wn', None))
        L += [('s', f's_add_u32 s{sKst}, s{sKst}, {64*8192}'), ('s', f's_add_u32 s{sWp}, s{sWp}, 32768'),
              ('s', f's_cmp_ge_u32 s{sWp}, 98304\ns_cselect_b32 s{sWp}, s{sLW}, s{sWp}')]
        return L
    def dyn_dmaA():
        L = []
        for half in range(2):
            L += [('s', f's_add_u32 s{sT1}, s{sAoff}, {32768*half}'), ('s', f's_add_u32 m0, s{sAp}, {4096*half}')]
            for i in range(4): L.append(('m', f'buffer_load_dwordx4 v{vOffA+i}, s[{S_CKV}:{S_CKV+3}], s{sT1} offen offset:{1024*i} lds', 'An', None))
        L += [('s', f's_add_u32 s{sAoff}, s{sAoff}, 128'), ('s', f's_sub_u32 s{sAp}, s{sASum}, s{sAp}')]
        if TA: L.append(('l', f'buffer_load_dword v31, v30, s[{S_CKV}:{S_CKV+3}], s{sAoff} offen', 'TCH'))
        return L
    p('v_lshlrev_b32 v30, 10, v0')
    p(f's_mov_b32 s{sWr}, 0')
    p(f's_add_u32 s{sAr}, s{sLA}, {ACT0}')
    p(f's_add_u32 s{sWp}, s{sLW}, 65536')
    p(f's_add_u32 s{sAp}, s{sLA}, {ACT0}')
    p(f's_lshl_b32 s{sASum}, s{sAp}, 1')
    p(f's_add_u32 s{sASum}, s{sASum}, 32768')
    p(f's_add_u32 s{sKst}, s{sWoff}, {2*64*8192}')
    p(f's_add_u32 s{sAoff}, s{sAoff}, 256')
    emit(updA + updWd)
    p.lgq = []; p.lg_ret = -1
    for tb in range(4): put(rd_act(0, 0, tb, 'act0'))
    for db in range(8):
        for mi in range(2): emit(rd_wA(mi, db, 0, f'w0_{mi}_{db}'))
    def next_order(R):
        L = []
        for g in range(R.n):
            for it in R.M[g]:
                if it[0] == 'r' and (it[2].startswith('n0_') or it[2] == 'nact0'):
                    L.append('act0' if it[2] == 'nact0' else 'w0_' + it[2][3:])
        return L
    order = [None]
    def relabel():
        p.lgq = list(order[0]); p.lg_ret = -1
    def bar_raw(n):
        if 'nobarA' in opt: return ('w', f's_waitcnt vmcnt({n}) lgkmcnt(0)')
        return ('w', f's_waitcnt vmcnt({n}) lgkmcnt(0)\ns_barrier')
    BG = GA(1, 0, 7)
    def fix_bar(R, n, extra=()):
        R.S[BG] = [bar_raw(n), ('call', lambda: p.lg_all())] + list(extra) + [x for x in R.S[BG] if x[0] != 'bar']
    def red64x4(r):
        L = []
        for sh in (8, 4): L += ['s_nop 1', f'v_add_f32_dpp v{r}, v{r}, v{r} row_ror:{sh} row_mask:0xf bank_mask:0xf']
        for sw in ('v_permlane16_swap_b32', 'v_permlane32_swap_b32'):
            L += [f'v_mov_b32 v{LT+6}, v{r}', 's_nop 1', f'{sw} v{r}, v{LT+6}', 's_nop 1', f'v_add_f32 v{r}, v{r}, v{LT+6}']
        return L
    lnops = []
    for i in range(5): lnops += unpack8(RAW + 4*i, X + 8*i)
    lnops += ln_stream(X, 40, LT, red64x4, scale='0x3e0293ee')
    ln = [('v', x) for x in lnops]
    for i in range(5):
        ln.append(('s', f's_mov_b32 s14, {4096*i}'))
        ln.append(('st', f'buffer_store_dwordx4 v[{X+4*i}:{X+4*i+3}], v{vXn}, s[{S_LNS}:{S_LNS+3}], s14 offen sc1'))
    half = len(ln) // 2
    def tag_read():
        p('s_mov_b32 s14, 0')
        p.label(f'{name}_tagpoll')
        p(f'v_readfirstlane_b32 s{sTag}, v24')
        p('s_add_u32 s14, s14, 1')
        p('s_nop 2')
        p(f's_cmp_lg_u32 s{sTag}, 0')
        p(f's_cbranch_scc1 {name}_notag2')
        p(f's_cmp_ge_u32 s14, {SPIN}')
        p(f's_cbranch_scc1 {name}_notag2')
        p(f'buffer_load_dword v24, v26, s[{S_DBG}:{S_DBG+3}], 0 offen sc1')
        p('s_waitcnt vmcnt(0)')
        p(f's_branch {name}_tagpoll')
        p.label(f'{name}_notag2')
    def pub_ln():
        p(f's_cmp_lg_u32 s{sCnt}, {1 if TA else 0}')
        p(f's_cbranch_scc1 {name}_nopub')
        p(f's_cmp_lg_u32 s{sW}, 0')
        p(f's_cbranch_scc1 {name}_nopub')
        p(f's_lshl_b32 s14, s2, 3')
        p(f'v_mov_b32 v24, s{sTag}')
        p(f'v_mov_b32 v25, s{sXcc}')
        p('v_mov_b32 v26, 0')
        p(f'buffer_store_dwordx2 v[24:25], v26, s[{S_FL}:{S_FL+3}], s14 offen sc1')
        p.label(f'{name}_nopub')
    R0 = stageA('s0', (dmaA_static(1, -256) + dmaW_static(1) if LATE1 else []) + dyn_dmaW(), dyn_dmaA(), None, first=True, bend=BG + 34)
    fix_bar(R0, 8)
    R0.place(('l', f'buffer_load_dword v24, v26, s[{S_DBG}:{S_DBG+3}], 0 offen sc1', 'TAG'), BG + 1, force=True)
    R0.period = 20; R0.stream(ln[:half], 4, None, pace=lambda k: 4 + (k*120)//half); R0.period = 16
    p.lgq = ['act0']*4 + [f'w0_{mi}_{db}' for db in range(8) for mi in range(2) for _ in range(2)]; p.lg_ret = -1
    put(('wlg', ['w0_0_0', 'act0']))
    R0.emit(p, put); order[0] = next_order(R0)
    p.stamp('stage0 done')
    R1_ = stageA('s1', dyn_dmaW(), dyn_dmaA(), None, bend=BG + 34)
    fix_bar(R1_, 9 if TA else 8, [('call', tag_read)])
    nv = [x for x in ln[half:] if x[0] == 'v']; tail = ln[half + len(nv):]
    R1_.period = 20; g = R1_.stream(ln[half:], 0, None, pace=lambda k: min((k*118)//(len(ln) - half), 200) if ln[half + k][0] == 'v' else BG + 2); R1_.period = 16
    relabel(); put(('wlg', ['w0_0_0', 'act0']))
    R1_.emit(p, put); order[0] = next_order(R1_)
    print('stage0/1 est', R0.total(), R1_.total())
    p.stamp('stage1 done')
    p(f's_mov_b32 s{sCnt}, 0')
    LA = f'{name}_stageA'
    p.label(LA)
    Rl = stageA('loop', dyn_dmaW(), dyn_dmaA(), None, bend=BG + 34)
    fix_bar(Rl, 9 if TA else 8, [('call', pub_ln)])
    Rl.T[Rl.n - 1] += [('s', f's_add_u32 s{sCnt}, s{sCnt}, 1'), ('s', f's_cmp_lt_u32 s{sCnt}, 4')]
    assert 'nordsA' in opt or next_order(Rl) == order[0], 'stage read order must be periodic'
    relabel()
    put(('wlg', ['w0_0_0', 'act0']))
    Rl.emit(p, put)
    print('stageA loop est', Rl.total(), 'overflow', Rl.over)
    p(f's_cbranch_scc1 {LA}')
    if 'pp' not in opt: (p.stamp('A loop done') if 'pq' not in opt else None)
    def dma_wq(c):
        L = [('s', f's_add_u32 s{sT0}, s{sWoff}, {c*64*8192}'), ('s', f's_add_u32 m0, s{sLW}, {c*SL}')]
        for i in range(4):
            L.append(('m', f'buffer_load_dwordx4 v{vOffW+i}, s[{S_WQ}:{S_WQ+3}], s{sT0} offen offset:{1024*i} lds', f'WQ{c}', None))
        return L
    relabel()
    put(('wlg', ['w0_0_0', 'act0']))
    flagld = [('s', f's_sub_u32 s{sTL}, 15, s{sI}'), ('s', f's_mov_b32 s{sTS}, s{sI}'),
              ('v', f'v_and_b32 v24, 15, v0'), ('v', f'v_bfe_u32 v25, v0, 4, 1'),
              ('v', f'v_mov_b32 v26, s{sTL}'), ('v', f'v_mov_b32 v27, s{sTS}'),
              ('v', f'v_cmp_eq_u32 vcc, 0, v25'), ('v', 's_nop 1'), ('v', f'v_cndmask_b32 v26, v27, v26, vcc'),
              ('v', f'v_lshl_add_u32 v24, v26, 4, v24'),
              ('s', f's_and_b32 s14, s{sH}, 3'), ('s', f's_lshl_b32 s14, s14, 6'), ('s', f's_lshr_b32 s15, s{sH}, 2'), ('s', f's_add_u32 s14, s14, s15'),
              ('v', f'v_and_b32 v25, 7, v0'), ('v', f'v_lshlrev_b32 v25, 3, v25'), ('v', f'v_add_u32 v25, s14, v25'),
              ('v', f'v_cmp_gt_u32 vcc, 32, v0'), ('v', 's_nop 1'), ('v', f'v_cndmask_b32 v24, v25, v24, vcc'),
              ('v', f'v_lshlrev_b32 v24, 3, v24'),
              ('l', f'buffer_load_dwordx2 v[28:29], v24, s[{S_FL}:{S_FL+3}], 0 offen sc1', 'FL')]
    R6 = stageA('s6', dma_wq(4) + dma_wq(5), dma_wq(0) + dma_wq(1), None)
    fix_bar(R6, 9 if TA else 8)
    R6.stream(flagld, BG + 24)
    R6.emit(p, put)
    order[0] = next_order(R6)
    XR = [16, 96, 32, 80]
    XRING = [('v', 16), ('v', 96), ('v', 32), ('v', 80), ('a', 0), ('a', 16), ('a', 32), ('a', 48)]
    def xreg(ks, c):
        t, b = XRING[ks % 8]
        return f'{t}[{b+4*c}:{b+4*c+3}]'
    def xn_load(ks):
        L = []
        for c in range(4):
            off = ks*1024 + (c & 1)*20480
            sb = sXL if c < 2 else sXS
            L.append(('s', f's_add_u32 s{sT1}, s{sb}, {off & ~4095}'))
            L.append(('l', f'buffer_load_dwordx4 {xreg(ks, c)}, v{vLane16}, s[{S_XNF}:{S_XNF+3}], s{sT1} offen offset:{off & 4095} sc1', f'XN{ks}'))
        return L
    def rd_w(db, kin, base, lab):
        r = vWF + 4*db
        return [('r', f'ds_read_b64_tr_b16 v[{r+2*h}:{r+2*h+1}], v{vCW+db} offset:{8192*kin + 1024*h}', lab, None) for h in range(2)]
    def upd_w(base):
        return [('v', f'v_add_u32 v{vCW}, {base}, v{vLPW}')] + [('v', f'v_xor_b32 v{vCW+db}, {db*32}, v{vCW}') for db in range(1, 8)]
    def lncheck():
        p(f's_cmp_lg_u32 s{sW}, 0')
        p(f's_cbranch_scc1 {name}_lnok')
        p('s_mov_b32 s14, 0')
        p.label(f'{name}_lnpoll')
        p(f'v_cmp_ne_u32 vcc, s{sTag}, v28')
        p('s_add_u32 s14, s14, 1')
        p(f's_cbranch_vccz {name}_lnok2')
        p(f's_cmp_ge_u32 s14, {SPIN}')
        p(f's_cbranch_scc1 {name}_lnok2')
        p(f'buffer_load_dwordx2 v[28:29], v24, s[{S_FL}:{S_FL+3}], 0 offen sc1')
        p('s_waitcnt vmcnt(0)')
        p(f's_branch {name}_lnpoll')
        p.label(f'{name}_lnok2')
        p(f'v_cmp_ne_u32 vcc, s{sXcc}, v29')
        p('s_nop 1')
        p('s_lshr_b64 s[14:15], vcc, 32')
        p('s_cmp_eq_u64 s[14:15], 0')
        p(f's_cselect_b32 s{sSame}, 1, 0')
        p.label(f'{name}_lnok')
    relabel()
    put(('wlg', ['w0_0_0', 'act0']))
    xset = [('s', f's_lshl_b32 s{sT1}, s{sTL}, 3'), ('s', f's_lshl_b32 s{sT0}, s{sW}, 1'), ('s', f's_add_u32 s{sT1}, s{sT1}, s{sT0}'),
            ('s', f's_mul_i32 s{sXL}, s{sT1}, 20480'), ('s', f's_lshl_b32 s{sT1}, s{sTS}, 3'), ('s', f's_add_u32 s{sT1}, s{sT1}, s{sT0}'),
            ('s', f's_mul_i32 s{sXS}, s{sT1}, 20480')]
    def last_use(db):
        r = vWF + 4*db
        if r < 64: return GA(1, (r - vWK)//4, 3)
        return GA(1, (r - vWV)//4, 7)
    nr = []
    for db in range(8):
        for it in rd_w(db, 0, 0, f'w0_{db}'): nr.append((it, last_use(db) + 1))
    R7 = stageA('s7', xset + dma_wq(6) + dma_wq(7), dma_wq(2) + dma_wq(3) + dma_wq(8) + dma_wq(9), None, next_reads=(upd_w(0), nr))
    R7.S[BG] = [('call', lambda: (p('s_waitcnt vmcnt(8) lgkmcnt(0)'), p.lg_all(), lncheck(), p('s_barrier')))] + [x for x in R7.S[BG] if x[0] != 'bar']
    R7.stream(xn_load(0) + xn_load(1), BG + 2)
    R7.stream(xn_load(2), GA(1, 4, 0))
    R7.emit(p, put)
    if 'pp' not in opt: p.stamp('phase A done')
    NKS = 20
    mf = []
    for ks in range(NKS):
        for db in range(8):
            for c in range(4):
                acc = O(c, db)
                cc = '0' if ks == 0 else f'v[{acc}:{acc+3}]'
                mf.append(f'{MF} v[{acc}:{acc+3}], v[{vWF+4*db}:{vWF+4*db+3}], {xreg(ks, c)}, {cc}')
    R = Region(mf)
    G = lambda ks, db, c: ks*32 + db*4 + c
    p.wait_vm('XN0')
    put(('wlg', ['w0_0', 'w0_1']))
    R.S[G(3, 0, 3)].append(('bar', ['WQ2', 'WQ3', 'WQ8', 'WQ9', 'WQ4', 'WQ5', 'WQ6', 'WQ7']))
    for ch in range(9):
        R.stream(upd_w((ch + 1)*SL), G(2*ch + 1, 0, 1), G(2*ch + 1, 2, 0))
    for ks in range(NKS):
        for db in range(0, 8, 2):
            if ks == 0 and db == 0: continue
            R.place(('wlg', [f'w{ks}_{db}', f'w{ks}_{db+1}']), G(ks, db, 0) - 1, force=True)
        if ks: R.place(('wvm', f'XN{ks}'), G(ks, 0, 0) - 2, force=True)
    for ks in range(NKS - 1):
        ch, t = divmod(ks, 2); nxt = ks + 1; nch, nt = divmod(nxt, 2)
        for db in range(8):
            e = G(ks, db, 3)
            if t == 1: e = max(e, G(ks, 2, 1))
            rr = rd_w(db, nt, nch*SL, f'w{nxt}_{db}')
            lat = G(ks + 1, 0, 0) if t == 0 else None
            g = R.place(rr[0], e, lat); R.place(rr[1], g + 1 if t == 1 or db < 7 else g, lat)
    TE = 112
    STF = ''
    for o_ in opt:
        if o_.startswith('stf='): STF = o_[4:]
    sSt = sCtx
    epi = []
    sStB = sHbase
    for kind in range(2):
        for f in range(16):
            if kind == 0:
                tb, k4 = divmod(f, 4); a0 = KA(tb, 2*k4); off = tb*4096 + k4*1024; sr = S_KF
            else:
                b, db = divmod(f, 8); a0 = 128 + (b*16 + db*2)*4; off = b*8192 + db*1024; sr = S_VF
            for k in range(8): epi.append(('v', f'v_accvgpr_read_b32 v{TE+k}, a{a0+k}'))
            for k in range(4): epi.append(('v', f'v_cvt_pk_bf16_f32 v{TE+k}, v{TE+2*k}, v{TE+2*k+1}'))
            epi.append(('s', f's_add_u32 s{sSt}, s{sStB}, {off & ~4095}'))
            epi.append(('st', f'buffer_store_dwordx4 v[{TE}:{TE+3}], v{vLane16}, s[{sr}:{sr+3}], s{sSt} offen offset:{off & 4095} {(KSTF if (kind == 0 and KSTF is not None) else (VSTF if (kind == 1 and VSTF is not None) else STF))}'))
            if 'nost' in opt: epi.pop()
            epi.append(('s', 's_nop 0'))
    KS_V = int(next((o_[3:] for o_ in opt if o_.startswith('kv=')), '19'))
    g0 = 12; span = G(KS_V, 4, 0) - g0
    gl = R.stream(epi, g0, None, pace=lambda k: g0 + (k*span)//len(epi))
    freed = {}
    for g in range(R.n):
        for it in R.V[g]:
            if it[1].startswith('v_accvgpr_read'): freed[int(it[1].split(' a')[-1])] = g
    gprev = 0
    for ks in range(3, NKS):
        t, b = XRING[ks % 8]
        if t == 'a' and ks < 8: e = max(freed[r] for r in range(b, b + 16)) + 1
        elif ks >= 8: e = G(ks - 8, 7, 3) + 1
        else: e = 0
        e = max(e, gprev + 1, G(max(ks - 7, 0), 0, 0))
        lat = G(ks, 0, 0) - 40 if ks > 3 else G(1, 0, 0)
        gprev = R.stream(xn_load(ks), e, max(lat, e + 8))
    FK, FV = 4096, 5120
    def publish(off, lab, waitlabel):
        p.wait_vm(waitlabel)
        p('s_barrier')
        p(f's_cmp_lg_u32 s{sW}, 0')
        p(f's_cbranch_scc1 {name}_{lab}pub')
        p(f's_lshl_b32 s14, s{sH}, 3')
        p(f's_add_u32 s14, s14, s{sI}')
        p(f's_lshl_b32 s14, s14, 2')
        p(f's_add_u32 s14, s14, {off}')
        p(f'v_mov_b32 v12, s{sTag}')
        p('v_mov_b32 v13, 0')
        p(f's_cmp_eq_u32 s{sSame}, 1')
        p(f's_cbranch_scc1 {name}_{lab}rel')
        p('buffer_wbl2 sc1')
        p('s_waitcnt vmcnt(0)')
        p(f'buffer_store_dword v12, v13, s[{S_FL}:{S_FL+3}], s14 offen sc1')
        p(f's_branch {name}_{lab}pub')
        p.label(f'{name}_{lab}rel')
        p(f'buffer_store_dword v12, v13, s[{S_FL}:{S_FL+3}], s14 offen')
        p.label(f'{name}_{lab}pub')
    def flag_load(off, lab):
        return [('s', f's_lshl_b32 s15, s{sH}, 5'), ('s', f's_add_u32 s15, s15, {off}'),
                ('v', 'v_and_b32 v13, 7, v0'), ('v', 'v_lshlrev_b32 v13, 2, v13'),
                ('l', f'buffer_load_dword v12, v13, s[{S_FL}:{S_FL+3}], s15 offen sc1', lab)]
    def check(lab, waitlabel):
        p.wait_vm(waitlabel, 'lgkmcnt(0)'); p.lg_all()
        p(f's_cmp_lg_u32 s{sW}, 0')
        p(f's_cbranch_scc1 {name}_{lab}ok')
        p('s_mov_b32 s14, 0')
        p.label(f'{name}_{lab}poll')
        p(f'v_cmp_ne_u32 vcc, s{sTag}, v12')
        p('s_add_u32 s14, s14, 1')
        p(f's_cbranch_vccz {name}_{lab}ok2')
        p(f's_cmp_ge_u32 s14, {SPIN}')
        p(f's_cbranch_scc1 {name}_{lab}ok2')
        p(f'buffer_load_dword v12, v13, s[{S_FL}:{S_FL+3}], s15 offen sc1')
        p('s_waitcnt vmcnt(0)')
        p(f's_branch {name}_{lab}poll')
        p.label(f'{name}_{lab}ok2')
        p(f's_cmp_eq_u32 s{sSame}, 1')
        p(f's_cbranch_scc1 {name}_{lab}ok')
        p('buffer_inv sc1')
        p('s_waitcnt vmcnt(0)')
        p.label(f'{name}_{lab}ok')
        p('s_barrier')
    def att_state():
        p(f's_lshl_b32 s{sKb}, s{sH}, 19')
        p(f's_add_u32 s{sKb}, s{sKb}, s{sLW}')
        p(f's_mov_b32 s{sVb}, s{sKb}')
    def unitK(slot, label):
        L = [('s', f's_add_u32 m0, s{sLW}, {slot*32768}')]
        for i in range(4): L.append(('m', f'buffer_load_dwordx4 v{vLane16}, s[{S_KF}:{S_KF+3}], s{sKb} offen offset:{1024*i}{KVLD} lds', label, None))
        return L + [('s', f's_add_u32 s{sKb}, s{sKb}, 16384')]
    def unitV(slot, label):
        L = [('s', f's_add_u32 m0, s{sLW}, {slot*32768 + SL}')]
        for i in range(4): L.append(('m', f'buffer_load_dwordx4 v{vLane16}, s[{S_VF}:{S_VF+3}], s{sVb} offen offset:{1024*i}{KVLD} lds', label, None))
        return L + [('s', f's_add_u32 s{sVb}, s{sVb}, 16384')]
    def dma_K(label, tagbase=None):
        L = [('s', f's_mov_b32 m0, s{sSlotP}')]
        for i in range(4):
            L.append(('m', f'buffer_load_dwordx4 v{vLane16}, s[{S_KF}:{S_KF+3}], s{sKb} offen offset:{1024*i}{KVLD} lds', label, None))
        L += [('s', f's_add_u32 s{sKb}, s{sKb}, 16384')]
        return L
    def dma_V(label, tagbase=None):
        L = [('s', f's_add_u32 m0, s{sSlotP}, {SL}')]
        for i in range(4):
            L.append(('m', f'buffer_load_dwordx4 v{vLane16}, s[{S_VF}:{S_VF+3}], s{sVb} offen offset:{1024*i}{KVLD} lds', label, None))
        L += [('s', f's_add_u32 s{sVb}, s{sVb}, 16384')]
        return L
    adv_slot = [('s', f's_add_u32 s{sSlotP}, s{sSlotP}, 32768'), ('s', f's_cmp_ge_u32 s{sSlotP}, {NSLOT*32768}\ns_cselect_b32 s{sSlotP}, s{sLW}, s{sSlotP}')]
    R.emit(p, put)
    print('fused qproj overflow', R.over, 'est', R.total())
    if 'pp' not in opt: p.stamp('q end')
    p(f's_mov_b32 s{sFlag}, 0')
    p(f's_mov_b32 s{sLim}, {hex(LIM)}')
    def touch_setup():
        p(f's_load_dwordx2 s[92:93], s[0:1], {ARG["wo"]}')
        p(f's_load_dwordx2 s[94:95], s[0:1], {ARG["wg"]}')
        p(f's_load_dwordx2 s[96:97], s[0:1], {ARG["wu"]}')
        p(f's_load_dwordx2 s[98:99], s[0:1], {ARG["wd"]}')
        p('s_lshl_b32 s14, s2, 2')
        p(f's_add_u32 s14, s14, s{sW}')
        p('s_mul_i32 s14, s14, 40')
        p('v_min_u32 v14, 39, v0')
        p('v_add_u32 v14, s14, v14')
        p('v_lshlrev_b32 v14, 7, v14')
        p('s_lshr_b32 s14, s2, 6')
        p('s_lshl_b32 s14, s14, 2')
        p(f's_and_b32 s15, s{sI}, 3')
        p('s_add_u32 s14, s14, s15')
        p('s_lshl_b32 s14, s14, 3')
        p('s_and_b32 s15, s2, 7')
        p('s_add_u32 s14, s14, s15')
        p('s_lshl_b32 s14, s14, 2')
        p(f's_add_u32 s14, s14, s{sW}')
        p('s_mul_i32 s14, s14, 34')
        p('v_min_u32 v15, 33, v0')
        p('v_add_u32 v15, s14, v15')
        p('v_min_u32 v15, 17279, v15')
        p('v_lshlrev_b32 v15, 7, v15')
        p('s_waitcnt lgkmcnt(0)')
    touch_items = [('l', 'global_load_dword v13, v14, s[92:93]', 'T'), ('l', 'global_load_dword v13, v15, s[94:95]', 'T'),
                   ('l', 'global_load_dword v13, v15, s[96:97]', 'T'), ('l', 'global_load_dword v13, v15, s[98:99]', 'T')]
    att_state()
    if FP == 'pace':
        p(f's_load_dwordx2 s[92:93], s[0:1], {ARG["wg"]}')
        p(f's_load_dwordx2 s[94:95], s[0:1], {ARG["wu"]}')
        p(f's_load_dwordx2 s[96:97], s[0:1], {ARG["wd"]}')
        p('s_lshr_b32 s14, s2, 6')
        p('s_lshl_b32 s14, s14, 1')
        p(f's_add_u32 s14, s14, s{sI}')
        p('s_sub_u32 s14, s14, 6')
        p('s_lshl_b32 s14, s14, 3')
        p('s_and_b32 s15, s2, 7')
        p('s_add_u32 s14, s14, s15')
        p(f's_cmp_ge_u32 s{sI}, 6')
        p('s_cselect_b32 s14, s14, 255')
        p('s_cmp_lt_u32 s14, 54')
        p('s_cselect_b32 s99, 1, 0')
        p('s_mul_i32 s14, s14, s99')
        p('v_lshrrev_b32 v14, 2, v0')
        p(f's_mul_i32 s15, s{sW}, 160')
        p('v_add_u32 v14, s15, v14')
        p('v_mul_u32_u24 v14, 3456, v14')
        p('v_and_b32 v15, 3, v0')
        p('v_lshl_add_u32 v14, v15, 4, v14')
        p('s_lshl_b32 s15, s14, 6')
        p('v_add_u32 v14, s15, v14')
        p('v_mul_lo_u32 v14, v14, s99')
        p(f's_mul_i32 s98, s99, {16*3456}')
        p('s_mul_i32 s14, s14, 40960')
        p(f's_mul_i32 s15, s{sW}, 10240')
        p('s_add_u32 s14, s14, s15')
        p(f'v_add_u32 v15, s14, v{vLane16}')
        p('v_mul_lo_u32 v15, v15, s99')
        p('s_lshl_b32 s99, s99, 12')
        p('s_waitcnt lgkmcnt(0)')
    else:
        touch_setup()
    publish(FK, 'k', 'st')
    for it in flag_load(FK, 'KFL'): put(it)
    p.stamp('pub done')
    p('s_nop 7')
    for c in range(4):
        for ks in range(4):
            a0 = O(c, 2*ks)
            for k in range(4): p(f'v_cvt_pk_bf16_f32 v{a0+k}, v{a0+2*k}, v{a0+2*k+1}')
            for k in range(4): p(f'v_accvgpr_write_b32 a{aQ + 16*c + 4*ks + k}, v{a0+k}')
    p(f'v_mov_b32 v{vT}, 0x3f803f80')
    for k in range(4): p(f'v_accvgpr_write_b32 a{128+k}, v{vT}')
    p(f'v_and_b32 v{vT}, 15, v0')
    p(f'v_lshrrev_b32 v{vT+1}, 4, v0')
    p(f'v_lshlrev_b32 v{vT+1}, 2, v{vT+1}')
    p(f'v_sub_u32 v{vT}, v{vT}, v{vT+1}')
    for r in range(4): p(f'v_cmp_le_i32 s[{sM+2*r}:{sM+2*r+1}], {r}, v{vT}')
    p(f'v_mov_b32 v{vNinf}, {hex(NEGBIG)}')
    for r in range(16): p(f'v_mov_b32 v{vNeg+r}, 0')
    for c in range(4): p(f'v_mov_b32 v{vL+c}, 0')
    for r in range(64): p(f'v_mov_b32 v{vO+r}, 0')
    p.stamp('pre check')
    check('k', 'KFL')
    emit(unitK(0, 'U-1') + unitK(1, 'U0') + unitV(1, 'U0'))
    p.stamp('kv ok')
    nerr = 0

    def rdK(b, f):  return ('r', f'ds_read_b128 a[{aK+4*f}:{aK+4*f+3}], v{vRd} offset:{b*8192 + f*1024}', f'K{f}')
    def rdV(b, f):  return ('r', f'ds_read_b128 a[{aV+4*f}:{aV+4*f+3}], v{vRd} offset:{16384 + b*8192 + f*1024}', f'V{f}')
    def qk_mfmas(cols, sbase, cin):
        L = []
        for i, c in enumerate(cols):
            for kb in range(2):
                S = Sr(sbase + i, kb)
                for ks in range(4):
                    cc = cin(c, kb) if ks == 0 else S
                    L.append(f'{MF} v[{S}:{S+3}], a[{aK+4*(kb*4+ks)}:{aK+4*(kb*4+ks)+3}], a[{aQ+16*c+4*ks}:{aQ+16*c+4*ks+3}], v[{cc}:{cc+3}]')
        return L
    def pv_mfmas(cols, par, first=False):
        L = []
        for c in cols:
            for db in range(8):
                o = O(c, db)
                cc = '0' if first else f'v[{o}:{o+3}]'
                L.append(f'{MF} v[{o}:{o+3}], a[{aV+4*db}:{aV+4*db+3}], v[{Pr(par, c)}:{Pr(par, c)+3}], {cc}')
        return L
    aOne = 128
    Lm = lambda c: vP + 8 + 4*c
    def sum_mfmas(cols, par):
        if not MSUM: return []
        return [f'{MF} v[{Lm(c)}:{Lm(c)+3}], a[{aOne}:{aOne+3}], v[{Pr(par, c)}:{Pr(par, c)+3}], v[{Lm(c)}:{Lm(c)+3}]' for c in cols]
    def sm_window_ns(c, sslot, par):
        if not MSUM: return sm_window(c, sslot, par)
        return sm_window_ns_(c, sslot, par)
    def sm_window_ns_(c, sslot, par):
        S = vS + 8*sslot; P = Pr(par, c); W = []
        for k in range(4):
            e0, e1 = vE + (2*k) % 4, vE + (2*k + 1) % 4
            W += [[f'v_exp_f32 v{e0}, v{S+2*k}'], [f'v_exp_f32 v{e1}, v{S+2*k+1}'],
                  [f'v_cvt_pk_bf16_f32 v{P+k}, v{e0}, v{e1}'], []]
        return W
    def sm_window(c, sslot, par):
        S = vS + 8*sslot; P = Pr(par, c); W = []
        for k in range(4):
            e0, e1 = vE + (2*k) % 4, vE + (2*k + 1) % 4
            W += [[f'v_exp_f32 v{e0}, v{S+2*k}'], [f'v_exp_f32 v{e1}, v{S+2*k+1}'],
                  [f'v_add_f32 v{vL+c}, v{vL+c}, v{e0}'],
                  [f'v_add_f32 v{vL+c}, v{vL+c}, v{e1}', f'v_cvt_pk_bf16_f32 v{P+k}, v{e0}, v{e1}']]
        return W
    cin_neg = lambda c, kb: vNeg + 4*c
    def cin_mask(tile_cols):
        def f(c, kb):
            if c in tile_cols: return vCi + 8*(c - tile_cols[0]) + 4*kb
            return vNeg + 4*c
        return f
    def mask_ops(tile_cols):
        c0 = tile_cols[0]
        L = [('s', f's_cmp_lt_i32 s{sDd}, 0\ns_cselect_b64 s[14:15], -1, 0'),
             ('s', f's_cmp_eq_u32 s{sDd}, 0\n' + '\n'.join(f's_cselect_b64 s[{4+2*r}:{5+2*r}], s[{sM+2*r}:{sM+2*r+1}], s[14:15]' for r in range(4))),
             ('s', f's_cmp_le_i32 s{sDd}, 0\ns_cselect_b64 s[12:13], -1, 0')]
        for cb in range(2):
            for kb in range(2):
                for r in range(4):
                    m = 4 + 2*r if cb == kb else (12 if (cb == 1 and kb == 0) else 14)
                    L.append(('v', f'v_cndmask_b32 v{vCi + 8*cb + 4*kb + r}, v{vNinf}, v{vNeg + 4*(c0 + cb) + r}, s[{m}:{m+1}]'))
        return L
    LC, SC = [0, 1], [2, 3]
    def build_group(mf, windows, reads, dmas=(), extra=(), pre_wait=None, mid_wait=None, nwin=None):
        R = Region(mf)
        n = len(mf)
        for (g0, W) in windows:
            for i, ops in enumerate(W):
                for o in ops: R.place(('v', o), g0 + i, force=True)
        slots = [g for g in range(n) if g % 4 == 2]
        if len(slots) < len(reads): slots = sorted(slots + [g for g in range(n) if g % 4 == 3])
        if n == 16 or nwin == 16: slots = [g for g in range(16) if g % 4 in (2, 3)]
        for it, g in zip(reads, slots): R.place(it, g, force=True)
        if dmas:
            free = [g for g in range(n) if not R.M[g]]
            pref = [g for g in free if g >= 16 and nwin == 16] + [g for g in free if g % 4 == 3 and not (g >= 16 and nwin == 16)] + [g for g in free if g % 4 == 1] + [g for g in free if g % 4 in (0, 2)]
            nm = sum(1 for x in dmas if x[0] in ('m', 'l'))
            use = sorted([g for g in pref if g >= 1][:nm])
            if nwin == 16 and nm == 4: use = [5, 9, 13, 16]
            if nwin == 16 and nm == 5: use = [1, 5, 9, 13, 16]
            k = 0; pend_s = []
            for it in dmas:
                if it[0] == 's': pend_s.append(it)
                else:
                    g = use[k]; k += 1
                    for j, sx in enumerate(pend_s):
                        gg = max(0, g - len(pend_s) + j)
                        if k > 1: gg = max(gg, use[k-2] + 1) if use[k-2] + 1 <= g - 1 or ' m0,' not in sx[1] else gg
                        if gg == g and ' m0,' in sx[1]: R.place(('s', 's_nop 0'), g, force=True) if False else None
                        R.place(sx, gg, force=True)
                    pend_s = []
                    R.place(it, g, force=True)
            for j, sx in enumerate(pend_s):
                gg = use[-1] + 1 + j
                if gg <= n - 1: R.place(sx, gg, force=True)
                else: R.T[n - 1].append(sx)
        if extra:
            g = 0
            for it in extra:
                best = None
                for gg in range(g, n - 1):
                    if R.fits(gg, it): best = gg; break
                if best is None:
                    best = g
                R.place(it, best, force=True); g = best
        if mid_wait: R.place(mid_wait[1], mid_wait[0], force=True)
        return R
    slot_adv = [('s', f's_add_u32 s{sSlotR}, s{sSlotR}, 32768'), ('s', f's_cmp_ge_u32 s{sSlotR}, {NSLOT*32768}\ns_cselect_b32 s{sSlotR}, 0, s{sSlotR}')]
    def start_items(R, vm=16):
        pre = []
        if vm is None: return
        if 'nodma' not in opt: pre.append(('w', f's_waitcnt vmcnt({vm})'))
        if 'nobar' not in opt: pre.append(('w', 's_barrier'))
        R.S[0] = pre + R.S[0]
    def end_items(R, loop=None):
        n = R.n
        for j, it in enumerate(slot_adv): R.S[4 + 4*j if n > 16 else 1 + 4*j].append(it) if False else None
        g0 = 8
        for j, it in enumerate(slot_adv): R.S[g0 + j].append(it)
        R.V[n - 1].append(('v', f'v_add_u32 v{vRd}, s{sSlotR}, v{vLane16}'))
        if loop:
            R.S[n - 3].append(('s', f's_sub_u32 s{sCnt}, s{sCnt}, 1'))
            R.T[n - 1].append(('s', f's_cmp_lg_u32 s{sCnt}, 0'))
    def emit_group(R, pre):
        if pre and 'nords' not in opt:
            put(('wlg', [f'{pre}{f}' for f in range(4)]))
            R.S[3].insert(0, ('wlg', [f'{pre}{f}' for f in range(4, 8)]))
        if 'nosm' in opt:
            for g in range(R.n): R.V[g] = []
        if 'noexp' in opt:
            for g in range(R.n): R.V[g] = [(x[0], x[1].replace('v_exp_f32', 'v_mov_b32')) for x in R.V[g]]
        if 'nodma' in opt:
            for g in range(R.n): R.M[g] = [x for x in R.M[g] if x[0] != 'm']
        if 'nords' in opt:
            for g in range(R.n):
                R.M[g] = [x for x in R.M[g] if x[0] != 'r']; R.S[g] = [x for x in R.S[g] if x[0] != 'wlg']
            pre = None; R.S[3] = [x for x in R.S[3] if x[0] != 'wlg']
        R.emit(p, put)
    stats = {'cyc': 0}
    def interval(kind, lbl, maskL=None, maskS=None, loop=False, vm=16):
        dual = kind in ('D', 'T')
        mA, mB, mN = (maskS if dual else maskL) or (False, False, False)
        tile = SC if dual else LC
        p.lgq = ['K%d' % f for f in range(8)]; p.lg_ret = -1
        tot = 0
        if dual:
            cols = [0, 1, 2, 3]
            R1 = build_group(qk_mfmas(cols, 0, cin_mask(SC) if mA else cin_neg),
                             [(0, sm_window(3, 3, 0)), (16, sm_window(0, 0, 1))], [rdV(0, f) for f in range(8)], dma_K('x'),
                             mid_wait=None)
            start_items(R1, vm)
            if lbl == 'db':
                g_ = 1
                sel = ([touch_items[0]] if TW else []) + (touch_items[1:] if TF else [])
                for it in sel:
                    while R1.M[g_]: g_ += 1
                    R1.M[g_].append(it); g_ += 3
            add_paced([R1], chunk4(fp_items.get(lbl, []), 0))
            emit_group(R1, 'K')
            ex = ([('s', f's_add_u32 s{sDd}, s{sDd}, 1')] + mask_ops(SC if kind == 'D' else LC)) if mB else []
            if kind == 'T': ex = mask_ops(LC)
            R2 = build_group(pv_mfmas(cols, 0), [(0, sm_window(1, 1, 1)), (16, sm_window(2, 2, 1))], [rdK(0, f) for f in range(8)], extra=ex)
            if kind == 'T':
                emit([('s', f's_sub_u32 s{sDd}, s{sTS}, s{sTL}'), ('s', f's_lshl_b32 s{sDd}, s{sDd}, 2'), ('s', f's_add_u32 s{sDd}, s{sDd}, 4'), ('s', f's_sub_u32 s{sDd}, s{sDd}, s{sW}')])
            add_paced([R2], chunk4(fp_items.get(lbl, []), 1))
            emit_group(R2, 'V')
            if kind == 'D':
                R3 = build_group(qk_mfmas(cols, 0, cin_mask(SC) if mB else cin_neg),
                                 [(0, sm_window(3, 3, 1)), (16, sm_window(0, 0, 0))], [rdV(1, f) for f in range(8)], dma_V('x') + adv_slot)
                add_paced([R3], chunk4(fp_items.get(lbl, []), 2))
                emit_group(R3, 'K')
                ex = ([('s', f's_add_u32 s{sDd}, s{sDd}, 1')] + mask_ops(SC)) if mN else []
                R4 = build_group(pv_mfmas(cols, 1), [(0, sm_window(1, 1, 0)), (16, sm_window(2, 2, 0))], [rdK(1, f) for f in range(8)], extra=ex)
                end_items(R4, loop)
                add_paced([R4], chunk4(fp_items.get(lbl, []), 3))
                emit_group(R4, 'V')
            else:
                R3 = build_group(qk_mfmas(LC, 0, cin_mask(LC)), [(0, sm_window(3, 3, 1))], [rdV(1, f) for f in range(8)], dma_V('x') + adv_slot)
                add_paced([R3], chunk4(fp_items.get(lbl, []), 2))
                emit_group(R3, 'K')
                ex = ([('s', f's_add_u32 s{sDd}, s{sDd}, 1')] + mask_ops(LC))
                ex = [('v', f'v_mov_b32 v{Lm(c)+r}, 0') for c in LC for r in range(4)] + ex
                R4 = build_group(pv_mfmas(cols, 1), [(0, sm_window_ns(0, 0, 0))], [rdK(1, f) for f in range(8)], extra=ex)
                end_items(R4)
                add_paced([R4], chunk4(fp_items.get(lbl, []), 3))
                emit_group(R4, 'V')
            tot = R1.total() + R2.total() + R3.total() + R4.total()
        else:
            dK = dma_K('x'); dv_ = dma_V('x'); dV = dv_[:1] + adv_slot + dv_[1:]
            if KTD and lbl == 'sn':
                dK = dK[:-1] + [('l', f'buffer_load_dword v13, v12, s[{S_KF}:{S_KF+3}], s{sKb} offen', 'T')] + dK[-1:]
                dV = dV[:-1] + [('l', f'buffer_load_dword v13, v12, s[{S_VF}:{S_VF+3}], s{sVb} offen', 'T')] + dV[-1:]
            R1 = build_group(qk_mfmas(LC, 2, cin_mask(LC) if mA else cin_neg), [(0, sm_window_ns(1, 1, 0))], [rdV(0, f) for f in range(8)])
            start_items(R1, vm)
            emit_group(R1, 'K')
            ex = ([('s', f's_add_u32 s{sDd}, s{sDd}, 1')] + mask_ops(LC)) if mB else []
            rk = [rdK(0, f) for f in range(8)] if kind != 'E' else []
            R2 = build_group(pv_mfmas(LC, 0) + sum_mfmas(LC, 0), [(0, sm_window_ns(0, 2, 1))], rk, dK, extra=ex, nwin=16)
            emit_group(R2, 'V')
            if kind != 'E':
                R3 = build_group(qk_mfmas(LC, 0, cin_mask(LC) if mB else cin_neg), [(0, sm_window_ns(1, 3, 1))], [rdV(1, f) for f in range(8)])
                emit_group(R3, 'K')
                ex = ([('s', f's_add_u32 s{sDd}, s{sDd}, 1')] + mask_ops(LC)) if mN else []
                R4 = build_group(pv_mfmas(LC, 1) + sum_mfmas(LC, 1), [(0, sm_window_ns(0, 0, 0))], [rdK(1, f) for f in range(8)], dV, extra=ex, nwin=16)
                end_items(R4, loop)
                emit_group(R4, 'V')
                tot = R1.total() + R2.total() + R3.total() + R4.total()
            else:
                for f in range(8): put(rdV(1, f))
                emit(dV)
                for ops in sm_window_ns(1, 3, 1):
                    for o in ops: p(o)
                    if len(ops) == 1 and ops[0].startswith('v_exp'): p('s_nop 0')
                p('s_waitcnt lgkmcnt(0)')
                p('s_nop 1')
                for m in pv_mfmas(LC, 1) + sum_mfmas(LC, 1): p(m)
        if tot: print(f'  interval {lbl}: est {tot} cycles for', 128 if kind == 'D' else (112 if kind == 'T' else 64), 'mfma')

    def emit_prefetch():
        p('s_lshr_b32 s14, s2, 3')
        p('s_and_b32 s15, s14, 7')
        p('s_cmp_lt_u32 s15, 4')
        p(f's_cbranch_scc1 {name}_npf')
        p(f's_load_dwordx2 s[92:93], s[0:1], {ARG["wo"]}')
        p('s_lshr_b32 s14, s14, 3')
        p('s_lshl_b32 s14, s14, 2')
        p('s_add_u32 s14, s14, s15')
        p('s_sub_u32 s14, s14, 4')
        p(f's_mul_i32 s14, s14, {(320 if TAIL2 else 640)*128}')
        p('s_and_b32 s15, s2, 7')
        if not TAIL2: p('s_lshr_b32 s15, s15, 1')
        p(f's_mul_i32 s15, s15, {655360 if TAIL2 else 1310720}')
        p('s_add_u32 s14, s14, s15')
        p(f's_mul_i32 s15, s{sW}, {(80 if TAIL2 else 160)*128}')
        p('s_add_u32 s14, s14, s15')
        p('s_waitcnt lgkmcnt(0)')
        for i in range(2 if TAIL2 else 3):
            p(f'v_add_u32 v251, {64*i}, v0')
            p(f'v_min_u32 v251, {79 if TAIL2 else 159}, v251')
            p(f'v_lshlrev_b32 v251, 7, v251')
            p(f'v_add_u32 v251, s14, v251')
            p(f'global_load_dword v250, v251, s[92:93]')
        p.label(f'{name}_npf')
    FA, FB = (10, 11) if FP == 'db' else (252, 253)
    F2, F3, F4, F5 = (47, 48, 49, 51) if FP in ('db', 'S') else (92, 93, 94, 95)
    def ffn_loads():
        p(f's_mov_b32 s{F5}, 0')
        p('s_lshr_b32 s14, s2, 3')
        p(f's_and_b32 s{F2}, s14, 7')
        p(f's_cmp_lt_u32 s{F2}, 6')
        p(f's_cbranch_scc1 {name}_nffn')
        p('s_lshr_b32 s14, s2, 6')
        p('s_lshl_b32 s14, s14, 1')
        p(f's_add_u32 s14, s14, s{F2}')
        p('s_sub_u32 s14, s14, 6')
        p('s_lshl_b32 s14, s14, 3')
        p('s_and_b32 s15, s2, 7')
        p(f's_add_u32 s{F4}, s14, s15')
        p(f's_cmp_ge_u32 s{F4}, 54')
        p(f's_cbranch_scc1 {name}_nffn')
        p(f's_mov_b32 s{F5}, 1')
        p(f's_load_dwordx2 s[4:5], s[0:1], {ARG["wg"]}')
        p(f's_load_dwordx2 s[8:9], s[0:1], {ARG["wu"]}')
        p(f's_load_dwordx2 s[12:13], s[0:1], {ARG["wd"]}')
        p(f'v_lshrrev_b32 v{FA}, 2, v0')
        p(f'v_mul_u32_u24 v{FA}, 3456, v{FA}')
        p(f'v_and_b32 v{FB}, 3, v0')
        p(f'v_lshl_add_u32 v{FA}, v{FB}, 4, v{FA}')
        p('s_waitcnt lgkmcnt(0)')
        for sr, sz in ((4, 640*1728*2), (8, 640*1728*2), (12, 1728*640*2)):
            p(f's_mov_b32 s{sr+2}, {sz}'); p(f's_mov_b32 s{sr+3}, 0x00020000')
        p(f's_mul_i32 s{F2}, s{sW}, {160*3456}')
        p(f's_lshl_b32 s{F3}, s{F4}, 6')
        p(f's_add_u32 s{F2}, s{F2}, s{F3}')
        for i in range(10):
            for mat, sr in enumerate((4, 8)):
                r = 132 + (mat*10 + i)*4
                p(f'buffer_load_dwordx4 a[{r}:{r+3}], v{FA}, s[{sr}:{sr+3}], s{F2} offen')
            p(f's_add_u32 s{F2}, s{F2}, {16*3456}')
        p(f's_mul_i32 s{F2}, s{F4}, {32*1280}')
        p(f's_mul_i32 s{F3}, s{sW}, 10240')
        p(f's_add_u32 s{F2}, s{F2}, s{F3}')
        for i in range(10):
            r = 132 + (20 + i)*4
            p(f'buffer_load_dwordx4 a[{r}:{r+3}], v{vLane16}, s[12:15], s{F2} offen offset:{(i % 4)*1024}')
            if i % 4 == 3: p(f's_add_u32 s{F2}, s{F2}, 4096')
        p.label(f'{name}_nffn')
    def ffn_paced():
        L = []
        for i in range(10):
            for mat, sp in enumerate((92, 94)):
                r = 132 + (mat*10 + i)*4
                L.append(('l', f'global_load_dwordx4 a[{r}:{r+3}], v14, s[{sp}:{sp+1}]', 'F'))
            L.append(('v', 'v_add_u32 v14, s98, v14'))
        for i in range(10):
            r = 132 + (20 + i)*4
            L.append(('l', f'global_load_dwordx4 a[{r}:{r+3}], v15, s[96:97] offset:{(i % 4)*1024}', 'F'))
            if i % 4 == 3: L.append(('v', 'v_add_u32 v15, s99, v15'))
        return L
    fp_items = {'db': [], 'dc': []}
    if FP == 'pace':
        allf = ffn_paced(); nl = 0; cut = 0
        for k, it in enumerate(allf):
            if it[0] == 'l': nl += 1
            if nl == 16 and it[0] == 'v' and cut == 0: cut = k + 1
        fp_items = {'db': allf[:cut], 'dc': allf[cut:]}
    def chunk4(items, k):
        groups = []; cur = []
        for it in items:
            cur.append(it)
            if it[0] == 'v': groups.append(cur); cur = []
        if cur: groups.append(cur)
        out = [[], [], [], []]
        nl = sum(1 for x in items if x[0] == 'l'); acc = 0
        for g in groups:
            q = min(3, int(4*acc/max(nl, 1)))
            out[q] += g; acc += sum(1 for x in g if x[0] == 'l')
        return out[k]
    def add_paced(Rs, items):
        if not items: return
        slots = [(ri, g) for ri, R in enumerate(Rs) for g in range(1, R.n - 1) if not R.M[g]]
        nl = sum(1 for x in items if x[0] == 'l')
        step = len(slots) / (nl + 1.0); k = 0; pos = 0
        last = None
        for it in items:
            if it[0] == 'l':
                k += 1; ri, g = slots[int(k*step)]
                Rs[ri].M[g].append(it); last = (ri, g)
            else:
                ri, g = last
                Rs[ri].V[g].append(it)
    def row_reduce(reg, op, tmp):
        for sw in ('v_permlane16_swap_b32', 'v_permlane32_swap_b32'):
            p(f'v_mov_b32 v{tmp}, v{reg}')
            p('s_nop 1')
            p(f'{sw} v{reg}, v{tmp}')
            p('s_nop 1')
            p(f'{op} v{reg}, v{reg}, v{tmp}')
    def epilogue(cols, sTile, flagbit):
        p('s_nop 7')
        for c in cols: row_reduce(vL + c, 'v_add_f32', vU)
        if cols == LC:
            for c in cols: p(f'v_add_f32 v{vL+c}, v{vL+c}, v{Lm(c)}')
        p(f'v_max_f32 v{vU}, v{vL+cols[0]}, v{vL+cols[1]}')
        p(f'v_cmp_nle_f32 vcc, v{vU}, v{vU+1}'.replace(f'v{vU+1}', f'v{vU+1}') if False else f'v_cmp_nge_f32 vcc, s{sLim}, v{vU}')
        p('s_nop 1')
        p(f's_cmp_lg_u64 vcc, 0')
        p(f's_cselect_b32 s{sT0}, {flagbit}, 0')
        p(f's_or_b32 s{sFlag}, s{sFlag}, s{sT0}')
        for c in cols: p(f'v_rcp_f32 v{vL+c}, v{vL+c}')
        store_ctx(cols, sTile)
    def store_ctx(cols, sTile):
        p(f's_lshl_b32 s{sCtx}, s{sTile}, 3')
        p(f's_lshl_b32 s{sT0}, s{sW}, 1')
        p(f's_add_u32 s{sCtx}, s{sCtx}, s{sT0}')
        p(f's_lshl_b32 s{sCtx}, s{sCtx}, 5')
        p(f's_add_u32 s{sCtx}, s{sCtx}, s{sH}')
        p(f's_lshl_b32 s{sCtx}, s{sCtx}, 12')
        p(f's_add_u32 s{sT1}, s{sCtx}, {32*4096}')
        for i, c in enumerate(cols):
            for ks in range(4):
                o = O(c, 2*ks)
                for k in range(8): p(f'v_mul_f32 v{o+k}, v{o+k}, v{vL+c}')
                for k in range(4): p(f'v_cvt_pk_bf16_f32 v{o+k}, v{o+2*k}, v{o+2*k+1}')
                p(f'buffer_store_dwordx4 v[{o}:{o+3}], v{vLane16}, s[{S_CTX}:{S_CTX+3}], s{sCtx if i == 0 else sT1} offen offset:{ks*1024} {CTX_FLAGS}')

    p(f's_mov_b32 s{sSlotR}, 0')
    p(f'v_mov_b32 v{vRd}, v{vLane16}')
    for r in range(64, 128): p(f'v_mov_b32 v{vO+r}, 0')
    p(f's_lshl_b32 s{sDd}, s{sTS}, 2')
    p(f's_add_u32 s{sDd}, s{sDd}, s{sW}')
    p(f's_sub_u32 s{sDd}, 0, s{sDd}')
    emit(mask_ops(SC))
    p.wait_vm('U-1')
    p('s_barrier')
    p.stamp('U-1 ready')
    p.lgq = []; p.lg_ret = -1
    for f in range(8): put(rdK(0, f))
    p('s_waitcnt lgkmcnt(0)')
    q0 = qk_mfmas([0, 1, 2, 3], 0, cin_mask(SC))
    rest = unitK(2, 'U1') + unitV(2, 'U1')
    Rq = Region(q0)
    spread(Rq, rest, 0, 31)
    Rq.emit(p, put)
    p(f's_add_u32 s{sSlotP}, s{sLW}, {4*32768}')
    p.stamp('qk0 done')
    for f in range(8): put(rdK(1, f))
    for step in range(4):
        for c in range(4):
            S = vS + 8*c; t = vU + c
            if step == 0: p(f'v_max3_f32 v{t}, v{S}, v{S+1}, v{S+2}')
            elif step == 1: p(f'v_max3_f32 v{t}, v{t}, v{S+3}, v{S+4}')
            elif step == 2: p(f'v_max3_f32 v{t}, v{t}, v{S+5}, v{S+6}')
            else: p(f'v_max_f32 v{t}, v{t}, v{S+7}')
    for sw in ('v_permlane16_swap_b32', 'v_permlane32_swap_b32'):
        for c in range(4): p(f'v_mov_b32 v{vU+4+c}, v{vU+c}')
        for c in range(4): p(f'{sw} v{vU+c}, v{vU+4+c}')
        p('s_nop 0')
        for c in range(4): p(f'v_max_f32 v{vU+c}, v{vU+c}, v{vU+4+c}')
    for r in range(8):
        for c in range(4): p(f'v_sub_f32 v{vS+8*c+r}, v{vS+8*c+r}, v{vU+c}')
    for c in range(4):
        for r in range(4): p(f'v_sub_f32 v{vNeg+4*c+r}, 0, v{vU+c}')
    def run_window(W):
        for ops in W:
            for o in ops: p(o)
            if len(ops) == 1 and ops[0].startswith('v_exp'): p('s_nop 0')
    u2 = unitK(3, 'U2') + unitV(3, 'U2')
    for r in range(8):
        for c in range(3): p(f'v_exp_f32 v{vS+8*c+r}, v{vS+8*c+r}')
        while u2:
            it = u2.pop(0)
            put(it)
            if it[0] == 'm': break
            if ' m0,' in it[1]: p('s_nop 0')
    for it in u2: put(it)
    p('s_nop 0')
    for r in range(8):
        for c in range(3): p(f'v_add_f32 v{vL+c}, v{vL+c}, v{vS+8*c+r}')
    for k in range(4):
        for c in range(3): p(f'v_cvt_pk_bf16_f32 v{Pr(0, c)+k}, v{vS+8*c+2*k}, v{vS+8*c+2*k+1}')
    p(f's_mov_b32 s{sSlotR}, 32768')
    p(f'v_add_u32 v{vRd}, s{sSlotR}, v{vLane16}')
    if 'pp' not in opt: p.stamp('attn prologue done')
    p(f's_cmp_eq_u32 s{sTS}, 0')
    p(f's_cbranch_scc1 {name}_t0')
    p(f's_lshl_b32 s{sCnt}, s{sTS}, 1')
    p(f's_sub_u32 s{sCnt}, s{sCnt}, 1')
    p.label(f'{name}_dn')
    interval('D', f'dn', loop=True)
    p(f's_cbranch_scc1 {name}_dn')
    p(f's_sub_u32 s{sDd}, -1, s{sW}')
    interval('D', 'da', maskS=(False, True, True))
    p(f's_branch {name}_db')
    p.label(f'{name}_t0')
    p(f's_sub_u32 s{sDd}, 1, s{sW}')
    emit(mask_ops(SC))
    p('s_nop 1')
    p.label(f'{name}_db')
    if FP == 'db':
        p('s_waitcnt vmcnt(16)')
        p('s_barrier')
        ffn_loads()
        interval('D', 'db', maskS=(True, True, True), vm=None)
        p(f's_cmp_eq_u32 s{F5}, 0')
        p(f's_cbranch_scc1 {name}_dcw')
        p('s_waitcnt vmcnt(46)')
        p(f's_branch {name}_dcw2')
        p.label(f'{name}_dcw')
        p('s_waitcnt vmcnt(16)')
        p.label(f'{name}_dcw2')
        interval('T', 'dc', maskS=(True, False, False), vm=63)
    elif FP == 'pace':
        ndb = sum(1 for x in fp_items['db'] if x[0] == 'l')
        interval('D', 'db', maskS=(True, True, True))
        interval('T', 'dc', maskS=(True, False, False), vm=16 + ndb)
    else:
        interval('D', 'db', maskS=(True, True, True))
        interval('T', 'dc', maskS=(True, False, False))
    epilogue(SC, sTS, 2)
    if FP == 'S':
        ffn_loads()
        p.lgq = ['K%d' % f for f in range(8)]; p.lg_ret = 7
    if 'pp' not in opt: (p.stamp('S done') if 'pq' not in opt else None)
    if KTD:
        p('v_and_b32 v12, 31, v0')
        p('v_lshlrev_b32 v12, 7, v12')
        p(f'v_add_u32 v12, {KTD*16384}, v12')
    def pubS(vm, lab):
        p(f's_waitcnt vmcnt({vm})')
        p('s_barrier')
        p(f's_cmp_lg_u32 s{sW}, 0')
        p(f's_cbranch_scc1 {name}_{lab}')
        p(f's_lshl_b32 s14, s2, 2')
        p(f's_add_u32 s14, s14, 7168')
        p(f'v_mov_b32 v12, s{sTag}')
        p('v_mov_b32 v10, 0')
        p(f'buffer_store_dword v12, v10, s[{S_FL}:{S_FL+3}], s14 offen sc1')
        p.label(f'{name}_{lab}')
    p(f's_sub_u32 s{sCnt}, s{sTL}, s{sTS}')
    p(f's_cmp_eq_u32 s{sCnt}, 1')
    if TAIL2:
        p(f's_cbranch_scc0 {name}_sgen')
        pubS(0, 'ps1')
        p(f's_branch {name}_sb')
        p.label(f'{name}_sgen')
    else:
        p(f's_cbranch_scc1 {name}_sb')
    if DBL:
        p(f's_sub_u32 s{sCnt}, s{sCnt}, 2')
        interval('S', 'sn1')
        if TAIL2: pubS(8, 'ps2')
        p.label(f'{name}_sn')
        interval('S', 'sn2a', vm=8)
        interval('S', 'sn2b', vm=None, loop=True)
    else:
        p(f's_lshl_b32 s{sCnt}, s{sCnt}, 1')
        p(f's_sub_u32 s{sCnt}, s{sCnt}, 3')
        p.label(f'{name}_sn')
        interval('S', 'sn', loop=True, vm=16 + (4 if KTD else 0))
    p(f's_cbranch_scc1 {name}_sn')
    p(f's_sub_u32 s{sDd}, -1, s{sW}')
    interval('S', 'sa', maskL=(False, True, True))
    p.label(f'{name}_sb')
    interval('S', 'sb', maskL=(True, True, True))
    interval('E', 'sc', maskL=(True, False, False))
    epilogue(LC, sTL, 1)
    p.stamp('L done')
    p(f's_cmp_eq_u32 s{sFlag}, 0')
    p(f's_cbranch_scc1 {name}_fin')
    fallback(p, name, locals())
    p.label(f'{name}_fin')
    def ctx_publish():
        p('s_waitcnt vmcnt(0) lgkmcnt(0)')
        p('s_barrier')
        p(f's_cmp_lg_u32 s{sW}, 0')
        p(f's_cbranch_scc1 {name}_cpub')
        p(f's_lshl_b32 s14, s2, 2')
        p(f's_add_u32 s14, s14, 6144')
        p(f'v_mov_b32 v20, s{sTag}')
        p('v_mov_b32 v21, 0')
        p(f'buffer_store_dword v20, v21, s[{S_FL}:{S_FL+3}], s14 offen sc1')
        p.label(f'{name}_cpub')
        p.stamp('ctx pub')
        if PE: emit_prefetch()
        if FP == 'end': ffn_loads()
    import kt, kt2
    if TAIL2: kt = kt2
    nerr += kt.gen_kt(name + '_t', p, prof, opt, ctx_publish)
    p.label(f'{name}_done')
    p('s_endpgm')
    def mk_policy(t0, nd, skip_s, ns, fb, wave0):
        def pol(ins, n):
            t = ins.args[0]
            if t.endswith('_done'): return False
            if t.endswith('_stageA'): return n % 3 != 0
            if t in (name + '_noln0', name + '_noln1'): return False
            if t in (name + '_notag', name + '_kvpub'): return not wave0
            if t == name + '_notag2': return True
            if t == name + '_nffn': return not wave0
            if t == name + '_sgen': return not skip_s
            if t in (name + '_ps1', name + '_ps2'): return not wave0
            if t == name + '_dcw': return not wave0
            if t == name + '_cpub': return not wave0
            if t.startswith(name + '_t'):
                if '_poll' in t and t.endswith('_ok'): return True
                if '_poll' in t and t.endswith('_top'): return False
                u = t[len(name) + 2:]
                if u in ('_w123', '_w1', '_nosig', '_nosig0', '_nosig1', '_w4', '_w5', '_cw'): return not wave0
                if u == '_lfok': return True
                return False
            if t == name + '_nz': return True
            if t == name + '_nocode': return False
            if t == name + '_nopub': return True
            if t in (name + '_lnok', name + '_kok', name + '_vok', name + '_kpub', name + '_vpub'): return not wave0
            if t in (name + '_lnok2', name + '_kok2', name + '_vok2', name + '_krel', name + '_vrel'): return True
            if t.endswith('_t0'): return t0
            if t.endswith('_dn'): return (n % nd) != 0
            if t.endswith('_sb'): return skip_s
            if t.endswith('_sn'): return (n % ns) != 0
            if t.endswith('_fin'): return not fb
            if t.endswith('_fbloop'): return n % 3 != 0
            return False
        return pol
    for cfg in ([(False, 3, False, 3, False, True), (True, 2, False, 2, True, False), (False, 2, True, 2, False, True)] if (not opt or opt[0] in ('pp', 'pq', 'tl', 'tr', 'nocode', 'notlb', 'dbg', 'pa') or opt[0].startswith('kv=')) and not any(o_.endswith('A') for o_ in opt) else []):
        seq = trace(p, mk_policy(*cfg))
        nerr += len(check_linear(seq, name + str(cfg)))
    return p, nerr

def fallback(p, name, L):
    g = L
    vS, vP, vE, vL, vU, vNeg, vCi, vO = g['vS'], g['vP'], g['vE'], g['vL'], g['vU'], g['vNeg'], g['vCi'], g['vO']
    aQ, aK, aV, vLane16, vNinf = g['aQ'], g['aK'], g['aV'], g['vLane16'], g['vNinf']
    S_KF, S_VF = g['S_KF'], g['S_VF']
    sFlag, sTL, sTS, sW, sH, sDd, sCnt, sT0, sT1, sT2 = (g[k] for k in ('sFlag', 'sTL', 'sTS', 'sW', 'sH', 'sDd', 'sCnt', 'sT0', 'sT1', 'sT2'))
    O = g['O']; mask_ops = g['mask_ops']; qk_mfmas = g['qk_mfmas']; pv_mfmas = g['pv_mfmas']; row_reduce = g['row_reduce']; store_ctx = g['store_ctx']
    put = g['put']
    p('s_waitcnt vmcnt(0) lgkmcnt(0)')
    for cols, sTile, bit, nm in (([2, 3], sTS, 2, 'S'), ([0, 1], sTL, 1, 'L')):
        p(f's_and_b32 s{sT0}, s{sFlag}, {bit}')
        p(f's_cmp_eq_u32 s{sT0}, 0')
        p(f's_cbranch_scc1 {name}_fbskip{nm}')
        for c in cols:
            p(f'v_mov_b32 v{vL+c}, 0')
            for r in range(32): p(f'v_mov_b32 v{vO+32*c+r}, 0')
            for r in range(4): p(f'v_mov_b32 v{vNeg+4*c+r}, 0')
        for i in range(2): p(f'v_mov_b32 v{vU+4+i}, v{vNinf}')
        p(f's_lshl_b32 s{sDd}, s{sTile}, 2')
        p(f's_add_u32 s{sDd}, s{sDd}, s{sW}')
        p(f's_add_u32 s{sCnt}, s{sDd}, 1')
        p(f's_sub_u32 s{sDd}, 0, s{sDd}')
        p(f's_lshl_b32 s{sT2}, s{sH}, 19')
        p.label(f'{name}_fb{nm}_fbloop')
        for f in range(8):
            p(f's_add_u32 s{sT1}, s{sT2}, {(f // 4)*4096}')
            p(f'buffer_load_dwordx4 a[{aK+4*f}:{aK+4*f+3}], v{vLane16}, s[{S_KF}:{S_KF+3}], s{sT1} offen offset:{(f % 4)*1024}')
            p(f'buffer_load_dwordx4 a[{aV+4*f}:{aV+4*f+3}], v{vLane16}, s[{S_VF}:{S_VF+3}], s{sT1} offen offset:{(f % 4)*1024}')
        for it in mask_ops(cols): put(it)
        p('s_waitcnt vmcnt(0)')
        p('s_nop 1')
        for m in qk_mfmas(cols, 0, lambda c, kb: vCi + 8*(c - cols[0]) + 4*kb): p(m)
        p('s_nop 7')
        for i, c in enumerate(cols):
            S = vS + 8*i; t = vU + i; m = vU + 4 + i
            p(f'v_max3_f32 v{t}, v{S}, v{S+1}, v{S+2}')
            p(f'v_max3_f32 v{t}, v{t}, v{S+3}, v{S+4}')
            p(f'v_max3_f32 v{t}, v{t}, v{S+5}, v{S+6}')
            p(f'v_max_f32 v{t}, v{t}, v{S+7}')
            row_reduce(t, 'v_max_f32', vU + 6)
            p(f'v_max_f32 v{t}, v{t}, v{m}')
            p(f'v_sub_f32 v{vU+6}, v{m}, v{t}')
            p(f'v_exp_f32 v{vU+6}, v{vU+6}')
            p(f'v_mov_b32 v{m}, v{t}')
            p(f'v_mul_f32 v{vL+c}, v{vL+c}, v{vU+6}')
            for r in range(32): p(f'v_mul_f32 v{vO+32*c+r}, v{vO+32*c+r}, v{vU+6}')
            for r in range(8): p(f'v_sub_f32 v{S+r}, v{S+r}, v{t}')
            for r in range(8): p(f'v_exp_f32 v{S+r}, v{S+r}')
            p('s_nop 0')
            for r in range(8): p(f'v_add_f32 v{vL+c}, v{vL+c}, v{S+r}')
            for k in range(4): p(f'v_cvt_pk_bf16_f32 v{vP+4*c+k}, v{S+2*k}, v{S+2*k+1}')
        p('s_nop 1')
        for m in pv_mfmas(cols, 0): p(m)
        p('s_nop 7')
        p(f's_add_u32 s{sT2}, s{sT2}, 8192')
        p(f's_add_u32 s{sDd}, s{sDd}, 1')
        p(f's_sub_u32 s{sCnt}, s{sCnt}, 1')
        p(f's_cmp_lg_u32 s{sCnt}, 0')
        p(f's_cbranch_scc1 {name}_fb{nm}_fbloop')
        for c in cols: row_reduce(vL + c, 'v_add_f32', vU)
        for c in cols: p(f'v_rcp_f32 v{vL+c}, v{vL+c}')
        store_ctx(cols, sTile)
        p.label(f'{name}_fbskip{nm}')

if __name__ == '__main__':
    p, ne = gen_kf()
    print('instrs', p.count(), 'errors', ne)
```

```python
from common import *
from gx2 import *
from sched import *
from lnops import rne_keep
MF = 'v_mfma_f32_16x16x32_bf16'
NFFN = 54
WS_PB = 128*MiB
PS_OFF = 8*128*8*2560
SZ_PB = PS_OFF + 8*64*8*1024
SPIN = 1 << 16

def poll(p, name, S_DBG, off, target, vt, sA, sB):
    L = p.nl(name + '_poll')
    p(f'v_mov_b32 v{vt}, {off}')
    p(f's_mov_b32 s{sA}, 0')
    p.label(L)
    p(f'buffer_load_dword v{vt+1}, v{vt}, s[{S_DBG}:{S_DBG+3}], 0 offen sc1')
    p('s_waitcnt vmcnt(0)')
    p(f'v_readfirstlane_b32 s{sB}, v{vt+1}')
    p(f's_add_u32 s{sA}, s{sA}, 1')
    p(f's_cmp_ge_u32 s{sB}, {target}')
    p(f's_cbranch_scc1 {L}_ok')
    p(f's_cmp_ge_u32 s{sA}, {SPIN}')
    p(f's_cbranch_scc1 {L}_ok')
    p('s_sleep 1')
    p(f's_branch {L}')
    p.label(L + '_ok')

FOFS = 82*MiB - WS_STAT
O_CTXS = FOFS + 7168
O_CTXF, O_FM, O_KEYS, O_RDY, O_FF = FOFS + 6144, FOFS + 8192, FOFS + 10240, FOFS + 12288, FOFS + 13312

def gen_kt(name, p, prof=False, opt=(), ctx_publish=None):
    put = make_put(p)
    S_WO, S_CTX, S_PB, S_DBG, S_X, S_OUT, S_H, S_ST = 16, 20, 24, 28, 32, 36, 40, 56
    S_WA, S_WB = 60, 64
    sW, sS, sMT, sNT = 44, 45, 46, 47
    sT0, sT1, sT2 = 48, 49, 50
    sWoff, sCoff, sLWw, sLWc, sP0 = 51, 52, 53, 54, 55
    sIdx, sR = 68, 69
    vLane16 = 1
    vOffW = 2
    vLPe, vLPo, vCe, vCo = 7, 8, 9, 10
    vLPc, vCc = 11, 12
    vT = 13
    vWF = 20; vCF = 40; acc = 72
    SLOT = 36864; NSL = 4
    sTag = 3; sFj = 62; sPS = 60; sMaskC = 61
    p.vmq = []; p.retired = -1; p.lgq = []; p.lg_ret = -1
    n_front = len(p.items)
    if getattr(p, 'dbgmode', False):
        for k in range(p.nstamp, 10): p(f's_mov_b32 s{72 + 2*k}, s72')
    p(f's_load_dwordx2 s[4:5], s[0:1], {ARG["wo"]}')
    p(f's_load_dwordx4 s[8:11], s[0:1], {ARG["out"]}')
    p(f's_load_dwordx2 s[12:13], s[0:1], {ARG["ws"]}')
    p(f's_load_dwordx2 s[6:7], s[0:1], {ARG["x"]}')
    sCoffB, sP0B, sPSB, sMTL = 63, 64, 65, 66
    p(f's_and_b32 s{sS}, s2, 7')
    p('s_lshr_b32 s15, s2, 3')
    p(f's_and_b32 s{sMT}, s15, 7')
    p(f's_lshr_b32 s{sNT}, s15, 3')
    p('s_lshr_b32 s14, s2, 3')
    p(f's_and_b32 s{sFj}, s14, 7')
    p(f's_lshr_b32 s14, s14, 3')
    p(f's_lshl_b32 s14, s14, 1')
    p(f's_add_u32 s14, s14, s{sFj}')
    p(f's_sub_u32 s14, s14, 6')
    p(f's_lshl_b32 s14, s14, 3')
    p(f's_and_b32 s15, s2, 7')
    p(f's_add_u32 s14, s14, s15')
    p(f's_cmp_ge_u32 s{sFj}, 6')
    p(f's_cselect_b32 s{sFj}, s14, 255')
    p('s_lshr_b32 s15, s2, 3')
    p(f's_lshl_b32 s{sT1}, s{sW}, 1')
    p(f's_lshl_b32 s{sT2}, s{sS}, 14')
    p(f's_lshl_b32 s{sT0}, s{sMT}, 3')
    p(f's_add_u32 s{sT0}, s{sT0}, s{sT1}')
    p(f's_lshl_b32 s{sCoff}, s{sT0}, 17')
    p(f's_add_u32 s{sCoff}, s{sCoff}, s{sT2}')
    p(f's_sub_u32 s{sT0}, 15, s{sMT}')
    p(f's_lshl_b32 s{sT0}, s{sT0}, 3')
    p(f's_add_u32 s{sT0}, s{sT0}, s{sT1}')
    p(f's_lshl_b32 s{sCoffB}, s{sT0}, 17')
    p(f's_add_u32 s{sCoffB}, s{sCoffB}, s{sT2}')
    p(f's_lshl_b32 s{sLWc}, s{sW}, 12')
    p(f's_add_u32 s{sLWc}, s{sLWc}, 20480')
    p(f's_mul_i32 s{sWoff}, s{sS}, {512*1280}')
    p(f's_mul_i32 s{sT0}, s{sNT}, 320')
    p(f's_add_u32 s{sWoff}, s{sWoff}, s{sT0}')
    p(f's_mul_i32 s{sLWw}, s{sW}, 5120')
    p(f's_mul_i32 s{sT0}, s{sW}, 320')
    p(f'v_add_u32 v{vT}, s{sT0}, v0')
    for i in range(5):
        if i: p(f'v_add_u32 v{vT}, 64, v{vT}')
        p(f'v_mul_u32_u24 v{vT+1}, 3277, v{vT}')
        p(f'v_lshrrev_b32 v{vT+1}, 16, v{vT+1}')
        p(f'v_mul_u32_u24 v{vT+2}, 20, v{vT+1}')
        p(f'v_sub_u32 v{vT+2}, v{vT}, v{vT+2}')
        p(f'v_bfe_u32 v{vT+3}, v{vT+1}, 2, 1')
        p(f'v_lshlrev_b32 v{vT+3}, 1, v{vT+3}')
        p(f'v_xor_b32 v{vT+2}, v{vT+2}, v{vT+3}')
        p(f'v_mul_u32_u24 v{vT+1}, 1280, v{vT+1}')
        p(f'v_lshl_add_u32 v{vOffW+i}, v{vT+2}, 4, v{vT+1}')
        if 0 < i < 4: p(f'v_subrev_u32 v{vOffW+i}, {1024*i}, v{vOffW+i}')
    p('s_waitcnt lgkmcnt(0)')
    srd(p, S_WO, 4, 4096*640*2)
    srd(p, S_CTX, 12, SZ_CTX, WS_CTX)
    def dma_ctx(ch):
        base = (ch % NSL)*SLOT
        tagC = ('W', base + 20480, base + SLOT, True)
        sc_ = sCoff if ch < 8 else sCoffB; chl = ch % 8
        L = [('s', f's_add_u32 s{sT1}, s{sc_}, {chl*2048}'), ('s', f's_add_u32 m0, s{sLWc}, {base}'), ('s', 's_nop 0')]
        for i in range(2): L.append(('m', f'buffer_load_dwordx4 v{vLane16}, s[{S_CTX}:{S_CTX+3}], s{sT1} offen offset:{1024*i} lds', f'C{ch}', tagC))
        L.append(('s', f's_add_u32 s{sT1}, s{sc_}, {chl*2048 + 131072}'))
        L.append(('s', f's_add_u32 m0, s{sLWc}, {base + 2048}'))
        L.append(('s', 's_nop 0'))
        for i in range(2): L.append(('m', f'buffer_load_dwordx4 v{vLane16}, s[{S_CTX}:{S_CTX+3}], s{sT1} offen offset:{1024*i} lds', f'C{ch}', tagC))
        return L
    def dma_wo(ch):
        base = (ch % NSL)*SLOT
        L = [('s', f's_add_u32 m0, s{sLWw}, {base}'), ('s', f's_add_u32 s{sT0}, s{sWoff}, {(ch % 8)*64*1280}')]
        tagW = ('W', base, base + 20480, True)
        for i in range(4):
            L.append(('m', f'buffer_load_dwordx4 v{vOffW+i}, s[{S_WO}:{S_WO+3}], s{sT0} offen offset:{1024*i} lds', f'C{ch}', tagW))
        L.append(('s', f's_add_u32 m0, s{sLWw}, {base + 4096}'))
        L.append(('s', 's_nop 0'))
        L.append(('m', f'buffer_load_dwordx4 v{vOffW+4}, s[{S_WO}:{S_WO+3}], s{sT0} offen lds', f'C{ch}', tagW))
        return L
    def dma_chunk(ch): return dma_ctx(ch) + dma_wo(ch)
    def emit(L):
        for it in L: put(it)
    p(f'v_bfe_u32 v{vT}, v0, 2, 2')
    p(f'v_lshrrev_b32 v{vT+1}, 4, v0')
    p(f'v_lshl_add_u32 v{vT+2}, v{vT+1}, 2, v{vT}')
    p(f'v_mul_u32_u24 v{vT+2}, 320, v{vT+2}')
    p(f'v_and_b32 v{vT+3}, 3, v0')
    p(f'v_lshl_add_u32 v{vT+2}, v{vT+3}, 3, v{vT+2}')
    p(f'v_and_b32 v{vT+1}, 1, v{vT+1}')
    p(f'v_lshlrev_b32 v{vT+1}, 5, v{vT+1}')
    p(f'v_add_u32 v{vLPe}, v{vT+2}, v{vT+1}')
    p(f'v_sub_u32 v{vLPo}, v{vT+2}, v{vT+1}')
    p(f's_lshr_b32 s{sT0}, s{sW}, 1')
    p(f's_and_b32 s{sT1}, s{sW}, 1')
    p(f's_cmp_eq_u32 s{sT0}, 1')
    p(f's_cselect_b64 s[14:15], -1, 0')
    p(f'v_cndmask_b32 v{vT}, v{vLPe}, v{vLPo}, s[14:15]')
    p(f'v_cndmask_b32 v{vT+1}, v{vLPo}, v{vLPe}, s[14:15]')
    p(f's_mul_i32 s{sT2}, s{sT0}, 160')
    p(f'v_add_u32 v{vLPe}, s{sT2}, v{vT}')
    p(f'v_add_u32 v{vLPo}, s{sT2}, v{vT+1}')
    p(f's_lshl_b32 s{sT2}, s{sT1}, 13')
    p(f's_add_u32 s{sT2}, s{sT2}, 20480')
    p(f'v_add_u32 v{vLPc}, s{sT2}, v{vLane16}')
    p(f's_lshl_b32 s{sT2}, s{sNT}, 1')
    p(f's_add_u32 s{sT2}, s{sT2}, s{sT0}')
    for (dP, dS, isB) in ((sP0, sPS, False), (sP0B, sPSB, True)):
        if isB: p(f's_sub_u32 s14, 15, s{sMT}')
        else: p(f's_mov_b32 s14, s{sMT}')
        p(f's_lshl_b32 s15, s{sS}, 4')
        p(f's_add_u32 s14, s14, s15')
        p(f's_lshl_b32 s15, s14, 3')
        p(f's_lshl_b32 s{dP}, s{sT1}, 2')
        p(f's_add_u32 s{dP}, s{dP}, s15')
        p(f's_lshl_b32 s{dP}, s{dP}, 3')
        p(f's_add_u32 s{dP}, s{dP}, s{sT2}')
        p(f's_mul_i32 s{dP}, s{dP}, 2560')
        p(f's_lshl_b32 s15, s14, 2')
        p(f's_lshl_b32 s{dS}, s{sT1}, 1')
        p(f's_add_u32 s{dS}, s{dS}, s15')
        p(f's_lshl_b32 s{dS}, s{dS}, 3')
        p(f's_add_u32 s{dS}, s{dS}, s{sT2}')
        p(f's_lshl_b32 s{dS}, s{dS}, 10')
        p(f's_add_u32 s{dS}, s{dS}, {PS_OFF}')
    srd(p, S_PB, 12, SZ_PB, WS_PB)
    srd(p, S_X, 6, 2048*640*2)
    srd(p, S_OUT, 8, 2048*640*2)
    srd(p, S_H, 12, SZ_H, WS_H)
    srd(p, S_ST, 12, 3 << 20, WS_STAT)
    vFl = 19
    p(f's_lshl_b32 s14, s{sMT}, 3')
    p(f's_add_u32 s14, s14, s{sS}')
    p(f'v_and_b32 v{vFl}, 3, v0')
    p(f'v_lshlrev_b32 v{vFl}, 6, v{vFl}')
    p(f'v_add_u32 v{vFl}, s14, v{vFl}')
    p(f'v_lshlrev_b32 v{vFl}, 2, v{vFl}')
    p.stamp('tail setup')
    ctx_publish()
    p(f's_cmp_eq_u32 s{sW}, 0')
    p(f's_cbranch_scc1 {name}_w0first')
    emit(dma_wo(0) + dma_wo(1) + dma_wo(2))
    p(f's_branch {name}_cw')
    p.label(f'{name}_w0first')
    p(f's_mov_b32 s14, {O_CTXS}')
    p('s_mov_b32 s15, 0')
    Lc = p.nl(name + '_pollC')
    p.label(Lc)
    p(f'buffer_load_dword v{vT+1}, v{vFl}, s[{S_ST}:{S_ST+3}], s14 offen sc1')
    p('s_waitcnt vmcnt(0)')
    p(f'v_cmp_ne_u32 vcc, s{sTag}, v{vT+1}')
    p('s_add_u32 s15, s15, 1')
    p(f's_cbranch_vccz {Lc}_ok')
    p(f's_cmp_ge_u32 s15, {SPIN}')
    p(f's_cbranch_scc1 {Lc}_ok')
    p('s_sleep 2')
    p(f's_branch {Lc}')
    p.label(Lc + '_ok')
    emit(dma_wo(0) + dma_wo(1) + dma_wo(2))
    p.label(f'{name}_cw')
    p('s_barrier')
    (p.stamp('ctx ready') if 'ln' not in opt else None)
    emit(dma_ctx(0)); emit(dma_ctx(1)); emit(dma_ctx(2))
    def upd(ch):
        base = (ch % NSL)*SLOT
        return [('v', f'v_add_u32 v{vCe}, {base}, v{vLPe}'), ('v', f'v_add_u32 v{vCo}, {base}, v{vLPo}'), ('v', f'v_add_u32 v{vCc}, {base}, v{vLPc}')]
    def rd_w(mb, ks):
        ch, kin = divmod(ks, 2); base = (ch % NSL)*SLOT
        r = vWF + 4*mb; a = vCe if mb % 2 == 0 else vCo
        return [('r', f'ds_read_b64_tr_b16 v[{r+2*h}:{r+2*h+1}], v{a} offset:{kin*10240 + h*5120 + mb*32}', f'w{ks}_{mb}', ('R', base, base + 20480)) for h in range(2)]
    def rd_c(cb, ks):
        ch, kin = divmod(ks, 2); base = (ch % NSL)*SLOT
        r = vCF + 16*(ks % 2) + 4*cb
        return ('r', f'ds_read_b128 v[{r}:{r+3}], v{vCc} offset:{cb*2048 + kin*1024}', f'c{ks}', ('R', base + 20480, base + SLOT))
    emit(upd(0))
    p.wait_vm('C0')
    p('s_barrier')
    (p.stamp('chunk0') if 'ln' not in opt else None)
    for cb in range(4): put(rd_c(cb, 0))
    for mb in range(5): emit(rd_w(mb, 0))
    NKS = 32
    accB = 152
    A = lambda cb, mb, u=0: (acc if u == 0 else accB) + (cb*5 + mb)*4
    mf = []
    for ks in range(NKS):
        for mb in range(5):
            for cb in range(4):
                u = ks // 16; a_ = A(cb, mb, u)
                c = '0' if ks % 16 == 0 else f'v[{a_}:{a_+3}]'
                cf = vCF + 16*(ks % 2) + 4*cb
                mf.append(f'{MF} v[{a_}:{a_+3}], v[{vWF+4*mb}:{vWF+4*mb+3}], v[{cf}:{cf+3}], {c}')
    R = Region(mf)
    G = lambda ks, mb, cb: ks*20 + mb*4 + cb
    put(('wlg', ['w0_0', 'c0']))
    BARG = lambda ch: G(2*ch + 1, 0, 3)
    NCH = 16
    def lcheck_bar(labs):
        p.wait_vm(labs + ['LF'], 'lgkmcnt(0)'); p.lg_all()
        p(f's_cmp_lg_u32 s{sW}, 0')
        p(f's_cbranch_scc1 {name}_lfok')
        p('s_mov_b32 s15, 0')
        p.label(f'{name}_pollL')
        p(f'v_cmp_ne_u32 vcc, s{sTag}, v18')
        p('s_add_u32 s15, s15, 1')
        p(f's_cbranch_vccz {name}_lfok')
        p(f's_cmp_ge_u32 s15, {SPIN}')
        p(f's_cbranch_scc1 {name}_lfok')
        p(f's_mov_b32 s14, {O_CTXF}')
        p(f'buffer_load_dword v18, v{vFl}, s[{S_ST}:{S_ST+3}], s14 offen sc1')
        p('s_waitcnt vmcnt(0)')
        p(f's_branch {name}_pollL')
        p.label(f'{name}_lfok')
        p('s_barrier')
    def signal(mt_expr_B):
        lab = f'{name}_nosig{int(mt_expr_B)}'
        p(f's_cmp_lg_u32 s{sW}, 0')
        p(f's_cbranch_scc1 {lab}')
        if mt_expr_B: p(f's_sub_u32 s14, 15, s{sMT}')
        else: p(f's_mov_b32 s14, s{sMT}')
        p('s_lshl_b32 s14, s14, 7')
        p(f's_lshl_b32 s15, s{sS}, 4')
        p('s_add_u32 s14, s14, s15')
        p(f's_lshl_b32 s15, s{sNT}, 2')
        p('s_add_u32 s14, s14, s15')
        p(f's_add_u32 s14, s14, {O_FM}')
        p(f'v_mov_b32 v17, 0')
        p(f'v_mov_b32 v16, s{sTag}')
        p(f'buffer_store_dword v16, v17, s[{S_ST}:{S_ST+3}], s14 offen sc1')
        p.label(lab)
    def pack_items(u):
        P0 = sP0 if u == 0 else sP0B; PS = sPS if u == 0 else sPSB; L = []
        for cb in range(4):
            a0 = A(cb, 0, u)
            for k in range(10): L.append(('v', f'v_cvt_pk_bf16_f32 v{a0+k}, v{a0+2*k}, v{a0+2*k+1}'))
            L.append(('s', f's_add_u32 s{sT2}, s{P0}, {cb*8*2560}'))
            L.append(('st', f'buffer_store_dwordx4 v[{a0}:{a0+3}], v{vLane16}, s[{S_PB}:{S_PB+3}], s{sT2} offen sc1'))
            L.append(('st', f'buffer_store_dwordx4 v[{a0+4}:{a0+7}], v{vLane16}, s[{S_PB}:{S_PB+3}], s{sT2} offen offset:1024 sc1'))
            if cb % 2 == 1:
                ae = A(cb - 1, 0, u)
                L.append(('v', f'v_mov_b32 v{ae+10}, v{a0+8}'))
                L.append(('v', f'v_mov_b32 v{ae+11}, v{a0+9}'))
                L.append(('s', f's_add_u32 s{sT2}, s{PS}, {(cb // 2)*8*1024}'))
                L.append(('st', f'buffer_store_dwordx4 v[{ae+8}:{ae+11}], v{vLane16}, s[{S_PB}:{S_PB+3}], s{sT2} offen sc1'))
        return L
    for ch in range(NCH - 1):
        if ch == 5: R.place(('call', lambda: lcheck_bar(['C6'])), BARG(ch), force=True)
        else: R.place(('bar', [f'C{ch+1}']), BARG(ch), force=True)
        R.stream(upd(ch + 1), G(2*ch + 1, 0, 1), G(2*ch + 1, 1, 0))
    for ks in range(NKS):
        for mb in range(5):
            if ks == 0 and mb == 0: continue
            labs = [f'w{ks}_{mb}'] + ([f'c{ks}'] if mb == 0 else [])
            R.place(('wlg', labs), G(ks, mb, 0) - 1, force=True)
    for ks in range(NKS - 1):
        ch, t = divmod(ks, 2); nxt = ks + 1
        for mb in range(5):
            e = G(ks, mb, 3)
            if t == 1: e = max(e, G(ks, 1, 1))
            rr = rd_w(mb, nxt)
            lat = G(ks + 1, 0, 0) if t == 0 else G(ks + 1, mb, 0) - 3
            g = R.place(rr[0], e, lat); R.place(rr[1], min(g + 1, lat), lat)
        e = G(ks, 0, 0) if t == 0 else G(ks, 1, 1)
        for cb in range(4): R.place(rd_c(cb, nxt), e + 3*cb, G(ks + 1, 0, 0) - 4)
    def spread_dma(R, L, g0, g1):
        nm = sum(1 for x in L if x[0] in 'ml')
        step = max(1, (g1 - g0) // max(nm, 1))
        g = g0; cnt = 0
        for it in L:
            e = max(g, g0 + cnt*step - (2 if it[0] == 's' else 0))
            g = R.place(it, e, g1)
            if it[0] in 'ml': cnt += 1; g += 1
    for ch in range(NCH - 1):
        if ch + 3 < NCH: spread_dma(R, dma_chunk(ch + 3), BARG(ch) + 1, BARG(ch + 1) - 1)
    R.stream([('s', f's_mov_b32 s14, {O_CTXF}'), ('l', f'buffer_load_dword v18, v{vFl}, s[{S_ST}:{S_ST+3}], s14 offen sc1', 'LF')], G(8, 0, 0), G(9, 4, 0))
    pa = pack_items(0)
    R.period = 20
    gl = R.stream(pa, G(16, 2, 0), None, pace=lambda k: G(16, 2, 0) + (k*(G(24, 0, 0) - G(16, 2, 0)))//len(pa))
    R.period = 16
    print('unit A epilogue ends at gap', gl, 'limit', BARG(13))
    R.emit(p, put)
    print('kt gemm overflow', R.over, 'est', R.total())
    (p.stamp('gemm end') if 'ln' not in opt else None)
    p('s_nop 7')
    for it in pack_items(1): put(it)
    p('s_waitcnt vmcnt(0)')
    p('s_barrier')
    signal(False)
    signal(True)
    (p.stamp('signalled') if 'ln' not in opt else None)
    vTok, vOffP, vOffP8, vOffX, vLds, vLdsW, vTokG = 2, 3, 4, 5, 6, 7, 8
    PA = 128
    XR = 60
    WR = 70
    H = 80
    HN = 100
    sm, mean, mb_, var, sd, rc, t0, t1 = range(120, 128)
    sJ = sP0
    p(f's_and_b32 s{sJ}, s{sS}, 3')
    p(f's_lshl_b32 s{sJ}, s{sJ}, 2')
    p(f's_add_u32 s{sJ}, s{sJ}, s{sNT}')
    p(f's_sub_u32 s14, 15, s{sMT}')
    p(f's_cmp_lt_u32 s{sS}, 4')
    p(f's_cselect_b32 s{sMTL}, s{sMT}, s14')
    p(f'v_and_b32 v{vTok}, 7, v0')
    p(f'v_bfe_u32 v{vT}, v0, 3, 2')
    p(f'v_lshrrev_b32 v{vT+1}, 5, v0')
    p(f's_lshr_b32 s{sT0}, s{sJ}, 1')
    p(f's_lshl_b32 s{sT1}, s{sMTL}, 3')
    p(f's_add_u32 s{sT0}, s{sT0}, s{sT1}')
    sQB = 70
    p(f's_mov_b32 s{sQB}, s{sT0}')
    p(f's_lshl_b32 s{sT1}, s{sT0}, 4')
    p(f's_and_b32 s{sT2}, s{sJ}, 1')
    p(f's_lshl_b32 s{sT2}, s{sT2}, 3')
    p(f's_add_u32 s{sT1}, s{sT1}, s{sT2}')
    p(f'v_add_u32 v{vTokG}, s{sT1}, v{vTok}')
    p(f'v_lshl_add_u32 v{vT+2}, v{vT}, 4, v{vTok}')
    p(f'v_add_u32 v{vT+2}, s{sT2}, v{vT+2}')
    p(f's_lshl_b32 s{sT0}, s{sT0}, 3')
    p(f's_lshl_b32 s{sT2}, s{sW}, 1')
    p(f's_add_u32 s{sT0}, s{sT0}, s{sT2}')
    p(f'v_add_u32 v{vT+3}, s{sT0}, v{vT+1}')
    p(f'v_mul_u32_u24 v{vT+3}, 2560, v{vT+3}')
    p(f'v_lshl_add_u32 v{vOffP}, v{vT+2}, 4, v{vT+3}')
    p(f's_lshr_b32 s14, s{sQB}, 1')
    p(f's_lshl_b32 s14, s14, 3')
    p(f's_add_u32 s14, s14, s{sT2}')
    p(f'v_add_u32 v{vOffP8}, s14, v{vT+1}')
    p(f'v_lshlrev_b32 v{vOffP8}, 10, v{vOffP8}')
    p(f'v_lshl_add_u32 v{vOffP8}, v{vT+2}, 4, v{vOffP8}')
    p(f's_and_b32 s14, s{sQB}, 1')
    p(f's_lshl_b32 s14, s14, 3')
    p(f's_add_u32 s14, s14, {PS_OFF}')
    p(f'v_add_u32 v{vOffP8}, s14, v{vOffP8}')
    p(f's_mul_i32 s{sT2}, s{sW}, 320')
    p(f'v_mul_u32_u24 v{vT+4}, 160, v{vT+1}')
    p(f'v_lshl_add_u32 v{vT+4}, v{vT}, 3, v{vT+4}')
    p(f'v_add_u32 v{vT+4}, s{sT2}, v{vT+4}')
    p(f'v_mul_u32_u24 v{vOffX}, 1280, v{vTokG}')
    p(f'v_add_u32 v{vOffX}, v{vOffX}, v{vT+4}')
    p(f's_load_dwordx2 s[14:15], s[0:1], {ARG["wr"]}')
    for i in range(5):
        p(f'buffer_load_dwordx2 v[{XR+2*i}:{XR+2*i+1}], v{vOffX}, s[{S_X}:{S_X+3}], 0 offen offset:{32*i}')
    p('s_waitcnt lgkmcnt(0)')
    srd(p, 8, 14, 640*2)
    for i in range(5):
        p(f'buffer_load_dwordx2 v[{WR+2*i}:{WR+2*i+1}], v{vT+4}, s[8:11], 0 offen offset:{32*i}')
    RB = 143360
    STH = 122880; STO = 133120
    p(f's_lshl_b32 s{sT1}, s{sW}, 5')
    p(f'v_lshlrev_b32 v{vLds}, 2, v{vTok}')
    p(f'v_add_u32 v{vLds}, {RB}, v{vLds}')
    p(f'v_add_u32 v{vLdsW}, s{sT1}, v{vLds}')
    p(f's_cmp_ge_u32 s{sFj}, {NFFN}')
    p(f's_cbranch_scc1 {name}_nowl')
    p(f's_mul_i32 s{sT2}, s{sW}, 10240')
    p(f'v_add_u32 v{t0}, s{sT2}, v{vLane16}')
    p(f'v_add_u32 v{t1}, 65536, v{t0}')
    for mat, lbase in enumerate((0, 40960, 81920)):
        for i in range(10):
            r = 132 + (mat*10 + i)*4
            if lbase + i*1024 < 65536: p(f'ds_write_b128 v{t0}, a[{r}:{r+3}] offset:{lbase + i*1024}')
            else: p(f'ds_write_b128 v{t1}, a[{r}:{r+3}] offset:{lbase + i*1024 - 65536}')
    p.label(f'{name}_nowl')
    p(f's_cmp_lg_u32 s{sW}, 0')
    p(f's_cbranch_scc1 {name}_w1')
    p(f's_lshl_b32 s{sT0}, s{sMTL}, 7')
    p(f's_add_u32 s{sT0}, s{sT0}, {O_FM}')
    Lp = p.nl(name + '_pollM')
    p(f'v_and_b32 v{t0}, 31, v0')
    p(f'v_lshlrev_b32 v{t0}, 2, v{t0}')
    p(f's_mov_b32 s{sT1}, 0')
    p.label(Lp)
    p(f'buffer_load_dword v{t1}, v{t0}, s[{S_ST}:{S_ST+3}], s{sT0} offen sc1')
    p('s_waitcnt vmcnt(0)')
    p(f'v_cmp_ne_u32 vcc, s{sTag}, v{t1}')
    p(f's_add_u32 s{sT1}, s{sT1}, 1')
    p(f's_cbranch_vccz {Lp}_ok')
    p(f's_cmp_ge_u32 s{sT1}, {SPIN}')
    p(f's_cbranch_scc1 {Lp}_ok')
    p('s_sleep 2')
    p(f's_branch {Lp}')
    p.label(Lp + '_ok')
    p.label(f'{name}_w1')
    p('s_barrier')
    (p.stamp('partials ready') if 'ln' not in opt else None)
    for s_ in range(8):
        p(f's_mov_b32 s{sT0}, {s_*128*8*2560}')
        b = PA + 10*s_
        p(f'buffer_load_dwordx4 v[{b}:{b+3}], v{vOffP}, s[{S_PB}:{S_PB+3}], s{sT0} offen sc1')
        p(f'buffer_load_dwordx4 v[{b+4}:{b+7}], v{vOffP}, s[{S_PB}:{S_PB+3}], s{sT0} offen offset:1024 sc1')
        p(f's_mov_b32 s{sT1}, {s_*64*8*1024}')
        p(f'buffer_load_dwordx2 v[{b+8}:{b+9}], v{vOffP8}, s[{S_PB}:{S_PB+3}], s{sT1} offen sc1')
    p('s_waitcnt vmcnt(0)')
    p.stamp('partials loaded')
    p(f'v_mov_b32 v{t0}, {RB}')
    p(f'v_mov_b32 v{t1}, 0')
    p(f'ds_write_b32 v{t0}, v{t1} offset:516')
    U0, U1 = 208, 228
    p(f's_mov_b32 s{sMaskC}, 0xffff0000')
    def ext(dst, src, half): return f'v_lshlrev_b32 v{dst}, 16, v{src}' if half == 0 else f'v_and_b32 v{dst}, s{sMaskC}, v{src}'
    for k in range(20): p(ext(H + k, PA + k//2, k % 2))
    for k in range(20): p(ext(U1 + k, PA + 10 + k//2, k % 2))
    for sl in range(2, 8, 2):
        for k in range(20): p(ext(U0 + k, PA + 10*sl + k//2, k % 2))
        for k in range(20): p(f'v_add_f32 v{H+k}, v{H+k}, v{U0+k}')
        for k in range(20): p(ext(U0 + k, PA + 10*(sl + 1) + k//2, k % 2))
        for k in range(20): p(f'v_add_f32 v{U1+k}, v{U1+k}, v{U0+k}')
    for k in range(20): p(f'v_add_f32 v{H+k}, v{H+k}, v{U1+k}')
    for k2 in range(10): p(f'v_cvt_pk_bf16_f32 v{U0+k2}, v{H+2*k2}, v{H+2*k2+1}')
    for k in range(20): p(ext(H + k, U0 + k//2, k % 2))
    for k in range(20): p(ext(U1 + k, XR + k//2, k % 2))
    for k in range(20): p(f'v_add_f32 v{H+k}, v{H+k}, v{U1+k}')
    for k2 in range(10): p(f'v_cvt_pk_bf16_f32 v{XR+k2}, v{H+2*k2}, v{H+2*k2+1}')
    for k in range(20): p(ext(H + k, XR + k//2, k % 2))
    vSt = 9
    p(f'v_mul_u32_u24 v{vSt}, 1280, v{vTok}')
    p(f'v_add_u32 v{vSt}, v{vSt}, v{vT+4}')
    p(f'v_add_u32 v{vSt}, {STH}, v{vSt}')
    for i in range(5): p(f'ds_write_b64 v{vSt}, v[{XR+2*i}:{XR+2*i+1}] offset:{32*i}')
    TT = 20
    def allreduce_n(regs, slot):
        n = len(regs)
        p('s_nop 1')
        for r in regs: p(f'v_add_f32_dpp v{r}, v{r}, v{r} row_ror:8 row_mask:0xf bank_mask:0xf')
        for sw in ('v_permlane16_swap_b32', 'v_permlane32_swap_b32'):
            for i, r in enumerate(regs): p(f'v_mov_b32 v{TT+i}, v{r}')
            p('s_nop 1')
            for i, r in enumerate(regs): p(f'{sw} v{r}, v{TT+i}')
            p('s_nop 1')
            for i, r in enumerate(regs): p(f'v_add_f32 v{r}, v{r}, v{TT+i}')
        for i, r in enumerate(regs): p(f'ds_write_b32 v{vLdsW}, v{r} offset:{(slot + i)*128}')
        p('s_waitcnt lgkmcnt(0)')
        p('s_barrier')
        for i, r in enumerate(regs):
            for w in range(4): p(f'ds_read_b32 v{TT+4*i+w}, v{vLds} offset:{(slot + i)*128 + 32*w}')
        p('s_waitcnt lgkmcnt(0)')
        for i, r in enumerate(regs):
            p(f'v_add_f32 v{TT+4*i}, v{TT+4*i}, v{TT+4*i+1}')
            p(f'v_add_f32 v{TT+4*i+2}, v{TT+4*i+2}, v{TT+4*i+3}')
            p(f'v_add_f32 v{r}, v{TT+4*i}, v{TT+4*i+2}')
    def allreduce(reg, slot): allreduce_n([reg], slot)
    if 'ln' in opt: p.stamp('sums done')
    for k in range(10): p(f'v_add_f32 v{U0+k}, v{H+k}, v{H+10+k}')
    for k in range(5): p(f'v_add_f32 v{U0+k}, v{U0+k}, v{U0+5+k}')
    p(f'v_add_f32 v{U0}, v{U0}, v{U0+1}'); p(f'v_add_f32 v{U0+2}, v{U0+2}, v{U0+3}'); p('s_nop 0')
    p(f'v_add_f32 v{U0}, v{U0}, v{U0+4}'); p('s_nop 0'); p(f'v_add_f32 v{sm}, v{U0}, v{U0+2}'); p('s_nop 0')
    p(f'v_mul_f32 v{mean}, 0x3d4ccccd, v{sm}')
    p('s_nop 0')
    p(f'v_mul_f32 v{sd}, v{sm}, v{mean}')
    for k in range(20): p(f'v_sub_f32 v{U0+k}, v{H+k}, v{mean}')
    for k in range(10): p(f'v_mul_f32 v{U1+k}, v{U0+k}, v{U0+k}')
    for k in range(10): p(f'v_fmac_f32 v{U1+k}, v{U0+10+k}, v{U0+10+k}')
    for k in range(5): p(f'v_add_f32 v{U1+k}, v{U1+k}, v{U1+5+k}')
    p(f'v_add_f32 v{U1}, v{U1}, v{U1+1}'); p(f'v_add_f32 v{U1+2}, v{U1+2}, v{U1+3}'); p('s_nop 0')
    p(f'v_add_f32 v{U1}, v{U1}, v{U1+4}'); p('s_nop 0'); p(f'v_add_f32 v{var}, v{U1}, v{U1+2}')
    if 'ln' in opt: p.stamp('pre ar1')
    allreduce_n([sm, var, sd], 0)
    if 'ln' in opt: p.stamp('ar1')
    p(f'v_mul_f32 v{mean}, 0x3acccccd, v{sm}')
    for x in rne_keep(mb_, mean): p(x)
    p(f'v_fma_f32 v{sd}, -v{sm}, v{mean}, v{sd}')
    p(f'v_max_f32 v{sd}, 0, v{sd}')
    p(f'v_add_f32 v{var}, v{var}, v{sd}')
    p(f'v_mul_f32 v{var}, 0x3acccccd, v{var}')
    for x in rne_keep(var, var): p(x)
    p(f'v_add_f32 v{var}, 0x3727c5ac, v{var}')
    for x in rne_keep(var, var): p(x)
    p(f'v_sqrt_f32 v{sd}, v{var}')
    p('s_nop 0')
    for x in rne_keep(sd, sd): p(x)
    p(f'v_rcp_f32 v{rc}, v{sd}')
    p('s_nop 0')
    p(f'v_mov_b32 v{sm}, v{rc}')
    for k in range(20): p(f'v_sub_f32 v{U0+k}, v{H+k}, v{mb_}')
    for k2 in range(10): p(f'v_cvt_pk_bf16_f32 v{U1+k2}, v{U0+2*k2}, v{U0+2*k2+1}')
    for k in range(20): p(ext(U0 + k, U1 + k//2, k % 2))
    for k in range(20): p(f'v_mul_f32 v{U0+k}, v{U0+k}, v{sm}')
    for k2 in range(10): p(f'v_cvt_pk_bf16_f32 v{U1+k2}, v{U0+2*k2}, v{U0+2*k2+1}')
    for k in range(20): p(ext(HN + k, U1 + k//2, k % 2))
    for k in range(20): p(ext(U0 + k, WR + k//2, k % 2))
    for k in range(10): p(f'v_mul_f32 v{U1+k}, v{HN+k}, v{U0+k}')
    for k in range(10): p(f'v_fmac_f32 v{U1+k}, v{HN+10+k}, v{U0+10+k}')
    for k in range(20): p(f'v_add_f32 v{U0+k}, v{H+k}, v{HN+k}')
    for k in range(5): p(f'v_add_f32 v{U1+k}, v{U1+k}, v{U1+5+k}')
    for k2 in range(10): p(f'v_cvt_pk_bf16_f32 v{PA+k2}, v{U0+2*k2}, v{U0+2*k2+1}')
    p(f'v_add_f32 v{U1}, v{U1}, v{U1+1}'); p(f'v_add_f32 v{U1+2}, v{U1+2}, v{U1+3}'); p('s_nop 0')
    p(f'v_add_f32 v{U1}, v{U1}, v{U1+4}'); p('s_nop 0'); p(f'v_add_f32 v{var}, v{U1}, v{U1+2}')
    for i in range(5): p(f'ds_write_b64 v{vSt}, v[{PA+2*i}:{PA+2*i+1}] offset:{STO - STH + 32*i}')
    if 'ln' in opt: p.stamp('pre ar2')
    allreduce(var, 3)
    if 'ln' in opt: p.stamp('ar2')
    GB, WB = 128, 208
    def preload():
        p(f'v_lshrrev_b32 v5, 4, v0')
        p(f'v_bfe_u32 v7, v0, 2, 2')
        p(f'v_lshl_add_u32 v7, v5, 3, v7')
        p(f'v_and_b32 v8, 3, v0')
        p(f'v_lshlrev_b32 v8, 3, v8')
        p(f'v_lshl_add_u32 v6, v7, 6, v8')
        p(f's_mul_i32 s{sT0}, s{sW}, {5*32*64}')
        p(f'v_add_u32 v6, s{sT0}, v6')
        p(f'v_mul_u32_u24 v7, 1280, v7')
        p(f'v_add_u32 v7, v7, v8')
        p(f's_mul_i32 s{sT0}, s{sW}, 320')
        p(f's_add_u32 s{sT0}, s{sT0}, 81920')
        p(f'v_add_u32 v7, s{sT0}, v7')
        for k in range(5):
            for mat in range(2):
                for cb in range(2):
                    for h in range(2):
                        r = GB + 16*k + (mat*2 + cb)*4 + 2*h
                        p(f'ds_read_b64_tr_b16 v[{r}:{r+1}], v6 offset:{mat*40960 + k*2048 + h*256 + cb*32}')
        for mb in range(10):
            for h in range(2):
                r = WB + 4*mb + 2*h
                p(f'ds_read_b64_tr_b16 v[{r}:{r+1}], v7 offset:{h*5120 + mb*32}')
    p(f'v_cvt_pk_bf16_f32 v{var}, v{var}, v{var}')
    p(f's_cmp_lg_u32 s{sW}, 0')
    p(f's_cbranch_scc1 {name}_w123')
    p(f'v_and_b32 v{t0}, 0xffff, v{var}')
    p(f'v_or_b32 v{t1}, 0x8000, v{t0}')
    p(f'v_xor_b32 v{rc}, 0xffff, v{t0}')
    p(f'v_cmp_lt_u32 vcc, 0x7fff, v{t0}')
    p('s_nop 1')
    p(f'v_cndmask_b32 v{t1}, v{t1}, v{rc}, vcc')
    p(f'v_sub_u32 v{t0}, 0xffff, v{vTokG}')
    p(f'v_lshl_or_b32 v{t1}, v{t1}, 16, v{t0}')
    for sh in (4, 2, 1):
        p('s_nop 1')
        p(f'v_max_u32_dpp v{t1}, v{t1}, v{t1} row_ror:{sh} row_mask:0xf bank_mask:0xf')
    p(f's_lshl_b32 s{sT0}, s2, 3')
    p(f's_add_u32 s{sT0}, s{sT0}, {O_KEYS}')
    p(f'v_mov_b32 v{t0}, 0')
    p(f'v_mov_b32 v{TT}, v{t1}')
    p(f'v_mov_b32 v{TT+1}, s{sTag}')
    p(f'buffer_store_dwordx2 v[{TT}:{TT+1}], v{t0}, s[{S_ST}:{S_ST+3}], s{sT0} offen sc1')
    p.stamp('key out')
    p(f's_cmp_ge_u32 s{sFj}, {NFFN}')
    p(f's_cbranch_scc1 {name}_fin')
    preload()
    p(f's_branch {name}_w0poll')
    p.label(f'{name}_w123')
    p(f's_sub_u32 s{sT0}, s{sW}, 1')
    p(f's_lshl_b32 s{sT0}, s{sT0}, 10')
    p(f'v_add_u32 v{t0}, s{sT0}, v{vLane16}')
    p(f'v_add_u32 v{t1}, {STH}, v{t0}')
    for mat in range(2):
        for i in range(4): p(f'ds_read_b128 v[{PA+16*mat+4*i}:{PA+16*mat+4*i+3}], v{t1} offset:{mat*(STO - STH) + 3072*i}')
    p(f's_lshl_b32 s{sT1}, s{sQB}, 4')
    p(f's_and_b32 s{sT2}, s{sJ}, 1')
    p(f's_lshl_b32 s{sT2}, s{sT2}, 3')
    p(f's_add_u32 s{sT1}, s{sT1}, s{sT2}')
    p(f's_mul_i32 s{sT1}, s{sT1}, 1280')
    p('s_waitcnt lgkmcnt(0)')
    for mat, sr in enumerate((S_H, S_OUT)):
        for i in range(3):
            p(f's_add_u32 s{sT2}, s{sT1}, {3072*i}')
            p(f'buffer_store_dwordx4 v[{PA+16*mat+4*i}:{PA+16*mat+4*i+3}], v{t0}, s[{sr}:{sr+3}], s{sT2} offen sc1')
    p(f's_cmp_lg_u32 s{sW}, 1')
    p(f's_cbranch_scc1 {name}_ns3')
    p(f's_add_u32 s{sT2}, s{sT1}, 9216')
    for mat, sr in enumerate((S_H, S_OUT)):
        p(f'buffer_store_dwordx4 v[{PA+16*mat+12}:{PA+16*mat+15}], v{t0}, s[{sr}:{sr+3}], s{sT2} offen sc1')
    p('v_cmp_gt_u32 vcc, 8, v0')
    p('s_nop 1')
    p('s_and_saveexec_b64 s[14:15], vcc')
    p(f'v_lshlrev_b32 v{t1}, 2, v{vTokG}')
    p(f's_mov_b32 s{sT0}, 8192')
    p(f'buffer_store_dword v{mb_}, v{t1}, s[{S_ST}:{S_ST+3}], s{sT0} offen sc1')
    p(f's_mov_b32 s{sT0}, 16384')
    p(f'buffer_store_dword v{sd}, v{t1}, s[{S_ST}:{S_ST+3}], s{sT0} offen sc1')
    p('s_mov_b64 exec, s[14:15]')
    p.label(f'{name}_ns3')
    p('s_waitcnt vmcnt(0) lgkmcnt(0)')
    p(f'v_mov_b32 v{t0}, {RB}')
    p(f'v_mov_b32 v{t1}, 1')
    p('v_cmp_eq_u32 vcc, 0, v0')
    p('s_nop 1')
    p('s_and_saveexec_b64 s[14:15], vcc')
    p(f'ds_add_rtn_u32 v{t1}, v{t0}, v{t1} offset:516')
    p('s_waitcnt lgkmcnt(0)')
    p('s_mov_b64 exec, s[14:15]')
    p(f'v_readfirstlane_b32 s{sT0}, v{t1}')
    p('s_nop 3')
    p(f's_cmp_lg_u32 s{sT0}, 2')
    p(f's_cbranch_scc1 {name}_w3')
    p(f's_lshl_b32 s{sT0}, s2, 2')
    p(f's_add_u32 s{sT0}, s{sT0}, {O_RDY}')
    p(f'v_mov_b32 v{t0}, 0')
    p(f'v_mov_b32 v{t1}, s{sTag}')
    p(f'buffer_store_dword v{t1}, v{t0}, s[{S_ST}:{S_ST+3}], s{sT0} offen sc1')
    p.label(f'{name}_w3')
    p(f's_cmp_ge_u32 s{sFj}, {NFFN}')
    p(f's_cbranch_scc1 {name}_fin')
    preload()
    p(f's_branch {name}_w4')
    p.label(f'{name}_w0poll')
    Lk = p.nl(name + '_pollK')
    p(f's_mov_b32 s{sT1}, 0')
    p(f's_mov_b32 s{sT0}, {O_KEYS}')
    p(f'v_lshlrev_b32 v28, 5, v0')
    p.label(Lk)
    p(f'buffer_load_dwordx4 v[20:23], v28, s[{S_ST}:{S_ST+3}], s{sT0} offen sc1')
    p(f'buffer_load_dwordx4 v[24:27], v28, s[{S_ST}:{S_ST+3}], s{sT0} offen offset:16 sc1')
    p('s_waitcnt vmcnt(0)')
    p(f'v_xor_b32 v21, s{sTag}, v21')
    p(f'v_xor_b32 v23, s{sTag}, v23')
    p(f'v_xor_b32 v25, s{sTag}, v25')
    p(f'v_xor_b32 v27, s{sTag}, v27')
    p(f'v_or3_b32 v21, v21, v23, v25')
    p(f'v_or_b32 v21, v21, v27')
    p(f'v_cmp_ne_u32 vcc, 0, v21')
    p(f's_add_u32 s{sT1}, s{sT1}, 1')
    p(f's_cbranch_vccz {Lk}_ok')
    p(f's_cmp_ge_u32 s{sT1}, {SPIN}')
    p(f's_cbranch_scc1 {Lk}_ok')
    p('s_sleep 1')
    p(f's_branch {Lk}')
    p.label(Lk + '_ok')
    (p.stamp('argmax ready') if 'ln' not in opt else None)
    p(f'v_max_u32 v20, v20, v22')
    p(f'v_max_u32 v24, v24, v26')
    p('s_nop 0')
    p(f'v_max_u32 v20, v20, v24')
    for sh in (8, 4, 2, 1):
        p('s_nop 1')
        p(f'v_max_u32_dpp v20, v20, v20 row_ror:{sh} row_mask:0xf bank_mask:0xf')
    for sw in ('v_permlane16_swap_b32', 'v_permlane32_swap_b32'):
        p(f'v_mov_b32 v21, v20')
        p('s_nop 1')
        p(f'{sw} v20, v21')
        p('s_nop 1')
        p(f'v_max_u32 v20, v20, v21')
    p(f'v_mov_b32 v21, {RB}')
    p(f'ds_write_b32 v21, v20 offset:512')
    p('s_waitcnt lgkmcnt(0)')
    p.label(f'{name}_w4')
    p('s_barrier')
    p(f'v_mov_b32 v21, {RB}')
    p(f'ds_read_b32 v20, v21 offset:512')
    p('s_waitcnt lgkmcnt(0)')
    p(f'v_readfirstlane_b32 s{sR}, v20')
    p('s_nop 4')
    p(f's_and_b32 s{sIdx}, s{sR}, 0xffff')
    p(f's_sub_u32 s{sIdx}, 0xffff, s{sIdx}')
    p(f's_min_u32 s{sIdx}, s{sIdx}, 2047')
    p(f's_lshr_b32 s{sR}, s{sR}, 16')
    p(f's_xor_b32 s{sT0}, s{sR}, 0xffff')
    p(f's_and_b32 s{sT1}, s{sR}, 0x7fff')
    p(f's_bitcmp1_b32 s{sR}, 15')
    p(f's_cselect_b32 s{sR}, s{sT1}, s{sT0}')
    p(f's_lshl_b32 s{sR}, s{sR}, 16')
    p(f's_lshr_b32 s{sT0}, s{sIdx}, 7')
    p(f's_bfe_u32 s{sT1}, s{sIdx}, 0x40003')
    p(f's_sub_u32 s14, 15, s{sT0}')
    p(f's_lshr_b32 s{sT2}, s{sT1}, 2')
    p(f's_add_u32 s15, s{sT2}, 4')
    p(f's_cmp_lt_u32 s{sT0}, 8')
    p(f's_cselect_b32 s{sT0}, s{sT0}, s14')
    p(f's_cselect_b32 s{sT2}, s{sT2}, s15')
    p(f's_and_b32 s{sT1}, s{sT1}, 3')
    p(f's_lshl_b32 s{sT1}, s{sT1}, 3')
    p(f's_add_u32 s{sT1}, s{sT1}, s{sT0}')
    p(f's_lshl_b32 s{sT1}, s{sT1}, 3')
    p(f's_add_u32 s{sT1}, s{sT1}, s{sT2}')
    p(f's_lshl_b32 s{sT1}, s{sT1}, 2')
    p(f's_add_u32 s{sT0}, s{sT1}, {O_RDY}')
    Lr = p.nl(name + '_pollR')
    p(f's_mov_b32 s{sT1}, 0')
    p(f'v_mov_b32 v{t0}, 0')
    p.label(Lr)
    p(f'buffer_load_dword v{t1}, v{t0}, s[{S_ST}:{S_ST+3}], s{sT0} offen sc1')
    p('s_waitcnt vmcnt(0)')
    p(f'v_readfirstlane_b32 s{sT2}, v{t1}')
    p(f's_add_u32 s{sT1}, s{sT1}, 1')
    p(f's_cmp_eq_u32 s{sT2}, s{sTag}')
    p(f's_cbranch_scc1 {Lr}_ok')
    p(f's_cmp_ge_u32 s{sT1}, {SPIN}')
    p(f's_cbranch_scc1 {Lr}_ok')
    p(f's_branch {Lr}')
    p.label(Lr + '_ok')
    tid = 2
    p(f's_lshl_b32 s{sT0}, s{sW}, 6')
    p(f'v_add_u32 v{tid}, s{sT0}, v0')
    p(f'v_lshlrev_b32 v3, 4, v{tid}')
    p(f's_mul_i32 s{sT1}, s{sIdx}, 1280')
    p(f'buffer_load_dwordx4 v[20:23], v3, s[{S_H}:{S_H+3}], s{sT1} offen sc1')
    p(f's_lshl_b32 s{sT0}, s{sIdx}, 2')
    p(f'v_mov_b32 v4, s{sT0}')
    p(f's_mov_b32 s{sT0}, 8192')
    p(f'buffer_load_dword v{mb_}, v4, s[{S_ST}:{S_ST+3}], s{sT0} offen sc1')
    p(f's_mov_b32 s{sT0}, 16384')
    p(f'buffer_load_dword v{sd}, v4, s[{S_ST}:{S_ST+3}], s{sT0} offen sc1')
    p('s_waitcnt vmcnt(0)')
    p(f'v_rcp_f32 v{sm}, v{sd}')
    for k in range(4):
        p(f'v_lshlrev_b32 v{t0}, 16, v{20+k}')
        p(f'v_and_b32 v{t1}, 0xffff0000, v{20+k}')
        p(f'v_sub_f32 v{t0}, v{t0}, v{mb_}')
        p(f'v_sub_f32 v{t1}, v{t1}, v{mb_}')
        p(f'v_cvt_pk_bf16_f32 v{t0}, v{t0}, v{t1}')
        p(f'v_and_b32 v{t1}, 0xffff0000, v{t0}')
        p(f'v_lshlrev_b32 v{t0}, 16, v{t0}')
        p(f'v_mul_f32 v{t0}, v{t0}, v{sm}')
        p(f'v_mul_f32 v{t1}, v{t1}, v{sm}')
        p(f'v_cvt_pk_bf16_f32 v{24+k}, v{t0}, v{t1}')
    HNL = STH
    p(f'v_cmp_gt_u32 vcc, 80, v{tid}')
    p('s_nop 1')
    p('s_and_saveexec_b64 s[14:15], vcc')
    p(f's_cbranch_execz {name}_h1')
    p(f'v_add_u32 v4, {HNL}, v3')
    p(f'ds_write_b128 v4, v[24:27]')
    p(f'ds_write_b128 v4, v[20:23] offset:1280')
    p.label(f'{name}_h1')
    p('s_mov_b64 exec, s[14:15]')
    p('s_waitcnt lgkmcnt(0)')
    p('s_barrier')
    p(f's_mul_i32 s{sT0}, s{sW}, 320')
    p(f's_add_u32 s{sT0}, s{sT0}, {HNL}')
    p(f'v_lshlrev_b32 v6, 4, v5')
    p(f'v_add_u32 v6, s{sT0}, v6')
    AF = 28
    D = 48
    for k in range(5): p(f'ds_read_b128 v[{AF+4*k}:{AF+4*k+3}], v6 offset:{64*k}')
    p('s_waitcnt lgkmcnt(0)')
    for k in range(5):
        for t in range(4):
            c = '0' if k == 0 else f'v[{D+4*t}:{D+4*t+3}]'
            p(f'{MF} v[{D+4*t}:{D+4*t+3}], v[{AF+4*k}:{AF+4*k+3}], v[{GB+16*k+4*t}:{GB+16*k+4*t+3}], {c}')
    p('s_nop 7')
    XB = RB + 1024
    p(f'v_and_b32 v8, 15, v0')
    p(f'v_lshlrev_b32 v8, 2, v8')
    p(f's_lshl_b32 s{sT0}, s{sW}, 8')
    p(f's_add_u32 s{sT0}, s{sT0}, {XB}')
    p(f'v_add_u32 v9, s{sT0}, v8')
    for t in range(4): p(f'ds_write_b32 v9, v{D+4*t} offset:{64*t}')
    p('s_waitcnt lgkmcnt(0)')
    p('s_barrier')
    p(f'v_and_b32 v8, 31, v0')
    p(f'v_lshlrev_b32 v8, 2, v8')
    p(f'v_add_u32 v8, {XB}, v8')
    for w in range(4):
        p(f'ds_read_b32 v{20+w}, v8 offset:{256*w}')
        p(f'ds_read_b32 v{24+w}, v8 offset:{256*w+128}')
    p('s_waitcnt lgkmcnt(0)')
    for b in (20, 24):
        p(f'v_add_f32 v{b}, v{b}, v{b+1}')
        p(f'v_add_f32 v{b+2}, v{b+2}, v{b+3}')
        p(f'v_add_f32 v{b}, v{b}, v{b+2}')
    g_, u_ = 20, 24
    for x in rne_keep(g_, g_): p(x)
    for x in rne_keep(u_, u_): p(x)
    p(f'v_mul_f32 v{t1}, 0xbfb8aa3b, v{g_}')
    p(f'v_exp_f32 v{t1}, v{t1}')
    p('s_nop 0')
    p(f'v_add_f32 v{t1}, 1.0, v{t1}')
    p(f'v_rcp_f32 v{t1}, v{t1}')
    p('s_nop 0')
    p(f'v_mul_f32 v{g_}, v{g_}, v{t1}')
    for x in rne_keep(g_, g_): p(x)
    p(f'v_mul_f32 v{g_}, v{g_}, v{u_}')
    p(f'v_cvt_pk_bf16_f32 v{g_}, v{g_}, v{g_}')
    AB = RB + 2048
    p(f's_lshl_b32 s{sT0}, s{sW}, 6')
    p(f's_add_u32 s{sT0}, s{sT0}, {AB}')
    p(f'v_and_b32 v8, 31, v0')
    p(f'v_lshlrev_b32 v8, 1, v8')
    p(f'v_add_u32 v8, s{sT0}, v8')
    p(f'ds_write_b16 v8, v{g_}')
    p(f'v_lshlrev_b32 v9, 4, v5')
    p(f'v_add_u32 v9, s{sT0}, v9')
    p('s_waitcnt lgkmcnt(0)')
    p(f'ds_read_b128 v[{AF}:{AF+3}], v9')
    p('s_waitcnt lgkmcnt(0)')
    Y = 48
    for mb in range(10): p(f'{MF} v[{Y+4*mb}:{Y+4*mb+3}], v[{AF}:{AF+3}], v[{WB+4*mb}:{WB+4*mb+3}], 0')
    p('s_nop 7')
    for i in range(3):
        dst = 20 + i
        p(f'v_mov_b32 v{dst}, v{Y+4*min(4*i, 9)}')
        for g in range(1, 4):
            mb = 4*i + g
            if mb < 10:
                p(f'v_cmp_eq_u32 vcc, {g}, v5')
                p('s_nop 1')
                p(f'v_cndmask_b32 v{dst}, v{dst}, v{Y+4*mb}, vcc')
    p(f's_and_b32 s{sT0}, s{sFj}, 7')
    p(f's_mul_i32 s{sT0}, s{sT0}, 2560')
    p(f's_add_u32 s{sT0}, s{sT0}, {WS_YACC - WS_STAT}')
    p(f's_mul_i32 s{sT1}, s{sW}, 640')
    p(f's_add_u32 s{sT0}, s{sT0}, s{sT1}')
    p(f'v_lshlrev_b32 v8, 2, v0')
    p(f'buffer_atomic_add_f32 v20, v8, s[{S_ST}:{S_ST+3}], s{sT0} offen')
    p(f'buffer_atomic_add_f32 v21, v8, s[{S_ST}:{S_ST+3}], s{sT0} offen offset:256')
    p('v_cmp_gt_u32 vcc, 32, v0')
    p('s_nop 1')
    p('s_and_saveexec_b64 s[14:15], vcc')
    p(f'buffer_atomic_add_f32 v22, v8, s[{S_ST}:{S_ST+3}], s{sT0} offen offset:512')
    p('s_mov_b64 exec, s[14:15]')
    p('s_waitcnt vmcnt(0)')
    p('s_barrier')
    (p.stamp('ffn atomics done') if 'ln' not in opt else None)
    p(f's_cmp_lg_u32 s{sW}, 0')
    p(f's_cbranch_scc1 {name}_w5')
    p(f's_lshl_b32 s{sT0}, s{sFj}, 2')
    p(f's_add_u32 s{sT0}, s{sT0}, {O_FF}')
    p(f'v_mov_b32 v{t0}, 0')
    p(f'v_mov_b32 v{t1}, s{sTag}')
    p('v_cmp_eq_u32 vcc, 0, v0')
    p('s_nop 1')
    p('s_and_saveexec_b64 s[14:15], vcc')
    p(f'buffer_store_dword v{t1}, v{t0}, s[{S_ST}:{S_ST+3}], s{sT0} offen sc1')
    p('s_mov_b64 exec, s[14:15]')
    p.label(f'{name}_w5')
    p(f's_cmp_lg_u32 s{sFj}, 0')
    p(f's_cbranch_scc1 {name}_fin')
    Lf = p.nl(name + '_pollF')
    p(f's_mov_b32 s{sT1}, 0')
    p(f's_mov_b32 s{sT0}, {O_FF}')
    p(f'v_lshlrev_b32 v{t0}, 2, v0')
    p(f'v_cmp_gt_u32 s[14:15], {NFFN}, v0')
    p.label(Lf)
    p(f'buffer_load_dword v{t1}, v{t0}, s[{S_ST}:{S_ST+3}], s{sT0} offen sc1')
    p('s_waitcnt vmcnt(0)')
    p(f'v_cmp_ne_u32 vcc, s{sTag}, v{t1}')
    p(f's_add_u32 s{sT1}, s{sT1}, 1')
    p('s_nop 0')
    p('s_and_b64 vcc, vcc, s[14:15]')
    p(f's_cbranch_vccz {Lf}_ok')
    p(f's_cmp_ge_u32 s{sT1}, {SPIN}')
    p(f's_cbranch_scc1 {Lf}_ok')
    p('s_sleep 1')
    p(f's_branch {Lf}')
    p.label(Lf + '_ok')
    p(f'v_lshlrev_b32 v8, 2, v{tid}')
    GW = 20
    for i in range(3):
        for c in range(8):
            p(f's_mov_b32 s{sT0}, {WS_YACC - WS_STAT + c*2560 + i*1024}')
            p(f'buffer_load_dword v{GW+8*i+c}, v8, s[{S_ST}:{S_ST+3}], s{sT0} offen sc0 sc1')
    p(f'v_lshlrev_b32 v9, 1, v{tid}')
    p(f'v_add_u32 v10, {HNL}, v9')
    for i in range(3):
        p(f'ds_read_u16 v{50+i}, v10 offset:{512*i}')
        p(f'ds_read_u16 v{54+i}, v10 offset:{1280 + 512*i}')
    p(f'v_mov_b32 v{t1}, s{sR}')
    p(f'v_mul_f32 v{t1}, 0xbfb8aa3b, v{t1}')
    p(f'v_exp_f32 v{t1}, v{t1}')
    p('s_nop 0')
    p(f'v_add_f32 v{t1}, 1.0, v{t1}')
    p(f'v_rcp_f32 v{t1}, v{t1}')
    p('s_nop 0')
    for x in rne_keep(t1, t1): p(x)
    p('s_waitcnt vmcnt(0) lgkmcnt(0)')
    p(f's_mul_i32 s{sT1}, s{sIdx}, 1280')
    for i in range(3):
        b = GW + 8*i
        for c in range(1, 8): p(f'v_add_f32 v{b}, v{b}, v{b+c}')
        for x in rne_keep(b, b): p(x)
        p(f'v_mul_f32 v{b}, v{b}, v{t1}')
        for x in rne_keep(b, b): p(x)
        p(f'v_lshlrev_b32 v{50+i}, 16, v{50+i}')
        p(f'v_lshlrev_b32 v{54+i}, 16, v{54+i}')
        p(f'v_add_f32 v{b}, v{b}, v{50+i}')
        for x in rne_keep(b, b): p(x)
        p(f'v_add_f32 v{b}, v{b}, v{54+i}')
        p(f'v_cvt_pk_bf16_f32 v{b}, v{b}, v{b}')
    p(f'buffer_store_short v{GW}, v9, s[{S_OUT}:{S_OUT+3}], s{sT1} offen sc1')
    p(f'buffer_store_short v{GW+8}, v9, s[{S_OUT}:{S_OUT+3}], s{sT1} offen offset:512 sc1')
    p(f'v_cmp_gt_u32 vcc, 128, v{tid}')
    p('s_nop 1')
    p('s_and_saveexec_b64 s[14:15], vcc')
    p(f's_cbranch_execz {name}_x')
    p(f'buffer_store_short v{GW+16}, v9, s[{S_OUT}:{S_OUT+3}], s{sT1} offen offset:1024 sc1')
    p.label(f'{name}_x')
    p('s_mov_b64 exec, s[14:15]')
    p.label(f'{name}_fin')
    p.dump_stamps(12, 101*MiB, 13)
    p.label(f'{name}_tdone')
    nerr = 0
    return nerr
```
